```python
import torch

def _softmax(x, axis=-1):
    return torch.softmax(x, dim=axis)
def _gelu(x):
    return torch.nn.functional.gelu(x, approximate="tanh")
def _silu(x):
    return torch.nn.functional.silu(x)
def _sigmoid(x):
    return torch.sigmoid(x)
def _layernorm(x, axis=-1, eps=1e-5):
    m = x.mean(dim=axis, keepdim=True)
    v = x.var(dim=axis, keepdim=True, unbiased=False)
    return (x - m) / torch.sqrt(v + eps)
def _scatter_add(tgt, idx, src, axis=0):
    return tgt.clone().index_add_(axis, idx, src)
def _segment_sum(src, seg, n):
    out = torch.zeros((n,) + src.shape[1:], dtype=src.dtype)
    return out.index_add_(0, seg, src)
def _pad(x, pw):
    flat = tuple(v for pair in reversed(pw) for v in pair)
    return torch.nn.functional.pad(x, flat)

kernel_name = 'concat_heads__ssm_conv_s4__linear_attn_block__prompt'

def setup_inputs():

    _w = (lambda a: (lambda t: t.to(torch.bfloat16) if t.is_floating_point() else t)(torch.as_tensor(a)))
    def _A_setup():
        B, L, D, N = 1, 2048, 512, 128
        A_re = -(lambda _x: torch.exp(torch.as_tensor(_x)))((lambda *s: torch.randn(*s, dtype=torch.bfloat16) * 6.4)(D, N))
        A_im = torch.pi * (lambda *s: torch.randn(*s, dtype=torch.bfloat16) * 0.05)(D, N)
        B_re = (lambda *s: torch.randn(*s, dtype=torch.bfloat16) * 0.1)(D, N)
        B_im = (lambda *s: torch.randn(*s, dtype=torch.bfloat16) * 0.1)(D, N)
        C_re = (lambda *s: torch.randn(*s, dtype=torch.bfloat16) * 0.1)(D, N)
        C_im = (lambda *s: torch.randn(*s, dtype=torch.bfloat16) * 0.1)(D, N)
        log_dt = (lambda *s: torch.randn(*s, dtype=torch.bfloat16) * 0.05)(D) * 0.5 - 4.0
        Dskip = (lambda *s: torch.randn(*s, dtype=torch.bfloat16) * 0.05)(D)
        return {
            "u": _w((lambda *s: torch.randn(*s, dtype=torch.bfloat16) * 0.05)(B, L, D)),
            "A_re": _w(A_re),
            "A_im": _w(A_im),
            "B_re": _w(B_re),
            "B_im": _w(B_im),
            "C_re": _w(C_re),
            "C_im": _w(C_im),
            "log_dt": _w(log_dt),
            "Dskip": _w(Dskip),
        }
    _A_in = _A_setup()

    def _B_setup():
        B, S, D = 1, 2048, 512
        return {
            "x": _w((lambda *s: torch.randn(*s, dtype=torch.bfloat16) * 0.05)(B, S, D)),
            "wqkv": _w((lambda *s: torch.randn(*s, dtype=torch.bfloat16) * 0.4)(D, 3 * D)),
            "wo": _w((lambda *s: torch.randn(*s, dtype=torch.bfloat16) * 0.05)(D, D)),
        }
    _B_in = _B_setup()

    return {
        "A_u": _A_in["u"],
        "A_A_re": _A_in["A_re"],
        "A_A_im": _A_in["A_im"],
        "A_B_re": _A_in["B_re"],
        "A_B_im": _A_in["B_im"],
        "A_C_re": _A_in["C_re"],
        "A_C_im": _A_in["C_im"],
        "A_log_dt": _A_in["log_dt"],
        "A_Dskip": _A_in["Dskip"],
        "B_x": _B_in["x"],
        "B_wqkv": _B_in["wqkv"],
        "B_wo": _B_in["wo"],
    }

def reference(A_u, A_A_re, A_A_im, A_B_re, A_B_im, A_C_re, A_C_im, A_log_dt, A_Dskip, B_x, B_wqkv, B_wo):
    def _A_ref(u, A_re, A_im, B_re, B_im, C_re, C_im, log_dt, Dskip):
        Bsz, L, D = u.shape
        dt = torch.exp(log_dt)[:, None]
        A = A_re + 1j * A_im
        Bc = B_re + 1j * B_im
        Cc = C_re + 1j * C_im
        logdA = dt * A
        dB = dt * Bc
        l = (lambda x, dt: x.to(dt))(torch.arange(L), A_re.dtype)
        P = torch.exp(logdA[:, :, None] * l[None, None, :])
        K = torch.einsum("dn,dnl,dn->dl", Cc, P, dB).real
        L2 = 2 * L
        Kp = _pad(K, ((0, 0), (0, L)))
        up = (lambda x, *d: x.permute(*d))(u, 0, 2, 1)
        up = _pad(up, ((0, 0), (0, 0), (0, L)))
        Kf = (lambda x, axes=(-2,-1): torch.fft.rfft2(x.float(), dim=axes))(Kp[:, None, :], axes=(-2, -1))
        Uf = (lambda x, axes=(-2,-1): torch.fft.rfft2(x.float(), dim=axes))(up[:, :, None, :], axes=(-2, -1))
        Yf = Uf * Kf[None, :, :, :]
        y = (lambda x, s, axes=(-2,-1): torch.fft.irfft2(x, s=s, dim=axes).to(torch.bfloat16))(Yf, (1, L2), axes=(-2, -1))[:, :, 0, :L]
        y = (lambda x, *d: x.permute(*d))(y, 0, 2, 1) + u * Dskip[None, None, :]
        return y

    def _B_ref(x, wqkv, wo):
        B, S, D = x.shape
        H = 32; Dh = D // H
        qkv = (lambda x, *d: x.permute(*d))((x @ wqkv).reshape(B, S, 3, H, Dh), 2, 0, 3, 1, 4)
        q, k, v = qkv[0], qkv[1], qkv[2]
        phi = lambda t: torch.where(t > 0, t + 1, torch.exp(t)) + 1e-6
        pq, pk = phi(q), phi(k)
        kv = torch.einsum("bhsd,bhse->bhde", pk, v)
        z = torch.einsum("bhsd->bhd", pk)
        num = torch.einsum("bhqd,bhde->bhqe", pq, kv)
        den = torch.einsum("bhqd,bhd->bhq", pq, z)[..., None] + 1e-6
        o = num / den
        return (lambda x, *d: x.permute(*d))(o, 0, 2, 1, 3).reshape(B, S, D) @ wo

    a = _A_ref(A_u, A_A_re, A_A_im, A_B_re, A_B_im, A_C_re, A_C_im, A_log_dt, A_Dskip)
    b = _B_ref(B_x, B_wqkv, B_wo)
    return torch.concatenate([a, b], axis=-1)
```

```python
import re

TRANS = ("v_exp_f32", "v_log_f32", "v_rcp_f32", "v_rsq_f32", "v_sqrt_f32", "v_sin_f32", "v_cos_f32")

def regs_of(tok):
    tok = tok.strip()
    tok = tok.lstrip("-").replace("abs(", "").replace("|", "").rstrip(")")
    m = re.fullmatch(r"([vsa])\[(\d+):(\d+)\]", tok)
    if m:
        return {(m.group(1), i) for i in range(int(m.group(2)), int(m.group(3)) + 1)}
    m = re.fullmatch(r"([vsa])(\d+)", tok)
    if m:
        return {(m.group(1), int(m.group(2)))}
    if tok in ("vcc", "vcc_lo", "vcc_hi"):
        return {("vcc", 0)}
    if tok in ("exec", "exec_lo", "exec_hi"):
        return {("exec", 0)}
    if tok == "m0":
        return {("m0", 0)}
    return set()

class Ins:
    __slots__ = ("text", "op", "dst", "src", "kind", "passes", "dpp", "srcC", "lds_dma", "wide_store")
    def __init__(self, text):
        self.text = text
        t = text.split(";")[0].strip()
        parts = t.split(None, 1)
        self.op = parts[0]
        ops = []
        if len(parts) > 1:
            cur = ""; depth = 0
            for ch in parts[1]:
                if ch == "[": depth += 1
                if ch == "]": depth -= 1
                if ch == "," and depth == 0:
                    ops.append(cur); cur = ""
                else:
                    cur += ch
            ops.append(cur)
        first = [o.strip().split()[0] if o.strip() else "" for o in ops]
        op = self.op
        self.dpp = ("quad_perm" in t or "row_" in t or "wave_" in t)
        self.lds_dma = (" lds" in t and op.startswith("buffer_load")) or op.startswith("global_load_lds")
        self.wide_store = bool(re.match(r"(global|buffer)_store_dwordx[34]", op))
        self.srcC = set()
        self.passes = 0
        R = [regs_of(o) for o in first]
        allr = lambda lst: set().union(*lst) if lst else set()
        if op.startswith("v_mfma"):
            self.kind = "mfma"
            self.passes = 8 if "32x32" in op else 4
            self.dst = R[0]; self.src = allr(R[1:4]); self.srcC = R[3] if len(R) > 3 else set()
        elif op.startswith("v_cmp"):
            self.kind = "valu"; self.dst = R[0]; self.src = allr(R[1:])
        elif op.startswith("v_readfirstlane") or op.startswith("v_readlane"):
            self.kind = "valu"; self.dst = R[0]; self.src = allr(R[1:])
        elif op.startswith("v_permlane"):
            self.kind = "valu"; self.dst = allr(R[:2]); self.src = allr(R[:2])
        elif op.startswith("v_"):
            self.kind = "valu"; self.dst = R[0]; self.src = allr(R[1:])
            if op.startswith(("v_fmac", "v_dot2c", "v_pk_fmac")): self.src |= R[0]
            if op.startswith("v_cndmask") and len(R) == 3: self.src |= {("vcc", 0)}
            if op.startswith(("v_add_co", "v_sub_co", "v_addc_co")):
                self.dst = allr(R[:2]); self.src = allr(R[2:])
            if self.dpp: self.src |= R[0]
        elif op.startswith("ds_"):
            self.kind = "ds"
            if op.startswith(("ds_read", "ds_bpermute", "ds_permute", "ds_swizzle")) or "_rtn" in op:
                self.dst = R[0]; self.src = allr(R[1:])
            else:
                self.dst = set(); self.src = allr(R)
        elif op.startswith(("global_", "buffer_")):
            self.kind = "vmem"
            if self.lds_dma:
                self.dst = set(); self.src = allr(R) | {("m0", 0)}
            elif "_load" in op:
                self.dst = R[0]; self.src = allr(R[1:])
            else:
                self.dst = set(); self.src = allr(R)
        elif op.startswith("s_"):
            self.kind = "salu"
            if op.startswith(("s_cmp", "s_cbranch", "s_branch", "s_waitcnt", "s_barrier", "s_nop", "s_endpgm", "s_setprio", "s_sleep")):
                self.dst = set(); self.src = allr(R)
            else:
                self.dst = R[0] if R else set(); self.src = allr(R[1:])
                if "saveexec" in op: self.dst |= {("exec", 0)}
        else:
            raise ValueError("unknown op: " + text)

    def states(self):
        if self.op == "s_nop":
            return int(self.text.split()[1].split(";")[0], 0) + 1
        return 1

def vonly(s): return {r for r in s if r[0] in ("v", "a")}
def sonly(s): return {r for r in s if r[0] in ("s", "vcc")}

def need(prev, cur):
    n = 0
    pv = vonly(prev.dst)
    if prev.kind == "valu":
        if cur.kind == "mfma" and pv & cur.src: n = max(n, 2)
        if cur.kind == "valu":
            if prev.op.replace("_e32", "").replace("_e64", "") in TRANS and pv & cur.src and cur.op not in TRANS: n = max(n, 1)
            if prev.op in TRANS and pv & cur.src: n = max(n, 1)
            if cur.op.startswith(("v_readfirstlane", "v_readlane")) and pv & cur.src: n = max(n, 1)
            if cur.dpp and pv & cur.src: n = max(n, 2)
            if cur.op.startswith("v_permlane") and pv & cur.src: n = max(n, 2)
            if sonly(prev.dst) & cur.src: n = max(n, 2)
        if cur.kind == "vmem" and sonly(prev.dst) & cur.src: n = max(n, 5)
        if cur.kind == "salu" and sonly(prev.dst) & cur.src: n = max(n, 1)
    if prev.kind == "mfma":
        big = 12 if prev.passes == 8 else 8
        if cur.kind == "valu" and (prev.dst & (cur.src | cur.dst)): n = max(n, big)
        if cur.kind in ("ds", "vmem") and (prev.dst & (cur.src | cur.dst)): n = max(n, big)
        if cur.kind == "mfma":
            ab = cur.src - cur.srcC if not (cur.srcC and cur.srcC <= cur.src and False) else cur.src
            t = cur.text.split(";")[0]
            opsAB = set()
            toks = [x.strip().split()[0] for x in re.split(r",(?![^\[]*\])", t.split(None, 1)[1])]
            opsAB = regs_of(toks[1]) | regs_of(toks[2])
            if prev.dst & opsAB: n = max(n, big)
            if prev.dst & cur.srcC:
                if not (prev.dst == cur.srcC and prev.passes == cur.passes):
                    n = max(n, 10 if prev.passes == 8 else 6)
        if cur.kind == "valu" and (prev.srcC & cur.dst): n = max(n, 7 if prev.passes == 8 else 3)
    if prev.wide_store and cur.kind == "valu" and (vonly(prev.src) & cur.dst): n = max(n, 2)
    if prev.kind == "salu" and ("m0", 0) in prev.dst and cur.lds_dma: n = max(n, 1)
    return n

class Asm:
    def __init__(self):
        self.lines = []
        self.vm = []
        self.lg = []
        self.nlabel = 0
    def e(self, text, vm=None, lg=None):
        for ln in text.strip("\n").split("\n"):
            s = ln.strip()
            if not s or s.startswith(";"):
                if s: self.lines.append("    " + s)
                continue
            if s == "s_sleep 0":
                continue
            if s.endswith(":") or s.startswith("."):
                self.lines.append(s); continue
            ins = Ins(s)
            self.lines.append(ins)
            if ins.kind == "vmem" and not ins.op.startswith(("buffer_inv", "buffer_wbl2")):
                self.vm.append(vm)
            if ins.kind == "ds":
                self.lg.append(lg)
            if ins.op == "s_waitcnt" and "lgkmcnt(0)" in ins.text:
                self.lg = []
    def c(self, text): self.lines.append("    ; " + text)
    def label(self, name): self.lines.append(name + ":")
    def newlabel(self, base):
        self.nlabel += 1
        return f"L_{base}_{self.nlabel}"
    def wait_vm(self, tags, extra=""):
        if isinstance(tags, str): tags = [tags]
        last = -1
        for i, t in enumerate(self.vm):
            if t in tags: last = i
        if last < 0:
            return
        n = len(self.vm) - 1 - last
        assert n <= 63
        self.e(f"s_waitcnt vmcnt({n}){extra}")
        self.vm = self.vm[last + 1:]
    def wait_lg(self, tags):
        if isinstance(tags, str): tags = [tags]
        last = -1
        for i, t in enumerate(self.lg):
            if t in tags: last = i
        if last < 0: return
        n = len(self.lg) - 1 - last
        if n > 15:
            n = 15
            last = len(self.lg) - 1 - 15
        self.e(f"s_waitcnt lgkmcnt({n})")
        self.lg = self.lg[last + 1:]
    def wait_vm_all(self, extra=""):
        self.e(f"s_waitcnt vmcnt(0){extra}")
        self.vm = []
    def render(self, pad=True):
        out = []; hist = []
        nn = 0
        for ln in self.lines:
            if isinstance(ln, str):
                out.append(ln)
                continue
            if pad:
                req = 0; dist = 0
                for p in reversed(hist[-24:]):
                    r = need(p, ln)
                    if r - dist > req: req = r - dist
                    dist += p.states()
                    if dist >= 12: break
                while req > 0:
                    k = min(req, 16)
                    nop = Ins(f"s_nop {k-1}")
                    out.append("    " + nop.text + "  ; hz"); hist.append(nop); req -= k; nn += 1
            out.append("    " + ln.text); hist.append(ln)
        self.nnops = nn
        return "\n".join(out) + "\n"

KNAME = "concat_heads__ssm_conv_s4__linear_attn_block__prompt_kernel"
def wrap(body, header, grid, block, lds, vgpr=256, sgpr=102, accum=256):
    return f"""{header}; @launch grid=({grid},1,1) block=({block},1,1) lds={lds}
.amdgcn_target "amdgcn-amd-amdhsa--gfx950"
.text
.globl {KNAME}
.p2align 8
.type {KNAME},@function
{KNAME}:
{body}
.section .rodata,"a"
.p2align 6
.amdhsa_kernel {KNAME}
  .amdhsa_next_free_vgpr {vgpr}
  .amdhsa_next_free_sgpr {sgpr}
  .amdhsa_accum_offset {accum}
  .amdhsa_group_segment_fixed_size 0
  .amdhsa_kernarg_size 120
  .amdhsa_user_sgpr_count 2
  .amdhsa_user_sgpr_kernarg_segment_ptr 1
  .amdhsa_system_sgpr_workgroup_id_x 1
.end_amdhsa_kernel
"""
```

```python
from asmlib import Asm
import kern as K

UT, YT = K.UT, K.YT
SPIN = K.SPIN_LIMIT
ROWB = 528
XT = [0, 30096]
YOFF = 41*ROWB
KC = [60192, 61728]
NONCE_LDS = 63264
KD = [0, 4112]
CP = [8448, 8448 + 16640]
UR = [41728, 41728 + 7600]
YP = 0
ROWS = list(range(8)) + [128+k for k in range(8)] + [256+2*k for k in range(4)] + [384+2*k for k in range(4)] + \
       [512, 516, 640, 644, 768, 772, 896, 900] + [1024+128*k for k in range(8)] + [2048]
assert len(ROWS) == 41

def fhex(x):
    import struct
    return hex(struct.unpack("<I", struct.pack("<f", x))[0])

def cmul(a, d, x, y, t):
    a.e(f"v_pk_mul_f32 v[{t}:{t+1}], v[{x}:{x+1}], v[{y}:{y+1}] op_sel_hi:[1,0]")
    a.e(f"v_pk_fma_f32 v[{d}:{d+1}], v[{x}:{x+1}], v[{y}:{y+1}], v[{t}:{t+1}] op_sel:[1,1,0] op_sel_hi:[0,1,1] neg_lo:[1,0,0]")

def poll_tags_loop(a, name, loads, tagregs):
    a.e("s_mov_b32 s61, 0")
    a.label(f"L_{name}_poll")
    for l in loads: a.e(l)
    a.e("s_add_u32 s61, s61, 1")
    a.e("s_waitcnt vmcnt(0)")
    K.tag_check(a, tagregs, acc="v9")
    a.e(f"""
    s_cmp_gt_u32 s61, {SPIN}
    s_cbranch_scc1 L_{name}_go
    s_cbranch_vccz L_{name}_go
    s_sleep 1
    s_branch L_{name}_poll
    """)
    a.label(f"L_{name}_go")
    a.vm = []

def role_A(a, cfg):
    st = lambda i: K.stamp(a, cfg, i)
    a.c("================= role A =================")
    a.e("""
    s_lshr_b32 s47, s39, 1
    s_and_b32 s48, s39, 1           ; w2
    s_lshl_b32 s49, s40, 6          ; 64 g
    s_lshl_b32 s50, s41, 1
    s_add_u32 s50, s50, s49         ; d0 = 64g + 2j
    s_add_u32 s51, s50, s47
    s_lshl_b32 s51, s51, 8
    v_and_b32 v2, 127, v0
    v_lshl_add_u32 v2, v2, 1, s51
    v_lshrrev_b32 v3, 4, v0         ; r''
    v_and_b32 v4, 15, v0            ; c8
    s_lshl_b32 s52, s41, 6
    v_lshl_add_u32 v5, v3, 2, s52   ; t0 = 64j + 4r''
    v_lshlrev_b32 v6, 10, v5
    s_lshl_b32 s53, s49, 1
    v_lshl_add_u32 v7, v4, 3, s53
    v_add_u32 v6, v6, v7            ; u offset
    s_waitcnt lgkmcnt(0)
    """)
    st(1)
    a.e("""
    global_load_dwordx2 v[16:17], v6, s[8:9]
    global_load_dwordx2 v[18:19], v6, s[8:9] offset:1024
    global_load_dwordx2 v[20:21], v6, s[8:9] offset:2048
    global_load_dwordx2 v[22:23], v6, s[8:9] offset:3072
    """, vm="u")
    a.e("""
    global_load_ushort v10, v2, s[10:11]
    global_load_ushort v11, v2, s[12:13]
    global_load_ushort v12, v2, s[14:15]
    global_load_ushort v13, v2, s[16:17]
    global_load_ushort v14, v2, s[18:19]
    global_load_ushort v15, v2, s[20:21]
    """, vm="par")
    a.e("global_load_dwordx2 v[24:25], v7, s[24:25]", vm="dsk")
    a.e("""
    s_lshl_b32 s54, s50, 1
    s_add_u32 s54, s22, s54
    s_addc_u32 s55, s23, 0
    s_load_dword s56, s[54:55], 0
    """)
    a.e("""
    v_mov_b32 v8, 0
    s_cmp_lg_u32 s39, 0
    s_cbranch_scc1 L_a_nn
    s_mov_b32 s61, 0
    """)
    a.label("L_a_npoll")
    a.e(f"""
    global_load_dword v9, v8, s[34:35] sc1
    s_waitcnt vmcnt(0)
    v_readfirstlane_b32 s38, v9
    s_add_u32 s61, s61, 1
    s_cmp_gt_u32 s61, {SPIN}
    s_cbranch_scc1 L_a_nok
    s_cmp_eq_u32 s38, 0
    s_cbranch_scc1 L_a_npoll
    """)
    a.vm.pop()
    a.label("L_a_nok")
    a.e(f"""
    v_mov_b32 v9, s38
    ds_write_b32 v8, v9 offset:{NONCE_LDS}
    """)
    a.label("L_a_nn")
    if cfg.touch:
        K.a_touch_setup(a, cfg)
        K.a_touch(a, cfg, {2: ["x0", "k0", "x1"], 3: ["k1", "q"]})
    a.e("""
    s_cmp_ge_u32 s39, 2
    s_cbranch_scc1 L_a_w23
    s_waitcnt vmcnt(0)
    s_branch L_a_wdone
    """)
    a.label("L_a_w23")
    if cfg.touch:
        a.e("""
        s_cmp_eq_u32 s39, 2
        s_cbranch_scc0 L_a_w3
        s_waitcnt vmcnt(3)
        s_branch L_a_wdone
        """)
        a.label("L_a_w3")
        a.e("s_waitcnt vmcnt(2)")
    else:
        a.e("s_waitcnt vmcnt(0)")
    a.label("L_a_wdone")
    a.vm = []
    a.e("""
    s_mov_b32 s57, 0x05040100
    s_mov_b32 s58, 0x07060302
    """)
    for e in range(4):
        sel = "s57" if e % 2 == 0 else "s58"
        h = e // 2
        a.e(f"v_perm_b32 v{32+4*e}, v{20+h}, v{22+h}, {sel}")
        a.e(f"v_perm_b32 v{34+4*e}, v{16+h}, v{18+h}, {sel}")
    a.e(f"""
    v_lshlrev_b32 v26, 2, v4
    v_add_u32 v26, s49, v26
    v_lshlrev_b32 v26, 13, v26
    s_lshl_b32 s59, s41, 5
    s_sub_u32 s59, 1022, s59
    v_lshlrev_b32 v27, 1, v3
    v_sub_u32 v27, s59, v27
    v_lshl_add_u32 v26, v27, 3, v26
    v_add_u32 v26, {UT}, v26
    s_waitcnt lgkmcnt(0)
    s_barrier
    ds_read_b32 v9, v8 offset:{NONCE_LDS}
    s_waitcnt lgkmcnt(0)
    v_readfirstlane_b32 s38, v9
    """)
    for e in range(4):
        a.e(f"v_mov_b32 v{33+4*e}, s38")
        a.e(f"v_mov_b32 v{35+4*e}, s38")
    for e in range(4):
        if e: a.e(f"v_add_u32 v26, 8192, v26")
        a.e(f"global_store_dwordx4 v26, v[{32+4*e}:{35+4*e}], s[36:37] sc1")
        if cfg.dual: a.e(f"global_store_dwordx4 v26, v[{32+4*e}:{35+4*e}], s[36:37]")
        a.e("s_nop 1")
    st(2)
    if cfg.touch:
        K.a_touch(a, cfg, {3: ["o"]})
    LOG2E = fhex(1.4426950408889634); INV2PI = fhex(0.15915494309189535)
    a.e(f"""
    s_lshr_b32 s59, s56, 16
    s_and_b32 s60, s56, 0xffff
    s_cmp_eq_u32 s47, 0
    s_cselect_b32 s59, s60, s59
    s_lshl_b32 s59, s59, 16
    v_mov_b32 v28, s59
    v_mul_f32 v29, {LOG2E}, v28
    v_mov_b32 v30, {LOG2E}
    v_fma_f32 v30, v28, v30, -v29
    v_fmac_f32 v30, 0x32a57060, v28
    v_exp_f32 v29, v29
    v_mul_f32 v30, {fhex(0.6931471805599453)}, v30
    v_fma_f32 v29, v29, v30, v29
    v_cvt_pk_bf16_f32 v29, v29, v29
    v_lshlrev_b32 v29, 16, v29
    """)
    for i in range(6): a.e(f"v_lshlrev_b32 v{10+i}, 16, v{10+i}")
    a.e(f"""
    v_mul_f32 v10, v29, v10          ; a_re
    v_mul_f32 v11, v29, v11          ; a_im
    v_mul_f32 v12, v29, v12          ; dB_re
    v_mul_f32 v13, v29, v13          ; dB_im
    v_mul_f32 v10, {LOG2E}, v10      ; ar2
    v_mul_f32 v11, {INV2PI}, v11     ; ai2
    """)
    P = {}
    nxtp = [40]
    def pair(name):
        P[name] = nxtp[0]; nxtp[0] += 2
        return P[name]
    TMP = [36, 38]
    ti = [0]
    def mul(dn, xn, yn):
        d = P.get(dn) or pair(dn)
        t = TMP[ti[0] % 2]; ti[0] += 1
        cmul(a, d, P[xn], P[yn], t)
    P["C"] = 14; P["dB"] = 12
    pair("X0"); cmul(a, P["X0"], 14, 12, 36)
    for x in (1, 8, 128, 256, 512, 1024):
        d = pair(f"E{x}")
        if x == 1:
            a.e(f"v_exp_f32 v32, v10")
            a.e(f"v_fract_f32 v33, v11")
        else:
            a.e(f"v_mul_f32 v32, {fhex(float(x))}, v10")
            a.e(f"v_mul_f32 v33, {fhex(float(x))}, v11")
            a.e(f"v_exp_f32 v32, v32")
            a.e(f"v_fract_f32 v33, v33")
        a.e(f"v_cos_f32 v34, v33")
        a.e(f"v_sin_f32 v35, v33")
        a.e(f"v_mul_f32 v{d}, v32, v34")
        a.e(f"v_mul_f32 v{d+1}, v32, v35")
    a.e(f"""
    v_and_b32 v31, 127, v0
    v_lshlrev_b32 v31, 2, v31
    s_mul_i32 s59, s47, {XT[1]}
    v_add_u32 v31, s59, v31
    """)
    cv = [0]
    def putX(x, name):
        r = 32 + (cv[0] % 4); cv[0] += 1
        p = P[name]
        a.e(f"v_cvt_pk_bf16_f32 v{r}, v{p}, -v{p+1}")
        a.e(f"ds_write_b32 v31, v{r} offset:{ROWS.index(x)*ROWB}")
    def putY(j, name):
        r = 32 + (cv[0] % 4); cv[0] += 1
        p = P[name]
        a.e(f"v_cvt_pk_bf16_f32 v{r}, v{p}, v{p+1}")
        a.e(f"ds_write_b32 v31, v{r} offset:{YOFF + j*ROWB}")
    putX(0, "X0")
    a.e("v_mov_b32 v32, 0x3f80")
    a.e(f"ds_write_b32 v31, v32 offset:{YOFF}")
    cv[0] = 1
    P["Y8"] = P["E8"]; putY(1, "Y8")
    for k in range(1, 8):
        mul(f"X{k}", f"X{k-1}", "E1"); putX(k, f"X{k}")
    mul("Y16", "Y8", "Y8"); putY(2, "Y16")
    mul("Y24", "Y16", "Y8"); putY(3, "Y24")
    mul("Y32", "Y16", "Y16"); putY(4, "Y32")
    mul("Y40", "Y32", "Y8"); putY(5, "Y40")
    mul("Y48", "Y32", "Y16"); putY(6, "Y48")
    mul("Y56", "Y32", "Y24"); putY(7, "Y56")
    mul("Y64", "Y32", "Y32"); putY(8, "Y64")
    pair("S0"); pair("S1")
    si = [0]
    def scratch():
        n = f"S{si[0] % 2}"; si[0] += 1
        return n
    for j in range(9, 16):
        s_ = scratch(); mul(s_, "Y64", f"Y{8*j-64}"); putY(j, s_)
    for k in range(8):
        s_ = scratch(); mul(s_, f"X{k}", "E128"); putX(128+k, s_)
    for k in (0, 2, 4, 6):
        mul("S0", f"X{k}", "E256"); putX(256+k, "S0")
        mul("S1", "S0", "E128"); putX(384+k, "S1")
    for k in (0, 4):
        mul("S0", f"X{k}", "E512"); putX(512+k, "S0")
        mul("S1", "S0", "E128"); putX(640+k, "S1")
        mul("S0", "S1", "E128"); putX(768+k, "S0")
        mul("S1", "S0", "E128"); putX(896+k, "S1")
    pair("XK"); mul("XK", "X0", "E1024"); putX(1024, "XK")
    mul("S0", "XK", "E1024"); putX(2048, "S0")
    prev = "XK"
    for q in range(1, 8):
        cur = "S1" if prev != "S1" else "S0"
        mul(cur, prev, "E128"); putX(1024+128*q, cur); prev = cur
    assert nxtp[0] <= 120, nxtp
    a.e(f"""
    v_and_b32 v26, 15, v1
    v_mul_u32_u24 v26, {ROWB}, v26
    v_lshrrev_b32 v27, 4, v1
    v_lshl_add_u32 v26, v27, 4, v26
    s_mul_i32 s59, s47, {XT[1]}
    v_add_u32 v26, s59, v26
    s_waitcnt lgkmcnt(0)
    s_barrier
    """)
    st(3)
    YF, XF, D0 = 32, 64, 128
    for s in range(8):
        a.e(f"ds_read_b128 v[{YF+4*s}:{YF+4*s+3}], v26 offset:{YOFF + 64*s}")
    a.e("""
    s_cmp_eq_u32 s48, 0
    s_cbranch_scc0 L_a_k2
    """)
    for t in range(2):
        for s in range(8):
            a.e(f"ds_read_b128 v[{XF+32*t+4*s}:{XF+32*t+4*s+3}], v26 offset:{t*16*ROWB + 64*s}")
    a.e("s_waitcnt lgkmcnt(0)")
    for s in range(8):
        for t in range(2):
            c = "0" if s == 0 else f"v[{D0+4*t}:{D0+4*t+3}]"
            a.e(f"v_mfma_f32_16x16x32_bf16 v[{D0+4*t}:{D0+4*t+3}], v[{XF+32*t+4*s}:{XF+32*t+4*s+3}], v[{YF+4*s}:{YF+4*s+3}], {c}")
    a.e(f"""
    s_mul_i32 s59, s47, {KC[1]-KC[0]}
    s_add_u32 s59, s59, {KC[0]}
    v_and_b32 v28, 15, v1            ; j
    v_lshrrev_b32 v29, 4, v1         ; g
    v_lshrrev_b32 v30, 1, v29
    v_lshlrev_b32 v30, 7, v30
    v_lshl_add_u32 v30, v28, 3, v30
    v_and_b32 v9, 1, v29
    v_lshl_add_u32 v30, v9, 2, v30
    v_lshl_add_u32 v30, v30, 1, s59
    v_cvt_pk_bf16_f32 v136, v{D0}, v{D0+1}
    v_cvt_pk_bf16_f32 v137, v{D0+2}, v{D0+3}
    ds_write_b64 v30, v[136:137]
    ; tile 1: g<2: A = 256 + 64g + 4j, B = A+2 ; g>=2: A = 384 + 64(g-2) + 2j, B = A + 32
    v_lshlrev_b32 v30, 6, v29        ; 64 g
    v_cmp_gt_u32 vcc, 2, v29
    v_lshlrev_b32 v138, 2, v28       ; 4j
    v_lshlrev_b32 v139, 1, v28       ; 2j
    v_cndmask_b32 v138, v139, v138, vcc
    v_add_u32 v30, v30, v138
    v_add_u32 v30, 256, v30          ; g<2: 256+64g+4j ; g>=2: 256 + 64g + 2j = 384 + 64(g-2) + 2j
    v_mov_b32 v138, 32
    v_mov_b32 v139, 2
    v_cndmask_b32 v138, v138, v139, vcc
    v_add_u32 v138, v30, v138
    v_lshl_add_u32 v30, v30, 1, s59
    v_lshl_add_u32 v138, v138, 1, s59
    v_cvt_pk_bf16_f32 v136, v{D0+4}, v{D0+5}
    v_cvt_pk_bf16_f32 v137, v{D0+6}, v{D0+7}
    ds_write_b32 v30, v136
    ds_write_b32 v138, v137
    s_branch L_a_kdone
    """)
    a.label("L_a_k2")
    for s in range(8):
        a.e(f"ds_read_b128 v[{XF+4*s}:{XF+4*s+3}], v26 offset:{2*16*ROWB + 64*s}")
    a.e("s_waitcnt lgkmcnt(0)")
    for s in range(8):
        c = "0" if s == 0 else f"v[{D0}:{D0+3}]"
        a.e(f"v_mfma_f32_16x16x32_bf16 v[{D0}:{D0+3}], v[{XF+4*s}:{XF+4*s+3}], v[{YF+4*s}:{YF+4*s+3}], {c}")
    a.e(f"""
    s_mul_i32 s59, s47, {KC[1]-KC[0]}
    s_add_u32 s59, s59, {KC[0]}
    v_and_b32 v28, 15, v1
    v_lshrrev_b32 v29, 4, v1
    v_lshl_add_u32 v30, v29, 6, v28
    v_add_u32 v30, 512, v30
    v_lshl_add_u32 v30, v30, 1, s59
    v_cvt_pk_bf16_f32 v136, v{D0}, v{D0+1}
    v_cvt_pk_bf16_f32 v137, v{D0+2}, v{D0+3}
    ds_write_b16 v30, v136
    ds_write_b16_d16_hi v30, v136 offset:32
    ds_write_b16 v30, v137 offset:64
    ds_write_b16_d16_hi v30, v137 offset:96
    """)
    a.label("L_a_kdone")
    a.e("s_waitcnt lgkmcnt(0)")
    a.e("s_barrier")
    st(4)
    a.e(f"""
    v_lshlrev_b32 v26, 4, v0         ; 16*m'
    v_add_u32 v26, 16, v26
    s_mov_b32 s57, 0x01000100        ; (lo,lo) of S1
    s_mov_b32 s58, 0x03020302        ; (hi,hi) of S1
    s_mov_b32 s59, 0x05040302        ; (hi of S1, lo of S0)
    s_mov_b32 s60, 0x03020100        ; S1
    s_mov_b32 s62, 0x05040100        ; (lo S1, lo S0)
    s_cmp_eq_u32 s39, 0
    s_cbranch_scc1 L_a_e0
    s_cmp_eq_u32 s39, 1
    s_cbranch_scc1 L_a_e2
    """)
    a.e(f"""
    v_add_u32 v27, {512-128}, v0
    v_lshlrev_b32 v27, 1, v27
    v_and_b32 v28, 1, v0
    v_cmp_eq_u32 vcc, 0, v28
    """)
    for c in range(2):
        a.e(f"ds_read_u16 v{32+2*c}, v27 offset:{KC[c]}")
        a.e(f"ds_read_u16 v{33+2*c}, v27 offset:{KC[c]+2}")
    a.e("s_waitcnt lgkmcnt(0)")
    for c in range(2):
        c0, c1 = 32+2*c, 33+2*c
        o = 40 + 4*c
        a.e(f"v_perm_b32 v{o}, v{c1}, v{c0}, s57")
        a.e(f"v_mov_b32 v{o+1}, v{o}")
        a.e(f"v_perm_b32 v{o+3}, v{c0}, v{c1}, s57")
        a.e(f"v_perm_b32 v{o+2}, v{c1}, v{c0}, s62")
        a.e(f"v_cndmask_b32 v{o+2}, v{o+3}, v{o+2}, vcc")
    a.e("s_branch L_a_ew")
    a.label("L_a_e2")
    a.e(f"""
    v_lshlrev_b32 v27, 2, v0
    v_add_u32 v27, {(384-128)*2}, v27
    """)
    for c in range(2):
        a.e(f"ds_read_b32 v{32+2*c}, v27 offset:{KC[c]}")
        a.e(f"ds_read_b32 v{33+2*c}, v27 offset:{KC[c]+4}")
    a.e("s_waitcnt lgkmcnt(0)")
    for c in range(2):
        A_, B_ = 32+2*c, 33+2*c
        o = 40 + 4*c
        a.e(f"v_perm_b32 v{o}, v{A_}, v{A_}, s57")
        a.e(f"v_mov_b32 v{o+1}, v{A_}")
        a.e(f"v_perm_b32 v{o+2}, v{A_}, v{A_}, s58")
        a.e(f"v_perm_b32 v{o+3}, v{B_}, v{B_}, s57")
    a.e("s_branch L_a_ew")
    a.label("L_a_e0")
    a.e(f"""
    v_lshlrev_b32 v27, 4, v0
    v_lshlrev_b32 v28, 3, v0
    v_add_u32 v28, {(256-128)*2}, v28
    """)
    for c in range(2):
        a.e(f"ds_read_b128 v[{40+4*c}:{43+4*c}], v27 offset:{KC[c]}")
        a.e(f"ds_read_b64 v[{32+4*c}:{33+4*c}], v28 offset:{KC[c]}")
        a.e(f"ds_read_b32 v{34+4*c}, v28 offset:{KC[c]+8}")
    a.e("""
    v_cmp_le_u32 vcc, 32, v0
    s_waitcnt lgkmcnt(0)
    """)
    for c in range(2):
        A_, B_, C_ = 32+4*c, 33+4*c, 34+4*c
        o = 40 + 4*c
        a.e(f"v_perm_b32 v48, v{A_}, v{A_}, s57")
        a.e(f"v_perm_b32 v49, v{B_}, v{A_}, s59")
        a.e(f"v_perm_b32 v50, v{B_}, v{B_}, s57")
        a.e(f"v_perm_b32 v51, v{C_}, v{B_}, s59")
        for q in range(4):
            a.e(f"v_cndmask_b32 v{o+q}, v{o+q}, v{48+q}, vcc")
    a.label("L_a_ew")
    for c in range(2):
        a.e(f"ds_write_b128 v26, v[{40+4*c}:{43+4*c}] offset:{KD[c]}")
    a.e(f"""
    v_mov_b32 v48, 0
    v_mov_b32 v49, 0
    v_mov_b32 v50, 0
    v_mov_b32 v51, 0
    v_lshlrev_b32 v27, 4, v0
    s_mov_b64 s[62:63], exec
    v_cmp_gt_u32 vcc, 160, v0         ; 160 x 16 B = 2560 B = 32 blocks x 80 B
    s_and_b64 exec, exec, vcc
    ds_write_b128 v27, v[48:51] offset:{UR[0] + 64*80}
    ds_write_b128 v27, v[48:51] offset:{UR[1] + 64*80}
    s_mov_b64 exec, s[62:63]
    v_lshrrev_b32 v28, 2, v0
    v_mul_u32_u24 v28, 4160, v28
    v_and_b32 v29, 3, v0
    v_lshl_add_u32 v28, v29, 4, v28
    v_cmp_gt_u32 vcc, 32, v0
    s_and_b64 exec, exec, vcc
    ds_write_b128 v28, v[48:51] offset:{CP[0]}
    v_mul_u32_u24 v28, {KD[1]}, v0
    v_cmp_gt_u32 vcc, 2, v0
    s_and_b64 exec, exec, vcc
    ds_write_b128 v28, v[48:51]
    s_mov_b64 exec, s[62:63]
    s_waitcnt lgkmcnt(0)
    s_barrier
    """)
    st(5)
    a.e(f"""
    v_lshlrev_b32 v26, 4, v0
    v_add_u32 v27, 64, v26
    """)
    for c in range(2):
        b = 32 + 16*c
        a.e(f"ds_read_b64 v[{b}:{b+1}], v26 offset:{KD[c] + 8}")
        a.e(f"ds_read_b128 v[{b+4}:{b+7}], v26 offset:{KD[c] + 16}")
    a.e("s_waitcnt lgkmcnt(0)")
    for c in range(2):
        b = 32 + 16*c
        n0, n1, n2, n3, n4, n5 = b, b+1, b+4, b+5, b+6, b+7
        m = b + 8
        a.e(f"v_alignbit_b32 v{m}, v{n1}, v{n0}, 16")
        a.e(f"v_alignbit_b32 v{m+1}, v{n2}, v{n1}, 16")
        a.e(f"v_alignbit_b32 v{m+2}, v{n3}, v{n2}, 16")
        a.e(f"v_alignbit_b32 v{m+3}, v{n4}, v{n3}, 16")
        a.e(f"v_alignbit_b32 v{m+4}, v{n5}, v{n4}, 16")
        base = CP[c]
        a.e(f"ds_write_b128 v27, v[{n2}:{n5}] offset:{base}")
        a.e(f"ds_write2_b32 v27, v{m+1}, v{m+2} offset0:0 offset1:1") if False else None
        for cc, regs in ((1, (m+1, m+2, m+3, m+4)), (2, (n1, n2, n3, n4)), (3, (m, m+1, m+2, m+3))):
            off = base + cc*4160
            if regs[0] % 2 == 0 and regs[1] == regs[0]+1 and regs[3] == regs[0]+3:
                a.e(f"ds_write_b128 v27, v[{regs[0]}:{regs[3]}] offset:{off}")
            else:
                for q in range(4):
                    a.e(f"ds_write_b32 v27, v{regs[q]} offset:{off + 4*q}")
    st(6)
    a.e(f"""
    v_lshrrev_b32 v28, 7, v0
    v_add_u32 v29, s50, v28
    v_lshlrev_b32 v29, 13, v29
    v_and_b32 v30, 127, v0
    v_lshl_add_u32 v29, v30, 4, v29
    v_add_u32 v29, {UT}, v29
    v_add_u32 v26, 2048, v29
    v_add_u32 v27, 4096, v29
    v_add_u32 v31, 6144, v29
    v_lshrrev_b32 v8, 3, v30
    v_mul_u32_u24 v8, 80, v8
    v_and_b32 v9, 7, v30
    v_lshl_add_u32 v8, v9, 3, v8
    v_mul_u32_u24 v28, {UR[1]-UR[0]}, v28
    v_add_u32 v8, v8, v28
    """)
    poll_tags_loop(a, "a_ut", [
        "global_load_dwordx4 v[64:67], v29, s[36:37] sc1",
        "global_load_dwordx4 v[68:71], v26, s[36:37] sc1",
        "global_load_dwordx4 v[72:75], v27, s[36:37] sc1",
        "global_load_dwordx4 v[76:79], v31, s[36:37] sc1"], [65, 67, 69, 71, 73, 75, 77, 79])
    st(7)
    for k in range(4):
        a.e(f"v_mov_b32 v{65+4*k}, v{66+4*k}")
        a.e(f"ds_write_b64 v8, v[{64+4*k}:{65+4*k}] offset:{UR[0] + k*16*80}")
    a.e(f"""
    v_and_b32 v26, 31, v1             ; i / a
    v_lshrrev_b32 v27, 5, v1          ; hh
    v_sub_u32 v28, 3, v26
    v_and_b32 v28, 3, v28
    v_mul_u32_u24 v29, 4160, v28
    v_add_u32 v30, v26, v28
    v_add_u32 v30, 9, v30
    v_lshlrev_b32 v31, 3, v27
    v_sub_u32 v30, v30, v31
    v_lshl_add_u32 v29, v30, 1, v29
    s_mul_i32 s57, s47, {CP[1]-CP[0]}
    s_lshl_b32 s58, s48, 10
    s_add_u32 s57, s57, s58
    s_add_u32 s57, s57, {CP[0]}
    v_add_u32 v2, s57, v29            ; vA
    v_sub_u32 v29, 31, v26
    v_mul_u32_u24 v29, 80, v29
    v_lshlrev_b32 v30, 4, v27
    v_sub_u32 v29, v29, v30
    v_add_u32 v29, 16, v29
    s_mul_i32 s57, s47, {UR[1]-UR[0]}
    s_mul_i32 s58, s48, {16*80}
    s_add_u32 s57, s57, s58
    s_add_u32 s57, s57, {UR[0]}
    v_add_u32 v3, s57, v29            ; vB
    s_waitcnt lgkmcnt(0)
    s_barrier
    """)
    st(8)
    ACC0, ACC1 = 128, 144
    NB = 3
    FR = [32 + 16*i for i in range(NB)]
    steps = [(dl, hf) for dl in range(16) for hf in range(2)]
    def reads(i):
        dl, hf = steps[i]
        f = FR[i % NB]
        ao = 64*dl + 32*(1-hf)
        bo = 80*dl + 32*(1-hf)
        t = f"cv{i}"
        a.e(f"ds_read_b64 v[{f}:{f+1}], v2 offset:{ao}", lg=t)
        a.e(f"ds_read_b64 v[{f+2}:{f+3}], v2 offset:{ao+8}", lg=t)
        a.e(f"ds_read_b128 v[{f+8}:{f+11}], v3 offset:{bo+2560}", lg=t)
        a.e(f"ds_read_b128 v[{f+12}:{f+15}], v3 offset:{bo}", lg=t)
        a.e(f"ds_read_b64 v[{f+4}:{f+5}], v2 offset:{ao+2048}", lg=t)
        a.e(f"ds_read_b64 v[{f+6}:{f+7}], v2 offset:{ao+2056}", lg=t)
    a.lg = []
    reads(0); reads(1)
    for i in range(32):
        f = FR[i % NB]
        a.wait_lg(f"cv{i}")
        c0 = "0" if i == 0 else f"v[{ACC0}:{ACC0+15}]"
        c1 = "0" if i == 0 else f"v[{ACC1}:{ACC1+15}]"
        a.e(f"v_mfma_f32_32x32x16_bf16 v[{ACC0}:{ACC0+15}], v[{f}:{f+3}], v[{f+8}:{f+11}], {c0}")
        if i + 2 < 32: reads(i + 2)
        a.e(f"v_mfma_f32_32x32x16_bf16 v[{ACC1}:{ACC1+15}], v[{f}:{f+3}], v[{f+12}:{f+15}], {c1}")
        a.e(f"v_mfma_f32_32x32x16_bf16 v[{ACC1}:{ACC1+15}], v[{f+4}:{f+7}], v[{f+8}:{f+11}], v[{ACC1}:{ACC1+15}]")
    st(9)
    a.e(f"""
    v_and_b32 v26, 31, v1
    v_mul_u32_u24 v26, 144, v26
    v_lshrrev_b32 v27, 5, v1
    v_lshl_add_u32 v26, v27, 4, v26
    s_mul_i32 s57, s39, {64*144}
    v_add_u32 v26, s57, v26
    s_waitcnt lgkmcnt(0)
    s_barrier
    """)
    for tau, acc in ((0, ACC0), (1, ACC1)):
        for q in range(4):
            a.e(f"ds_write_b128 v26, v[{acc+4*q}:{acc+4*q+3}] offset:{YP + tau*32*144 + q*32}")
    a.e(f"""
    v_lshrrev_b32 v27, 3, v0
    v_mul_u32_u24 v27, 144, v27
    v_and_b32 v28, 7, v0
    v_lshl_add_u32 v27, v28, 4, v27
    s_lshl_b32 s57, s50, 13
    s_add_u32 s57, s57, {YT}
    v_lshl_add_u32 v28, v0, 4, s57
    s_waitcnt lgkmcnt(0)
    s_barrier
    """)
    for k in range(4):
        cch, hi = k >> 1, k & 1
        o = YP + (cch*2)*64*144 + hi*32*144
        a.e(f"ds_read_b128 v[{32+8*k}:{35+8*k}], v27 offset:{o}")
        a.e(f"ds_read_b128 v[{36+8*k}:{39+8*k}], v27 offset:{o + 64*144}")
    for k in range(4):
        a.e(f"s_waitcnt lgkmcnt({6-2*k})")
        b = 32 + 8*k
        for q in range(4): a.e(f"v_add_f32 v{b+q}, v{b+q}, v{b+4+q}")
        a.e(f"v_cvt_pk_bf16_f32 v{64+4*k}, v{b}, v{b+1}")
        a.e(f"v_mov_b32 v{65+4*k}, s38")
        a.e(f"v_cvt_pk_bf16_f32 v{66+4*k}, v{b+2}, v{b+3}")
        a.e(f"v_mov_b32 v{67+4*k}, s38")
        a.e(f"v_add_u32 v29, {(k>>1)*8192 + (k&1)*4096}, v28")
        a.e(f"global_store_dwordx4 v29, v[{64+4*k}:{67+4*k}], s[36:37] sc1")
        if cfg.dual: a.e(f"global_store_dwordx4 v29, v[{64+4*k}:{67+4*k}], s[36:37]")
    st(10)
    a.e(f"""
    v_and_b32 v4, 15, v0
    v_lshrrev_b32 v3, 4, v0
    v_lshlrev_b32 v26, 2, v4
    v_add_u32 v26, s49, v26
    v_lshlrev_b32 v26, 13, v26
    s_lshl_b32 s59, s41, 8            ; 32j*8
    v_lshl_add_u32 v26, v3, 4, v26
    v_add_u32 v26, s59, v26
    v_add_u32 v26, {YT}, v26
    v_add_u32 v27, 8192, v26
    v_add_u32 v28, 16384, v26
    v_add_u32 v31, 24576, v26
    """)
    for e in range(4):
        h, hi = e // 2, e % 2
        a.e(f"v_{'and_b32' if hi else 'lshlrev_b32'} v{80+e}, {'0xffff0000' if hi else '16'}, v{24+h}")
    for rho in range(4):
        for e in range(4):
            h, hi = e // 2, e % 2
            a.e(f"v_{'and_b32' if hi else 'lshlrev_b32'} v{96+4*rho+e}, {'0xffff0000' if hi else '16'}, v{16+2*rho+h}")
            a.e(f"v_mul_f32 v{96+4*rho+e}, v{96+4*rho+e}, v{80+e}")
        for h in range(2):
            a.e(f"v_cvt_pk_bf16_f32 v{84+h}, v{96+4*rho+2*h}, v{96+4*rho+2*h+1}")
        for h in range(2):
            a.e(f"v_lshlrev_b32 v{96+4*rho+2*h}, 16, v{84+h}")
            a.e(f"v_and_b32 v{96+4*rho+2*h+1}, 0xffff0000, v{84+h}")
    poll_tags_loop(a, "a_yt", [
        "global_load_dwordx4 v[64:67], v26, s[36:37] sc1",
        "global_load_dwordx4 v[68:71], v27, s[36:37] sc1",
        "global_load_dwordx4 v[72:75], v28, s[36:37] sc1",
        "global_load_dwordx4 v[76:79], v31, s[36:37] sc1"], [65, 67, 69, 71, 73, 75, 77, 79])
    st(11)
    a.e(f"""
    s_lshl_b32 s57, s41, 6
    v_lshl_add_u32 v26, v3, 2, s57    ; t0
    v_lshlrev_b32 v26, 11, v26
    s_lshl_b32 s57, s49, 1
    v_lshl_add_u32 v27, v4, 3, s57
    v_add_u32 v26, v26, v27
    """)
    for rho in range(4):
        m, hi = rho // 2, rho % 2
        for e in range(4):
            src = 64 + 4*e + 2*m
            a.e(f"v_{'and_b32' if hi else 'lshlrev_b32'} v{84+e}, {'0xffff0000' if hi else '16'}, v{src}")
            a.e(f"v_add_f32 v{84+e}, v{84+e}, v{96+4*rho+e}")
        a.e(f"v_cvt_pk_bf16_f32 v{88+2*rho}, v84, v85")
        a.e(f"v_cvt_pk_bf16_f32 v{89+2*rho}, v86, v87")
        if rho in (0,):
            pass
    for rho in range(4):
        if rho < 2:
            a.e(f"global_store_dwordx2 v26, v[{88+2*rho}:{89+2*rho}], s[32:33] offset:{2048*rho}")
        else:
            if rho == 2: a.e("v_add_u32 v26, 4096, v26")
            a.e(f"global_store_dwordx2 v26, v[{88+2*rho}:{89+2*rho}], s[32:33] offset:{2048*(rho-2)}")
    st(12)
    K.stamps_out(a, cfg, 13)
```

```python
import sys
from asmlib import Asm, wrap

UT   = 0
YT   = 4 << 20
PQ   = 8 << 20
PQF  = 10 << 20
KVP  = (10 << 20) + (64 << 10)
KVF  = 12 << 20
KVBLK = 2176
LOG2E = 0x3fb8aa3b
EPS   = 0x358637bd
SPIN_LIMIT = 200000

class Cfg:
    do_A = True
    do_B = True
    do_B2 = True
    touch = True
    dual = False
    touch_flags = ""
    early_release = True
    dma_early = False
    last_dma = 40
    late_pre = 0
    touch_mode = "A"
    stamps = False

STAMP_BASE = 14 << 20
def stamp(a, cfg, i):
    if cfg.stamps:
        a.e(f"s_memtime s[{70+2*i}:{71+2*i}]")
def stampval(a, cfg, i, sreg):
    if cfg.stamps:
        a.e("s_waitcnt lgkmcnt(0)")
        a.e(f"s_add_u32 s{70+2*i}, {sreg}, s70")
def stamps_out(a, cfg, n, vt=22):
    if not cfg.stamps: return
    a.e("s_memrealtime s[68:69]")
    a.e("s_waitcnt lgkmcnt(0) vmcnt(0)")
    a.vm = []
    for i in range(1, n):
        a.e(f"s_sub_u32 s{70+2*i}, s{70+2*i}, s70")
    a.e(f"""
    s_lshl_b32 s61, s2, 2
    s_add_u32 s61, s61, s39
    s_lshl_b32 s61, s61, 6
    s_add_u32 s61, s61, {STAMP_BASE}
    v_mov_b32 v{vt}, s61
    s_mov_b64 exec, 1
    """)
    for i in range(16):
        src = f"s{70+2*i}" if (0 < i < n) else ("s68" if i == 15 else ("s100" if i == 0 else "0"))
        a.e(f"v_mov_b32 v{vt+1}, {src}")
        a.e(f"global_store_dword v{vt}, v{vt+1}, s[36:37] offset:{4*i}")
        a.e("s_nop 1")
    a.e("s_waitcnt vmcnt(0)")
    a.e("s_mov_b64 exec, -1")
    a.vm = []

def prologue(a, cfg):
    if cfg.stamps:
        a.e("s_memrealtime s[100:101]")
        a.e("s_memtime s[70:71]")
    a.e("""
    s_cmp_ge_u32 s2, 512
    s_cbranch_scc1 L_end
    s_load_dwordx16 s[8:23], s[0:1], 0
    s_load_dwordx8 s[24:31], s[0:1], 64
    s_load_dwordx4 s[32:35], s[0:1], 96
    s_load_dwordx2 s[36:37], s[0:1], 112
    v_lshrrev_b32 v1, 6, v0
    v_readfirstlane_b32 s39, v1
    v_and_b32 v1, 63, v0
    s_cmp_ge_u32 s2, 256
    s_cbranch_scc1 L_roleA
    """)

def poll_nonce(a, vtmp, vaddr0, first_tag=None):
    L = a.newlabel("nonce"); Lx = a.newlabel("nonce_ok")
    if first_tag:
        a.wait_vm(first_tag)
    else:
        a.e(f"global_load_dword {vtmp}, {vaddr0}, s[34:35] sc1")
        a.wait_vm_all()
    a.e(f"v_readfirstlane_b32 s38, {vtmp}")
    a.e(f"""
    s_cmp_lg_u32 s38, 0
    s_cbranch_scc1 {Lx}
    s_mov_b32 s61, 0
    """)
    a.label(L)
    a.e(f"""
    global_load_dword {vtmp}, {vaddr0}, s[34:35] sc1
    s_waitcnt vmcnt(0)
    v_readfirstlane_b32 s38, {vtmp}
    s_add_u32 s61, s61, 1
    s_cmp_gt_u32 s61, {SPIN_LIMIT}
    s_cbranch_scc1 {Lx}
    s_cmp_eq_u32 s38, 0
    s_cbranch_scc1 {L}
    """)
    a.vm.pop()
    a.label(Lx)

def phi_instrs(acc, tmp, out, zsum=None):
    L = []
    for i in range(16):
        L.append(f"v_mul_f32 v{tmp+i}, s62, v{acc+i}")
    for i in range(16):
        L.append(f"v_exp_f32 v{tmp+i}, v{tmp+i} clamp")
        L.append(f"v_max_f32 v{acc+i}, s64, v{acc+i}")
    for i in range(16):
        L.append(f"v_add_f32 v{acc+i}, v{acc+i}, v{tmp+i}")
    if zsum is not None:
        for m in range(8):
            L.append(f"v_add_f32 v{tmp+m}, v{acc+2*m}, v{acc+2*m+1}")
        for m in range(4):
            L.append(f"v_add_f32 v{tmp+m}, v{tmp+m}, v{tmp+4+m}")
        L.append(f"v_add_f32 v{tmp}, v{tmp}, v{tmp+2}")
        L.append(f"v_add_f32 v{tmp+1}, v{tmp+1}, v{tmp+3}")
        L.append(f"v_add_f32 v{zsum}, v{tmp}, v{tmp+1}")
    for m in range(8):
        L.append(f"v_cvt_pk_bf16_f32 v{out+m}, v{acc+2*m}, v{acc+2*m+1}")
    return L

def spread(side, nslots):
    out = []; n = len(side); k = 0
    for i in range(nslots):
        e = (n*(i+1))//nslots
        out.append(side[k:e]); k = e
    return out

SEQ = []
for c in range(8): SEQ += [("X", c), ("K", c)]
SEQ += [("V", c) for c in range(8)] + [("Q", c) for c in range(8)] + [("O", c) for c in range(8)]
NSLOT = 10
NINIT = 6
XR = 128
WF, T16, ACCQ, ACCK, ACCV = 32, 64, 80, 96, 112

def b_issue_jobs(n):
    kind, c = SEQ[n]
    pos = n % NSLOT
    pre = []
    if kind == "X":
        so, v0, srd = f"s{16+c}", 2, "s[40:43]"
    elif kind in "QKV":
        so, v0, srd = f"s{8+c}", 4, "s[44:47]"
        if kind == "V" and c == 0:
            pre = [("v_add_u32 v4, 1024, v4", None), ("v_add_u32 v5, 1024, v5", None)]
        if kind == "Q" and c == 0:
            pre = [("v_subrev_u32 v4, 2048, v4", None), ("v_subrev_u32 v5, 2048, v5", None)]
    else:
        so, v0, srd = "s61", 6, "s[48:51]"
        pre = [(f"s_mov_b32 s61, {c*65536}", None)]
    return [pre + [(f"s_add_u32 m0, s60, {pos*8192}", None),
             (f"buffer_load_dwordx4 v{v0}, {srd}, {so} offen lds", f"slot{n}")],
            [(f"buffer_load_dwordx4 v{v0+1}, {srd}, {so} offen offset:1024 lds", f"slot{n}")]]

def emit_job(a, job):
    for t in job:
        if isinstance(t, str): a.e(t)
        else: a.e(t[0], vm=t[1])

def lds_base(n):
    pos = n % NSLOT
    return (0, pos*8192) if pos < 5 else (1, (pos-5)*8192)

def wfrag_reads(a, n, s, dst, tag=None):
    hi, off = lds_base(n)
    va = "v17" if hi else "v16"
    a.e(f"ds_read_b64_tr_b16 v[{dst}:{dst+1}], {va} offset:{off + s*2048}", lg=tag)
    a.e(f"ds_read_b64_tr_b16 v[{dst+2}:{dst+3}], {va} offset:{off + s*2048 + 512}", lg=tag)

def role_B(a, cfg):
    a.c("================= role B =================")
    a.e("""
    s_and_b32 s66, s2, 7            ; xcd
    s_lshr_b32 s67, s2, 3           ; jj
    s_lshr_b32 s56, s66, 1
    s_lshl_b32 s56, s56, 3
    s_and_b32 s68, s67, 7
    s_add_u32 s56, s56, s68         ; tb
    s_and_b32 s57, s66, 1
    s_lshl_b32 s57, s57, 2
    s_lshr_b32 s68, s67, 3
    s_add_u32 s57, s57, s68         ; hq
    s_and_b32 s58, s39, 1           ; tt
    s_lshr_b32 s59, s39, 1
    s_lshl_b32 s60, s39, 11
    s_mov_b32 s62, 0x3fb8aa3b
    s_mov_b32 s63, 0x3fb8aa3b
    s_mov_b32 s64, 0x358637bd
    s_mov_b32 s65, 0x358637bd
    """)
    a.e("""
    v_lshrrev_b32 v32, 3, v1        ; l>>3
    v_and_b32 v33, 7, v1            ; l&7
    v_lshrrev_b32 v34, 4, v1        ; l>>4
    s_lshl_b32 s68, s56, 6          ; tb*64
    s_lshl_b32 s69, s39, 4          ; 16w
    s_add_u32 s68, s68, s69
    v_add_u32 v35, s68, v32         ; row
    v_lshlrev_b32 v35, 10, v35
    v_xor_b32 v36, v33, v34
    v_lshl_add_u32 v2, v36, 4, v35
    v_add_u32 v37, 4, v34
    v_xor_b32 v36, v33, v37
    v_lshl_add_u32 v3, v36, 4, v35
    v_add_u32 v3, 7168, v3          ; +8 rows - 1024
    v_and_b32 v36, 1, v34
    v_lshlrev_b32 v36, 2, v36
    v_xor_b32 v36, v33, v36         ; q
    v_lshlrev_b32 v36, 4, v36       ; q*16
    v_add_u32 v37, s69, v32         ; 16w + (l>>3)
    v_mul_u32_u24 v38, 3072, v37
    s_lshl_b32 s68, s57, 7          ; hq*128
    v_add3_u32 v4, v38, v36, s68
    v_add_u32 v4, 1024, v4
    v_add_u32 v5, 23552, v4         ; +8*3072 - 1024
    v_lshlrev_b32 v38, 10, v37
    v_add3_u32 v6, v38, v36, s68
    v_add_u32 v7, 7168, v6
    """)
    a.e("""
    s_waitcnt lgkmcnt(0)
    s_mov_b32 s40, s26
    s_and_b32 s41, s27, 0xffff
    s_mov_b32 s42, 0x200000
    s_mov_b32 s43, 0x20000
    s_mov_b32 s44, s28
    s_and_b32 s45, s29, 0xffff
    s_mov_b32 s46, 0x180000
    s_mov_b32 s47, 0x20000
    s_mov_b32 s48, s30
    s_and_b32 s49, s31, 0xffff
    s_mov_b32 s50, 0x80000
    s_mov_b32 s51, 0x20000
    """)
    a.e("""
    v_mov_b32 v31, 0
    s_cmp_lg_u32 s2, 0
    s_cbranch_scc1 L_b_nononce
    s_cmp_lg_u32 s39, 0
    s_cbranch_scc1 L_b_nononce
    s_memrealtime s[68:69]
    s_waitcnt lgkmcnt(0)
    s_or_b32 s68, s68, 1
    v_mov_b32 v30, s68
    s_mov_b64 exec, 1
    global_store_dword v31, v30, s[34:35] sc1
    s_mov_b64 exec, -1
    """)
    a.vm.pop()
    a.label("L_b_nononce")
    for c in range(8):
        a.e(f"s_mov_b32 s{8+c}, {c*64*3072}")
        a.e(f"s_mov_b32 s{16+c}, {c*128}")
    stamp(a, cfg, 1)
    for n in range(NINIT):
        for job in b_issue_jobs(n): emit_job(a, job)
    a.e("""
    v_and_b32 v32, 31, v1           ; i
    v_lshrrev_b32 v33, 5, v1        ; hh
    s_lshl_b32 s68, s58, 5
    v_add_u32 v34, s68, v32         ; 32tt + i
    v_lshlrev_b32 v34, 7, v34       ; *128
    v_lshrrev_b32 v35, 1, v32
    v_and_b32 v35, 7, v35           ; f
    """)
    for s in range(4):
        a.e(f"""
        v_add_u32 v36, {2*s}, v33
        v_xor_b32 v36, v36, v35
        v_lshl_add_u32 v{8+s}, v36, 4, v34
        v_add_u32 v{12+s}, 40960, v{8+s}
        """)
    a.e(f"""
    v_lshrrev_b32 v34, 2, v1
    v_and_b32 v34, 3, v34           ; rr
    v_and_b32 v35, 3, v1            ; cc
    v_lshrrev_b32 v36, 4, v1
    v_and_b32 v36, 1, v36           ; G&1
    v_lshlrev_b32 v36, 1, v36       ; 2(G&1)
    v_lshrrev_b32 v37, 1, v35       ; cc>>1
    v_add_u32 v36, v36, v37         ; 2(G&1) + (cc>>1)
    v_lshrrev_b32 v37, 1, v34
    v_lshlrev_b32 v37, 2, v37       ; 4(rr>>1)
    v_and_b32 v38, 1, v35
    v_lshlrev_b32 v38, 3, v38       ; 8(cc&1)
    s_lshl_b32 s68, s59, 2
    v_add_u32 v39, s68, v36
    v_xor_b32 v39, v39, v37
    v_lshl_add_u32 v39, v39, 4, v38
    v_lshl_add_u32 v40, v33, 3, v34
    v_lshl_add_u32 v16, v40, 7, v39
    v_add_u32 v17, 40960, v16
    v_xor_b32 v39, v36, v37
    v_lshl_add_u32 v39, v39, 4, v38
    v_lshl_add_u32 v40, v33, 2, v34
    v_lshl_add_u32 v18, v40, 7, v39
    s_lshl_b32 s68, s59, 15
    s_add_u32 s68, s68, 16384
    v_add_u32 v18, s68, v18
    v_xor_b32 v19, 64, v18
    s_lshl_b32 s68, s59, 1
    s_add_u32 s68, s68, s58
    s_xor_b32 s69, s68, 1
    s_lshl_b32 s66, s68, 10
    s_add_u32 s66, s66, 16384
    v_lshl_add_u32 v22, v1, 4, s66
    s_lshl_b32 s66, s69, 10
    s_add_u32 s66, s66, 16384
    v_lshl_add_u32 v23, v1, 4, s66
    s_lshl_b32 s66, s68, 8
    s_add_u32 s66, s66, 20480
    v_lshl_add_u32 v24, v1, 2, s66
    s_lshl_b32 s66, s69, 8
    s_add_u32 s66, s66, 20480
    v_lshl_add_u32 v25, v1, 2, s66
    s_lshl_b32 s68, s57, 1
    s_add_u32 s68, s68, s59
    s_lshl_b32 s68, s68, 5
    s_add_u32 s68, s68, s56
    s_mul_i32 s68, s68, 2176
    s_add_u32 s68, s68, {KVP}
    s_lshl_b32 s69, s58, 10
    s_add_u32 s69, s69, s68
    v_lshl_add_u32 v26, v1, 4, s69
    v_lshrrev_b32 v40, 4, v1
    v_and_b32 v40, 1, v40
    v_lshlrev_b32 v40, 3, v40       ; 8c
    v_and_b32 v41, 4, v1            ; 4*hh'
    v_add_u32 v40, v40, v41
    v_lshrrev_b32 v41, 2, v1
    v_and_b32 v41, 2, v41
    v_add_u32 v40, v40, v41
    v_lshrrev_b32 v41, 1, v1
    v_and_b32 v41, 1, v41
    v_add_u32 v40, v40, v41         ; zg
    s_add_u32 s68, s68, 2048
    v_lshl_add_u32 v27, v40, 3, s68
    s_lshl_b32 s68, s56, 1
    s_add_u32 s68, s68, s58
    s_lshl_b32 s68, s68, 5
    s_lshl_b32 s69, s57, 2
    s_add_u32 s68, s68, s69
    s_lshl_b32 s69, s59, 1
    s_add_u32 s68, s68, s69
    s_lshl_b32 s68, s68, 10
    s_add_u32 s68, s68, {PQ}
    v_lshl_add_u32 v28, v1, 4, s68
    v_and_b32 v40, 16, v1
    v_cmp_ne_u32 s[52:53], 0, v40
    s_sub_u32 s54, 0, s58
    s_mov_b32 s55, s54
    """)
    for r in range(16):
        a.e(f"v_mov_b32 v{ACCQ+r}, s64")
    for r in range(16):
        a.e(f"v_mov_b32 v{ACCK+r}, s64")
    def frag_reads(g, k):
        L = []
        tag = f"f{g}_{k}"
        if g < 8:
            nx, nw = 2*g, 2*g+1
            hi, off = lds_base(nx)
            L.append((f"ds_read_b128 v[{XR+16*g+4*k}:{XR+16*g+4*k+3}], v{(12 if hi else 8)+k} offset:{off}", tag))
            d = WF + 16*(g % 2) + 4*k; n = nw; sstep = k
        else:
            n = 2*g + k//4; sstep = k % 4; d = WF + 4*k
        h2, o2 = lds_base(n)
        va = "v17" if h2 else "v16"
        L.append((f"ds_read_b64_tr_b16 v[{d}:{d+1}], {va} offset:{o2 + sstep*2048}", tag))
        L.append((f"ds_read_b64_tr_b16 v[{d+2}:{d+3}], {va} offset:{o2 + sstep*2048 + 512}", tag))
        return L
    def nsteps(g): return 4 if g < 8 else 8
    def emit_side(lst):
        for t in lst:
            if isinstance(t, str): a.e(t)
            elif t[0] == "WVM": a.wait_vm(t[1])
            else: a.e(t[0], vm=t[1])
    side = {}
    ke = phi_instrs(ACCK, T16, ACCK, zsum=29)
    ke += ["v_mov_b32 v30, v29", "v_permlane32_swap_b32 v29, v30", "v_add_f32 v29, v29, v30"]
    gaps = [(g, k) for g in range(8, 12) for k in range(8)][1:31]
    for gp, grp in zip(gaps, spread(ke, len(gaps))): side[gp] = grp

    ra = f"""
    s_lshr_b32 s66, s2, 4
    s_and_b32 s67, s2, 15
    s_mul_i32 s69, s66, {32*KVBLK}
    s_add_u32 s69, s69, {KVP}
    s_lshl_b32 s52, s67, 7
    s_add_u32 s68, s69, s52
    v_and_b32 v22, 7, v1
    v_lshlrev_b32 v22, 4, v22
    v_lshrrev_b32 v23, 3, v1
    v_mul_u32_u24 v23, {KVBLK}, v23
    v_add_u32 v23, v22, v23
    v_add_u32 v24, s68, v23
    v_add_u32 v25, {8*KVBLK}, v24
    v_add_u32 v26, {16*KVBLK}, v24
    v_add_u32 v27, {24*KVBLK}, v24
    s_add_u32 s68, s69, 2048
    v_add_u32 v8, s68, v23
    v_add_u32 v9, {8*KVBLK}, v8
    v_add_u32 v10, {16*KVBLK}, v8
    v_add_u32 v11, {24*KVBLK}, v8
    s_mul_i32 s69, s66, {KVBLK}
    s_add_u32 s69, s69, {KVF}
    s_add_u32 s68, s69, s52
    v_add_u32 v23, s68, v22
    s_add_u32 s68, s69, 2048
    v_add_u32 v12, s68, v22
    """.strip().split("\n")
    ra = [x.strip() for x in ra]
    gaps = [(12, k) for k in range(1, 8)] + [(13, k) for k in range(8)]
    for gp, grp in zip(gaps, spread(ra, len(gaps))): side[gp] = grp

    rb = f"""
    s_mov_b32 s40, s36
    s_and_b32 s41, s37, 0xffff
    s_mov_b32 s42, {KVF + 65536}
    s_mov_b32 s43, 0x20000
    s_lshl_b32 s68, s56, 7
    s_add_u32 s68, s68, {PQF}
    v_and_b32 v2, 7, v1
    v_lshl_add_u32 v2, v2, 2, s68
    s_lshl_b32 s68, s56, 1
    s_add_u32 s68, s68, s58
    s_lshl_b32 s68, s68, 5
    s_lshl_b32 s69, s59, 4
    s_add_u32 s68, s68, s69
    s_lshl_b32 s68, s68, 10
    s_add_u32 s68, s68, {PQ}
    v_lshl_add_u32 v3, v1, 4, s68
    v_add_u32 v31, 8192, v3
    v_lshrrev_b32 v13, 7, v0
    v_mul_u32_u24 v13, {KVBLK}, v13
    v_and_b32 v20, 127, v0
    v_lshl_add_u32 v13, v20, 4, v13
    v_add_u32 v13, {KVF}, v13
    v_lshrrev_b32 v14, 3, v20
    v_mul_u32_u24 v14, {KVBLK}, v14
    v_and_b32 v21, 7, v0
    v_lshl_add_u32 v14, v21, 4, v14
    v_add_u32 v14, {KVF+2048}, v14
    v_lshrrev_b32 v15, 7, v0
    v_lshlrev_b32 v15, 1, v15
    v_bfe_u32 v21, v0, 4, 1
    v_add_u32 v15, v15, v21
    v_mul_u32_u24 v15, 544, v15
    v_bfe_u32 v21, v0, 5, 1
    v_mul_u32_u24 v21, 272, v21
    v_add_u32 v15, v15, v21
    v_and_b32 v21, 15, v0
    v_lshl_add_u32 v15, v21, 4, v15
    v_bfe_u32 v21, v0, 6, 1
    v_lshl_add_u32 v15, v21, 3, v15
    v_lshrrev_b32 v29, 3, v20
    v_lshlrev_b32 v29, 1, v29
    v_bfe_u32 v21, v0, 2, 1
    v_add_u32 v29, v29, v21
    v_mul_u32_u24 v29, 544, v29
    v_bfe_u32 v21, v0, 1, 1
    v_mul_u32_u24 v21, 272, v21
    v_add_u32 v29, v29, v21
    v_and_b32 v21, 1, v0
    v_lshl_add_u32 v29, v21, 3, v29
    v_add_u32 v29, 256, v29
    v_and_b32 v30, 15, v1
    v_mul_u32_u24 v30, {KVBLK}, v30
    v_add_u32 v30, {KVF+2048+4}, v30
    """.strip().split("\n")
    rb = [x.strip() for x in rb]
    rb += [f"s_mov_b32 s{8+i}, {1024*i}" for i in range(8)] + [f"s_mov_b32 s{16+k}, {2*KVBLK*k}" for k in range(8)]
    gaps = [(14, k) for k in range(8)] + [(15, k) for k in range(8)]
    for gp, grp in zip(gaps, spread(rb, len(gaps))): side[gp] = grp

    def kv_publish():
        a.c("--- kv partial: V cvt, MFMA, select, pair exchange, publish")
        a.e("s_barrier")
        for m in range(8):
            a.e(f"v_cvt_pk_bf16_f32 v{ACCV+m}, v{ACCV+2*m}, v{ACCV+2*m+1}")
        a.e(f"v_mfma_f32_32x32x16_bf16 v[{T16}:{T16+15}], v[{ACCK}:{ACCK+3}], v[{ACCV}:{ACCV+3}], 0")
        a.e(f"v_mfma_f32_32x32x16_bf16 v[{T16}:{T16+15}], v[{ACCK+4}:{ACCK+7}], v[{ACCV+4}:{ACCV+7}], v[{T16}:{T16+15}]")
        a.e("ds_write_b32 v24, v29", lg="xw")
        poll_nonce(a, "v21", "v31", first_tag="nonce")
        SEL = ACCK + 8; SND = ACCV + 8; KEEP = ACCV + 12
        for j in range(8): a.e(f"v_cndmask_b32 v{SEL+j}, v{T16+j}, v{T16+8+j}, s[52:53]")
        for j in range(4): a.e(f"v_cndmask_b32 v{SND+j}, v{SEL+4+j}, v{SEL+j}, s[54:55]")
        a.e(f"ds_write_b128 v22, v[{SND}:{SND+3}]", lg="xw")
        for j in range(4): a.e(f"v_cndmask_b32 v{KEEP+j}, v{SEL+j}, v{SEL+4+j}, s[54:55]")
        a.wait_lg("xw")
        a.e("s_barrier")
        a.e(f"ds_read_b128 v[{SEL}:{SEL+3}], v23", lg="xr")
        a.e(f"ds_read_b32 v30, v25", lg="xr")
        a.wait_lg("xr")
        for j in range(4): a.e(f"v_add_f32 v{KEEP+j}, v{KEEP+j}, v{SEL+j}")
        a.e(f"""
        v_add_f32 v29, v29, v30
        v_cvt_pk_bf16_f32 v{SEL}, v{KEEP}, v{KEEP+1}
        v_mov_b32 v{SEL+1}, s38
        v_cvt_pk_bf16_f32 v{SEL+2}, v{KEEP+2}, v{KEEP+3}
        v_mov_b32 v{SEL+3}, s38
        v_mov_b32_dpp v30, v29 quad_perm:[1,0,3,2] row_mask:0xf bank_mask:0xf
        global_store_dwordx4 v26, v[{SEL}:{SEL+3}], s[36:37] sc1
        v_cvt_pk_bf16_f32 v{SEL+4}, v29, v30
        v_mov_b32 v{SEL+5}, s38
        s_andn2_b64 exec, 0x55555555, s[54:55]
        s_cbranch_execz L_b_noz
        global_store_dwordx2 v27, v[{SEL+4}:{SEL+5}], s[36:37] sc1
        """)
        a.vm.pop()
        a.label("L_b_noz")
        a.e("s_mov_b64 exec, -1")
        stamp(a, cfg, 6)

    a.wait_vm(["slot0", "slot1"])
    a.e("s_barrier")
    stamp(a, cfg, 2)
    for k in range(4):
        for t, tag in frag_reads(0, k): a.e(t, lg=tag)
    nxt = NINIT
    pend = []
    while nxt < NSLOT:
        pend += b_issue_jobs(nxt); nxt += 1
    for g in range(16):
        a.c(f"--- group {g}")
        if g == 12: kv_publish()
        if g < 15:
            a.wait_vm([f"slot{2*g+2}", f"slot{2*g+3}"])
        a.e("s_barrier")
        if g in (1, 8, 12): stamp(a, cfg, {1: 3, 8: 4, 12: 5}[g])
        jobs = list(pend); pend = []
        if g >= 1:
            for _ in range(2): jobs += b_issue_jobs(nxt); nxt += 1
        if g == 9:
            jobs.append([("global_load_dword v21, v31, s[34:35] sc1", "nonce")])
        ns = nsteps(g)
        jsp = spread(jobs, ns)
        for k in range(ns):
            if k % 2 == 0: a.wait_lg([f"f{g}_{k}", f"f{g}_{k+1}"])
            if g < 8:
                d = WF + 16*(g % 2) + 4*k
                a.e(f"v_mfma_f32_32x32x16_bf16 v[{ACCK}:{ACCK+15}], v[{XR+16*g+4*k}:{XR+16*g+4*k+3}], v[{d}:{d+3}], v[{ACCK}:{ACCK+15}]")
            elif g < 12:
                kk = (g - 8)*8 + k
                cc = "0" if (g == 8 and k == 0) else f"v[{ACCV}:{ACCV+15}]"
                a.e(f"v_mfma_f32_32x32x16_bf16 v[{ACCV}:{ACCV+15}], v[{XR+4*kk}:{XR+4*kk+3}], v[{WF+4*k}:{WF+4*k+3}], {cc}")
            else:
                kk = (g - 12)*8 + k
                a.e(f"v_mfma_f32_32x32x16_bf16 v[{ACCQ}:{ACCQ+15}], v[{WF+4*k}:{WF+4*k+3}], v[{XR+4*kk}:{XR+4*kk+3}], v[{ACCQ}:{ACCQ+15}]")
            jl = [list(jb) for jb in jsp[k]]
            if jl:
                while jl[0] and not jl[0][0][0].startswith(("buffer_load", "global_load")):
                    a.e(jl[0].pop(0)[0])
            if g < 15:
                nx = [k, 4 + k] if g == 7 else [k]
                for k2 in nx:
                    for t, tag in frag_reads(g + 1, k2): a.e(t, lg=tag)
            for jb in jl: emit_job(a, jb)
            emit_side(side.get((g, k), []))
    assert nxt == 40, nxt
    a.e("s_barrier")
    a.e("""
    s_cmp_lg_u32 s39, 0
    s_cbranch_scc1 L_b_nored1
    global_load_dwordx4 v[96:99], v24, s[36:37] sc1
    global_load_dwordx4 v[100:103], v25, s[36:37] sc1
    global_load_dwordx4 v[104:107], v26, s[36:37] sc1
    global_load_dwordx4 v[108:111], v27, s[36:37] sc1
    global_load_dwordx4 v[112:115], v8, s[36:37] sc1
    global_load_dwordx4 v[116:119], v9, s[36:37] sc1
    global_load_dwordx4 v[120:123], v10, s[36:37] sc1
    global_load_dwordx4 v[124:127], v11, s[36:37] sc1
    """)
    for _ in range(8): a.vm.pop()
    a.label("L_b_nored1")
    a.c("--- Q epilogue")
    for t in phi_instrs(ACCQ, T16, ACCQ): a.e(t)
    a.e(f"""
    v_lshlrev_b32 v20, 4, v1
    s_cmp_lg_u32 s39, 0
    s_cbranch_scc1 L_b_noho
    ds_write_b128 v20, v[{ACCQ}:{ACCQ+3}]
    ds_write_b128 v20, v[{ACCQ+4}:{ACCQ+7}] offset:1024
    s_waitcnt vmcnt(8) lgkmcnt(0)
    s_branch L_b_ho2
    """)
    a.label("L_b_noho")
    a.e("s_waitcnt vmcnt(0)")
    a.label("L_b_ho2")
    a.vm = []; a.lg = []
    a.e("s_barrier")
    a.e(f"""
    s_cmp_eq_u32 s39, 0
    s_cbranch_scc1 L_b_nopq
    global_store_dwordx4 v28, v[{ACCQ}:{ACCQ+3}], s[36:37] sc1
    global_store_dwordx4 v28, v[{ACCQ+4}:{ACCQ+7}], s[36:37] offset:1024 sc1
    s_cmp_eq_u32 s39, 1
    s_cbranch_scc0 L_b_nopq
    ds_read_b128 v[32:35], v20
    ds_read_b128 v[36:39], v20 offset:1024
    v_subrev_u32 v21, 32768, v28
    s_waitcnt lgkmcnt(0)
    global_store_dwordx4 v21, v[32:35], s[36:37] sc1
    global_store_dwordx4 v21, v[36:39], s[36:37] offset:1024 sc1
    """)
    a.label("L_b_nopq")
    a.vm = []; a.lg = []
    stamp(a, cfg, 7)
    if not cfg.do_B2:
        stamp(a, cfg, 8)
        stamps_out(a, cfg, 9)
        a.e("s_branch L_end")
        return
    role_B2(a, cfg)

def tag_check(a, regs_tags, acc="v20"):
    tt = 0
    for idx in range(8):
        s0, s1, s2 = (idx >> 2) & 1, (idx >> 1) & 1, idx & 1
        if s0 | (s1 ^ s2): tt |= 1 << idx
    first = True
    for r in regs_tags:
        if first:
            a.e(f"v_xor_b32 {acc}, s38, v{r}"); first = False
        else:
            a.e(f"v_bitop3_b32 {acc}, {acc}, v{r}, s38 bitop3:{hex(tt)}")
    a.e(f"v_cmp_ne_u32 vcc, 0, {acc}")

def role_B2(a, cfg):
    WO = 128
    ACC = 96
    PQR = 32
    CN = [64, 80]
    KAF = [8, 12]
    OF = [4, 16]
    KA = 0
    PQL = 17408
    a.c("================= B2 =================")
    def reduce_line(base, dst_addr, tagsok_label):
        S = 40; T = 44
        for k in range(4):
            r = base + 4*k
            for pidx in range(2):
                src = r + 2*pidx
                if k == 0:
                    a.e(f"v_lshlrev_b32 v{S+2*pidx}, 16, v{src}")
                    a.e(f"v_and_b32 v{S+1+2*pidx}, 0xffff0000, v{src}")
                else:
                    a.e(f"v_lshlrev_b32 v{T+2*pidx}, 16, v{src}")
                    a.e(f"v_and_b32 v{T+1+2*pidx}, 0xffff0000, v{src}")
                    a.e(f"v_add_f32 v{S+2*pidx}, v{S+2*pidx}, v{T+2*pidx}")
                    a.e(f"v_add_f32 v{S+1+2*pidx}, v{S+1+2*pidx}, v{T+1+2*pidx}")
        for j in range(4): a.e(f"v_add_f32_dpp v{S+j}, v{S+j}, v{S+j} row_ror:8 row_mask:0xf bank_mask:0xf")
        for j in range(4): a.e(f"v_mov_b32 v{T+j}, v{S+j}")
        for j in range(4): a.e(f"v_permlane16_swap_b32 v{S+j}, v{T+j}")
        for j in range(4): a.e(f"v_add_f32 v{S+j}, v{S+j}, v{T+j}")
        for j in range(4): a.e(f"v_mov_b32 v{T+j}, v{S+j}")
        for j in range(4): a.e(f"v_permlane32_swap_b32 v{S+j}, v{T+j}")
        for j in range(4): a.e(f"v_add_f32 v{S+j}, v{S+j}, v{T+j}")
        a.e(f"""
        v_cvt_pk_bf16_f32 v48, v{S}, v{S+1}
        v_mov_b32 v49, s38
        v_cvt_pk_bf16_f32 v50, v{S+2}, v{S+3}
        v_mov_b32 v51, s38
        s_mov_b64 exec, 0xff
        global_store_dwordx4 {dst_addr}, v[48:51], s[36:37] sc1
        s_mov_b64 exec, -1
        """)
    a.e("""
    s_cmp_lg_u32 s39, 0
    s_cbranch_scc1 L_b_red_done
    s_mov_b32 s61, 0
    s_branch L_b_red_chk
    """)
    a.label("L_b_red_poll")
    a.e("""
    global_load_dwordx4 v[96:99], v24, s[36:37] sc1
    global_load_dwordx4 v[100:103], v25, s[36:37] sc1
    global_load_dwordx4 v[104:107], v26, s[36:37] sc1
    global_load_dwordx4 v[108:111], v27, s[36:37] sc1
    global_load_dwordx4 v[112:115], v8, s[36:37] sc1
    global_load_dwordx4 v[116:119], v9, s[36:37] sc1
    global_load_dwordx4 v[120:123], v10, s[36:37] sc1
    global_load_dwordx4 v[124:127], v11, s[36:37] sc1
    """)
    a.label("L_b_red_chk")
    a.e("""
    s_add_u32 s61, s61, 1
    s_waitcnt vmcnt(0)
    """)
    tag_check(a, [97+2*q for q in range(16)])
    a.e(f"""
    s_cmp_gt_u32 s61, {SPIN_LIMIT}
    s_cbranch_scc1 L_b_red_go
    s_cbranch_vccnz L_b_red_poll
    """)
    a.label("L_b_red_go")
    stampval(a, cfg, 8, "s61")
    a.e("""
    s_cmp_lg_u32 s67, 0
    s_cbranch_scc1 L_b_red_a
    """)
    reduce_line(112, "v12", None)
    a.label("L_b_red_a")
    reduce_line(96, "v23", None)
    a.label("L_b_red_done")
    a.vm = []
    stamp(a, cfg, 9)
    for i in range(16):
        for nt in range(2):
            d = WO + 8*i + 4*nt
            off = (i//4)*8192 + (i % 4)*2048
            a.e(f"ds_read_b64_tr_b16 v[{d}:{d+1}], v{18+nt} offset:{off}", lg="wo")
            a.e(f"ds_read_b64_tr_b16 v[{d+2}:{d+3}], v{18+nt} offset:{off+1024}", lg="wo")
    a.e("""
    s_cmp_eq_u32 s39, 0
    s_cbranch_scc1 L_b_noack
    s_waitcnt vmcnt(0)
    """)
    a.label("L_b_noack")
    a.e("s_waitcnt lgkmcnt(0)")
    a.e("s_barrier")
    a.e("""
    s_cmp_lg_u32 s39, 3
    s_cbranch_scc1 L_b_noflag
    s_lshl_b32 s68, s56, 7
    s_lshl_b32 s69, s57, 2
    s_add_u32 s68, s68, s69
    s_add_u32 s68, s68, %d
    v_mov_b32 v32, s68
    v_mov_b32 v33, s38
    s_mov_b64 exec, 1
    global_store_dword v32, v33, s[36:37] sc1
    s_mov_b64 exec, -1
    """ % PQF)
    a.label("L_b_noflag")
    a.vm = []
    stamp(a, cfg, 10)
    def pq_loads():
        for i in range(8):
            a.e(f"buffer_load_dwordx4 v[{PQR+4*i}:{PQR+4*i+3}], v3, s[40:43], s{8+i} offen sc1")
        for i in range(8):
            a.e(f"s_add_u32 m0, s66, {1024*i}")
            a.e("s_nop 0")
            a.e(f"buffer_load_dwordx4 v31, s[40:43], s{8+i} offen sc1 lds")
    a.e(f"""
    s_lshl_b32 s66, s39, 13
    s_add_u32 s66, s66, {PQL}
    s_mov_b32 s61, 0
    s_cmp_eq_u32 s39, 0
    s_cbranch_scc1 L_b_w0_poll
    """)
    a.label("L_b_pqf_poll")
    a.e(f"""
    global_load_dword v21, v2, s[36:37] sc1
    s_add_u32 s61, s61, 1
    s_waitcnt vmcnt(0)
    v_cmp_ne_u32 vcc, s38, v21
    s_cmp_gt_u32 s61, {SPIN_LIMIT}
    s_cbranch_scc1 L_b_pqf_go
    s_cbranch_vccz L_b_pqf_go
    s_sleep 1
    s_branch L_b_pqf_poll
    """)
    a.label("L_b_pqf_go")
    stamp(a, cfg, 11)
    pq_loads()
    a.e("s_branch L_b_sub_done")
    a.label("L_b_w0_poll")
    a.e(f"""
    global_load_dword v21, v2, s[36:37] sc1
    global_load_dword v20, v30, s[36:37] sc1
    s_add_u32 s61, s61, 1
    s_waitcnt vmcnt(0)
    v_xor_b32 v21, s38, v21
    v_xor_b32 v20, s38, v20
    v_or_b32 v21, v21, v20
    v_cmp_ne_u32 vcc, 0, v21
    s_cmp_gt_u32 s61, {SPIN_LIMIT}
    s_cbranch_scc1 L_b_w0_go
    s_cbranch_vccz L_b_w0_go
    s_sleep 1
    s_branch L_b_w0_poll
    """)
    a.label("L_b_w0_go")
    stamp(a, cfg, 11)
    a.label("L_b_sub_done")
    a.e("s_barrier")
    stamp(a, cfg, 12)
    def ka_loads():
        for k in range(8):
            a.e(f"buffer_load_dwordx4 v[{64+4*k}:{67+4*k}], v13, s[40:43], s{16+k} offen sc1")
        a.e("buffer_load_dwordx4 v[96:99], v14, s[40:43], 0 offen sc1")
    ka_loads()
    a.e("""
    s_mov_b32 s61, 0
    s_cmp_eq_u32 s39, 0
    s_cbranch_scc0 L_b_ka_w
    """)
    pq_loads()
    a.e("""
    s_waitcnt vmcnt(16)
    s_branch L_b_ka_chk
    """)
    a.label("L_b_kvf_poll")
    ka_loads()
    a.label("L_b_ka_w")
    a.e("s_waitcnt vmcnt(0)")
    a.label("L_b_ka_chk")
    a.e("s_add_u32 s61, s61, 1")
    tag_check(a, [65+2*q for q in range(18)])
    a.e(f"""
    s_cmp_gt_u32 s61, {SPIN_LIMIT}
    s_cbranch_scc1 L_b_kvf_go
    s_cbranch_vccnz L_b_kvf_poll
    """)
    a.label("L_b_kvf_go")
    a.vm = []
    for k in range(8):
        a.e(f"v_mov_b32 v{65+4*k}, v{66+4*k}")
        a.e(f"ds_write_b64 v15, v[{64+4*k}:{65+4*k}] offset:{KA + 2176*k}")
    a.e("v_mov_b32 v97, v98")
    a.e(f"ds_write_b64 v29, v[96:97] offset:{KA}")
    a.e(f"""
    v_and_b32 v22, 31, v1
    v_min_u32 v22, 16, v22
    v_lshlrev_b32 v22, 4, v22
    v_lshrrev_b32 v23, 5, v1
    v_mul_u32_u24 v23, 272, v23
    s_mul_i32 s68, s59, {16*544}
    v_add3_u32 v22, v22, v23, s68
    v_lshl_add_u32 v23, v1, 4, s66
    s_waitcnt vmcnt(0) lgkmcnt(0)
    s_barrier
    """)
    a.vm = []; a.lg = []
    stamp(a, cfg, 13)
    def kaf_read(i):
        a.e(f"ds_read_b128 v[{KAF[i%2]}:{KAF[i%2]+3}], v22 offset:{KA + 544*i}", lg=f"ka{i}")
    def out_mfma(i):
        o = OF[i % 2]
        for nt in range(2):
            w = WO + 8*i + 4*nt
            cc = "0" if i == 0 else f"v[{ACC+16*nt}:{ACC+16*nt+15}]"
            a.e(f"v_mfma_f32_32x32x16_bf16 v[{ACC+16*nt}:{ACC+16*nt+15}], v[{w}:{w+3}], v[{o}:{o+3}], {cc}")
    def num_mfma(i):
        a.wait_lg(f"ka{i}")
        p = PQR + 4*(i % 8)
        if i >= 8: a.wait_lg(f"pl{i}")
        a.e(f"v_mfma_f32_32x32x16_bf16 v[{CN[i%2]}:{CN[i%2]+15}], v[{KAF[i%2]}:{KAF[i%2]+3}], v[{p}:{p+3}], 0")
        if 4 <= i < 12:
            h = i + 4
            ph = PQR + 4*(h % 8)
            a.e(f"ds_read_b128 v[{ph}:{ph+3}], v23 offset:{1024*(h-8)}", lg=f"pl{h}")
    def out1(i, nt):
        o = OF[i % 2]
        w = WO + 8*i + 4*nt
        cc = "0" if i == 0 else f"v[{ACC+16*nt}:{ACC+16*nt+15}]"
        a.e(f"v_mfma_f32_32x32x16_bf16 v[{ACC+16*nt}:{ACC+16*nt+15}], v[{w}:{w+3}], v[{o}:{o+3}], {cc}")
    kaf_read(0); kaf_read(1)
    num_mfma(0)
    for i in range(16):
        if i + 1 < 16:
            num_mfma(i + 1)
        c = CN[i % 2]
        a.e(f"v_add_f32 v20, s64, v{c+8}")
        a.e(f"v_rcp_f32 v20, v20")
        if i + 2 < 16:
            kaf_read(i + 2)
        for jj in range(2): a.e(f"v_mul_f32 v{c+jj}, v{c+jj}, v20")
        if i >= 1: out1(i - 1, 0)
        for jj in range(2, 7): a.e(f"v_mul_f32 v{c+jj}, v{c+jj}, v20")
        if i >= 1: out1(i - 1, 1)
        a.e(f"v_mul_f32 v{c+7}, v{c+7}, v20")
        o = OF[i % 2]
        for m in range(4):
            a.e(f"v_cvt_pk_bf16_f32 v{o+m}, v{c+2*m}, v{c+2*m+1}")
    out1(15, 0); out1(15, 1)
    stamp(a, cfg, 14)
    PB = 0
    a.e(f"""
    v_and_b32 v22, 31, v1
    s_lshl_b32 s68, s58, 5
    v_add_u32 v22, s68, v22            ; token
    v_mul_u32_u24 v22, 272, v22
    v_lshrrev_b32 v23, 5, v1
    v_lshl_add_u32 v22, v23, 4, v22    ; + hh*16
    s_mul_i32 s68, s59, {64*272}
    s_add_u32 s68, s68, {PB}
    v_add_u32 v22, s68, v22
    v_lshrrev_b32 v23, 3, v0
    v_mul_u32_u24 v24, 272, v23
    v_and_b32 v25, 7, v0
    v_lshl_add_u32 v24, v25, 5, v24
    v_add_u32 v24, {PB}, v24
    s_lshl_b32 s68, s56, 6
    v_add_u32 v23, s68, v23
    v_lshlrev_b32 v23, 11, v23
    s_lshl_b32 s68, s57, 7
    s_add_u32 s68, s68, 1024
    v_lshl_add_u32 v23, v25, 4, v23
    v_add_u32 v23, s68, v23
    s_waitcnt lgkmcnt(0)
    s_barrier
    """)
    for nt in range(2):
        for q in range(4):
            r = ACC + 16*nt + 4*q
            a.e(f"ds_write_b128 v22, v[{r}:{r+3}] offset:{nt*128 + q*32}")
    a.e("s_waitcnt lgkmcnt(0)")
    a.e("s_barrier")
    for r in range(2):
        o = r*32*272
        a.e(f"ds_read_b128 v[{32+16*r}:{35+16*r}], v24 offset:{o}")
        a.e(f"ds_read_b128 v[{36+16*r}:{39+16*r}], v24 offset:{o+16}")
        a.e(f"ds_read_b128 v[{40+16*r}:{43+16*r}], v24 offset:{o+64*272}")
        a.e(f"ds_read_b128 v[{44+16*r}:{47+16*r}], v24 offset:{o+64*272+16}")
    for r in range(2):
        a.e(f"s_waitcnt lgkmcnt({4 if r == 0 else 0})")
        b = 32 + 16*r
        for jj in range(8):
            a.e(f"v_add_f32 v{b+jj}, v{b+jj}, v{b+8+jj}")
        for m in range(4):
            a.e(f"v_cvt_pk_bf16_f32 v{64+4*r+m}, v{b+2*m}, v{b+2*m+1}")
        if r == 1: a.e(f"v_add_u32 v23, {32*2048}, v23")
        a.e(f"global_store_dwordx4 v23, v[{64+4*r}:{67+4*r}], s[32:33]")
    stamps_out(a, cfg, 15)

TV = 240
def a_touch_setup(a, cfg):
    a.e(f"""
    s_lshr_b32 s62, s40, 1          ; tg
    s_and_b32 s63, s40, 1           ; hg
    s_lshl_b32 s64, s62, 9
    s_lshl_b32 s65, s41, 4          ; 16*jj
    s_add_u32 s64, s64, s65
    v_and_b32 v246, 15, v1
    v_lshrrev_b32 v247, 4, v1       ; 0..3
    v_add_u32 v240, s64, v246
    v_lshlrev_b32 v240, 10, v240
    v_lshl_add_u32 v240, v247, 7, v240
    v_add_u32 v241, 512, v240
    v_lshlrev_b32 v243, 6, v247
    s_lshl_b32 s66, s41, 1
    v_add_u32 v243, s66, v243
    v_bfe_u32 v248, v1, 3, 1
    v_add_u32 v243, v243, v248
    v_mul_u32_u24 v243, 3072, v243
    v_bfe_u32 v248, v1, 2, 1
    v_lshlrev_b32 v248, 10, v248
    v_add_u32 v243, v243, v248
    v_and_b32 v248, 3, v1
    v_lshlrev_b32 v248, 7, v248
    s_lshl_b32 s66, s63, 9
    s_add_u32 s67, s66, 1024
    v_add3_u32 v243, v243, v248, s67
    v_add_u32 v244, {256*3072}, v243
    v_lshrrev_b32 v249, 2, v1
    v_add_u32 v249, s65, v249
    v_mul_u32_u24 v242, 3072, v249
    v_add3_u32 v242, v242, v248, s66
    v_lshlrev_b32 v245, 10, v249
    v_add3_u32 v245, v245, v248, s66
    """)

def a_touch(a, cfg, plan):
    fl = cfg.touch_flags
    info = {"x0": (240, "s[26:27]"), "x1": (241, "s[26:27]"), "q": (242, "s[28:29]"),
            "k0": (243, "s[28:29]"), "k1": (244, "s[28:29]"), "o": (245, "s[30:31]")}
    for w, names in plan.items():
        L = a.newlabel("tch")
        a.e(f"s_cmp_eq_u32 s39, {w}")
        a.e(f"s_cbranch_scc0 {L}")
        for i, nm in enumerate(names):
            v, base = info[nm]
            a.e(f"global_load_dword v{250+i}, v{v}, {base} {fl}")
            a.vm.pop()
        a.label(L)

def role_A(a, cfg):
    a.label("L_roleA")
    a.e("""
    s_and_b32 s40, s2, 7
    s_sub_u32 s41, s2, 256
    s_lshr_b32 s41, s41, 3          ; j
    s_waitcnt lgkmcnt(0)
    """)
    if not cfg.do_A:
        if cfg.touch:
            a_touch_setup(a, cfg)
            a_touch(a, cfg, {0: ["x0"], 1: ["k0"], 2: ["x1"], 3: ["k1"]})
            a.e("s_waitcnt vmcnt(0)")
            a_touch(a, cfg, {1: ["q"], 3: ["o"]})
            a.e("s_waitcnt vmcnt(0)")
        a.e("s_branch L_end")
        return
    import role_a
    role_a.role_A(a, cfg)

def build(cfg):
    a = Asm()
    prologue(a, cfg)
    if cfg.do_B:
        role_B(a, cfg)
    a.e("s_branch L_end")
    a.vm = []
    role_A(a, cfg)
    a.label("L_end")
    a.e("s_endpgm")
    body = a.render()
    return body, a

HEADER = open("concat_heads__ssm_conv_s4__linear_attn_block__prompt.s.ref").read().split("; Override launch")[0]

def generate(path, cfg):
    body, a = build(cfg)
    txt = wrap(body, HEADER, 512, 256, 81920)
    open(path, "w").write(txt)
    return a

if __name__ == "__main__":
    sys.modules["kern"] = sys.modules["__main__"]
    cfg = Cfg()
    cfg.stamps = True
    if len(sys.argv) > 2:
        for kv in sys.argv[2:]:
            k, v = kv.split("=")
            setattr(cfg, k, {"0": False, "1": True}.get(v, int(v) if v.isdigit() else v))
    a = generate(sys.argv[1] if len(sys.argv) > 1 else "k_b1.s", cfg)
    print("nops inserted:", a.nnops)
```

```python
from asmlib import Asm
import kern as K

UT, YT = K.UT, K.YT
UTF, YTF = K.UTF, K.YTF
TILE = 63488
SPIN = K.SPIN_LIMIT
ROWB = 528
XT = [0, 30096]
YOFF = 41*ROWB
KC = [60192, 61728]
NONCE_LDS = 63264
KD = [0, 4112]
CP = [8448, 8448 + 16640]
UR = [41728, 41728 + 7600]
YP = 0
ROWS = list(range(8)) + [128+k for k in range(8)] + [256+2*k for k in range(4)] + [384+2*k for k in range(4)] + \
       [512, 516, 640, 644, 768, 772, 896, 900] + [1024+128*k for k in range(8)] + [2048]
assert len(ROWS) == 41

def fhex(x):
    import struct
    return hex(struct.unpack("<I", struct.pack("<f", x))[0])

USE_PK = False
def cmul(a, d, x, y, t):
    if USE_PK:
        a.e(f"v_pk_mul_f32 v[{t}:{t+1}], v[{x}:{x+1}], v[{y}:{y+1}] op_sel_hi:[1,0]")
        a.e(f"v_pk_fma_f32 v[{d}:{d+1}], v[{x}:{x+1}], v[{y}:{y+1}], v[{t}:{t+1}] op_sel:[1,1,0] op_sel_hi:[0,1,1] neg_lo:[1,0,0]")
    else:
        assert d not in (x, y)
        a.e(f"v_mul_f32 v{t}, v{x}, v{y}")
        a.e(f"v_mul_f32 v{t+1}, v{x+1}, v{y}")
        a.e(f"v_fma_f32 v{d}, -v{x+1}, v{y+1}, v{t}")
        a.e(f"v_fma_f32 v{d+1}, v{x}, v{y+1}, v{t+1}")

def poll_tags_loop(a, name, loads, tagregs):
    a.e("s_mov_b32 s61, 0")
    a.label(f"L_{name}_poll")
    for l in loads: a.e(l)
    a.e("s_add_u32 s61, s61, 1")
    a.e("s_waitcnt vmcnt(0)")
    K.tag_check(a, tagregs, acc="v9")
    a.e(f"""
    s_cmp_gt_u32 s61, {SPIN}
    s_cbranch_scc1 L_{name}_go
    s_cbranch_vccz L_{name}_go
    s_sleep 1
    s_branch L_{name}_poll
    """)
    a.label(f"L_{name}_go")
    a.vm = []

def role_A(a, cfg):
    global USE_PK
    USE_PK = cfg.pk
    st = lambda i: K.stamp(a, cfg, i)
    a.c("================= role A =================")
    if cfg.prioA: a.e(f"s_setprio {cfg.prioA}")
    a.e("""
    s_lshr_b32 s47, s39, 1
    s_and_b32 s48, s39, 1           ; w2
    s_lshl_b32 s49, s40, 6          ; 64 g
    s_lshl_b32 s50, s41, 1
    s_add_u32 s50, s50, s49         ; d0 = 64g + 2j
    s_add_u32 s51, s50, s47
    s_lshl_b32 s51, s51, 8
    v_and_b32 v2, 127, v0
    v_lshl_add_u32 v2, v2, 1, s51
    v_lshrrev_b32 v3, 4, v0         ; r''
    v_and_b32 v4, 15, v0            ; c8
    s_lshl_b32 s52, s41, 6
    v_lshl_add_u32 v5, v3, 2, s52   ; t0 = 64j + 4r''
    v_lshlrev_b32 v6, 10, v5
    s_lshl_b32 s53, s49, 1
    v_lshl_add_u32 v7, v4, 3, s53
    v_add_u32 v6, v6, v7            ; u offset
    s_waitcnt lgkmcnt(0)
    """)
    st(1)
    a.e("""
    s_cmp_lg_u32 s2, 0
    s_cbranch_scc1 L_a_nopub
    s_cmp_lg_u32 s39, 0
    s_cbranch_scc1 L_a_nopub
    s_memrealtime s[58:59]
    v_mov_b32 v8, 0
    s_waitcnt lgkmcnt(0)
    s_or_b32 s58, s58, 8
    v_mov_b32 v9, s58
    s_mov_b64 exec, 1
    global_store_dword v8, v9, s[34:35] sc1
    s_mov_b64 exec, -1
    """)
    a.vm.pop()
    a.label("L_a_nopub")
    a.e("""
    global_load_dwordx2 v[16:17], v6, s[8:9]
    global_load_dwordx2 v[18:19], v6, s[8:9] offset:1024
    global_load_dwordx2 v[20:21], v6, s[8:9] offset:2048
    global_load_dwordx2 v[22:23], v6, s[8:9] offset:3072
    """, vm="u")
    a.e("""
    global_load_ushort v10, v2, s[10:11]
    global_load_ushort v11, v2, s[12:13]
    global_load_ushort v12, v2, s[14:15]
    global_load_ushort v13, v2, s[16:17]
    global_load_ushort v14, v2, s[18:19]
    global_load_ushort v15, v2, s[20:21]
    """, vm="par")
    a.e("global_load_dwordx2 v[24:25], v7, s[24:25]", vm="dsk")
    a.e("""
    s_lshl_b32 s54, s50, 1
    s_add_u32 s54, s22, s54
    s_addc_u32 s55, s23, 0
    s_load_dword s56, s[54:55], 0
    """)
    a.e("""
    v_mov_b32 v8, 0
    s_cmp_lg_u32 s39, 0
    s_cbranch_scc1 L_a_nn
    s_mov_b32 s61, 0
    """)
    a.label("L_a_npoll")
    a.e(f"""
    global_load_dword v9, v8, s[34:35] sc1
    s_waitcnt vmcnt(0)
    v_readfirstlane_b32 s38, v9
    s_add_u32 s61, s61, 1
    s_cmp_gt_u32 s61, {SPIN}
    s_cbranch_scc1 L_a_nok
    s_cmp_eq_u32 s38, 0
    s_cbranch_scc1 L_a_npoll
    """)
    a.vm.pop()
    a.label("L_a_nok")
    a.e(f"""
    v_mov_b32 v9, s38
    ds_write_b32 v8, v9 offset:{NONCE_LDS}
    """)
    a.label("L_a_nn")
    if cfg.touch:
        K.a_touch_setup(a, cfg)
        if cfg.touch_mode == "early":
            K.a_touch(a, cfg, {2: ["x0", "k0", "x1"], 3: ["k1", "q"]})
    if cfg.touch and cfg.touch_mode == "early":
        a.e("""
        s_cmp_ge_u32 s39, 2
        s_cbranch_scc1 L_a_w23
        s_waitcnt vmcnt(0)
        s_branch L_a_wdone
        """)
        a.label("L_a_w23")
        a.e("""
        s_cmp_eq_u32 s39, 2
        s_cbranch_scc0 L_a_w3
        s_waitcnt vmcnt(3)
        s_branch L_a_wdone
        """)
        a.label("L_a_w3")
        a.e("s_waitcnt vmcnt(2)")
        a.label("L_a_wdone")
    else:
        a.e("s_waitcnt vmcnt(0)")
        if cfg.touch:
            K.a_touch(a, cfg, {2: ["x1", "k0"], 3: ["k1"]})
    a.vm = []
    a.e(f"""
    v_lshlrev_b32 v26, 2, v3
    v_sub_u32 v26, 63, v26            ; 63 - 4r''
    v_mul_u32_u24 v26, 136, v26
    v_lshl_add_u32 v26, v4, 3, v26    ; + c8*8
    v_add_u32 v26, {TILE - 3*136}, v26
    """)
    for rho in range(4):
        a.e(f"ds_write_b64 v26, v[{16+2*rho}:{17+2*rho}] offset:{(3-rho)*136}")
    a.e(f"""
    v_lshrrev_b32 v27, 4, v1          ; G
    v_bfe_u32 v28, v1, 2, 2           ; rr
    v_lshl_add_u32 v27, v27, 3, v28
    v_mul_u32_u24 v27, 136, v27
    v_and_b32 v28, 3, v1              ; cc
    v_lshl_add_u32 v27, v28, 3, v27
    s_lshl_b32 s57, s39, 6            ; 32 channels * 2 B
    s_add_u32 s57, s57, {TILE}
    v_add_u32 v27, s57, v27
    v_and_b32 v28, 15, v1
    s_lshl_b32 s57, s39, 5
    s_add_u32 s57, s57, s49
    v_add_u32 v28, s57, v28
    v_lshlrev_b32 v28, 12, v28
    v_lshrrev_b32 v29, 4, v1
    v_lshl_add_u32 v28, v29, 4, v28
    s_sub_u32 s57, 31, s41
    s_lshl_b32 s57, s57, 7
    s_add_u32 s57, s57, {UT}
    v_add_u32 v28, s57, v28
    v_add_u32 v29, 65536, v28
    s_waitcnt lgkmcnt(0)
    s_barrier
    ds_read_b32 v9, v8 offset:{NONCE_LDS}
    s_cmp_ge_u32 s39, 2
    s_cbranch_scc1 L_a_nout
    """)
    for h in range(2):
        b = 32 + 8*h
        a.e(f"ds_read_b64_tr_b16 v[{b}:{b+1}], v27 offset:{32*h}")
        a.e(f"ds_read_b64_tr_b16 v[{b+2}:{b+3}], v27 offset:{32*h + 4*136}")
        a.e(f"ds_read_b64_tr_b16 v[{b+4}:{b+5}], v27 offset:{32*h + 32*136}")
        a.e(f"ds_read_b64_tr_b16 v[{b+6}:{b+7}], v27 offset:{32*h + 36*136}")
    a.e("""
    s_waitcnt lgkmcnt(0)
    global_store_dwordx4 v28, v[32:35], s[36:37] sc1
    global_store_dwordx4 v28, v[36:39], s[36:37] offset:64 sc1
    global_store_dwordx4 v29, v[40:43], s[36:37] sc1
    global_store_dwordx4 v29, v[44:47], s[36:37] offset:64 sc1
    """)
    a.label("L_a_nout")
    a.e("""
    s_waitcnt lgkmcnt(0)
    v_readfirstlane_b32 s38, v9
    """)
    a.vm = []
    st(2)
    if cfg.touch and cfg.touch_mode == "early":
        K.a_touch(a, cfg, {3: ["o"]})
    LOG2E = fhex(1.4426950408889634); INV2PI = fhex(0.15915494309189535)
    a.e(f"""
    s_lshr_b32 s59, s56, 16
    s_and_b32 s60, s56, 0xffff
    s_cmp_eq_u32 s47, 0
    s_cselect_b32 s59, s60, s59
    s_lshl_b32 s59, s59, 16
    v_mov_b32 v28, s59
    v_mul_f32 v29, {LOG2E}, v28
    v_mov_b32 v30, {LOG2E}
    v_fma_f32 v30, v28, v30, -v29
    v_fmac_f32 v30, 0x32a57060, v28
    v_exp_f32 v29, v29
    v_mul_f32 v30, {fhex(0.6931471805599453)}, v30
    v_fma_f32 v29, v29, v30, v29
    v_cvt_pk_bf16_f32 v29, v29, v29
    v_lshlrev_b32 v29, 16, v29
    """)
    for i in range(6): a.e(f"v_lshlrev_b32 v{10+i}, 16, v{10+i}")
    a.e(f"""
    v_mul_f32 v10, v29, v10          ; a_re
    v_mul_f32 v11, v29, v11          ; a_im
    v_mul_f32 v12, v29, v12          ; dB_re
    v_mul_f32 v13, v29, v13          ; dB_im
    v_mul_f32 v10, {LOG2E}, v10      ; ar2
    v_mul_f32 v11, {INV2PI}, v11     ; ai2
    """)
    P = {}
    nxtp = [40]
    def pair(name):
        P[name] = nxtp[0]; nxtp[0] += 2
        return P[name]
    TMP = [36, 38]
    ti = [0]
    def mul(dn, xn, yn):
        d = P.get(dn) or pair(dn)
        t = TMP[ti[0] % 2]; ti[0] += 1
        cmul(a, d, P[xn], P[yn], t)
    P["C"] = 14; P["dB"] = 12
    pair("X0"); cmul(a, P["X0"], 14, 12, 36)
    for x in (1, 8, 128, 256, 512, 1024):
        d = pair(f"E{x}")
        if x == 1:
            a.e(f"v_exp_f32 v32, v10")
            a.e(f"v_fract_f32 v33, v11")
        else:
            a.e(f"v_mul_f32 v32, {fhex(float(x))}, v10")
            a.e(f"v_mul_f32 v33, {fhex(float(x))}, v11")
            a.e(f"v_exp_f32 v32, v32")
            a.e(f"v_fract_f32 v33, v33")
        a.e(f"v_cos_f32 v34, v33")
        a.e(f"v_sin_f32 v35, v33")
        a.e(f"v_mul_f32 v{d}, v32, v34")
        a.e(f"v_mul_f32 v{d+1}, v32, v35")
    a.e("""
    s_cmp_ge_u32 s39, 2
    s_cbranch_scc1 L_a_noack
    s_waitcnt vmcnt(0)
    """)
    a.label("L_a_noack")
    a.e(f"""
    s_waitcnt lgkmcnt(0)
    s_barrier
    s_cmp_lg_u32 s39, 0
    s_cbranch_scc1 L_a_nofl
    s_getreg_b32 s57, hwreg(HW_REG_XCC_ID)
    s_and_b32 s57, s57, 7
    s_and_b32 s58, s38, 0xfffffff8
    s_or_b32 s57, s57, s58
    s_lshl_b32 s58, s40, 9
    s_lshr_b32 s59, s41, 3
    s_lshl_b32 s59, s59, 7
    s_add_u32 s58, s58, s59
    s_and_b32 s59, s41, 7
    s_lshl_b32 s59, s59, 2
    s_add_u32 s58, s58, s59
    s_add_u32 s58, s58, {UTF}
    v_mov_b32 v27, s58
    v_mov_b32 v28, s57
    s_mov_b64 exec, 1
    global_store_dword v27, v28, s[36:37] sc1
    s_mov_b64 exec, -1
    """)
    a.label("L_a_nofl")
    a.vm = []
    a.e(f"""
    v_and_b32 v31, 127, v0
    v_lshlrev_b32 v31, 2, v31
    s_mul_i32 s59, s47, {XT[1]}
    v_add_u32 v31, s59, v31
    """)
    cv = [0]
    def putX(x, name):
        r = 32 + (cv[0] % 4); cv[0] += 1
        p = P[name]
        a.e(f"v_cvt_pk_bf16_f32 v{r}, v{p}, -v{p+1}")
        if not cfg.x_nowrite: a.e(f"ds_write_b32 v31, v{r} offset:{ROWS.index(x)*ROWB}")
    def putY(j, name):
        r = 32 + (cv[0] % 4); cv[0] += 1
        p = P[name]
        a.e(f"v_cvt_pk_bf16_f32 v{r}, v{p}, v{p+1}")
        if not cfg.x_nowrite: a.e(f"ds_write_b32 v31, v{r} offset:{YOFF + j*ROWB}")
    putX(0, "X0")
    a.e("v_mov_b32 v32, 0x3f80")
    a.e(f"ds_write_b32 v31, v32 offset:{YOFF}")
    cv[0] = 1
    P["Y8"] = P["E8"]; putY(1, "Y8")
    for k in range(1, 8):
        mul(f"X{k}", f"X{k-1}", "E1"); putX(k, f"X{k}")
    mul("Y16", "Y8", "Y8"); putY(2, "Y16")
    mul("Y24", "Y16", "Y8"); putY(3, "Y24")
    mul("Y32", "Y16", "Y16"); putY(4, "Y32")
    mul("Y40", "Y32", "Y8"); putY(5, "Y40")
    mul("Y48", "Y32", "Y16"); putY(6, "Y48")
    mul("Y56", "Y32", "Y24"); putY(7, "Y56")
    mul("Y64", "Y32", "Y32"); putY(8, "Y64")
    pair("S0"); pair("S1")
    si = [0]
    def scratch():
        n = f"S{si[0] % 2}"; si[0] += 1
        return n
    for j in range(9, 16):
        s_ = scratch(); mul(s_, "Y64", f"Y{8*j-64}"); putY(j, s_)
    for k in range(8):
        s_ = scratch(); mul(s_, f"X{k}", "E128"); putX(128+k, s_)
    for k in (0, 2, 4, 6):
        mul("S0", f"X{k}", "E256"); putX(256+k, "S0")
        mul("S1", "S0", "E128"); putX(384+k, "S1")
    for k in (0, 4):
        mul("S0", f"X{k}", "E512"); putX(512+k, "S0")
        mul("S1", "S0", "E128"); putX(640+k, "S1")
        mul("S0", "S1", "E128"); putX(768+k, "S0")
        mul("S1", "S0", "E128"); putX(896+k, "S1")
    pair("XK"); mul("XK", "X0", "E1024"); putX(1024, "XK")
    mul("S0", "XK", "E1024"); putX(2048, "S0")
    prev = "XK"
    for q in range(1, 8):
        cur = "S1" if prev != "S1" else "S0"
        mul(cur, prev, "E128"); putX(1024+128*q, cur); prev = cur
    assert nxtp[0] <= 120, nxtp
    a.e(f"""
    v_and_b32 v26, 15, v1
    v_mul_u32_u24 v26, {ROWB}, v26
    v_lshrrev_b32 v27, 4, v1
    v_lshl_add_u32 v26, v27, 4, v26
    s_mul_i32 s59, s47, {XT[1]}
    v_add_u32 v26, s59, v26
    s_waitcnt lgkmcnt(0)
    s_barrier
    """)
    st(3)
    if cfg.touch and cfg.touch_mode != "early":
        K.a_touch(a, cfg, {2: ["q"], 3: ["o"]})
    YF, XF, D0 = 32, 64, 128
    for s in range(8):
        a.e(f"ds_read_b128 v[{YF+4*s}:{YF+4*s+3}], v26 offset:{YOFF + 64*s}")
    a.e("""
    s_cmp_eq_u32 s48, 0
    s_cbranch_scc0 L_a_k2
    """)
    for t in range(2):
        for s in range(8):
            a.e(f"ds_read_b128 v[{XF+32*t+4*s}:{XF+32*t+4*s+3}], v26 offset:{t*16*ROWB + 64*s}")
    a.e("s_waitcnt lgkmcnt(0)")
    for s in range(8):
        for t in range(2):
            c = "0" if s == 0 else f"v[{D0+4*t}:{D0+4*t+3}]"
            a.e(f"v_mfma_f32_16x16x32_bf16 v[{D0+4*t}:{D0+4*t+3}], v[{XF+32*t+4*s}:{XF+32*t+4*s+3}], v[{YF+4*s}:{YF+4*s+3}], {c}")
    a.e(f"""
    s_mul_i32 s59, s47, {KC[1]-KC[0]}
    s_add_u32 s59, s59, {KC[0]}
    v_and_b32 v28, 15, v1            ; j
    v_lshrrev_b32 v29, 4, v1         ; g
    v_lshrrev_b32 v30, 1, v29
    v_lshlrev_b32 v30, 7, v30
    v_lshl_add_u32 v30, v28, 3, v30
    v_and_b32 v9, 1, v29
    v_lshl_add_u32 v30, v9, 2, v30
    v_lshl_add_u32 v30, v30, 1, s59
    v_cvt_pk_bf16_f32 v136, v{D0}, v{D0+1}
    v_cvt_pk_bf16_f32 v137, v{D0+2}, v{D0+3}
    ds_write_b64 v30, v[136:137]
    ; tile 1: g<2: A = 256 + 64g + 4j, B = A+2 ; g>=2: A = 384 + 64(g-2) + 2j, B = A + 32
    v_lshlrev_b32 v30, 6, v29        ; 64 g
    v_cmp_gt_u32 vcc, 2, v29
    v_lshlrev_b32 v138, 2, v28       ; 4j
    v_lshlrev_b32 v139, 1, v28       ; 2j
    v_cndmask_b32 v138, v139, v138, vcc
    v_add_u32 v30, v30, v138
    v_add_u32 v30, 256, v30          ; g<2: 256+64g+4j ; g>=2: 256 + 64g + 2j = 384 + 64(g-2) + 2j
    v_mov_b32 v138, 32
    v_mov_b32 v139, 2
    v_cndmask_b32 v138, v138, v139, vcc
    v_add_u32 v138, v30, v138
    v_lshl_add_u32 v30, v30, 1, s59
    v_lshl_add_u32 v138, v138, 1, s59
    v_cvt_pk_bf16_f32 v136, v{D0+4}, v{D0+5}
    v_cvt_pk_bf16_f32 v137, v{D0+6}, v{D0+7}
    ds_write_b32 v30, v136
    ds_write_b32 v138, v137
    s_branch L_a_kdone
    """)
    a.label("L_a_k2")
    for s in range(8):
        a.e(f"ds_read_b128 v[{XF+4*s}:{XF+4*s+3}], v26 offset:{2*16*ROWB + 64*s}")
    a.e("s_waitcnt lgkmcnt(0)")
    for s in range(8):
        c = "0" if s == 0 else f"v[{D0}:{D0+3}]"
        a.e(f"v_mfma_f32_16x16x32_bf16 v[{D0}:{D0+3}], v[{XF+4*s}:{XF+4*s+3}], v[{YF+4*s}:{YF+4*s+3}], {c}")
    a.e(f"""
    s_mul_i32 s59, s47, {KC[1]-KC[0]}
    s_add_u32 s59, s59, {KC[0]}
    v_and_b32 v28, 15, v1
    v_lshrrev_b32 v29, 4, v1
    v_lshl_add_u32 v30, v29, 6, v28
    v_add_u32 v30, 512, v30
    v_lshl_add_u32 v30, v30, 1, s59
    v_cvt_pk_bf16_f32 v136, v{D0}, v{D0+1}
    v_cvt_pk_bf16_f32 v137, v{D0+2}, v{D0+3}
    ds_write_b16 v30, v136
    ds_write_b16_d16_hi v30, v136 offset:32
    ds_write_b16 v30, v137 offset:64
    ds_write_b16_d16_hi v30, v137 offset:96
    """)
    a.label("L_a_kdone")
    a.e("s_waitcnt lgkmcnt(0)")
    a.e("s_barrier")
    st(4)
    a.e(f"""
    v_lshlrev_b32 v26, 4, v0         ; 16*m'
    v_add_u32 v26, 16, v26
    s_mov_b32 s57, 0x01000100        ; (lo,lo) of S1
    s_mov_b32 s58, 0x03020302        ; (hi,hi) of S1
    s_mov_b32 s59, 0x05040302        ; (hi of S1, lo of S0)
    s_mov_b32 s60, 0x03020100        ; S1
    s_mov_b32 s62, 0x05040100        ; (lo S1, lo S0)
    s_cmp_eq_u32 s39, 0
    s_cbranch_scc1 L_a_e0
    s_cmp_eq_u32 s39, 1
    s_cbranch_scc1 L_a_e2
    """)
    a.e(f"""
    v_add_u32 v27, {512-128}, v0
    v_lshlrev_b32 v27, 1, v27
    v_and_b32 v28, 1, v0
    v_cmp_eq_u32 vcc, 0, v28
    """)
    for c in range(2):
        a.e(f"ds_read_u16 v{32+2*c}, v27 offset:{KC[c]}")
        a.e(f"ds_read_u16 v{33+2*c}, v27 offset:{KC[c]+2}")
    a.e("s_waitcnt lgkmcnt(0)")
    for c in range(2):
        c0, c1 = 32+2*c, 33+2*c
        o = 40 + 4*c
        a.e(f"v_perm_b32 v{o}, v{c1}, v{c0}, s57")
        a.e(f"v_mov_b32 v{o+1}, v{o}")
        a.e(f"v_perm_b32 v{o+3}, v{c0}, v{c1}, s57")
        a.e(f"v_perm_b32 v{o+2}, v{c1}, v{c0}, s62")
        a.e(f"v_cndmask_b32 v{o+2}, v{o+3}, v{o+2}, vcc")
    a.e("s_branch L_a_ew")
    a.label("L_a_e2")
    a.e(f"""
    v_lshlrev_b32 v27, 2, v0
    v_add_u32 v27, {(384-128)*2}, v27
    """)
    for c in range(2):
        a.e(f"ds_read_b32 v{32+2*c}, v27 offset:{KC[c]}")
        a.e(f"ds_read_b32 v{33+2*c}, v27 offset:{KC[c]+4}")
    a.e("s_waitcnt lgkmcnt(0)")
    for c in range(2):
        A_, B_ = 32+2*c, 33+2*c
        o = 40 + 4*c
        a.e(f"v_perm_b32 v{o}, v{A_}, v{A_}, s57")
        a.e(f"v_mov_b32 v{o+1}, v{A_}")
        a.e(f"v_perm_b32 v{o+2}, v{A_}, v{A_}, s58")
        a.e(f"v_perm_b32 v{o+3}, v{B_}, v{B_}, s57")
    a.e("s_branch L_a_ew")
    a.label("L_a_e0")
    a.e(f"""
    v_lshlrev_b32 v27, 4, v0
    v_lshlrev_b32 v28, 3, v0
    v_add_u32 v28, {(256-128)*2}, v28
    """)
    for c in range(2):
        a.e(f"ds_read_b128 v[{40+4*c}:{43+4*c}], v27 offset:{KC[c]}")
        a.e(f"ds_read_b64 v[{32+4*c}:{33+4*c}], v28 offset:{KC[c]}")
        a.e(f"ds_read_b32 v{34+4*c}, v28 offset:{KC[c]+8}")
    a.e("""
    v_cmp_le_u32 vcc, 32, v0
    s_waitcnt lgkmcnt(0)
    """)
    for c in range(2):
        A_, B_, C_ = 32+4*c, 33+4*c, 34+4*c
        o = 40 + 4*c
        a.e(f"v_perm_b32 v48, v{A_}, v{A_}, s57")
        a.e(f"v_perm_b32 v49, v{B_}, v{A_}, s59")
        a.e(f"v_perm_b32 v50, v{B_}, v{B_}, s57")
        a.e(f"v_perm_b32 v51, v{C_}, v{B_}, s59")
        for q in range(4):
            a.e(f"v_cndmask_b32 v{o+q}, v{o+q}, v{48+q}, vcc")
    a.label("L_a_ew")
    for c in range(2):
        a.e(f"ds_write_b128 v26, v[{40+4*c}:{43+4*c}] offset:{KD[c]}")
    a.e(f"""
    v_mov_b32 v48, 0
    v_mov_b32 v49, 0
    v_mov_b32 v50, 0
    v_mov_b32 v51, 0
    v_lshlrev_b32 v27, 4, v0
    s_mov_b64 s[62:63], exec
    v_cmp_gt_u32 vcc, 160, v0         ; 160 x 16 B = 2560 B = 32 blocks x 80 B
    s_and_b64 exec, exec, vcc
    ds_write_b128 v27, v[48:51] offset:{UR[0] + 64*80}
    ds_write_b128 v27, v[48:51] offset:{UR[1] + 64*80}
    s_mov_b64 exec, s[62:63]
    v_lshrrev_b32 v28, 2, v0
    v_mul_u32_u24 v28, 4160, v28
    v_and_b32 v29, 3, v0
    v_lshl_add_u32 v28, v29, 4, v28
    v_cmp_gt_u32 vcc, 32, v0
    s_and_b64 exec, exec, vcc
    ds_write_b128 v28, v[48:51] offset:{CP[0]}
    v_mul_u32_u24 v28, {KD[1]}, v0
    v_cmp_gt_u32 vcc, 2, v0
    s_and_b64 exec, exec, vcc
    ds_write_b128 v28, v[48:51]
    s_mov_b64 exec, s[62:63]
    s_waitcnt lgkmcnt(0)
    s_barrier
    """)
    st(5)
    a.e(f"""
    v_lshlrev_b32 v26, 4, v0
    v_add_u32 v27, 64, v26
    """)
    for c in range(2):
        b = 32 + 16*c
        a.e(f"ds_read_b64 v[{b}:{b+1}], v26 offset:{KD[c] + 8}")
        a.e(f"ds_read_b128 v[{b+4}:{b+7}], v26 offset:{KD[c] + 16}")
    a.e("s_waitcnt lgkmcnt(0)")
    for c in range(2):
        b = 32 + 16*c
        n0, n1, n2, n3, n4, n5 = b, b+1, b+4, b+5, b+6, b+7
        m = b + 8
        a.e(f"v_alignbit_b32 v{m}, v{n1}, v{n0}, 16")
        a.e(f"v_alignbit_b32 v{m+1}, v{n2}, v{n1}, 16")
        a.e(f"v_alignbit_b32 v{m+2}, v{n3}, v{n2}, 16")
        a.e(f"v_alignbit_b32 v{m+3}, v{n4}, v{n3}, 16")
        a.e(f"v_alignbit_b32 v{m+4}, v{n5}, v{n4}, 16")
        base = CP[c]
        a.e(f"ds_write_b128 v27, v[{n2}:{n5}] offset:{base}")
        a.e(f"ds_write2_b32 v27, v{m+1}, v{m+2} offset0:0 offset1:1") if False else None
        for cc, regs in ((1, (m+1, m+2, m+3, m+4)), (2, (n1, n2, n3, n4)), (3, (m, m+1, m+2, m+3))):
            off = base + cc*4160
            if regs[0] % 2 == 0 and regs[1] == regs[0]+1 and regs[3] == regs[0]+3:
                a.e(f"ds_write_b128 v27, v[{regs[0]}:{regs[3]}] offset:{off}")
            else:
                for q in range(4):
                    a.e(f"ds_write_b32 v27, v{regs[q]} offset:{off + 4*q}")
    st(6)
    a.e(f"""
    v_lshrrev_b32 v28, 7, v0          ; cch
    v_add_u32 v29, s50, v28
    v_lshlrev_b32 v29, 12, v29
    v_and_b32 v30, 127, v0
    v_lshl_add_u32 v29, v30, 4, v29
    v_add_u32 v29, {UT}, v29
    v_lshrrev_b32 v8, 2, v30
    v_mul_u32_u24 v8, 80, v8
    v_and_b32 v9, 3, v30
    v_lshl_add_u32 v8, v9, 4, v8
    v_mul_u32_u24 v28, {UR[1]-UR[0]}, v28
    v_add_u32 v8, v8, v28
    v_and_b32 v26, 31, v1
    v_lshrrev_b32 v27, 3, v26
    v_lshlrev_b32 v27, 7, v27
    v_and_b32 v26, 7, v26
    v_lshl_add_u32 v26, v26, 2, v27
    s_lshl_b32 s58, s40, 9
    v_add_u32 v26, s58, v26
    s_cmp_lg_u32 s39, 0
    s_cbranch_scc1 L_a_utf_go
    v_add_u32 v27, {UTF}, v26
    s_and_b32 s58, s38, 0xfffffff8
    s_mov_b32 s61, 0
    """)
    a.label("L_a_utf_poll")
    a.e(f"""
    global_load_dword v30, v27, s[36:37] sc1
    s_add_u32 s61, s61, 1
    s_waitcnt vmcnt(0)
    v_and_b32 v31, 0xfffffff8, v30
    v_cmp_ne_u32 vcc, s58, v31
    s_cmp_gt_u32 s61, {SPIN}
    s_cbranch_scc1 L_a_utf_ok
    s_cbranch_vccz L_a_utf_ok
    s_sleep 2
    s_branch L_a_utf_poll
    """)
    a.label("L_a_utf_ok")
    a.e(f"""
    s_getreg_b32 s57, hwreg(HW_REG_XCC_ID)
    s_and_b32 s57, s57, 7
    v_and_b32 v31, 7, v30
    v_cmp_ne_u32 vcc, s57, v31
    s_cmp_eq_u64 vcc, 0
    s_cselect_b32 s57, 1, 0
    v_mov_b32 v31, s57
    v_mov_b32 v30, 0
    ds_write_b32 v30, v31 offset:{NONCE_LDS+4}
    """)
    a.label("L_a_utf_go")
    a.e(f"""
    s_waitcnt lgkmcnt(0)
    s_barrier
    global_load_dwordx4 v[64:67], v29, s[36:37] sc1
    global_load_dwordx4 v[68:71], v29, s[36:37] offset:2048 sc1
    v_mov_b32 v30, 0
    ds_read_b32 v31, v30 offset:{NONCE_LDS+4}
    s_waitcnt vmcnt(0) lgkmcnt(0)
    v_readfirstlane_b32 s46, v31
    """)
    a.vm = []
    st(7)
    a.e(f"ds_write_b128 v8, v[64:67] offset:{UR[0]}")
    a.e(f"ds_write_b128 v8, v[68:71] offset:{UR[0] + 32*80}")
    a.e("v_mov_b32 v9, v26")
    a.e(f"""
    v_and_b32 v26, 31, v1             ; i / a
    v_lshrrev_b32 v27, 5, v1          ; hh
    v_sub_u32 v28, 3, v26
    v_and_b32 v28, 3, v28
    v_mul_u32_u24 v29, 4160, v28
    v_add_u32 v30, v26, v28
    v_add_u32 v30, 9, v30
    v_lshlrev_b32 v31, 3, v27
    v_sub_u32 v30, v30, v31
    v_lshl_add_u32 v29, v30, 1, v29
    s_mul_i32 s57, s47, {CP[1]-CP[0]}
    s_lshl_b32 s58, s48, 10
    s_add_u32 s57, s57, s58
    s_add_u32 s57, s57, {CP[0]}
    v_add_u32 v2, s57, v29            ; vA
    v_sub_u32 v29, 31, v26
    v_mul_u32_u24 v29, 80, v29
    v_lshlrev_b32 v30, 4, v27
    v_sub_u32 v29, v29, v30
    v_add_u32 v29, 16, v29
    s_mul_i32 s57, s47, {UR[1]-UR[0]}
    s_mul_i32 s58, s48, {16*80}
    s_add_u32 s57, s57, s58
    s_add_u32 s57, s57, {UR[0]}
    v_add_u32 v3, s57, v29            ; vB
    s_waitcnt lgkmcnt(0)
    s_barrier
    """)
    st(8)
    ACC0, ACC1 = 128, 144
    NB = 3
    FR = [32 + 16*i for i in range(NB)]
    steps = [(dl, hf) for dl in range(16) for hf in range(2)]
    def reads(i):
        dl, hf = steps[i]
        f = FR[i % NB]
        ao = 64*dl + 32*(1-hf)
        bo = 80*dl + 32*(1-hf)
        t = f"cv{i}"
        a.e(f"ds_read_b64 v[{f}:{f+1}], v2 offset:{ao}", lg=t)
        a.e(f"ds_read_b64 v[{f+2}:{f+3}], v2 offset:{ao+8}", lg=t)
        a.e(f"ds_read_b128 v[{f+8}:{f+11}], v3 offset:{bo+2560}", lg=t)
        a.e(f"ds_read_b128 v[{f+12}:{f+15}], v3 offset:{bo}", lg=t)
        a.e(f"ds_read_b64 v[{f+4}:{f+5}], v2 offset:{ao+2048}", lg=t)
        a.e(f"ds_read_b64 v[{f+6}:{f+7}], v2 offset:{ao+2056}", lg=t)
    a.lg = []
    reads(0); reads(1)
    for i in range(32):
        f = FR[i % NB]
        a.wait_lg(f"cv{i}")
        c0 = "0" if i == 0 else f"v[{ACC0}:{ACC0+15}]"
        c1 = "0" if i == 0 else f"v[{ACC1}:{ACC1+15}]"
        a.e(f"v_mfma_f32_32x32x16_bf16 v[{ACC0}:{ACC0+15}], v[{f}:{f+3}], v[{f+8}:{f+11}], {c0}")
        if i + 2 < 32: reads(i + 2)
        a.e(f"v_mfma_f32_32x32x16_bf16 v[{ACC1}:{ACC1+15}], v[{f}:{f+3}], v[{f+12}:{f+15}], {c1}")
        a.e(f"v_mfma_f32_32x32x16_bf16 v[{ACC1}:{ACC1+15}], v[{f+4}:{f+7}], v[{f+8}:{f+11}], v[{ACC1}:{ACC1+15}]")
    st(9)
    a.e(f"""
    v_and_b32 v26, 31, v1
    v_mul_u32_u24 v26, 144, v26
    v_lshrrev_b32 v27, 5, v1
    v_lshl_add_u32 v26, v27, 4, v26
    s_mul_i32 s57, s39, {64*144}
    v_add_u32 v26, s57, v26
    s_waitcnt lgkmcnt(0)
    s_barrier
    """)
    for tau, acc in ((0, ACC0), (1, ACC1)):
        for q in range(4):
            a.e(f"ds_write_b128 v26, v[{acc+4*q}:{acc+4*q+3}] offset:{YP + tau*32*144 + q*32}")
    a.e(f"""
    v_lshrrev_b32 v27, 2, v0
    v_mul_u32_u24 v27, 144, v27
    v_and_b32 v28, 3, v0
    v_lshl_add_u32 v27, v28, 5, v27
    s_lshl_b32 s57, s50, 12
    s_add_u32 s57, s57, {YT}
    v_lshl_add_u32 v28, v0, 4, s57
    s_waitcnt lgkmcnt(0)
    s_barrier
    """)
    for c in range(2):
        o = YP + (c*2)*64*144
        b = 32 + 16*c
        a.e(f"ds_read_b128 v[{b}:{b+3}], v27 offset:{o}")
        a.e(f"ds_read_b128 v[{b+4}:{b+7}], v27 offset:{o + 16}")
        a.e(f"ds_read_b128 v[{b+8}:{b+11}], v27 offset:{o + 64*144}")
        a.e(f"ds_read_b128 v[{b+12}:{b+15}], v27 offset:{o + 64*144 + 16}")
    for c in range(2):
        a.e(f"s_waitcnt lgkmcnt({4-4*c})")
        b = 32 + 16*c
        for q in range(8): a.e(f"v_add_f32 v{b+q}, v{b+q}, v{b+8+q}")
        for m in range(4): a.e(f"v_cvt_pk_bf16_f32 v{64+4*c+m}, v{b+2*m}, v{b+2*m+1}")
    a.e("""
    v_add_u32 v29, 4096, v28
    s_cmp_eq_u32 s46, 0
    s_cbranch_scc1 L_a_yg
    global_store_dwordx4 v28, v[64:67], s[36:37]
    global_store_dwordx4 v29, v[68:71], s[36:37]
    s_branch L_a_yd
    """)
    a.label("L_a_yg")
    a.e("""
    global_store_dwordx4 v28, v[64:67], s[36:37] sc1
    global_store_dwordx4 v29, v[68:71], s[36:37] sc1
    """)
    a.label("L_a_yd")
    a.e(f"""
    s_waitcnt vmcnt(0)
    s_barrier
    s_cmp_lg_u32 s39, 0
    s_cbranch_scc1 L_a_noyf
    s_lshl_b32 s58, s40, 9
    s_lshr_b32 s59, s41, 3
    s_lshl_b32 s59, s59, 7
    s_add_u32 s58, s58, s59
    s_and_b32 s59, s41, 7
    s_lshl_b32 s59, s59, 2
    s_add_u32 s58, s58, s59
    s_add_u32 s58, s58, {YTF}
    v_mov_b32 v27, s58
    v_mov_b32 v28, s38
    s_mov_b64 exec, 1
    s_cmp_eq_u32 s46, 0
    s_cbranch_scc1 L_a_yfg
    global_store_dword v27, v28, s[36:37]
    s_branch L_a_yfd
    """)
    a.label("L_a_yfg")
    a.e("global_store_dword v27, v28, s[36:37] sc1")
    a.label("L_a_yfd")
    a.e("s_mov_b64 exec, -1")
    a.label("L_a_noyf")
    a.vm = []
    st(10)
    a.e(f"""
    v_and_b32 v4, 15, v0
    v_lshrrev_b32 v3, 4, v0
    v_lshlrev_b32 v26, 2, v4
    v_add_u32 v26, s49, v26
    s_lshl_b32 s59, s41, 7            ; 64j*2 bytes
    v_lshlrev_b32 v26, 12, v26
    v_lshl_add_u32 v26, v3, 3, v26    ; + 4r''*2
    v_add_u32 v26, s59, v26
    v_add_u32 v26, {YT}, v26
    v_add_u32 v27, 4096, v26
    v_add_u32 v28, 8192, v26
    v_add_u32 v31, 12288, v26
    """)
    for e in range(4):
        h, hi = e // 2, e % 2
        a.e(f"v_{'and_b32' if hi else 'lshlrev_b32'} v{80+e}, {'0xffff0000' if hi else '16'}, v{24+h}")
    for rho in range(4):
        for e in range(4):
            h, hi = e // 2, e % 2
            a.e(f"v_{'and_b32' if hi else 'lshlrev_b32'} v{96+4*rho+e}, {'0xffff0000' if hi else '16'}, v{16+2*rho+h}")
            a.e(f"v_mul_f32 v{96+4*rho+e}, v{96+4*rho+e}, v{80+e}")
        for h in range(2):
            a.e(f"v_cvt_pk_bf16_f32 v{84+h}, v{96+4*rho+2*h}, v{96+4*rho+2*h+1}")
        for h in range(2):
            a.e(f"v_lshlrev_b32 v{96+4*rho+2*h}, 16, v{84+h}")
            a.e(f"v_and_b32 v{96+4*rho+2*h+1}, 0xffff0000, v{84+h}")
    a.e(f"""
    s_cmp_lg_u32 s39, 0
    s_cbranch_scc1 L_a_ytf_go
    v_add_u32 v30, {YTF}, v9
    s_mov_b32 s61, 0
    """)
    a.label("L_a_ytf_poll")
    a.e(f"""
    global_load_dword v29, v30, s[36:37] sc1
    s_add_u32 s61, s61, 1
    s_waitcnt vmcnt(0)
    v_cmp_ne_u32 vcc, s38, v29
    s_cmp_gt_u32 s61, {SPIN}
    s_cbranch_scc1 L_a_ytf_go
    s_cbranch_vccz L_a_ytf_go
    s_sleep 1
    s_branch L_a_ytf_poll
    """)
    a.label("L_a_ytf_go")
    a.e("""
    s_barrier
    global_load_dwordx2 v[64:65], v26, s[36:37] sc1
    global_load_dwordx2 v[66:67], v27, s[36:37] sc1
    global_load_dwordx2 v[68:69], v28, s[36:37] sc1
    global_load_dwordx2 v[70:71], v31, s[36:37] sc1
    """)
    st(11)
    a.e(f"""
    s_lshl_b32 s57, s41, 6
    v_lshl_add_u32 v26, v3, 2, s57    ; t0
    v_lshlrev_b32 v26, 11, v26
    s_lshl_b32 s57, s49, 1
    v_lshl_add_u32 v27, v4, 3, s57
    v_add_u32 v26, v26, v27
    s_waitcnt vmcnt(0)
    """)
    for rho in range(4):
        m, hi = rho // 2, rho % 2
        for e in range(4):
            src = 64 + 2*e + m
            a.e(f"v_{'and_b32' if hi else 'lshlrev_b32'} v{84+e}, {'0xffff0000' if hi else '16'}, v{src}")
            a.e(f"v_add_f32 v{84+e}, v{84+e}, v{96+4*rho+e}")
        a.e(f"v_cvt_pk_bf16_f32 v{88+2*rho}, v84, v85")
        a.e(f"v_cvt_pk_bf16_f32 v{89+2*rho}, v86, v87")
        if rho in (0,):
            pass
    for rho in range(4):
        if rho < 2:
            a.e(f"global_store_dwordx2 v26, v[{88+2*rho}:{89+2*rho}], s[32:33] offset:{2048*rho}")
        else:
            if rho == 2: a.e("v_add_u32 v26, 4096, v26")
            a.e(f"global_store_dwordx2 v26, v[{88+2*rho}:{89+2*rho}], s[32:33] offset:{2048*(rho-2)}")
    st(12)
    K.stampval(a, cfg, 13, "s46")
    K.stamps_out(a, cfg, 14)
```

```python
import sys
from asmlib import Asm, wrap

UT   = 0
YT   = 4 << 20
PQ   = 8 << 20
PQF  = 10 << 20
KVP  = (10 << 20) + (64 << 10)
KVF  = 12 << 20
UTF  = (12 << 20) + (64 << 10)
YTF  = (12 << 20) + (72 << 10)
KVBLK = 2176
LOG2E = 0x3fb8aa3b
EPS   = 0x358637bd
SPIN_LIMIT = 200000

class Cfg:
    do_A = True
    do_B = True
    do_B2 = True
    touch = True
    dual = False
    x_nowrite = False
    prioA = 0
    prioB = 0
    pk = False
    b_exit = False
    touch_flags = ""
    early_release = True
    dma_early = False
    last_dma = 40
    late_pre = 0
    touch_mode = "late"
    stamps = False

STAMP_BASE = 14 << 20
def stamp(a, cfg, i):
    if cfg.stamps:
        a.e(f"s_memtime s[{70+2*i}:{71+2*i}]")
def stampval(a, cfg, i, sreg):
    if cfg.stamps:
        a.e("s_waitcnt lgkmcnt(0)")
        a.e(f"s_add_u32 s{70+2*i}, {sreg}, s70")
def stamps_out(a, cfg, n, vt=22):
    if not cfg.stamps: return
    a.e("s_memrealtime s[68:69]")
    a.e("s_waitcnt lgkmcnt(0) vmcnt(0)")
    a.vm = []
    for i in range(1, n):
        a.e(f"s_sub_u32 s{70+2*i}, s{70+2*i}, s70")
    a.e(f"""
    s_lshl_b32 s61, s2, 2
    s_add_u32 s61, s61, s39
    s_lshl_b32 s61, s61, 6
    s_add_u32 s61, s61, {STAMP_BASE}
    v_mov_b32 v{vt}, s61
    s_mov_b64 exec, 1
    """)
    for i in range(16):
        src = f"s{70+2*i}" if (0 < i < n) else ("s68" if i == 15 else ("s100" if i == 0 else "0"))
        a.e(f"v_mov_b32 v{vt+1}, {src}")
        a.e(f"global_store_dword v{vt}, v{vt+1}, s[36:37] offset:{4*i}")
        a.e("s_nop 1")
    a.e("s_waitcnt vmcnt(0)")
    a.e("s_mov_b64 exec, -1")
    a.vm = []

def prologue(a, cfg):
    if cfg.stamps:
        a.e("s_memrealtime s[100:101]")
        a.e("s_memtime s[70:71]")
    a.e("""
    s_cmp_ge_u32 s2, 512
    s_cbranch_scc1 L_end
    s_load_dwordx16 s[8:23], s[0:1], 0
    s_load_dwordx8 s[24:31], s[0:1], 64
    s_load_dwordx4 s[32:35], s[0:1], 96
    s_load_dwordx2 s[36:37], s[0:1], 112
    v_lshrrev_b32 v1, 6, v0
    v_readfirstlane_b32 s39, v1
    v_and_b32 v1, 63, v0
    s_and_b32 s3, s2, 255
    s_cmp_lt_u32 s2, 256
    s_cbranch_scc1 L_roleA
    """)

def poll_nonce(a, vtmp, vaddr0, first_tag=None):
    L = a.newlabel("nonce"); Lx = a.newlabel("nonce_ok")
    if first_tag:
        a.wait_vm(first_tag)
    else:
        a.e(f"global_load_dword {vtmp}, {vaddr0}, s[34:35] sc1")
        a.wait_vm_all()
    a.e(f"v_readfirstlane_b32 s38, {vtmp}")
    a.e(f"""
    s_cmp_lg_u32 s38, 0
    s_cbranch_scc1 {Lx}
    s_mov_b32 s61, 0
    """)
    a.label(L)
    a.e(f"""
    global_load_dword {vtmp}, {vaddr0}, s[34:35] sc1
    s_waitcnt vmcnt(0)
    v_readfirstlane_b32 s38, {vtmp}
    s_add_u32 s61, s61, 1
    s_cmp_gt_u32 s61, {SPIN_LIMIT}
    s_cbranch_scc1 {Lx}
    s_cmp_eq_u32 s38, 0
    s_cbranch_scc1 {L}
    """)
    a.vm.pop()
    a.label(Lx)

def phi_instrs(acc, tmp, out, zsum=None):
    L = []
    for i in range(16):
        L.append(f"v_mul_f32 v{tmp+i}, s62, v{acc+i}")
    for i in range(16):
        L.append(f"v_exp_f32 v{tmp+i}, v{tmp+i} clamp")
        L.append(f"v_max_f32 v{acc+i}, s64, v{acc+i}")
    for i in range(16):
        L.append(f"v_add_f32 v{acc+i}, v{acc+i}, v{tmp+i}")
    if zsum is not None:
        for m in range(8):
            L.append(f"v_add_f32 v{tmp+m}, v{acc+2*m}, v{acc+2*m+1}")
        for m in range(4):
            L.append(f"v_add_f32 v{tmp+m}, v{tmp+m}, v{tmp+4+m}")
        L.append(f"v_add_f32 v{tmp}, v{tmp}, v{tmp+2}")
        L.append(f"v_add_f32 v{tmp+1}, v{tmp+1}, v{tmp+3}")
        L.append(f"v_add_f32 v{zsum}, v{tmp}, v{tmp+1}")
    for m in range(8):
        L.append(f"v_cvt_pk_bf16_f32 v{out+m}, v{acc+2*m}, v{acc+2*m+1}")
    return L

def spread(side, nslots):
    out = []; n = len(side); k = 0
    for i in range(nslots):
        e = (n*(i+1))//nslots
        out.append(side[k:e]); k = e
    return out

SEQ = []
for c in range(8): SEQ += [("X", c), ("K", c)]
SEQ += [("V", c) for c in range(8)] + [("Q", c) for c in range(8)] + [("O", c) for c in range(8)]
NSLOT = 10
NINIT = 6
XR = 128
WF, T16, ACCQ, ACCK, ACCV = 32, 64, 80, 96, 112

def b_issue_jobs(n):
    kind, c = SEQ[n]
    pos = n % NSLOT
    pre = []
    if kind == "X":
        so, v0, srd = f"s{16+c}", 2, "s[40:43]"
    elif kind in "QKV":
        so, v0, srd = f"s{8+c}", 4, "s[44:47]"
        if kind == "V" and c == 0:
            pre = [("v_add_u32 v4, 1024, v4", None), ("v_add_u32 v5, 1024, v5", None)]
        if kind == "Q" and c == 0:
            pre = [("v_subrev_u32 v4, 2048, v4", None), ("v_subrev_u32 v5, 2048, v5", None)]
    else:
        so, v0, srd = "s61", 6, "s[48:51]"
        pre = [(f"s_mov_b32 s61, {c*65536}", None)]
    return [pre + [(f"s_add_u32 m0, s60, {pos*8192}", None),
             (f"buffer_load_dwordx4 v{v0}, {srd}, {so} offen lds", f"slot{n}")],
            [(f"buffer_load_dwordx4 v{v0+1}, {srd}, {so} offen offset:1024 lds", f"slot{n}")]]

def emit_job(a, job):
    for t in job:
        if isinstance(t, str): a.e(t)
        else: a.e(t[0], vm=t[1])

def lds_base(n):
    pos = n % NSLOT
    return (0, pos*8192) if pos < 5 else (1, (pos-5)*8192)

def wfrag_reads(a, n, s, dst, tag=None):
    hi, off = lds_base(n)
    va = "v17" if hi else "v16"
    a.e(f"ds_read_b64_tr_b16 v[{dst}:{dst+1}], {va} offset:{off + s*2048}", lg=tag)
    a.e(f"ds_read_b64_tr_b16 v[{dst+2}:{dst+3}], {va} offset:{off + s*2048 + 512}", lg=tag)

def role_B(a, cfg):
    a.c("================= role B =================")
    if cfg.prioB: a.e(f"s_setprio {cfg.prioB}")
    a.e("""
    s_and_b32 s66, s3, 7            ; xcd
    s_lshr_b32 s67, s3, 3           ; jj
    s_lshr_b32 s56, s66, 1
    s_lshl_b32 s56, s56, 3
    s_and_b32 s68, s67, 7
    s_add_u32 s56, s56, s68         ; tb
    s_and_b32 s57, s66, 1
    s_lshl_b32 s57, s57, 2
    s_lshr_b32 s68, s67, 3
    s_add_u32 s57, s57, s68         ; hq
    s_and_b32 s58, s39, 1           ; tt
    s_lshr_b32 s59, s39, 1
    s_lshl_b32 s60, s39, 11
    s_mov_b32 s62, 0x3fb8aa3b
    s_mov_b32 s63, 0x3fb8aa3b
    s_mov_b32 s64, 0x358637bd
    s_mov_b32 s65, 0x358637bd
    """)
    a.e("""
    v_lshrrev_b32 v32, 3, v1        ; l>>3
    v_and_b32 v33, 7, v1            ; l&7
    v_lshrrev_b32 v34, 4, v1        ; l>>4
    s_lshl_b32 s68, s56, 6          ; tb*64
    s_lshl_b32 s69, s39, 4          ; 16w
    s_add_u32 s68, s68, s69
    v_add_u32 v35, s68, v32         ; row
    v_lshlrev_b32 v35, 10, v35
    v_xor_b32 v36, v33, v34
    v_lshl_add_u32 v2, v36, 4, v35
    v_add_u32 v37, 4, v34
    v_xor_b32 v36, v33, v37
    v_lshl_add_u32 v3, v36, 4, v35
    v_add_u32 v3, 7168, v3          ; +8 rows - 1024
    v_and_b32 v36, 1, v34
    v_lshlrev_b32 v36, 2, v36
    v_xor_b32 v36, v33, v36         ; q
    v_lshlrev_b32 v36, 4, v36       ; q*16
    v_add_u32 v37, s69, v32         ; 16w + (l>>3)
    v_mul_u32_u24 v38, 3072, v37
    s_lshl_b32 s68, s57, 7          ; hq*128
    v_add3_u32 v4, v38, v36, s68
    v_add_u32 v4, 1024, v4
    v_add_u32 v5, 23552, v4         ; +8*3072 - 1024
    v_lshlrev_b32 v38, 10, v37
    v_add3_u32 v6, v38, v36, s68
    v_add_u32 v7, 7168, v6
    """)
    a.e("""
    s_waitcnt lgkmcnt(0)
    s_mov_b32 s40, s26
    s_and_b32 s41, s27, 0xffff
    s_mov_b32 s42, 0x200000
    s_mov_b32 s43, 0x20000
    s_mov_b32 s44, s28
    s_and_b32 s45, s29, 0xffff
    s_mov_b32 s46, 0x180000
    s_mov_b32 s47, 0x20000
    s_mov_b32 s48, s30
    s_and_b32 s49, s31, 0xffff
    s_mov_b32 s50, 0x80000
    s_mov_b32 s51, 0x20000
    """)
    a.e("v_mov_b32 v31, 0")
    if cfg.b_exit:
        a.e("s_branch L_end")
    for c in range(8):
        a.e(f"s_mov_b32 s{8+c}, {c*64*3072}")
        a.e(f"s_mov_b32 s{16+c}, {c*128}")
    stamp(a, cfg, 1)
    for n in range(NINIT):
        for job in b_issue_jobs(n): emit_job(a, job)
    a.e("""
    v_and_b32 v32, 31, v1           ; i
    v_lshrrev_b32 v33, 5, v1        ; hh
    s_lshl_b32 s68, s58, 5
    v_add_u32 v34, s68, v32         ; 32tt + i
    v_lshlrev_b32 v34, 7, v34       ; *128
    v_lshrrev_b32 v35, 1, v32
    v_and_b32 v35, 7, v35           ; f
    """)
    for s in range(4):
        a.e(f"""
        v_add_u32 v36, {2*s}, v33
        v_xor_b32 v36, v36, v35
        v_lshl_add_u32 v{8+s}, v36, 4, v34
        v_add_u32 v{12+s}, 40960, v{8+s}
        """)
    a.e(f"""
    v_lshrrev_b32 v34, 2, v1
    v_and_b32 v34, 3, v34           ; rr
    v_and_b32 v35, 3, v1            ; cc
    v_lshrrev_b32 v36, 4, v1
    v_and_b32 v36, 1, v36           ; G&1
    v_lshlrev_b32 v36, 1, v36       ; 2(G&1)
    v_lshrrev_b32 v37, 1, v35       ; cc>>1
    v_add_u32 v36, v36, v37         ; 2(G&1) + (cc>>1)
    v_lshrrev_b32 v37, 1, v34
    v_lshlrev_b32 v37, 2, v37       ; 4(rr>>1)
    v_and_b32 v38, 1, v35
    v_lshlrev_b32 v38, 3, v38       ; 8(cc&1)
    s_lshl_b32 s68, s59, 2
    v_add_u32 v39, s68, v36
    v_xor_b32 v39, v39, v37
    v_lshl_add_u32 v39, v39, 4, v38
    v_lshl_add_u32 v40, v33, 3, v34
    v_lshl_add_u32 v16, v40, 7, v39
    v_add_u32 v17, 40960, v16
    v_xor_b32 v39, v36, v37
    v_lshl_add_u32 v39, v39, 4, v38
    v_lshl_add_u32 v40, v33, 2, v34
    v_lshl_add_u32 v18, v40, 7, v39
    s_lshl_b32 s68, s59, 15
    s_add_u32 s68, s68, 16384
    v_add_u32 v18, s68, v18
    v_xor_b32 v19, 64, v18
    s_lshl_b32 s68, s59, 1
    s_add_u32 s68, s68, s58
    s_xor_b32 s69, s68, 1
    s_lshl_b32 s66, s68, 10
    s_add_u32 s66, s66, 16384
    v_lshl_add_u32 v22, v1, 4, s66
    s_lshl_b32 s66, s69, 10
    s_add_u32 s66, s66, 16384
    v_lshl_add_u32 v23, v1, 4, s66
    s_lshl_b32 s66, s68, 8
    s_add_u32 s66, s66, 20480
    v_lshl_add_u32 v24, v1, 2, s66
    s_lshl_b32 s66, s69, 8
    s_add_u32 s66, s66, 20480
    v_lshl_add_u32 v25, v1, 2, s66
    s_lshl_b32 s68, s57, 1
    s_add_u32 s68, s68, s59
    s_lshl_b32 s68, s68, 5
    s_add_u32 s68, s68, s56
    s_mul_i32 s68, s68, 2176
    s_add_u32 s68, s68, {KVP}
    s_lshl_b32 s69, s58, 10
    s_add_u32 s69, s69, s68
    v_lshl_add_u32 v26, v1, 4, s69
    v_lshrrev_b32 v40, 4, v1
    v_and_b32 v40, 1, v40
    v_lshlrev_b32 v40, 3, v40       ; 8c
    v_and_b32 v41, 4, v1            ; 4*hh'
    v_add_u32 v40, v40, v41
    v_lshrrev_b32 v41, 2, v1
    v_and_b32 v41, 2, v41
    v_add_u32 v40, v40, v41
    v_lshrrev_b32 v41, 1, v1
    v_and_b32 v41, 1, v41
    v_add_u32 v40, v40, v41         ; zg
    s_add_u32 s68, s68, 2048
    v_lshl_add_u32 v27, v40, 3, s68
    s_lshl_b32 s68, s56, 1
    s_add_u32 s68, s68, s58
    s_lshl_b32 s68, s68, 5
    s_lshl_b32 s69, s57, 2
    s_add_u32 s68, s68, s69
    s_lshl_b32 s69, s59, 1
    s_add_u32 s68, s68, s69
    s_lshl_b32 s68, s68, 10
    s_add_u32 s68, s68, {PQ}
    v_lshl_add_u32 v28, v1, 4, s68
    v_and_b32 v40, 16, v1
    v_cmp_ne_u32 s[52:53], 0, v40
    s_sub_u32 s54, 0, s58
    s_mov_b32 s55, s54
    """)
    for r in range(16):
        a.e(f"v_mov_b32 v{ACCQ+r}, s64")
    for r in range(16):
        a.e(f"v_mov_b32 v{ACCK+r}, s64")
    def frag_reads(g, k):
        L = []
        tag = f"f{g}_{k}"
        if g < 8:
            nx, nw = 2*g, 2*g+1
            hi, off = lds_base(nx)
            L.append((f"ds_read_b128 v[{XR+16*g+4*k}:{XR+16*g+4*k+3}], v{(12 if hi else 8)+k} offset:{off}", tag))
            d = WF + 16*(g % 2) + 4*k; n = nw; sstep = k
        else:
            n = 2*g + k//4; sstep = k % 4; d = WF + 4*k
        h2, o2 = lds_base(n)
        va = "v17" if h2 else "v16"
        L.append((f"ds_read_b64_tr_b16 v[{d}:{d+1}], {va} offset:{o2 + sstep*2048}", tag))
        L.append((f"ds_read_b64_tr_b16 v[{d+2}:{d+3}], {va} offset:{o2 + sstep*2048 + 512}", tag))
        return L
    def nsteps(g): return 4 if g < 8 else 8
    def emit_side(lst):
        for t in lst:
            if isinstance(t, str): a.e(t)
            elif t[0] == "WVM": a.wait_vm(t[1])
            else: a.e(t[0], vm=t[1])
    side = {}
    ke = phi_instrs(ACCK, T16, ACCK, zsum=29)
    ke += ["v_mov_b32 v30, v29", "v_permlane32_swap_b32 v29, v30", "v_add_f32 v29, v29, v30"]
    gaps = [(g, k) for g in range(8, 12) for k in range(8)][1:31]
    for gp, grp in zip(gaps, spread(ke, len(gaps))): side[gp] = grp

    ra = f"""
    s_lshr_b32 s66, s3, 4
    s_and_b32 s67, s3, 15
    s_mul_i32 s69, s66, {32*KVBLK}
    s_add_u32 s69, s69, {KVP}
    s_lshl_b32 s52, s67, 7
    s_add_u32 s68, s69, s52
    v_and_b32 v22, 7, v1
    v_lshlrev_b32 v22, 4, v22
    v_lshrrev_b32 v23, 3, v1
    v_mul_u32_u24 v23, {KVBLK}, v23
    v_add_u32 v23, v22, v23
    v_add_u32 v24, s68, v23
    v_add_u32 v25, {8*KVBLK}, v24
    v_add_u32 v26, {16*KVBLK}, v24
    v_add_u32 v27, {24*KVBLK}, v24
    s_add_u32 s68, s69, 2048
    v_add_u32 v8, s68, v23
    v_add_u32 v9, {8*KVBLK}, v8
    v_add_u32 v10, {16*KVBLK}, v8
    v_add_u32 v11, {24*KVBLK}, v8
    s_mul_i32 s69, s66, {KVBLK}
    s_add_u32 s69, s69, {KVF}
    s_add_u32 s68, s69, s52
    v_add_u32 v23, s68, v22
    s_add_u32 s68, s69, 2048
    v_add_u32 v12, s68, v22
    """.strip().split("\n")
    ra = [x.strip() for x in ra]
    gaps = [(12, k) for k in range(1, 8)] + [(13, k) for k in range(8)]
    for gp, grp in zip(gaps, spread(ra, len(gaps))): side[gp] = grp

    rb = f"""
    s_mov_b32 s40, s36
    s_and_b32 s41, s37, 0xffff
    s_mov_b32 s42, {KVF + 65536}
    s_mov_b32 s43, 0x20000
    s_lshl_b32 s68, s56, 7
    s_add_u32 s68, s68, {PQF}
    v_and_b32 v2, 7, v1
    v_lshl_add_u32 v2, v2, 2, s68
    s_lshl_b32 s68, s56, 1
    s_add_u32 s68, s68, s58
    s_lshl_b32 s68, s68, 5
    s_lshl_b32 s69, s59, 4
    s_add_u32 s68, s68, s69
    s_lshl_b32 s68, s68, 10
    s_add_u32 s68, s68, {PQ}
    v_lshl_add_u32 v3, v1, 4, s68
    v_add_u32 v31, 8192, v3
    v_lshrrev_b32 v13, 7, v0
    v_mul_u32_u24 v13, {KVBLK}, v13
    v_and_b32 v20, 127, v0
    v_lshl_add_u32 v13, v20, 4, v13
    v_add_u32 v13, {KVF}, v13
    v_lshrrev_b32 v14, 3, v20
    v_mul_u32_u24 v14, {KVBLK}, v14
    v_and_b32 v21, 7, v0
    v_lshl_add_u32 v14, v21, 4, v14
    v_add_u32 v14, {KVF+2048}, v14
    v_lshrrev_b32 v15, 7, v0
    v_lshlrev_b32 v15, 1, v15
    v_bfe_u32 v21, v0, 4, 1
    v_add_u32 v15, v15, v21
    v_mul_u32_u24 v15, 544, v15
    v_bfe_u32 v21, v0, 5, 1
    v_mul_u32_u24 v21, 272, v21
    v_add_u32 v15, v15, v21
    v_and_b32 v21, 15, v0
    v_lshl_add_u32 v15, v21, 4, v15
    v_bfe_u32 v21, v0, 6, 1
    v_lshl_add_u32 v15, v21, 3, v15
    v_lshrrev_b32 v29, 3, v20
    v_lshlrev_b32 v29, 1, v29
    v_bfe_u32 v21, v0, 2, 1
    v_add_u32 v29, v29, v21
    v_mul_u32_u24 v29, 544, v29
    v_bfe_u32 v21, v0, 1, 1
    v_mul_u32_u24 v21, 272, v21
    v_add_u32 v29, v29, v21
    v_and_b32 v21, 1, v0
    v_lshl_add_u32 v29, v21, 3, v29
    v_add_u32 v29, 256, v29
    v_and_b32 v30, 15, v1
    v_mul_u32_u24 v30, {KVBLK}, v30
    v_add_u32 v30, {KVF+2048+4}, v30
    """.strip().split("\n")
    rb = [x.strip() for x in rb]
    rb += [f"s_mov_b32 s{8+i}, {1024*i}" for i in range(8)] + [f"s_mov_b32 s{16+k}, {2*KVBLK*k}" for k in range(8)]
    gaps = [(14, k) for k in range(8)] + [(15, k) for k in range(8)]
    for gp, grp in zip(gaps, spread(rb, len(gaps))): side[gp] = grp

    def kv_publish():
        a.c("--- kv partial: V cvt, MFMA, select, pair exchange, publish")
        a.e("s_barrier")
        for m in range(8):
            a.e(f"v_cvt_pk_bf16_f32 v{ACCV+m}, v{ACCV+2*m}, v{ACCV+2*m+1}")
        a.e(f"v_mfma_f32_32x32x16_bf16 v[{T16}:{T16+15}], v[{ACCK}:{ACCK+3}], v[{ACCV}:{ACCV+3}], 0")
        a.e(f"v_mfma_f32_32x32x16_bf16 v[{T16}:{T16+15}], v[{ACCK+4}:{ACCK+7}], v[{ACCV+4}:{ACCV+7}], v[{T16}:{T16+15}]")
        a.e("ds_write_b32 v24, v29", lg="xw")
        poll_nonce(a, "v21", "v31", first_tag="nonce")
        SEL = ACCK + 8; SND = ACCV + 8; KEEP = ACCV + 12
        for j in range(8): a.e(f"v_cndmask_b32 v{SEL+j}, v{T16+j}, v{T16+8+j}, s[52:53]")
        for j in range(4): a.e(f"v_cndmask_b32 v{SND+j}, v{SEL+4+j}, v{SEL+j}, s[54:55]")
        a.e(f"ds_write_b128 v22, v[{SND}:{SND+3}]", lg="xw")
        for j in range(4): a.e(f"v_cndmask_b32 v{KEEP+j}, v{SEL+j}, v{SEL+4+j}, s[54:55]")
        a.wait_lg("xw")
        a.e("s_barrier")
        a.e(f"ds_read_b128 v[{SEL}:{SEL+3}], v23", lg="xr")
        a.e(f"ds_read_b32 v30, v25", lg="xr")
        a.wait_lg("xr")
        for j in range(4): a.e(f"v_add_f32 v{KEEP+j}, v{KEEP+j}, v{SEL+j}")
        a.e(f"""
        v_add_f32 v29, v29, v30
        v_cvt_pk_bf16_f32 v{SEL}, v{KEEP}, v{KEEP+1}
        v_mov_b32 v{SEL+1}, s38
        v_cvt_pk_bf16_f32 v{SEL+2}, v{KEEP+2}, v{KEEP+3}
        v_mov_b32 v{SEL+3}, s38
        v_mov_b32_dpp v30, v29 quad_perm:[1,0,3,2] row_mask:0xf bank_mask:0xf
        global_store_dwordx4 v26, v[{SEL}:{SEL+3}], s[36:37] sc1
        v_cvt_pk_bf16_f32 v{SEL+4}, v29, v30
        v_mov_b32 v{SEL+5}, s38
        s_andn2_b64 exec, 0x55555555, s[54:55]
        s_cbranch_execz L_b_noz
        global_store_dwordx2 v27, v[{SEL+4}:{SEL+5}], s[36:37] sc1
        """)
        a.vm.pop()
        a.label("L_b_noz")
        a.e("s_mov_b64 exec, -1")
        stamp(a, cfg, 6)

    a.wait_vm(["slot0", "slot1"])
    a.e("s_barrier")
    stamp(a, cfg, 2)
    for k in range(4):
        for t, tag in frag_reads(0, k): a.e(t, lg=tag)
    nxt = NINIT
    pend = []
    while nxt < NSLOT:
        pend += b_issue_jobs(nxt); nxt += 1
    for g in range(16):
        a.c(f"--- group {g}")
        if g == 12: kv_publish()
        if g < 15:
            a.wait_vm([f"slot{2*g+2}", f"slot{2*g+3}"])
        a.e("s_barrier")
        if g in (1, 8, 12): stamp(a, cfg, {1: 3, 8: 4, 12: 5}[g])
        jobs = list(pend); pend = []
        if g >= 1:
            for _ in range(2): jobs += b_issue_jobs(nxt); nxt += 1
        if g == 9:
            jobs.append([("global_load_dword v21, v31, s[34:35] sc1", "nonce")])
        ns = nsteps(g)
        jsp = spread(jobs, ns)
        for k in range(ns):
            if k % 2 == 0: a.wait_lg([f"f{g}_{k}", f"f{g}_{k+1}"])
            if g < 8:
                d = WF + 16*(g % 2) + 4*k
                a.e(f"v_mfma_f32_32x32x16_bf16 v[{ACCK}:{ACCK+15}], v[{XR+16*g+4*k}:{XR+16*g+4*k+3}], v[{d}:{d+3}], v[{ACCK}:{ACCK+15}]")
            elif g < 12:
                kk = (g - 8)*8 + k
                cc = "0" if (g == 8 and k == 0) else f"v[{ACCV}:{ACCV+15}]"
                a.e(f"v_mfma_f32_32x32x16_bf16 v[{ACCV}:{ACCV+15}], v[{XR+4*kk}:{XR+4*kk+3}], v[{WF+4*k}:{WF+4*k+3}], {cc}")
            else:
                kk = (g - 12)*8 + k
                a.e(f"v_mfma_f32_32x32x16_bf16 v[{ACCQ}:{ACCQ+15}], v[{WF+4*k}:{WF+4*k+3}], v[{XR+4*kk}:{XR+4*kk+3}], v[{ACCQ}:{ACCQ+15}]")
            jl = [list(jb) for jb in jsp[k]]
            if jl:
                while jl[0] and not jl[0][0][0].startswith(("buffer_load", "global_load")):
                    a.e(jl[0].pop(0)[0])
            if g < 15:
                nx = [k, 4 + k] if g == 7 else [k]
                for k2 in nx:
                    for t, tag in frag_reads(g + 1, k2): a.e(t, lg=tag)
            for jb in jl: emit_job(a, jb)
            emit_side(side.get((g, k), []))
    assert nxt == 40, nxt
    a.e("s_barrier")
    a.e("""
    s_cmp_lg_u32 s39, 0
    s_cbranch_scc1 L_b_nored1
    global_load_dwordx4 v[96:99], v24, s[36:37] sc1
    global_load_dwordx4 v[100:103], v25, s[36:37] sc1
    global_load_dwordx4 v[104:107], v26, s[36:37] sc1
    global_load_dwordx4 v[108:111], v27, s[36:37] sc1
    global_load_dwordx4 v[112:115], v8, s[36:37] sc1
    global_load_dwordx4 v[116:119], v9, s[36:37] sc1
    global_load_dwordx4 v[120:123], v10, s[36:37] sc1
    global_load_dwordx4 v[124:127], v11, s[36:37] sc1
    """)
    for _ in range(8): a.vm.pop()
    a.label("L_b_nored1")
    a.c("--- Q epilogue")
    for t in phi_instrs(ACCQ, T16, ACCQ): a.e(t)
    a.e(f"""
    v_lshlrev_b32 v20, 4, v1
    s_cmp_lg_u32 s39, 0
    s_cbranch_scc1 L_b_noho
    ds_write_b128 v20, v[{ACCQ}:{ACCQ+3}]
    ds_write_b128 v20, v[{ACCQ+4}:{ACCQ+7}] offset:1024
    s_waitcnt vmcnt(8) lgkmcnt(0)
    s_branch L_b_ho2
    """)
    a.label("L_b_noho")
    a.e("s_waitcnt vmcnt(0)")
    a.label("L_b_ho2")
    a.vm = []; a.lg = []
    a.e("s_barrier")
    a.e(f"""
    s_cmp_eq_u32 s39, 0
    s_cbranch_scc1 L_b_nopq
    global_store_dwordx4 v28, v[{ACCQ}:{ACCQ+3}], s[36:37] sc1
    global_store_dwordx4 v28, v[{ACCQ+4}:{ACCQ+7}], s[36:37] offset:1024 sc1
    s_cmp_eq_u32 s39, 1
    s_cbranch_scc0 L_b_nopq
    ds_read_b128 v[32:35], v20
    ds_read_b128 v[36:39], v20 offset:1024
    v_subrev_u32 v21, 32768, v28
    s_waitcnt lgkmcnt(0)
    global_store_dwordx4 v21, v[32:35], s[36:37] sc1
    global_store_dwordx4 v21, v[36:39], s[36:37] offset:1024 sc1
    """)
    a.label("L_b_nopq")
    a.vm = []; a.lg = []
    stamp(a, cfg, 7)
    if not cfg.do_B2:
        stamp(a, cfg, 8)
        stamps_out(a, cfg, 9)
        a.e("s_branch L_end")
        return
    role_B2(a, cfg)

def tag_check(a, regs_tags, acc="v20"):
    tt = 0
    for idx in range(8):
        s0, s1, s2 = (idx >> 2) & 1, (idx >> 1) & 1, idx & 1
        if s0 | (s1 ^ s2): tt |= 1 << idx
    first = True
    for r in regs_tags:
        if first:
            a.e(f"v_xor_b32 {acc}, s38, v{r}"); first = False
        else:
            a.e(f"v_bitop3_b32 {acc}, {acc}, v{r}, s38 bitop3:{hex(tt)}")
    a.e(f"v_cmp_ne_u32 vcc, 0, {acc}")

def role_B2(a, cfg):
    WO = 128
    ACC = 96
    PQR = 32
    CN = [64, 80]
    KAF = [8, 12]
    OF = [4, 16]
    KA = 0
    PQL = 17408
    a.c("================= B2 =================")
    def reduce_line(base, dst_addr, tagsok_label):
        S = 40; T = 44
        for k in range(4):
            r = base + 4*k
            for pidx in range(2):
                src = r + 2*pidx
                if k == 0:
                    a.e(f"v_lshlrev_b32 v{S+2*pidx}, 16, v{src}")
                    a.e(f"v_and_b32 v{S+1+2*pidx}, 0xffff0000, v{src}")
                else:
                    a.e(f"v_lshlrev_b32 v{T+2*pidx}, 16, v{src}")
                    a.e(f"v_and_b32 v{T+1+2*pidx}, 0xffff0000, v{src}")
                    a.e(f"v_add_f32 v{S+2*pidx}, v{S+2*pidx}, v{T+2*pidx}")
                    a.e(f"v_add_f32 v{S+1+2*pidx}, v{S+1+2*pidx}, v{T+1+2*pidx}")
        for j in range(4): a.e(f"v_add_f32_dpp v{S+j}, v{S+j}, v{S+j} row_ror:8 row_mask:0xf bank_mask:0xf")
        for j in range(4): a.e(f"v_mov_b32 v{T+j}, v{S+j}")
        for j in range(4): a.e(f"v_permlane16_swap_b32 v{S+j}, v{T+j}")
        for j in range(4): a.e(f"v_add_f32 v{S+j}, v{S+j}, v{T+j}")
        for j in range(4): a.e(f"v_mov_b32 v{T+j}, v{S+j}")
        for j in range(4): a.e(f"v_permlane32_swap_b32 v{S+j}, v{T+j}")
        for j in range(4): a.e(f"v_add_f32 v{S+j}, v{S+j}, v{T+j}")
        a.e(f"""
        v_cvt_pk_bf16_f32 v48, v{S}, v{S+1}
        v_mov_b32 v49, s38
        v_cvt_pk_bf16_f32 v50, v{S+2}, v{S+3}
        v_mov_b32 v51, s38
        s_mov_b64 exec, 0xff
        global_store_dwordx4 {dst_addr}, v[48:51], s[36:37] sc1
        s_mov_b64 exec, -1
        """)
    a.e("""
    s_cmp_lg_u32 s39, 0
    s_cbranch_scc1 L_b_red_done
    s_mov_b32 s61, 0
    s_branch L_b_red_chk
    """)
    a.label("L_b_red_poll")
    a.e("""
    global_load_dwordx4 v[96:99], v24, s[36:37] sc1
    global_load_dwordx4 v[100:103], v25, s[36:37] sc1
    global_load_dwordx4 v[104:107], v26, s[36:37] sc1
    global_load_dwordx4 v[108:111], v27, s[36:37] sc1
    global_load_dwordx4 v[112:115], v8, s[36:37] sc1
    global_load_dwordx4 v[116:119], v9, s[36:37] sc1
    global_load_dwordx4 v[120:123], v10, s[36:37] sc1
    global_load_dwordx4 v[124:127], v11, s[36:37] sc1
    """)
    a.label("L_b_red_chk")
    a.e("""
    s_add_u32 s61, s61, 1
    s_waitcnt vmcnt(0)
    """)
    tag_check(a, [97+2*q for q in range(16)])
    a.e(f"""
    s_cmp_gt_u32 s61, {SPIN_LIMIT}
    s_cbranch_scc1 L_b_red_go
    s_cbranch_vccnz L_b_red_poll
    """)
    a.label("L_b_red_go")
    stampval(a, cfg, 8, "s61")
    a.e("""
    s_cmp_lg_u32 s67, 0
    s_cbranch_scc1 L_b_red_a
    """)
    reduce_line(112, "v12", None)
    a.label("L_b_red_a")
    reduce_line(96, "v23", None)
    a.label("L_b_red_done")
    a.vm = []
    stamp(a, cfg, 9)
    for i in range(16):
        for nt in range(2):
            d = WO + 8*i + 4*nt
            off = (i//4)*8192 + (i % 4)*2048
            a.e(f"ds_read_b64_tr_b16 v[{d}:{d+1}], v{18+nt} offset:{off}", lg="wo")
            a.e(f"ds_read_b64_tr_b16 v[{d+2}:{d+3}], v{18+nt} offset:{off+1024}", lg="wo")
    a.e("""
    s_cmp_eq_u32 s39, 0
    s_cbranch_scc1 L_b_noack
    s_waitcnt vmcnt(0)
    """)
    a.label("L_b_noack")
    a.e("s_waitcnt lgkmcnt(0)")
    a.e("s_barrier")
    a.e("""
    s_cmp_lg_u32 s39, 3
    s_cbranch_scc1 L_b_noflag
    s_lshl_b32 s68, s56, 7
    s_lshl_b32 s69, s57, 2
    s_add_u32 s68, s68, s69
    s_add_u32 s68, s68, %d
    v_mov_b32 v32, s68
    v_mov_b32 v33, s38
    s_mov_b64 exec, 1
    global_store_dword v32, v33, s[36:37] sc1
    s_mov_b64 exec, -1
    """ % PQF)
    a.label("L_b_noflag")
    a.vm = []
    stamp(a, cfg, 10)
    def pq_loads():
        for i in range(8):
            a.e(f"buffer_load_dwordx4 v[{PQR+4*i}:{PQR+4*i+3}], v3, s[40:43], s{8+i} offen sc1")
        for i in range(8):
            a.e(f"s_add_u32 m0, s66, {1024*i}")
            a.e("s_nop 0")
            a.e(f"buffer_load_dwordx4 v31, s[40:43], s{8+i} offen sc1 lds")
    a.e(f"""
    s_lshl_b32 s66, s39, 13
    s_add_u32 s66, s66, {PQL}
    s_mov_b32 s61, 0
    s_cmp_eq_u32 s39, 0
    s_cbranch_scc1 L_b_w0_poll
    """)
    a.label("L_b_pqf_poll")
    a.e(f"""
    global_load_dword v21, v2, s[36:37] sc1
    s_add_u32 s61, s61, 1
    s_waitcnt vmcnt(0)
    v_cmp_ne_u32 vcc, s38, v21
    s_cmp_gt_u32 s61, {SPIN_LIMIT}
    s_cbranch_scc1 L_b_pqf_go
    s_cbranch_vccz L_b_pqf_go
    s_sleep 1
    s_branch L_b_pqf_poll
    """)
    a.label("L_b_pqf_go")
    stamp(a, cfg, 11)
    pq_loads()
    a.e("s_branch L_b_sub_done")
    a.label("L_b_w0_poll")
    a.e(f"""
    global_load_dword v21, v2, s[36:37] sc1
    global_load_dword v20, v30, s[36:37] sc1
    s_add_u32 s61, s61, 1
    s_waitcnt vmcnt(0)
    v_xor_b32 v21, s38, v21
    v_xor_b32 v20, s38, v20
    v_or_b32 v21, v21, v20
    v_cmp_ne_u32 vcc, 0, v21
    s_cmp_gt_u32 s61, {SPIN_LIMIT}
    s_cbranch_scc1 L_b_w0_go
    s_cbranch_vccz L_b_w0_go
    s_sleep 1
    s_branch L_b_w0_poll
    """)
    a.label("L_b_w0_go")
    stamp(a, cfg, 11)
    a.label("L_b_sub_done")
    a.e("s_barrier")
    stamp(a, cfg, 12)
    def ka_loads():
        for k in range(8):
            a.e(f"buffer_load_dwordx4 v[{64+4*k}:{67+4*k}], v13, s[40:43], s{16+k} offen sc1")
        a.e("buffer_load_dwordx4 v[96:99], v14, s[40:43], 0 offen sc1")
    ka_loads()
    a.e("""
    s_mov_b32 s61, 0
    s_cmp_eq_u32 s39, 0
    s_cbranch_scc0 L_b_ka_w
    """)
    pq_loads()
    a.e("""
    s_waitcnt vmcnt(16)
    s_branch L_b_ka_chk
    """)
    a.label("L_b_kvf_poll")
    ka_loads()
    a.label("L_b_ka_w")
    a.e("s_waitcnt vmcnt(0)")
    a.label("L_b_ka_chk")
    a.e("s_add_u32 s61, s61, 1")
    tag_check(a, [65+2*q for q in range(18)])
    a.e(f"""
    s_cmp_gt_u32 s61, {SPIN_LIMIT}
    s_cbranch_scc1 L_b_kvf_go
    s_cbranch_vccnz L_b_kvf_poll
    """)
    a.label("L_b_kvf_go")
    a.vm = []
    for k in range(8):
        a.e(f"v_mov_b32 v{65+4*k}, v{66+4*k}")
        a.e(f"ds_write_b64 v15, v[{64+4*k}:{65+4*k}] offset:{KA + 2176*k}")
    a.e("v_mov_b32 v97, v98")
    a.e(f"ds_write_b64 v29, v[96:97] offset:{KA}")
    a.e(f"""
    v_and_b32 v22, 31, v1
    v_min_u32 v22, 16, v22
    v_lshlrev_b32 v22, 4, v22
    v_lshrrev_b32 v23, 5, v1
    v_mul_u32_u24 v23, 272, v23
    s_mul_i32 s68, s59, {16*544}
    v_add3_u32 v22, v22, v23, s68
    v_lshl_add_u32 v23, v1, 4, s66
    s_waitcnt vmcnt(0) lgkmcnt(0)
    s_barrier
    """)
    a.vm = []; a.lg = []
    stamp(a, cfg, 13)
    def kaf_read(i):
        a.e(f"ds_read_b128 v[{KAF[i%2]}:{KAF[i%2]+3}], v22 offset:{KA + 544*i}", lg=f"ka{i}")
    def out_mfma(i):
        o = OF[i % 2]
        for nt in range(2):
            w = WO + 8*i + 4*nt
            cc = "0" if i == 0 else f"v[{ACC+16*nt}:{ACC+16*nt+15}]"
            a.e(f"v_mfma_f32_32x32x16_bf16 v[{ACC+16*nt}:{ACC+16*nt+15}], v[{w}:{w+3}], v[{o}:{o+3}], {cc}")
    def num_mfma(i):
        a.wait_lg(f"ka{i}")
        p = PQR + 4*(i % 8)
        if i >= 8: a.wait_lg(f"pl{i}")
        a.e(f"v_mfma_f32_32x32x16_bf16 v[{CN[i%2]}:{CN[i%2]+15}], v[{KAF[i%2]}:{KAF[i%2]+3}], v[{p}:{p+3}], 0")
        if 4 <= i < 12:
            h = i + 4
            ph = PQR + 4*(h % 8)
            a.e(f"ds_read_b128 v[{ph}:{ph+3}], v23 offset:{1024*(h-8)}", lg=f"pl{h}")
    def out1(i, nt):
        o = OF[i % 2]
        w = WO + 8*i + 4*nt
        cc = "0" if i == 0 else f"v[{ACC+16*nt}:{ACC+16*nt+15}]"
        a.e(f"v_mfma_f32_32x32x16_bf16 v[{ACC+16*nt}:{ACC+16*nt+15}], v[{w}:{w+3}], v[{o}:{o+3}], {cc}")
    kaf_read(0); kaf_read(1)
    num_mfma(0)
    for i in range(16):
        if i + 1 < 16:
            num_mfma(i + 1)
        c = CN[i % 2]
        a.e(f"v_add_f32 v20, s64, v{c+8}")
        a.e(f"v_rcp_f32 v20, v20")
        if i + 2 < 16:
            kaf_read(i + 2)
        for jj in range(2): a.e(f"v_mul_f32 v{c+jj}, v{c+jj}, v20")
        if i >= 1: out1(i - 1, 0)
        for jj in range(2, 7): a.e(f"v_mul_f32 v{c+jj}, v{c+jj}, v20")
        if i >= 1: out1(i - 1, 1)
        a.e(f"v_mul_f32 v{c+7}, v{c+7}, v20")
        o = OF[i % 2]
        for m in range(4):
            a.e(f"v_cvt_pk_bf16_f32 v{o+m}, v{c+2*m}, v{c+2*m+1}")
    out1(15, 0); out1(15, 1)
    stamp(a, cfg, 14)
    PB = 0
    a.e(f"""
    v_and_b32 v22, 31, v1
    s_lshl_b32 s68, s58, 5
    v_add_u32 v22, s68, v22            ; token
    v_mul_u32_u24 v22, 272, v22
    v_lshrrev_b32 v23, 5, v1
    v_lshl_add_u32 v22, v23, 4, v22    ; + hh*16
    s_mul_i32 s68, s59, {64*272}
    s_add_u32 s68, s68, {PB}
    v_add_u32 v22, s68, v22
    v_lshrrev_b32 v23, 3, v0
    v_mul_u32_u24 v24, 272, v23
    v_and_b32 v25, 7, v0
    v_lshl_add_u32 v24, v25, 5, v24
    v_add_u32 v24, {PB}, v24
    s_lshl_b32 s68, s56, 6
    v_add_u32 v23, s68, v23
    v_lshlrev_b32 v23, 11, v23
    s_lshl_b32 s68, s57, 7
    s_add_u32 s68, s68, 1024
    v_lshl_add_u32 v23, v25, 4, v23
    v_add_u32 v23, s68, v23
    s_waitcnt lgkmcnt(0)
    s_barrier
    """)
    for nt in range(2):
        for q in range(4):
            r = ACC + 16*nt + 4*q
            a.e(f"ds_write_b128 v22, v[{r}:{r+3}] offset:{nt*128 + q*32}")
    a.e("s_waitcnt lgkmcnt(0)")
    a.e("s_barrier")
    for r in range(2):
        o = r*32*272
        a.e(f"ds_read_b128 v[{32+16*r}:{35+16*r}], v24 offset:{o}")
        a.e(f"ds_read_b128 v[{36+16*r}:{39+16*r}], v24 offset:{o+16}")
        a.e(f"ds_read_b128 v[{40+16*r}:{43+16*r}], v24 offset:{o+64*272}")
        a.e(f"ds_read_b128 v[{44+16*r}:{47+16*r}], v24 offset:{o+64*272+16}")
    for r in range(2):
        a.e(f"s_waitcnt lgkmcnt({4 if r == 0 else 0})")
        b = 32 + 16*r
        for jj in range(8):
            a.e(f"v_add_f32 v{b+jj}, v{b+jj}, v{b+8+jj}")
        for m in range(4):
            a.e(f"v_cvt_pk_bf16_f32 v{64+4*r+m}, v{b+2*m}, v{b+2*m+1}")
        if r == 1: a.e(f"v_add_u32 v23, {32*2048}, v23")
        a.e(f"global_store_dwordx4 v23, v[{64+4*r}:{67+4*r}], s[32:33]")
    stamps_out(a, cfg, 15)

TV = 240
def a_touch_setup(a, cfg):
    a.e(f"""
    s_lshr_b32 s62, s40, 1          ; tg
    s_and_b32 s63, s40, 1           ; hg
    s_lshl_b32 s64, s62, 9
    s_lshl_b32 s65, s41, 4          ; 16*jj
    s_add_u32 s64, s64, s65
    v_and_b32 v246, 15, v1
    v_lshrrev_b32 v247, 4, v1       ; 0..3
    v_add_u32 v240, s64, v246
    v_lshlrev_b32 v240, 10, v240
    v_lshl_add_u32 v240, v247, 7, v240
    v_add_u32 v241, 512, v240
    v_lshlrev_b32 v243, 6, v247
    s_lshl_b32 s66, s41, 1
    v_add_u32 v243, s66, v243
    v_bfe_u32 v248, v1, 3, 1
    v_add_u32 v243, v243, v248
    v_mul_u32_u24 v243, 3072, v243
    v_bfe_u32 v248, v1, 2, 1
    v_lshlrev_b32 v248, 10, v248
    v_add_u32 v243, v243, v248
    v_and_b32 v248, 3, v1
    v_lshlrev_b32 v248, 7, v248
    s_lshl_b32 s66, s63, 9
    s_add_u32 s67, s66, 1024
    v_add3_u32 v243, v243, v248, s67
    v_add_u32 v244, {256*3072}, v243
    v_lshrrev_b32 v249, 2, v1
    v_add_u32 v249, s65, v249
    v_mul_u32_u24 v242, 3072, v249
    v_add3_u32 v242, v242, v248, s66
    v_lshlrev_b32 v245, 10, v249
    v_add3_u32 v245, v245, v248, s66
    """)

def a_touch(a, cfg, plan):
    fl = cfg.touch_flags
    info = {"x0": (240, "s[26:27]"), "x1": (241, "s[26:27]"), "q": (242, "s[28:29]"),
            "k0": (243, "s[28:29]"), "k1": (244, "s[28:29]"), "o": (245, "s[30:31]")}
    for w, names in plan.items():
        L = a.newlabel("tch")
        a.e(f"s_cmp_eq_u32 s39, {w}")
        a.e(f"s_cbranch_scc0 {L}")
        for i, nm in enumerate(names):
            v, base = info[nm]
            a.e(f"global_load_dword v{250+i}, v{v}, {base} {fl}")
            a.vm.pop()
        a.label(L)

def role_A(a, cfg):
    a.label("L_roleA")
    a.e("""
    s_and_b32 s40, s3, 7
    s_lshr_b32 s41, s3, 3           ; j
    s_waitcnt lgkmcnt(0)
    """)
    if not cfg.do_A:
        if cfg.touch:
            a_touch_setup(a, cfg)
            a_touch(a, cfg, {0: ["x0"], 1: ["k0"], 2: ["x1"], 3: ["k1"]})
            a.e("s_waitcnt vmcnt(0)")
            a_touch(a, cfg, {1: ["q"], 3: ["o"]})
            a.e("s_waitcnt vmcnt(0)")
        a.e("s_branch L_end")
        return
    import role_a
    role_a.role_A(a, cfg)

def build(cfg):
    a = Asm()
    prologue(a, cfg)
    if cfg.do_B:
        role_B(a, cfg)
    a.e("s_branch L_end")
    a.vm = []
    role_A(a, cfg)
    a.label("L_end")
    a.e("s_endpgm")
    body = a.render()
    return body, a

HEADER = open("concat_heads__ssm_conv_s4__linear_attn_block__prompt.s.ref").read().split("; Override launch")[0]

def generate(path, cfg):
    body, a = build(cfg)
    txt = wrap(body, HEADER, 512, 256, 81920)
    open(path, "w").write(txt)
    return a

if __name__ == "__main__":
    sys.modules["kern"] = sys.modules["__main__"]
    cfg = Cfg()
    cfg.stamps = True
    if len(sys.argv) > 2:
        for kv in sys.argv[2:]:
            k, v = kv.split("=")
            setattr(cfg, k, {"0": False, "1": True}.get(v, int(v) if v.isdigit() else v))
    a = generate(sys.argv[1] if len(sys.argv) > 1 else "k_b1.s", cfg)
    print("nops inserted:", a.nnops)
```

```python
from asmlib import Asm
import kern as K

UT, YT = K.UT, K.YT
UTF, YTF = K.UTF, K.YTF
TILE = 3088
SPIN = K.SPIN_LIMIT
ROWB = 528
TB = [12288, 45056]
KC = [0, 1536]
NONCE_LDS = 3072
KD = [3088, 7200]
CP = [12288, 12288 + 16640]
UR = [45568, 45568 + 7600]
YP = 0
ROWS = list(range(8)) + [128+k for k in range(8)] + [256+2*k for k in range(4)] + [384+2*k for k in range(4)] + \
       [512, 516, 640, 644, 768, 772, 896, 900] + [1024+128*k for k in range(8)] + [2048]
assert len(ROWS) == 41

def fhex(x):
    import struct
    return hex(struct.unpack("<I", struct.pack("<f", x))[0])

USE_PK = False
def cmul(a, d, x, y, t):
    if USE_PK:
        a.e(f"v_pk_mul_f32 v[{t}:{t+1}], v[{x}:{x+1}], v[{y}:{y+1}] op_sel_hi:[1,0]")
        a.e(f"v_pk_fma_f32 v[{d}:{d+1}], v[{x}:{x+1}], v[{y}:{y+1}], v[{t}:{t+1}] op_sel:[1,1,0] op_sel_hi:[0,1,1] neg_lo:[1,0,0]")
    else:
        assert d not in (x, y)
        a.e(f"v_mul_f32 v{t}, v{x}, v{y}")
        a.e(f"v_mul_f32 v{t+1}, v{x+1}, v{y}")
        a.e(f"v_fma_f32 v{d}, -v{x+1}, v{y+1}, v{t}")
        a.e(f"v_fma_f32 v{d+1}, v{x}, v{y+1}, v{t+1}")

def poll_tags_loop(a, name, loads, tagregs):
    a.e("s_mov_b32 s61, 0")
    a.label(f"L_{name}_poll")
    for l in loads: a.e(l)
    a.e("s_add_u32 s61, s61, 1")
    a.e("s_waitcnt vmcnt(0)")
    K.tag_check(a, tagregs, acc="v9")
    a.e(f"""
    s_cmp_gt_u32 s61, {SPIN}
    s_cbranch_scc1 L_{name}_go
    s_cbranch_vccz L_{name}_go
    s_sleep 1
    s_branch L_{name}_poll
    """)
    a.label(f"L_{name}_go")
    a.vm = []

def role_A(a, cfg):
    global USE_PK
    USE_PK = cfg.pk
    st = lambda i: K.stamp(a, cfg, i)
    a.c("================= role A =================")
    if cfg.prioA: a.e(f"s_setprio {cfg.prioA}")
    a.e("""
    s_lshr_b32 s47, s39, 1
    s_and_b32 s48, s39, 1           ; w2
    s_lshl_b32 s49, s40, 6          ; 64 g
    s_lshl_b32 s50, s41, 1
    s_add_u32 s50, s50, s49         ; d0 = 64g + 2j
    s_add_u32 s51, s50, s47
    s_lshl_b32 s51, s51, 8
    v_and_b32 v2, 127, v0
    v_lshl_add_u32 v2, v2, 1, s51
    v_lshrrev_b32 v3, 4, v0         ; r''
    v_and_b32 v4, 15, v0            ; c8
    s_lshl_b32 s52, s41, 6
    v_lshl_add_u32 v5, v3, 2, s52   ; t0 = 64j + 4r''
    v_lshlrev_b32 v6, 10, v5
    s_lshl_b32 s53, s49, 1
    v_lshl_add_u32 v7, v4, 3, s53
    v_add_u32 v6, v6, v7            ; u offset
    s_waitcnt lgkmcnt(0)
    """)
    st(1)
    a.e("""
    s_lshl_b32 s62, s40, 2
    s_add_u32 s62, s62, 4
    s_cmp_lg_u32 s41, 0
    s_cbranch_scc1 L_a_nopub
    s_cmp_lg_u32 s39, 0
    s_cbranch_scc1 L_a_nopub
    s_memrealtime s[58:59]
    v_mov_b32 v8, s62
    s_waitcnt lgkmcnt(0)
    s_or_b32 s58, s58, 8
    v_mov_b32 v9, s58
    s_mov_b64 exec, 1
    global_store_dword v8, v9, s[34:35] sc1
    s_mov_b64 exec, -1
    """)
    a.vm.pop()
    a.label("L_a_nopub")
    a.e("""
    global_load_dwordx2 v[16:17], v6, s[8:9]
    global_load_dwordx2 v[18:19], v6, s[8:9] offset:1024
    global_load_dwordx2 v[20:21], v6, s[8:9] offset:2048
    global_load_dwordx2 v[22:23], v6, s[8:9] offset:3072
    """, vm="u")
    a.e("""
    global_load_ushort v10, v2, s[10:11]
    global_load_ushort v11, v2, s[12:13]
    global_load_ushort v12, v2, s[14:15]
    global_load_ushort v13, v2, s[16:17]
    global_load_ushort v14, v2, s[18:19]
    global_load_ushort v15, v2, s[20:21]
    """, vm="par")
    a.e("global_load_dwordx2 v[24:25], v7, s[24:25]", vm="dsk")
    a.e("""
    s_lshl_b32 s54, s50, 1
    s_add_u32 s54, s22, s54
    s_addc_u32 s55, s23, 0
    s_load_dword s56, s[54:55], 0
    """)
    a.e("v_mov_b32 v8, 0")
    if cfg.touch:
        K.a_touch_setup(a, cfg)
        if cfg.touch_mode == "early":
            K.a_touch(a, cfg, {2: ["x0", "k0", "x1"], 3: ["k1", "q"]})
    if cfg.touch and cfg.touch_mode == "early":
        a.e("""
        s_cmp_ge_u32 s39, 2
        s_cbranch_scc1 L_a_w23
        s_waitcnt vmcnt(0)
        s_branch L_a_wdone
        """)
        a.label("L_a_w23")
        a.e("""
        s_cmp_eq_u32 s39, 2
        s_cbranch_scc0 L_a_w3
        s_waitcnt vmcnt(3)
        s_branch L_a_wdone
        """)
        a.label("L_a_w3")
        a.e("s_waitcnt vmcnt(2)")
        a.label("L_a_wdone")
    else:
        a.e("s_waitcnt vmcnt(0)")
        if cfg.touch:
            K.a_touch(a, cfg, {2: ["x1", "k0"], 3: ["k1"]})
    a.vm = []
    a.e(f"""
    v_lshlrev_b32 v26, 2, v3
    v_sub_u32 v26, 63, v26            ; 63 - 4r''
    v_mul_u32_u24 v26, 136, v26
    v_lshl_add_u32 v26, v4, 3, v26    ; + c8*8
    v_add_u32 v26, {TILE - 3*136}, v26
    """)
    for rho in range(4):
        a.e(f"ds_write_b64 v26, v[{16+2*rho}:{17+2*rho}] offset:{(3-rho)*136}")
    a.e(f"""
    v_lshrrev_b32 v27, 4, v1          ; G
    v_bfe_u32 v28, v1, 2, 2           ; rr
    v_lshl_add_u32 v27, v27, 3, v28
    v_mul_u32_u24 v27, 136, v27
    v_and_b32 v28, 3, v1              ; cc
    v_lshl_add_u32 v27, v28, 3, v27
    s_lshl_b32 s57, s39, 6            ; 32 channels * 2 B
    s_add_u32 s57, s57, {TILE}
    v_add_u32 v27, s57, v27
    v_and_b32 v28, 15, v1
    s_lshl_b32 s57, s39, 5
    s_add_u32 s57, s57, s49
    v_add_u32 v28, s57, v28
    v_lshlrev_b32 v28, 12, v28
    v_lshrrev_b32 v29, 4, v1
    v_lshl_add_u32 v28, v29, 4, v28
    s_sub_u32 s57, 31, s41
    s_lshl_b32 s57, s57, 7
    s_add_u32 s57, s57, {UT}
    v_add_u32 v28, s57, v28
    v_add_u32 v29, 65536, v28
    s_waitcnt lgkmcnt(0)
    s_barrier
    s_cmp_ge_u32 s39, 2
    s_cbranch_scc1 L_a_nout
    """)
    for h in range(2):
        b = 32 + 8*h
        a.e(f"ds_read_b64_tr_b16 v[{b}:{b+1}], v27 offset:{32*h}")
        a.e(f"ds_read_b64_tr_b16 v[{b+2}:{b+3}], v27 offset:{32*h + 4*136}")
        a.e(f"ds_read_b64_tr_b16 v[{b+4}:{b+5}], v27 offset:{32*h + 32*136}")
        a.e(f"ds_read_b64_tr_b16 v[{b+6}:{b+7}], v27 offset:{32*h + 36*136}")
    a.e("""
    s_waitcnt lgkmcnt(0)
    global_store_dwordx4 v28, v[32:35], s[36:37] sc1
    global_store_dwordx4 v28, v[36:39], s[36:37] offset:64 sc1
    global_store_dwordx4 v29, v[40:43], s[36:37] sc1
    global_store_dwordx4 v29, v[44:47], s[36:37] offset:64 sc1
    """)
    a.label("L_a_nout")
    a.vm = []
    st(2)
    if cfg.touch and cfg.touch_mode == "early":
        K.a_touch(a, cfg, {3: ["o"]})
    LOG2E = fhex(1.4426950408889634); INV2PI = fhex(0.15915494309189535)
    a.e(f"""
    s_lshr_b32 s59, s56, 16
    s_and_b32 s60, s56, 0xffff
    s_cmp_eq_u32 s47, 0
    s_cselect_b32 s59, s60, s59
    s_lshl_b32 s59, s59, 16
    v_mov_b32 v28, s59
    v_mul_f32 v29, {LOG2E}, v28
    v_mov_b32 v30, {LOG2E}
    v_fma_f32 v30, v28, v30, -v29
    v_fmac_f32 v30, 0x32a57060, v28
    v_exp_f32 v29, v29
    v_mul_f32 v30, {fhex(0.6931471805599453)}, v30
    v_fma_f32 v29, v29, v30, v29
    v_cvt_pk_bf16_f32 v29, v29, v29
    v_lshlrev_b32 v29, 16, v29
    """)
    for i in range(6): a.e(f"v_lshlrev_b32 v{10+i}, 16, v{10+i}")
    a.e(f"""
    v_mul_f32 v10, v29, v10          ; a_re
    v_mul_f32 v11, v29, v11          ; a_im
    v_mul_f32 v12, v29, v12          ; dB_re
    v_mul_f32 v13, v29, v13          ; dB_im
    v_mul_f32 v10, {LOG2E}, v10      ; ar2
    v_mul_f32 v11, {INV2PI}, v11     ; ai2
    """)
    P = {}
    nxtp = [40]
    def pair(name):
        P[name] = nxtp[0]; nxtp[0] += 2
        return P[name]
    TMP = [36, 38]
    ti = [0]
    def mul(dn, xn, yn):
        d = P.get(dn) or pair(dn)
        t = TMP[ti[0] % 2]; ti[0] += 1
        cmul(a, d, P[xn], P[yn], t)
    P["C"] = 14; P["dB"] = 12
    pair("X0"); cmul(a, P["X0"], 14, 12, 36)
    for x in (1, 8, 128, 256, 512, 1024):
        d = pair(f"E{x}")
        if x == 1:
            a.e(f"v_exp_f32 v32, v10")
            a.e(f"v_fract_f32 v33, v11")
        else:
            a.e(f"v_mul_f32 v32, {fhex(float(x))}, v10")
            a.e(f"v_mul_f32 v33, {fhex(float(x))}, v11")
            a.e(f"v_exp_f32 v32, v32")
            a.e(f"v_fract_f32 v33, v33")
        a.e(f"v_cos_f32 v34, v33")
        a.e(f"v_sin_f32 v35, v33")
        a.e(f"v_mul_f32 v{d}, v32, v34")
        a.e(f"v_mul_f32 v{d+1}, v32, v35")
    a.e(f"""
    v_and_b32 v26, 127, v0            ; n
    v_and_b32 v27, 1, v26
    v_bfe_u32 v9, v26, 2, 1
    v_lshl_add_u32 v27, v9, 1, v27    ; g
    v_lshlrev_b32 v26, 8, v26
    s_lshl_b32 s59, s47, 15
    s_add_u32 s59, s59, {TB[0]}
    v_add_u32 v26, s59, v26
    """)
    for cp in range(4):
        a.e(f"v_xor_b32 v9, {cp}, v27")
        a.e(f"v_lshl_add_u32 v{28+cp}, v9, 5, v26")
    OUT = [120, 128]
    oc = [0]
    def put_chunk(q, names, neg):
        o = OUT[oc[0] % 2]; oc[0] += 1
        sg = "-" if neg else ""
        for m in range(4):
            x, y = P[names[2*m]], P[names[2*m+1]]
            a.e(f"v_cvt_pk_bf16_f32 v{o+m}, v{x}, v{y}")
            a.e(f"v_cvt_pk_bf16_f32 v{o+4+m}, {sg}v{x+1}, {sg}v{y+1}")
        ad = 28 + (q >> 1)
        a.e(f"ds_write_b128 v{ad}, v[{o}:{o+3}] offset:{(q & 1)*16}")
        a.e(f"ds_write_b128 v{ad}, v[{o+4}:{o+7}] offset:{128 + (q & 1)*16}")
    pair("ONE")
    a.e(f"v_mov_b32 v{P['ONE']}, 1.0")
    a.e(f"v_mov_b32 v{P['ONE']+1}, 0")
    for k in range(8): pair(f"S{k}")
    for k in range(1, 8):
        mul(f"X{k}", f"X{k-1}", "E1")
    put_chunk(0, [f"X{k}" for k in range(8)], True)
    P["Y8"] = P["E8"]
    mul("Y16", "Y8", "Y8"); mul("Y24", "Y16", "Y8"); mul("Y32", "Y16", "Y16")
    mul("Y40", "Y32", "Y8"); mul("Y48", "Y32", "Y16"); mul("Y56", "Y32", "Y24")
    put_chunk(6, ["ONE", "Y8", "Y16", "Y24", "Y32", "Y40", "Y48", "Y56"], False)
    mul("S0", "Y32", "Y32")
    for jj in range(1, 8): mul(f"S{jj}", "S0", f"Y{8*jj}")
    put_chunk(7, [f"S{k}" for k in range(8)], False)
    for k in range(8): mul(f"S{k}", f"X{k}", "E128")
    put_chunk(1, [f"S{k}" for k in range(8)], True)
    for i_, k in enumerate((0, 2, 4, 6)):
        mul(f"S{i_}", f"X{k}", "E256")
    for i_ in range(4):
        mul(f"S{4+i_}", f"S{i_}", "E128")
    put_chunk(2, [f"S{k}" for k in range(8)], True)
    mul("S0", "X0", "E512"); mul("S1", "X4", "E512")
    for i_ in range(2, 8): mul(f"S{i_}", f"S{i_-2}", "E128")
    put_chunk(3, [f"S{k}" for k in range(8)], True)
    mul("S0", "X0", "E1024")
    for i_ in range(1, 8): mul(f"S{i_}", f"S{i_-1}", "E128")
    pair("XL"); mul("XL", "S0", "E1024")
    put_chunk(4, [f"S{k}" for k in range(8)], True)
    a.e(f"v_cvt_pk_bf16_f32 v120, v{P['XL']}, -v{P['XL']+1}")
    a.e(f"ds_write_b16 v30, v120 offset:16")
    a.e(f"ds_write_b16_d16_hi v30, v120 offset:{128+16}")
    assert nxtp[0] <= 120, nxtp
    a.e(f"""
    v_lshrrev_b32 v30, 4, v1          ; G
    v_bfe_u32 v31, v1, 2, 2           ; rr
    v_lshl_add_u32 v9, v30, 3, v31
    v_lshlrev_b32 v9, 7, v9
    v_and_b32 v8, 3, v1
    v_lshl_add_u32 v9, v8, 3, v9
    s_lshl_b32 s59, s47, 15
    s_add_u32 s59, s59, {TB[0]}
    v_add_u32 v9, s59, v9
    v_lshrrev_b32 v31, 1, v31
    v_and_b32 v30, 1, v30
    v_lshl_add_u32 v31, v30, 1, v31   ; g
    """)
    for t in range(4):
        a.e(f"v_xor_b32 v30, {t}, v31")
        a.e(f"v_lshl_add_u32 v{26+t}, v30, 5, v9")
    a.e("""
    v_mov_b32 v8, 0
    s_cmp_ge_u32 s39, 2
    s_cbranch_scc1 L_a_noack
    s_waitcnt vmcnt(0)
    """)
    a.label("L_a_noack")
    a.e(f"""
    s_waitcnt lgkmcnt(0)
    s_barrier
    s_cmp_lg_u32 s39, 0
    s_cbranch_scc1 L_a_nofl
    s_lshl_b32 s62, s40, 2
    s_add_u32 s62, s62, 4
    v_mov_b32 v30, s62
    s_mov_b32 s61, 0
    """)
    a.label("L_a_npoll")
    a.e(f"""
    global_load_dword v31, v30, s[34:35] sc1
    s_waitcnt vmcnt(0)
    v_readfirstlane_b32 s38, v31
    s_add_u32 s61, s61, 1
    s_cmp_gt_u32 s61, {SPIN}
    s_cbranch_scc1 L_a_nok
    s_cmp_eq_u32 s38, 0
    s_cbranch_scc1 L_a_npoll
    """)
    a.label("L_a_nok")
    a.e(f"""
    s_getreg_b32 s57, hwreg(HW_REG_XCC_ID)
    s_and_b32 s57, s57, 7
    s_and_b32 s58, s38, 0xfffffff8
    s_or_b32 s57, s57, s58
    s_lshl_b32 s58, s40, 9
    s_lshr_b32 s59, s41, 3
    s_lshl_b32 s59, s59, 7
    s_add_u32 s58, s58, s59
    s_and_b32 s59, s41, 7
    s_lshl_b32 s59, s59, 2
    s_add_u32 s58, s58, s59
    s_add_u32 s58, s58, {UTF}
    v_mov_b32 v30, s58
    v_mov_b32 v31, s57
    s_mov_b64 exec, 1
    global_store_dword v30, v31, s[36:37] sc1
    s_mov_b64 exec, -1
    """)
    a.label("L_a_nofl")
    a.vm = []
    st(3)
    if cfg.touch and cfg.touch_mode != "early":
        K.a_touch(a, cfg, {2: ["q"], 3: ["o"]})
    YF, XF, D0 = 32, 64, 128
    def trfrag(dst, addr, s):
        a.e(f"ds_read_b64_tr_b16 v[{dst}:{dst+1}], v{addr} offset:{s*4096}")
        a.e(f"ds_read_b64_tr_b16 v[{dst+2}:{dst+3}], v{addr} offset:{s*4096 + 512}")
    for s in range(8): trfrag(YF+4*s, 29, s)
    a.e("""
    s_cmp_eq_u32 s48, 0
    s_cbranch_scc0 L_a_k2
    """)
    for t in range(2):
        for s in range(8): trfrag(XF+32*t+4*s, 26+t, s)
    a.e("s_waitcnt lgkmcnt(0)")
    for s in range(8):
        for t in range(2):
            c = "0" if s == 0 else f"v[{D0+4*t}:{D0+4*t+3}]"
            a.e(f"v_mfma_f32_16x16x32_bf16 v[{D0+4*t}:{D0+4*t+3}], v[{XF+32*t+4*s}:{XF+32*t+4*s+3}], v[{YF+4*s}:{YF+4*s+3}], {c}")
    a.e(f"""
    s_mul_i32 s59, s47, {KC[1]-KC[0]}
    s_add_u32 s59, s59, {KC[0]}
    v_and_b32 v28, 15, v1            ; j
    v_lshrrev_b32 v29, 4, v1         ; g
    v_lshrrev_b32 v30, 1, v29
    v_lshlrev_b32 v30, 7, v30
    v_lshl_add_u32 v30, v28, 3, v30
    v_and_b32 v9, 1, v29
    v_lshl_add_u32 v30, v9, 2, v30
    v_lshl_add_u32 v30, v30, 1, s59
    v_cvt_pk_bf16_f32 v136, v{D0}, v{D0+1}
    v_cvt_pk_bf16_f32 v137, v{D0+2}, v{D0+3}
    ds_write_b64 v30, v[136:137]
    ; tile 1: g<2: A = 256 + 64g + 4j, B = A+2 ; g>=2: A = 384 + 64(g-2) + 2j, B = A + 32
    v_lshlrev_b32 v30, 6, v29        ; 64 g
    v_cmp_gt_u32 vcc, 2, v29
    v_lshlrev_b32 v138, 2, v28       ; 4j
    v_lshlrev_b32 v139, 1, v28       ; 2j
    v_cndmask_b32 v138, v139, v138, vcc
    v_add_u32 v30, v30, v138
    v_add_u32 v30, 256, v30          ; g<2: 256+64g+4j ; g>=2: 256 + 64g + 2j = 384 + 64(g-2) + 2j
    v_mov_b32 v138, 32
    v_mov_b32 v139, 2
    v_cndmask_b32 v138, v138, v139, vcc
    v_add_u32 v138, v30, v138
    v_lshl_add_u32 v30, v30, 1, s59
    v_lshl_add_u32 v138, v138, 1, s59
    v_cvt_pk_bf16_f32 v136, v{D0+4}, v{D0+5}
    v_cvt_pk_bf16_f32 v137, v{D0+6}, v{D0+7}
    ds_write_b32 v30, v136
    ds_write_b32 v138, v137
    s_branch L_a_kdone
    """)
    a.label("L_a_k2")
    for s in range(8): trfrag(XF+4*s, 28, s)
    a.e("s_waitcnt lgkmcnt(0)")
    for s in range(8):
        c = "0" if s == 0 else f"v[{D0}:{D0+3}]"
        a.e(f"v_mfma_f32_16x16x32_bf16 v[{D0}:{D0+3}], v[{XF+4*s}:{XF+4*s+3}], v[{YF+4*s}:{YF+4*s+3}], {c}")
    a.e(f"""
    s_mul_i32 s59, s47, {KC[1]-KC[0]}
    s_add_u32 s59, s59, {KC[0]}
    v_and_b32 v28, 15, v1
    v_lshrrev_b32 v29, 4, v1
    v_lshl_add_u32 v30, v29, 6, v28
    v_add_u32 v30, 512, v30
    v_lshl_add_u32 v30, v30, 1, s59
    v_cvt_pk_bf16_f32 v136, v{D0}, v{D0+1}
    v_cvt_pk_bf16_f32 v137, v{D0+2}, v{D0+3}
    ds_write_b16 v30, v136
    ds_write_b16_d16_hi v30, v136 offset:32
    ds_write_b16 v30, v137 offset:64
    ds_write_b16_d16_hi v30, v137 offset:96
    """)
    a.label("L_a_kdone")
    a.e("s_waitcnt lgkmcnt(0)")
    a.e("s_barrier")
    st(4)
    a.e(f"""
    v_lshlrev_b32 v26, 4, v0         ; 16*m'
    v_add_u32 v26, 16, v26
    s_mov_b32 s57, 0x01000100
    s_mov_b32 s58, 0x03020302
    s_mov_b32 s59, 0x05040302
    s_mov_b32 s60, 0x03020100        ; S1
    s_mov_b32 s62, 0x05040100
    s_cmp_eq_u32 s39, 0
    s_cbranch_scc1 L_a_e0
    s_cmp_eq_u32 s39, 1
    s_cbranch_scc1 L_a_e2
    """)
    a.e(f"""
    v_add_u32 v27, {512-128}, v0
    v_lshlrev_b32 v27, 1, v27
    v_and_b32 v28, 1, v0
    v_cmp_eq_u32 vcc, 0, v28
    """)
    for c in range(2):
        a.e(f"ds_read_u16 v{32+2*c}, v27 offset:{KC[c]}")
        a.e(f"ds_read_u16 v{33+2*c}, v27 offset:{KC[c]+2}")
    a.e("s_waitcnt lgkmcnt(0)")
    for c in range(2):
        c0, c1 = 32+2*c, 33+2*c
        o = 40 + 4*c
        a.e(f"v_perm_b32 v{o}, v{c1}, v{c0}, s57")
        a.e(f"v_mov_b32 v{o+1}, v{o}")
        a.e(f"v_perm_b32 v{o+3}, v{c0}, v{c1}, s57")
        a.e(f"v_perm_b32 v{o+2}, v{c1}, v{c0}, s62")
        a.e(f"v_cndmask_b32 v{o+2}, v{o+3}, v{o+2}, vcc")
    a.e("s_branch L_a_ew")
    a.label("L_a_e2")
    a.e(f"""
    v_lshlrev_b32 v27, 2, v0
    v_add_u32 v27, {(384-128)*2}, v27
    """)
    for c in range(2):
        a.e(f"ds_read_b32 v{32+2*c}, v27 offset:{KC[c]}")
        a.e(f"ds_read_b32 v{33+2*c}, v27 offset:{KC[c]+4}")
    a.e("s_waitcnt lgkmcnt(0)")
    for c in range(2):
        A_, B_ = 32+2*c, 33+2*c
        o = 40 + 4*c
        a.e(f"v_perm_b32 v{o}, v{A_}, v{A_}, s57")
        a.e(f"v_mov_b32 v{o+1}, v{A_}")
        a.e(f"v_perm_b32 v{o+2}, v{A_}, v{A_}, s58")
        a.e(f"v_perm_b32 v{o+3}, v{B_}, v{B_}, s57")
    a.e("s_branch L_a_ew")
    a.label("L_a_e0")
    a.e(f"""
    v_lshlrev_b32 v27, 4, v0
    v_lshlrev_b32 v28, 3, v0
    v_add_u32 v28, {(256-128)*2}, v28
    """)
    for c in range(2):
        a.e(f"ds_read_b128 v[{40+4*c}:{43+4*c}], v27 offset:{KC[c]}")
        a.e(f"ds_read_b64 v[{32+4*c}:{33+4*c}], v28 offset:{KC[c]}")
        a.e(f"ds_read_b32 v{34+4*c}, v28 offset:{KC[c]+8}")
    a.e("""
    v_cmp_le_u32 vcc, 32, v0
    s_waitcnt lgkmcnt(0)
    """)
    for c in range(2):
        A_, B_, C_ = 32+4*c, 33+4*c, 34+4*c
        o = 40 + 4*c
        a.e(f"v_perm_b32 v48, v{A_}, v{A_}, s57")
        a.e(f"v_perm_b32 v49, v{B_}, v{A_}, s59")
        a.e(f"v_perm_b32 v50, v{B_}, v{B_}, s57")
        a.e(f"v_perm_b32 v51, v{C_}, v{B_}, s59")
        for q in range(4):
            a.e(f"v_cndmask_b32 v{o+q}, v{o+q}, v{48+q}, vcc")
    a.label("L_a_ew")
    for c in range(2):
        a.e(f"ds_write_b128 v26, v[{40+4*c}:{43+4*c}] offset:{KD[c]}")
    a.e(f"""
    v_mov_b32 v48, 0
    v_mov_b32 v49, 0
    v_mov_b32 v50, 0
    v_mov_b32 v51, 0
    v_lshlrev_b32 v27, 4, v0
    s_mov_b64 s[62:63], exec
    v_cmp_gt_u32 vcc, 160, v0         ; 160 x 16 B = 2560 B = 32 blocks x 80 B
    s_and_b64 exec, exec, vcc
    ds_write_b128 v27, v[48:51] offset:{UR[0] + 64*80}
    ds_write_b128 v27, v[48:51] offset:{UR[1] + 64*80}
    s_mov_b64 exec, s[62:63]
    v_lshrrev_b32 v28, 2, v0
    v_mul_u32_u24 v28, 4160, v28
    v_and_b32 v29, 3, v0
    v_lshl_add_u32 v28, v29, 4, v28
    v_cmp_gt_u32 vcc, 32, v0
    s_and_b64 exec, exec, vcc
    ds_write_b128 v28, v[48:51] offset:{CP[0]}
    v_mul_u32_u24 v28, {KD[1]-KD[0]}, v0
    v_add_u32 v28, {KD[0]}, v28
    v_cmp_gt_u32 vcc, 2, v0
    s_and_b64 exec, exec, vcc
    ds_write_b128 v28, v[48:51]
    s_mov_b64 exec, s[62:63]
    s_waitcnt lgkmcnt(0)
    s_barrier
    """)
    st(5)
    a.e(f"""
    v_lshlrev_b32 v26, 4, v0
    v_add_u32 v27, 64, v26
    """)
    for c in range(2):
        b = 32 + 16*c
        a.e(f"ds_read_b64 v[{b}:{b+1}], v26 offset:{KD[c] + 8}")
        a.e(f"ds_read_b128 v[{b+4}:{b+7}], v26 offset:{KD[c] + 16}")
    a.e("s_waitcnt lgkmcnt(0)")
    for c in range(2):
        b = 32 + 16*c
        n0, n1, n2, n3, n4, n5 = b, b+1, b+4, b+5, b+6, b+7
        m = b + 8
        a.e(f"v_alignbit_b32 v{m}, v{n1}, v{n0}, 16")
        a.e(f"v_alignbit_b32 v{m+1}, v{n2}, v{n1}, 16")
        a.e(f"v_alignbit_b32 v{m+2}, v{n3}, v{n2}, 16")
        a.e(f"v_alignbit_b32 v{m+3}, v{n4}, v{n3}, 16")
        a.e(f"v_alignbit_b32 v{m+4}, v{n5}, v{n4}, 16")
        base = CP[c]
        a.e(f"ds_write_b128 v27, v[{n2}:{n5}] offset:{base}")
        a.e(f"ds_write_b128 v27, v[{m}:{m+3}] offset:{base + 3*4160}")
        t1 = 96 + 8*c
        for q, r in enumerate((m+1, m+2, m+3, m+4)): a.e(f"v_mov_b32 v{t1+q}, v{r}")
        for q, r in enumerate((n1, n2, n3, n4)): a.e(f"v_mov_b32 v{t1+4+q}, v{r}")
        a.e(f"ds_write_b128 v27, v[{t1}:{t1+3}] offset:{base + 4160}")
        a.e(f"ds_write_b128 v27, v[{t1+4}:{t1+7}] offset:{base + 2*4160}")
    st(6)
    a.e(f"""
    v_lshrrev_b32 v28, 7, v0          ; cch
    v_add_u32 v29, s50, v28
    v_lshlrev_b32 v29, 12, v29
    v_and_b32 v30, 127, v0
    v_lshl_add_u32 v29, v30, 4, v29
    v_add_u32 v29, {UT}, v29
    v_lshrrev_b32 v8, 2, v30
    v_mul_u32_u24 v8, 80, v8
    v_and_b32 v9, 3, v30
    v_lshl_add_u32 v8, v9, 4, v8
    v_mul_u32_u24 v28, {UR[1]-UR[0]}, v28
    v_add_u32 v8, v8, v28
    v_and_b32 v26, 31, v1
    v_lshrrev_b32 v27, 3, v26
    v_lshlrev_b32 v27, 7, v27
    v_and_b32 v26, 7, v26
    v_lshl_add_u32 v26, v26, 2, v27
    s_lshl_b32 s58, s40, 9
    v_add_u32 v26, s58, v26
    s_cmp_lg_u32 s39, 0
    s_cbranch_scc1 L_a_utf_go
    v_add_u32 v27, {UTF}, v26
    s_and_b32 s58, s38, 0xfffffff8
    s_mov_b32 s61, 0
    """)
    a.label("L_a_utf_poll")
    a.e(f"""
    global_load_dword v30, v27, s[36:37] sc1
    s_add_u32 s61, s61, 1
    s_waitcnt vmcnt(0)
    v_and_b32 v31, 0xfffffff8, v30
    v_cmp_ne_u32 vcc, s58, v31
    s_cmp_gt_u32 s61, {SPIN}
    s_cbranch_scc1 L_a_utf_ok
    s_cbranch_vccz L_a_utf_ok
    s_sleep 2
    s_branch L_a_utf_poll
    """)
    a.label("L_a_utf_ok")
    a.e(f"""
    s_getreg_b32 s57, hwreg(HW_REG_XCC_ID)
    s_and_b32 s57, s57, 7
    v_and_b32 v31, 7, v30
    v_cmp_ne_u32 vcc, s57, v31
    s_cmp_eq_u64 vcc, 0
    s_cselect_b32 s57, 1, 0
    v_mov_b32 v31, s57
    v_mov_b32 v30, 0
    ds_write_b32 v30, v31 offset:{NONCE_LDS+4}
    """)
    a.label("L_a_utf_go")
    a.e(f"""
    s_waitcnt lgkmcnt(0)
    s_barrier
    global_load_dwordx4 v[64:67], v29, s[36:37] sc1
    global_load_dwordx4 v[68:71], v29, s[36:37] offset:2048 sc1
    v_mov_b32 v30, 0
    ds_read_b32 v31, v30 offset:{NONCE_LDS+4}
    s_waitcnt vmcnt(0) lgkmcnt(0)
    v_readfirstlane_b32 s46, v31
    """)
    a.vm = []
    st(7)
    a.e(f"ds_write_b128 v8, v[64:67] offset:{UR[0]}")
    a.e(f"ds_write_b128 v8, v[68:71] offset:{UR[0] + 32*80}")
    a.e("v_mov_b32 v9, v26")
    a.e(f"""
    v_and_b32 v26, 31, v1             ; i / a
    v_lshrrev_b32 v27, 5, v1          ; hh
    v_sub_u32 v28, 3, v26
    v_and_b32 v28, 3, v28
    v_mul_u32_u24 v29, 4160, v28
    v_add_u32 v30, v26, v28
    v_add_u32 v30, 9, v30
    v_lshlrev_b32 v31, 3, v27
    v_sub_u32 v30, v30, v31
    v_lshl_add_u32 v29, v30, 1, v29
    s_mul_i32 s57, s47, {CP[1]-CP[0]}
    s_lshl_b32 s58, s48, 10
    s_add_u32 s57, s57, s58
    s_add_u32 s57, s57, {CP[0]}
    v_add_u32 v2, s57, v29            ; vA
    v_sub_u32 v29, 31, v26
    v_mul_u32_u24 v29, 80, v29
    v_lshlrev_b32 v30, 4, v27
    v_sub_u32 v29, v29, v30
    v_add_u32 v29, 16, v29
    s_mul_i32 s57, s47, {UR[1]-UR[0]}
    s_mul_i32 s58, s48, {16*80}
    s_add_u32 s57, s57, s58
    s_add_u32 s57, s57, {UR[0]}
    v_add_u32 v3, s57, v29            ; vB
    s_waitcnt lgkmcnt(0)
    s_barrier
    """)
    st(8)
    ACC0, ACC1 = 128, 144
    NB = 3
    FR = [32 + 16*i for i in range(NB)]
    steps = [(dl, hf) for dl in range(16) for hf in range(2)]
    def reads(i):
        dl, hf = steps[i]
        f = FR[i % NB]
        ao = 64*dl + 32*(1-hf)
        bo = 80*dl + 32*(1-hf)
        t = f"cv{i}"
        a.e(f"ds_read_b64 v[{f}:{f+1}], v2 offset:{ao}", lg=t)
        a.e(f"ds_read_b64 v[{f+2}:{f+3}], v2 offset:{ao+8}", lg=t)
        a.e(f"ds_read_b128 v[{f+8}:{f+11}], v3 offset:{bo+2560}", lg=t)
        a.e(f"ds_read_b128 v[{f+12}:{f+15}], v3 offset:{bo}", lg=t)
        a.e(f"ds_read_b64 v[{f+4}:{f+5}], v2 offset:{ao+2048}", lg=t)
        a.e(f"ds_read_b64 v[{f+6}:{f+7}], v2 offset:{ao+2056}", lg=t)
    a.lg = []
    reads(0); reads(1)
    for i in range(32):
        f = FR[i % NB]
        a.wait_lg(f"cv{i}")
        c0 = "0" if i == 0 else f"v[{ACC0}:{ACC0+15}]"
        c1 = "0" if i == 0 else f"v[{ACC1}:{ACC1+15}]"
        a.e(f"v_mfma_f32_32x32x16_bf16 v[{ACC0}:{ACC0+15}], v[{f}:{f+3}], v[{f+8}:{f+11}], {c0}")
        if i + 2 < 32: reads(i + 2)
        a.e(f"v_mfma_f32_32x32x16_bf16 v[{ACC1}:{ACC1+15}], v[{f}:{f+3}], v[{f+12}:{f+15}], {c1}")
        a.e(f"v_mfma_f32_32x32x16_bf16 v[{ACC1}:{ACC1+15}], v[{f+4}:{f+7}], v[{f+8}:{f+11}], v[{ACC1}:{ACC1+15}]")
    st(9)
    a.e(f"""
    v_and_b32 v26, 31, v1
    v_mul_u32_u24 v26, 144, v26
    v_lshrrev_b32 v27, 5, v1
    v_lshl_add_u32 v26, v27, 4, v26
    s_mul_i32 s57, s39, {64*144}
    v_add_u32 v26, s57, v26
    s_waitcnt lgkmcnt(0)
    s_barrier
    """)
    for tau, acc in ((0, ACC0), (1, ACC1)):
        for q in range(4):
            a.e(f"ds_write_b128 v26, v[{acc+4*q}:{acc+4*q+3}] offset:{YP + tau*32*144 + q*32}")
    a.e(f"""
    v_lshrrev_b32 v27, 2, v0
    v_mul_u32_u24 v27, 144, v27
    v_and_b32 v28, 3, v0
    v_lshl_add_u32 v27, v28, 5, v27
    s_lshl_b32 s57, s50, 12
    s_add_u32 s57, s57, {YT}
    v_lshl_add_u32 v28, v0, 4, s57
    s_waitcnt lgkmcnt(0)
    s_barrier
    """)
    for c in range(2):
        o = YP + (c*2)*64*144
        b = 32 + 16*c
        a.e(f"ds_read_b128 v[{b}:{b+3}], v27 offset:{o}")
        a.e(f"ds_read_b128 v[{b+4}:{b+7}], v27 offset:{o + 16}")
        a.e(f"ds_read_b128 v[{b+8}:{b+11}], v27 offset:{o + 64*144}")
        a.e(f"ds_read_b128 v[{b+12}:{b+15}], v27 offset:{o + 64*144 + 16}")
    for c in range(2):
        a.e(f"s_waitcnt lgkmcnt({4-4*c})")
        b = 32 + 16*c
        for q in range(8): a.e(f"v_add_f32 v{b+q}, v{b+q}, v{b+8+q}")
        for m in range(4): a.e(f"v_cvt_pk_bf16_f32 v{64+4*c+m}, v{b+2*m}, v{b+2*m+1}")
    a.e("""
    v_add_u32 v29, 4096, v28
    s_cmp_eq_u32 s46, 0
    s_cbranch_scc1 L_a_yg
    global_store_dwordx4 v28, v[64:67], s[36:37]
    global_store_dwordx4 v29, v[68:71], s[36:37]
    s_branch L_a_yd
    """)
    a.label("L_a_yg")
    a.e("""
    global_store_dwordx4 v28, v[64:67], s[36:37] sc1
    global_store_dwordx4 v29, v[68:71], s[36:37] sc1
    """)
    a.label("L_a_yd")
    a.e(f"""
    s_waitcnt vmcnt(0)
    s_barrier
    s_cmp_lg_u32 s39, 0
    s_cbranch_scc1 L_a_noyf
    s_lshl_b32 s58, s40, 9
    s_lshr_b32 s59, s41, 3
    s_lshl_b32 s59, s59, 7
    s_add_u32 s58, s58, s59
    s_and_b32 s59, s41, 7
    s_lshl_b32 s59, s59, 2
    s_add_u32 s58, s58, s59
    s_add_u32 s58, s58, {YTF}
    v_mov_b32 v27, s58
    v_mov_b32 v28, s38
    s_mov_b64 exec, 1
    s_cmp_eq_u32 s46, 0
    s_cbranch_scc1 L_a_yfg
    global_store_dword v27, v28, s[36:37]
    s_branch L_a_yfd
    """)
    a.label("L_a_yfg")
    a.e("global_store_dword v27, v28, s[36:37] sc1")
    a.label("L_a_yfd")
    a.e("s_mov_b64 exec, -1")
    a.label("L_a_noyf")
    a.vm = []
    st(10)
    a.e(f"""
    v_and_b32 v4, 15, v0
    v_lshrrev_b32 v3, 4, v0
    v_lshlrev_b32 v26, 2, v4
    v_add_u32 v26, s49, v26
    s_lshl_b32 s59, s41, 7            ; 64j*2 bytes
    v_lshlrev_b32 v26, 12, v26
    v_lshl_add_u32 v26, v3, 3, v26    ; + 4r''*2
    v_add_u32 v26, s59, v26
    v_add_u32 v26, {YT}, v26
    v_add_u32 v27, 4096, v26
    v_add_u32 v28, 8192, v26
    v_add_u32 v31, 12288, v26
    """)
    for e in range(4):
        h, hi = e // 2, e % 2
        a.e(f"v_{'and_b32' if hi else 'lshlrev_b32'} v{80+e}, {'0xffff0000' if hi else '16'}, v{24+h}")
    for rho in range(4):
        for e in range(4):
            h, hi = e // 2, e % 2
            a.e(f"v_{'and_b32' if hi else 'lshlrev_b32'} v{96+4*rho+e}, {'0xffff0000' if hi else '16'}, v{16+2*rho+h}")
            a.e(f"v_mul_f32 v{96+4*rho+e}, v{96+4*rho+e}, v{80+e}")
        for h in range(2):
            a.e(f"v_cvt_pk_bf16_f32 v{84+h}, v{96+4*rho+2*h}, v{96+4*rho+2*h+1}")
        for h in range(2):
            a.e(f"v_lshlrev_b32 v{96+4*rho+2*h}, 16, v{84+h}")
            a.e(f"v_and_b32 v{96+4*rho+2*h+1}, 0xffff0000, v{84+h}")
    a.e(f"""
    s_cmp_lg_u32 s39, 0
    s_cbranch_scc1 L_a_ytf_go
    v_add_u32 v30, {YTF}, v9
    s_mov_b32 s61, 0
    """)
    a.label("L_a_ytf_poll")
    a.e(f"""
    global_load_dword v29, v30, s[36:37] sc1
    s_add_u32 s61, s61, 1
    s_waitcnt vmcnt(0)
    v_cmp_ne_u32 vcc, s38, v29
    s_cmp_gt_u32 s61, {SPIN}
    s_cbranch_scc1 L_a_ytf_go
    s_cbranch_vccz L_a_ytf_go
    s_sleep 1
    s_branch L_a_ytf_poll
    """)
    a.label("L_a_ytf_go")
    a.e("""
    s_barrier
    global_load_dwordx2 v[64:65], v26, s[36:37] sc1
    global_load_dwordx2 v[66:67], v27, s[36:37] sc1
    global_load_dwordx2 v[68:69], v28, s[36:37] sc1
    global_load_dwordx2 v[70:71], v31, s[36:37] sc1
    """)
    st(11)
    a.e(f"""
    s_lshl_b32 s57, s41, 6
    v_lshl_add_u32 v26, v3, 2, s57    ; t0
    v_lshlrev_b32 v26, 11, v26
    s_lshl_b32 s57, s49, 1
    v_lshl_add_u32 v27, v4, 3, s57
    v_add_u32 v26, v26, v27
    s_waitcnt vmcnt(0)
    """)
    for rho in range(4):
        m, hi = rho // 2, rho % 2
        for e in range(4):
            src = 64 + 2*e + m
            a.e(f"v_{'and_b32' if hi else 'lshlrev_b32'} v{84+e}, {'0xffff0000' if hi else '16'}, v{src}")
            a.e(f"v_add_f32 v{84+e}, v{84+e}, v{96+4*rho+e}")
        a.e(f"v_cvt_pk_bf16_f32 v{88+2*rho}, v84, v85")
        a.e(f"v_cvt_pk_bf16_f32 v{89+2*rho}, v86, v87")
        if rho in (0,):
            pass
    for rho in range(4):
        if rho < 2:
            a.e(f"global_store_dwordx2 v26, v[{88+2*rho}:{89+2*rho}], s[32:33] offset:{2048*rho}")
        else:
            if rho == 2: a.e("v_add_u32 v26, 4096, v26")
            a.e(f"global_store_dwordx2 v26, v[{88+2*rho}:{89+2*rho}], s[32:33] offset:{2048*(rho-2)}")
    a.e("""
    s_cmp_lg_u32 s41, 0
    s_cbranch_scc1 L_a_norst
    s_cmp_lg_u32 s39, 0
    s_cbranch_scc1 L_a_norst
    s_lshl_b32 s62, s40, 2
    s_add_u32 s62, s62, 4
    v_mov_b32 v8, s62
    v_mov_b32 v9, 0
    s_mov_b64 exec, 1
    global_store_dword v8, v9, s[34:35] sc1
    s_mov_b64 exec, -1
    """)
    a.label("L_a_norst")
    st(12)
    K.stampval(a, cfg, 13, "s46")
    K.stamps_out(a, cfg, 14)
```

```python
import sys
from asmlib import Asm, wrap

UT   = 0
YT   = 4 << 20
PQ   = 8 << 20
PQF  = 10 << 20
KVP  = (10 << 20) + (64 << 10)
KVF  = 12 << 20
UTF  = (12 << 20) + (64 << 10)
YTF  = (12 << 20) + (72 << 10)
KVBLK = 2176
LOG2E = 0x3fb8aa3b
EPS   = 0x358637bd
SPIN_LIMIT = 200000

class Cfg:
    do_A = True
    do_B = True
    do_B2 = True
    touch = True
    dual = False
    x_nowrite = False
    prioA = 0
    prioB = 0
    pk = False
    b_exit = False
    touch_flags = ""
    early_release = True
    dma_early = False
    last_dma = 40
    late_pre = 0
    touch_mode = "late"
    stamps = False

STAMP_BASE = 14 << 20
def stamp(a, cfg, i):
    if cfg.stamps:
        a.e(f"s_memtime s[{70+2*i}:{71+2*i}]")
def stampval(a, cfg, i, sreg):
    if cfg.stamps:
        a.e("s_waitcnt lgkmcnt(0)")
        a.e(f"s_add_u32 s{70+2*i}, {sreg}, s70")
def stamps_out(a, cfg, n, vt=22):
    if not cfg.stamps: return
    a.e("s_memrealtime s[68:69]")
    a.e("s_waitcnt lgkmcnt(0) vmcnt(0)")
    a.vm = []
    for i in range(1, n):
        a.e(f"s_sub_u32 s{70+2*i}, s{70+2*i}, s70")
    a.e(f"""
    s_lshl_b32 s61, s2, 2
    s_add_u32 s61, s61, s39
    s_lshl_b32 s61, s61, 6
    s_add_u32 s61, s61, {STAMP_BASE}
    v_mov_b32 v{vt}, s61
    s_mov_b64 exec, 1
    """)
    for i in range(16):
        src = f"s{70+2*i}" if (0 < i < n) else ("s68" if i == 15 else ("s100" if i == 0 else "0"))
        a.e(f"v_mov_b32 v{vt+1}, {src}")
        a.e(f"global_store_dword v{vt}, v{vt+1}, s[36:37] offset:{4*i}")
        a.e("s_nop 1")
    a.e("s_waitcnt vmcnt(0)")
    a.e("s_mov_b64 exec, -1")
    a.vm = []

def prologue(a, cfg):
    if cfg.stamps:
        a.e("s_memrealtime s[100:101]")
        a.e("s_memtime s[70:71]")
    a.e("""
    s_cmp_ge_u32 s2, 512
    s_cbranch_scc1 L_end
    s_load_dwordx16 s[8:23], s[0:1], 0
    s_load_dwordx8 s[24:31], s[0:1], 64
    s_load_dwordx4 s[32:35], s[0:1], 96
    s_load_dwordx2 s[36:37], s[0:1], 112
    v_lshrrev_b32 v1, 6, v0
    v_readfirstlane_b32 s39, v1
    v_and_b32 v1, 63, v0
    s_and_b32 s3, s2, 255
    s_cmp_lt_u32 s2, 256
    s_cbranch_scc1 L_roleA
    """)

def poll_nonce(a, vtmp, vaddr0, first_tag=None):
    L = a.newlabel("nonce"); Lx = a.newlabel("nonce_ok")
    if first_tag:
        a.wait_vm(first_tag)
    else:
        a.e(f"global_load_dword {vtmp}, {vaddr0}, s[34:35] sc1")
        a.wait_vm_all()
    a.e(f"v_readfirstlane_b32 s38, {vtmp}")
    a.e(f"""
    s_cmp_lg_u32 s38, 0
    s_cbranch_scc1 {Lx}
    s_mov_b32 s61, 0
    """)
    a.label(L)
    a.e(f"""
    global_load_dword {vtmp}, {vaddr0}, s[34:35] sc1
    s_waitcnt vmcnt(0)
    v_readfirstlane_b32 s38, {vtmp}
    s_add_u32 s61, s61, 1
    s_cmp_gt_u32 s61, {SPIN_LIMIT}
    s_cbranch_scc1 {Lx}
    s_cmp_eq_u32 s38, 0
    s_cbranch_scc1 {L}
    """)
    a.vm.pop()
    a.label(Lx)

def phi_instrs(acc, tmp, out, zsum=None):
    L = []
    for i in range(16):
        L.append(f"v_mul_f32 v{tmp+i}, s62, v{acc+i}")
    for i in range(16):
        L.append(f"v_exp_f32 v{tmp+i}, v{tmp+i} clamp")
        L.append(f"v_max_f32 v{acc+i}, s64, v{acc+i}")
    for i in range(16):
        L.append(f"v_add_f32 v{acc+i}, v{acc+i}, v{tmp+i}")
    if zsum is not None:
        for m in range(8):
            L.append(f"v_add_f32 v{tmp+m}, v{acc+2*m}, v{acc+2*m+1}")
        for m in range(4):
            L.append(f"v_add_f32 v{tmp+m}, v{tmp+m}, v{tmp+4+m}")
        L.append(f"v_add_f32 v{tmp}, v{tmp}, v{tmp+2}")
        L.append(f"v_add_f32 v{tmp+1}, v{tmp+1}, v{tmp+3}")
        L.append(f"v_add_f32 v{zsum}, v{tmp}, v{tmp+1}")
    for m in range(8):
        L.append(f"v_cvt_pk_bf16_f32 v{out+m}, v{acc+2*m}, v{acc+2*m+1}")
    return L

def spread(side, nslots):
    out = []; n = len(side); k = 0
    for i in range(nslots):
        e = (n*(i+1))//nslots
        out.append(side[k:e]); k = e
    return out

SEQ = []
for c in range(8): SEQ += [("X", c), ("K", c)]
SEQ += [("V", c) for c in range(8)] + [("Q", c) for c in range(8)] + [("O", c) for c in range(8)]
NSLOT = 10
NINIT = 6
XR = 128
WF, T16, ACCQ, ACCK, ACCV = 32, 64, 80, 96, 112

def b_issue_jobs(n):
    kind, c = SEQ[n]
    pos = n % NSLOT
    pre = []
    if kind == "X":
        so, v0, srd = f"s{16+c}", 2, "s[40:43]"
    elif kind in "QKV":
        so, v0, srd = f"s{8+c}", 4, "s[44:47]"
        if kind == "V" and c == 0:
            pre = [("v_add_u32 v4, 1024, v4", None), ("v_add_u32 v5, 1024, v5", None)]
        if kind == "Q" and c == 0:
            pre = [("v_subrev_u32 v4, 2048, v4", None), ("v_subrev_u32 v5, 2048, v5", None)]
    else:
        so, v0, srd = "s61", 6, "s[48:51]"
        pre = [(f"s_mov_b32 s61, {c*65536}", None)]
    return [pre + [(f"s_add_u32 m0, s60, {pos*8192}", None),
             (f"buffer_load_dwordx4 v{v0}, {srd}, {so} offen lds", f"slot{n}")],
            [(f"buffer_load_dwordx4 v{v0+1}, {srd}, {so} offen offset:1024 lds", f"slot{n}")]]

def emit_job(a, job):
    for t in job:
        if isinstance(t, str): a.e(t)
        else: a.e(t[0], vm=t[1])

def lds_base(n):
    pos = n % NSLOT
    return (0, pos*8192) if pos < 5 else (1, (pos-5)*8192)

def wfrag_reads(a, n, s, dst, tag=None):
    hi, off = lds_base(n)
    va = "v17" if hi else "v16"
    a.e(f"ds_read_b64_tr_b16 v[{dst}:{dst+1}], {va} offset:{off + s*2048}", lg=tag)
    a.e(f"ds_read_b64_tr_b16 v[{dst+2}:{dst+3}], {va} offset:{off + s*2048 + 512}", lg=tag)

def role_B(a, cfg):
    a.c("================= role B =================")
    if cfg.prioB: a.e(f"s_setprio {cfg.prioB}")
    a.e("""
    s_and_b32 s66, s3, 7            ; xcd
    s_lshr_b32 s67, s3, 3           ; jj
    s_lshr_b32 s56, s66, 1
    s_lshl_b32 s56, s56, 3
    s_and_b32 s68, s67, 7
    s_add_u32 s56, s56, s68         ; tb
    s_and_b32 s57, s66, 1
    s_lshl_b32 s57, s57, 2
    s_lshr_b32 s68, s67, 3
    s_add_u32 s57, s57, s68         ; hq
    s_and_b32 s58, s39, 1           ; tt
    s_lshr_b32 s59, s39, 1
    s_lshl_b32 s60, s39, 11
    s_mov_b32 s62, 0x3fb8aa3b
    s_mov_b32 s63, 0x3fb8aa3b
    s_mov_b32 s64, 0x358637bd
    s_mov_b32 s65, 0x358637bd
    """)
    a.e("""
    v_lshrrev_b32 v32, 3, v1        ; l>>3
    v_and_b32 v33, 7, v1            ; l&7
    v_lshrrev_b32 v34, 4, v1        ; l>>4
    s_lshl_b32 s68, s56, 6          ; tb*64
    s_lshl_b32 s69, s39, 4          ; 16w
    s_add_u32 s68, s68, s69
    v_add_u32 v35, s68, v32         ; row
    v_lshlrev_b32 v35, 10, v35
    v_xor_b32 v36, v33, v34
    v_lshl_add_u32 v2, v36, 4, v35
    v_add_u32 v37, 4, v34
    v_xor_b32 v36, v33, v37
    v_lshl_add_u32 v3, v36, 4, v35
    v_add_u32 v3, 7168, v3          ; +8 rows - 1024
    v_and_b32 v36, 1, v34
    v_lshlrev_b32 v36, 2, v36
    v_xor_b32 v36, v33, v36         ; q
    v_lshlrev_b32 v36, 4, v36       ; q*16
    v_add_u32 v37, s69, v32         ; 16w + (l>>3)
    v_mul_u32_u24 v38, 3072, v37
    s_lshl_b32 s68, s57, 7          ; hq*128
    v_add3_u32 v4, v38, v36, s68
    v_add_u32 v4, 1024, v4
    v_add_u32 v5, 23552, v4         ; +8*3072 - 1024
    v_lshlrev_b32 v38, 10, v37
    v_add3_u32 v6, v38, v36, s68
    v_add_u32 v7, 7168, v6
    """)
    a.e("""
    s_waitcnt lgkmcnt(0)
    s_mov_b32 s40, s26
    s_and_b32 s41, s27, 0xffff
    s_mov_b32 s42, 0x200000
    s_mov_b32 s43, 0x20000
    s_mov_b32 s44, s28
    s_and_b32 s45, s29, 0xffff
    s_mov_b32 s46, 0x180000
    s_mov_b32 s47, 0x20000
    s_mov_b32 s48, s30
    s_and_b32 s49, s31, 0xffff
    s_mov_b32 s50, 0x80000
    s_mov_b32 s51, 0x20000
    """)
    a.e("""
    v_mov_b32 v31, 0
    s_cmp_lg_u32 s3, 0
    s_cbranch_scc1 L_b_nononce
    s_cmp_lg_u32 s39, 0
    s_cbranch_scc1 L_b_nononce
    s_memrealtime s[68:69]
    s_waitcnt lgkmcnt(0)
    s_or_b32 s68, s68, 1
    v_mov_b32 v30, s68
    s_mov_b64 exec, 1
    global_store_dword v31, v30, s[34:35] sc1
    s_mov_b64 exec, -1
    """)
    a.vm.pop()
    a.label("L_b_nononce")
    if cfg.b_exit:
        a.e("s_branch L_end")
    for c in range(8):
        a.e(f"s_mov_b32 s{8+c}, {c*64*3072}")
        a.e(f"s_mov_b32 s{16+c}, {c*128}")
    stamp(a, cfg, 1)
    for n in range(NINIT):
        for job in b_issue_jobs(n): emit_job(a, job)
    a.e("""
    v_and_b32 v32, 31, v1           ; i
    v_lshrrev_b32 v33, 5, v1        ; hh
    s_lshl_b32 s68, s58, 5
    v_add_u32 v34, s68, v32         ; 32tt + i
    v_lshlrev_b32 v34, 7, v34       ; *128
    v_lshrrev_b32 v35, 1, v32
    v_and_b32 v35, 7, v35           ; f
    """)
    for s in range(4):
        a.e(f"""
        v_add_u32 v36, {2*s}, v33
        v_xor_b32 v36, v36, v35
        v_lshl_add_u32 v{8+s}, v36, 4, v34
        v_add_u32 v{12+s}, 40960, v{8+s}
        """)
    a.e(f"""
    v_lshrrev_b32 v34, 2, v1
    v_and_b32 v34, 3, v34           ; rr
    v_and_b32 v35, 3, v1            ; cc
    v_lshrrev_b32 v36, 4, v1
    v_and_b32 v36, 1, v36           ; G&1
    v_lshlrev_b32 v36, 1, v36       ; 2(G&1)
    v_lshrrev_b32 v37, 1, v35       ; cc>>1
    v_add_u32 v36, v36, v37         ; 2(G&1) + (cc>>1)
    v_lshrrev_b32 v37, 1, v34
    v_lshlrev_b32 v37, 2, v37       ; 4(rr>>1)
    v_and_b32 v38, 1, v35
    v_lshlrev_b32 v38, 3, v38       ; 8(cc&1)
    s_lshl_b32 s68, s59, 2
    v_add_u32 v39, s68, v36
    v_xor_b32 v39, v39, v37
    v_lshl_add_u32 v39, v39, 4, v38
    v_lshl_add_u32 v40, v33, 3, v34
    v_lshl_add_u32 v16, v40, 7, v39
    v_add_u32 v17, 40960, v16
    v_xor_b32 v39, v36, v37
    v_lshl_add_u32 v39, v39, 4, v38
    v_lshl_add_u32 v40, v33, 2, v34
    v_lshl_add_u32 v18, v40, 7, v39
    s_lshl_b32 s68, s59, 15
    s_add_u32 s68, s68, 16384
    v_add_u32 v18, s68, v18
    v_xor_b32 v19, 64, v18
    s_lshl_b32 s68, s59, 1
    s_add_u32 s68, s68, s58
    s_xor_b32 s69, s68, 1
    s_lshl_b32 s66, s68, 10
    s_add_u32 s66, s66, 16384
    v_lshl_add_u32 v22, v1, 4, s66
    s_lshl_b32 s66, s69, 10
    s_add_u32 s66, s66, 16384
    v_lshl_add_u32 v23, v1, 4, s66
    s_lshl_b32 s66, s68, 8
    s_add_u32 s66, s66, 20480
    v_lshl_add_u32 v24, v1, 2, s66
    s_lshl_b32 s66, s69, 8
    s_add_u32 s66, s66, 20480
    v_lshl_add_u32 v25, v1, 2, s66
    s_lshl_b32 s68, s57, 1
    s_add_u32 s68, s68, s59
    s_lshl_b32 s68, s68, 5
    s_add_u32 s68, s68, s56
    s_mul_i32 s68, s68, 2176
    s_add_u32 s68, s68, {KVP}
    s_lshl_b32 s69, s58, 10
    s_add_u32 s69, s69, s68
    v_lshl_add_u32 v26, v1, 4, s69
    v_lshrrev_b32 v40, 4, v1
    v_and_b32 v40, 1, v40
    v_lshlrev_b32 v40, 3, v40       ; 8c
    v_and_b32 v41, 4, v1            ; 4*hh'
    v_add_u32 v40, v40, v41
    v_lshrrev_b32 v41, 2, v1
    v_and_b32 v41, 2, v41
    v_add_u32 v40, v40, v41
    v_lshrrev_b32 v41, 1, v1
    v_and_b32 v41, 1, v41
    v_add_u32 v40, v40, v41         ; zg
    s_add_u32 s68, s68, 2048
    v_lshl_add_u32 v27, v40, 3, s68
    s_lshl_b32 s68, s56, 1
    s_add_u32 s68, s68, s58
    s_lshl_b32 s68, s68, 5
    s_lshl_b32 s69, s57, 2
    s_add_u32 s68, s68, s69
    s_lshl_b32 s69, s59, 1
    s_add_u32 s68, s68, s69
    s_lshl_b32 s68, s68, 10
    s_add_u32 s68, s68, {PQ}
    v_lshl_add_u32 v28, v1, 4, s68
    v_and_b32 v40, 16, v1
    v_cmp_ne_u32 s[52:53], 0, v40
    s_sub_u32 s54, 0, s58
    s_mov_b32 s55, s54
    """)
    for r in range(16):
        a.e(f"v_mov_b32 v{ACCQ+r}, s64")
    for r in range(16):
        a.e(f"v_mov_b32 v{ACCK+r}, s64")
    def frag_reads(g, k):
        L = []
        tag = f"f{g}_{k}"
        if g < 8:
            nx, nw = 2*g, 2*g+1
            hi, off = lds_base(nx)
            L.append((f"ds_read_b128 v[{XR+16*g+4*k}:{XR+16*g+4*k+3}], v{(12 if hi else 8)+k} offset:{off}", tag))
            d = WF + 16*(g % 2) + 4*k; n = nw; sstep = k
        else:
            n = 2*g + k//4; sstep = k % 4; d = WF + 4*k
        h2, o2 = lds_base(n)
        va = "v17" if h2 else "v16"
        L.append((f"ds_read_b64_tr_b16 v[{d}:{d+1}], {va} offset:{o2 + sstep*2048}", tag))
        L.append((f"ds_read_b64_tr_b16 v[{d+2}:{d+3}], {va} offset:{o2 + sstep*2048 + 512}", tag))
        return L
    def nsteps(g): return 4 if g < 8 else 8
    def emit_side(lst):
        for t in lst:
            if isinstance(t, str): a.e(t)
            elif t[0] == "WVM": a.wait_vm(t[1])
            else: a.e(t[0], vm=t[1])
    side = {}
    ke = phi_instrs(ACCK, T16, ACCK, zsum=29)
    ke += ["v_mov_b32 v30, v29", "v_permlane32_swap_b32 v29, v30", "v_add_f32 v29, v29, v30"]
    gaps = [(g, k) for g in range(8, 12) for k in range(8)][1:31]
    for gp, grp in zip(gaps, spread(ke, len(gaps))): side[gp] = grp

    ra = f"""
    s_lshr_b32 s66, s3, 4
    s_and_b32 s67, s3, 15
    s_mul_i32 s69, s66, {32*KVBLK}
    s_add_u32 s69, s69, {KVP}
    s_lshl_b32 s52, s67, 7
    s_add_u32 s68, s69, s52
    v_and_b32 v22, 7, v1
    v_lshlrev_b32 v22, 4, v22
    v_lshrrev_b32 v23, 3, v1
    v_mul_u32_u24 v23, {KVBLK}, v23
    v_add_u32 v23, v22, v23
    v_add_u32 v24, s68, v23
    v_add_u32 v25, {8*KVBLK}, v24
    v_add_u32 v26, {16*KVBLK}, v24
    v_add_u32 v27, {24*KVBLK}, v24
    s_add_u32 s68, s69, 2048
    v_add_u32 v8, s68, v23
    v_add_u32 v9, {8*KVBLK}, v8
    v_add_u32 v10, {16*KVBLK}, v8
    v_add_u32 v11, {24*KVBLK}, v8
    s_mul_i32 s69, s66, {KVBLK}
    s_add_u32 s69, s69, {KVF}
    s_add_u32 s68, s69, s52
    v_add_u32 v23, s68, v22
    s_add_u32 s68, s69, 2048
    v_add_u32 v12, s68, v22
    """.strip().split("\n")
    ra = [x.strip() for x in ra]
    gaps = [(12, k) for k in range(1, 8)] + [(13, k) for k in range(8)]
    for gp, grp in zip(gaps, spread(ra, len(gaps))): side[gp] = grp

    rb = f"""
    s_mov_b32 s40, s36
    s_and_b32 s41, s37, 0xffff
    s_mov_b32 s42, {KVF + 65536}
    s_mov_b32 s43, 0x20000
    s_lshl_b32 s68, s56, 7
    s_add_u32 s68, s68, {PQF}
    v_and_b32 v2, 7, v1
    v_lshl_add_u32 v2, v2, 2, s68
    s_lshl_b32 s68, s56, 1
    s_add_u32 s68, s68, s58
    s_lshl_b32 s68, s68, 5
    s_lshl_b32 s69, s59, 4
    s_add_u32 s68, s68, s69
    s_lshl_b32 s68, s68, 10
    s_add_u32 s68, s68, {PQ}
    v_lshl_add_u32 v3, v1, 4, s68
    v_add_u32 v31, 8192, v3
    v_lshrrev_b32 v13, 7, v0
    v_mul_u32_u24 v13, {KVBLK}, v13
    v_and_b32 v20, 127, v0
    v_lshl_add_u32 v13, v20, 4, v13
    v_add_u32 v13, {KVF}, v13
    v_lshrrev_b32 v14, 3, v20
    v_mul_u32_u24 v14, {KVBLK}, v14
    v_and_b32 v21, 7, v0
    v_lshl_add_u32 v14, v21, 4, v14
    v_add_u32 v14, {KVF+2048}, v14
    v_lshrrev_b32 v15, 7, v0
    v_lshlrev_b32 v15, 1, v15
    v_bfe_u32 v21, v0, 4, 1
    v_add_u32 v15, v15, v21
    v_mul_u32_u24 v15, 544, v15
    v_bfe_u32 v21, v0, 5, 1
    v_mul_u32_u24 v21, 272, v21
    v_add_u32 v15, v15, v21
    v_and_b32 v21, 15, v0
    v_lshl_add_u32 v15, v21, 4, v15
    v_bfe_u32 v21, v0, 6, 1
    v_lshl_add_u32 v15, v21, 3, v15
    v_lshrrev_b32 v29, 3, v20
    v_lshlrev_b32 v29, 1, v29
    v_bfe_u32 v21, v0, 2, 1
    v_add_u32 v29, v29, v21
    v_mul_u32_u24 v29, 544, v29
    v_bfe_u32 v21, v0, 1, 1
    v_mul_u32_u24 v21, 272, v21
    v_add_u32 v29, v29, v21
    v_and_b32 v21, 1, v0
    v_lshl_add_u32 v29, v21, 3, v29
    v_add_u32 v29, 256, v29
    v_and_b32 v30, 15, v1
    v_mul_u32_u24 v30, {KVBLK}, v30
    v_add_u32 v30, {KVF+2048+4}, v30
    """.strip().split("\n")
    rb = [x.strip() for x in rb]
    rb += [f"s_mov_b32 s{8+i}, {1024*i}" for i in range(8)] + [f"s_mov_b32 s{16+k}, {2*KVBLK*k}" for k in range(8)]
    gaps = [(14, k) for k in range(8)] + [(15, k) for k in range(8)]
    for gp, grp in zip(gaps, spread(rb, len(gaps))): side[gp] = grp

    def kv_publish():
        a.c("--- kv partial: V cvt, MFMA, select, pair exchange, publish")
        a.e("s_barrier")
        for m in range(8):
            a.e(f"v_cvt_pk_bf16_f32 v{ACCV+m}, v{ACCV+2*m}, v{ACCV+2*m+1}")
        a.e(f"v_mfma_f32_32x32x16_bf16 v[{T16}:{T16+15}], v[{ACCK}:{ACCK+3}], v[{ACCV}:{ACCV+3}], 0")
        a.e(f"v_mfma_f32_32x32x16_bf16 v[{T16}:{T16+15}], v[{ACCK+4}:{ACCK+7}], v[{ACCV+4}:{ACCV+7}], v[{T16}:{T16+15}]")
        a.e("ds_write_b32 v24, v29", lg="xw")
        poll_nonce(a, "v21", "v31", first_tag="nonce")
        SEL = ACCK + 8; SND = ACCV + 8; KEEP = ACCV + 12
        for j in range(8): a.e(f"v_cndmask_b32 v{SEL+j}, v{T16+j}, v{T16+8+j}, s[52:53]")
        for j in range(4): a.e(f"v_cndmask_b32 v{SND+j}, v{SEL+4+j}, v{SEL+j}, s[54:55]")
        a.e(f"ds_write_b128 v22, v[{SND}:{SND+3}]", lg="xw")
        for j in range(4): a.e(f"v_cndmask_b32 v{KEEP+j}, v{SEL+j}, v{SEL+4+j}, s[54:55]")
        a.wait_lg("xw")
        a.e("s_barrier")
        a.e(f"ds_read_b128 v[{SEL}:{SEL+3}], v23", lg="xr")
        a.e(f"ds_read_b32 v30, v25", lg="xr")
        a.wait_lg("xr")
        for j in range(4): a.e(f"v_add_f32 v{KEEP+j}, v{KEEP+j}, v{SEL+j}")
        a.e(f"""
        v_add_f32 v29, v29, v30
        v_cvt_pk_bf16_f32 v{SEL}, v{KEEP}, v{KEEP+1}
        v_mov_b32 v{SEL+1}, s38
        v_cvt_pk_bf16_f32 v{SEL+2}, v{KEEP+2}, v{KEEP+3}
        v_mov_b32 v{SEL+3}, s38
        v_mov_b32_dpp v30, v29 quad_perm:[1,0,3,2] row_mask:0xf bank_mask:0xf
        global_store_dwordx4 v26, v[{SEL}:{SEL+3}], s[36:37] sc1
        v_cvt_pk_bf16_f32 v{SEL+4}, v29, v30
        v_mov_b32 v{SEL+5}, s38
        s_andn2_b64 exec, 0x55555555, s[54:55]
        s_cbranch_execz L_b_noz
        global_store_dwordx2 v27, v[{SEL+4}:{SEL+5}], s[36:37] sc1
        """)
        a.vm.pop()
        a.label("L_b_noz")
        a.e("s_mov_b64 exec, -1")
        stamp(a, cfg, 6)

    a.wait_vm(["slot0", "slot1"])
    a.e("s_barrier")
    stamp(a, cfg, 2)
    for k in range(4):
        for t, tag in frag_reads(0, k): a.e(t, lg=tag)
    nxt = NINIT
    pend = []
    while nxt < NSLOT:
        pend += b_issue_jobs(nxt); nxt += 1
    for g in range(16):
        a.c(f"--- group {g}")
        if g == 12: kv_publish()
        if g < 15:
            a.wait_vm([f"slot{2*g+2}", f"slot{2*g+3}"])
        a.e("s_barrier")
        if g in (1, 8, 12): stamp(a, cfg, {1: 3, 8: 4, 12: 5}[g])
        jobs = list(pend); pend = []
        if g >= 1:
            for _ in range(2): jobs += b_issue_jobs(nxt); nxt += 1
        if g == 9:
            jobs.append([("global_load_dword v21, v31, s[34:35] sc1", "nonce")])
        ns = nsteps(g)
        jsp = spread(jobs, ns)
        for k in range(ns):
            if k % 2 == 0: a.wait_lg([f"f{g}_{k}", f"f{g}_{k+1}"])
            if g < 8:
                d = WF + 16*(g % 2) + 4*k
                a.e(f"v_mfma_f32_32x32x16_bf16 v[{ACCK}:{ACCK+15}], v[{XR+16*g+4*k}:{XR+16*g+4*k+3}], v[{d}:{d+3}], v[{ACCK}:{ACCK+15}]")
            elif g < 12:
                kk = (g - 8)*8 + k
                cc = "0" if (g == 8 and k == 0) else f"v[{ACCV}:{ACCV+15}]"
                a.e(f"v_mfma_f32_32x32x16_bf16 v[{ACCV}:{ACCV+15}], v[{XR+4*kk}:{XR+4*kk+3}], v[{WF+4*k}:{WF+4*k+3}], {cc}")
            else:
                kk = (g - 12)*8 + k
                a.e(f"v_mfma_f32_32x32x16_bf16 v[{ACCQ}:{ACCQ+15}], v[{WF+4*k}:{WF+4*k+3}], v[{XR+4*kk}:{XR+4*kk+3}], v[{ACCQ}:{ACCQ+15}]")
            jl = [list(jb) for jb in jsp[k]]
            if jl:
                while jl[0] and not jl[0][0][0].startswith(("buffer_load", "global_load")):
                    a.e(jl[0].pop(0)[0])
            if g < 15:
                nx = [k, 4 + k] if g == 7 else [k]
                for k2 in nx:
                    for t, tag in frag_reads(g + 1, k2): a.e(t, lg=tag)
            for jb in jl: emit_job(a, jb)
            emit_side(side.get((g, k), []))
    assert nxt == 40, nxt
    a.e("s_barrier")
    a.e("""
    s_cmp_lg_u32 s39, 0
    s_cbranch_scc1 L_b_nored1
    global_load_dwordx4 v[96:99], v24, s[36:37] sc1
    global_load_dwordx4 v[100:103], v25, s[36:37] sc1
    global_load_dwordx4 v[104:107], v26, s[36:37] sc1
    global_load_dwordx4 v[108:111], v27, s[36:37] sc1
    global_load_dwordx4 v[112:115], v8, s[36:37] sc1
    global_load_dwordx4 v[116:119], v9, s[36:37] sc1
    global_load_dwordx4 v[120:123], v10, s[36:37] sc1
    global_load_dwordx4 v[124:127], v11, s[36:37] sc1
    """)
    for _ in range(8): a.vm.pop()
    a.label("L_b_nored1")
    a.c("--- Q epilogue")
    for t in phi_instrs(ACCQ, T16, ACCQ): a.e(t)
    a.e(f"""
    v_lshlrev_b32 v20, 4, v1
    s_cmp_lg_u32 s39, 0
    s_cbranch_scc1 L_b_noho
    ds_write_b128 v20, v[{ACCQ}:{ACCQ+3}]
    ds_write_b128 v20, v[{ACCQ+4}:{ACCQ+7}] offset:1024
    s_waitcnt vmcnt(8) lgkmcnt(0)
    s_branch L_b_ho2
    """)
    a.label("L_b_noho")
    a.e("s_waitcnt vmcnt(0)")
    a.label("L_b_ho2")
    a.vm = []; a.lg = []
    a.e("s_barrier")
    a.e(f"""
    s_cmp_eq_u32 s39, 0
    s_cbranch_scc1 L_b_nopq
    global_store_dwordx4 v28, v[{ACCQ}:{ACCQ+3}], s[36:37] sc1
    global_store_dwordx4 v28, v[{ACCQ+4}:{ACCQ+7}], s[36:37] offset:1024 sc1
    s_cmp_eq_u32 s39, 1
    s_cbranch_scc0 L_b_nopq
    ds_read_b128 v[32:35], v20
    ds_read_b128 v[36:39], v20 offset:1024
    v_subrev_u32 v21, 32768, v28
    s_waitcnt lgkmcnt(0)
    global_store_dwordx4 v21, v[32:35], s[36:37] sc1
    global_store_dwordx4 v21, v[36:39], s[36:37] offset:1024 sc1
    """)
    a.label("L_b_nopq")
    a.vm = []; a.lg = []
    stamp(a, cfg, 7)
    if not cfg.do_B2:
        stamp(a, cfg, 8)
        stamps_out(a, cfg, 9)
        a.e("s_branch L_end")
        return
    role_B2(a, cfg)

def tag_check(a, regs_tags, acc="v20"):
    tt = 0
    for idx in range(8):
        s0, s1, s2 = (idx >> 2) & 1, (idx >> 1) & 1, idx & 1
        if s0 | (s1 ^ s2): tt |= 1 << idx
    first = True
    for r in regs_tags:
        if first:
            a.e(f"v_xor_b32 {acc}, s38, v{r}"); first = False
        else:
            a.e(f"v_bitop3_b32 {acc}, {acc}, v{r}, s38 bitop3:{hex(tt)}")
    a.e(f"v_cmp_ne_u32 vcc, 0, {acc}")

def role_B2(a, cfg):
    WO = 128
    ACC = 96
    PQR = 32
    CN = [64, 80]
    KAF = [8, 12]
    OF = [4, 16]
    KA = 0
    PQL = 17408
    a.c("================= B2 =================")
    def reduce_line(base, dst_addr, tagsok_label):
        S = 40; T = 44
        for k in range(4):
            r = base + 4*k
            for pidx in range(2):
                src = r + 2*pidx
                if k == 0:
                    a.e(f"v_lshlrev_b32 v{S+2*pidx}, 16, v{src}")
                    a.e(f"v_and_b32 v{S+1+2*pidx}, 0xffff0000, v{src}")
                else:
                    a.e(f"v_lshlrev_b32 v{T+2*pidx}, 16, v{src}")
                    a.e(f"v_and_b32 v{T+1+2*pidx}, 0xffff0000, v{src}")
                    a.e(f"v_add_f32 v{S+2*pidx}, v{S+2*pidx}, v{T+2*pidx}")
                    a.e(f"v_add_f32 v{S+1+2*pidx}, v{S+1+2*pidx}, v{T+1+2*pidx}")
        for j in range(4): a.e(f"v_add_f32_dpp v{S+j}, v{S+j}, v{S+j} row_ror:8 row_mask:0xf bank_mask:0xf")
        for j in range(4): a.e(f"v_mov_b32 v{T+j}, v{S+j}")
        for j in range(4): a.e(f"v_permlane16_swap_b32 v{S+j}, v{T+j}")
        for j in range(4): a.e(f"v_add_f32 v{S+j}, v{S+j}, v{T+j}")
        for j in range(4): a.e(f"v_mov_b32 v{T+j}, v{S+j}")
        for j in range(4): a.e(f"v_permlane32_swap_b32 v{S+j}, v{T+j}")
        for j in range(4): a.e(f"v_add_f32 v{S+j}, v{S+j}, v{T+j}")
        a.e(f"""
        v_cvt_pk_bf16_f32 v48, v{S}, v{S+1}
        v_mov_b32 v49, s38
        v_cvt_pk_bf16_f32 v50, v{S+2}, v{S+3}
        v_mov_b32 v51, s38
        s_mov_b64 exec, 0xff
        global_store_dwordx4 {dst_addr}, v[48:51], s[36:37] sc1
        s_mov_b64 exec, -1
        """)
    a.e("""
    s_cmp_lg_u32 s39, 0
    s_cbranch_scc1 L_b_red_done
    s_mov_b32 s61, 0
    s_branch L_b_red_chk
    """)
    a.label("L_b_red_poll")
    a.e("""
    global_load_dwordx4 v[96:99], v24, s[36:37] sc1
    global_load_dwordx4 v[100:103], v25, s[36:37] sc1
    global_load_dwordx4 v[104:107], v26, s[36:37] sc1
    global_load_dwordx4 v[108:111], v27, s[36:37] sc1
    global_load_dwordx4 v[112:115], v8, s[36:37] sc1
    global_load_dwordx4 v[116:119], v9, s[36:37] sc1
    global_load_dwordx4 v[120:123], v10, s[36:37] sc1
    global_load_dwordx4 v[124:127], v11, s[36:37] sc1
    """)
    a.label("L_b_red_chk")
    a.e("""
    s_add_u32 s61, s61, 1
    s_waitcnt vmcnt(0)
    """)
    tag_check(a, [97+2*q for q in range(16)])
    a.e(f"""
    s_cmp_gt_u32 s61, {SPIN_LIMIT}
    s_cbranch_scc1 L_b_red_go
    s_cbranch_vccnz L_b_red_poll
    """)
    a.label("L_b_red_go")
    stampval(a, cfg, 8, "s61")
    a.e("""
    s_cmp_lg_u32 s67, 0
    s_cbranch_scc1 L_b_red_a
    """)
    reduce_line(112, "v12", None)
    a.label("L_b_red_a")
    reduce_line(96, "v23", None)
    a.label("L_b_red_done")
    a.vm = []
    stamp(a, cfg, 9)
    for i in range(16):
        for nt in range(2):
            d = WO + 8*i + 4*nt
            off = (i//4)*8192 + (i % 4)*2048
            a.e(f"ds_read_b64_tr_b16 v[{d}:{d+1}], v{18+nt} offset:{off}", lg="wo")
            a.e(f"ds_read_b64_tr_b16 v[{d+2}:{d+3}], v{18+nt} offset:{off+1024}", lg="wo")
    a.e("""
    s_cmp_eq_u32 s39, 0
    s_cbranch_scc1 L_b_noack
    s_waitcnt vmcnt(0)
    """)
    a.label("L_b_noack")
    a.e("s_waitcnt lgkmcnt(0)")
    a.e("s_barrier")
    a.e("""
    s_cmp_lg_u32 s39, 3
    s_cbranch_scc1 L_b_noflag
    s_lshl_b32 s68, s56, 7
    s_lshl_b32 s69, s57, 2
    s_add_u32 s68, s68, s69
    s_add_u32 s68, s68, %d
    v_mov_b32 v32, s68
    v_mov_b32 v33, s38
    s_mov_b64 exec, 1
    global_store_dword v32, v33, s[36:37] sc1
    s_mov_b64 exec, -1
    """ % PQF)
    a.label("L_b_noflag")
    a.vm = []
    stamp(a, cfg, 10)
    def pq_loads():
        for i in range(8):
            a.e(f"buffer_load_dwordx4 v[{PQR+4*i}:{PQR+4*i+3}], v3, s[40:43], s{8+i} offen sc1")
        for i in range(8):
            a.e(f"s_add_u32 m0, s66, {1024*i}")
            a.e("s_nop 0")
            a.e(f"buffer_load_dwordx4 v31, s[40:43], s{8+i} offen sc1 lds")
    a.e(f"""
    s_lshl_b32 s66, s39, 13
    s_add_u32 s66, s66, {PQL}
    s_mov_b32 s61, 0
    s_cmp_eq_u32 s39, 0
    s_cbranch_scc1 L_b_w0_poll
    """)
    a.label("L_b_pqf_poll")
    a.e(f"""
    global_load_dword v21, v2, s[36:37] sc1
    s_add_u32 s61, s61, 1
    s_waitcnt vmcnt(0)
    v_cmp_ne_u32 vcc, s38, v21
    s_cmp_gt_u32 s61, {SPIN_LIMIT}
    s_cbranch_scc1 L_b_pqf_go
    s_cbranch_vccz L_b_pqf_go
    s_sleep 1
    s_branch L_b_pqf_poll
    """)
    a.label("L_b_pqf_go")
    stamp(a, cfg, 11)
    pq_loads()
    a.e("s_branch L_b_sub_done")
    a.label("L_b_w0_poll")
    a.e(f"""
    global_load_dword v21, v2, s[36:37] sc1
    global_load_dword v20, v30, s[36:37] sc1
    s_add_u32 s61, s61, 1
    s_waitcnt vmcnt(0)
    v_xor_b32 v21, s38, v21
    v_xor_b32 v20, s38, v20
    v_or_b32 v21, v21, v20
    v_cmp_ne_u32 vcc, 0, v21
    s_cmp_gt_u32 s61, {SPIN_LIMIT}
    s_cbranch_scc1 L_b_w0_go
    s_cbranch_vccz L_b_w0_go
    s_sleep 1
    s_branch L_b_w0_poll
    """)
    a.label("L_b_w0_go")
    stamp(a, cfg, 11)
    a.label("L_b_sub_done")
    a.e("s_barrier")
    stamp(a, cfg, 12)
    def ka_loads():
        for k in range(8):
            a.e(f"buffer_load_dwordx4 v[{64+4*k}:{67+4*k}], v13, s[40:43], s{16+k} offen sc1")
        a.e("buffer_load_dwordx4 v[96:99], v14, s[40:43], 0 offen sc1")
    ka_loads()
    a.e("""
    s_mov_b32 s61, 0
    s_cmp_eq_u32 s39, 0
    s_cbranch_scc0 L_b_ka_w
    """)
    pq_loads()
    a.e("""
    s_waitcnt vmcnt(16)
    s_branch L_b_ka_chk
    """)
    a.label("L_b_kvf_poll")
    ka_loads()
    a.label("L_b_ka_w")
    a.e("s_waitcnt vmcnt(0)")
    a.label("L_b_ka_chk")
    a.e("s_add_u32 s61, s61, 1")
    tag_check(a, [65+2*q for q in range(18)])
    a.e(f"""
    s_cmp_gt_u32 s61, {SPIN_LIMIT}
    s_cbranch_scc1 L_b_kvf_go
    s_cbranch_vccnz L_b_kvf_poll
    """)
    a.label("L_b_kvf_go")
    a.vm = []
    for k in range(8):
        a.e(f"v_mov_b32 v{65+4*k}, v{66+4*k}")
        a.e(f"ds_write_b64 v15, v[{64+4*k}:{65+4*k}] offset:{KA + 2176*k}")
    a.e("v_mov_b32 v97, v98")
    a.e(f"ds_write_b64 v29, v[96:97] offset:{KA}")
    a.e(f"""
    v_and_b32 v22, 31, v1
    v_min_u32 v22, 16, v22
    v_lshlrev_b32 v22, 4, v22
    v_lshrrev_b32 v23, 5, v1
    v_mul_u32_u24 v23, 272, v23
    s_mul_i32 s68, s59, {16*544}
    v_add3_u32 v22, v22, v23, s68
    v_lshl_add_u32 v23, v1, 4, s66
    s_waitcnt vmcnt(0) lgkmcnt(0)
    s_barrier
    """)
    a.vm = []; a.lg = []
    stamp(a, cfg, 13)
    def kaf_read(i):
        a.e(f"ds_read_b128 v[{KAF[i%2]}:{KAF[i%2]+3}], v22 offset:{KA + 544*i}", lg=f"ka{i}")
    def out_mfma(i):
        o = OF[i % 2]
        for nt in range(2):
            w = WO + 8*i + 4*nt
            cc = "0" if i == 0 else f"v[{ACC+16*nt}:{ACC+16*nt+15}]"
            a.e(f"v_mfma_f32_32x32x16_bf16 v[{ACC+16*nt}:{ACC+16*nt+15}], v[{w}:{w+3}], v[{o}:{o+3}], {cc}")
    def num_mfma(i):
        a.wait_lg(f"ka{i}")
        p = PQR + 4*(i % 8)
        if i >= 8: a.wait_lg(f"pl{i}")
        a.e(f"v_mfma_f32_32x32x16_bf16 v[{CN[i%2]}:{CN[i%2]+15}], v[{KAF[i%2]}:{KAF[i%2]+3}], v[{p}:{p+3}], 0")
        if 4 <= i < 12:
            h = i + 4
            ph = PQR + 4*(h % 8)
            a.e(f"ds_read_b128 v[{ph}:{ph+3}], v23 offset:{1024*(h-8)}", lg=f"pl{h}")
    def out1(i, nt):
        o = OF[i % 2]
        w = WO + 8*i + 4*nt
        cc = "0" if i == 0 else f"v[{ACC+16*nt}:{ACC+16*nt+15}]"
        a.e(f"v_mfma_f32_32x32x16_bf16 v[{ACC+16*nt}:{ACC+16*nt+15}], v[{w}:{w+3}], v[{o}:{o+3}], {cc}")
    kaf_read(0); kaf_read(1)
    num_mfma(0)
    for i in range(16):
        if i + 1 < 16:
            num_mfma(i + 1)
        c = CN[i % 2]
        a.e(f"v_add_f32 v20, s64, v{c+8}")
        a.e(f"v_rcp_f32 v20, v20")
        if i + 2 < 16:
            kaf_read(i + 2)
        for jj in range(2): a.e(f"v_mul_f32 v{c+jj}, v{c+jj}, v20")
        if i >= 1: out1(i - 1, 0)
        for jj in range(2, 7): a.e(f"v_mul_f32 v{c+jj}, v{c+jj}, v20")
        if i >= 1: out1(i - 1, 1)
        a.e(f"v_mul_f32 v{c+7}, v{c+7}, v20")
        o = OF[i % 2]
        for m in range(4):
            a.e(f"v_cvt_pk_bf16_f32 v{o+m}, v{c+2*m}, v{c+2*m+1}")
    out1(15, 0); out1(15, 1)
    stamp(a, cfg, 14)
    a.e("""
    s_cmp_lg_u32 s3, 0
    s_cbranch_scc1 L_b_norst
    s_cmp_lg_u32 s39, 0
    s_cbranch_scc1 L_b_norst
    v_mov_b32 v20, 0
    s_mov_b64 exec, 1
    global_store_dword v20, v20, s[34:35] sc1
    s_mov_b64 exec, -1
    """)
    a.label("L_b_norst")
    a.vm = []
    PB = 0
    a.e(f"""
    v_and_b32 v22, 31, v1
    s_lshl_b32 s68, s58, 5
    v_add_u32 v22, s68, v22            ; token
    v_mul_u32_u24 v22, 272, v22
    v_lshrrev_b32 v23, 5, v1
    v_lshl_add_u32 v22, v23, 4, v22    ; + hh*16
    s_mul_i32 s68, s59, {64*272}
    s_add_u32 s68, s68, {PB}
    v_add_u32 v22, s68, v22
    v_lshrrev_b32 v23, 3, v0
    v_mul_u32_u24 v24, 272, v23
    v_and_b32 v25, 7, v0
    v_lshl_add_u32 v24, v25, 5, v24
    v_add_u32 v24, {PB}, v24
    s_lshl_b32 s68, s56, 6
    v_add_u32 v23, s68, v23
    v_lshlrev_b32 v23, 11, v23
    s_lshl_b32 s68, s57, 7
    s_add_u32 s68, s68, 1024
    v_lshl_add_u32 v23, v25, 4, v23
    v_add_u32 v23, s68, v23
    s_waitcnt lgkmcnt(0)
    s_barrier
    """)
    for nt in range(2):
        for q in range(4):
            r = ACC + 16*nt + 4*q
            a.e(f"ds_write_b128 v22, v[{r}:{r+3}] offset:{nt*128 + q*32}")
    a.e("s_waitcnt lgkmcnt(0)")
    a.e("s_barrier")
    for r in range(2):
        o = r*32*272
        a.e(f"ds_read_b128 v[{32+16*r}:{35+16*r}], v24 offset:{o}")
        a.e(f"ds_read_b128 v[{36+16*r}:{39+16*r}], v24 offset:{o+16}")
        a.e(f"ds_read_b128 v[{40+16*r}:{43+16*r}], v24 offset:{o+64*272}")
        a.e(f"ds_read_b128 v[{44+16*r}:{47+16*r}], v24 offset:{o+64*272+16}")
    for r in range(2):
        a.e(f"s_waitcnt lgkmcnt({4 if r == 0 else 0})")
        b = 32 + 16*r
        for jj in range(8):
            a.e(f"v_add_f32 v{b+jj}, v{b+jj}, v{b+8+jj}")
        for m in range(4):
            a.e(f"v_cvt_pk_bf16_f32 v{64+4*r+m}, v{b+2*m}, v{b+2*m+1}")
        if r == 1: a.e(f"v_add_u32 v23, {32*2048}, v23")
        a.e(f"global_store_dwordx4 v23, v[{64+4*r}:{67+4*r}], s[32:33]")
    stamps_out(a, cfg, 15)

TV = 240
def a_touch_setup(a, cfg):
    a.e(f"""
    s_lshr_b32 s62, s40, 1          ; tg
    s_and_b32 s63, s40, 1           ; hg
    s_lshl_b32 s64, s62, 9
    s_lshl_b32 s65, s41, 4          ; 16*jj
    s_add_u32 s64, s64, s65
    v_and_b32 v246, 15, v1
    v_lshrrev_b32 v247, 4, v1       ; 0..3
    v_add_u32 v240, s64, v246
    v_lshlrev_b32 v240, 10, v240
    v_lshl_add_u32 v240, v247, 7, v240
    v_add_u32 v241, 512, v240
    v_lshlrev_b32 v243, 6, v247
    s_lshl_b32 s66, s41, 1
    v_add_u32 v243, s66, v243
    v_bfe_u32 v248, v1, 3, 1
    v_add_u32 v243, v243, v248
    v_mul_u32_u24 v243, 3072, v243
    v_bfe_u32 v248, v1, 2, 1
    v_lshlrev_b32 v248, 10, v248
    v_add_u32 v243, v243, v248
    v_and_b32 v248, 3, v1
    v_lshlrev_b32 v248, 7, v248
    s_lshl_b32 s66, s63, 9
    s_add_u32 s67, s66, 1024
    v_add3_u32 v243, v243, v248, s67
    v_add_u32 v244, {256*3072}, v243
    v_lshrrev_b32 v249, 2, v1
    v_add_u32 v249, s65, v249
    v_mul_u32_u24 v242, 3072, v249
    v_add3_u32 v242, v242, v248, s66
    v_lshlrev_b32 v245, 10, v249
    v_add3_u32 v245, v245, v248, s66
    """)

def a_touch(a, cfg, plan):
    fl = cfg.touch_flags
    info = {"x0": (240, "s[26:27]"), "x1": (241, "s[26:27]"), "q": (242, "s[28:29]"),
            "k0": (243, "s[28:29]"), "k1": (244, "s[28:29]"), "o": (245, "s[30:31]")}
    for w, names in plan.items():
        L = a.newlabel("tch")
        a.e(f"s_cmp_eq_u32 s39, {w}")
        a.e(f"s_cbranch_scc0 {L}")
        for i, nm in enumerate(names):
            v, base = info[nm]
            a.e(f"global_load_dword v{250+i}, v{v}, {base} {fl}")
            a.vm.pop()
        a.label(L)

def role_A(a, cfg):
    a.label("L_roleA")
    a.e("""
    s_and_b32 s40, s3, 7
    s_lshr_b32 s41, s3, 3           ; j
    s_waitcnt lgkmcnt(0)
    """)
    if not cfg.do_A:
        if cfg.touch:
            a_touch_setup(a, cfg)
            a_touch(a, cfg, {0: ["x0"], 1: ["k0"], 2: ["x1"], 3: ["k1"]})
            a.e("s_waitcnt vmcnt(0)")
            a_touch(a, cfg, {1: ["q"], 3: ["o"]})
            a.e("s_waitcnt vmcnt(0)")
        a.e("s_branch L_end")
        return
    import role_a
    role_a.role_A(a, cfg)

def build(cfg):
    a = Asm()
    prologue(a, cfg)
    if cfg.do_B:
        role_B(a, cfg)
    a.e("s_branch L_end")
    a.vm = []
    role_A(a, cfg)
    a.label("L_end")
    a.e("s_endpgm")
    body = a.render()
    return body, a

HEADER = open("concat_heads__ssm_conv_s4__linear_attn_block__prompt.s.ref").read().split("; Override launch")[0]

def generate(path, cfg):
    body, a = build(cfg)
    txt = wrap(body, HEADER, 512, 256, 81920)
    open(path, "w").write(txt)
    return a

if __name__ == "__main__":
    sys.modules["kern"] = sys.modules["__main__"]
    cfg = Cfg()
    cfg.stamps = True
    if len(sys.argv) > 2:
        for kv in sys.argv[2:]:
            k, v = kv.split("=")
            setattr(cfg, k, int(v) if v.isdigit() else v)
    a = generate(sys.argv[1] if len(sys.argv) > 1 else "k_b1.s", cfg)
    print("nops inserted:", a.nnops)
```

```python
from asmlib import Asm
import kern as K

UT, YT = K.UT, K.YT
UTF, YTF = K.UTF, K.YTF
TILE = 3088
SPIN = K.SPIN_LIMIT
ROWB = 528
TB = [12288, 45056]
KC = [0, 1536]
NONCE_LDS = 3072
KD = [3088, 7200]
CP = [12288, 12288 + 16640]
UR = [45568, 45568 + 7600]
YP = 0
ROWS = list(range(8)) + [128+k for k in range(8)] + [256+2*k for k in range(4)] + [384+2*k for k in range(4)] + \
       [512, 516, 640, 644, 768, 772, 896, 900] + [1024+128*k for k in range(8)] + [2048]
assert len(ROWS) == 41

def fhex(x):
    import struct
    return hex(struct.unpack("<I", struct.pack("<f", x))[0])

USE_PK = False
def cmul(a, d, x, y, t):
    if USE_PK:
        a.e(f"v_pk_mul_f32 v[{t}:{t+1}], v[{x}:{x+1}], v[{y}:{y+1}] op_sel_hi:[1,0]")
        a.e(f"v_pk_fma_f32 v[{d}:{d+1}], v[{x}:{x+1}], v[{y}:{y+1}], v[{t}:{t+1}] op_sel:[1,1,0] op_sel_hi:[0,1,1] neg_lo:[1,0,0]")
    else:
        assert d not in (x, y)
        a.e(f"v_mul_f32 v{t}, v{x}, v{y}")
        a.e(f"v_mul_f32 v{t+1}, v{x+1}, v{y}")
        a.e(f"v_fma_f32 v{d}, -v{x+1}, v{y+1}, v{t}")
        a.e(f"v_fma_f32 v{d+1}, v{x}, v{y+1}, v{t+1}")

def poll_tags_loop(a, name, loads, tagregs):
    a.e("s_mov_b32 s61, 0")
    a.label(f"L_{name}_poll")
    for l in loads: a.e(l)
    a.e("s_add_u32 s61, s61, 1")
    a.e("s_waitcnt vmcnt(0)")
    K.tag_check(a, tagregs, acc="v9")
    a.e(f"""
    s_cmp_gt_u32 s61, {SPIN}
    s_cbranch_scc1 L_{name}_go
    s_cbranch_vccz L_{name}_go
    s_sleep 1
    s_branch L_{name}_poll
    """)
    a.label(f"L_{name}_go")
    a.vm = []


(A_TW, A_TR, A_UT0, A_UT1, A_TB, A_KM, A_C0, A_C1A, A_C1B, A_C2, A_DW, A_ER0, A_ER1, A_ZU, A_ZC, A_ZG,
 A_CR, A_CW, A_UG, A_UL, A_FU, A_FY, A_FUS, A_FYS, A_VA, A_VB, A_PW, A_OR, A_YG, A_YL, A_OUT) = (
 160, 161, 162, 163, 164, 168, 172, 173, 174, 175, 176, 177, 178, 179, 180, 181,
 182, 183, 184, 185, 186, 187, 188, 189, 190, 191, 192, 193, 194, 195, 199)

def role_A(a, cfg):
    global USE_PK
    USE_PK = cfg.pk
    st = lambda i: K.stamp(a, cfg, i)
    a.c("================= role A =================")
    if cfg.prioA: a.e(f"s_setprio {cfg.prioA}")
    a.e("""
    s_lshr_b32 s47, s39, 1
    s_and_b32 s48, s39, 1           ; w2
    s_lshl_b32 s49, s40, 6          ; 64 g
    s_lshl_b32 s50, s41, 1
    s_add_u32 s50, s50, s49         ; d0 = 64g + 2j
    s_add_u32 s51, s50, s47
    s_lshl_b32 s51, s51, 8
    v_and_b32 v2, 127, v0           ; n
    v_lshl_add_u32 v5, v2, 1, s51
    v_lshrrev_b32 v3, 4, v0         ; r''
    v_and_b32 v4, 15, v0            ; c8
    s_lshl_b32 s52, s41, 6
    v_lshl_add_u32 v6, v3, 2, s52   ; t0 = 64j + 4r''
    v_lshlrev_b32 v6, 10, v6
    s_lshl_b32 s53, s49, 1
    v_lshl_add_u32 v7, v4, 3, s53
    v_add_u32 v6, v6, v7            ; u offset
    s_lshl_b32 s45, s40, 2
    s_add_u32 s45, s45, 4
    v_mov_b32 v8, s45
    s_waitcnt lgkmcnt(0)
    """)
    st(1)
    a.e("""
    global_load_dwordx2 v[16:17], v6, s[8:9]
    global_load_dwordx2 v[18:19], v6, s[8:9] offset:1024
    global_load_dwordx2 v[20:21], v6, s[8:9] offset:2048
    global_load_dwordx2 v[22:23], v6, s[8:9] offset:3072
    global_load_ushort v10, v5, s[10:11]
    global_load_ushort v11, v5, s[12:13]
    global_load_ushort v12, v5, s[14:15]
    global_load_ushort v13, v5, s[16:17]
    global_load_ushort v14, v5, s[18:19]
    global_load_ushort v15, v5, s[20:21]
    global_load_dwordx2 v[24:25], v7, s[24:25]
    s_lshl_b32 s54, s50, 1
    s_add_u32 s54, s22, s54
    s_addc_u32 s55, s23, 0
    s_load_dword s56, s[54:55], 0
    s_cmp_lg_u32 s41, 0
    s_cbranch_scc1 L_a_nopub
    s_cmp_lg_u32 s39, 0
    s_cbranch_scc1 L_a_nopub
    s_memrealtime s[58:59]
    s_waitcnt lgkmcnt(0)
    s_or_b32 s58, s58, 8
    v_mov_b32 v9, s58
    s_mov_b64 exec, 1
    global_store_dword v8, v9, s[34:35] sc1
    s_mov_b64 exec, -1
    """)
    a.label("L_a_nopub")
    a.vm = []
    a.e(f"""
    v_and_b32 v26, 15, v1
    v_lshrrev_b32 v27, 4, v1
    v_bfe_u32 v28, v1, 2, 2
    v_and_b32 v29, 3, v1
    v_and_b32 v30, 31, v1
    v_lshrrev_b32 v31, 5, v1
    v_lshlrev_b32 v32, 2, v4
    v_mul_u32_u24 v32, 144, v32
    v_lshlrev_b32 v33, 3, v3
    v_sub_u32 v33, 120, v33
    v_add_u32 v32, v32, v33
    v_add_u32 v{A_TW}, {TILE}, v32
    v_lshrrev_b32 v32, 3, v1
    s_lshl_b32 s57, s39, 5
    v_add_u32 v32, s57, v32
    v_mul_u32_u24 v33, 144, v32
    v_and_b32 v34, 7, v1
    v_lshl_add_u32 v33, v34, 4, v33
    v_add_u32 v{A_TR}, {TILE}, v33
    v_add_u32 v32, s49, v32
    v_lshlrev_b32 v32, 12, v32
    v_lshl_add_u32 v32, v34, 4, v32
    s_sub_u32 s57, 31, s41
    s_lshl_b32 s57, s57, 7
    s_add_u32 s57, s57, {UT}
    v_add_u32 v{A_UT0}, s57, v32
    v_lshl_add_u32 v32, v27, 3, v28
    s_lshl_b32 s59, s47, 15
    s_add_u32 s59, s59, {TB[0]}
    v_and_b32 v33, 1, v2
    v_bfe_u32 v34, v2, 2, 1
    v_lshl_add_u32 v33, v34, 1, v33
    v_lshl_add_u32 v34, v2, 8, s59
    """)
    for cp in range(4):
        a.e(f"v_xor_b32 v35, {cp}, v33")
        a.e(f"v_lshl_add_u32 v{A_TB+cp}, v35, 5, v34")
    a.e(f"""
    v_lshlrev_b32 v34, 7, v32
    v_lshl_add_u32 v34, v29, 3, v34
    v_add_u32 v34, s59, v34
    v_lshrrev_b32 v33, 1, v28
    v_and_b32 v35, 1, v27
    v_lshl_add_u32 v33, v35, 1, v33
    """)
    for t in range(4):
        a.e(f"v_xor_b32 v35, {t}, v33")
        a.e(f"v_lshl_add_u32 v{A_KM+t}, v35, 5, v34")
    a.e(f"""
    s_mul_i32 s59, s47, {KC[1]-KC[0]}
    s_add_u32 s59, s59, {KC[0]}
    v_lshrrev_b32 v33, 1, v27
    v_lshlrev_b32 v33, 7, v33
    v_lshl_add_u32 v33, v26, 3, v33
    v_and_b32 v34, 1, v27
    v_lshl_add_u32 v33, v34, 2, v33
    v_lshl_add_u32 v{A_C0}, v33, 1, s59          ; tile 0
    v_lshlrev_b32 v33, 6, v27
    v_cmp_gt_u32 vcc, 2, v27
    v_lshlrev_b32 v34, 2, v26
    v_lshlrev_b32 v35, 1, v26
    v_cndmask_b32 v34, v35, v34, vcc
    v_add_u32 v33, v33, v34
    v_add_u32 v33, 256, v33
    v_mov_b32 v34, 32
    v_mov_b32 v35, 2
    v_cndmask_b32 v34, v34, v35, vcc
    v_add_u32 v34, v33, v34
    v_lshl_add_u32 v{A_C1A}, v33, 1, s59
    v_lshl_add_u32 v{A_C1B}, v34, 1, s59
    v_lshl_add_u32 v33, v27, 6, v26
    v_add_u32 v33, 512, v33
    v_lshl_add_u32 v{A_C2}, v33, 1, s59          ; tile 2
    v_lshlrev_b32 v33, 4, v0
    v_add_u32 v{A_DW}, 16, v33
    v_mov_b32 v{A_ER0}, v33
    v_lshlrev_b32 v34, 3, v0
    v_add_u32 v{A_ER1}, 256, v34
    s_cmp_eq_u32 s39, 1
    s_cbranch_scc0 L_a_ad1
    v_lshlrev_b32 v34, 2, v0
    v_add_u32 v{A_ER0}, 512, v34
    """)
    a.label("L_a_ad1")
    a.e(f"""
    s_cmp_ge_u32 s39, 2
    s_cbranch_scc0 L_a_ad2
    v_add_u32 v34, 384, v0
    v_lshlrev_b32 v{A_ER0}, 1, v34
    """)
    a.label("L_a_ad2")
    a.e(f"""
    v_mov_b32 v{A_ZU}, v33
    v_lshrrev_b32 v34, 2, v0
    v_mul_u32_u24 v34, 4160, v34
    v_and_b32 v35, 3, v0
    v_lshl_add_u32 v{A_ZC}, v35, 4, v34
    v_mul_u32_u24 v34, {KD[1]-KD[0]}, v0
    v_add_u32 v{A_ZG}, {KD[0]}, v34
    ; copies
    v_mov_b32 v{A_CR}, v33
    v_add_u32 v{A_CW}, 64, v33
    v_lshrrev_b32 v34, 7, v0                     ; cch
    v_add_u32 v35, s50, v34
    v_lshlrev_b32 v35, 12, v35
    v_lshl_add_u32 v35, v2, 4, v35
    v_add_u32 v{A_UG}, {UT}, v35
    v_lshrrev_b32 v35, 2, v2
    v_mul_u32_u24 v35, 80, v35
    v_and_b32 v36, 3, v2
    v_lshl_add_u32 v35, v36, 4, v35
    v_mul_u32_u24 v34, {UR[1]-UR[0]}, v34
    v_add_u32 v{A_UL}, v35, v34
    v_lshrrev_b32 v34, 3, v1
    v_lshlrev_b32 v34, 7, v34
    v_and_b32 v35, 7, v1
    v_lshl_add_u32 v34, v35, 2, v34
    s_lshl_b32 s58, s40, 10
    s_add_u32 s58, s58, {UTF}
    v_add_u32 v{A_FU}, s58, v34
    v_lshrrev_b32 v34, 3, v30
    v_lshlrev_b32 v34, 7, v34
    v_lshl_add_u32 v34, v35, 2, v34
    s_lshl_b32 s58, s40, 9
    s_add_u32 s58, s58, {YTF}
    v_add_u32 v{A_FY}, s58, v34
    s_lshl_b32 s57, s41, 1
    s_add_u32 s57, s57, s48
    s_lshr_b32 s59, s57, 3
    s_lshl_b32 s59, s59, 7
    s_and_b32 s57, s57, 7
    s_lshl_b32 s57, s57, 2
    s_add_u32 s57, s57, s59
    s_lshl_b32 s59, s40, 10
    s_add_u32 s57, s57, s59
    s_add_u32 s57, s57, {UTF}
    v_mov_b32 v{A_FUS}, s57
    s_lshr_b32 s59, s41, 3
    s_lshl_b32 s59, s59, 7
    s_and_b32 s57, s41, 7
    s_lshl_b32 s57, s57, 2
    s_add_u32 s57, s57, s59
    s_add_u32 s57, s57, s58
    v_mov_b32 v{A_FYS}, s57
    v_sub_u32 v34, 3, v30
    v_and_b32 v34, 3, v34
    v_mul_u32_u24 v35, 4160, v34
    v_add_u32 v36, v30, v34
    v_add_u32 v36, 9, v36
    v_lshlrev_b32 v37, 3, v31
    v_sub_u32 v36, v36, v37
    v_lshl_add_u32 v35, v36, 1, v35
    s_mul_i32 s57, s47, {CP[1]-CP[0]}
    s_lshl_b32 s58, s48, 10
    s_add_u32 s57, s57, s58
    s_add_u32 s57, s57, {CP[0]}
    v_add_u32 v{A_VA}, s57, v35
    v_sub_u32 v35, 31, v30
    v_mul_u32_u24 v35, 80, v35
    v_lshlrev_b32 v36, 4, v31
    v_sub_u32 v35, v35, v36
    v_add_u32 v35, 16, v35
    s_mul_i32 s57, s47, {UR[1]-UR[0]}
    s_mul_i32 s58, s48, {16*80}
    s_add_u32 s57, s57, s58
    s_add_u32 s57, s57, {UR[0]}
    v_add_u32 v{A_VB}, s57, v35
    v_mul_u32_u24 v35, 144, v30
    v_lshl_add_u32 v35, v31, 4, v35
    s_mul_i32 s57, s39, {64*144}
    v_add_u32 v{A_PW}, s57, v35
    v_lshrrev_b32 v35, 2, v0
    v_mul_u32_u24 v35, 144, v35
    v_and_b32 v36, 3, v0
    v_lshl_add_u32 v{A_OR}, v36, 5, v35
    s_lshl_b32 s57, s50, 12
    s_add_u32 s57, s57, {YT}
    v_lshl_add_u32 v{A_YG}, v0, 4, s57
    v_lshlrev_b32 v35, 2, v4
    v_add_u32 v35, s49, v35
    v_lshlrev_b32 v35, 12, v35
    v_lshl_add_u32 v35, v3, 3, v35
    s_lshl_b32 s59, s41, 7
    s_add_u32 s59, s59, {YT}
    v_add_u32 v{A_YL}, s59, v35
    v_add_u32 v{A_YL+1}, 4096, v{A_YL}
    v_add_u32 v{A_YL+2}, 8192, v{A_YL}
    v_add_u32 v{A_YL+3}, 12288, v{A_YL}
    v_lshlrev_b32 v35, 1, v6
    v_sub_u32 v{A_OUT}, v35, v7
    """)
    if cfg.touch:
        K.a_touch_setup(a, cfg)
    a.e("s_waitcnt vmcnt(0) lgkmcnt(0)")
    st(2)
    if cfg.touch:
        K.a_touch(a, cfg, {2: ["x1", "k0"], 3: ["k1"]})
    a.e("""
    s_mov_b32 s57, 0x05040100
    s_mov_b32 s58, 0x07060302
    """)
    for e in range(4):
        sel = "s57" if e % 2 == 0 else "s58"
        h = e // 2
        a.e(f"v_perm_b32 v{32+2*e}, v{20+h}, v{22+h}, {sel}")
        a.e(f"v_perm_b32 v{33+2*e}, v{16+h}, v{18+h}, {sel}")
        a.e(f"ds_write_b64 v{A_TW}, v[{32+2*e}:{33+2*e}] offset:{e*144}")
    a.e("""
    s_waitcnt lgkmcnt(0)
    s_barrier
    s_cmp_ge_u32 s39, 2
    s_cbranch_scc1 L_a_nout
    """)
    for i in range(4):
        a.e(f"ds_read_b128 v[{32+4*i}:{35+4*i}], v{A_TR} offset:{i*8*144}")
    for i in range(4):
        a.e(f"s_waitcnt lgkmcnt({3-i})")
        if i: a.e(f"v_add_u32 v{A_UT0}, 32768, v{A_UT0}")
        a.e(f"global_store_dwordx4 v{A_UT0}, v[{32+4*i}:{35+4*i}], s[36:37] sc1")
    a.e("global_load_dword v9, v8, s[34:35] sc1")
    a.label("L_a_nout")
    a.vm = []
    LOG2E = fhex(1.4426950408889634); INV2PI = fhex(0.15915494309189535)
    a.e(f"""
    s_lshr_b32 s59, s56, 16
    s_and_b32 s60, s56, 0xffff
    s_cmp_eq_u32 s47, 0
    s_cselect_b32 s59, s60, s59
    s_lshl_b32 s59, s59, 16
    v_mov_b32 v28, s59
    v_mul_f32 v29, {LOG2E}, v28
    v_mov_b32 v30, {LOG2E}
    v_fma_f32 v30, v28, v30, -v29
    v_fmac_f32 v30, 0x32a57060, v28
    v_exp_f32 v29, v29
    v_mul_f32 v30, {fhex(0.6931471805599453)}, v30
    v_fma_f32 v29, v29, v30, v29
    v_cvt_pk_bf16_f32 v29, v29, v29
    v_lshlrev_b32 v29, 16, v29
    """)
    for i in range(6): a.e(f"v_lshlrev_b32 v{10+i}, 16, v{10+i}")
    a.e(f"""
    v_mul_f32 v10, v29, v10          ; a_re
    v_mul_f32 v11, v29, v11          ; a_im
    v_mul_f32 v12, v29, v12          ; dB_re
    v_mul_f32 v13, v29, v13          ; dB_im
    v_mul_f32 v10, {LOG2E}, v10      ; ar2
    v_mul_f32 v11, {INV2PI}, v11     ; ai2
    """)
    P = {}
    nxtp = [50]
    def pair(name):
        P[name] = nxtp[0]; nxtp[0] += 2
        return P[name]
    TMP = [28, 30]
    ti = [0]
    def mul(dn, xn, yn):
        d = P.get(dn) or pair(dn)
        t = TMP[ti[0] % 2]; ti[0] += 1
        cmul(a, d, P[xn], P[yn], t)
    pair("X0"); cmul(a, P["X0"], 14, 12, 28)
    for x in (1, 8, 128, 256, 512, 1024):
        d = pair(f"E{x}")
        if x == 1:
            a.e(f"v_exp_f32 v6, v10")
            a.e(f"v_fract_f32 v7, v11")
        else:
            a.e(f"v_mul_f32 v6, {fhex(float(x))}, v10")
            a.e(f"v_mul_f32 v7, {fhex(float(x))}, v11")
            a.e(f"v_exp_f32 v6, v6")
            a.e(f"v_fract_f32 v7, v7")
        a.e(f"v_cos_f32 v26, v7")
        a.e(f"v_sin_f32 v27, v7")
        a.e(f"v_mul_f32 v{d}, v6, v26")
        a.e(f"v_mul_f32 v{d+1}, v6, v27")
    if cfg.dbgT: st(4)
    OUT = [120, 128]
    oc = [0]
    def put_chunk(q, names, neg):
        o = OUT[oc[0] % 2]; oc[0] += 1
        sg = "-" if neg else ""
        for m in range(4):
            x, y = P[names[2*m]], P[names[2*m+1]]
            a.e(f"v_cvt_pk_bf16_f32 v{o+m}, v{x}, v{y}")
            a.e(f"v_cvt_pk_bf16_f32 v{o+4+m}, {sg}v{x+1}, {sg}v{y+1}")
        ad = A_TB + (q >> 1)
        a.e(f"ds_write_b128 v{ad}, v[{o}:{o+3}] offset:{(q & 1)*16}")
        a.e(f"ds_write_b128 v{ad}, v[{o+4}:{o+7}] offset:{128 + (q & 1)*16}")
    pair("ONE")
    a.e(f"v_mov_b32 v{P['ONE']}, 1.0")
    a.e(f"v_mov_b32 v{P['ONE']+1}, 0")
    for k in range(8): pair(f"S{k}")
    for k in range(1, 8):
        mul(f"X{k}", f"X{k-1}", "E1")
    put_chunk(0, [f"X{k}" for k in range(8)], True)
    P["Y8"] = P["E8"]
    mul("Y16", "Y8", "Y8"); mul("Y24", "Y16", "Y8"); mul("Y32", "Y16", "Y16")
    mul("Y40", "Y32", "Y8"); mul("Y48", "Y32", "Y16"); mul("Y56", "Y32", "Y24")
    put_chunk(6, ["ONE", "Y8", "Y16", "Y24", "Y32", "Y40", "Y48", "Y56"], False)
    if cfg.dbgT: st(6)
    mul("S0", "Y32", "Y32")
    for jj in range(1, 8): mul(f"S{jj}", "S0", f"Y{8*jj}")
    put_chunk(7, [f"S{k}" for k in range(8)], False)
    for k in range(8): mul(f"S{k}", f"X{k}", "E128")
    put_chunk(1, [f"S{k}" for k in range(8)], True)
    for i_, k in enumerate((0, 2, 4, 6)):
        mul(f"S{i_}", f"X{k}", "E256")
    for i_ in range(4):
        mul(f"S{4+i_}", f"S{i_}", "E128")
    put_chunk(2, [f"S{k}" for k in range(8)], True)
    mul("S0", "X0", "E512"); mul("S1", "X4", "E512")
    for i_ in range(2, 8): mul(f"S{i_}", f"S{i_-2}", "E128")
    put_chunk(3, [f"S{k}" for k in range(8)], True)
    mul("S0", "X0", "E1024")
    for i_ in range(1, 8): mul(f"S{i_}", f"S{i_-1}", "E128")
    pair("XL"); mul("XL", "S0", "E1024")
    put_chunk(4, [f"S{k}" for k in range(8)], True)
    a.e(f"v_cvt_pk_bf16_f32 v120, v{P['XL']}, -v{P['XL']+1}")
    a.e(f"ds_write_b16 v{A_TB+2}, v120 offset:16")
    a.e(f"ds_write_b16_d16_hi v{A_TB+2}, v120 offset:{128+16}")
    assert nxtp[0] <= 120, nxtp
    if cfg.dbgT: st(5)
    a.e(f"""
    s_cmp_ge_u32 s39, 2
    s_cbranch_scc1 L_a_nofl
    s_mov_b32 s61, 0
    s_waitcnt vmcnt(0)
    v_readfirstlane_b32 s38, v9
    s_cmp_lg_u32 s38, 0
    s_cbranch_scc1 L_a_nok
    """)
    a.label("L_a_npoll")
    a.e(f"""
    global_load_dword v9, v8, s[34:35] sc1
    s_waitcnt vmcnt(0)
    v_readfirstlane_b32 s38, v9
    s_add_u32 s61, s61, 1
    s_cmp_gt_u32 s61, {SPIN}
    s_cbranch_scc1 L_a_nok
    s_cmp_eq_u32 s38, 0
    s_cbranch_scc1 L_a_npoll
    """)
    a.label("L_a_nok")
    a.e(f"""
    s_getreg_b32 s57, hwreg(HW_REG_XCC_ID)
    s_and_b32 s57, s57, 7
    s_and_b32 s58, s38, 0xfffffff8
    s_or_b32 s57, s57, s58
    v_mov_b32 v9, s57
    s_mov_b64 exec, 1
    global_store_dword v{A_FUS}, v9, s[36:37] sc1
    s_mov_b64 exec, -1
    """)
    a.label("L_a_nofl")
    a.vm = []
    if cfg.dbgT: st(7)
    a.e("s_waitcnt lgkmcnt(0)")
    if cfg.dbgT: st(8)
    a.e("s_barrier")
    st(3)
    if cfg.touch:
        K.a_touch(a, cfg, {2: ["q"], 3: ["o"]})
    YF, XF, D0 = 32, 64, 128
    def trfrag(dst, addr, s):
        a.e(f"ds_read_b64_tr_b16 v[{dst}:{dst+1}], v{addr} offset:{s*4096}")
        a.e(f"ds_read_b64_tr_b16 v[{dst+2}:{dst+3}], v{addr} offset:{s*4096 + 512}")
    a.e("""
    s_cmp_eq_u32 s48, 0
    s_cbranch_scc0 L_a_k2
    """)
    a.lg = []
    for s in range(8):
        trfrag(YF+4*s, A_KM+3, s)
        for t in range(2): trfrag(XF+32*t+4*s, A_KM+t, s)
    for s in range(8):
        a.e(f"s_waitcnt lgkmcnt({min(15, 6*(7-s))})")
        for t in range(2):
            c = "0" if s == 0 else f"v[{D0+4*t}:{D0+4*t+3}]"
            a.e(f"v_mfma_f32_16x16x32_bf16 v[{D0+4*t}:{D0+4*t+3}], v[{XF+32*t+4*s}:{XF+32*t+4*s+3}], v[{YF+4*s}:{YF+4*s+3}], {c}")
    a.e(f"""
    v_cvt_pk_bf16_f32 v136, v{D0}, v{D0+1}
    v_cvt_pk_bf16_f32 v137, v{D0+2}, v{D0+3}
    v_cvt_pk_bf16_f32 v138, v{D0+4}, v{D0+5}
    v_cvt_pk_bf16_f32 v139, v{D0+6}, v{D0+7}
    ds_write_b64 v{A_C0}, v[136:137]
    ds_write_b32 v{A_C1A}, v138
    ds_write_b32 v{A_C1B}, v139
    s_branch L_a_kdone
    """)
    a.label("L_a_k2")
    for s in range(8):
        trfrag(YF+4*s, A_KM+3, s)
        trfrag(XF+4*s, A_KM+2, s)
    for s in range(8):
        a.e(f"s_waitcnt lgkmcnt({min(15, 4*(7-s))})")
        c = "0" if s == 0 else f"v[{D0}:{D0+3}]"
        a.e(f"v_mfma_f32_16x16x32_bf16 v[{D0}:{D0+3}], v[{XF+4*s}:{XF+4*s+3}], v[{YF+4*s}:{YF+4*s+3}], {c}")
    a.e(f"""
    v_cvt_pk_bf16_f32 v136, v{D0}, v{D0+1}
    v_cvt_pk_bf16_f32 v137, v{D0+2}, v{D0+3}
    ds_write_b16 v{A_C2}, v136
    ds_write_b16_d16_hi v{A_C2}, v136 offset:32
    ds_write_b16 v{A_C2}, v137 offset:64
    ds_write_b16_d16_hi v{A_C2}, v137 offset:96
    """)
    a.label("L_a_kdone")
    a.e(f"""
    s_mov_b32 s57, 0x01000100
    s_mov_b32 s58, 0x03020302
    s_mov_b32 s59, 0x05040302
    s_mov_b32 s63, 0x05040100
    v_mov_b32 v48, 0
    v_mov_b32 v49, 0
    v_mov_b32 v50, 0
    v_mov_b32 v51, 0
    s_waitcnt lgkmcnt(0)
    s_barrier
    """)
    a.lg = []
    if not cfg.dbgT: st(4)
    a.e("""
    s_cmp_eq_u32 s39, 0
    s_cbranch_scc1 L_a_e0
    s_cmp_eq_u32 s39, 1
    s_cbranch_scc1 L_a_e2
    """)
    for c in range(2):
        a.e(f"ds_read_u16 v{32+2*c}, v{A_ER0} offset:{KC[c]}")
        a.e(f"ds_read_u16 v{33+2*c}, v{A_ER0} offset:{KC[c]+2}")
    a.e(f"""
    v_and_b32 v28, 1, v0
    v_cmp_eq_u32 vcc, 0, v28
    s_waitcnt lgkmcnt(0)
    """)
    for c in range(2):
        c0, c1 = 32+2*c, 33+2*c
        o = 40 + 4*c
        a.e(f"v_perm_b32 v{o}, v{c1}, v{c0}, s57")
        a.e(f"v_perm_b32 v{o+3}, v{c0}, v{c1}, s57")
        a.e(f"v_perm_b32 v{o+2}, v{c1}, v{c0}, s63")
        a.e(f"v_mov_b32 v{o+1}, v{o}")
        a.e(f"v_cndmask_b32 v{o+2}, v{o+3}, v{o+2}, vcc")
    a.e("s_branch L_a_ew")
    a.label("L_a_e2")
    for c in range(2):
        a.e(f"ds_read_b32 v{32+2*c}, v{A_ER0} offset:{KC[c]}")
        a.e(f"ds_read_b32 v{33+2*c}, v{A_ER0} offset:{KC[c]+4}")
    a.e("s_waitcnt lgkmcnt(0)")
    for c in range(2):
        A_, B_ = 32+2*c, 33+2*c
        o = 40 + 4*c
        a.e(f"v_perm_b32 v{o}, v{A_}, v{A_}, s57")
        a.e(f"v_mov_b32 v{o+1}, v{A_}")
        a.e(f"v_perm_b32 v{o+2}, v{A_}, v{A_}, s58")
        a.e(f"v_perm_b32 v{o+3}, v{B_}, v{B_}, s57")
    a.e("s_branch L_a_ew")
    a.label("L_a_e0")
    for c in range(2):
        a.e(f"ds_read_b128 v[{40+4*c}:{43+4*c}], v{A_ER0} offset:{KC[c]}")
        a.e(f"ds_read_b64 v[{32+4*c}:{33+4*c}], v{A_ER1} offset:{KC[c]}")
        a.e(f"ds_read_b32 v{34+4*c}, v{A_ER1} offset:{KC[c]+8}")
    a.e("""
    v_cmp_le_u32 vcc, 32, v0
    s_waitcnt lgkmcnt(0)
    """)
    for c in range(2):
        A_, B_, C_ = 32+4*c, 33+4*c, 34+4*c
        o = 40 + 4*c
        a.e(f"v_perm_b32 v52, v{A_}, v{A_}, s57")
        a.e(f"v_perm_b32 v53, v{B_}, v{A_}, s59")
        a.e(f"v_perm_b32 v54, v{B_}, v{B_}, s57")
        a.e(f"v_perm_b32 v55, v{C_}, v{B_}, s59")
        for q in range(4):
            a.e(f"v_cndmask_b32 v{o+q}, v{o+q}, v{52+q}, vcc")
    a.label("L_a_ew")
    for c in range(2):
        a.e(f"ds_write_b128 v{A_DW}, v[{40+4*c}:{43+4*c}] offset:{KD[c]}")
    a.e(f"""
    v_cmp_gt_u32 vcc, 160, v0
    s_and_b64 exec, exec, vcc
    ds_write_b128 v{A_ZU}, v[48:51] offset:{UR[0] + 64*80}
    ds_write_b128 v{A_ZU}, v[48:51] offset:{UR[1] + 64*80}
    v_cmp_gt_u32 vcc, 32, v0
    s_and_b64 exec, exec, vcc
    ds_write_b128 v{A_ZC}, v[48:51] offset:{CP[0]}
    v_cmp_gt_u32 vcc, 2, v0
    s_and_b64 exec, exec, vcc
    ds_write_b128 v{A_ZG}, v[48:51]
    s_mov_b64 exec, -1
    """)
    a.e(f"""
    s_cmp_eq_u32 s39, 1
    s_cbranch_scc0 L_a_uf0
    global_load_dword v30, v{A_FU}, s[36:37] sc1
    """)
    a.label("L_a_uf0")
    a.e("""
    s_waitcnt lgkmcnt(0)
    s_barrier
    """)
    a.vm = []
    if not cfg.dbgT: st(5)
    for c in range(2):
        b = 32 + 16*c
        a.e(f"ds_read_b64 v[{b}:{b+1}], v{A_CR} offset:{KD[c] + 8}")
        a.e(f"ds_read_b128 v[{b+4}:{b+7}], v{A_CR} offset:{KD[c] + 16}")
    for c in range(2):
        a.e(f"s_waitcnt lgkmcnt({2 - 2*c})" if c == 0 else "s_waitcnt lgkmcnt(4)")
        b = 32 + 16*c
        n0, n1, n2, n3, n4, n5 = b, b+1, b+4, b+5, b+6, b+7
        m = b + 8
        t1 = 96 + 8*c
        base = CP[c]
        a.e(f"ds_write_b128 v{A_CW}, v[{n2}:{n5}] offset:{base}")
        a.e(f"v_alignbit_b32 v{m}, v{n1}, v{n0}, 16")
        for q, (hi, lo) in enumerate(((n2, n1), (n3, n2), (n4, n3))):
            a.e(f"v_alignbit_b32 v{m+1+q}, v{hi}, v{lo}, 16")
        a.e(f"ds_write_b128 v{A_CW}, v[{m}:{m+3}] offset:{base + 3*4160}")
        for q, (hi, lo) in enumerate(((n2, n1), (n3, n2), (n4, n3), (n5, n4))):
            a.e(f"v_alignbit_b32 v{t1+q}, v{hi}, v{lo}, 16")
        a.e(f"ds_write_b128 v{A_CW}, v[{t1}:{t1+3}] offset:{base + 4160}")
        for q, r in enumerate((n1, n2, n3, n4)): a.e(f"v_mov_b32 v{t1+4+q}, v{r}")
        a.e(f"ds_write_b128 v{A_CW}, v[{t1+4}:{t1+7}] offset:{base + 2*4160}")
    if not cfg.dbgT: st(6)
    a.e(f"""
    s_cmp_eq_u32 s39, 1
    s_cbranch_scc0 L_a_utf_go
    s_and_b32 s58, s38, 0xfffffff8
    s_mov_b32 s61, 0
    s_branch L_a_utf_chk
    """)
    a.label("L_a_utf_poll")
    a.e(f"""
    s_sleep 2
    global_load_dword v30, v{A_FU}, s[36:37] sc1
    """)
    a.label("L_a_utf_chk")
    a.e(f"""
    s_add_u32 s61, s61, 1
    s_waitcnt vmcnt(0)
    v_and_b32 v31, 0xfffffff8, v30
    v_cmp_ne_u32 vcc, s58, v31
    s_cmp_gt_u32 s61, {SPIN}
    s_cbranch_scc1 L_a_utf_ok
    s_cbranch_vccnz L_a_utf_poll
    """)
    a.label("L_a_utf_ok")
    a.e(f"""
    s_getreg_b32 s57, hwreg(HW_REG_XCC_ID)
    s_and_b32 s57, s57, 7
    v_and_b32 v31, 7, v30
    v_cmp_ne_u32 vcc, s57, v31
    s_cmp_eq_u64 vcc, 0
    s_cselect_b32 s57, 1, 0
    v_mov_b32 v31, s57
    v_mov_b32 v30, 0
    ds_write_b32 v30, v31 offset:{NONCE_LDS+4}
    """)
    a.label("L_a_utf_go")
    a.e(f"""
    s_waitcnt lgkmcnt(0)
    s_barrier
    global_load_dwordx4 v[64:67], v{A_UG}, s[36:37] sc1
    global_load_dwordx4 v[68:71], v{A_UG}, s[36:37] offset:2048 sc1
    v_mov_b32 v30, 0
    ds_read_b32 v31, v30 offset:{NONCE_LDS+4}
    """)
    for e in range(4):
        h, hi = e // 2, e % 2
        a.e(f"v_{'and_b32' if hi else 'lshlrev_b32'} v{80+e}, {'0xffff0000' if hi else '16'}, v{24+h}")
    for rho in range(4):
        for e in range(4):
            h, hi = e // 2, e % 2
            a.e(f"v_{'and_b32' if hi else 'lshlrev_b32'} v{208+4*rho+e}, {'0xffff0000' if hi else '16'}, v{16+2*rho+h}")
            a.e(f"v_mul_f32 v{208+4*rho+e}, v{208+4*rho+e}, v{80+e}")
        for h in range(2):
            a.e(f"v_cvt_pk_bf16_f32 v{84+h}, v{208+4*rho+2*h}, v{208+4*rho+2*h+1}")
        for h in range(2):
            a.e(f"v_lshlrev_b32 v{208+4*rho+2*h}, 16, v{84+h}")
            a.e(f"v_and_b32 v{208+4*rho+2*h+1}, 0xffff0000, v{84+h}")
    a.e(f"""
    s_waitcnt vmcnt(0) lgkmcnt(0)
    v_readfirstlane_b32 s46, v31
    """)
    a.vm = []
    if not cfg.dbgT: st(7)
    a.e(f"""
    ds_write_b128 v{A_UL}, v[64:67] offset:{UR[0]}
    ds_write_b128 v{A_UL}, v[68:71] offset:{UR[0] + 32*80}
    s_waitcnt lgkmcnt(0)
    s_barrier
    """)
    if not cfg.dbgT: st(8)
    a.e(f"s_setprio {cfg.prioA2}")
    ACC0, ACC1 = 128, 144
    NB = 3
    FR = [32 + 16*i for i in range(NB)]
    steps = [(dl, hf) for dl in range(16) for hf in range(2)]
    def reads(i):
        dl, hf = steps[i]
        f = FR[i % NB]
        ao = 64*dl + 32*(1-hf)
        bo = 80*dl + 32*(1-hf)
        t = f"cv{i}"
        a.e(f"ds_read_b64 v[{f}:{f+1}], v{A_VA} offset:{ao}", lg=t)
        a.e(f"ds_read_b64 v[{f+2}:{f+3}], v{A_VA} offset:{ao+8}", lg=t)
        a.e(f"ds_read_b128 v[{f+8}:{f+11}], v{A_VB} offset:{bo+2560}", lg=t)
        a.e(f"ds_read_b128 v[{f+12}:{f+15}], v{A_VB} offset:{bo}", lg=t)
        a.e(f"ds_read_b64 v[{f+4}:{f+5}], v{A_VA} offset:{ao+2048}", lg=t)
        a.e(f"ds_read_b64 v[{f+6}:{f+7}], v{A_VA} offset:{ao+2056}", lg=t)
    a.lg = []
    reads(0); reads(1)
    for i in range(32):
        f = FR[i % NB]
        a.wait_lg(f"cv{i}")
        c0 = "0" if i == 0 else f"v[{ACC0}:{ACC0+15}]"
        c1 = "0" if i == 0 else f"v[{ACC1}:{ACC1+15}]"
        nxt = []
        a.e(f"v_mfma_f32_32x32x16_bf16 v[{ACC0}:{ACC0+15}], v[{f}:{f+3}], v[{f+8}:{f+11}], {c0}")
        if i + 2 < 32: reads(i + 2)
        a.e(f"v_mfma_f32_32x32x16_bf16 v[{ACC1}:{ACC1+15}], v[{f}:{f+3}], v[{f+12}:{f+15}], {c1}")
        a.e(f"v_mfma_f32_32x32x16_bf16 v[{ACC1}:{ACC1+15}], v[{f+4}:{f+7}], v[{f+8}:{f+11}], v[{ACC1}:{ACC1+15}]")
    st(9)
    a.e(f"s_setprio {cfg.prioA3}")
    a.e("""
    s_waitcnt lgkmcnt(0)
    s_barrier
    """)
    for tau, acc in ((0, ACC0), (1, ACC1)):
        for q in range(4):
            a.e(f"ds_write_b128 v{A_PW}, v[{acc+4*q}:{acc+4*q+3}] offset:{YP + tau*32*144 + q*32}")
    a.e("""
    s_waitcnt lgkmcnt(0)
    s_barrier
    """)
    for c in range(2):
        o = YP + (c*2)*64*144
        b = 32 + 16*c
        a.e(f"ds_read_b128 v[{b}:{b+3}], v{A_OR} offset:{o}")
        a.e(f"ds_read_b128 v[{b+8}:{b+11}], v{A_OR} offset:{o + 64*144}")
        a.e(f"ds_read_b128 v[{b+4}:{b+7}], v{A_OR} offset:{o + 16}")
        a.e(f"ds_read_b128 v[{b+12}:{b+15}], v{A_OR} offset:{o + 64*144 + 16}")
    for c in range(2):
        a.e(f"s_waitcnt lgkmcnt({4-4*c})")
        b = 32 + 16*c
        for q in range(8): a.e(f"v_add_f32 v{b+q}, v{b+q}, v{b+8+q}")
        for m in range(4): a.e(f"v_cvt_pk_bf16_f32 v{64+4*c+m}, v{b+2*m}, v{b+2*m+1}")
    a.e(f"""
    v_add_u32 v29, 4096, v{A_YG}
    s_cmp_eq_u32 s46, 0
    s_cbranch_scc1 L_a_yg
    global_store_dwordx4 v{A_YG}, v[64:67], s[36:37]
    global_store_dwordx4 v29, v[68:71], s[36:37]
    s_branch L_a_yd
    """)
    a.label("L_a_yg")
    a.e(f"""
    global_store_dwordx4 v{A_YG}, v[64:67], s[36:37] sc1
    global_store_dwordx4 v29, v[68:71], s[36:37] sc1
    """)
    a.label("L_a_yd")
    a.e(f"""
    s_waitcnt vmcnt(0)
    s_barrier
    """)
    st(10)
    a.e(f"""
    s_cmp_lg_u32 s39, 1
    s_cbranch_scc1 L_a_ytf_go
    v_mov_b32 v28, s38
    s_mov_b64 exec, 1
    s_cmp_eq_u32 s46, 0
    s_cbranch_scc1 L_a_yfg
    global_store_dword v{A_FYS}, v28, s[36:37]
    s_branch L_a_yfd
    """)
    a.label("L_a_yfg")
    a.e(f"global_store_dword v{A_FYS}, v28, s[36:37] sc1")
    a.label("L_a_yfd")
    a.e("s_mov_b64 exec, -1")
    a.e("s_mov_b32 s61, 0")
    a.label("L_a_ytf_poll")
    a.e(f"""
    global_load_dword v29, v{A_FY}, s[36:37] sc1
    s_add_u32 s61, s61, 1
    s_waitcnt vmcnt(0)
    v_cmp_ne_u32 vcc, s38, v29
    s_cmp_gt_u32 s61, {SPIN}
    s_cbranch_scc1 L_a_ytf_go
    s_cbranch_vccz L_a_ytf_go
    s_sleep 1
    s_branch L_a_ytf_poll
    """)
    a.label("L_a_ytf_go")
    a.e(f"""
    s_barrier
    global_load_dwordx2 v[64:65], v{A_YL}, s[36:37] sc1
    global_load_dwordx2 v[66:67], v{A_YL+1}, s[36:37] sc1
    global_load_dwordx2 v[68:69], v{A_YL+2}, s[36:37] sc1
    global_load_dwordx2 v[70:71], v{A_YL+3}, s[36:37] sc1
    s_waitcnt vmcnt(0)
    """)
    st(11)
    for rho in range(4):
        m, hi = rho // 2, rho % 2
        for e in range(4):
            src = 64 + 2*e + m
            a.e(f"v_{'and_b32' if hi else 'lshlrev_b32'} v{84+e}, {'0xffff0000' if hi else '16'}, v{src}")
        for e in range(4):
            a.e(f"v_add_f32 v{84+e}, v{84+e}, v{208+4*rho+e}")
        a.e(f"v_cvt_pk_bf16_f32 v{88+2*rho}, v84, v85")
        a.e(f"v_cvt_pk_bf16_f32 v{89+2*rho}, v86, v87")
        if rho == 2: a.e(f"v_add_u32 v{A_OUT}, 4096, v{A_OUT}")
        a.e(f"global_store_dwordx2 v{A_OUT}, v[{88+2*rho}:{89+2*rho}], s[32:33] offset:{2048*(rho % 2)}")
    a.e("""
    s_cmp_lg_u32 s41, 0
    s_cbranch_scc1 L_a_norst
    s_cmp_lg_u32 s39, 1
    s_cbranch_scc1 L_a_norst
    v_mov_b32 v8, s45
    v_mov_b32 v9, 0
    s_mov_b64 exec, 1
    global_store_dword v8, v9, s[34:35] sc1
    s_mov_b64 exec, -1
    """)
    a.label("L_a_norst")
    st(12)
    K.stampval(a, cfg, 13, "s46")
    K.stamps_out(a, cfg, 14)
```

```python
import sys
from asmlib import Asm, wrap

UT   = 0
YT   = 4 << 20
PQ   = 8 << 20
PQF  = 10 << 20
KVP  = (10 << 20) + (64 << 10)
KVF  = 12 << 20
UTF  = (12 << 20) + (64 << 10)
YTF  = (12 << 20) + (80 << 10)
KVBLK = 2176
LOG2E = 0x3fb8aa3b
EPS   = 0x358637bd
SPIN_LIMIT = 200000

class Cfg:
    do_A = True
    do_B = True
    do_B2 = True
    touch = True
    dual = False
    x_nowrite = False
    prioA = 0
    prioA2 = 0
    dbgT = 0
    prioA3 = 0
    prioB = 0
    pk = False
    b_exit = False
    touch_flags = ""
    early_release = True
    dma_early = False
    last_dma = 40
    late_pre = 0
    touch_mode = "late"
    stamps = False

STAMP_BASE = 14 << 20
def stamp(a, cfg, i):
    if cfg.stamps:
        a.e(f"s_memtime s[{70+2*i}:{71+2*i}]")
def stampval(a, cfg, i, sreg):
    if cfg.stamps:
        a.e("s_waitcnt lgkmcnt(0)")
        a.e(f"s_add_u32 s{70+2*i}, {sreg}, s70")
def stamps_out(a, cfg, n, vt=22):
    if not cfg.stamps: return
    a.e("s_memrealtime s[68:69]")
    a.e("s_waitcnt lgkmcnt(0) vmcnt(0)")
    a.vm = []
    for i in range(1, n):
        a.e(f"s_sub_u32 s{70+2*i}, s{70+2*i}, s70")
    a.e(f"""
    s_lshl_b32 s61, s2, 2
    s_add_u32 s61, s61, s39
    s_lshl_b32 s61, s61, 6
    s_add_u32 s61, s61, {STAMP_BASE}
    v_mov_b32 v{vt}, s61
    s_mov_b64 exec, 1
    """)
    for i in range(16):
        src = f"s{70+2*i}" if (0 < i < n) else ("s68" if i == 15 else ("s100" if i == 0 else "0"))
        a.e(f"v_mov_b32 v{vt+1}, {src}")
        a.e(f"global_store_dword v{vt}, v{vt+1}, s[36:37] offset:{4*i}")
        a.e("s_nop 1")
    a.e("s_waitcnt vmcnt(0)")
    a.e("s_mov_b64 exec, -1")
    a.vm = []

def prologue(a, cfg):
    if cfg.stamps:
        a.e("s_memrealtime s[100:101]")
        a.e("s_memtime s[70:71]")
    a.e("""
    s_cmp_ge_u32 s2, 512
    s_cbranch_scc1 L_end
    s_load_dwordx16 s[8:23], s[0:1], 0
    s_load_dwordx8 s[24:31], s[0:1], 64
    s_load_dwordx4 s[32:35], s[0:1], 96
    s_load_dwordx2 s[36:37], s[0:1], 112
    v_lshrrev_b32 v1, 6, v0
    v_readfirstlane_b32 s39, v1
    v_and_b32 v1, 63, v0
    s_and_b32 s3, s2, 255
    s_cmp_lt_u32 s2, 256
    s_cbranch_scc1 L_roleA
    """)

def poll_nonce(a, vtmp, vaddr0, first_tag=None):
    L = a.newlabel("nonce"); Lx = a.newlabel("nonce_ok")
    if first_tag:
        a.wait_vm(first_tag)
    else:
        a.e(f"global_load_dword {vtmp}, {vaddr0}, s[34:35] sc1")
        a.wait_vm_all()
    a.e(f"v_readfirstlane_b32 s38, {vtmp}")
    a.e(f"""
    s_cmp_lg_u32 s38, 0
    s_cbranch_scc1 {Lx}
    s_mov_b32 s61, 0
    """)
    a.label(L)
    a.e(f"""
    global_load_dword {vtmp}, {vaddr0}, s[34:35] sc1
    s_waitcnt vmcnt(0)
    v_readfirstlane_b32 s38, {vtmp}
    s_add_u32 s61, s61, 1
    s_cmp_gt_u32 s61, {SPIN_LIMIT}
    s_cbranch_scc1 {Lx}
    s_cmp_eq_u32 s38, 0
    s_cbranch_scc1 {L}
    """)
    a.vm.pop()
    a.label(Lx)

def phi_instrs(acc, tmp, out, zsum=None):
    L = []
    for i in range(16):
        L.append(f"v_mul_f32 v{tmp+i}, s62, v{acc+i}")
    for i in range(16):
        L.append(f"v_exp_f32 v{tmp+i}, v{tmp+i} clamp")
        L.append(f"v_max_f32 v{acc+i}, s64, v{acc+i}")
    for i in range(16):
        L.append(f"v_add_f32 v{acc+i}, v{acc+i}, v{tmp+i}")
    if zsum is not None:
        for m in range(8):
            L.append(f"v_add_f32 v{tmp+m}, v{acc+2*m}, v{acc+2*m+1}")
        for m in range(4):
            L.append(f"v_add_f32 v{tmp+m}, v{tmp+m}, v{tmp+4+m}")
        L.append(f"v_add_f32 v{tmp}, v{tmp}, v{tmp+2}")
        L.append(f"v_add_f32 v{tmp+1}, v{tmp+1}, v{tmp+3}")
        L.append(f"v_add_f32 v{zsum}, v{tmp}, v{tmp+1}")
    for m in range(8):
        L.append(f"v_cvt_pk_bf16_f32 v{out+m}, v{acc+2*m}, v{acc+2*m+1}")
    return L

def spread(side, nslots):
    out = []; n = len(side); k = 0
    for i in range(nslots):
        e = (n*(i+1))//nslots
        out.append(side[k:e]); k = e
    return out

SEQ = []
for c in range(8): SEQ += [("X", c), ("K", c)]
SEQ += [("V", c) for c in range(8)] + [("Q", c) for c in range(8)] + [("O", c) for c in range(8)]
NSLOT = 10
NINIT = 6
XR = 128
WF, T16, ACCQ, ACCK, ACCV = 32, 64, 80, 96, 112

def b_issue_jobs(n):
    kind, c = SEQ[n]
    pos = n % NSLOT
    pre = []
    if kind == "X":
        so, v0, srd = f"s{16+c}", 2, "s[40:43]"
    elif kind in "QKV":
        so, v0, srd = f"s{8+c}", 4, "s[44:47]"
        if kind == "V" and c == 0:
            pre = [("v_add_u32 v4, 1024, v4", None), ("v_add_u32 v5, 1024, v5", None)]
        if kind == "Q" and c == 0:
            pre = [("v_subrev_u32 v4, 2048, v4", None), ("v_subrev_u32 v5, 2048, v5", None)]
    else:
        so, v0, srd = "s61", 6, "s[48:51]"
        pre = [(f"s_mov_b32 s61, {c*65536}", None)]
    return [pre + [(f"s_add_u32 m0, s60, {pos*8192}", None),
             (f"buffer_load_dwordx4 v{v0}, {srd}, {so} offen lds", f"slot{n}")],
            [(f"buffer_load_dwordx4 v{v0+1}, {srd}, {so} offen offset:1024 lds", f"slot{n}")]]

def emit_job(a, job):
    for t in job:
        if isinstance(t, str): a.e(t)
        else: a.e(t[0], vm=t[1])

def lds_base(n):
    pos = n % NSLOT
    return (0, pos*8192) if pos < 5 else (1, (pos-5)*8192)

def wfrag_reads(a, n, s, dst, tag=None):
    hi, off = lds_base(n)
    va = "v17" if hi else "v16"
    a.e(f"ds_read_b64_tr_b16 v[{dst}:{dst+1}], {va} offset:{off + s*2048}", lg=tag)
    a.e(f"ds_read_b64_tr_b16 v[{dst+2}:{dst+3}], {va} offset:{off + s*2048 + 512}", lg=tag)

def role_B(a, cfg):
    a.c("================= role B =================")
    if cfg.prioB: a.e(f"s_setprio {cfg.prioB}")
    a.e("""
    s_and_b32 s66, s3, 7            ; xcd
    s_lshr_b32 s67, s3, 3           ; jj
    s_lshr_b32 s56, s66, 1
    s_lshl_b32 s56, s56, 3
    s_and_b32 s68, s67, 7
    s_add_u32 s56, s56, s68         ; tb
    s_and_b32 s57, s66, 1
    s_lshl_b32 s57, s57, 2
    s_lshr_b32 s68, s67, 3
    s_add_u32 s57, s57, s68         ; hq
    s_and_b32 s58, s39, 1           ; tt
    s_lshr_b32 s59, s39, 1
    s_lshl_b32 s60, s39, 11
    s_mov_b32 s62, 0x3fb8aa3b
    s_mov_b32 s63, 0x3fb8aa3b
    s_mov_b32 s64, 0x358637bd
    s_mov_b32 s65, 0x358637bd
    """)
    a.e("""
    v_lshrrev_b32 v32, 3, v1        ; l>>3
    v_and_b32 v33, 7, v1            ; l&7
    v_lshrrev_b32 v34, 4, v1        ; l>>4
    s_lshl_b32 s68, s56, 6          ; tb*64
    s_lshl_b32 s69, s39, 4          ; 16w
    s_add_u32 s68, s68, s69
    v_add_u32 v35, s68, v32         ; row
    v_lshlrev_b32 v35, 10, v35
    v_xor_b32 v36, v33, v34
    v_lshl_add_u32 v2, v36, 4, v35
    v_add_u32 v37, 4, v34
    v_xor_b32 v36, v33, v37
    v_lshl_add_u32 v3, v36, 4, v35
    v_add_u32 v3, 7168, v3          ; +8 rows - 1024
    v_and_b32 v36, 1, v34
    v_lshlrev_b32 v36, 2, v36
    v_xor_b32 v36, v33, v36         ; q
    v_lshlrev_b32 v36, 4, v36       ; q*16
    v_add_u32 v37, s69, v32         ; 16w + (l>>3)
    v_mul_u32_u24 v38, 3072, v37
    s_lshl_b32 s68, s57, 7          ; hq*128
    v_add3_u32 v4, v38, v36, s68
    v_add_u32 v4, 1024, v4
    v_add_u32 v5, 23552, v4         ; +8*3072 - 1024
    v_lshlrev_b32 v38, 10, v37
    v_add3_u32 v6, v38, v36, s68
    v_add_u32 v7, 7168, v6
    """)
    a.e("""
    s_waitcnt lgkmcnt(0)
    s_mov_b32 s40, s26
    s_and_b32 s41, s27, 0xffff
    s_mov_b32 s42, 0x200000
    s_mov_b32 s43, 0x20000
    s_mov_b32 s44, s28
    s_and_b32 s45, s29, 0xffff
    s_mov_b32 s46, 0x180000
    s_mov_b32 s47, 0x20000
    s_mov_b32 s48, s30
    s_and_b32 s49, s31, 0xffff
    s_mov_b32 s50, 0x80000
    s_mov_b32 s51, 0x20000
    """)
    a.e("""
    v_mov_b32 v31, 0
    s_cmp_lg_u32 s3, 0
    s_cbranch_scc1 L_b_nononce
    s_cmp_lg_u32 s39, 0
    s_cbranch_scc1 L_b_nononce
    s_memrealtime s[68:69]
    s_waitcnt lgkmcnt(0)
    s_or_b32 s68, s68, 1
    v_mov_b32 v30, s68
    s_mov_b64 exec, 1
    global_store_dword v31, v30, s[34:35] sc1
    s_mov_b64 exec, -1
    """)
    a.vm.pop()
    a.label("L_b_nononce")
    if cfg.b_exit:
        a.e("s_branch L_end")
    for c in range(8):
        a.e(f"s_mov_b32 s{8+c}, {c*64*3072}")
        a.e(f"s_mov_b32 s{16+c}, {c*128}")
    stamp(a, cfg, 1)
    for n in range(NINIT):
        for job in b_issue_jobs(n): emit_job(a, job)
    a.e("""
    v_and_b32 v32, 31, v1           ; i
    v_lshrrev_b32 v33, 5, v1        ; hh
    s_lshl_b32 s68, s58, 5
    v_add_u32 v34, s68, v32         ; 32tt + i
    v_lshlrev_b32 v34, 7, v34       ; *128
    v_lshrrev_b32 v35, 1, v32
    v_and_b32 v35, 7, v35           ; f
    """)
    for s in range(4):
        a.e(f"""
        v_add_u32 v36, {2*s}, v33
        v_xor_b32 v36, v36, v35
        v_lshl_add_u32 v{8+s}, v36, 4, v34
        v_add_u32 v{12+s}, 40960, v{8+s}
        """)
    a.e(f"""
    v_lshrrev_b32 v34, 2, v1
    v_and_b32 v34, 3, v34           ; rr
    v_and_b32 v35, 3, v1            ; cc
    v_lshrrev_b32 v36, 4, v1
    v_and_b32 v36, 1, v36           ; G&1
    v_lshlrev_b32 v36, 1, v36       ; 2(G&1)
    v_lshrrev_b32 v37, 1, v35       ; cc>>1
    v_add_u32 v36, v36, v37         ; 2(G&1) + (cc>>1)
    v_lshrrev_b32 v37, 1, v34
    v_lshlrev_b32 v37, 2, v37       ; 4(rr>>1)
    v_and_b32 v38, 1, v35
    v_lshlrev_b32 v38, 3, v38       ; 8(cc&1)
    s_lshl_b32 s68, s59, 2
    v_add_u32 v39, s68, v36
    v_xor_b32 v39, v39, v37
    v_lshl_add_u32 v39, v39, 4, v38
    v_lshl_add_u32 v40, v33, 3, v34
    v_lshl_add_u32 v16, v40, 7, v39
    v_add_u32 v17, 40960, v16
    v_xor_b32 v39, v36, v37
    v_lshl_add_u32 v39, v39, 4, v38
    v_lshl_add_u32 v40, v33, 2, v34
    v_lshl_add_u32 v18, v40, 7, v39
    s_lshl_b32 s68, s59, 15
    s_add_u32 s68, s68, 16384
    v_add_u32 v18, s68, v18
    v_xor_b32 v19, 64, v18
    s_lshl_b32 s68, s59, 1
    s_add_u32 s68, s68, s58
    s_xor_b32 s69, s68, 1
    s_lshl_b32 s66, s68, 10
    s_add_u32 s66, s66, 16384
    v_lshl_add_u32 v22, v1, 4, s66
    s_lshl_b32 s66, s69, 10
    s_add_u32 s66, s66, 16384
    v_lshl_add_u32 v23, v1, 4, s66
    s_lshl_b32 s66, s68, 8
    s_add_u32 s66, s66, 20480
    v_lshl_add_u32 v24, v1, 2, s66
    s_lshl_b32 s66, s69, 8
    s_add_u32 s66, s66, 20480
    v_lshl_add_u32 v25, v1, 2, s66
    s_lshl_b32 s68, s57, 1
    s_add_u32 s68, s68, s59
    s_lshl_b32 s68, s68, 5
    s_add_u32 s68, s68, s56
    s_mul_i32 s68, s68, 2176
    s_add_u32 s68, s68, {KVP}
    s_lshl_b32 s69, s58, 10
    s_add_u32 s69, s69, s68
    v_lshl_add_u32 v26, v1, 4, s69
    v_lshrrev_b32 v40, 4, v1
    v_and_b32 v40, 1, v40
    v_lshlrev_b32 v40, 3, v40       ; 8c
    v_and_b32 v41, 4, v1            ; 4*hh'
    v_add_u32 v40, v40, v41
    v_lshrrev_b32 v41, 2, v1
    v_and_b32 v41, 2, v41
    v_add_u32 v40, v40, v41
    v_lshrrev_b32 v41, 1, v1
    v_and_b32 v41, 1, v41
    v_add_u32 v40, v40, v41         ; zg
    s_add_u32 s68, s68, 2048
    v_lshl_add_u32 v27, v40, 3, s68
    s_lshl_b32 s68, s56, 1
    s_add_u32 s68, s68, s58
    s_lshl_b32 s68, s68, 5
    s_lshl_b32 s69, s57, 2
    s_add_u32 s68, s68, s69
    s_lshl_b32 s69, s59, 1
    s_add_u32 s68, s68, s69
    s_lshl_b32 s68, s68, 10
    s_add_u32 s68, s68, {PQ}
    v_lshl_add_u32 v28, v1, 4, s68
    v_and_b32 v40, 16, v1
    v_cmp_ne_u32 s[52:53], 0, v40
    s_sub_u32 s54, 0, s58
    s_mov_b32 s55, s54
    """)
    for r in range(16):
        a.e(f"v_mov_b32 v{ACCQ+r}, s64")
    for r in range(16):
        a.e(f"v_mov_b32 v{ACCK+r}, s64")
    def frag_reads(g, k):
        L = []
        tag = f"f{g}_{k}"
        if g < 8:
            nx, nw = 2*g, 2*g+1
            hi, off = lds_base(nx)
            L.append((f"ds_read_b128 v[{XR+16*g+4*k}:{XR+16*g+4*k+3}], v{(12 if hi else 8)+k} offset:{off}", tag))
            d = WF + 16*(g % 2) + 4*k; n = nw; sstep = k
        else:
            n = 2*g + k//4; sstep = k % 4; d = WF + 4*k
        h2, o2 = lds_base(n)
        va = "v17" if h2 else "v16"
        L.append((f"ds_read_b64_tr_b16 v[{d}:{d+1}], {va} offset:{o2 + sstep*2048}", tag))
        L.append((f"ds_read_b64_tr_b16 v[{d+2}:{d+3}], {va} offset:{o2 + sstep*2048 + 512}", tag))
        return L
    def nsteps(g): return 4 if g < 8 else 8
    def emit_side(lst):
        for t in lst:
            if isinstance(t, str): a.e(t)
            elif t[0] == "WVM": a.wait_vm(t[1])
            else: a.e(t[0], vm=t[1])
    side = {}
    ke = phi_instrs(ACCK, T16, ACCK, zsum=29)
    ke += ["v_mov_b32 v30, v29", "v_permlane32_swap_b32 v29, v30", "v_add_f32 v29, v29, v30"]
    gaps = [(g, k) for g in range(8, 12) for k in range(8)][1:31]
    for gp, grp in zip(gaps, spread(ke, len(gaps))): side[gp] = grp

    ra = f"""
    s_lshr_b32 s66, s3, 4
    s_and_b32 s67, s3, 15
    s_mul_i32 s69, s66, {32*KVBLK}
    s_add_u32 s69, s69, {KVP}
    s_lshl_b32 s52, s67, 7
    s_add_u32 s68, s69, s52
    v_and_b32 v22, 7, v1
    v_lshlrev_b32 v22, 4, v22
    v_lshrrev_b32 v23, 3, v1
    v_mul_u32_u24 v23, {KVBLK}, v23
    v_add_u32 v23, v22, v23
    v_add_u32 v24, s68, v23
    v_add_u32 v25, {8*KVBLK}, v24
    v_add_u32 v26, {16*KVBLK}, v24
    v_add_u32 v27, {24*KVBLK}, v24
    s_add_u32 s68, s69, 2048
    v_add_u32 v8, s68, v23
    v_add_u32 v9, {8*KVBLK}, v8
    v_add_u32 v10, {16*KVBLK}, v8
    v_add_u32 v11, {24*KVBLK}, v8
    s_mul_i32 s69, s66, {KVBLK}
    s_add_u32 s69, s69, {KVF}
    s_add_u32 s68, s69, s52
    v_add_u32 v23, s68, v22
    s_add_u32 s68, s69, 2048
    v_add_u32 v12, s68, v22
    """.strip().split("\n")
    ra = [x.strip() for x in ra]
    gaps = [(12, k) for k in range(1, 8)] + [(13, k) for k in range(8)]
    for gp, grp in zip(gaps, spread(ra, len(gaps))): side[gp] = grp

    rb = f"""
    s_mov_b32 s40, s36
    s_and_b32 s41, s37, 0xffff
    s_mov_b32 s42, {KVF + 65536}
    s_mov_b32 s43, 0x20000
    s_lshl_b32 s68, s56, 7
    s_add_u32 s68, s68, {PQF}
    v_and_b32 v2, 7, v1
    v_lshl_add_u32 v2, v2, 2, s68
    s_lshl_b32 s68, s56, 1
    s_add_u32 s68, s68, s58
    s_lshl_b32 s68, s68, 5
    s_lshl_b32 s69, s59, 4
    s_add_u32 s68, s68, s69
    s_lshl_b32 s68, s68, 10
    s_add_u32 s68, s68, {PQ}
    v_lshl_add_u32 v3, v1, 4, s68
    v_add_u32 v31, 8192, v3
    v_lshrrev_b32 v13, 7, v0
    v_mul_u32_u24 v13, {KVBLK}, v13
    v_and_b32 v20, 127, v0
    v_lshl_add_u32 v13, v20, 4, v13
    v_add_u32 v13, {KVF}, v13
    v_lshrrev_b32 v14, 3, v20
    v_mul_u32_u24 v14, {KVBLK}, v14
    v_and_b32 v21, 7, v0
    v_lshl_add_u32 v14, v21, 4, v14
    v_add_u32 v14, {KVF+2048}, v14
    v_lshrrev_b32 v15, 7, v0
    v_lshlrev_b32 v15, 1, v15
    v_bfe_u32 v21, v0, 4, 1
    v_add_u32 v15, v15, v21
    v_mul_u32_u24 v15, 544, v15
    v_bfe_u32 v21, v0, 5, 1
    v_mul_u32_u24 v21, 272, v21
    v_add_u32 v15, v15, v21
    v_and_b32 v21, 15, v0
    v_lshl_add_u32 v15, v21, 4, v15
    v_bfe_u32 v21, v0, 6, 1
    v_lshl_add_u32 v15, v21, 3, v15
    v_lshrrev_b32 v29, 3, v20
    v_lshlrev_b32 v29, 1, v29
    v_bfe_u32 v21, v0, 2, 1
    v_add_u32 v29, v29, v21
    v_mul_u32_u24 v29, 544, v29
    v_bfe_u32 v21, v0, 1, 1
    v_mul_u32_u24 v21, 272, v21
    v_add_u32 v29, v29, v21
    v_and_b32 v21, 1, v0
    v_lshl_add_u32 v29, v21, 3, v29
    v_add_u32 v29, 256, v29
    v_and_b32 v30, 15, v1
    v_mul_u32_u24 v30, {KVBLK}, v30
    v_add_u32 v30, {KVF+2048+4}, v30
    """.strip().split("\n")
    rb = [x.strip() for x in rb]
    rb += [f"s_mov_b32 s{8+i}, {1024*i}" for i in range(8)] + [f"s_mov_b32 s{16+k}, {2*KVBLK*k}" for k in range(8)]
    gaps = [(14, k) for k in range(8)] + [(15, k) for k in range(8)]
    for gp, grp in zip(gaps, spread(rb, len(gaps))): side[gp] = grp

    def kv_publish():
        a.c("--- kv partial: V cvt, MFMA, select, pair exchange, publish")
        a.e("s_barrier")
        for m in range(8):
            a.e(f"v_cvt_pk_bf16_f32 v{ACCV+m}, v{ACCV+2*m}, v{ACCV+2*m+1}")
        a.e(f"v_mfma_f32_32x32x16_bf16 v[{T16}:{T16+15}], v[{ACCK}:{ACCK+3}], v[{ACCV}:{ACCV+3}], 0")
        a.e(f"v_mfma_f32_32x32x16_bf16 v[{T16}:{T16+15}], v[{ACCK+4}:{ACCK+7}], v[{ACCV+4}:{ACCV+7}], v[{T16}:{T16+15}]")
        a.e("ds_write_b32 v24, v29", lg="xw")
        poll_nonce(a, "v21", "v31", first_tag="nonce")
        SEL = ACCK + 8; SND = ACCV + 8; KEEP = ACCV + 12
        for j in range(8): a.e(f"v_cndmask_b32 v{SEL+j}, v{T16+j}, v{T16+8+j}, s[52:53]")
        for j in range(4): a.e(f"v_cndmask_b32 v{SND+j}, v{SEL+4+j}, v{SEL+j}, s[54:55]")
        a.e(f"ds_write_b128 v22, v[{SND}:{SND+3}]", lg="xw")
        for j in range(4): a.e(f"v_cndmask_b32 v{KEEP+j}, v{SEL+j}, v{SEL+4+j}, s[54:55]")
        a.wait_lg("xw")
        a.e("s_barrier")
        a.e(f"ds_read_b128 v[{SEL}:{SEL+3}], v23", lg="xr")
        a.e(f"ds_read_b32 v30, v25", lg="xr")
        a.wait_lg("xr")
        for j in range(4): a.e(f"v_add_f32 v{KEEP+j}, v{KEEP+j}, v{SEL+j}")
        a.e(f"""
        v_add_f32 v29, v29, v30
        v_cvt_pk_bf16_f32 v{SEL}, v{KEEP}, v{KEEP+1}
        v_mov_b32 v{SEL+1}, s38
        v_cvt_pk_bf16_f32 v{SEL+2}, v{KEEP+2}, v{KEEP+3}
        v_mov_b32 v{SEL+3}, s38
        v_mov_b32_dpp v30, v29 quad_perm:[1,0,3,2] row_mask:0xf bank_mask:0xf
        global_store_dwordx4 v26, v[{SEL}:{SEL+3}], s[36:37] sc1
        v_cvt_pk_bf16_f32 v{SEL+4}, v29, v30
        v_mov_b32 v{SEL+5}, s38
        s_andn2_b64 exec, 0x55555555, s[54:55]
        s_cbranch_execz L_b_noz
        global_store_dwordx2 v27, v[{SEL+4}:{SEL+5}], s[36:37] sc1
        """)
        a.vm.pop()
        a.label("L_b_noz")
        a.e("s_mov_b64 exec, -1")
        stamp(a, cfg, 6)

    a.wait_vm(["slot0", "slot1"])
    a.e("s_barrier")
    stamp(a, cfg, 2)
    for k in range(4):
        for t, tag in frag_reads(0, k): a.e(t, lg=tag)
    nxt = NINIT
    pend = []
    while nxt < NSLOT:
        pend += b_issue_jobs(nxt); nxt += 1
    for g in range(16):
        a.c(f"--- group {g}")
        if g == 12: kv_publish()
        if g < 15:
            a.wait_vm([f"slot{2*g+2}", f"slot{2*g+3}"])
        a.e("s_barrier")
        if g in (1, 8, 12): stamp(a, cfg, {1: 3, 8: 4, 12: 5}[g])
        jobs = list(pend); pend = []
        if g >= 1:
            for _ in range(2): jobs += b_issue_jobs(nxt); nxt += 1
        if g == 9:
            jobs.append([("global_load_dword v21, v31, s[34:35] sc1", "nonce")])
        ns = nsteps(g)
        jsp = spread(jobs, ns)
        for k in range(ns):
            if k % 2 == 0: a.wait_lg([f"f{g}_{k}", f"f{g}_{k+1}"])
            if g < 8:
                d = WF + 16*(g % 2) + 4*k
                a.e(f"v_mfma_f32_32x32x16_bf16 v[{ACCK}:{ACCK+15}], v[{XR+16*g+4*k}:{XR+16*g+4*k+3}], v[{d}:{d+3}], v[{ACCK}:{ACCK+15}]")
            elif g < 12:
                kk = (g - 8)*8 + k
                cc = "0" if (g == 8 and k == 0) else f"v[{ACCV}:{ACCV+15}]"
                a.e(f"v_mfma_f32_32x32x16_bf16 v[{ACCV}:{ACCV+15}], v[{XR+4*kk}:{XR+4*kk+3}], v[{WF+4*k}:{WF+4*k+3}], {cc}")
            else:
                kk = (g - 12)*8 + k
                a.e(f"v_mfma_f32_32x32x16_bf16 v[{ACCQ}:{ACCQ+15}], v[{WF+4*k}:{WF+4*k+3}], v[{XR+4*kk}:{XR+4*kk+3}], v[{ACCQ}:{ACCQ+15}]")
            jl = [list(jb) for jb in jsp[k]]
            if jl:
                while jl[0] and not jl[0][0][0].startswith(("buffer_load", "global_load")):
                    a.e(jl[0].pop(0)[0])
            if g < 15:
                nx = [k, 4 + k] if g == 7 else [k]
                for k2 in nx:
                    for t, tag in frag_reads(g + 1, k2): a.e(t, lg=tag)
            for jb in jl: emit_job(a, jb)
            emit_side(side.get((g, k), []))
    assert nxt == 40, nxt
    a.e("s_barrier")
    a.e("""
    s_cmp_lg_u32 s39, 0
    s_cbranch_scc1 L_b_nored1
    global_load_dwordx4 v[96:99], v24, s[36:37] sc1
    global_load_dwordx4 v[100:103], v25, s[36:37] sc1
    global_load_dwordx4 v[104:107], v26, s[36:37] sc1
    global_load_dwordx4 v[108:111], v27, s[36:37] sc1
    global_load_dwordx4 v[112:115], v8, s[36:37] sc1
    global_load_dwordx4 v[116:119], v9, s[36:37] sc1
    global_load_dwordx4 v[120:123], v10, s[36:37] sc1
    global_load_dwordx4 v[124:127], v11, s[36:37] sc1
    """)
    for _ in range(8): a.vm.pop()
    a.label("L_b_nored1")
    a.c("--- Q epilogue")
    for t in phi_instrs(ACCQ, T16, ACCQ): a.e(t)
    a.e(f"""
    v_lshlrev_b32 v20, 4, v1
    s_cmp_lg_u32 s39, 0
    s_cbranch_scc1 L_b_noho
    ds_write_b128 v20, v[{ACCQ}:{ACCQ+3}]
    ds_write_b128 v20, v[{ACCQ+4}:{ACCQ+7}] offset:1024
    s_waitcnt vmcnt(8) lgkmcnt(0)
    s_branch L_b_ho2
    """)
    a.label("L_b_noho")
    a.e("s_waitcnt vmcnt(0)")
    a.label("L_b_ho2")
    a.vm = []; a.lg = []
    a.e("s_barrier")
    a.e(f"""
    s_cmp_eq_u32 s39, 0
    s_cbranch_scc1 L_b_nopq
    global_store_dwordx4 v28, v[{ACCQ}:{ACCQ+3}], s[36:37] sc1
    global_store_dwordx4 v28, v[{ACCQ+4}:{ACCQ+7}], s[36:37] offset:1024 sc1
    s_cmp_eq_u32 s39, 1
    s_cbranch_scc0 L_b_nopq
    ds_read_b128 v[32:35], v20
    ds_read_b128 v[36:39], v20 offset:1024
    v_subrev_u32 v21, 32768, v28
    s_waitcnt lgkmcnt(0)
    global_store_dwordx4 v21, v[32:35], s[36:37] sc1
    global_store_dwordx4 v21, v[36:39], s[36:37] offset:1024 sc1
    """)
    a.label("L_b_nopq")
    a.vm = []; a.lg = []
    stamp(a, cfg, 7)
    if not cfg.do_B2:
        stamp(a, cfg, 8)
        stamps_out(a, cfg, 9)
        a.e("s_branch L_end")
        return
    role_B2(a, cfg)

def tag_check(a, regs_tags, acc="v20"):
    tt = 0
    for idx in range(8):
        s0, s1, s2 = (idx >> 2) & 1, (idx >> 1) & 1, idx & 1
        if s0 | (s1 ^ s2): tt |= 1 << idx
    first = True
    for r in regs_tags:
        if first:
            a.e(f"v_xor_b32 {acc}, s38, v{r}"); first = False
        else:
            a.e(f"v_bitop3_b32 {acc}, {acc}, v{r}, s38 bitop3:{hex(tt)}")
    a.e(f"v_cmp_ne_u32 vcc, 0, {acc}")

def role_B2(a, cfg):
    WO = 128
    ACC = 96
    PQR = 32
    CN = [64, 80]
    KAF = [8, 12]
    OF = [4, 16]
    KA = 0
    PQL = 17408
    a.c("================= B2 =================")
    def reduce_line(base, dst_addr, tagsok_label):
        S = 40; T = 44
        for k in range(4):
            r = base + 4*k
            for pidx in range(2):
                src = r + 2*pidx
                if k == 0:
                    a.e(f"v_lshlrev_b32 v{S+2*pidx}, 16, v{src}")
                    a.e(f"v_and_b32 v{S+1+2*pidx}, 0xffff0000, v{src}")
                else:
                    a.e(f"v_lshlrev_b32 v{T+2*pidx}, 16, v{src}")
                    a.e(f"v_and_b32 v{T+1+2*pidx}, 0xffff0000, v{src}")
                    a.e(f"v_add_f32 v{S+2*pidx}, v{S+2*pidx}, v{T+2*pidx}")
                    a.e(f"v_add_f32 v{S+1+2*pidx}, v{S+1+2*pidx}, v{T+1+2*pidx}")
        for j in range(4): a.e(f"v_add_f32_dpp v{S+j}, v{S+j}, v{S+j} row_ror:8 row_mask:0xf bank_mask:0xf")
        for j in range(4): a.e(f"v_mov_b32 v{T+j}, v{S+j}")
        for j in range(4): a.e(f"v_permlane16_swap_b32 v{S+j}, v{T+j}")
        for j in range(4): a.e(f"v_add_f32 v{S+j}, v{S+j}, v{T+j}")
        for j in range(4): a.e(f"v_mov_b32 v{T+j}, v{S+j}")
        for j in range(4): a.e(f"v_permlane32_swap_b32 v{S+j}, v{T+j}")
        for j in range(4): a.e(f"v_add_f32 v{S+j}, v{S+j}, v{T+j}")
        a.e(f"""
        v_cvt_pk_bf16_f32 v48, v{S}, v{S+1}
        v_mov_b32 v49, s38
        v_cvt_pk_bf16_f32 v50, v{S+2}, v{S+3}
        v_mov_b32 v51, s38
        s_mov_b64 exec, 0xff
        global_store_dwordx4 {dst_addr}, v[48:51], s[36:37] sc1
        s_mov_b64 exec, -1
        """)
    a.e("""
    s_cmp_lg_u32 s39, 0
    s_cbranch_scc1 L_b_red_done
    s_mov_b32 s61, 0
    s_branch L_b_red_chk
    """)
    a.label("L_b_red_poll")
    a.e("""
    global_load_dwordx4 v[96:99], v24, s[36:37] sc1
    global_load_dwordx4 v[100:103], v25, s[36:37] sc1
    global_load_dwordx4 v[104:107], v26, s[36:37] sc1
    global_load_dwordx4 v[108:111], v27, s[36:37] sc1
    global_load_dwordx4 v[112:115], v8, s[36:37] sc1
    global_load_dwordx4 v[116:119], v9, s[36:37] sc1
    global_load_dwordx4 v[120:123], v10, s[36:37] sc1
    global_load_dwordx4 v[124:127], v11, s[36:37] sc1
    """)
    a.label("L_b_red_chk")
    a.e("""
    s_add_u32 s61, s61, 1
    s_waitcnt vmcnt(0)
    """)
    tag_check(a, [97+2*q for q in range(16)])
    a.e(f"""
    s_cmp_gt_u32 s61, {SPIN_LIMIT}
    s_cbranch_scc1 L_b_red_go
    s_cbranch_vccnz L_b_red_poll
    """)
    a.label("L_b_red_go")
    stampval(a, cfg, 8, "s61")
    a.e("""
    s_cmp_lg_u32 s67, 0
    s_cbranch_scc1 L_b_red_a
    """)
    reduce_line(112, "v12", None)
    a.label("L_b_red_a")
    reduce_line(96, "v23", None)
    a.label("L_b_red_done")
    a.vm = []
    stamp(a, cfg, 9)
    for i in range(16):
        for nt in range(2):
            d = WO + 8*i + 4*nt
            off = (i//4)*8192 + (i % 4)*2048
            a.e(f"ds_read_b64_tr_b16 v[{d}:{d+1}], v{18+nt} offset:{off}", lg="wo")
            a.e(f"ds_read_b64_tr_b16 v[{d+2}:{d+3}], v{18+nt} offset:{off+1024}", lg="wo")
    a.e("""
    s_cmp_eq_u32 s39, 0
    s_cbranch_scc1 L_b_noack
    s_waitcnt vmcnt(0)
    """)
    a.label("L_b_noack")
    a.e("s_waitcnt lgkmcnt(0)")
    a.e("s_barrier")
    a.e("""
    s_cmp_lg_u32 s39, 3
    s_cbranch_scc1 L_b_noflag
    s_lshl_b32 s68, s56, 7
    s_lshl_b32 s69, s57, 2
    s_add_u32 s68, s68, s69
    s_add_u32 s68, s68, %d
    v_mov_b32 v32, s68
    v_mov_b32 v33, s38
    s_mov_b64 exec, 1
    global_store_dword v32, v33, s[36:37] sc1
    s_mov_b64 exec, -1
    """ % PQF)
    a.label("L_b_noflag")
    a.vm = []
    stamp(a, cfg, 10)
    def pq_loads():
        for i in range(8):
            a.e(f"buffer_load_dwordx4 v[{PQR+4*i}:{PQR+4*i+3}], v3, s[40:43], s{8+i} offen sc1")
        for i in range(8):
            a.e(f"s_add_u32 m0, s66, {1024*i}")
            a.e("s_nop 0")
            a.e(f"buffer_load_dwordx4 v31, s[40:43], s{8+i} offen sc1 lds")
    a.e(f"""
    s_lshl_b32 s66, s39, 13
    s_add_u32 s66, s66, {PQL}
    s_mov_b32 s61, 0
    s_cmp_eq_u32 s39, 0
    s_cbranch_scc1 L_b_w0_poll
    """)
    a.label("L_b_pqf_poll")
    a.e(f"""
    global_load_dword v21, v2, s[36:37] sc1
    s_add_u32 s61, s61, 1
    s_waitcnt vmcnt(0)
    v_cmp_ne_u32 vcc, s38, v21
    s_cmp_gt_u32 s61, {SPIN_LIMIT}
    s_cbranch_scc1 L_b_pqf_go
    s_cbranch_vccz L_b_pqf_go
    s_sleep 1
    s_branch L_b_pqf_poll
    """)
    a.label("L_b_pqf_go")
    stamp(a, cfg, 11)
    pq_loads()
    a.e("s_branch L_b_sub_done")
    a.label("L_b_w0_poll")
    a.e(f"""
    global_load_dword v21, v2, s[36:37] sc1
    global_load_dword v20, v30, s[36:37] sc1
    s_add_u32 s61, s61, 1
    s_waitcnt vmcnt(0)
    v_xor_b32 v21, s38, v21
    v_xor_b32 v20, s38, v20
    v_or_b32 v21, v21, v20
    v_cmp_ne_u32 vcc, 0, v21
    s_cmp_gt_u32 s61, {SPIN_LIMIT}
    s_cbranch_scc1 L_b_w0_go
    s_cbranch_vccz L_b_w0_go
    s_sleep 1
    s_branch L_b_w0_poll
    """)
    a.label("L_b_w0_go")
    stamp(a, cfg, 11)
    a.label("L_b_sub_done")
    a.e("s_barrier")
    stamp(a, cfg, 12)
    def ka_loads():
        for k in range(8):
            a.e(f"buffer_load_dwordx4 v[{64+4*k}:{67+4*k}], v13, s[40:43], s{16+k} offen sc1")
        a.e("buffer_load_dwordx4 v[96:99], v14, s[40:43], 0 offen sc1")
    ka_loads()
    a.e("""
    s_mov_b32 s61, 0
    s_cmp_eq_u32 s39, 0
    s_cbranch_scc0 L_b_ka_w
    """)
    pq_loads()
    a.e("""
    s_waitcnt vmcnt(16)
    s_branch L_b_ka_chk
    """)
    a.label("L_b_kvf_poll")
    ka_loads()
    a.label("L_b_ka_w")
    a.e("s_waitcnt vmcnt(0)")
    a.label("L_b_ka_chk")
    a.e("s_add_u32 s61, s61, 1")
    tag_check(a, [65+2*q for q in range(18)])
    a.e(f"""
    s_cmp_gt_u32 s61, {SPIN_LIMIT}
    s_cbranch_scc1 L_b_kvf_go
    s_cbranch_vccnz L_b_kvf_poll
    """)
    a.label("L_b_kvf_go")
    a.vm = []
    for k in range(8):
        a.e(f"v_mov_b32 v{65+4*k}, v{66+4*k}")
        a.e(f"ds_write_b64 v15, v[{64+4*k}:{65+4*k}] offset:{KA + 2176*k}")
    a.e("v_mov_b32 v97, v98")
    a.e(f"ds_write_b64 v29, v[96:97] offset:{KA}")
    a.e(f"""
    v_and_b32 v22, 31, v1
    v_min_u32 v22, 16, v22
    v_lshlrev_b32 v22, 4, v22
    v_lshrrev_b32 v23, 5, v1
    v_mul_u32_u24 v23, 272, v23
    s_mul_i32 s68, s59, {16*544}
    v_add3_u32 v22, v22, v23, s68
    v_lshl_add_u32 v23, v1, 4, s66
    s_waitcnt vmcnt(0) lgkmcnt(0)
    s_barrier
    """)
    a.vm = []; a.lg = []
    stamp(a, cfg, 13)
    def kaf_read(i):
        a.e(f"ds_read_b128 v[{KAF[i%2]}:{KAF[i%2]+3}], v22 offset:{KA + 544*i}", lg=f"ka{i}")
    def out_mfma(i):
        o = OF[i % 2]
        for nt in range(2):
            w = WO + 8*i + 4*nt
            cc = "0" if i == 0 else f"v[{ACC+16*nt}:{ACC+16*nt+15}]"
            a.e(f"v_mfma_f32_32x32x16_bf16 v[{ACC+16*nt}:{ACC+16*nt+15}], v[{w}:{w+3}], v[{o}:{o+3}], {cc}")
    def num_mfma(i):
        a.wait_lg(f"ka{i}")
        p = PQR + 4*(i % 8)
        if i >= 8: a.wait_lg(f"pl{i}")
        a.e(f"v_mfma_f32_32x32x16_bf16 v[{CN[i%2]}:{CN[i%2]+15}], v[{KAF[i%2]}:{KAF[i%2]+3}], v[{p}:{p+3}], 0")
        if 4 <= i < 12:
            h = i + 4
            ph = PQR + 4*(h % 8)
            a.e(f"ds_read_b128 v[{ph}:{ph+3}], v23 offset:{1024*(h-8)}", lg=f"pl{h}")
    def out1(i, nt):
        o = OF[i % 2]
        w = WO + 8*i + 4*nt
        cc = "0" if i == 0 else f"v[{ACC+16*nt}:{ACC+16*nt+15}]"
        a.e(f"v_mfma_f32_32x32x16_bf16 v[{ACC+16*nt}:{ACC+16*nt+15}], v[{w}:{w+3}], v[{o}:{o+3}], {cc}")
    kaf_read(0); kaf_read(1)
    num_mfma(0)
    for i in range(16):
        if i + 1 < 16:
            num_mfma(i + 1)
        c = CN[i % 2]
        a.e(f"v_add_f32 v20, s64, v{c+8}")
        a.e(f"v_rcp_f32 v20, v20")
        if i + 2 < 16:
            kaf_read(i + 2)
        for jj in range(2): a.e(f"v_mul_f32 v{c+jj}, v{c+jj}, v20")
        if i >= 1: out1(i - 1, 0)
        for jj in range(2, 7): a.e(f"v_mul_f32 v{c+jj}, v{c+jj}, v20")
        if i >= 1: out1(i - 1, 1)
        a.e(f"v_mul_f32 v{c+7}, v{c+7}, v20")
        o = OF[i % 2]
        for m in range(4):
            a.e(f"v_cvt_pk_bf16_f32 v{o+m}, v{c+2*m}, v{c+2*m+1}")
    out1(15, 0); out1(15, 1)
    stamp(a, cfg, 14)
    a.e("""
    s_cmp_lg_u32 s3, 0
    s_cbranch_scc1 L_b_norst
    s_cmp_lg_u32 s39, 0
    s_cbranch_scc1 L_b_norst
    v_mov_b32 v20, 0
    s_mov_b64 exec, 1
    global_store_dword v20, v20, s[34:35] sc1
    s_mov_b64 exec, -1
    """)
    a.label("L_b_norst")
    a.vm = []
    PB = 0
    a.e(f"""
    v_and_b32 v22, 31, v1
    s_lshl_b32 s68, s58, 5
    v_add_u32 v22, s68, v22            ; token
    v_mul_u32_u24 v22, 272, v22
    v_lshrrev_b32 v23, 5, v1
    v_lshl_add_u32 v22, v23, 4, v22    ; + hh*16
    s_mul_i32 s68, s59, {64*272}
    s_add_u32 s68, s68, {PB}
    v_add_u32 v22, s68, v22
    v_lshrrev_b32 v23, 3, v0
    v_mul_u32_u24 v24, 272, v23
    v_and_b32 v25, 7, v0
    v_lshl_add_u32 v24, v25, 5, v24
    v_add_u32 v24, {PB}, v24
    s_lshl_b32 s68, s56, 6
    v_add_u32 v23, s68, v23
    v_lshlrev_b32 v23, 11, v23
    s_lshl_b32 s68, s57, 7
    s_add_u32 s68, s68, 1024
    v_lshl_add_u32 v23, v25, 4, v23
    v_add_u32 v23, s68, v23
    s_waitcnt lgkmcnt(0)
    s_barrier
    """)
    for nt in range(2):
        for q in range(4):
            r = ACC + 16*nt + 4*q
            a.e(f"ds_write_b128 v22, v[{r}:{r+3}] offset:{nt*128 + q*32}")
    a.e("s_waitcnt lgkmcnt(0)")
    a.e("s_barrier")
    for r in range(2):
        o = r*32*272
        a.e(f"ds_read_b128 v[{32+16*r}:{35+16*r}], v24 offset:{o}")
        a.e(f"ds_read_b128 v[{36+16*r}:{39+16*r}], v24 offset:{o+16}")
        a.e(f"ds_read_b128 v[{40+16*r}:{43+16*r}], v24 offset:{o+64*272}")
        a.e(f"ds_read_b128 v[{44+16*r}:{47+16*r}], v24 offset:{o+64*272+16}")
    for r in range(2):
        a.e(f"s_waitcnt lgkmcnt({4 if r == 0 else 0})")
        b = 32 + 16*r
        for jj in range(8):
            a.e(f"v_add_f32 v{b+jj}, v{b+jj}, v{b+8+jj}")
        for m in range(4):
            a.e(f"v_cvt_pk_bf16_f32 v{64+4*r+m}, v{b+2*m}, v{b+2*m+1}")
        if r == 1: a.e(f"v_add_u32 v23, {32*2048}, v23")
        a.e(f"global_store_dwordx4 v23, v[{64+4*r}:{67+4*r}], s[32:33]")
    stamps_out(a, cfg, 15)

TV = 240
def a_touch_setup(a, cfg):
    a.e(f"""
    s_lshr_b32 s62, s40, 1          ; tg
    s_and_b32 s63, s40, 1           ; hg
    s_lshl_b32 s64, s62, 9
    s_lshl_b32 s65, s41, 4          ; 16*jj
    s_add_u32 s64, s64, s65
    v_and_b32 v246, 15, v1
    v_lshrrev_b32 v247, 4, v1       ; 0..3
    v_add_u32 v240, s64, v246
    v_lshlrev_b32 v240, 10, v240
    v_lshl_add_u32 v240, v247, 7, v240
    v_add_u32 v241, 512, v240
    v_lshlrev_b32 v243, 6, v247
    s_lshl_b32 s66, s41, 1
    v_add_u32 v243, s66, v243
    v_bfe_u32 v248, v1, 3, 1
    v_add_u32 v243, v243, v248
    v_mul_u32_u24 v243, 3072, v243
    v_bfe_u32 v248, v1, 2, 1
    v_lshlrev_b32 v248, 10, v248
    v_add_u32 v243, v243, v248
    v_and_b32 v248, 3, v1
    v_lshlrev_b32 v248, 7, v248
    s_lshl_b32 s66, s63, 9
    s_add_u32 s67, s66, 1024
    v_add3_u32 v243, v243, v248, s67
    v_add_u32 v244, {256*3072}, v243
    v_lshrrev_b32 v249, 2, v1
    v_add_u32 v249, s65, v249
    v_mul_u32_u24 v242, 3072, v249
    v_add3_u32 v242, v242, v248, s66
    v_lshlrev_b32 v245, 10, v249
    v_add3_u32 v245, v245, v248, s66
    """)

def a_touch(a, cfg, plan):
    fl = cfg.touch_flags
    info = {"x0": (240, "s[26:27]"), "x1": (241, "s[26:27]"), "q": (242, "s[28:29]"),
            "k0": (243, "s[28:29]"), "k1": (244, "s[28:29]"), "o": (245, "s[30:31]")}
    for w, names in plan.items():
        L = a.newlabel("tch")
        a.e(f"s_cmp_eq_u32 s39, {w}")
        a.e(f"s_cbranch_scc0 {L}")
        for i, nm in enumerate(names):
            v, base = info[nm]
            a.e(f"global_load_dword v{250+i}, v{v}, {base} {fl}")
            a.vm.pop()
        a.label(L)

def role_A(a, cfg):
    a.label("L_roleA")
    a.e("""
    s_and_b32 s40, s3, 7
    s_lshr_b32 s41, s3, 3           ; j
    s_waitcnt lgkmcnt(0)
    """)
    if not cfg.do_A:
        if cfg.touch:
            a_touch_setup(a, cfg)
            a_touch(a, cfg, {0: ["x0"], 1: ["k0"], 2: ["x1"], 3: ["k1"]})
            a.e("s_waitcnt vmcnt(0)")
            a_touch(a, cfg, {1: ["q"], 3: ["o"]})
            a.e("s_waitcnt vmcnt(0)")
        a.e("s_branch L_end")
        return
    import role_a
    role_a.role_A(a, cfg)

def build(cfg):
    a = Asm()
    prologue(a, cfg)
    if cfg.do_B:
        role_B(a, cfg)
    a.e("s_branch L_end")
    a.vm = []
    role_A(a, cfg)
    a.label("L_end")
    a.e("s_endpgm")
    body = a.render()
    return body, a

HEADER = open("concat_heads__ssm_conv_s4__linear_attn_block__prompt.s.ref").read().split("; Override launch")[0]

def generate(path, cfg):
    body, a = build(cfg)
    txt = wrap(body, HEADER, 512, 256, 81920)
    open(path, "w").write(txt)
    return a

if __name__ == "__main__":
    sys.modules["kern"] = sys.modules["__main__"]
    cfg = Cfg()
    cfg.stamps = True
    if len(sys.argv) > 2:
        for kv in sys.argv[2:]:
            k, v = kv.split("=")
            setattr(cfg, k, int(v) if v.isdigit() else v)
    a = generate(sys.argv[1] if len(sys.argv) > 1 else "k_b1.s", cfg)
    print("nops inserted:", a.nnops)
```

```python
from asmlib import Asm
import kern as K

UT, YT = K.UT, K.YT
UTF, YTF = K.UTF, K.YTF
TILE = 3088
SPIN = K.SPIN_LIMIT
ROWB = 528
TB = [12288, 45056]
KC = [0, 1536]
NONCE_LDS = 3072
KD = [3088, 7200]
CP = [12288, 12288 + 16640]
UR = [45568, 45568 + 7600]
YP = 0
ROWS = list(range(8)) + [128+k for k in range(8)] + [256+2*k for k in range(4)] + [384+2*k for k in range(4)] + \
       [512, 516, 640, 644, 768, 772, 896, 900] + [1024+128*k for k in range(8)] + [2048]
assert len(ROWS) == 41

def fhex(x):
    import struct
    return hex(struct.unpack("<I", struct.pack("<f", x))[0])

USE_PK = False
def cmul(a, d, x, y, t):
    if USE_PK:
        a.e(f"v_pk_mul_f32 v[{t}:{t+1}], v[{x}:{x+1}], v[{y}:{y+1}] op_sel_hi:[1,0]")
        a.e(f"v_pk_fma_f32 v[{d}:{d+1}], v[{x}:{x+1}], v[{y}:{y+1}], v[{t}:{t+1}] op_sel:[1,1,0] op_sel_hi:[0,1,1] neg_lo:[1,0,0]")
    else:
        assert d not in (x, y)
        a.e(f"v_mul_f32 v{t}, v{x}, v{y}")
        a.e(f"v_mul_f32 v{t+1}, v{x+1}, v{y}")
        a.e(f"v_fma_f32 v{d}, -v{x+1}, v{y+1}, v{t}")
        a.e(f"v_fma_f32 v{d+1}, v{x}, v{y+1}, v{t+1}")

def poll_tags_loop(a, name, loads, tagregs):
    a.e("s_mov_b32 s61, 0")
    a.label(f"L_{name}_poll")
    for l in loads: a.e(l)
    a.e("s_add_u32 s61, s61, 1")
    a.e("s_waitcnt vmcnt(0)")
    K.tag_check(a, tagregs, acc="v9")
    a.e(f"""
    s_cmp_gt_u32 s61, {SPIN}
    s_cbranch_scc1 L_{name}_go
    s_cbranch_vccz L_{name}_go
    s_sleep 1
    s_branch L_{name}_poll
    """)
    a.label(f"L_{name}_go")
    a.vm = []


(A_TW, A_TR, A_UT0, A_UT1, A_TB, A_KM, A_C0, A_C1A, A_C1B, A_C2, A_DW, A_ER0, A_ER1, A_ZU, A_ZC, A_ZG,
 A_CR, A_CW, A_UG, A_UL, A_FU, A_FY, A_FUS, A_FYS, A_VA, A_VB, A_PW, A_OR, A_YG, A_YL, A_OUT) = (
 160, 161, 162, 163, 164, 168, 172, 173, 174, 175, 176, 177, 178, 179, 180, 181,
 182, 183, 184, 185, 186, 187, 188, 189, 190, 191, 192, 193, 194, 195, 199)

def role_A(a, cfg):
    global USE_PK
    USE_PK = cfg.pk
    st = lambda i: K.stamp(a, cfg, i)
    a.c("================= role A =================")
    if cfg.prioA: a.e(f"s_setprio {cfg.prioA}")
    a.e("""
    s_lshr_b32 s47, s39, 1
    s_and_b32 s48, s39, 1           ; w2
    s_lshl_b32 s49, s40, 6          ; 64 g
    s_lshl_b32 s50, s41, 1
    s_add_u32 s50, s50, s49         ; d0 = 64g + 2j
    s_add_u32 s51, s50, s47
    s_lshl_b32 s51, s51, 8
    v_and_b32 v2, 127, v0           ; n
    v_lshl_add_u32 v5, v2, 1, s51
    v_lshrrev_b32 v3, 4, v0         ; r''
    v_and_b32 v4, 15, v0            ; c8
    s_lshl_b32 s52, s41, 6
    v_lshl_add_u32 v6, v3, 2, s52   ; t0 = 64j + 4r''
    v_lshlrev_b32 v6, 10, v6
    s_lshl_b32 s53, s49, 1
    v_lshl_add_u32 v7, v4, 3, s53
    v_add_u32 v6, v6, v7            ; u offset
    s_lshl_b32 s45, s40, 2
    s_add_u32 s45, s45, 4
    v_mov_b32 v8, s45
    s_waitcnt lgkmcnt(0)
    """)
    st(1)
    a.e("""
    global_load_dwordx2 v[16:17], v6, s[8:9]
    global_load_dwordx2 v[18:19], v6, s[8:9] offset:1024
    global_load_dwordx2 v[20:21], v6, s[8:9] offset:2048
    global_load_dwordx2 v[22:23], v6, s[8:9] offset:3072
    global_load_ushort v10, v5, s[10:11]
    global_load_ushort v11, v5, s[12:13]
    global_load_ushort v12, v5, s[14:15]
    global_load_ushort v13, v5, s[16:17]
    global_load_ushort v14, v5, s[18:19]
    global_load_ushort v15, v5, s[20:21]
    global_load_dwordx2 v[24:25], v7, s[24:25]
    s_lshl_b32 s54, s50, 1
    s_add_u32 s54, s22, s54
    s_addc_u32 s55, s23, 0
    s_load_dword s56, s[54:55], 0
    s_cmp_lg_u32 s41, 0
    s_cbranch_scc1 L_a_nopub
    s_cmp_lg_u32 s39, 0
    s_cbranch_scc1 L_a_nopub
    s_memrealtime s[58:59]
    s_waitcnt lgkmcnt(0)
    s_or_b32 s58, s58, 8
    v_mov_b32 v9, s58
    s_mov_b64 exec, 1
    global_store_dword v8, v9, s[34:35] sc1
    s_mov_b64 exec, -1
    """)
    a.label("L_a_nopub")
    a.e(f"""
    s_cmp_lg_u32 s39, 2
    s_cbranch_scc1 L_a_nout0
    v_add_u32 v26, s49, v1
    v_lshlrev_b32 v26, 12, v26
    s_sub_u32 s57, 31, s41
    s_lshl_b32 s57, s57, 7
    s_add_u32 s57, s57, {UT}
    v_add_u32 v26, s57, v26
    global_load_dword v255, v26, s[36:37]
    """)
    a.label("L_a_nout0")
    a.vm = []
    a.e(f"""
    v_and_b32 v26, 15, v1
    v_lshrrev_b32 v27, 4, v1
    v_bfe_u32 v28, v1, 2, 2
    v_and_b32 v29, 3, v1
    v_and_b32 v30, 31, v1
    v_lshrrev_b32 v31, 5, v1
    v_lshlrev_b32 v32, 2, v4
    v_mul_u32_u24 v32, 144, v32
    v_lshlrev_b32 v33, 3, v3
    v_sub_u32 v33, 120, v33
    v_add_u32 v32, v32, v33
    v_add_u32 v{A_TW}, {TILE}, v32
    v_lshrrev_b32 v32, 3, v1
    s_lshl_b32 s57, s39, 5
    v_add_u32 v32, s57, v32
    v_mul_u32_u24 v33, 144, v32
    v_and_b32 v34, 7, v1
    v_lshl_add_u32 v33, v34, 4, v33
    v_add_u32 v{A_TR}, {TILE}, v33
    v_add_u32 v32, s49, v32
    v_lshlrev_b32 v32, 12, v32
    v_lshl_add_u32 v32, v34, 4, v32
    s_sub_u32 s57, 31, s41
    s_lshl_b32 s57, s57, 7
    s_add_u32 s57, s57, {UT}
    v_add_u32 v{A_UT0}, s57, v32
    v_add_u32 v{A_UT1}, 32768, v{A_UT0}
    v_add_u32 v200, 65536, v{A_UT0}
    v_add_u32 v201, 98304, v{A_UT0}
    v_lshl_add_u32 v32, v27, 3, v28
    s_lshl_b32 s59, s47, 15
    s_add_u32 s59, s59, {TB[0]}
    v_and_b32 v33, 1, v2
    v_bfe_u32 v34, v2, 2, 1
    v_lshl_add_u32 v33, v34, 1, v33
    v_lshl_add_u32 v34, v2, 8, s59
    """)
    for cp in range(4):
        a.e(f"v_xor_b32 v35, {cp}, v33")
        a.e(f"v_lshl_add_u32 v{A_TB+cp}, v35, 5, v34")
    a.e(f"""
    v_lshlrev_b32 v34, 7, v32
    v_lshl_add_u32 v34, v29, 3, v34
    v_add_u32 v34, s59, v34
    v_lshrrev_b32 v33, 1, v28
    v_and_b32 v35, 1, v27
    v_lshl_add_u32 v33, v35, 1, v33
    """)
    for t in range(4):
        a.e(f"v_xor_b32 v35, {t}, v33")
        a.e(f"v_lshl_add_u32 v{A_KM+t}, v35, 5, v34")
    a.e(f"""
    s_mul_i32 s59, s47, {KC[1]-KC[0]}
    s_add_u32 s59, s59, {KC[0]}
    v_lshrrev_b32 v33, 1, v27
    v_lshlrev_b32 v33, 7, v33
    v_lshl_add_u32 v33, v26, 3, v33
    v_and_b32 v34, 1, v27
    v_lshl_add_u32 v33, v34, 2, v33
    v_lshl_add_u32 v{A_C0}, v33, 1, s59          ; tile 0
    v_lshlrev_b32 v33, 6, v27
    v_cmp_gt_u32 vcc, 2, v27
    v_lshlrev_b32 v34, 2, v26
    v_lshlrev_b32 v35, 1, v26
    v_cndmask_b32 v34, v35, v34, vcc
    v_add_u32 v33, v33, v34
    v_add_u32 v33, 256, v33
    v_mov_b32 v34, 32
    v_mov_b32 v35, 2
    v_cndmask_b32 v34, v34, v35, vcc
    v_add_u32 v34, v33, v34
    v_lshl_add_u32 v{A_C1A}, v33, 1, s59
    v_lshl_add_u32 v{A_C1B}, v34, 1, s59
    v_lshl_add_u32 v33, v27, 6, v26
    v_add_u32 v33, 512, v33
    v_lshl_add_u32 v{A_C2}, v33, 1, s59          ; tile 2
    v_lshlrev_b32 v33, 4, v0
    v_add_u32 v{A_DW}, 16, v33
    v_mov_b32 v{A_ER0}, v33
    v_lshlrev_b32 v34, 3, v0
    v_add_u32 v{A_ER1}, 256, v34
    s_cmp_eq_u32 s39, 1
    s_cbranch_scc0 L_a_ad1
    v_lshlrev_b32 v34, 2, v0
    v_add_u32 v{A_ER0}, 512, v34
    """)
    a.label("L_a_ad1")
    a.e(f"""
    s_cmp_ge_u32 s39, 2
    s_cbranch_scc0 L_a_ad2
    v_add_u32 v34, 384, v0
    v_lshlrev_b32 v{A_ER0}, 1, v34
    """)
    a.label("L_a_ad2")
    a.e(f"""
    v_mov_b32 v{A_ZU}, v33
    v_lshrrev_b32 v34, 2, v0
    v_mul_u32_u24 v34, 4160, v34
    v_and_b32 v35, 3, v0
    v_lshl_add_u32 v{A_ZC}, v35, 4, v34
    v_mul_u32_u24 v34, {KD[1]-KD[0]}, v0
    v_add_u32 v{A_ZG}, {KD[0]}, v34
    ; copies
    v_mov_b32 v{A_CR}, v33
    v_add_u32 v{A_CW}, 64, v33
    v_lshrrev_b32 v34, 7, v0                     ; cch
    v_add_u32 v35, s50, v34
    v_lshlrev_b32 v35, 12, v35
    v_lshl_add_u32 v35, v2, 4, v35
    v_add_u32 v{A_UG}, {UT}, v35
    v_lshrrev_b32 v35, 2, v2
    v_mul_u32_u24 v35, 80, v35
    v_and_b32 v36, 3, v2
    v_lshl_add_u32 v35, v36, 4, v35
    v_mul_u32_u24 v34, {UR[1]-UR[0]}, v34
    v_add_u32 v{A_UL}, v35, v34
    v_lshrrev_b32 v34, 3, v1
    v_lshlrev_b32 v34, 7, v34
    v_and_b32 v35, 7, v1
    v_lshl_add_u32 v34, v35, 2, v34
    s_lshl_b32 s58, s40, 10
    s_add_u32 s58, s58, {UTF}
    v_add_u32 v{A_FU}, s58, v34
    v_lshrrev_b32 v34, 3, v30
    v_lshlrev_b32 v34, 7, v34
    v_lshl_add_u32 v34, v35, 2, v34
    s_lshl_b32 s58, s40, 9
    s_add_u32 s58, s58, {YTF}
    v_add_u32 v{A_FY}, s58, v34
    s_lshl_b32 s57, s41, 1
    s_add_u32 s57, s57, s48
    s_lshr_b32 s59, s57, 3
    s_lshl_b32 s59, s59, 7
    s_and_b32 s57, s57, 7
    s_lshl_b32 s57, s57, 2
    s_add_u32 s57, s57, s59
    s_lshl_b32 s59, s40, 10
    s_add_u32 s57, s57, s59
    s_add_u32 s57, s57, {UTF}
    v_mov_b32 v{A_FUS}, s57
    s_lshr_b32 s59, s41, 3
    s_lshl_b32 s59, s59, 7
    s_and_b32 s57, s41, 7
    s_lshl_b32 s57, s57, 2
    s_add_u32 s57, s57, s59
    s_add_u32 s57, s57, s58
    v_mov_b32 v{A_FYS}, s57
    v_sub_u32 v34, 3, v30
    v_and_b32 v34, 3, v34
    v_mul_u32_u24 v35, 4160, v34
    v_add_u32 v36, v30, v34
    v_add_u32 v36, 9, v36
    v_lshlrev_b32 v37, 3, v31
    v_sub_u32 v36, v36, v37
    v_lshl_add_u32 v35, v36, 1, v35
    s_mul_i32 s57, s47, {CP[1]-CP[0]}
    s_lshl_b32 s58, s48, 10
    s_add_u32 s57, s57, s58
    s_add_u32 s57, s57, {CP[0]}
    v_add_u32 v{A_VA}, s57, v35
    v_sub_u32 v35, 31, v30
    v_mul_u32_u24 v35, 80, v35
    v_lshlrev_b32 v36, 4, v31
    v_sub_u32 v35, v35, v36
    v_add_u32 v35, 16, v35
    s_mul_i32 s57, s47, {UR[1]-UR[0]}
    s_mul_i32 s58, s48, {16*80}
    s_add_u32 s57, s57, s58
    s_add_u32 s57, s57, {UR[0]}
    v_add_u32 v{A_VB}, s57, v35
    v_mul_u32_u24 v35, 144, v30
    v_lshl_add_u32 v35, v31, 4, v35
    s_mul_i32 s57, s39, {64*144}
    v_add_u32 v{A_PW}, s57, v35
    v_lshrrev_b32 v35, 2, v0
    v_mul_u32_u24 v35, 144, v35
    v_and_b32 v36, 3, v0
    v_lshl_add_u32 v{A_OR}, v36, 5, v35
    s_lshl_b32 s57, s50, 12
    s_add_u32 s57, s57, {YT}
    v_lshl_add_u32 v{A_YG}, v0, 4, s57
    v_lshlrev_b32 v35, 2, v4
    v_add_u32 v35, s49, v35
    v_lshlrev_b32 v35, 12, v35
    v_lshl_add_u32 v35, v3, 3, v35
    s_lshl_b32 s59, s41, 7
    s_add_u32 s59, s59, {YT}
    v_add_u32 v{A_YL}, s59, v35
    v_add_u32 v{A_YL+1}, 4096, v{A_YL}
    v_add_u32 v{A_YL+2}, 8192, v{A_YL}
    v_add_u32 v{A_YL+3}, 12288, v{A_YL}
    v_lshlrev_b32 v35, 1, v6
    v_sub_u32 v{A_OUT}, v35, v7
    """)
    if cfg.touch:
        K.a_touch_setup(a, cfg)
    a.e("s_waitcnt vmcnt(0) lgkmcnt(0)")
    st(2)
    a.e(f"""
    s_cmp_eq_u32 s39, 3
    s_cbranch_scc0 L_a_nopt
    global_load_dword v253, v{A_FU}, s[36:37] sc1
    global_load_dword v254, v{A_FY}, s[36:37] sc1
    """)
    a.label("L_a_nopt")
    if cfg.touch:
        K.a_touch(a, cfg, {2: ["x1", "k0"], 3: ["k1"]})
    a.e("""
    s_mov_b32 s57, 0x05040100
    s_mov_b32 s58, 0x07060302
    """)
    for e in range(4):
        sel = "s57" if e % 2 == 0 else "s58"
        h = e // 2
        a.e(f"v_perm_b32 v{32+2*e}, v{20+h}, v{22+h}, {sel}")
        a.e(f"v_perm_b32 v{33+2*e}, v{16+h}, v{18+h}, {sel}")
        a.e(f"ds_write_b64 v{A_TW}, v[{32+2*e}:{33+2*e}] offset:{e*144}")
    a.e("""
    s_waitcnt lgkmcnt(0)
    s_barrier
    s_cmp_ge_u32 s39, 2
    s_cbranch_scc1 L_a_nout
    """)
    for i in range(4):
        a.e(f"ds_read_b128 v[{224+4*i}:{227+4*i}], v{A_TR} offset:{i*8*144}")
    UTA = [A_UT0, A_UT1, 200, 201]
    for i in range(4):
        a.e(f"s_waitcnt lgkmcnt({3-i})")
        a.e(f"global_store_dwordx4 v{UTA[i]}, v[{224+4*i}:{227+4*i}], s[36:37]")
    a.e("global_load_dword v9, v8, s[34:35] sc1")
    a.label("L_a_nout")
    a.vm = []
    if cfg.dbgT: st(5)
    def ut_flag():
        a.e(f"""
        s_cmp_ge_u32 s39, 2
        s_cbranch_scc1 L_a_nofl
        s_mov_b32 s61, 0
        """)
        if cfg.dbgN: st(4)
        a.e(f"""
        s_waitcnt vmcnt(0)
        """)
        if cfg.dbgN: st(7)
        a.e(f"""
        v_readfirstlane_b32 s38, v9
        s_cmp_lg_u32 s38, 0
        s_cbranch_scc1 L_a_nok
        """)
        a.label("L_a_npoll")
        a.e(f"""
        global_load_dword v9, v8, s[34:35] sc1
        s_waitcnt vmcnt(0)
        v_readfirstlane_b32 s38, v9
        s_add_u32 s61, s61, 1
        s_cmp_gt_u32 s61, {SPIN}
        s_cbranch_scc1 L_a_nok
        s_cmp_eq_u32 s38, 0
        s_cbranch_scc1 L_a_npoll
        """)
        a.label("L_a_nok")
        if cfg.dbgN:
            st(5); K.stampval(a, cfg, 6, "s61")
        a.e(f"""
        s_getreg_b32 s57, hwreg(HW_REG_XCC_ID)
        s_and_b32 s57, s57, 7
        s_and_b32 s58, s38, 0xfffffff8
        s_or_b32 s57, s57, s58
        v_mov_b32 v9, s57
        s_mov_b64 exec, 1
        global_store_dword v{A_FUS}, v9, s[36:37]
        s_mov_b64 exec, -1
        """)
        a.label("L_a_nofl")
        a.vm = []

    LOG2E = fhex(1.4426950408889634); INV2PI = fhex(0.15915494309189535)
    a.e(f"""
    s_lshr_b32 s59, s56, 16
    s_and_b32 s60, s56, 0xffff
    s_cmp_eq_u32 s47, 0
    s_cselect_b32 s59, s60, s59
    s_lshl_b32 s59, s59, 16
    v_mov_b32 v28, s59
    v_mul_f32 v29, {LOG2E}, v28
    v_mov_b32 v30, {LOG2E}
    v_fma_f32 v30, v28, v30, -v29
    v_fmac_f32 v30, 0x32a57060, v28
    v_exp_f32 v29, v29
    v_mul_f32 v30, {fhex(0.6931471805599453)}, v30
    v_fma_f32 v29, v29, v30, v29
    v_cvt_pk_bf16_f32 v29, v29, v29
    v_lshlrev_b32 v29, 16, v29
    """)
    for i in range(6): a.e(f"v_lshlrev_b32 v{10+i}, 16, v{10+i}")
    a.e(f"""
    v_mul_f32 v10, v29, v10          ; a_re
    v_mul_f32 v11, v29, v11          ; a_im
    v_mul_f32 v12, v29, v12          ; dB_re
    v_mul_f32 v13, v29, v13          ; dB_im
    v_mul_f32 v10, {LOG2E}, v10      ; ar2
    v_mul_f32 v11, {INV2PI}, v11     ; ai2
    """)
    P = {}
    nxtp = [50]
    def pair(name):
        P[name] = nxtp[0]; nxtp[0] += 2
        return P[name]
    TMP = [28, 30]
    ti = [0]
    def mul(dn, xn, yn):
        d = P.get(dn) or pair(dn)
        t = TMP[ti[0] % 2]; ti[0] += 1
        cmul(a, d, P[xn], P[yn], t)
    pair("X0"); cmul(a, P["X0"], 14, 12, 28)
    for x in (1, 8, 128, 256, 512, 1024):
        d = pair(f"E{x}")
        if x == 1:
            a.e(f"v_exp_f32 v6, v10")
            a.e(f"v_fract_f32 v7, v11")
        else:
            a.e(f"v_mul_f32 v6, {fhex(float(x))}, v10")
            a.e(f"v_mul_f32 v7, {fhex(float(x))}, v11")
            a.e(f"v_exp_f32 v6, v6")
            a.e(f"v_fract_f32 v7, v7")
        a.e(f"v_cos_f32 v26, v7")
        a.e(f"v_sin_f32 v27, v7")
        a.e(f"v_mul_f32 v{d}, v6, v26")
        a.e(f"v_mul_f32 v{d+1}, v6, v27")
    if cfg.flagpos == 3: ut_flag()
    if cfg.dbgT: st(4)
    OUT = [120, 128]
    oc = [0]
    def put_chunk(q, names, neg):
        o = OUT[oc[0] % 2]; oc[0] += 1
        sg = "-" if neg else ""
        for m in range(4):
            x, y = P[names[2*m]], P[names[2*m+1]]
            a.e(f"v_cvt_pk_bf16_f32 v{o+m}, v{x}, v{y}")
            a.e(f"v_cvt_pk_bf16_f32 v{o+4+m}, {sg}v{x+1}, {sg}v{y+1}")
        ad = A_TB + (q >> 1)
        a.e(f"ds_write_b128 v{ad}, v[{o}:{o+3}] offset:{(q & 1)*16}")
        a.e(f"ds_write_b128 v{ad}, v[{o+4}:{o+7}] offset:{128 + (q & 1)*16}")
    pair("ONE")
    a.e(f"v_mov_b32 v{P['ONE']}, 1.0")
    a.e(f"v_mov_b32 v{P['ONE']+1}, 0")
    for k in range(8): pair(f"S{k}")
    for k in range(1, 8):
        mul(f"X{k}", f"X{k-1}", "E1")
    put_chunk(0, [f"X{k}" for k in range(8)], True)
    P["Y8"] = P["E8"]
    mul("Y16", "Y8", "Y8"); mul("Y24", "Y16", "Y8"); mul("Y32", "Y16", "Y16")
    mul("Y40", "Y32", "Y8"); mul("Y48", "Y32", "Y16"); mul("Y56", "Y32", "Y24")
    put_chunk(6, ["ONE", "Y8", "Y16", "Y24", "Y32", "Y40", "Y48", "Y56"], False)
    if cfg.dbgT: st(6)
    mul("S0", "Y32", "Y32")
    for jj in range(1, 8): mul(f"S{jj}", "S0", f"Y{8*jj}")
    put_chunk(7, [f"S{k}" for k in range(8)], False)
    for k in range(8): mul(f"S{k}", f"X{k}", "E128")
    put_chunk(1, [f"S{k}" for k in range(8)], True)
    for i_, k in enumerate((0, 2, 4, 6)):
        mul(f"S{i_}", f"X{k}", "E256")
    for i_ in range(4):
        mul(f"S{4+i_}", f"S{i_}", "E128")
    put_chunk(2, [f"S{k}" for k in range(8)], True)
    mul("S0", "X0", "E512"); mul("S1", "X4", "E512")
    for i_ in range(2, 8): mul(f"S{i_}", f"S{i_-2}", "E128")
    put_chunk(3, [f"S{k}" for k in range(8)], True)
    mul("S0", "X0", "E1024")
    for i_ in range(1, 8): mul(f"S{i_}", f"S{i_-1}", "E128")
    pair("XL"); mul("XL", "S0", "E1024")
    put_chunk(4, [f"S{k}" for k in range(8)], True)
    a.e(f"v_cvt_pk_bf16_f32 v120, v{P['XL']}, -v{P['XL']+1}")
    a.e(f"ds_write_b16 v{A_TB+2}, v120 offset:16")
    a.e(f"ds_write_b16_d16_hi v{A_TB+2}, v120 offset:{128+16}")
    assert nxtp[0] <= 120, nxtp
    if cfg.flagpos == 0: ut_flag()
    if cfg.dbgT: st(7)
    a.e("s_waitcnt lgkmcnt(0)")
    if cfg.dbgT: st(8)
    a.e("s_barrier")
    st(3)
    if cfg.touch:
        K.a_touch(a, cfg, {2: ["q"], 3: ["o"]})
    a.e(f"""
    s_cmp_lg_u32 s39, 0
    s_cbranch_scc1 L_a_uf0
    global_load_dword v30, v{A_FU}, s[36:37] sc1
    """)
    a.label("L_a_uf0")
    YF, XF, D0 = 32, 64, 128
    def trfrag(dst, addr, s):
        a.e(f"ds_read_b64_tr_b16 v[{dst}:{dst+1}], v{addr} offset:{s*4096}")
        a.e(f"ds_read_b64_tr_b16 v[{dst+2}:{dst+3}], v{addr} offset:{s*4096 + 512}")
    a.e("""
    s_cmp_eq_u32 s48, 0
    s_cbranch_scc0 L_a_k2
    """)
    a.lg = []
    for s in range(8):
        trfrag(YF+4*s, A_KM+3, s)
        for t in range(2): trfrag(XF+32*t+4*s, A_KM+t, s)
    for s in range(8):
        a.e(f"s_waitcnt lgkmcnt({min(15, 6*(7-s))})")
        for t in range(2):
            c = "0" if s == 0 else f"v[{D0+4*t}:{D0+4*t+3}]"
            a.e(f"v_mfma_f32_16x16x32_bf16 v[{D0+4*t}:{D0+4*t+3}], v[{XF+32*t+4*s}:{XF+32*t+4*s+3}], v[{YF+4*s}:{YF+4*s+3}], {c}")
    a.e(f"""
    v_cvt_pk_bf16_f32 v136, v{D0}, v{D0+1}
    v_cvt_pk_bf16_f32 v137, v{D0+2}, v{D0+3}
    v_cvt_pk_bf16_f32 v138, v{D0+4}, v{D0+5}
    v_cvt_pk_bf16_f32 v139, v{D0+6}, v{D0+7}
    ds_write_b64 v{A_C0}, v[136:137]
    ds_write_b32 v{A_C1A}, v138
    ds_write_b32 v{A_C1B}, v139
    s_branch L_a_kdone
    """)
    a.label("L_a_k2")
    for s in range(8):
        trfrag(YF+4*s, A_KM+3, s)
        trfrag(XF+4*s, A_KM+2, s)
    for s in range(8):
        a.e(f"s_waitcnt lgkmcnt({min(15, 4*(7-s))})")
        c = "0" if s == 0 else f"v[{D0}:{D0+3}]"
        a.e(f"v_mfma_f32_16x16x32_bf16 v[{D0}:{D0+3}], v[{XF+4*s}:{XF+4*s+3}], v[{YF+4*s}:{YF+4*s+3}], {c}")
    a.e(f"""
    v_cvt_pk_bf16_f32 v136, v{D0}, v{D0+1}
    v_cvt_pk_bf16_f32 v137, v{D0+2}, v{D0+3}
    ds_write_b16 v{A_C2}, v136
    ds_write_b16_d16_hi v{A_C2}, v136 offset:32
    ds_write_b16 v{A_C2}, v137 offset:64
    ds_write_b16_d16_hi v{A_C2}, v137 offset:96
    """)
    a.label("L_a_kdone")
    if cfg.flagpos == 1: ut_flag()
    a.e(f"""
    s_cmp_lg_u32 s39, 0
    s_cbranch_scc1 L_a_uf1
    s_and_b32 s58, s38, 0xfffffff8
    s_getreg_b32 s57, hwreg(HW_REG_XCC_ID)
    s_and_b32 s57, s57, 7
    s_or_b32 s59, s57, s58
    s_waitcnt vmcnt(0)
    v_cmp_ne_u32 vcc, s59, v30
    s_cmp_eq_u64 vcc, 0
    s_cselect_b32 s57, 1, 0
    v_mov_b32 v31, s57
    v_mov_b32 v30, 0
    ds_write_b32 v30, v31 offset:{NONCE_LDS+8}
    ds_write_b32 v30, v31 offset:{NONCE_LDS+4}
    """)
    a.label("L_a_uf1")
    a.e(f"""
    s_mov_b32 s57, 0x01000100
    s_mov_b32 s58, 0x03020302
    s_mov_b32 s59, 0x05040302
    s_mov_b32 s63, 0x05040100
    v_mov_b32 v48, 0
    v_mov_b32 v49, 0
    v_mov_b32 v50, 0
    v_mov_b32 v51, 0
    s_waitcnt lgkmcnt(0)
    s_barrier
    """)
    a.lg = []
    a.e(f"""
    v_mov_b32 v30, 0
    ds_read_b32 v31, v30 offset:{NONCE_LDS+8}
    s_waitcnt lgkmcnt(0)
    v_readfirstlane_b32 s44, v31
    s_cmp_eq_u32 s44, 0
    s_cbranch_scc1 L_a_ul0
    global_load_dwordx4 v[208:211], v{A_UG}, s[36:37] sc1
    global_load_dwordx4 v[212:215], v{A_UG}, s[36:37] offset:2048 sc1
    """)
    a.label("L_a_ul0")
    if not (cfg.dbgT or cfg.dbgY or cfg.dbgN): st(4)
    a.e("""
    s_cmp_eq_u32 s39, 0
    s_cbranch_scc1 L_a_e0
    s_cmp_eq_u32 s39, 1
    s_cbranch_scc1 L_a_e2
    """)
    for c in range(2):
        a.e(f"ds_read_u16 v{32+2*c}, v{A_ER0} offset:{KC[c]}")
        a.e(f"ds_read_u16 v{33+2*c}, v{A_ER0} offset:{KC[c]+2}")
    a.e(f"""
    v_and_b32 v28, 1, v0
    v_cmp_eq_u32 vcc, 0, v28
    s_waitcnt lgkmcnt(0)
    """)
    for c in range(2):
        c0, c1 = 32+2*c, 33+2*c
        o = 40 + 4*c
        a.e(f"v_perm_b32 v{o}, v{c1}, v{c0}, s57")
        a.e(f"v_perm_b32 v{o+3}, v{c0}, v{c1}, s57")
        a.e(f"v_perm_b32 v{o+2}, v{c1}, v{c0}, s63")
        a.e(f"v_mov_b32 v{o+1}, v{o}")
        a.e(f"v_cndmask_b32 v{o+2}, v{o+3}, v{o+2}, vcc")
    a.e("s_branch L_a_ew")
    a.label("L_a_e2")
    for c in range(2):
        a.e(f"ds_read_b32 v{32+2*c}, v{A_ER0} offset:{KC[c]}")
        a.e(f"ds_read_b32 v{33+2*c}, v{A_ER0} offset:{KC[c]+4}")
    a.e("s_waitcnt lgkmcnt(0)")
    for c in range(2):
        A_, B_ = 32+2*c, 33+2*c
        o = 40 + 4*c
        a.e(f"v_perm_b32 v{o}, v{A_}, v{A_}, s57")
        a.e(f"v_mov_b32 v{o+1}, v{A_}")
        a.e(f"v_perm_b32 v{o+2}, v{A_}, v{A_}, s58")
        a.e(f"v_perm_b32 v{o+3}, v{B_}, v{B_}, s57")
    a.e("s_branch L_a_ew")
    a.label("L_a_e0")
    for c in range(2):
        a.e(f"ds_read_b128 v[{40+4*c}:{43+4*c}], v{A_ER0} offset:{KC[c]}")
        a.e(f"ds_read_b64 v[{32+4*c}:{33+4*c}], v{A_ER1} offset:{KC[c]}")
        a.e(f"ds_read_b32 v{34+4*c}, v{A_ER1} offset:{KC[c]+8}")
    a.e("""
    v_cmp_le_u32 vcc, 32, v0
    s_waitcnt lgkmcnt(0)
    """)
    for c in range(2):
        A_, B_, C_ = 32+4*c, 33+4*c, 34+4*c
        o = 40 + 4*c
        a.e(f"v_perm_b32 v52, v{A_}, v{A_}, s57")
        a.e(f"v_perm_b32 v53, v{B_}, v{A_}, s59")
        a.e(f"v_perm_b32 v54, v{B_}, v{B_}, s57")
        a.e(f"v_perm_b32 v55, v{C_}, v{B_}, s59")
        for q in range(4):
            a.e(f"v_cndmask_b32 v{o+q}, v{o+q}, v{52+q}, vcc")
    a.label("L_a_ew")
    for c in range(2):
        a.e(f"ds_write_b128 v{A_DW}, v[{40+4*c}:{43+4*c}] offset:{KD[c]}")
    a.e(f"""
    v_cmp_gt_u32 vcc, 160, v0
    s_and_b64 exec, exec, vcc
    ds_write_b128 v{A_ZU}, v[48:51] offset:{UR[0] + 64*80}
    ds_write_b128 v{A_ZU}, v[48:51] offset:{UR[1] + 64*80}
    v_cmp_gt_u32 vcc, 32, v0
    s_and_b64 exec, exec, vcc
    ds_write_b128 v{A_ZC}, v[48:51] offset:{CP[0]}
    v_cmp_gt_u32 vcc, 2, v0
    s_and_b64 exec, exec, vcc
    ds_write_b128 v{A_ZG}, v[48:51]
    s_mov_b64 exec, -1
    """)
    if cfg.flagpos == 2: ut_flag()
    pass
    a.e("""
    s_waitcnt lgkmcnt(0)
    s_barrier
    """)
    a.vm = []
    if not (cfg.dbgT or cfg.dbgY or cfg.dbgN): st(5)
    for c in range(2):
        b = 32 + 16*c
        a.e(f"ds_read_b64 v[{b}:{b+1}], v{A_CR} offset:{KD[c] + 8}")
        a.e(f"ds_read_b128 v[{b+4}:{b+7}], v{A_CR} offset:{KD[c] + 16}")
    for c in range(2):
        a.e(f"s_waitcnt lgkmcnt({2 - 2*c})" if c == 0 else "s_waitcnt lgkmcnt(4)")
        b = 32 + 16*c
        n0, n1, n2, n3, n4, n5 = b, b+1, b+4, b+5, b+6, b+7
        m = b + 8
        t1 = 96 + 8*c
        base = CP[c]
        a.e(f"ds_write_b128 v{A_CW}, v[{n2}:{n5}] offset:{base}")
        a.e(f"v_alignbit_b32 v{m}, v{n1}, v{n0}, 16")
        for q, (hi, lo) in enumerate(((n2, n1), (n3, n2), (n4, n3))):
            a.e(f"v_alignbit_b32 v{m+1+q}, v{hi}, v{lo}, 16")
        a.e(f"ds_write_b128 v{A_CW}, v[{m}:{m+3}] offset:{base + 3*4160}")
        for q, (hi, lo) in enumerate(((n2, n1), (n3, n2), (n4, n3), (n5, n4))):
            a.e(f"v_alignbit_b32 v{t1+q}, v{hi}, v{lo}, 16")
        a.e(f"ds_write_b128 v{A_CW}, v[{t1}:{t1+3}] offset:{base + 4160}")
        for q, r in enumerate((n1, n2, n3, n4)): a.e(f"v_mov_b32 v{t1+4+q}, v{r}")
        a.e(f"ds_write_b128 v{A_CW}, v[{t1+4}:{t1+7}] offset:{base + 2*4160}")
    if not (cfg.dbgT or cfg.dbgY or cfg.dbgN): st(6)
    a.e(f"""
    s_cmp_lg_u32 s44, 0
    s_cbranch_scc1 L_a_fast
    s_cmp_ge_u32 s39, 2
    s_cbranch_scc1 L_a_utf_go
    s_and_b32 s58, s38, 0xfffffff8
    s_getreg_b32 s57, hwreg(HW_REG_XCC_ID)
    s_and_b32 s57, s57, 7
    s_or_b32 s59, s57, s58
    s_mov_b32 s61, 0
    v_add_u32 v28, 8192, v{A_FU}
    """)
    a.label("L_a_utf_poll")
    a.e(f"""
    global_load_dword v30, v{A_FU}, s[36:37] sc1
    global_load_dword v31, v28, s[36:37] sc1
    s_add_u32 s61, s61, 1
    s_waitcnt vmcnt(0)
    v_cmp_ne_u32 vcc, s59, v30
    s_cmp_eq_u64 vcc, 0
    s_cbranch_scc1 L_a_utf_local
    v_cmp_ne_u32 s[64:65], s58, v31
    s_and_b64 vcc, vcc, s[64:65]
    s_cbranch_vccz L_a_utf_glob
    s_cmp_eq_u32 s61, {cfg.ut_patience}
    s_cbranch_scc0 L_a_utf_again
    s_mov_b32 s60, 0
    """)
    a.label("L_a_utf_pub")
    a.e(f"""
    global_store_dwordx4 v{A_UT0}, v[224:227], s[36:37] sc1
    global_store_dwordx4 v{A_UT1}, v[228:231], s[36:37] sc1
    global_store_dwordx4 v200, v[232:235], s[36:37] sc1
    global_store_dwordx4 v201, v[236:239], s[36:37] sc1
    s_waitcnt vmcnt(0)
    v_add_u32 v29, 8192, v{A_FUS}
    v_mov_b32 v30, s58
    s_mov_b64 exec, 1
    global_store_dword v29, v30, s[36:37] sc1
    s_mov_b64 exec, -1
    s_cmp_lg_u32 s60, 0
    s_cbranch_scc1 L_a_utf_glob2
    """)
    a.label("L_a_utf_again")
    a.e(f"""
    s_cmp_gt_u32 s61, {SPIN}
    s_cbranch_scc1 L_a_utf_glob2
    s_sleep 1
    s_branch L_a_utf_poll
    """)
    a.label("L_a_utf_local")
    a.e("s_mov_b32 s57, 1")
    a.e("s_branch L_a_utf_ok")
    a.label("L_a_utf_glob")
    a.e(f"""
    s_mov_b32 s60, 1
    s_cmp_lt_u32 s61, {cfg.ut_patience}
    s_cbranch_scc1 L_a_utf_pub
    s_cmp_eq_u32 s61, {cfg.ut_patience}
    s_cbranch_scc1 L_a_utf_pub
    """)
    a.label("L_a_utf_glob2")
    a.e("s_mov_b32 s57, 0")
    a.label("L_a_utf_ok")
    a.e(f"""
    v_mov_b32 v31, s57
    v_mov_b32 v30, 0
    ds_write_b32 v30, v31 offset:{NONCE_LDS+4}
    """)
    a.label("L_a_utf_go")
    a.e(f"""
    s_waitcnt lgkmcnt(0)
    s_barrier
    global_load_dwordx4 v[208:211], v{A_UG}, s[36:37] sc1
    global_load_dwordx4 v[212:215], v{A_UG}, s[36:37] offset:2048 sc1
    """)
    a.label("L_a_fast")
    a.e(f"""
    v_mov_b32 v30, 0
    ds_read_b32 v31, v30 offset:{NONCE_LDS+4}
    """)
    for e in range(4):
        h, hi = e // 2, e % 2
        a.e(f"v_{'and_b32' if hi else 'lshlrev_b32'} v{80+e}, {'0xffff0000' if hi else '16'}, v{24+h}")
    for rho in range(4):
        for e in range(4):
            h, hi = e // 2, e % 2
            a.e(f"v_{'and_b32' if hi else 'lshlrev_b32'} v{224+4*rho+e}, {'0xffff0000' if hi else '16'}, v{16+2*rho+h}")
            a.e(f"v_mul_f32 v{224+4*rho+e}, v{224+4*rho+e}, v{80+e}")
        for h in range(2):
            a.e(f"v_cvt_pk_bf16_f32 v{84+h}, v{224+4*rho+2*h}, v{224+4*rho+2*h+1}")
        for h in range(2):
            a.e(f"v_lshlrev_b32 v{224+4*rho+2*h}, 16, v{84+h}")
            a.e(f"v_and_b32 v{224+4*rho+2*h+1}, 0xffff0000, v{84+h}")
    a.e("s_waitcnt vmcnt(0) lgkmcnt(0)")
    a.e("v_readfirstlane_b32 s46, v31")
    a.vm = []
    if not (cfg.dbgT or cfg.dbgY or cfg.dbgN): st(7)
    a.e(f"""
    ds_write_b128 v{A_UL}, v[208:211] offset:{UR[0]}
    ds_write_b128 v{A_UL}, v[212:215] offset:{UR[0] + 32*80}
    s_waitcnt lgkmcnt(0)
    s_barrier
    """)
    if not (cfg.dbgT or cfg.dbgY or cfg.dbgN): st(8)
    a.e(f"s_setprio {cfg.prioA2}")
    if cfg.ytouch:
        a.e(f"""
        s_cmp_lg_u32 s39, 2
        s_cbranch_scc1 L_a_noyt
        s_lshl_b32 s57, s50, 12
        s_add_u32 s57, s57, {YT}
        v_lshl_add_u32 v28, v1, 7, s57
        global_load_dword v252, v28, s[36:37]
        """)
        a.label("L_a_noyt")
    ACC0, ACC1 = 128, 144
    NB = 3
    FR = [32 + 16*i for i in range(NB)]
    steps = [(dl, hf) for dl in range(16) for hf in range(2)]
    def rd(i):
        dl, hf = steps[i]
        f = FR[i % NB]
        ao = 64*dl + 32*(1-hf)
        bo = 80*dl + 32*(1-hf)
        t = f"cv{i}"
        return [(f"ds_read_b64 v[{f}:{f+1}], v{A_VA} offset:{ao}", t),
                (f"ds_read_b64 v[{f+2}:{f+3}], v{A_VA} offset:{ao+8}", t),
                (f"ds_read_b128 v[{f+8}:{f+11}], v{A_VB} offset:{bo+2560}", t),
                (f"ds_read_b128 v[{f+12}:{f+15}], v{A_VB} offset:{bo}", t),
                (f"ds_read_b64 v[{f+4}:{f+5}], v{A_VA} offset:{ao+2048}", t),
                (f"ds_read_b64 v[{f+6}:{f+7}], v{A_VA} offset:{ao+2056}", t)]
    a.lg = []
    for i in (0, 1):
        for t, tg in rd(i): a.e(t, lg=tg)
    for i in range(32):
        f = FR[i % NB]
        a.wait_lg(f"cv{i}")
        c0 = "0" if i == 0 else f"v[{ACC0}:{ACC0+15}]"
        c1 = "0" if i == 0 else f"v[{ACC1}:{ACC1+15}]"
        R = rd(i + 2) if i + 2 < 32 else []
        a.e(f"v_mfma_f32_32x32x16_bf16 v[{ACC0}:{ACC0+15}], v[{f}:{f+3}], v[{f+8}:{f+11}], {c0}")
        for t, tg in R[0:2]: a.e(t, lg=tg)
        a.e(f"v_mfma_f32_32x32x16_bf16 v[{ACC1}:{ACC1+15}], v[{f}:{f+3}], v[{f+12}:{f+15}], {c1}")
        for t, tg in R[2:4]: a.e(t, lg=tg)
        a.e(f"v_mfma_f32_32x32x16_bf16 v[{ACC1}:{ACC1+15}], v[{f+4}:{f+7}], v[{f+8}:{f+11}], v[{ACC1}:{ACC1+15}]")
        for t, tg in R[4:6]: a.e(t, lg=tg)
    st(9)
    a.e(f"s_setprio {cfg.prioA3}")
    a.e("""
    s_waitcnt vmcnt(0) lgkmcnt(0)
    s_barrier
    """)
    for tau, acc in ((0, ACC0), (1, ACC1)):
        for q in range(4):
            a.e(f"ds_write_b128 v{A_PW}, v[{acc+4*q}:{acc+4*q+3}] offset:{YP + tau*32*144 + q*32}")
    a.e("""
    s_waitcnt lgkmcnt(0)
    s_barrier
    """)
    for c in range(2):
        o = YP + (c*2)*64*144
        b = 32 + 16*c
        a.e(f"ds_read_b128 v[{b}:{b+3}], v{A_OR} offset:{o}")
        a.e(f"ds_read_b128 v[{b+8}:{b+11}], v{A_OR} offset:{o + 64*144}")
        a.e(f"ds_read_b128 v[{b+4}:{b+7}], v{A_OR} offset:{o + 16}")
        a.e(f"ds_read_b128 v[{b+12}:{b+15}], v{A_OR} offset:{o + 64*144 + 16}")
    for c in range(2):
        a.e(f"s_waitcnt lgkmcnt({4-4*c})")
        b = 32 + 16*c
        for q in range(8): a.e(f"v_add_f32 v{b+q}, v{b+q}, v{b+8+q}")
        for m in range(4): a.e(f"v_cvt_pk_bf16_f32 v{64+4*c+m}, v{b+2*m}, v{b+2*m+1}")
    a.e(f"""
    v_add_u32 v29, 4096, v{A_YG}
    s_cmp_eq_u32 s46, 0
    s_cbranch_scc1 L_a_yg
    global_store_dwordx4 v{A_YG}, v[64:67], s[36:37]
    global_store_dwordx4 v29, v[68:71], s[36:37]
    s_branch L_a_yd
    """)
    a.label("L_a_yg")
    a.e(f"""
    global_store_dwordx4 v{A_YG}, v[64:67], s[36:37] sc1
    global_store_dwordx4 v29, v[68:71], s[36:37] sc1
    """)
    a.label("L_a_yd")
    a.e(f"""
    s_waitcnt vmcnt(0)
    s_barrier
    """)
    st(10)
    a.e(f"""
    s_cmp_lg_u32 s39, 1
    s_cbranch_scc1 L_a_ytf_go
    v_mov_b32 v28, s38
    s_mov_b64 exec, 1
    s_cmp_eq_u32 s46, 0
    s_cbranch_scc1 L_a_yfg
    global_store_dword v{A_FYS}, v28, s[36:37]
    s_branch L_a_yfd
    """)
    a.label("L_a_yfg")
    a.e(f"global_store_dword v{A_FYS}, v28, s[36:37] sc1")
    a.label("L_a_yfd")
    a.e("s_mov_b64 exec, -1")
    if cfg.dbgY: st(4)
    a.e("s_mov_b32 s61, 0")
    a.label("L_a_ytf_poll")
    a.e(f"""
    global_load_dword v29, v{A_FY}, s[36:37] sc1
    s_add_u32 s61, s61, 1
    s_waitcnt vmcnt(0)
    v_cmp_ne_u32 vcc, s38, v29
    s_cmp_gt_u32 s61, {SPIN}
    s_cbranch_scc1 L_a_ytf_go
    s_cbranch_vccz L_a_ytf_go
    s_sleep 1
    s_branch L_a_ytf_poll
    """)
    a.label("L_a_ytf_go")
    if cfg.dbgY:
        st(5); K.stampval(a, cfg, 7, "s61")
    a.e("s_barrier")
    if cfg.dbgY: st(6)
    a.e(f"""
    global_load_dwordx2 v[64:65], v{A_YL}, s[36:37] sc1
    global_load_dwordx2 v[66:67], v{A_YL+1}, s[36:37] sc1
    global_load_dwordx2 v[68:69], v{A_YL+2}, s[36:37] sc1
    global_load_dwordx2 v[70:71], v{A_YL+3}, s[36:37] sc1
    s_waitcnt vmcnt(0)
    """)
    st(11)
    for rho in range(4):
        m, hi = rho // 2, rho % 2
        for e in range(4):
            src = 64 + 2*e + m
            a.e(f"v_{'and_b32' if hi else 'lshlrev_b32'} v{84+e}, {'0xffff0000' if hi else '16'}, v{src}")
        for e in range(4):
            a.e(f"v_add_f32 v{84+e}, v{84+e}, v{224+4*rho+e}")
        a.e(f"v_cvt_pk_bf16_f32 v{88+2*rho}, v84, v85")
        a.e(f"v_cvt_pk_bf16_f32 v{89+2*rho}, v86, v87")
        if rho == 2: a.e(f"v_add_u32 v{A_OUT}, 4096, v{A_OUT}")
        a.e(f"global_store_dwordx2 v{A_OUT}, v[{88+2*rho}:{89+2*rho}], s[32:33] offset:{2048*(rho % 2)}")
    a.e("""
    s_cmp_lg_u32 s41, 0
    s_cbranch_scc1 L_a_norst
    s_cmp_lg_u32 s39, 1
    s_cbranch_scc1 L_a_norst
    v_mov_b32 v8, s45
    v_mov_b32 v9, 0
    s_mov_b64 exec, 1
    global_store_dword v8, v9, s[34:35] sc1
    s_mov_b64 exec, -1
    """)
    a.label("L_a_norst")
    st(12)
    K.stampval(a, cfg, 13, "s46")
    K.stamps_out(a, cfg, 14)
```

```python
import sys
from asmlib import Asm, wrap

UT   = 0
YT   = 4 << 20
PQ   = 8 << 20
PQF  = 10 << 20
KVP  = (10 << 20) + (64 << 10)
KVF  = 12 << 20
UTF  = (12 << 20) + (64 << 10)
YTF  = (12 << 20) + (96 << 10)
KVBLK = 2176
LOG2E = 0x3fb8aa3b
EPS   = 0x358637bd
SPIN_LIMIT = 200000

class Cfg:
    do_A = True
    do_B = True
    do_B2 = True
    touch = True
    dual = False
    x_nowrite = False
    prioA = 0
    prioA2 = 0
    dbgT = 0
    dbgN = 0
    ut_patience = 200
    flagpos = 0
    ytouch = 1
    dbgY = 0
    prioA3 = 0
    prioB = 0
    pk = False
    b_exit = False
    touch_flags = ""
    early_release = True
    dma_early = False
    last_dma = 40
    late_pre = 0
    touch_mode = "late"
    stamps = False

STAMP_BASE = 14 << 20
def stamp(a, cfg, i):
    if cfg.stamps:
        a.e(f"s_memtime s[{70+2*i}:{71+2*i}]")
def stampval(a, cfg, i, sreg):
    if cfg.stamps:
        a.e("s_waitcnt lgkmcnt(0)")
        a.e(f"s_add_u32 s{70+2*i}, {sreg}, s70")
def stamps_out(a, cfg, n, vt=22):
    if not cfg.stamps: return
    a.e("s_memrealtime s[68:69]")
    a.e("s_waitcnt lgkmcnt(0) vmcnt(0)")
    a.vm = []
    for i in range(1, n):
        a.e(f"s_sub_u32 s{70+2*i}, s{70+2*i}, s70")
    a.e(f"""
    s_lshl_b32 s61, s2, 2
    s_add_u32 s61, s61, s39
    s_lshl_b32 s61, s61, 6
    s_add_u32 s61, s61, {STAMP_BASE}
    v_mov_b32 v{vt}, s61
    s_mov_b64 exec, 1
    """)
    for i in range(16):
        src = f"s{70+2*i}" if (0 < i < n) else ("s68" if i == 15 else ("s100" if i == 0 else "0"))
        a.e(f"v_mov_b32 v{vt+1}, {src}")
        a.e(f"global_store_dword v{vt}, v{vt+1}, s[36:37] offset:{4*i}")
        a.e("s_nop 1")
    a.e("s_waitcnt vmcnt(0)")
    a.e("s_mov_b64 exec, -1")
    a.vm = []

def prologue(a, cfg):
    if cfg.stamps:
        a.e("s_memrealtime s[100:101]")
        a.e("s_memtime s[70:71]")
    a.e("""
    s_cmp_ge_u32 s2, 512
    s_cbranch_scc1 L_end
    s_load_dwordx16 s[8:23], s[0:1], 0
    s_load_dwordx8 s[24:31], s[0:1], 64
    s_load_dwordx4 s[32:35], s[0:1], 96
    s_load_dwordx2 s[36:37], s[0:1], 112
    v_lshrrev_b32 v1, 6, v0
    v_readfirstlane_b32 s39, v1
    v_and_b32 v1, 63, v0
    s_and_b32 s3, s2, 255
    s_cmp_lt_u32 s2, 256
    s_cbranch_scc1 L_roleA
    """)

def poll_nonce(a, vtmp, vaddr0, first_tag=None):
    L = a.newlabel("nonce"); Lx = a.newlabel("nonce_ok")
    if first_tag:
        a.wait_vm(first_tag)
    else:
        a.e(f"global_load_dword {vtmp}, {vaddr0}, s[34:35] sc1")
        a.wait_vm_all()
    a.e(f"v_readfirstlane_b32 s38, {vtmp}")
    a.e(f"""
    s_cmp_lg_u32 s38, 0
    s_cbranch_scc1 {Lx}
    s_mov_b32 s61, 0
    """)
    a.label(L)
    a.e(f"""
    global_load_dword {vtmp}, {vaddr0}, s[34:35] sc1
    s_waitcnt vmcnt(0)
    v_readfirstlane_b32 s38, {vtmp}
    s_add_u32 s61, s61, 1
    s_cmp_gt_u32 s61, {SPIN_LIMIT}
    s_cbranch_scc1 {Lx}
    s_cmp_eq_u32 s38, 0
    s_cbranch_scc1 {L}
    """)
    a.vm.pop()
    a.label(Lx)

def phi_instrs(acc, tmp, out, zsum=None):
    L = []
    for i in range(16):
        L.append(f"v_mul_f32 v{tmp+i}, s62, v{acc+i}")
    for i in range(16):
        L.append(f"v_exp_f32 v{tmp+i}, v{tmp+i} clamp")
        L.append(f"v_max_f32 v{acc+i}, s64, v{acc+i}")
    for i in range(16):
        L.append(f"v_add_f32 v{acc+i}, v{acc+i}, v{tmp+i}")
    if zsum is not None:
        for m in range(8):
            L.append(f"v_add_f32 v{tmp+m}, v{acc+2*m}, v{acc+2*m+1}")
        for m in range(4):
            L.append(f"v_add_f32 v{tmp+m}, v{tmp+m}, v{tmp+4+m}")
        L.append(f"v_add_f32 v{tmp}, v{tmp}, v{tmp+2}")
        L.append(f"v_add_f32 v{tmp+1}, v{tmp+1}, v{tmp+3}")
        L.append(f"v_add_f32 v{zsum}, v{tmp}, v{tmp+1}")
    for m in range(8):
        L.append(f"v_cvt_pk_bf16_f32 v{out+m}, v{acc+2*m}, v{acc+2*m+1}")
    return L

def spread(side, nslots):
    out = []; n = len(side); k = 0
    for i in range(nslots):
        e = (n*(i+1))//nslots
        out.append(side[k:e]); k = e
    return out

SEQ = []
for c in range(8): SEQ += [("X", c), ("K", c)]
SEQ += [("Q", c) for c in range(8)] + [("V", c) for c in range(8)] + [("O", c) for c in range(8)]
NSLOT = 10
NINIT = 6
XR = 128
WF, T16, ACCQ, ACCK, ACCV = 32, 64, 80, 96, 112

def b_issue_jobs(n):
    kind, c = SEQ[n]
    pos = n % NSLOT
    pre = []
    if kind == "X":
        so, v0, srd = f"s{16+c}", 2, "s[40:43]"
    elif kind in "QKV":
        so, v0, srd = f"s{8+c}", 4, "s[44:47]"
        if kind == "Q" and c == 0:
            pre = [("v_subrev_u32 v4, 1024, v4", None), ("v_subrev_u32 v5, 1024, v5", None)]
        if kind == "V" and c == 0:
            pre = [("v_add_u32 v4, 2048, v4", None), ("v_add_u32 v5, 2048, v5", None)]
    else:
        so, v0, srd = "s61", 6, "s[48:51]"
        pre = [(f"s_mov_b32 s61, {c*65536}", None)]
    return [pre + [(f"s_add_u32 m0, s60, {pos*8192}", None),
             (f"buffer_load_dwordx4 v{v0}, {srd}, {so} offen lds", f"slot{n}")],
            [(f"buffer_load_dwordx4 v{v0+1}, {srd}, {so} offen offset:1024 lds", f"slot{n}")]]

def emit_job(a, job):
    for t in job:
        if isinstance(t, str): a.e(t)
        else: a.e(t[0], vm=t[1])

def lds_base(n):
    pos = n % NSLOT
    return (0, pos*8192) if pos < 5 else (1, (pos-5)*8192)

def wfrag_reads(a, n, s, dst, tag=None):
    hi, off = lds_base(n)
    va = "v17" if hi else "v16"
    a.e(f"ds_read_b64_tr_b16 v[{dst}:{dst+1}], {va} offset:{off + s*2048}", lg=tag)
    a.e(f"ds_read_b64_tr_b16 v[{dst+2}:{dst+3}], {va} offset:{off + s*2048 + 512}", lg=tag)

def role_B(a, cfg):
    a.c("================= role B =================")
    if cfg.prioB: a.e(f"s_setprio {cfg.prioB}")
    a.e("""
    s_and_b32 s66, s3, 7            ; xcd
    s_lshr_b32 s67, s3, 3           ; jj
    s_lshr_b32 s56, s66, 1
    s_lshl_b32 s56, s56, 3
    s_and_b32 s68, s67, 7
    s_add_u32 s56, s56, s68         ; tb
    s_and_b32 s57, s66, 1
    s_lshl_b32 s57, s57, 2
    s_lshr_b32 s68, s67, 3
    s_add_u32 s57, s57, s68         ; hq
    s_and_b32 s58, s39, 1           ; tt
    s_lshr_b32 s59, s39, 1
    s_lshl_b32 s60, s39, 11
    s_mov_b32 s62, 0x3fb8aa3b
    s_mov_b32 s63, 0x3fb8aa3b
    s_mov_b32 s64, 0x358637bd
    s_mov_b32 s65, 0x358637bd
    """)
    a.e("""
    v_lshrrev_b32 v32, 3, v1        ; l>>3
    v_and_b32 v33, 7, v1            ; l&7
    v_lshrrev_b32 v34, 4, v1        ; l>>4
    s_lshl_b32 s68, s56, 6          ; tb*64
    s_lshl_b32 s69, s39, 4          ; 16w
    s_add_u32 s68, s68, s69
    v_add_u32 v35, s68, v32         ; row
    v_lshlrev_b32 v35, 10, v35
    v_xor_b32 v36, v33, v34
    v_lshl_add_u32 v2, v36, 4, v35
    v_add_u32 v37, 4, v34
    v_xor_b32 v36, v33, v37
    v_lshl_add_u32 v3, v36, 4, v35
    v_add_u32 v3, 7168, v3          ; +8 rows - 1024
    v_and_b32 v36, 1, v34
    v_lshlrev_b32 v36, 2, v36
    v_xor_b32 v36, v33, v36         ; q
    v_lshlrev_b32 v36, 4, v36       ; q*16
    v_add_u32 v37, s69, v32         ; 16w + (l>>3)
    v_mul_u32_u24 v38, 3072, v37
    s_lshl_b32 s68, s57, 7          ; hq*128
    v_add3_u32 v4, v38, v36, s68
    v_add_u32 v4, 1024, v4
    v_add_u32 v5, 23552, v4         ; +8*3072 - 1024
    v_lshlrev_b32 v38, 10, v37
    v_add3_u32 v6, v38, v36, s68
    v_add_u32 v7, 7168, v6
    """)
    a.e("""
    s_waitcnt lgkmcnt(0)
    s_mov_b32 s40, s26
    s_and_b32 s41, s27, 0xffff
    s_mov_b32 s42, 0x200000
    s_mov_b32 s43, 0x20000
    s_mov_b32 s44, s28
    s_and_b32 s45, s29, 0xffff
    s_mov_b32 s46, 0x180000
    s_mov_b32 s47, 0x20000
    s_mov_b32 s48, s30
    s_and_b32 s49, s31, 0xffff
    s_mov_b32 s50, 0x80000
    s_mov_b32 s51, 0x20000
    """)
    a.e("""
    v_mov_b32 v31, 0
    s_cmp_lg_u32 s3, 0
    s_cbranch_scc1 L_b_nononce
    s_cmp_lg_u32 s39, 0
    s_cbranch_scc1 L_b_nononce
    s_memrealtime s[68:69]
    s_waitcnt lgkmcnt(0)
    s_or_b32 s68, s68, 1
    v_mov_b32 v30, s68
    s_mov_b64 exec, 1
    global_store_dword v31, v30, s[34:35] sc1
    s_mov_b64 exec, -1
    """)
    a.vm.pop()
    a.label("L_b_nononce")
    if cfg.b_exit:
        a.e("s_branch L_end")
    for c in range(8):
        a.e(f"s_mov_b32 s{8+c}, {c*64*3072}")
        a.e(f"s_mov_b32 s{16+c}, {c*128}")
    stamp(a, cfg, 1)
    for n in range(NINIT):
        for job in b_issue_jobs(n): emit_job(a, job)
    a.e("""
    v_and_b32 v32, 31, v1           ; i
    v_lshrrev_b32 v33, 5, v1        ; hh
    s_lshl_b32 s68, s58, 5
    v_add_u32 v34, s68, v32         ; 32tt + i
    v_lshlrev_b32 v34, 7, v34       ; *128
    v_lshrrev_b32 v35, 1, v32
    v_and_b32 v35, 7, v35           ; f
    """)
    for s in range(4):
        a.e(f"""
        v_add_u32 v36, {2*s}, v33
        v_xor_b32 v36, v36, v35
        v_lshl_add_u32 v{8+s}, v36, 4, v34
        v_add_u32 v{12+s}, 40960, v{8+s}
        """)
    a.e(f"""
    v_lshrrev_b32 v34, 2, v1
    v_and_b32 v34, 3, v34           ; rr
    v_and_b32 v35, 3, v1            ; cc
    v_lshrrev_b32 v36, 4, v1
    v_and_b32 v36, 1, v36           ; G&1
    v_lshlrev_b32 v36, 1, v36       ; 2(G&1)
    v_lshrrev_b32 v37, 1, v35       ; cc>>1
    v_add_u32 v36, v36, v37         ; 2(G&1) + (cc>>1)
    v_lshrrev_b32 v37, 1, v34
    v_lshlrev_b32 v37, 2, v37       ; 4(rr>>1)
    v_and_b32 v38, 1, v35
    v_lshlrev_b32 v38, 3, v38       ; 8(cc&1)
    s_lshl_b32 s68, s59, 2
    v_add_u32 v39, s68, v36
    v_xor_b32 v39, v39, v37
    v_lshl_add_u32 v39, v39, 4, v38
    v_lshl_add_u32 v40, v33, 3, v34
    v_lshl_add_u32 v16, v40, 7, v39
    v_add_u32 v17, 40960, v16
    v_xor_b32 v39, v36, v37
    v_lshl_add_u32 v39, v39, 4, v38
    v_lshl_add_u32 v40, v33, 2, v34
    v_lshl_add_u32 v18, v40, 7, v39
    s_lshl_b32 s68, s59, 15
    s_add_u32 s68, s68, 16384
    v_add_u32 v18, s68, v18
    v_xor_b32 v19, 64, v18
    s_lshl_b32 s68, s59, 1
    s_add_u32 s68, s68, s58
    s_xor_b32 s69, s68, 1
    s_lshl_b32 s66, s68, 10
    s_add_u32 s66, s66, 0
    v_lshl_add_u32 v22, v1, 4, s66
    s_lshl_b32 s66, s69, 10
    s_add_u32 s66, s66, 0
    v_lshl_add_u32 v23, v1, 4, s66
    s_lshl_b32 s66, s68, 8
    s_add_u32 s66, s66, 4096
    v_lshl_add_u32 v24, v1, 2, s66
    s_lshl_b32 s66, s69, 8
    s_add_u32 s66, s66, 4096
    v_lshl_add_u32 v25, v1, 2, s66
    s_lshl_b32 s68, s57, 1
    s_add_u32 s68, s68, s59
    s_lshl_b32 s68, s68, 5
    s_add_u32 s68, s68, s56
    s_mul_i32 s68, s68, 2176
    s_add_u32 s68, s68, {KVP}
    s_lshl_b32 s69, s58, 10
    s_add_u32 s69, s69, s68
    v_lshl_add_u32 v26, v1, 4, s69
    v_lshrrev_b32 v40, 4, v1
    v_and_b32 v40, 1, v40
    v_lshlrev_b32 v40, 3, v40       ; 8c
    v_and_b32 v41, 4, v1            ; 4*hh'
    v_add_u32 v40, v40, v41
    v_lshrrev_b32 v41, 2, v1
    v_and_b32 v41, 2, v41
    v_add_u32 v40, v40, v41
    v_lshrrev_b32 v41, 1, v1
    v_and_b32 v41, 1, v41
    v_add_u32 v40, v40, v41         ; zg
    s_add_u32 s68, s68, 2048
    v_lshl_add_u32 v27, v40, 3, s68
    s_lshl_b32 s68, s56, 1
    s_add_u32 s68, s68, s58
    s_lshl_b32 s68, s68, 5
    s_lshl_b32 s69, s57, 2
    s_add_u32 s68, s68, s69
    s_lshl_b32 s69, s59, 1
    s_add_u32 s68, s68, s69
    s_lshl_b32 s68, s68, 10
    s_add_u32 s68, s68, {PQ}
    v_lshl_add_u32 v28, v1, 4, s68
    v_and_b32 v40, 16, v1
    v_cmp_ne_u32 s[52:53], 0, v40
    s_sub_u32 s54, 0, s58
    s_mov_b32 s55, s54
    """)
    a.e(f"""
    s_cmp_lg_u32 s39, 3
    s_cbranch_scc1 L_b_nopt
    s_lshl_b32 s68, s56, 7
    s_add_u32 s68, s68, {PQF}
    v_mov_b32 v40, s68
    global_load_dword v21, v40, s[36:37] sc1
    """)
    a.vm.pop()
    a.label("L_b_nopt")
    for r in range(16):
        a.e(f"v_mov_b32 v{ACCQ+r}, s64")
    for r in range(16):
        a.e(f"v_mov_b32 v{ACCK+r}, s64")
    def frag_reads(g, k):
        L = []
        tag = f"f{g}_{k}"
        if g < 8:
            nx, nw = 2*g, 2*g+1
            hi, off = lds_base(nx)
            L.append((f"ds_read_b128 v[{XR+16*g+4*k}:{XR+16*g+4*k+3}], v{(12 if hi else 8)+k} offset:{off}", tag))
            d = WF + 16*(g % 2) + 4*k; n = nw; sstep = k
        else:
            n = 2*g + k//4; sstep = k % 4; d = WF + 4*k
        h2, o2 = lds_base(n)
        va = "v17" if h2 else "v16"
        L.append((f"ds_read_b64_tr_b16 v[{d}:{d+1}], {va} offset:{o2 + sstep*2048}", tag))
        L.append((f"ds_read_b64_tr_b16 v[{d+2}:{d+3}], {va} offset:{o2 + sstep*2048 + 512}", tag))
        return L
    def nsteps(g): return 4 if g < 8 else 8
    def emit_side(lst):
        for t in lst:
            if isinstance(t, str): a.e(t)
            elif t[0] == "WVM": a.wait_vm(t[1])
            else: a.e(t[0], vm=t[1])
    side = {}
    ke = phi_instrs(ACCK, T16, ACCK, zsum=29)
    ke += ["v_mov_b32 v30, v29", "v_permlane32_swap_b32 v29, v30", "v_add_f32 v29, v29, v30"]
    gaps = [(g, k) for g in range(8, 12) for k in range(8)][1:31]
    for gp, grp in zip(gaps, spread(ke, len(gaps))): side[gp] = grp
    qe = phi_instrs(ACCQ, T16, ACCQ)
    qe += [(f"global_store_dwordx4 v28, v[{ACCQ}:{ACCQ+3}], s[36:37] sc1", "pqst"),
           (f"global_store_dwordx4 v28, v[{ACCQ+4}:{ACCQ+7}], s[36:37] offset:1024 sc1", "pqst")]
    gaps = [(g, k) for g in range(12, 15) for k in range(8)][1:20]
    for gp, grp in zip(gaps, spread(qe, len(gaps))): side[gp] = grp
    rb = f"""
    s_mov_b32 s40, s36
    s_and_b32 s41, s37, 0xffff
    s_mov_b32 s42, {KVF + 65536}
    s_mov_b32 s43, 0x20000
    s_lshl_b32 s68, s56, 7
    s_add_u32 s68, s68, {PQF}
    v_and_b32 v2, 7, v1
    v_lshl_add_u32 v2, v2, 2, s68
    s_lshl_b32 s68, s56, 1
    s_add_u32 s68, s68, s58
    s_lshl_b32 s68, s68, 5
    s_lshl_b32 s69, s59, 4
    s_add_u32 s68, s68, s69
    s_lshl_b32 s68, s68, 10
    s_add_u32 s68, s68, {PQ}
    v_lshl_add_u32 v3, v1, 4, s68
    v_add_u32 v31, 8192, v3
    v_lshrrev_b32 v13, 7, v0
    v_mul_u32_u24 v13, {KVBLK}, v13
    v_and_b32 v20, 127, v0
    v_lshl_add_u32 v13, v20, 4, v13
    v_add_u32 v13, {KVF}, v13
    v_lshrrev_b32 v14, 3, v20
    v_mul_u32_u24 v14, {KVBLK}, v14
    v_and_b32 v21, 7, v0
    v_lshl_add_u32 v14, v21, 4, v14
    v_add_u32 v14, {KVF+2048}, v14
    v_lshrrev_b32 v15, 7, v0
    v_lshlrev_b32 v15, 1, v15
    v_bfe_u32 v21, v0, 4, 1
    v_add_u32 v15, v15, v21
    v_mul_u32_u24 v15, 544, v15
    v_bfe_u32 v21, v0, 5, 1
    v_mul_u32_u24 v21, 272, v21
    v_add_u32 v15, v15, v21
    v_and_b32 v21, 15, v0
    v_lshl_add_u32 v15, v21, 4, v15
    v_bfe_u32 v21, v0, 6, 1
    v_lshl_add_u32 v15, v21, 3, v15
    v_lshrrev_b32 v12, 3, v20
    v_lshlrev_b32 v12, 1, v12
    v_bfe_u32 v21, v0, 2, 1
    v_add_u32 v12, v12, v21
    v_mul_u32_u24 v12, 544, v12
    v_bfe_u32 v21, v0, 1, 1
    v_mul_u32_u24 v21, 272, v21
    v_add_u32 v12, v12, v21
    v_and_b32 v21, 1, v0
    v_lshl_add_u32 v12, v21, 3, v12
    v_add_u32 v12, 256, v12
    """.strip().split("\n")
    rb = [x.strip() for x in rb]
    rb += [f"s_mov_b32 s{8+i}, {1024*i}" for i in range(8)] + [f"s_mov_b32 s{16+k}, {2*KVBLK*k}" for k in range(8)]
    gaps = [(14, k) for k in range(5, 8)] + [(15, k) for k in range(8)]
    for gp, grp in zip(gaps, spread(rb, len(gaps))): side[gp] = side.get(gp, []) + grp

    def kv_publish():
        a.c("--- kv partial: V cvt, MFMA, select, pair exchange, publish")
        a.e("s_barrier")
        for m in range(8):
            a.e(f"v_cvt_pk_bf16_f32 v{ACCV+m}, v{ACCV+2*m}, v{ACCV+2*m+1}")
        a.e(f"v_mfma_f32_32x32x16_bf16 v[{T16}:{T16+15}], v[{ACCK}:{ACCK+3}], v[{ACCV}:{ACCV+3}], 0")
        a.e(f"v_mfma_f32_32x32x16_bf16 v[{T16}:{T16+15}], v[{ACCK+4}:{ACCK+7}], v[{ACCV+4}:{ACCV+7}], v[{T16}:{T16+15}]")
        a.e("ds_write_b32 v24, v29", lg="xw")
        SEL = ACCK + 8; SND = ACCV + 8; KEEP = ACCV + 12
        for j in range(8): a.e(f"v_cndmask_b32 v{SEL+j}, v{T16+j}, v{T16+8+j}, s[52:53]")
        for j in range(4): a.e(f"v_cndmask_b32 v{SND+j}, v{SEL+4+j}, v{SEL+j}, s[54:55]")
        a.e(f"ds_write_b128 v22, v[{SND}:{SND+3}]", lg="xw")
        for j in range(4): a.e(f"v_cndmask_b32 v{KEEP+j}, v{SEL+j}, v{SEL+4+j}, s[54:55]")
        a.wait_vm("pqst")
        a.wait_lg("xw")
        a.e("s_barrier")
        a.e(f"ds_read_b128 v[{SEL}:{SEL+3}], v23", lg="xr")
        a.e(f"ds_read_b32 v30, v25", lg="xr")
        a.e("""
        s_cmp_lg_u32 s39, 3
        s_cbranch_scc1 L_b_noflag
        s_lshl_b32 s68, s56, 7
        s_lshl_b32 s69, s57, 2
        s_add_u32 s68, s68, s69
        s_add_u32 s68, s68, %d
        v_mov_b32 v32, s68
        v_mov_b32 v33, s38
        s_mov_b64 exec, 1
        global_store_dword v32, v33, s[36:37] sc1
        s_mov_b64 exec, -1
        """ % PQF)
        a.vm.pop()
        a.label("L_b_noflag")
        a.wait_lg("xr")
        for j in range(4): a.e(f"v_add_f32 v{KEEP+j}, v{KEEP+j}, v{SEL+j}")
        a.e(f"""
        v_add_f32 v29, v29, v30
        v_cvt_pk_bf16_f32 v{SEL}, v{KEEP}, v{KEEP+1}
        v_mov_b32 v{SEL+1}, s38
        v_cvt_pk_bf16_f32 v{SEL+2}, v{KEEP+2}, v{KEEP+3}
        v_mov_b32 v{SEL+3}, s38
        v_mov_b32_dpp v30, v29 quad_perm:[1,0,3,2] row_mask:0xf bank_mask:0xf
        global_store_dwordx4 v26, v[{SEL}:{SEL+3}], s[36:37] sc1
        v_cvt_pk_bf16_f32 v{SEL+4}, v29, v30
        v_mov_b32 v{SEL+5}, s38
        s_andn2_b64 exec, 0x55555555, s[54:55]
        s_cbranch_execz L_b_noz
        global_store_dwordx2 v27, v[{SEL+4}:{SEL+5}], s[36:37] sc1
        """)
        a.vm.pop()
        a.label("L_b_noz")
        a.e("s_mov_b64 exec, -1")
        stamp(a, cfg, 6)

    a.wait_vm(["slot0", "slot1"])
    a.e("s_barrier")
    stamp(a, cfg, 2)
    for k in range(4):
        for t, tag in frag_reads(0, k): a.e(t, lg=tag)
    nxt = NINIT
    pend = []
    while nxt < NSLOT:
        pend += b_issue_jobs(nxt); nxt += 1
    for g in range(16):
        a.c(f"--- group {g}")
        if g == 13: poll_nonce(a, "v21", "v31", first_tag="nonce")
        if g < 15:
            a.wait_vm([f"slot{2*g+2}", f"slot{2*g+3}"])
        a.e("s_barrier")
        if g in (1, 8, 12): stamp(a, cfg, {1: 3, 8: 4, 12: 5}[g])
        jobs = list(pend); pend = []
        if g >= 1:
            for _ in range(2): jobs += b_issue_jobs(nxt); nxt += 1
        if g == 9:
            jobs.append([("global_load_dword v21, v31, s[34:35] sc1", "nonce")])
        ns = nsteps(g)
        jsp = spread(jobs, ns)
        for k in range(ns):
            if k % 2 == 0: a.wait_lg([f"f{g}_{k}", f"f{g}_{k+1}"])
            if g < 8:
                d = WF + 16*(g % 2) + 4*k
                a.e(f"v_mfma_f32_32x32x16_bf16 v[{ACCK}:{ACCK+15}], v[{XR+16*g+4*k}:{XR+16*g+4*k+3}], v[{d}:{d+3}], v[{ACCK}:{ACCK+15}]")
            elif g < 12:
                kk = (g - 8)*8 + k
                a.e(f"v_mfma_f32_32x32x16_bf16 v[{ACCQ}:{ACCQ+15}], v[{WF+4*k}:{WF+4*k+3}], v[{XR+4*kk}:{XR+4*kk+3}], v[{ACCQ}:{ACCQ+15}]")
            else:
                kk = (g - 12)*8 + k
                cc = "0" if (g == 12 and k == 0) else f"v[{ACCV}:{ACCV+15}]"
                a.e(f"v_mfma_f32_32x32x16_bf16 v[{ACCV}:{ACCV+15}], v[{XR+4*kk}:{XR+4*kk+3}], v[{WF+4*k}:{WF+4*k+3}], {cc}")
            jl = [list(jb) for jb in jsp[k]]
            if jl:
                while jl[0] and not jl[0][0][0].startswith(("buffer_load", "global_load")):
                    a.e(jl[0].pop(0)[0])
            if g < 15:
                nx = [k, 4 + k] if g == 7 else [k]
                for k2 in nx:
                    for t, tag in frag_reads(g + 1, k2): a.e(t, lg=tag)
            for jb in jl: emit_job(a, jb)
            emit_side(side.get((g, k), []))
    assert nxt == 40, nxt
    kv_publish()
    stamp(a, cfg, 7)
    if not cfg.do_B2:
        stamp(a, cfg, 8)
        stamps_out(a, cfg, 9)
        a.e("s_branch L_end")
        return
    role_B2(a, cfg)

def tag_check(a, regs_tags, acc="v20"):
    tt = 0
    for idx in range(8):
        s0, s1, s2 = (idx >> 2) & 1, (idx >> 1) & 1, idx & 1
        if s0 | (s1 ^ s2): tt |= 1 << idx
    first = True
    for r in regs_tags:
        if first:
            a.e(f"v_xor_b32 {acc}, s38, v{r}"); first = False
        else:
            a.e(f"v_bitop3_b32 {acc}, {acc}, v{r}, s38 bitop3:{hex(tt)}")
    a.e(f"v_cmp_ne_u32 vcc, 0, {acc}")

def role_B2(a, cfg):
    WO = 128
    ACC = 96
    PQR = 32
    CN = [64, 80]
    KAF = [8, 12]
    OF = [4, 16]
    KA = 0
    PQL = 17408
    a.c("================= B2 =================")
    def reduce_line(base, dst_addr, tagsok_label):
        S = 40; T = 44
        for k in range(4):
            r = base + 4*k
            for pidx in range(2):
                src = r + 2*pidx
                if k == 0:
                    a.e(f"v_lshlrev_b32 v{S+2*pidx}, 16, v{src}")
                    a.e(f"v_and_b32 v{S+1+2*pidx}, 0xffff0000, v{src}")
                else:
                    a.e(f"v_lshlrev_b32 v{T+2*pidx}, 16, v{src}")
                    a.e(f"v_and_b32 v{T+1+2*pidx}, 0xffff0000, v{src}")
                    a.e(f"v_add_f32 v{S+2*pidx}, v{S+2*pidx}, v{T+2*pidx}")
                    a.e(f"v_add_f32 v{S+1+2*pidx}, v{S+1+2*pidx}, v{T+1+2*pidx}")
        for j in range(4): a.e(f"v_add_f32_dpp v{S+j}, v{S+j}, v{S+j} row_ror:8 row_mask:0xf bank_mask:0xf")
        for j in range(4): a.e(f"v_mov_b32 v{T+j}, v{S+j}")
        for j in range(4): a.e(f"v_permlane16_swap_b32 v{S+j}, v{T+j}")
        for j in range(4): a.e(f"v_add_f32 v{S+j}, v{S+j}, v{T+j}")
        for j in range(4): a.e(f"v_mov_b32 v{T+j}, v{S+j}")
        for j in range(4): a.e(f"v_permlane32_swap_b32 v{S+j}, v{T+j}")
        for j in range(4): a.e(f"v_add_f32 v{S+j}, v{S+j}, v{T+j}")
        a.e(f"""
        v_cvt_pk_bf16_f32 v48, v{S}, v{S+1}
        v_mov_b32 v49, s38
        v_cvt_pk_bf16_f32 v50, v{S+2}, v{S+3}
        v_mov_b32 v51, s38
        s_mov_b64 exec, 0xff
        global_store_dwordx4 {dst_addr}, v[48:51], s[36:37] sc1
        s_mov_b64 exec, -1
        """)
    a.e(f"""
    s_lshr_b32 s66, s3, 4
    s_and_b32 s67, s3, 15
    s_mul_i32 s69, s66, {32*KVBLK}
    s_add_u32 s69, s69, {KVP}
    s_lshl_b32 s52, s67, 7
    s_add_u32 s68, s69, s52
    v_and_b32 v22, 7, v1
    v_lshlrev_b32 v22, 4, v22
    v_lshrrev_b32 v23, 3, v1
    v_mul_u32_u24 v23, {KVBLK}, v23
    v_add_u32 v23, v22, v23
    v_add_u32 v24, s68, v23
    v_add_u32 v25, {8*KVBLK}, v24
    v_add_u32 v26, {16*KVBLK}, v24
    v_add_u32 v27, {24*KVBLK}, v24
    s_add_u32 s68, s69, 2048
    v_add_u32 v8, s68, v23
    v_add_u32 v9, {8*KVBLK}, v8
    v_add_u32 v10, {16*KVBLK}, v8
    v_add_u32 v11, {24*KVBLK}, v8
    s_mul_i32 s69, s66, {KVBLK}
    s_add_u32 s69, s69, {KVF}
    s_add_u32 s68, s69, s52
    v_add_u32 v23, s68, v22
    s_add_u32 s68, s69, 2048
    v_add_u32 v29, s68, v22
    """)
    a.wait_vm([f"slot{n}" for n in range(32, 40)])
    a.e("s_barrier")
    for i in range(16):
        for nt in range(2):
            d = WO + 8*i + 4*nt
            off = (i//4)*8192 + (i % 4)*2048
            a.e(f"ds_read_b64_tr_b16 v[{d}:{d+1}], v{18+nt} offset:{off}", lg="wo")
            a.e(f"ds_read_b64_tr_b16 v[{d+2}:{d+3}], v{18+nt} offset:{off+1024}", lg="wo")
    a.e("s_waitcnt lgkmcnt(0)")
    a.e("s_barrier")
    a.vm = []; a.lg = []
    stamp(a, cfg, 9)
    a.e("""
    s_cmp_lg_u32 s39, 0
    s_cbranch_scc1 L_b_red_wait
    s_mov_b32 s61, 0
    """)
    a.label("L_b_red_poll")
    a.e("""
    global_load_dwordx4 v[96:99], v24, s[36:37] sc1
    global_load_dwordx4 v[100:103], v25, s[36:37] sc1
    global_load_dwordx4 v[104:107], v26, s[36:37] sc1
    global_load_dwordx4 v[108:111], v27, s[36:37] sc1
    global_load_dwordx4 v[112:115], v8, s[36:37] sc1
    global_load_dwordx4 v[116:119], v9, s[36:37] sc1
    global_load_dwordx4 v[120:123], v10, s[36:37] sc1
    global_load_dwordx4 v[124:127], v11, s[36:37] sc1
    s_add_u32 s61, s61, 1
    s_waitcnt vmcnt(0)
    """)
    tag_check(a, [97+2*q for q in range(16)])
    a.e(f"""
    s_cmp_gt_u32 s61, {SPIN_LIMIT}
    s_cbranch_scc1 L_b_red_go
    s_cbranch_vccnz L_b_red_poll
    """)
    a.label("L_b_red_go")
    a.e("s_barrier")
    a.e("""
    s_cmp_lg_u32 s67, 0
    s_cbranch_scc1 L_b_red_a
    """)
    reduce_line(112, "v29", None)
    a.label("L_b_red_a")
    reduce_line(96, "v23", None)
    a.e("s_branch L_b_red_done")
    a.label("L_b_red_wait")
    a.e("s_barrier")
    a.label("L_b_red_done")
    a.vm = []
    stamp(a, cfg, 10)
    def pq_loads():
        for i in range(8):
            a.e(f"buffer_load_dwordx4 v[{PQR+4*i}:{PQR+4*i+3}], v3, s[40:43], s{8+i} offen sc1")
        for i in range(8):
            a.e(f"s_add_u32 m0, s66, {1024*i}")
            a.e("s_nop 0")
            a.e(f"buffer_load_dwordx4 v31, s[40:43], s{8+i} offen sc1 lds")
    a.e(f"""
    s_lshl_b32 s66, s39, 13
    s_add_u32 s66, s66, {PQL}
    s_mov_b32 s61, 0
    """)
    a.label("L_b_pqf_poll")
    a.e(f"""
    global_load_dword v21, v2, s[36:37] sc1
    s_add_u32 s61, s61, 1
    s_waitcnt vmcnt(0)
    v_cmp_ne_u32 vcc, s38, v21
    s_cmp_gt_u32 s61, {SPIN_LIMIT}
    s_cbranch_scc1 L_b_pqf_go
    s_cbranch_vccz L_b_pqf_go
    s_sleep 1
    s_branch L_b_pqf_poll
    """)
    a.label("L_b_pqf_go")
    stamp(a, cfg, 11)
    def ka_loads():
        for k in range(8):
            a.e(f"buffer_load_dwordx4 v[{64+4*k}:{67+4*k}], v13, s[40:43], s{16+k} offen sc1")
        a.e("buffer_load_dwordx4 v[96:99], v14, s[40:43], 0 offen sc1")
    pq_loads()
    a.e("s_mov_b32 s61, 0")
    a.label("L_b_kz_poll")
    a.e(f"""
    buffer_load_dwordx4 v[96:99], v14, s[40:43], 0 offen sc1
    s_add_u32 s61, s61, 1
    s_waitcnt vmcnt(0)
    v_xor_b32 v20, s38, v97
    v_cmp_ne_u32 vcc, 0, v20
    s_cmp_gt_u32 s61, {SPIN_LIMIT}
    s_cbranch_scc1 L_b_kz_go
    s_cbranch_vccz L_b_kz_go
    s_sleep 1
    s_branch L_b_kz_poll
    """)
    a.label("L_b_kz_go")
    a.e("s_mov_b32 s61, 0")
    a.label("L_b_kvf_poll")
    ka_loads()
    a.e("s_waitcnt vmcnt(0)")
    a.label("L_b_ka_chk")
    a.e("s_add_u32 s61, s61, 1")
    tag_check(a, [65+2*q for q in range(18)])
    a.e(f"""
    s_cmp_gt_u32 s61, {SPIN_LIMIT}
    s_cbranch_scc1 L_b_kvf_go
    s_cbranch_vccnz L_b_kvf_poll
    """)
    a.label("L_b_kvf_go")
    stamp(a, cfg, 12)
    stampval(a, cfg, 8, "s61")
    a.vm = []
    for k in range(8):
        a.e(f"v_mov_b32 v{65+4*k}, v{66+4*k}")
        a.e(f"ds_write_b64 v15, v[{64+4*k}:{65+4*k}] offset:{KA + 2176*k}")
    a.e("v_mov_b32 v97, v98")
    a.e(f"ds_write_b64 v12, v[96:97] offset:{KA}")
    a.e(f"""
    v_and_b32 v22, 31, v1
    v_min_u32 v22, 16, v22
    v_lshlrev_b32 v22, 4, v22
    v_lshrrev_b32 v23, 5, v1
    v_mul_u32_u24 v23, 272, v23
    s_mul_i32 s68, s59, {16*544}
    v_add3_u32 v22, v22, v23, s68
    v_lshl_add_u32 v23, v1, 4, s66
    s_waitcnt vmcnt(0) lgkmcnt(0)
    s_barrier
    """)
    a.vm = []; a.lg = []
    stamp(a, cfg, 13)
    def kaf_read(i):
        a.e(f"ds_read_b128 v[{KAF[i%2]}:{KAF[i%2]+3}], v22 offset:{KA + 544*i}", lg=f"ka{i}")
    def out_mfma(i):
        o = OF[i % 2]
        for nt in range(2):
            w = WO + 8*i + 4*nt
            cc = "0" if i == 0 else f"v[{ACC+16*nt}:{ACC+16*nt+15}]"
            a.e(f"v_mfma_f32_32x32x16_bf16 v[{ACC+16*nt}:{ACC+16*nt+15}], v[{w}:{w+3}], v[{o}:{o+3}], {cc}")
    def num_mfma(i):
        a.wait_lg(f"ka{i}")
        p = PQR + 4*(i % 8)
        if i >= 8: a.wait_lg(f"pl{i}")
        a.e(f"v_mfma_f32_32x32x16_bf16 v[{CN[i%2]}:{CN[i%2]+15}], v[{KAF[i%2]}:{KAF[i%2]+3}], v[{p}:{p+3}], 0")
        if 4 <= i < 12:
            h = i + 4
            ph = PQR + 4*(h % 8)
            a.e(f"ds_read_b128 v[{ph}:{ph+3}], v23 offset:{1024*(h-8)}", lg=f"pl{h}")
    def out1(i, nt):
        o = OF[i % 2]
        w = WO + 8*i + 4*nt
        cc = "0" if i == 0 else f"v[{ACC+16*nt}:{ACC+16*nt+15}]"
        a.e(f"v_mfma_f32_32x32x16_bf16 v[{ACC+16*nt}:{ACC+16*nt+15}], v[{w}:{w+3}], v[{o}:{o+3}], {cc}")
    kaf_read(0); kaf_read(1)
    num_mfma(0)
    for i in range(16):
        if i + 1 < 16:
            num_mfma(i + 1)
        c = CN[i % 2]
        a.e(f"v_add_f32 v20, s64, v{c+8}")
        a.e(f"v_rcp_f32 v20, v20")
        if i + 2 < 16:
            kaf_read(i + 2)
        for jj in range(2): a.e(f"v_mul_f32 v{c+jj}, v{c+jj}, v20")
        if i >= 1: out1(i - 1, 0)
        for jj in range(2, 7): a.e(f"v_mul_f32 v{c+jj}, v{c+jj}, v20")
        if i >= 1: out1(i - 1, 1)
        a.e(f"v_mul_f32 v{c+7}, v{c+7}, v20")
        o = OF[i % 2]
        for m in range(4):
            a.e(f"v_cvt_pk_bf16_f32 v{o+m}, v{c+2*m}, v{c+2*m+1}")
    out1(15, 0); out1(15, 1)
    stamp(a, cfg, 14)
    a.e("""
    s_cmp_lg_u32 s3, 0
    s_cbranch_scc1 L_b_norst
    s_cmp_lg_u32 s39, 0
    s_cbranch_scc1 L_b_norst
    v_mov_b32 v20, 0
    s_mov_b64 exec, 1
    global_store_dword v20, v20, s[34:35] sc1
    s_mov_b64 exec, -1
    """)
    a.label("L_b_norst")
    a.vm = []
    PB = 0
    a.e(f"""
    v_and_b32 v22, 31, v1
    s_lshl_b32 s68, s58, 5
    v_add_u32 v22, s68, v22            ; token
    v_mul_u32_u24 v22, 272, v22
    v_lshrrev_b32 v23, 5, v1
    v_lshl_add_u32 v22, v23, 4, v22    ; + hh*16
    s_mul_i32 s68, s59, {64*272}
    s_add_u32 s68, s68, {PB}
    v_add_u32 v22, s68, v22
    v_lshrrev_b32 v23, 3, v0
    v_mul_u32_u24 v24, 272, v23
    v_and_b32 v25, 7, v0
    v_lshl_add_u32 v24, v25, 5, v24
    v_add_u32 v24, {PB}, v24
    s_lshl_b32 s68, s56, 6
    v_add_u32 v23, s68, v23
    v_lshlrev_b32 v23, 11, v23
    s_lshl_b32 s68, s57, 7
    s_add_u32 s68, s68, 1024
    v_lshl_add_u32 v23, v25, 4, v23
    v_add_u32 v23, s68, v23
    s_waitcnt lgkmcnt(0)
    s_barrier
    """)
    for nt in range(2):
        for q in range(4):
            r = ACC + 16*nt + 4*q
            a.e(f"ds_write_b128 v22, v[{r}:{r+3}] offset:{nt*128 + q*32}")
    a.e("s_waitcnt lgkmcnt(0)")
    a.e("s_barrier")
    for r in range(2):
        o = r*32*272
        a.e(f"ds_read_b128 v[{32+16*r}:{35+16*r}], v24 offset:{o}")
        a.e(f"ds_read_b128 v[{36+16*r}:{39+16*r}], v24 offset:{o+16}")
        a.e(f"ds_read_b128 v[{40+16*r}:{43+16*r}], v24 offset:{o+64*272}")
        a.e(f"ds_read_b128 v[{44+16*r}:{47+16*r}], v24 offset:{o+64*272+16}")
    for r in range(2):
        a.e(f"s_waitcnt lgkmcnt({4 if r == 0 else 0})")
        b = 32 + 16*r
        for jj in range(8):
            a.e(f"v_add_f32 v{b+jj}, v{b+jj}, v{b+8+jj}")
        for m in range(4):
            a.e(f"v_cvt_pk_bf16_f32 v{64+4*r+m}, v{b+2*m}, v{b+2*m+1}")
        if r == 1: a.e(f"v_add_u32 v23, {32*2048}, v23")
        a.e(f"global_store_dwordx4 v23, v[{64+4*r}:{67+4*r}], s[32:33]")
    stamps_out(a, cfg, 15)

TV = 240
def a_touch_setup(a, cfg):
    a.e(f"""
    s_lshr_b32 s62, s40, 1          ; tg
    s_and_b32 s63, s40, 1           ; hg
    s_lshl_b32 s64, s62, 9
    s_lshl_b32 s65, s41, 4          ; 16*jj
    s_add_u32 s64, s64, s65
    v_and_b32 v246, 15, v1
    v_lshrrev_b32 v247, 4, v1       ; 0..3
    v_add_u32 v240, s64, v246
    v_lshlrev_b32 v240, 10, v240
    v_lshl_add_u32 v240, v247, 7, v240
    v_add_u32 v241, 512, v240
    v_lshlrev_b32 v243, 6, v247
    s_lshl_b32 s66, s41, 1
    v_add_u32 v243, s66, v243
    v_bfe_u32 v248, v1, 3, 1
    v_add_u32 v243, v243, v248
    v_mul_u32_u24 v243, 3072, v243
    v_bfe_u32 v248, v1, 2, 1
    v_lshlrev_b32 v248, 10, v248
    v_add_u32 v243, v243, v248
    v_and_b32 v248, 3, v1
    v_lshlrev_b32 v248, 7, v248
    s_lshl_b32 s66, s63, 9
    s_add_u32 s67, s66, 1024
    v_add3_u32 v243, v243, v248, s67
    v_add_u32 v244, {256*3072}, v243
    v_lshrrev_b32 v249, 2, v1
    v_add_u32 v249, s65, v249
    v_mul_u32_u24 v242, 3072, v249
    v_add3_u32 v242, v242, v248, s66
    v_lshlrev_b32 v245, 10, v249
    v_add3_u32 v245, v245, v248, s66
    """)

def a_touch(a, cfg, plan):
    fl = cfg.touch_flags
    info = {"x0": (240, "s[26:27]"), "x1": (241, "s[26:27]"), "q": (242, "s[28:29]"),
            "k0": (243, "s[28:29]"), "k1": (244, "s[28:29]"), "o": (245, "s[30:31]")}
    for w, names in plan.items():
        L = a.newlabel("tch")
        a.e(f"s_cmp_eq_u32 s39, {w}")
        a.e(f"s_cbranch_scc0 {L}")
        for i, nm in enumerate(names):
            v, base = info[nm]
            a.e(f"global_load_dword v{250+i}, v{v}, {base} {fl}")
            a.vm.pop()
        a.label(L)

def role_A(a, cfg):
    a.label("L_roleA")
    a.e("""
    s_and_b32 s40, s3, 7
    s_lshr_b32 s41, s3, 3           ; j
    s_waitcnt lgkmcnt(0)
    """)
    if not cfg.do_A:
        if cfg.touch:
            a_touch_setup(a, cfg)
            a_touch(a, cfg, {0: ["x0"], 1: ["k0"], 2: ["x1"], 3: ["k1"]})
            a.e("s_waitcnt vmcnt(0)")
            a_touch(a, cfg, {1: ["q"], 3: ["o"]})
            a.e("s_waitcnt vmcnt(0)")
        a.e("s_branch L_end")
        return
    import role_a
    role_a.role_A(a, cfg)

def build(cfg):
    a = Asm()
    prologue(a, cfg)
    if cfg.do_B:
        role_B(a, cfg)
    a.e("s_branch L_end")
    a.vm = []
    role_A(a, cfg)
    a.label("L_end")
    a.e("s_endpgm")
    body = a.render()
    return body, a

HEADER = open("concat_heads__ssm_conv_s4__linear_attn_block__prompt.s.ref").read().split("; Override launch")[0]

def generate(path, cfg):
    body, a = build(cfg)
    txt = wrap(body, HEADER, 512, 256, 81920)
    open(path, "w").write(txt)
    return a

if __name__ == "__main__":
    sys.modules["kern"] = sys.modules["__main__"]
    cfg = Cfg()
    cfg.stamps = True
    if len(sys.argv) > 2:
        for kv in sys.argv[2:]:
            k, v = kv.split("=")
            setattr(cfg, k, int(v) if v.isdigit() else v)
    a = generate(sys.argv[1] if len(sys.argv) > 1 else "k_b1.s", cfg)
    print("nops inserted:", a.nnops)
```

```python
from asmlib import Asm
import kern as K

UT, YT = K.UT, K.YT
UTF, YTF = K.UTF, K.YTF
TILE = 3088
SPIN = K.SPIN_LIMIT
ROWB = 528
TB = [12288, 45056]
KC = [0, 1536]
NONCE_LDS = 3072
KD = [3088, 7200]
CP = [12288, 12288 + 16640]
UR = [45568, 45568 + 7600]
YP = 0
ROWS = list(range(8)) + [128+k for k in range(8)] + [256+2*k for k in range(4)] + [384+2*k for k in range(4)] + \
       [512, 516, 640, 644, 768, 772, 896, 900] + [1024+128*k for k in range(8)] + [2048]
assert len(ROWS) == 41

def fhex(x):
    import struct
    return hex(struct.unpack("<I", struct.pack("<f", x))[0])

USE_PK = False
def cmul(a, d, x, y, t):
    if USE_PK:
        a.e(f"v_pk_mul_f32 v[{t}:{t+1}], v[{x}:{x+1}], v[{y}:{y+1}] op_sel_hi:[1,0]")
        a.e(f"v_pk_fma_f32 v[{d}:{d+1}], v[{x}:{x+1}], v[{y}:{y+1}], v[{t}:{t+1}] op_sel:[1,1,0] op_sel_hi:[0,1,1] neg_lo:[1,0,0]")
    else:
        assert d not in (x, y)
        a.e(f"v_mul_f32 v{t}, v{x}, v{y}")
        a.e(f"v_mul_f32 v{t+1}, v{x+1}, v{y}")
        a.e(f"v_fma_f32 v{d}, -v{x+1}, v{y+1}, v{t}")
        a.e(f"v_fma_f32 v{d+1}, v{x}, v{y+1}, v{t+1}")

def poll_tags_loop(a, name, loads, tagregs):
    a.e("s_mov_b32 s61, 0")
    a.label(f"L_{name}_poll")
    for l in loads: a.e(l)
    a.e("s_add_u32 s61, s61, 1")
    a.e("s_waitcnt vmcnt(0)")
    K.tag_check(a, tagregs, acc="v9")
    a.e(f"""
    s_cmp_gt_u32 s61, {SPIN}
    s_cbranch_scc1 L_{name}_go
    s_cbranch_vccz L_{name}_go
    s_sleep 1
    s_branch L_{name}_poll
    """)
    a.label(f"L_{name}_go")
    a.vm = []


(A_TW, A_TR, A_UT0, A_UT1, A_TB, A_KM, A_C0, A_C1A, A_C1B, A_C2, A_DW, A_ER0, A_ER1, A_ZU, A_ZC, A_ZG,
 A_CR, A_CW, A_UG, A_UL, A_FU, A_FY, A_FUS, A_FYS, A_VA, A_VB, A_PW, A_OR, A_YG, A_YL, A_OUT) = (
 160, 161, 162, 163, 164, 168, 172, 173, 174, 175, 176, 177, 178, 179, 180, 181,
 182, 183, 184, 185, 186, 187, 188, 189, 190, 191, 192, 193, 194, 195, 199)

def role_A(a, cfg):
    global USE_PK
    USE_PK = cfg.pk
    st = lambda i: K.stamp(a, cfg, i)
    a.c("================= role A =================")
    if cfg.prioA: a.e(f"s_setprio {cfg.prioA}")
    a.e("""
    s_lshr_b32 s47, s39, 1
    s_and_b32 s48, s39, 1           ; w2
    s_lshl_b32 s49, s40, 6          ; 64 g
    s_lshl_b32 s50, s41, 1
    s_add_u32 s50, s50, s49         ; d0 = 64g + 2j
    s_add_u32 s51, s50, s47
    s_lshl_b32 s51, s51, 8
    v_and_b32 v2, 127, v0           ; n
    v_lshl_add_u32 v5, v2, 1, s51
    v_lshrrev_b32 v3, 4, v0         ; r''
    v_and_b32 v4, 15, v0            ; c8
    s_lshl_b32 s52, s41, 6
    v_lshl_add_u32 v6, v3, 2, s52   ; t0 = 64j + 4r''
    v_lshlrev_b32 v6, 10, v6
    s_lshl_b32 s53, s49, 1
    v_lshl_add_u32 v7, v4, 3, s53
    v_add_u32 v6, v6, v7            ; u offset
    s_lshl_b32 s45, s40, 2
    s_add_u32 s45, s45, 4
    v_mov_b32 v8, s45
    s_waitcnt lgkmcnt(0)
    """)
    st(1)
    a.e("""
    global_load_dwordx2 v[16:17], v6, s[8:9]
    global_load_dwordx2 v[18:19], v6, s[8:9] offset:1024
    global_load_dwordx2 v[20:21], v6, s[8:9] offset:2048
    global_load_dwordx2 v[22:23], v6, s[8:9] offset:3072
    global_load_ushort v10, v5, s[10:11]
    global_load_ushort v11, v5, s[12:13]
    global_load_ushort v12, v5, s[14:15]
    global_load_ushort v13, v5, s[16:17]
    global_load_ushort v14, v5, s[18:19]
    global_load_ushort v15, v5, s[20:21]
    global_load_dwordx2 v[24:25], v7, s[24:25]
    s_lshl_b32 s54, s50, 1
    s_add_u32 s54, s22, s54
    s_addc_u32 s55, s23, 0
    s_load_dword s56, s[54:55], 0
    s_cmp_lg_u32 s41, 0
    s_cbranch_scc1 L_a_nopub
    s_cmp_lg_u32 s39, 0
    s_cbranch_scc1 L_a_nopub
    s_memrealtime s[58:59]
    s_waitcnt lgkmcnt(0)
    s_or_b32 s58, s58, 8
    v_mov_b32 v9, s58
    s_mov_b64 exec, 1
    global_store_dword v8, v9, s[34:35] sc1
    s_mov_b64 exec, -1
    """)
    a.label("L_a_nopub")
    if cfg.uttouch:
        a.e(f"""
        s_cmp_lg_u32 s39, 2
        s_cbranch_scc1 L_a_nout0
        v_add_u32 v26, s49, v1
        v_lshlrev_b32 v26, 12, v26
        s_sub_u32 s57, 31, s41
        s_lshl_b32 s57, s57, 7
        s_add_u32 s57, s57, {UT}
        v_add_u32 v26, s57, v26
        global_load_dword v255, v26, s[36:37]
        """)
    if cfg.uttouch: a.label("L_a_nout0")
    a.vm = []
    a.e(f"""
    v_and_b32 v26, 15, v1
    v_lshrrev_b32 v27, 4, v1
    v_bfe_u32 v28, v1, 2, 2
    v_and_b32 v29, 3, v1
    v_and_b32 v30, 31, v1
    v_lshrrev_b32 v31, 5, v1
    v_lshlrev_b32 v32, 2, v4
    v_mul_u32_u24 v32, 144, v32
    v_lshlrev_b32 v33, 3, v3
    v_sub_u32 v33, 120, v33
    v_add_u32 v32, v32, v33
    v_add_u32 v{A_TW}, {TILE}, v32
    v_lshrrev_b32 v32, 3, v1
    s_lshl_b32 s57, s39, 5
    v_add_u32 v32, s57, v32
    v_mul_u32_u24 v33, 144, v32
    v_and_b32 v34, 7, v1
    v_lshl_add_u32 v33, v34, 4, v33
    v_add_u32 v{A_TR}, {TILE}, v33
    v_add_u32 v32, s49, v32
    v_lshlrev_b32 v32, 12, v32
    v_lshl_add_u32 v32, v34, 4, v32
    s_sub_u32 s57, 31, s41
    s_lshl_b32 s57, s57, 7
    s_add_u32 s57, s57, {UT}
    v_add_u32 v{A_UT0}, s57, v32
    v_add_u32 v{A_UT1}, 32768, v{A_UT0}
    v_add_u32 v200, 65536, v{A_UT0}
    v_add_u32 v201, 98304, v{A_UT0}
    v_lshl_add_u32 v32, v27, 3, v28
    s_lshl_b32 s59, s47, 15
    s_add_u32 s59, s59, {TB[0]}
    v_and_b32 v33, 1, v2
    v_bfe_u32 v34, v2, 2, 1
    v_lshl_add_u32 v33, v34, 1, v33
    v_lshl_add_u32 v34, v2, 8, s59
    """)
    for cp in range(4):
        a.e(f"v_xor_b32 v35, {cp}, v33")
        a.e(f"v_lshl_add_u32 v{A_TB+cp}, v35, 5, v34")
    a.e(f"""
    v_lshlrev_b32 v34, 7, v32
    v_lshl_add_u32 v34, v29, 3, v34
    v_add_u32 v34, s59, v34
    v_lshrrev_b32 v33, 1, v28
    v_and_b32 v35, 1, v27
    v_lshl_add_u32 v33, v35, 1, v33
    """)
    for t in range(4):
        a.e(f"v_xor_b32 v35, {t}, v33")
        a.e(f"v_lshl_add_u32 v{A_KM+t}, v35, 5, v34")
    a.e(f"""
    s_mul_i32 s59, s47, {KC[1]-KC[0]}
    s_add_u32 s59, s59, {KC[0]}
    v_lshrrev_b32 v33, 1, v27
    v_lshlrev_b32 v33, 7, v33
    v_lshl_add_u32 v33, v26, 3, v33
    v_and_b32 v34, 1, v27
    v_lshl_add_u32 v33, v34, 2, v33
    v_lshl_add_u32 v{A_C0}, v33, 1, s59          ; tile 0
    v_lshlrev_b32 v33, 6, v27
    v_cmp_gt_u32 vcc, 2, v27
    v_lshlrev_b32 v34, 2, v26
    v_lshlrev_b32 v35, 1, v26
    v_cndmask_b32 v34, v35, v34, vcc
    v_add_u32 v33, v33, v34
    v_add_u32 v33, 256, v33
    v_mov_b32 v34, 32
    v_mov_b32 v35, 2
    v_cndmask_b32 v34, v34, v35, vcc
    v_add_u32 v34, v33, v34
    v_lshl_add_u32 v{A_C1A}, v33, 1, s59
    v_lshl_add_u32 v{A_C1B}, v34, 1, s59
    v_lshl_add_u32 v33, v27, 6, v26
    v_add_u32 v33, 512, v33
    v_lshl_add_u32 v{A_C2}, v33, 1, s59          ; tile 2
    v_lshlrev_b32 v33, 4, v0
    v_add_u32 v{A_DW}, 16, v33
    v_mov_b32 v{A_ER0}, v33
    v_lshlrev_b32 v34, 3, v0
    v_add_u32 v{A_ER1}, 256, v34
    s_cmp_eq_u32 s39, 1
    s_cbranch_scc0 L_a_ad1
    v_lshlrev_b32 v34, 2, v0
    v_add_u32 v{A_ER0}, 512, v34
    """)
    a.label("L_a_ad1")
    a.e(f"""
    s_cmp_ge_u32 s39, 2
    s_cbranch_scc0 L_a_ad2
    v_add_u32 v34, 384, v0
    v_lshlrev_b32 v{A_ER0}, 1, v34
    """)
    a.label("L_a_ad2")
    a.e(f"""
    v_mov_b32 v{A_ZU}, v33
    v_lshrrev_b32 v34, 2, v0
    v_mul_u32_u24 v34, 4160, v34
    v_and_b32 v35, 3, v0
    v_lshl_add_u32 v{A_ZC}, v35, 4, v34
    v_mul_u32_u24 v34, {KD[1]-KD[0]}, v0
    v_add_u32 v{A_ZG}, {KD[0]}, v34
    ; copies
    v_mov_b32 v{A_CR}, v33
    v_add_u32 v{A_CW}, 64, v33
    v_lshrrev_b32 v34, 7, v0                     ; cch
    v_add_u32 v35, s50, v34
    v_lshlrev_b32 v35, 12, v35
    v_lshl_add_u32 v35, v2, 4, v35
    v_add_u32 v{A_UG}, {UT}, v35
    v_lshrrev_b32 v35, 2, v2
    v_mul_u32_u24 v35, 80, v35
    v_and_b32 v36, 3, v2
    v_lshl_add_u32 v35, v36, 4, v35
    v_mul_u32_u24 v34, {UR[1]-UR[0]}, v34
    v_add_u32 v{A_UL}, v35, v34
    v_lshrrev_b32 v34, 3, v1
    v_lshlrev_b32 v34, 7, v34
    v_and_b32 v35, 7, v1
    v_lshl_add_u32 v34, v35, 2, v34
    s_lshl_b32 s58, s40, 10
    s_add_u32 s58, s58, {UTF}
    v_add_u32 v{A_FU}, s58, v34
    v_lshrrev_b32 v34, 3, v30
    v_lshlrev_b32 v34, 7, v34
    v_lshl_add_u32 v34, v35, 2, v34
    s_lshl_b32 s58, s40, 9
    s_add_u32 s58, s58, {YTF}
    v_add_u32 v{A_FY}, s58, v34
    s_lshl_b32 s57, s41, 1
    s_add_u32 s57, s57, s48
    s_lshr_b32 s59, s57, 3
    s_lshl_b32 s59, s59, 7
    s_and_b32 s57, s57, 7
    s_lshl_b32 s57, s57, 2
    s_add_u32 s57, s57, s59
    s_lshl_b32 s59, s40, 10
    s_add_u32 s57, s57, s59
    s_add_u32 s57, s57, {UTF}
    v_mov_b32 v{A_FUS}, s57
    s_lshr_b32 s59, s41, 3
    s_lshl_b32 s59, s59, 7
    s_and_b32 s57, s41, 7
    s_lshl_b32 s57, s57, 2
    s_add_u32 s57, s57, s59
    s_add_u32 s57, s57, s58
    v_mov_b32 v{A_FYS}, s57
    v_sub_u32 v34, 3, v30
    v_and_b32 v34, 3, v34
    v_mul_u32_u24 v35, 4160, v34
    v_add_u32 v36, v30, v34
    v_add_u32 v36, 9, v36
    v_lshlrev_b32 v37, 3, v31
    v_sub_u32 v36, v36, v37
    v_lshl_add_u32 v35, v36, 1, v35
    s_mul_i32 s57, s47, {CP[1]-CP[0]}
    s_lshl_b32 s58, s48, 10
    s_add_u32 s57, s57, s58
    s_add_u32 s57, s57, {CP[0]}
    v_add_u32 v{A_VA}, s57, v35
    v_sub_u32 v35, 31, v30
    v_mul_u32_u24 v35, 80, v35
    v_lshlrev_b32 v36, 4, v31
    v_sub_u32 v35, v35, v36
    v_add_u32 v35, 16, v35
    s_mul_i32 s57, s47, {UR[1]-UR[0]}
    s_mul_i32 s58, s48, {16*80}
    s_add_u32 s57, s57, s58
    s_add_u32 s57, s57, {UR[0]}
    v_add_u32 v{A_VB}, s57, v35
    v_mul_u32_u24 v35, 144, v30
    v_lshl_add_u32 v35, v31, 4, v35
    s_mul_i32 s57, s39, {64*144}
    v_add_u32 v{A_PW}, s57, v35
    v_lshrrev_b32 v35, 2, v0
    v_mul_u32_u24 v35, 144, v35
    v_and_b32 v36, 3, v0
    v_lshl_add_u32 v{A_OR}, v36, 5, v35
    s_lshl_b32 s57, s50, 12
    s_add_u32 s57, s57, {YT}
    v_lshl_add_u32 v{A_YG}, v0, 4, s57
    v_lshlrev_b32 v35, 2, v4
    v_add_u32 v35, s49, v35
    v_lshlrev_b32 v35, 12, v35
    v_lshl_add_u32 v35, v3, 3, v35
    s_lshl_b32 s59, s41, 7
    s_add_u32 s59, s59, {YT}
    v_add_u32 v{A_YL}, s59, v35
    v_add_u32 v{A_YL+1}, 4096, v{A_YL}
    v_add_u32 v{A_YL+2}, 8192, v{A_YL}
    v_add_u32 v{A_YL+3}, 12288, v{A_YL}
    v_lshlrev_b32 v35, 1, v6
    v_sub_u32 v{A_OUT}, v35, v7
    """)
    if cfg.touch:
        K.a_touch_setup(a, cfg)
    a.e("s_waitcnt vmcnt(0) lgkmcnt(0)")
    st(2)
    a.e(f"""
    s_cmp_eq_u32 s39, 3
    s_cbranch_scc0 L_a_nopt
    global_load_dword v253, v{A_FU}, s[36:37] sc1
    global_load_dword v254, v{A_FY}, s[36:37] sc1
    """)
    a.label("L_a_nopt")
    if cfg.touch:
        K.a_touch(a, cfg, {2: ["x1", "k0"], 3: ["k1"]})
    a.e("""
    s_mov_b32 s57, 0x05040100
    s_mov_b32 s58, 0x07060302
    """)
    for e in range(4):
        sel = "s57" if e % 2 == 0 else "s58"
        h = e // 2
        a.e(f"v_perm_b32 v{32+2*e}, v{20+h}, v{22+h}, {sel}")
        a.e(f"v_perm_b32 v{33+2*e}, v{16+h}, v{18+h}, {sel}")
        a.e(f"ds_write_b64 v{A_TW}, v[{32+2*e}:{33+2*e}] offset:{e*144}")
    a.e("""
    s_waitcnt lgkmcnt(0)
    s_barrier
    s_cmp_ge_u32 s39, 2
    s_cbranch_scc1 L_a_nout
    """)
    for i in range(4):
        a.e(f"ds_read_b128 v[{224+4*i}:{227+4*i}], v{A_TR} offset:{i*8*144}")
    UTA = [A_UT0, A_UT1, 200, 201]
    for i in range(4):
        a.e(f"s_waitcnt lgkmcnt({3-i})")
        a.e(f"global_store_dwordx4 v{UTA[i]}, v[{224+4*i}:{227+4*i}], s[36:37]")
    a.e("global_load_dword v9, v8, s[34:35] sc1")
    a.label("L_a_nout")
    a.vm = []
    if cfg.dbgT: st(5)
    def ut_flag():
        a.e(f"""
        s_cmp_ge_u32 s39, 2
        s_cbranch_scc1 L_a_nofl
        s_mov_b32 s61, 0
        """)
        if cfg.dbgN: st(4)
        a.e(f"""
        s_waitcnt vmcnt(0)
        """)
        if cfg.dbgN: st(7)
        a.e(f"""
        v_readfirstlane_b32 s38, v9
        s_cmp_lg_u32 s38, 0
        s_cbranch_scc1 L_a_nok
        """)
        a.label("L_a_npoll")
        a.e(f"""
        global_load_dword v9, v8, s[34:35] sc1
        s_waitcnt vmcnt(0)
        v_readfirstlane_b32 s38, v9
        s_add_u32 s61, s61, 1
        s_cmp_gt_u32 s61, {SPIN}
        s_cbranch_scc1 L_a_nok
        s_cmp_eq_u32 s38, 0
        s_cbranch_scc1 L_a_npoll
        """)
        a.label("L_a_nok")
        if cfg.dbgN:
            st(5); K.stampval(a, cfg, 6, "s61")
        a.e(f"""
        s_getreg_b32 s57, hwreg(HW_REG_XCC_ID)
        s_and_b32 s57, s57, 7
        s_and_b32 s58, s38, 0xfffffff8
        s_or_b32 s57, s57, s58
        v_mov_b32 v9, s57
        s_mov_b64 exec, 1
        global_store_dword v{A_FUS}, v9, s[36:37]
        s_mov_b64 exec, -1
        """)
        a.label("L_a_nofl")
        a.vm = []

    LOG2E = fhex(1.4426950408889634); INV2PI = fhex(0.15915494309189535)
    a.e(f"""
    s_lshr_b32 s59, s56, 16
    s_and_b32 s60, s56, 0xffff
    s_cmp_eq_u32 s47, 0
    s_cselect_b32 s59, s60, s59
    s_lshl_b32 s59, s59, 16
    v_mov_b32 v28, s59
    v_mul_f32 v29, {LOG2E}, v28
    v_mov_b32 v30, {LOG2E}
    v_fma_f32 v30, v28, v30, -v29
    v_fmac_f32 v30, 0x32a57060, v28
    v_exp_f32 v29, v29
    v_mul_f32 v30, {fhex(0.6931471805599453)}, v30
    v_fma_f32 v29, v29, v30, v29
    v_cvt_pk_bf16_f32 v29, v29, v29
    v_lshlrev_b32 v29, 16, v29
    """)
    for i in range(6): a.e(f"v_lshlrev_b32 v{10+i}, 16, v{10+i}")
    a.e(f"""
    v_mul_f32 v10, v29, v10          ; a_re
    v_mul_f32 v11, v29, v11          ; a_im
    v_mul_f32 v12, v29, v12          ; dB_re
    v_mul_f32 v13, v29, v13          ; dB_im
    v_mul_f32 v10, {LOG2E}, v10      ; ar2
    v_mul_f32 v11, {INV2PI}, v11     ; ai2
    """)
    P = {}
    nxtp = [50]
    def pair(name):
        P[name] = nxtp[0]; nxtp[0] += 2
        return P[name]
    TMP = [28, 30]
    ti = [0]
    def mul(dn, xn, yn):
        d = P.get(dn) or pair(dn)
        t = TMP[ti[0] % 2]; ti[0] += 1
        cmul(a, d, P[xn], P[yn], t)
    pair("X0"); cmul(a, P["X0"], 14, 12, 28)
    for x in (1, 8, 128, 256, 512, 1024):
        d = pair(f"E{x}")
        if x == 1:
            a.e(f"v_exp_f32 v6, v10")
            a.e(f"v_fract_f32 v7, v11")
        else:
            a.e(f"v_mul_f32 v6, {fhex(float(x))}, v10")
            a.e(f"v_mul_f32 v7, {fhex(float(x))}, v11")
            a.e(f"v_exp_f32 v6, v6")
            a.e(f"v_fract_f32 v7, v7")
        a.e(f"v_cos_f32 v26, v7")
        a.e(f"v_sin_f32 v27, v7")
        a.e(f"v_mul_f32 v{d}, v6, v26")
        a.e(f"v_mul_f32 v{d+1}, v6, v27")
    if cfg.flagpos == 3: ut_flag()
    if cfg.dbgT: st(4)
    OUT = [120, 128]
    oc = [0]
    def put_chunk(q, names, neg):
        o = OUT[oc[0] % 2]; oc[0] += 1
        sg = "-" if neg else ""
        for m in range(4):
            x, y = P[names[2*m]], P[names[2*m+1]]
            a.e(f"v_cvt_pk_bf16_f32 v{o+m}, v{x}, v{y}")
            a.e(f"v_cvt_pk_bf16_f32 v{o+4+m}, {sg}v{x+1}, {sg}v{y+1}")
        ad = A_TB + (q >> 1)
        a.e(f"ds_write_b128 v{ad}, v[{o}:{o+3}] offset:{(q & 1)*16}")
        a.e(f"ds_write_b128 v{ad}, v[{o+4}:{o+7}] offset:{128 + (q & 1)*16}")
    pair("ONE")
    a.e(f"v_mov_b32 v{P['ONE']}, 1.0")
    a.e(f"v_mov_b32 v{P['ONE']+1}, 0")
    for k in range(8): pair(f"S{k}")
    for k in range(1, 8):
        mul(f"X{k}", f"X{k-1}", "E1")
    put_chunk(0, [f"X{k}" for k in range(8)], True)
    P["Y8"] = P["E8"]
    mul("Y16", "Y8", "Y8"); mul("Y24", "Y16", "Y8"); mul("Y32", "Y16", "Y16")
    mul("Y40", "Y32", "Y8"); mul("Y48", "Y32", "Y16"); mul("Y56", "Y32", "Y24")
    put_chunk(6, ["ONE", "Y8", "Y16", "Y24", "Y32", "Y40", "Y48", "Y56"], False)
    if cfg.dbgT: st(6)
    mul("S0", "Y32", "Y32")
    for jj in range(1, 8): mul(f"S{jj}", "S0", f"Y{8*jj}")
    put_chunk(7, [f"S{k}" for k in range(8)], False)
    for k in range(8): mul(f"S{k}", f"X{k}", "E128")
    put_chunk(1, [f"S{k}" for k in range(8)], True)
    for i_, k in enumerate((0, 2, 4, 6)):
        mul(f"S{i_}", f"X{k}", "E256")
    for i_ in range(4):
        mul(f"S{4+i_}", f"S{i_}", "E128")
    put_chunk(2, [f"S{k}" for k in range(8)], True)
    mul("S0", "X0", "E512"); mul("S1", "X4", "E512")
    for i_ in range(2, 8): mul(f"S{i_}", f"S{i_-2}", "E128")
    put_chunk(3, [f"S{k}" for k in range(8)], True)
    mul("S0", "X0", "E1024")
    for i_ in range(1, 8): mul(f"S{i_}", f"S{i_-1}", "E128")
    pair("XL"); mul("XL", "S0", "E1024")
    put_chunk(4, [f"S{k}" for k in range(8)], True)
    a.e(f"v_cvt_pk_bf16_f32 v120, v{P['XL']}, -v{P['XL']+1}")
    a.e(f"ds_write_b16 v{A_TB+2}, v120 offset:16")
    a.e(f"ds_write_b16_d16_hi v{A_TB+2}, v120 offset:{128+16}")
    assert nxtp[0] <= 120, nxtp
    if cfg.flagpos == 0: ut_flag()
    if cfg.dbgT: st(7)
    a.e("s_waitcnt lgkmcnt(0)")
    if cfg.dbgT: st(8)
    a.e("s_barrier")
    st(3)
    if cfg.touch:
        K.a_touch(a, cfg, {2: ["q"], 3: ["o"]})
    a.e(f"""
    s_cmp_lg_u32 s39, 0
    s_cbranch_scc1 L_a_uf0
    global_load_dword v30, v{A_FU}, s[36:37] sc1
    """)
    a.label("L_a_uf0")
    YF, XF, D0 = 32, 64, 128
    def trfrag(dst, addr, s):
        a.e(f"ds_read_b64_tr_b16 v[{dst}:{dst+1}], v{addr} offset:{s*4096}")
        a.e(f"ds_read_b64_tr_b16 v[{dst+2}:{dst+3}], v{addr} offset:{s*4096 + 512}")
    a.e("""
    s_cmp_eq_u32 s48, 0
    s_cbranch_scc0 L_a_k2
    """)
    a.lg = []
    for s in range(8):
        trfrag(YF+4*s, A_KM+3, s)
        for t in range(2): trfrag(XF+32*t+4*s, A_KM+t, s)
    for s in range(8):
        a.e(f"s_waitcnt lgkmcnt({min(15, 6*(7-s))})")
        for t in range(2):
            c = "0" if s == 0 else f"v[{D0+4*t}:{D0+4*t+3}]"
            a.e(f"v_mfma_f32_16x16x32_bf16 v[{D0+4*t}:{D0+4*t+3}], v[{XF+32*t+4*s}:{XF+32*t+4*s+3}], v[{YF+4*s}:{YF+4*s+3}], {c}")
    a.e(f"""
    v_cvt_pk_bf16_f32 v136, v{D0}, v{D0+1}
    v_cvt_pk_bf16_f32 v137, v{D0+2}, v{D0+3}
    v_cvt_pk_bf16_f32 v138, v{D0+4}, v{D0+5}
    v_cvt_pk_bf16_f32 v139, v{D0+6}, v{D0+7}
    ds_write_b64 v{A_C0}, v[136:137]
    ds_write_b32 v{A_C1A}, v138
    ds_write_b32 v{A_C1B}, v139
    s_branch L_a_kdone
    """)
    a.label("L_a_k2")
    for s in range(8):
        trfrag(YF+4*s, A_KM+3, s)
        trfrag(XF+4*s, A_KM+2, s)
    for s in range(8):
        a.e(f"s_waitcnt lgkmcnt({min(15, 4*(7-s))})")
        c = "0" if s == 0 else f"v[{D0}:{D0+3}]"
        a.e(f"v_mfma_f32_16x16x32_bf16 v[{D0}:{D0+3}], v[{XF+4*s}:{XF+4*s+3}], v[{YF+4*s}:{YF+4*s+3}], {c}")
    a.e(f"""
    v_cvt_pk_bf16_f32 v136, v{D0}, v{D0+1}
    v_cvt_pk_bf16_f32 v137, v{D0+2}, v{D0+3}
    ds_write_b16 v{A_C2}, v136
    ds_write_b16_d16_hi v{A_C2}, v136 offset:32
    ds_write_b16 v{A_C2}, v137 offset:64
    ds_write_b16_d16_hi v{A_C2}, v137 offset:96
    """)
    a.label("L_a_kdone")
    if cfg.flagpos == 1: ut_flag()
    a.e(f"""
    s_cmp_lg_u32 s39, 0
    s_cbranch_scc1 L_a_uf1
    s_and_b32 s58, s38, 0xfffffff8
    s_getreg_b32 s57, hwreg(HW_REG_XCC_ID)
    s_and_b32 s57, s57, 7
    s_or_b32 s59, s57, s58
    s_waitcnt vmcnt(0)
    v_cmp_ne_u32 vcc, s59, v30
    s_cmp_eq_u64 vcc, 0
    s_cselect_b32 s57, 1, 0
    v_mov_b32 v31, s57
    v_mov_b32 v30, 0
    ds_write_b32 v30, v31 offset:{NONCE_LDS+8}
    ds_write_b32 v30, v31 offset:{NONCE_LDS+4}
    """)
    a.label("L_a_uf1")
    a.e(f"""
    s_mov_b32 s57, 0x01000100
    s_mov_b32 s58, 0x03020302
    s_mov_b32 s59, 0x05040302
    s_mov_b32 s63, 0x05040100
    v_mov_b32 v48, 0
    v_mov_b32 v49, 0
    v_mov_b32 v50, 0
    v_mov_b32 v51, 0
    s_waitcnt lgkmcnt(0)
    s_barrier
    """)
    a.lg = []
    a.e(f"""
    v_mov_b32 v30, 0
    ds_read_b32 v31, v30 offset:{NONCE_LDS+8}
    s_waitcnt lgkmcnt(0)
    v_readfirstlane_b32 s44, v31
    s_cmp_eq_u32 s44, 0
    s_cbranch_scc1 L_a_ul0
    global_load_dwordx4 v[208:211], v{A_UG}, s[36:37] sc1
    global_load_dwordx4 v[212:215], v{A_UG}, s[36:37] offset:2048 sc1
    """)
    a.label("L_a_ul0")
    if not (cfg.dbgT or cfg.dbgY or cfg.dbgN): st(4)
    a.e("""
    s_cmp_eq_u32 s39, 0
    s_cbranch_scc1 L_a_e0
    s_cmp_eq_u32 s39, 1
    s_cbranch_scc1 L_a_e2
    """)
    for c in range(2):
        a.e(f"ds_read_u16 v{32+2*c}, v{A_ER0} offset:{KC[c]}")
        a.e(f"ds_read_u16 v{33+2*c}, v{A_ER0} offset:{KC[c]+2}")
    a.e(f"""
    v_and_b32 v28, 1, v0
    v_cmp_eq_u32 vcc, 0, v28
    s_waitcnt lgkmcnt(0)
    """)
    for c in range(2):
        c0, c1 = 32+2*c, 33+2*c
        o = 40 + 4*c
        a.e(f"v_perm_b32 v{o}, v{c1}, v{c0}, s57")
        a.e(f"v_perm_b32 v{o+3}, v{c0}, v{c1}, s57")
        a.e(f"v_perm_b32 v{o+2}, v{c1}, v{c0}, s63")
        a.e(f"v_mov_b32 v{o+1}, v{o}")
        a.e(f"v_cndmask_b32 v{o+2}, v{o+3}, v{o+2}, vcc")
    a.e("s_branch L_a_ew")
    a.label("L_a_e2")
    for c in range(2):
        a.e(f"ds_read_b32 v{32+2*c}, v{A_ER0} offset:{KC[c]}")
        a.e(f"ds_read_b32 v{33+2*c}, v{A_ER0} offset:{KC[c]+4}")
    a.e("s_waitcnt lgkmcnt(0)")
    for c in range(2):
        A_, B_ = 32+2*c, 33+2*c
        o = 40 + 4*c
        a.e(f"v_perm_b32 v{o}, v{A_}, v{A_}, s57")
        a.e(f"v_mov_b32 v{o+1}, v{A_}")
        a.e(f"v_perm_b32 v{o+2}, v{A_}, v{A_}, s58")
        a.e(f"v_perm_b32 v{o+3}, v{B_}, v{B_}, s57")
    a.e("s_branch L_a_ew")
    a.label("L_a_e0")
    for c in range(2):
        a.e(f"ds_read_b128 v[{40+4*c}:{43+4*c}], v{A_ER0} offset:{KC[c]}")
        a.e(f"ds_read_b64 v[{32+4*c}:{33+4*c}], v{A_ER1} offset:{KC[c]}")
        a.e(f"ds_read_b32 v{34+4*c}, v{A_ER1} offset:{KC[c]+8}")
    a.e("""
    v_cmp_le_u32 vcc, 32, v0
    s_waitcnt lgkmcnt(0)
    """)
    for c in range(2):
        A_, B_, C_ = 32+4*c, 33+4*c, 34+4*c
        o = 40 + 4*c
        a.e(f"v_perm_b32 v52, v{A_}, v{A_}, s57")
        a.e(f"v_perm_b32 v53, v{B_}, v{A_}, s59")
        a.e(f"v_perm_b32 v54, v{B_}, v{B_}, s57")
        a.e(f"v_perm_b32 v55, v{C_}, v{B_}, s59")
        for q in range(4):
            a.e(f"v_cndmask_b32 v{o+q}, v{o+q}, v{52+q}, vcc")
    a.label("L_a_ew")
    for c in range(2):
        a.e(f"ds_write_b128 v{A_DW}, v[{40+4*c}:{43+4*c}] offset:{KD[c]}")
    a.e(f"""
    v_cmp_gt_u32 vcc, 160, v0
    s_and_b64 exec, exec, vcc
    ds_write_b128 v{A_ZU}, v[48:51] offset:{UR[0] + 64*80}
    ds_write_b128 v{A_ZU}, v[48:51] offset:{UR[1] + 64*80}
    v_cmp_gt_u32 vcc, 32, v0
    s_and_b64 exec, exec, vcc
    ds_write_b128 v{A_ZC}, v[48:51] offset:{CP[0]}
    v_cmp_gt_u32 vcc, 2, v0
    s_and_b64 exec, exec, vcc
    ds_write_b128 v{A_ZG}, v[48:51]
    s_mov_b64 exec, -1
    """)
    if cfg.flagpos == 2: ut_flag()
    pass
    a.e("""
    s_waitcnt lgkmcnt(0)
    s_barrier
    """)
    a.vm = []
    if not (cfg.dbgT or cfg.dbgY or cfg.dbgN): st(5)
    for c in range(2):
        b = 32 + 16*c
        a.e(f"ds_read_b64 v[{b}:{b+1}], v{A_CR} offset:{KD[c] + 8}")
        a.e(f"ds_read_b128 v[{b+4}:{b+7}], v{A_CR} offset:{KD[c] + 16}")
    for c in range(2):
        a.e(f"s_waitcnt lgkmcnt({2 - 2*c})" if c == 0 else "s_waitcnt lgkmcnt(4)")
        b = 32 + 16*c
        n0, n1, n2, n3, n4, n5 = b, b+1, b+4, b+5, b+6, b+7
        m = b + 8
        t1 = 96 + 8*c
        base = CP[c]
        a.e(f"ds_write_b128 v{A_CW}, v[{n2}:{n5}] offset:{base}")
        a.e(f"v_alignbit_b32 v{m}, v{n1}, v{n0}, 16")
        for q, (hi, lo) in enumerate(((n2, n1), (n3, n2), (n4, n3))):
            a.e(f"v_alignbit_b32 v{m+1+q}, v{hi}, v{lo}, 16")
        a.e(f"ds_write_b128 v{A_CW}, v[{m}:{m+3}] offset:{base + 3*4160}")
        for q, (hi, lo) in enumerate(((n2, n1), (n3, n2), (n4, n3), (n5, n4))):
            a.e(f"v_alignbit_b32 v{t1+q}, v{hi}, v{lo}, 16")
        a.e(f"ds_write_b128 v{A_CW}, v[{t1}:{t1+3}] offset:{base + 4160}")
        for q, r in enumerate((n1, n2, n3, n4)): a.e(f"v_mov_b32 v{t1+4+q}, v{r}")
        a.e(f"ds_write_b128 v{A_CW}, v[{t1+4}:{t1+7}] offset:{base + 2*4160}")
    if not (cfg.dbgT or cfg.dbgY or cfg.dbgN): st(6)
    a.e(f"""
    s_cmp_lg_u32 s44, 0
    s_cbranch_scc1 L_a_fast
    s_cmp_ge_u32 s39, 2
    s_cbranch_scc1 L_a_utf_go
    s_and_b32 s58, s38, 0xfffffff8
    s_getreg_b32 s57, hwreg(HW_REG_XCC_ID)
    s_and_b32 s57, s57, 7
    s_or_b32 s59, s57, s58
    s_mov_b32 s61, 0
    v_add_u32 v28, 8192, v{A_FU}
    """)
    a.label("L_a_utf_poll")
    a.e(f"""
    global_load_dword v30, v{A_FU}, s[36:37] sc1
    global_load_dword v31, v28, s[36:37] sc1
    s_add_u32 s61, s61, 1
    s_waitcnt vmcnt(0)
    v_cmp_ne_u32 vcc, s59, v30
    s_cmp_eq_u64 vcc, 0
    s_cbranch_scc1 L_a_utf_local
    v_cmp_ne_u32 s[64:65], s58, v31
    s_and_b64 vcc, vcc, s[64:65]
    s_cbranch_vccz L_a_utf_glob
    s_cmp_eq_u32 s61, {cfg.ut_patience}
    s_cbranch_scc0 L_a_utf_again
    s_mov_b32 s60, 0
    """)
    a.label("L_a_utf_pub")
    a.e(f"""
    global_store_dwordx4 v{A_UT0}, v[224:227], s[36:37] sc1
    global_store_dwordx4 v{A_UT1}, v[228:231], s[36:37] sc1
    global_store_dwordx4 v200, v[232:235], s[36:37] sc1
    global_store_dwordx4 v201, v[236:239], s[36:37] sc1
    s_waitcnt vmcnt(0)
    v_add_u32 v29, 8192, v{A_FUS}
    v_mov_b32 v30, s58
    s_mov_b64 exec, 1
    global_store_dword v29, v30, s[36:37] sc1
    s_mov_b64 exec, -1
    s_cmp_lg_u32 s60, 0
    s_cbranch_scc1 L_a_utf_glob2
    """)
    a.label("L_a_utf_again")
    a.e(f"""
    s_cmp_gt_u32 s61, {SPIN}
    s_cbranch_scc1 L_a_utf_glob2
    s_sleep 1
    s_branch L_a_utf_poll
    """)
    a.label("L_a_utf_local")
    a.e("s_mov_b32 s57, 1")
    a.e("s_branch L_a_utf_ok")
    a.label("L_a_utf_glob")
    a.e(f"""
    s_mov_b32 s60, 1
    s_cmp_lt_u32 s61, {cfg.ut_patience}
    s_cbranch_scc1 L_a_utf_pub
    s_cmp_eq_u32 s61, {cfg.ut_patience}
    s_cbranch_scc1 L_a_utf_pub
    """)
    a.label("L_a_utf_glob2")
    a.e("s_mov_b32 s57, 0")
    a.label("L_a_utf_ok")
    a.e(f"""
    v_mov_b32 v31, s57
    v_mov_b32 v30, 0
    ds_write_b32 v30, v31 offset:{NONCE_LDS+4}
    """)
    a.label("L_a_utf_go")
    a.e(f"""
    s_waitcnt lgkmcnt(0)
    s_barrier
    global_load_dwordx4 v[208:211], v{A_UG}, s[36:37] sc1
    global_load_dwordx4 v[212:215], v{A_UG}, s[36:37] offset:2048 sc1
    """)
    a.label("L_a_fast")
    a.e(f"""
    v_mov_b32 v30, 0
    ds_read_b32 v31, v30 offset:{NONCE_LDS+4}
    """)
    for e in range(4):
        h, hi = e // 2, e % 2
        a.e(f"v_{'and_b32' if hi else 'lshlrev_b32'} v{80+e}, {'0xffff0000' if hi else '16'}, v{24+h}")
    for rho in range(4):
        for e in range(4):
            h, hi = e // 2, e % 2
            a.e(f"v_{'and_b32' if hi else 'lshlrev_b32'} v{224+4*rho+e}, {'0xffff0000' if hi else '16'}, v{16+2*rho+h}")
            a.e(f"v_mul_f32 v{224+4*rho+e}, v{224+4*rho+e}, v{80+e}")
        for h in range(2):
            a.e(f"v_cvt_pk_bf16_f32 v{84+h}, v{224+4*rho+2*h}, v{224+4*rho+2*h+1}")
        for h in range(2):
            a.e(f"v_lshlrev_b32 v{224+4*rho+2*h}, 16, v{84+h}")
            a.e(f"v_and_b32 v{224+4*rho+2*h+1}, 0xffff0000, v{84+h}")
    a.e("s_waitcnt vmcnt(0) lgkmcnt(0)")
    a.e("v_readfirstlane_b32 s46, v31")
    a.vm = []
    if not (cfg.dbgT or cfg.dbgY or cfg.dbgN): st(7)
    a.e(f"""
    ds_write_b128 v{A_UL}, v[208:211] offset:{UR[0]}
    ds_write_b128 v{A_UL}, v[212:215] offset:{UR[0] + 32*80}
    s_waitcnt lgkmcnt(0)
    s_barrier
    """)
    if not (cfg.dbgT or cfg.dbgY or cfg.dbgN): st(8)
    a.e(f"s_setprio {cfg.prioA2}")
    if cfg.ytouch:
        a.e(f"""
        s_cmp_lg_u32 s39, 2
        s_cbranch_scc1 L_a_noyt
        s_lshl_b32 s57, s50, 12
        s_add_u32 s57, s57, {YT}
        v_lshl_add_u32 v28, v1, 7, s57
        global_load_dword v252, v28, s[36:37]
        """)
        a.label("L_a_noyt")
    ACC0, ACC1 = 128, 144
    NB = 3
    FR = [32 + 16*i for i in range(NB)]
    steps = [(dl, hf) for dl in range(16) for hf in range(2)]
    def rd(i):
        dl, hf = steps[i]
        f = FR[i % NB]
        ao = 64*dl + 32*(1-hf)
        bo = 80*dl + 32*(1-hf)
        t = f"cv{i}"
        return [(f"ds_read_b64 v[{f}:{f+1}], v{A_VA} offset:{ao}", t),
                (f"ds_read_b64 v[{f+2}:{f+3}], v{A_VA} offset:{ao+8}", t),
                (f"ds_read_b128 v[{f+8}:{f+11}], v{A_VB} offset:{bo+2560}", t),
                (f"ds_read_b128 v[{f+12}:{f+15}], v{A_VB} offset:{bo}", t),
                (f"ds_read_b64 v[{f+4}:{f+5}], v{A_VA} offset:{ao+2048}", t),
                (f"ds_read_b64 v[{f+6}:{f+7}], v{A_VA} offset:{ao+2056}", t)]
    a.lg = []
    for i in (0, 1):
        for t, tg in rd(i): a.e(t, lg=tg)
    for i in range(32):
        f = FR[i % NB]
        a.wait_lg(f"cv{i}")
        c0 = "0" if i == 0 else f"v[{ACC0}:{ACC0+15}]"
        c1 = "0" if i == 0 else f"v[{ACC1}:{ACC1+15}]"
        R = rd(i + 2) if i + 2 < 32 else []
        a.e(f"v_mfma_f32_32x32x16_bf16 v[{ACC0}:{ACC0+15}], v[{f}:{f+3}], v[{f+8}:{f+11}], {c0}")
        for t, tg in R[0:2]: a.e(t, lg=tg)
        a.e(f"v_mfma_f32_32x32x16_bf16 v[{ACC1}:{ACC1+15}], v[{f}:{f+3}], v[{f+12}:{f+15}], {c1}")
        for t, tg in R[2:4]: a.e(t, lg=tg)
        a.e(f"v_mfma_f32_32x32x16_bf16 v[{ACC1}:{ACC1+15}], v[{f+4}:{f+7}], v[{f+8}:{f+11}], v[{ACC1}:{ACC1+15}]")
        for t, tg in R[4:6]: a.e(t, lg=tg)
    st(9)
    a.e(f"s_setprio {cfg.prioA3}")
    a.e("""
    s_waitcnt vmcnt(0) lgkmcnt(0)
    s_barrier
    """)
    for tau, acc in ((0, ACC0), (1, ACC1)):
        for q in range(4):
            a.e(f"ds_write_b128 v{A_PW}, v[{acc+4*q}:{acc+4*q+3}] offset:{YP + tau*32*144 + q*32}")
    a.e("""
    s_waitcnt lgkmcnt(0)
    s_barrier
    """)
    for c in range(2):
        o = YP + (c*2)*64*144
        b = 32 + 16*c
        a.e(f"ds_read_b128 v[{b}:{b+3}], v{A_OR} offset:{o}")
        a.e(f"ds_read_b128 v[{b+8}:{b+11}], v{A_OR} offset:{o + 64*144}")
        a.e(f"ds_read_b128 v[{b+4}:{b+7}], v{A_OR} offset:{o + 16}")
        a.e(f"ds_read_b128 v[{b+12}:{b+15}], v{A_OR} offset:{o + 64*144 + 16}")
    for c in range(2):
        a.e(f"s_waitcnt lgkmcnt({4-4*c})")
        b = 32 + 16*c
        for q in range(8): a.e(f"v_add_f32 v{b+q}, v{b+q}, v{b+8+q}")
        for m in range(4): a.e(f"v_cvt_pk_bf16_f32 v{64+4*c+m}, v{b+2*m}, v{b+2*m+1}")
    a.e(f"""
    v_add_u32 v29, 4096, v{A_YG}
    s_cmp_eq_u32 s46, 0
    s_cbranch_scc1 L_a_yg
    global_store_dwordx4 v{A_YG}, v[64:67], s[36:37]
    global_store_dwordx4 v29, v[68:71], s[36:37]
    s_branch L_a_yd
    """)
    a.label("L_a_yg")
    a.e(f"""
    global_store_dwordx4 v{A_YG}, v[64:67], s[36:37] sc1
    global_store_dwordx4 v29, v[68:71], s[36:37] sc1
    """)
    a.label("L_a_yd")
    a.e(f"""
    s_waitcnt vmcnt(0)
    s_barrier
    """)
    st(10)
    a.e(f"""
    s_cmp_lg_u32 s39, 1
    s_cbranch_scc1 L_a_ytf_go
    v_mov_b32 v28, s38
    s_mov_b64 exec, 1
    s_cmp_eq_u32 s46, 0
    s_cbranch_scc1 L_a_yfg
    global_store_dword v{A_FYS}, v28, s[36:37]
    s_branch L_a_yfd
    """)
    a.label("L_a_yfg")
    a.e(f"global_store_dword v{A_FYS}, v28, s[36:37] sc1")
    a.label("L_a_yfd")
    a.e("s_mov_b64 exec, -1")
    if cfg.dbgY: st(4)
    a.e("s_mov_b32 s61, 0")
    a.label("L_a_ytf_poll")
    a.e(f"""
    global_load_dword v29, v{A_FY}, s[36:37] sc1
    s_add_u32 s61, s61, 1
    s_waitcnt vmcnt(0)
    v_cmp_ne_u32 vcc, s38, v29
    s_cmp_gt_u32 s61, {SPIN}
    s_cbranch_scc1 L_a_ytf_go
    s_cbranch_vccz L_a_ytf_go
    s_sleep 1
    s_branch L_a_ytf_poll
    """)
    a.label("L_a_ytf_go")
    if cfg.dbgY:
        st(5); K.stampval(a, cfg, 7, "s61")
    a.e("s_barrier")
    if cfg.dbgY: st(6)
    a.e(f"""
    global_load_dwordx2 v[64:65], v{A_YL}, s[36:37] sc1
    global_load_dwordx2 v[66:67], v{A_YL+1}, s[36:37] sc1
    global_load_dwordx2 v[68:69], v{A_YL+2}, s[36:37] sc1
    global_load_dwordx2 v[70:71], v{A_YL+3}, s[36:37] sc1
    s_waitcnt vmcnt(0)
    """)
    st(11)
    for rho in range(4):
        m, hi = rho // 2, rho % 2
        for e in range(4):
            src = 64 + 2*e + m
            a.e(f"v_{'and_b32' if hi else 'lshlrev_b32'} v{84+e}, {'0xffff0000' if hi else '16'}, v{src}")
        for e in range(4):
            a.e(f"v_add_f32 v{84+e}, v{84+e}, v{224+4*rho+e}")
        a.e(f"v_cvt_pk_bf16_f32 v{88+2*rho}, v84, v85")
        a.e(f"v_cvt_pk_bf16_f32 v{89+2*rho}, v86, v87")
        if rho == 2: a.e(f"v_add_u32 v{A_OUT}, 4096, v{A_OUT}")
        a.e(f"global_store_dwordx2 v{A_OUT}, v[{88+2*rho}:{89+2*rho}], s[32:33] offset:{2048*(rho % 2)}")
    a.e("""
    s_cmp_lg_u32 s41, 0
    s_cbranch_scc1 L_a_norst
    s_cmp_lg_u32 s39, 1
    s_cbranch_scc1 L_a_norst
    v_mov_b32 v8, s45
    v_mov_b32 v9, 0
    s_mov_b64 exec, 1
    global_store_dword v8, v9, s[34:35] sc1
    s_mov_b64 exec, -1
    """)
    a.label("L_a_norst")
    st(12)
    K.stampval(a, cfg, 13, "s46")
    K.stamps_out(a, cfg, 14)
```

```python
import sys
from asmlib import Asm, wrap

UT   = 0
YT   = 4 << 20
PQ   = 8 << 20
PQF  = 10 << 20
KVP  = (10 << 20) + (64 << 10)
KVF  = 12 << 20
UTF  = (12 << 20) + (64 << 10)
YTF  = (12 << 20) + (96 << 10)
KVBLK = 2176
LOG2E = 0x3fb8aa3b
EPS   = 0x358637bd
SPIN_LIMIT = 200000

class Cfg:
    do_A = True
    do_B = True
    do_B2 = True
    touch = True
    dual = False
    x_nowrite = False
    prioA = 0
    prioA2 = 0
    dbgT = 0
    uttouch = 1
    ninit = 6
    dbgN = 0
    ut_patience = 200
    flagpos = 0
    ytouch = 1
    dbgY = 0
    prioA3 = 0
    prioB = 0
    pk = False
    b_exit = False
    touch_flags = ""
    early_release = True
    dma_early = False
    last_dma = 40
    late_pre = 0
    touch_mode = "late"
    stamps = False

STAMP_BASE = 14 << 20
def stamp(a, cfg, i):
    if cfg.stamps:
        a.e(f"s_memtime s[{70+2*i}:{71+2*i}]")
def stampval(a, cfg, i, sreg):
    if cfg.stamps:
        a.e("s_waitcnt lgkmcnt(0)")
        a.e(f"s_add_u32 s{70+2*i}, {sreg}, s70")
def stamps_out(a, cfg, n, vt=22):
    if not cfg.stamps: return
    a.e("s_memrealtime s[68:69]")
    a.e("s_waitcnt lgkmcnt(0) vmcnt(0)")
    a.vm = []
    for i in range(1, n):
        a.e(f"s_sub_u32 s{70+2*i}, s{70+2*i}, s70")
    a.e(f"""
    s_lshl_b32 s61, s2, 2
    s_add_u32 s61, s61, s39
    s_lshl_b32 s61, s61, 6
    s_add_u32 s61, s61, {STAMP_BASE}
    v_mov_b32 v{vt}, s61
    s_mov_b64 exec, 1
    """)
    for i in range(16):
        src = f"s{70+2*i}" if (0 < i < n) else ("s68" if i == 15 else ("s100" if i == 0 else "0"))
        a.e(f"v_mov_b32 v{vt+1}, {src}")
        a.e(f"global_store_dword v{vt}, v{vt+1}, s[36:37] offset:{4*i}")
        a.e("s_nop 1")
    a.e("s_waitcnt vmcnt(0)")
    a.e("s_mov_b64 exec, -1")
    a.vm = []

def prologue(a, cfg):
    if cfg.stamps:
        a.e("s_memrealtime s[100:101]")
        a.e("s_memtime s[70:71]")
    a.e("""
    s_cmp_ge_u32 s2, 512
    s_cbranch_scc1 L_end
    s_load_dwordx16 s[8:23], s[0:1], 0
    s_load_dwordx8 s[24:31], s[0:1], 64
    s_load_dwordx4 s[32:35], s[0:1], 96
    s_load_dwordx2 s[36:37], s[0:1], 112
    v_lshrrev_b32 v1, 6, v0
    v_readfirstlane_b32 s39, v1
    v_and_b32 v1, 63, v0
    s_and_b32 s3, s2, 255
    s_cmp_lt_u32 s2, 256
    s_cbranch_scc1 L_roleA
    """)

def poll_nonce(a, vtmp, vaddr0, first_tag=None):
    L = a.newlabel("nonce"); Lx = a.newlabel("nonce_ok")
    if first_tag:
        a.wait_vm(first_tag)
    else:
        a.e(f"global_load_dword {vtmp}, {vaddr0}, s[34:35] sc1")
        a.wait_vm_all()
    a.e(f"v_readfirstlane_b32 s38, {vtmp}")
    a.e(f"""
    s_cmp_lg_u32 s38, 0
    s_cbranch_scc1 {Lx}
    s_mov_b32 s61, 0
    """)
    a.label(L)
    a.e(f"""
    global_load_dword {vtmp}, {vaddr0}, s[34:35] sc1
    s_waitcnt vmcnt(0)
    v_readfirstlane_b32 s38, {vtmp}
    s_add_u32 s61, s61, 1
    s_cmp_gt_u32 s61, {SPIN_LIMIT}
    s_cbranch_scc1 {Lx}
    s_cmp_eq_u32 s38, 0
    s_cbranch_scc1 {L}
    """)
    a.vm.pop()
    a.label(Lx)

def phi_instrs(acc, tmp, out, zsum=None):
    L = []
    for i in range(16):
        L.append(f"v_mul_f32 v{tmp+i}, s62, v{acc+i}")
    for i in range(16):
        L.append(f"v_exp_f32 v{tmp+i}, v{tmp+i} clamp")
        L.append(f"v_max_f32 v{acc+i}, s64, v{acc+i}")
    for i in range(16):
        L.append(f"v_add_f32 v{acc+i}, v{acc+i}, v{tmp+i}")
    if zsum is not None:
        for m in range(8):
            L.append(f"v_add_f32 v{tmp+m}, v{acc+2*m}, v{acc+2*m+1}")
        for m in range(4):
            L.append(f"v_add_f32 v{tmp+m}, v{tmp+m}, v{tmp+4+m}")
        L.append(f"v_add_f32 v{tmp}, v{tmp}, v{tmp+2}")
        L.append(f"v_add_f32 v{tmp+1}, v{tmp+1}, v{tmp+3}")
        L.append(f"v_add_f32 v{zsum}, v{tmp}, v{tmp+1}")
    for m in range(8):
        L.append(f"v_cvt_pk_bf16_f32 v{out+m}, v{acc+2*m}, v{acc+2*m+1}")
    return L

def spread(side, nslots):
    out = []; n = len(side); k = 0
    for i in range(nslots):
        e = (n*(i+1))//nslots
        out.append(side[k:e]); k = e
    return out

SEQ = []
for c in range(8): SEQ += [("X", c), ("K", c)]
SEQ += [("Q", c) for c in range(8)] + [("V", c) for c in range(8)] + [("O", c) for c in range(8)]
NSLOT = 10
NINIT = 6
XR = 128
WF, T16, ACCQ, ACCK, ACCV = 32, 64, 80, 96, 112

def b_issue_jobs(n):
    kind, c = SEQ[n]
    pos = n % NSLOT
    pre = []
    if kind == "X":
        so, v0, srd = f"s{16+c}", 2, "s[40:43]"
    elif kind in "QKV":
        so, v0, srd = f"s{8+c}", 4, "s[44:47]"
        if kind == "Q" and c == 0:
            pre = [("v_subrev_u32 v4, 1024, v4", None), ("v_subrev_u32 v5, 1024, v5", None)]
        if kind == "V" and c == 0:
            pre = [("v_add_u32 v4, 2048, v4", None), ("v_add_u32 v5, 2048, v5", None)]
    else:
        so, v0, srd = "s61", 6, "s[48:51]"
        pre = [(f"s_mov_b32 s61, {c*65536}", None)]
    return [pre + [(f"s_add_u32 m0, s60, {pos*8192}", None),
             (f"buffer_load_dwordx4 v{v0}, {srd}, {so} offen lds", f"slot{n}")],
            [(f"buffer_load_dwordx4 v{v0+1}, {srd}, {so} offen offset:1024 lds", f"slot{n}")]]

def emit_job(a, job):
    for t in job:
        if isinstance(t, str): a.e(t)
        else: a.e(t[0], vm=t[1])

def lds_base(n):
    pos = n % NSLOT
    return (0, pos*8192) if pos < 5 else (1, (pos-5)*8192)

def wfrag_reads(a, n, s, dst, tag=None):
    hi, off = lds_base(n)
    va = "v17" if hi else "v16"
    a.e(f"ds_read_b64_tr_b16 v[{dst}:{dst+1}], {va} offset:{off + s*2048}", lg=tag)
    a.e(f"ds_read_b64_tr_b16 v[{dst+2}:{dst+3}], {va} offset:{off + s*2048 + 512}", lg=tag)

def role_B(a, cfg):
    a.c("================= role B =================")
    if cfg.prioB: a.e(f"s_setprio {cfg.prioB}")
    a.e("""
    s_and_b32 s66, s3, 7            ; xcd
    s_lshr_b32 s67, s3, 3           ; jj
    s_lshr_b32 s56, s66, 1
    s_lshl_b32 s56, s56, 3
    s_and_b32 s68, s67, 7
    s_add_u32 s56, s56, s68         ; tb
    s_and_b32 s57, s66, 1
    s_lshl_b32 s57, s57, 2
    s_lshr_b32 s68, s67, 3
    s_add_u32 s57, s57, s68         ; hq
    s_and_b32 s58, s39, 1           ; tt
    s_lshr_b32 s59, s39, 1
    s_lshl_b32 s60, s39, 11
    s_mov_b32 s62, 0x3fb8aa3b
    s_mov_b32 s63, 0x3fb8aa3b
    s_mov_b32 s64, 0x358637bd
    s_mov_b32 s65, 0x358637bd
    """)
    a.e("""
    v_lshrrev_b32 v32, 3, v1        ; l>>3
    v_and_b32 v33, 7, v1            ; l&7
    v_lshrrev_b32 v34, 4, v1        ; l>>4
    s_lshl_b32 s68, s56, 6          ; tb*64
    s_lshl_b32 s69, s39, 4          ; 16w
    s_add_u32 s68, s68, s69
    v_add_u32 v35, s68, v32         ; row
    v_lshlrev_b32 v35, 10, v35
    v_xor_b32 v36, v33, v34
    v_lshl_add_u32 v2, v36, 4, v35
    v_add_u32 v37, 4, v34
    v_xor_b32 v36, v33, v37
    v_lshl_add_u32 v3, v36, 4, v35
    v_add_u32 v3, 7168, v3          ; +8 rows - 1024
    v_and_b32 v36, 1, v34
    v_lshlrev_b32 v36, 2, v36
    v_xor_b32 v36, v33, v36         ; q
    v_lshlrev_b32 v36, 4, v36       ; q*16
    v_add_u32 v37, s69, v32         ; 16w + (l>>3)
    v_mul_u32_u24 v38, 3072, v37
    s_lshl_b32 s68, s57, 7          ; hq*128
    v_add3_u32 v4, v38, v36, s68
    v_add_u32 v4, 1024, v4
    v_add_u32 v5, 23552, v4         ; +8*3072 - 1024
    v_lshlrev_b32 v38, 10, v37
    v_add3_u32 v6, v38, v36, s68
    v_add_u32 v7, 7168, v6
    """)
    a.e("""
    s_waitcnt lgkmcnt(0)
    s_mov_b32 s40, s26
    s_and_b32 s41, s27, 0xffff
    s_mov_b32 s42, 0x200000
    s_mov_b32 s43, 0x20000
    s_mov_b32 s44, s28
    s_and_b32 s45, s29, 0xffff
    s_mov_b32 s46, 0x180000
    s_mov_b32 s47, 0x20000
    s_mov_b32 s48, s30
    s_and_b32 s49, s31, 0xffff
    s_mov_b32 s50, 0x80000
    s_mov_b32 s51, 0x20000
    """)
    a.e("""
    v_mov_b32 v31, 0
    s_cmp_lg_u32 s3, 0
    s_cbranch_scc1 L_b_nononce
    s_cmp_lg_u32 s39, 0
    s_cbranch_scc1 L_b_nononce
    s_memrealtime s[68:69]
    s_waitcnt lgkmcnt(0)
    s_or_b32 s68, s68, 1
    v_mov_b32 v30, s68
    s_mov_b64 exec, 1
    global_store_dword v31, v30, s[34:35] sc1
    s_mov_b64 exec, -1
    """)
    a.vm.pop()
    a.label("L_b_nononce")
    if cfg.b_exit:
        a.e("s_branch L_end")
    for c in range(8):
        a.e(f"s_mov_b32 s{8+c}, {c*64*3072}")
        a.e(f"s_mov_b32 s{16+c}, {c*128}")
    stamp(a, cfg, 1)
    for n in range(cfg.ninit):
        for job in b_issue_jobs(n): emit_job(a, job)
    a.e("""
    v_and_b32 v32, 31, v1           ; i
    v_lshrrev_b32 v33, 5, v1        ; hh
    s_lshl_b32 s68, s58, 5
    v_add_u32 v34, s68, v32         ; 32tt + i
    v_lshlrev_b32 v34, 7, v34       ; *128
    v_lshrrev_b32 v35, 1, v32
    v_and_b32 v35, 7, v35           ; f
    """)
    for s in range(4):
        a.e(f"""
        v_add_u32 v36, {2*s}, v33
        v_xor_b32 v36, v36, v35
        v_lshl_add_u32 v{8+s}, v36, 4, v34
        v_add_u32 v{12+s}, 40960, v{8+s}
        """)
    a.e(f"""
    v_lshrrev_b32 v34, 2, v1
    v_and_b32 v34, 3, v34           ; rr
    v_and_b32 v35, 3, v1            ; cc
    v_lshrrev_b32 v36, 4, v1
    v_and_b32 v36, 1, v36           ; G&1
    v_lshlrev_b32 v36, 1, v36       ; 2(G&1)
    v_lshrrev_b32 v37, 1, v35       ; cc>>1
    v_add_u32 v36, v36, v37         ; 2(G&1) + (cc>>1)
    v_lshrrev_b32 v37, 1, v34
    v_lshlrev_b32 v37, 2, v37       ; 4(rr>>1)
    v_and_b32 v38, 1, v35
    v_lshlrev_b32 v38, 3, v38       ; 8(cc&1)
    s_lshl_b32 s68, s59, 2
    v_add_u32 v39, s68, v36
    v_xor_b32 v39, v39, v37
    v_lshl_add_u32 v39, v39, 4, v38
    v_lshl_add_u32 v40, v33, 3, v34
    v_lshl_add_u32 v16, v40, 7, v39
    v_add_u32 v17, 40960, v16
    v_xor_b32 v39, v36, v37
    v_lshl_add_u32 v39, v39, 4, v38
    v_lshl_add_u32 v40, v33, 2, v34
    v_lshl_add_u32 v18, v40, 7, v39
    s_lshl_b32 s68, s59, 15
    s_add_u32 s68, s68, 16384
    v_add_u32 v18, s68, v18
    v_xor_b32 v19, 64, v18
    s_lshl_b32 s68, s59, 1
    s_add_u32 s68, s68, s58
    s_xor_b32 s69, s68, 1
    s_lshl_b32 s66, s68, 10
    s_add_u32 s66, s66, 0
    v_lshl_add_u32 v22, v1, 4, s66
    s_lshl_b32 s66, s69, 10
    s_add_u32 s66, s66, 0
    v_lshl_add_u32 v23, v1, 4, s66
    s_lshl_b32 s66, s68, 8
    s_add_u32 s66, s66, 4096
    v_lshl_add_u32 v24, v1, 2, s66
    s_lshl_b32 s66, s69, 8
    s_add_u32 s66, s66, 4096
    v_lshl_add_u32 v25, v1, 2, s66
    s_lshl_b32 s68, s57, 1
    s_add_u32 s68, s68, s59
    s_lshl_b32 s68, s68, 5
    s_add_u32 s68, s68, s56
    s_mul_i32 s68, s68, 2176
    s_add_u32 s68, s68, {KVP}
    s_lshl_b32 s69, s58, 10
    s_add_u32 s69, s69, s68
    v_lshl_add_u32 v26, v1, 4, s69
    v_lshrrev_b32 v40, 4, v1
    v_and_b32 v40, 1, v40
    v_lshlrev_b32 v40, 3, v40       ; 8c
    v_and_b32 v41, 4, v1            ; 4*hh'
    v_add_u32 v40, v40, v41
    v_lshrrev_b32 v41, 2, v1
    v_and_b32 v41, 2, v41
    v_add_u32 v40, v40, v41
    v_lshrrev_b32 v41, 1, v1
    v_and_b32 v41, 1, v41
    v_add_u32 v40, v40, v41         ; zg
    s_add_u32 s68, s68, 2048
    v_lshl_add_u32 v27, v40, 3, s68
    s_lshl_b32 s68, s56, 1
    s_add_u32 s68, s68, s58
    s_lshl_b32 s68, s68, 5
    s_lshl_b32 s69, s57, 2
    s_add_u32 s68, s68, s69
    s_lshl_b32 s69, s59, 1
    s_add_u32 s68, s68, s69
    s_lshl_b32 s68, s68, 10
    s_add_u32 s68, s68, {PQ}
    v_lshl_add_u32 v28, v1, 4, s68
    v_and_b32 v40, 16, v1
    v_cmp_ne_u32 s[52:53], 0, v40
    s_sub_u32 s54, 0, s58
    s_mov_b32 s55, s54
    """)
    a.e(f"""
    s_cmp_lg_u32 s39, 3
    s_cbranch_scc1 L_b_nopt
    s_lshl_b32 s68, s56, 7
    s_add_u32 s68, s68, {PQF}
    v_mov_b32 v40, s68
    global_load_dword v21, v40, s[36:37] sc1
    """)
    a.vm.pop()
    a.label("L_b_nopt")
    for r in range(16):
        a.e(f"v_mov_b32 v{ACCQ+r}, s64")
    for r in range(16):
        a.e(f"v_mov_b32 v{ACCK+r}, s64")
    def frag_reads(g, k):
        L = []
        tag = f"f{g}_{k}"
        if g < 8:
            nx, nw = 2*g, 2*g+1
            hi, off = lds_base(nx)
            L.append((f"ds_read_b128 v[{XR+16*g+4*k}:{XR+16*g+4*k+3}], v{(12 if hi else 8)+k} offset:{off}", tag))
            d = WF + 16*(g % 2) + 4*k; n = nw; sstep = k
        else:
            n = 2*g + k//4; sstep = k % 4; d = WF + 4*k
        h2, o2 = lds_base(n)
        va = "v17" if h2 else "v16"
        L.append((f"ds_read_b64_tr_b16 v[{d}:{d+1}], {va} offset:{o2 + sstep*2048}", tag))
        L.append((f"ds_read_b64_tr_b16 v[{d+2}:{d+3}], {va} offset:{o2 + sstep*2048 + 512}", tag))
        return L
    def nsteps(g): return 4 if g < 8 else 8
    def emit_side(lst):
        for t in lst:
            if isinstance(t, str): a.e(t)
            elif t[0] == "WVM": a.wait_vm(t[1])
            else: a.e(t[0], vm=t[1])
    side = {}
    ke = phi_instrs(ACCK, T16, ACCK, zsum=29)
    ke += ["v_mov_b32 v30, v29", "v_permlane32_swap_b32 v29, v30", "v_add_f32 v29, v29, v30"]
    gaps = [(g, k) for g in range(8, 12) for k in range(8)][1:31]
    for gp, grp in zip(gaps, spread(ke, len(gaps))): side[gp] = grp
    qe = phi_instrs(ACCQ, T16, ACCQ)
    qe += [(f"global_store_dwordx4 v28, v[{ACCQ}:{ACCQ+3}], s[36:37] sc1", "pqst"),
           (f"global_store_dwordx4 v28, v[{ACCQ+4}:{ACCQ+7}], s[36:37] offset:1024 sc1", "pqst")]
    gaps = [(g, k) for g in range(12, 15) for k in range(8)][1:20]
    for gp, grp in zip(gaps, spread(qe, len(gaps))): side[gp] = grp
    rb = f"""
    s_mov_b32 s40, s36
    s_and_b32 s41, s37, 0xffff
    s_mov_b32 s42, {KVF + 65536}
    s_mov_b32 s43, 0x20000
    s_lshl_b32 s68, s56, 7
    s_add_u32 s68, s68, {PQF}
    v_and_b32 v2, 7, v1
    v_lshl_add_u32 v2, v2, 2, s68
    s_lshl_b32 s68, s56, 1
    s_add_u32 s68, s68, s58
    s_lshl_b32 s68, s68, 5
    s_lshl_b32 s69, s59, 4
    s_add_u32 s68, s68, s69
    s_lshl_b32 s68, s68, 10
    s_add_u32 s68, s68, {PQ}
    v_lshl_add_u32 v3, v1, 4, s68
    v_add_u32 v31, 8192, v3
    v_lshrrev_b32 v13, 7, v0
    v_mul_u32_u24 v13, {KVBLK}, v13
    v_and_b32 v20, 127, v0
    v_lshl_add_u32 v13, v20, 4, v13
    v_add_u32 v13, {KVF}, v13
    v_lshrrev_b32 v14, 3, v20
    v_mul_u32_u24 v14, {KVBLK}, v14
    v_and_b32 v21, 7, v0
    v_lshl_add_u32 v14, v21, 4, v14
    v_add_u32 v14, {KVF+2048}, v14
    v_lshrrev_b32 v15, 7, v0
    v_lshlrev_b32 v15, 1, v15
    v_bfe_u32 v21, v0, 4, 1
    v_add_u32 v15, v15, v21
    v_mul_u32_u24 v15, 544, v15
    v_bfe_u32 v21, v0, 5, 1
    v_mul_u32_u24 v21, 272, v21
    v_add_u32 v15, v15, v21
    v_and_b32 v21, 15, v0
    v_lshl_add_u32 v15, v21, 4, v15
    v_bfe_u32 v21, v0, 6, 1
    v_lshl_add_u32 v15, v21, 3, v15
    v_lshrrev_b32 v12, 3, v20
    v_lshlrev_b32 v12, 1, v12
    v_bfe_u32 v21, v0, 2, 1
    v_add_u32 v12, v12, v21
    v_mul_u32_u24 v12, 544, v12
    v_bfe_u32 v21, v0, 1, 1
    v_mul_u32_u24 v21, 272, v21
    v_add_u32 v12, v12, v21
    v_and_b32 v21, 1, v0
    v_lshl_add_u32 v12, v21, 3, v12
    v_add_u32 v12, 256, v12
    """.strip().split("\n")
    rb = [x.strip() for x in rb]
    rb += [f"s_mov_b32 s{8+i}, {1024*i}" for i in range(8)] + [f"s_mov_b32 s{16+k}, {2*KVBLK*k}" for k in range(8)]
    gaps = [(14, k) for k in range(5, 8)] + [(15, k) for k in range(8)]
    for gp, grp in zip(gaps, spread(rb, len(gaps))): side[gp] = side.get(gp, []) + grp

    def kv_publish():
        a.c("--- kv partial: V cvt, MFMA, select, pair exchange, publish")
        a.e("s_barrier")
        for m in range(8):
            a.e(f"v_cvt_pk_bf16_f32 v{ACCV+m}, v{ACCV+2*m}, v{ACCV+2*m+1}")
        a.e(f"v_mfma_f32_32x32x16_bf16 v[{T16}:{T16+15}], v[{ACCK}:{ACCK+3}], v[{ACCV}:{ACCV+3}], 0")
        a.e(f"v_mfma_f32_32x32x16_bf16 v[{T16}:{T16+15}], v[{ACCK+4}:{ACCK+7}], v[{ACCV+4}:{ACCV+7}], v[{T16}:{T16+15}]")
        a.e("ds_write_b32 v24, v29", lg="xw")
        SEL = ACCK + 8; SND = ACCV + 8; KEEP = ACCV + 12
        for j in range(8): a.e(f"v_cndmask_b32 v{SEL+j}, v{T16+j}, v{T16+8+j}, s[52:53]")
        for j in range(4): a.e(f"v_cndmask_b32 v{SND+j}, v{SEL+4+j}, v{SEL+j}, s[54:55]")
        a.e(f"ds_write_b128 v22, v[{SND}:{SND+3}]", lg="xw")
        for j in range(4): a.e(f"v_cndmask_b32 v{KEEP+j}, v{SEL+j}, v{SEL+4+j}, s[54:55]")
        a.wait_vm("pqst")
        a.wait_lg("xw")
        a.e("s_barrier")
        a.e(f"ds_read_b128 v[{SEL}:{SEL+3}], v23", lg="xr")
        a.e(f"ds_read_b32 v30, v25", lg="xr")
        a.e("""
        s_cmp_lg_u32 s39, 3
        s_cbranch_scc1 L_b_noflag
        s_lshl_b32 s68, s56, 7
        s_lshl_b32 s69, s57, 2
        s_add_u32 s68, s68, s69
        s_add_u32 s68, s68, %d
        v_mov_b32 v32, s68
        v_mov_b32 v33, s38
        s_mov_b64 exec, 1
        global_store_dword v32, v33, s[36:37] sc1
        s_mov_b64 exec, -1
        """ % PQF)
        a.vm.pop()
        a.label("L_b_noflag")
        a.wait_lg("xr")
        for j in range(4): a.e(f"v_add_f32 v{KEEP+j}, v{KEEP+j}, v{SEL+j}")
        a.e(f"""
        v_add_f32 v29, v29, v30
        v_cvt_pk_bf16_f32 v{SEL}, v{KEEP}, v{KEEP+1}
        v_mov_b32 v{SEL+1}, s38
        v_cvt_pk_bf16_f32 v{SEL+2}, v{KEEP+2}, v{KEEP+3}
        v_mov_b32 v{SEL+3}, s38
        v_mov_b32_dpp v30, v29 quad_perm:[1,0,3,2] row_mask:0xf bank_mask:0xf
        global_store_dwordx4 v26, v[{SEL}:{SEL+3}], s[36:37] sc1
        v_cvt_pk_bf16_f32 v{SEL+4}, v29, v30
        v_mov_b32 v{SEL+5}, s38
        s_andn2_b64 exec, 0x55555555, s[54:55]
        s_cbranch_execz L_b_noz
        global_store_dwordx2 v27, v[{SEL+4}:{SEL+5}], s[36:37] sc1
        """)
        a.vm.pop()
        a.label("L_b_noz")
        a.e("s_mov_b64 exec, -1")
        stamp(a, cfg, 6)

    a.wait_vm(["slot0", "slot1"])
    a.e("s_barrier")
    stamp(a, cfg, 2)
    for k in range(4):
        for t, tag in frag_reads(0, k): a.e(t, lg=tag)
    nxt = cfg.ninit
    pend = []
    while nxt < NSLOT:
        pend += b_issue_jobs(nxt); nxt += 1
    for g in range(16):
        a.c(f"--- group {g}")
        if g == 13: poll_nonce(a, "v21", "v31", first_tag="nonce")
        if g < 15:
            a.wait_vm([f"slot{2*g+2}", f"slot{2*g+3}"])
        a.e("s_barrier")
        if g in (1, 8, 12): stamp(a, cfg, {1: 3, 8: 4, 12: 5}[g])
        jobs = list(pend); pend = []
        if g >= 1:
            for _ in range(2): jobs += b_issue_jobs(nxt); nxt += 1
        if g == 9:
            jobs.append([("global_load_dword v21, v31, s[34:35] sc1", "nonce")])
        ns = nsteps(g)
        jsp = spread(jobs, ns)
        for k in range(ns):
            if k % 2 == 0: a.wait_lg([f"f{g}_{k}", f"f{g}_{k+1}"])
            if g < 8:
                d = WF + 16*(g % 2) + 4*k
                a.e(f"v_mfma_f32_32x32x16_bf16 v[{ACCK}:{ACCK+15}], v[{XR+16*g+4*k}:{XR+16*g+4*k+3}], v[{d}:{d+3}], v[{ACCK}:{ACCK+15}]")
            elif g < 12:
                kk = (g - 8)*8 + k
                a.e(f"v_mfma_f32_32x32x16_bf16 v[{ACCQ}:{ACCQ+15}], v[{WF+4*k}:{WF+4*k+3}], v[{XR+4*kk}:{XR+4*kk+3}], v[{ACCQ}:{ACCQ+15}]")
            else:
                kk = (g - 12)*8 + k
                cc = "0" if (g == 12 and k == 0) else f"v[{ACCV}:{ACCV+15}]"
                a.e(f"v_mfma_f32_32x32x16_bf16 v[{ACCV}:{ACCV+15}], v[{XR+4*kk}:{XR+4*kk+3}], v[{WF+4*k}:{WF+4*k+3}], {cc}")
            jl = [list(jb) for jb in jsp[k]]
            if jl:
                while jl[0] and not jl[0][0][0].startswith(("buffer_load", "global_load")):
                    a.e(jl[0].pop(0)[0])
            if g < 15:
                nx = [k, 4 + k] if g == 7 else [k]
                for k2 in nx:
                    for t, tag in frag_reads(g + 1, k2): a.e(t, lg=tag)
            for jb in jl: emit_job(a, jb)
            emit_side(side.get((g, k), []))
    assert nxt == 40, nxt
    kv_publish()
    stamp(a, cfg, 7)
    if not cfg.do_B2:
        stamp(a, cfg, 8)
        stamps_out(a, cfg, 9)
        a.e("s_branch L_end")
        return
    role_B2(a, cfg)

def tag_check(a, regs_tags, acc="v20"):
    tt = 0
    for idx in range(8):
        s0, s1, s2 = (idx >> 2) & 1, (idx >> 1) & 1, idx & 1
        if s0 | (s1 ^ s2): tt |= 1 << idx
    first = True
    for r in regs_tags:
        if first:
            a.e(f"v_xor_b32 {acc}, s38, v{r}"); first = False
        else:
            a.e(f"v_bitop3_b32 {acc}, {acc}, v{r}, s38 bitop3:{hex(tt)}")
    a.e(f"v_cmp_ne_u32 vcc, 0, {acc}")

def role_B2(a, cfg):
    WO = 128
    ACC = 96
    PQR = 32
    CN = [64, 80]
    KAF = [8, 12]
    OF = [4, 16]
    KA = 0
    PQL = 17408
    a.c("================= B2 =================")
    def reduce_line(base, dst_addr, tagsok_label):
        S = 40; T = 44
        for k in range(4):
            r = base + 4*k
            for pidx in range(2):
                src = r + 2*pidx
                if k == 0:
                    a.e(f"v_lshlrev_b32 v{S+2*pidx}, 16, v{src}")
                    a.e(f"v_and_b32 v{S+1+2*pidx}, 0xffff0000, v{src}")
                else:
                    a.e(f"v_lshlrev_b32 v{T+2*pidx}, 16, v{src}")
                    a.e(f"v_and_b32 v{T+1+2*pidx}, 0xffff0000, v{src}")
                    a.e(f"v_add_f32 v{S+2*pidx}, v{S+2*pidx}, v{T+2*pidx}")
                    a.e(f"v_add_f32 v{S+1+2*pidx}, v{S+1+2*pidx}, v{T+1+2*pidx}")
        for j in range(4): a.e(f"v_add_f32_dpp v{S+j}, v{S+j}, v{S+j} row_ror:8 row_mask:0xf bank_mask:0xf")
        for j in range(4): a.e(f"v_mov_b32 v{T+j}, v{S+j}")
        for j in range(4): a.e(f"v_permlane16_swap_b32 v{S+j}, v{T+j}")
        for j in range(4): a.e(f"v_add_f32 v{S+j}, v{S+j}, v{T+j}")
        for j in range(4): a.e(f"v_mov_b32 v{T+j}, v{S+j}")
        for j in range(4): a.e(f"v_permlane32_swap_b32 v{S+j}, v{T+j}")
        for j in range(4): a.e(f"v_add_f32 v{S+j}, v{S+j}, v{T+j}")
        a.e(f"""
        v_cvt_pk_bf16_f32 v48, v{S}, v{S+1}
        v_mov_b32 v49, s38
        v_cvt_pk_bf16_f32 v50, v{S+2}, v{S+3}
        v_mov_b32 v51, s38
        s_mov_b64 exec, 0xff
        global_store_dwordx4 {dst_addr}, v[48:51], s[36:37] sc1
        s_mov_b64 exec, -1
        """)
    a.e(f"""
    s_lshr_b32 s66, s3, 4
    s_and_b32 s67, s3, 15
    s_mul_i32 s69, s66, {32*KVBLK}
    s_add_u32 s69, s69, {KVP}
    s_lshl_b32 s52, s67, 7
    s_add_u32 s68, s69, s52
    v_and_b32 v22, 7, v1
    v_lshlrev_b32 v22, 4, v22
    v_lshrrev_b32 v23, 3, v1
    v_mul_u32_u24 v23, {KVBLK}, v23
    v_add_u32 v23, v22, v23
    v_add_u32 v24, s68, v23
    v_add_u32 v25, {8*KVBLK}, v24
    v_add_u32 v26, {16*KVBLK}, v24
    v_add_u32 v27, {24*KVBLK}, v24
    s_add_u32 s68, s69, 2048
    v_add_u32 v8, s68, v23
    v_add_u32 v9, {8*KVBLK}, v8
    v_add_u32 v10, {16*KVBLK}, v8
    v_add_u32 v11, {24*KVBLK}, v8
    s_mul_i32 s69, s66, {KVBLK}
    s_add_u32 s69, s69, {KVF}
    s_add_u32 s68, s69, s52
    v_add_u32 v23, s68, v22
    s_add_u32 s68, s69, 2048
    v_add_u32 v29, s68, v22
    """)
    a.wait_vm([f"slot{n}" for n in range(32, 40)])
    a.e("s_barrier")
    for i in range(16):
        for nt in range(2):
            d = WO + 8*i + 4*nt
            off = (i//4)*8192 + (i % 4)*2048
            a.e(f"ds_read_b64_tr_b16 v[{d}:{d+1}], v{18+nt} offset:{off}", lg="wo")
            a.e(f"ds_read_b64_tr_b16 v[{d+2}:{d+3}], v{18+nt} offset:{off+1024}", lg="wo")
    a.e("s_waitcnt lgkmcnt(0)")
    a.e("s_barrier")
    a.vm = []; a.lg = []
    stamp(a, cfg, 9)
    a.e("""
    s_cmp_lg_u32 s39, 0
    s_cbranch_scc1 L_b_red_wait
    s_mov_b32 s61, 0
    """)
    a.label("L_b_red_poll")
    a.e("""
    global_load_dwordx4 v[96:99], v24, s[36:37] sc1
    global_load_dwordx4 v[100:103], v25, s[36:37] sc1
    global_load_dwordx4 v[104:107], v26, s[36:37] sc1
    global_load_dwordx4 v[108:111], v27, s[36:37] sc1
    global_load_dwordx4 v[112:115], v8, s[36:37] sc1
    global_load_dwordx4 v[116:119], v9, s[36:37] sc1
    global_load_dwordx4 v[120:123], v10, s[36:37] sc1
    global_load_dwordx4 v[124:127], v11, s[36:37] sc1
    s_add_u32 s61, s61, 1
    s_waitcnt vmcnt(0)
    """)
    tag_check(a, [97+2*q for q in range(16)])
    a.e(f"""
    s_cmp_gt_u32 s61, {SPIN_LIMIT}
    s_cbranch_scc1 L_b_red_go
    s_cbranch_vccnz L_b_red_poll
    """)
    a.label("L_b_red_go")
    a.e("s_barrier")
    a.e("""
    s_cmp_lg_u32 s67, 0
    s_cbranch_scc1 L_b_red_a
    """)
    reduce_line(112, "v29", None)
    a.label("L_b_red_a")
    reduce_line(96, "v23", None)
    a.e("s_branch L_b_red_done")
    a.label("L_b_red_wait")
    a.e("s_barrier")
    a.label("L_b_red_done")
    a.vm = []
    stamp(a, cfg, 10)
    def pq_loads():
        for i in range(8):
            a.e(f"buffer_load_dwordx4 v[{PQR+4*i}:{PQR+4*i+3}], v3, s[40:43], s{8+i} offen sc1")
        for i in range(8):
            a.e(f"s_add_u32 m0, s66, {1024*i}")
            a.e("s_nop 0")
            a.e(f"buffer_load_dwordx4 v31, s[40:43], s{8+i} offen sc1 lds")
    a.e(f"""
    s_lshl_b32 s66, s39, 13
    s_add_u32 s66, s66, {PQL}
    s_mov_b32 s61, 0
    """)
    a.label("L_b_pqf_poll")
    a.e(f"""
    global_load_dword v21, v2, s[36:37] sc1
    s_add_u32 s61, s61, 1
    s_waitcnt vmcnt(0)
    v_cmp_ne_u32 vcc, s38, v21
    s_cmp_gt_u32 s61, {SPIN_LIMIT}
    s_cbranch_scc1 L_b_pqf_go
    s_cbranch_vccz L_b_pqf_go
    s_sleep 1
    s_branch L_b_pqf_poll
    """)
    a.label("L_b_pqf_go")
    stamp(a, cfg, 11)
    def ka_loads():
        for k in range(8):
            a.e(f"buffer_load_dwordx4 v[{64+4*k}:{67+4*k}], v13, s[40:43], s{16+k} offen sc1")
        a.e("buffer_load_dwordx4 v[96:99], v14, s[40:43], 0 offen sc1")
    pq_loads()
    a.e("s_mov_b32 s61, 0")
    a.label("L_b_kz_poll")
    a.e(f"""
    buffer_load_dwordx4 v[96:99], v14, s[40:43], 0 offen sc1
    s_add_u32 s61, s61, 1
    s_waitcnt vmcnt(0)
    v_xor_b32 v20, s38, v97
    v_cmp_ne_u32 vcc, 0, v20
    s_cmp_gt_u32 s61, {SPIN_LIMIT}
    s_cbranch_scc1 L_b_kz_go
    s_cbranch_vccz L_b_kz_go
    s_sleep 1
    s_branch L_b_kz_poll
    """)
    a.label("L_b_kz_go")
    a.e("s_mov_b32 s61, 0")
    a.label("L_b_kvf_poll")
    ka_loads()
    a.e("s_waitcnt vmcnt(0)")
    a.label("L_b_ka_chk")
    a.e("s_add_u32 s61, s61, 1")
    tag_check(a, [65+2*q for q in range(18)])
    a.e(f"""
    s_cmp_gt_u32 s61, {SPIN_LIMIT}
    s_cbranch_scc1 L_b_kvf_go
    s_cbranch_vccnz L_b_kvf_poll
    """)
    a.label("L_b_kvf_go")
    stamp(a, cfg, 12)
    stampval(a, cfg, 8, "s61")
    a.vm = []
    for k in range(8):
        a.e(f"v_mov_b32 v{65+4*k}, v{66+4*k}")
        a.e(f"ds_write_b64 v15, v[{64+4*k}:{65+4*k}] offset:{KA + 2176*k}")
    a.e("v_mov_b32 v97, v98")
    a.e(f"ds_write_b64 v12, v[96:97] offset:{KA}")
    a.e(f"""
    v_and_b32 v22, 31, v1
    v_min_u32 v22, 16, v22
    v_lshlrev_b32 v22, 4, v22
    v_lshrrev_b32 v23, 5, v1
    v_mul_u32_u24 v23, 272, v23
    s_mul_i32 s68, s59, {16*544}
    v_add3_u32 v22, v22, v23, s68
    v_lshl_add_u32 v23, v1, 4, s66
    s_waitcnt vmcnt(0) lgkmcnt(0)
    s_barrier
    """)
    a.vm = []; a.lg = []
    stamp(a, cfg, 13)
    def kaf_read(i):
        a.e(f"ds_read_b128 v[{KAF[i%2]}:{KAF[i%2]+3}], v22 offset:{KA + 544*i}", lg=f"ka{i}")
    def out_mfma(i):
        o = OF[i % 2]
        for nt in range(2):
            w = WO + 8*i + 4*nt
            cc = "0" if i == 0 else f"v[{ACC+16*nt}:{ACC+16*nt+15}]"
            a.e(f"v_mfma_f32_32x32x16_bf16 v[{ACC+16*nt}:{ACC+16*nt+15}], v[{w}:{w+3}], v[{o}:{o+3}], {cc}")
    def num_mfma(i):
        a.wait_lg(f"ka{i}")
        p = PQR + 4*(i % 8)
        if i >= 8: a.wait_lg(f"pl{i}")
        a.e(f"v_mfma_f32_32x32x16_bf16 v[{CN[i%2]}:{CN[i%2]+15}], v[{KAF[i%2]}:{KAF[i%2]+3}], v[{p}:{p+3}], 0")
        if 4 <= i < 12:
            h = i + 4
            ph = PQR + 4*(h % 8)
            a.e(f"ds_read_b128 v[{ph}:{ph+3}], v23 offset:{1024*(h-8)}", lg=f"pl{h}")
    def out1(i, nt):
        o = OF[i % 2]
        w = WO + 8*i + 4*nt
        cc = "0" if i == 0 else f"v[{ACC+16*nt}:{ACC+16*nt+15}]"
        a.e(f"v_mfma_f32_32x32x16_bf16 v[{ACC+16*nt}:{ACC+16*nt+15}], v[{w}:{w+3}], v[{o}:{o+3}], {cc}")
    kaf_read(0); kaf_read(1)
    num_mfma(0)
    for i in range(16):
        if i + 1 < 16:
            num_mfma(i + 1)
        c = CN[i % 2]
        a.e(f"v_add_f32 v20, s64, v{c+8}")
        a.e(f"v_rcp_f32 v20, v20")
        if i + 2 < 16:
            kaf_read(i + 2)
        for jj in range(2): a.e(f"v_mul_f32 v{c+jj}, v{c+jj}, v20")
        if i >= 1: out1(i - 1, 0)
        for jj in range(2, 7): a.e(f"v_mul_f32 v{c+jj}, v{c+jj}, v20")
        if i >= 1: out1(i - 1, 1)
        a.e(f"v_mul_f32 v{c+7}, v{c+7}, v20")
        o = OF[i % 2]
        for m in range(4):
            a.e(f"v_cvt_pk_bf16_f32 v{o+m}, v{c+2*m}, v{c+2*m+1}")
    out1(15, 0); out1(15, 1)
    stamp(a, cfg, 14)
    a.e("""
    s_cmp_lg_u32 s3, 0
    s_cbranch_scc1 L_b_norst
    s_cmp_lg_u32 s39, 0
    s_cbranch_scc1 L_b_norst
    v_mov_b32 v20, 0
    s_mov_b64 exec, 1
    global_store_dword v20, v20, s[34:35] sc1
    s_mov_b64 exec, -1
    """)
    a.label("L_b_norst")
    a.vm = []
    PB = 0
    a.e(f"""
    v_and_b32 v22, 31, v1
    s_lshl_b32 s68, s58, 5
    v_add_u32 v22, s68, v22            ; token
    v_mul_u32_u24 v22, 272, v22
    v_lshrrev_b32 v23, 5, v1
    v_lshl_add_u32 v22, v23, 4, v22    ; + hh*16
    s_mul_i32 s68, s59, {64*272}
    s_add_u32 s68, s68, {PB}
    v_add_u32 v22, s68, v22
    v_lshrrev_b32 v23, 3, v0
    v_mul_u32_u24 v24, 272, v23
    v_and_b32 v25, 7, v0
    v_lshl_add_u32 v24, v25, 5, v24
    v_add_u32 v24, {PB}, v24
    s_lshl_b32 s68, s56, 6
    v_add_u32 v23, s68, v23
    v_lshlrev_b32 v23, 11, v23
    s_lshl_b32 s68, s57, 7
    s_add_u32 s68, s68, 1024
    v_lshl_add_u32 v23, v25, 4, v23
    v_add_u32 v23, s68, v23
    s_waitcnt lgkmcnt(0)
    s_barrier
    """)
    for nt in range(2):
        for q in range(4):
            r = ACC + 16*nt + 4*q
            a.e(f"ds_write_b128 v22, v[{r}:{r+3}] offset:{nt*128 + q*32}")
    a.e("s_waitcnt lgkmcnt(0)")
    a.e("s_barrier")
    for r in range(2):
        o = r*32*272
        a.e(f"ds_read_b128 v[{32+16*r}:{35+16*r}], v24 offset:{o}")
        a.e(f"ds_read_b128 v[{36+16*r}:{39+16*r}], v24 offset:{o+16}")
        a.e(f"ds_read_b128 v[{40+16*r}:{43+16*r}], v24 offset:{o+64*272}")
        a.e(f"ds_read_b128 v[{44+16*r}:{47+16*r}], v24 offset:{o+64*272+16}")
    for r in range(2):
        a.e(f"s_waitcnt lgkmcnt({4 if r == 0 else 0})")
        b = 32 + 16*r
        for jj in range(8):
            a.e(f"v_add_f32 v{b+jj}, v{b+jj}, v{b+8+jj}")
        for m in range(4):
            a.e(f"v_cvt_pk_bf16_f32 v{64+4*r+m}, v{b+2*m}, v{b+2*m+1}")
        if r == 1: a.e(f"v_add_u32 v23, {32*2048}, v23")
        a.e(f"global_store_dwordx4 v23, v[{64+4*r}:{67+4*r}], s[32:33]")
    stamps_out(a, cfg, 15)

TV = 240
def a_touch_setup(a, cfg):
    a.e(f"""
    s_lshr_b32 s62, s40, 1          ; tg
    s_and_b32 s63, s40, 1           ; hg
    s_lshl_b32 s64, s62, 9
    s_lshl_b32 s65, s41, 4          ; 16*jj
    s_add_u32 s64, s64, s65
    v_and_b32 v246, 15, v1
    v_lshrrev_b32 v247, 4, v1       ; 0..3
    v_add_u32 v240, s64, v246
    v_lshlrev_b32 v240, 10, v240
    v_lshl_add_u32 v240, v247, 7, v240
    v_add_u32 v241, 512, v240
    v_lshlrev_b32 v243, 6, v247
    s_lshl_b32 s66, s41, 1
    v_add_u32 v243, s66, v243
    v_bfe_u32 v248, v1, 3, 1
    v_add_u32 v243, v243, v248
    v_mul_u32_u24 v243, 3072, v243
    v_bfe_u32 v248, v1, 2, 1
    v_lshlrev_b32 v248, 10, v248
    v_add_u32 v243, v243, v248
    v_and_b32 v248, 3, v1
    v_lshlrev_b32 v248, 7, v248
    s_lshl_b32 s66, s63, 9
    s_add_u32 s67, s66, 1024
    v_add3_u32 v243, v243, v248, s67
    v_add_u32 v244, {256*3072}, v243
    v_lshrrev_b32 v249, 2, v1
    v_add_u32 v249, s65, v249
    v_mul_u32_u24 v242, 3072, v249
    v_add3_u32 v242, v242, v248, s66
    v_lshlrev_b32 v245, 10, v249
    v_add3_u32 v245, v245, v248, s66
    """)

def a_touch(a, cfg, plan):
    fl = cfg.touch_flags
    info = {"x0": (240, "s[26:27]"), "x1": (241, "s[26:27]"), "q": (242, "s[28:29]"),
            "k0": (243, "s[28:29]"), "k1": (244, "s[28:29]"), "o": (245, "s[30:31]")}
    for w, names in plan.items():
        L = a.newlabel("tch")
        a.e(f"s_cmp_eq_u32 s39, {w}")
        a.e(f"s_cbranch_scc0 {L}")
        for i, nm in enumerate(names):
            v, base = info[nm]
            a.e(f"global_load_dword v{250+i}, v{v}, {base} {fl}")
            a.vm.pop()
        a.label(L)

def role_A(a, cfg):
    a.label("L_roleA")
    a.e("""
    s_and_b32 s40, s3, 7
    s_lshr_b32 s41, s3, 3           ; j
    s_waitcnt lgkmcnt(0)
    """)
    if not cfg.do_A:
        if cfg.touch:
            a_touch_setup(a, cfg)
            a_touch(a, cfg, {0: ["x0"], 1: ["k0"], 2: ["x1"], 3: ["k1"]})
            a.e("s_waitcnt vmcnt(0)")
            a_touch(a, cfg, {1: ["q"], 3: ["o"]})
            a.e("s_waitcnt vmcnt(0)")
        a.e("s_branch L_end")
        return
    import role_a
    role_a.role_A(a, cfg)

def build(cfg):
    a = Asm()
    prologue(a, cfg)
    if cfg.do_B:
        role_B(a, cfg)
    a.e("s_branch L_end")
    a.vm = []
    role_A(a, cfg)
    a.label("L_end")
    a.e("s_endpgm")
    body = a.render()
    return body, a

HEADER = open("concat_heads__ssm_conv_s4__linear_attn_block__prompt.s.ref").read().split("; Override launch")[0]

def generate(path, cfg):
    body, a = build(cfg)
    txt = wrap(body, HEADER, 512, 256, 81920)
    open(path, "w").write(txt)
    return a

if __name__ == "__main__":
    sys.modules["kern"] = sys.modules["__main__"]
    cfg = Cfg()
    cfg.stamps = True
    if len(sys.argv) > 2:
        for kv in sys.argv[2:]:
            k, v = kv.split("=")
            setattr(cfg, k, int(v) if v.isdigit() else v)
    a = generate(sys.argv[1] if len(sys.argv) > 1 else "k_b1.s", cfg)
    print("nops inserted:", a.nnops)
```

```python
from asmlib import Asm
import kern as K

UT, YT = K.UT, K.YT
UTF, YTF = K.UTF, K.YTF
TILE = 3088
SPIN = K.SPIN_LIMIT
ROWB = 528
TB = [12288, 45056]
KC = [0, 1536]
NONCE_LDS = 3072
KD = [3088, 7200]
CP = [12288, 12288 + 16640]
UR = [45568, 45568 + 7600]
YP = 0
ROWS = list(range(8)) + [128+k for k in range(8)] + [256+2*k for k in range(4)] + [384+2*k for k in range(4)] + \
       [512, 516, 640, 644, 768, 772, 896, 900] + [1024+128*k for k in range(8)] + [2048]
assert len(ROWS) == 41

def fhex(x):
    import struct
    return hex(struct.unpack("<I", struct.pack("<f", x))[0])

USE_PK = False
def cmul(a, d, x, y, t):
    if USE_PK:
        a.e(f"v_pk_mul_f32 v[{t}:{t+1}], v[{x}:{x+1}], v[{y}:{y+1}] op_sel_hi:[1,0]")
        a.e(f"v_pk_fma_f32 v[{d}:{d+1}], v[{x}:{x+1}], v[{y}:{y+1}], v[{t}:{t+1}] op_sel:[1,1,0] op_sel_hi:[0,1,1] neg_lo:[1,0,0]")
    else:
        assert d not in (x, y)
        a.e(f"v_mul_f32 v{t}, v{x}, v{y}")
        a.e(f"v_mul_f32 v{t+1}, v{x+1}, v{y}")
        a.e(f"v_fma_f32 v{d}, -v{x+1}, v{y+1}, v{t}")
        a.e(f"v_fma_f32 v{d+1}, v{x}, v{y+1}, v{t+1}")

def poll_tags_loop(a, name, loads, tagregs):
    a.e("s_mov_b32 s61, 0")
    a.label(f"L_{name}_poll")
    for l in loads: a.e(l)
    a.e("s_add_u32 s61, s61, 1")
    a.e("s_waitcnt vmcnt(0)")
    K.tag_check(a, tagregs, acc="v9")
    a.e(f"""
    s_cmp_gt_u32 s61, {SPIN}
    s_cbranch_scc1 L_{name}_go
    s_cbranch_vccz L_{name}_go
    s_sleep 1
    s_branch L_{name}_poll
    """)
    a.label(f"L_{name}_go")
    a.vm = []


(A_TW, A_TR, A_UT0, A_UT1, A_TB, A_KM, A_C0, A_C1A, A_C1B, A_C2, A_DW, A_ER0, A_ER1, A_ZU, A_ZC, A_ZG,
 A_CR, A_CW, A_UG, A_UL, A_FU, A_FY, A_FUS, A_FYS, A_VA, A_VB, A_PW, A_OR, A_YG, A_YL, A_OUT) = (
 160, 161, 162, 163, 164, 168, 172, 173, 174, 175, 176, 177, 178, 179, 180, 181,
 182, 183, 184, 185, 186, 187, 188, 189, 190, 191, 192, 193, 194, 195, 199)

def role_A(a, cfg):
    global USE_PK
    USE_PK = cfg.pk
    st = lambda i: K.stamp(a, cfg, i)
    a.c("================= role A =================")
    if cfg.prioA: a.e(f"s_setprio {cfg.prioA}")
    a.e("""
    s_lshr_b32 s47, s39, 1
    s_and_b32 s48, s39, 1           ; w2
    s_lshl_b32 s49, s40, 6          ; 64 g
    s_lshl_b32 s50, s41, 1
    s_add_u32 s50, s50, s49         ; d0 = 64g + 2j
    s_add_u32 s51, s50, s47
    s_lshl_b32 s51, s51, 8
    v_and_b32 v2, 127, v0           ; n
    v_lshl_add_u32 v5, v2, 1, s51
    v_lshrrev_b32 v3, 4, v0         ; r''
    v_and_b32 v4, 15, v0            ; c8
    s_lshl_b32 s52, s41, 6
    v_lshl_add_u32 v6, v3, 2, s52   ; t0 = 64j + 4r''
    v_lshlrev_b32 v6, 10, v6
    s_lshl_b32 s53, s49, 1
    v_lshl_add_u32 v7, v4, 3, s53
    v_add_u32 v6, v6, v7            ; u offset
    s_lshl_b32 s45, s40, 2
    s_add_u32 s45, s45, 4
    v_mov_b32 v8, s45
    s_waitcnt lgkmcnt(0)
    """)
    st(1)
    a.e("""
    v_mov_b32 v202, v6
    v_mov_b32 v203, v7
    global_load_ushort v10, v5, s[10:11]
    global_load_ushort v11, v5, s[12:13]
    global_load_ushort v12, v5, s[14:15]
    global_load_ushort v13, v5, s[16:17]
    global_load_ushort v14, v5, s[18:19]
    global_load_ushort v15, v5, s[20:21]
    s_lshl_b32 s54, s50, 1
    s_add_u32 s54, s22, s54
    s_addc_u32 s55, s23, 0
    s_load_dword s56, s[54:55], 0
    s_cmp_lg_u32 s41, 0
    s_cbranch_scc1 L_a_nopub
    s_cmp_lg_u32 s39, 0
    s_cbranch_scc1 L_a_nopub
    s_memrealtime s[58:59]
    s_waitcnt lgkmcnt(0)
    s_or_b32 s58, s58, 8
    v_mov_b32 v9, s58
    s_mov_b64 exec, 1
    global_store_dword v8, v9, s[34:35] sc1
    s_mov_b64 exec, -1
    """)
    a.label("L_a_nopub")
    a.vm = []
    a.e(f"""
    v_and_b32 v26, 15, v1
    v_lshrrev_b32 v27, 4, v1
    v_bfe_u32 v28, v1, 2, 2
    v_and_b32 v29, 3, v1
    v_and_b32 v30, 31, v1
    v_lshrrev_b32 v31, 5, v1
    v_lshlrev_b32 v32, 2, v4
    v_mul_u32_u24 v32, 144, v32
    v_lshlrev_b32 v33, 3, v3
    v_sub_u32 v33, 120, v33
    v_add_u32 v32, v32, v33
    v_add_u32 v{A_TW}, {TILE}, v32
    v_lshrrev_b32 v32, 3, v1
    s_lshl_b32 s57, s39, 5
    v_add_u32 v32, s57, v32
    v_mul_u32_u24 v33, 144, v32
    v_and_b32 v34, 7, v1
    v_lshl_add_u32 v33, v34, 4, v33
    v_add_u32 v{A_TR}, {TILE}, v33
    v_add_u32 v32, s49, v32
    v_lshlrev_b32 v32, 12, v32
    v_lshl_add_u32 v32, v34, 4, v32
    s_sub_u32 s57, 31, s41
    s_lshl_b32 s57, s57, 7
    s_add_u32 s57, s57, {UT}
    v_add_u32 v{A_UT0}, s57, v32
    v_add_u32 v{A_UT1}, 32768, v{A_UT0}
    v_add_u32 v200, 65536, v{A_UT0}
    v_add_u32 v201, 98304, v{A_UT0}
    v_lshl_add_u32 v32, v27, 3, v28
    s_lshl_b32 s59, s47, 15
    s_add_u32 s59, s59, {TB[0]}
    v_and_b32 v33, 1, v2
    v_bfe_u32 v34, v2, 2, 1
    v_lshl_add_u32 v33, v34, 1, v33
    v_lshl_add_u32 v34, v2, 8, s59
    """)
    for cp in range(4):
        a.e(f"v_xor_b32 v35, {cp}, v33")
        a.e(f"v_lshl_add_u32 v{A_TB+cp}, v35, 5, v34")
    a.e(f"""
    v_lshlrev_b32 v34, 7, v32
    v_lshl_add_u32 v34, v29, 3, v34
    v_add_u32 v34, s59, v34
    v_lshrrev_b32 v33, 1, v28
    v_and_b32 v35, 1, v27
    v_lshl_add_u32 v33, v35, 1, v33
    """)
    for t in range(4):
        a.e(f"v_xor_b32 v35, {t}, v33")
        a.e(f"v_lshl_add_u32 v{A_KM+t}, v35, 5, v34")
    a.e(f"""
    s_mul_i32 s59, s47, {KC[1]-KC[0]}
    s_add_u32 s59, s59, {KC[0]}
    v_lshrrev_b32 v33, 1, v27
    v_lshlrev_b32 v33, 7, v33
    v_lshl_add_u32 v33, v26, 3, v33
    v_and_b32 v34, 1, v27
    v_lshl_add_u32 v33, v34, 2, v33
    v_lshl_add_u32 v{A_C0}, v33, 1, s59          ; tile 0
    v_lshlrev_b32 v33, 6, v27
    v_cmp_gt_u32 vcc, 2, v27
    v_lshlrev_b32 v34, 2, v26
    v_lshlrev_b32 v35, 1, v26
    v_cndmask_b32 v34, v35, v34, vcc
    v_add_u32 v33, v33, v34
    v_add_u32 v33, 256, v33
    v_mov_b32 v34, 32
    v_mov_b32 v35, 2
    v_cndmask_b32 v34, v34, v35, vcc
    v_add_u32 v34, v33, v34
    v_lshl_add_u32 v{A_C1A}, v33, 1, s59
    v_lshl_add_u32 v{A_C1B}, v34, 1, s59
    v_lshl_add_u32 v33, v27, 6, v26
    v_add_u32 v33, 512, v33
    v_lshl_add_u32 v{A_C2}, v33, 1, s59          ; tile 2
    v_lshlrev_b32 v33, 4, v0
    v_add_u32 v{A_DW}, 16, v33
    v_mov_b32 v{A_ER0}, v33
    v_lshlrev_b32 v34, 3, v0
    v_add_u32 v{A_ER1}, 256, v34
    s_cmp_eq_u32 s39, 1
    s_cbranch_scc0 L_a_ad1
    v_lshlrev_b32 v34, 2, v0
    v_add_u32 v{A_ER0}, 512, v34
    """)
    a.label("L_a_ad1")
    a.e(f"""
    s_cmp_ge_u32 s39, 2
    s_cbranch_scc0 L_a_ad2
    v_add_u32 v34, 384, v0
    v_lshlrev_b32 v{A_ER0}, 1, v34
    """)
    a.label("L_a_ad2")
    a.e(f"""
    v_mov_b32 v{A_ZU}, v33
    v_lshrrev_b32 v34, 2, v0
    v_mul_u32_u24 v34, 4160, v34
    v_and_b32 v35, 3, v0
    v_lshl_add_u32 v{A_ZC}, v35, 4, v34
    v_mul_u32_u24 v34, {KD[1]-KD[0]}, v0
    v_add_u32 v{A_ZG}, {KD[0]}, v34
    ; copies
    v_mov_b32 v{A_CR}, v33
    v_add_u32 v{A_CW}, 64, v33
    v_lshrrev_b32 v34, 7, v0                     ; cch
    v_add_u32 v35, s50, v34
    v_lshlrev_b32 v35, 12, v35
    v_lshl_add_u32 v35, v2, 4, v35
    v_add_u32 v{A_UG}, {UT}, v35
    v_lshrrev_b32 v35, 2, v2
    v_mul_u32_u24 v35, 80, v35
    v_and_b32 v36, 3, v2
    v_lshl_add_u32 v35, v36, 4, v35
    v_mul_u32_u24 v34, {UR[1]-UR[0]}, v34
    v_add_u32 v{A_UL}, v35, v34
    v_lshrrev_b32 v34, 3, v1
    v_lshlrev_b32 v34, 7, v34
    v_and_b32 v35, 7, v1
    v_lshl_add_u32 v34, v35, 2, v34
    s_lshl_b32 s58, s40, 10
    s_add_u32 s58, s58, {UTF}
    v_add_u32 v{A_FU}, s58, v34
    v_lshrrev_b32 v34, 3, v30
    v_lshlrev_b32 v34, 7, v34
    v_lshl_add_u32 v34, v35, 2, v34
    s_lshl_b32 s58, s40, 9
    s_add_u32 s58, s58, {YTF}
    v_add_u32 v{A_FY}, s58, v34
    s_lshl_b32 s57, s41, 1
    s_add_u32 s57, s57, s48
    s_lshr_b32 s59, s57, 3
    s_lshl_b32 s59, s59, 7
    s_and_b32 s57, s57, 7
    s_lshl_b32 s57, s57, 2
    s_add_u32 s57, s57, s59
    s_lshl_b32 s59, s40, 10
    s_add_u32 s57, s57, s59
    s_add_u32 s57, s57, {UTF}
    v_mov_b32 v{A_FUS}, s57
    s_lshr_b32 s59, s41, 3
    s_lshl_b32 s59, s59, 7
    s_and_b32 s57, s41, 7
    s_lshl_b32 s57, s57, 2
    s_add_u32 s57, s57, s59
    s_add_u32 s57, s57, s58
    v_mov_b32 v{A_FYS}, s57
    v_sub_u32 v34, 3, v30
    v_and_b32 v34, 3, v34
    v_mul_u32_u24 v35, 4160, v34
    v_add_u32 v36, v30, v34
    v_add_u32 v36, 9, v36
    v_lshlrev_b32 v37, 3, v31
    v_sub_u32 v36, v36, v37
    v_lshl_add_u32 v35, v36, 1, v35
    s_mul_i32 s57, s47, {CP[1]-CP[0]}
    s_lshl_b32 s58, s48, 10
    s_add_u32 s57, s57, s58
    s_add_u32 s57, s57, {CP[0]}
    v_add_u32 v{A_VA}, s57, v35
    v_sub_u32 v35, 31, v30
    v_mul_u32_u24 v35, 80, v35
    v_lshlrev_b32 v36, 4, v31
    v_sub_u32 v35, v35, v36
    v_add_u32 v35, 16, v35
    s_mul_i32 s57, s47, {UR[1]-UR[0]}
    s_mul_i32 s58, s48, {16*80}
    s_add_u32 s57, s57, s58
    s_add_u32 s57, s57, {UR[0]}
    v_add_u32 v{A_VB}, s57, v35
    v_mul_u32_u24 v35, 144, v30
    v_lshl_add_u32 v35, v31, 4, v35
    s_mul_i32 s57, s39, {64*144}
    v_add_u32 v{A_PW}, s57, v35
    v_lshrrev_b32 v35, 2, v0
    v_mul_u32_u24 v35, 144, v35
    v_and_b32 v36, 3, v0
    v_lshl_add_u32 v{A_OR}, v36, 5, v35
    s_lshl_b32 s57, s50, 12
    s_add_u32 s57, s57, {YT}
    v_lshl_add_u32 v{A_YG}, v0, 4, s57
    v_lshlrev_b32 v35, 2, v4
    v_add_u32 v35, s49, v35
    v_lshlrev_b32 v35, 12, v35
    v_lshl_add_u32 v35, v3, 3, v35
    s_lshl_b32 s59, s41, 7
    s_add_u32 s59, s59, {YT}
    v_add_u32 v{A_YL}, s59, v35
    v_add_u32 v{A_YL+1}, 4096, v{A_YL}
    v_add_u32 v{A_YL+2}, 8192, v{A_YL}
    v_add_u32 v{A_YL+3}, 12288, v{A_YL}
    v_lshlrev_b32 v35, 1, v6
    v_sub_u32 v{A_OUT}, v35, v7
    """)
    if cfg.touch:
        K.a_touch_setup(a, cfg)
    a.e("s_waitcnt vmcnt(0) lgkmcnt(0)")
    st(2)
    a.e("""
    global_load_dwordx2 v[16:17], v202, s[8:9]
    global_load_dwordx2 v[18:19], v202, s[8:9] offset:1024
    global_load_dwordx2 v[20:21], v202, s[8:9] offset:2048
    global_load_dwordx2 v[22:23], v202, s[8:9] offset:3072
    global_load_dwordx2 v[24:25], v203, s[24:25]
    """)
    nt2 = 0; nt3 = 0
    if cfg.uttouch:
        a.e(f"""
        s_cmp_lg_u32 s39, 2
        s_cbranch_scc1 L_a_nout0
        v_add_u32 v26, s49, v1
        v_lshlrev_b32 v26, 12, v26
        s_sub_u32 s57, 31, s41
        s_lshl_b32 s57, s57, 7
        s_add_u32 s57, s57, {UT}
        v_add_u32 v26, s57, v26
        global_load_dword v255, v26, s[36:37]
        """)
        a.label("L_a_nout0")
    a.e(f"""
    s_cmp_eq_u32 s39, 3
    s_cbranch_scc0 L_a_nopt
    global_load_dword v253, v{A_FU}, s[36:37] sc1
    global_load_dword v254, v{A_FY}, s[36:37] sc1
    """)
    a.label("L_a_nopt")
    nt3 += 2
    if cfg.touch:
        K.a_touch(a, cfg, {2: ["x1"], 3: ["k"]})
        nt2 += 1; nt3 += 1
    a.vm = []
    def a1_write():
        a.e(f"""
        s_cmp_eq_u32 s39, 2
        s_cbranch_scc1 L_a_uw2
        s_cmp_eq_u32 s39, 3
        s_cbranch_scc1 L_a_uw3
        s_waitcnt vmcnt(0)
        s_branch L_a_uwd
        """)
        a.label("L_a_uw2")
        a.e(f"s_waitcnt vmcnt({nt2})")
        a.e("s_branch L_a_uwd")
        a.label("L_a_uw3")
        a.e(f"s_waitcnt vmcnt({nt3})")
        a.label("L_a_uwd")
        a.e("""
        s_mov_b32 s57, 0x05040100
        s_mov_b32 s58, 0x07060302
        """)
        for e in range(4):
            sel = "s57" if e % 2 == 0 else "s58"
            h = e // 2
            a.e(f"v_perm_b32 v{32+2*e}, v{20+h}, v{22+h}, {sel}")
            a.e(f"v_perm_b32 v{33+2*e}, v{16+h}, v{18+h}, {sel}")
            a.e(f"ds_write_b64 v{A_TW}, v[{32+2*e}:{33+2*e}] offset:{e*144}")
    def a1_store():
        a.e("""
        s_cmp_ge_u32 s39, 2
        s_cbranch_scc1 L_a_nout
        """)
        for i in range(4):
            a.e(f"ds_read_b128 v[{224+4*i}:{227+4*i}], v{A_TR} offset:{i*8*144}")
        UTA = [A_UT0, A_UT1, 200, 201]
        for i in range(4):
            a.e(f"s_waitcnt lgkmcnt({3-i})")
            a.e(f"global_store_dwordx4 v{UTA[i]}, v[{224+4*i}:{227+4*i}], s[36:37]")
        a.e("global_load_dword v9, v8, s[34:35] sc1")
        a.label("L_a_nout")
        a.vm = []
    def ut_flag():
        a.e(f"""
        s_cmp_ge_u32 s39, 2
        s_cbranch_scc1 L_a_nofl
        s_mov_b32 s61, 0
        """)
        if cfg.dbgN: st(4)
        a.e(f"""
        s_waitcnt vmcnt(0)
        """)
        if cfg.dbgN: st(7)
        a.e(f"""
        v_readfirstlane_b32 s38, v9
        s_cmp_lg_u32 s38, 0
        s_cbranch_scc1 L_a_nok
        """)
        a.label("L_a_npoll")
        a.e(f"""
        global_load_dword v9, v8, s[34:35] sc1
        s_waitcnt vmcnt(0)
        v_readfirstlane_b32 s38, v9
        s_add_u32 s61, s61, 1
        s_cmp_gt_u32 s61, {SPIN}
        s_cbranch_scc1 L_a_nok
        s_cmp_eq_u32 s38, 0
        s_cbranch_scc1 L_a_npoll
        """)
        a.label("L_a_nok")
        if cfg.dbgN:
            st(5); K.stampval(a, cfg, 6, "s61")
        a.e(f"""
        s_getreg_b32 s57, hwreg(HW_REG_XCC_ID)
        s_and_b32 s57, s57, 7
        s_and_b32 s58, s38, 0xfffffff8
        s_or_b32 s57, s57, s58
        v_mov_b32 v9, s57
        s_mov_b64 exec, 1
        global_store_dword v{A_FUS}, v9, s[36:37]
        s_mov_b64 exec, -1
        """)
        a.label("L_a_nofl")
        a.vm = []

    LOG2E = fhex(1.4426950408889634); INV2PI = fhex(0.15915494309189535)
    a.e(f"""
    s_lshr_b32 s59, s56, 16
    s_and_b32 s60, s56, 0xffff
    s_cmp_eq_u32 s47, 0
    s_cselect_b32 s59, s60, s59
    s_lshl_b32 s59, s59, 16
    v_mov_b32 v28, s59
    v_mul_f32 v29, {LOG2E}, v28
    v_mov_b32 v30, {LOG2E}
    v_fma_f32 v30, v28, v30, -v29
    v_fmac_f32 v30, 0x32a57060, v28
    v_exp_f32 v29, v29
    v_mul_f32 v30, {fhex(0.6931471805599453)}, v30
    v_fma_f32 v29, v29, v30, v29
    v_cvt_pk_bf16_f32 v29, v29, v29
    v_lshlrev_b32 v29, 16, v29
    """)
    for i in range(6): a.e(f"v_lshlrev_b32 v{10+i}, 16, v{10+i}")
    a.e(f"""
    v_mul_f32 v10, v29, v10          ; a_re
    v_mul_f32 v11, v29, v11          ; a_im
    v_mul_f32 v12, v29, v12          ; dB_re
    v_mul_f32 v13, v29, v13          ; dB_im
    v_mul_f32 v10, {LOG2E}, v10      ; ar2
    v_mul_f32 v11, {INV2PI}, v11     ; ai2
    """)
    P = {}
    nxtp = [50]
    def pair(name):
        P[name] = nxtp[0]; nxtp[0] += 2
        return P[name]
    TMP = [28, 30]
    ti = [0]
    def mul(dn, xn, yn):
        d = P.get(dn) or pair(dn)
        t = TMP[ti[0] % 2]; ti[0] += 1
        cmul(a, d, P[xn], P[yn], t)
    pair("X0"); cmul(a, P["X0"], 14, 12, 28)
    for x in (1, 8, 128, 256, 512, 1024):
        d = pair(f"E{x}")
        if x == 1:
            a.e(f"v_exp_f32 v6, v10")
            a.e(f"v_fract_f32 v7, v11")
        else:
            a.e(f"v_mul_f32 v6, {fhex(float(x))}, v10")
            a.e(f"v_mul_f32 v7, {fhex(float(x))}, v11")
            a.e(f"v_exp_f32 v6, v6")
            a.e(f"v_fract_f32 v7, v7")
        a.e(f"v_cos_f32 v26, v7")
        a.e(f"v_sin_f32 v27, v7")
        a.e(f"v_mul_f32 v{d}, v6, v26")
        a.e(f"v_mul_f32 v{d+1}, v6, v27")
    if cfg.dbgT: st(4)
    OUT = [120, 128]
    oc = [0]
    def put_chunk(q, names, neg):
        o = OUT[oc[0] % 2]; oc[0] += 1
        sg = "-" if neg else ""
        for m in range(4):
            x, y = P[names[2*m]], P[names[2*m+1]]
            a.e(f"v_cvt_pk_bf16_f32 v{o+m}, v{x}, v{y}")
            a.e(f"v_cvt_pk_bf16_f32 v{o+4+m}, {sg}v{x+1}, {sg}v{y+1}")
        ad = A_TB + (q >> 1)
        a.e(f"ds_write_b128 v{ad}, v[{o}:{o+3}] offset:{(q & 1)*16}")
        a.e(f"ds_write_b128 v{ad}, v[{o+4}:{o+7}] offset:{128 + (q & 1)*16}")
    pair("ONE")
    a.e(f"v_mov_b32 v{P['ONE']}, 1.0")
    a.e(f"v_mov_b32 v{P['ONE']+1}, 0")
    for k in range(8): pair(f"S{k}")
    for k in range(1, 8):
        mul(f"X{k}", f"X{k-1}", "E1")
    put_chunk(0, [f"X{k}" for k in range(8)], True)
    P["Y8"] = P["E8"]
    mul("Y16", "Y8", "Y8"); mul("Y24", "Y16", "Y8"); mul("Y32", "Y16", "Y16")
    mul("Y40", "Y32", "Y8"); mul("Y48", "Y32", "Y16"); mul("Y56", "Y32", "Y24")
    put_chunk(6, ["ONE", "Y8", "Y16", "Y24", "Y32", "Y40", "Y48", "Y56"], False)
    if cfg.dbgT: st(6)
    mul("S0", "Y32", "Y32")
    for jj in range(1, 8): mul(f"S{jj}", "S0", f"Y{8*jj}")
    put_chunk(7, [f"S{k}" for k in range(8)], False)
    for k in range(8): mul(f"S{k}", f"X{k}", "E128")
    put_chunk(1, [f"S{k}" for k in range(8)], True)
    for i_, k in enumerate((0, 2, 4, 6)):
        mul(f"S{i_}", f"X{k}", "E256")
    for i_ in range(4):
        mul(f"S{4+i_}", f"S{i_}", "E128")
    put_chunk(2, [f"S{k}" for k in range(8)], True)
    mul("S0", "X0", "E512"); mul("S1", "X4", "E512")
    for i_ in range(2, 8): mul(f"S{i_}", f"S{i_-2}", "E128")
    put_chunk(3, [f"S{k}" for k in range(8)], True)
    mul("S0", "X0", "E1024")
    for i_ in range(1, 8): mul(f"S{i_}", f"S{i_-1}", "E128")
    pair("XL"); mul("XL", "S0", "E1024")
    put_chunk(4, [f"S{k}" for k in range(8)], True)
    a.e(f"v_cvt_pk_bf16_f32 v120, v{P['XL']}, -v{P['XL']+1}")
    a.e(f"ds_write_b16 v{A_TB+2}, v120 offset:16")
    a.e(f"ds_write_b16_d16_hi v{A_TB+2}, v120 offset:{128+16}")
    assert nxtp[0] <= 120, nxtp
    a1_write()
    if cfg.dbgT: st(7)
    a.e("s_waitcnt lgkmcnt(0)")
    if cfg.dbgT: st(8)
    a.e("s_barrier")
    st(3)
    a1_store()
    if cfg.touch:
        K.a_touch(a, cfg, {2: ["q"]})
    YF, XF, D0 = 32, 64, 128
    def trfrag(dst, addr, s):
        a.e(f"ds_read_b64_tr_b16 v[{dst}:{dst+1}], v{addr} offset:{s*4096}")
        a.e(f"ds_read_b64_tr_b16 v[{dst+2}:{dst+3}], v{addr} offset:{s*4096 + 512}")
    a.e("""
    s_cmp_eq_u32 s48, 0
    s_cbranch_scc0 L_a_k2
    """)
    a.lg = []
    for s in range(8):
        trfrag(YF+4*s, A_KM+3, s)
        for t in range(2): trfrag(XF+32*t+4*s, A_KM+t, s)
    for s in range(8):
        a.e(f"s_waitcnt lgkmcnt({min(15, 6*(7-s))})")
        for t in range(2):
            c = "0" if s == 0 else f"v[{D0+4*t}:{D0+4*t+3}]"
            a.e(f"v_mfma_f32_16x16x32_bf16 v[{D0+4*t}:{D0+4*t+3}], v[{XF+32*t+4*s}:{XF+32*t+4*s+3}], v[{YF+4*s}:{YF+4*s+3}], {c}")
    a.e(f"""
    v_cvt_pk_bf16_f32 v136, v{D0}, v{D0+1}
    v_cvt_pk_bf16_f32 v137, v{D0+2}, v{D0+3}
    v_cvt_pk_bf16_f32 v138, v{D0+4}, v{D0+5}
    v_cvt_pk_bf16_f32 v139, v{D0+6}, v{D0+7}
    ds_write_b64 v{A_C0}, v[136:137]
    ds_write_b32 v{A_C1A}, v138
    ds_write_b32 v{A_C1B}, v139
    s_branch L_a_kdone
    """)
    a.label("L_a_k2")
    for s in range(8):
        trfrag(YF+4*s, A_KM+3, s)
        trfrag(XF+4*s, A_KM+2, s)
    for s in range(8):
        a.e(f"s_waitcnt lgkmcnt({min(15, 4*(7-s))})")
        c = "0" if s == 0 else f"v[{D0}:{D0+3}]"
        a.e(f"v_mfma_f32_16x16x32_bf16 v[{D0}:{D0+3}], v[{XF+4*s}:{XF+4*s+3}], v[{YF+4*s}:{YF+4*s+3}], {c}")
    a.e(f"""
    v_cvt_pk_bf16_f32 v136, v{D0}, v{D0+1}
    v_cvt_pk_bf16_f32 v137, v{D0+2}, v{D0+3}
    ds_write_b16 v{A_C2}, v136
    ds_write_b16_d16_hi v{A_C2}, v136 offset:32
    ds_write_b16 v{A_C2}, v137 offset:64
    ds_write_b16_d16_hi v{A_C2}, v137 offset:96
    """)
    a.label("L_a_kdone")
    ut_flag()
    if cfg.touch:
        K.a_touch(a, cfg, {3: ["v"]})
    a.e(f"""
    s_mov_b32 s57, 0x01000100
    s_mov_b32 s58, 0x03020302
    s_mov_b32 s59, 0x05040302
    s_mov_b32 s63, 0x05040100
    v_mov_b32 v48, 0
    v_mov_b32 v49, 0
    v_mov_b32 v50, 0
    v_mov_b32 v51, 0
    s_waitcnt lgkmcnt(0)
    s_barrier
    """)
    a.lg = []
    if not (cfg.dbgT or cfg.dbgY or cfg.dbgN): st(4)
    a.e("""
    s_cmp_eq_u32 s39, 0
    s_cbranch_scc1 L_a_e0
    s_cmp_eq_u32 s39, 1
    s_cbranch_scc1 L_a_e2
    """)
    for c in range(2):
        a.e(f"ds_read_u16 v{32+2*c}, v{A_ER0} offset:{KC[c]}")
        a.e(f"ds_read_u16 v{33+2*c}, v{A_ER0} offset:{KC[c]+2}")
    a.e(f"""
    v_and_b32 v28, 1, v0
    v_cmp_eq_u32 vcc, 0, v28
    s_waitcnt lgkmcnt(0)
    """)
    for c in range(2):
        c0, c1 = 32+2*c, 33+2*c
        o = 40 + 4*c
        a.e(f"v_perm_b32 v{o}, v{c1}, v{c0}, s57")
        a.e(f"v_perm_b32 v{o+3}, v{c0}, v{c1}, s57")
        a.e(f"v_perm_b32 v{o+2}, v{c1}, v{c0}, s63")
        a.e(f"v_mov_b32 v{o+1}, v{o}")
        a.e(f"v_cndmask_b32 v{o+2}, v{o+3}, v{o+2}, vcc")
    a.e("s_branch L_a_ew")
    a.label("L_a_e2")
    for c in range(2):
        a.e(f"ds_read_b32 v{32+2*c}, v{A_ER0} offset:{KC[c]}")
        a.e(f"ds_read_b32 v{33+2*c}, v{A_ER0} offset:{KC[c]+4}")
    a.e("s_waitcnt lgkmcnt(0)")
    for c in range(2):
        A_, B_ = 32+2*c, 33+2*c
        o = 40 + 4*c
        a.e(f"v_perm_b32 v{o}, v{A_}, v{A_}, s57")
        a.e(f"v_mov_b32 v{o+1}, v{A_}")
        a.e(f"v_perm_b32 v{o+2}, v{A_}, v{A_}, s58")
        a.e(f"v_perm_b32 v{o+3}, v{B_}, v{B_}, s57")
    a.e("s_branch L_a_ew")
    a.label("L_a_e0")
    for c in range(2):
        a.e(f"ds_read_b128 v[{40+4*c}:{43+4*c}], v{A_ER0} offset:{KC[c]}")
        a.e(f"ds_read_b64 v[{32+4*c}:{33+4*c}], v{A_ER1} offset:{KC[c]}")
        a.e(f"ds_read_b32 v{34+4*c}, v{A_ER1} offset:{KC[c]+8}")
    a.e("""
    v_cmp_le_u32 vcc, 32, v0
    s_waitcnt lgkmcnt(0)
    """)
    for c in range(2):
        A_, B_, C_ = 32+4*c, 33+4*c, 34+4*c
        o = 40 + 4*c
        a.e(f"v_perm_b32 v52, v{A_}, v{A_}, s57")
        a.e(f"v_perm_b32 v53, v{B_}, v{A_}, s59")
        a.e(f"v_perm_b32 v54, v{B_}, v{B_}, s57")
        a.e(f"v_perm_b32 v55, v{C_}, v{B_}, s59")
        for q in range(4):
            a.e(f"v_cndmask_b32 v{o+q}, v{o+q}, v{52+q}, vcc")
    a.label("L_a_ew")
    for c in range(2):
        a.e(f"ds_write_b128 v{A_DW}, v[{40+4*c}:{43+4*c}] offset:{KD[c]}")
    a.e(f"""
    v_cmp_gt_u32 vcc, 160, v0
    s_and_b64 exec, exec, vcc
    ds_write_b128 v{A_ZU}, v[48:51] offset:{UR[0] + 64*80}
    ds_write_b128 v{A_ZU}, v[48:51] offset:{UR[1] + 64*80}
    v_cmp_gt_u32 vcc, 32, v0
    s_and_b64 exec, exec, vcc
    ds_write_b128 v{A_ZC}, v[48:51] offset:{CP[0]}
    v_cmp_gt_u32 vcc, 2, v0
    s_and_b64 exec, exec, vcc
    ds_write_b128 v{A_ZG}, v[48:51]
    s_mov_b64 exec, -1
    """)
    a.e(f"""
    s_cmp_lg_u32 s39, 0
    s_cbranch_scc1 L_a_uf1
    global_load_dword v30, v{A_FU}, s[36:37] sc1
    s_and_b32 s58, s38, 0xfffffff8
    s_getreg_b32 s57, hwreg(HW_REG_XCC_ID)
    s_and_b32 s57, s57, 7
    s_or_b32 s59, s57, s58
    s_waitcnt vmcnt(0)
    v_cmp_ne_u32 vcc, s59, v30
    s_cmp_eq_u64 vcc, 0
    s_cselect_b32 s57, 1, 0
    v_mov_b32 v31, s57
    v_mov_b32 v30, 0
    ds_write_b32 v30, v31 offset:{NONCE_LDS+8}
    ds_write_b32 v30, v31 offset:{NONCE_LDS+4}
    """)
    a.label("L_a_uf1")
    a.e("""
    s_waitcnt lgkmcnt(0)
    s_barrier
    """)
    a.e(f"""
    v_mov_b32 v30, 0
    ds_read_b32 v31, v30 offset:{NONCE_LDS+8}
    s_waitcnt lgkmcnt(0)
    v_readfirstlane_b32 s44, v31
    s_cmp_eq_u32 s44, 0
    s_cbranch_scc1 L_a_ul0
    global_load_dwordx4 v[208:211], v{A_UG}, s[36:37] sc1
    global_load_dwordx4 v[212:215], v{A_UG}, s[36:37] offset:2048 sc1
    """)
    a.label("L_a_ul0")
    a.vm = []
    if not (cfg.dbgT or cfg.dbgY or cfg.dbgN): st(5)
    for c in range(2):
        b = 32 + 16*c
        a.e(f"ds_read_b64 v[{b}:{b+1}], v{A_CR} offset:{KD[c] + 8}")
        a.e(f"ds_read_b128 v[{b+4}:{b+7}], v{A_CR} offset:{KD[c] + 16}")
    for c in range(2):
        a.e(f"s_waitcnt lgkmcnt({2 - 2*c})" if c == 0 else "s_waitcnt lgkmcnt(4)")
        b = 32 + 16*c
        n0, n1, n2, n3, n4, n5 = b, b+1, b+4, b+5, b+6, b+7
        m = b + 8
        t1 = 96 + 8*c
        base = CP[c]
        a.e(f"ds_write_b128 v{A_CW}, v[{n2}:{n5}] offset:{base}")
        a.e(f"v_alignbit_b32 v{m}, v{n1}, v{n0}, 16")
        for q, (hi, lo) in enumerate(((n2, n1), (n3, n2), (n4, n3))):
            a.e(f"v_alignbit_b32 v{m+1+q}, v{hi}, v{lo}, 16")
        a.e(f"ds_write_b128 v{A_CW}, v[{m}:{m+3}] offset:{base + 3*4160}")
        for q, (hi, lo) in enumerate(((n2, n1), (n3, n2), (n4, n3), (n5, n4))):
            a.e(f"v_alignbit_b32 v{t1+q}, v{hi}, v{lo}, 16")
        a.e(f"ds_write_b128 v{A_CW}, v[{t1}:{t1+3}] offset:{base + 4160}")
        for q, r in enumerate((n1, n2, n3, n4)): a.e(f"v_mov_b32 v{t1+4+q}, v{r}")
        a.e(f"ds_write_b128 v{A_CW}, v[{t1+4}:{t1+7}] offset:{base + 2*4160}")
    if not (cfg.dbgT or cfg.dbgY or cfg.dbgN): st(6)
    a.e(f"""
    s_cmp_lg_u32 s44, 0
    s_cbranch_scc1 L_a_fast
    s_cmp_ge_u32 s39, 2
    s_cbranch_scc1 L_a_utf_go
    s_and_b32 s58, s38, 0xfffffff8
    s_getreg_b32 s57, hwreg(HW_REG_XCC_ID)
    s_and_b32 s57, s57, 7
    s_or_b32 s59, s57, s58
    s_mov_b32 s61, 0
    v_add_u32 v28, 8192, v{A_FU}
    """)
    a.label("L_a_utf_poll")
    a.e(f"""
    global_load_dword v30, v{A_FU}, s[36:37] sc1
    global_load_dword v31, v28, s[36:37] sc1
    s_add_u32 s61, s61, 1
    s_waitcnt vmcnt(0)
    v_cmp_ne_u32 vcc, s59, v30
    s_cmp_eq_u64 vcc, 0
    s_cbranch_scc1 L_a_utf_local
    v_cmp_ne_u32 s[64:65], s58, v31
    s_and_b64 vcc, vcc, s[64:65]
    s_cbranch_vccz L_a_utf_glob
    s_cmp_eq_u32 s61, {cfg.ut_patience}
    s_cbranch_scc0 L_a_utf_again
    s_mov_b32 s60, 0
    """)
    a.label("L_a_utf_pub")
    a.e(f"""
    global_store_dwordx4 v{A_UT0}, v[224:227], s[36:37] sc1
    global_store_dwordx4 v{A_UT1}, v[228:231], s[36:37] sc1
    global_store_dwordx4 v200, v[232:235], s[36:37] sc1
    global_store_dwordx4 v201, v[236:239], s[36:37] sc1
    s_waitcnt vmcnt(0)
    v_add_u32 v29, 8192, v{A_FUS}
    v_mov_b32 v30, s58
    s_mov_b64 exec, 1
    global_store_dword v29, v30, s[36:37] sc1
    s_mov_b64 exec, -1
    s_cmp_lg_u32 s60, 0
    s_cbranch_scc1 L_a_utf_glob2
    """)
    a.label("L_a_utf_again")
    a.e(f"""
    s_cmp_gt_u32 s61, {SPIN}
    s_cbranch_scc1 L_a_utf_glob2
    s_sleep 1
    s_branch L_a_utf_poll
    """)
    a.label("L_a_utf_local")
    a.e("s_mov_b32 s57, 1")
    a.e("s_branch L_a_utf_ok")
    a.label("L_a_utf_glob")
    a.e(f"""
    s_mov_b32 s60, 1
    s_cmp_lt_u32 s61, {cfg.ut_patience}
    s_cbranch_scc1 L_a_utf_pub
    s_cmp_eq_u32 s61, {cfg.ut_patience}
    s_cbranch_scc1 L_a_utf_pub
    """)
    a.label("L_a_utf_glob2")
    a.e("s_mov_b32 s57, 0")
    a.label("L_a_utf_ok")
    a.e(f"""
    v_mov_b32 v31, s57
    v_mov_b32 v30, 0
    ds_write_b32 v30, v31 offset:{NONCE_LDS+4}
    """)
    a.label("L_a_utf_go")
    a.e(f"""
    s_waitcnt lgkmcnt(0)
    s_barrier
    global_load_dwordx4 v[208:211], v{A_UG}, s[36:37] sc1
    global_load_dwordx4 v[212:215], v{A_UG}, s[36:37] offset:2048 sc1
    """)
    a.label("L_a_fast")
    a.e(f"""
    v_mov_b32 v30, 0
    ds_read_b32 v31, v30 offset:{NONCE_LDS+4}
    """)
    for e in range(4):
        h, hi = e // 2, e % 2
        a.e(f"v_{'and_b32' if hi else 'lshlrev_b32'} v{80+e}, {'0xffff0000' if hi else '16'}, v{24+h}")
    for rho in range(4):
        for e in range(4):
            h, hi = e // 2, e % 2
            a.e(f"v_{'and_b32' if hi else 'lshlrev_b32'} v{96+4*rho+e}, {'0xffff0000' if hi else '16'}, v{16+2*rho+h}")
            a.e(f"v_mul_f32 v{96+4*rho+e}, v{96+4*rho+e}, v{80+e}")
        for h in range(2):
            a.e(f"v_cvt_pk_bf16_f32 v{84+h}, v{96+4*rho+2*h}, v{96+4*rho+2*h+1}")
        for h in range(2):
            a.e(f"v_lshlrev_b32 v{96+4*rho+2*h}, 16, v{84+h}")
            a.e(f"v_and_b32 v{96+4*rho+2*h+1}, 0xffff0000, v{84+h}")
    a.e("s_waitcnt vmcnt(0) lgkmcnt(0)")
    a.e("v_readfirstlane_b32 s46, v31")
    if cfg.yglobal: a.e("s_mov_b32 s46, 0")
    if cfg.utclean:
        a.e(f"""
        s_cmp_ge_u32 s39, 2
        s_cbranch_scc1 L_a_nocl
        global_store_dwordx4 v{A_UT0}, v[224:227], s[36:37] sc1
        global_store_dwordx4 v{A_UT1}, v[228:231], s[36:37] sc1
        global_store_dwordx4 v200, v[232:235], s[36:37] sc1
        global_store_dwordx4 v201, v[236:239], s[36:37] sc1
        s_nop 1
        """)
        a.label("L_a_nocl")
    a.vm = []
    if not (cfg.dbgT or cfg.dbgY or cfg.dbgN): st(7)
    a.e(f"""
    ds_write_b128 v{A_UL}, v[208:211] offset:{UR[0]}
    ds_write_b128 v{A_UL}, v[212:215] offset:{UR[0] + 32*80}
    s_waitcnt lgkmcnt(0)
    s_barrier
    """)
    if not (cfg.dbgT or cfg.dbgY or cfg.dbgN): st(8)
    a.e(f"s_setprio {cfg.prioA2}")
    if cfg.touch:
        K.a_touch(a, cfg, {3: ["o"]})
    if cfg.ytouch:
        a.e(f"""
        s_cmp_lg_u32 s39, 2
        s_cbranch_scc1 L_a_noyt
        s_lshl_b32 s57, s50, 12
        s_add_u32 s57, s57, {YT}
        v_lshl_add_u32 v28, v1, 7, s57
        global_load_dword v252, v28, s[36:37]
        """)
        a.label("L_a_noyt")
    ACC0, ACC1 = 128, 144
    NB = 3
    FR = [32 + 16*i for i in range(NB)]
    steps = [(dl, hf) for dl in range(16) for hf in range(2)]
    def rd(i):
        dl, hf = steps[i]
        f = FR[i % NB]
        ao = 64*dl + 32*(1-hf)
        bo = 80*dl + 32*(1-hf)
        t = f"cv{i}"
        return [(f"ds_read_b64 v[{f}:{f+1}], v{A_VA} offset:{ao}", t),
                (f"ds_read_b64 v[{f+2}:{f+3}], v{A_VA} offset:{ao+8}", t),
                (f"ds_read_b128 v[{f+8}:{f+11}], v{A_VB} offset:{bo+2560}", t),
                (f"ds_read_b128 v[{f+12}:{f+15}], v{A_VB} offset:{bo}", t),
                (f"ds_read_b64 v[{f+4}:{f+5}], v{A_VA} offset:{ao+2048}", t),
                (f"ds_read_b64 v[{f+6}:{f+7}], v{A_VA} offset:{ao+2056}", t)]
    a.lg = []
    for i in (0, 1):
        for t, tg in rd(i): a.e(t, lg=tg)
    for i in range(32):
        f = FR[i % NB]
        a.wait_lg(f"cv{i}")
        c0 = "0" if i == 0 else f"v[{ACC0}:{ACC0+15}]"
        c1 = "0" if i == 0 else f"v[{ACC1}:{ACC1+15}]"
        R = rd(i + 2) if i + 2 < 32 else []
        a.e(f"v_mfma_f32_32x32x16_bf16 v[{ACC0}:{ACC0+15}], v[{f}:{f+3}], v[{f+8}:{f+11}], {c0}")
        for t, tg in R[0:2]: a.e(t, lg=tg)
        a.e(f"v_mfma_f32_32x32x16_bf16 v[{ACC1}:{ACC1+15}], v[{f}:{f+3}], v[{f+12}:{f+15}], {c1}")
        for t, tg in R[2:4]: a.e(t, lg=tg)
        a.e(f"v_mfma_f32_32x32x16_bf16 v[{ACC1}:{ACC1+15}], v[{f+4}:{f+7}], v[{f+8}:{f+11}], v[{ACC1}:{ACC1+15}]")
        for t, tg in R[4:6]: a.e(t, lg=tg)
    st(9)
    a.e(f"s_setprio {cfg.prioA3}")
    a.e("""
    s_waitcnt vmcnt(0) lgkmcnt(0)
    s_barrier
    """)
    for tau, acc in ((0, ACC0), (1, ACC1)):
        for q in range(4):
            a.e(f"ds_write_b128 v{A_PW}, v[{acc+4*q}:{acc+4*q+3}] offset:{YP + tau*32*144 + q*32}")
    a.e("""
    s_waitcnt lgkmcnt(0)
    s_barrier
    """)
    for c in range(2):
        o = YP + (c*2)*64*144
        b = 32 + 16*c
        a.e(f"ds_read_b128 v[{b}:{b+3}], v{A_OR} offset:{o}")
        a.e(f"ds_read_b128 v[{b+8}:{b+11}], v{A_OR} offset:{o + 64*144}")
        a.e(f"ds_read_b128 v[{b+4}:{b+7}], v{A_OR} offset:{o + 16}")
        a.e(f"ds_read_b128 v[{b+12}:{b+15}], v{A_OR} offset:{o + 64*144 + 16}")
    for c in range(2):
        a.e(f"s_waitcnt lgkmcnt({4-4*c})")
        b = 32 + 16*c
        for q in range(8): a.e(f"v_add_f32 v{b+q}, v{b+q}, v{b+8+q}")
        for m in range(4): a.e(f"v_cvt_pk_bf16_f32 v{64+4*c+m}, v{b+2*m}, v{b+2*m+1}")
    a.e(f"""
    v_add_u32 v29, 4096, v{A_YG}
    s_cmp_eq_u32 s46, 0
    s_cbranch_scc1 L_a_yg
    global_store_dwordx4 v{A_YG}, v[64:67], s[36:37]
    global_store_dwordx4 v29, v[68:71], s[36:37]
    s_branch L_a_yd
    """)
    a.label("L_a_yg")
    a.e(f"""
    global_store_dwordx4 v{A_YG}, v[64:67], s[36:37] sc1
    global_store_dwordx4 v29, v[68:71], s[36:37] sc1
    """)
    a.label("L_a_yd")
    a.e(f"""
    s_waitcnt vmcnt(0)
    s_barrier
    """)
    st(10)
    a.e(f"""
    s_cmp_lg_u32 s39, 1
    s_cbranch_scc1 L_a_ytf_go
    v_mov_b32 v28, s38
    s_mov_b64 exec, 1
    s_cmp_eq_u32 s46, 0
    s_cbranch_scc1 L_a_yfg
    global_store_dword v{A_FYS}, v28, s[36:37]
    s_branch L_a_yfd
    """)
    a.label("L_a_yfg")
    a.e(f"global_store_dword v{A_FYS}, v28, s[36:37] sc1")
    a.label("L_a_yfd")
    a.e("s_mov_b64 exec, -1")
    if cfg.dbgY: st(4)
    a.e("s_mov_b32 s61, 0")
    a.label("L_a_ytf_poll")
    a.e(f"""
    global_load_dword v29, v{A_FY}, s[36:37] sc1
    s_add_u32 s61, s61, 1
    s_waitcnt vmcnt(0)
    v_cmp_ne_u32 vcc, s38, v29
    s_cmp_gt_u32 s61, {SPIN}
    s_cbranch_scc1 L_a_ytf_go
    s_cbranch_vccz L_a_ytf_go
    s_sleep 1
    s_branch L_a_ytf_poll
    """)
    a.label("L_a_ytf_go")
    if cfg.dbgY:
        st(5); K.stampval(a, cfg, 7, "s61")
    a.e("s_barrier")
    if cfg.dbgY: st(6)
    a.e(f"""
    global_load_dwordx2 v[64:65], v{A_YL}, s[36:37] sc1
    global_load_dwordx2 v[66:67], v{A_YL+1}, s[36:37] sc1
    global_load_dwordx2 v[68:69], v{A_YL+2}, s[36:37] sc1
    global_load_dwordx2 v[70:71], v{A_YL+3}, s[36:37] sc1
    s_waitcnt vmcnt(0)
    """)
    st(11)
    for rho in range(4):
        m, hi = rho // 2, rho % 2
        for e in range(4):
            src = 64 + 2*e + m
            a.e(f"v_{'and_b32' if hi else 'lshlrev_b32'} v{84+e}, {'0xffff0000' if hi else '16'}, v{src}")
        for e in range(4):
            a.e(f"v_add_f32 v{84+e}, v{84+e}, v{96+4*rho+e}")
        a.e(f"v_cvt_pk_bf16_f32 v{88+2*rho}, v84, v85")
        a.e(f"v_cvt_pk_bf16_f32 v{89+2*rho}, v86, v87")
        if rho == 2: a.e(f"v_add_u32 v{A_OUT}, 4096, v{A_OUT}")
        a.e(f"global_store_dwordx2 v{A_OUT}, v[{88+2*rho}:{89+2*rho}], s[32:33] offset:{2048*(rho % 2)} {cfg.outfl}")
    a.e("""
    s_cmp_lg_u32 s41, 0
    s_cbranch_scc1 L_a_norst
    s_cmp_lg_u32 s39, 1
    s_cbranch_scc1 L_a_norst
    v_mov_b32 v8, s45
    v_mov_b32 v9, 0
    s_mov_b64 exec, 1
    global_store_dword v8, v9, s[34:35] sc1
    s_mov_b64 exec, -1
    """)
    a.label("L_a_norst")
    st(12)
    K.stampval(a, cfg, 13, "s46")
    K.stamps_out(a, cfg, 14)
```

```python
import sys
from asmlib import Asm, wrap

UT   = 0
YT   = 4 << 20
PQ   = 8 << 20
PQF  = 10 << 20
KVP  = (10 << 20) + (64 << 10)
KVF  = 12 << 20
UTF  = (12 << 20) + (64 << 10)
YTF  = (12 << 20) + (96 << 10)
KVBLK = 2176
LOG2E = 0x3fb8aa3b
EPS   = 0x358637bd
SPIN_LIMIT = 200000

class Cfg:
    do_A = True
    do_B = True
    do_B2 = True
    touch = True
    dual = False
    x_nowrite = False
    prioA = 0
    prioA2 = 0
    dbgT = 0
    yglobal = 0
    utclean = 0
    outfl = ""
    uttouch = 1
    ninit = 6
    dbgN = 0
    ut_patience = 200
    flagpos = 0
    ytouch = 1
    dbgY = 0
    prioA3 = 0
    prioB = 0
    pk = False
    b_exit = False
    touch_flags = ""
    early_release = True
    dma_early = False
    last_dma = 40
    late_pre = 0
    touch_mode = "late"
    stamps = False

STAMP_BASE = 14 << 20
def stamp(a, cfg, i):
    if cfg.stamps:
        a.e(f"s_memtime s[{70+2*i}:{71+2*i}]")
def stampval(a, cfg, i, sreg):
    if cfg.stamps:
        a.e("s_waitcnt lgkmcnt(0)")
        a.e(f"s_add_u32 s{70+2*i}, {sreg}, s70")
def stamps_out(a, cfg, n, vt=22):
    if not cfg.stamps: return
    a.e("s_memrealtime s[68:69]")
    a.e("s_waitcnt lgkmcnt(0) vmcnt(0)")
    a.vm = []
    for i in range(1, n):
        a.e(f"s_sub_u32 s{70+2*i}, s{70+2*i}, s70")
    a.e(f"""
    s_lshl_b32 s61, s2, 2
    s_add_u32 s61, s61, s39
    s_lshl_b32 s61, s61, 6
    s_add_u32 s61, s61, {STAMP_BASE}
    v_mov_b32 v{vt}, s61
    s_mov_b64 exec, 1
    """)
    for i in range(16):
        src = f"s{70+2*i}" if (0 < i < n) else ("s68" if i == 15 else ("s100" if i == 0 else "0"))
        a.e(f"v_mov_b32 v{vt+1}, {src}")
        a.e(f"global_store_dword v{vt}, v{vt+1}, s[36:37] offset:{4*i}")
        a.e("s_nop 1")
    a.e("s_waitcnt vmcnt(0)")
    a.e("s_mov_b64 exec, -1")
    a.vm = []

def prologue(a, cfg):
    if cfg.stamps:
        a.e("s_memrealtime s[100:101]")
        a.e("s_memtime s[70:71]")
    a.e("""
    s_cmp_ge_u32 s2, 512
    s_cbranch_scc1 L_end
    s_load_dwordx16 s[8:23], s[0:1], 0
    s_load_dwordx8 s[24:31], s[0:1], 64
    s_load_dwordx4 s[32:35], s[0:1], 96
    s_load_dwordx2 s[36:37], s[0:1], 112
    v_lshrrev_b32 v1, 6, v0
    v_readfirstlane_b32 s39, v1
    v_and_b32 v1, 63, v0
    s_and_b32 s3, s2, 255
    s_cmp_lt_u32 s2, 256
    s_cbranch_scc1 L_roleA
    """)

def poll_nonce(a, vtmp, vaddr0, first_tag=None):
    L = a.newlabel("nonce"); Lx = a.newlabel("nonce_ok")
    if first_tag:
        a.wait_vm(first_tag)
    else:
        a.e(f"global_load_dword {vtmp}, {vaddr0}, s[34:35] sc1")
        a.wait_vm_all()
    a.e(f"v_readfirstlane_b32 s38, {vtmp}")
    a.e(f"""
    s_cmp_lg_u32 s38, 0
    s_cbranch_scc1 {Lx}
    s_mov_b32 s61, 0
    """)
    a.label(L)
    a.e(f"""
    global_load_dword {vtmp}, {vaddr0}, s[34:35] sc1
    s_waitcnt vmcnt(0)
    v_readfirstlane_b32 s38, {vtmp}
    s_add_u32 s61, s61, 1
    s_cmp_gt_u32 s61, {SPIN_LIMIT}
    s_cbranch_scc1 {Lx}
    s_cmp_eq_u32 s38, 0
    s_cbranch_scc1 {L}
    """)
    a.vm.pop()
    a.label(Lx)

def phi_instrs(acc, tmp, out, zsum=None):
    L = []
    for i in range(16):
        L.append(f"v_mul_f32 v{tmp+i}, s62, v{acc+i}")
    for i in range(16):
        L.append(f"v_exp_f32 v{tmp+i}, v{tmp+i} clamp")
        L.append(f"v_max_f32 v{acc+i}, s64, v{acc+i}")
    for i in range(16):
        L.append(f"v_add_f32 v{acc+i}, v{acc+i}, v{tmp+i}")
    if zsum is not None:
        for m in range(8):
            L.append(f"v_add_f32 v{tmp+m}, v{acc+2*m}, v{acc+2*m+1}")
        for m in range(4):
            L.append(f"v_add_f32 v{tmp+m}, v{tmp+m}, v{tmp+4+m}")
        L.append(f"v_add_f32 v{tmp}, v{tmp}, v{tmp+2}")
        L.append(f"v_add_f32 v{tmp+1}, v{tmp+1}, v{tmp+3}")
        L.append(f"v_add_f32 v{zsum}, v{tmp}, v{tmp+1}")
    for m in range(8):
        L.append(f"v_cvt_pk_bf16_f32 v{out+m}, v{acc+2*m}, v{acc+2*m+1}")
    return L

def spread(side, nslots):
    out = []; n = len(side); k = 0
    for i in range(nslots):
        e = (n*(i+1))//nslots
        out.append(side[k:e]); k = e
    return out

SEQ = []
for c in range(8): SEQ += [("X", c), ("K", c)]
SEQ += [("Q", c) for c in range(8)] + [("V", c) for c in range(8)] + [("O", c) for c in range(8)]
NSLOT = 10
NINIT = 6
XR = 128
WF, T16, ACCQ, ACCK, ACCV = 32, 64, 80, 96, 112

def b_issue_jobs(n):
    kind, c = SEQ[n]
    pos = n % NSLOT
    pre = []
    if kind == "X":
        so, v0, srd = f"s{16+c}", 2, "s[40:43]"
    elif kind in "QKV":
        so, v0, srd = f"s{8+c}", 4, "s[44:47]"
        if kind == "Q" and c == 0:
            pre = [("v_subrev_u32 v4, 1024, v4", None), ("v_subrev_u32 v5, 1024, v5", None)]
        if kind == "V" and c == 0:
            pre = [("v_add_u32 v4, 2048, v4", None), ("v_add_u32 v5, 2048, v5", None)]
    else:
        so, v0, srd = "s61", 6, "s[48:51]"
        pre = [(f"s_mov_b32 s61, {c*65536}", None)]
    return [pre + [(f"s_add_u32 m0, s60, {pos*8192}", None),
             (f"buffer_load_dwordx4 v{v0}, {srd}, {so} offen lds", f"slot{n}")],
            [(f"buffer_load_dwordx4 v{v0+1}, {srd}, {so} offen offset:1024 lds", f"slot{n}")]]

def emit_job(a, job):
    for t in job:
        if isinstance(t, str): a.e(t)
        else: a.e(t[0], vm=t[1])

def lds_base(n):
    pos = n % NSLOT
    return (0, pos*8192) if pos < 5 else (1, (pos-5)*8192)

def wfrag_reads(a, n, s, dst, tag=None):
    hi, off = lds_base(n)
    va = "v17" if hi else "v16"
    a.e(f"ds_read_b64_tr_b16 v[{dst}:{dst+1}], {va} offset:{off + s*2048}", lg=tag)
    a.e(f"ds_read_b64_tr_b16 v[{dst+2}:{dst+3}], {va} offset:{off + s*2048 + 512}", lg=tag)

def role_B(a, cfg):
    a.c("================= role B =================")
    if cfg.prioB: a.e(f"s_setprio {cfg.prioB}")
    a.e("""
    s_and_b32 s66, s3, 7            ; xcd
    s_lshr_b32 s67, s3, 3           ; jj
    s_lshr_b32 s56, s66, 1
    s_lshl_b32 s56, s56, 3
    s_and_b32 s68, s67, 7
    s_add_u32 s56, s56, s68         ; tb
    s_and_b32 s57, s66, 1
    s_lshl_b32 s57, s57, 2
    s_lshr_b32 s68, s67, 3
    s_add_u32 s57, s57, s68         ; hq
    s_and_b32 s58, s39, 1           ; tt
    s_lshr_b32 s59, s39, 1
    s_lshl_b32 s60, s39, 11
    s_mov_b32 s62, 0x3fb8aa3b
    s_mov_b32 s63, 0x3fb8aa3b
    s_mov_b32 s64, 0x358637bd
    s_mov_b32 s65, 0x358637bd
    """)
    a.e("""
    v_lshrrev_b32 v32, 3, v1        ; l>>3
    v_and_b32 v33, 7, v1            ; l&7
    v_lshrrev_b32 v34, 4, v1        ; l>>4
    s_lshl_b32 s68, s56, 6          ; tb*64
    s_lshl_b32 s69, s39, 4          ; 16w
    s_add_u32 s68, s68, s69
    v_add_u32 v35, s68, v32         ; row
    v_lshlrev_b32 v35, 10, v35
    v_xor_b32 v36, v33, v34
    v_lshl_add_u32 v2, v36, 4, v35
    v_add_u32 v37, 4, v34
    v_xor_b32 v36, v33, v37
    v_lshl_add_u32 v3, v36, 4, v35
    v_add_u32 v3, 7168, v3          ; +8 rows - 1024
    v_and_b32 v36, 1, v34
    v_lshlrev_b32 v36, 2, v36
    v_xor_b32 v36, v33, v36         ; q
    v_lshlrev_b32 v36, 4, v36       ; q*16
    v_add_u32 v37, s69, v32         ; 16w + (l>>3)
    v_mul_u32_u24 v38, 3072, v37
    s_lshl_b32 s68, s57, 7          ; hq*128
    v_add3_u32 v4, v38, v36, s68
    v_add_u32 v4, 1024, v4
    v_add_u32 v5, 23552, v4         ; +8*3072 - 1024
    v_lshlrev_b32 v38, 10, v37
    v_add3_u32 v6, v38, v36, s68
    v_add_u32 v7, 7168, v6
    """)
    a.e("""
    s_waitcnt lgkmcnt(0)
    s_mov_b32 s40, s26
    s_and_b32 s41, s27, 0xffff
    s_mov_b32 s42, 0x200000
    s_mov_b32 s43, 0x20000
    s_mov_b32 s44, s28
    s_and_b32 s45, s29, 0xffff
    s_mov_b32 s46, 0x180000
    s_mov_b32 s47, 0x20000
    s_mov_b32 s48, s30
    s_and_b32 s49, s31, 0xffff
    s_mov_b32 s50, 0x80000
    s_mov_b32 s51, 0x20000
    """)
    a.e("""
    v_mov_b32 v31, 0
    s_cmp_lg_u32 s3, 0
    s_cbranch_scc1 L_b_nononce
    s_cmp_lg_u32 s39, 0
    s_cbranch_scc1 L_b_nononce
    s_memrealtime s[68:69]
    s_waitcnt lgkmcnt(0)
    s_or_b32 s68, s68, 1
    v_mov_b32 v30, s68
    s_mov_b64 exec, 1
    global_store_dword v31, v30, s[34:35] sc1
    s_mov_b64 exec, -1
    """)
    a.vm.pop()
    a.label("L_b_nononce")
    if cfg.b_exit:
        a.e("s_branch L_end")
    for c in range(8):
        a.e(f"s_mov_b32 s{8+c}, {c*64*3072}")
        a.e(f"s_mov_b32 s{16+c}, {c*128}")
    stamp(a, cfg, 1)
    for n in range(cfg.ninit):
        for job in b_issue_jobs(n): emit_job(a, job)
    a.e("""
    v_and_b32 v32, 31, v1           ; i
    v_lshrrev_b32 v33, 5, v1        ; hh
    s_lshl_b32 s68, s58, 5
    v_add_u32 v34, s68, v32         ; 32tt + i
    v_lshlrev_b32 v34, 7, v34       ; *128
    v_lshrrev_b32 v35, 1, v32
    v_and_b32 v35, 7, v35           ; f
    """)
    for s in range(4):
        a.e(f"""
        v_add_u32 v36, {2*s}, v33
        v_xor_b32 v36, v36, v35
        v_lshl_add_u32 v{8+s}, v36, 4, v34
        v_add_u32 v{12+s}, 40960, v{8+s}
        """)
    a.e(f"""
    v_lshrrev_b32 v34, 2, v1
    v_and_b32 v34, 3, v34           ; rr
    v_and_b32 v35, 3, v1            ; cc
    v_lshrrev_b32 v36, 4, v1
    v_and_b32 v36, 1, v36           ; G&1
    v_lshlrev_b32 v36, 1, v36       ; 2(G&1)
    v_lshrrev_b32 v37, 1, v35       ; cc>>1
    v_add_u32 v36, v36, v37         ; 2(G&1) + (cc>>1)
    v_lshrrev_b32 v37, 1, v34
    v_lshlrev_b32 v37, 2, v37       ; 4(rr>>1)
    v_and_b32 v38, 1, v35
    v_lshlrev_b32 v38, 3, v38       ; 8(cc&1)
    s_lshl_b32 s68, s59, 2
    v_add_u32 v39, s68, v36
    v_xor_b32 v39, v39, v37
    v_lshl_add_u32 v39, v39, 4, v38
    v_lshl_add_u32 v40, v33, 3, v34
    v_lshl_add_u32 v16, v40, 7, v39
    v_add_u32 v17, 40960, v16
    v_xor_b32 v39, v36, v37
    v_lshl_add_u32 v39, v39, 4, v38
    v_lshl_add_u32 v40, v33, 2, v34
    v_lshl_add_u32 v18, v40, 7, v39
    s_lshl_b32 s68, s59, 15
    s_add_u32 s68, s68, 16384
    v_add_u32 v18, s68, v18
    v_xor_b32 v19, 64, v18
    s_lshl_b32 s68, s59, 1
    s_add_u32 s68, s68, s58
    s_xor_b32 s69, s68, 1
    s_lshl_b32 s66, s68, 10
    s_add_u32 s66, s66, 0
    v_lshl_add_u32 v22, v1, 4, s66
    s_lshl_b32 s66, s69, 10
    s_add_u32 s66, s66, 0
    v_lshl_add_u32 v23, v1, 4, s66
    s_lshl_b32 s66, s68, 8
    s_add_u32 s66, s66, 4096
    v_lshl_add_u32 v24, v1, 2, s66
    s_lshl_b32 s66, s69, 8
    s_add_u32 s66, s66, 4096
    v_lshl_add_u32 v25, v1, 2, s66
    s_lshl_b32 s68, s57, 1
    s_add_u32 s68, s68, s59
    s_lshl_b32 s68, s68, 5
    s_add_u32 s68, s68, s56
    s_mul_i32 s68, s68, 2176
    s_add_u32 s68, s68, {KVP}
    s_lshl_b32 s69, s58, 10
    s_add_u32 s69, s69, s68
    v_lshl_add_u32 v26, v1, 4, s69
    v_lshrrev_b32 v40, 4, v1
    v_and_b32 v40, 1, v40
    v_lshlrev_b32 v40, 3, v40       ; 8c
    v_and_b32 v41, 4, v1            ; 4*hh'
    v_add_u32 v40, v40, v41
    v_lshrrev_b32 v41, 2, v1
    v_and_b32 v41, 2, v41
    v_add_u32 v40, v40, v41
    v_lshrrev_b32 v41, 1, v1
    v_and_b32 v41, 1, v41
    v_add_u32 v40, v40, v41         ; zg
    s_add_u32 s68, s68, 2048
    v_lshl_add_u32 v27, v40, 3, s68
    s_lshl_b32 s68, s56, 1
    s_add_u32 s68, s68, s58
    s_lshl_b32 s68, s68, 5
    s_lshl_b32 s69, s57, 2
    s_add_u32 s68, s68, s69
    s_lshl_b32 s69, s59, 1
    s_add_u32 s68, s68, s69
    s_lshl_b32 s68, s68, 10
    s_add_u32 s68, s68, {PQ}
    v_lshl_add_u32 v28, v1, 4, s68
    v_and_b32 v40, 16, v1
    v_cmp_ne_u32 s[52:53], 0, v40
    s_sub_u32 s54, 0, s58
    s_mov_b32 s55, s54
    """)
    a.e(f"""
    s_cmp_lg_u32 s39, 3
    s_cbranch_scc1 L_b_nopt
    s_lshl_b32 s68, s56, 7
    s_add_u32 s68, s68, {PQF}
    v_mov_b32 v40, s68
    global_load_dword v21, v40, s[36:37] sc1
    """)
    a.vm.pop()
    a.label("L_b_nopt")
    for r in range(16):
        a.e(f"v_mov_b32 v{ACCQ+r}, s64")
    for r in range(16):
        a.e(f"v_mov_b32 v{ACCK+r}, s64")
    def frag_reads(g, k):
        L = []
        tag = f"f{g}_{k}"
        if g < 8:
            nx, nw = 2*g, 2*g+1
            hi, off = lds_base(nx)
            L.append((f"ds_read_b128 v[{XR+16*g+4*k}:{XR+16*g+4*k+3}], v{(12 if hi else 8)+k} offset:{off}", tag))
            d = WF + 16*(g % 2) + 4*k; n = nw; sstep = k
        else:
            n = 2*g + k//4; sstep = k % 4; d = WF + 4*k
        h2, o2 = lds_base(n)
        va = "v17" if h2 else "v16"
        L.append((f"ds_read_b64_tr_b16 v[{d}:{d+1}], {va} offset:{o2 + sstep*2048}", tag))
        L.append((f"ds_read_b64_tr_b16 v[{d+2}:{d+3}], {va} offset:{o2 + sstep*2048 + 512}", tag))
        return L
    def nsteps(g): return 4 if g < 8 else 8
    def emit_side(lst):
        for t in lst:
            if isinstance(t, str): a.e(t)
            elif t[0] == "WVM": a.wait_vm(t[1])
            else: a.e(t[0], vm=t[1])
    side = {}
    ke = phi_instrs(ACCK, T16, ACCK, zsum=29)
    ke += ["v_mov_b32 v30, v29", "v_permlane32_swap_b32 v29, v30", "v_add_f32 v29, v29, v30"]
    gaps = [(g, k) for g in range(8, 12) for k in range(8)][1:31]
    for gp, grp in zip(gaps, spread(ke, len(gaps))): side[gp] = grp
    qe = phi_instrs(ACCQ, T16, ACCQ)
    qe += [(f"global_store_dwordx4 v28, v[{ACCQ}:{ACCQ+3}], s[36:37] sc1", "pqst"),
           (f"global_store_dwordx4 v28, v[{ACCQ+4}:{ACCQ+7}], s[36:37] offset:1024 sc1", "pqst")]
    gaps = [(g, k) for g in range(12, 15) for k in range(8)][1:20]
    for gp, grp in zip(gaps, spread(qe, len(gaps))): side[gp] = grp
    rb = f"""
    s_mov_b32 s40, s36
    s_and_b32 s41, s37, 0xffff
    s_mov_b32 s42, {KVF + 65536}
    s_mov_b32 s43, 0x20000
    s_lshl_b32 s68, s56, 7
    s_add_u32 s68, s68, {PQF}
    v_and_b32 v2, 7, v1
    v_lshl_add_u32 v2, v2, 2, s68
    s_lshl_b32 s68, s56, 1
    s_add_u32 s68, s68, s58
    s_lshl_b32 s68, s68, 5
    s_lshl_b32 s69, s59, 4
    s_add_u32 s68, s68, s69
    s_lshl_b32 s68, s68, 10
    s_add_u32 s68, s68, {PQ}
    v_lshl_add_u32 v3, v1, 4, s68
    v_add_u32 v31, 8192, v3
    v_lshrrev_b32 v13, 7, v0
    v_mul_u32_u24 v13, {KVBLK}, v13
    v_and_b32 v20, 127, v0
    v_lshl_add_u32 v13, v20, 4, v13
    v_add_u32 v13, {KVF}, v13
    v_lshrrev_b32 v14, 3, v20
    v_mul_u32_u24 v14, {KVBLK}, v14
    v_and_b32 v21, 7, v0
    v_lshl_add_u32 v14, v21, 4, v14
    v_add_u32 v14, {KVF+2048}, v14
    v_lshrrev_b32 v15, 7, v0
    v_lshlrev_b32 v15, 1, v15
    v_bfe_u32 v21, v0, 4, 1
    v_add_u32 v15, v15, v21
    v_mul_u32_u24 v15, 544, v15
    v_bfe_u32 v21, v0, 5, 1
    v_mul_u32_u24 v21, 272, v21
    v_add_u32 v15, v15, v21
    v_and_b32 v21, 15, v0
    v_lshl_add_u32 v15, v21, 4, v15
    v_bfe_u32 v21, v0, 6, 1
    v_lshl_add_u32 v15, v21, 3, v15
    v_lshrrev_b32 v12, 3, v20
    v_lshlrev_b32 v12, 1, v12
    v_bfe_u32 v21, v0, 2, 1
    v_add_u32 v12, v12, v21
    v_mul_u32_u24 v12, 544, v12
    v_bfe_u32 v21, v0, 1, 1
    v_mul_u32_u24 v21, 272, v21
    v_add_u32 v12, v12, v21
    v_and_b32 v21, 1, v0
    v_lshl_add_u32 v12, v21, 3, v12
    v_add_u32 v12, 256, v12
    """.strip().split("\n")
    rb = [x.strip() for x in rb]
    rb += [f"s_mov_b32 s{8+i}, {1024*i}" for i in range(8)] + [f"s_mov_b32 s{16+k}, {2*KVBLK*k}" for k in range(8)]
    gaps = [(14, k) for k in range(5, 8)] + [(15, k) for k in range(8)]
    for gp, grp in zip(gaps, spread(rb, len(gaps))): side[gp] = side.get(gp, []) + grp

    def kv_publish():
        a.c("--- kv partial: V cvt, MFMA, select, pair exchange, publish")
        a.e("s_barrier")
        for m in range(8):
            a.e(f"v_cvt_pk_bf16_f32 v{ACCV+m}, v{ACCV+2*m}, v{ACCV+2*m+1}")
        a.e(f"v_mfma_f32_32x32x16_bf16 v[{T16}:{T16+15}], v[{ACCK}:{ACCK+3}], v[{ACCV}:{ACCV+3}], 0")
        a.e(f"v_mfma_f32_32x32x16_bf16 v[{T16}:{T16+15}], v[{ACCK+4}:{ACCK+7}], v[{ACCV+4}:{ACCV+7}], v[{T16}:{T16+15}]")
        a.e("ds_write_b32 v24, v29", lg="xw")
        SEL = ACCK + 8; SND = ACCV + 8; KEEP = ACCV + 12
        for j in range(8): a.e(f"v_cndmask_b32 v{SEL+j}, v{T16+j}, v{T16+8+j}, s[52:53]")
        for j in range(4): a.e(f"v_cndmask_b32 v{SND+j}, v{SEL+4+j}, v{SEL+j}, s[54:55]")
        a.e(f"ds_write_b128 v22, v[{SND}:{SND+3}]", lg="xw")
        for j in range(4): a.e(f"v_cndmask_b32 v{KEEP+j}, v{SEL+j}, v{SEL+4+j}, s[54:55]")
        a.wait_vm("pqst")
        a.wait_lg("xw")
        a.e("s_barrier")
        a.e(f"ds_read_b128 v[{SEL}:{SEL+3}], v23", lg="xr")
        a.e(f"ds_read_b32 v30, v25", lg="xr")
        a.e("""
        s_cmp_lg_u32 s39, 3
        s_cbranch_scc1 L_b_noflag
        s_lshl_b32 s68, s56, 7
        s_lshl_b32 s69, s57, 2
        s_add_u32 s68, s68, s69
        s_add_u32 s68, s68, %d
        v_mov_b32 v32, s68
        v_mov_b32 v33, s38
        s_mov_b64 exec, 1
        global_store_dword v32, v33, s[36:37] sc1
        s_mov_b64 exec, -1
        """ % PQF)
        a.vm.pop()
        a.label("L_b_noflag")
        a.wait_lg("xr")
        for j in range(4): a.e(f"v_add_f32 v{KEEP+j}, v{KEEP+j}, v{SEL+j}")
        a.e(f"""
        v_add_f32 v29, v29, v30
        v_cvt_pk_bf16_f32 v{SEL}, v{KEEP}, v{KEEP+1}
        v_mov_b32 v{SEL+1}, s38
        v_cvt_pk_bf16_f32 v{SEL+2}, v{KEEP+2}, v{KEEP+3}
        v_mov_b32 v{SEL+3}, s38
        v_mov_b32_dpp v30, v29 quad_perm:[1,0,3,2] row_mask:0xf bank_mask:0xf
        global_store_dwordx4 v26, v[{SEL}:{SEL+3}], s[36:37] sc1
        v_cvt_pk_bf16_f32 v{SEL+4}, v29, v30
        v_mov_b32 v{SEL+5}, s38
        s_andn2_b64 exec, 0x55555555, s[54:55]
        s_cbranch_execz L_b_noz
        global_store_dwordx2 v27, v[{SEL+4}:{SEL+5}], s[36:37] sc1
        """)
        a.vm.pop()
        a.label("L_b_noz")
        a.e("s_mov_b64 exec, -1")
        stamp(a, cfg, 6)

    a.wait_vm(["slot0", "slot1"])
    a.e("s_barrier")
    stamp(a, cfg, 2)
    for k in range(4):
        for t, tag in frag_reads(0, k): a.e(t, lg=tag)
    nxt = cfg.ninit
    pend = []
    while nxt < NSLOT:
        pend += b_issue_jobs(nxt); nxt += 1
    for g in range(16):
        a.c(f"--- group {g}")
        if g == 13: poll_nonce(a, "v21", "v31", first_tag="nonce")
        if g < 15:
            a.wait_vm([f"slot{2*g+2}", f"slot{2*g+3}"])
        a.e("s_barrier")
        if g in (1, 8, 12): stamp(a, cfg, {1: 3, 8: 4, 12: 5}[g])
        jobs = list(pend); pend = []
        if g >= 1:
            for _ in range(2): jobs += b_issue_jobs(nxt); nxt += 1
        if g == 9:
            jobs.append([("global_load_dword v21, v31, s[34:35] sc1", "nonce")])
        ns = nsteps(g)
        jsp = spread(jobs, ns)
        for k in range(ns):
            if k % 2 == 0: a.wait_lg([f"f{g}_{k}", f"f{g}_{k+1}"])
            if g < 8:
                d = WF + 16*(g % 2) + 4*k
                a.e(f"v_mfma_f32_32x32x16_bf16 v[{ACCK}:{ACCK+15}], v[{XR+16*g+4*k}:{XR+16*g+4*k+3}], v[{d}:{d+3}], v[{ACCK}:{ACCK+15}]")
            elif g < 12:
                kk = (g - 8)*8 + k
                a.e(f"v_mfma_f32_32x32x16_bf16 v[{ACCQ}:{ACCQ+15}], v[{WF+4*k}:{WF+4*k+3}], v[{XR+4*kk}:{XR+4*kk+3}], v[{ACCQ}:{ACCQ+15}]")
            else:
                kk = (g - 12)*8 + k
                cc = "0" if (g == 12 and k == 0) else f"v[{ACCV}:{ACCV+15}]"
                a.e(f"v_mfma_f32_32x32x16_bf16 v[{ACCV}:{ACCV+15}], v[{XR+4*kk}:{XR+4*kk+3}], v[{WF+4*k}:{WF+4*k+3}], {cc}")
            jl = [list(jb) for jb in jsp[k]]
            if jl:
                while jl[0] and not jl[0][0][0].startswith(("buffer_load", "global_load")):
                    a.e(jl[0].pop(0)[0])
            if g < 15:
                nx = [k, 4 + k] if g == 7 else [k]
                for k2 in nx:
                    for t, tag in frag_reads(g + 1, k2): a.e(t, lg=tag)
            for jb in jl: emit_job(a, jb)
            emit_side(side.get((g, k), []))
    assert nxt == 40, nxt
    kv_publish()
    stamp(a, cfg, 7)
    if not cfg.do_B2:
        stamp(a, cfg, 8)
        stamps_out(a, cfg, 9)
        a.e("s_branch L_end")
        return
    role_B2(a, cfg)

def tag_check(a, regs_tags, acc="v20"):
    tt = 0
    for idx in range(8):
        s0, s1, s2 = (idx >> 2) & 1, (idx >> 1) & 1, idx & 1
        if s0 | (s1 ^ s2): tt |= 1 << idx
    first = True
    for r in regs_tags:
        if first:
            a.e(f"v_xor_b32 {acc}, s38, v{r}"); first = False
        else:
            a.e(f"v_bitop3_b32 {acc}, {acc}, v{r}, s38 bitop3:{hex(tt)}")
    a.e(f"v_cmp_ne_u32 vcc, 0, {acc}")

def role_B2(a, cfg):
    WO = 128
    ACC = 96
    PQR = 32
    CN = [64, 80]
    KAF = [8, 12]
    OF = [4, 16]
    KA = 0
    PQL = 17408
    a.c("================= B2 =================")
    def reduce_line(base, dst_addr, tagsok_label):
        S = 40; T = 44
        for k in range(4):
            r = base + 4*k
            for pidx in range(2):
                src = r + 2*pidx
                if k == 0:
                    a.e(f"v_lshlrev_b32 v{S+2*pidx}, 16, v{src}")
                    a.e(f"v_and_b32 v{S+1+2*pidx}, 0xffff0000, v{src}")
                else:
                    a.e(f"v_lshlrev_b32 v{T+2*pidx}, 16, v{src}")
                    a.e(f"v_and_b32 v{T+1+2*pidx}, 0xffff0000, v{src}")
                    a.e(f"v_add_f32 v{S+2*pidx}, v{S+2*pidx}, v{T+2*pidx}")
                    a.e(f"v_add_f32 v{S+1+2*pidx}, v{S+1+2*pidx}, v{T+1+2*pidx}")
        for j in range(4): a.e(f"v_add_f32_dpp v{S+j}, v{S+j}, v{S+j} row_ror:8 row_mask:0xf bank_mask:0xf")
        for j in range(4): a.e(f"v_mov_b32 v{T+j}, v{S+j}")
        for j in range(4): a.e(f"v_permlane16_swap_b32 v{S+j}, v{T+j}")
        for j in range(4): a.e(f"v_add_f32 v{S+j}, v{S+j}, v{T+j}")
        for j in range(4): a.e(f"v_mov_b32 v{T+j}, v{S+j}")
        for j in range(4): a.e(f"v_permlane32_swap_b32 v{S+j}, v{T+j}")
        for j in range(4): a.e(f"v_add_f32 v{S+j}, v{S+j}, v{T+j}")
        a.e(f"""
        v_cvt_pk_bf16_f32 v48, v{S}, v{S+1}
        v_mov_b32 v49, s38
        v_cvt_pk_bf16_f32 v50, v{S+2}, v{S+3}
        v_mov_b32 v51, s38
        s_mov_b64 exec, 0xff
        global_store_dwordx4 {dst_addr}, v[48:51], s[36:37] sc1
        s_mov_b64 exec, -1
        """)
    a.e(f"""
    s_lshr_b32 s66, s3, 4
    s_and_b32 s67, s3, 15
    s_mul_i32 s69, s66, {32*KVBLK}
    s_add_u32 s69, s69, {KVP}
    s_lshl_b32 s52, s67, 7
    s_add_u32 s68, s69, s52
    v_and_b32 v22, 7, v1
    v_lshlrev_b32 v22, 4, v22
    v_lshrrev_b32 v23, 3, v1
    v_mul_u32_u24 v23, {KVBLK}, v23
    v_add_u32 v23, v22, v23
    v_add_u32 v24, s68, v23
    v_add_u32 v25, {8*KVBLK}, v24
    v_add_u32 v26, {16*KVBLK}, v24
    v_add_u32 v27, {24*KVBLK}, v24
    s_add_u32 s68, s69, 2048
    v_add_u32 v8, s68, v23
    v_add_u32 v9, {8*KVBLK}, v8
    v_add_u32 v10, {16*KVBLK}, v8
    v_add_u32 v11, {24*KVBLK}, v8
    s_mul_i32 s69, s66, {KVBLK}
    s_add_u32 s69, s69, {KVF}
    s_add_u32 s68, s69, s52
    v_add_u32 v23, s68, v22
    s_add_u32 s68, s69, 2048
    v_add_u32 v29, s68, v22
    """)
    a.wait_vm([f"slot{n}" for n in range(32, 40)])
    a.e("s_barrier")
    for i in range(16):
        for nt in range(2):
            d = WO + 8*i + 4*nt
            off = (i//4)*8192 + (i % 4)*2048
            a.e(f"ds_read_b64_tr_b16 v[{d}:{d+1}], v{18+nt} offset:{off}", lg="wo")
            a.e(f"ds_read_b64_tr_b16 v[{d+2}:{d+3}], v{18+nt} offset:{off+1024}", lg="wo")
    a.e("s_waitcnt lgkmcnt(0)")
    a.e("s_barrier")
    a.vm = []; a.lg = []
    stamp(a, cfg, 9)
    a.e("""
    s_cmp_lg_u32 s39, 0
    s_cbranch_scc1 L_b_red_wait
    s_mov_b32 s61, 0
    """)
    a.label("L_b_red_poll")
    a.e("""
    global_load_dwordx4 v[96:99], v24, s[36:37] sc1
    global_load_dwordx4 v[100:103], v25, s[36:37] sc1
    global_load_dwordx4 v[104:107], v26, s[36:37] sc1
    global_load_dwordx4 v[108:111], v27, s[36:37] sc1
    global_load_dwordx4 v[112:115], v8, s[36:37] sc1
    global_load_dwordx4 v[116:119], v9, s[36:37] sc1
    global_load_dwordx4 v[120:123], v10, s[36:37] sc1
    global_load_dwordx4 v[124:127], v11, s[36:37] sc1
    s_add_u32 s61, s61, 1
    s_waitcnt vmcnt(0)
    """)
    tag_check(a, [97+2*q for q in range(16)])
    a.e(f"""
    s_cmp_gt_u32 s61, {SPIN_LIMIT}
    s_cbranch_scc1 L_b_red_go
    s_cbranch_vccnz L_b_red_poll
    """)
    a.label("L_b_red_go")
    a.e("s_barrier")
    a.e("""
    s_cmp_lg_u32 s67, 0
    s_cbranch_scc1 L_b_red_a
    """)
    reduce_line(112, "v29", None)
    a.label("L_b_red_a")
    reduce_line(96, "v23", None)
    a.e("s_branch L_b_red_done")
    a.label("L_b_red_wait")
    a.e("s_barrier")
    a.label("L_b_red_done")
    a.vm = []
    stamp(a, cfg, 10)
    def pq_loads():
        for i in range(8):
            a.e(f"buffer_load_dwordx4 v[{PQR+4*i}:{PQR+4*i+3}], v3, s[40:43], s{8+i} offen sc1")
        for i in range(8):
            a.e(f"s_add_u32 m0, s66, {1024*i}")
            a.e("s_nop 0")
            a.e(f"buffer_load_dwordx4 v31, s[40:43], s{8+i} offen sc1 lds")
    a.e(f"""
    s_lshl_b32 s66, s39, 13
    s_add_u32 s66, s66, {PQL}
    s_mov_b32 s61, 0
    """)
    a.label("L_b_pqf_poll")
    a.e(f"""
    global_load_dword v21, v2, s[36:37] sc1
    s_add_u32 s61, s61, 1
    s_waitcnt vmcnt(0)
    v_cmp_ne_u32 vcc, s38, v21
    s_cmp_gt_u32 s61, {SPIN_LIMIT}
    s_cbranch_scc1 L_b_pqf_go
    s_cbranch_vccz L_b_pqf_go
    s_sleep 1
    s_branch L_b_pqf_poll
    """)
    a.label("L_b_pqf_go")
    stamp(a, cfg, 11)
    def ka_loads():
        for k in range(8):
            a.e(f"buffer_load_dwordx4 v[{64+4*k}:{67+4*k}], v13, s[40:43], s{16+k} offen sc1")
        a.e("buffer_load_dwordx4 v[96:99], v14, s[40:43], 0 offen sc1")
    pq_loads()
    a.e("s_mov_b32 s61, 0")
    a.label("L_b_kz_poll")
    a.e(f"""
    buffer_load_dwordx4 v[96:99], v14, s[40:43], 0 offen sc1
    s_add_u32 s61, s61, 1
    s_waitcnt vmcnt(0)
    v_xor_b32 v20, s38, v97
    v_cmp_ne_u32 vcc, 0, v20
    s_cmp_gt_u32 s61, {SPIN_LIMIT}
    s_cbranch_scc1 L_b_kz_go
    s_cbranch_vccz L_b_kz_go
    s_sleep 1
    s_branch L_b_kz_poll
    """)
    a.label("L_b_kz_go")
    a.e("s_mov_b32 s61, 0")
    a.label("L_b_kvf_poll")
    ka_loads()
    a.e("s_waitcnt vmcnt(0)")
    a.label("L_b_ka_chk")
    a.e("s_add_u32 s61, s61, 1")
    tag_check(a, [65+2*q for q in range(18)])
    a.e(f"""
    s_cmp_gt_u32 s61, {SPIN_LIMIT}
    s_cbranch_scc1 L_b_kvf_go
    s_cbranch_vccnz L_b_kvf_poll
    """)
    a.label("L_b_kvf_go")
    stamp(a, cfg, 12)
    stampval(a, cfg, 8, "s61")
    a.vm = []
    for k in range(8):
        a.e(f"v_mov_b32 v{65+4*k}, v{66+4*k}")
        a.e(f"ds_write_b64 v15, v[{64+4*k}:{65+4*k}] offset:{KA + 2176*k}")
    a.e("v_mov_b32 v97, v98")
    a.e(f"ds_write_b64 v12, v[96:97] offset:{KA}")
    a.e(f"""
    v_and_b32 v22, 31, v1
    v_min_u32 v22, 16, v22
    v_lshlrev_b32 v22, 4, v22
    v_lshrrev_b32 v23, 5, v1
    v_mul_u32_u24 v23, 272, v23
    s_mul_i32 s68, s59, {16*544}
    v_add3_u32 v22, v22, v23, s68
    v_lshl_add_u32 v23, v1, 4, s66
    s_waitcnt vmcnt(0) lgkmcnt(0)
    s_barrier
    """)
    a.vm = []; a.lg = []
    stamp(a, cfg, 13)
    def kaf_read(i):
        a.e(f"ds_read_b128 v[{KAF[i%2]}:{KAF[i%2]+3}], v22 offset:{KA + 544*i}", lg=f"ka{i}")
    def out_mfma(i):
        o = OF[i % 2]
        for nt in range(2):
            w = WO + 8*i + 4*nt
            cc = "0" if i == 0 else f"v[{ACC+16*nt}:{ACC+16*nt+15}]"
            a.e(f"v_mfma_f32_32x32x16_bf16 v[{ACC+16*nt}:{ACC+16*nt+15}], v[{w}:{w+3}], v[{o}:{o+3}], {cc}")
    def num_mfma(i):
        a.wait_lg(f"ka{i}")
        p = PQR + 4*(i % 8)
        if i >= 8: a.wait_lg(f"pl{i}")
        a.e(f"v_mfma_f32_32x32x16_bf16 v[{CN[i%2]}:{CN[i%2]+15}], v[{KAF[i%2]}:{KAF[i%2]+3}], v[{p}:{p+3}], 0")
        if 4 <= i < 12:
            h = i + 4
            ph = PQR + 4*(h % 8)
            a.e(f"ds_read_b128 v[{ph}:{ph+3}], v23 offset:{1024*(h-8)}", lg=f"pl{h}")
    def out1(i, nt):
        o = OF[i % 2]
        w = WO + 8*i + 4*nt
        cc = "0" if i == 0 else f"v[{ACC+16*nt}:{ACC+16*nt+15}]"
        a.e(f"v_mfma_f32_32x32x16_bf16 v[{ACC+16*nt}:{ACC+16*nt+15}], v[{w}:{w+3}], v[{o}:{o+3}], {cc}")
    kaf_read(0); kaf_read(1)
    num_mfma(0)
    for i in range(16):
        if i + 1 < 16:
            num_mfma(i + 1)
        c = CN[i % 2]
        a.e(f"v_add_f32 v20, s64, v{c+8}")
        a.e(f"v_rcp_f32 v20, v20")
        if i + 2 < 16:
            kaf_read(i + 2)
        for jj in range(2): a.e(f"v_mul_f32 v{c+jj}, v{c+jj}, v20")
        if i >= 1: out1(i - 1, 0)
        for jj in range(2, 7): a.e(f"v_mul_f32 v{c+jj}, v{c+jj}, v20")
        if i >= 1: out1(i - 1, 1)
        a.e(f"v_mul_f32 v{c+7}, v{c+7}, v20")
        o = OF[i % 2]
        for m in range(4):
            a.e(f"v_cvt_pk_bf16_f32 v{o+m}, v{c+2*m}, v{c+2*m+1}")
    out1(15, 0); out1(15, 1)
    stamp(a, cfg, 14)
    a.e("""
    s_cmp_lg_u32 s3, 0
    s_cbranch_scc1 L_b_norst
    s_cmp_lg_u32 s39, 0
    s_cbranch_scc1 L_b_norst
    v_mov_b32 v20, 0
    s_mov_b64 exec, 1
    global_store_dword v20, v20, s[34:35] sc1
    s_mov_b64 exec, -1
    """)
    a.label("L_b_norst")
    a.vm = []
    PB = 0
    a.e(f"""
    v_and_b32 v22, 31, v1
    s_lshl_b32 s68, s58, 5
    v_add_u32 v22, s68, v22            ; token
    v_mul_u32_u24 v22, 272, v22
    v_lshrrev_b32 v23, 5, v1
    v_lshl_add_u32 v22, v23, 4, v22    ; + hh*16
    s_mul_i32 s68, s59, {64*272}
    s_add_u32 s68, s68, {PB}
    v_add_u32 v22, s68, v22
    v_lshrrev_b32 v23, 3, v0
    v_mul_u32_u24 v24, 272, v23
    v_and_b32 v25, 7, v0
    v_lshl_add_u32 v24, v25, 5, v24
    v_add_u32 v24, {PB}, v24
    s_lshl_b32 s68, s56, 6
    v_add_u32 v23, s68, v23
    v_lshlrev_b32 v23, 11, v23
    s_lshl_b32 s68, s57, 7
    s_add_u32 s68, s68, 1024
    v_lshl_add_u32 v23, v25, 4, v23
    v_add_u32 v23, s68, v23
    s_waitcnt lgkmcnt(0)
    s_barrier
    """)
    for nt in range(2):
        for q in range(4):
            r = ACC + 16*nt + 4*q
            a.e(f"ds_write_b128 v22, v[{r}:{r+3}] offset:{nt*128 + q*32}")
    a.e("s_waitcnt lgkmcnt(0)")
    a.e("s_barrier")
    for r in range(2):
        o = r*32*272
        a.e(f"ds_read_b128 v[{32+16*r}:{35+16*r}], v24 offset:{o}")
        a.e(f"ds_read_b128 v[{36+16*r}:{39+16*r}], v24 offset:{o+16}")
        a.e(f"ds_read_b128 v[{40+16*r}:{43+16*r}], v24 offset:{o+64*272}")
        a.e(f"ds_read_b128 v[{44+16*r}:{47+16*r}], v24 offset:{o+64*272+16}")
    for r in range(2):
        a.e(f"s_waitcnt lgkmcnt({4 if r == 0 else 0})")
        b = 32 + 16*r
        for jj in range(8):
            a.e(f"v_add_f32 v{b+jj}, v{b+jj}, v{b+8+jj}")
        for m in range(4):
            a.e(f"v_cvt_pk_bf16_f32 v{64+4*r+m}, v{b+2*m}, v{b+2*m+1}")
        if r == 1: a.e(f"v_add_u32 v23, {32*2048}, v23")
        a.e(f"global_store_dwordx4 v23, v[{64+4*r}:{67+4*r}], s[32:33] {cfg.outfl}")
    stamps_out(a, cfg, 15)

TV = 240
def a_touch_setup(a, cfg):
    a.e(f"""
    s_lshr_b32 s62, s40, 1          ; tg
    s_and_b32 s63, s40, 1           ; hg
    s_lshl_b32 s64, s62, 9
    s_lshl_b32 s65, s41, 4          ; 16*jj
    s_add_u32 s64, s64, s65
    v_and_b32 v246, 15, v1
    v_lshrrev_b32 v247, 4, v1       ; 0..3
    v_add_u32 v241, s64, v246
    v_lshlrev_b32 v241, 10, v241
    v_lshl_add_u32 v241, v247, 7, v241
    v_add_u32 v241, 512, v241
    v_and_b32 v248, 3, v1
    v_lshlrev_b32 v248, 7, v248     ; line*128
    s_lshl_b32 s66, s63, 9          ; hg*512
    v_lshrrev_b32 v249, 2, v1
    v_add_u32 v240, s65, v249       ; 16jj + (l>>2)
    v_mul_u32_u24 v242, 3072, v240
    v_add3_u32 v242, v242, v248, s66
    v_add_u32 v244, 2048, v242      ; V
    v_lshlrev_b32 v245, 10, v240
    v_add3_u32 v245, v245, v248, s66
    v_and_b32 v249, 7, v249
    s_lshl_b32 s67, s41, 3
    s_add_u32 s67, s67, 256
    v_add_u32 v249, s67, v249
    v_mul_u32_u24 v243, 3072, v249
    v_add3_u32 v243, v243, v248, s66
    v_add_u32 v243, 1024, v243
    """)

def a_touch(a, cfg, plan):
    fl = cfg.touch_flags
    info = {"x1": (241, "s[26:27]"), "q": (242, "s[28:29]"), "k": (243, "s[28:29]"), "v": (244, "s[28:29]"), "o": (245, "s[30:31]")}
    for w, names in plan.items():
        L = a.newlabel("tch")
        a.e(f"s_cmp_eq_u32 s39, {w}")
        a.e(f"s_cbranch_scc0 {L}")
        for i, nm in enumerate(names):
            v, base = info[nm]
            a.e(f"global_load_dword v{250+i}, v{v}, {base} {fl}")
            a.vm.pop()
        a.label(L)

def role_A(a, cfg):
    a.label("L_roleA")
    a.e("""
    s_and_b32 s40, s3, 7
    s_lshr_b32 s41, s3, 3           ; j
    s_waitcnt lgkmcnt(0)
    """)
    if not cfg.do_A:
        if cfg.touch:
            a_touch_setup(a, cfg)
            a_touch(a, cfg, {2: ["x1"], 3: ["k"]})
            a.e("s_waitcnt vmcnt(0)")
            a_touch(a, cfg, {1: ["q"], 2: ["v"], 3: ["o"]})
            a.e("s_waitcnt vmcnt(0)")
        a.e("s_branch L_end")
        return
    import role_a
    role_a.role_A(a, cfg)

def build(cfg):
    a = Asm()
    prologue(a, cfg)
    if cfg.do_B:
        role_B(a, cfg)
    a.e("s_branch L_end")
    a.vm = []
    role_A(a, cfg)
    a.label("L_end")
    a.e("s_endpgm")
    body = a.render()
    return body, a

HEADER = open("concat_heads__ssm_conv_s4__linear_attn_block__prompt.s.ref").read().split("; Override launch")[0]

def generate(path, cfg):
    body, a = build(cfg)
    txt = wrap(body, HEADER, 512, 256, 81920)
    open(path, "w").write(txt)
    return a

if __name__ == "__main__":
    sys.modules["kern"] = sys.modules["__main__"]
    cfg = Cfg()
    cfg.stamps = True
    if len(sys.argv) > 2:
        for kv in sys.argv[2:]:
            k, v = kv.split("=")
            setattr(cfg, k, int(v) if v.isdigit() else v)
    a = generate(sys.argv[1] if len(sys.argv) > 1 else "k_b1.s", cfg)
    print("nops inserted:", a.nnops)
```

```python
from asmlib import Asm
import kern as K

UT, YT = K.UT, K.YT
UTF, YTF = K.UTF, K.YTF
TILE = 3088
SPIN = K.SPIN_LIMIT
ROWB = 528
TB = [12288, 45056]
KC = [0, 1536]
NONCE_LDS = 3072
KD = [3088, 7200]
CP = [12288, 12288 + 16640]
UR = [45568, 45568 + 7600]
YP = 0
ROWS = list(range(8)) + [128+k for k in range(8)] + [256+2*k for k in range(4)] + [384+2*k for k in range(4)] + \
       [512, 516, 640, 644, 768, 772, 896, 900] + [1024+128*k for k in range(8)] + [2048]
assert len(ROWS) == 41

def fhex(x):
    import struct
    return hex(struct.unpack("<I", struct.pack("<f", x))[0])

USE_PK = False
def cmul(a, d, x, y, t):
    if USE_PK:
        a.e(f"v_pk_mul_f32 v[{t}:{t+1}], v[{x}:{x+1}], v[{y}:{y+1}] op_sel_hi:[1,0]")
        a.e(f"v_pk_fma_f32 v[{d}:{d+1}], v[{x}:{x+1}], v[{y}:{y+1}], v[{t}:{t+1}] op_sel:[1,1,0] op_sel_hi:[0,1,1] neg_lo:[1,0,0]")
    else:
        assert d not in (x, y)
        a.e(f"v_mul_f32 v{t}, v{x}, v{y}")
        a.e(f"v_mul_f32 v{t+1}, v{x+1}, v{y}")
        a.e(f"v_fma_f32 v{d}, -v{x+1}, v{y+1}, v{t}")
        a.e(f"v_fma_f32 v{d+1}, v{x}, v{y+1}, v{t+1}")

def poll_tags_loop(a, name, loads, tagregs):
    a.e("s_mov_b32 s61, 0")
    a.label(f"L_{name}_poll")
    for l in loads: a.e(l)
    a.e("s_add_u32 s61, s61, 1")
    a.e("s_waitcnt vmcnt(0)")
    K.tag_check(a, tagregs, acc="v9")
    a.e(f"""
    s_cmp_gt_u32 s61, {SPIN}
    s_cbranch_scc1 L_{name}_go
    s_cbranch_vccz L_{name}_go
    s_sleep 1
    s_branch L_{name}_poll
    """)
    a.label(f"L_{name}_go")
    a.vm = []


(A_TW, A_TR, A_UT0, A_UT1, A_TB, A_KM, A_C0, A_C1A, A_C1B, A_C2, A_DW, A_ER0, A_ER1, A_ZU, A_ZC, A_ZG,
 A_CR, A_CW, A_UG, A_UL, A_FU, A_FY, A_FUS, A_FYS, A_VA, A_VB, A_PW, A_OR, A_YG, A_YL, A_OUT) = (
 160, 161, 162, 163, 164, 168, 172, 173, 174, 175, 176, 177, 178, 179, 180, 181,
 182, 183, 184, 185, 186, 187, 188, 189, 190, 191, 192, 193, 194, 195, 199)

def role_A(a, cfg):
    global USE_PK
    USE_PK = cfg.pk
    st = lambda i: K.stamp(a, cfg, i)
    a.c("================= role A =================")
    if cfg.prioA: a.e(f"s_setprio {cfg.prioA}")
    a.e("""
    s_lshr_b32 s47, s39, 1
    s_and_b32 s48, s39, 1           ; w2
    s_lshl_b32 s49, s40, 6          ; 64 g
    s_lshl_b32 s50, s41, 1
    s_add_u32 s50, s50, s49         ; d0 = 64g + 2j
    s_add_u32 s51, s50, s47
    s_lshl_b32 s51, s51, 8
    v_and_b32 v2, 127, v0           ; n
    v_lshl_add_u32 v5, v2, 1, s51
    v_lshrrev_b32 v3, 4, v0         ; r''
    v_and_b32 v4, 15, v0            ; c8
    s_lshl_b32 s52, s41, 6
    v_lshl_add_u32 v6, v3, 2, s52   ; t0 = 64j + 4r''
    v_lshlrev_b32 v6, 10, v6
    s_lshl_b32 s53, s49, 1
    v_lshl_add_u32 v7, v4, 3, s53
    v_add_u32 v6, v6, v7            ; u offset
    s_lshl_b32 s45, s40, 2
    s_add_u32 s45, s45, 4
    v_mov_b32 v8, s45
    s_waitcnt lgkmcnt(0)
    """)
    st(1)
    a.e("""
    v_mov_b32 v202, v6
    v_mov_b32 v203, v7
    global_load_ushort v10, v5, s[10:11]
    global_load_ushort v11, v5, s[12:13]
    global_load_ushort v12, v5, s[14:15]
    global_load_ushort v13, v5, s[16:17]
    global_load_ushort v14, v5, s[18:19]
    global_load_ushort v15, v5, s[20:21]
    s_lshl_b32 s54, s50, 1
    s_add_u32 s54, s22, s54
    s_addc_u32 s55, s23, 0
    s_load_dword s56, s[54:55], 0
    s_cmp_lg_u32 s41, 0
    s_cbranch_scc1 L_a_nopub
    s_cmp_lg_u32 s39, 0
    s_cbranch_scc1 L_a_nopub
    s_memrealtime s[58:59]
    s_waitcnt lgkmcnt(0)
    s_or_b32 s58, s58, 8
    v_mov_b32 v9, s58
    s_mov_b64 exec, 1
    global_store_dword v8, v9, s[34:35] sc1
    s_mov_b64 exec, -1
    """)
    a.label("L_a_nopub")
    a.vm = []
    a.e(f"""
    v_and_b32 v26, 15, v1
    v_lshrrev_b32 v27, 4, v1
    v_bfe_u32 v28, v1, 2, 2
    v_and_b32 v29, 3, v1
    v_and_b32 v30, 31, v1
    v_lshrrev_b32 v31, 5, v1
    v_lshlrev_b32 v32, 2, v4
    v_mul_u32_u24 v32, 144, v32
    v_lshlrev_b32 v33, 3, v3
    v_sub_u32 v33, 120, v33
    v_add_u32 v32, v32, v33
    v_add_u32 v{A_TW}, {TILE}, v32
    v_lshrrev_b32 v32, 3, v1
    s_lshl_b32 s57, s39, 5
    v_add_u32 v32, s57, v32
    v_mul_u32_u24 v33, 144, v32
    v_and_b32 v34, 7, v1
    v_lshl_add_u32 v33, v34, 4, v33
    v_add_u32 v{A_TR}, {TILE}, v33
    v_add_u32 v32, s49, v32
    v_lshlrev_b32 v32, 12, v32
    v_lshl_add_u32 v32, v34, 4, v32
    s_sub_u32 s57, 31, s41
    s_lshl_b32 s57, s57, 7
    s_add_u32 s57, s57, {UT}
    v_add_u32 v{A_UT0}, s57, v32
    v_add_u32 v{A_UT1}, 32768, v{A_UT0}
    v_add_u32 v200, 65536, v{A_UT0}
    v_add_u32 v201, 98304, v{A_UT0}
    v_lshl_add_u32 v32, v27, 3, v28
    s_lshl_b32 s59, s47, 15
    s_add_u32 s59, s59, {TB[0]}
    v_and_b32 v33, 1, v2
    v_bfe_u32 v34, v2, 2, 1
    v_lshl_add_u32 v33, v34, 1, v33
    v_lshl_add_u32 v34, v2, 8, s59
    """)
    for cp in range(4):
        a.e(f"v_xor_b32 v35, {cp}, v33")
        a.e(f"v_lshl_add_u32 v{A_TB+cp}, v35, 5, v34")
    a.e(f"""
    v_lshlrev_b32 v34, 7, v32
    v_lshl_add_u32 v34, v29, 3, v34
    v_add_u32 v34, s59, v34
    v_lshrrev_b32 v33, 1, v28
    v_and_b32 v35, 1, v27
    v_lshl_add_u32 v33, v35, 1, v33
    """)
    for t in range(4):
        a.e(f"v_xor_b32 v35, {t}, v33")
        a.e(f"v_lshl_add_u32 v{A_KM+t}, v35, 5, v34")
    a.e(f"""
    s_mul_i32 s59, s47, {KC[1]-KC[0]}
    s_add_u32 s59, s59, {KC[0]}
    v_lshrrev_b32 v33, 1, v27
    v_lshlrev_b32 v33, 7, v33
    v_lshl_add_u32 v33, v26, 3, v33
    v_and_b32 v34, 1, v27
    v_lshl_add_u32 v33, v34, 2, v33
    v_lshl_add_u32 v{A_C0}, v33, 1, s59          ; tile 0
    v_lshlrev_b32 v33, 6, v27
    v_cmp_gt_u32 vcc, 2, v27
    v_lshlrev_b32 v34, 2, v26
    v_lshlrev_b32 v35, 1, v26
    v_cndmask_b32 v34, v35, v34, vcc
    v_add_u32 v33, v33, v34
    v_add_u32 v33, 256, v33
    v_mov_b32 v34, 32
    v_mov_b32 v35, 2
    v_cndmask_b32 v34, v34, v35, vcc
    v_add_u32 v34, v33, v34
    v_lshl_add_u32 v{A_C1A}, v33, 1, s59
    v_lshl_add_u32 v{A_C1B}, v34, 1, s59
    v_lshl_add_u32 v33, v27, 6, v26
    v_add_u32 v33, 512, v33
    v_lshl_add_u32 v{A_C2}, v33, 1, s59          ; tile 2
    v_lshlrev_b32 v33, 4, v0
    v_add_u32 v{A_DW}, 16, v33
    v_mov_b32 v{A_ER0}, v33
    v_lshlrev_b32 v34, 3, v0
    v_add_u32 v{A_ER1}, 256, v34
    s_cmp_eq_u32 s39, 1
    s_cbranch_scc0 L_a_ad1
    v_lshlrev_b32 v34, 2, v0
    v_add_u32 v{A_ER0}, 512, v34
    """)
    a.label("L_a_ad1")
    a.e(f"""
    s_cmp_ge_u32 s39, 2
    s_cbranch_scc0 L_a_ad2
    v_add_u32 v34, 384, v0
    v_lshlrev_b32 v{A_ER0}, 1, v34
    """)
    a.label("L_a_ad2")
    a.e(f"""
    v_mov_b32 v{A_ZU}, v33
    v_lshrrev_b32 v34, 2, v0
    v_mul_u32_u24 v34, 4160, v34
    v_and_b32 v35, 3, v0
    v_lshl_add_u32 v{A_ZC}, v35, 4, v34
    v_mul_u32_u24 v34, {KD[1]-KD[0]}, v0
    v_add_u32 v{A_ZG}, {KD[0]}, v34
    ; copies
    v_mov_b32 v{A_CR}, v33
    v_add_u32 v{A_CW}, 64, v33
    v_lshrrev_b32 v34, 7, v0                     ; cch
    v_add_u32 v35, s50, v34
    v_lshlrev_b32 v35, 12, v35
    v_lshl_add_u32 v35, v2, 4, v35
    v_add_u32 v{A_UG}, {UT}, v35
    v_lshrrev_b32 v35, 2, v2
    v_mul_u32_u24 v35, 80, v35
    v_and_b32 v36, 3, v2
    v_lshl_add_u32 v35, v36, 4, v35
    v_mul_u32_u24 v34, {UR[1]-UR[0]}, v34
    v_add_u32 v{A_UL}, v35, v34
    v_lshrrev_b32 v34, 3, v1
    v_lshlrev_b32 v34, 7, v34
    v_and_b32 v35, 7, v1
    v_lshl_add_u32 v34, v35, 2, v34
    s_lshl_b32 s58, s40, 10
    s_add_u32 s58, s58, {UTF}
    v_add_u32 v{A_FU}, s58, v34
    v_lshrrev_b32 v34, 3, v30
    v_lshlrev_b32 v34, 7, v34
    v_lshl_add_u32 v34, v35, 2, v34
    s_lshl_b32 s58, s40, 9
    s_add_u32 s58, s58, {YTF}
    v_add_u32 v{A_FY}, s58, v34
    s_lshl_b32 s57, s41, 1
    s_add_u32 s57, s57, s48
    s_lshr_b32 s59, s57, 3
    s_lshl_b32 s59, s59, 7
    s_and_b32 s57, s57, 7
    s_lshl_b32 s57, s57, 2
    s_add_u32 s57, s57, s59
    s_lshl_b32 s59, s40, 10
    s_add_u32 s57, s57, s59
    s_add_u32 s57, s57, {UTF}
    v_mov_b32 v{A_FUS}, s57
    s_lshr_b32 s59, s41, 3
    s_lshl_b32 s59, s59, 7
    s_and_b32 s57, s41, 7
    s_lshl_b32 s57, s57, 2
    s_add_u32 s57, s57, s59
    s_add_u32 s57, s57, s58
    v_mov_b32 v{A_FYS}, s57
    v_sub_u32 v34, 3, v30
    v_and_b32 v34, 3, v34
    v_mul_u32_u24 v35, 4160, v34
    v_add_u32 v36, v30, v34
    v_add_u32 v36, 9, v36
    v_lshlrev_b32 v37, 3, v31
    v_sub_u32 v36, v36, v37
    v_lshl_add_u32 v35, v36, 1, v35
    s_mul_i32 s57, s47, {CP[1]-CP[0]}
    s_lshl_b32 s58, s48, 10
    s_add_u32 s57, s57, s58
    s_add_u32 s57, s57, {CP[0]}
    v_add_u32 v{A_VA}, s57, v35
    v_sub_u32 v35, 31, v30
    v_mul_u32_u24 v35, 80, v35
    v_lshlrev_b32 v36, 4, v31
    v_sub_u32 v35, v35, v36
    v_add_u32 v35, 16, v35
    s_mul_i32 s57, s47, {UR[1]-UR[0]}
    s_mul_i32 s58, s48, {16*80}
    s_add_u32 s57, s57, s58
    s_add_u32 s57, s57, {UR[0]}
    v_add_u32 v{A_VB}, s57, v35
    v_mul_u32_u24 v35, 144, v30
    v_lshl_add_u32 v35, v31, 4, v35
    s_mul_i32 s57, s39, {64*144}
    v_add_u32 v{A_PW}, s57, v35
    v_lshrrev_b32 v35, 2, v0
    v_mul_u32_u24 v35, 144, v35
    v_and_b32 v36, 3, v0
    v_lshl_add_u32 v{A_OR}, v36, 5, v35
    s_lshl_b32 s57, s50, 12
    s_add_u32 s57, s57, {YT}
    v_lshl_add_u32 v{A_YG}, v0, 4, s57
    v_lshlrev_b32 v35, 2, v4
    v_add_u32 v35, s49, v35
    v_lshlrev_b32 v35, 12, v35
    v_lshl_add_u32 v35, v3, 3, v35
    s_lshl_b32 s59, s41, 7
    s_add_u32 s59, s59, {YT}
    v_add_u32 v{A_YL}, s59, v35
    v_add_u32 v{A_YL+1}, 4096, v{A_YL}
    v_add_u32 v{A_YL+2}, 8192, v{A_YL}
    v_add_u32 v{A_YL+3}, 12288, v{A_YL}
    v_lshlrev_b32 v35, 1, v6
    v_sub_u32 v{A_OUT}, v35, v7
    """)
    if cfg.touch:
        K.a_touch_setup(a, cfg)
    a.e("s_waitcnt vmcnt(0) lgkmcnt(0)")
    st(2)
    a.e("""
    global_load_dwordx2 v[16:17], v202, s[8:9]
    global_load_dwordx2 v[18:19], v202, s[8:9] offset:1024
    global_load_dwordx2 v[20:21], v202, s[8:9] offset:2048
    global_load_dwordx2 v[22:23], v202, s[8:9] offset:3072
    global_load_dwordx2 v[24:25], v203, s[24:25]
    """)
    nt2 = 0; nt3 = 0
    if cfg.uttouch:
        a.e(f"""
        s_cmp_lg_u32 s39, 2
        s_cbranch_scc1 L_a_nout0
        v_add_u32 v26, s49, v1
        v_lshlrev_b32 v26, 12, v26
        s_sub_u32 s57, 31, s41
        s_lshl_b32 s57, s57, 7
        s_add_u32 s57, s57, {UT}
        v_add_u32 v26, s57, v26
        global_load_dword v255, v26, s[36:37]
        """)
        a.label("L_a_nout0")
    a.e(f"""
    s_cmp_eq_u32 s39, 3
    s_cbranch_scc0 L_a_nopt
    global_load_dword v253, v{A_FU}, s[36:37] sc1
    global_load_dword v254, v{A_FY}, s[36:37] sc1
    """)
    a.label("L_a_nopt")
    nt3 += 2
    if cfg.touch:
        K.a_touch(a, cfg, {2: ["x1"], 3: ["q47"]})
        nt2 += 1; nt3 += 1
    a.vm = []
    def a1_write():
        a.e(f"""
        s_cmp_eq_u32 s39, 2
        s_cbranch_scc1 L_a_uw2
        s_cmp_eq_u32 s39, 3
        s_cbranch_scc1 L_a_uw3
        s_waitcnt vmcnt(0)
        s_branch L_a_uwd
        """)
        a.label("L_a_uw2")
        a.e(f"s_waitcnt vmcnt({nt2})")
        a.e("s_branch L_a_uwd")
        a.label("L_a_uw3")
        a.e(f"s_waitcnt vmcnt({nt3})")
        a.label("L_a_uwd")
        a.e("""
        s_mov_b32 s57, 0x05040100
        s_mov_b32 s58, 0x07060302
        """)
        for e in range(4):
            sel = "s57" if e % 2 == 0 else "s58"
            h = e // 2
            a.e(f"v_perm_b32 v{32+2*e}, v{20+h}, v{22+h}, {sel}")
            a.e(f"v_perm_b32 v{33+2*e}, v{16+h}, v{18+h}, {sel}")
            a.e(f"ds_write_b64 v{A_TW}, v[{32+2*e}:{33+2*e}] offset:{e*144}")
    def a1_store():
        a.e("""
        s_cmp_ge_u32 s39, 2
        s_cbranch_scc1 L_a_nout
        """)
        for i in range(4):
            a.e(f"ds_read_b128 v[{224+4*i}:{227+4*i}], v{A_TR} offset:{i*8*144}")
        UTA = [A_UT0, A_UT1, 200, 201]
        for i in range(4):
            a.e(f"s_waitcnt lgkmcnt({3-i})")
            a.e(f"global_store_dwordx4 v{UTA[i]}, v[{224+4*i}:{227+4*i}], s[36:37]")
        a.e("global_load_dword v9, v8, s[34:35] sc1")
        a.label("L_a_nout")
        a.vm = []
    def ut_flag():
        a.e(f"""
        s_cmp_ge_u32 s39, 2
        s_cbranch_scc1 L_a_nofl
        s_mov_b32 s61, 0
        """)
        if cfg.dbgN: st(4)
        a.e(f"""
        s_waitcnt vmcnt(0)
        """)
        if cfg.dbgN: st(7)
        a.e(f"""
        v_readfirstlane_b32 s38, v9
        s_cmp_lg_u32 s38, 0
        s_cbranch_scc1 L_a_nok
        """)
        a.label("L_a_npoll")
        a.e(f"""
        global_load_dword v9, v8, s[34:35] sc1
        s_waitcnt vmcnt(0)
        v_readfirstlane_b32 s38, v9
        s_add_u32 s61, s61, 1
        s_cmp_gt_u32 s61, {SPIN}
        s_cbranch_scc1 L_a_nok
        s_cmp_eq_u32 s38, 0
        s_cbranch_scc1 L_a_npoll
        """)
        a.label("L_a_nok")
        if cfg.dbgN:
            st(5); K.stampval(a, cfg, 6, "s61")
        a.e(f"""
        s_getreg_b32 s57, hwreg(HW_REG_XCC_ID)
        s_and_b32 s57, s57, 7
        s_and_b32 s58, s38, 0xfffffff8
        s_or_b32 s57, s57, s58
        v_mov_b32 v9, s57
        s_mov_b64 exec, 1
        global_store_dword v{A_FUS}, v9, s[36:37]
        s_mov_b64 exec, -1
        """)
        a.label("L_a_nofl")
        a.vm = []

    LOG2E = fhex(1.4426950408889634); INV2PI = fhex(0.15915494309189535)
    a.e(f"""
    s_lshr_b32 s59, s56, 16
    s_and_b32 s60, s56, 0xffff
    s_cmp_eq_u32 s47, 0
    s_cselect_b32 s59, s60, s59
    s_lshl_b32 s59, s59, 16
    v_mov_b32 v28, s59
    v_mul_f32 v29, {LOG2E}, v28
    v_mov_b32 v30, {LOG2E}
    v_fma_f32 v30, v28, v30, -v29
    v_fmac_f32 v30, 0x32a57060, v28
    v_exp_f32 v29, v29
    v_mul_f32 v30, {fhex(0.6931471805599453)}, v30
    v_fma_f32 v29, v29, v30, v29
    v_cvt_pk_bf16_f32 v29, v29, v29
    v_lshlrev_b32 v29, 16, v29
    """)
    for i in range(6): a.e(f"v_lshlrev_b32 v{10+i}, 16, v{10+i}")
    a.e(f"""
    v_mul_f32 v10, v29, v10          ; a_re
    v_mul_f32 v11, v29, v11          ; a_im
    v_mul_f32 v12, v29, v12          ; dB_re
    v_mul_f32 v13, v29, v13          ; dB_im
    v_mul_f32 v10, {LOG2E}, v10      ; ar2
    v_mul_f32 v11, {INV2PI}, v11     ; ai2
    """)
    P = {}
    nxtp = [50]
    def pair(name):
        P[name] = nxtp[0]; nxtp[0] += 2
        return P[name]
    TMP = [28, 30]
    ti = [0]
    def mul(dn, xn, yn):
        d = P.get(dn) or pair(dn)
        t = TMP[ti[0] % 2]; ti[0] += 1
        cmul(a, d, P[xn], P[yn], t)
    pair("X0"); cmul(a, P["X0"], 14, 12, 28)
    for x in (1, 8, 128, 256, 512, 1024):
        d = pair(f"E{x}")
        if x == 1:
            a.e(f"v_exp_f32 v6, v10")
            a.e(f"v_fract_f32 v7, v11")
        else:
            a.e(f"v_mul_f32 v6, {fhex(float(x))}, v10")
            a.e(f"v_mul_f32 v7, {fhex(float(x))}, v11")
            a.e(f"v_exp_f32 v6, v6")
            a.e(f"v_fract_f32 v7, v7")
        a.e(f"v_cos_f32 v26, v7")
        a.e(f"v_sin_f32 v27, v7")
        a.e(f"v_mul_f32 v{d}, v6, v26")
        a.e(f"v_mul_f32 v{d+1}, v6, v27")
    if cfg.dbgT: st(4)
    OUT = [120, 128]
    oc = [0]
    def put_chunk(q, names, neg):
        o = OUT[oc[0] % 2]; oc[0] += 1
        sg = "-" if neg else ""
        for m in range(4):
            x, y = P[names[2*m]], P[names[2*m+1]]
            a.e(f"v_cvt_pk_bf16_f32 v{o+m}, v{x}, v{y}")
            a.e(f"v_cvt_pk_bf16_f32 v{o+4+m}, {sg}v{x+1}, {sg}v{y+1}")
        ad = A_TB + (q >> 1)
        a.e(f"ds_write_b128 v{ad}, v[{o}:{o+3}] offset:{(q & 1)*16}")
        a.e(f"ds_write_b128 v{ad}, v[{o+4}:{o+7}] offset:{128 + (q & 1)*16}")
    pair("ONE")
    a.e(f"v_mov_b32 v{P['ONE']}, 1.0")
    a.e(f"v_mov_b32 v{P['ONE']+1}, 0")
    for k in range(8): pair(f"S{k}")
    for k in range(1, 8):
        mul(f"X{k}", f"X{k-1}", "E1")
    put_chunk(0, [f"X{k}" for k in range(8)], True)
    P["Y8"] = P["E8"]
    mul("Y16", "Y8", "Y8"); mul("Y24", "Y16", "Y8"); mul("Y32", "Y16", "Y16")
    mul("Y40", "Y32", "Y8"); mul("Y48", "Y32", "Y16"); mul("Y56", "Y32", "Y24")
    put_chunk(6, ["ONE", "Y8", "Y16", "Y24", "Y32", "Y40", "Y48", "Y56"], False)
    if cfg.dbgT: st(6)
    mul("S0", "Y32", "Y32")
    for jj in range(1, 8): mul(f"S{jj}", "S0", f"Y{8*jj}")
    put_chunk(7, [f"S{k}" for k in range(8)], False)
    for k in range(8): mul(f"S{k}", f"X{k}", "E128")
    put_chunk(1, [f"S{k}" for k in range(8)], True)
    for i_, k in enumerate((0, 2, 4, 6)):
        mul(f"S{i_}", f"X{k}", "E256")
    for i_ in range(4):
        mul(f"S{4+i_}", f"S{i_}", "E128")
    put_chunk(2, [f"S{k}" for k in range(8)], True)
    mul("S0", "X0", "E512"); mul("S1", "X4", "E512")
    for i_ in range(2, 8): mul(f"S{i_}", f"S{i_-2}", "E128")
    put_chunk(3, [f"S{k}" for k in range(8)], True)
    mul("S0", "X0", "E1024")
    for i_ in range(1, 8): mul(f"S{i_}", f"S{i_-1}", "E128")
    pair("XL"); mul("XL", "S0", "E1024")
    put_chunk(4, [f"S{k}" for k in range(8)], True)
    a.e(f"v_cvt_pk_bf16_f32 v120, v{P['XL']}, -v{P['XL']+1}")
    a.e(f"ds_write_b16 v{A_TB+2}, v120 offset:16")
    a.e(f"ds_write_b16_d16_hi v{A_TB+2}, v120 offset:{128+16}")
    assert nxtp[0] <= 120, nxtp
    a1_write()
    if cfg.dbgT: st(7)
    a.e("s_waitcnt lgkmcnt(0)")
    if cfg.dbgT: st(8)
    a.e("s_barrier")
    st(3)
    a1_store()
    if cfg.touch:
        K.a_touch(a, cfg, {2: ["k"]})
    YF, XF, D0 = 32, 64, 128
    def trfrag(dst, addr, s):
        a.e(f"ds_read_b64_tr_b16 v[{dst}:{dst+1}], v{addr} offset:{s*4096}")
        a.e(f"ds_read_b64_tr_b16 v[{dst+2}:{dst+3}], v{addr} offset:{s*4096 + 512}")
    a.e("""
    s_cmp_eq_u32 s48, 0
    s_cbranch_scc0 L_a_k2
    """)
    a.lg = []
    for s in range(8):
        trfrag(YF+4*s, A_KM+3, s)
        for t in range(2): trfrag(XF+32*t+4*s, A_KM+t, s)
    for s in range(8):
        a.e(f"s_waitcnt lgkmcnt({min(15, 6*(7-s))})")
        for t in range(2):
            c = "0" if s == 0 else f"v[{D0+4*t}:{D0+4*t+3}]"
            a.e(f"v_mfma_f32_16x16x32_bf16 v[{D0+4*t}:{D0+4*t+3}], v[{XF+32*t+4*s}:{XF+32*t+4*s+3}], v[{YF+4*s}:{YF+4*s+3}], {c}")
    a.e(f"""
    v_cvt_pk_bf16_f32 v136, v{D0}, v{D0+1}
    v_cvt_pk_bf16_f32 v137, v{D0+2}, v{D0+3}
    v_cvt_pk_bf16_f32 v138, v{D0+4}, v{D0+5}
    v_cvt_pk_bf16_f32 v139, v{D0+6}, v{D0+7}
    ds_write_b64 v{A_C0}, v[136:137]
    ds_write_b32 v{A_C1A}, v138
    ds_write_b32 v{A_C1B}, v139
    s_branch L_a_kdone
    """)
    a.label("L_a_k2")
    for s in range(8):
        trfrag(YF+4*s, A_KM+3, s)
        trfrag(XF+4*s, A_KM+2, s)
    for s in range(8):
        a.e(f"s_waitcnt lgkmcnt({min(15, 4*(7-s))})")
        c = "0" if s == 0 else f"v[{D0}:{D0+3}]"
        a.e(f"v_mfma_f32_16x16x32_bf16 v[{D0}:{D0+3}], v[{XF+4*s}:{XF+4*s+3}], v[{YF+4*s}:{YF+4*s+3}], {c}")
    a.e(f"""
    v_cvt_pk_bf16_f32 v136, v{D0}, v{D0+1}
    v_cvt_pk_bf16_f32 v137, v{D0+2}, v{D0+3}
    ds_write_b16 v{A_C2}, v136
    ds_write_b16_d16_hi v{A_C2}, v136 offset:32
    ds_write_b16 v{A_C2}, v137 offset:64
    ds_write_b16_d16_hi v{A_C2}, v137 offset:96
    """)
    a.label("L_a_kdone")
    ut_flag()
    if cfg.touch:
        K.a_touch(a, cfg, {3: ["v"]})
    a.e(f"""
    s_mov_b32 s57, 0x01000100
    s_mov_b32 s58, 0x03020302
    s_mov_b32 s59, 0x05040302
    s_mov_b32 s63, 0x05040100
    v_mov_b32 v48, 0
    v_mov_b32 v49, 0
    v_mov_b32 v50, 0
    v_mov_b32 v51, 0
    s_waitcnt lgkmcnt(0)
    s_barrier
    """)
    a.lg = []
    if not (cfg.dbgT or cfg.dbgY or cfg.dbgN): st(4)
    a.e("""
    s_cmp_eq_u32 s39, 0
    s_cbranch_scc1 L_a_e0
    s_cmp_eq_u32 s39, 1
    s_cbranch_scc1 L_a_e2
    """)
    for c in range(2):
        a.e(f"ds_read_u16 v{32+2*c}, v{A_ER0} offset:{KC[c]}")
        a.e(f"ds_read_u16 v{33+2*c}, v{A_ER0} offset:{KC[c]+2}")
    a.e(f"""
    v_and_b32 v28, 1, v0
    v_cmp_eq_u32 vcc, 0, v28
    s_waitcnt lgkmcnt(0)
    """)
    for c in range(2):
        c0, c1 = 32+2*c, 33+2*c
        o = 40 + 4*c
        a.e(f"v_perm_b32 v{o}, v{c1}, v{c0}, s57")
        a.e(f"v_perm_b32 v{o+3}, v{c0}, v{c1}, s57")
        a.e(f"v_perm_b32 v{o+2}, v{c1}, v{c0}, s63")
        a.e(f"v_mov_b32 v{o+1}, v{o}")
        a.e(f"v_cndmask_b32 v{o+2}, v{o+3}, v{o+2}, vcc")
    a.e("s_branch L_a_ew")
    a.label("L_a_e2")
    for c in range(2):
        a.e(f"ds_read_b32 v{32+2*c}, v{A_ER0} offset:{KC[c]}")
        a.e(f"ds_read_b32 v{33+2*c}, v{A_ER0} offset:{KC[c]+4}")
    a.e("s_waitcnt lgkmcnt(0)")
    for c in range(2):
        A_, B_ = 32+2*c, 33+2*c
        o = 40 + 4*c
        a.e(f"v_perm_b32 v{o}, v{A_}, v{A_}, s57")
        a.e(f"v_mov_b32 v{o+1}, v{A_}")
        a.e(f"v_perm_b32 v{o+2}, v{A_}, v{A_}, s58")
        a.e(f"v_perm_b32 v{o+3}, v{B_}, v{B_}, s57")
    a.e("s_branch L_a_ew")
    a.label("L_a_e0")
    for c in range(2):
        a.e(f"ds_read_b128 v[{40+4*c}:{43+4*c}], v{A_ER0} offset:{KC[c]}")
        a.e(f"ds_read_b64 v[{32+4*c}:{33+4*c}], v{A_ER1} offset:{KC[c]}")
        a.e(f"ds_read_b32 v{34+4*c}, v{A_ER1} offset:{KC[c]+8}")
    a.e("""
    v_cmp_le_u32 vcc, 32, v0
    s_waitcnt lgkmcnt(0)
    """)
    for c in range(2):
        A_, B_, C_ = 32+4*c, 33+4*c, 34+4*c
        o = 40 + 4*c
        a.e(f"v_perm_b32 v52, v{A_}, v{A_}, s57")
        a.e(f"v_perm_b32 v53, v{B_}, v{A_}, s59")
        a.e(f"v_perm_b32 v54, v{B_}, v{B_}, s57")
        a.e(f"v_perm_b32 v55, v{C_}, v{B_}, s59")
        for q in range(4):
            a.e(f"v_cndmask_b32 v{o+q}, v{o+q}, v{52+q}, vcc")
    a.label("L_a_ew")
    for c in range(2):
        a.e(f"ds_write_b128 v{A_DW}, v[{40+4*c}:{43+4*c}] offset:{KD[c]}")
    a.e(f"""
    v_cmp_gt_u32 vcc, 160, v0
    s_and_b64 exec, exec, vcc
    ds_write_b128 v{A_ZU}, v[48:51] offset:{UR[0] + 64*80}
    ds_write_b128 v{A_ZU}, v[48:51] offset:{UR[1] + 64*80}
    v_cmp_gt_u32 vcc, 32, v0
    s_and_b64 exec, exec, vcc
    ds_write_b128 v{A_ZC}, v[48:51] offset:{CP[0]}
    v_cmp_gt_u32 vcc, 2, v0
    s_and_b64 exec, exec, vcc
    ds_write_b128 v{A_ZG}, v[48:51]
    s_mov_b64 exec, -1
    """)
    a.e(f"""
    s_cmp_lg_u32 s39, 0
    s_cbranch_scc1 L_a_uf1
    global_load_dword v30, v{A_FU}, s[36:37] sc1
    s_and_b32 s58, s38, 0xfffffff8
    s_getreg_b32 s57, hwreg(HW_REG_XCC_ID)
    s_and_b32 s57, s57, 7
    s_or_b32 s59, s57, s58
    s_waitcnt vmcnt(0)
    v_cmp_ne_u32 vcc, s59, v30
    s_cmp_eq_u64 vcc, 0
    s_cselect_b32 s57, 1, 0
    v_mov_b32 v31, s57
    v_mov_b32 v30, 0
    ds_write_b32 v30, v31 offset:{NONCE_LDS+8}
    ds_write_b32 v30, v31 offset:{NONCE_LDS+4}
    """)
    a.label("L_a_uf1")
    a.e("""
    s_waitcnt lgkmcnt(0)
    s_barrier
    """)
    a.e(f"""
    v_mov_b32 v30, 0
    ds_read_b32 v31, v30 offset:{NONCE_LDS+8}
    s_waitcnt lgkmcnt(0)
    v_readfirstlane_b32 s44, v31
    s_cmp_eq_u32 s44, 0
    s_cbranch_scc1 L_a_ul0
    global_load_dwordx4 v[208:211], v{A_UG}, s[36:37] sc1
    global_load_dwordx4 v[212:215], v{A_UG}, s[36:37] offset:2048 sc1
    """)
    a.label("L_a_ul0")
    a.vm = []
    if not (cfg.dbgT or cfg.dbgY or cfg.dbgN): st(5)
    for c in range(2):
        b = 32 + 16*c
        a.e(f"ds_read_b64 v[{b}:{b+1}], v{A_CR} offset:{KD[c] + 8}")
        a.e(f"ds_read_b128 v[{b+4}:{b+7}], v{A_CR} offset:{KD[c] + 16}")
    for c in range(2):
        a.e(f"s_waitcnt lgkmcnt({2 - 2*c})" if c == 0 else "s_waitcnt lgkmcnt(4)")
        b = 32 + 16*c
        n0, n1, n2, n3, n4, n5 = b, b+1, b+4, b+5, b+6, b+7
        m = b + 8
        t1 = 96 + 8*c
        base = CP[c]
        a.e(f"ds_write_b128 v{A_CW}, v[{n2}:{n5}] offset:{base}")
        a.e(f"v_alignbit_b32 v{m}, v{n1}, v{n0}, 16")
        for q, (hi, lo) in enumerate(((n2, n1), (n3, n2), (n4, n3))):
            a.e(f"v_alignbit_b32 v{m+1+q}, v{hi}, v{lo}, 16")
        a.e(f"ds_write_b128 v{A_CW}, v[{m}:{m+3}] offset:{base + 3*4160}")
        for q, (hi, lo) in enumerate(((n2, n1), (n3, n2), (n4, n3), (n5, n4))):
            a.e(f"v_alignbit_b32 v{t1+q}, v{hi}, v{lo}, 16")
        a.e(f"ds_write_b128 v{A_CW}, v[{t1}:{t1+3}] offset:{base + 4160}")
        for q, r in enumerate((n1, n2, n3, n4)): a.e(f"v_mov_b32 v{t1+4+q}, v{r}")
        a.e(f"ds_write_b128 v{A_CW}, v[{t1+4}:{t1+7}] offset:{base + 2*4160}")
    if not (cfg.dbgT or cfg.dbgY or cfg.dbgN): st(6)
    a.e(f"""
    s_cmp_lg_u32 s44, 0
    s_cbranch_scc1 L_a_fast
    s_cmp_ge_u32 s39, 2
    s_cbranch_scc1 L_a_utf_go
    s_and_b32 s58, s38, 0xfffffff8
    s_getreg_b32 s57, hwreg(HW_REG_XCC_ID)
    s_and_b32 s57, s57, 7
    s_or_b32 s59, s57, s58
    s_mov_b32 s61, 0
    v_add_u32 v28, 8192, v{A_FU}
    """)
    a.label("L_a_utf_poll")
    a.e(f"""
    global_load_dword v30, v{A_FU}, s[36:37] sc1
    global_load_dword v31, v28, s[36:37] sc1
    s_add_u32 s61, s61, 1
    s_waitcnt vmcnt(0)
    v_cmp_ne_u32 vcc, s59, v30
    s_cmp_eq_u64 vcc, 0
    s_cbranch_scc1 L_a_utf_local
    v_cmp_ne_u32 s[64:65], s58, v31
    s_and_b64 vcc, vcc, s[64:65]
    s_cbranch_vccz L_a_utf_glob
    s_cmp_eq_u32 s61, {cfg.ut_patience}
    s_cbranch_scc0 L_a_utf_again
    s_mov_b32 s60, 0
    """)
    a.label("L_a_utf_pub")
    a.e(f"""
    global_store_dwordx4 v{A_UT0}, v[224:227], s[36:37] sc1
    global_store_dwordx4 v{A_UT1}, v[228:231], s[36:37] sc1
    global_store_dwordx4 v200, v[232:235], s[36:37] sc1
    global_store_dwordx4 v201, v[236:239], s[36:37] sc1
    s_waitcnt vmcnt(0)
    v_add_u32 v29, 8192, v{A_FUS}
    v_mov_b32 v30, s58
    s_mov_b64 exec, 1
    global_store_dword v29, v30, s[36:37] sc1
    s_mov_b64 exec, -1
    s_cmp_lg_u32 s60, 0
    s_cbranch_scc1 L_a_utf_glob2
    """)
    a.label("L_a_utf_again")
    a.e(f"""
    s_cmp_gt_u32 s61, {SPIN}
    s_cbranch_scc1 L_a_utf_glob2
    s_sleep {cfg.sl_ut}
    s_branch L_a_utf_poll
    """)
    a.label("L_a_utf_local")
    a.e("s_mov_b32 s57, 1")
    a.e("s_branch L_a_utf_ok")
    a.label("L_a_utf_glob")
    a.e(f"""
    s_mov_b32 s60, 1
    s_cmp_lt_u32 s61, {cfg.ut_patience}
    s_cbranch_scc1 L_a_utf_pub
    s_cmp_eq_u32 s61, {cfg.ut_patience}
    s_cbranch_scc1 L_a_utf_pub
    """)
    a.label("L_a_utf_glob2")
    a.e("s_mov_b32 s57, 0")
    a.label("L_a_utf_ok")
    a.e(f"""
    v_mov_b32 v31, s57
    v_mov_b32 v30, 0
    ds_write_b32 v30, v31 offset:{NONCE_LDS+4}
    """)
    a.label("L_a_utf_go")
    a.e(f"""
    s_waitcnt lgkmcnt(0)
    s_barrier
    global_load_dwordx4 v[208:211], v{A_UG}, s[36:37] sc1
    global_load_dwordx4 v[212:215], v{A_UG}, s[36:37] offset:2048 sc1
    """)
    a.label("L_a_fast")
    a.e(f"""
    v_mov_b32 v30, 0
    ds_read_b32 v31, v30 offset:{NONCE_LDS+4}
    """)
    for e in range(4):
        h, hi = e // 2, e % 2
        a.e(f"v_{'and_b32' if hi else 'lshlrev_b32'} v{80+e}, {'0xffff0000' if hi else '16'}, v{24+h}")
    for rho in range(4):
        for e in range(4):
            h, hi = e // 2, e % 2
            a.e(f"v_{'and_b32' if hi else 'lshlrev_b32'} v{96+4*rho+e}, {'0xffff0000' if hi else '16'}, v{16+2*rho+h}")
            a.e(f"v_mul_f32 v{96+4*rho+e}, v{96+4*rho+e}, v{80+e}")
        for h in range(2):
            a.e(f"v_cvt_pk_bf16_f32 v{84+h}, v{96+4*rho+2*h}, v{96+4*rho+2*h+1}")
        for h in range(2):
            a.e(f"v_lshlrev_b32 v{96+4*rho+2*h}, 16, v{84+h}")
            a.e(f"v_and_b32 v{96+4*rho+2*h+1}, 0xffff0000, v{84+h}")
    a.e("s_waitcnt vmcnt(0) lgkmcnt(0)")
    a.e("v_readfirstlane_b32 s46, v31")
    if cfg.yglobal: a.e("s_mov_b32 s46, 0")
    a.vm = []
    if not (cfg.dbgT or cfg.dbgY or cfg.dbgN): st(7)
    a.e(f"""
    ds_write_b128 v{A_UL}, v[208:211] offset:{UR[0]}
    ds_write_b128 v{A_UL}, v[212:215] offset:{UR[0] + 32*80}
    s_waitcnt lgkmcnt(0)
    s_barrier
    """)
    if not (cfg.dbgT or cfg.dbgY or cfg.dbgN): st(8)
    a.e(f"s_setprio {cfg.prioA2}")
    if cfg.touch:
        K.a_touch(a, cfg, {3: ["o"]})
    if cfg.ytouch:
        a.e(f"""
        s_cmp_lg_u32 s39, 2
        s_cbranch_scc1 L_a_noyt
        s_lshl_b32 s57, s50, 12
        s_add_u32 s57, s57, {YT}
        v_lshl_add_u32 v28, v1, 7, s57
        global_load_dword v252, v28, s[36:37]
        """)
        a.label("L_a_noyt")
    ACC0, ACC1 = 128, 144
    NB = 3
    FR = [32 + 16*i for i in range(NB)]
    steps = [(dl, hf) for dl in range(16) for hf in range(2)]
    def rd(i):
        dl, hf = steps[i]
        f = FR[i % NB]
        ao = 64*dl + 32*(1-hf)
        bo = 80*dl + 32*(1-hf)
        t = f"cv{i}"
        return [(f"ds_read_b64 v[{f}:{f+1}], v{A_VA} offset:{ao}", t),
                (f"ds_read_b64 v[{f+2}:{f+3}], v{A_VA} offset:{ao+8}", t),
                (f"ds_read_b128 v[{f+8}:{f+11}], v{A_VB} offset:{bo+2560}", t),
                (f"ds_read_b128 v[{f+12}:{f+15}], v{A_VB} offset:{bo}", t),
                (f"ds_read_b64 v[{f+4}:{f+5}], v{A_VA} offset:{ao+2048}", t),
                (f"ds_read_b64 v[{f+6}:{f+7}], v{A_VA} offset:{ao+2056}", t)]
    a.lg = []
    for i in (0, 1):
        for t, tg in rd(i): a.e(t, lg=tg)
    for i in range(32):
        f = FR[i % NB]
        a.wait_lg(f"cv{i}")
        c0 = "0" if i == 0 else f"v[{ACC0}:{ACC0+15}]"
        c1 = "0" if i == 0 else f"v[{ACC1}:{ACC1+15}]"
        R = rd(i + 2) if i + 2 < 32 else []
        a.e(f"v_mfma_f32_32x32x16_bf16 v[{ACC0}:{ACC0+15}], v[{f}:{f+3}], v[{f+8}:{f+11}], {c0}")
        for t, tg in R[0:2]: a.e(t, lg=tg)
        a.e(f"v_mfma_f32_32x32x16_bf16 v[{ACC1}:{ACC1+15}], v[{f}:{f+3}], v[{f+12}:{f+15}], {c1}")
        for t, tg in R[2:4]: a.e(t, lg=tg)
        a.e(f"v_mfma_f32_32x32x16_bf16 v[{ACC1}:{ACC1+15}], v[{f+4}:{f+7}], v[{f+8}:{f+11}], v[{ACC1}:{ACC1+15}]")
        for t, tg in R[4:6]: a.e(t, lg=tg)
    st(9)
    if cfg.utclean == 2:
        a.e(f"""
        s_cmp_ge_u32 s39, 2
        s_cbranch_scc1 L_a_nocl2
        global_store_dwordx4 v{A_UT0}, v[224:227], s[36:37] sc1
        global_store_dwordx4 v{A_UT1}, v[228:231], s[36:37] sc1
        global_store_dwordx4 v200, v[232:235], s[36:37] sc1
        global_store_dwordx4 v201, v[236:239], s[36:37] sc1
        s_nop 1
        """)
        a.label("L_a_nocl2")
    a.e(f"s_setprio {cfg.prioA3}")
    a.e("""
    s_waitcnt vmcnt(0) lgkmcnt(0)
    s_barrier
    """)
    for tau, acc in ((0, ACC0), (1, ACC1)):
        for q in range(4):
            a.e(f"ds_write_b128 v{A_PW}, v[{acc+4*q}:{acc+4*q+3}] offset:{YP + tau*32*144 + q*32}")
    a.e("""
    s_waitcnt lgkmcnt(0)
    s_barrier
    """)
    for c in range(2):
        o = YP + (c*2)*64*144
        b = 32 + 16*c
        a.e(f"ds_read_b128 v[{b}:{b+3}], v{A_OR} offset:{o}")
        a.e(f"ds_read_b128 v[{b+8}:{b+11}], v{A_OR} offset:{o + 64*144}")
        a.e(f"ds_read_b128 v[{b+4}:{b+7}], v{A_OR} offset:{o + 16}")
        a.e(f"ds_read_b128 v[{b+12}:{b+15}], v{A_OR} offset:{o + 64*144 + 16}")
    for c in range(2):
        a.e(f"s_waitcnt lgkmcnt({4-4*c})")
        b = 32 + 16*c
        for q in range(8): a.e(f"v_add_f32 v{b+q}, v{b+q}, v{b+8+q}")
        for m in range(4): a.e(f"v_cvt_pk_bf16_f32 v{64+4*c+m}, v{b+2*m}, v{b+2*m+1}")
    a.e(f"""
    v_add_u32 v29, 4096, v{A_YG}
    s_cmp_eq_u32 s46, 0
    s_cbranch_scc1 L_a_yg
    global_store_dwordx4 v{A_YG}, v[64:67], s[36:37]
    global_store_dwordx4 v29, v[68:71], s[36:37]
    s_branch L_a_yd
    """)
    a.label("L_a_yg")
    a.e(f"""
    global_store_dwordx4 v{A_YG}, v[64:67], s[36:37] sc1
    global_store_dwordx4 v29, v[68:71], s[36:37] sc1
    """)
    a.label("L_a_yd")
    a.e(f"""
    s_waitcnt vmcnt(0)
    s_barrier
    """)
    st(10)
    a.e(f"""
    s_cmp_lg_u32 s39, 1
    s_cbranch_scc1 L_a_ytf_go
    v_mov_b32 v28, s38
    s_mov_b64 exec, 1
    s_cmp_eq_u32 s46, 0
    s_cbranch_scc1 L_a_yfg
    global_store_dword v{A_FYS}, v28, s[36:37]
    s_branch L_a_yfd
    """)
    a.label("L_a_yfg")
    a.e(f"global_store_dword v{A_FYS}, v28, s[36:37] sc1")
    a.label("L_a_yfd")
    a.e("s_mov_b64 exec, -1")
    if cfg.dbgY: st(4)
    a.e("s_mov_b32 s61, 0")
    a.label("L_a_ytf_poll")
    a.e(f"""
    global_load_dword v29, v{A_FY}, s[36:37] sc1
    s_add_u32 s61, s61, 1
    s_waitcnt vmcnt(0)
    v_cmp_ne_u32 vcc, s38, v29
    s_cmp_gt_u32 s61, {SPIN}
    s_cbranch_scc1 L_a_ytf_go
    s_cbranch_vccz L_a_ytf_go
    s_sleep {cfg.sl_yt}
    s_branch L_a_ytf_poll
    """)
    a.label("L_a_ytf_go")
    if cfg.dbgY:
        st(5); K.stampval(a, cfg, 7, "s61")
    a.e("s_barrier")
    if cfg.dbgY: st(6)
    a.e(f"""
    global_load_dwordx2 v[64:65], v{A_YL}, s[36:37] sc1
    global_load_dwordx2 v[66:67], v{A_YL+1}, s[36:37] sc1
    global_load_dwordx2 v[68:69], v{A_YL+2}, s[36:37] sc1
    global_load_dwordx2 v[70:71], v{A_YL+3}, s[36:37] sc1
    s_waitcnt vmcnt(0)
    """)
    st(11)
    for rho in range(4):
        m, hi = rho // 2, rho % 2
        for e in range(4):
            src = 64 + 2*e + m
            a.e(f"v_{'and_b32' if hi else 'lshlrev_b32'} v{84+e}, {'0xffff0000' if hi else '16'}, v{src}")
        for e in range(4):
            a.e(f"v_add_f32 v{84+e}, v{84+e}, v{96+4*rho+e}")
        a.e(f"v_cvt_pk_bf16_f32 v{88+2*rho}, v84, v85")
        a.e(f"v_cvt_pk_bf16_f32 v{89+2*rho}, v86, v87")
        if rho == 2: a.e(f"v_add_u32 v{A_OUT}, 4096, v{A_OUT}")
        a.e(f"global_store_dwordx2 v{A_OUT}, v[{88+2*rho}:{89+2*rho}], s[32:33] offset:{2048*(rho % 2)} {cfg.outfl}")
    if cfg.utclean == 1:
        a.e(f"""
        s_cmp_ge_u32 s39, 2
        s_cbranch_scc1 L_a_nocl
        global_store_dwordx4 v{A_UT0}, v[224:227], s[36:37] sc1
        global_store_dwordx4 v{A_UT1}, v[228:231], s[36:37] sc1
        global_store_dwordx4 v200, v[232:235], s[36:37] sc1
        global_store_dwordx4 v201, v[236:239], s[36:37] sc1
        s_nop 1
        """)
        a.label("L_a_nocl")
    a.e("""
    s_cmp_lg_u32 s41, 0
    s_cbranch_scc1 L_a_norst
    s_cmp_lg_u32 s39, 1
    s_cbranch_scc1 L_a_norst
    v_mov_b32 v8, s45
    v_mov_b32 v9, 0
    s_mov_b64 exec, 1
    global_store_dword v8, v9, s[34:35] sc1
    s_mov_b64 exec, -1
    """)
    a.label("L_a_norst")
    st(12)
    K.stampval(a, cfg, 13, "s46")
    K.stamps_out(a, cfg, 14)
```

```python
import sys
from asmlib import Asm, wrap

UT   = 0
YT   = 4 << 20
PQ   = 8 << 20
PQF  = 10 << 20
KVP  = (10 << 20) + (64 << 10)
KVF  = 12 << 20
UTF  = (12 << 20) + (64 << 10)
YTF  = (12 << 20) + (96 << 10)
KVBLK = 2176
LOG2E = 0x3fb8aa3b
EPS   = 0x358637bd
SPIN_LIMIT = 200000

class Cfg:
    do_A = True
    do_B = True
    do_B2 = True
    touch = True
    dual = False
    x_nowrite = False
    prioA = 0
    prioA2 = 0
    dbgT = 0
    sl_kz = 1
    sl_pq = 1
    sl_red = 1
    sl_yt = 1
    sl_ut = 1
    late_o = 1
    yglobal = 0
    utclean = 0
    outfl = ""
    uttouch = 1
    ninit = 6
    dbgN = 0
    ut_patience = 200
    flagpos = 0
    ytouch = 1
    dbgY = 0
    prioA3 = 0
    prioB = 0
    pk = False
    b_exit = False
    touch_flags = ""
    early_release = True
    dma_early = False
    last_dma = 40
    late_pre = 0
    touch_mode = "late"
    stamps = False

STAMP_BASE = 14 << 20
def stamp(a, cfg, i):
    if cfg.stamps:
        a.e(f"s_memtime s[{70+2*i}:{71+2*i}]")
def stampval(a, cfg, i, sreg):
    if cfg.stamps:
        a.e("s_waitcnt lgkmcnt(0)")
        a.e(f"s_add_u32 s{70+2*i}, {sreg}, s70")
def stamps_out(a, cfg, n, vt=22):
    if not cfg.stamps: return
    a.e("s_memrealtime s[68:69]")
    a.e("s_waitcnt lgkmcnt(0) vmcnt(0)")
    a.vm = []
    for i in range(1, n):
        a.e(f"s_sub_u32 s{70+2*i}, s{70+2*i}, s70")
    a.e(f"""
    s_lshl_b32 s61, s2, 2
    s_add_u32 s61, s61, s39
    s_lshl_b32 s61, s61, 6
    s_add_u32 s61, s61, {STAMP_BASE}
    v_mov_b32 v{vt}, s61
    s_mov_b64 exec, 1
    """)
    for i in range(16):
        src = f"s{70+2*i}" if (0 < i < n) else ("s68" if i == 15 else ("s100" if i == 0 else "0"))
        a.e(f"v_mov_b32 v{vt+1}, {src}")
        a.e(f"global_store_dword v{vt}, v{vt+1}, s[36:37] offset:{4*i}")
        a.e("s_nop 1")
    a.e("s_waitcnt vmcnt(0)")
    a.e("s_mov_b64 exec, -1")
    a.vm = []

def prologue(a, cfg):
    if cfg.stamps:
        a.e("s_memrealtime s[100:101]")
        a.e("s_memtime s[70:71]")
    a.e("""
    s_cmp_ge_u32 s2, 512
    s_cbranch_scc1 L_end
    s_load_dwordx16 s[8:23], s[0:1], 0
    s_load_dwordx8 s[24:31], s[0:1], 64
    s_load_dwordx4 s[32:35], s[0:1], 96
    s_load_dwordx2 s[36:37], s[0:1], 112
    v_lshrrev_b32 v1, 6, v0
    v_readfirstlane_b32 s39, v1
    v_and_b32 v1, 63, v0
    s_and_b32 s3, s2, 255
    s_cmp_lt_u32 s2, 256
    s_cbranch_scc1 L_roleA
    """)

def poll_nonce(a, vtmp, vaddr0, first_tag=None):
    L = a.newlabel("nonce"); Lx = a.newlabel("nonce_ok")
    if first_tag:
        a.wait_vm(first_tag)
    else:
        a.e(f"global_load_dword {vtmp}, {vaddr0}, s[34:35] sc1")
        a.wait_vm_all()
    a.e(f"v_readfirstlane_b32 s38, {vtmp}")
    a.e(f"""
    s_cmp_lg_u32 s38, 0
    s_cbranch_scc1 {Lx}
    s_mov_b32 s61, 0
    """)
    a.label(L)
    a.e(f"""
    global_load_dword {vtmp}, {vaddr0}, s[34:35] sc1
    s_waitcnt vmcnt(0)
    v_readfirstlane_b32 s38, {vtmp}
    s_add_u32 s61, s61, 1
    s_cmp_gt_u32 s61, {SPIN_LIMIT}
    s_cbranch_scc1 {Lx}
    s_cmp_eq_u32 s38, 0
    s_cbranch_scc1 {L}
    """)
    a.vm.pop()
    a.label(Lx)

def phi_instrs(acc, tmp, out, zsum=None):
    L = []
    for i in range(16):
        L.append(f"v_mul_f32 v{tmp+i}, s62, v{acc+i}")
    for i in range(16):
        L.append(f"v_exp_f32 v{tmp+i}, v{tmp+i} clamp")
        L.append(f"v_max_f32 v{acc+i}, s64, v{acc+i}")
    for i in range(16):
        L.append(f"v_add_f32 v{acc+i}, v{acc+i}, v{tmp+i}")
    if zsum is not None:
        for m in range(8):
            L.append(f"v_add_f32 v{tmp+m}, v{acc+2*m}, v{acc+2*m+1}")
        for m in range(4):
            L.append(f"v_add_f32 v{tmp+m}, v{tmp+m}, v{tmp+4+m}")
        L.append(f"v_add_f32 v{tmp}, v{tmp}, v{tmp+2}")
        L.append(f"v_add_f32 v{tmp+1}, v{tmp+1}, v{tmp+3}")
        L.append(f"v_add_f32 v{zsum}, v{tmp}, v{tmp+1}")
    for m in range(8):
        L.append(f"v_cvt_pk_bf16_f32 v{out+m}, v{acc+2*m}, v{acc+2*m+1}")
    return L

def spread(side, nslots):
    out = []; n = len(side); k = 0
    for i in range(nslots):
        e = (n*(i+1))//nslots
        out.append(side[k:e]); k = e
    return out

SEQ = []
for c in range(8): SEQ += [("X", c), ("K", c)]
SEQ += [("Q", c) for c in range(8)] + [("V", c) for c in range(8)] + [("O", c) for c in range(8)]
NSLOT = 10
NINIT = 6
XR = 128
WF, T16, ACCQ, ACCK, ACCV = 32, 64, 80, 96, 112

def b_issue_jobs(n):
    kind, c = SEQ[n]
    pos = n % NSLOT
    pre = []
    if kind == "X":
        so, v0, srd = f"s{16+c}", 2, "s[40:43]"
    elif kind in "QKV":
        so, v0, srd = f"s{8+c}", 4, "s[44:47]"
        if kind == "Q" and c == 0:
            pre = [("v_subrev_u32 v4, 1024, v4", None), ("v_subrev_u32 v5, 1024, v5", None)]
        if kind == "V" and c == 0:
            pre = [("v_add_u32 v4, 2048, v4", None), ("v_add_u32 v5, 2048, v5", None)]
    else:
        so, v0, srd = "s61", 6, "s[48:51]"
        pre = [(f"s_mov_b32 s61, {c*65536}", None)]
    return [pre + [(f"s_add_u32 m0, s60, {pos*8192}", None),
             (f"buffer_load_dwordx4 v{v0}, {srd}, {so} offen lds", f"slot{n}")],
            [(f"buffer_load_dwordx4 v{v0+1}, {srd}, {so} offen offset:1024 lds", f"slot{n}")]]

def emit_job(a, job):
    for t in job:
        if isinstance(t, str): a.e(t)
        else: a.e(t[0], vm=t[1])

def lds_base(n):
    pos = n % NSLOT
    return (0, pos*8192) if pos < 5 else (1, (pos-5)*8192)

def wfrag_reads(a, n, s, dst, tag=None):
    hi, off = lds_base(n)
    va = "v17" if hi else "v16"
    a.e(f"ds_read_b64_tr_b16 v[{dst}:{dst+1}], {va} offset:{off + s*2048}", lg=tag)
    a.e(f"ds_read_b64_tr_b16 v[{dst+2}:{dst+3}], {va} offset:{off + s*2048 + 512}", lg=tag)

def role_B(a, cfg):
    a.c("================= role B =================")
    if cfg.prioB: a.e(f"s_setprio {cfg.prioB}")
    a.e("""
    s_and_b32 s66, s3, 7            ; xcd
    s_lshr_b32 s67, s3, 3           ; jj
    s_lshr_b32 s56, s66, 1
    s_lshl_b32 s56, s56, 3
    s_and_b32 s68, s67, 7
    s_add_u32 s56, s56, s68         ; tb
    s_and_b32 s57, s66, 1
    s_lshl_b32 s57, s57, 2
    s_lshr_b32 s68, s67, 3
    s_add_u32 s57, s57, s68         ; hq
    s_and_b32 s58, s39, 1           ; tt
    s_lshr_b32 s59, s39, 1
    s_lshl_b32 s60, s39, 11
    s_mov_b32 s62, 0x3fb8aa3b
    s_mov_b32 s63, 0x3fb8aa3b
    s_mov_b32 s64, 0x358637bd
    s_mov_b32 s65, 0x358637bd
    """)
    a.e("""
    v_lshrrev_b32 v32, 3, v1        ; l>>3
    v_and_b32 v33, 7, v1            ; l&7
    v_lshrrev_b32 v34, 4, v1        ; l>>4
    s_lshl_b32 s68, s56, 6          ; tb*64
    s_lshl_b32 s69, s39, 4          ; 16w
    s_add_u32 s68, s68, s69
    v_add_u32 v35, s68, v32         ; row
    v_lshlrev_b32 v35, 10, v35
    v_xor_b32 v36, v33, v34
    v_lshl_add_u32 v2, v36, 4, v35
    v_add_u32 v37, 4, v34
    v_xor_b32 v36, v33, v37
    v_lshl_add_u32 v3, v36, 4, v35
    v_add_u32 v3, 7168, v3          ; +8 rows - 1024
    v_and_b32 v36, 1, v34
    v_lshlrev_b32 v36, 2, v36
    v_xor_b32 v36, v33, v36         ; q
    v_lshlrev_b32 v36, 4, v36       ; q*16
    v_add_u32 v37, s69, v32         ; 16w + (l>>3)
    v_mul_u32_u24 v38, 3072, v37
    s_lshl_b32 s68, s57, 7          ; hq*128
    v_add3_u32 v4, v38, v36, s68
    v_add_u32 v4, 1024, v4
    v_add_u32 v5, 23552, v4         ; +8*3072 - 1024
    v_lshlrev_b32 v38, 10, v37
    v_add3_u32 v6, v38, v36, s68
    v_add_u32 v7, 7168, v6
    """)
    a.e("""
    s_waitcnt lgkmcnt(0)
    s_mov_b32 s40, s26
    s_and_b32 s41, s27, 0xffff
    s_mov_b32 s42, 0x200000
    s_mov_b32 s43, 0x20000
    s_mov_b32 s44, s28
    s_and_b32 s45, s29, 0xffff
    s_mov_b32 s46, 0x180000
    s_mov_b32 s47, 0x20000
    s_mov_b32 s48, s30
    s_and_b32 s49, s31, 0xffff
    s_mov_b32 s50, 0x80000
    s_mov_b32 s51, 0x20000
    """)
    a.e("""
    v_mov_b32 v31, 0
    s_cmp_lg_u32 s3, 0
    s_cbranch_scc1 L_b_nononce
    s_cmp_lg_u32 s39, 0
    s_cbranch_scc1 L_b_nononce
    s_memrealtime s[68:69]
    s_waitcnt lgkmcnt(0)
    s_or_b32 s68, s68, 1
    v_mov_b32 v30, s68
    s_mov_b64 exec, 1
    global_store_dword v31, v30, s[34:35] sc1
    s_mov_b64 exec, -1
    """)
    a.vm.pop()
    a.label("L_b_nononce")
    if cfg.b_exit:
        a.e("s_branch L_end")
    for c in range(8):
        a.e(f"s_mov_b32 s{8+c}, {c*64*3072}")
        a.e(f"s_mov_b32 s{16+c}, {c*128}")
    stamp(a, cfg, 1)
    for n in range(cfg.ninit):
        for job in b_issue_jobs(n): emit_job(a, job)
    a.e("""
    v_and_b32 v32, 31, v1           ; i
    v_lshrrev_b32 v33, 5, v1        ; hh
    s_lshl_b32 s68, s58, 5
    v_add_u32 v34, s68, v32         ; 32tt + i
    v_lshlrev_b32 v34, 7, v34       ; *128
    v_lshrrev_b32 v35, 1, v32
    v_and_b32 v35, 7, v35           ; f
    """)
    for s in range(4):
        a.e(f"""
        v_add_u32 v36, {2*s}, v33
        v_xor_b32 v36, v36, v35
        v_lshl_add_u32 v{8+s}, v36, 4, v34
        v_add_u32 v{12+s}, 40960, v{8+s}
        """)
    a.e(f"""
    v_lshrrev_b32 v34, 2, v1
    v_and_b32 v34, 3, v34           ; rr
    v_and_b32 v35, 3, v1            ; cc
    v_lshrrev_b32 v36, 4, v1
    v_and_b32 v36, 1, v36           ; G&1
    v_lshlrev_b32 v36, 1, v36       ; 2(G&1)
    v_lshrrev_b32 v37, 1, v35       ; cc>>1
    v_add_u32 v36, v36, v37         ; 2(G&1) + (cc>>1)
    v_lshrrev_b32 v37, 1, v34
    v_lshlrev_b32 v37, 2, v37       ; 4(rr>>1)
    v_and_b32 v38, 1, v35
    v_lshlrev_b32 v38, 3, v38       ; 8(cc&1)
    s_lshl_b32 s68, s59, 2
    v_add_u32 v39, s68, v36
    v_xor_b32 v39, v39, v37
    v_lshl_add_u32 v39, v39, 4, v38
    v_lshl_add_u32 v40, v33, 3, v34
    v_lshl_add_u32 v16, v40, 7, v39
    v_add_u32 v17, 40960, v16
    v_xor_b32 v39, v36, v37
    v_lshl_add_u32 v39, v39, 4, v38
    v_lshl_add_u32 v40, v33, 2, v34
    v_lshl_add_u32 v18, v40, 7, v39
    s_lshl_b32 s68, s59, 15
    s_add_u32 s68, s68, 16384
    v_add_u32 v18, s68, v18
    v_xor_b32 v19, 64, v18
    s_lshl_b32 s68, s59, 1
    s_add_u32 s68, s68, s58
    s_xor_b32 s69, s68, 1
    s_lshl_b32 s66, s68, 10
    s_add_u32 s66, s66, 0
    v_lshl_add_u32 v22, v1, 4, s66
    s_lshl_b32 s66, s69, 10
    s_add_u32 s66, s66, 0
    v_lshl_add_u32 v23, v1, 4, s66
    s_lshl_b32 s66, s68, 8
    s_add_u32 s66, s66, 4096
    v_lshl_add_u32 v24, v1, 2, s66
    s_lshl_b32 s66, s69, 8
    s_add_u32 s66, s66, 4096
    v_lshl_add_u32 v25, v1, 2, s66
    s_lshl_b32 s68, s57, 1
    s_add_u32 s68, s68, s59
    s_lshl_b32 s68, s68, 5
    s_add_u32 s68, s68, s56
    s_mul_i32 s68, s68, 2176
    s_add_u32 s68, s68, {KVP}
    s_lshl_b32 s69, s58, 10
    s_add_u32 s69, s69, s68
    v_lshl_add_u32 v26, v1, 4, s69
    v_lshrrev_b32 v40, 4, v1
    v_and_b32 v40, 1, v40
    v_lshlrev_b32 v40, 3, v40       ; 8c
    v_and_b32 v41, 4, v1            ; 4*hh'
    v_add_u32 v40, v40, v41
    v_lshrrev_b32 v41, 2, v1
    v_and_b32 v41, 2, v41
    v_add_u32 v40, v40, v41
    v_lshrrev_b32 v41, 1, v1
    v_and_b32 v41, 1, v41
    v_add_u32 v40, v40, v41         ; zg
    s_add_u32 s68, s68, 2048
    v_lshl_add_u32 v27, v40, 3, s68
    s_lshl_b32 s68, s56, 1
    s_add_u32 s68, s68, s58
    s_lshl_b32 s68, s68, 5
    s_lshl_b32 s69, s57, 2
    s_add_u32 s68, s68, s69
    s_lshl_b32 s69, s59, 1
    s_add_u32 s68, s68, s69
    s_lshl_b32 s68, s68, 10
    s_add_u32 s68, s68, {PQ}
    v_lshl_add_u32 v28, v1, 4, s68
    v_and_b32 v40, 16, v1
    v_cmp_ne_u32 s[52:53], 0, v40
    s_sub_u32 s54, 0, s58
    s_mov_b32 s55, s54
    """)
    a.e(f"""
    s_cmp_lg_u32 s39, 3
    s_cbranch_scc1 L_b_nopt
    s_lshl_b32 s68, s56, 7
    s_add_u32 s68, s68, {PQF}
    v_mov_b32 v40, s68
    global_load_dword v21, v40, s[36:37] sc1
    """)
    a.vm.pop()
    a.label("L_b_nopt")
    for r in range(16):
        a.e(f"v_mov_b32 v{ACCQ+r}, s64")
    for r in range(16):
        a.e(f"v_mov_b32 v{ACCK+r}, s64")
    def frag_reads(g, k):
        L = []
        tag = f"f{g}_{k}"
        if g < 8:
            nx, nw = 2*g, 2*g+1
            hi, off = lds_base(nx)
            L.append((f"ds_read_b128 v[{XR+16*g+4*k}:{XR+16*g+4*k+3}], v{(12 if hi else 8)+k} offset:{off}", tag))
            d = WF + 16*(g % 2) + 4*k; n = nw; sstep = k
        else:
            n = 2*g + k//4; sstep = k % 4; d = WF + 4*k
        h2, o2 = lds_base(n)
        va = "v17" if h2 else "v16"
        L.append((f"ds_read_b64_tr_b16 v[{d}:{d+1}], {va} offset:{o2 + sstep*2048}", tag))
        L.append((f"ds_read_b64_tr_b16 v[{d+2}:{d+3}], {va} offset:{o2 + sstep*2048 + 512}", tag))
        return L
    def nsteps(g): return 4 if g < 8 else 8
    def emit_side(lst):
        for t in lst:
            if isinstance(t, str): a.e(t)
            elif t[0] == "WVM": a.wait_vm(t[1])
            else: a.e(t[0], vm=t[1])
    side = {}
    ke = phi_instrs(ACCK, T16, ACCK, zsum=29)
    ke += ["v_mov_b32 v30, v29", "v_permlane32_swap_b32 v29, v30", "v_add_f32 v29, v29, v30"]
    gaps = [(g, k) for g in range(8, 12) for k in range(8)][1:31]
    for gp, grp in zip(gaps, spread(ke, len(gaps))): side[gp] = grp
    qe = phi_instrs(ACCQ, T16, ACCQ)
    qe += [(f"global_store_dwordx4 v28, v[{ACCQ}:{ACCQ+3}], s[36:37] sc1", "pqst"),
           (f"global_store_dwordx4 v28, v[{ACCQ+4}:{ACCQ+7}], s[36:37] offset:1024 sc1", "pqst")]
    gaps = [(g, k) for g in range(12, 15) for k in range(8)][1:20]
    for gp, grp in zip(gaps, spread(qe, len(gaps))): side[gp] = grp
    rb = f"""
    s_mov_b32 s40, s36
    s_and_b32 s41, s37, 0xffff
    s_mov_b32 s42, {KVF + 65536}
    s_mov_b32 s43, 0x20000
    s_lshl_b32 s68, s56, 7
    s_add_u32 s68, s68, {PQF}
    v_and_b32 v2, 7, v1
    v_lshl_add_u32 v2, v2, 2, s68
    s_lshl_b32 s68, s56, 1
    s_add_u32 s68, s68, s58
    s_lshl_b32 s68, s68, 5
    s_lshl_b32 s69, s59, 4
    s_add_u32 s68, s68, s69
    s_lshl_b32 s68, s68, 10
    s_add_u32 s68, s68, {PQ}
    v_lshl_add_u32 v3, v1, 4, s68
    v_add_u32 v31, 8192, v3
    v_lshrrev_b32 v13, 7, v0
    v_mul_u32_u24 v13, {KVBLK}, v13
    v_and_b32 v20, 127, v0
    v_lshl_add_u32 v13, v20, 4, v13
    v_add_u32 v13, {KVF}, v13
    v_lshrrev_b32 v14, 3, v20
    v_mul_u32_u24 v14, {KVBLK}, v14
    v_and_b32 v21, 7, v0
    v_lshl_add_u32 v14, v21, 4, v14
    v_add_u32 v14, {KVF+2048}, v14
    v_lshrrev_b32 v15, 7, v0
    v_lshlrev_b32 v15, 1, v15
    v_bfe_u32 v21, v0, 4, 1
    v_add_u32 v15, v15, v21
    v_mul_u32_u24 v15, 544, v15
    v_bfe_u32 v21, v0, 5, 1
    v_mul_u32_u24 v21, 272, v21
    v_add_u32 v15, v15, v21
    v_and_b32 v21, 15, v0
    v_lshl_add_u32 v15, v21, 4, v15
    v_bfe_u32 v21, v0, 6, 1
    v_lshl_add_u32 v15, v21, 3, v15
    v_lshrrev_b32 v12, 3, v20
    v_lshlrev_b32 v12, 1, v12
    v_bfe_u32 v21, v0, 2, 1
    v_add_u32 v12, v12, v21
    v_mul_u32_u24 v12, 544, v12
    v_bfe_u32 v21, v0, 1, 1
    v_mul_u32_u24 v21, 272, v21
    v_add_u32 v12, v12, v21
    v_and_b32 v21, 1, v0
    v_lshl_add_u32 v12, v21, 3, v12
    v_add_u32 v12, 256, v12
    v_and_b32 v30, 15, v1
    v_mul_u32_u24 v30, {KVBLK}, v30
    v_add_u32 v30, {KVF+2048}, v30
    """.strip().split("\n")
    rb = [x.strip() for x in rb]
    rb += [f"s_mov_b32 s{8+i}, {1024*i}" for i in range(8)] + [f"s_mov_b32 s{16+k}, {2*KVBLK*k}" for k in range(8)]
    if not cfg.late_o:
        gaps = [(14, k) for k in range(5, 8)] + [(15, k) for k in range(8)]
        for gp, grp in zip(gaps, spread(rb, len(gaps))): side[gp] = side.get(gp, []) + grp

    def kv_publish():
        a.c("--- kv partial: V cvt, MFMA, select, pair exchange, publish")
        a.e("s_barrier")
        for m in range(8):
            a.e(f"v_cvt_pk_bf16_f32 v{ACCV+m}, v{ACCV+2*m}, v{ACCV+2*m+1}")
        a.e(f"v_mfma_f32_32x32x16_bf16 v[{T16}:{T16+15}], v[{ACCK}:{ACCK+3}], v[{ACCV}:{ACCV+3}], 0")
        a.e(f"v_mfma_f32_32x32x16_bf16 v[{T16}:{T16+15}], v[{ACCK+4}:{ACCK+7}], v[{ACCV+4}:{ACCV+7}], v[{T16}:{T16+15}]")
        a.e("ds_write_b32 v24, v29", lg="xw")
        SEL = ACCK + 8; SND = ACCV + 8; KEEP = ACCV + 12
        for j in range(8): a.e(f"v_cndmask_b32 v{SEL+j}, v{T16+j}, v{T16+8+j}, s[52:53]")
        for j in range(4): a.e(f"v_cndmask_b32 v{SND+j}, v{SEL+4+j}, v{SEL+j}, s[54:55]")
        a.e(f"ds_write_b128 v22, v[{SND}:{SND+3}]", lg="xw")
        for j in range(4): a.e(f"v_cndmask_b32 v{KEEP+j}, v{SEL+j}, v{SEL+4+j}, s[54:55]")
        a.wait_vm("pqst")
        a.wait_lg("xw")
        a.e("s_barrier")
        a.e(f"ds_read_b128 v[{SEL}:{SEL+3}], v23", lg="xr")
        a.e(f"ds_read_b32 v30, v25", lg="xr")
        a.e("""
        s_cmp_lg_u32 s39, 3
        s_cbranch_scc1 L_b_noflag
        s_lshl_b32 s68, s56, 7
        s_lshl_b32 s69, s57, 2
        s_add_u32 s68, s68, s69
        s_add_u32 s68, s68, %d
        v_mov_b32 v32, s68
        v_mov_b32 v33, s38
        s_mov_b64 exec, 1
        global_store_dword v32, v33, s[36:37] sc1
        s_mov_b64 exec, -1
        """ % PQF)
        a.vm.pop()
        a.label("L_b_noflag")
        a.wait_lg("xr")
        for j in range(4): a.e(f"v_add_f32 v{KEEP+j}, v{KEEP+j}, v{SEL+j}")
        a.e(f"""
        v_add_f32 v29, v29, v30
        v_cvt_pk_bf16_f32 v{SEL}, v{KEEP}, v{KEEP+1}
        v_mov_b32 v{SEL+1}, s38
        v_cvt_pk_bf16_f32 v{SEL+2}, v{KEEP+2}, v{KEEP+3}
        v_mov_b32 v{SEL+3}, s38
        v_mov_b32_dpp v30, v29 quad_perm:[1,0,3,2] row_mask:0xf bank_mask:0xf
        global_store_dwordx4 v26, v[{SEL}:{SEL+3}], s[36:37] sc1
        v_cvt_pk_bf16_f32 v{SEL+4}, v29, v30
        v_mov_b32 v{SEL+5}, s38
        s_andn2_b64 exec, 0x55555555, s[54:55]
        s_cbranch_execz L_b_noz
        global_store_dwordx2 v27, v[{SEL+4}:{SEL+5}], s[36:37] sc1
        """)
        a.vm.pop()
        a.label("L_b_noz")
        a.e("s_mov_b64 exec, -1")
        stamp(a, cfg, 6)

    a.wait_vm(["slot0", "slot1"])
    a.e("s_barrier")
    stamp(a, cfg, 2)
    for k in range(4):
        for t, tag in frag_reads(0, k): a.e(t, lg=tag)
    nxt = cfg.ninit
    pend = []
    while nxt < NSLOT:
        pend += b_issue_jobs(nxt); nxt += 1
    for g in range(16):
        a.c(f"--- group {g}")
        if g == 13: poll_nonce(a, "v21", "v31", first_tag="nonce")
        if g < 15:
            a.wait_vm([f"slot{2*g+2}", f"slot{2*g+3}"])
        a.e("s_barrier")
        if g in (1, 8, 12): stamp(a, cfg, {1: 3, 8: 4, 12: 5}[g])
        jobs = list(pend); pend = []
        if g >= 1:
            for _ in range(2):
                if nxt < (32 if cfg.late_o else 40): jobs += b_issue_jobs(nxt); nxt += 1
        if g == 9:
            jobs.append([("global_load_dword v21, v31, s[34:35] sc1", "nonce")])
        ns = nsteps(g)
        jsp = spread(jobs, ns)
        for k in range(ns):
            if k % 2 == 0: a.wait_lg([f"f{g}_{k}", f"f{g}_{k+1}"])
            if g < 8:
                d = WF + 16*(g % 2) + 4*k
                a.e(f"v_mfma_f32_32x32x16_bf16 v[{ACCK}:{ACCK+15}], v[{XR+16*g+4*k}:{XR+16*g+4*k+3}], v[{d}:{d+3}], v[{ACCK}:{ACCK+15}]")
            elif g < 12:
                kk = (g - 8)*8 + k
                a.e(f"v_mfma_f32_32x32x16_bf16 v[{ACCQ}:{ACCQ+15}], v[{WF+4*k}:{WF+4*k+3}], v[{XR+4*kk}:{XR+4*kk+3}], v[{ACCQ}:{ACCQ+15}]")
            else:
                kk = (g - 12)*8 + k
                cc = "0" if (g == 12 and k == 0) else f"v[{ACCV}:{ACCV+15}]"
                a.e(f"v_mfma_f32_32x32x16_bf16 v[{ACCV}:{ACCV+15}], v[{XR+4*kk}:{XR+4*kk+3}], v[{WF+4*k}:{WF+4*k+3}], {cc}")
            jl = [list(jb) for jb in jsp[k]]
            if jl:
                while jl[0] and not jl[0][0][0].startswith(("buffer_load", "global_load")):
                    a.e(jl[0].pop(0)[0])
            if g < 15:
                nx = [k, 4 + k] if g == 7 else [k]
                for k2 in nx:
                    for t, tag in frag_reads(g + 1, k2): a.e(t, lg=tag)
            for jb in jl: emit_job(a, jb)
            emit_side(side.get((g, k), []))
    kv_publish()
    if cfg.late_o:
        while nxt < 40:
            for jb in b_issue_jobs(nxt): emit_job(a, jb)
            nxt += 1
        for t in rb: a.e(t)
    stamp(a, cfg, 7)
    if not cfg.do_B2:
        stamp(a, cfg, 8)
        stamps_out(a, cfg, 9)
        a.e("s_branch L_end")
        return
    role_B2(a, cfg)

def tag_check(a, regs_tags, acc="v20"):
    tt = 0
    for idx in range(8):
        s0, s1, s2 = (idx >> 2) & 1, (idx >> 1) & 1, idx & 1
        if s0 | (s1 ^ s2): tt |= 1 << idx
    first = True
    for r in regs_tags:
        if first:
            a.e(f"v_xor_b32 {acc}, s38, v{r}"); first = False
        else:
            a.e(f"v_bitop3_b32 {acc}, {acc}, v{r}, s38 bitop3:{hex(tt)}")
    a.e(f"v_cmp_ne_u32 vcc, 0, {acc}")

def role_B2(a, cfg):
    WO = 128
    ACC = 96
    PQR = 32
    CN = [64, 80]
    KAF = [8, 12]
    OF = [4, 16]
    KA = 0
    PQL = 17408
    a.c("================= B2 =================")
    def reduce_line(base, dst_addr, tagsok_label):
        S = 40; T = 44
        for k in range(4):
            r = base + 4*k
            for pidx in range(2):
                src = r + 2*pidx
                if k == 0:
                    a.e(f"v_lshlrev_b32 v{S+2*pidx}, 16, v{src}")
                    a.e(f"v_and_b32 v{S+1+2*pidx}, 0xffff0000, v{src}")
                else:
                    a.e(f"v_lshlrev_b32 v{T+2*pidx}, 16, v{src}")
                    a.e(f"v_and_b32 v{T+1+2*pidx}, 0xffff0000, v{src}")
                    a.e(f"v_add_f32 v{S+2*pidx}, v{S+2*pidx}, v{T+2*pidx}")
                    a.e(f"v_add_f32 v{S+1+2*pidx}, v{S+1+2*pidx}, v{T+1+2*pidx}")
        for j in range(4): a.e(f"v_add_f32_dpp v{S+j}, v{S+j}, v{S+j} row_ror:8 row_mask:0xf bank_mask:0xf")
        for j in range(4): a.e(f"v_mov_b32 v{T+j}, v{S+j}")
        for j in range(4): a.e(f"v_permlane16_swap_b32 v{S+j}, v{T+j}")
        for j in range(4): a.e(f"v_add_f32 v{S+j}, v{S+j}, v{T+j}")
        for j in range(4): a.e(f"v_mov_b32 v{T+j}, v{S+j}")
        for j in range(4): a.e(f"v_permlane32_swap_b32 v{S+j}, v{T+j}")
        for j in range(4): a.e(f"v_add_f32 v{S+j}, v{S+j}, v{T+j}")
        a.e(f"""
        v_cvt_pk_bf16_f32 v48, v{S}, v{S+1}
        v_mov_b32 v49, s38
        v_cvt_pk_bf16_f32 v50, v{S+2}, v{S+3}
        v_mov_b32 v51, s38
        s_mov_b64 exec, 0xff
        global_store_dwordx4 {dst_addr}, v[48:51], s[36:37] sc1
        s_mov_b64 exec, -1
        """)
    a.e(f"""
    s_lshr_b32 s66, s3, 4
    s_and_b32 s67, s3, 15
    s_mul_i32 s69, s66, {32*KVBLK}
    s_add_u32 s69, s69, {KVP}
    s_lshl_b32 s52, s67, 7
    s_add_u32 s68, s69, s52
    v_and_b32 v22, 7, v1
    v_lshlrev_b32 v22, 4, v22
    v_lshrrev_b32 v23, 3, v1
    v_mul_u32_u24 v23, {KVBLK}, v23
    v_add_u32 v23, v22, v23
    v_add_u32 v24, s68, v23
    v_add_u32 v25, {8*KVBLK}, v24
    v_add_u32 v26, {16*KVBLK}, v24
    v_add_u32 v27, {24*KVBLK}, v24
    s_add_u32 s68, s69, 2048
    v_add_u32 v8, s68, v23
    v_add_u32 v9, {8*KVBLK}, v8
    v_add_u32 v10, {16*KVBLK}, v8
    v_add_u32 v11, {24*KVBLK}, v8
    s_mul_i32 s69, s66, {KVBLK}
    s_add_u32 s69, s69, {KVF}
    s_add_u32 s68, s69, s52
    v_add_u32 v23, s68, v22
    s_add_u32 s68, s69, 2048
    v_add_u32 v29, s68, v22
    """)
    a.wait_vm([f"slot{n}" for n in range(32, 40)])
    a.e("s_barrier")
    for i in range(16):
        for nt in range(2):
            d = WO + 8*i + 4*nt
            off = (i//4)*8192 + (i % 4)*2048
            a.e(f"ds_read_b64_tr_b16 v[{d}:{d+1}], v{18+nt} offset:{off}", lg="wo")
            a.e(f"ds_read_b64_tr_b16 v[{d+2}:{d+3}], v{18+nt} offset:{off+1024}", lg="wo")
    a.e("s_waitcnt lgkmcnt(0)")
    a.e("s_barrier")
    a.vm = []; a.lg = []
    stamp(a, cfg, 9)
    a.e("""
    s_cmp_lg_u32 s39, 0
    s_cbranch_scc1 L_b_red_wait
    s_mov_b32 s61, 0
    """)
    a.label("L_b_red_poll")
    a.e("""
    global_load_dwordx4 v[96:99], v24, s[36:37] sc1
    global_load_dwordx4 v[100:103], v25, s[36:37] sc1
    global_load_dwordx4 v[104:107], v26, s[36:37] sc1
    global_load_dwordx4 v[108:111], v27, s[36:37] sc1
    global_load_dwordx4 v[112:115], v8, s[36:37] sc1
    global_load_dwordx4 v[116:119], v9, s[36:37] sc1
    global_load_dwordx4 v[120:123], v10, s[36:37] sc1
    global_load_dwordx4 v[124:127], v11, s[36:37] sc1
    s_add_u32 s61, s61, 1
    s_waitcnt vmcnt(0)
    """)
    tag_check(a, [97+2*q for q in range(16)])
    a.e(f"""
    s_cmp_gt_u32 s61, {SPIN_LIMIT}
    s_cbranch_scc1 L_b_red_go
    s_cbranch_vccz L_b_red_go
    s_sleep {cfg.sl_red}
    s_branch L_b_red_poll
    """)
    a.label("L_b_red_go")
    a.e("s_barrier")
    a.e("""
    s_cmp_lg_u32 s67, 0
    s_cbranch_scc1 L_b_red_a
    """)
    reduce_line(112, "v29", None)
    a.label("L_b_red_a")
    reduce_line(96, "v23", None)
    a.e("s_branch L_b_red_done")
    a.label("L_b_red_wait")
    a.e("s_barrier")
    a.label("L_b_red_done")
    a.vm = []
    stamp(a, cfg, 10)
    W0L = PQL + 32768
    def pq_loads():
        for i in range(8):
            a.e(f"buffer_load_dwordx4 v[{PQR+4*i}:{PQR+4*i+3}], v3, s[40:43], s{8+i} offen sc1")
        for i in range(8):
            a.e(f"s_add_u32 m0, s66, {1024*i}")
            a.e("s_nop 0")
            a.e(f"buffer_load_dwordx4 v31, s[40:43], s{8+i} offen sc1 lds")
    a.e(f"""
    s_lshl_b32 s66, s39, 13
    s_add_u32 s66, s66, {PQL}
    s_mov_b32 s61, 0
    s_cmp_eq_u32 s39, 0
    s_cbranch_scc1 L_b_kz_poll
    """)
    a.label("L_b_pqf_poll")
    a.e(f"""
    global_load_dword v21, v2, s[36:37] sc1
    s_add_u32 s61, s61, 1
    s_waitcnt vmcnt(0)
    v_cmp_ne_u32 vcc, s38, v21
    s_cmp_gt_u32 s61, {SPIN_LIMIT}
    s_cbranch_scc1 L_b_pqf_go
    s_cbranch_vccz L_b_pqf_go
    s_sleep {cfg.sl_pq}
    s_branch L_b_pqf_poll
    """)
    a.label("L_b_pqf_go")
    stamp(a, cfg, 11)
    pq_loads()
    a.e(f"""
    s_cmp_eq_u32 s39, 3
    s_cbranch_scc1 L_b_kz_go
    s_mov_b32 s68, 8192
    s_mov_b32 s69, {PQL}
    s_cmp_eq_u32 s39, 1
    s_cbranch_scc0 L_b_w2
    s_mov_b32 s68, 32768
    s_mov_b32 s69, {W0L}
    """)
    a.label("L_b_w2")
    a.e(f"""
    v_subrev_u32 v21, s68, v3
    """)
    for i in range(8):
        a.e(f"s_add_u32 m0, s69, {1024*i}")
        a.e("s_nop 0")
        a.e(f"buffer_load_dwordx4 v21, s[40:43], s{8+i} offen sc1 lds")
    a.e("s_branch L_b_kz_go")
    a.label("L_b_kz_poll")
    a.e(f"""
    buffer_load_dwordx4 v[96:99], v30, s[40:43], 0 offen sc1
    s_add_u32 s61, s61, 1
    s_waitcnt vmcnt(0)
    v_xor_b32 v20, s38, v97
    v_cmp_ne_u32 vcc, 0, v20
    s_cmp_gt_u32 s61, {SPIN_LIMIT}
    s_cbranch_scc1 L_b_kz_ok
    s_cbranch_vccz L_b_kz_ok
    s_sleep {cfg.sl_kz}
    s_branch L_b_kz_poll
    """)
    a.label("L_b_kz_ok")
    stamp(a, cfg, 11)
    a.label("L_b_kz_go")
    a.e("s_barrier")
    def ka_loads():
        for k in range(8):
            a.e(f"buffer_load_dwordx4 v[{64+4*k}:{67+4*k}], v13, s[40:43], s{16+k} offen sc1")
        a.e("buffer_load_dwordx4 v[96:99], v14, s[40:43], 0 offen sc1")
    a.e("s_mov_b32 s61, 0")
    a.label("L_b_kvf_poll")
    ka_loads()
    a.e("s_waitcnt vmcnt(0)")
    a.label("L_b_ka_chk")
    a.e("s_add_u32 s61, s61, 1")
    tag_check(a, [65+2*q for q in range(18)])
    a.e(f"""
    s_cmp_gt_u32 s61, {SPIN_LIMIT}
    s_cbranch_scc1 L_b_kvf_go
    s_cbranch_vccnz L_b_kvf_poll
    """)
    a.label("L_b_kvf_go")
    stamp(a, cfg, 12)
    stampval(a, cfg, 8, "s61")
    a.vm = []
    for k in range(8):
        a.e(f"v_mov_b32 v{65+4*k}, v{66+4*k}")
        a.e(f"ds_write_b64 v15, v[{64+4*k}:{65+4*k}] offset:{KA + 2176*k}")
    a.e("v_mov_b32 v97, v98")
    a.e(f"ds_write_b64 v12, v[96:97] offset:{KA}")
    a.e(f"""
    v_and_b32 v22, 31, v1
    v_min_u32 v22, 16, v22
    v_lshlrev_b32 v22, 4, v22
    v_lshrrev_b32 v23, 5, v1
    v_mul_u32_u24 v23, 272, v23
    s_mul_i32 s68, s59, {16*544}
    v_add3_u32 v22, v22, v23, s68
    v_lshl_add_u32 v23, v1, 4, s66
    s_waitcnt vmcnt(0) lgkmcnt(0)
    s_barrier
    """)
    a.e(f"""
    s_cmp_lg_u32 s39, 0
    s_cbranch_scc1 L_b_w0f
    v_lshlrev_b32 v21, 4, v1
    """)
    for i in range(8):
        a.e(f"ds_read_b128 v[{PQR+4*i}:{PQR+4*i+3}], v21 offset:{W0L + 1024*i}")
    a.e("s_waitcnt lgkmcnt(0)")
    a.label("L_b_w0f")
    a.vm = []; a.lg = []
    stamp(a, cfg, 13)
    def kaf_read(i):
        a.e(f"ds_read_b128 v[{KAF[i%2]}:{KAF[i%2]+3}], v22 offset:{KA + 544*i}", lg=f"ka{i}")
    def out_mfma(i):
        o = OF[i % 2]
        for nt in range(2):
            w = WO + 8*i + 4*nt
            cc = "0" if i == 0 else f"v[{ACC+16*nt}:{ACC+16*nt+15}]"
            a.e(f"v_mfma_f32_32x32x16_bf16 v[{ACC+16*nt}:{ACC+16*nt+15}], v[{w}:{w+3}], v[{o}:{o+3}], {cc}")
    def num_mfma(i):
        a.wait_lg(f"ka{i}")
        p = PQR + 4*(i % 8)
        if i >= 8: a.wait_lg(f"pl{i}")
        a.e(f"v_mfma_f32_32x32x16_bf16 v[{CN[i%2]}:{CN[i%2]+15}], v[{KAF[i%2]}:{KAF[i%2]+3}], v[{p}:{p+3}], 0")
        if 4 <= i < 12:
            h = i + 4
            ph = PQR + 4*(h % 8)
            a.e(f"ds_read_b128 v[{ph}:{ph+3}], v23 offset:{1024*(h-8)}", lg=f"pl{h}")
    def out1(i, nt):
        o = OF[i % 2]
        w = WO + 8*i + 4*nt
        cc = "0" if i == 0 else f"v[{ACC+16*nt}:{ACC+16*nt+15}]"
        a.e(f"v_mfma_f32_32x32x16_bf16 v[{ACC+16*nt}:{ACC+16*nt+15}], v[{w}:{w+3}], v[{o}:{o+3}], {cc}")
    kaf_read(0); kaf_read(1)
    num_mfma(0)
    for i in range(16):
        if i + 1 < 16:
            num_mfma(i + 1)
        c = CN[i % 2]
        a.e(f"v_add_f32 v20, s64, v{c+8}")
        a.e(f"v_rcp_f32 v20, v20")
        if i + 2 < 16:
            kaf_read(i + 2)
        for jj in range(2): a.e(f"v_mul_f32 v{c+jj}, v{c+jj}, v20")
        if i >= 1: out1(i - 1, 0)
        for jj in range(2, 7): a.e(f"v_mul_f32 v{c+jj}, v{c+jj}, v20")
        if i >= 1: out1(i - 1, 1)
        a.e(f"v_mul_f32 v{c+7}, v{c+7}, v20")
        o = OF[i % 2]
        for m in range(4):
            a.e(f"v_cvt_pk_bf16_f32 v{o+m}, v{c+2*m}, v{c+2*m+1}")
    out1(15, 0); out1(15, 1)
    stamp(a, cfg, 14)
    a.e("""
    s_cmp_lg_u32 s3, 0
    s_cbranch_scc1 L_b_norst
    s_cmp_lg_u32 s39, 0
    s_cbranch_scc1 L_b_norst
    v_mov_b32 v20, 0
    s_mov_b64 exec, 1
    global_store_dword v20, v20, s[34:35] sc1
    s_mov_b64 exec, -1
    """)
    a.label("L_b_norst")
    a.vm = []
    PB = 0
    a.e(f"""
    v_and_b32 v22, 31, v1
    s_lshl_b32 s68, s58, 5
    v_add_u32 v22, s68, v22            ; token
    v_mul_u32_u24 v22, 272, v22
    v_lshrrev_b32 v23, 5, v1
    v_lshl_add_u32 v22, v23, 4, v22    ; + hh*16
    s_mul_i32 s68, s59, {64*272}
    s_add_u32 s68, s68, {PB}
    v_add_u32 v22, s68, v22
    v_lshrrev_b32 v23, 3, v0
    v_mul_u32_u24 v24, 272, v23
    v_and_b32 v25, 7, v0
    v_lshl_add_u32 v24, v25, 5, v24
    v_add_u32 v24, {PB}, v24
    s_lshl_b32 s68, s56, 6
    v_add_u32 v23, s68, v23
    v_lshlrev_b32 v23, 11, v23
    s_lshl_b32 s68, s57, 7
    s_add_u32 s68, s68, 1024
    v_lshl_add_u32 v23, v25, 4, v23
    v_add_u32 v23, s68, v23
    s_waitcnt lgkmcnt(0)
    s_barrier
    """)
    for nt in range(2):
        for q in range(4):
            r = ACC + 16*nt + 4*q
            a.e(f"ds_write_b128 v22, v[{r}:{r+3}] offset:{nt*128 + q*32}")
    a.e("s_waitcnt lgkmcnt(0)")
    a.e("s_barrier")
    for r in range(2):
        o = r*32*272
        a.e(f"ds_read_b128 v[{32+16*r}:{35+16*r}], v24 offset:{o}")
        a.e(f"ds_read_b128 v[{36+16*r}:{39+16*r}], v24 offset:{o+16}")
        a.e(f"ds_read_b128 v[{40+16*r}:{43+16*r}], v24 offset:{o+64*272}")
        a.e(f"ds_read_b128 v[{44+16*r}:{47+16*r}], v24 offset:{o+64*272+16}")
    for r in range(2):
        a.e(f"s_waitcnt lgkmcnt({4 if r == 0 else 0})")
        b = 32 + 16*r
        for jj in range(8):
            a.e(f"v_add_f32 v{b+jj}, v{b+jj}, v{b+8+jj}")
        for m in range(4):
            a.e(f"v_cvt_pk_bf16_f32 v{64+4*r+m}, v{b+2*m}, v{b+2*m+1}")
        if r == 1: a.e(f"v_add_u32 v23, {32*2048}, v23")
        a.e(f"global_store_dwordx4 v23, v[{64+4*r}:{67+4*r}], s[32:33] {cfg.outfl}")
    stamps_out(a, cfg, 15)

TV = 240
def a_touch_setup(a, cfg):
    a.e(f"""
    s_lshr_b32 s62, s40, 1          ; tg
    s_and_b32 s63, s40, 1           ; hg
    s_lshl_b32 s64, s62, 9
    s_lshl_b32 s65, s41, 4          ; 16*jj
    s_add_u32 s64, s64, s65
    v_and_b32 v246, 15, v1
    v_lshrrev_b32 v247, 4, v1       ; 0..3
    v_add_u32 v241, s64, v246
    v_lshlrev_b32 v241, 10, v241
    v_lshl_add_u32 v241, v247, 7, v241
    v_add_u32 v241, 512, v241
    v_and_b32 v248, 3, v1
    v_lshlrev_b32 v248, 7, v248     ; line*128
    s_lshl_b32 s66, s63, 9          ; hg*512
    v_lshrrev_b32 v249, 2, v1
    v_add_u32 v240, s65, v249       ; 16jj + (l>>2)
    v_mul_u32_u24 v242, 3072, v240
    v_add3_u32 v242, v242, v248, s66
    v_add_u32 v244, 2048, v242      ; V
    v_lshlrev_b32 v245, 10, v240
    v_add3_u32 v245, v245, v248, s66
    v_and_b32 v249, 7, v249
    s_lshl_b32 s67, s41, 3
    s_add_u32 s67, s67, 256
    v_add_u32 v249, s67, v249
    v_mul_u32_u24 v243, 3072, v249
    v_add3_u32 v243, v243, v248, s66
    v_add_u32 v243, 1024, v243
    """)

def a_touch(a, cfg, plan):
    fl = cfg.touch_flags
    info = {"x1": (241, "s[26:27]"), "q": (242, "s[28:29]"), "k": (243, "s[28:29]"), "v": (244, "s[28:29]"), "o": (245, "s[30:31]")}
    for w, names in plan.items():
        L = a.newlabel("tch")
        a.e(f"s_cmp_eq_u32 s39, {w}")
        a.e(f"s_cbranch_scc0 {L}")
        for i, nm in enumerate(names):
            v, base = info[nm]
            a.e(f"global_load_dword v{250+i}, v{v}, {base} {fl}")
            a.vm.pop()
        a.label(L)

def role_A(a, cfg):
    a.label("L_roleA")
    a.e("""
    s_and_b32 s40, s3, 7
    s_lshr_b32 s41, s3, 3           ; j
    s_waitcnt lgkmcnt(0)
    """)
    if not cfg.do_A:
        if cfg.touch:
            a_touch_setup(a, cfg)
            a_touch(a, cfg, {2: ["x1"], 3: ["k"]})
            a.e("s_waitcnt vmcnt(0)")
            a_touch(a, cfg, {1: ["q"], 2: ["v"], 3: ["o"]})
            a.e("s_waitcnt vmcnt(0)")
        a.e("s_branch L_end")
        return
    import role_a
    role_a.role_A(a, cfg)

def build(cfg):
    a = Asm()
    prologue(a, cfg)
    if cfg.do_B:
        role_B(a, cfg)
    a.e("s_branch L_end")
    a.vm = []
    role_A(a, cfg)
    a.label("L_end")
    a.e("s_endpgm")
    body = a.render()
    return body, a

HEADER = open("concat_heads__ssm_conv_s4__linear_attn_block__prompt.s.ref").read().split("; Override launch")[0]

def generate(path, cfg):
    body, a = build(cfg)
    txt = wrap(body, HEADER, 512, 256, 81920)
    open(path, "w").write(txt)
    return a

if __name__ == "__main__":
    sys.modules["kern"] = sys.modules["__main__"]
    cfg = Cfg()
    cfg.stamps = True
    if len(sys.argv) > 2:
        for kv in sys.argv[2:]:
            k, v = kv.split("=")
            setattr(cfg, k, int(v) if v.isdigit() else v)
    a = generate(sys.argv[1] if len(sys.argv) > 1 else "k_b1.s", cfg)
    print("nops inserted:", a.nnops)
```

```python
import sys
from asmlib import Asm, wrap

UT   = 0
YT   = 4 << 20
PQ   = 8 << 20
PQF  = 10 << 20
KVP  = (10 << 20) + (64 << 10)
KVF  = 12 << 20
UTF  = (12 << 20) + (64 << 10)
YTF  = (12 << 20) + (96 << 10)
KVBLK = 2176
LOG2E = 0x3fb8aa3b
EPS   = 0x358637bd
SPIN_LIMIT = 200000

class Cfg:
    do_A = True
    do_B = True
    do_B2 = True
    touch = True
    dual = False
    x_nowrite = False
    prioA = 2
    prioA2 = 0
    dbgT = 0
    zpoll = 0
    sl_ka = 1
    sl_kz = 1
    sl_pq = 1
    sl_red = 1
    sl_yt = 1
    sl_ut = 1
    late_o = 1
    yglobal = 0
    utclean = 0
    outfl = "sc1"
    uttouch = 0
    ninit = 6
    dbgN = 0
    ut_patience = 200
    flagpos = 0
    ytouch = 1
    dbgY = 0
    prioA3 = 0
    prioB = 1
    pk = 1
    b_exit = False
    touch_flags = ""
    early_release = True
    dma_early = False
    last_dma = 40
    late_pre = 0
    touch_mode = "late"
    stamps = False

STAMP_BASE = 14 << 20
def stamp(a, cfg, i):
    if cfg.stamps == 1:
        a.e(f"s_memtime s[{70+2*i}:{71+2*i}]")
def stampval(a, cfg, i, sreg):
    if cfg.stamps == 1:
        a.e("s_waitcnt lgkmcnt(0)")
        a.e(f"s_add_u32 s{70+2*i}, {sreg}, s70")
def stamps_out(a, cfg, n, vt=22):
    if not cfg.stamps: return
    a.e("s_memrealtime s[68:69]")
    a.e("s_waitcnt lgkmcnt(0) vmcnt(0)")
    a.vm = []
    if cfg.stamps == 2: n = 1
    for i in range(1, n):
        a.e(f"s_sub_u32 s{70+2*i}, s{70+2*i}, s70")
    a.e(f"""
    s_lshl_b32 s61, s2, 2
    s_add_u32 s61, s61, s39
    s_lshl_b32 s61, s61, 6
    s_add_u32 s61, s61, {STAMP_BASE}
    v_mov_b32 v{vt}, s61
    s_mov_b64 exec, 1
    """)
    for i in range(16):
        src = f"s{70+2*i}" if (0 < i < n) else ("s68" if i == 15 else ("s100" if i == 0 else "0"))
        a.e(f"v_mov_b32 v{vt+1}, {src}")
        a.e(f"global_store_dword v{vt}, v{vt+1}, s[36:37] offset:{4*i}")
        a.e("s_nop 1")
    a.e("s_waitcnt vmcnt(0)")
    a.e("s_mov_b64 exec, -1")
    a.vm = []

def prologue(a, cfg):
    if cfg.stamps:
        a.e("s_memrealtime s[100:101]")
        a.e("s_memtime s[70:71]")
    a.e("""
    s_cmp_ge_u32 s2, 512
    s_cbranch_scc1 L_end
    s_load_dwordx16 s[8:23], s[0:1], 0
    s_load_dwordx8 s[24:31], s[0:1], 64
    s_load_dwordx4 s[32:35], s[0:1], 96
    s_load_dwordx2 s[36:37], s[0:1], 112
    v_lshrrev_b32 v1, 6, v0
    v_readfirstlane_b32 s39, v1
    v_and_b32 v1, 63, v0
    s_and_b32 s3, s2, 255
    s_cmp_lt_u32 s2, 256
    s_cbranch_scc1 L_roleA
    """)

def poll_nonce(a, vtmp, vaddr0, first_tag=None):
    L = a.newlabel("nonce"); Lx = a.newlabel("nonce_ok")
    if first_tag:
        a.wait_vm(first_tag)
    else:
        a.e(f"global_load_dword {vtmp}, {vaddr0}, s[34:35] sc1")
        a.wait_vm_all()
    a.e(f"v_readfirstlane_b32 s38, {vtmp}")
    a.e(f"""
    s_cmp_lg_u32 s38, 0
    s_cbranch_scc1 {Lx}
    s_mov_b32 s61, 0
    """)
    a.label(L)
    a.e(f"""
    global_load_dword {vtmp}, {vaddr0}, s[34:35] sc1
    s_waitcnt vmcnt(0)
    v_readfirstlane_b32 s38, {vtmp}
    s_add_u32 s61, s61, 1
    s_cmp_gt_u32 s61, {SPIN_LIMIT}
    s_cbranch_scc1 {Lx}
    s_cmp_eq_u32 s38, 0
    s_cbranch_scc1 {L}
    """)
    a.vm.pop()
    a.label(Lx)

def phi_instrs(acc, tmp, out, zsum=None):
    L = []
    for i in range(16):
        L.append(f"v_mul_f32 v{tmp+i}, s62, v{acc+i}")
    for i in range(16):
        L.append(f"v_exp_f32 v{tmp+i}, v{tmp+i} clamp")
        L.append(f"v_max_f32 v{acc+i}, s64, v{acc+i}")
    for i in range(16):
        L.append(f"v_add_f32 v{acc+i}, v{acc+i}, v{tmp+i}")
    if zsum is not None:
        for m in range(8):
            L.append(f"v_add_f32 v{tmp+m}, v{acc+2*m}, v{acc+2*m+1}")
        for m in range(4):
            L.append(f"v_add_f32 v{tmp+m}, v{tmp+m}, v{tmp+4+m}")
        L.append(f"v_add_f32 v{tmp}, v{tmp}, v{tmp+2}")
        L.append(f"v_add_f32 v{tmp+1}, v{tmp+1}, v{tmp+3}")
        L.append(f"v_add_f32 v{zsum}, v{tmp}, v{tmp+1}")
    for m in range(8):
        L.append(f"v_cvt_pk_bf16_f32 v{out+m}, v{acc+2*m}, v{acc+2*m+1}")
    return L

def spread(side, nslots):
    out = []; n = len(side); k = 0
    for i in range(nslots):
        e = (n*(i+1))//nslots
        out.append(side[k:e]); k = e
    return out

SEQ = []
for c in range(8): SEQ += [("X", c), ("Q", c)]
SEQ += [("K", c) for c in range(8)] + [("V", c) for c in range(8)] + [("O", c) for c in range(8)]
NSLOT = 10
NINIT = 6
XR = 128
WF, T16, ACCQ, ACCK, ACCV = 32, 64, 80, 96, 112

def b_issue_jobs(n):
    kind, c = SEQ[n]
    pos = n % NSLOT
    pre = []
    if kind == "X":
        so, v0, srd = f"s{16+c}", 2, "s[40:43]"
    elif kind in "QKV":
        so, v0, srd = f"s{8+c}", 4, "s[44:47]"
        if kind in "KV" and c == 0:
            pre = [("v_add_u32 v4, 1024, v4", None), ("v_add_u32 v5, 1024, v5", None)]
    else:
        so, v0, srd = "s61", 6, "s[48:51]"
        pre = [(f"s_mov_b32 s61, {c*65536}", None)]
    return [pre + [(f"s_add_u32 m0, s60, {pos*8192}", None),
             (f"buffer_load_dwordx4 v{v0}, {srd}, {so} offen lds", f"slot{n}")],
            [(f"buffer_load_dwordx4 v{v0+1}, {srd}, {so} offen offset:1024 lds", f"slot{n}")]]

def emit_job(a, job):
    for t in job:
        if isinstance(t, str): a.e(t)
        else: a.e(t[0], vm=t[1])

def lds_base(n):
    pos = n % NSLOT
    return (0, pos*8192) if pos < 5 else (1, (pos-5)*8192)

def wfrag_reads(a, n, s, dst, tag=None):
    hi, off = lds_base(n)
    va = "v17" if hi else "v16"
    a.e(f"ds_read_b64_tr_b16 v[{dst}:{dst+1}], {va} offset:{off + s*2048}", lg=tag)
    a.e(f"ds_read_b64_tr_b16 v[{dst+2}:{dst+3}], {va} offset:{off + s*2048 + 512}", lg=tag)

def role_B(a, cfg):
    a.c("================= role B =================")
    if cfg.prioB: a.e(f"s_setprio {cfg.prioB}")
    a.e("""
    s_and_b32 s66, s3, 7            ; xcd
    s_lshr_b32 s67, s3, 3           ; jj
    s_lshr_b32 s56, s66, 1
    s_lshl_b32 s56, s56, 3
    s_and_b32 s68, s67, 7
    s_add_u32 s56, s56, s68         ; tb
    s_and_b32 s57, s66, 1
    s_lshl_b32 s57, s57, 2
    s_lshr_b32 s68, s67, 3
    s_add_u32 s57, s57, s68         ; hq
    s_and_b32 s58, s39, 1           ; tt
    s_lshr_b32 s59, s39, 1
    s_lshl_b32 s60, s39, 11
    s_mov_b32 s62, 0x3fb8aa3b
    s_mov_b32 s63, 0x3fb8aa3b
    s_mov_b32 s64, 0x358637bd
    s_mov_b32 s65, 0x358637bd
    """)
    a.e("""
    v_lshrrev_b32 v32, 3, v1        ; l>>3
    v_and_b32 v33, 7, v1            ; l&7
    v_lshrrev_b32 v34, 4, v1        ; l>>4
    s_lshl_b32 s68, s56, 6          ; tb*64
    s_lshl_b32 s69, s39, 4          ; 16w
    s_add_u32 s68, s68, s69
    v_add_u32 v35, s68, v32         ; row
    v_lshlrev_b32 v35, 10, v35
    v_xor_b32 v36, v33, v34
    v_lshl_add_u32 v2, v36, 4, v35
    v_add_u32 v37, 4, v34
    v_xor_b32 v36, v33, v37
    v_lshl_add_u32 v3, v36, 4, v35
    v_add_u32 v3, 7168, v3          ; +8 rows - 1024
    v_and_b32 v36, 1, v34
    v_lshlrev_b32 v36, 2, v36
    v_xor_b32 v36, v33, v36         ; q
    v_lshlrev_b32 v36, 4, v36       ; q*16
    v_add_u32 v37, s69, v32         ; 16w + (l>>3)
    v_mul_u32_u24 v38, 3072, v37
    s_lshl_b32 s68, s57, 7          ; hq*128
    v_add3_u32 v4, v38, v36, s68
    v_add_u32 v5, 23552, v4         ; +8*3072 - 1024
    v_lshlrev_b32 v38, 10, v37
    v_add3_u32 v6, v38, v36, s68
    v_add_u32 v7, 7168, v6
    """)
    a.e("""
    s_waitcnt lgkmcnt(0)
    s_mov_b32 s40, s26
    s_and_b32 s41, s27, 0xffff
    s_mov_b32 s42, 0x200000
    s_mov_b32 s43, 0x20000
    s_mov_b32 s44, s28
    s_and_b32 s45, s29, 0xffff
    s_mov_b32 s46, 0x180000
    s_mov_b32 s47, 0x20000
    s_mov_b32 s48, s30
    s_and_b32 s49, s31, 0xffff
    s_mov_b32 s50, 0x80000
    s_mov_b32 s51, 0x20000
    """)
    a.e("""
    v_mov_b32 v31, 0
    s_cmp_lg_u32 s3, 0
    s_cbranch_scc1 L_b_nononce
    s_cmp_lg_u32 s39, 0
    s_cbranch_scc1 L_b_nononce
    s_memrealtime s[68:69]
    s_waitcnt lgkmcnt(0)
    s_or_b32 s68, s68, 1
    v_mov_b32 v30, s68
    s_mov_b64 exec, 1
    global_store_dword v31, v30, s[34:35] sc1
    s_mov_b64 exec, -1
    """)
    a.vm.pop()
    a.label("L_b_nononce")
    if cfg.b_exit:
        a.e("s_branch L_end")
    for c in range(8):
        a.e(f"s_mov_b32 s{8+c}, {c*64*3072}")
        a.e(f"s_mov_b32 s{16+c}, {c*128}")
    stamp(a, cfg, 1)
    for n in range(cfg.ninit):
        for job in b_issue_jobs(n): emit_job(a, job)
    a.e("""
    v_and_b32 v32, 31, v1           ; i
    v_lshrrev_b32 v33, 5, v1        ; hh
    s_lshl_b32 s68, s58, 5
    v_add_u32 v34, s68, v32         ; 32tt + i
    v_lshlrev_b32 v34, 7, v34       ; *128
    v_lshrrev_b32 v35, 1, v32
    v_and_b32 v35, 7, v35           ; f
    """)
    for s in range(4):
        a.e(f"""
        v_add_u32 v36, {2*s}, v33
        v_xor_b32 v36, v36, v35
        v_lshl_add_u32 v{8+s}, v36, 4, v34
        v_add_u32 v{12+s}, 40960, v{8+s}
        """)
    a.e(f"""
    v_lshrrev_b32 v34, 2, v1
    v_and_b32 v34, 3, v34           ; rr
    v_and_b32 v35, 3, v1            ; cc
    v_lshrrev_b32 v36, 4, v1
    v_and_b32 v36, 1, v36           ; G&1
    v_lshlrev_b32 v36, 1, v36       ; 2(G&1)
    v_lshrrev_b32 v37, 1, v35       ; cc>>1
    v_add_u32 v36, v36, v37         ; 2(G&1) + (cc>>1)
    v_lshrrev_b32 v37, 1, v34
    v_lshlrev_b32 v37, 2, v37       ; 4(rr>>1)
    v_and_b32 v38, 1, v35
    v_lshlrev_b32 v38, 3, v38       ; 8(cc&1)
    s_lshl_b32 s68, s59, 2
    v_add_u32 v39, s68, v36
    v_xor_b32 v39, v39, v37
    v_lshl_add_u32 v39, v39, 4, v38
    v_lshl_add_u32 v40, v33, 3, v34
    v_lshl_add_u32 v16, v40, 7, v39
    v_add_u32 v17, 40960, v16
    v_xor_b32 v39, v36, v37
    v_lshl_add_u32 v39, v39, 4, v38
    v_lshl_add_u32 v40, v33, 2, v34
    v_lshl_add_u32 v18, v40, 7, v39
    s_lshl_b32 s68, s59, 15
    s_add_u32 s68, s68, 16384
    v_add_u32 v18, s68, v18
    v_xor_b32 v19, 64, v18
    s_lshl_b32 s68, s59, 1
    s_add_u32 s68, s68, s58
    s_xor_b32 s69, s68, 1
    s_lshl_b32 s66, s68, 10
    s_add_u32 s66, s66, 0
    v_lshl_add_u32 v22, v1, 4, s66
    s_lshl_b32 s66, s69, 10
    s_add_u32 s66, s66, 0
    v_lshl_add_u32 v23, v1, 4, s66
    s_lshl_b32 s66, s68, 8
    s_add_u32 s66, s66, 4096
    v_lshl_add_u32 v24, v1, 2, s66
    s_lshl_b32 s66, s69, 8
    s_add_u32 s66, s66, 4096
    v_lshl_add_u32 v25, v1, 2, s66
    ; global kv partial block: KVP + (hp*32+tb)*2176
    s_lshl_b32 s68, s57, 1
    s_add_u32 s68, s68, s59
    s_lshl_b32 s68, s68, 5
    s_add_u32 s68, s68, s56
    s_mul_i32 s68, s68, 2176
    s_add_u32 s68, s68, {KVP}
    s_lshl_b32 s69, s58, 10
    s_add_u32 s69, s69, s68
    v_lshl_add_u32 v26, v1, 4, s69
    v_lshrrev_b32 v40, 4, v1
    v_and_b32 v40, 1, v40
    v_lshlrev_b32 v40, 3, v40       ; 8c
    v_and_b32 v41, 4, v1            ; 4*hh'
    v_add_u32 v40, v40, v41
    v_lshrrev_b32 v41, 2, v1
    v_and_b32 v41, 2, v41
    v_add_u32 v40, v40, v41
    v_lshrrev_b32 v41, 1, v1
    v_and_b32 v41, 1, v41
    v_add_u32 v40, v40, v41         ; zg
    s_add_u32 s68, s68, 2048
    v_lshl_add_u32 v27, v40, 3, s68
    s_lshl_b32 s68, s56, 1
    s_add_u32 s68, s68, s58
    s_lshl_b32 s68, s68, 5
    s_lshl_b32 s69, s57, 2
    s_add_u32 s68, s68, s69
    s_lshl_b32 s69, s59, 1
    s_add_u32 s68, s68, s69
    s_lshl_b32 s68, s68, 10
    s_add_u32 s68, s68, {PQ}
    v_lshl_add_u32 v28, v1, 4, s68
    v_and_b32 v40, 16, v1
    v_cmp_ne_u32 s[52:53], 0, v40
    s_sub_u32 s54, 0, s58
    s_mov_b32 s55, s54
    """)
    a.e(f"""
    s_cmp_lg_u32 s39, 3
    s_cbranch_scc1 L_b_nopt
    s_lshl_b32 s68, s56, 7
    s_add_u32 s68, s68, {PQF}
    v_mov_b32 v40, s68
    global_load_dword v21, v40, s[36:37] sc1
    """)
    a.vm.pop()
    a.label("L_b_nopt")
    for r in range(16):
        a.e(f"v_mov_b32 v{ACCQ+r}, s64")
    for r in range(16):
        a.e(f"v_mov_b32 v{ACCK+r}, s64")
    def frag_reads(g, k):
        L = []
        tag = f"f{g}_{k}"
        if g < 8:
            nx, nw = 2*g, 2*g+1
            hi, off = lds_base(nx)
            L.append((f"ds_read_b128 v[{XR+16*g+4*k}:{XR+16*g+4*k+3}], v{(12 if hi else 8)+k} offset:{off}", tag))
            d = WF + 16*(g % 2) + 4*k; n = nw; sstep = k
        else:
            n = 2*g + k//4; sstep = k % 4; d = WF + 4*k
        h2, o2 = lds_base(n)
        va = "v17" if h2 else "v16"
        L.append((f"ds_read_b64_tr_b16 v[{d}:{d+1}], {va} offset:{o2 + sstep*2048}", tag))
        L.append((f"ds_read_b64_tr_b16 v[{d+2}:{d+3}], {va} offset:{o2 + sstep*2048 + 512}", tag))
        return L
    def nsteps(g): return 4 if g < 8 else 8
    def emit_side(lst):
        for t in lst:
            if isinstance(t, str): a.e(t)
            elif t[0] == "WVM": a.wait_vm(t[1])
            else: a.e(t[0], vm=t[1])
    side = {}
    qe = phi_instrs(ACCQ, T16, ACCQ)
    qe += [(f"global_store_dwordx4 v28, v[{ACCQ}:{ACCQ+3}], s[36:37] sc1", "pqst"),
           (f"global_store_dwordx4 v28, v[{ACCQ+4}:{ACCQ+7}], s[36:37] offset:1024 sc1", "pqst")]
    gaps = [(g, k) for g in range(8, 12) for k in range(8)][1:26]
    for gp, grp in zip(gaps, spread(qe, len(gaps))): side[gp] = grp
    ke = phi_instrs(ACCK, T16, ACCK, zsum=29)
    ke += ["v_mov_b32 v30, v29", "v_permlane32_swap_b32 v29, v30", "v_add_f32 v29, v29, v30"]
    gaps = [(g, k) for g in range(12, 16) for k in range(8)][1:31]
    for gp, grp in zip(gaps, spread(ke, len(gaps))): side[gp] = grp
    side[(9, 7)] = side.get((9, 7), []) + ["s_lshl_b32 s68, s56, 7", f"s_add_u32 s68, s68, {PQF}", "v_and_b32 v2, 7, v1", "v_lshl_add_u32 v2, v2, 2, s68"]
    rb = f"""
    s_mov_b32 s40, s36
    s_and_b32 s41, s37, 0xffff
    s_mov_b32 s42, {KVF + 65536}
    s_mov_b32 s43, 0x20000
    s_lshl_b32 s68, s56, 1
    s_add_u32 s68, s68, s58
    s_lshl_b32 s68, s68, 5
    s_lshl_b32 s69, s59, 4
    s_add_u32 s68, s68, s69
    s_lshl_b32 s68, s68, 10
    s_add_u32 s68, s68, {PQ}
    v_lshl_add_u32 v3, v1, 4, s68
    v_add_u32 v31, 8192, v3
    v_lshrrev_b32 v13, 7, v0
    v_mul_u32_u24 v13, {KVBLK}, v13
    v_and_b32 v20, 127, v0
    v_lshl_add_u32 v13, v20, 4, v13
    v_add_u32 v13, {KVF}, v13
    v_lshrrev_b32 v14, 3, v20
    v_mul_u32_u24 v14, {KVBLK}, v14
    v_and_b32 v21, 7, v0
    v_lshl_add_u32 v14, v21, 4, v14
    v_add_u32 v14, {KVF+2048}, v14
    v_lshrrev_b32 v15, 7, v0
    v_lshlrev_b32 v15, 1, v15
    v_bfe_u32 v21, v0, 4, 1
    v_add_u32 v15, v15, v21
    v_mul_u32_u24 v15, 544, v15
    v_bfe_u32 v21, v0, 5, 1
    v_mul_u32_u24 v21, 272, v21
    v_add_u32 v15, v15, v21
    v_and_b32 v21, 15, v0
    v_lshl_add_u32 v15, v21, 4, v15
    v_bfe_u32 v21, v0, 6, 1
    v_lshl_add_u32 v15, v21, 3, v15
    v_lshrrev_b32 v12, 3, v20
    v_lshlrev_b32 v12, 1, v12
    v_bfe_u32 v21, v0, 2, 1
    v_add_u32 v12, v12, v21
    v_mul_u32_u24 v12, 544, v12
    v_bfe_u32 v21, v0, 1, 1
    v_mul_u32_u24 v21, 272, v21
    v_add_u32 v12, v12, v21
    v_and_b32 v21, 1, v0
    v_lshl_add_u32 v12, v21, 3, v12
    v_add_u32 v12, 256, v12
    v_and_b32 v30, 15, v1
    v_mul_u32_u24 v30, {KVBLK}, v30
    v_add_u32 v30, {KVF+2048}, v30
    """.strip().split("\n")
    rb = [x.strip() for x in rb]
    rb += [f"s_mov_b32 s{8+i}, {1024*i}" for i in range(8)] + [f"s_mov_b32 s{16+k}, {2*KVBLK*k}" for k in range(8)]
    if not cfg.late_o:
        gaps = [(14, k) for k in range(5, 8)] + [(15, k) for k in range(8)]
        for gp, grp in zip(gaps, spread(rb, len(gaps))): side[gp] = side.get(gp, []) + grp

    def kv_publish():
        a.c("--- kv partial: V cvt, MFMA, select, pair exchange, publish")
        a.e("s_barrier")
        a.e("global_load_dword v21, v2, s[36:37] sc1", vm="pqf")
        for m in range(8):
            a.e(f"v_cvt_pk_bf16_f32 v{ACCV+m}, v{ACCV+2*m}, v{ACCV+2*m+1}")
        a.e(f"v_mfma_f32_32x32x16_bf16 v[{T16}:{T16+15}], v[{ACCK}:{ACCK+3}], v[{ACCV}:{ACCV+3}], 0")
        a.e(f"v_mfma_f32_32x32x16_bf16 v[{T16}:{T16+15}], v[{ACCK+4}:{ACCK+7}], v[{ACCV+4}:{ACCV+7}], v[{T16}:{T16+15}]")
        a.e("ds_write_b32 v24, v29", lg="xw")
        SEL = ACCK + 8; SND = ACCV + 8; KEEP = ACCV + 12
        for j in range(8): a.e(f"v_cndmask_b32 v{SEL+j}, v{T16+j}, v{T16+8+j}, s[52:53]")
        for j in range(4): a.e(f"v_cndmask_b32 v{SND+j}, v{SEL+4+j}, v{SEL+j}, s[54:55]")
        a.e(f"ds_write_b128 v22, v[{SND}:{SND+3}]", lg="xw")
        for j in range(4): a.e(f"v_cndmask_b32 v{KEEP+j}, v{SEL+j}, v{SEL+4+j}, s[54:55]")
        a.wait_lg("xw")
        a.e("s_barrier")
        a.e(f"ds_read_b128 v[{SEL}:{SEL+3}], v23", lg="xr")
        a.e(f"ds_read_b32 v30, v25", lg="xr")
        a.wait_lg("xr")
        a.wait_vm("pqf")
        a.e("v_cmp_ne_u32 s[66:67], s38, v21")
        for j in range(4): a.e(f"v_add_f32 v{KEEP+j}, v{KEEP+j}, v{SEL+j}")
        a.e(f"""
        v_add_f32 v29, v29, v30
        v_cvt_pk_bf16_f32 v{SEL}, v{KEEP}, v{KEEP+1}
        v_mov_b32 v{SEL+1}, s38
        v_cvt_pk_bf16_f32 v{SEL+2}, v{KEEP+2}, v{KEEP+3}
        v_mov_b32 v{SEL+3}, s38
        v_mov_b32_dpp v30, v29 quad_perm:[1,0,3,2] row_mask:0xf bank_mask:0xf
        global_store_dwordx4 v26, v[{SEL}:{SEL+3}], s[36:37] sc1
        v_cvt_pk_bf16_f32 v{SEL+4}, v29, v30
        v_mov_b32 v{SEL+5}, s38
        s_andn2_b64 exec, 0x55555555, s[54:55]
        s_cbranch_execz L_b_noz
        global_store_dwordx2 v27, v[{SEL+4}:{SEL+5}], s[36:37] sc1
        """)
        a.vm.pop()
        a.label("L_b_noz")
        a.e("s_mov_b64 exec, -1")
        stamp(a, cfg, 6)

    a.wait_vm(["slot0", "slot1"])
    a.e("s_barrier")
    stamp(a, cfg, 2)
    for k in range(4):
        for t, tag in frag_reads(0, k): a.e(t, lg=tag)
    nxt = cfg.ninit
    pend = []
    while nxt < NSLOT:
        pend += b_issue_jobs(nxt); nxt += 1
    for g in range(16):
        a.c(f"--- group {g}")
        if g == 13: poll_nonce(a, "v21", "v31", first_tag="nonce")
        if g == 14: a.wait_vm("pqst")
        if g < 15:
            a.wait_vm([f"slot{2*g+2}", f"slot{2*g+3}"])
        a.e("s_barrier")
        if g == 14:
            a.e("""
            s_cmp_lg_u32 s39, 3
            s_cbranch_scc1 L_b_noflag
            s_lshl_b32 s68, s56, 7
            s_lshl_b32 s69, s57, 2
            s_add_u32 s68, s68, s69
            s_add_u32 s68, s68, %d
            v_mov_b32 v20, s68
            v_mov_b32 v21, s38
            s_mov_b64 exec, 1
            global_store_dword v20, v21, s[36:37] sc1
            s_mov_b64 exec, -1
            """ % PQF)
            a.vm.pop()
            a.label("L_b_noflag")
        if g in (1, 8, 12): stamp(a, cfg, {1: 3, 8: 4, 12: 5}[g])
        jobs = list(pend); pend = []
        if g >= 1:
            for _ in range(2):
                if nxt < (32 if cfg.late_o else 40): jobs += b_issue_jobs(nxt); nxt += 1
        if g == 9:
            jobs.append([("global_load_dword v21, v31, s[34:35] sc1", "nonce")])
        ns = nsteps(g)
        jsp = spread(jobs, ns)
        for k in range(ns):
            if k % 2 == 0: a.wait_lg([f"f{g}_{k}", f"f{g}_{k+1}"])
            if g < 8:
                d = WF + 16*(g % 2) + 4*k
                a.e(f"v_mfma_f32_32x32x16_bf16 v[{ACCQ}:{ACCQ+15}], v[{d}:{d+3}], v[{XR+16*g+4*k}:{XR+16*g+4*k+3}], v[{ACCQ}:{ACCQ+15}]")
            elif g < 12:
                kk = (g - 8)*8 + k
                a.e(f"v_mfma_f32_32x32x16_bf16 v[{ACCK}:{ACCK+15}], v[{XR+4*kk}:{XR+4*kk+3}], v[{WF+4*k}:{WF+4*k+3}], v[{ACCK}:{ACCK+15}]")
            else:
                kk = (g - 12)*8 + k
                cc = "0" if (g == 12 and k == 0) else f"v[{ACCV}:{ACCV+15}]"
                a.e(f"v_mfma_f32_32x32x16_bf16 v[{ACCV}:{ACCV+15}], v[{XR+4*kk}:{XR+4*kk+3}], v[{WF+4*k}:{WF+4*k+3}], {cc}")
            jl = [list(jb) for jb in jsp[k]]
            if jl:
                while jl[0] and not jl[0][0][0].startswith(("buffer_load", "global_load")):
                    a.e(jl[0].pop(0)[0])
            if g < 15:
                nx = [k, 4 + k] if g == 7 else [k]
                for k2 in nx:
                    for t, tag in frag_reads(g + 1, k2): a.e(t, lg=tag)
            for jb in jl: emit_job(a, jb)
            emit_side(side.get((g, k), []))
    kv_publish()
    a.e("s_mov_b64 s[54:55], s[66:67]")
    def pq_first(sfx):
        for t in rb: a.e(t)
        a.e(f"""
        s_cmp_eq_u64 s[54:55], 0
        s_cbranch_scc1 L_b_pqf_go{sfx}
        s_mov_b32 s61, 0
        """)
        a.label(f"L_b_pqf_poll{sfx}")
        a.e(f"""
        global_load_dword v21, v2, s[36:37] sc1
        s_add_u32 s61, s61, 1
        s_waitcnt vmcnt(0)
        v_cmp_ne_u32 vcc, s38, v21
        s_cmp_gt_u32 s61, {SPIN_LIMIT}
        s_cbranch_scc1 L_b_pqf_go{sfx}
        s_cbranch_vccz L_b_pqf_go{sfx}
        s_branch L_b_pqf_poll{sfx}
        """)
        a.label(f"L_b_pqf_go{sfx}")
        for i in range(8):
            a.e(f"buffer_load_dwordx4 v[{32+4*i}:{35+4*i}], v3, s[40:43], s{8+i} offen sc1")
    a.e("""
    s_cmp_eq_u32 s39, 0
    s_cbranch_scc1 L_b_w0tail
    """)
    for n in range(32, 40):
        for jb in b_issue_jobs(n): emit_job(a, jb)
    a.e("""
    s_cmp_eq_u32 s39, 1
    s_cbranch_scc0 L_b_noshare
    v_subrev_u32 v22, 16384, v6
    v_subrev_u32 v23, 16384, v7
    """)
    for n in range(32, 40):
        c = SEQ[n][1]; pos = n % NSLOT
        a.e(f"s_mov_b32 m0, {pos*8192}")
        a.e(f"s_mov_b32 s61, {c*65536}")
        a.e(f"buffer_load_dwordx4 v22, s[48:51], s61 offen lds")
        a.e(f"buffer_load_dwordx4 v23, s[48:51], s61 offen offset:1024 lds")
    a.label("L_b_noshare")
    pq_first("a")
    a.e("s_waitcnt vmcnt(8)")
    a.e("s_branch L_b_tailjoin")
    a.label("L_b_w0tail")
    reducer(a, cfg)
    pq_first("b")
    a.label("L_b_tailjoin")
    a.vm = []; a.lg = []
    stamp(a, cfg, 7)
    if not cfg.do_B2:
        stamp(a, cfg, 8)
        stamps_out(a, cfg, 9)
        a.e("s_branch L_end")
        return
    role_B2(a, cfg)

def tag_check(a, regs_tags, acc="v20"):
    tt = 0
    for idx in range(8):
        s0, s1, s2 = (idx >> 2) & 1, (idx >> 1) & 1, idx & 1
        if s0 | (s1 ^ s2): tt |= 1 << idx
    first = True
    for r in regs_tags:
        if first:
            a.e(f"v_xor_b32 {acc}, s38, v{r}"); first = False
        else:
            a.e(f"v_bitop3_b32 {acc}, {acc}, v{r}, s38 bitop3:{hex(tt)}")
    a.e(f"v_cmp_ne_u32 vcc, 0, {acc}")

def reducer(a, cfg):
    def reduce_line(base, dst_addr, tagsok_label):
        S = 64; T = 68
        for k in range(4):
            r = base + 4*k
            for pidx in range(2):
                src = r + 2*pidx
                if k == 0:
                    a.e(f"v_lshlrev_b32 v{S+2*pidx}, 16, v{src}")
                    a.e(f"v_and_b32 v{S+1+2*pidx}, 0xffff0000, v{src}")
                else:
                    a.e(f"v_lshlrev_b32 v{T+2*pidx}, 16, v{src}")
                    a.e(f"v_and_b32 v{T+1+2*pidx}, 0xffff0000, v{src}")
                    a.e(f"v_add_f32 v{S+2*pidx}, v{S+2*pidx}, v{T+2*pidx}")
                    a.e(f"v_add_f32 v{S+1+2*pidx}, v{S+1+2*pidx}, v{T+1+2*pidx}")
        for j in range(4): a.e(f"v_add_f32_dpp v{S+j}, v{S+j}, v{S+j} row_ror:8 row_mask:0xf bank_mask:0xf")
        for j in range(4): a.e(f"v_mov_b32 v{T+j}, v{S+j}")
        for j in range(4): a.e(f"v_permlane16_swap_b32 v{S+j}, v{T+j}")
        for j in range(4): a.e(f"v_add_f32 v{S+j}, v{S+j}, v{T+j}")
        for j in range(4): a.e(f"v_mov_b32 v{T+j}, v{S+j}")
        for j in range(4): a.e(f"v_permlane32_swap_b32 v{S+j}, v{T+j}")
        for j in range(4): a.e(f"v_add_f32 v{S+j}, v{S+j}, v{T+j}")
        a.e(f"""
        v_cvt_pk_bf16_f32 v72, v{S}, v{S+1}
        v_mov_b32 v73, s38
        v_cvt_pk_bf16_f32 v74, v{S+2}, v{S+3}
        v_mov_b32 v75, s38
        s_mov_b64 exec, 0xff
        global_store_dwordx4 {dst_addr}, v[72:75], s[36:37] sc1
        s_mov_b64 exec, -1
        """)
    a.e(f"""
    s_lshr_b32 s66, s3, 4
    s_and_b32 s67, s3, 15
    s_mul_i32 s69, s66, {32*KVBLK}
    s_add_u32 s69, s69, {KVP}
    s_lshl_b32 s52, s67, 7
    s_add_u32 s68, s69, s52
    v_and_b32 v22, 7, v1
    v_lshlrev_b32 v22, 4, v22
    v_lshrrev_b32 v23, 3, v1
    v_mul_u32_u24 v23, {KVBLK}, v23
    v_add_u32 v23, v22, v23
    v_add_u32 v24, s68, v23
    v_add_u32 v25, {8*KVBLK}, v24
    v_add_u32 v26, {16*KVBLK}, v24
    v_add_u32 v27, {24*KVBLK}, v24
    s_add_u32 s68, s69, 2048
    v_add_u32 v8, s68, v23
    v_add_u32 v9, {8*KVBLK}, v8
    v_add_u32 v10, {16*KVBLK}, v8
    v_add_u32 v11, {24*KVBLK}, v8
    s_mul_i32 s69, s66, {KVBLK}
    s_add_u32 s69, s69, {KVF}
    s_add_u32 s68, s69, s52
    v_add_u32 v23, s68, v22
    s_add_u32 s68, s69, 2048
    v_add_u32 v29, s68, v22
    """)
    a.e("""
    s_mov_b32 s61, 0
    """)
    a.label("L_b_red_poll")
    a.e("""
    global_load_dwordx4 v[96:99], v24, s[36:37] sc1
    global_load_dwordx4 v[100:103], v25, s[36:37] sc1
    global_load_dwordx4 v[104:107], v26, s[36:37] sc1
    global_load_dwordx4 v[108:111], v27, s[36:37] sc1
    global_load_dwordx4 v[112:115], v8, s[36:37] sc1
    global_load_dwordx4 v[116:119], v9, s[36:37] sc1
    global_load_dwordx4 v[120:123], v10, s[36:37] sc1
    global_load_dwordx4 v[124:127], v11, s[36:37] sc1
    s_add_u32 s61, s61, 1
    s_waitcnt vmcnt(0)
    """)
    tag_check(a, [97+2*q for q in range(16)])
    a.e(f"""
    s_cmp_gt_u32 s61, {SPIN_LIMIT}
    s_cbranch_scc1 L_b_red_go
    s_cbranch_vccz L_b_red_go
    s_sleep {cfg.sl_red}
    s_branch L_b_red_poll
    """)
    a.label("L_b_red_go")
    a.e("""
    s_cmp_lg_u32 s67, 0
    s_cbranch_scc1 L_b_red_a
    """)
    reduce_line(112, "v29", None)
    a.label("L_b_red_a")
    reduce_line(96, "v23", None)
    stamp(a, cfg, 10)

def role_B2(a, cfg):
    WO = 128
    ACC = 96
    PQR = 32
    CN = [64, 80]
    KAF = [8, 12]
    OF = [4, 16]
    KA = 0
    PQL = 17408
    a.c("================= B2 =================")
    a.e("s_barrier")
    for i in range(16):
        for nt in range(2):
            d = WO + 8*i + 4*nt
            off = (i//4)*8192 + (i % 4)*2048
            a.e(f"ds_read_b64_tr_b16 v[{d}:{d+1}], v{18+nt} offset:{off}", lg="wo")
            a.e(f"ds_read_b64_tr_b16 v[{d+2}:{d+3}], v{18+nt} offset:{off+1024}", lg="wo")
    a.e("s_waitcnt lgkmcnt(0)")
    a.e("s_barrier")
    a.vm = []; a.lg = []
    stamp(a, cfg, 9)
    if cfg.zpoll:
        a.e("""
        s_mov_b32 s61, 0
        s_cmp_eq_u32 s39, 0
        s_cbranch_scc0 L_b_kz_go
        """)
        a.label("L_b_kz_poll")
        a.e(f"""
        buffer_load_dwordx4 v[96:99], v30, s[40:43], 0 offen sc1
        s_add_u32 s61, s61, 1
        s_waitcnt vmcnt(0)
        v_xor_b32 v20, s38, v97
        v_cmp_ne_u32 vcc, 0, v20
        s_cmp_gt_u32 s61, {SPIN_LIMIT}
        s_cbranch_scc1 L_b_kz_go
        s_cbranch_vccz L_b_kz_go
        s_sleep {cfg.sl_kz}
        s_branch L_b_kz_poll
        """)
        a.label("L_b_kz_go")
        stamp(a, cfg, 11)
        a.e("s_barrier")
    def ka_loads():
        for k in range(8):
            a.e(f"buffer_load_dwordx4 v[{64+4*k}:{67+4*k}], v13, s[40:43], s{16+k} offen sc1")
        a.e("buffer_load_dwordx4 v[96:99], v14, s[40:43], 0 offen sc1")
    a.e("s_mov_b32 s61, 0")
    a.e("s_branch L_b_kvf_first")
    a.label("L_b_kvf_poll")
    a.e(f"s_sleep {cfg.sl_ka}")
    a.label("L_b_kvf_first")
    ka_loads()
    a.e("s_waitcnt vmcnt(0)")
    a.label("L_b_ka_chk")
    a.e("s_add_u32 s61, s61, 1")
    tag_check(a, [65+2*q for q in range(18)])
    a.e(f"""
    s_cmp_gt_u32 s61, {SPIN_LIMIT}
    s_cbranch_scc1 L_b_kvf_go
    s_cbranch_vccnz L_b_kvf_poll
    """)
    a.label("L_b_kvf_go")
    stamp(a, cfg, 12)
    stampval(a, cfg, 8, "s61")
    a.vm = []
    for k in range(8):
        a.e(f"v_mov_b32 v{65+4*k}, v{66+4*k}")
        a.e(f"ds_write_b64 v15, v[{64+4*k}:{65+4*k}] offset:{KA + 2176*k}")
    a.e("v_mov_b32 v97, v98")
    a.e(f"ds_write_b64 v12, v[96:97] offset:{KA}")
    a.e(f"""
    v_and_b32 v22, 31, v1
    v_min_u32 v22, 16, v22
    v_lshlrev_b32 v22, 4, v22
    v_lshrrev_b32 v23, 5, v1
    v_mul_u32_u24 v23, 272, v23
    s_mul_i32 s68, s59, {16*544}
    v_add3_u32 v22, v22, v23, s68
    s_waitcnt vmcnt(0) lgkmcnt(0)
    s_barrier
    """)
    a.vm = []; a.lg = []
    stamp(a, cfg, 13)
    def kaf_read(i):
        a.e(f"ds_read_b128 v[{KAF[i%2]}:{KAF[i%2]+3}], v22 offset:{KA + 544*i}", lg=f"ka{i}")
    def out_mfma(i):
        o = OF[i % 2]
        for nt in range(2):
            w = WO + 8*i + 4*nt
            cc = "0" if i == 0 else f"v[{ACC+16*nt}:{ACC+16*nt+15}]"
            a.e(f"v_mfma_f32_32x32x16_bf16 v[{ACC+16*nt}:{ACC+16*nt+15}], v[{w}:{w+3}], v[{o}:{o+3}], {cc}")
    def num_mfma(i):
        a.wait_lg(f"ka{i}")
        p = PQR + 4*(i % 8)
        if i >= 8: a.wait_vm(f"pq{i}")
        a.e(f"v_mfma_f32_32x32x16_bf16 v[{CN[i%2]}:{CN[i%2]+15}], v[{KAF[i%2]}:{KAF[i%2]+3}], v[{p}:{p+3}], 0")
        if i < 8:
            a.e(f"buffer_load_dwordx4 v[{p}:{p+3}], v31, s[40:43], s{8+i} offen sc1", vm=f"pq{i+8}")
    def out1(i, nt):
        o = OF[i % 2]
        w = WO + 8*i + 4*nt
        cc = "0" if i == 0 else f"v[{ACC+16*nt}:{ACC+16*nt+15}]"
        a.e(f"v_mfma_f32_32x32x16_bf16 v[{ACC+16*nt}:{ACC+16*nt+15}], v[{w}:{w+3}], v[{o}:{o+3}], {cc}")
    kaf_read(0); kaf_read(1)
    num_mfma(0)
    for i in range(16):
        if i + 1 < 16:
            num_mfma(i + 1)
        c = CN[i % 2]
        a.e(f"v_add_f32 v20, s64, v{c+8}")
        a.e(f"v_rcp_f32 v20, v20")
        if i + 2 < 16:
            kaf_read(i + 2)
        for jj in range(2): a.e(f"v_mul_f32 v{c+jj}, v{c+jj}, v20")
        if i >= 1: out1(i - 1, 0)
        for jj in range(2, 7): a.e(f"v_mul_f32 v{c+jj}, v{c+jj}, v20")
        if i >= 1: out1(i - 1, 1)
        a.e(f"v_mul_f32 v{c+7}, v{c+7}, v20")
        o = OF[i % 2]
        for m in range(4):
            a.e(f"v_cvt_pk_bf16_f32 v{o+m}, v{c+2*m}, v{c+2*m+1}")
    out1(15, 0); out1(15, 1)
    stamp(a, cfg, 14)
    a.e("""
    s_cmp_lg_u32 s3, 0
    s_cbranch_scc1 L_b_norst
    s_cmp_lg_u32 s39, 0
    s_cbranch_scc1 L_b_norst
    v_mov_b32 v20, 0
    s_mov_b64 exec, 1
    global_store_dword v20, v20, s[34:35] sc1
    s_mov_b64 exec, -1
    """)
    a.label("L_b_norst")
    a.vm = []
    PB = 0
    a.e(f"""
    v_and_b32 v22, 31, v1
    s_lshl_b32 s68, s58, 5
    v_add_u32 v22, s68, v22            ; token
    v_mul_u32_u24 v22, 272, v22
    v_lshrrev_b32 v23, 5, v1
    v_lshl_add_u32 v22, v23, 4, v22    ; + hh*16
    s_mul_i32 s68, s59, {64*272}
    s_add_u32 s68, s68, {PB}
    v_add_u32 v22, s68, v22
    v_lshrrev_b32 v23, 3, v0
    v_mul_u32_u24 v24, 272, v23
    v_and_b32 v25, 7, v0
    v_lshl_add_u32 v24, v25, 5, v24
    v_add_u32 v24, {PB}, v24
    s_lshl_b32 s68, s56, 6
    v_add_u32 v23, s68, v23
    v_lshlrev_b32 v23, 11, v23
    s_lshl_b32 s68, s57, 7
    s_add_u32 s68, s68, 1024
    v_lshl_add_u32 v23, v25, 4, v23
    v_add_u32 v23, s68, v23
    s_waitcnt lgkmcnt(0)
    s_barrier
    """)
    for nt in range(2):
        for q in range(4):
            r = ACC + 16*nt + 4*q
            a.e(f"ds_write_b128 v22, v[{r}:{r+3}] offset:{nt*128 + q*32}")
    a.e("s_waitcnt lgkmcnt(0)")
    a.e("s_barrier")
    for r in range(2):
        o = r*32*272
        a.e(f"ds_read_b128 v[{32+16*r}:{35+16*r}], v24 offset:{o}")
        a.e(f"ds_read_b128 v[{36+16*r}:{39+16*r}], v24 offset:{o+16}")
        a.e(f"ds_read_b128 v[{40+16*r}:{43+16*r}], v24 offset:{o+64*272}")
        a.e(f"ds_read_b128 v[{44+16*r}:{47+16*r}], v24 offset:{o+64*272+16}")
    for r in range(2):
        a.e(f"s_waitcnt lgkmcnt({4 if r == 0 else 0})")
        b = 32 + 16*r
        for jj in range(8):
            a.e(f"v_add_f32 v{b+jj}, v{b+jj}, v{b+8+jj}")
        for m in range(4):
            a.e(f"v_cvt_pk_bf16_f32 v{64+4*r+m}, v{b+2*m}, v{b+2*m+1}")
        if r == 1: a.e(f"v_add_u32 v23, {32*2048}, v23")
        a.e(f"global_store_dwordx4 v23, v[{64+4*r}:{67+4*r}], s[32:33] {cfg.outfl}")
    stamps_out(a, cfg, 15)

TV = 240
def a_touch_setup(a, cfg):
    a.e(f"""
    s_lshr_b32 s62, s40, 1          ; tg
    s_and_b32 s63, s40, 1           ; hg
    s_lshl_b32 s64, s62, 9
    s_lshl_b32 s65, s41, 4          ; 16*jj
    s_add_u32 s64, s64, s65
    v_and_b32 v246, 15, v1
    v_lshrrev_b32 v247, 4, v1       ; 0..3
    v_add_u32 v241, s64, v246
    v_lshlrev_b32 v241, 10, v241
    v_lshl_add_u32 v241, v247, 7, v241
    v_add_u32 v241, 512, v241
    v_and_b32 v248, 3, v1
    v_lshlrev_b32 v248, 7, v248     ; line*128
    s_lshl_b32 s66, s63, 9          ; hg*512
    v_lshrrev_b32 v249, 2, v1
    v_add_u32 v240, s65, v249       ; 16jj + (l>>2)
    v_mul_u32_u24 v242, 3072, v240
    v_add3_u32 v242, v242, v248, s66
    v_add_u32 v244, 2048, v242      ; V
    v_lshlrev_b32 v245, 10, v240
    v_add3_u32 v245, v245, v248, s66
    v_and_b32 v249, 7, v249
    s_lshl_b32 s67, s41, 3
    s_add_u32 s67, s67, 256
    v_add_u32 v249, s67, v249
    v_mul_u32_u24 v243, 3072, v249
    v_add3_u32 v243, v243, v248, s66
    v_add_u32 v240, 1024, v242
    """)

def a_touch(a, cfg, plan):
    fl = cfg.touch_flags
    info = {"x1": (241, "s[26:27]"), "q47": (243, "s[28:29]"), "k": (240, "s[28:29]"), "v": (244, "s[28:29]"), "o": (245, "s[30:31]")}
    for w, names in plan.items():
        L = a.newlabel("tch")
        a.e(f"s_cmp_eq_u32 s39, {w}")
        a.e(f"s_cbranch_scc0 {L}")
        for i, nm in enumerate(names):
            v, base = info[nm]
            a.e(f"global_load_dword v{250+i}, v{v}, {base} {fl}")
            a.vm.pop()
        a.label(L)

def role_A(a, cfg):
    a.label("L_roleA")
    a.e("""
    s_and_b32 s40, s3, 7
    s_lshr_b32 s41, s3, 3           ; j
    s_waitcnt lgkmcnt(0)
    """)
    if not cfg.do_A:
        if cfg.touch:
            a_touch_setup(a, cfg)
            a_touch(a, cfg, {2: ["x1"], 3: ["q47"]})
            a.e("s_waitcnt vmcnt(0)")
            a_touch(a, cfg, {1: ["k"], 2: ["v"], 3: ["o"]})
            a.e("s_waitcnt vmcnt(0)")
        a.e("s_branch L_end")
        return
    import role_a
    role_a.role_A(a, cfg)

def build(cfg):
    a = Asm()
    prologue(a, cfg)
    if cfg.do_B:
        role_B(a, cfg)
    a.e("s_branch L_end")
    a.vm = []
    role_A(a, cfg)
    a.label("L_end")
    a.e("s_endpgm")
    body = a.render()
    return body, a

HEADER = open("concat_heads__ssm_conv_s4__linear_attn_block__prompt.s.ref").read().split("; Override launch")[0]

def generate(path, cfg):
    body, a = build(cfg)
    txt = wrap(body, HEADER, 512, 256, 81920)
    open(path, "w").write(txt)
    return a

if __name__ == "__main__":
    sys.modules["kern"] = sys.modules["__main__"]
    cfg = Cfg()
    cfg.stamps = True
    if len(sys.argv) > 2:
        for kv in sys.argv[2:]:
            k, v = kv.split("=")
            setattr(cfg, k, int(v) if v.isdigit() else v)
    a = generate(sys.argv[1] if len(sys.argv) > 1 else "k_b1.s", cfg)
    print("nops inserted:", a.nnops)
```

```python
from asmlib import Asm
import kern as K

UT, YT = K.UT, K.YT
UTF, YTF = K.UTF, K.YTF
TILE = 3088
SPIN = K.SPIN_LIMIT
ROWB = 528
TB = [12288, 45056]
KC = [0, 1536]
NONCE_LDS = 3072
KD = [3088, 7200]
CP = [12288, 12288 + 16640]
UR = [45568, 45568 + 7600]
YP = 0
ROWS = list(range(8)) + [128+k for k in range(8)] + [256+2*k for k in range(4)] + [384+2*k for k in range(4)] + \
       [512, 516, 640, 644, 768, 772, 896, 900] + [1024+128*k for k in range(8)] + [2048]
assert len(ROWS) == 41

def fhex(x):
    import struct
    return hex(struct.unpack("<I", struct.pack("<f", x))[0])

USE_PK = False
def cmul(a, d, x, y, t):
    if USE_PK:
        a.e(f"v_pk_mul_f32 v[{t}:{t+1}], v[{x}:{x+1}], v[{y}:{y+1}] op_sel_hi:[1,0]")
        a.e(f"v_pk_fma_f32 v[{d}:{d+1}], v[{x}:{x+1}], v[{y}:{y+1}], v[{t}:{t+1}] op_sel:[1,1,0] op_sel_hi:[0,1,1] neg_lo:[1,0,0]")
    else:
        assert d not in (x, y)
        a.e(f"v_mul_f32 v{t}, v{x}, v{y}")
        a.e(f"v_mul_f32 v{t+1}, v{x+1}, v{y}")
        a.e(f"v_fma_f32 v{d}, -v{x+1}, v{y+1}, v{t}")
        a.e(f"v_fma_f32 v{d+1}, v{x}, v{y+1}, v{t+1}")

def poll_tags_loop(a, name, loads, tagregs):
    a.e("s_mov_b32 s61, 0")
    a.label(f"L_{name}_poll")
    for l in loads: a.e(l)
    a.e("s_add_u32 s61, s61, 1")
    a.e("s_waitcnt vmcnt(0)")
    K.tag_check(a, tagregs, acc="v9")
    a.e(f"""
    s_cmp_gt_u32 s61, {SPIN}
    s_cbranch_scc1 L_{name}_go
    s_cbranch_vccz L_{name}_go
    s_sleep 1
    s_branch L_{name}_poll
    """)
    a.label(f"L_{name}_go")
    a.vm = []


(A_TW, A_TR, A_UT0, A_UT1, A_TB, A_KM, A_C0, A_C1A, A_C1B, A_C2, A_DW, A_ER0, A_ER1, A_ZU, A_ZC, A_ZG,
 A_CR, A_CW, A_UG, A_UL, A_FU, A_FY, A_FUS, A_FYS, A_VA, A_VB, A_PW, A_OR, A_YG, A_YL, A_OUT) = (
 160, 161, 162, 163, 164, 168, 172, 173, 174, 175, 176, 177, 178, 179, 180, 181,
 182, 183, 184, 185, 186, 187, 188, 189, 190, 191, 192, 193, 194, 195, 199)

def role_A(a, cfg):
    global USE_PK
    USE_PK = cfg.pk
    st = lambda i: K.stamp(a, cfg, i)
    a.c("================= role A =================")
    if cfg.prioA: a.e(f"s_setprio {cfg.prioA}")
    a.e("""
    s_lshr_b32 s47, s39, 1
    s_and_b32 s48, s39, 1           ; w2
    s_lshl_b32 s49, s40, 6          ; 64 g
    s_lshl_b32 s50, s41, 1
    s_add_u32 s50, s50, s49         ; d0 = 64g + 2j
    s_add_u32 s51, s50, s47
    s_lshl_b32 s51, s51, 8
    v_and_b32 v2, 127, v0           ; n
    v_lshl_add_u32 v5, v2, 1, s51
    v_lshrrev_b32 v3, 4, v0         ; r''
    v_and_b32 v4, 15, v0            ; c8
    s_lshl_b32 s52, s41, 6
    v_lshl_add_u32 v6, v3, 2, s52   ; t0 = 64j + 4r''
    v_lshlrev_b32 v6, 10, v6
    s_lshl_b32 s53, s49, 1
    v_lshl_add_u32 v7, v4, 3, s53
    v_add_u32 v6, v6, v7            ; u offset
    s_lshl_b32 s45, s40, 2
    s_add_u32 s45, s45, 4
    v_mov_b32 v8, s45
    s_waitcnt lgkmcnt(0)
    """)
    st(1)
    a.e("""
    v_mov_b32 v202, v6
    v_mov_b32 v203, v7
    global_load_ushort v10, v5, s[10:11]
    global_load_ushort v11, v5, s[12:13]
    global_load_ushort v12, v5, s[14:15]
    global_load_ushort v13, v5, s[16:17]
    global_load_ushort v14, v5, s[18:19]
    global_load_ushort v15, v5, s[20:21]
    s_lshl_b32 s54, s50, 1
    s_add_u32 s54, s22, s54
    s_addc_u32 s55, s23, 0
    s_load_dword s56, s[54:55], 0
    s_cmp_lg_u32 s41, 0
    s_cbranch_scc1 L_a_nopub
    s_cmp_lg_u32 s39, 0
    s_cbranch_scc1 L_a_nopub
    s_memrealtime s[58:59]
    s_waitcnt lgkmcnt(0)
    s_or_b32 s58, s58, 8
    v_mov_b32 v9, s58
    s_mov_b64 exec, 1
    global_store_dword v8, v9, s[34:35] sc1
    s_mov_b64 exec, -1
    """)
    a.label("L_a_nopub")
    a.vm = []
    a.e(f"""
    v_and_b32 v26, 15, v1
    v_lshrrev_b32 v27, 4, v1
    v_bfe_u32 v28, v1, 2, 2
    v_and_b32 v29, 3, v1
    v_and_b32 v30, 31, v1
    v_lshrrev_b32 v31, 5, v1
    v_lshlrev_b32 v32, 2, v4
    v_mul_u32_u24 v32, 144, v32
    v_lshlrev_b32 v33, 3, v3
    v_sub_u32 v33, 120, v33
    v_add_u32 v32, v32, v33
    v_add_u32 v{A_TW}, {TILE}, v32
    v_lshrrev_b32 v32, 3, v1
    s_lshl_b32 s57, s39, 5
    v_add_u32 v32, s57, v32
    v_mul_u32_u24 v33, 144, v32
    v_and_b32 v34, 7, v1
    v_lshl_add_u32 v33, v34, 4, v33
    v_add_u32 v{A_TR}, {TILE}, v33
    v_add_u32 v32, s49, v32
    v_lshlrev_b32 v32, 12, v32
    v_lshl_add_u32 v32, v34, 4, v32
    s_sub_u32 s57, 31, s41
    s_lshl_b32 s57, s57, 7
    s_add_u32 s57, s57, {UT}
    v_add_u32 v{A_UT0}, s57, v32
    v_add_u32 v{A_UT1}, 32768, v{A_UT0}
    v_add_u32 v200, 65536, v{A_UT0}
    v_add_u32 v201, 98304, v{A_UT0}
    v_lshl_add_u32 v32, v27, 3, v28
    s_lshl_b32 s59, s47, 15
    s_add_u32 s59, s59, {TB[0]}
    v_and_b32 v33, 1, v2
    v_bfe_u32 v34, v2, 2, 1
    v_lshl_add_u32 v33, v34, 1, v33
    v_lshl_add_u32 v34, v2, 8, s59
    """)
    for cp in range(4):
        a.e(f"v_xor_b32 v35, {cp}, v33")
        a.e(f"v_lshl_add_u32 v{A_TB+cp}, v35, 5, v34")
    a.e(f"""
    v_lshlrev_b32 v34, 7, v32
    v_lshl_add_u32 v34, v29, 3, v34
    v_add_u32 v34, s59, v34
    v_lshrrev_b32 v33, 1, v28
    v_and_b32 v35, 1, v27
    v_lshl_add_u32 v33, v35, 1, v33
    """)
    for t in range(4):
        a.e(f"v_xor_b32 v35, {t}, v33")
        a.e(f"v_lshl_add_u32 v{A_KM+t}, v35, 5, v34")
    a.e(f"""
    s_mul_i32 s59, s47, {KC[1]-KC[0]}
    s_add_u32 s59, s59, {KC[0]}
    v_lshrrev_b32 v33, 1, v27
    v_lshlrev_b32 v33, 7, v33
    v_lshl_add_u32 v33, v26, 3, v33
    v_and_b32 v34, 1, v27
    v_lshl_add_u32 v33, v34, 2, v33
    v_lshl_add_u32 v{A_C0}, v33, 1, s59          ; tile 0
    v_lshlrev_b32 v33, 6, v27
    v_cmp_gt_u32 vcc, 2, v27
    v_lshlrev_b32 v34, 2, v26
    v_lshlrev_b32 v35, 1, v26
    v_cndmask_b32 v34, v35, v34, vcc
    v_add_u32 v33, v33, v34
    v_add_u32 v33, 256, v33
    v_mov_b32 v34, 32
    v_mov_b32 v35, 2
    v_cndmask_b32 v34, v34, v35, vcc
    v_add_u32 v34, v33, v34
    v_lshl_add_u32 v{A_C1A}, v33, 1, s59
    v_lshl_add_u32 v{A_C1B}, v34, 1, s59
    v_lshl_add_u32 v33, v27, 6, v26
    v_add_u32 v33, 512, v33
    v_lshl_add_u32 v{A_C2}, v33, 1, s59          ; tile 2
    v_lshlrev_b32 v33, 4, v0
    v_add_u32 v{A_DW}, 16, v33
    v_mov_b32 v{A_ER0}, v33
    v_lshlrev_b32 v34, 3, v0
    v_add_u32 v{A_ER1}, 256, v34
    s_cmp_eq_u32 s39, 1
    s_cbranch_scc0 L_a_ad1
    v_lshlrev_b32 v34, 2, v0
    v_add_u32 v{A_ER0}, 512, v34
    """)
    a.label("L_a_ad1")
    a.e(f"""
    s_cmp_ge_u32 s39, 2
    s_cbranch_scc0 L_a_ad2
    v_add_u32 v34, 384, v0
    v_lshlrev_b32 v{A_ER0}, 1, v34
    """)
    a.label("L_a_ad2")
    a.e(f"""
    v_mov_b32 v{A_ZU}, v33
    v_lshrrev_b32 v34, 2, v0
    v_mul_u32_u24 v34, 4160, v34
    v_and_b32 v35, 3, v0
    v_lshl_add_u32 v{A_ZC}, v35, 4, v34
    v_mul_u32_u24 v34, {KD[1]-KD[0]}, v0
    v_add_u32 v{A_ZG}, {KD[0]}, v34
    ; copies
    v_mov_b32 v{A_CR}, v33
    v_add_u32 v{A_CW}, 64, v33
    v_lshrrev_b32 v34, 7, v0                     ; cch
    v_add_u32 v35, s50, v34
    v_lshlrev_b32 v35, 12, v35
    v_lshl_add_u32 v35, v2, 4, v35
    v_add_u32 v{A_UG}, {UT}, v35
    v_lshrrev_b32 v35, 2, v2
    v_mul_u32_u24 v35, 80, v35
    v_and_b32 v36, 3, v2
    v_lshl_add_u32 v35, v36, 4, v35
    v_mul_u32_u24 v34, {UR[1]-UR[0]}, v34
    v_add_u32 v{A_UL}, v35, v34
    v_lshrrev_b32 v34, 3, v1
    v_lshlrev_b32 v34, 7, v34
    v_and_b32 v35, 7, v1
    v_lshl_add_u32 v34, v35, 2, v34
    s_lshl_b32 s58, s40, 10
    s_add_u32 s58, s58, {UTF}
    v_add_u32 v{A_FU}, s58, v34
    v_lshrrev_b32 v34, 3, v30
    v_lshlrev_b32 v34, 7, v34
    v_lshl_add_u32 v34, v35, 2, v34
    s_lshl_b32 s58, s40, 9
    s_add_u32 s58, s58, {YTF}
    v_add_u32 v{A_FY}, s58, v34
    s_lshl_b32 s57, s41, 1
    s_add_u32 s57, s57, s48
    s_lshr_b32 s59, s57, 3
    s_lshl_b32 s59, s59, 7
    s_and_b32 s57, s57, 7
    s_lshl_b32 s57, s57, 2
    s_add_u32 s57, s57, s59
    s_lshl_b32 s59, s40, 10
    s_add_u32 s57, s57, s59
    s_add_u32 s57, s57, {UTF}
    v_mov_b32 v{A_FUS}, s57
    s_lshr_b32 s59, s41, 3
    s_lshl_b32 s59, s59, 7
    s_and_b32 s57, s41, 7
    s_lshl_b32 s57, s57, 2
    s_add_u32 s57, s57, s59
    s_add_u32 s57, s57, s58
    v_mov_b32 v{A_FYS}, s57
    v_sub_u32 v34, 3, v30
    v_and_b32 v34, 3, v34
    v_mul_u32_u24 v35, 4160, v34
    v_add_u32 v36, v30, v34
    v_add_u32 v36, 9, v36
    v_lshlrev_b32 v37, 3, v31
    v_sub_u32 v36, v36, v37
    v_lshl_add_u32 v35, v36, 1, v35
    s_mul_i32 s57, s47, {CP[1]-CP[0]}
    s_lshl_b32 s58, s48, 10
    s_add_u32 s57, s57, s58
    s_add_u32 s57, s57, {CP[0]}
    v_add_u32 v{A_VA}, s57, v35
    v_sub_u32 v35, 31, v30
    v_mul_u32_u24 v35, 80, v35
    v_lshlrev_b32 v36, 4, v31
    v_sub_u32 v35, v35, v36
    v_add_u32 v35, 16, v35
    s_mul_i32 s57, s47, {UR[1]-UR[0]}
    s_mul_i32 s58, s48, {16*80}
    s_add_u32 s57, s57, s58
    s_add_u32 s57, s57, {UR[0]}
    v_add_u32 v{A_VB}, s57, v35
    v_mul_u32_u24 v35, 144, v30
    v_lshl_add_u32 v35, v31, 4, v35
    s_mul_i32 s57, s39, {64*144}
    v_add_u32 v{A_PW}, s57, v35
    v_lshrrev_b32 v35, 2, v0
    v_mul_u32_u24 v35, 144, v35
    v_and_b32 v36, 3, v0
    v_lshl_add_u32 v{A_OR}, v36, 5, v35
    s_lshl_b32 s57, s50, 12
    s_add_u32 s57, s57, {YT}
    v_lshl_add_u32 v{A_YG}, v0, 4, s57
    v_lshlrev_b32 v35, 2, v4
    v_add_u32 v35, s49, v35
    v_lshlrev_b32 v35, 12, v35
    v_lshl_add_u32 v35, v3, 3, v35
    s_lshl_b32 s59, s41, 7
    s_add_u32 s59, s59, {YT}
    v_add_u32 v{A_YL}, s59, v35
    v_add_u32 v{A_YL+1}, 4096, v{A_YL}
    v_add_u32 v{A_YL+2}, 8192, v{A_YL}
    v_add_u32 v{A_YL+3}, 12288, v{A_YL}
    v_lshlrev_b32 v35, 1, v6
    v_sub_u32 v{A_OUT}, v35, v7
    """)
    if cfg.touch:
        K.a_touch_setup(a, cfg)
    a.e("s_waitcnt vmcnt(0) lgkmcnt(0)")
    st(2)
    a.e(f"""
    global_load_dwordx2 v[16:17], v202, s[8:9] {cfg.aldfl}
    global_load_dwordx2 v[18:19], v202, s[8:9] offset:1024 {cfg.aldfl}
    global_load_dwordx2 v[20:21], v202, s[8:9] offset:2048 {cfg.aldfl}
    global_load_dwordx2 v[22:23], v202, s[8:9] offset:3072 {cfg.aldfl}
    global_load_dwordx2 v[24:25], v203, s[24:25]
    """)
    nt2 = 0; nt3 = 0
    if cfg.uttouch:
        a.e(f"""
        s_cmp_lg_u32 s39, 2
        s_cbranch_scc1 L_a_nout0
        v_add_u32 v26, s49, v1
        v_lshlrev_b32 v26, 12, v26
        s_sub_u32 s57, 31, s41
        s_lshl_b32 s57, s57, 7
        s_add_u32 s57, s57, {UT}
        v_add_u32 v26, s57, v26
        global_load_dword v255, v26, s[36:37]
        """)
        a.label("L_a_nout0")
    a.e(f"""
    s_cmp_eq_u32 s39, 3
    s_cbranch_scc0 L_a_nopt
    global_load_dword v253, v{A_FU}, s[36:37] sc1
    global_load_dword v254, v{A_FY}, s[36:37] sc1
    """)
    a.label("L_a_nopt")
    nt3 += 2
    if cfg.touch:
        K.a_touch(a, cfg, {2: ["x1"], 3: ["q47"]})
        nt2 += 1; nt3 += 1
    a.vm = []
    def a1_write():
        a.e(f"""
        s_cmp_eq_u32 s39, 2
        s_cbranch_scc1 L_a_uw2
        s_cmp_eq_u32 s39, 3
        s_cbranch_scc1 L_a_uw3
        s_waitcnt vmcnt(0)
        s_branch L_a_uwd
        """)
        a.label("L_a_uw2")
        a.e(f"s_waitcnt vmcnt({nt2})")
        a.e("s_branch L_a_uwd")
        a.label("L_a_uw3")
        a.e(f"s_waitcnt vmcnt({nt3})")
        a.label("L_a_uwd")
        a.e("""
        s_mov_b32 s57, 0x05040100
        s_mov_b32 s58, 0x07060302
        """)
        for e in range(4):
            sel = "s57" if e % 2 == 0 else "s58"
            h = e // 2
            a.e(f"v_perm_b32 v{32+2*e}, v{20+h}, v{22+h}, {sel}")
            a.e(f"v_perm_b32 v{33+2*e}, v{16+h}, v{18+h}, {sel}")
            a.e(f"ds_write_b64 v{A_TW}, v[{32+2*e}:{33+2*e}] offset:{e*144}")
    def a1_store():
        a.e("""
        s_cmp_ge_u32 s39, 2
        s_cbranch_scc1 L_a_nout
        """)
        for i in range(4):
            a.e(f"ds_read_b128 v[{224+4*i}:{227+4*i}], v{A_TR} offset:{i*8*144}")
        UTA = [A_UT0, A_UT1, 200, 201]
        for i in range(4):
            a.e(f"s_waitcnt lgkmcnt({3-i})")
            a.e(f"global_store_dwordx4 v{UTA[i]}, v[{224+4*i}:{227+4*i}], s[36:37]")
        a.e("global_load_dword v9, v8, s[34:35] sc1")
        a.label("L_a_nout")
        a.vm = []
    def ut_flag():
        a.e(f"""
        s_cmp_ge_u32 s39, 2
        s_cbranch_scc1 L_a_nofl
        s_mov_b32 s61, 0
        """)
        if cfg.dbgN: st(4)
        a.e(f"""
        s_waitcnt vmcnt(0)
        """)
        if cfg.dbgN: st(7)
        a.e(f"""
        v_readfirstlane_b32 s38, v9
        s_cmp_lg_u32 s38, 0
        s_cbranch_scc1 L_a_nok
        """)
        a.label("L_a_npoll")
        a.e(f"""
        global_load_dword v9, v8, s[34:35] sc1
        s_waitcnt vmcnt(0)
        v_readfirstlane_b32 s38, v9
        s_add_u32 s61, s61, 1
        s_cmp_gt_u32 s61, {SPIN}
        s_cbranch_scc1 L_a_nok
        s_cmp_eq_u32 s38, 0
        s_cbranch_scc1 L_a_npoll
        """)
        a.label("L_a_nok")
        if cfg.dbgN:
            st(5); K.stampval(a, cfg, 6, "s61")
        a.e(f"""
        s_getreg_b32 s57, hwreg(HW_REG_XCC_ID)
        s_and_b32 s57, s57, 7
        s_and_b32 s58, s38, 0xfffffff8
        s_or_b32 s57, s57, s58
        v_mov_b32 v9, s57
        s_mov_b64 exec, 1
        global_store_dword v{A_FUS}, v9, s[36:37]
        s_mov_b64 exec, -1
        """)
        a.label("L_a_nofl")
        a.vm = []

    LOG2E = fhex(1.4426950408889634); INV2PI = fhex(0.15915494309189535)
    a.e(f"""
    s_lshr_b32 s59, s56, 16
    s_and_b32 s60, s56, 0xffff
    s_cmp_eq_u32 s47, 0
    s_cselect_b32 s59, s60, s59
    s_lshl_b32 s59, s59, 16
    v_mov_b32 v28, s59
    v_mul_f32 v29, {LOG2E}, v28
    v_mov_b32 v30, {LOG2E}
    v_fma_f32 v30, v28, v30, -v29
    v_fmac_f32 v30, 0x32a57060, v28
    v_exp_f32 v29, v29
    v_mul_f32 v30, {fhex(0.6931471805599453)}, v30
    v_fma_f32 v29, v29, v30, v29
    v_cvt_pk_bf16_f32 v29, v29, v29
    v_lshlrev_b32 v29, 16, v29
    """)
    for i in range(6): a.e(f"v_lshlrev_b32 v{10+i}, 16, v{10+i}")
    a.e(f"""
    v_mul_f32 v10, v29, v10          ; a_re
    v_mul_f32 v11, v29, v11          ; a_im
    v_mul_f32 v12, v29, v12          ; dB_re
    v_mul_f32 v13, v29, v13          ; dB_im
    v_mul_f32 v10, {LOG2E}, v10      ; ar2
    v_mul_f32 v11, {INV2PI}, v11     ; ai2
    """)
    P = {}
    nxtp = [50]
    def pair(name):
        P[name] = nxtp[0]; nxtp[0] += 2
        return P[name]
    TMP = [28, 30]
    ti = [0]
    def mul(dn, xn, yn):
        d = P.get(dn) or pair(dn)
        t = TMP[ti[0] % 2]; ti[0] += 1
        cmul(a, d, P[xn], P[yn], t)
    pair("X0"); cmul(a, P["X0"], 14, 12, 28)
    for x in (1, 8, 128, 256, 512, 1024):
        d = pair(f"E{x}")
        if x == 1:
            a.e(f"v_exp_f32 v6, v10")
            a.e(f"v_fract_f32 v7, v11")
        else:
            a.e(f"v_mul_f32 v6, {fhex(float(x))}, v10")
            a.e(f"v_mul_f32 v7, {fhex(float(x))}, v11")
            a.e(f"v_exp_f32 v6, v6")
            a.e(f"v_fract_f32 v7, v7")
        a.e(f"v_cos_f32 v26, v7")
        a.e(f"v_sin_f32 v27, v7")
        a.e(f"v_mul_f32 v{d}, v6, v26")
        a.e(f"v_mul_f32 v{d+1}, v6, v27")
    if cfg.dbgT: st(4)
    OUT = [120, 128]
    oc = [0]
    def put_chunk(q, names, neg):
        o = OUT[oc[0] % 2]; oc[0] += 1
        sg = "-" if neg else ""
        for m in range(4):
            x, y = P[names[2*m]], P[names[2*m+1]]
            a.e(f"v_cvt_pk_bf16_f32 v{o+m}, v{x}, v{y}")
            a.e(f"v_cvt_pk_bf16_f32 v{o+4+m}, {sg}v{x+1}, {sg}v{y+1}")
        ad = A_TB + (q >> 1)
        a.e(f"ds_write_b128 v{ad}, v[{o}:{o+3}] offset:{(q & 1)*16}")
        a.e(f"ds_write_b128 v{ad}, v[{o+4}:{o+7}] offset:{128 + (q & 1)*16}")
    pair("ONE")
    a.e(f"v_mov_b32 v{P['ONE']}, 1.0")
    a.e(f"v_mov_b32 v{P['ONE']+1}, 0")
    for k in range(8): pair(f"S{k}")
    for k in range(1, 8):
        mul(f"X{k}", f"X{k-1}", "E1")
    put_chunk(0, [f"X{k}" for k in range(8)], True)
    P["Y8"] = P["E8"]
    mul("Y16", "Y8", "Y8"); mul("Y24", "Y16", "Y8"); mul("Y32", "Y16", "Y16")
    mul("Y40", "Y32", "Y8"); mul("Y48", "Y32", "Y16"); mul("Y56", "Y32", "Y24")
    put_chunk(6, ["ONE", "Y8", "Y16", "Y24", "Y32", "Y40", "Y48", "Y56"], False)
    if cfg.dbgT: st(6)
    mul("S0", "Y32", "Y32")
    for jj in range(1, 8): mul(f"S{jj}", "S0", f"Y{8*jj}")
    put_chunk(7, [f"S{k}" for k in range(8)], False)
    for k in range(8): mul(f"S{k}", f"X{k}", "E128")
    put_chunk(1, [f"S{k}" for k in range(8)], True)
    for i_, k in enumerate((0, 2, 4, 6)):
        mul(f"S{i_}", f"X{k}", "E256")
    for i_ in range(4):
        mul(f"S{4+i_}", f"S{i_}", "E128")
    put_chunk(2, [f"S{k}" for k in range(8)], True)
    mul("S0", "X0", "E512"); mul("S1", "X4", "E512")
    for i_ in range(2, 8): mul(f"S{i_}", f"S{i_-2}", "E128")
    put_chunk(3, [f"S{k}" for k in range(8)], True)
    mul("S0", "X0", "E1024")
    for i_ in range(1, 8): mul(f"S{i_}", f"S{i_-1}", "E128")
    pair("XL"); mul("XL", "S0", "E1024")
    put_chunk(4, [f"S{k}" for k in range(8)], True)
    a.e(f"v_cvt_pk_bf16_f32 v120, v{P['XL']}, -v{P['XL']+1}")
    a.e(f"ds_write_b16 v{A_TB+2}, v120 offset:16")
    a.e(f"ds_write_b16_d16_hi v{A_TB+2}, v120 offset:{128+16}")
    assert nxtp[0] <= 120, nxtp
    a1_write()
    if cfg.dbgT: st(7)
    a.e("s_waitcnt lgkmcnt(0)")
    if cfg.dbgT: st(8)
    a.e("s_barrier")
    st(3)
    a1_store()
    if cfg.touch:
        K.a_touch(a, cfg, {2: ["k"]})
    YF, XF, D0 = 32, 64, 128
    def trfrag(dst, addr, s):
        a.e(f"ds_read_b64_tr_b16 v[{dst}:{dst+1}], v{addr} offset:{s*4096}")
        a.e(f"ds_read_b64_tr_b16 v[{dst+2}:{dst+3}], v{addr} offset:{s*4096 + 512}")
    a.e("""
    s_cmp_eq_u32 s48, 0
    s_cbranch_scc0 L_a_k2
    """)
    a.lg = []
    for s in range(8):
        trfrag(YF+4*s, A_KM+3, s)
        for t in range(2): trfrag(XF+32*t+4*s, A_KM+t, s)
    for s in range(8):
        a.e(f"s_waitcnt lgkmcnt({min(15, 6*(7-s))})")
        for t in range(2):
            c = "0" if s == 0 else f"v[{D0+4*t}:{D0+4*t+3}]"
            a.e(f"v_mfma_f32_16x16x32_bf16 v[{D0+4*t}:{D0+4*t+3}], v[{XF+32*t+4*s}:{XF+32*t+4*s+3}], v[{YF+4*s}:{YF+4*s+3}], {c}")
    a.e(f"""
    v_cvt_pk_bf16_f32 v136, v{D0}, v{D0+1}
    v_cvt_pk_bf16_f32 v137, v{D0+2}, v{D0+3}
    v_cvt_pk_bf16_f32 v138, v{D0+4}, v{D0+5}
    v_cvt_pk_bf16_f32 v139, v{D0+6}, v{D0+7}
    ds_write_b64 v{A_C0}, v[136:137]
    ds_write_b32 v{A_C1A}, v138
    ds_write_b32 v{A_C1B}, v139
    s_branch L_a_kdone
    """)
    a.label("L_a_k2")
    for s in range(8):
        trfrag(YF+4*s, A_KM+3, s)
        trfrag(XF+4*s, A_KM+2, s)
    for s in range(8):
        a.e(f"s_waitcnt lgkmcnt({min(15, 4*(7-s))})")
        c = "0" if s == 0 else f"v[{D0}:{D0+3}]"
        a.e(f"v_mfma_f32_16x16x32_bf16 v[{D0}:{D0+3}], v[{XF+4*s}:{XF+4*s+3}], v[{YF+4*s}:{YF+4*s+3}], {c}")
    a.e(f"""
    v_cvt_pk_bf16_f32 v136, v{D0}, v{D0+1}
    v_cvt_pk_bf16_f32 v137, v{D0+2}, v{D0+3}
    ds_write_b16 v{A_C2}, v136
    ds_write_b16_d16_hi v{A_C2}, v136 offset:32
    ds_write_b16 v{A_C2}, v137 offset:64
    ds_write_b16_d16_hi v{A_C2}, v137 offset:96
    """)
    a.label("L_a_kdone")
    ut_flag()
    if cfg.touch:
        K.a_touch(a, cfg, {3: ["v"]})
    a.e(f"""
    s_mov_b32 s57, 0x01000100
    s_mov_b32 s58, 0x03020302
    s_mov_b32 s59, 0x05040302
    s_mov_b32 s63, 0x05040100
    v_mov_b32 v48, 0
    v_mov_b32 v49, 0
    v_mov_b32 v50, 0
    v_mov_b32 v51, 0
    s_waitcnt lgkmcnt(0)
    s_barrier
    """)
    a.lg = []
    if not (cfg.dbgT or cfg.dbgY or cfg.dbgN): st(4)
    a.e("""
    s_cmp_eq_u32 s39, 0
    s_cbranch_scc1 L_a_e0
    s_cmp_eq_u32 s39, 1
    s_cbranch_scc1 L_a_e2
    """)
    for c in range(2):
        a.e(f"ds_read_u16 v{32+2*c}, v{A_ER0} offset:{KC[c]}")
        a.e(f"ds_read_u16 v{33+2*c}, v{A_ER0} offset:{KC[c]+2}")
    a.e(f"""
    v_and_b32 v28, 1, v0
    v_cmp_eq_u32 vcc, 0, v28
    s_waitcnt lgkmcnt(0)
    """)
    for c in range(2):
        c0, c1 = 32+2*c, 33+2*c
        o = 40 + 4*c
        a.e(f"v_perm_b32 v{o}, v{c1}, v{c0}, s57")
        a.e(f"v_perm_b32 v{o+3}, v{c0}, v{c1}, s57")
        a.e(f"v_perm_b32 v{o+2}, v{c1}, v{c0}, s63")
        a.e(f"v_mov_b32 v{o+1}, v{o}")
        a.e(f"v_cndmask_b32 v{o+2}, v{o+3}, v{o+2}, vcc")
    a.e("s_branch L_a_ew")
    a.label("L_a_e2")
    for c in range(2):
        a.e(f"ds_read_b32 v{32+2*c}, v{A_ER0} offset:{KC[c]}")
        a.e(f"ds_read_b32 v{33+2*c}, v{A_ER0} offset:{KC[c]+4}")
    a.e("s_waitcnt lgkmcnt(0)")
    for c in range(2):
        A_, B_ = 32+2*c, 33+2*c
        o = 40 + 4*c
        a.e(f"v_perm_b32 v{o}, v{A_}, v{A_}, s57")
        a.e(f"v_mov_b32 v{o+1}, v{A_}")
        a.e(f"v_perm_b32 v{o+2}, v{A_}, v{A_}, s58")
        a.e(f"v_perm_b32 v{o+3}, v{B_}, v{B_}, s57")
    a.e("s_branch L_a_ew")
    a.label("L_a_e0")
    for c in range(2):
        a.e(f"ds_read_b128 v[{40+4*c}:{43+4*c}], v{A_ER0} offset:{KC[c]}")
        a.e(f"ds_read_b64 v[{32+4*c}:{33+4*c}], v{A_ER1} offset:{KC[c]}")
        a.e(f"ds_read_b32 v{34+4*c}, v{A_ER1} offset:{KC[c]+8}")
    a.e("""
    v_cmp_le_u32 vcc, 32, v0
    s_waitcnt lgkmcnt(0)
    """)
    for c in range(2):
        A_, B_, C_ = 32+4*c, 33+4*c, 34+4*c
        o = 40 + 4*c
        a.e(f"v_perm_b32 v52, v{A_}, v{A_}, s57")
        a.e(f"v_perm_b32 v53, v{B_}, v{A_}, s59")
        a.e(f"v_perm_b32 v54, v{B_}, v{B_}, s57")
        a.e(f"v_perm_b32 v55, v{C_}, v{B_}, s59")
        for q in range(4):
            a.e(f"v_cndmask_b32 v{o+q}, v{o+q}, v{52+q}, vcc")
    a.label("L_a_ew")
    for c in range(2):
        a.e(f"ds_write_b128 v{A_DW}, v[{40+4*c}:{43+4*c}] offset:{KD[c]}")
    a.e(f"""
    v_cmp_gt_u32 vcc, 160, v0
    s_and_b64 exec, exec, vcc
    ds_write_b128 v{A_ZU}, v[48:51] offset:{UR[0] + 64*80}
    ds_write_b128 v{A_ZU}, v[48:51] offset:{UR[1] + 64*80}
    v_cmp_gt_u32 vcc, 32, v0
    s_and_b64 exec, exec, vcc
    ds_write_b128 v{A_ZC}, v[48:51] offset:{CP[0]}
    v_cmp_gt_u32 vcc, 2, v0
    s_and_b64 exec, exec, vcc
    ds_write_b128 v{A_ZG}, v[48:51]
    s_mov_b64 exec, -1
    """)
    a.e(f"""
    s_cmp_lg_u32 s39, 0
    s_cbranch_scc1 L_a_uf1
    global_load_dword v30, v{A_FU}, s[36:37] sc1
    s_and_b32 s58, s38, 0xfffffff8
    s_getreg_b32 s57, hwreg(HW_REG_XCC_ID)
    s_and_b32 s57, s57, 7
    s_or_b32 s59, s57, s58
    s_waitcnt vmcnt(0)
    v_cmp_ne_u32 vcc, s59, v30
    s_cmp_eq_u64 vcc, 0
    s_cselect_b32 s57, 1, 0
    v_mov_b32 v31, s57
    v_mov_b32 v30, 0
    ds_write_b32 v30, v31 offset:{NONCE_LDS+8}
    ds_write_b32 v30, v31 offset:{NONCE_LDS+4}
    """)
    a.label("L_a_uf1")
    a.e("""
    s_waitcnt lgkmcnt(0)
    s_barrier
    """)
    a.e(f"""
    v_mov_b32 v30, 0
    ds_read_b32 v31, v30 offset:{NONCE_LDS+8}
    s_waitcnt lgkmcnt(0)
    v_readfirstlane_b32 s44, v31
    s_cmp_eq_u32 s44, 0
    s_cbranch_scc1 L_a_ul0
    global_load_dwordx4 v[208:211], v{A_UG}, s[36:37] sc1
    global_load_dwordx4 v[212:215], v{A_UG}, s[36:37] offset:2048 sc1
    """)
    a.label("L_a_ul0")
    a.vm = []
    if not (cfg.dbgT or cfg.dbgY or cfg.dbgN): st(5)
    for c in range(2):
        b = 32 + 16*c
        a.e(f"ds_read_b64 v[{b}:{b+1}], v{A_CR} offset:{KD[c] + 8}")
        a.e(f"ds_read_b128 v[{b+4}:{b+7}], v{A_CR} offset:{KD[c] + 16}")
    for c in range(2):
        a.e(f"s_waitcnt lgkmcnt({2 - 2*c})" if c == 0 else "s_waitcnt lgkmcnt(4)")
        b = 32 + 16*c
        n0, n1, n2, n3, n4, n5 = b, b+1, b+4, b+5, b+6, b+7
        m = b + 8
        t1 = 96 + 8*c
        base = CP[c]
        a.e(f"ds_write_b128 v{A_CW}, v[{n2}:{n5}] offset:{base}")
        a.e(f"v_alignbit_b32 v{m}, v{n1}, v{n0}, 16")
        for q, (hi, lo) in enumerate(((n2, n1), (n3, n2), (n4, n3))):
            a.e(f"v_alignbit_b32 v{m+1+q}, v{hi}, v{lo}, 16")
        a.e(f"ds_write_b128 v{A_CW}, v[{m}:{m+3}] offset:{base + 3*4160}")
        for q, (hi, lo) in enumerate(((n2, n1), (n3, n2), (n4, n3), (n5, n4))):
            a.e(f"v_alignbit_b32 v{t1+q}, v{hi}, v{lo}, 16")
        a.e(f"ds_write_b128 v{A_CW}, v[{t1}:{t1+3}] offset:{base + 4160}")
        for q, r in enumerate((n1, n2, n3, n4)): a.e(f"v_mov_b32 v{t1+4+q}, v{r}")
        a.e(f"ds_write_b128 v{A_CW}, v[{t1+4}:{t1+7}] offset:{base + 2*4160}")
    if not (cfg.dbgT or cfg.dbgY or cfg.dbgN): st(6)
    a.e(f"""
    s_cmp_lg_u32 s44, 0
    s_cbranch_scc1 L_a_fast
    s_cmp_ge_u32 s39, 2
    s_cbranch_scc1 L_a_utf_go
    s_and_b32 s58, s38, 0xfffffff8
    s_getreg_b32 s57, hwreg(HW_REG_XCC_ID)
    s_and_b32 s57, s57, 7
    s_or_b32 s59, s57, s58
    s_mov_b32 s61, 0
    v_add_u32 v28, 8192, v{A_FU}
    """)
    a.label("L_a_utf_poll")
    a.e(f"""
    global_load_dword v30, v{A_FU}, s[36:37] sc1
    global_load_dword v31, v28, s[36:37] sc1
    s_add_u32 s61, s61, 1
    s_waitcnt vmcnt(0)
    v_cmp_ne_u32 vcc, s59, v30
    s_cmp_eq_u64 vcc, 0
    s_cbranch_scc1 L_a_utf_local
    v_cmp_ne_u32 s[64:65], s58, v31
    s_and_b64 vcc, vcc, s[64:65]
    s_cbranch_vccz L_a_utf_glob
    s_cmp_eq_u32 s61, {cfg.ut_patience}
    s_cbranch_scc0 L_a_utf_again
    s_mov_b32 s60, 0
    """)
    a.label("L_a_utf_pub")
    a.e(f"""
    global_store_dwordx4 v{A_UT0}, v[224:227], s[36:37] sc1
    global_store_dwordx4 v{A_UT1}, v[228:231], s[36:37] sc1
    global_store_dwordx4 v200, v[232:235], s[36:37] sc1
    global_store_dwordx4 v201, v[236:239], s[36:37] sc1
    s_waitcnt vmcnt(0)
    v_add_u32 v29, 8192, v{A_FUS}
    v_mov_b32 v30, s58
    s_mov_b64 exec, 1
    global_store_dword v29, v30, s[36:37] sc1
    s_mov_b64 exec, -1
    s_cmp_lg_u32 s60, 0
    s_cbranch_scc1 L_a_utf_glob2
    """)
    a.label("L_a_utf_again")
    a.e(f"""
    s_cmp_gt_u32 s61, {SPIN}
    s_cbranch_scc1 L_a_utf_glob2
    s_sleep {cfg.sl_ut}
    s_branch L_a_utf_poll
    """)
    a.label("L_a_utf_local")
    a.e("s_mov_b32 s57, 1")
    a.e("s_branch L_a_utf_ok")
    a.label("L_a_utf_glob")
    a.e(f"""
    s_mov_b32 s60, 1
    s_cmp_lt_u32 s61, {cfg.ut_patience}
    s_cbranch_scc1 L_a_utf_pub
    s_cmp_eq_u32 s61, {cfg.ut_patience}
    s_cbranch_scc1 L_a_utf_pub
    """)
    a.label("L_a_utf_glob2")
    a.e("s_mov_b32 s57, 0")
    a.label("L_a_utf_ok")
    a.e(f"""
    v_mov_b32 v31, s57
    v_mov_b32 v30, 0
    ds_write_b32 v30, v31 offset:{NONCE_LDS+4}
    """)
    a.label("L_a_utf_go")
    a.e(f"""
    s_waitcnt lgkmcnt(0)
    s_barrier
    global_load_dwordx4 v[208:211], v{A_UG}, s[36:37] sc1
    global_load_dwordx4 v[212:215], v{A_UG}, s[36:37] offset:2048 sc1
    """)
    a.label("L_a_fast")
    a.e(f"""
    v_mov_b32 v30, 0
    ds_read_b32 v31, v30 offset:{NONCE_LDS+4}
    """)
    for e in range(4):
        h, hi = e // 2, e % 2
        a.e(f"v_{'and_b32' if hi else 'lshlrev_b32'} v{80+e}, {'0xffff0000' if hi else '16'}, v{24+h}")
    for rho in range(4):
        for e in range(4):
            h, hi = e // 2, e % 2
            a.e(f"v_{'and_b32' if hi else 'lshlrev_b32'} v{96+4*rho+e}, {'0xffff0000' if hi else '16'}, v{16+2*rho+h}")
            a.e(f"v_mul_f32 v{96+4*rho+e}, v{96+4*rho+e}, v{80+e}")
        for h in range(2):
            a.e(f"v_cvt_pk_bf16_f32 v{84+h}, v{96+4*rho+2*h}, v{96+4*rho+2*h+1}")
        for h in range(2):
            a.e(f"v_lshlrev_b32 v{96+4*rho+2*h}, 16, v{84+h}")
            a.e(f"v_and_b32 v{96+4*rho+2*h+1}, 0xffff0000, v{84+h}")
    a.e("s_waitcnt vmcnt(0) lgkmcnt(0)")
    a.e("v_readfirstlane_b32 s46, v31")
    if cfg.yglobal: a.e("s_mov_b32 s46, 0")
    a.vm = []
    if not (cfg.dbgT or cfg.dbgY or cfg.dbgN): st(7)
    a.e(f"""
    ds_write_b128 v{A_UL}, v[208:211] offset:{UR[0]}
    ds_write_b128 v{A_UL}, v[212:215] offset:{UR[0] + 32*80}
    s_waitcnt lgkmcnt(0)
    s_barrier
    """)
    if not (cfg.dbgT or cfg.dbgY or cfg.dbgN): st(8)
    a.e(f"s_setprio {cfg.prioA2}")
    if cfg.touch:
        K.a_touch(a, cfg, {3: ["o"]})
    if cfg.ytouch:
        a.e(f"""
        s_cmp_lg_u32 s39, 2
        s_cbranch_scc1 L_a_noyt
        s_lshl_b32 s57, s50, 12
        s_add_u32 s57, s57, {YT}
        v_lshl_add_u32 v28, v1, 7, s57
        global_load_dword v252, v28, s[36:37]
        """)
        a.label("L_a_noyt")
    ACC0, ACC1 = 128, 144
    NB = 3
    FR = [32 + 16*i for i in range(NB)]
    steps = [(dl, hf) for dl in range(16) for hf in range(2)]
    def rd(i):
        dl, hf = steps[i]
        f = FR[i % NB]
        ao = 64*dl + 32*(1-hf)
        bo = 80*dl + 32*(1-hf)
        t = f"cv{i}"
        return [(f"ds_read_b64 v[{f}:{f+1}], v{A_VA} offset:{ao}", t),
                (f"ds_read_b64 v[{f+2}:{f+3}], v{A_VA} offset:{ao+8}", t),
                (f"ds_read_b128 v[{f+8}:{f+11}], v{A_VB} offset:{bo+2560}", t),
                (f"ds_read_b128 v[{f+12}:{f+15}], v{A_VB} offset:{bo}", t),
                (f"ds_read_b64 v[{f+4}:{f+5}], v{A_VA} offset:{ao+2048}", t),
                (f"ds_read_b64 v[{f+6}:{f+7}], v{A_VA} offset:{ao+2056}", t)]
    a.lg = []
    for i in (0, 1):
        for t, tg in rd(i): a.e(t, lg=tg)
    for i in range(32):
        f = FR[i % NB]
        a.wait_lg(f"cv{i}")
        c0 = "0" if i == 0 else f"v[{ACC0}:{ACC0+15}]"
        c1 = "0" if i == 0 else f"v[{ACC1}:{ACC1+15}]"
        R = rd(i + 2) if i + 2 < 32 else []
        a.e(f"v_mfma_f32_32x32x16_bf16 v[{ACC0}:{ACC0+15}], v[{f}:{f+3}], v[{f+8}:{f+11}], {c0}")
        for t, tg in R[0:2]: a.e(t, lg=tg)
        a.e(f"v_mfma_f32_32x32x16_bf16 v[{ACC1}:{ACC1+15}], v[{f}:{f+3}], v[{f+12}:{f+15}], {c1}")
        for t, tg in R[2:4]: a.e(t, lg=tg)
        a.e(f"v_mfma_f32_32x32x16_bf16 v[{ACC1}:{ACC1+15}], v[{f+4}:{f+7}], v[{f+8}:{f+11}], v[{ACC1}:{ACC1+15}]")
        for t, tg in R[4:6]: a.e(t, lg=tg)
    st(9)
    if cfg.utclean == 2:
        a.e(f"""
        s_cmp_ge_u32 s39, 2
        s_cbranch_scc1 L_a_nocl2
        global_store_dwordx4 v{A_UT0}, v[224:227], s[36:37] sc1
        global_store_dwordx4 v{A_UT1}, v[228:231], s[36:37] sc1
        global_store_dwordx4 v200, v[232:235], s[36:37] sc1
        global_store_dwordx4 v201, v[236:239], s[36:37] sc1
        s_nop 1
        """)
        a.label("L_a_nocl2")
    a.e(f"s_setprio {cfg.prioA3}")
    a.e("""
    s_waitcnt vmcnt(0) lgkmcnt(0)
    s_barrier
    """)
    for tau, acc in ((0, ACC0), (1, ACC1)):
        for q in range(4):
            a.e(f"ds_write_b128 v{A_PW}, v[{acc+4*q}:{acc+4*q+3}] offset:{YP + tau*32*144 + q*32}")
    a.e("""
    s_waitcnt lgkmcnt(0)
    s_barrier
    """)
    for c in range(2):
        o = YP + (c*2)*64*144
        b = 32 + 16*c
        a.e(f"ds_read_b128 v[{b}:{b+3}], v{A_OR} offset:{o}")
        a.e(f"ds_read_b128 v[{b+8}:{b+11}], v{A_OR} offset:{o + 64*144}")
        a.e(f"ds_read_b128 v[{b+4}:{b+7}], v{A_OR} offset:{o + 16}")
        a.e(f"ds_read_b128 v[{b+12}:{b+15}], v{A_OR} offset:{o + 64*144 + 16}")
    for c in range(2):
        a.e(f"s_waitcnt lgkmcnt({4-4*c})")
        b = 32 + 16*c
        for q in range(8): a.e(f"v_add_f32 v{b+q}, v{b+q}, v{b+8+q}")
        for m in range(4): a.e(f"v_cvt_pk_bf16_f32 v{64+4*c+m}, v{b+2*m}, v{b+2*m+1}")
    a.e(f"""
    v_add_u32 v29, 4096, v{A_YG}
    s_cmp_eq_u32 s46, 0
    s_cbranch_scc1 L_a_yg
    global_store_dwordx4 v{A_YG}, v[64:67], s[36:37]
    global_store_dwordx4 v29, v[68:71], s[36:37]
    s_branch L_a_yd
    """)
    a.label("L_a_yg")
    a.e(f"""
    global_store_dwordx4 v{A_YG}, v[64:67], s[36:37] sc1
    global_store_dwordx4 v29, v[68:71], s[36:37] sc1
    """)
    a.label("L_a_yd")
    a.e(f"""
    s_waitcnt vmcnt(0)
    s_barrier
    """)
    st(10)
    a.e(f"""
    s_cmp_lg_u32 s39, 1
    s_cbranch_scc1 L_a_ytf_go
    v_mov_b32 v28, s38
    s_mov_b64 exec, 1
    s_cmp_eq_u32 s46, 0
    s_cbranch_scc1 L_a_yfg
    global_store_dword v{A_FYS}, v28, s[36:37]
    s_branch L_a_yfd
    """)
    a.label("L_a_yfg")
    a.e(f"global_store_dword v{A_FYS}, v28, s[36:37] sc1")
    a.label("L_a_yfd")
    a.e("s_mov_b64 exec, -1")
    if cfg.dbgY: st(4)
    a.e("s_mov_b32 s61, 0")
    a.label("L_a_ytf_poll")
    a.e(f"""
    global_load_dword v29, v{A_FY}, s[36:37] sc1
    s_add_u32 s61, s61, 1
    s_waitcnt vmcnt(0)
    v_cmp_ne_u32 vcc, s38, v29
    s_cmp_gt_u32 s61, {SPIN}
    s_cbranch_scc1 L_a_ytf_go
    s_cbranch_vccz L_a_ytf_go
    s_sleep {cfg.sl_yt}
    s_branch L_a_ytf_poll
    """)
    a.label("L_a_ytf_go")
    if cfg.dbgY:
        st(5); K.stampval(a, cfg, 7, "s61")
    a.e("s_barrier")
    if cfg.dbgY: st(6)
    a.e(f"""
    global_load_dwordx2 v[64:65], v{A_YL}, s[36:37] sc1
    global_load_dwordx2 v[66:67], v{A_YL+1}, s[36:37] sc1
    global_load_dwordx2 v[68:69], v{A_YL+2}, s[36:37] sc1
    global_load_dwordx2 v[70:71], v{A_YL+3}, s[36:37] sc1
    s_waitcnt vmcnt(0)
    """)
    st(11)
    for rho in range(4):
        m, hi = rho // 2, rho % 2
        for e in range(4):
            src = 64 + 2*e + m
            a.e(f"v_{'and_b32' if hi else 'lshlrev_b32'} v{84+e}, {'0xffff0000' if hi else '16'}, v{src}")
        for e in range(4):
            a.e(f"v_add_f32 v{84+e}, v{84+e}, v{96+4*rho+e}")
        a.e(f"v_cvt_pk_bf16_f32 v{88+2*rho}, v84, v85")
        a.e(f"v_cvt_pk_bf16_f32 v{89+2*rho}, v86, v87")
        if rho == 2: a.e(f"v_add_u32 v{A_OUT}, 4096, v{A_OUT}")
        a.e(f"global_store_dwordx2 v{A_OUT}, v[{88+2*rho}:{89+2*rho}], s[32:33] offset:{2048*(rho % 2)} {cfg.outfl}")
    if cfg.utclean == 1:
        a.e(f"""
        s_cmp_ge_u32 s39, 2
        s_cbranch_scc1 L_a_nocl
        global_store_dwordx4 v{A_UT0}, v[224:227], s[36:37] sc1
        global_store_dwordx4 v{A_UT1}, v[228:231], s[36:37] sc1
        global_store_dwordx4 v200, v[232:235], s[36:37] sc1
        global_store_dwordx4 v201, v[236:239], s[36:37] sc1
        s_nop 1
        """)
        a.label("L_a_nocl")
    a.e("""
    s_cmp_lg_u32 s41, 0
    s_cbranch_scc1 L_a_norst
    s_cmp_lg_u32 s39, 1
    s_cbranch_scc1 L_a_norst
    v_mov_b32 v8, s45
    v_mov_b32 v9, 0
    s_mov_b64 exec, 1
    global_store_dword v8, v9, s[34:35] sc1
    s_mov_b64 exec, -1
    """)
    a.label("L_a_norst")
    st(12)
    K.stampval(a, cfg, 13, "s46")
    K.stamps_out(a, cfg, 14)
```

```python
import sys
from asmlib import Asm, wrap

UT   = 0
YT   = 4 << 20
PQ   = 8 << 20
PQF  = 10 << 20
KVP  = (10 << 20) + (64 << 10)
KVF  = 12 << 20
UTF  = (12 << 20) + (64 << 10)
YTF  = (12 << 20) + (96 << 10)
KVBLK = 2176
LOG2E = 0x3fb8aa3b
EPS   = 0x358637bd
SPIN_LIMIT = 200000

class Cfg:
    do_A = True
    do_B = True
    do_B2 = True
    touch = True
    dual = False
    x_nowrite = False
    prioA = 2
    prioA2 = 0
    dbgT = 0
    dmafl = ""
    aldfl = ""
    zpoll = 0
    sl_ka = 1
    sl_kz = 1
    sl_pq = 1
    sl_red = 1
    sl_yt = 1
    sl_ut = 1
    late_o = 1
    yglobal = 0
    utclean = 0
    outfl = "sc1"
    uttouch = 0
    ninit = 6
    dbgN = 0
    ut_patience = 200
    flagpos = 0
    ytouch = 1
    dbgY = 0
    prioA3 = 0
    prioB = 1
    pk = 1
    b_exit = False
    touch_flags = ""
    early_release = True
    dma_early = False
    last_dma = 40
    late_pre = 0
    touch_mode = "late"
    stamps = False

STAMP_BASE = 14 << 20
def stamp(a, cfg, i):
    if cfg.stamps == 1:
        a.e(f"s_memtime s[{70+2*i}:{71+2*i}]")
def stampval(a, cfg, i, sreg):
    if cfg.stamps == 1:
        a.e("s_waitcnt lgkmcnt(0)")
        a.e(f"s_add_u32 s{70+2*i}, {sreg}, s70")
def stamps_out(a, cfg, n, vt=22):
    if not cfg.stamps: return
    a.e("s_memrealtime s[68:69]")
    a.e("s_waitcnt lgkmcnt(0) vmcnt(0)")
    a.vm = []
    if cfg.stamps == 2: n = 1
    for i in range(1, n):
        a.e(f"s_sub_u32 s{70+2*i}, s{70+2*i}, s70")
    a.e(f"""
    s_lshl_b32 s61, s2, 2
    s_add_u32 s61, s61, s39
    s_lshl_b32 s61, s61, 6
    s_add_u32 s61, s61, {STAMP_BASE}
    v_mov_b32 v{vt}, s61
    s_mov_b64 exec, 1
    """)
    for i in range(16):
        src = f"s{70+2*i}" if (0 < i < n) else ("s68" if i == 15 else ("s100" if i == 0 else "0"))
        a.e(f"v_mov_b32 v{vt+1}, {src}")
        a.e(f"global_store_dword v{vt}, v{vt+1}, s[36:37] offset:{4*i}")
        a.e("s_nop 1")
    a.e("s_waitcnt vmcnt(0)")
    a.e("s_mov_b64 exec, -1")
    a.vm = []

def prologue(a, cfg):
    if cfg.stamps:
        a.e("s_memrealtime s[100:101]")
        a.e("s_memtime s[70:71]")
    a.e("""
    s_cmp_ge_u32 s2, 512
    s_cbranch_scc1 L_end
    s_load_dwordx16 s[8:23], s[0:1], 0
    s_load_dwordx8 s[24:31], s[0:1], 64
    s_load_dwordx4 s[32:35], s[0:1], 96
    s_load_dwordx2 s[36:37], s[0:1], 112
    v_lshrrev_b32 v1, 6, v0
    v_readfirstlane_b32 s39, v1
    v_and_b32 v1, 63, v0
    s_and_b32 s3, s2, 255
    s_cmp_lt_u32 s2, 256
    s_cbranch_scc1 L_roleA
    """)

def poll_nonce(a, vtmp, vaddr0, first_tag=None):
    L = a.newlabel("nonce"); Lx = a.newlabel("nonce_ok")
    if first_tag:
        a.wait_vm(first_tag)
    else:
        a.e(f"global_load_dword {vtmp}, {vaddr0}, s[34:35] sc1")
        a.wait_vm_all()
    a.e(f"v_readfirstlane_b32 s38, {vtmp}")
    a.e(f"""
    s_cmp_lg_u32 s38, 0
    s_cbranch_scc1 {Lx}
    s_mov_b32 s61, 0
    """)
    a.label(L)
    a.e(f"""
    global_load_dword {vtmp}, {vaddr0}, s[34:35] sc1
    s_waitcnt vmcnt(0)
    v_readfirstlane_b32 s38, {vtmp}
    s_add_u32 s61, s61, 1
    s_cmp_gt_u32 s61, {SPIN_LIMIT}
    s_cbranch_scc1 {Lx}
    s_cmp_eq_u32 s38, 0
    s_cbranch_scc1 {L}
    """)
    a.vm.pop()
    a.label(Lx)

def phi_instrs(acc, tmp, out, zsum=None):
    L = []
    for i in range(16):
        L.append(f"v_mul_f32 v{tmp+i}, s62, v{acc+i}")
    for i in range(16):
        L.append(f"v_exp_f32 v{tmp+i}, v{tmp+i} clamp")
        L.append(f"v_max_f32 v{acc+i}, s64, v{acc+i}")
    for i in range(16):
        L.append(f"v_add_f32 v{acc+i}, v{acc+i}, v{tmp+i}")
    if zsum is not None:
        for m in range(8):
            L.append(f"v_add_f32 v{tmp+m}, v{acc+2*m}, v{acc+2*m+1}")
        for m in range(4):
            L.append(f"v_add_f32 v{tmp+m}, v{tmp+m}, v{tmp+4+m}")
        L.append(f"v_add_f32 v{tmp}, v{tmp}, v{tmp+2}")
        L.append(f"v_add_f32 v{tmp+1}, v{tmp+1}, v{tmp+3}")
        L.append(f"v_add_f32 v{zsum}, v{tmp}, v{tmp+1}")
    for m in range(8):
        L.append(f"v_cvt_pk_bf16_f32 v{out+m}, v{acc+2*m}, v{acc+2*m+1}")
    return L

def spread(side, nslots):
    out = []; n = len(side); k = 0
    for i in range(nslots):
        e = (n*(i+1))//nslots
        out.append(side[k:e]); k = e
    return out

SEQ = []
for c in range(8): SEQ += [("X", c), ("Q", c)]
SEQ += [("K", c) for c in range(8)] + [("V", c) for c in range(8)] + [("O", c) for c in range(8)]
NSLOT = 10
NINIT = 6
XR = 128
WF, T16, ACCQ, ACCK, ACCV = 32, 64, 80, 96, 112

DMAFL = ""
def b_issue_jobs(n):
    kind, c = SEQ[n]
    pos = n % NSLOT
    pre = []
    if kind == "X":
        so, v0, srd = f"s{16+c}", 2, "s[40:43]"
    elif kind in "QKV":
        so, v0, srd = f"s{8+c}", 4, "s[44:47]"
        if kind in "KV" and c == 0:
            pre = [("v_add_u32 v4, 1024, v4", None), ("v_add_u32 v5, 1024, v5", None)]
    else:
        so, v0, srd = "s61", 6, "s[48:51]"
        pre = [(f"s_mov_b32 s61, {c*65536}", None)]
    return [pre + [(f"s_add_u32 m0, s60, {pos*8192}", None),
             (f"buffer_load_dwordx4 v{v0}, {srd}, {so} offen {DMAFL} lds", f"slot{n}")],
            [(f"buffer_load_dwordx4 v{v0+1}, {srd}, {so} offen offset:1024 {DMAFL} lds", f"slot{n}")]]

def emit_job(a, job):
    for t in job:
        if isinstance(t, str): a.e(t)
        else: a.e(t[0], vm=t[1])

def lds_base(n):
    pos = n % NSLOT
    return (0, pos*8192) if pos < 5 else (1, (pos-5)*8192)

def wfrag_reads(a, n, s, dst, tag=None):
    hi, off = lds_base(n)
    va = "v17" if hi else "v16"
    a.e(f"ds_read_b64_tr_b16 v[{dst}:{dst+1}], {va} offset:{off + s*2048}", lg=tag)
    a.e(f"ds_read_b64_tr_b16 v[{dst+2}:{dst+3}], {va} offset:{off + s*2048 + 512}", lg=tag)

def role_B(a, cfg):
    a.c("================= role B =================")
    if cfg.prioB: a.e(f"s_setprio {cfg.prioB}")
    a.e("""
    s_and_b32 s66, s3, 7            ; xcd
    s_lshr_b32 s67, s3, 3           ; jj
    s_lshr_b32 s56, s66, 1
    s_lshl_b32 s56, s56, 3
    s_and_b32 s68, s67, 7
    s_add_u32 s56, s56, s68         ; tb
    s_and_b32 s57, s66, 1
    s_lshl_b32 s57, s57, 2
    s_lshr_b32 s68, s67, 3
    s_add_u32 s57, s57, s68         ; hq
    s_and_b32 s58, s39, 1           ; tt
    s_lshr_b32 s59, s39, 1
    s_lshl_b32 s60, s39, 11
    s_mov_b32 s62, 0x3fb8aa3b
    s_mov_b32 s63, 0x3fb8aa3b
    s_mov_b32 s64, 0x358637bd
    s_mov_b32 s65, 0x358637bd
    """)
    a.e("""
    v_lshrrev_b32 v32, 3, v1        ; l>>3
    v_and_b32 v33, 7, v1            ; l&7
    v_lshrrev_b32 v34, 4, v1        ; l>>4
    s_lshl_b32 s68, s56, 6          ; tb*64
    s_lshl_b32 s69, s39, 4          ; 16w
    s_add_u32 s68, s68, s69
    v_add_u32 v35, s68, v32         ; row
    v_lshlrev_b32 v35, 10, v35
    v_xor_b32 v36, v33, v34
    v_lshl_add_u32 v2, v36, 4, v35
    v_add_u32 v37, 4, v34
    v_xor_b32 v36, v33, v37
    v_lshl_add_u32 v3, v36, 4, v35
    v_add_u32 v3, 7168, v3          ; +8 rows - 1024
    v_and_b32 v36, 1, v34
    v_lshlrev_b32 v36, 2, v36
    v_xor_b32 v36, v33, v36         ; q
    v_lshlrev_b32 v36, 4, v36       ; q*16
    v_add_u32 v37, s69, v32         ; 16w + (l>>3)
    v_mul_u32_u24 v38, 3072, v37
    s_lshl_b32 s68, s57, 7          ; hq*128
    v_add3_u32 v4, v38, v36, s68
    v_add_u32 v5, 23552, v4         ; +8*3072 - 1024
    v_lshlrev_b32 v38, 10, v37
    v_add3_u32 v6, v38, v36, s68
    v_add_u32 v7, 7168, v6
    """)
    a.e("""
    s_waitcnt lgkmcnt(0)
    s_mov_b32 s40, s26
    s_and_b32 s41, s27, 0xffff
    s_mov_b32 s42, 0x200000
    s_mov_b32 s43, 0x20000
    s_mov_b32 s44, s28
    s_and_b32 s45, s29, 0xffff
    s_mov_b32 s46, 0x180000
    s_mov_b32 s47, 0x20000
    s_mov_b32 s48, s30
    s_and_b32 s49, s31, 0xffff
    s_mov_b32 s50, 0x80000
    s_mov_b32 s51, 0x20000
    """)
    a.e("""
    v_mov_b32 v31, 0
    s_cmp_lg_u32 s3, 0
    s_cbranch_scc1 L_b_nononce
    s_cmp_lg_u32 s39, 0
    s_cbranch_scc1 L_b_nononce
    s_memrealtime s[68:69]
    s_waitcnt lgkmcnt(0)
    s_or_b32 s68, s68, 1
    v_mov_b32 v30, s68
    s_mov_b64 exec, 1
    global_store_dword v31, v30, s[34:35] sc1
    s_mov_b64 exec, -1
    """)
    a.vm.pop()
    a.label("L_b_nononce")
    if cfg.b_exit:
        a.e("s_branch L_end")
    for c in range(8):
        a.e(f"s_mov_b32 s{8+c}, {c*64*3072}")
        a.e(f"s_mov_b32 s{16+c}, {c*128}")
    stamp(a, cfg, 1)
    for n in range(cfg.ninit):
        for job in b_issue_jobs(n): emit_job(a, job)
    a.e("""
    v_and_b32 v32, 31, v1           ; i
    v_lshrrev_b32 v33, 5, v1        ; hh
    s_lshl_b32 s68, s58, 5
    v_add_u32 v34, s68, v32         ; 32tt + i
    v_lshlrev_b32 v34, 7, v34       ; *128
    v_lshrrev_b32 v35, 1, v32
    v_and_b32 v35, 7, v35           ; f
    """)
    for s in range(4):
        a.e(f"""
        v_add_u32 v36, {2*s}, v33
        v_xor_b32 v36, v36, v35
        v_lshl_add_u32 v{8+s}, v36, 4, v34
        v_add_u32 v{12+s}, 40960, v{8+s}
        """)
    a.e(f"""
    v_lshrrev_b32 v34, 2, v1
    v_and_b32 v34, 3, v34           ; rr
    v_and_b32 v35, 3, v1            ; cc
    v_lshrrev_b32 v36, 4, v1
    v_and_b32 v36, 1, v36           ; G&1
    v_lshlrev_b32 v36, 1, v36       ; 2(G&1)
    v_lshrrev_b32 v37, 1, v35       ; cc>>1
    v_add_u32 v36, v36, v37         ; 2(G&1) + (cc>>1)
    v_lshrrev_b32 v37, 1, v34
    v_lshlrev_b32 v37, 2, v37       ; 4(rr>>1)
    v_and_b32 v38, 1, v35
    v_lshlrev_b32 v38, 3, v38       ; 8(cc&1)
    s_lshl_b32 s68, s59, 2
    v_add_u32 v39, s68, v36
    v_xor_b32 v39, v39, v37
    v_lshl_add_u32 v39, v39, 4, v38
    v_lshl_add_u32 v40, v33, 3, v34
    v_lshl_add_u32 v16, v40, 7, v39
    v_add_u32 v17, 40960, v16
    v_xor_b32 v39, v36, v37
    v_lshl_add_u32 v39, v39, 4, v38
    v_lshl_add_u32 v40, v33, 2, v34
    v_lshl_add_u32 v18, v40, 7, v39
    s_lshl_b32 s68, s59, 15
    s_add_u32 s68, s68, 16384
    v_add_u32 v18, s68, v18
    v_xor_b32 v19, 64, v18
    s_lshl_b32 s68, s59, 1
    s_add_u32 s68, s68, s58
    s_xor_b32 s69, s68, 1
    s_lshl_b32 s66, s68, 10
    s_add_u32 s66, s66, 0
    v_lshl_add_u32 v22, v1, 4, s66
    s_lshl_b32 s66, s69, 10
    s_add_u32 s66, s66, 0
    v_lshl_add_u32 v23, v1, 4, s66
    s_lshl_b32 s66, s68, 8
    s_add_u32 s66, s66, 4096
    v_lshl_add_u32 v24, v1, 2, s66
    s_lshl_b32 s66, s69, 8
    s_add_u32 s66, s66, 4096
    v_lshl_add_u32 v25, v1, 2, s66
    ; global kv partial block: KVP + (hp*32+tb)*2176
    s_lshl_b32 s68, s57, 1
    s_add_u32 s68, s68, s59
    s_lshl_b32 s68, s68, 5
    s_add_u32 s68, s68, s56
    s_mul_i32 s68, s68, 2176
    s_add_u32 s68, s68, {KVP}
    s_lshl_b32 s69, s58, 10
    s_add_u32 s69, s69, s68
    v_lshl_add_u32 v26, v1, 4, s69
    v_lshrrev_b32 v40, 4, v1
    v_and_b32 v40, 1, v40
    v_lshlrev_b32 v40, 3, v40       ; 8c
    v_and_b32 v41, 4, v1            ; 4*hh'
    v_add_u32 v40, v40, v41
    v_lshrrev_b32 v41, 2, v1
    v_and_b32 v41, 2, v41
    v_add_u32 v40, v40, v41
    v_lshrrev_b32 v41, 1, v1
    v_and_b32 v41, 1, v41
    v_add_u32 v40, v40, v41         ; zg
    s_add_u32 s68, s68, 2048
    v_lshl_add_u32 v27, v40, 3, s68
    s_lshl_b32 s68, s56, 1
    s_add_u32 s68, s68, s58
    s_lshl_b32 s68, s68, 5
    s_lshl_b32 s69, s57, 2
    s_add_u32 s68, s68, s69
    s_lshl_b32 s69, s59, 1
    s_add_u32 s68, s68, s69
    s_lshl_b32 s68, s68, 10
    s_add_u32 s68, s68, {PQ}
    v_lshl_add_u32 v28, v1, 4, s68
    v_and_b32 v40, 16, v1
    v_cmp_ne_u32 s[52:53], 0, v40
    s_sub_u32 s54, 0, s58
    s_mov_b32 s55, s54
    """)
    a.e(f"""
    s_cmp_lg_u32 s39, 3
    s_cbranch_scc1 L_b_nopt
    s_lshl_b32 s68, s56, 7
    s_add_u32 s68, s68, {PQF}
    v_mov_b32 v40, s68
    global_load_dword v21, v40, s[36:37] sc1
    """)
    a.vm.pop()
    a.label("L_b_nopt")
    for r in range(16):
        a.e(f"v_mov_b32 v{ACCQ+r}, s64")
    for r in range(16):
        a.e(f"v_mov_b32 v{ACCK+r}, s64")
    def frag_reads(g, k):
        L = []
        tag = f"f{g}_{k}"
        if g < 8:
            nx, nw = 2*g, 2*g+1
            hi, off = lds_base(nx)
            L.append((f"ds_read_b128 v[{XR+16*g+4*k}:{XR+16*g+4*k+3}], v{(12 if hi else 8)+k} offset:{off}", tag))
            d = WF + 16*(g % 2) + 4*k; n = nw; sstep = k
        else:
            n = 2*g + k//4; sstep = k % 4; d = WF + 4*k
        h2, o2 = lds_base(n)
        va = "v17" if h2 else "v16"
        L.append((f"ds_read_b64_tr_b16 v[{d}:{d+1}], {va} offset:{o2 + sstep*2048}", tag))
        L.append((f"ds_read_b64_tr_b16 v[{d+2}:{d+3}], {va} offset:{o2 + sstep*2048 + 512}", tag))
        return L
    def nsteps(g): return 4 if g < 8 else 8
    def emit_side(lst):
        for t in lst:
            if isinstance(t, str): a.e(t)
            elif t[0] == "WVM": a.wait_vm(t[1])
            else: a.e(t[0], vm=t[1])
    side = {}
    qe = phi_instrs(ACCQ, T16, ACCQ)
    qe += [(f"global_store_dwordx4 v28, v[{ACCQ}:{ACCQ+3}], s[36:37] sc1", "pqst"),
           (f"global_store_dwordx4 v28, v[{ACCQ+4}:{ACCQ+7}], s[36:37] offset:1024 sc1", "pqst")]
    gaps = [(g, k) for g in range(8, 12) for k in range(8)][1:26]
    for gp, grp in zip(gaps, spread(qe, len(gaps))): side[gp] = grp
    ke = phi_instrs(ACCK, T16, ACCK, zsum=29)
    ke += ["v_mov_b32 v30, v29", "v_permlane32_swap_b32 v29, v30", "v_add_f32 v29, v29, v30"]
    gaps = [(g, k) for g in range(12, 16) for k in range(8)][1:31]
    for gp, grp in zip(gaps, spread(ke, len(gaps))): side[gp] = grp
    side[(9, 7)] = side.get((9, 7), []) + ["s_lshl_b32 s68, s56, 7", f"s_add_u32 s68, s68, {PQF}", "v_and_b32 v2, 7, v1", "v_lshl_add_u32 v2, v2, 2, s68"]
    rb = f"""
    s_mov_b32 s40, s36
    s_and_b32 s41, s37, 0xffff
    s_mov_b32 s42, {KVF + 65536}
    s_mov_b32 s43, 0x20000
    s_lshl_b32 s68, s56, 1
    s_add_u32 s68, s68, s58
    s_lshl_b32 s68, s68, 5
    s_lshl_b32 s69, s59, 4
    s_add_u32 s68, s68, s69
    s_lshl_b32 s68, s68, 10
    s_add_u32 s68, s68, {PQ}
    v_lshl_add_u32 v3, v1, 4, s68
    v_add_u32 v31, 8192, v3
    v_lshrrev_b32 v13, 7, v0
    v_mul_u32_u24 v13, {KVBLK}, v13
    v_and_b32 v20, 127, v0
    v_lshl_add_u32 v13, v20, 4, v13
    v_add_u32 v13, {KVF}, v13
    v_lshrrev_b32 v14, 3, v20
    v_mul_u32_u24 v14, {KVBLK}, v14
    v_and_b32 v21, 7, v0
    v_lshl_add_u32 v14, v21, 4, v14
    v_add_u32 v14, {KVF+2048}, v14
    v_lshrrev_b32 v15, 7, v0
    v_lshlrev_b32 v15, 1, v15
    v_bfe_u32 v21, v0, 4, 1
    v_add_u32 v15, v15, v21
    v_mul_u32_u24 v15, 544, v15
    v_bfe_u32 v21, v0, 5, 1
    v_mul_u32_u24 v21, 272, v21
    v_add_u32 v15, v15, v21
    v_and_b32 v21, 15, v0
    v_lshl_add_u32 v15, v21, 4, v15
    v_bfe_u32 v21, v0, 6, 1
    v_lshl_add_u32 v15, v21, 3, v15
    v_lshrrev_b32 v12, 3, v20
    v_lshlrev_b32 v12, 1, v12
    v_bfe_u32 v21, v0, 2, 1
    v_add_u32 v12, v12, v21
    v_mul_u32_u24 v12, 544, v12
    v_bfe_u32 v21, v0, 1, 1
    v_mul_u32_u24 v21, 272, v21
    v_add_u32 v12, v12, v21
    v_and_b32 v21, 1, v0
    v_lshl_add_u32 v12, v21, 3, v12
    v_add_u32 v12, 256, v12
    v_and_b32 v30, 15, v1
    v_mul_u32_u24 v30, {KVBLK}, v30
    v_add_u32 v30, {KVF+2048}, v30
    """.strip().split("\n")
    rb = [x.strip() for x in rb]
    rb += [f"s_mov_b32 s{8+i}, {1024*i}" for i in range(8)] + [f"s_mov_b32 s{16+k}, {2*KVBLK*k}" for k in range(8)]
    if not cfg.late_o:
        gaps = [(14, k) for k in range(5, 8)] + [(15, k) for k in range(8)]
        for gp, grp in zip(gaps, spread(rb, len(gaps))): side[gp] = side.get(gp, []) + grp

    def kv_publish():
        a.c("--- kv partial: V cvt, MFMA, select, pair exchange, publish")
        a.e("s_barrier")
        a.e("global_load_dword v21, v2, s[36:37] sc1", vm="pqf")
        for m in range(8):
            a.e(f"v_cvt_pk_bf16_f32 v{ACCV+m}, v{ACCV+2*m}, v{ACCV+2*m+1}")
        a.e(f"v_mfma_f32_32x32x16_bf16 v[{T16}:{T16+15}], v[{ACCK}:{ACCK+3}], v[{ACCV}:{ACCV+3}], 0")
        a.e(f"v_mfma_f32_32x32x16_bf16 v[{T16}:{T16+15}], v[{ACCK+4}:{ACCK+7}], v[{ACCV+4}:{ACCV+7}], v[{T16}:{T16+15}]")
        a.e("ds_write_b32 v24, v29", lg="xw")
        SEL = ACCK + 8; SND = ACCV + 8; KEEP = ACCV + 12
        for j in range(8): a.e(f"v_cndmask_b32 v{SEL+j}, v{T16+j}, v{T16+8+j}, s[52:53]")
        for j in range(4): a.e(f"v_cndmask_b32 v{SND+j}, v{SEL+4+j}, v{SEL+j}, s[54:55]")
        a.e(f"ds_write_b128 v22, v[{SND}:{SND+3}]", lg="xw")
        for j in range(4): a.e(f"v_cndmask_b32 v{KEEP+j}, v{SEL+j}, v{SEL+4+j}, s[54:55]")
        a.wait_lg("xw")
        a.e("s_barrier")
        a.e(f"ds_read_b128 v[{SEL}:{SEL+3}], v23", lg="xr")
        a.e(f"ds_read_b32 v30, v25", lg="xr")
        a.wait_lg("xr")
        a.wait_vm("pqf")
        a.e("v_cmp_ne_u32 s[66:67], s38, v21")
        for j in range(4): a.e(f"v_add_f32 v{KEEP+j}, v{KEEP+j}, v{SEL+j}")
        a.e(f"""
        v_add_f32 v29, v29, v30
        v_cvt_pk_bf16_f32 v{SEL}, v{KEEP}, v{KEEP+1}
        v_mov_b32 v{SEL+1}, s38
        v_cvt_pk_bf16_f32 v{SEL+2}, v{KEEP+2}, v{KEEP+3}
        v_mov_b32 v{SEL+3}, s38
        v_mov_b32_dpp v30, v29 quad_perm:[1,0,3,2] row_mask:0xf bank_mask:0xf
        global_store_dwordx4 v26, v[{SEL}:{SEL+3}], s[36:37] sc1
        v_cvt_pk_bf16_f32 v{SEL+4}, v29, v30
        v_mov_b32 v{SEL+5}, s38
        s_andn2_b64 exec, 0x55555555, s[54:55]
        s_cbranch_execz L_b_noz
        global_store_dwordx2 v27, v[{SEL+4}:{SEL+5}], s[36:37] sc1
        """)
        a.vm.pop()
        a.label("L_b_noz")
        a.e("s_mov_b64 exec, -1")
        stamp(a, cfg, 6)

    a.wait_vm(["slot0", "slot1"])
    a.e("s_barrier")
    stamp(a, cfg, 2)
    for k in range(4):
        for t, tag in frag_reads(0, k): a.e(t, lg=tag)
    nxt = cfg.ninit
    pend = []
    while nxt < NSLOT:
        pend += b_issue_jobs(nxt); nxt += 1
    for g in range(16):
        a.c(f"--- group {g}")
        if g == 13: poll_nonce(a, "v21", "v31", first_tag="nonce")
        if g == 14: a.wait_vm("pqst")
        if g < 15:
            a.wait_vm([f"slot{2*g+2}", f"slot{2*g+3}"])
        a.e("s_barrier")
        if g == 14:
            a.e("""
            s_cmp_lg_u32 s39, 3
            s_cbranch_scc1 L_b_noflag
            s_lshl_b32 s68, s56, 7
            s_lshl_b32 s69, s57, 2
            s_add_u32 s68, s68, s69
            s_add_u32 s68, s68, %d
            v_mov_b32 v20, s68
            v_mov_b32 v21, s38
            s_mov_b64 exec, 1
            global_store_dword v20, v21, s[36:37] sc1
            s_mov_b64 exec, -1
            """ % PQF)
            a.vm.pop()
            a.label("L_b_noflag")
        if g in (1, 8, 12): stamp(a, cfg, {1: 3, 8: 4, 12: 5}[g])
        jobs = list(pend); pend = []
        if g >= 1:
            for _ in range(2):
                if nxt < (32 if cfg.late_o else 40): jobs += b_issue_jobs(nxt); nxt += 1
        if g == 9:
            jobs.append([("global_load_dword v21, v31, s[34:35] sc1", "nonce")])
        ns = nsteps(g)
        jsp = spread(jobs, ns)
        for k in range(ns):
            if k % 2 == 0: a.wait_lg([f"f{g}_{k}", f"f{g}_{k+1}"])
            if g < 8:
                d = WF + 16*(g % 2) + 4*k
                a.e(f"v_mfma_f32_32x32x16_bf16 v[{ACCQ}:{ACCQ+15}], v[{d}:{d+3}], v[{XR+16*g+4*k}:{XR+16*g+4*k+3}], v[{ACCQ}:{ACCQ+15}]")
            elif g < 12:
                kk = (g - 8)*8 + k
                a.e(f"v_mfma_f32_32x32x16_bf16 v[{ACCK}:{ACCK+15}], v[{XR+4*kk}:{XR+4*kk+3}], v[{WF+4*k}:{WF+4*k+3}], v[{ACCK}:{ACCK+15}]")
            else:
                kk = (g - 12)*8 + k
                cc = "0" if (g == 12 and k == 0) else f"v[{ACCV}:{ACCV+15}]"
                a.e(f"v_mfma_f32_32x32x16_bf16 v[{ACCV}:{ACCV+15}], v[{XR+4*kk}:{XR+4*kk+3}], v[{WF+4*k}:{WF+4*k+3}], {cc}")
            jl = [list(jb) for jb in jsp[k]]
            if jl:
                while jl[0] and not jl[0][0][0].startswith(("buffer_load", "global_load")):
                    a.e(jl[0].pop(0)[0])
            if g < 15:
                nx = [k, 4 + k] if g == 7 else [k]
                for k2 in nx:
                    for t, tag in frag_reads(g + 1, k2): a.e(t, lg=tag)
            for jb in jl: emit_job(a, jb)
            emit_side(side.get((g, k), []))
    kv_publish()
    a.e("s_mov_b64 s[54:55], s[66:67]")
    def pq_first(sfx):
        for t in rb: a.e(t)
        a.e(f"""
        s_cmp_eq_u64 s[54:55], 0
        s_cbranch_scc1 L_b_pqf_go{sfx}
        s_mov_b32 s61, 0
        """)
        a.label(f"L_b_pqf_poll{sfx}")
        a.e(f"""
        global_load_dword v21, v2, s[36:37] sc1
        s_add_u32 s61, s61, 1
        s_waitcnt vmcnt(0)
        v_cmp_ne_u32 vcc, s38, v21
        s_cmp_gt_u32 s61, {SPIN_LIMIT}
        s_cbranch_scc1 L_b_pqf_go{sfx}
        s_cbranch_vccz L_b_pqf_go{sfx}
        s_branch L_b_pqf_poll{sfx}
        """)
        a.label(f"L_b_pqf_go{sfx}")
        for i in range(8):
            a.e(f"buffer_load_dwordx4 v[{32+4*i}:{35+4*i}], v3, s[40:43], s{8+i} offen sc1")
    a.e("""
    s_cmp_eq_u32 s39, 0
    s_cbranch_scc1 L_b_w0tail
    """)
    for n in range(32, 40):
        for jb in b_issue_jobs(n): emit_job(a, jb)
    a.e("""
    s_cmp_eq_u32 s39, 1
    s_cbranch_scc0 L_b_noshare
    v_subrev_u32 v22, 16384, v6
    v_subrev_u32 v23, 16384, v7
    """)
    for n in range(32, 40):
        c = SEQ[n][1]; pos = n % NSLOT
        a.e(f"s_mov_b32 m0, {pos*8192}")
        a.e(f"s_mov_b32 s61, {c*65536}")
        a.e(f"buffer_load_dwordx4 v22, s[48:51], s61 offen lds")
        a.e(f"buffer_load_dwordx4 v23, s[48:51], s61 offen offset:1024 lds")
    a.label("L_b_noshare")
    pq_first("a")
    a.e("s_waitcnt vmcnt(8)")
    a.e("s_branch L_b_tailjoin")
    a.label("L_b_w0tail")
    reducer(a, cfg)
    pq_first("b")
    a.label("L_b_tailjoin")
    a.vm = []; a.lg = []
    stamp(a, cfg, 7)
    if not cfg.do_B2:
        stamp(a, cfg, 8)
        stamps_out(a, cfg, 9)
        a.e("s_branch L_end")
        return
    role_B2(a, cfg)

def tag_check(a, regs_tags, acc="v20"):
    tt = 0
    for idx in range(8):
        s0, s1, s2 = (idx >> 2) & 1, (idx >> 1) & 1, idx & 1
        if s0 | (s1 ^ s2): tt |= 1 << idx
    first = True
    for r in regs_tags:
        if first:
            a.e(f"v_xor_b32 {acc}, s38, v{r}"); first = False
        else:
            a.e(f"v_bitop3_b32 {acc}, {acc}, v{r}, s38 bitop3:{hex(tt)}")
    a.e(f"v_cmp_ne_u32 vcc, 0, {acc}")

def reducer(a, cfg):
    def reduce_line(base, dst_addr, tagsok_label):
        S = 64; T = 68
        for k in range(4):
            r = base + 4*k
            for pidx in range(2):
                src = r + 2*pidx
                if k == 0:
                    a.e(f"v_lshlrev_b32 v{S+2*pidx}, 16, v{src}")
                    a.e(f"v_and_b32 v{S+1+2*pidx}, 0xffff0000, v{src}")
                else:
                    a.e(f"v_lshlrev_b32 v{T+2*pidx}, 16, v{src}")
                    a.e(f"v_and_b32 v{T+1+2*pidx}, 0xffff0000, v{src}")
                    a.e(f"v_add_f32 v{S+2*pidx}, v{S+2*pidx}, v{T+2*pidx}")
                    a.e(f"v_add_f32 v{S+1+2*pidx}, v{S+1+2*pidx}, v{T+1+2*pidx}")
        for j in range(4): a.e(f"v_add_f32_dpp v{S+j}, v{S+j}, v{S+j} row_ror:8 row_mask:0xf bank_mask:0xf")
        for j in range(4): a.e(f"v_mov_b32 v{T+j}, v{S+j}")
        for j in range(4): a.e(f"v_permlane16_swap_b32 v{S+j}, v{T+j}")
        for j in range(4): a.e(f"v_add_f32 v{S+j}, v{S+j}, v{T+j}")
        for j in range(4): a.e(f"v_mov_b32 v{T+j}, v{S+j}")
        for j in range(4): a.e(f"v_permlane32_swap_b32 v{S+j}, v{T+j}")
        for j in range(4): a.e(f"v_add_f32 v{S+j}, v{S+j}, v{T+j}")
        a.e(f"""
        v_cvt_pk_bf16_f32 v72, v{S}, v{S+1}
        v_mov_b32 v73, s38
        v_cvt_pk_bf16_f32 v74, v{S+2}, v{S+3}
        v_mov_b32 v75, s38
        s_mov_b64 exec, 0xff
        global_store_dwordx4 {dst_addr}, v[72:75], s[36:37] sc1
        s_mov_b64 exec, -1
        """)
    a.e(f"""
    s_lshr_b32 s66, s3, 4
    s_and_b32 s67, s3, 15
    s_mul_i32 s69, s66, {32*KVBLK}
    s_add_u32 s69, s69, {KVP}
    s_lshl_b32 s52, s67, 7
    s_add_u32 s68, s69, s52
    v_and_b32 v22, 7, v1
    v_lshlrev_b32 v22, 4, v22
    v_lshrrev_b32 v23, 3, v1
    v_mul_u32_u24 v23, {KVBLK}, v23
    v_add_u32 v23, v22, v23
    v_add_u32 v24, s68, v23
    v_add_u32 v25, {8*KVBLK}, v24
    v_add_u32 v26, {16*KVBLK}, v24
    v_add_u32 v27, {24*KVBLK}, v24
    s_add_u32 s68, s69, 2048
    v_add_u32 v8, s68, v23
    v_add_u32 v9, {8*KVBLK}, v8
    v_add_u32 v10, {16*KVBLK}, v8
    v_add_u32 v11, {24*KVBLK}, v8
    s_mul_i32 s69, s66, {KVBLK}
    s_add_u32 s69, s69, {KVF}
    s_add_u32 s68, s69, s52
    v_add_u32 v23, s68, v22
    s_add_u32 s68, s69, 2048
    v_add_u32 v29, s68, v22
    """)
    a.e("""
    s_mov_b32 s61, 0
    """)
    a.label("L_b_red_poll")
    a.e("""
    global_load_dwordx4 v[96:99], v24, s[36:37] sc1
    global_load_dwordx4 v[100:103], v25, s[36:37] sc1
    global_load_dwordx4 v[104:107], v26, s[36:37] sc1
    global_load_dwordx4 v[108:111], v27, s[36:37] sc1
    global_load_dwordx4 v[112:115], v8, s[36:37] sc1
    global_load_dwordx4 v[116:119], v9, s[36:37] sc1
    global_load_dwordx4 v[120:123], v10, s[36:37] sc1
    global_load_dwordx4 v[124:127], v11, s[36:37] sc1
    s_add_u32 s61, s61, 1
    s_waitcnt vmcnt(0)
    """)
    tag_check(a, [97+2*q for q in range(16)])
    a.e(f"""
    s_cmp_gt_u32 s61, {SPIN_LIMIT}
    s_cbranch_scc1 L_b_red_go
    s_cbranch_vccz L_b_red_go
    s_sleep {cfg.sl_red}
    s_branch L_b_red_poll
    """)
    a.label("L_b_red_go")
    a.e("""
    s_cmp_lg_u32 s67, 0
    s_cbranch_scc1 L_b_red_a
    """)
    reduce_line(112, "v29", None)
    a.label("L_b_red_a")
    reduce_line(96, "v23", None)
    stamp(a, cfg, 10)

def role_B2(a, cfg):
    WO = 128
    ACC = 96
    PQR = 32
    CN = [64, 80]
    KAF = [8, 12]
    OF = [4, 16]
    KA = 0
    PQL = 17408
    a.c("================= B2 =================")
    a.e("s_barrier")
    for i in range(16):
        for nt in range(2):
            d = WO + 8*i + 4*nt
            off = (i//4)*8192 + (i % 4)*2048
            a.e(f"ds_read_b64_tr_b16 v[{d}:{d+1}], v{18+nt} offset:{off}", lg="wo")
            a.e(f"ds_read_b64_tr_b16 v[{d+2}:{d+3}], v{18+nt} offset:{off+1024}", lg="wo")
    a.e("s_waitcnt lgkmcnt(0)")
    a.e("s_barrier")
    a.vm = []; a.lg = []
    stamp(a, cfg, 9)
    if cfg.zpoll:
        a.e("""
        s_mov_b32 s61, 0
        s_cmp_eq_u32 s39, 0
        s_cbranch_scc0 L_b_kz_go
        """)
        a.label("L_b_kz_poll")
        a.e(f"""
        buffer_load_dwordx4 v[96:99], v30, s[40:43], 0 offen sc1
        s_add_u32 s61, s61, 1
        s_waitcnt vmcnt(0)
        v_xor_b32 v20, s38, v97
        v_cmp_ne_u32 vcc, 0, v20
        s_cmp_gt_u32 s61, {SPIN_LIMIT}
        s_cbranch_scc1 L_b_kz_go
        s_cbranch_vccz L_b_kz_go
        s_sleep {cfg.sl_kz}
        s_branch L_b_kz_poll
        """)
        a.label("L_b_kz_go")
        stamp(a, cfg, 11)
        a.e("s_barrier")
    def ka_loads():
        for k in range(8):
            a.e(f"buffer_load_dwordx4 v[{64+4*k}:{67+4*k}], v13, s[40:43], s{16+k} offen sc1")
        a.e("buffer_load_dwordx4 v[96:99], v14, s[40:43], 0 offen sc1")
    a.e("s_mov_b32 s61, 0")
    a.e("s_branch L_b_kvf_first")
    a.label("L_b_kvf_poll")
    a.e(f"s_sleep {cfg.sl_ka}")
    a.label("L_b_kvf_first")
    ka_loads()
    a.e("s_waitcnt vmcnt(0)")
    a.label("L_b_ka_chk")
    a.e("s_add_u32 s61, s61, 1")
    tag_check(a, [65+2*q for q in range(18)])
    a.e(f"""
    s_cmp_gt_u32 s61, {SPIN_LIMIT}
    s_cbranch_scc1 L_b_kvf_go
    s_cbranch_vccnz L_b_kvf_poll
    """)
    a.label("L_b_kvf_go")
    stamp(a, cfg, 12)
    stampval(a, cfg, 8, "s61")
    a.vm = []
    for k in range(8):
        a.e(f"v_mov_b32 v{65+4*k}, v{66+4*k}")
        a.e(f"ds_write_b64 v15, v[{64+4*k}:{65+4*k}] offset:{KA + 2176*k}")
    a.e("v_mov_b32 v97, v98")
    a.e(f"ds_write_b64 v12, v[96:97] offset:{KA}")
    a.e(f"""
    v_and_b32 v22, 31, v1
    v_min_u32 v22, 16, v22
    v_lshlrev_b32 v22, 4, v22
    v_lshrrev_b32 v23, 5, v1
    v_mul_u32_u24 v23, 272, v23
    s_mul_i32 s68, s59, {16*544}
    v_add3_u32 v22, v22, v23, s68
    s_waitcnt vmcnt(0) lgkmcnt(0)
    s_barrier
    """)
    a.vm = []; a.lg = []
    stamp(a, cfg, 13)
    def kaf_read(i):
        a.e(f"ds_read_b128 v[{KAF[i%2]}:{KAF[i%2]+3}], v22 offset:{KA + 544*i}", lg=f"ka{i}")
    def out_mfma(i):
        o = OF[i % 2]
        for nt in range(2):
            w = WO + 8*i + 4*nt
            cc = "0" if i == 0 else f"v[{ACC+16*nt}:{ACC+16*nt+15}]"
            a.e(f"v_mfma_f32_32x32x16_bf16 v[{ACC+16*nt}:{ACC+16*nt+15}], v[{w}:{w+3}], v[{o}:{o+3}], {cc}")
    def num_mfma(i):
        a.wait_lg(f"ka{i}")
        p = PQR + 4*(i % 8)
        if i >= 8: a.wait_vm(f"pq{i}")
        a.e(f"v_mfma_f32_32x32x16_bf16 v[{CN[i%2]}:{CN[i%2]+15}], v[{KAF[i%2]}:{KAF[i%2]+3}], v[{p}:{p+3}], 0")
        if i < 8:
            a.e(f"buffer_load_dwordx4 v[{p}:{p+3}], v31, s[40:43], s{8+i} offen sc1", vm=f"pq{i+8}")
    def out1(i, nt):
        o = OF[i % 2]
        w = WO + 8*i + 4*nt
        cc = "0" if i == 0 else f"v[{ACC+16*nt}:{ACC+16*nt+15}]"
        a.e(f"v_mfma_f32_32x32x16_bf16 v[{ACC+16*nt}:{ACC+16*nt+15}], v[{w}:{w+3}], v[{o}:{o+3}], {cc}")
    kaf_read(0); kaf_read(1)
    num_mfma(0)
    for i in range(16):
        if i + 1 < 16:
            num_mfma(i + 1)
        c = CN[i % 2]
        a.e(f"v_add_f32 v20, s64, v{c+8}")
        a.e(f"v_rcp_f32 v20, v20")
        if i + 2 < 16:
            kaf_read(i + 2)
        for jj in range(2): a.e(f"v_mul_f32 v{c+jj}, v{c+jj}, v20")
        if i >= 1: out1(i - 1, 0)
        for jj in range(2, 7): a.e(f"v_mul_f32 v{c+jj}, v{c+jj}, v20")
        if i >= 1: out1(i - 1, 1)
        a.e(f"v_mul_f32 v{c+7}, v{c+7}, v20")
        o = OF[i % 2]
        for m in range(4):
            a.e(f"v_cvt_pk_bf16_f32 v{o+m}, v{c+2*m}, v{c+2*m+1}")
    out1(15, 0); out1(15, 1)
    stamp(a, cfg, 14)
    a.e("""
    s_cmp_lg_u32 s3, 0
    s_cbranch_scc1 L_b_norst
    s_cmp_lg_u32 s39, 0
    s_cbranch_scc1 L_b_norst
    v_mov_b32 v20, 0
    s_mov_b64 exec, 1
    global_store_dword v20, v20, s[34:35] sc1
    s_mov_b64 exec, -1
    """)
    a.label("L_b_norst")
    a.vm = []
    PB = 0
    a.e(f"""
    v_and_b32 v22, 31, v1
    s_lshl_b32 s68, s58, 5
    v_add_u32 v22, s68, v22            ; token
    v_mul_u32_u24 v22, 272, v22
    v_lshrrev_b32 v23, 5, v1
    v_lshl_add_u32 v22, v23, 4, v22    ; + hh*16
    s_mul_i32 s68, s59, {64*272}
    s_add_u32 s68, s68, {PB}
    v_add_u32 v22, s68, v22
    v_lshrrev_b32 v23, 3, v0
    v_mul_u32_u24 v24, 272, v23
    v_and_b32 v25, 7, v0
    v_lshl_add_u32 v24, v25, 5, v24
    v_add_u32 v24, {PB}, v24
    s_lshl_b32 s68, s56, 6
    v_add_u32 v23, s68, v23
    v_lshlrev_b32 v23, 11, v23
    s_lshl_b32 s68, s57, 7
    s_add_u32 s68, s68, 1024
    v_lshl_add_u32 v23, v25, 4, v23
    v_add_u32 v23, s68, v23
    s_waitcnt lgkmcnt(0)
    s_barrier
    """)
    for nt in range(2):
        for q in range(4):
            r = ACC + 16*nt + 4*q
            a.e(f"ds_write_b128 v22, v[{r}:{r+3}] offset:{nt*128 + q*32}")
    a.e("s_waitcnt lgkmcnt(0)")
    a.e("s_barrier")
    for r in range(2):
        o = r*32*272
        a.e(f"ds_read_b128 v[{32+16*r}:{35+16*r}], v24 offset:{o}")
        a.e(f"ds_read_b128 v[{36+16*r}:{39+16*r}], v24 offset:{o+16}")
        a.e(f"ds_read_b128 v[{40+16*r}:{43+16*r}], v24 offset:{o+64*272}")
        a.e(f"ds_read_b128 v[{44+16*r}:{47+16*r}], v24 offset:{o+64*272+16}")
    for r in range(2):
        a.e(f"s_waitcnt lgkmcnt({4 if r == 0 else 0})")
        b = 32 + 16*r
        for jj in range(8):
            a.e(f"v_add_f32 v{b+jj}, v{b+jj}, v{b+8+jj}")
        for m in range(4):
            a.e(f"v_cvt_pk_bf16_f32 v{64+4*r+m}, v{b+2*m}, v{b+2*m+1}")
        if r == 1: a.e(f"v_add_u32 v23, {32*2048}, v23")
        a.e(f"global_store_dwordx4 v23, v[{64+4*r}:{67+4*r}], s[32:33] {cfg.outfl}")
    stamps_out(a, cfg, 15)

TV = 240
def a_touch_setup(a, cfg):
    a.e(f"""
    s_lshr_b32 s62, s40, 1          ; tg
    s_and_b32 s63, s40, 1           ; hg
    s_lshl_b32 s64, s62, 9
    s_lshl_b32 s65, s41, 4          ; 16*jj
    s_add_u32 s64, s64, s65
    v_and_b32 v246, 15, v1
    v_lshrrev_b32 v247, 4, v1       ; 0..3
    v_add_u32 v241, s64, v246
    v_lshlrev_b32 v241, 10, v241
    v_lshl_add_u32 v241, v247, 7, v241
    v_add_u32 v241, 512, v241
    v_and_b32 v248, 3, v1
    v_lshlrev_b32 v248, 7, v248     ; line*128
    s_lshl_b32 s66, s63, 9          ; hg*512
    v_lshrrev_b32 v249, 2, v1
    v_add_u32 v240, s65, v249       ; 16jj + (l>>2)
    v_mul_u32_u24 v242, 3072, v240
    v_add3_u32 v242, v242, v248, s66
    v_add_u32 v244, 2048, v242      ; V
    v_lshlrev_b32 v245, 10, v240
    v_add3_u32 v245, v245, v248, s66
    v_and_b32 v249, 7, v249
    s_lshl_b32 s67, s41, 3
    s_add_u32 s67, s67, 256
    v_add_u32 v249, s67, v249
    v_mul_u32_u24 v243, 3072, v249
    v_add3_u32 v243, v243, v248, s66
    v_add_u32 v240, 1024, v242
    """)

def a_touch(a, cfg, plan):
    fl = cfg.touch_flags
    info = {"x1": (241, "s[26:27]"), "q47": (243, "s[28:29]"), "k": (240, "s[28:29]"), "v": (244, "s[28:29]"), "o": (245, "s[30:31]")}
    for w, names in plan.items():
        L = a.newlabel("tch")
        a.e(f"s_cmp_eq_u32 s39, {w}")
        a.e(f"s_cbranch_scc0 {L}")
        for i, nm in enumerate(names):
            v, base = info[nm]
            a.e(f"global_load_dword v{250+i}, v{v}, {base} {fl}")
            a.vm.pop()
        a.label(L)

def role_A(a, cfg):
    a.label("L_roleA")
    a.e("""
    s_and_b32 s40, s3, 7
    s_lshr_b32 s41, s3, 3           ; j
    s_waitcnt lgkmcnt(0)
    """)
    if not cfg.do_A:
        if cfg.touch:
            a_touch_setup(a, cfg)
            a_touch(a, cfg, {2: ["x1"], 3: ["q47"]})
            a.e("s_waitcnt vmcnt(0)")
            a_touch(a, cfg, {1: ["k"], 2: ["v"], 3: ["o"]})
            a.e("s_waitcnt vmcnt(0)")
        a.e("s_branch L_end")
        return
    import role_a
    role_a.role_A(a, cfg)

def build(cfg):
    global DMAFL
    DMAFL = cfg.dmafl
    a = Asm()
    prologue(a, cfg)
    if cfg.do_B:
        role_B(a, cfg)
    a.e("s_branch L_end")
    a.vm = []
    role_A(a, cfg)
    a.label("L_end")
    a.e("s_endpgm")
    body = a.render()
    return body, a

HEADER = open("concat_heads__ssm_conv_s4__linear_attn_block__prompt.s.ref").read().split("; Override launch")[0]

def generate(path, cfg):
    body, a = build(cfg)
    txt = wrap(body, HEADER, 512, 256, 81920)
    open(path, "w").write(txt)
    return a

if __name__ == "__main__":
    sys.modules["kern"] = sys.modules["__main__"]
    cfg = Cfg()
    cfg.stamps = True
    if len(sys.argv) > 2:
        for kv in sys.argv[2:]:
            k, v = kv.split("=")
            setattr(cfg, k, int(v) if v.isdigit() else v)
    a = generate(sys.argv[1] if len(sys.argv) > 1 else "k_b1.s", cfg)
    print("nops inserted:", a.nnops)
```

```python
import sys
from asmlib import Asm, wrap

UT   = 0
YT   = 4 << 20
PQ   = 8 << 20
PQF  = 10 << 20
KVP  = (10 << 20) + (64 << 10)
KVF  = 12 << 20
UTF  = (12 << 20) + (64 << 10)
YTF  = (12 << 20) + (96 << 10)
KVBLK = 2176
LOG2E = 0x3fb8aa3b
EPS   = 0x358637bd
SPIN_LIMIT = 200000

class Cfg:
    do_A = True
    do_B = True
    do_B2 = True
    touch = True
    dual = False
    x_nowrite = False
    prioA = 3
    prioA2 = 0
    dbgT = 0
    mid_u = 0
    qe_end = 26
    pqflag_g = 14
    dmafl = ""
    aldfl = ""
    zpoll = 0
    sl_ka = 1
    sl_kz = 1
    sl_pq = 1
    sl_red = 1
    sl_yt = 1
    sl_ut = 1
    late_o = 1
    yglobal = 0
    utclean = 0
    outfl = "sc1"
    uttouch = 0
    ninit = 8
    dbgN = 0
    ut_patience = 200
    flagpos = 0
    ytouch = 1
    dbgY = 0
    prioA3 = 1
    prioB = 2
    pk = 1
    b_exit = False
    touch_flags = ""
    early_release = True
    dma_early = False
    last_dma = 40
    late_pre = 0
    touch_mode = "late"
    stamps = False

STAMP_BASE = 14 << 20
def stamp(a, cfg, i):
    if cfg.stamps == 1:
        a.e(f"s_memtime s[{70+2*i}:{71+2*i}]")
def stampval(a, cfg, i, sreg):
    if cfg.stamps == 1:
        a.e("s_waitcnt lgkmcnt(0)")
        a.e(f"s_add_u32 s{70+2*i}, {sreg}, s70")
def stamps_out(a, cfg, n, vt=22):
    if not cfg.stamps: return
    a.e("s_memrealtime s[68:69]")
    a.e("s_waitcnt lgkmcnt(0) vmcnt(0)")
    a.vm = []
    if cfg.stamps == 2: n = 1
    for i in range(1, n):
        a.e(f"s_sub_u32 s{70+2*i}, s{70+2*i}, s70")
    a.e(f"""
    s_lshl_b32 s61, s2, 2
    s_add_u32 s61, s61, s39
    s_lshl_b32 s61, s61, 6
    s_add_u32 s61, s61, {STAMP_BASE}
    v_mov_b32 v{vt}, s61
    s_mov_b64 exec, 1
    """)
    for i in range(16):
        src = f"s{70+2*i}" if (0 < i < n) else ("s68" if i == 15 else ("s100" if i == 0 else "0"))
        a.e(f"v_mov_b32 v{vt+1}, {src}")
        a.e(f"global_store_dword v{vt}, v{vt+1}, s[36:37] offset:{4*i}")
        a.e("s_nop 1")
    a.e("s_waitcnt vmcnt(0)")
    a.e("s_mov_b64 exec, -1")
    a.vm = []

def prologue(a, cfg):
    if cfg.stamps:
        a.e("s_memrealtime s[100:101]")
        a.e("s_memtime s[70:71]")
    a.e("""
    s_cmp_ge_u32 s2, 512
    s_cbranch_scc1 L_end
    s_load_dwordx16 s[8:23], s[0:1], 0
    s_load_dwordx8 s[24:31], s[0:1], 64
    s_load_dwordx4 s[32:35], s[0:1], 96
    s_load_dwordx2 s[36:37], s[0:1], 112
    v_lshrrev_b32 v1, 6, v0
    v_readfirstlane_b32 s39, v1
    v_and_b32 v1, 63, v0
    s_and_b32 s3, s2, 255
    s_cmp_lt_u32 s2, 256
    s_cbranch_scc1 L_roleA
    """)

def poll_nonce(a, vtmp, vaddr0, first_tag=None):
    L = a.newlabel("nonce"); Lx = a.newlabel("nonce_ok")
    if first_tag:
        a.wait_vm(first_tag)
    else:
        a.e(f"global_load_dword {vtmp}, {vaddr0}, s[34:35] sc1")
        a.wait_vm_all()
    a.e(f"v_readfirstlane_b32 s38, {vtmp}")
    a.e(f"""
    s_cmp_lg_u32 s38, 0
    s_cbranch_scc1 {Lx}
    s_mov_b32 s61, 0
    """)
    a.label(L)
    a.e(f"""
    global_load_dword {vtmp}, {vaddr0}, s[34:35] sc1
    s_waitcnt vmcnt(0)
    v_readfirstlane_b32 s38, {vtmp}
    s_add_u32 s61, s61, 1
    s_cmp_gt_u32 s61, {SPIN_LIMIT}
    s_cbranch_scc1 {Lx}
    s_cmp_eq_u32 s38, 0
    s_cbranch_scc1 {L}
    """)
    a.vm.pop()
    a.label(Lx)

def phi_instrs(acc, tmp, out, zsum=None):
    L = []
    for i in range(16):
        L.append(f"v_mul_f32 v{tmp+i}, s62, v{acc+i}")
    for i in range(16):
        L.append(f"v_exp_f32 v{tmp+i}, v{tmp+i} clamp")
        L.append(f"v_max_f32 v{acc+i}, s64, v{acc+i}")
    for i in range(16):
        L.append(f"v_add_f32 v{acc+i}, v{acc+i}, v{tmp+i}")
    if zsum is not None:
        for m in range(8):
            L.append(f"v_add_f32 v{tmp+m}, v{acc+2*m}, v{acc+2*m+1}")
        for m in range(4):
            L.append(f"v_add_f32 v{tmp+m}, v{tmp+m}, v{tmp+4+m}")
        L.append(f"v_add_f32 v{tmp}, v{tmp}, v{tmp+2}")
        L.append(f"v_add_f32 v{tmp+1}, v{tmp+1}, v{tmp+3}")
        L.append(f"v_add_f32 v{zsum}, v{tmp}, v{tmp+1}")
    for m in range(8):
        L.append(f"v_cvt_pk_bf16_f32 v{out+m}, v{acc+2*m}, v{acc+2*m+1}")
    return L

def spread(side, nslots):
    out = []; n = len(side); k = 0
    for i in range(nslots):
        e = (n*(i+1))//nslots
        out.append(side[k:e]); k = e
    return out

SEQ = []
for c in range(8): SEQ += [("X", c), ("Q", c)]
SEQ += [("K", c) for c in range(8)] + [("V", c) for c in range(8)] + [("O", c) for c in range(8)]
NSLOT = 10
NINIT = 6
XR = 128
WF, T16, ACCQ, ACCK, ACCV = 32, 64, 80, 96, 112

DMAFL = ""
def b_issue_jobs(n):
    kind, c = SEQ[n]
    pos = n % NSLOT
    pre = []
    if kind == "X":
        so, v0, srd = f"s{16+c}", 2, "s[40:43]"
    elif kind in "QKV":
        so, v0, srd = f"s{8+c}", 4, "s[44:47]"
        if kind in "KV" and c == 0:
            pre = [("v_add_u32 v4, 1024, v4", None), ("v_add_u32 v5, 1024, v5", None)]
    else:
        so, v0, srd = "s61", 6, "s[48:51]"
        pre = [(f"s_mov_b32 s61, {c*65536}", None)]
    return [pre + [(f"s_add_u32 m0, s60, {pos*8192}", None),
             (f"buffer_load_dwordx4 v{v0}, {srd}, {so} offen {DMAFL} lds", f"slot{n}")],
            [(f"buffer_load_dwordx4 v{v0+1}, {srd}, {so} offen offset:1024 {DMAFL} lds", f"slot{n}")]]

def emit_job(a, job):
    for t in job:
        if isinstance(t, str): a.e(t)
        else: a.e(t[0], vm=t[1])

def lds_base(n):
    pos = n % NSLOT
    return (0, pos*8192) if pos < 5 else (1, (pos-5)*8192)

def wfrag_reads(a, n, s, dst, tag=None):
    hi, off = lds_base(n)
    va = "v17" if hi else "v16"
    a.e(f"ds_read_b64_tr_b16 v[{dst}:{dst+1}], {va} offset:{off + s*2048}", lg=tag)
    a.e(f"ds_read_b64_tr_b16 v[{dst+2}:{dst+3}], {va} offset:{off + s*2048 + 512}", lg=tag)

def role_B(a, cfg):
    a.c("================= role B =================")
    if cfg.prioB: a.e(f"s_setprio {cfg.prioB}")
    a.e("""
    s_and_b32 s66, s3, 7            ; xcd
    s_lshr_b32 s67, s3, 3           ; jj
    s_lshr_b32 s56, s66, 1
    s_lshl_b32 s56, s56, 3
    s_and_b32 s68, s67, 7
    s_add_u32 s56, s56, s68         ; tb
    s_and_b32 s57, s66, 1
    s_lshl_b32 s57, s57, 2
    s_lshr_b32 s68, s67, 3
    s_add_u32 s57, s57, s68         ; hq
    s_and_b32 s58, s39, 1           ; tt
    s_lshr_b32 s59, s39, 1
    s_lshl_b32 s60, s39, 11
    s_mov_b32 s62, 0x3fb8aa3b
    s_mov_b32 s63, 0x3fb8aa3b
    s_mov_b32 s64, 0x358637bd
    s_mov_b32 s65, 0x358637bd
    """)
    a.e("""
    v_lshrrev_b32 v32, 3, v1        ; l>>3
    v_and_b32 v33, 7, v1            ; l&7
    v_lshrrev_b32 v34, 4, v1        ; l>>4
    s_lshl_b32 s68, s56, 6          ; tb*64
    s_lshl_b32 s69, s39, 4          ; 16w
    s_add_u32 s68, s68, s69
    v_add_u32 v35, s68, v32         ; row
    v_lshlrev_b32 v35, 10, v35
    v_xor_b32 v36, v33, v34
    v_lshl_add_u32 v2, v36, 4, v35
    v_add_u32 v37, 4, v34
    v_xor_b32 v36, v33, v37
    v_lshl_add_u32 v3, v36, 4, v35
    v_add_u32 v3, 7168, v3          ; +8 rows - 1024
    v_and_b32 v36, 1, v34
    v_lshlrev_b32 v36, 2, v36
    v_xor_b32 v36, v33, v36         ; q
    v_lshlrev_b32 v36, 4, v36       ; q*16
    v_add_u32 v37, s69, v32         ; 16w + (l>>3)
    v_mul_u32_u24 v38, 3072, v37
    s_lshl_b32 s68, s57, 7          ; hq*128
    v_add3_u32 v4, v38, v36, s68
    v_add_u32 v5, 23552, v4         ; +8*3072 - 1024
    v_lshlrev_b32 v38, 10, v37
    v_add3_u32 v6, v38, v36, s68
    v_add_u32 v7, 7168, v6
    """)
    a.e("""
    s_waitcnt lgkmcnt(0)
    s_mov_b32 s40, s26
    s_and_b32 s41, s27, 0xffff
    s_mov_b32 s42, 0x200000
    s_mov_b32 s43, 0x20000
    s_mov_b32 s44, s28
    s_and_b32 s45, s29, 0xffff
    s_mov_b32 s46, 0x180000
    s_mov_b32 s47, 0x20000
    s_mov_b32 s48, s30
    s_and_b32 s49, s31, 0xffff
    s_mov_b32 s50, 0x80000
    s_mov_b32 s51, 0x20000
    """)
    a.e("""
    v_mov_b32 v31, 0
    s_cmp_lg_u32 s3, 0
    s_cbranch_scc1 L_b_nononce
    s_cmp_lg_u32 s39, 0
    s_cbranch_scc1 L_b_nononce
    s_memrealtime s[68:69]
    s_waitcnt lgkmcnt(0)
    s_or_b32 s68, s68, 1
    v_mov_b32 v30, s68
    s_mov_b64 exec, 1
    global_store_dword v31, v30, s[34:35] sc1
    s_mov_b64 exec, -1
    """)
    a.vm.pop()
    a.label("L_b_nononce")
    if cfg.b_exit:
        a.e("s_branch L_end")
    for c in range(8):
        a.e(f"s_mov_b32 s{8+c}, {c*64*3072}")
        a.e(f"s_mov_b32 s{16+c}, {c*128}")
    stamp(a, cfg, 1)
    for n in range(cfg.ninit):
        for job in b_issue_jobs(n): emit_job(a, job)
    a.e("""
    v_and_b32 v32, 31, v1           ; i
    v_lshrrev_b32 v33, 5, v1        ; hh
    s_lshl_b32 s68, s58, 5
    v_add_u32 v34, s68, v32         ; 32tt + i
    v_lshlrev_b32 v34, 7, v34       ; *128
    v_lshrrev_b32 v35, 1, v32
    v_and_b32 v35, 7, v35           ; f
    """)
    for s in range(4):
        a.e(f"""
        v_add_u32 v36, {2*s}, v33
        v_xor_b32 v36, v36, v35
        v_lshl_add_u32 v{8+s}, v36, 4, v34
        v_add_u32 v{12+s}, 40960, v{8+s}
        """)
    a.e(f"""
    v_lshrrev_b32 v34, 2, v1
    v_and_b32 v34, 3, v34           ; rr
    v_and_b32 v35, 3, v1            ; cc
    v_lshrrev_b32 v36, 4, v1
    v_and_b32 v36, 1, v36           ; G&1
    v_lshlrev_b32 v36, 1, v36       ; 2(G&1)
    v_lshrrev_b32 v37, 1, v35       ; cc>>1
    v_add_u32 v36, v36, v37         ; 2(G&1) + (cc>>1)
    v_lshrrev_b32 v37, 1, v34
    v_lshlrev_b32 v37, 2, v37       ; 4(rr>>1)
    v_and_b32 v38, 1, v35
    v_lshlrev_b32 v38, 3, v38       ; 8(cc&1)
    s_lshl_b32 s68, s59, 2
    v_add_u32 v39, s68, v36
    v_xor_b32 v39, v39, v37
    v_lshl_add_u32 v39, v39, 4, v38
    v_lshl_add_u32 v40, v33, 3, v34
    v_lshl_add_u32 v16, v40, 7, v39
    v_add_u32 v17, 40960, v16
    v_xor_b32 v39, v36, v37
    v_lshl_add_u32 v39, v39, 4, v38
    v_lshl_add_u32 v40, v33, 2, v34
    v_lshl_add_u32 v18, v40, 7, v39
    s_lshl_b32 s68, s59, 15
    s_add_u32 s68, s68, 16384
    v_add_u32 v18, s68, v18
    v_xor_b32 v19, 64, v18
    s_lshl_b32 s68, s59, 1
    s_add_u32 s68, s68, s58
    s_xor_b32 s69, s68, 1
    s_lshl_b32 s66, s68, 10
    s_add_u32 s66, s66, 0
    v_lshl_add_u32 v22, v1, 4, s66
    s_lshl_b32 s66, s69, 10
    s_add_u32 s66, s66, 0
    v_lshl_add_u32 v23, v1, 4, s66
    s_lshl_b32 s66, s68, 8
    s_add_u32 s66, s66, 4096
    v_lshl_add_u32 v24, v1, 2, s66
    s_lshl_b32 s66, s69, 8
    s_add_u32 s66, s66, 4096
    v_lshl_add_u32 v25, v1, 2, s66
    ; global kv partial block: KVP + (hp*32+tb)*2176
    s_lshl_b32 s68, s57, 1
    s_add_u32 s68, s68, s59
    s_lshl_b32 s68, s68, 5
    s_add_u32 s68, s68, s56
    s_mul_i32 s68, s68, 2176
    s_add_u32 s68, s68, {KVP}
    s_lshl_b32 s69, s58, 10
    s_add_u32 s69, s69, s68
    v_lshl_add_u32 v26, v1, 4, s69
    v_lshrrev_b32 v40, 4, v1
    v_and_b32 v40, 1, v40
    v_lshlrev_b32 v40, 3, v40       ; 8c
    v_and_b32 v41, 4, v1            ; 4*hh'
    v_add_u32 v40, v40, v41
    v_lshrrev_b32 v41, 2, v1
    v_and_b32 v41, 2, v41
    v_add_u32 v40, v40, v41
    v_lshrrev_b32 v41, 1, v1
    v_and_b32 v41, 1, v41
    v_add_u32 v40, v40, v41         ; zg
    s_add_u32 s68, s68, 2048
    v_lshl_add_u32 v27, v40, 3, s68
    s_lshl_b32 s68, s56, 1
    s_add_u32 s68, s68, s58
    s_lshl_b32 s68, s68, 5
    s_lshl_b32 s69, s57, 2
    s_add_u32 s68, s68, s69
    s_lshl_b32 s69, s59, 1
    s_add_u32 s68, s68, s69
    s_lshl_b32 s68, s68, 10
    s_add_u32 s68, s68, {PQ}
    v_lshl_add_u32 v28, v1, 4, s68
    v_and_b32 v40, 16, v1
    v_cmp_ne_u32 s[52:53], 0, v40
    s_sub_u32 s54, 0, s58
    s_mov_b32 s55, s54
    """)
    a.e(f"""
    s_cmp_lg_u32 s39, 3
    s_cbranch_scc1 L_b_nopt
    s_lshl_b32 s68, s56, 7
    s_add_u32 s68, s68, {PQF}
    v_mov_b32 v40, s68
    global_load_dword v21, v40, s[36:37] sc1
    """)
    a.vm.pop()
    a.label("L_b_nopt")
    for r in range(16):
        a.e(f"v_mov_b32 v{ACCQ+r}, s64")
    for r in range(16):
        a.e(f"v_mov_b32 v{ACCK+r}, s64")
    def frag_reads(g, k):
        L = []
        tag = f"f{g}_{k}"
        if g < 8:
            nx, nw = 2*g, 2*g+1
            hi, off = lds_base(nx)
            L.append((f"ds_read_b128 v[{XR+16*g+4*k}:{XR+16*g+4*k+3}], v{(12 if hi else 8)+k} offset:{off}", tag))
            d = WF + 16*(g % 2) + 4*k; n = nw; sstep = k
        else:
            n = 2*g + k//4; sstep = k % 4; d = WF + 4*k
        h2, o2 = lds_base(n)
        va = "v17" if h2 else "v16"
        L.append((f"ds_read_b64_tr_b16 v[{d}:{d+1}], {va} offset:{o2 + sstep*2048}", tag))
        L.append((f"ds_read_b64_tr_b16 v[{d+2}:{d+3}], {va} offset:{o2 + sstep*2048 + 512}", tag))
        return L
    def nsteps(g): return 4 if g < 8 else 8
    def emit_side(lst):
        for t in lst:
            if isinstance(t, str): a.e(t)
            elif t[0] == "WVM": a.wait_vm(t[1])
            else: a.e(t[0], vm=t[1])
    side = {}
    qe = phi_instrs(ACCQ, T16, ACCQ)
    qe += [(f"global_store_dwordx4 v28, v[{ACCQ}:{ACCQ+3}], s[36:37] sc1", "pqst"),
           (f"global_store_dwordx4 v28, v[{ACCQ+4}:{ACCQ+7}], s[36:37] offset:1024 sc1", "pqst")]
    gaps = [(g, k) for g in range(8, 12) for k in range(8)][1:cfg.qe_end]
    for gp, grp in zip(gaps, spread(qe, len(gaps))): side[gp] = grp
    ke = phi_instrs(ACCK, T16, ACCK, zsum=29)
    ke += ["v_mov_b32 v30, v29", "v_permlane32_swap_b32 v29, v30", "v_add_f32 v29, v29, v30"]
    gaps = [(g, k) for g in range(12, 16) for k in range(8)][1:31]
    for gp, grp in zip(gaps, spread(ke, len(gaps))): side[gp] = grp
    side[(9, 7)] = side.get((9, 7), []) + ["s_lshl_b32 s68, s56, 7", f"s_add_u32 s68, s68, {PQF}", "v_and_b32 v2, 7, v1", "v_lshl_add_u32 v2, v2, 2, s68"]
    rb = f"""
    s_mov_b32 s40, s36
    s_and_b32 s41, s37, 0xffff
    s_mov_b32 s42, {KVF + 65536}
    s_mov_b32 s43, 0x20000
    s_lshl_b32 s68, s56, 1
    s_add_u32 s68, s68, s58
    s_lshl_b32 s68, s68, 5
    s_lshl_b32 s69, s59, 4
    s_add_u32 s68, s68, s69
    s_lshl_b32 s68, s68, 10
    s_add_u32 s68, s68, {PQ}
    v_lshl_add_u32 v3, v1, 4, s68
    v_add_u32 v31, 8192, v3
    v_lshrrev_b32 v13, 7, v0
    v_mul_u32_u24 v13, {KVBLK}, v13
    v_and_b32 v20, 127, v0
    v_lshl_add_u32 v13, v20, 4, v13
    v_add_u32 v13, {KVF}, v13
    v_lshrrev_b32 v14, 3, v20
    v_mul_u32_u24 v14, {KVBLK}, v14
    v_and_b32 v21, 7, v0
    v_lshl_add_u32 v14, v21, 4, v14
    v_add_u32 v14, {KVF+2048}, v14
    v_lshrrev_b32 v15, 7, v0
    v_lshlrev_b32 v15, 1, v15
    v_bfe_u32 v21, v0, 4, 1
    v_add_u32 v15, v15, v21
    v_mul_u32_u24 v15, 544, v15
    v_bfe_u32 v21, v0, 5, 1
    v_mul_u32_u24 v21, 272, v21
    v_add_u32 v15, v15, v21
    v_and_b32 v21, 15, v0
    v_lshl_add_u32 v15, v21, 4, v15
    v_bfe_u32 v21, v0, 6, 1
    v_lshl_add_u32 v15, v21, 3, v15
    v_lshrrev_b32 v12, 3, v20
    v_lshlrev_b32 v12, 1, v12
    v_bfe_u32 v21, v0, 2, 1
    v_add_u32 v12, v12, v21
    v_mul_u32_u24 v12, 544, v12
    v_bfe_u32 v21, v0, 1, 1
    v_mul_u32_u24 v21, 272, v21
    v_add_u32 v12, v12, v21
    v_and_b32 v21, 1, v0
    v_lshl_add_u32 v12, v21, 3, v12
    v_add_u32 v12, 256, v12
    v_and_b32 v30, 15, v1
    v_mul_u32_u24 v30, {KVBLK}, v30
    v_add_u32 v30, {KVF+2048}, v30
    """.strip().split("\n")
    rb = [x.strip() for x in rb]
    rb += [f"s_mov_b32 s{8+i}, {1024*i}" for i in range(8)] + [f"s_mov_b32 s{16+k}, {2*KVBLK*k}" for k in range(8)]
    if not cfg.late_o:
        gaps = [(14, k) for k in range(5, 8)] + [(15, k) for k in range(8)]
        for gp, grp in zip(gaps, spread(rb, len(gaps))): side[gp] = side.get(gp, []) + grp

    def kv_publish():
        a.c("--- kv partial: V cvt, MFMA, select, pair exchange, publish")
        a.e("s_barrier")
        a.e("global_load_dword v21, v2, s[36:37] sc1", vm="pqf")
        for m in range(8):
            a.e(f"v_cvt_pk_bf16_f32 v{ACCV+m}, v{ACCV+2*m}, v{ACCV+2*m+1}")
        a.e(f"v_mfma_f32_32x32x16_bf16 v[{T16}:{T16+15}], v[{ACCK}:{ACCK+3}], v[{ACCV}:{ACCV+3}], 0")
        a.e(f"v_mfma_f32_32x32x16_bf16 v[{T16}:{T16+15}], v[{ACCK+4}:{ACCK+7}], v[{ACCV+4}:{ACCV+7}], v[{T16}:{T16+15}]")
        a.e("ds_write_b32 v24, v29", lg="xw")
        SEL = ACCK + 8; SND = ACCV + 8; KEEP = ACCV + 12
        for j in range(8): a.e(f"v_cndmask_b32 v{SEL+j}, v{T16+j}, v{T16+8+j}, s[52:53]")
        for j in range(4): a.e(f"v_cndmask_b32 v{SND+j}, v{SEL+4+j}, v{SEL+j}, s[54:55]")
        a.e(f"ds_write_b128 v22, v[{SND}:{SND+3}]", lg="xw")
        for j in range(4): a.e(f"v_cndmask_b32 v{KEEP+j}, v{SEL+j}, v{SEL+4+j}, s[54:55]")
        a.wait_lg("xw")
        a.e("s_barrier")
        a.e(f"ds_read_b128 v[{SEL}:{SEL+3}], v23", lg="xr")
        a.e(f"ds_read_b32 v30, v25", lg="xr")
        a.wait_lg("xr")
        a.wait_vm("pqf")
        a.e("v_cmp_ne_u32 s[66:67], s38, v21")
        for j in range(4): a.e(f"v_add_f32 v{KEEP+j}, v{KEEP+j}, v{SEL+j}")
        a.e(f"""
        v_add_f32 v29, v29, v30
        v_cvt_pk_bf16_f32 v{SEL}, v{KEEP}, v{KEEP+1}
        v_mov_b32 v{SEL+1}, s38
        v_cvt_pk_bf16_f32 v{SEL+2}, v{KEEP+2}, v{KEEP+3}
        v_mov_b32 v{SEL+3}, s38
        v_mov_b32_dpp v30, v29 quad_perm:[1,0,3,2] row_mask:0xf bank_mask:0xf
        global_store_dwordx4 v26, v[{SEL}:{SEL+3}], s[36:37] sc1
        v_cvt_pk_bf16_f32 v{SEL+4}, v29, v30
        v_mov_b32 v{SEL+5}, s38
        s_andn2_b64 exec, 0x55555555, s[54:55]
        s_cbranch_execz L_b_noz
        global_store_dwordx2 v27, v[{SEL+4}:{SEL+5}], s[36:37] sc1
        """)
        a.vm.pop()
        a.label("L_b_noz")
        a.e("s_mov_b64 exec, -1")
        stamp(a, cfg, 6)

    a.wait_vm(["slot0", "slot1"])
    a.e("s_barrier")
    stamp(a, cfg, 2)
    for k in range(4):
        for t, tag in frag_reads(0, k): a.e(t, lg=tag)
    nxt = cfg.ninit
    pend = []
    while nxt < NSLOT:
        pend += b_issue_jobs(nxt); nxt += 1
    for g in range(16):
        a.c(f"--- group {g}")
        if g == 13: poll_nonce(a, "v21", "v31", first_tag="nonce")
        if g == cfg.pqflag_g: a.wait_vm("pqst")
        if g < 15:
            a.wait_vm([f"slot{2*g+2}", f"slot{2*g+3}"])
        a.e("s_barrier")
        if g == cfg.pqflag_g:
            a.e("""
            s_cmp_lg_u32 s39, 3
            s_cbranch_scc1 L_b_noflag
            s_lshl_b32 s68, s56, 7
            s_lshl_b32 s69, s57, 2
            s_add_u32 s68, s68, s69
            s_add_u32 s68, s68, %d
            v_mov_b32 v20, s68
            v_mov_b32 v21, s38
            s_mov_b64 exec, 1
            global_store_dword v20, v21, s[36:37] sc1
            s_mov_b64 exec, -1
            """ % PQF)
            a.vm.pop()
            a.label("L_b_noflag")
        if g in (1, 8, 12): stamp(a, cfg, {1: 3, 8: 4, 12: 5}[g])
        jobs = list(pend); pend = []
        if g >= 1:
            for _ in range(2):
                if nxt < (32 if cfg.late_o else 40): jobs += b_issue_jobs(nxt); nxt += 1
        if g == 9:
            jobs.append([("global_load_dword v21, v31, s[34:35] sc1", "nonce")])
        ns = nsteps(g)
        jsp = spread(jobs, ns)
        for k in range(ns):
            if k % 2 == 0: a.wait_lg([f"f{g}_{k}", f"f{g}_{k+1}"])
            if g < 8:
                d = WF + 16*(g % 2) + 4*k
                a.e(f"v_mfma_f32_32x32x16_bf16 v[{ACCQ}:{ACCQ+15}], v[{d}:{d+3}], v[{XR+16*g+4*k}:{XR+16*g+4*k+3}], v[{ACCQ}:{ACCQ+15}]")
            elif g < 12:
                kk = (g - 8)*8 + k
                a.e(f"v_mfma_f32_32x32x16_bf16 v[{ACCK}:{ACCK+15}], v[{XR+4*kk}:{XR+4*kk+3}], v[{WF+4*k}:{WF+4*k+3}], v[{ACCK}:{ACCK+15}]")
            else:
                kk = (g - 12)*8 + k
                cc = "0" if (g == 12 and k == 0) else f"v[{ACCV}:{ACCV+15}]"
                a.e(f"v_mfma_f32_32x32x16_bf16 v[{ACCV}:{ACCV+15}], v[{XR+4*kk}:{XR+4*kk+3}], v[{WF+4*k}:{WF+4*k+3}], {cc}")
            jl = [list(jb) for jb in jsp[k]]
            if jl:
                while jl[0] and not jl[0][0][0].startswith(("buffer_load", "global_load")):
                    a.e(jl[0].pop(0)[0])
            if g < 15:
                nx = [k, 4 + k] if g == 7 else [k]
                for k2 in nx:
                    for t, tag in frag_reads(g + 1, k2): a.e(t, lg=tag)
            for jb in jl: emit_job(a, jb)
            emit_side(side.get((g, k), []))
    kv_publish()
    a.e("s_mov_b64 s[54:55], s[66:67]")
    def pq_first(sfx):
        for t in rb: a.e(t)
        a.e(f"""
        s_cmp_eq_u64 s[54:55], 0
        s_cbranch_scc1 L_b_pqf_go{sfx}
        s_mov_b32 s61, 0
        """)
        a.label(f"L_b_pqf_poll{sfx}")
        a.e(f"""
        global_load_dword v21, v2, s[36:37] sc1
        s_add_u32 s61, s61, 1
        s_waitcnt vmcnt(0)
        v_cmp_ne_u32 vcc, s38, v21
        s_cmp_gt_u32 s61, {SPIN_LIMIT}
        s_cbranch_scc1 L_b_pqf_go{sfx}
        s_cbranch_vccz L_b_pqf_go{sfx}
        s_branch L_b_pqf_poll{sfx}
        """)
        a.label(f"L_b_pqf_go{sfx}")
        for i in range(8):
            a.e(f"buffer_load_dwordx4 v[{32+4*i}:{35+4*i}], v3, s[40:43], s{8+i} offen sc1")
    a.e("""
    s_cmp_eq_u32 s39, 0
    s_cbranch_scc1 L_b_w0tail
    """)
    for n in range(32, 40):
        for jb in b_issue_jobs(n): emit_job(a, jb)
    a.e("""
    s_cmp_eq_u32 s39, 1
    s_cbranch_scc0 L_b_noshare
    v_subrev_u32 v22, 16384, v6
    v_subrev_u32 v23, 16384, v7
    """)
    for n in range(32, 40):
        c = SEQ[n][1]; pos = n % NSLOT
        a.e(f"s_mov_b32 m0, {pos*8192}")
        a.e(f"s_mov_b32 s61, {c*65536}")
        a.e(f"buffer_load_dwordx4 v22, s[48:51], s61 offen lds")
        a.e(f"buffer_load_dwordx4 v23, s[48:51], s61 offen offset:1024 lds")
    a.label("L_b_noshare")
    pq_first("a")
    a.e("s_waitcnt vmcnt(8)")
    a.e("s_branch L_b_tailjoin")
    a.label("L_b_w0tail")
    reducer(a, cfg)
    pq_first("b")
    a.label("L_b_tailjoin")
    a.vm = []; a.lg = []
    stamp(a, cfg, 7)
    if not cfg.do_B2:
        stamp(a, cfg, 8)
        stamps_out(a, cfg, 9)
        a.e("s_branch L_end")
        return
    role_B2(a, cfg)

def tag_check(a, regs_tags, acc="v20"):
    tt = 0
    for idx in range(8):
        s0, s1, s2 = (idx >> 2) & 1, (idx >> 1) & 1, idx & 1
        if s0 | (s1 ^ s2): tt |= 1 << idx
    first = True
    for r in regs_tags:
        if first:
            a.e(f"v_xor_b32 {acc}, s38, v{r}"); first = False
        else:
            a.e(f"v_bitop3_b32 {acc}, {acc}, v{r}, s38 bitop3:{hex(tt)}")
    a.e(f"v_cmp_ne_u32 vcc, 0, {acc}")

def reducer(a, cfg):
    def reduce_line(base, dst_addr, tagsok_label):
        S = 64; T = 68
        for k in range(4):
            r = base + 4*k
            for pidx in range(2):
                src = r + 2*pidx
                if k == 0:
                    a.e(f"v_lshlrev_b32 v{S+2*pidx}, 16, v{src}")
                    a.e(f"v_and_b32 v{S+1+2*pidx}, 0xffff0000, v{src}")
                else:
                    a.e(f"v_lshlrev_b32 v{T+2*pidx}, 16, v{src}")
                    a.e(f"v_and_b32 v{T+1+2*pidx}, 0xffff0000, v{src}")
                    a.e(f"v_add_f32 v{S+2*pidx}, v{S+2*pidx}, v{T+2*pidx}")
                    a.e(f"v_add_f32 v{S+1+2*pidx}, v{S+1+2*pidx}, v{T+1+2*pidx}")
        for j in range(4): a.e(f"v_add_f32_dpp v{S+j}, v{S+j}, v{S+j} row_ror:8 row_mask:0xf bank_mask:0xf")
        for j in range(4): a.e(f"v_mov_b32 v{T+j}, v{S+j}")
        for j in range(4): a.e(f"v_permlane16_swap_b32 v{S+j}, v{T+j}")
        for j in range(4): a.e(f"v_add_f32 v{S+j}, v{S+j}, v{T+j}")
        for j in range(4): a.e(f"v_mov_b32 v{T+j}, v{S+j}")
        for j in range(4): a.e(f"v_permlane32_swap_b32 v{S+j}, v{T+j}")
        for j in range(4): a.e(f"v_add_f32 v{S+j}, v{S+j}, v{T+j}")
        a.e(f"""
        v_cvt_pk_bf16_f32 v72, v{S}, v{S+1}
        v_mov_b32 v73, s38
        v_cvt_pk_bf16_f32 v74, v{S+2}, v{S+3}
        v_mov_b32 v75, s38
        s_mov_b64 exec, 0xff
        global_store_dwordx4 {dst_addr}, v[72:75], s[36:37] sc1
        s_mov_b64 exec, -1
        """)
    a.e(f"""
    s_lshr_b32 s66, s3, 4
    s_and_b32 s67, s3, 15
    s_mul_i32 s69, s66, {32*KVBLK}
    s_add_u32 s69, s69, {KVP}
    s_lshl_b32 s52, s67, 7
    s_add_u32 s68, s69, s52
    v_and_b32 v22, 7, v1
    v_lshlrev_b32 v22, 4, v22
    v_lshrrev_b32 v23, 3, v1
    v_mul_u32_u24 v23, {KVBLK}, v23
    v_add_u32 v23, v22, v23
    v_add_u32 v24, s68, v23
    v_add_u32 v25, {8*KVBLK}, v24
    v_add_u32 v26, {16*KVBLK}, v24
    v_add_u32 v27, {24*KVBLK}, v24
    s_add_u32 s68, s69, 2048
    v_add_u32 v8, s68, v23
    v_add_u32 v9, {8*KVBLK}, v8
    v_add_u32 v10, {16*KVBLK}, v8
    v_add_u32 v11, {24*KVBLK}, v8
    s_mul_i32 s69, s66, {KVBLK}
    s_add_u32 s69, s69, {KVF}
    s_add_u32 s68, s69, s52
    v_add_u32 v23, s68, v22
    s_add_u32 s68, s69, 2048
    v_add_u32 v29, s68, v22
    """)
    a.e("""
    s_mov_b32 s61, 0
    """)
    a.label("L_b_red_poll")
    a.e("""
    global_load_dwordx4 v[96:99], v24, s[36:37] sc1
    global_load_dwordx4 v[100:103], v25, s[36:37] sc1
    global_load_dwordx4 v[104:107], v26, s[36:37] sc1
    global_load_dwordx4 v[108:111], v27, s[36:37] sc1
    global_load_dwordx4 v[112:115], v8, s[36:37] sc1
    global_load_dwordx4 v[116:119], v9, s[36:37] sc1
    global_load_dwordx4 v[120:123], v10, s[36:37] sc1
    global_load_dwordx4 v[124:127], v11, s[36:37] sc1
    s_add_u32 s61, s61, 1
    s_waitcnt vmcnt(0)
    """)
    tag_check(a, [97+2*q for q in range(16)])
    a.e(f"""
    s_cmp_gt_u32 s61, {SPIN_LIMIT}
    s_cbranch_scc1 L_b_red_go
    s_cbranch_vccz L_b_red_go
    s_sleep {cfg.sl_red}
    s_branch L_b_red_poll
    """)
    a.label("L_b_red_go")
    a.e("""
    s_cmp_lg_u32 s67, 0
    s_cbranch_scc1 L_b_red_a
    """)
    reduce_line(112, "v29", None)
    a.label("L_b_red_a")
    reduce_line(96, "v23", None)
    stamp(a, cfg, 10)

def role_B2(a, cfg):
    WO = 128
    ACC = 96
    PQR = 32
    CN = [64, 80]
    KAF = [8, 12]
    OF = [4, 16]
    KA = 0
    PQL = 17408
    a.c("================= B2 =================")
    a.e("s_barrier")
    for i in range(16):
        for nt in range(2):
            d = WO + 8*i + 4*nt
            off = (i//4)*8192 + (i % 4)*2048
            a.e(f"ds_read_b64_tr_b16 v[{d}:{d+1}], v{18+nt} offset:{off}", lg="wo")
            a.e(f"ds_read_b64_tr_b16 v[{d+2}:{d+3}], v{18+nt} offset:{off+1024}", lg="wo")
    a.e("s_waitcnt lgkmcnt(0)")
    a.e("s_barrier")
    a.vm = []; a.lg = []
    stamp(a, cfg, 9)
    if cfg.zpoll:
        a.e("""
        s_mov_b32 s61, 0
        s_cmp_eq_u32 s39, 0
        s_cbranch_scc0 L_b_kz_go
        """)
        a.label("L_b_kz_poll")
        a.e(f"""
        buffer_load_dwordx4 v[96:99], v30, s[40:43], 0 offen sc1
        s_add_u32 s61, s61, 1
        s_waitcnt vmcnt(0)
        v_xor_b32 v20, s38, v97
        v_cmp_ne_u32 vcc, 0, v20
        s_cmp_gt_u32 s61, {SPIN_LIMIT}
        s_cbranch_scc1 L_b_kz_go
        s_cbranch_vccz L_b_kz_go
        s_sleep {cfg.sl_kz}
        s_branch L_b_kz_poll
        """)
        a.label("L_b_kz_go")
        stamp(a, cfg, 11)
        a.e("s_barrier")
    PB = 17408
    a.e(f"""
    v_and_b32 v24, 31, v1
    s_lshl_b32 s68, s58, 5
    v_add_u32 v24, s68, v24            ; token
    v_mul_u32_u24 v24, 272, v24
    v_lshrrev_b32 v25, 5, v1
    v_lshl_add_u32 v24, v25, 4, v24    ; + hh*16
    s_mul_i32 s68, s59, {64*272}
    s_add_u32 s68, s68, {PB}
    v_add_u32 v24, s68, v24
    v_lshrrev_b32 v26, 3, v0
    v_mul_u32_u24 v25, 272, v26
    v_and_b32 v27, 7, v0
    v_lshl_add_u32 v25, v27, 5, v25
    v_add_u32 v25, {PB}, v25
    s_lshl_b32 s68, s56, 6
    v_add_u32 v26, s68, v26
    v_lshlrev_b32 v26, 11, v26
    s_lshl_b32 s68, s57, 7
    s_add_u32 s68, s68, 1024
    v_lshl_add_u32 v26, v27, 4, v26
    v_add_u32 v26, s68, v26
    v_add_u32 v27, {32*2048}, v26
    v_and_b32 v22, 31, v1
    v_min_u32 v22, 16, v22
    v_lshlrev_b32 v22, 4, v22
    v_lshrrev_b32 v23, 5, v1
    v_mul_u32_u24 v23, 272, v23
    s_mul_i32 s68, s59, {16*544}
    v_add3_u32 v22, v22, v23, s68
    """)
    def ka_loads():
        for k in range(8):
            a.e(f"buffer_load_dwordx4 v[{64+4*k}:{67+4*k}], v13, s[40:43], s{16+k} offen sc1")
        a.e("buffer_load_dwordx4 v[96:99], v14, s[40:43], 0 offen sc1")
    a.e("s_mov_b32 s61, 0")
    a.e("s_branch L_b_kvf_first")
    a.label("L_b_kvf_poll")
    a.e(f"s_sleep {cfg.sl_ka}")
    a.label("L_b_kvf_first")
    ka_loads()
    a.e("s_waitcnt vmcnt(0)")
    a.label("L_b_ka_chk")
    a.e("s_add_u32 s61, s61, 1")
    tag_check(a, [65+2*q for q in range(18)])
    a.e(f"""
    s_cmp_gt_u32 s61, {SPIN_LIMIT}
    s_cbranch_scc1 L_b_kvf_go
    s_cbranch_vccnz L_b_kvf_poll
    """)
    a.label("L_b_kvf_go")
    stamp(a, cfg, 12)
    stampval(a, cfg, 8, "s61")
    a.vm = []
    for k in range(8):
        a.e(f"v_mov_b32 v{65+4*k}, v{66+4*k}")
        a.e(f"ds_write_b64 v15, v[{64+4*k}:{65+4*k}] offset:{KA + 2176*k}")
    a.e("v_mov_b32 v97, v98")
    a.e(f"ds_write_b64 v12, v[96:97] offset:{KA}")
    a.e(f"""
    s_waitcnt vmcnt(0) lgkmcnt(0)
    s_barrier
    """)
    a.vm = []; a.lg = []
    stamp(a, cfg, 13)
    def kaf_read(i):
        a.e(f"ds_read_b128 v[{KAF[i%2]}:{KAF[i%2]+3}], v22 offset:{KA + 544*i}", lg=f"ka{i}")
    def out_mfma(i):
        o = OF[i % 2]
        for nt in range(2):
            w = WO + 8*i + 4*nt
            cc = "0" if i == 0 else f"v[{ACC+16*nt}:{ACC+16*nt+15}]"
            a.e(f"v_mfma_f32_32x32x16_bf16 v[{ACC+16*nt}:{ACC+16*nt+15}], v[{w}:{w+3}], v[{o}:{o+3}], {cc}")
    def num_mfma(i):
        a.wait_lg(f"ka{i}")
        p = PQR + 4*(i % 8)
        if i >= 8: a.wait_vm(f"pq{i}")
        a.e(f"v_mfma_f32_32x32x16_bf16 v[{CN[i%2]}:{CN[i%2]+15}], v[{KAF[i%2]}:{KAF[i%2]+3}], v[{p}:{p+3}], 0")
        if i < 8:
            a.e(f"buffer_load_dwordx4 v[{p}:{p+3}], v31, s[40:43], s{8+i} offen sc1", vm=f"pq{i+8}")
    def out1(i, nt):
        o = OF[i % 2]
        w = WO + 8*i + 4*nt
        cc = "0" if i == 0 else f"v[{ACC+16*nt}:{ACC+16*nt+15}]"
        a.e(f"v_mfma_f32_32x32x16_bf16 v[{ACC+16*nt}:{ACC+16*nt+15}], v[{w}:{w+3}], v[{o}:{o+3}], {cc}")
    kaf_read(0); kaf_read(1)
    num_mfma(0)
    for i in range(16):
        if i + 1 < 16:
            num_mfma(i + 1)
        c = CN[i % 2]
        a.e(f"v_add_f32 v20, s64, v{c+8}")
        a.e(f"v_rcp_f32 v20, v20")
        if i + 2 < 16:
            kaf_read(i + 2)
        for jj in range(2): a.e(f"v_mul_f32 v{c+jj}, v{c+jj}, v20")
        if i >= 1: out1(i - 1, 0)
        for jj in range(2, 7): a.e(f"v_mul_f32 v{c+jj}, v{c+jj}, v20")
        if i >= 1: out1(i - 1, 1)
        a.e(f"v_mul_f32 v{c+7}, v{c+7}, v20")
        o = OF[i % 2]
        for m in range(4):
            a.e(f"v_cvt_pk_bf16_f32 v{o+m}, v{c+2*m}, v{c+2*m+1}")
    out1(15, 0); out1(15, 1)
    stamp(a, cfg, 14)
    a.e("""
    s_cmp_lg_u32 s3, 0
    s_cbranch_scc1 L_b_norst
    s_cmp_lg_u32 s39, 0
    s_cbranch_scc1 L_b_norst
    v_mov_b32 v20, 0
    s_mov_b64 exec, 1
    global_store_dword v20, v20, s[34:35] sc1
    s_mov_b64 exec, -1
    """)
    a.label("L_b_norst")
    a.vm = []
    for nt in range(2):
        for q in range(4):
            r = ACC + 16*nt + 4*q
            a.e(f"ds_write_b128 v24, v[{r}:{r+3}] offset:{nt*128 + q*32}")
    a.e("s_waitcnt lgkmcnt(0)")
    a.e("s_barrier")
    for r in range(2):
        o = r*32*272
        a.e(f"ds_read_b128 v[{32+16*r}:{35+16*r}], v25 offset:{o}")
        a.e(f"ds_read_b128 v[{40+16*r}:{43+16*r}], v25 offset:{o+64*272}")
        a.e(f"ds_read_b128 v[{36+16*r}:{39+16*r}], v25 offset:{o+16}")
        a.e(f"ds_read_b128 v[{44+16*r}:{47+16*r}], v25 offset:{o+64*272+16}")
    for r in range(2):
        a.e(f"s_waitcnt lgkmcnt({4 if r == 0 else 0})")
        b = 32 + 16*r
        for jj in range(8):
            a.e(f"v_add_f32 v{b+jj}, v{b+jj}, v{b+8+jj}")
        for m in range(4):
            a.e(f"v_cvt_pk_bf16_f32 v{64+4*r+m}, v{b+2*m}, v{b+2*m+1}")
        a.e(f"global_store_dwordx4 v{26+r}, v[{64+4*r}:{67+4*r}], s[32:33] {cfg.outfl}")
    stamps_out(a, cfg, 15)

TV = 240
def a_touch_setup(a, cfg):
    a.e(f"""
    s_lshr_b32 s62, s40, 1          ; tg
    s_and_b32 s63, s40, 1           ; hg
    s_lshl_b32 s64, s62, 9
    s_lshl_b32 s65, s41, 4          ; 16*jj
    s_add_u32 s64, s64, s65
    v_and_b32 v246, 15, v1
    v_lshrrev_b32 v247, 4, v1       ; 0..3
    v_add_u32 v241, s64, v246
    v_lshlrev_b32 v241, 10, v241
    v_lshl_add_u32 v241, v247, 7, v241
    v_add_u32 v241, 512, v241
    v_and_b32 v248, 3, v1
    v_lshlrev_b32 v248, 7, v248     ; line*128
    s_lshl_b32 s66, s63, 9          ; hg*512
    v_lshrrev_b32 v249, 2, v1
    v_add_u32 v240, s65, v249       ; 16jj + (l>>2)
    v_mul_u32_u24 v242, 3072, v240
    v_add3_u32 v242, v242, v248, s66
    v_add_u32 v244, 2048, v242      ; V
    v_lshlrev_b32 v245, 10, v240
    v_add3_u32 v245, v245, v248, s66
    v_and_b32 v249, 7, v249
    s_lshl_b32 s67, s41, 3
    s_add_u32 s67, s67, 256
    v_add_u32 v249, s67, v249
    v_mul_u32_u24 v243, 3072, v249
    v_add3_u32 v243, v243, v248, s66
    v_add_u32 v240, 1024, v242
    """)

def a_touch(a, cfg, plan):
    fl = cfg.touch_flags
    info = {"x1": (241, "s[26:27]"), "q47": (243, "s[28:29]"), "k": (240, "s[28:29]"), "v": (244, "s[28:29]"), "o": (245, "s[30:31]")}
    for w, names in plan.items():
        L = a.newlabel("tch")
        a.e(f"s_cmp_eq_u32 s39, {w}")
        a.e(f"s_cbranch_scc0 {L}")
        for i, nm in enumerate(names):
            v, base = info[nm]
            a.e(f"global_load_dword v{250+i}, v{v}, {base} {fl}")
            a.vm.pop()
        a.label(L)

def role_A(a, cfg):
    a.label("L_roleA")
    a.e("""
    s_and_b32 s40, s3, 7
    s_lshr_b32 s41, s3, 3           ; j
    s_waitcnt lgkmcnt(0)
    """)
    if not cfg.do_A:
        if cfg.touch:
            a_touch_setup(a, cfg)
            a_touch(a, cfg, {2: ["x1"], 3: ["q47"]})
            a.e("s_waitcnt vmcnt(0)")
            a_touch(a, cfg, {1: ["k"], 2: ["v"], 3: ["o"]})
            a.e("s_waitcnt vmcnt(0)")
        a.e("s_branch L_end")
        return
    import role_a
    role_a.role_A(a, cfg)

def build(cfg):
    global DMAFL
    DMAFL = cfg.dmafl
    a = Asm()
    prologue(a, cfg)
    if cfg.do_B:
        role_B(a, cfg)
    a.e("s_branch L_end")
    a.vm = []
    role_A(a, cfg)
    a.label("L_end")
    a.e("s_endpgm")
    body = a.render()
    return body, a

HEADER = open("concat_heads__ssm_conv_s4__linear_attn_block__prompt.s.ref").read().split("; Override launch")[0]

def generate(path, cfg):
    body, a = build(cfg)
    txt = wrap(body, HEADER, 512, 256, 81920)
    open(path, "w").write(txt)
    return a

if __name__ == "__main__":
    sys.modules["kern"] = sys.modules["__main__"]
    cfg = Cfg()
    cfg.stamps = True
    if len(sys.argv) > 2:
        for kv in sys.argv[2:]:
            k, v = kv.split("=")
            setattr(cfg, k, int(v) if v.isdigit() else v)
    a = generate(sys.argv[1] if len(sys.argv) > 1 else "k_b1.s", cfg)
    print("nops inserted:", a.nnops)
```

```python
from asmlib import Asm
import kern as K

UT, YT = K.UT, K.YT
UTF, YTF = K.UTF, K.YTF
TILE = 3088
SPIN = K.SPIN_LIMIT
ROWB = 528
TB = [12288, 45056]
KC = [0, 1536]
NONCE_LDS = 3072
KD = [3088, 7200]
CP = [12288, 12288 + 16640]
UR = [45568, 45568 + 7600]
YP = 0
ROWS = list(range(8)) + [128+k for k in range(8)] + [256+2*k for k in range(4)] + [384+2*k for k in range(4)] + \
       [512, 516, 640, 644, 768, 772, 896, 900] + [1024+128*k for k in range(8)] + [2048]
assert len(ROWS) == 41

def fhex(x):
    import struct
    return hex(struct.unpack("<I", struct.pack("<f", x))[0])

USE_PK = False
def cmul(a, d, x, y, t):
    if USE_PK:
        a.e(f"v_pk_mul_f32 v[{t}:{t+1}], v[{x}:{x+1}], v[{y}:{y+1}] op_sel_hi:[1,0]")
        a.e(f"v_pk_fma_f32 v[{d}:{d+1}], v[{x}:{x+1}], v[{y}:{y+1}], v[{t}:{t+1}] op_sel:[1,1,0] op_sel_hi:[0,1,1] neg_lo:[1,0,0]")
    else:
        assert d not in (x, y)
        a.e(f"v_mul_f32 v{t}, v{x}, v{y}")
        a.e(f"v_mul_f32 v{t+1}, v{x+1}, v{y}")
        a.e(f"v_fma_f32 v{d}, -v{x+1}, v{y+1}, v{t}")
        a.e(f"v_fma_f32 v{d+1}, v{x}, v{y+1}, v{t+1}")

def poll_tags_loop(a, name, loads, tagregs):
    a.e("s_mov_b32 s61, 0")
    a.label(f"L_{name}_poll")
    for l in loads: a.e(l)
    a.e("s_add_u32 s61, s61, 1")
    a.e("s_waitcnt vmcnt(0)")
    K.tag_check(a, tagregs, acc="v9")
    a.e(f"""
    s_cmp_gt_u32 s61, {SPIN}
    s_cbranch_scc1 L_{name}_go
    s_cbranch_vccz L_{name}_go
    s_sleep 1
    s_branch L_{name}_poll
    """)
    a.label(f"L_{name}_go")
    a.vm = []


(A_TW, A_TR, A_UT0, A_UT1, A_TB, A_KM, A_C0, A_C1A, A_C1B, A_C2, A_DW, A_ER0, A_ER1, A_ZU, A_ZC, A_ZG,
 A_CR, A_CW, A_UG, A_UL, A_FU, A_FY, A_FUS, A_FYS, A_VA, A_VB, A_PW, A_OR, A_YG, A_YL, A_OUT) = (
 160, 161, 162, 163, 164, 168, 172, 173, 174, 175, 176, 177, 178, 179, 180, 181,
 182, 183, 184, 185, 186, 187, 188, 189, 190, 191, 192, 193, 194, 195, 199)

def role_A(a, cfg):
    global USE_PK
    USE_PK = cfg.pk
    st = lambda i: K.stamp(a, cfg, i)
    a.c("================= role A =================")
    if cfg.prioA: a.e(f"s_setprio {cfg.prioA}")
    a.e("""
    s_lshr_b32 s47, s39, 1
    s_and_b32 s48, s39, 1           ; w2
    s_lshl_b32 s49, s40, 6          ; 64 g
    s_lshl_b32 s50, s41, 1
    s_add_u32 s50, s50, s49         ; d0 = 64g + 2j
    s_add_u32 s51, s50, s47
    s_lshl_b32 s51, s51, 8
    v_and_b32 v2, 127, v0           ; n
    v_lshl_add_u32 v5, v2, 1, s51
    v_lshrrev_b32 v3, 4, v0         ; r''
    v_and_b32 v4, 15, v0            ; c8
    s_lshl_b32 s52, s41, 6
    v_lshl_add_u32 v6, v3, 2, s52   ; t0 = 64j + 4r''
    v_lshlrev_b32 v6, 10, v6
    s_lshl_b32 s53, s49, 1
    v_lshl_add_u32 v7, v4, 3, s53
    v_add_u32 v6, v6, v7            ; u offset
    s_lshl_b32 s45, s40, 2
    s_add_u32 s45, s45, 4
    v_mov_b32 v8, s45
    s_waitcnt lgkmcnt(0)
    """)
    st(1)
    a.e("""
    v_mov_b32 v202, v6
    v_mov_b32 v203, v7
    global_load_ushort v10, v5, s[10:11]
    global_load_ushort v11, v5, s[12:13]
    global_load_ushort v12, v5, s[14:15]
    global_load_ushort v13, v5, s[16:17]
    global_load_ushort v14, v5, s[18:19]
    global_load_ushort v15, v5, s[20:21]
    s_lshl_b32 s54, s50, 1
    s_add_u32 s54, s22, s54
    s_addc_u32 s55, s23, 0
    s_load_dword s56, s[54:55], 0
    s_cmp_lg_u32 s41, 0
    s_cbranch_scc1 L_a_nopub
    s_cmp_lg_u32 s39, 0
    s_cbranch_scc1 L_a_nopub
    s_memrealtime s[58:59]
    s_waitcnt lgkmcnt(0)
    s_or_b32 s58, s58, 8
    v_mov_b32 v9, s58
    s_mov_b64 exec, 1
    global_store_dword v8, v9, s[34:35] sc1
    s_mov_b64 exec, -1
    """)
    a.label("L_a_nopub")
    a.vm = []
    a.e(f"""
    v_and_b32 v26, 15, v1
    v_lshrrev_b32 v27, 4, v1
    v_bfe_u32 v28, v1, 2, 2
    v_and_b32 v29, 3, v1
    v_and_b32 v30, 31, v1
    v_lshrrev_b32 v31, 5, v1
    v_lshlrev_b32 v32, 2, v4
    v_mul_u32_u24 v32, 144, v32
    v_lshlrev_b32 v33, 3, v3
    v_sub_u32 v33, 120, v33
    v_add_u32 v32, v32, v33
    v_add_u32 v{A_TW}, {TILE}, v32
    v_lshrrev_b32 v32, 3, v1
    s_lshl_b32 s57, s39, 5
    v_add_u32 v32, s57, v32
    v_mul_u32_u24 v33, 144, v32
    v_and_b32 v34, 7, v1
    v_lshl_add_u32 v33, v34, 4, v33
    v_add_u32 v{A_TR}, {TILE}, v33
    v_add_u32 v32, s49, v32
    v_lshlrev_b32 v32, 12, v32
    v_lshl_add_u32 v32, v34, 4, v32
    s_sub_u32 s57, 31, s41
    s_lshl_b32 s57, s57, 7
    s_add_u32 s57, s57, {UT}
    v_add_u32 v{A_UT0}, s57, v32
    v_add_u32 v{A_UT1}, 32768, v{A_UT0}
    v_add_u32 v200, 65536, v{A_UT0}
    v_add_u32 v201, 98304, v{A_UT0}
    v_lshl_add_u32 v32, v27, 3, v28
    s_lshl_b32 s59, s47, 15
    s_add_u32 s59, s59, {TB[0]}
    v_and_b32 v33, 1, v2
    v_bfe_u32 v34, v2, 2, 1
    v_lshl_add_u32 v33, v34, 1, v33
    v_lshl_add_u32 v34, v2, 8, s59
    """)
    for cp in range(4):
        a.e(f"v_xor_b32 v35, {cp}, v33")
        a.e(f"v_lshl_add_u32 v{A_TB+cp}, v35, 5, v34")
    a.e(f"""
    v_lshlrev_b32 v34, 7, v32
    v_lshl_add_u32 v34, v29, 3, v34
    v_add_u32 v34, s59, v34
    v_lshrrev_b32 v33, 1, v28
    v_and_b32 v35, 1, v27
    v_lshl_add_u32 v33, v35, 1, v33
    """)
    for t in range(4):
        a.e(f"v_xor_b32 v35, {t}, v33")
        a.e(f"v_lshl_add_u32 v{A_KM+t}, v35, 5, v34")
    a.e(f"""
    s_mul_i32 s59, s47, {KC[1]-KC[0]}
    s_add_u32 s59, s59, {KC[0]}
    v_lshrrev_b32 v33, 1, v27
    v_lshlrev_b32 v33, 7, v33
    v_lshl_add_u32 v33, v26, 3, v33
    v_and_b32 v34, 1, v27
    v_lshl_add_u32 v33, v34, 2, v33
    v_lshl_add_u32 v{A_C0}, v33, 1, s59          ; tile 0
    v_lshlrev_b32 v33, 6, v27
    v_cmp_gt_u32 vcc, 2, v27
    v_lshlrev_b32 v34, 2, v26
    v_lshlrev_b32 v35, 1, v26
    v_cndmask_b32 v34, v35, v34, vcc
    v_add_u32 v33, v33, v34
    v_add_u32 v33, 256, v33
    v_mov_b32 v34, 32
    v_mov_b32 v35, 2
    v_cndmask_b32 v34, v34, v35, vcc
    v_add_u32 v34, v33, v34
    v_lshl_add_u32 v{A_C1A}, v33, 1, s59
    v_lshl_add_u32 v{A_C1B}, v34, 1, s59
    v_lshl_add_u32 v33, v27, 6, v26
    v_add_u32 v33, 512, v33
    v_lshl_add_u32 v{A_C2}, v33, 1, s59          ; tile 2
    v_lshlrev_b32 v33, 4, v0
    v_add_u32 v{A_DW}, 16, v33
    v_mov_b32 v{A_ER0}, v33
    v_lshlrev_b32 v34, 3, v0
    v_add_u32 v{A_ER1}, 256, v34
    s_cmp_eq_u32 s39, 1
    s_cbranch_scc0 L_a_ad1
    v_lshlrev_b32 v34, 2, v0
    v_add_u32 v{A_ER0}, 512, v34
    """)
    a.label("L_a_ad1")
    a.e(f"""
    s_cmp_ge_u32 s39, 2
    s_cbranch_scc0 L_a_ad2
    v_add_u32 v34, 384, v0
    v_lshlrev_b32 v{A_ER0}, 1, v34
    """)
    a.label("L_a_ad2")
    a.e(f"""
    v_mov_b32 v{A_ZU}, v33
    v_lshrrev_b32 v34, 2, v0
    v_mul_u32_u24 v34, 4160, v34
    v_and_b32 v35, 3, v0
    v_lshl_add_u32 v{A_ZC}, v35, 4, v34
    v_mul_u32_u24 v34, {KD[1]-KD[0]}, v0
    v_add_u32 v{A_ZG}, {KD[0]}, v34
    ; copies
    v_mov_b32 v{A_CR}, v33
    v_add_u32 v{A_CW}, 64, v33
    v_lshrrev_b32 v34, 7, v0                     ; cch
    v_add_u32 v35, s50, v34
    v_lshlrev_b32 v35, 12, v35
    v_lshl_add_u32 v35, v2, 4, v35
    v_add_u32 v{A_UG}, {UT}, v35
    v_lshrrev_b32 v35, 2, v2
    v_mul_u32_u24 v35, 80, v35
    v_and_b32 v36, 3, v2
    v_lshl_add_u32 v35, v36, 4, v35
    v_mul_u32_u24 v34, {UR[1]-UR[0]}, v34
    v_add_u32 v{A_UL}, v35, v34
    v_lshrrev_b32 v34, 3, v1
    v_lshlrev_b32 v34, 7, v34
    v_and_b32 v35, 7, v1
    v_lshl_add_u32 v34, v35, 2, v34
    s_lshl_b32 s58, s40, 10
    s_add_u32 s58, s58, {UTF}
    v_add_u32 v{A_FU}, s58, v34
    v_lshrrev_b32 v34, 3, v30
    v_lshlrev_b32 v34, 7, v34
    v_lshl_add_u32 v34, v35, 2, v34
    s_lshl_b32 s58, s40, 9
    s_add_u32 s58, s58, {YTF}
    v_add_u32 v{A_FY}, s58, v34
    s_lshl_b32 s57, s41, 1
    s_add_u32 s57, s57, s48
    s_lshr_b32 s59, s57, 3
    s_lshl_b32 s59, s59, 7
    s_and_b32 s57, s57, 7
    s_lshl_b32 s57, s57, 2
    s_add_u32 s57, s57, s59
    s_lshl_b32 s59, s40, 10
    s_add_u32 s57, s57, s59
    s_add_u32 s57, s57, {UTF}
    v_mov_b32 v{A_FUS}, s57
    s_lshr_b32 s59, s41, 3
    s_lshl_b32 s59, s59, 7
    s_and_b32 s57, s41, 7
    s_lshl_b32 s57, s57, 2
    s_add_u32 s57, s57, s59
    s_add_u32 s57, s57, s58
    v_mov_b32 v{A_FYS}, s57
    v_sub_u32 v34, 3, v30
    v_and_b32 v34, 3, v34
    v_mul_u32_u24 v35, 4160, v34
    v_add_u32 v36, v30, v34
    v_add_u32 v36, 9, v36
    v_lshlrev_b32 v37, 3, v31
    v_sub_u32 v36, v36, v37
    v_lshl_add_u32 v35, v36, 1, v35
    s_mul_i32 s57, s47, {CP[1]-CP[0]}
    s_lshl_b32 s58, s48, 10
    s_add_u32 s57, s57, s58
    s_add_u32 s57, s57, {CP[0]}
    v_add_u32 v{A_VA}, s57, v35
    v_sub_u32 v35, 31, v30
    v_mul_u32_u24 v35, 80, v35
    v_lshlrev_b32 v36, 4, v31
    v_sub_u32 v35, v35, v36
    v_add_u32 v35, 16, v35
    s_mul_i32 s57, s47, {UR[1]-UR[0]}
    s_mul_i32 s58, s48, {16*80}
    s_add_u32 s57, s57, s58
    s_add_u32 s57, s57, {UR[0]}
    v_add_u32 v{A_VB}, s57, v35
    v_mul_u32_u24 v35, 144, v30
    v_lshl_add_u32 v35, v31, 4, v35
    s_mul_i32 s57, s39, {64*144}
    v_add_u32 v{A_PW}, s57, v35
    v_lshrrev_b32 v35, 2, v0
    v_mul_u32_u24 v35, 144, v35
    v_and_b32 v36, 3, v0
    v_lshl_add_u32 v{A_OR}, v36, 5, v35
    s_lshl_b32 s57, s50, 12
    s_add_u32 s57, s57, {YT}
    v_lshl_add_u32 v{A_YG}, v0, 4, s57
    v_lshlrev_b32 v35, 2, v4
    v_add_u32 v35, s49, v35
    v_lshlrev_b32 v35, 12, v35
    v_lshl_add_u32 v35, v3, 3, v35
    s_lshl_b32 s59, s41, 7
    s_add_u32 s59, s59, {YT}
    v_add_u32 v{A_YL}, s59, v35
    v_add_u32 v{A_YL+1}, 4096, v{A_YL}
    v_add_u32 v{A_YL+2}, 8192, v{A_YL}
    v_add_u32 v{A_YL+3}, 12288, v{A_YL}
    v_lshlrev_b32 v35, 1, v6
    v_sub_u32 v{A_OUT}, v35, v7
    """)
    if cfg.touch:
        K.a_touch_setup(a, cfg)
    a.e("s_waitcnt vmcnt(0) lgkmcnt(0)")
    st(2)
    a.e(f"""
    global_load_dwordx2 v[16:17], v202, s[8:9] {cfg.aldfl}
    global_load_dwordx2 v[18:19], v202, s[8:9] offset:1024 {cfg.aldfl}
    global_load_dwordx2 v[20:21], v202, s[8:9] offset:2048 {cfg.aldfl}
    global_load_dwordx2 v[22:23], v202, s[8:9] offset:3072 {cfg.aldfl}
    global_load_dwordx2 v[24:25], v203, s[24:25]
    """)
    nt2 = 0; nt3 = 0
    if cfg.uttouch:
        a.e(f"""
        s_cmp_lg_u32 s39, 2
        s_cbranch_scc1 L_a_nout0
        v_add_u32 v26, s49, v1
        v_lshlrev_b32 v26, 12, v26
        s_sub_u32 s57, 31, s41
        s_lshl_b32 s57, s57, 7
        s_add_u32 s57, s57, {UT}
        v_add_u32 v26, s57, v26
        global_load_dword v255, v26, s[36:37]
        """)
        a.label("L_a_nout0")
    a.e(f"""
    s_cmp_eq_u32 s39, 3
    s_cbranch_scc0 L_a_nopt
    global_load_dword v253, v{A_FU}, s[36:37] sc1
    global_load_dword v254, v{A_FY}, s[36:37] sc1
    """)
    a.label("L_a_nopt")
    nt3 += 2
    if cfg.touch:
        K.a_touch(a, cfg, {2: ["x1"], 3: ["q47"]})
        nt2 += 1; nt3 += 1
    a.vm = []
    def a1_write():
        a.e(f"""
        s_cmp_eq_u32 s39, 2
        s_cbranch_scc1 L_a_uw2
        s_cmp_eq_u32 s39, 3
        s_cbranch_scc1 L_a_uw3
        s_waitcnt vmcnt(0)
        s_branch L_a_uwd
        """)
        a.label("L_a_uw2")
        a.e(f"s_waitcnt vmcnt({nt2})")
        a.e("s_branch L_a_uwd")
        a.label("L_a_uw3")
        a.e(f"s_waitcnt vmcnt({nt3})")
        a.label("L_a_uwd")
        a.e("""
        s_mov_b32 s57, 0x05040100
        s_mov_b32 s58, 0x07060302
        """)
        for e in range(4):
            sel = "s57" if e % 2 == 0 else "s58"
            h = e // 2
            a.e(f"v_perm_b32 v{32+2*e}, v{20+h}, v{22+h}, {sel}")
            a.e(f"v_perm_b32 v{33+2*e}, v{16+h}, v{18+h}, {sel}")
            a.e(f"ds_write_b64 v{A_TW}, v[{32+2*e}:{33+2*e}] offset:{e*144}")
    def a1_store():
        a.e("""
        s_cmp_ge_u32 s39, 2
        s_cbranch_scc1 L_a_nout
        """)
        for i in range(4):
            a.e(f"ds_read_b128 v[{224+4*i}:{227+4*i}], v{A_TR} offset:{i*8*144}")
        UTA = [A_UT0, A_UT1, 200, 201]
        for i in range(4):
            a.e(f"s_waitcnt lgkmcnt({3-i})")
            a.e(f"global_store_dwordx4 v{UTA[i]}, v[{224+4*i}:{227+4*i}], s[36:37] {cfg.locfl}")
        a.e("global_load_dword v9, v8, s[34:35] sc1")
        a.label("L_a_nout")
        a.vm = []
    def ut_flag():
        a.e(f"""
        s_cmp_ge_u32 s39, 2
        s_cbranch_scc1 L_a_nofl
        s_mov_b32 s61, 0
        """)
        if cfg.dbgN: st(4)
        a.e(f"""
        s_waitcnt vmcnt(0)
        """)
        if cfg.dbgN: st(7)
        a.e(f"""
        v_readfirstlane_b32 s38, v9
        s_cmp_lg_u32 s38, 0
        s_cbranch_scc1 L_a_nok
        """)
        a.label("L_a_npoll")
        a.e(f"""
        global_load_dword v9, v8, s[34:35] sc1
        s_waitcnt vmcnt(0)
        v_readfirstlane_b32 s38, v9
        s_add_u32 s61, s61, 1
        s_cmp_gt_u32 s61, {SPIN}
        s_cbranch_scc1 L_a_nok
        s_cmp_eq_u32 s38, 0
        s_cbranch_scc1 L_a_npoll
        """)
        a.label("L_a_nok")
        if cfg.dbgN:
            st(5); K.stampval(a, cfg, 6, "s61")
        a.e(f"""
        s_getreg_b32 s57, hwreg(HW_REG_XCC_ID)
        s_and_b32 s57, s57, 7
        s_and_b32 s58, s38, 0xfffffff8
        s_or_b32 s57, s57, s58
        v_mov_b32 v9, s57
        s_mov_b64 exec, 1
        global_store_dword v{A_FUS}, v9, s[36:37]
        s_mov_b64 exec, -1
        """)
        a.label("L_a_nofl")
        a.vm = []

    LOG2E = fhex(1.4426950408889634); INV2PI = fhex(0.15915494309189535)
    a.e(f"""
    s_lshr_b32 s59, s56, 16
    s_and_b32 s60, s56, 0xffff
    s_cmp_eq_u32 s47, 0
    s_cselect_b32 s59, s60, s59
    s_lshl_b32 s59, s59, 16
    v_mov_b32 v28, s59
    v_mul_f32 v29, {LOG2E}, v28
    v_mov_b32 v30, {LOG2E}
    v_fma_f32 v30, v28, v30, -v29
    v_fmac_f32 v30, 0x32a57060, v28
    v_exp_f32 v29, v29
    v_mul_f32 v30, {fhex(0.6931471805599453)}, v30
    v_fma_f32 v29, v29, v30, v29
    v_cvt_pk_bf16_f32 v29, v29, v29
    v_lshlrev_b32 v29, 16, v29
    """)
    for i in range(6): a.e(f"v_lshlrev_b32 v{10+i}, 16, v{10+i}")
    a.e(f"""
    v_mul_f32 v10, v29, v10          ; a_re
    v_mul_f32 v11, v29, v11          ; a_im
    v_mul_f32 v12, v29, v12          ; dB_re
    v_mul_f32 v13, v29, v13          ; dB_im
    v_mul_f32 v10, {LOG2E}, v10      ; ar2
    v_mul_f32 v11, {INV2PI}, v11     ; ai2
    """)
    P = {}
    nxtp = [50]
    def pair(name):
        P[name] = nxtp[0]; nxtp[0] += 2
        return P[name]
    TMP = [28, 30]
    ti = [0]
    def mul(dn, xn, yn):
        d = P.get(dn) or pair(dn)
        t = TMP[ti[0] % 2]; ti[0] += 1
        cmul(a, d, P[xn], P[yn], t)
    pair("X0"); cmul(a, P["X0"], 14, 12, 28)
    for x in (1, 8, 128, 256, 512, 1024):
        d = pair(f"E{x}")
        if x == 1:
            a.e(f"v_exp_f32 v6, v10")
            a.e(f"v_fract_f32 v7, v11")
        else:
            a.e(f"v_mul_f32 v6, {fhex(float(x))}, v10")
            a.e(f"v_mul_f32 v7, {fhex(float(x))}, v11")
            a.e(f"v_exp_f32 v6, v6")
            a.e(f"v_fract_f32 v7, v7")
        a.e(f"v_cos_f32 v26, v7")
        a.e(f"v_sin_f32 v27, v7")
        a.e(f"v_mul_f32 v{d}, v6, v26")
        a.e(f"v_mul_f32 v{d+1}, v6, v27")
    if cfg.dbgT: st(4)
    OUT = [120, 128]
    oc = [0]
    def put_chunk(q, names, neg):
        o = OUT[oc[0] % 2]; oc[0] += 1
        sg = "-" if neg else ""
        for m in range(4):
            x, y = P[names[2*m]], P[names[2*m+1]]
            a.e(f"v_cvt_pk_bf16_f32 v{o+m}, v{x}, v{y}")
            a.e(f"v_cvt_pk_bf16_f32 v{o+4+m}, {sg}v{x+1}, {sg}v{y+1}")
        ad = A_TB + (q >> 1)
        a.e(f"ds_write_b128 v{ad}, v[{o}:{o+3}] offset:{(q & 1)*16}")
        a.e(f"ds_write_b128 v{ad}, v[{o+4}:{o+7}] offset:{128 + (q & 1)*16}")
    pair("ONE")
    a.e(f"v_mov_b32 v{P['ONE']}, 1.0")
    a.e(f"v_mov_b32 v{P['ONE']+1}, 0")
    for k in range(8): pair(f"S{k}")
    for k in range(1, 8):
        mul(f"X{k}", f"X{k-1}", "E1")
    put_chunk(0, [f"X{k}" for k in range(8)], True)
    P["Y8"] = P["E8"]
    mul("Y16", "Y8", "Y8"); mul("Y24", "Y16", "Y8"); mul("Y32", "Y16", "Y16")
    mul("Y40", "Y32", "Y8"); mul("Y48", "Y32", "Y16"); mul("Y56", "Y32", "Y24")
    put_chunk(6, ["ONE", "Y8", "Y16", "Y24", "Y32", "Y40", "Y48", "Y56"], False)
    if cfg.dbgT: st(6)
    mul("S0", "Y32", "Y32")
    for jj in range(1, 8): mul(f"S{jj}", "S0", f"Y{8*jj}")
    put_chunk(7, [f"S{k}" for k in range(8)], False)
    for k in range(8): mul(f"S{k}", f"X{k}", "E128")
    put_chunk(1, [f"S{k}" for k in range(8)], True)
    if cfg.mid_u:
        a1_write()
        a.e("s_waitcnt lgkmcnt(0)")
        a.e("s_barrier")
        a1_store()
    for i_, k in enumerate((0, 2, 4, 6)):
        mul(f"S{i_}", f"X{k}", "E256")
    for i_ in range(4):
        mul(f"S{4+i_}", f"S{i_}", "E128")
    put_chunk(2, [f"S{k}" for k in range(8)], True)
    mul("S0", "X0", "E512"); mul("S1", "X4", "E512")
    for i_ in range(2, 8): mul(f"S{i_}", f"S{i_-2}", "E128")
    put_chunk(3, [f"S{k}" for k in range(8)], True)
    mul("S0", "X0", "E1024")
    for i_ in range(1, 8): mul(f"S{i_}", f"S{i_-1}", "E128")
    pair("XL"); mul("XL", "S0", "E1024")
    put_chunk(4, [f"S{k}" for k in range(8)], True)
    a.e(f"v_cvt_pk_bf16_f32 v120, v{P['XL']}, -v{P['XL']+1}")
    a.e(f"ds_write_b16 v{A_TB+2}, v120 offset:16")
    a.e(f"ds_write_b16_d16_hi v{A_TB+2}, v120 offset:{128+16}")
    assert nxtp[0] <= 120, nxtp
    if cfg.mid_u: ut_flag()
    else: a1_write()
    if cfg.dbgT: st(7)
    a.e("s_waitcnt lgkmcnt(0)")
    if cfg.dbgT: st(8)
    a.e("s_barrier")
    st(3)
    if not cfg.mid_u: a1_store()
    def look_issue():
        a.e(f"""
        s_cmp_lg_u32 s39, 0
        s_cbranch_scc1 L_a_uf0
        global_load_dword v30, v{A_FU}, s[36:37] sc1
        """)
        a.label("L_a_uf0")
    if cfg.mid_u: look_issue()
    if cfg.touch:
        K.a_touch(a, cfg, {2: ["k"]})
    YF, XF, D0 = 32, 64, 128
    def trfrag(dst, addr, s):
        a.e(f"ds_read_b64_tr_b16 v[{dst}:{dst+1}], v{addr} offset:{s*4096}")
        a.e(f"ds_read_b64_tr_b16 v[{dst+2}:{dst+3}], v{addr} offset:{s*4096 + 512}")
    a.e("""
    s_cmp_eq_u32 s48, 0
    s_cbranch_scc0 L_a_k2
    """)
    a.lg = []
    for s in range(8):
        trfrag(YF+4*s, A_KM+3, s)
        for t in range(2): trfrag(XF+32*t+4*s, A_KM+t, s)
    for s in range(8):
        a.e(f"s_waitcnt lgkmcnt({min(15, 6*(7-s))})")
        for t in range(2):
            c = "0" if s == 0 else f"v[{D0+4*t}:{D0+4*t+3}]"
            a.e(f"v_mfma_f32_16x16x32_bf16 v[{D0+4*t}:{D0+4*t+3}], v[{XF+32*t+4*s}:{XF+32*t+4*s+3}], v[{YF+4*s}:{YF+4*s+3}], {c}")
    a.e(f"""
    v_cvt_pk_bf16_f32 v136, v{D0}, v{D0+1}
    v_cvt_pk_bf16_f32 v137, v{D0+2}, v{D0+3}
    v_cvt_pk_bf16_f32 v138, v{D0+4}, v{D0+5}
    v_cvt_pk_bf16_f32 v139, v{D0+6}, v{D0+7}
    ds_write_b64 v{A_C0}, v[136:137]
    ds_write_b32 v{A_C1A}, v138
    ds_write_b32 v{A_C1B}, v139
    s_branch L_a_kdone
    """)
    a.label("L_a_k2")
    for s in range(8):
        trfrag(YF+4*s, A_KM+3, s)
        trfrag(XF+4*s, A_KM+2, s)
    for s in range(8):
        a.e(f"s_waitcnt lgkmcnt({min(15, 4*(7-s))})")
        c = "0" if s == 0 else f"v[{D0}:{D0+3}]"
        a.e(f"v_mfma_f32_16x16x32_bf16 v[{D0}:{D0+3}], v[{XF+4*s}:{XF+4*s+3}], v[{YF+4*s}:{YF+4*s+3}], {c}")
    a.e(f"""
    v_cvt_pk_bf16_f32 v136, v{D0}, v{D0+1}
    v_cvt_pk_bf16_f32 v137, v{D0+2}, v{D0+3}
    ds_write_b16 v{A_C2}, v136
    ds_write_b16_d16_hi v{A_C2}, v136 offset:32
    ds_write_b16 v{A_C2}, v137 offset:64
    ds_write_b16_d16_hi v{A_C2}, v137 offset:96
    """)
    a.label("L_a_kdone")
    def look_check(issue):
        a.e(f"""
        s_cmp_lg_u32 s39, 0
        s_cbranch_scc1 L_a_uf1
        """)
        if issue: a.e(f"global_load_dword v30, v{A_FU}, s[36:37] sc1")
        a.e(f"""
        s_and_b32 s58, s38, 0xfffffff8
        s_getreg_b32 s57, hwreg(HW_REG_XCC_ID)
        s_and_b32 s57, s57, 7
        s_or_b32 s59, s57, s58
        s_waitcnt vmcnt(0)
        v_cmp_ne_u32 vcc, s59, v30
        s_cmp_eq_u64 vcc, 0
        s_cselect_b32 s57, 1, 0
        v_mov_b32 v31, s57
        v_mov_b32 v30, 0
        ds_write_b32 v30, v31 offset:{NONCE_LDS+8}
        ds_write_b32 v30, v31 offset:{NONCE_LDS+4}
        """)
        a.label("L_a_uf1")
    def ready_loads():
        a.e(f"""
        v_mov_b32 v30, 0
        ds_read_b32 v31, v30 offset:{NONCE_LDS+8}
        s_waitcnt lgkmcnt(0)
        v_readfirstlane_b32 s44, v31
        s_cmp_eq_u32 s44, 0
        s_cbranch_scc1 L_a_ul0
        global_load_dwordx4 v[208:211], v{A_UG}, s[36:37] sc1
        global_load_dwordx4 v[212:215], v{A_UG}, s[36:37] offset:2048 sc1
        """)
        a.label("L_a_ul0")
    if cfg.mid_u: look_check(False)
    else: ut_flag()
    if cfg.touch:
        K.a_touch(a, cfg, {3: ["v"]})
    a.e(f"""
    s_mov_b32 s57, 0x01000100
    s_mov_b32 s58, 0x03020302
    s_mov_b32 s59, 0x05040302
    s_mov_b32 s63, 0x05040100
    v_mov_b32 v48, 0
    v_mov_b32 v49, 0
    v_mov_b32 v50, 0
    v_mov_b32 v51, 0
    s_waitcnt lgkmcnt(0)
    s_barrier
    """)
    a.lg = []
    if cfg.mid_u: ready_loads()
    if not (cfg.dbgT or cfg.dbgY or cfg.dbgN): st(4)
    a.e("""
    s_cmp_eq_u32 s39, 0
    s_cbranch_scc1 L_a_e0
    s_cmp_eq_u32 s39, 1
    s_cbranch_scc1 L_a_e2
    """)
    for c in range(2):
        a.e(f"ds_read_u16 v{32+2*c}, v{A_ER0} offset:{KC[c]}")
        a.e(f"ds_read_u16 v{33+2*c}, v{A_ER0} offset:{KC[c]+2}")
    a.e(f"""
    v_and_b32 v28, 1, v0
    v_cmp_eq_u32 vcc, 0, v28
    s_waitcnt lgkmcnt(0)
    """)
    for c in range(2):
        c0, c1 = 32+2*c, 33+2*c
        o = 40 + 4*c
        a.e(f"v_perm_b32 v{o}, v{c1}, v{c0}, s57")
        a.e(f"v_perm_b32 v{o+3}, v{c0}, v{c1}, s57")
        a.e(f"v_perm_b32 v{o+2}, v{c1}, v{c0}, s63")
        a.e(f"v_mov_b32 v{o+1}, v{o}")
        a.e(f"v_cndmask_b32 v{o+2}, v{o+3}, v{o+2}, vcc")
    a.e("s_branch L_a_ew")
    a.label("L_a_e2")
    for c in range(2):
        a.e(f"ds_read_b32 v{32+2*c}, v{A_ER0} offset:{KC[c]}")
        a.e(f"ds_read_b32 v{33+2*c}, v{A_ER0} offset:{KC[c]+4}")
    a.e("s_waitcnt lgkmcnt(0)")
    for c in range(2):
        A_, B_ = 32+2*c, 33+2*c
        o = 40 + 4*c
        a.e(f"v_perm_b32 v{o}, v{A_}, v{A_}, s57")
        a.e(f"v_mov_b32 v{o+1}, v{A_}")
        a.e(f"v_perm_b32 v{o+2}, v{A_}, v{A_}, s58")
        a.e(f"v_perm_b32 v{o+3}, v{B_}, v{B_}, s57")
    a.e("s_branch L_a_ew")
    a.label("L_a_e0")
    for c in range(2):
        a.e(f"ds_read_b128 v[{40+4*c}:{43+4*c}], v{A_ER0} offset:{KC[c]}")
        a.e(f"ds_read_b64 v[{32+4*c}:{33+4*c}], v{A_ER1} offset:{KC[c]}")
        a.e(f"ds_read_b32 v{34+4*c}, v{A_ER1} offset:{KC[c]+8}")
    a.e("""
    v_cmp_le_u32 vcc, 32, v0
    s_waitcnt lgkmcnt(0)
    """)
    for c in range(2):
        A_, B_, C_ = 32+4*c, 33+4*c, 34+4*c
        o = 40 + 4*c
        a.e(f"v_perm_b32 v52, v{A_}, v{A_}, s57")
        a.e(f"v_perm_b32 v53, v{B_}, v{A_}, s59")
        a.e(f"v_perm_b32 v54, v{B_}, v{B_}, s57")
        a.e(f"v_perm_b32 v55, v{C_}, v{B_}, s59")
        for q in range(4):
            a.e(f"v_cndmask_b32 v{o+q}, v{o+q}, v{52+q}, vcc")
    a.label("L_a_ew")
    for c in range(2):
        a.e(f"ds_write_b128 v{A_DW}, v[{40+4*c}:{43+4*c}] offset:{KD[c]}")
    a.e(f"""
    v_cmp_gt_u32 vcc, 160, v0
    s_and_b64 exec, exec, vcc
    ds_write_b128 v{A_ZU}, v[48:51] offset:{UR[0] + 64*80}
    ds_write_b128 v{A_ZU}, v[48:51] offset:{UR[1] + 64*80}
    v_cmp_gt_u32 vcc, 32, v0
    s_and_b64 exec, exec, vcc
    ds_write_b128 v{A_ZC}, v[48:51] offset:{CP[0]}
    v_cmp_gt_u32 vcc, 2, v0
    s_and_b64 exec, exec, vcc
    ds_write_b128 v{A_ZG}, v[48:51]
    s_mov_b64 exec, -1
    """)
    if not cfg.mid_u: look_check(True)
    a.e("""
    s_waitcnt lgkmcnt(0)
    s_barrier
    """)
    if not cfg.mid_u: ready_loads()
    a.vm = []
    if not (cfg.dbgT or cfg.dbgY or cfg.dbgN): st(5)
    for c in range(2):
        b = 32 + 16*c
        a.e(f"ds_read_b64 v[{b}:{b+1}], v{A_CR} offset:{KD[c] + 8}")
        a.e(f"ds_read_b128 v[{b+4}:{b+7}], v{A_CR} offset:{KD[c] + 16}")
    for c in range(2):
        a.e(f"s_waitcnt lgkmcnt({2 - 2*c})" if c == 0 else "s_waitcnt lgkmcnt(4)")
        b = 32 + 16*c
        n0, n1, n2, n3, n4, n5 = b, b+1, b+4, b+5, b+6, b+7
        m = b + 8
        t1 = 96 + 8*c
        base = CP[c]
        a.e(f"ds_write_b128 v{A_CW}, v[{n2}:{n5}] offset:{base}")
        a.e(f"v_alignbit_b32 v{m}, v{n1}, v{n0}, 16")
        for q, (hi, lo) in enumerate(((n2, n1), (n3, n2), (n4, n3))):
            a.e(f"v_alignbit_b32 v{m+1+q}, v{hi}, v{lo}, 16")
        a.e(f"ds_write_b128 v{A_CW}, v[{m}:{m+3}] offset:{base + 3*4160}")
        for q, (hi, lo) in enumerate(((n2, n1), (n3, n2), (n4, n3), (n5, n4))):
            a.e(f"v_alignbit_b32 v{t1+q}, v{hi}, v{lo}, 16")
        a.e(f"ds_write_b128 v{A_CW}, v[{t1}:{t1+3}] offset:{base + 4160}")
        for q, r in enumerate((n1, n2, n3, n4)): a.e(f"v_mov_b32 v{t1+4+q}, v{r}")
        a.e(f"ds_write_b128 v{A_CW}, v[{t1+4}:{t1+7}] offset:{base + 2*4160}")
    if not (cfg.dbgT or cfg.dbgY or cfg.dbgN): st(6)
    a.e(f"""
    s_cmp_lg_u32 s44, 0
    s_cbranch_scc1 L_a_fast
    s_cmp_ge_u32 s39, 2
    s_cbranch_scc1 L_a_utf_go
    s_and_b32 s58, s38, 0xfffffff8
    s_getreg_b32 s57, hwreg(HW_REG_XCC_ID)
    s_and_b32 s57, s57, 7
    s_or_b32 s59, s57, s58
    s_mov_b32 s61, 0
    v_add_u32 v28, 8192, v{A_FU}
    """)
    a.label("L_a_utf_poll")
    a.e(f"""
    global_load_dword v30, v{A_FU}, s[36:37] sc1
    global_load_dword v31, v28, s[36:37] sc1
    s_add_u32 s61, s61, 1
    s_waitcnt vmcnt(0)
    v_cmp_ne_u32 vcc, s59, v30
    s_cmp_eq_u64 vcc, 0
    s_cbranch_scc1 L_a_utf_local
    v_cmp_ne_u32 s[64:65], s58, v31
    s_and_b64 vcc, vcc, s[64:65]
    s_cbranch_vccz L_a_utf_glob
    s_cmp_eq_u32 s61, {cfg.ut_patience}
    s_cbranch_scc0 L_a_utf_again
    s_mov_b32 s60, 0
    """)
    a.label("L_a_utf_pub")
    a.e(f"""
    global_store_dwordx4 v{A_UT0}, v[224:227], s[36:37] sc1
    global_store_dwordx4 v{A_UT1}, v[228:231], s[36:37] sc1
    global_store_dwordx4 v200, v[232:235], s[36:37] sc1
    global_store_dwordx4 v201, v[236:239], s[36:37] sc1
    s_waitcnt vmcnt(0)
    v_add_u32 v29, 8192, v{A_FUS}
    v_mov_b32 v30, s58
    s_mov_b64 exec, 1
    global_store_dword v29, v30, s[36:37] sc1
    s_mov_b64 exec, -1
    s_cmp_lg_u32 s60, 0
    s_cbranch_scc1 L_a_utf_glob2
    """)
    a.label("L_a_utf_again")
    a.e(f"""
    s_cmp_gt_u32 s61, {SPIN}
    s_cbranch_scc1 L_a_utf_glob2
    s_sleep {cfg.sl_ut}
    s_branch L_a_utf_poll
    """)
    a.label("L_a_utf_local")
    a.e("s_mov_b32 s57, 1")
    a.e("s_branch L_a_utf_ok")
    a.label("L_a_utf_glob")
    a.e(f"""
    s_mov_b32 s60, 1
    s_cmp_lt_u32 s61, {cfg.ut_patience}
    s_cbranch_scc1 L_a_utf_pub
    s_cmp_eq_u32 s61, {cfg.ut_patience}
    s_cbranch_scc1 L_a_utf_pub
    """)
    a.label("L_a_utf_glob2")
    a.e("s_mov_b32 s57, 0")
    a.label("L_a_utf_ok")
    a.e(f"""
    v_mov_b32 v31, s57
    v_mov_b32 v30, 0
    ds_write_b32 v30, v31 offset:{NONCE_LDS+4}
    """)
    a.label("L_a_utf_go")
    a.e(f"""
    s_waitcnt lgkmcnt(0)
    s_barrier
    global_load_dwordx4 v[208:211], v{A_UG}, s[36:37] sc1
    global_load_dwordx4 v[212:215], v{A_UG}, s[36:37] offset:2048 sc1
    """)
    a.label("L_a_fast")
    a.e(f"""
    v_mov_b32 v30, 0
    ds_read_b32 v31, v30 offset:{NONCE_LDS+4}
    """)
    for e in range(4):
        h, hi = e // 2, e % 2
        a.e(f"v_{'and_b32' if hi else 'lshlrev_b32'} v{80+e}, {'0xffff0000' if hi else '16'}, v{24+h}")
    for rho in range(4):
        for e in range(4):
            h, hi = e // 2, e % 2
            a.e(f"v_{'and_b32' if hi else 'lshlrev_b32'} v{96+4*rho+e}, {'0xffff0000' if hi else '16'}, v{16+2*rho+h}")
            a.e(f"v_mul_f32 v{96+4*rho+e}, v{96+4*rho+e}, v{80+e}")
        for h in range(2):
            a.e(f"v_cvt_pk_bf16_f32 v{84+h}, v{96+4*rho+2*h}, v{96+4*rho+2*h+1}")
        for h in range(2):
            a.e(f"v_lshlrev_b32 v{96+4*rho+2*h}, 16, v{84+h}")
            a.e(f"v_and_b32 v{96+4*rho+2*h+1}, 0xffff0000, v{84+h}")
    a.e("s_waitcnt vmcnt(0) lgkmcnt(0)")
    a.e("v_readfirstlane_b32 s46, v31")
    if cfg.yglobal: a.e("s_mov_b32 s46, 0")
    a.vm = []
    if not (cfg.dbgT or cfg.dbgY or cfg.dbgN): st(7)
    a.e(f"""
    ds_write_b128 v{A_UL}, v[208:211] offset:{UR[0]}
    ds_write_b128 v{A_UL}, v[212:215] offset:{UR[0] + 32*80}
    s_waitcnt lgkmcnt(0)
    s_barrier
    """)
    if not (cfg.dbgT or cfg.dbgY or cfg.dbgN): st(8)
    a.e(f"s_setprio {cfg.prioA2}")
    if cfg.touch:
        K.a_touch(a, cfg, {3: ["o"]})
    if cfg.ytouch:
        a.e(f"""
        s_cmp_lg_u32 s39, 2
        s_cbranch_scc1 L_a_noyt
        s_lshl_b32 s57, s50, 12
        s_add_u32 s57, s57, {YT}
        v_lshl_add_u32 v28, v1, 7, s57
        global_load_dword v252, v28, s[36:37]
        """)
        a.label("L_a_noyt")
    ACC0, ACC1 = 128, 144
    NB = 3
    FR = [32 + 16*i for i in range(NB)]
    steps = [(dl, hf) for dl in range(16) for hf in range(2)]
    def rd(i):
        dl, hf = steps[i]
        f = FR[i % NB]
        ao = 64*dl + 32*(1-hf)
        bo = 80*dl + 32*(1-hf)
        t = f"cv{i}"
        return [(f"ds_read_b64 v[{f}:{f+1}], v{A_VA} offset:{ao}", t),
                (f"ds_read_b64 v[{f+2}:{f+3}], v{A_VA} offset:{ao+8}", t),
                (f"ds_read_b128 v[{f+8}:{f+11}], v{A_VB} offset:{bo+2560}", t),
                (f"ds_read_b128 v[{f+12}:{f+15}], v{A_VB} offset:{bo}", t),
                (f"ds_read_b64 v[{f+4}:{f+5}], v{A_VA} offset:{ao+2048}", t),
                (f"ds_read_b64 v[{f+6}:{f+7}], v{A_VA} offset:{ao+2056}", t)]
    a.lg = []
    for i in (0, 1):
        for t, tg in rd(i): a.e(t, lg=tg)
    for i in range(32):
        f = FR[i % NB]
        a.wait_lg(f"cv{i}")
        c0 = "0" if i == 0 else f"v[{ACC0}:{ACC0+15}]"
        c1 = "0" if i == 0 else f"v[{ACC1}:{ACC1+15}]"
        R = rd(i + 2) if i + 2 < 32 else []
        a.e(f"v_mfma_f32_32x32x16_bf16 v[{ACC0}:{ACC0+15}], v[{f}:{f+3}], v[{f+8}:{f+11}], {c0}")
        for t, tg in R[0:2]: a.e(t, lg=tg)
        a.e(f"v_mfma_f32_32x32x16_bf16 v[{ACC1}:{ACC1+15}], v[{f}:{f+3}], v[{f+12}:{f+15}], {c1}")
        for t, tg in R[2:4]: a.e(t, lg=tg)
        a.e(f"v_mfma_f32_32x32x16_bf16 v[{ACC1}:{ACC1+15}], v[{f+4}:{f+7}], v[{f+8}:{f+11}], v[{ACC1}:{ACC1+15}]")
        for t, tg in R[4:6]: a.e(t, lg=tg)
    st(9)
    if cfg.utclean == 2:
        a.e(f"""
        s_cmp_ge_u32 s39, 2
        s_cbranch_scc1 L_a_nocl2
        global_store_dwordx4 v{A_UT0}, v[224:227], s[36:37] sc1
        global_store_dwordx4 v{A_UT1}, v[228:231], s[36:37] sc1
        global_store_dwordx4 v200, v[232:235], s[36:37] sc1
        global_store_dwordx4 v201, v[236:239], s[36:37] sc1
        s_nop 1
        """)
        a.label("L_a_nocl2")
    a.e(f"s_setprio {cfg.prioA3}")
    a.e("""
    s_waitcnt vmcnt(0) lgkmcnt(0)
    s_barrier
    """)
    for tau, acc in ((0, ACC0), (1, ACC1)):
        for q in range(4):
            a.e(f"ds_write_b128 v{A_PW}, v[{acc+4*q}:{acc+4*q+3}] offset:{YP + tau*32*144 + q*32}")
    a.e("""
    s_waitcnt lgkmcnt(0)
    s_barrier
    """)
    for c in range(2):
        o = YP + (c*2)*64*144
        b = 32 + 16*c
        a.e(f"ds_read_b128 v[{b}:{b+3}], v{A_OR} offset:{o}")
        a.e(f"ds_read_b128 v[{b+8}:{b+11}], v{A_OR} offset:{o + 64*144}")
        a.e(f"ds_read_b128 v[{b+4}:{b+7}], v{A_OR} offset:{o + 16}")
        a.e(f"ds_read_b128 v[{b+12}:{b+15}], v{A_OR} offset:{o + 64*144 + 16}")
    for c in range(2):
        a.e(f"s_waitcnt lgkmcnt({4-4*c})")
        b = 32 + 16*c
        for q in range(8): a.e(f"v_add_f32 v{b+q}, v{b+q}, v{b+8+q}")
        for m in range(4): a.e(f"v_cvt_pk_bf16_f32 v{64+4*c+m}, v{b+2*m}, v{b+2*m+1}")
    a.e(f"""
    v_add_u32 v29, 4096, v{A_YG}
    s_cmp_eq_u32 s46, 0
    s_cbranch_scc1 L_a_yg
    global_store_dwordx4 v{A_YG}, v[64:67], s[36:37] {cfg.locfl}
    global_store_dwordx4 v29, v[68:71], s[36:37] {cfg.locfl}
    s_branch L_a_yd
    """)
    a.label("L_a_yg")
    a.e(f"""
    global_store_dwordx4 v{A_YG}, v[64:67], s[36:37] sc1
    global_store_dwordx4 v29, v[68:71], s[36:37] sc1
    """)
    a.label("L_a_yd")
    a.e(f"""
    s_waitcnt vmcnt(0)
    s_barrier
    """)
    st(10)
    a.e(f"""
    s_cmp_lg_u32 s39, 1
    s_cbranch_scc1 L_a_ytf_go
    v_mov_b32 v28, s38
    s_mov_b64 exec, 1
    s_cmp_eq_u32 s46, 0
    s_cbranch_scc1 L_a_yfg
    global_store_dword v{A_FYS}, v28, s[36:37]
    s_branch L_a_yfd
    """)
    a.label("L_a_yfg")
    a.e(f"global_store_dword v{A_FYS}, v28, s[36:37] sc1")
    a.label("L_a_yfd")
    a.e("s_mov_b64 exec, -1")
    if cfg.dbgY: st(4)
    a.e("s_mov_b32 s61, 0")
    a.label("L_a_ytf_poll")
    a.e(f"""
    global_load_dword v29, v{A_FY}, s[36:37] sc1
    s_add_u32 s61, s61, 1
    s_waitcnt vmcnt(0)
    v_cmp_ne_u32 vcc, s38, v29
    s_cmp_gt_u32 s61, {SPIN}
    s_cbranch_scc1 L_a_ytf_go
    s_cbranch_vccz L_a_ytf_go
    s_sleep {cfg.sl_yt}
    s_branch L_a_ytf_poll
    """)
    a.label("L_a_ytf_go")
    if cfg.dbgY:
        st(5); K.stampval(a, cfg, 7, "s61")
    a.e("s_barrier")
    if cfg.dbgY: st(6)
    a.e(f"""
    global_load_dwordx2 v[64:65], v{A_YL}, s[36:37] sc1
    global_load_dwordx2 v[66:67], v{A_YL+1}, s[36:37] sc1
    global_load_dwordx2 v[68:69], v{A_YL+2}, s[36:37] sc1
    global_load_dwordx2 v[70:71], v{A_YL+3}, s[36:37] sc1
    s_waitcnt vmcnt(0)
    """)
    st(11)
    for rho in range(4):
        m, hi = rho // 2, rho % 2
        for e in range(4):
            src = 64 + 2*e + m
            a.e(f"v_{'and_b32' if hi else 'lshlrev_b32'} v{84+e}, {'0xffff0000' if hi else '16'}, v{src}")
        for e in range(4):
            a.e(f"v_add_f32 v{84+e}, v{84+e}, v{96+4*rho+e}")
        a.e(f"v_cvt_pk_bf16_f32 v{88+2*rho}, v84, v85")
        a.e(f"v_cvt_pk_bf16_f32 v{89+2*rho}, v86, v87")
        if rho == 2: a.e(f"v_add_u32 v{A_OUT}, 4096, v{A_OUT}")
        a.e(f"global_store_dwordx2 v{A_OUT}, v[{88+2*rho}:{89+2*rho}], s[32:33] offset:{2048*(rho % 2)} {cfg.outfl}")
    if cfg.utclean == 1:
        a.e(f"""
        s_cmp_ge_u32 s39, 2
        s_cbranch_scc1 L_a_nocl
        global_store_dwordx4 v{A_UT0}, v[224:227], s[36:37] sc1
        global_store_dwordx4 v{A_UT1}, v[228:231], s[36:37] sc1
        global_store_dwordx4 v200, v[232:235], s[36:37] sc1
        global_store_dwordx4 v201, v[236:239], s[36:37] sc1
        s_nop 1
        """)
        a.label("L_a_nocl")
    a.e("""
    s_cmp_lg_u32 s41, 0
    s_cbranch_scc1 L_a_norst
    s_cmp_lg_u32 s39, 1
    s_cbranch_scc1 L_a_norst
    v_mov_b32 v8, s45
    v_mov_b32 v9, 0
    s_mov_b64 exec, 1
    global_store_dword v8, v9, s[34:35] sc1
    s_mov_b64 exec, -1
    """)
    a.label("L_a_norst")
    st(12)
    K.stampval(a, cfg, 13, "s46")
    K.stamps_out(a, cfg, 14)
```

```python
import sys
from asmlib import Asm, wrap

UT   = 0
YT   = 4 << 20
PQ   = 8 << 20
PQF  = 10 << 20
KVP  = (10 << 20) + (64 << 10)
KVF  = 12 << 20
UTF  = (12 << 20) + (64 << 10)
YTF  = (12 << 20) + (96 << 10)
KVBLK = 2176
LOG2E = 0x3fb8aa3b
EPS   = 0x358637bd
SPIN_LIMIT = 200000

class Cfg:
    do_A = True
    do_B = True
    do_B2 = True
    touch = True
    dual = False
    x_nowrite = False
    prioA = 2
    prioA2 = 0
    dbgT = 0
    locfl = ""
    mid_u = 1
    qe_end = 26
    pqflag_g = 14
    dmafl = ""
    aldfl = ""
    zpoll = 0
    sl_ka = 1
    sl_kz = 1
    sl_pq = 1
    sl_red = 1
    sl_yt = 1
    sl_ut = 1
    late_o = 1
    yglobal = 0
    utclean = 0
    outfl = "sc1"
    uttouch = 0
    ninit = 8
    dbgN = 0
    ut_patience = 200
    flagpos = 0
    ytouch = 1
    dbgY = 0
    prioA3 = 0
    prioB = 1
    pk = 1
    b_exit = False
    touch_flags = ""
    early_release = True
    dma_early = False
    last_dma = 40
    late_pre = 0
    touch_mode = "late"
    stamps = False

STAMP_BASE = 14 << 20
def stamp(a, cfg, i):
    if cfg.stamps == 1:
        a.e(f"s_memtime s[{70+2*i}:{71+2*i}]")
def stampval(a, cfg, i, sreg):
    if cfg.stamps == 1:
        a.e("s_waitcnt lgkmcnt(0)")
        a.e(f"s_add_u32 s{70+2*i}, {sreg}, s70")
def stamps_out(a, cfg, n, vt=22):
    if not cfg.stamps: return
    a.e("s_memrealtime s[68:69]")
    a.e("s_waitcnt lgkmcnt(0) vmcnt(0)")
    a.vm = []
    if cfg.stamps == 2: n = 1
    for i in range(1, n):
        a.e(f"s_sub_u32 s{70+2*i}, s{70+2*i}, s70")
    a.e(f"""
    s_lshl_b32 s61, s2, 2
    s_add_u32 s61, s61, s39
    s_lshl_b32 s61, s61, 6
    s_add_u32 s61, s61, {STAMP_BASE}
    v_mov_b32 v{vt}, s61
    s_mov_b64 exec, 1
    """)
    for i in range(16):
        src = f"s{70+2*i}" if (0 < i < n) else ("s68" if i == 15 else ("s100" if i == 0 else "0"))
        a.e(f"v_mov_b32 v{vt+1}, {src}")
        a.e(f"global_store_dword v{vt}, v{vt+1}, s[36:37] offset:{4*i}")
        a.e("s_nop 1")
    a.e("s_waitcnt vmcnt(0)")
    a.e("s_mov_b64 exec, -1")
    a.vm = []

def prologue(a, cfg):
    if cfg.stamps:
        a.e("s_memrealtime s[100:101]")
        a.e("s_memtime s[70:71]")
    a.e("""
    s_cmp_ge_u32 s2, 512
    s_cbranch_scc1 L_end
    s_load_dwordx16 s[8:23], s[0:1], 0
    s_load_dwordx8 s[24:31], s[0:1], 64
    s_load_dwordx4 s[32:35], s[0:1], 96
    s_load_dwordx2 s[36:37], s[0:1], 112
    v_lshrrev_b32 v1, 6, v0
    v_readfirstlane_b32 s39, v1
    v_and_b32 v1, 63, v0
    s_and_b32 s3, s2, 255
    s_cmp_lt_u32 s2, 256
    s_cbranch_scc1 L_roleA
    """)

def poll_nonce(a, vtmp, vaddr0, first_tag=None):
    L = a.newlabel("nonce"); Lx = a.newlabel("nonce_ok")
    if first_tag:
        a.wait_vm(first_tag)
    else:
        a.e(f"global_load_dword {vtmp}, {vaddr0}, s[34:35] sc1")
        a.wait_vm_all()
    a.e(f"v_readfirstlane_b32 s38, {vtmp}")
    a.e(f"""
    s_cmp_lg_u32 s38, 0
    s_cbranch_scc1 {Lx}
    s_mov_b32 s61, 0
    """)
    a.label(L)
    a.e(f"""
    global_load_dword {vtmp}, {vaddr0}, s[34:35] sc1
    s_waitcnt vmcnt(0)
    v_readfirstlane_b32 s38, {vtmp}
    s_add_u32 s61, s61, 1
    s_cmp_gt_u32 s61, {SPIN_LIMIT}
    s_cbranch_scc1 {Lx}
    s_cmp_eq_u32 s38, 0
    s_cbranch_scc1 {L}
    """)
    a.vm.pop()
    a.label(Lx)

def phi_instrs(acc, tmp, out, zsum=None):
    L = []
    for i in range(16):
        L.append(f"v_mul_f32 v{tmp+i}, s62, v{acc+i}")
    for i in range(16):
        L.append(f"v_exp_f32 v{tmp+i}, v{tmp+i} clamp")
        L.append(f"v_max_f32 v{acc+i}, s64, v{acc+i}")
    for i in range(16):
        L.append(f"v_add_f32 v{acc+i}, v{acc+i}, v{tmp+i}")
    if zsum is not None:
        for m in range(8):
            L.append(f"v_add_f32 v{tmp+m}, v{acc+2*m}, v{acc+2*m+1}")
        for m in range(4):
            L.append(f"v_add_f32 v{tmp+m}, v{tmp+m}, v{tmp+4+m}")
        L.append(f"v_add_f32 v{tmp}, v{tmp}, v{tmp+2}")
        L.append(f"v_add_f32 v{tmp+1}, v{tmp+1}, v{tmp+3}")
        L.append(f"v_add_f32 v{zsum}, v{tmp}, v{tmp+1}")
    for m in range(8):
        L.append(f"v_cvt_pk_bf16_f32 v{out+m}, v{acc+2*m}, v{acc+2*m+1}")
    return L

def spread(side, nslots):
    out = []; n = len(side); k = 0
    for i in range(nslots):
        e = (n*(i+1))//nslots
        out.append(side[k:e]); k = e
    return out

SEQ = []
for c in range(8): SEQ += [("X", c), ("Q", c)]
SEQ += [("K", c) for c in range(8)] + [("V", c) for c in range(8)] + [("O", c) for c in range(8)]
NSLOT = 10
NINIT = 6
XR = 128
WF, T16, ACCQ, ACCK, ACCV = 32, 64, 80, 96, 112

DMAFL = ""
def b_issue_jobs(n):
    kind, c = SEQ[n]
    pos = n % NSLOT
    pre = []
    if kind == "X":
        so, v0, srd = f"s{16+c}", 2, "s[40:43]"
    elif kind in "QKV":
        so, v0, srd = f"s{8+c}", 4, "s[44:47]"
        if kind in "KV" and c == 0:
            pre = [("v_add_u32 v4, 1024, v4", None), ("v_add_u32 v5, 1024, v5", None)]
    else:
        so, v0, srd = "s61", 6, "s[48:51]"
        pre = [(f"s_mov_b32 s61, {c*65536}", None)]
    return [pre + [(f"s_add_u32 m0, s60, {pos*8192}", None),
             (f"buffer_load_dwordx4 v{v0}, {srd}, {so} offen {DMAFL} lds", f"slot{n}")],
            [(f"buffer_load_dwordx4 v{v0+1}, {srd}, {so} offen offset:1024 {DMAFL} lds", f"slot{n}")]]

def emit_job(a, job):
    for t in job:
        if isinstance(t, str): a.e(t)
        else: a.e(t[0], vm=t[1])

def lds_base(n):
    pos = n % NSLOT
    return (0, pos*8192) if pos < 5 else (1, (pos-5)*8192)

def wfrag_reads(a, n, s, dst, tag=None):
    hi, off = lds_base(n)
    va = "v17" if hi else "v16"
    a.e(f"ds_read_b64_tr_b16 v[{dst}:{dst+1}], {va} offset:{off + s*2048}", lg=tag)
    a.e(f"ds_read_b64_tr_b16 v[{dst+2}:{dst+3}], {va} offset:{off + s*2048 + 512}", lg=tag)

def role_B(a, cfg):
    a.c("================= role B =================")
    if cfg.prioB: a.e(f"s_setprio {cfg.prioB}")
    a.e("""
    s_and_b32 s66, s3, 7            ; xcd
    s_lshr_b32 s67, s3, 3           ; jj
    s_lshr_b32 s56, s66, 1
    s_lshl_b32 s56, s56, 3
    s_and_b32 s68, s67, 7
    s_add_u32 s56, s56, s68         ; tb
    s_and_b32 s57, s66, 1
    s_lshl_b32 s57, s57, 2
    s_lshr_b32 s68, s67, 3
    s_add_u32 s57, s57, s68         ; hq
    s_and_b32 s58, s39, 1           ; tt
    s_lshr_b32 s59, s39, 1
    s_lshl_b32 s60, s39, 11
    s_mov_b32 s62, 0x3fb8aa3b
    s_mov_b32 s63, 0x3fb8aa3b
    s_mov_b32 s64, 0x358637bd
    s_mov_b32 s65, 0x358637bd
    """)
    a.e("""
    v_lshrrev_b32 v32, 3, v1        ; l>>3
    v_and_b32 v33, 7, v1            ; l&7
    v_lshrrev_b32 v34, 4, v1        ; l>>4
    s_lshl_b32 s68, s56, 6          ; tb*64
    s_lshl_b32 s69, s39, 4          ; 16w
    s_add_u32 s68, s68, s69
    v_add_u32 v35, s68, v32         ; row
    v_lshlrev_b32 v35, 10, v35
    v_xor_b32 v36, v33, v34
    v_lshl_add_u32 v2, v36, 4, v35
    v_add_u32 v37, 4, v34
    v_xor_b32 v36, v33, v37
    v_lshl_add_u32 v3, v36, 4, v35
    v_add_u32 v3, 7168, v3          ; +8 rows - 1024
    v_and_b32 v36, 1, v34
    v_lshlrev_b32 v36, 2, v36
    v_xor_b32 v36, v33, v36         ; q
    v_lshlrev_b32 v36, 4, v36       ; q*16
    v_add_u32 v37, s69, v32         ; 16w + (l>>3)
    v_mul_u32_u24 v38, 3072, v37
    s_lshl_b32 s68, s57, 7          ; hq*128
    v_add3_u32 v4, v38, v36, s68
    v_add_u32 v5, 23552, v4         ; +8*3072 - 1024
    v_lshlrev_b32 v38, 10, v37
    v_add3_u32 v6, v38, v36, s68
    v_add_u32 v7, 7168, v6
    """)
    a.e("""
    s_waitcnt lgkmcnt(0)
    s_mov_b32 s40, s26
    s_and_b32 s41, s27, 0xffff
    s_mov_b32 s42, 0x200000
    s_mov_b32 s43, 0x20000
    s_mov_b32 s44, s28
    s_and_b32 s45, s29, 0xffff
    s_mov_b32 s46, 0x180000
    s_mov_b32 s47, 0x20000
    s_mov_b32 s48, s30
    s_and_b32 s49, s31, 0xffff
    s_mov_b32 s50, 0x80000
    s_mov_b32 s51, 0x20000
    """)
    a.e("""
    v_mov_b32 v31, 0
    s_cmp_lg_u32 s3, 0
    s_cbranch_scc1 L_b_nononce
    s_cmp_lg_u32 s39, 0
    s_cbranch_scc1 L_b_nononce
    s_memrealtime s[68:69]
    s_waitcnt lgkmcnt(0)
    s_or_b32 s68, s68, 1
    v_mov_b32 v30, s68
    s_mov_b64 exec, 1
    global_store_dword v31, v30, s[34:35] sc1
    s_mov_b64 exec, -1
    """)
    a.vm.pop()
    a.label("L_b_nononce")
    if cfg.b_exit:
        a.e("s_branch L_end")
    for c in range(8):
        a.e(f"s_mov_b32 s{8+c}, {c*64*3072}")
        a.e(f"s_mov_b32 s{16+c}, {c*128}")
    stamp(a, cfg, 1)
    for n in range(cfg.ninit):
        for job in b_issue_jobs(n): emit_job(a, job)
    a.e("""
    v_and_b32 v32, 31, v1           ; i
    v_lshrrev_b32 v33, 5, v1        ; hh
    s_lshl_b32 s68, s58, 5
    v_add_u32 v34, s68, v32         ; 32tt + i
    v_lshlrev_b32 v34, 7, v34       ; *128
    v_lshrrev_b32 v35, 1, v32
    v_and_b32 v35, 7, v35           ; f
    """)
    for s in range(4):
        a.e(f"""
        v_add_u32 v36, {2*s}, v33
        v_xor_b32 v36, v36, v35
        v_lshl_add_u32 v{8+s}, v36, 4, v34
        v_add_u32 v{12+s}, 40960, v{8+s}
        """)
    a.e(f"""
    v_lshrrev_b32 v34, 2, v1
    v_and_b32 v34, 3, v34           ; rr
    v_and_b32 v35, 3, v1            ; cc
    v_lshrrev_b32 v36, 4, v1
    v_and_b32 v36, 1, v36           ; G&1
    v_lshlrev_b32 v36, 1, v36       ; 2(G&1)
    v_lshrrev_b32 v37, 1, v35       ; cc>>1
    v_add_u32 v36, v36, v37         ; 2(G&1) + (cc>>1)
    v_lshrrev_b32 v37, 1, v34
    v_lshlrev_b32 v37, 2, v37       ; 4(rr>>1)
    v_and_b32 v38, 1, v35
    v_lshlrev_b32 v38, 3, v38       ; 8(cc&1)
    s_lshl_b32 s68, s59, 2
    v_add_u32 v39, s68, v36
    v_xor_b32 v39, v39, v37
    v_lshl_add_u32 v39, v39, 4, v38
    v_lshl_add_u32 v40, v33, 3, v34
    v_lshl_add_u32 v16, v40, 7, v39
    v_add_u32 v17, 40960, v16
    v_xor_b32 v39, v36, v37
    v_lshl_add_u32 v39, v39, 4, v38
    v_lshl_add_u32 v40, v33, 2, v34
    v_lshl_add_u32 v18, v40, 7, v39
    s_lshl_b32 s68, s59, 15
    s_add_u32 s68, s68, 16384
    v_add_u32 v18, s68, v18
    v_xor_b32 v19, 64, v18
    s_lshl_b32 s68, s59, 1
    s_add_u32 s68, s68, s58
    s_xor_b32 s69, s68, 1
    s_lshl_b32 s66, s68, 10
    s_add_u32 s66, s66, 0
    v_lshl_add_u32 v22, v1, 4, s66
    s_lshl_b32 s66, s69, 10
    s_add_u32 s66, s66, 0
    v_lshl_add_u32 v23, v1, 4, s66
    s_lshl_b32 s66, s68, 8
    s_add_u32 s66, s66, 4096
    v_lshl_add_u32 v24, v1, 2, s66
    s_lshl_b32 s66, s69, 8
    s_add_u32 s66, s66, 4096
    v_lshl_add_u32 v25, v1, 2, s66
    ; global kv partial block: KVP + (hp*32+tb)*2176
    s_lshl_b32 s68, s57, 1
    s_add_u32 s68, s68, s59
    s_lshl_b32 s68, s68, 5
    s_add_u32 s68, s68, s56
    s_mul_i32 s68, s68, 2176
    s_add_u32 s68, s68, {KVP}
    s_lshl_b32 s69, s58, 10
    s_add_u32 s69, s69, s68
    v_lshl_add_u32 v26, v1, 4, s69
    v_lshrrev_b32 v40, 4, v1
    v_and_b32 v40, 1, v40
    v_lshlrev_b32 v40, 3, v40       ; 8c
    v_and_b32 v41, 4, v1            ; 4*hh'
    v_add_u32 v40, v40, v41
    v_lshrrev_b32 v41, 2, v1
    v_and_b32 v41, 2, v41
    v_add_u32 v40, v40, v41
    v_lshrrev_b32 v41, 1, v1
    v_and_b32 v41, 1, v41
    v_add_u32 v40, v40, v41         ; zg
    s_add_u32 s68, s68, 2048
    v_lshl_add_u32 v27, v40, 3, s68
    s_lshl_b32 s68, s56, 1
    s_add_u32 s68, s68, s58
    s_lshl_b32 s68, s68, 5
    s_lshl_b32 s69, s57, 2
    s_add_u32 s68, s68, s69
    s_lshl_b32 s69, s59, 1
    s_add_u32 s68, s68, s69
    s_lshl_b32 s68, s68, 10
    s_add_u32 s68, s68, {PQ}
    v_lshl_add_u32 v28, v1, 4, s68
    v_and_b32 v40, 16, v1
    v_cmp_ne_u32 s[52:53], 0, v40
    s_sub_u32 s54, 0, s58
    s_mov_b32 s55, s54
    """)
    a.e(f"""
    s_cmp_lg_u32 s39, 3
    s_cbranch_scc1 L_b_nopt
    s_lshl_b32 s68, s56, 7
    s_add_u32 s68, s68, {PQF}
    v_mov_b32 v40, s68
    global_load_dword v21, v40, s[36:37] sc1
    """)
    a.vm.pop()
    a.label("L_b_nopt")
    for r in range(16):
        a.e(f"v_mov_b32 v{ACCQ+r}, s64")
    for r in range(16):
        a.e(f"v_mov_b32 v{ACCK+r}, s64")
    def frag_reads(g, k):
        L = []
        tag = f"f{g}_{k}"
        if g < 8:
            nx, nw = 2*g, 2*g+1
            hi, off = lds_base(nx)
            L.append((f"ds_read_b128 v[{XR+16*g+4*k}:{XR+16*g+4*k+3}], v{(12 if hi else 8)+k} offset:{off}", tag))
            d = WF + 16*(g % 2) + 4*k; n = nw; sstep = k
        else:
            n = 2*g + k//4; sstep = k % 4; d = WF + 4*k
        h2, o2 = lds_base(n)
        va = "v17" if h2 else "v16"
        L.append((f"ds_read_b64_tr_b16 v[{d}:{d+1}], {va} offset:{o2 + sstep*2048}", tag))
        L.append((f"ds_read_b64_tr_b16 v[{d+2}:{d+3}], {va} offset:{o2 + sstep*2048 + 512}", tag))
        return L
    def nsteps(g): return 4 if g < 8 else 8
    def emit_side(lst):
        for t in lst:
            if isinstance(t, str): a.e(t)
            elif t[0] == "WVM": a.wait_vm(t[1])
            else: a.e(t[0], vm=t[1])
    side = {}
    qe = phi_instrs(ACCQ, T16, ACCQ)
    qe += [(f"global_store_dwordx4 v28, v[{ACCQ}:{ACCQ+3}], s[36:37] sc1", "pqst"),
           (f"global_store_dwordx4 v28, v[{ACCQ+4}:{ACCQ+7}], s[36:37] offset:1024 sc1", "pqst")]
    gaps = [(g, k) for g in range(8, 12) for k in range(8)][1:cfg.qe_end]
    for gp, grp in zip(gaps, spread(qe, len(gaps))): side[gp] = grp
    ke = phi_instrs(ACCK, T16, ACCK, zsum=29)
    ke += ["v_mov_b32 v30, v29", "v_permlane32_swap_b32 v29, v30", "v_add_f32 v29, v29, v30"]
    gaps = [(g, k) for g in range(12, 16) for k in range(8)][1:31]
    for gp, grp in zip(gaps, spread(ke, len(gaps))): side[gp] = grp
    side[(9, 7)] = side.get((9, 7), []) + ["s_lshl_b32 s68, s56, 7", f"s_add_u32 s68, s68, {PQF}", "v_and_b32 v2, 7, v1", "v_lshl_add_u32 v2, v2, 2, s68"]
    rb = f"""
    s_mov_b32 s40, s36
    s_and_b32 s41, s37, 0xffff
    s_mov_b32 s42, {KVF + 65536}
    s_mov_b32 s43, 0x20000
    s_lshl_b32 s68, s56, 1
    s_add_u32 s68, s68, s58
    s_lshl_b32 s68, s68, 5
    s_lshl_b32 s69, s59, 4
    s_add_u32 s68, s68, s69
    s_lshl_b32 s68, s68, 10
    s_add_u32 s68, s68, {PQ}
    v_lshl_add_u32 v3, v1, 4, s68
    v_add_u32 v31, 8192, v3
    v_lshrrev_b32 v13, 7, v0
    v_mul_u32_u24 v13, {KVBLK}, v13
    v_and_b32 v20, 127, v0
    v_lshl_add_u32 v13, v20, 4, v13
    v_add_u32 v13, {KVF}, v13
    v_lshrrev_b32 v14, 3, v20
    v_mul_u32_u24 v14, {KVBLK}, v14
    v_and_b32 v21, 7, v0
    v_lshl_add_u32 v14, v21, 4, v14
    v_add_u32 v14, {KVF+2048}, v14
    v_lshrrev_b32 v15, 7, v0
    v_lshlrev_b32 v15, 1, v15
    v_bfe_u32 v21, v0, 4, 1
    v_add_u32 v15, v15, v21
    v_mul_u32_u24 v15, 544, v15
    v_bfe_u32 v21, v0, 5, 1
    v_mul_u32_u24 v21, 272, v21
    v_add_u32 v15, v15, v21
    v_and_b32 v21, 15, v0
    v_lshl_add_u32 v15, v21, 4, v15
    v_bfe_u32 v21, v0, 6, 1
    v_lshl_add_u32 v15, v21, 3, v15
    v_lshrrev_b32 v12, 3, v20
    v_lshlrev_b32 v12, 1, v12
    v_bfe_u32 v21, v0, 2, 1
    v_add_u32 v12, v12, v21
    v_mul_u32_u24 v12, 544, v12
    v_bfe_u32 v21, v0, 1, 1
    v_mul_u32_u24 v21, 272, v21
    v_add_u32 v12, v12, v21
    v_and_b32 v21, 1, v0
    v_lshl_add_u32 v12, v21, 3, v12
    v_add_u32 v12, 256, v12
    v_and_b32 v30, 15, v1
    v_mul_u32_u24 v30, {KVBLK}, v30
    v_add_u32 v30, {KVF+2048}, v30
    """.strip().split("\n")
    rb = [x.strip() for x in rb]
    rb += [f"s_mov_b32 s{8+i}, {1024*i}" for i in range(8)] + [f"s_mov_b32 s{16+k}, {2*KVBLK*k}" for k in range(8)]
    if not cfg.late_o:
        gaps = [(14, k) for k in range(5, 8)] + [(15, k) for k in range(8)]
        for gp, grp in zip(gaps, spread(rb, len(gaps))): side[gp] = side.get(gp, []) + grp

    def kv_publish():
        a.c("--- kv partial: V cvt, MFMA, select, pair exchange, publish")
        a.e("s_barrier")
        a.e("global_load_dword v21, v2, s[36:37] sc1", vm="pqf")
        for m in range(8):
            a.e(f"v_cvt_pk_bf16_f32 v{ACCV+m}, v{ACCV+2*m}, v{ACCV+2*m+1}")
        a.e(f"v_mfma_f32_32x32x16_bf16 v[{T16}:{T16+15}], v[{ACCK}:{ACCK+3}], v[{ACCV}:{ACCV+3}], 0")
        a.e(f"v_mfma_f32_32x32x16_bf16 v[{T16}:{T16+15}], v[{ACCK+4}:{ACCK+7}], v[{ACCV+4}:{ACCV+7}], v[{T16}:{T16+15}]")
        a.e("ds_write_b32 v24, v29", lg="xw")
        SEL = ACCK + 8; SND = ACCV + 8; KEEP = ACCV + 12
        for j in range(8): a.e(f"v_cndmask_b32 v{SEL+j}, v{T16+j}, v{T16+8+j}, s[52:53]")
        for j in range(4): a.e(f"v_cndmask_b32 v{SND+j}, v{SEL+4+j}, v{SEL+j}, s[54:55]")
        a.e(f"ds_write_b128 v22, v[{SND}:{SND+3}]", lg="xw")
        for j in range(4): a.e(f"v_cndmask_b32 v{KEEP+j}, v{SEL+j}, v{SEL+4+j}, s[54:55]")
        a.wait_lg("xw")
        a.e("s_barrier")
        a.e(f"ds_read_b128 v[{SEL}:{SEL+3}], v23", lg="xr")
        a.e(f"ds_read_b32 v30, v25", lg="xr")
        a.wait_lg("xr")
        a.wait_vm("pqf")
        a.e("v_cmp_ne_u32 s[66:67], s38, v21")
        for j in range(4): a.e(f"v_add_f32 v{KEEP+j}, v{KEEP+j}, v{SEL+j}")
        a.e(f"""
        v_add_f32 v29, v29, v30
        v_cvt_pk_bf16_f32 v{SEL}, v{KEEP}, v{KEEP+1}
        v_mov_b32 v{SEL+1}, s38
        v_cvt_pk_bf16_f32 v{SEL+2}, v{KEEP+2}, v{KEEP+3}
        v_mov_b32 v{SEL+3}, s38
        v_mov_b32_dpp v30, v29 quad_perm:[1,0,3,2] row_mask:0xf bank_mask:0xf
        global_store_dwordx4 v26, v[{SEL}:{SEL+3}], s[36:37] sc1
        v_cvt_pk_bf16_f32 v{SEL+4}, v29, v30
        v_mov_b32 v{SEL+5}, s38
        s_andn2_b64 exec, 0x55555555, s[54:55]
        s_cbranch_execz L_b_noz
        global_store_dwordx2 v27, v[{SEL+4}:{SEL+5}], s[36:37] sc1
        """)
        a.vm.pop()
        a.label("L_b_noz")
        a.e("s_mov_b64 exec, -1")
        stamp(a, cfg, 6)

    a.wait_vm(["slot0", "slot1"])
    a.e("s_barrier")
    stamp(a, cfg, 2)
    for k in range(4):
        for t, tag in frag_reads(0, k): a.e(t, lg=tag)
    nxt = cfg.ninit
    pend = []
    while nxt < NSLOT:
        pend += b_issue_jobs(nxt); nxt += 1
    for g in range(16):
        a.c(f"--- group {g}")
        if g == 13: poll_nonce(a, "v21", "v31", first_tag="nonce")
        if g == cfg.pqflag_g: a.wait_vm("pqst")
        if g < 15:
            a.wait_vm([f"slot{2*g+2}", f"slot{2*g+3}"])
        a.e("s_barrier")
        if g == cfg.pqflag_g:
            a.e("""
            s_cmp_lg_u32 s39, 3
            s_cbranch_scc1 L_b_noflag
            s_lshl_b32 s68, s56, 7
            s_lshl_b32 s69, s57, 2
            s_add_u32 s68, s68, s69
            s_add_u32 s68, s68, %d
            v_mov_b32 v20, s68
            v_mov_b32 v21, s38
            s_mov_b64 exec, 1
            global_store_dword v20, v21, s[36:37] sc1
            s_mov_b64 exec, -1
            """ % PQF)
            a.vm.pop()
            a.label("L_b_noflag")
        if g in (1, 8, 12): stamp(a, cfg, {1: 3, 8: 4, 12: 5}[g])
        jobs = list(pend); pend = []
        if g >= 1:
            for _ in range(2):
                if nxt < (32 if cfg.late_o else 40): jobs += b_issue_jobs(nxt); nxt += 1
        if g == 9:
            jobs.append([("global_load_dword v21, v31, s[34:35] sc1", "nonce")])
        ns = nsteps(g)
        jsp = spread(jobs, ns)
        for k in range(ns):
            if k % 2 == 0: a.wait_lg([f"f{g}_{k}", f"f{g}_{k+1}"])
            if g < 8:
                d = WF + 16*(g % 2) + 4*k
                a.e(f"v_mfma_f32_32x32x16_bf16 v[{ACCQ}:{ACCQ+15}], v[{d}:{d+3}], v[{XR+16*g+4*k}:{XR+16*g+4*k+3}], v[{ACCQ}:{ACCQ+15}]")
            elif g < 12:
                kk = (g - 8)*8 + k
                a.e(f"v_mfma_f32_32x32x16_bf16 v[{ACCK}:{ACCK+15}], v[{XR+4*kk}:{XR+4*kk+3}], v[{WF+4*k}:{WF+4*k+3}], v[{ACCK}:{ACCK+15}]")
            else:
                kk = (g - 12)*8 + k
                cc = "0" if (g == 12 and k == 0) else f"v[{ACCV}:{ACCV+15}]"
                a.e(f"v_mfma_f32_32x32x16_bf16 v[{ACCV}:{ACCV+15}], v[{XR+4*kk}:{XR+4*kk+3}], v[{WF+4*k}:{WF+4*k+3}], {cc}")
            jl = [list(jb) for jb in jsp[k]]
            if jl:
                while jl[0] and not jl[0][0][0].startswith(("buffer_load", "global_load")):
                    a.e(jl[0].pop(0)[0])
            if g < 15:
                nx = [k, 4 + k] if g == 7 else [k]
                for k2 in nx:
                    for t, tag in frag_reads(g + 1, k2): a.e(t, lg=tag)
            for jb in jl: emit_job(a, jb)
            emit_side(side.get((g, k), []))
    kv_publish()
    a.e("s_mov_b64 s[54:55], s[66:67]")
    def pq_first(sfx):
        for t in rb: a.e(t)
        a.e(f"""
        s_cmp_eq_u64 s[54:55], 0
        s_cbranch_scc1 L_b_pqf_go{sfx}
        s_mov_b32 s61, 0
        """)
        a.label(f"L_b_pqf_poll{sfx}")
        a.e(f"""
        global_load_dword v21, v2, s[36:37] sc1
        s_add_u32 s61, s61, 1
        s_waitcnt vmcnt(0)
        v_cmp_ne_u32 vcc, s38, v21
        s_cmp_gt_u32 s61, {SPIN_LIMIT}
        s_cbranch_scc1 L_b_pqf_go{sfx}
        s_cbranch_vccz L_b_pqf_go{sfx}
        s_branch L_b_pqf_poll{sfx}
        """)
        a.label(f"L_b_pqf_go{sfx}")
        for i in range(8):
            a.e(f"buffer_load_dwordx4 v[{32+4*i}:{35+4*i}], v3, s[40:43], s{8+i} offen sc1")
    a.e("""
    s_cmp_eq_u32 s39, 0
    s_cbranch_scc1 L_b_w0tail
    """)
    for n in range(32, 40):
        for jb in b_issue_jobs(n): emit_job(a, jb)
    a.e("""
    s_cmp_eq_u32 s39, 1
    s_cbranch_scc0 L_b_noshare
    v_subrev_u32 v22, 16384, v6
    v_subrev_u32 v23, 16384, v7
    """)
    for n in range(32, 40):
        c = SEQ[n][1]; pos = n % NSLOT
        a.e(f"s_mov_b32 m0, {pos*8192}")
        a.e(f"s_mov_b32 s61, {c*65536}")
        a.e(f"buffer_load_dwordx4 v22, s[48:51], s61 offen lds")
        a.e(f"buffer_load_dwordx4 v23, s[48:51], s61 offen offset:1024 lds")
    a.label("L_b_noshare")
    pq_first("a")
    a.e("s_waitcnt vmcnt(8)")
    a.e("s_branch L_b_tailjoin")
    a.label("L_b_w0tail")
    reducer(a, cfg)
    pq_first("b")
    a.label("L_b_tailjoin")
    a.vm = []; a.lg = []
    stamp(a, cfg, 7)
    if not cfg.do_B2:
        stamp(a, cfg, 8)
        stamps_out(a, cfg, 9)
        a.e("s_branch L_end")
        return
    role_B2(a, cfg)

def tag_check(a, regs_tags, acc="v20"):
    tt = 0
    for idx in range(8):
        s0, s1, s2 = (idx >> 2) & 1, (idx >> 1) & 1, idx & 1
        if s0 | (s1 ^ s2): tt |= 1 << idx
    first = True
    for r in regs_tags:
        if first:
            a.e(f"v_xor_b32 {acc}, s38, v{r}"); first = False
        else:
            a.e(f"v_bitop3_b32 {acc}, {acc}, v{r}, s38 bitop3:{hex(tt)}")
    a.e(f"v_cmp_ne_u32 vcc, 0, {acc}")

def reducer(a, cfg):
    def reduce_line(base, dst_addr, tagsok_label):
        S = 64; T = 68
        for k in range(4):
            r = base + 4*k
            for pidx in range(2):
                src = r + 2*pidx
                if k == 0:
                    a.e(f"v_lshlrev_b32 v{S+2*pidx}, 16, v{src}")
                    a.e(f"v_and_b32 v{S+1+2*pidx}, 0xffff0000, v{src}")
                else:
                    a.e(f"v_lshlrev_b32 v{T+2*pidx}, 16, v{src}")
                    a.e(f"v_and_b32 v{T+1+2*pidx}, 0xffff0000, v{src}")
                    a.e(f"v_add_f32 v{S+2*pidx}, v{S+2*pidx}, v{T+2*pidx}")
                    a.e(f"v_add_f32 v{S+1+2*pidx}, v{S+1+2*pidx}, v{T+1+2*pidx}")
        for j in range(4): a.e(f"v_add_f32_dpp v{S+j}, v{S+j}, v{S+j} row_ror:8 row_mask:0xf bank_mask:0xf")
        for j in range(4): a.e(f"v_mov_b32 v{T+j}, v{S+j}")
        for j in range(4): a.e(f"v_permlane16_swap_b32 v{S+j}, v{T+j}")
        for j in range(4): a.e(f"v_add_f32 v{S+j}, v{S+j}, v{T+j}")
        for j in range(4): a.e(f"v_mov_b32 v{T+j}, v{S+j}")
        for j in range(4): a.e(f"v_permlane32_swap_b32 v{S+j}, v{T+j}")
        for j in range(4): a.e(f"v_add_f32 v{S+j}, v{S+j}, v{T+j}")
        a.e(f"""
        v_cvt_pk_bf16_f32 v72, v{S}, v{S+1}
        v_mov_b32 v73, s38
        v_cvt_pk_bf16_f32 v74, v{S+2}, v{S+3}
        v_mov_b32 v75, s38
        s_mov_b64 exec, 0xff
        global_store_dwordx4 {dst_addr}, v[72:75], s[36:37] sc1
        s_mov_b64 exec, -1
        """)
    a.e(f"""
    s_lshr_b32 s66, s3, 4
    s_and_b32 s67, s3, 15
    s_mul_i32 s69, s66, {32*KVBLK}
    s_add_u32 s69, s69, {KVP}
    s_lshl_b32 s52, s67, 7
    s_add_u32 s68, s69, s52
    v_and_b32 v22, 7, v1
    v_lshlrev_b32 v22, 4, v22
    v_lshrrev_b32 v23, 3, v1
    v_mul_u32_u24 v23, {KVBLK}, v23
    v_add_u32 v23, v22, v23
    v_add_u32 v24, s68, v23
    v_add_u32 v25, {8*KVBLK}, v24
    v_add_u32 v26, {16*KVBLK}, v24
    v_add_u32 v27, {24*KVBLK}, v24
    s_add_u32 s68, s69, 2048
    v_add_u32 v8, s68, v23
    v_add_u32 v9, {8*KVBLK}, v8
    v_add_u32 v10, {16*KVBLK}, v8
    v_add_u32 v11, {24*KVBLK}, v8
    s_mul_i32 s69, s66, {KVBLK}
    s_add_u32 s69, s69, {KVF}
    s_add_u32 s68, s69, s52
    v_add_u32 v23, s68, v22
    s_add_u32 s68, s69, 2048
    v_add_u32 v29, s68, v22
    """)
    a.e("""
    s_mov_b32 s61, 0
    """)
    a.label("L_b_red_poll")
    a.e("""
    global_load_dwordx4 v[96:99], v24, s[36:37] sc1
    global_load_dwordx4 v[100:103], v25, s[36:37] sc1
    global_load_dwordx4 v[104:107], v26, s[36:37] sc1
    global_load_dwordx4 v[108:111], v27, s[36:37] sc1
    global_load_dwordx4 v[112:115], v8, s[36:37] sc1
    global_load_dwordx4 v[116:119], v9, s[36:37] sc1
    global_load_dwordx4 v[120:123], v10, s[36:37] sc1
    global_load_dwordx4 v[124:127], v11, s[36:37] sc1
    s_add_u32 s61, s61, 1
    s_waitcnt vmcnt(0)
    """)
    tag_check(a, [97+2*q for q in range(16)])
    a.e(f"""
    s_cmp_gt_u32 s61, {SPIN_LIMIT}
    s_cbranch_scc1 L_b_red_go
    s_cbranch_vccz L_b_red_go
    s_sleep {cfg.sl_red}
    s_branch L_b_red_poll
    """)
    a.label("L_b_red_go")
    a.e("""
    s_cmp_lg_u32 s67, 0
    s_cbranch_scc1 L_b_red_a
    """)
    reduce_line(112, "v29", None)
    a.label("L_b_red_a")
    reduce_line(96, "v23", None)
    stamp(a, cfg, 10)

def role_B2(a, cfg):
    WO = 128
    ACC = 96
    PQR = 32
    CN = [64, 80]
    KAF = [8, 12]
    OF = [4, 16]
    KA = 0
    PQL = 17408
    a.c("================= B2 =================")
    a.e("s_barrier")
    for i in range(16):
        for nt in range(2):
            d = WO + 8*i + 4*nt
            off = (i//4)*8192 + (i % 4)*2048
            a.e(f"ds_read_b64_tr_b16 v[{d}:{d+1}], v{18+nt} offset:{off}", lg="wo")
            a.e(f"ds_read_b64_tr_b16 v[{d+2}:{d+3}], v{18+nt} offset:{off+1024}", lg="wo")
    a.e("s_waitcnt lgkmcnt(0)")
    a.e("s_barrier")
    a.vm = []; a.lg = []
    stamp(a, cfg, 9)
    if cfg.zpoll:
        a.e("""
        s_mov_b32 s61, 0
        s_cmp_eq_u32 s39, 0
        s_cbranch_scc0 L_b_kz_go
        """)
        a.label("L_b_kz_poll")
        a.e(f"""
        buffer_load_dwordx4 v[96:99], v30, s[40:43], 0 offen sc1
        s_add_u32 s61, s61, 1
        s_waitcnt vmcnt(0)
        v_xor_b32 v20, s38, v97
        v_cmp_ne_u32 vcc, 0, v20
        s_cmp_gt_u32 s61, {SPIN_LIMIT}
        s_cbranch_scc1 L_b_kz_go
        s_cbranch_vccz L_b_kz_go
        s_sleep {cfg.sl_kz}
        s_branch L_b_kz_poll
        """)
        a.label("L_b_kz_go")
        stamp(a, cfg, 11)
        a.e("s_barrier")
    PB = 17408
    a.e(f"""
    v_and_b32 v24, 31, v1
    s_lshl_b32 s68, s58, 5
    v_add_u32 v24, s68, v24            ; token
    v_mul_u32_u24 v24, 272, v24
    v_lshrrev_b32 v25, 5, v1
    v_lshl_add_u32 v24, v25, 4, v24    ; + hh*16
    s_mul_i32 s68, s59, {64*272}
    s_add_u32 s68, s68, {PB}
    v_add_u32 v24, s68, v24
    v_lshrrev_b32 v26, 3, v0
    v_mul_u32_u24 v25, 272, v26
    v_and_b32 v27, 7, v0
    v_lshl_add_u32 v25, v27, 5, v25
    v_add_u32 v25, {PB}, v25
    s_lshl_b32 s68, s56, 6
    v_add_u32 v26, s68, v26
    v_lshlrev_b32 v26, 11, v26
    s_lshl_b32 s68, s57, 7
    s_add_u32 s68, s68, 1024
    v_lshl_add_u32 v26, v27, 4, v26
    v_add_u32 v26, s68, v26
    v_add_u32 v27, {32*2048}, v26
    v_and_b32 v22, 31, v1
    v_min_u32 v22, 16, v22
    v_lshlrev_b32 v22, 4, v22
    v_lshrrev_b32 v23, 5, v1
    v_mul_u32_u24 v23, 272, v23
    s_mul_i32 s68, s59, {16*544}
    v_add3_u32 v22, v22, v23, s68
    """)
    def ka_loads():
        for k in range(8):
            a.e(f"buffer_load_dwordx4 v[{64+4*k}:{67+4*k}], v13, s[40:43], s{16+k} offen sc1")
        a.e("buffer_load_dwordx4 v[96:99], v14, s[40:43], 0 offen sc1")
    a.e("s_mov_b32 s61, 0")
    a.e("s_branch L_b_kvf_first")
    a.label("L_b_kvf_poll")
    a.e(f"s_sleep {cfg.sl_ka}")
    a.label("L_b_kvf_first")
    ka_loads()
    a.e("s_waitcnt vmcnt(0)")
    a.label("L_b_ka_chk")
    a.e("s_add_u32 s61, s61, 1")
    tag_check(a, [65+2*q for q in range(18)])
    a.e(f"""
    s_cmp_gt_u32 s61, {SPIN_LIMIT}
    s_cbranch_scc1 L_b_kvf_go
    s_cbranch_vccnz L_b_kvf_poll
    """)
    a.label("L_b_kvf_go")
    stamp(a, cfg, 12)
    stampval(a, cfg, 8, "s61")
    a.vm = []
    for k in range(8):
        a.e(f"v_mov_b32 v{65+4*k}, v{66+4*k}")
        a.e(f"ds_write_b64 v15, v[{64+4*k}:{65+4*k}] offset:{KA + 2176*k}")
    a.e("v_mov_b32 v97, v98")
    a.e(f"ds_write_b64 v12, v[96:97] offset:{KA}")
    a.e(f"""
    s_waitcnt vmcnt(0) lgkmcnt(0)
    s_barrier
    """)
    a.vm = []; a.lg = []
    stamp(a, cfg, 13)
    def kaf_read(i):
        a.e(f"ds_read_b128 v[{KAF[i%2]}:{KAF[i%2]+3}], v22 offset:{KA + 544*i}", lg=f"ka{i}")
    def out_mfma(i):
        o = OF[i % 2]
        for nt in range(2):
            w = WO + 8*i + 4*nt
            cc = "0" if i == 0 else f"v[{ACC+16*nt}:{ACC+16*nt+15}]"
            a.e(f"v_mfma_f32_32x32x16_bf16 v[{ACC+16*nt}:{ACC+16*nt+15}], v[{w}:{w+3}], v[{o}:{o+3}], {cc}")
    def num_mfma(i):
        a.wait_lg(f"ka{i}")
        p = PQR + 4*(i % 8)
        if i >= 8: a.wait_vm(f"pq{i}")
        a.e(f"v_mfma_f32_32x32x16_bf16 v[{CN[i%2]}:{CN[i%2]+15}], v[{KAF[i%2]}:{KAF[i%2]+3}], v[{p}:{p+3}], 0")
        if i < 8:
            a.e(f"buffer_load_dwordx4 v[{p}:{p+3}], v31, s[40:43], s{8+i} offen sc1", vm=f"pq{i+8}")
    def out1(i, nt):
        o = OF[i % 2]
        w = WO + 8*i + 4*nt
        cc = "0" if i == 0 else f"v[{ACC+16*nt}:{ACC+16*nt+15}]"
        a.e(f"v_mfma_f32_32x32x16_bf16 v[{ACC+16*nt}:{ACC+16*nt+15}], v[{w}:{w+3}], v[{o}:{o+3}], {cc}")
    kaf_read(0); kaf_read(1)
    num_mfma(0)
    for i in range(16):
        if i + 1 < 16:
            num_mfma(i + 1)
        c = CN[i % 2]
        a.e(f"v_add_f32 v20, s64, v{c+8}")
        a.e(f"v_rcp_f32 v20, v20")
        if i + 2 < 16:
            kaf_read(i + 2)
        for jj in range(2): a.e(f"v_mul_f32 v{c+jj}, v{c+jj}, v20")
        if i >= 1: out1(i - 1, 0)
        for jj in range(2, 7): a.e(f"v_mul_f32 v{c+jj}, v{c+jj}, v20")
        if i >= 1: out1(i - 1, 1)
        a.e(f"v_mul_f32 v{c+7}, v{c+7}, v20")
        o = OF[i % 2]
        for m in range(4):
            a.e(f"v_cvt_pk_bf16_f32 v{o+m}, v{c+2*m}, v{c+2*m+1}")
    out1(15, 0); out1(15, 1)
    stamp(a, cfg, 14)
    a.e("""
    s_cmp_lg_u32 s3, 0
    s_cbranch_scc1 L_b_norst
    s_cmp_lg_u32 s39, 0
    s_cbranch_scc1 L_b_norst
    v_mov_b32 v20, 0
    s_mov_b64 exec, 1
    global_store_dword v20, v20, s[34:35] sc1
    s_mov_b64 exec, -1
    """)
    a.label("L_b_norst")
    a.vm = []
    for nt in range(2):
        for q in range(4):
            r = ACC + 16*nt + 4*q
            a.e(f"ds_write_b128 v24, v[{r}:{r+3}] offset:{nt*128 + q*32}")
    a.e("s_waitcnt lgkmcnt(0)")
    a.e("s_barrier")
    for r in range(2):
        o = r*32*272
        a.e(f"ds_read_b128 v[{32+16*r}:{35+16*r}], v25 offset:{o}")
        a.e(f"ds_read_b128 v[{40+16*r}:{43+16*r}], v25 offset:{o+64*272}")
        a.e(f"ds_read_b128 v[{36+16*r}:{39+16*r}], v25 offset:{o+16}")
        a.e(f"ds_read_b128 v[{44+16*r}:{47+16*r}], v25 offset:{o+64*272+16}")
    for r in range(2):
        a.e(f"s_waitcnt lgkmcnt({4 if r == 0 else 0})")
        b = 32 + 16*r
        for jj in range(8):
            a.e(f"v_add_f32 v{b+jj}, v{b+jj}, v{b+8+jj}")
        for m in range(4):
            a.e(f"v_cvt_pk_bf16_f32 v{64+4*r+m}, v{b+2*m}, v{b+2*m+1}")
        a.e(f"global_store_dwordx4 v{26+r}, v[{64+4*r}:{67+4*r}], s[32:33] {cfg.outfl}")
    stamps_out(a, cfg, 15)

TV = 240
def a_touch_setup(a, cfg):
    a.e(f"""
    s_lshr_b32 s62, s40, 1          ; tg
    s_and_b32 s63, s40, 1           ; hg
    s_lshl_b32 s64, s62, 9
    s_lshl_b32 s65, s41, 4          ; 16*jj
    s_add_u32 s64, s64, s65
    v_and_b32 v246, 15, v1
    v_lshrrev_b32 v247, 4, v1       ; 0..3
    v_add_u32 v241, s64, v246
    v_lshlrev_b32 v241, 10, v241
    v_lshl_add_u32 v241, v247, 7, v241
    v_add_u32 v241, 512, v241
    v_and_b32 v248, 3, v1
    v_lshlrev_b32 v248, 7, v248     ; line*128
    s_lshl_b32 s66, s63, 9          ; hg*512
    v_lshrrev_b32 v249, 2, v1
    v_add_u32 v240, s65, v249       ; 16jj + (l>>2)
    v_mul_u32_u24 v242, 3072, v240
    v_add3_u32 v242, v242, v248, s66
    v_add_u32 v244, 2048, v242      ; V
    v_lshlrev_b32 v245, 10, v240
    v_add3_u32 v245, v245, v248, s66
    v_and_b32 v249, 7, v249
    s_lshl_b32 s67, s41, 3
    s_add_u32 s67, s67, 256
    v_add_u32 v249, s67, v249
    v_mul_u32_u24 v243, 3072, v249
    v_add3_u32 v243, v243, v248, s66
    v_add_u32 v240, 1024, v242
    """)

def a_touch(a, cfg, plan):
    fl = cfg.touch_flags
    info = {"x1": (241, "s[26:27]"), "q47": (243, "s[28:29]"), "k": (240, "s[28:29]"), "v": (244, "s[28:29]"), "o": (245, "s[30:31]")}
    for w, names in plan.items():
        L = a.newlabel("tch")
        a.e(f"s_cmp_eq_u32 s39, {w}")
        a.e(f"s_cbranch_scc0 {L}")
        for i, nm in enumerate(names):
            v, base = info[nm]
            a.e(f"global_load_dword v{250+i}, v{v}, {base} {fl}")
            a.vm.pop()
        a.label(L)

def role_A(a, cfg):
    a.label("L_roleA")
    a.e("""
    s_and_b32 s40, s3, 7
    s_lshr_b32 s41, s3, 3           ; j
    s_waitcnt lgkmcnt(0)
    """)
    if not cfg.do_A:
        if cfg.touch:
            a_touch_setup(a, cfg)
            a_touch(a, cfg, {2: ["x1"], 3: ["q47"]})
            a.e("s_waitcnt vmcnt(0)")
            a_touch(a, cfg, {1: ["k"], 2: ["v"], 3: ["o"]})
            a.e("s_waitcnt vmcnt(0)")
        a.e("s_branch L_end")
        return
    import role_a
    role_a.role_A(a, cfg)

def build(cfg):
    global DMAFL
    DMAFL = cfg.dmafl
    a = Asm()
    prologue(a, cfg)
    if cfg.do_B:
        role_B(a, cfg)
    a.e("s_branch L_end")
    a.vm = []
    role_A(a, cfg)
    a.label("L_end")
    a.e("s_endpgm")
    body = a.render()
    return body, a

HEADER = open("concat_heads__ssm_conv_s4__linear_attn_block__prompt.s.ref").read().split("; Override launch")[0]

def generate(path, cfg):
    body, a = build(cfg)
    txt = wrap(body, HEADER, 512, 256, 81920)
    open(path, "w").write(txt)
    return a

if __name__ == "__main__":
    sys.modules["kern"] = sys.modules["__main__"]
    cfg = Cfg()
    cfg.stamps = True
    if len(sys.argv) > 2:
        for kv in sys.argv[2:]:
            k, v = kv.split("=")
            setattr(cfg, k, int(v) if v.isdigit() else v)
    a = generate(sys.argv[1] if len(sys.argv) > 1 else "k_b1.s", cfg)
    print("nops inserted:", a.nnops)
```

```python
from asmlib import Asm
import kern as K

UT, YT = K.UT, K.YT
UTF, YTF = K.UTF, K.YTF
TILE = 3088
SPIN = K.SPIN_LIMIT
ROWB = 528
TB = [12288, 45056]
KC = [0, 1536]
NONCE_LDS = 3072
KD = [3088, 7200]
CP = [12288, 12288 + 16640]
UR = [45568, 45568 + 7600]
YP = 0
ROWS = list(range(8)) + [128+k for k in range(8)] + [256+2*k for k in range(4)] + [384+2*k for k in range(4)] + \
       [512, 516, 640, 644, 768, 772, 896, 900] + [1024+128*k for k in range(8)] + [2048]
assert len(ROWS) == 41

def fhex(x):
    import struct
    return hex(struct.unpack("<I", struct.pack("<f", x))[0])

USE_PK = False
def cmul(a, d, x, y, t):
    if USE_PK:
        a.e(f"v_pk_mul_f32 v[{t}:{t+1}], v[{x}:{x+1}], v[{y}:{y+1}] op_sel_hi:[1,0]")
        a.e(f"v_pk_fma_f32 v[{d}:{d+1}], v[{x}:{x+1}], v[{y}:{y+1}], v[{t}:{t+1}] op_sel:[1,1,0] op_sel_hi:[0,1,1] neg_lo:[1,0,0]")
    else:
        assert d not in (x, y)
        a.e(f"v_mul_f32 v{t}, v{x}, v{y}")
        a.e(f"v_mul_f32 v{t+1}, v{x+1}, v{y}")
        a.e(f"v_fma_f32 v{d}, -v{x+1}, v{y+1}, v{t}")
        a.e(f"v_fma_f32 v{d+1}, v{x}, v{y+1}, v{t+1}")

def poll_tags_loop(a, name, loads, tagregs):
    a.e("s_mov_b32 s61, 0")
    a.label(f"L_{name}_poll")
    for l in loads: a.e(l)
    a.e("s_add_u32 s61, s61, 1")
    a.e("s_waitcnt vmcnt(0)")
    K.tag_check(a, tagregs, acc="v9")
    a.e(f"""
    s_cmp_gt_u32 s61, {SPIN}
    s_cbranch_scc1 L_{name}_go
    s_cbranch_vccz L_{name}_go
    s_sleep 1
    s_branch L_{name}_poll
    """)
    a.label(f"L_{name}_go")
    a.vm = []


(A_TW, A_TR, A_UT0, A_UT1, A_TB, A_KM, A_C0, A_C1A, A_C1B, A_C2, A_DW, A_ER0, A_ER1, A_ZU, A_ZC, A_ZG,
 A_CR, A_CW, A_UG, A_UL, A_FU, A_FY, A_FUS, A_FYS, A_VA, A_VB, A_PW, A_OR, A_YG, A_YL, A_OUT) = (
 160, 161, 162, 163, 164, 168, 172, 173, 174, 175, 176, 177, 178, 179, 180, 181,
 182, 183, 184, 185, 186, 187, 188, 189, 190, 191, 192, 193, 194, 195, 199)

def role_A(a, cfg):
    global USE_PK
    USE_PK = cfg.pk
    st = lambda i: K.stamp(a, cfg, i)
    a.c("================= role A =================")
    if cfg.prioA and not cfg.late_prio: a.e(f"s_setprio {cfg.prioA}")
    a.e("""
    s_lshr_b32 s47, s39, 1
    s_and_b32 s48, s39, 1           ; w2
    s_lshl_b32 s49, s40, 6          ; 64 g
    s_lshl_b32 s50, s41, 1
    s_add_u32 s50, s50, s49         ; d0 = 64g + 2j
    s_add_u32 s51, s50, s47
    s_lshl_b32 s51, s51, 8
    v_and_b32 v2, 127, v0           ; n
    v_lshl_add_u32 v5, v2, 1, s51
    v_lshrrev_b32 v3, 4, v0         ; r''
    v_and_b32 v4, 15, v0            ; c8
    s_lshl_b32 s52, s41, 6
    v_lshl_add_u32 v6, v3, 2, s52   ; t0 = 64j + 4r''
    v_lshlrev_b32 v6, 10, v6
    s_lshl_b32 s53, s49, 1
    v_lshl_add_u32 v7, v4, 3, s53
    v_add_u32 v6, v6, v7            ; u offset
    s_lshl_b32 s45, s40, 2
    s_add_u32 s45, s45, 4
    v_mov_b32 v8, s45
    s_waitcnt lgkmcnt(0)
    """)
    st(1)
    a.e("""
    v_mov_b32 v202, v6
    v_mov_b32 v203, v7
    global_load_ushort v10, v5, s[10:11]
    global_load_ushort v11, v5, s[12:13]
    global_load_ushort v12, v5, s[14:15]
    global_load_ushort v13, v5, s[16:17]
    global_load_ushort v14, v5, s[18:19]
    global_load_ushort v15, v5, s[20:21]
    s_lshl_b32 s54, s50, 1
    s_add_u32 s54, s22, s54
    s_addc_u32 s55, s23, 0
    s_load_dword s56, s[54:55], 0
    s_cmp_lg_u32 s41, 0
    s_cbranch_scc1 L_a_nopub
    s_cmp_lg_u32 s39, 0
    s_cbranch_scc1 L_a_nopub
    s_memrealtime s[58:59]
    s_waitcnt lgkmcnt(0)
    s_or_b32 s58, s58, 8
    v_mov_b32 v9, s58
    s_mov_b64 exec, 1
    global_store_dword v8, v9, s[34:35] sc1
    s_mov_b64 exec, -1
    """)
    a.label("L_a_nopub")
    a.vm = []
    a.e(f"""
    v_and_b32 v26, 15, v1
    v_lshrrev_b32 v27, 4, v1
    v_bfe_u32 v28, v1, 2, 2
    v_and_b32 v29, 3, v1
    v_and_b32 v30, 31, v1
    v_lshrrev_b32 v31, 5, v1
    v_lshlrev_b32 v32, 2, v4
    v_mul_u32_u24 v32, 144, v32
    v_lshlrev_b32 v33, 3, v3
    v_sub_u32 v33, 120, v33
    v_add_u32 v32, v32, v33
    v_add_u32 v{A_TW}, {TILE}, v32
    v_lshrrev_b32 v32, 3, v1
    s_lshl_b32 s57, s39, 5
    v_add_u32 v32, s57, v32
    v_mul_u32_u24 v33, 144, v32
    v_and_b32 v34, 7, v1
    v_lshl_add_u32 v33, v34, 4, v33
    v_add_u32 v{A_TR}, {TILE}, v33
    v_add_u32 v32, s49, v32
    v_lshlrev_b32 v32, 12, v32
    v_lshl_add_u32 v32, v34, 4, v32
    s_sub_u32 s57, 31, s41
    s_lshl_b32 s57, s57, 7
    s_add_u32 s57, s57, {UT}
    v_add_u32 v{A_UT0}, s57, v32
    v_add_u32 v{A_UT1}, 32768, v{A_UT0}
    v_add_u32 v200, 65536, v{A_UT0}
    v_add_u32 v201, 98304, v{A_UT0}
    v_lshl_add_u32 v32, v27, 3, v28
    s_lshl_b32 s59, s47, 15
    s_add_u32 s59, s59, {TB[0]}
    v_and_b32 v33, 1, v2
    v_bfe_u32 v34, v2, 2, 1
    v_lshl_add_u32 v33, v34, 1, v33
    v_lshl_add_u32 v34, v2, 8, s59
    """)
    for cp in range(4):
        a.e(f"v_xor_b32 v35, {cp}, v33")
        a.e(f"v_lshl_add_u32 v{A_TB+cp}, v35, 5, v34")
    a.e(f"""
    v_lshlrev_b32 v34, 7, v32
    v_lshl_add_u32 v34, v29, 3, v34
    v_add_u32 v34, s59, v34
    v_lshrrev_b32 v33, 1, v28
    v_and_b32 v35, 1, v27
    v_lshl_add_u32 v33, v35, 1, v33
    """)
    for t in range(4):
        a.e(f"v_xor_b32 v35, {t}, v33")
        a.e(f"v_lshl_add_u32 v{A_KM+t}, v35, 5, v34")
    a.e(f"""
    s_mul_i32 s59, s47, {KC[1]-KC[0]}
    s_add_u32 s59, s59, {KC[0]}
    v_lshrrev_b32 v33, 1, v27
    v_lshlrev_b32 v33, 7, v33
    v_lshl_add_u32 v33, v26, 3, v33
    v_and_b32 v34, 1, v27
    v_lshl_add_u32 v33, v34, 2, v33
    v_lshl_add_u32 v{A_C0}, v33, 1, s59          ; tile 0
    v_lshlrev_b32 v33, 6, v27
    v_cmp_gt_u32 vcc, 2, v27
    v_lshlrev_b32 v34, 2, v26
    v_lshlrev_b32 v35, 1, v26
    v_cndmask_b32 v34, v35, v34, vcc
    v_add_u32 v33, v33, v34
    v_add_u32 v33, 256, v33
    v_mov_b32 v34, 32
    v_mov_b32 v35, 2
    v_cndmask_b32 v34, v34, v35, vcc
    v_add_u32 v34, v33, v34
    v_lshl_add_u32 v{A_C1A}, v33, 1, s59
    v_lshl_add_u32 v{A_C1B}, v34, 1, s59
    v_lshl_add_u32 v33, v27, 6, v26
    v_add_u32 v33, 512, v33
    v_lshl_add_u32 v{A_C2}, v33, 1, s59          ; tile 2
    v_lshlrev_b32 v33, 4, v0
    v_add_u32 v{A_DW}, 16, v33
    v_mov_b32 v{A_ER0}, v33
    v_lshlrev_b32 v34, 3, v0
    v_add_u32 v{A_ER1}, 256, v34
    s_cmp_eq_u32 s39, 1
    s_cbranch_scc0 L_a_ad1
    v_lshlrev_b32 v34, 2, v0
    v_add_u32 v{A_ER0}, 512, v34
    """)
    a.label("L_a_ad1")
    a.e(f"""
    s_cmp_ge_u32 s39, 2
    s_cbranch_scc0 L_a_ad2
    v_add_u32 v34, 384, v0
    v_lshlrev_b32 v{A_ER0}, 1, v34
    """)
    a.label("L_a_ad2")
    a.e(f"""
    v_mov_b32 v{A_ZU}, v33
    v_lshrrev_b32 v34, 2, v0
    v_mul_u32_u24 v34, 4160, v34
    v_and_b32 v35, 3, v0
    v_lshl_add_u32 v{A_ZC}, v35, 4, v34
    v_mul_u32_u24 v34, {KD[1]-KD[0]}, v0
    v_add_u32 v{A_ZG}, {KD[0]}, v34
    ; copies
    v_mov_b32 v{A_CR}, v33
    v_add_u32 v{A_CW}, 64, v33
    v_lshrrev_b32 v34, 7, v0                     ; cch
    v_add_u32 v35, s50, v34
    v_lshlrev_b32 v35, 12, v35
    v_lshl_add_u32 v35, v2, 4, v35
    v_add_u32 v{A_UG}, {UT}, v35
    v_lshrrev_b32 v35, 2, v2
    v_mul_u32_u24 v35, 80, v35
    v_and_b32 v36, 3, v2
    v_lshl_add_u32 v35, v36, 4, v35
    v_mul_u32_u24 v34, {UR[1]-UR[0]}, v34
    v_add_u32 v{A_UL}, v35, v34
    v_lshrrev_b32 v34, 3, v1
    v_lshlrev_b32 v34, 7, v34
    v_and_b32 v35, 7, v1
    v_lshl_add_u32 v34, v35, 2, v34
    s_lshl_b32 s58, s40, 10
    s_add_u32 s58, s58, {UTF}
    v_add_u32 v{A_FU}, s58, v34
    v_lshrrev_b32 v34, 3, v30
    v_lshlrev_b32 v34, 7, v34
    v_lshl_add_u32 v34, v35, 2, v34
    s_lshl_b32 s58, s40, 9
    s_add_u32 s58, s58, {YTF}
    v_add_u32 v{A_FY}, s58, v34
    s_lshl_b32 s57, s41, 1
    s_add_u32 s57, s57, s48
    s_lshr_b32 s59, s57, 3
    s_lshl_b32 s59, s59, 7
    s_and_b32 s57, s57, 7
    s_lshl_b32 s57, s57, 2
    s_add_u32 s57, s57, s59
    s_lshl_b32 s59, s40, 10
    s_add_u32 s57, s57, s59
    s_add_u32 s57, s57, {UTF}
    v_mov_b32 v{A_FUS}, s57
    s_lshr_b32 s59, s41, 3
    s_lshl_b32 s59, s59, 7
    s_and_b32 s57, s41, 7
    s_lshl_b32 s57, s57, 2
    s_add_u32 s57, s57, s59
    s_add_u32 s57, s57, s58
    v_mov_b32 v{A_FYS}, s57
    ; conv A: copy cc = (3 - i) & 3 ; CP[c] + cc*4160 + 2*(i + cc + 9 - 8hh) + w2*1024
    v_sub_u32 v34, 3, v30
    v_and_b32 v34, 3, v34
    v_mul_u32_u24 v35, 4160, v34
    v_add_u32 v36, v30, v34
    v_add_u32 v36, 9, v36
    v_lshlrev_b32 v37, 3, v31
    v_sub_u32 v36, v36, v37
    v_lshl_add_u32 v35, v36, 1, v35
    s_mul_i32 s57, s47, {CP[1]-CP[0]}
    s_lshl_b32 s58, s48, 10
    s_add_u32 s57, s57, s58
    s_add_u32 s57, s57, {CP[0]}
    v_add_u32 v{A_VA}, s57, v35
    ; conv B: UR[c] + (31 - a)*80 + 16 - 16hh + w2*1280
    v_sub_u32 v35, 31, v30
    v_mul_u32_u24 v35, 80, v35
    v_lshlrev_b32 v36, 4, v31
    v_sub_u32 v35, v35, v36
    v_add_u32 v35, 16, v35
    s_mul_i32 s57, s47, {UR[1]-UR[0]}
    s_mul_i32 s58, s48, {16*80}
    s_add_u32 s57, s57, s58
    s_add_u32 s57, s57, {UR[0]}
    v_add_u32 v{A_VB}, s57, v35
    v_mul_u32_u24 v35, 144, v30
    v_lshl_add_u32 v35, v31, 4, v35
    s_mul_i32 s57, s39, {64*144}
    v_add_u32 v{A_PW}, s57, v35
    v_lshrrev_b32 v35, 2, v0
    v_mul_u32_u24 v35, 144, v35
    v_and_b32 v36, 3, v0
    v_lshl_add_u32 v{A_OR}, v36, 5, v35
    s_lshl_b32 s57, s50, 12
    s_add_u32 s57, s57, {YT}
    v_lshl_add_u32 v{A_YG}, v0, 4, s57
    v_lshlrev_b32 v35, 2, v4
    v_add_u32 v35, s49, v35
    v_lshlrev_b32 v35, 12, v35
    v_lshl_add_u32 v35, v3, 3, v35
    s_lshl_b32 s59, s41, 7
    s_add_u32 s59, s59, {YT}
    v_add_u32 v{A_YL}, s59, v35
    v_add_u32 v{A_YL+1}, 4096, v{A_YL}
    v_add_u32 v{A_YL+2}, 8192, v{A_YL}
    v_add_u32 v{A_YL+3}, 12288, v{A_YL}
    v_lshlrev_b32 v35, 1, v6
    v_sub_u32 v{A_OUT}, v35, v7
    """)
    if cfg.touch:
        K.a_touch_setup(a, cfg)
    a.e("s_waitcnt vmcnt(0) lgkmcnt(0)")
    st(2)
    if cfg.prioA and cfg.late_prio: a.e(f"s_setprio {cfg.prioA}")
    if cfg.x_exit == "params":
        K.stamps_out(a, cfg, 14)
        a.e("s_branch L_end")
    a.e(f"""
    global_load_dwordx2 v[16:17], v202, s[8:9] {cfg.aldfl}
    global_load_dwordx2 v[18:19], v202, s[8:9] offset:1024 {cfg.aldfl}
    global_load_dwordx2 v[20:21], v202, s[8:9] offset:2048 {cfg.aldfl}
    global_load_dwordx2 v[22:23], v202, s[8:9] offset:3072 {cfg.aldfl}
    global_load_dwordx2 v[24:25], v203, s[24:25]
    """)
    nt2 = 0; nt3 = 0
    if cfg.uttouch:
        a.e(f"""
        s_cmp_lg_u32 s39, 2
        s_cbranch_scc1 L_a_nout0
        v_add_u32 v26, s49, v1
        v_lshlrev_b32 v26, 12, v26
        s_sub_u32 s57, 31, s41
        s_lshl_b32 s57, s57, 7
        s_add_u32 s57, s57, {UT}
        v_add_u32 v26, s57, v26
        global_load_dword v255, v26, s[36:37]
        """)
        a.label("L_a_nout0")
    a.e(f"""
    s_cmp_eq_u32 s39, 3
    s_cbranch_scc0 L_a_nopt
    global_load_dword v253, v{A_FU}, s[36:37] sc1
    global_load_dword v254, v{A_FY}, s[36:37] sc1
    """)
    a.label("L_a_nopt")
    nt3 += 2
    if cfg.touch:
        K.a_touch(a, cfg, {2: ["x1"], 3: ["q47"]})
        nt2 += 1; nt3 += 1
    a.vm = []
    def a1_write():
        a.e(f"""
        s_cmp_eq_u32 s39, 2
        s_cbranch_scc1 L_a_uw2
        s_cmp_eq_u32 s39, 3
        s_cbranch_scc1 L_a_uw3
        s_waitcnt vmcnt(0)
        s_branch L_a_uwd
        """)
        a.label("L_a_uw2")
        a.e(f"s_waitcnt vmcnt({nt2})")
        a.e("s_branch L_a_uwd")
        a.label("L_a_uw3")
        a.e(f"s_waitcnt vmcnt({nt3})")
        a.label("L_a_uwd")
        a.e("""
        s_mov_b32 s57, 0x05040100
        s_mov_b32 s58, 0x07060302
        """)
        for e in range(4):
            sel = "s57" if e % 2 == 0 else "s58"
            h = e // 2
            a.e(f"v_perm_b32 v{32+2*e}, v{20+h}, v{22+h}, {sel}")
            a.e(f"v_perm_b32 v{33+2*e}, v{16+h}, v{18+h}, {sel}")
            a.e(f"ds_write_b64 v{A_TW}, v[{32+2*e}:{33+2*e}] offset:{e*144}")
    def a1_store():
        a.e("""
        s_cmp_ge_u32 s39, 2
        s_cbranch_scc1 L_a_nout
        """)
        for i in range(4):
            a.e(f"ds_read_b128 v[{224+4*i}:{227+4*i}], v{A_TR} offset:{i*8*144}")
        UTA = [A_UT0, A_UT1, 200, 201]
        for i in range(4):
            a.e(f"s_waitcnt lgkmcnt({3-i})")
            a.e(f"global_store_dwordx4 v{UTA[i]}, v[{224+4*i}:{227+4*i}], s[36:37] {cfg.locfl}")
        a.e("global_load_dword v9, v8, s[34:35] sc1")
        a.label("L_a_nout")
        a.vm = []
    def ut_flag():
        a.e(f"""
        s_cmp_ge_u32 s39, 2
        s_cbranch_scc1 L_a_nofl
        s_mov_b32 s61, 0
        """)
        if cfg.dbgN: st(4)
        a.e(f"""
        s_waitcnt vmcnt(0)
        """)
        if cfg.dbgN: st(7)
        a.e(f"""
        v_readfirstlane_b32 s38, v9
        s_cmp_lg_u32 s38, 0
        s_cbranch_scc1 L_a_nok
        """)
        a.label("L_a_npoll")
        a.e(f"""
        global_load_dword v9, v8, s[34:35] sc1
        s_waitcnt vmcnt(0)
        v_readfirstlane_b32 s38, v9
        s_add_u32 s61, s61, 1
        s_cmp_gt_u32 s61, {SPIN}
        s_cbranch_scc1 L_a_nok
        s_cmp_eq_u32 s38, 0
        s_cbranch_scc1 L_a_npoll
        """)
        a.label("L_a_nok")
        if cfg.dbgN:
            st(5); K.stampval(a, cfg, 6, "s61")
        a.e(f"""
        s_getreg_b32 s57, hwreg(HW_REG_XCC_ID)
        s_and_b32 s57, s57, 7
        s_and_b32 s58, s38, 0xfffffff8
        s_or_b32 s57, s57, s58
        v_mov_b32 v9, s57
        s_mov_b64 exec, 1
        global_store_dword v{A_FUS}, v9, s[36:37]
        s_mov_b64 exec, -1
        """)
        a.label("L_a_nofl")
        a.vm = []

    def gate():
        a.e(f"""
        s_cmp_lg_u32 s39, 3
        s_cbranch_scc1 L_a_gate_go
        s_lshl_b32 s57, s40, 8
        s_lshl_b32 s58, s41, 2
        s_add_u32 s57, s57, s58
        s_add_u32 s57, s57, {K.BDN}
        v_mov_b32 v28, s57
        v_mov_b32 v29, 0
        s_mov_b32 s61, 0
        """)
        a.label("L_a_gate_poll")
        a.e(f"""
        global_load_dword v30, v28, s[36:37] sc1
        global_load_dword v31, v29, s[34:35] sc1
        s_add_u32 s61, s61, 1
        s_waitcnt vmcnt(0)
        v_cmp_ne_u32 vcc, v30, v31
        v_cmp_eq_u32 s[64:65], 0, v31
        s_or_b64 vcc, vcc, s[64:65]
        s_cmp_gt_u32 s61, {cfg.gate_max}
        s_cbranch_scc1 L_a_gate_go
        s_cbranch_vccz L_a_gate_go
        s_sleep 2
        s_branch L_a_gate_poll
        """)
        a.label("L_a_gate_go")
        a.e("s_barrier")
    LOG2E = fhex(1.4426950408889634); INV2PI = fhex(0.15915494309189535)
    a.e(f"""
    s_lshr_b32 s59, s56, 16
    s_and_b32 s60, s56, 0xffff
    s_cmp_eq_u32 s47, 0
    s_cselect_b32 s59, s60, s59
    s_lshl_b32 s59, s59, 16
    v_mov_b32 v28, s59
    v_mul_f32 v29, {LOG2E}, v28
    v_mov_b32 v30, {LOG2E}
    v_fma_f32 v30, v28, v30, -v29
    v_fmac_f32 v30, 0x32a57060, v28
    v_exp_f32 v29, v29
    v_mul_f32 v30, {fhex(0.6931471805599453)}, v30
    v_fma_f32 v29, v29, v30, v29
    v_cvt_pk_bf16_f32 v29, v29, v29
    v_lshlrev_b32 v29, 16, v29
    """)
    for i in range(6): a.e(f"v_lshlrev_b32 v{10+i}, 16, v{10+i}")
    a.e(f"""
    v_mul_f32 v10, v29, v10          ; a_re
    v_mul_f32 v11, v29, v11          ; a_im
    v_mul_f32 v12, v29, v12          ; dB_re
    v_mul_f32 v13, v29, v13          ; dB_im
    v_mul_f32 v10, {LOG2E}, v10      ; ar2
    v_mul_f32 v11, {INV2PI}, v11     ; ai2
    """)
    P = {}
    nxtp = [50]
    def pair(name):
        P[name] = nxtp[0]; nxtp[0] += 2
        return P[name]
    TMP = [28, 30]
    ti = [0]
    def mul(dn, xn, yn):
        d = P.get(dn) or pair(dn)
        t = TMP[ti[0] % 2]; ti[0] += 1
        if cfg.x_tab and ti[0] % 2 == 0: return
        cmul(a, d, P[xn], P[yn], t)
    pair("X0"); cmul(a, P["X0"], 14, 12, 28)
    for x in (1, 8, 128, 256, 512, 1024):
        d = pair(f"E{x}")
        if x == 1:
            a.e(f"v_exp_f32 v6, v10")
            a.e(f"v_fract_f32 v7, v11")
        else:
            a.e(f"v_mul_f32 v6, {fhex(float(x))}, v10")
            a.e(f"v_mul_f32 v7, {fhex(float(x))}, v11")
            a.e(f"v_exp_f32 v6, v6")
            a.e(f"v_fract_f32 v7, v7")
        a.e(f"v_cos_f32 v26, v7")
        a.e(f"v_sin_f32 v27, v7")
        a.e(f"v_mul_f32 v{d}, v6, v26")
        a.e(f"v_mul_f32 v{d+1}, v6, v27")
    if cfg.dbgT: st(4)
    OUT = [120, 128]
    oc = [0]
    def put_chunk(q, names, neg):
        o = OUT[oc[0] % 2]; oc[0] += 1
        sg = "-" if neg else ""
        for m in range(4):
            x, y = P[names[2*m]], P[names[2*m+1]]
            a.e(f"v_cvt_pk_bf16_f32 v{o+m}, v{x}, v{y}")
            a.e(f"v_cvt_pk_bf16_f32 v{o+4+m}, {sg}v{x+1}, {sg}v{y+1}")
        ad = A_TB + (q >> 1)
        a.e(f"ds_write_b128 v{ad}, v[{o}:{o+3}] offset:{(q & 1)*16}")
        a.e(f"ds_write_b128 v{ad}, v[{o+4}:{o+7}] offset:{128 + (q & 1)*16}")
    pair("ONE")
    a.e(f"v_mov_b32 v{P['ONE']}, 1.0")
    a.e(f"v_mov_b32 v{P['ONE']+1}, 0")
    for k in range(8): pair(f"S{k}")
    for k in range(1, 8):
        mul(f"X{k}", f"X{k-1}", "E1")
    put_chunk(0, [f"X{k}" for k in range(8)], True)
    P["Y8"] = P["E8"]
    mul("Y16", "Y8", "Y8"); mul("Y24", "Y16", "Y8"); mul("Y32", "Y16", "Y16")
    mul("Y40", "Y32", "Y8"); mul("Y48", "Y32", "Y16"); mul("Y56", "Y32", "Y24")
    put_chunk(6, ["ONE", "Y8", "Y16", "Y24", "Y32", "Y40", "Y48", "Y56"], False)
    if cfg.dbgT: st(6)
    mul("S0", "Y32", "Y32")
    for jj in range(1, 8): mul(f"S{jj}", "S0", f"Y{8*jj}")
    put_chunk(7, [f"S{k}" for k in range(8)], False)
    for k in range(8): mul(f"S{k}", f"X{k}", "E128")
    put_chunk(1, [f"S{k}" for k in range(8)], True)
    if cfg.mid_u:
        a1_write()
        a.e("s_waitcnt lgkmcnt(0)")
        a.e("s_barrier")
        a1_store()
    for i_, k in enumerate((0, 2, 4, 6)):
        mul(f"S{i_}", f"X{k}", "E256")
    for i_ in range(4):
        mul(f"S{4+i_}", f"S{i_}", "E128")
    put_chunk(2, [f"S{k}" for k in range(8)], True)
    mul("S0", "X0", "E512"); mul("S1", "X4", "E512")
    for i_ in range(2, 8): mul(f"S{i_}", f"S{i_-2}", "E128")
    put_chunk(3, [f"S{k}" for k in range(8)], True)
    mul("S0", "X0", "E1024")
    for i_ in range(1, 8): mul(f"S{i_}", f"S{i_-1}", "E128")
    pair("XL"); mul("XL", "S0", "E1024")
    put_chunk(4, [f"S{k}" for k in range(8)], True)
    a.e(f"v_cvt_pk_bf16_f32 v120, v{P['XL']}, -v{P['XL']+1}")
    a.e(f"ds_write_b16 v{A_TB+2}, v120 offset:16")
    a.e(f"ds_write_b16_d16_hi v{A_TB+2}, v120 offset:{128+16}")
    assert nxtp[0] <= 120, nxtp
    if cfg.mid_u: ut_flag()
    else: a1_write()
    if cfg.dbgT: st(7)
    a.e("s_waitcnt lgkmcnt(0)")
    if cfg.dbgT: st(8)
    a.e("s_barrier")
    st(3)
    if cfg.x_exit == "tables":
        K.stamps_out(a, cfg, 14)
        a.e("s_branch L_end")
    if not cfg.mid_u: a1_store()
    def look_issue():
        a.e(f"""
        s_cmp_lg_u32 s39, 0
        s_cbranch_scc1 L_a_uf0
        global_load_dword v30, v{A_FU}, s[36:37] sc1
        """)
        a.label("L_a_uf0")
    if cfg.mid_u: look_issue()
    if cfg.touch:
        K.a_touch(a, cfg, {2: ["k"]})
    if cfg.gate == 1: gate()
    YF, XF, D0 = 32, 64, 128
    def trfrag(dst, addr, s):
        a.e(f"ds_read_b64_tr_b16 v[{dst}:{dst+1}], v{addr} offset:{s*4096}")
        a.e(f"ds_read_b64_tr_b16 v[{dst+2}:{dst+3}], v{addr} offset:{s*4096 + 512}")
    a.e("""
    s_cmp_eq_u32 s48, 0
    s_cbranch_scc0 L_a_k2
    """)
    a.lg = []
    for s in range(8):
        trfrag(YF+4*s, A_KM+3, s)
        for t in range(2): trfrag(XF+32*t+4*s, A_KM+t, s)
    for s in range(8):
        a.e(f"s_waitcnt lgkmcnt({min(15, 6*(7-s))})")
        for t in range(2):
            c = "0" if s == 0 else f"v[{D0+4*t}:{D0+4*t+3}]"
            a.e(f"v_mfma_f32_16x16x32_bf16 v[{D0+4*t}:{D0+4*t+3}], v[{XF+32*t+4*s}:{XF+32*t+4*s+3}], v[{YF+4*s}:{YF+4*s+3}], {c}")
    a.e(f"""
    v_cvt_pk_bf16_f32 v136, v{D0}, v{D0+1}
    v_cvt_pk_bf16_f32 v137, v{D0+2}, v{D0+3}
    v_cvt_pk_bf16_f32 v138, v{D0+4}, v{D0+5}
    v_cvt_pk_bf16_f32 v139, v{D0+6}, v{D0+7}
    ds_write_b64 v{A_C0}, v[136:137]
    ds_write_b32 v{A_C1A}, v138
    ds_write_b32 v{A_C1B}, v139
    s_branch L_a_kdone
    """)
    a.label("L_a_k2")
    for s in range(8):
        trfrag(YF+4*s, A_KM+3, s)
        trfrag(XF+4*s, A_KM+2, s)
    for s in range(8):
        a.e(f"s_waitcnt lgkmcnt({min(15, 4*(7-s))})")
        c = "0" if s == 0 else f"v[{D0}:{D0+3}]"
        a.e(f"v_mfma_f32_16x16x32_bf16 v[{D0}:{D0+3}], v[{XF+4*s}:{XF+4*s+3}], v[{YF+4*s}:{YF+4*s+3}], {c}")
    a.e(f"""
    v_cvt_pk_bf16_f32 v136, v{D0}, v{D0+1}
    v_cvt_pk_bf16_f32 v137, v{D0+2}, v{D0+3}
    ds_write_b16 v{A_C2}, v136
    ds_write_b16_d16_hi v{A_C2}, v136 offset:32
    ds_write_b16 v{A_C2}, v137 offset:64
    ds_write_b16_d16_hi v{A_C2}, v137 offset:96
    """)
    a.label("L_a_kdone")
    def look_check(issue):
        a.e(f"""
        s_cmp_lg_u32 s39, 0
        s_cbranch_scc1 L_a_uf1
        """)
        if issue: a.e(f"global_load_dword v30, v{A_FU}, s[36:37] sc1")
        a.e(f"""
        s_and_b32 s58, s38, 0xfffffff8
        s_getreg_b32 s57, hwreg(HW_REG_XCC_ID)
        s_and_b32 s57, s57, 7
        s_or_b32 s59, s57, s58
        s_waitcnt vmcnt(0)
        v_cmp_ne_u32 vcc, s59, v30
        s_cmp_eq_u64 vcc, 0
        s_cselect_b32 s57, 1, 0
        v_mov_b32 v31, s57
        v_mov_b32 v30, 0
        ds_write_b32 v30, v31 offset:{NONCE_LDS+8}
        ds_write_b32 v30, v31 offset:{NONCE_LDS+4}
        """)
        a.label("L_a_uf1")
    def ready_loads():
        a.e(f"""
        v_mov_b32 v30, 0
        ds_read_b32 v31, v30 offset:{NONCE_LDS+8}
        s_waitcnt lgkmcnt(0)
        v_readfirstlane_b32 s44, v31
        s_cmp_eq_u32 s44, 0
        s_cbranch_scc1 L_a_ul0
        global_load_dwordx4 v[208:211], v{A_UG}, s[36:37] sc1
        global_load_dwordx4 v[212:215], v{A_UG}, s[36:37] offset:2048 sc1
        """)
        a.label("L_a_ul0")
    if cfg.mid_u: look_check(False)
    else: ut_flag()
    if cfg.touch:
        K.a_touch(a, cfg, {3: ["v"]})
    a.e(f"""
    s_mov_b32 s57, 0x01000100
    s_mov_b32 s58, 0x03020302
    s_mov_b32 s59, 0x05040302
    s_mov_b32 s63, 0x05040100
    v_mov_b32 v48, 0
    v_mov_b32 v49, 0
    v_mov_b32 v50, 0
    v_mov_b32 v51, 0
    s_waitcnt lgkmcnt(0)
    s_barrier
    """)
    a.lg = []
    if cfg.mid_u: ready_loads()
    if not (cfg.dbgT or cfg.dbgY or cfg.dbgN): st(4)
    a.e("""
    s_cmp_eq_u32 s39, 0
    s_cbranch_scc1 L_a_e0
    s_cmp_eq_u32 s39, 1
    s_cbranch_scc1 L_a_e2
    """)
    for c in range(2):
        a.e(f"ds_read_u16 v{32+2*c}, v{A_ER0} offset:{KC[c]}")
        a.e(f"ds_read_u16 v{33+2*c}, v{A_ER0} offset:{KC[c]+2}")
    a.e(f"""
    v_and_b32 v28, 1, v0
    v_cmp_eq_u32 vcc, 0, v28
    s_waitcnt lgkmcnt(0)
    """)
    for c in range(2):
        c0, c1 = 32+2*c, 33+2*c
        o = 40 + 4*c
        a.e(f"v_perm_b32 v{o}, v{c1}, v{c0}, s57")
        a.e(f"v_perm_b32 v{o+3}, v{c0}, v{c1}, s57")
        a.e(f"v_perm_b32 v{o+2}, v{c1}, v{c0}, s63")
        a.e(f"v_mov_b32 v{o+1}, v{o}")
        a.e(f"v_cndmask_b32 v{o+2}, v{o+3}, v{o+2}, vcc")
    a.e("s_branch L_a_ew")
    a.label("L_a_e2")
    for c in range(2):
        a.e(f"ds_read_b32 v{32+2*c}, v{A_ER0} offset:{KC[c]}")
        a.e(f"ds_read_b32 v{33+2*c}, v{A_ER0} offset:{KC[c]+4}")
    a.e("s_waitcnt lgkmcnt(0)")
    for c in range(2):
        A_, B_ = 32+2*c, 33+2*c
        o = 40 + 4*c
        a.e(f"v_perm_b32 v{o}, v{A_}, v{A_}, s57")
        a.e(f"v_mov_b32 v{o+1}, v{A_}")
        a.e(f"v_perm_b32 v{o+2}, v{A_}, v{A_}, s58")
        a.e(f"v_perm_b32 v{o+3}, v{B_}, v{B_}, s57")
    a.e("s_branch L_a_ew")
    a.label("L_a_e0")
    for c in range(2):
        a.e(f"ds_read_b128 v[{40+4*c}:{43+4*c}], v{A_ER0} offset:{KC[c]}")
        a.e(f"ds_read_b64 v[{32+4*c}:{33+4*c}], v{A_ER1} offset:{KC[c]}")
        a.e(f"ds_read_b32 v{34+4*c}, v{A_ER1} offset:{KC[c]+8}")
    a.e("""
    v_cmp_le_u32 vcc, 32, v0
    s_waitcnt lgkmcnt(0)
    """)
    for c in range(2):
        A_, B_, C_ = 32+4*c, 33+4*c, 34+4*c
        o = 40 + 4*c
        a.e(f"v_perm_b32 v52, v{A_}, v{A_}, s57")
        a.e(f"v_perm_b32 v53, v{B_}, v{A_}, s59")
        a.e(f"v_perm_b32 v54, v{B_}, v{B_}, s57")
        a.e(f"v_perm_b32 v55, v{C_}, v{B_}, s59")
        for q in range(4):
            a.e(f"v_cndmask_b32 v{o+q}, v{o+q}, v{52+q}, vcc")
    a.label("L_a_ew")
    for c in range(2):
        a.e(f"ds_write_b128 v{A_DW}, v[{40+4*c}:{43+4*c}] offset:{KD[c]}")
    a.e(f"""
    v_cmp_gt_u32 vcc, 160, v0
    s_and_b64 exec, exec, vcc
    ds_write_b128 v{A_ZU}, v[48:51] offset:{UR[0] + 64*80}
    ds_write_b128 v{A_ZU}, v[48:51] offset:{UR[1] + 64*80}
    v_cmp_gt_u32 vcc, 32, v0
    s_and_b64 exec, exec, vcc
    ds_write_b128 v{A_ZC}, v[48:51] offset:{CP[0]}
    v_cmp_gt_u32 vcc, 2, v0
    s_and_b64 exec, exec, vcc
    ds_write_b128 v{A_ZG}, v[48:51]
    s_mov_b64 exec, -1
    """)
    if not cfg.mid_u: look_check(True)
    a.e("""
    s_waitcnt lgkmcnt(0)
    s_barrier
    """)
    if not cfg.mid_u: ready_loads()
    a.vm = []
    if not (cfg.dbgT or cfg.dbgY or cfg.dbgN): st(5)
    for c in range(2):
        b = 32 + 16*c
        a.e(f"ds_read_b64 v[{b}:{b+1}], v{A_CR} offset:{KD[c] + 8}")
        a.e(f"ds_read_b128 v[{b+4}:{b+7}], v{A_CR} offset:{KD[c] + 16}")
    for c in range(2):
        a.e(f"s_waitcnt lgkmcnt({2 - 2*c})" if c == 0 else "s_waitcnt lgkmcnt(4)")
        b = 32 + 16*c
        n0, n1, n2, n3, n4, n5 = b, b+1, b+4, b+5, b+6, b+7
        m = b + 8
        t1 = 96 + 8*c
        base = CP[c]
        a.e(f"ds_write_b128 v{A_CW}, v[{n2}:{n5}] offset:{base}")
        a.e(f"v_alignbit_b32 v{m}, v{n1}, v{n0}, 16")
        for q, (hi, lo) in enumerate(((n2, n1), (n3, n2), (n4, n3))):
            a.e(f"v_alignbit_b32 v{m+1+q}, v{hi}, v{lo}, 16")
        a.e(f"ds_write_b128 v{A_CW}, v[{m}:{m+3}] offset:{base + 3*4160}")
        for q, (hi, lo) in enumerate(((n2, n1), (n3, n2), (n4, n3), (n5, n4))):
            a.e(f"v_alignbit_b32 v{t1+q}, v{hi}, v{lo}, 16")
        a.e(f"ds_write_b128 v{A_CW}, v[{t1}:{t1+3}] offset:{base + 4160}")
        for q, r in enumerate((n1, n2, n3, n4)): a.e(f"v_mov_b32 v{t1+4+q}, v{r}")
        a.e(f"ds_write_b128 v{A_CW}, v[{t1+4}:{t1+7}] offset:{base + 2*4160}")
    if not (cfg.dbgT or cfg.dbgY or cfg.dbgN): st(6)
    a.e(f"""
    s_cmp_lg_u32 s44, 0
    s_cbranch_scc1 L_a_fast
    s_cmp_ge_u32 s39, 2
    s_cbranch_scc1 L_a_utf_go
    s_and_b32 s58, s38, 0xfffffff8
    s_getreg_b32 s57, hwreg(HW_REG_XCC_ID)
    s_and_b32 s57, s57, 7
    s_or_b32 s59, s57, s58
    s_mov_b32 s61, 0
    v_add_u32 v28, 8192, v{A_FU}
    """)
    a.label("L_a_utf_poll")
    a.e(f"""
    global_load_dword v30, v{A_FU}, s[36:37] sc1
    global_load_dword v31, v28, s[36:37] sc1
    s_add_u32 s61, s61, 1
    s_waitcnt vmcnt(0)
    v_cmp_ne_u32 vcc, s59, v30
    s_cmp_eq_u64 vcc, 0
    s_cbranch_scc1 L_a_utf_local
    v_cmp_ne_u32 s[64:65], s58, v31
    s_and_b64 vcc, vcc, s[64:65]
    s_cbranch_vccz L_a_utf_glob
    s_cmp_eq_u32 s61, {cfg.ut_patience}
    s_cbranch_scc0 L_a_utf_again
    s_mov_b32 s60, 0
    """)
    a.label("L_a_utf_pub")
    a.e(f"""
    global_store_dwordx4 v{A_UT0}, v[224:227], s[36:37] sc1
    global_store_dwordx4 v{A_UT1}, v[228:231], s[36:37] sc1
    global_store_dwordx4 v200, v[232:235], s[36:37] sc1
    global_store_dwordx4 v201, v[236:239], s[36:37] sc1
    s_waitcnt vmcnt(0)
    v_add_u32 v29, 8192, v{A_FUS}
    v_mov_b32 v30, s58
    s_mov_b64 exec, 1
    global_store_dword v29, v30, s[36:37] sc1
    s_mov_b64 exec, -1
    s_cmp_lg_u32 s60, 0
    s_cbranch_scc1 L_a_utf_glob2
    """)
    a.label("L_a_utf_again")
    a.e(f"""
    s_cmp_gt_u32 s61, {SPIN}
    s_cbranch_scc1 L_a_utf_glob2
    s_sleep {cfg.sl_ut}
    s_branch L_a_utf_poll
    """)
    a.label("L_a_utf_local")
    a.e("s_mov_b32 s57, 1")
    a.e("s_branch L_a_utf_ok")
    a.label("L_a_utf_glob")
    a.e(f"""
    s_mov_b32 s60, 1
    s_cmp_lt_u32 s61, {cfg.ut_patience}
    s_cbranch_scc1 L_a_utf_pub
    s_cmp_eq_u32 s61, {cfg.ut_patience}
    s_cbranch_scc1 L_a_utf_pub
    """)
    a.label("L_a_utf_glob2")
    a.e("s_mov_b32 s57, 0")
    a.label("L_a_utf_ok")
    a.e(f"""
    v_mov_b32 v31, s57
    v_mov_b32 v30, 0
    ds_write_b32 v30, v31 offset:{NONCE_LDS+4}
    """)
    a.label("L_a_utf_go")
    a.e(f"""
    s_waitcnt lgkmcnt(0)
    s_barrier
    global_load_dwordx4 v[208:211], v{A_UG}, s[36:37] sc1
    global_load_dwordx4 v[212:215], v{A_UG}, s[36:37] offset:2048 sc1
    """)
    a.label("L_a_fast")
    a.e(f"""
    v_mov_b32 v30, 0
    ds_read_b32 v31, v30 offset:{NONCE_LDS+4}
    """)
    for e in range(4):
        h, hi = e // 2, e % 2
        a.e(f"v_{'and_b32' if hi else 'lshlrev_b32'} v{80+e}, {'0xffff0000' if hi else '16'}, v{24+h}")
    for rho in range(4):
        for e in range(4):
            h, hi = e // 2, e % 2
            a.e(f"v_{'and_b32' if hi else 'lshlrev_b32'} v{96+4*rho+e}, {'0xffff0000' if hi else '16'}, v{16+2*rho+h}")
            a.e(f"v_mul_f32 v{96+4*rho+e}, v{96+4*rho+e}, v{80+e}")
        for h in range(2):
            a.e(f"v_cvt_pk_bf16_f32 v{84+h}, v{96+4*rho+2*h}, v{96+4*rho+2*h+1}")
        for h in range(2):
            a.e(f"v_lshlrev_b32 v{96+4*rho+2*h}, 16, v{84+h}")
            a.e(f"v_and_b32 v{96+4*rho+2*h+1}, 0xffff0000, v{84+h}")
    a.e("s_waitcnt vmcnt(0) lgkmcnt(0)")
    a.e("v_readfirstlane_b32 s46, v31")
    if cfg.yglobal: a.e("s_mov_b32 s46, 0")
    a.vm = []
    if not (cfg.dbgT or cfg.dbgY or cfg.dbgN): st(7)
    a.e(f"""
    ds_write_b128 v{A_UL}, v[208:211] offset:{UR[0]}
    ds_write_b128 v{A_UL}, v[212:215] offset:{UR[0] + 32*80}
    s_waitcnt lgkmcnt(0)
    s_barrier
    """)
    if not (cfg.dbgT or cfg.dbgY or cfg.dbgN): st(8)
    a.e(f"s_setprio {cfg.prioA2}")
    if cfg.touch:
        K.a_touch(a, cfg, {3: ["o"]})
    if cfg.ytouch:
        a.e(f"""
        s_cmp_lg_u32 s39, 2
        s_cbranch_scc1 L_a_noyt
        s_lshl_b32 s57, s50, 12
        s_add_u32 s57, s57, {YT}
        v_lshl_add_u32 v28, v1, 7, s57
        global_load_dword v252, v28, s[36:37]
        """)
        a.label("L_a_noyt")
    if cfg.x_exit == "prep":
        K.stamps_out(a, cfg, 14)
        a.e("s_branch L_end")
    if cfg.gate == 2: gate()
    ACC0, ACC1 = 128, 144
    NB = 3
    FR = [32 + 16*i for i in range(NB)]
    steps = [(dl, hf) for dl in range(16) for hf in range(2)]
    def rd(i):
        dl, hf = steps[i]
        f = FR[i % NB]
        ao = 64*dl + 32*(1-hf)
        bo = 80*dl + 32*(1-hf)
        t = f"cv{i}"
        return [(f"ds_read_b64 v[{f}:{f+1}], v{A_VA} offset:{ao}", t),
                (f"ds_read_b64 v[{f+2}:{f+3}], v{A_VA} offset:{ao+8}", t),
                (f"ds_read_b128 v[{f+8}:{f+11}], v{A_VB} offset:{bo+2560}", t),
                (f"ds_read_b128 v[{f+12}:{f+15}], v{A_VB} offset:{bo}", t),
                (f"ds_read_b64 v[{f+4}:{f+5}], v{A_VA} offset:{ao+2048}", t),
                (f"ds_read_b64 v[{f+6}:{f+7}], v{A_VA} offset:{ao+2056}", t)]
    a.lg = []
    for i in (0, 1):
        for t, tg in rd(i): a.e(t, lg=tg)
    for i in range(cfg.x_conv):
        f = FR[i % NB]
        a.wait_lg(f"cv{i}")
        c0 = "0" if i == 0 else f"v[{ACC0}:{ACC0+15}]"
        c1 = "0" if i == 0 else f"v[{ACC1}:{ACC1+15}]"
        R = rd(i + 2) if i + 2 < cfg.x_conv else []
        a.e(f"v_mfma_f32_32x32x16_bf16 v[{ACC0}:{ACC0+15}], v[{f}:{f+3}], v[{f+8}:{f+11}], {c0}")
        for t, tg in R[0:2]: a.e(t, lg=tg)
        a.e(f"v_mfma_f32_32x32x16_bf16 v[{ACC1}:{ACC1+15}], v[{f}:{f+3}], v[{f+12}:{f+15}], {c1}")
        for t, tg in R[2:4]: a.e(t, lg=tg)
        a.e(f"v_mfma_f32_32x32x16_bf16 v[{ACC1}:{ACC1+15}], v[{f+4}:{f+7}], v[{f+8}:{f+11}], v[{ACC1}:{ACC1+15}]")
        for t, tg in R[4:6]: a.e(t, lg=tg)
    st(9)
    if cfg.x_exit == "conv":
        K.stamps_out(a, cfg, 14)
        a.e("s_branch L_end")
    if cfg.utclean == 2:
        a.e(f"""
        s_cmp_ge_u32 s39, 2
        s_cbranch_scc1 L_a_nocl2
        global_store_dwordx4 v{A_UT0}, v[224:227], s[36:37] sc1
        global_store_dwordx4 v{A_UT1}, v[228:231], s[36:37] sc1
        global_store_dwordx4 v200, v[232:235], s[36:37] sc1
        global_store_dwordx4 v201, v[236:239], s[36:37] sc1
        s_nop 1
        """)
        a.label("L_a_nocl2")
    a.e(f"s_setprio {cfg.prioA3}")
    a.e("""
    s_waitcnt vmcnt(0) lgkmcnt(0)
    s_barrier
    """)
    for tau, acc in ((0, ACC0), (1, ACC1)):
        for q in range(4):
            a.e(f"ds_write_b128 v{A_PW}, v[{acc+4*q}:{acc+4*q+3}] offset:{YP + tau*32*144 + q*32}")
    a.e("""
    s_waitcnt lgkmcnt(0)
    s_barrier
    """)
    for c in range(2):
        o = YP + (c*2)*64*144
        b = 32 + 16*c
        a.e(f"ds_read_b128 v[{b}:{b+3}], v{A_OR} offset:{o}")
        a.e(f"ds_read_b128 v[{b+8}:{b+11}], v{A_OR} offset:{o + 64*144}")
        a.e(f"ds_read_b128 v[{b+4}:{b+7}], v{A_OR} offset:{o + 16}")
        a.e(f"ds_read_b128 v[{b+12}:{b+15}], v{A_OR} offset:{o + 64*144 + 16}")
    for c in range(2):
        a.e(f"s_waitcnt lgkmcnt({4-4*c})")
        b = 32 + 16*c
        for q in range(8): a.e(f"v_add_f32 v{b+q}, v{b+q}, v{b+8+q}")
        for m in range(4): a.e(f"v_cvt_pk_bf16_f32 v{64+4*c+m}, v{b+2*m}, v{b+2*m+1}")
    a.e(f"""
    v_add_u32 v29, 4096, v{A_YG}
    s_cmp_eq_u32 s46, 0
    s_cbranch_scc1 L_a_yg
    global_store_dwordx4 v{A_YG}, v[64:67], s[36:37] {cfg.locfl}
    global_store_dwordx4 v29, v[68:71], s[36:37] {cfg.locfl}
    s_branch L_a_yd
    """)
    a.label("L_a_yg")
    a.e(f"""
    global_store_dwordx4 v{A_YG}, v[64:67], s[36:37] sc1
    global_store_dwordx4 v29, v[68:71], s[36:37] sc1
    """)
    a.label("L_a_yd")
    a.e(f"""
    s_waitcnt vmcnt(0)
    s_barrier
    """)
    st(10)
    a.e(f"""
    s_cmp_lg_u32 s39, 1
    s_cbranch_scc1 L_a_ytf_go
    v_mov_b32 v28, s38
    s_mov_b64 exec, 1
    s_cmp_eq_u32 s46, 0
    s_cbranch_scc1 L_a_yfg
    global_store_dword v{A_FYS}, v28, s[36:37]
    s_branch L_a_yfd
    """)
    a.label("L_a_yfg")
    a.e(f"global_store_dword v{A_FYS}, v28, s[36:37] sc1")
    a.label("L_a_yfd")
    a.e("s_mov_b64 exec, -1")
    if cfg.dbgY: st(4)
    a.e("s_mov_b32 s61, 0")
    a.label("L_a_ytf_poll")
    a.e(f"""
    global_load_dword v29, v{A_FY}, s[36:37] sc1
    s_add_u32 s61, s61, 1
    s_waitcnt vmcnt(0)
    v_cmp_ne_u32 vcc, s38, v29
    s_cmp_gt_u32 s61, {SPIN}
    s_cbranch_scc1 L_a_ytf_go
    s_cbranch_vccz L_a_ytf_go
    s_sleep {cfg.sl_yt}
    s_branch L_a_ytf_poll
    """)
    a.label("L_a_ytf_go")
    if cfg.dbgY:
        st(5); K.stampval(a, cfg, 7, "s61")
    a.e("s_barrier")
    if cfg.dbgY: st(6)
    a.e(f"""
    global_load_dwordx2 v[64:65], v{A_YL}, s[36:37] sc1
    global_load_dwordx2 v[66:67], v{A_YL+1}, s[36:37] sc1
    global_load_dwordx2 v[68:69], v{A_YL+2}, s[36:37] sc1
    global_load_dwordx2 v[70:71], v{A_YL+3}, s[36:37] sc1
    s_waitcnt vmcnt(0)
    """)
    st(11)
    for rho in range(4):
        m, hi = rho // 2, rho % 2
        for e in range(4):
            src = 64 + 2*e + m
            a.e(f"v_{'and_b32' if hi else 'lshlrev_b32'} v{84+e}, {'0xffff0000' if hi else '16'}, v{src}")
        for e in range(4):
            a.e(f"v_add_f32 v{84+e}, v{84+e}, v{96+4*rho+e}")
        a.e(f"v_cvt_pk_bf16_f32 v{88+2*rho}, v84, v85")
        a.e(f"v_cvt_pk_bf16_f32 v{89+2*rho}, v86, v87")
        if rho == 2: a.e(f"v_add_u32 v{A_OUT}, 4096, v{A_OUT}")
        a.e(f"global_store_dwordx2 v{A_OUT}, v[{88+2*rho}:{89+2*rho}], s[32:33] offset:{2048*(rho % 2)} {cfg.outfl}")
    if cfg.utclean == 1:
        a.e(f"""
        s_cmp_ge_u32 s39, 2
        s_cbranch_scc1 L_a_nocl
        global_store_dwordx4 v{A_UT0}, v[224:227], s[36:37] sc1
        global_store_dwordx4 v{A_UT1}, v[228:231], s[36:37] sc1
        global_store_dwordx4 v200, v[232:235], s[36:37] sc1
        global_store_dwordx4 v201, v[236:239], s[36:37] sc1
        s_nop 1
        """)
        a.label("L_a_nocl")
    a.e("""
    s_cmp_lg_u32 s41, 0
    s_cbranch_scc1 L_a_norst
    s_cmp_lg_u32 s39, 1
    s_cbranch_scc1 L_a_norst
    v_mov_b32 v8, s45
    v_mov_b32 v9, 0
    s_mov_b64 exec, 1
    global_store_dword v8, v9, s[34:35] sc1
    s_mov_b64 exec, -1
    """)
    a.label("L_a_norst")
    st(12)
    K.stampval(a, cfg, 13, "s46")
    K.stamps_out(a, cfg, 14)
```

```python
import sys
from asmlib import Asm, wrap

UT   = 0
YT   = 4 << 20
PQ   = 8 << 20
PQF  = 10 << 20
KVP  = (10 << 20) + (64 << 10)
KVF  = 12 << 20
UTF  = (12 << 20) + (64 << 10)
YTF  = (12 << 20) + (96 << 10)
BDN  = (12 << 20) + (112 << 10)
KVBLK = 2176
LOG2E = 0x3fb8aa3b
EPS   = 0x358637bd
SPIN_LIMIT = 200000

class Cfg:
    do_A = True
    do_B = True
    do_B2 = True
    touch = True
    dual = False
    x_nowrite = False
    prioA = 2
    prioA2 = 0
    dbgT = 0
    prioBw = 0
    prioBm = 3
    gate = 0
    gate_max = 40
    x_exit = ""
    x_conv = 32
    x_tab = 0
    x_main = 16
    x_epi = 0
    locfl = ""
    mid_u = 1
    qe_end = 26
    pqflag_g = 14
    dmafl = ""
    aldfl = ""
    zpoll = 0
    sl_ka = 1
    sl_kz = 1
    sl_pq = 1
    sl_red = 1
    sl_yt = 1
    sl_ut = 1
    late_o = 1
    yglobal = 0
    utclean = 0
    outfl = "sc1"
    uttouch = 0
    ninit = 8
    dbgN = 0
    ut_patience = 200
    flagpos = 0
    ytouch = 1
    dbgY = 0
    prioA3 = 0
    prioB = 1
    pk = 1
    b_exit = False
    touch_flags = ""
    early_release = True
    dma_early = False
    last_dma = 40
    late_pre = 0
    touch_mode = "late"
    stamps = False

STAMP_BASE = 14 << 20
def stamp(a, cfg, i):
    if cfg.stamps == 1:
        a.e(f"s_memtime s[{70+2*i}:{71+2*i}]")
def stampval(a, cfg, i, sreg):
    if cfg.stamps == 1:
        a.e("s_waitcnt lgkmcnt(0)")
        a.e(f"s_add_u32 s{70+2*i}, {sreg}, s70")
def stamps_out(a, cfg, n, vt=22):
    if not cfg.stamps: return
    a.e("s_memrealtime s[68:69]")
    a.e("s_waitcnt lgkmcnt(0) vmcnt(0)")
    a.vm = []
    if cfg.stamps == 2: n = 1
    for i in range(1, n):
        a.e(f"s_sub_u32 s{70+2*i}, s{70+2*i}, s70")
    a.e(f"""
    s_lshl_b32 s61, s2, 2
    s_add_u32 s61, s61, s39
    s_lshl_b32 s61, s61, 6
    s_add_u32 s61, s61, {STAMP_BASE}
    v_mov_b32 v{vt}, s61
    s_mov_b64 exec, 1
    """)
    for i in range(16):
        src = f"s{70+2*i}" if (0 < i < n) else ("s68" if i == 15 else ("s100" if i == 0 else "0"))
        a.e(f"v_mov_b32 v{vt+1}, {src}")
        a.e(f"global_store_dword v{vt}, v{vt+1}, s[36:37] offset:{4*i}")
        a.e("s_nop 1")
    a.e("s_waitcnt vmcnt(0)")
    a.e("s_mov_b64 exec, -1")
    a.vm = []

def prologue(a, cfg):
    if cfg.stamps:
        a.e("s_memrealtime s[100:101]")
        a.e("s_memtime s[70:71]")
    a.e("""
    s_cmp_ge_u32 s2, 512
    s_cbranch_scc1 L_end
    s_load_dwordx16 s[8:23], s[0:1], 0
    s_load_dwordx8 s[24:31], s[0:1], 64
    s_load_dwordx4 s[32:35], s[0:1], 96
    s_load_dwordx2 s[36:37], s[0:1], 112
    v_lshrrev_b32 v1, 6, v0
    v_readfirstlane_b32 s39, v1
    v_and_b32 v1, 63, v0
    s_and_b32 s3, s2, 255
    s_cmp_lt_u32 s2, 256
    s_cbranch_scc1 L_roleA
    """)

def poll_nonce(a, vtmp, vaddr0, first_tag=None):
    L = a.newlabel("nonce"); Lx = a.newlabel("nonce_ok")
    if first_tag:
        a.wait_vm(first_tag)
    else:
        a.e(f"global_load_dword {vtmp}, {vaddr0}, s[34:35] sc1")
        a.wait_vm_all()
    a.e(f"v_readfirstlane_b32 s38, {vtmp}")
    a.e(f"""
    s_cmp_lg_u32 s38, 0
    s_cbranch_scc1 {Lx}
    s_mov_b32 s61, 0
    """)
    a.label(L)
    a.e(f"""
    global_load_dword {vtmp}, {vaddr0}, s[34:35] sc1
    s_waitcnt vmcnt(0)
    v_readfirstlane_b32 s38, {vtmp}
    s_add_u32 s61, s61, 1
    s_cmp_gt_u32 s61, {SPIN_LIMIT}
    s_cbranch_scc1 {Lx}
    s_cmp_eq_u32 s38, 0
    s_cbranch_scc1 {L}
    """)
    a.vm.pop()
    a.label(Lx)

def phi_instrs(acc, tmp, out, zsum=None):
    L = []
    for i in range(16):
        L.append(f"v_mul_f32 v{tmp+i}, s62, v{acc+i}")
    for i in range(16):
        L.append(f"v_exp_f32 v{tmp+i}, v{tmp+i} clamp")
        L.append(f"v_max_f32 v{acc+i}, s64, v{acc+i}")
    for i in range(16):
        L.append(f"v_add_f32 v{acc+i}, v{acc+i}, v{tmp+i}")
    if zsum is not None:
        for m in range(8):
            L.append(f"v_add_f32 v{tmp+m}, v{acc+2*m}, v{acc+2*m+1}")
        for m in range(4):
            L.append(f"v_add_f32 v{tmp+m}, v{tmp+m}, v{tmp+4+m}")
        L.append(f"v_add_f32 v{tmp}, v{tmp}, v{tmp+2}")
        L.append(f"v_add_f32 v{tmp+1}, v{tmp+1}, v{tmp+3}")
        L.append(f"v_add_f32 v{zsum}, v{tmp}, v{tmp+1}")
    for m in range(8):
        L.append(f"v_cvt_pk_bf16_f32 v{out+m}, v{acc+2*m}, v{acc+2*m+1}")
    return L

def spread(side, nslots):
    out = []; n = len(side); k = 0
    for i in range(nslots):
        e = (n*(i+1))//nslots
        out.append(side[k:e]); k = e
    return out

SEQ = []
for c in range(8): SEQ += [("X", c), ("Q", c)]
SEQ += [("K", c) for c in range(8)] + [("V", c) for c in range(8)] + [("O", c) for c in range(8)]
NSLOT = 10
NINIT = 6
XR = 128
WF, T16, ACCQ, ACCK, ACCV = 32, 64, 80, 96, 112

DMAFL = ""
def b_issue_jobs(n):
    kind, c = SEQ[n]
    pos = n % NSLOT
    pre = []
    if kind == "X":
        so, v0, srd = f"s{16+c}", 2, "s[40:43]"
    elif kind in "QKV":
        so, v0, srd = f"s{8+c}", 4, "s[44:47]"
        if kind in "KV" and c == 0:
            pre = [("v_add_u32 v4, 1024, v4", None), ("v_add_u32 v5, 1024, v5", None)]
    else:
        so, v0, srd = "s61", 6, "s[48:51]"
        pre = [(f"s_mov_b32 s61, {c*65536}", None)]
    return [pre + [(f"s_add_u32 m0, s60, {pos*8192}", None),
             (f"buffer_load_dwordx4 v{v0}, {srd}, {so} offen {DMAFL} lds", f"slot{n}")],
            [(f"buffer_load_dwordx4 v{v0+1}, {srd}, {so} offen offset:1024 {DMAFL} lds", f"slot{n}")]]

def emit_job(a, job):
    for t in job:
        if isinstance(t, str): a.e(t)
        else: a.e(t[0], vm=t[1])

def lds_base(n):
    pos = n % NSLOT
    return (0, pos*8192) if pos < 5 else (1, (pos-5)*8192)

def wfrag_reads(a, n, s, dst, tag=None):
    hi, off = lds_base(n)
    va = "v17" if hi else "v16"
    a.e(f"ds_read_b64_tr_b16 v[{dst}:{dst+1}], {va} offset:{off + s*2048}", lg=tag)
    a.e(f"ds_read_b64_tr_b16 v[{dst+2}:{dst+3}], {va} offset:{off + s*2048 + 512}", lg=tag)

def role_B(a, cfg):
    a.c("================= role B =================")
    if cfg.prioB: a.e(f"s_setprio {cfg.prioB}")
    a.e("""
    s_and_b32 s66, s3, 7            ; xcd
    s_lshr_b32 s67, s3, 3           ; jj
    s_lshr_b32 s56, s66, 1
    s_lshl_b32 s56, s56, 3
    s_and_b32 s68, s67, 7
    s_add_u32 s56, s56, s68         ; tb
    s_and_b32 s57, s66, 1
    s_lshl_b32 s57, s57, 2
    s_lshr_b32 s68, s67, 3
    s_add_u32 s57, s57, s68         ; hq
    s_and_b32 s58, s39, 1           ; tt
    s_lshr_b32 s59, s39, 1
    s_lshl_b32 s60, s39, 11
    s_mov_b32 s62, 0x3fb8aa3b
    s_mov_b32 s63, 0x3fb8aa3b
    s_mov_b32 s64, 0x358637bd
    s_mov_b32 s65, 0x358637bd
    """)
    a.e("""
    v_lshrrev_b32 v32, 3, v1        ; l>>3
    v_and_b32 v33, 7, v1            ; l&7
    v_lshrrev_b32 v34, 4, v1        ; l>>4
    s_lshl_b32 s68, s56, 6          ; tb*64
    s_lshl_b32 s69, s39, 4          ; 16w
    s_add_u32 s68, s68, s69
    v_add_u32 v35, s68, v32         ; row
    v_lshlrev_b32 v35, 10, v35
    v_xor_b32 v36, v33, v34
    v_lshl_add_u32 v2, v36, 4, v35
    v_add_u32 v37, 4, v34
    v_xor_b32 v36, v33, v37
    v_lshl_add_u32 v3, v36, 4, v35
    v_add_u32 v3, 7168, v3          ; +8 rows - 1024
    v_and_b32 v36, 1, v34
    v_lshlrev_b32 v36, 2, v36
    v_xor_b32 v36, v33, v36         ; q
    v_lshlrev_b32 v36, 4, v36       ; q*16
    v_add_u32 v37, s69, v32         ; 16w + (l>>3)
    v_mul_u32_u24 v38, 3072, v37
    s_lshl_b32 s68, s57, 7          ; hq*128
    v_add3_u32 v4, v38, v36, s68
    v_add_u32 v5, 23552, v4         ; +8*3072 - 1024
    v_lshlrev_b32 v38, 10, v37
    v_add3_u32 v6, v38, v36, s68
    v_add_u32 v7, 7168, v6
    """)
    a.e("""
    s_waitcnt lgkmcnt(0)
    s_mov_b32 s40, s26
    s_and_b32 s41, s27, 0xffff
    s_mov_b32 s42, 0x200000
    s_mov_b32 s43, 0x20000
    s_mov_b32 s44, s28
    s_and_b32 s45, s29, 0xffff
    s_mov_b32 s46, 0x180000
    s_mov_b32 s47, 0x20000
    s_mov_b32 s48, s30
    s_and_b32 s49, s31, 0xffff
    s_mov_b32 s50, 0x80000
    s_mov_b32 s51, 0x20000
    """)
    a.e("""
    v_mov_b32 v31, 0
    s_cmp_lg_u32 s3, 0
    s_cbranch_scc1 L_b_nononce
    s_cmp_lg_u32 s39, 0
    s_cbranch_scc1 L_b_nononce
    s_memrealtime s[68:69]
    s_waitcnt lgkmcnt(0)
    s_or_b32 s68, s68, 1
    v_mov_b32 v30, s68
    s_mov_b64 exec, 1
    global_store_dword v31, v30, s[34:35] sc1
    s_mov_b64 exec, -1
    """)
    a.vm.pop()
    a.label("L_b_nononce")
    if cfg.b_exit:
        a.e("s_branch L_end")
    for c in range(8):
        a.e(f"s_mov_b32 s{8+c}, {c*64*3072}")
        a.e(f"s_mov_b32 s{16+c}, {c*128}")
    stamp(a, cfg, 1)
    for n in range(cfg.ninit):
        for job in b_issue_jobs(n): emit_job(a, job)
    a.e("""
    v_and_b32 v32, 31, v1           ; i
    v_lshrrev_b32 v33, 5, v1        ; hh
    s_lshl_b32 s68, s58, 5
    v_add_u32 v34, s68, v32         ; 32tt + i
    v_lshlrev_b32 v34, 7, v34       ; *128
    v_lshrrev_b32 v35, 1, v32
    v_and_b32 v35, 7, v35           ; f
    """)
    for s in range(4):
        a.e(f"""
        v_add_u32 v36, {2*s}, v33
        v_xor_b32 v36, v36, v35
        v_lshl_add_u32 v{8+s}, v36, 4, v34
        v_add_u32 v{12+s}, 40960, v{8+s}
        """)
    a.e(f"""
    v_lshrrev_b32 v34, 2, v1
    v_and_b32 v34, 3, v34           ; rr
    v_and_b32 v35, 3, v1            ; cc
    v_lshrrev_b32 v36, 4, v1
    v_and_b32 v36, 1, v36           ; G&1
    v_lshlrev_b32 v36, 1, v36       ; 2(G&1)
    v_lshrrev_b32 v37, 1, v35       ; cc>>1
    v_add_u32 v36, v36, v37         ; 2(G&1) + (cc>>1)
    v_lshrrev_b32 v37, 1, v34
    v_lshlrev_b32 v37, 2, v37       ; 4(rr>>1)
    v_and_b32 v38, 1, v35
    v_lshlrev_b32 v38, 3, v38       ; 8(cc&1)
    s_lshl_b32 s68, s59, 2
    v_add_u32 v39, s68, v36
    v_xor_b32 v39, v39, v37
    v_lshl_add_u32 v39, v39, 4, v38
    v_lshl_add_u32 v40, v33, 3, v34
    v_lshl_add_u32 v16, v40, 7, v39
    v_add_u32 v17, 40960, v16
    v_xor_b32 v39, v36, v37
    v_lshl_add_u32 v39, v39, 4, v38
    v_lshl_add_u32 v40, v33, 2, v34
    v_lshl_add_u32 v18, v40, 7, v39
    s_lshl_b32 s68, s59, 15
    s_add_u32 s68, s68, 16384
    v_add_u32 v18, s68, v18
    v_xor_b32 v19, 64, v18
    s_lshl_b32 s68, s59, 1
    s_add_u32 s68, s68, s58
    s_xor_b32 s69, s68, 1
    s_lshl_b32 s66, s68, 10
    s_add_u32 s66, s66, 0
    v_lshl_add_u32 v22, v1, 4, s66
    s_lshl_b32 s66, s69, 10
    s_add_u32 s66, s66, 0
    v_lshl_add_u32 v23, v1, 4, s66
    s_lshl_b32 s66, s68, 8
    s_add_u32 s66, s66, 4096
    v_lshl_add_u32 v24, v1, 2, s66
    s_lshl_b32 s66, s69, 8
    s_add_u32 s66, s66, 4096
    v_lshl_add_u32 v25, v1, 2, s66
    ; global kv partial block: KVP + (hp*32+tb)*2176
    s_lshl_b32 s68, s57, 1
    s_add_u32 s68, s68, s59
    s_lshl_b32 s68, s68, 5
    s_add_u32 s68, s68, s56
    s_mul_i32 s68, s68, 2176
    s_add_u32 s68, s68, {KVP}
    s_lshl_b32 s69, s58, 10
    s_add_u32 s69, s69, s68
    v_lshl_add_u32 v26, v1, 4, s69
    v_lshrrev_b32 v40, 4, v1
    v_and_b32 v40, 1, v40
    v_lshlrev_b32 v40, 3, v40       ; 8c
    v_and_b32 v41, 4, v1            ; 4*hh'
    v_add_u32 v40, v40, v41
    v_lshrrev_b32 v41, 2, v1
    v_and_b32 v41, 2, v41
    v_add_u32 v40, v40, v41
    v_lshrrev_b32 v41, 1, v1
    v_and_b32 v41, 1, v41
    v_add_u32 v40, v40, v41         ; zg
    s_add_u32 s68, s68, 2048
    v_lshl_add_u32 v27, v40, 3, s68
    s_lshl_b32 s68, s56, 1
    s_add_u32 s68, s68, s58
    s_lshl_b32 s68, s68, 5
    s_lshl_b32 s69, s57, 2
    s_add_u32 s68, s68, s69
    s_lshl_b32 s69, s59, 1
    s_add_u32 s68, s68, s69
    s_lshl_b32 s68, s68, 10
    s_add_u32 s68, s68, {PQ}
    v_lshl_add_u32 v28, v1, 4, s68
    v_and_b32 v40, 16, v1
    v_cmp_ne_u32 s[52:53], 0, v40
    s_sub_u32 s54, 0, s58
    s_mov_b32 s55, s54
    """)
    a.e(f"""
    s_cmp_lg_u32 s39, 3
    s_cbranch_scc1 L_b_nopt
    s_lshl_b32 s68, s56, 7
    s_add_u32 s68, s68, {PQF}
    v_mov_b32 v40, s68
    global_load_dword v21, v40, s[36:37] sc1
    """)
    a.vm.pop()
    a.label("L_b_nopt")
    for r in range(16):
        a.e(f"v_mov_b32 v{ACCQ+r}, s64")
    for r in range(16):
        a.e(f"v_mov_b32 v{ACCK+r}, s64")
    def frag_reads(g, k):
        L = []
        tag = f"f{g}_{k}"
        if g < 8:
            nx, nw = 2*g, 2*g+1
            hi, off = lds_base(nx)
            L.append((f"ds_read_b128 v[{XR+16*g+4*k}:{XR+16*g+4*k+3}], v{(12 if hi else 8)+k} offset:{off}", tag))
            d = WF + 16*(g % 2) + 4*k; n = nw; sstep = k
        else:
            n = 2*g + k//4; sstep = k % 4; d = WF + 4*k
        h2, o2 = lds_base(n)
        va = "v17" if h2 else "v16"
        L.append((f"ds_read_b64_tr_b16 v[{d}:{d+1}], {va} offset:{o2 + sstep*2048}", tag))
        L.append((f"ds_read_b64_tr_b16 v[{d+2}:{d+3}], {va} offset:{o2 + sstep*2048 + 512}", tag))
        return L
    def nsteps(g): return 4 if g < 8 else 8
    def emit_side(lst):
        for t in lst:
            if isinstance(t, str): a.e(t)
            elif t[0] == "WVM": a.wait_vm(t[1])
            else: a.e(t[0], vm=t[1])
    side = {}
    qe = phi_instrs(ACCQ, T16, ACCQ)
    qe += [(f"global_store_dwordx4 v28, v[{ACCQ}:{ACCQ+3}], s[36:37] sc1", "pqst"),
           (f"global_store_dwordx4 v28, v[{ACCQ+4}:{ACCQ+7}], s[36:37] offset:1024 sc1", "pqst")]
    gaps = [(g, k) for g in range(8, 12) for k in range(8)][1:cfg.qe_end]
    for gp, grp in zip(gaps, spread(qe, len(gaps))): side[gp] = grp
    ke = phi_instrs(ACCK, T16, ACCK, zsum=29)
    ke += ["v_mov_b32 v30, v29", "v_permlane32_swap_b32 v29, v30", "v_add_f32 v29, v29, v30"]
    gaps = [(g, k) for g in range(12, 16) for k in range(8)][1:31]
    for gp, grp in zip(gaps, spread(ke, len(gaps))): side[gp] = grp if not cfg.x_epi else []
    side[(9, 7)] = side.get((9, 7), []) + ["s_lshl_b32 s68, s56, 7", f"s_add_u32 s68, s68, {PQF}", "v_and_b32 v2, 7, v1", "v_lshl_add_u32 v2, v2, 2, s68"]
    rb = f"""
    s_mov_b32 s40, s36
    s_and_b32 s41, s37, 0xffff
    s_mov_b32 s42, {KVF + 65536}
    s_mov_b32 s43, 0x20000
    s_lshl_b32 s68, s56, 1
    s_add_u32 s68, s68, s58
    s_lshl_b32 s68, s68, 5
    s_lshl_b32 s69, s59, 4
    s_add_u32 s68, s68, s69
    s_lshl_b32 s68, s68, 10
    s_add_u32 s68, s68, {PQ}
    v_lshl_add_u32 v3, v1, 4, s68
    v_add_u32 v31, 8192, v3
    v_lshrrev_b32 v13, 7, v0
    v_mul_u32_u24 v13, {KVBLK}, v13
    v_and_b32 v20, 127, v0
    v_lshl_add_u32 v13, v20, 4, v13
    v_add_u32 v13, {KVF}, v13
    v_lshrrev_b32 v14, 3, v20
    v_mul_u32_u24 v14, {KVBLK}, v14
    v_and_b32 v21, 7, v0
    v_lshl_add_u32 v14, v21, 4, v14
    v_add_u32 v14, {KVF+2048}, v14
    v_lshrrev_b32 v15, 7, v0
    v_lshlrev_b32 v15, 1, v15
    v_bfe_u32 v21, v0, 4, 1
    v_add_u32 v15, v15, v21
    v_mul_u32_u24 v15, 544, v15
    v_bfe_u32 v21, v0, 5, 1
    v_mul_u32_u24 v21, 272, v21
    v_add_u32 v15, v15, v21
    v_and_b32 v21, 15, v0
    v_lshl_add_u32 v15, v21, 4, v15
    v_bfe_u32 v21, v0, 6, 1
    v_lshl_add_u32 v15, v21, 3, v15
    v_lshrrev_b32 v12, 3, v20
    v_lshlrev_b32 v12, 1, v12
    v_bfe_u32 v21, v0, 2, 1
    v_add_u32 v12, v12, v21
    v_mul_u32_u24 v12, 544, v12
    v_bfe_u32 v21, v0, 1, 1
    v_mul_u32_u24 v21, 272, v21
    v_add_u32 v12, v12, v21
    v_and_b32 v21, 1, v0
    v_lshl_add_u32 v12, v21, 3, v12
    v_add_u32 v12, 256, v12
    v_and_b32 v30, 15, v1
    v_mul_u32_u24 v30, {KVBLK}, v30
    v_add_u32 v30, {KVF+2048}, v30
    """.strip().split("\n")
    rb = [x.strip() for x in rb]
    rb += [f"s_mov_b32 s{8+i}, {1024*i}" for i in range(8)] + [f"s_mov_b32 s{16+k}, {2*KVBLK*k}" for k in range(8)]
    if not cfg.late_o:
        gaps = [(14, k) for k in range(5, 8)] + [(15, k) for k in range(8)]
        for gp, grp in zip(gaps, spread(rb, len(gaps))): side[gp] = side.get(gp, []) + grp

    def kv_publish():
        a.c("--- kv partial: V cvt, MFMA, select, pair exchange, publish")
        a.e("s_barrier")
        a.e("global_load_dword v21, v2, s[36:37] sc1", vm="pqf")
        if cfg.gate:
            a.e(f"""
            s_cmp_lg_u32 s39, 2
            s_cbranch_scc1 L_b_nogate
            s_and_b32 s68, s3, 7
            s_lshl_b32 s68, s68, 8
            s_lshr_b32 s69, s3, 3
            s_lshl_b32 s69, s69, 2
            s_add_u32 s68, s68, s69
            s_add_u32 s68, s68, {BDN}
            v_mov_b32 v20, s68
            v_mov_b32 v30, s38
            s_mov_b64 exec, 1
            global_store_dword v20, v30, s[36:37]
            s_mov_b64 exec, -1
            """)
            a.vm.pop()
            a.label("L_b_nogate")
        for m in range(8):
            a.e(f"v_cvt_pk_bf16_f32 v{ACCV+m}, v{ACCV+2*m}, v{ACCV+2*m+1}")
        a.e(f"v_mfma_f32_32x32x16_bf16 v[{T16}:{T16+15}], v[{ACCK}:{ACCK+3}], v[{ACCV}:{ACCV+3}], 0")
        a.e(f"v_mfma_f32_32x32x16_bf16 v[{T16}:{T16+15}], v[{ACCK+4}:{ACCK+7}], v[{ACCV+4}:{ACCV+7}], v[{T16}:{T16+15}]")
        a.e("ds_write_b32 v24, v29", lg="xw")
        SEL = ACCK + 8; SND = ACCV + 8; KEEP = ACCV + 12
        for j in range(8): a.e(f"v_cndmask_b32 v{SEL+j}, v{T16+j}, v{T16+8+j}, s[52:53]")
        for j in range(4): a.e(f"v_cndmask_b32 v{SND+j}, v{SEL+4+j}, v{SEL+j}, s[54:55]")
        a.e(f"ds_write_b128 v22, v[{SND}:{SND+3}]", lg="xw")
        for j in range(4): a.e(f"v_cndmask_b32 v{KEEP+j}, v{SEL+j}, v{SEL+4+j}, s[54:55]")
        a.wait_lg("xw")
        a.e("s_barrier")
        a.e(f"ds_read_b128 v[{SEL}:{SEL+3}], v23", lg="xr")
        a.e(f"ds_read_b32 v30, v25", lg="xr")
        a.wait_lg("xr")
        a.wait_vm("pqf")
        a.e("v_cmp_ne_u32 s[66:67], s38, v21")
        for j in range(4): a.e(f"v_add_f32 v{KEEP+j}, v{KEEP+j}, v{SEL+j}")
        a.e(f"""
        v_add_f32 v29, v29, v30
        v_cvt_pk_bf16_f32 v{SEL}, v{KEEP}, v{KEEP+1}
        v_mov_b32 v{SEL+1}, s38
        v_cvt_pk_bf16_f32 v{SEL+2}, v{KEEP+2}, v{KEEP+3}
        v_mov_b32 v{SEL+3}, s38
        v_mov_b32_dpp v30, v29 quad_perm:[1,0,3,2] row_mask:0xf bank_mask:0xf
        global_store_dwordx4 v26, v[{SEL}:{SEL+3}], s[36:37] sc1
        v_cvt_pk_bf16_f32 v{SEL+4}, v29, v30
        v_mov_b32 v{SEL+5}, s38
        s_andn2_b64 exec, 0x55555555, s[54:55]
        s_cbranch_execz L_b_noz
        global_store_dwordx2 v27, v[{SEL+4}:{SEL+5}], s[36:37] sc1
        """)
        a.vm.pop()
        a.label("L_b_noz")
        a.e("s_mov_b64 exec, -1")
        stamp(a, cfg, 6)

    a.wait_vm(["slot0", "slot1"])
    a.e("s_barrier")
    stamp(a, cfg, 2)
    for k in range(4):
        for t, tag in frag_reads(0, k): a.e(t, lg=tag)
    nxt = cfg.ninit
    pend = []
    while nxt < NSLOT:
        pend += b_issue_jobs(nxt); nxt += 1
    for g in range(16):
        a.c(f"--- group {g}")
        if g == 13: poll_nonce(a, "v21", "v31", first_tag="nonce")
        if g == cfg.pqflag_g: a.wait_vm("pqst")
        if g < 15:
            a.wait_vm([f"slot{2*g+2}", f"slot{2*g+3}"])
        a.e("s_barrier")
        if g == cfg.pqflag_g:
            a.e("""
            s_cmp_lg_u32 s39, 3
            s_cbranch_scc1 L_b_noflag
            s_lshl_b32 s68, s56, 7
            s_lshl_b32 s69, s57, 2
            s_add_u32 s68, s68, s69
            s_add_u32 s68, s68, %d
            v_mov_b32 v20, s68
            v_mov_b32 v21, s38
            s_mov_b64 exec, 1
            global_store_dword v20, v21, s[36:37] sc1
            s_mov_b64 exec, -1
            """ % PQF)
            a.vm.pop()
            a.label("L_b_noflag")
        if g in (1, 8, 12): stamp(a, cfg, {1: 3, 8: 4, 12: 5}[g])
        jobs = list(pend); pend = []
        if g >= 1:
            for _ in range(2):
                if nxt < (32 if cfg.late_o else 40): jobs += b_issue_jobs(nxt); nxt += 1
        if g == 9:
            jobs.append([("global_load_dword v21, v31, s[34:35] sc1", "nonce")])
        ns = nsteps(g)
        jsp = spread(jobs, ns)
        for k in range(ns):
            if k % 2 == 0: a.wait_lg([f"f{g}_{k}", f"f{g}_{k+1}"])
            if g < 8:
                d = WF + 16*(g % 2) + 4*k
                a.e(f"v_mfma_f32_32x32x16_bf16 v[{ACCQ}:{ACCQ+15}], v[{d}:{d+3}], v[{XR+16*g+4*k}:{XR+16*g+4*k+3}], v[{ACCQ}:{ACCQ+15}]")
            elif g < 12:
                kk = (g - 8)*8 + k
                a.e(f"v_mfma_f32_32x32x16_bf16 v[{ACCK}:{ACCK+15}], v[{XR+4*kk}:{XR+4*kk+3}], v[{WF+4*k}:{WF+4*k+3}], v[{ACCK}:{ACCK+15}]")
            else:
                kk = (g - 12)*8 + k
                cc = "0" if (g == 12 and k == 0) else f"v[{ACCV}:{ACCV+15}]"
                a.e(f"v_mfma_f32_32x32x16_bf16 v[{ACCV}:{ACCV+15}], v[{XR+4*kk}:{XR+4*kk+3}], v[{WF+4*k}:{WF+4*k+3}], {cc}")
            jl = [list(jb) for jb in jsp[k]]
            if jl:
                while jl[0] and not jl[0][0][0].startswith(("buffer_load", "global_load")):
                    a.e(jl[0].pop(0)[0])
            if g < 15:
                nx = [k, 4 + k] if g == 7 else [k]
                for k2 in nx:
                    for t, tag in frag_reads(g + 1, k2): a.e(t, lg=tag)
            for jb in jl: emit_job(a, jb)
            emit_side(side.get((g, k), []))
    kv_publish()
    if cfg.prioBw is not None: a.e(f"s_setprio {cfg.prioBw}")
    a.e("s_mov_b64 s[54:55], s[66:67]")
    def pq_first(sfx):
        for t in rb: a.e(t)
        a.e(f"""
        s_cmp_eq_u64 s[54:55], 0
        s_cbranch_scc1 L_b_pqf_go{sfx}
        s_mov_b32 s61, 0
        """)
        a.label(f"L_b_pqf_poll{sfx}")
        a.e(f"""
        global_load_dword v21, v2, s[36:37] sc1
        s_add_u32 s61, s61, 1
        s_waitcnt vmcnt(0)
        v_cmp_ne_u32 vcc, s38, v21
        s_cmp_gt_u32 s61, {SPIN_LIMIT}
        s_cbranch_scc1 L_b_pqf_go{sfx}
        s_cbranch_vccz L_b_pqf_go{sfx}
        s_branch L_b_pqf_poll{sfx}
        """)
        a.label(f"L_b_pqf_go{sfx}")
        for i in range(8):
            a.e(f"buffer_load_dwordx4 v[{32+4*i}:{35+4*i}], v3, s[40:43], s{8+i} offen sc1")
    a.e("""
    s_cmp_eq_u32 s39, 0
    s_cbranch_scc1 L_b_w0tail
    """)
    for n in range(32, 40):
        for jb in b_issue_jobs(n): emit_job(a, jb)
    a.e("""
    s_cmp_eq_u32 s39, 1
    s_cbranch_scc0 L_b_noshare
    v_subrev_u32 v22, 16384, v6
    v_subrev_u32 v23, 16384, v7
    """)
    for n in range(32, 40):
        c = SEQ[n][1]; pos = n % NSLOT
        a.e(f"s_mov_b32 m0, {pos*8192}")
        a.e(f"s_mov_b32 s61, {c*65536}")
        a.e(f"buffer_load_dwordx4 v22, s[48:51], s61 offen lds")
        a.e(f"buffer_load_dwordx4 v23, s[48:51], s61 offen offset:1024 lds")
    a.label("L_b_noshare")
    pq_first("a")
    a.e("s_waitcnt vmcnt(8)")
    a.e("s_branch L_b_tailjoin")
    a.label("L_b_w0tail")
    reducer(a, cfg)
    pq_first("b")
    a.label("L_b_tailjoin")
    a.vm = []; a.lg = []
    stamp(a, cfg, 7)
    if not cfg.do_B2:
        stamp(a, cfg, 8)
        stamps_out(a, cfg, 9)
        a.e("s_branch L_end")
        return
    role_B2(a, cfg)

def tag_check(a, regs_tags, acc="v20"):
    tt = 0
    for idx in range(8):
        s0, s1, s2 = (idx >> 2) & 1, (idx >> 1) & 1, idx & 1
        if s0 | (s1 ^ s2): tt |= 1 << idx
    first = True
    for r in regs_tags:
        if first:
            a.e(f"v_xor_b32 {acc}, s38, v{r}"); first = False
        else:
            a.e(f"v_bitop3_b32 {acc}, {acc}, v{r}, s38 bitop3:{hex(tt)}")
    a.e(f"v_cmp_ne_u32 vcc, 0, {acc}")

def reducer(a, cfg):
    def reduce_line(base, dst_addr, tagsok_label):
        S = 64; T = 68
        for k in range(4):
            r = base + 4*k
            for pidx in range(2):
                src = r + 2*pidx
                if k == 0:
                    a.e(f"v_lshlrev_b32 v{S+2*pidx}, 16, v{src}")
                    a.e(f"v_and_b32 v{S+1+2*pidx}, 0xffff0000, v{src}")
                else:
                    a.e(f"v_lshlrev_b32 v{T+2*pidx}, 16, v{src}")
                    a.e(f"v_and_b32 v{T+1+2*pidx}, 0xffff0000, v{src}")
                    a.e(f"v_add_f32 v{S+2*pidx}, v{S+2*pidx}, v{T+2*pidx}")
                    a.e(f"v_add_f32 v{S+1+2*pidx}, v{S+1+2*pidx}, v{T+1+2*pidx}")
        for j in range(4): a.e(f"v_add_f32_dpp v{S+j}, v{S+j}, v{S+j} row_ror:8 row_mask:0xf bank_mask:0xf")
        for j in range(4): a.e(f"v_mov_b32 v{T+j}, v{S+j}")
        for j in range(4): a.e(f"v_permlane16_swap_b32 v{S+j}, v{T+j}")
        for j in range(4): a.e(f"v_add_f32 v{S+j}, v{S+j}, v{T+j}")
        for j in range(4): a.e(f"v_mov_b32 v{T+j}, v{S+j}")
        for j in range(4): a.e(f"v_permlane32_swap_b32 v{S+j}, v{T+j}")
        for j in range(4): a.e(f"v_add_f32 v{S+j}, v{S+j}, v{T+j}")
        a.e(f"""
        v_cvt_pk_bf16_f32 v72, v{S}, v{S+1}
        v_mov_b32 v73, s38
        v_cvt_pk_bf16_f32 v74, v{S+2}, v{S+3}
        v_mov_b32 v75, s38
        s_mov_b64 exec, 0xff
        global_store_dwordx4 {dst_addr}, v[72:75], s[36:37] sc1
        s_mov_b64 exec, -1
        """)
    a.e(f"""
    s_lshr_b32 s66, s3, 4
    s_and_b32 s67, s3, 15
    s_mul_i32 s69, s66, {32*KVBLK}
    s_add_u32 s69, s69, {KVP}
    s_lshl_b32 s52, s67, 7
    s_add_u32 s68, s69, s52
    v_and_b32 v22, 7, v1
    v_lshlrev_b32 v22, 4, v22
    v_lshrrev_b32 v23, 3, v1
    v_mul_u32_u24 v23, {KVBLK}, v23
    v_add_u32 v23, v22, v23
    v_add_u32 v24, s68, v23
    v_add_u32 v25, {8*KVBLK}, v24
    v_add_u32 v26, {16*KVBLK}, v24
    v_add_u32 v27, {24*KVBLK}, v24
    s_add_u32 s68, s69, 2048
    v_add_u32 v8, s68, v23
    v_add_u32 v9, {8*KVBLK}, v8
    v_add_u32 v10, {16*KVBLK}, v8
    v_add_u32 v11, {24*KVBLK}, v8
    s_mul_i32 s69, s66, {KVBLK}
    s_add_u32 s69, s69, {KVF}
    s_add_u32 s68, s69, s52
    v_add_u32 v23, s68, v22
    s_add_u32 s68, s69, 2048
    v_add_u32 v29, s68, v22
    """)
    a.e("""
    s_mov_b32 s61, 0
    """)
    a.label("L_b_red_poll")
    a.e("""
    global_load_dwordx4 v[96:99], v24, s[36:37] sc1
    global_load_dwordx4 v[100:103], v25, s[36:37] sc1
    global_load_dwordx4 v[104:107], v26, s[36:37] sc1
    global_load_dwordx4 v[108:111], v27, s[36:37] sc1
    s_add_u32 s61, s61, 1
    s_cmp_lg_u32 s67, 0
    s_cbranch_scc1 L_b_red_one
    global_load_dwordx4 v[112:115], v8, s[36:37] sc1
    global_load_dwordx4 v[116:119], v9, s[36:37] sc1
    global_load_dwordx4 v[120:123], v10, s[36:37] sc1
    global_load_dwordx4 v[124:127], v11, s[36:37] sc1
    s_waitcnt vmcnt(0)
    """)
    tag_check(a, [97+2*q for q in range(16)])
    a.e("s_branch L_b_red_chk")
    a.label("L_b_red_one")
    a.e("s_waitcnt vmcnt(0)")
    tag_check(a, [97+2*q for q in range(8)])
    a.label("L_b_red_chk")
    a.e(f"""
    s_cmp_gt_u32 s61, {SPIN_LIMIT}
    s_cbranch_scc1 L_b_red_go
    s_cbranch_vccz L_b_red_go
    s_sleep {cfg.sl_red}
    s_branch L_b_red_poll
    """)
    a.label("L_b_red_go")
    a.e("""
    s_cmp_lg_u32 s67, 0
    s_cbranch_scc1 L_b_red_a
    """)
    reduce_line(112, "v29", None)
    a.label("L_b_red_a")
    reduce_line(96, "v23", None)
    stamp(a, cfg, 10)

def role_B2(a, cfg):
    WO = 128
    ACC = 96
    PQR = 32
    CN = [64, 80]
    KAF = [8, 12]
    OF = [4, 16]
    KA = 0
    PQL = 17408
    a.c("================= B2 =================")
    a.e("s_barrier")
    for i in range(16):
        for nt in range(2):
            d = WO + 8*i + 4*nt
            off = (i//4)*8192 + (i % 4)*2048
            a.e(f"ds_read_b64_tr_b16 v[{d}:{d+1}], v{18+nt} offset:{off}", lg="wo")
            a.e(f"ds_read_b64_tr_b16 v[{d+2}:{d+3}], v{18+nt} offset:{off+1024}", lg="wo")
    a.e("s_waitcnt lgkmcnt(0)")
    a.e("s_barrier")
    a.vm = []; a.lg = []
    stamp(a, cfg, 9)
    if cfg.zpoll:
        a.e("""
        s_mov_b32 s61, 0
        s_cmp_eq_u32 s39, 0
        s_cbranch_scc0 L_b_kz_go
        """)
        a.label("L_b_kz_poll")
        a.e(f"""
        buffer_load_dwordx4 v[96:99], v30, s[40:43], 0 offen sc1
        s_add_u32 s61, s61, 1
        s_waitcnt vmcnt(0)
        v_xor_b32 v20, s38, v97
        v_cmp_ne_u32 vcc, 0, v20
        s_cmp_gt_u32 s61, {SPIN_LIMIT}
        s_cbranch_scc1 L_b_kz_go
        s_cbranch_vccz L_b_kz_go
        s_sleep {cfg.sl_kz}
        s_branch L_b_kz_poll
        """)
        a.label("L_b_kz_go")
        stamp(a, cfg, 11)
        a.e("s_barrier")
    PB = 17408
    a.e(f"""
    v_and_b32 v24, 31, v1
    s_lshl_b32 s68, s58, 5
    v_add_u32 v24, s68, v24            ; token
    v_mul_u32_u24 v24, 272, v24
    v_lshrrev_b32 v25, 5, v1
    v_lshl_add_u32 v24, v25, 4, v24    ; + hh*16
    s_mul_i32 s68, s59, {64*272}
    s_add_u32 s68, s68, {PB}
    v_add_u32 v24, s68, v24
    v_lshrrev_b32 v26, 3, v0
    v_mul_u32_u24 v25, 272, v26
    v_and_b32 v27, 7, v0
    v_lshl_add_u32 v25, v27, 5, v25
    v_add_u32 v25, {PB}, v25
    s_lshl_b32 s68, s56, 6
    v_add_u32 v26, s68, v26
    v_lshlrev_b32 v26, 11, v26
    s_lshl_b32 s68, s57, 7
    s_add_u32 s68, s68, 1024
    v_lshl_add_u32 v26, v27, 4, v26
    v_add_u32 v26, s68, v26
    v_add_u32 v27, {32*2048}, v26
    v_and_b32 v22, 31, v1
    v_min_u32 v22, 16, v22
    v_lshlrev_b32 v22, 4, v22
    v_lshrrev_b32 v23, 5, v1
    v_mul_u32_u24 v23, 272, v23
    s_mul_i32 s68, s59, {16*544}
    v_add3_u32 v22, v22, v23, s68
    """)
    def ka_loads():
        for k in range(8):
            a.e(f"buffer_load_dwordx4 v[{64+4*k}:{67+4*k}], v13, s[40:43], s{16+k} offen sc1")
        a.e("buffer_load_dwordx4 v[96:99], v14, s[40:43], 0 offen sc1")
    a.e("s_mov_b32 s61, 0")
    a.e("s_branch L_b_kvf_first")
    a.label("L_b_kvf_poll")
    a.e(f"s_sleep {cfg.sl_ka}")
    a.label("L_b_kvf_first")
    ka_loads()
    a.e("s_waitcnt vmcnt(0)")
    a.label("L_b_ka_chk")
    a.e("s_add_u32 s61, s61, 1")
    tag_check(a, [65+2*q for q in range(18)])
    a.e(f"""
    s_cmp_gt_u32 s61, {SPIN_LIMIT}
    s_cbranch_scc1 L_b_kvf_go
    s_cbranch_vccnz L_b_kvf_poll
    """)
    a.label("L_b_kvf_go")
    stamp(a, cfg, 12)
    stampval(a, cfg, 8, "s61")
    a.vm = []
    for k in range(8):
        a.e(f"v_mov_b32 v{65+4*k}, v{66+4*k}")
        a.e(f"ds_write_b64 v15, v[{64+4*k}:{65+4*k}] offset:{KA + 2176*k}")
    a.e("v_mov_b32 v97, v98")
    a.e(f"ds_write_b64 v12, v[96:97] offset:{KA}")
    a.e(f"""
    s_waitcnt vmcnt(0) lgkmcnt(0)
    s_barrier
    """)
    a.vm = []; a.lg = []
    stamp(a, cfg, 13)
    if cfg.prioBw is not None: a.e(f"s_setprio {cfg.prioBm}")
    def kaf_read(i):
        a.e(f"ds_read_b128 v[{KAF[i%2]}:{KAF[i%2]+3}], v22 offset:{KA + 544*i}", lg=f"ka{i}")
    def out_mfma(i):
        o = OF[i % 2]
        for nt in range(2):
            w = WO + 8*i + 4*nt
            cc = "0" if i == 0 else f"v[{ACC+16*nt}:{ACC+16*nt+15}]"
            a.e(f"v_mfma_f32_32x32x16_bf16 v[{ACC+16*nt}:{ACC+16*nt+15}], v[{w}:{w+3}], v[{o}:{o+3}], {cc}")
    def num_mfma(i):
        a.wait_lg(f"ka{i}")
        p = PQR + 4*(i % 8)
        if i >= 8: a.wait_vm(f"pq{i}")
        a.e(f"v_mfma_f32_32x32x16_bf16 v[{CN[i%2]}:{CN[i%2]+15}], v[{KAF[i%2]}:{KAF[i%2]+3}], v[{p}:{p+3}], 0")
        if i < 8:
            a.e(f"buffer_load_dwordx4 v[{p}:{p+3}], v31, s[40:43], s{8+i} offen sc1", vm=f"pq{i+8}")
    def out1(i, nt):
        o = OF[i % 2]
        w = WO + 8*i + 4*nt
        cc = "0" if i == 0 else f"v[{ACC+16*nt}:{ACC+16*nt+15}]"
        a.e(f"v_mfma_f32_32x32x16_bf16 v[{ACC+16*nt}:{ACC+16*nt+15}], v[{w}:{w+3}], v[{o}:{o+3}], {cc}")
    kaf_read(0); kaf_read(1)
    num_mfma(0)
    for i in range(16):
        if i >= cfg.x_main: break
        if i + 1 < 16:
            num_mfma(i + 1)
        c = CN[i % 2]
        a.e(f"v_add_f32 v20, s64, v{c+8}")
        a.e(f"v_rcp_f32 v20, v20")
        if i + 2 < 16:
            kaf_read(i + 2)
        for jj in range(2): a.e(f"v_mul_f32 v{c+jj}, v{c+jj}, v20")
        if i >= 1: out1(i - 1, 0)
        for jj in range(2, 7): a.e(f"v_mul_f32 v{c+jj}, v{c+jj}, v20")
        if i >= 1: out1(i - 1, 1)
        a.e(f"v_mul_f32 v{c+7}, v{c+7}, v20")
        o = OF[i % 2]
        for m in range(4):
            a.e(f"v_cvt_pk_bf16_f32 v{o+m}, v{c+2*m}, v{c+2*m+1}")
    out1(15, 0); out1(15, 1)
    stamp(a, cfg, 14)
    a.e("""
    s_cmp_lg_u32 s3, 0
    s_cbranch_scc1 L_b_norst
    s_cmp_lg_u32 s39, 0
    s_cbranch_scc1 L_b_norst
    v_mov_b32 v20, 0
    s_mov_b64 exec, 1
    global_store_dword v20, v20, s[34:35] sc1
    s_mov_b64 exec, -1
    """)
    a.label("L_b_norst")
    a.vm = []
    for nt in range(2):
        for q in range(4):
            r = ACC + 16*nt + 4*q
            a.e(f"ds_write_b128 v24, v[{r}:{r+3}] offset:{nt*128 + q*32}")
    a.e("s_waitcnt lgkmcnt(0)")
    a.e("s_barrier")
    for r in range(2):
        o = r*32*272
        a.e(f"ds_read_b128 v[{32+16*r}:{35+16*r}], v25 offset:{o}")
        a.e(f"ds_read_b128 v[{40+16*r}:{43+16*r}], v25 offset:{o+64*272}")
        a.e(f"ds_read_b128 v[{36+16*r}:{39+16*r}], v25 offset:{o+16}")
        a.e(f"ds_read_b128 v[{44+16*r}:{47+16*r}], v25 offset:{o+64*272+16}")
    for r in range(2):
        a.e(f"s_waitcnt lgkmcnt({4 if r == 0 else 0})")
        b = 32 + 16*r
        for jj in range(8):
            a.e(f"v_add_f32 v{b+jj}, v{b+jj}, v{b+8+jj}")
        for m in range(4):
            a.e(f"v_cvt_pk_bf16_f32 v{64+4*r+m}, v{b+2*m}, v{b+2*m+1}")
        a.e(f"global_store_dwordx4 v{26+r}, v[{64+4*r}:{67+4*r}], s[32:33] {cfg.outfl}")
    stamps_out(a, cfg, 15)

TV = 240
def a_touch_setup(a, cfg):
    a.e(f"""
    s_lshr_b32 s62, s40, 1          ; tg
    s_and_b32 s63, s40, 1           ; hg
    s_lshl_b32 s64, s62, 9
    s_lshl_b32 s65, s41, 4          ; 16*jj
    s_add_u32 s64, s64, s65
    v_and_b32 v246, 15, v1
    v_lshrrev_b32 v247, 4, v1       ; 0..3
    v_add_u32 v241, s64, v246
    v_lshlrev_b32 v241, 10, v241
    v_lshl_add_u32 v241, v247, 7, v241
    v_add_u32 v241, 512, v241
    v_and_b32 v248, 3, v1
    v_lshlrev_b32 v248, 7, v248     ; line*128
    s_lshl_b32 s66, s63, 9          ; hg*512
    v_lshrrev_b32 v249, 2, v1
    v_add_u32 v240, s65, v249       ; 16jj + (l>>2)
    v_mul_u32_u24 v242, 3072, v240
    v_add3_u32 v242, v242, v248, s66
    v_add_u32 v244, 2048, v242      ; V
    v_lshlrev_b32 v245, 10, v240
    v_add3_u32 v245, v245, v248, s66
    v_and_b32 v249, 7, v249
    s_lshl_b32 s67, s41, 3
    s_add_u32 s67, s67, 256
    v_add_u32 v249, s67, v249
    v_mul_u32_u24 v243, 3072, v249
    v_add3_u32 v243, v243, v248, s66
    v_add_u32 v240, 1024, v242
    """)

def a_touch(a, cfg, plan):
    fl = cfg.touch_flags
    info = {"x1": (241, "s[26:27]"), "q47": (243, "s[28:29]"), "k": (240, "s[28:29]"), "v": (244, "s[28:29]"), "o": (245, "s[30:31]")}
    for w, names in plan.items():
        L = a.newlabel("tch")
        a.e(f"s_cmp_eq_u32 s39, {w}")
        a.e(f"s_cbranch_scc0 {L}")
        for i, nm in enumerate(names):
            v, base = info[nm]
            a.e(f"global_load_dword v{250+i}, v{v}, {base} {fl}")
            a.vm.pop()
        a.label(L)

def role_A(a, cfg):
    a.label("L_roleA")
    a.e("""
    s_and_b32 s40, s3, 7
    s_lshr_b32 s41, s3, 3           ; j
    s_waitcnt lgkmcnt(0)
    """)
    if not cfg.do_A:
        if cfg.touch:
            a_touch_setup(a, cfg)
            a_touch(a, cfg, {2: ["x1"], 3: ["q47"]})
            a.e("s_waitcnt vmcnt(0)")
            a_touch(a, cfg, {1: ["k"], 2: ["v"], 3: ["o"]})
            a.e("s_waitcnt vmcnt(0)")
        a.e("s_branch L_end")
        return
    import role_a
    role_a.role_A(a, cfg)

def build(cfg):
    global DMAFL
    DMAFL = cfg.dmafl
    a = Asm()
    prologue(a, cfg)
    if cfg.do_B:
        role_B(a, cfg)
    a.e("s_branch L_end")
    a.vm = []
    role_A(a, cfg)
    a.label("L_end")
    a.e("s_endpgm")
    body = a.render()
    return body, a

HEADER = open("concat_heads__ssm_conv_s4__linear_attn_block__prompt.s.ref").read().split("; Override launch")[0]

def generate(path, cfg):
    body, a = build(cfg)
    txt = wrap(body, HEADER, 512, 256, 81920)
    open(path, "w").write(txt)
    return a

if __name__ == "__main__":
    sys.modules["kern"] = sys.modules["__main__"]
    cfg = Cfg()
    cfg.stamps = True
    if len(sys.argv) > 2:
        for kv in sys.argv[2:]:
            k, v = kv.split("=")
            setattr(cfg, k, int(v) if v.isdigit() else v)
    a = generate(sys.argv[1] if len(sys.argv) > 1 else "k_b1.s", cfg)
    print("nops inserted:", a.nnops)
```

```python
import sys
from asmlib import Asm, wrap

UT   = 0
YT   = 4 << 20
PQ   = 8 << 20
PQF  = 10 << 20
KVP  = (10 << 20) + (64 << 10)
KVF  = 12 << 20
UTF  = (12 << 20) + (64 << 10)
YTF  = (12 << 20) + (96 << 10)
BDN  = (12 << 20) + (112 << 10)
KVBLK = 2176
LOG2E = 0x3fb8aa3b
EPS   = 0x358637bd
SPIN_LIMIT = 200000

class Cfg:
    do_A = True
    do_B = True
    do_B2 = True
    touch = True
    dual = False
    x_nowrite = False
    prioA = 2
    prioA2 = 0
    dbgT = 0
    late_prio = 1
    bfirst = 0
    prioBw = 1
    prioBm = 3
    gate = 0
    gate_max = 40
    x_exit = ""
    x_conv = 32
    x_tab = 0
    x_main = 16
    x_epi = 0
    locfl = ""
    mid_u = 1
    qe_end = 26
    pqflag_g = 14
    dmafl = ""
    aldfl = ""
    zpoll = 0
    sl_ka = 1
    sl_kz = 1
    sl_pq = 1
    sl_red = 1
    sl_yt = 1
    sl_ut = 1
    late_o = 1
    yglobal = 0
    utclean = 0
    outfl = "sc1"
    uttouch = 0
    ninit = 8
    dbgN = 0
    ut_patience = 200
    flagpos = 0
    ytouch = 1
    dbgY = 0
    prioA3 = 0
    prioB = 1
    pk = 1
    b_exit = False
    touch_flags = ""
    early_release = True
    dma_early = False
    last_dma = 40
    late_pre = 0
    touch_mode = "late"
    stamps = False

STAMP_BASE = 14 << 20
def stamp(a, cfg, i):
    if cfg.stamps == 1:
        a.e(f"s_memtime s[{70+2*i}:{71+2*i}]")
def stampval(a, cfg, i, sreg):
    if cfg.stamps == 1:
        a.e("s_waitcnt lgkmcnt(0)")
        a.e(f"s_add_u32 s{70+2*i}, {sreg}, s70")
def stamps_out(a, cfg, n, vt=22):
    if not cfg.stamps: return
    a.e("s_memrealtime s[68:69]")
    a.e("s_waitcnt lgkmcnt(0) vmcnt(0)")
    a.vm = []
    if cfg.stamps == 2: n = 1
    for i in range(1, n):
        a.e(f"s_sub_u32 s{70+2*i}, s{70+2*i}, s70")
    a.e(f"""
    s_lshl_b32 s61, s2, 2
    s_add_u32 s61, s61, s39
    s_lshl_b32 s61, s61, 6
    s_add_u32 s61, s61, {STAMP_BASE}
    v_mov_b32 v{vt}, s61
    s_mov_b64 exec, 1
    """)
    for i in range(16):
        src = f"s{70+2*i}" if (0 < i < n) else ("s68" if i == 15 else ("s100" if i == 0 else "0"))
        a.e(f"v_mov_b32 v{vt+1}, {src}")
        a.e(f"global_store_dword v{vt}, v{vt+1}, s[36:37] offset:{4*i}")
        a.e("s_nop 1")
    a.e("s_waitcnt vmcnt(0)")
    a.e("s_mov_b64 exec, -1")
    a.vm = []

def prologue(a, cfg):
    if cfg.stamps:
        a.e("s_memrealtime s[100:101]")
        a.e("s_memtime s[70:71]")
    a.e("""
    s_cmp_ge_u32 s2, 512
    s_cbranch_scc1 L_end
    s_load_dwordx16 s[8:23], s[0:1], 0
    s_load_dwordx8 s[24:31], s[0:1], 64
    s_load_dwordx4 s[32:35], s[0:1], 96
    s_load_dwordx2 s[36:37], s[0:1], 112
    v_lshrrev_b32 v1, 6, v0
    v_readfirstlane_b32 s39, v1
    v_and_b32 v1, 63, v0
    s_and_b32 s3, s2, 255
    s_cmp_lt_u32 s2, 256
    """)
    a.e("s_cbranch_scc1 L_roleA" if not cfg.bfirst else "s_cbranch_scc0 L_roleA")

def poll_nonce(a, vtmp, vaddr0, first_tag=None):
    L = a.newlabel("nonce"); Lx = a.newlabel("nonce_ok")
    if first_tag:
        a.wait_vm(first_tag)
    else:
        a.e(f"global_load_dword {vtmp}, {vaddr0}, s[34:35] sc1")
        a.wait_vm_all()
    a.e(f"v_readfirstlane_b32 s38, {vtmp}")
    a.e(f"""
    s_cmp_lg_u32 s38, 0
    s_cbranch_scc1 {Lx}
    s_mov_b32 s61, 0
    """)
    a.label(L)
    a.e(f"""
    global_load_dword {vtmp}, {vaddr0}, s[34:35] sc1
    s_waitcnt vmcnt(0)
    v_readfirstlane_b32 s38, {vtmp}
    s_add_u32 s61, s61, 1
    s_cmp_gt_u32 s61, {SPIN_LIMIT}
    s_cbranch_scc1 {Lx}
    s_cmp_eq_u32 s38, 0
    s_cbranch_scc1 {L}
    """)
    a.vm.pop()
    a.label(Lx)

def phi_instrs(acc, tmp, out, zsum=None):
    L = []
    for i in range(16):
        L.append(f"v_mul_f32 v{tmp+i}, s62, v{acc+i}")
    for i in range(16):
        L.append(f"v_exp_f32 v{tmp+i}, v{tmp+i} clamp")
        L.append(f"v_max_f32 v{acc+i}, s64, v{acc+i}")
    for i in range(16):
        L.append(f"v_add_f32 v{acc+i}, v{acc+i}, v{tmp+i}")
    if zsum is not None:
        for m in range(8):
            L.append(f"v_add_f32 v{tmp+m}, v{acc+2*m}, v{acc+2*m+1}")
        for m in range(4):
            L.append(f"v_add_f32 v{tmp+m}, v{tmp+m}, v{tmp+4+m}")
        L.append(f"v_add_f32 v{tmp}, v{tmp}, v{tmp+2}")
        L.append(f"v_add_f32 v{tmp+1}, v{tmp+1}, v{tmp+3}")
        L.append(f"v_add_f32 v{zsum}, v{tmp}, v{tmp+1}")
    for m in range(8):
        L.append(f"v_cvt_pk_bf16_f32 v{out+m}, v{acc+2*m}, v{acc+2*m+1}")
    return L

def spread(side, nslots):
    out = []; n = len(side); k = 0
    for i in range(nslots):
        e = (n*(i+1))//nslots
        out.append(side[k:e]); k = e
    return out

SEQ = []
for c in range(8): SEQ += [("X", c), ("Q", c)]
SEQ += [("K", c) for c in range(8)] + [("V", c) for c in range(8)] + [("O", c) for c in range(8)]
NSLOT = 10
NINIT = 6
XR = 128
WF, T16, ACCQ, ACCK, ACCV = 32, 64, 80, 96, 112

DMAFL = ""
def b_issue_jobs(n):
    kind, c = SEQ[n]
    pos = n % NSLOT
    pre = []
    if kind == "X":
        so, v0, srd = f"s{16+c}", 2, "s[40:43]"
    elif kind in "QKV":
        so, v0, srd = f"s{8+c}", 4, "s[44:47]"
        if kind in "KV" and c == 0:
            pre = [("v_add_u32 v4, 1024, v4", None), ("v_add_u32 v5, 1024, v5", None)]
    else:
        so, v0, srd = "s61", 6, "s[48:51]"
        pre = [(f"s_mov_b32 s61, {c*65536}", None)]
    return [pre + [(f"s_add_u32 m0, s60, {pos*8192}", None),
             (f"buffer_load_dwordx4 v{v0}, {srd}, {so} offen {DMAFL} lds", f"slot{n}")],
            [(f"buffer_load_dwordx4 v{v0+1}, {srd}, {so} offen offset:1024 {DMAFL} lds", f"slot{n}")]]

def emit_job(a, job):
    for t in job:
        if isinstance(t, str): a.e(t)
        else: a.e(t[0], vm=t[1])

def lds_base(n):
    pos = n % NSLOT
    return (0, pos*8192) if pos < 5 else (1, (pos-5)*8192)

def wfrag_reads(a, n, s, dst, tag=None):
    hi, off = lds_base(n)
    va = "v17" if hi else "v16"
    a.e(f"ds_read_b64_tr_b16 v[{dst}:{dst+1}], {va} offset:{off + s*2048}", lg=tag)
    a.e(f"ds_read_b64_tr_b16 v[{dst+2}:{dst+3}], {va} offset:{off + s*2048 + 512}", lg=tag)

def role_B(a, cfg):
    a.c("================= role B =================")
    if cfg.prioB: a.e(f"s_setprio {3 if cfg.late_prio else cfg.prioB}")
    a.e("""
    s_and_b32 s66, s3, 7            ; xcd
    s_lshr_b32 s67, s3, 3           ; jj
    s_lshr_b32 s56, s66, 1
    s_lshl_b32 s56, s56, 3
    s_and_b32 s68, s67, 7
    s_add_u32 s56, s56, s68         ; tb
    s_and_b32 s57, s66, 1
    s_lshl_b32 s57, s57, 2
    s_lshr_b32 s68, s67, 3
    s_add_u32 s57, s57, s68         ; hq
    s_and_b32 s58, s39, 1           ; tt
    s_lshr_b32 s59, s39, 1
    s_lshl_b32 s60, s39, 11
    s_mov_b32 s62, 0x3fb8aa3b
    s_mov_b32 s63, 0x3fb8aa3b
    s_mov_b32 s64, 0x358637bd
    s_mov_b32 s65, 0x358637bd
    """)
    a.e("""
    v_lshrrev_b32 v32, 3, v1        ; l>>3
    v_and_b32 v33, 7, v1            ; l&7
    v_lshrrev_b32 v34, 4, v1        ; l>>4
    s_lshl_b32 s68, s56, 6          ; tb*64
    s_lshl_b32 s69, s39, 4          ; 16w
    s_add_u32 s68, s68, s69
    v_add_u32 v35, s68, v32         ; row
    v_lshlrev_b32 v35, 10, v35
    v_xor_b32 v36, v33, v34
    v_lshl_add_u32 v2, v36, 4, v35
    v_add_u32 v37, 4, v34
    v_xor_b32 v36, v33, v37
    v_lshl_add_u32 v3, v36, 4, v35
    v_add_u32 v3, 7168, v3          ; +8 rows - 1024
    v_and_b32 v36, 1, v34
    v_lshlrev_b32 v36, 2, v36
    v_xor_b32 v36, v33, v36         ; q
    v_lshlrev_b32 v36, 4, v36       ; q*16
    v_add_u32 v37, s69, v32         ; 16w + (l>>3)
    v_mul_u32_u24 v38, 3072, v37
    s_lshl_b32 s68, s57, 7          ; hq*128
    v_add3_u32 v4, v38, v36, s68
    v_add_u32 v5, 23552, v4         ; +8*3072 - 1024
    v_lshlrev_b32 v38, 10, v37
    v_add3_u32 v6, v38, v36, s68
    v_add_u32 v7, 7168, v6
    """)
    a.e("""
    s_waitcnt lgkmcnt(0)
    s_mov_b32 s40, s26
    s_and_b32 s41, s27, 0xffff
    s_mov_b32 s42, 0x200000
    s_mov_b32 s43, 0x20000
    s_mov_b32 s44, s28
    s_and_b32 s45, s29, 0xffff
    s_mov_b32 s46, 0x180000
    s_mov_b32 s47, 0x20000
    s_mov_b32 s48, s30
    s_and_b32 s49, s31, 0xffff
    s_mov_b32 s50, 0x80000
    s_mov_b32 s51, 0x20000
    """)
    a.e("""
    v_mov_b32 v31, 0
    s_cmp_lg_u32 s3, 0
    s_cbranch_scc1 L_b_nononce
    s_cmp_lg_u32 s39, 0
    s_cbranch_scc1 L_b_nononce
    s_memrealtime s[68:69]
    s_waitcnt lgkmcnt(0)
    s_or_b32 s68, s68, 1
    v_mov_b32 v30, s68
    s_mov_b64 exec, 1
    global_store_dword v31, v30, s[34:35] sc1
    s_mov_b64 exec, -1
    """)
    a.vm.pop()
    a.label("L_b_nononce")
    if cfg.b_exit:
        a.e("s_branch L_end")
    for c in range(8):
        a.e(f"s_mov_b32 s{8+c}, {c*64*3072}")
        a.e(f"s_mov_b32 s{16+c}, {c*128}")
    stamp(a, cfg, 1)
    for n in range(cfg.ninit):
        for job in b_issue_jobs(n): emit_job(a, job)
    if cfg.late_prio: a.e(f"s_setprio {cfg.prioB}")
    a.e("""
    v_and_b32 v32, 31, v1           ; i
    v_lshrrev_b32 v33, 5, v1        ; hh
    s_lshl_b32 s68, s58, 5
    v_add_u32 v34, s68, v32         ; 32tt + i
    v_lshlrev_b32 v34, 7, v34       ; *128
    v_lshrrev_b32 v35, 1, v32
    v_and_b32 v35, 7, v35           ; f
    """)
    for s in range(4):
        a.e(f"""
        v_add_u32 v36, {2*s}, v33
        v_xor_b32 v36, v36, v35
        v_lshl_add_u32 v{8+s}, v36, 4, v34
        v_add_u32 v{12+s}, 40960, v{8+s}
        """)
    a.e(f"""
    v_lshrrev_b32 v34, 2, v1
    v_and_b32 v34, 3, v34           ; rr
    v_and_b32 v35, 3, v1            ; cc
    v_lshrrev_b32 v36, 4, v1
    v_and_b32 v36, 1, v36           ; G&1
    v_lshlrev_b32 v36, 1, v36       ; 2(G&1)
    v_lshrrev_b32 v37, 1, v35       ; cc>>1
    v_add_u32 v36, v36, v37         ; 2(G&1) + (cc>>1)
    v_lshrrev_b32 v37, 1, v34
    v_lshlrev_b32 v37, 2, v37       ; 4(rr>>1)
    v_and_b32 v38, 1, v35
    v_lshlrev_b32 v38, 3, v38       ; 8(cc&1)
    s_lshl_b32 s68, s59, 2
    v_add_u32 v39, s68, v36
    v_xor_b32 v39, v39, v37
    v_lshl_add_u32 v39, v39, 4, v38
    v_lshl_add_u32 v40, v33, 3, v34
    v_lshl_add_u32 v16, v40, 7, v39
    v_add_u32 v17, 40960, v16
    v_xor_b32 v39, v36, v37
    v_lshl_add_u32 v39, v39, 4, v38
    v_lshl_add_u32 v40, v33, 2, v34
    v_lshl_add_u32 v18, v40, 7, v39
    s_lshl_b32 s68, s59, 15
    s_add_u32 s68, s68, 16384
    v_add_u32 v18, s68, v18
    v_xor_b32 v19, 64, v18
    s_lshl_b32 s68, s59, 1
    s_add_u32 s68, s68, s58
    s_xor_b32 s69, s68, 1
    s_lshl_b32 s66, s68, 10
    s_add_u32 s66, s66, 0
    v_lshl_add_u32 v22, v1, 4, s66
    s_lshl_b32 s66, s69, 10
    s_add_u32 s66, s66, 0
    v_lshl_add_u32 v23, v1, 4, s66
    s_lshl_b32 s66, s68, 8
    s_add_u32 s66, s66, 4096
    v_lshl_add_u32 v24, v1, 2, s66
    s_lshl_b32 s66, s69, 8
    s_add_u32 s66, s66, 4096
    v_lshl_add_u32 v25, v1, 2, s66
    ; global kv partial block: KVP + (hp*32+tb)*2176
    s_lshl_b32 s68, s57, 1
    s_add_u32 s68, s68, s59
    s_lshl_b32 s68, s68, 5
    s_add_u32 s68, s68, s56
    s_mul_i32 s68, s68, 2176
    s_add_u32 s68, s68, {KVP}
    s_lshl_b32 s69, s58, 10
    s_add_u32 s69, s69, s68
    v_lshl_add_u32 v26, v1, 4, s69
    v_lshrrev_b32 v40, 4, v1
    v_and_b32 v40, 1, v40
    v_lshlrev_b32 v40, 3, v40       ; 8c
    v_and_b32 v41, 4, v1            ; 4*hh'
    v_add_u32 v40, v40, v41
    v_lshrrev_b32 v41, 2, v1
    v_and_b32 v41, 2, v41
    v_add_u32 v40, v40, v41
    v_lshrrev_b32 v41, 1, v1
    v_and_b32 v41, 1, v41
    v_add_u32 v40, v40, v41         ; zg
    s_add_u32 s68, s68, 2048
    v_lshl_add_u32 v27, v40, 3, s68
    s_lshl_b32 s68, s56, 1
    s_add_u32 s68, s68, s58
    s_lshl_b32 s68, s68, 5
    s_lshl_b32 s69, s57, 2
    s_add_u32 s68, s68, s69
    s_lshl_b32 s69, s59, 1
    s_add_u32 s68, s68, s69
    s_lshl_b32 s68, s68, 10
    s_add_u32 s68, s68, {PQ}
    v_lshl_add_u32 v28, v1, 4, s68
    v_and_b32 v40, 16, v1
    v_cmp_ne_u32 s[52:53], 0, v40
    s_sub_u32 s54, 0, s58
    s_mov_b32 s55, s54
    """)
    a.e(f"""
    s_cmp_lg_u32 s39, 3
    s_cbranch_scc1 L_b_nopt
    s_lshl_b32 s68, s56, 7
    s_add_u32 s68, s68, {PQF}
    v_mov_b32 v40, s68
    global_load_dword v21, v40, s[36:37] sc1
    """)
    a.vm.pop()
    a.label("L_b_nopt")
    for r in range(16):
        a.e(f"v_mov_b32 v{ACCQ+r}, s64")
    for r in range(16):
        a.e(f"v_mov_b32 v{ACCK+r}, s64")
    def frag_reads(g, k):
        L = []
        tag = f"f{g}_{k}"
        if g < 8:
            nx, nw = 2*g, 2*g+1
            hi, off = lds_base(nx)
            L.append((f"ds_read_b128 v[{XR+16*g+4*k}:{XR+16*g+4*k+3}], v{(12 if hi else 8)+k} offset:{off}", tag))
            d = WF + 16*(g % 2) + 4*k; n = nw; sstep = k
        else:
            n = 2*g + k//4; sstep = k % 4; d = WF + 4*k
        h2, o2 = lds_base(n)
        va = "v17" if h2 else "v16"
        L.append((f"ds_read_b64_tr_b16 v[{d}:{d+1}], {va} offset:{o2 + sstep*2048}", tag))
        L.append((f"ds_read_b64_tr_b16 v[{d+2}:{d+3}], {va} offset:{o2 + sstep*2048 + 512}", tag))
        return L
    def nsteps(g): return 4 if g < 8 else 8
    def emit_side(lst):
        for t in lst:
            if isinstance(t, str): a.e(t)
            elif t[0] == "WVM": a.wait_vm(t[1])
            else: a.e(t[0], vm=t[1])
    side = {}
    qe = phi_instrs(ACCQ, T16, ACCQ)
    qe += [(f"global_store_dwordx4 v28, v[{ACCQ}:{ACCQ+3}], s[36:37] sc1", "pqst"),
           (f"global_store_dwordx4 v28, v[{ACCQ+4}:{ACCQ+7}], s[36:37] offset:1024 sc1", "pqst")]
    gaps = [(g, k) for g in range(8, 12) for k in range(8)][1:cfg.qe_end]
    for gp, grp in zip(gaps, spread(qe, len(gaps))): side[gp] = grp
    ke = phi_instrs(ACCK, T16, ACCK, zsum=29)
    ke += ["v_mov_b32 v30, v29", "v_permlane32_swap_b32 v29, v30", "v_add_f32 v29, v29, v30"]
    gaps = [(g, k) for g in range(12, 16) for k in range(8)][1:31]
    for gp, grp in zip(gaps, spread(ke, len(gaps))): side[gp] = grp if not cfg.x_epi else []
    side[(9, 7)] = side.get((9, 7), []) + ["s_lshl_b32 s68, s56, 7", f"s_add_u32 s68, s68, {PQF}", "v_and_b32 v2, 7, v1", "v_lshl_add_u32 v2, v2, 2, s68"]
    rb = f"""
    s_mov_b32 s40, s36
    s_and_b32 s41, s37, 0xffff
    s_mov_b32 s42, {KVF + 65536}
    s_mov_b32 s43, 0x20000
    s_lshl_b32 s68, s56, 1
    s_add_u32 s68, s68, s58
    s_lshl_b32 s68, s68, 5
    s_lshl_b32 s69, s59, 4
    s_add_u32 s68, s68, s69
    s_lshl_b32 s68, s68, 10
    s_add_u32 s68, s68, {PQ}
    v_lshl_add_u32 v3, v1, 4, s68
    v_add_u32 v31, 8192, v3
    v_lshrrev_b32 v13, 7, v0
    v_mul_u32_u24 v13, {KVBLK}, v13
    v_and_b32 v20, 127, v0
    v_lshl_add_u32 v13, v20, 4, v13
    v_add_u32 v13, {KVF}, v13
    v_lshrrev_b32 v14, 3, v20
    v_mul_u32_u24 v14, {KVBLK}, v14
    v_and_b32 v21, 7, v0
    v_lshl_add_u32 v14, v21, 4, v14
    v_add_u32 v14, {KVF+2048}, v14
    v_lshrrev_b32 v15, 7, v0
    v_lshlrev_b32 v15, 1, v15
    v_bfe_u32 v21, v0, 4, 1
    v_add_u32 v15, v15, v21
    v_mul_u32_u24 v15, 544, v15
    v_bfe_u32 v21, v0, 5, 1
    v_mul_u32_u24 v21, 272, v21
    v_add_u32 v15, v15, v21
    v_and_b32 v21, 15, v0
    v_lshl_add_u32 v15, v21, 4, v15
    v_bfe_u32 v21, v0, 6, 1
    v_lshl_add_u32 v15, v21, 3, v15
    v_lshrrev_b32 v12, 3, v20
    v_lshlrev_b32 v12, 1, v12
    v_bfe_u32 v21, v0, 2, 1
    v_add_u32 v12, v12, v21
    v_mul_u32_u24 v12, 544, v12
    v_bfe_u32 v21, v0, 1, 1
    v_mul_u32_u24 v21, 272, v21
    v_add_u32 v12, v12, v21
    v_and_b32 v21, 1, v0
    v_lshl_add_u32 v12, v21, 3, v12
    v_add_u32 v12, 256, v12
    v_and_b32 v30, 15, v1
    v_mul_u32_u24 v30, {KVBLK}, v30
    v_add_u32 v30, {KVF+2048}, v30
    """.strip().split("\n")
    rb = [x.strip() for x in rb]
    rb += [f"s_mov_b32 s{8+i}, {1024*i}" for i in range(8)] + [f"s_mov_b32 s{16+k}, {2*KVBLK*k}" for k in range(8)]
    if not cfg.late_o:
        gaps = [(14, k) for k in range(5, 8)] + [(15, k) for k in range(8)]
        for gp, grp in zip(gaps, spread(rb, len(gaps))): side[gp] = side.get(gp, []) + grp

    def kv_publish():
        a.c("--- kv partial: V cvt, MFMA, select, pair exchange, publish")
        a.e("s_barrier")
        a.e("global_load_dword v21, v2, s[36:37] sc1", vm="pqf")
        if cfg.gate:
            a.e(f"""
            s_cmp_lg_u32 s39, 2
            s_cbranch_scc1 L_b_nogate
            s_and_b32 s68, s3, 7
            s_lshl_b32 s68, s68, 8
            s_lshr_b32 s69, s3, 3
            s_lshl_b32 s69, s69, 2
            s_add_u32 s68, s68, s69
            s_add_u32 s68, s68, {BDN}
            v_mov_b32 v20, s68
            v_mov_b32 v30, s38
            s_mov_b64 exec, 1
            global_store_dword v20, v30, s[36:37]
            s_mov_b64 exec, -1
            """)
            a.vm.pop()
            a.label("L_b_nogate")
        for m in range(8):
            a.e(f"v_cvt_pk_bf16_f32 v{ACCV+m}, v{ACCV+2*m}, v{ACCV+2*m+1}")
        a.e(f"v_mfma_f32_32x32x16_bf16 v[{T16}:{T16+15}], v[{ACCK}:{ACCK+3}], v[{ACCV}:{ACCV+3}], 0")
        a.e(f"v_mfma_f32_32x32x16_bf16 v[{T16}:{T16+15}], v[{ACCK+4}:{ACCK+7}], v[{ACCV+4}:{ACCV+7}], v[{T16}:{T16+15}]")
        a.e("ds_write_b32 v24, v29", lg="xw")
        SEL = ACCK + 8; SND = ACCV + 8; KEEP = ACCV + 12
        for j in range(8): a.e(f"v_cndmask_b32 v{SEL+j}, v{T16+j}, v{T16+8+j}, s[52:53]")
        for j in range(4): a.e(f"v_cndmask_b32 v{SND+j}, v{SEL+4+j}, v{SEL+j}, s[54:55]")
        a.e(f"ds_write_b128 v22, v[{SND}:{SND+3}]", lg="xw")
        for j in range(4): a.e(f"v_cndmask_b32 v{KEEP+j}, v{SEL+j}, v{SEL+4+j}, s[54:55]")
        a.wait_lg("xw")
        a.e("s_barrier")
        a.e(f"ds_read_b128 v[{SEL}:{SEL+3}], v23", lg="xr")
        a.e(f"ds_read_b32 v30, v25", lg="xr")
        a.wait_lg("xr")
        a.wait_vm("pqf")
        a.e("v_cmp_ne_u32 s[66:67], s38, v21")
        for j in range(4): a.e(f"v_add_f32 v{KEEP+j}, v{KEEP+j}, v{SEL+j}")
        a.e(f"""
        v_add_f32 v29, v29, v30
        v_cvt_pk_bf16_f32 v{SEL}, v{KEEP}, v{KEEP+1}
        v_mov_b32 v{SEL+1}, s38
        v_cvt_pk_bf16_f32 v{SEL+2}, v{KEEP+2}, v{KEEP+3}
        v_mov_b32 v{SEL+3}, s38
        v_mov_b32_dpp v30, v29 quad_perm:[1,0,3,2] row_mask:0xf bank_mask:0xf
        global_store_dwordx4 v26, v[{SEL}:{SEL+3}], s[36:37] sc1
        v_cvt_pk_bf16_f32 v{SEL+4}, v29, v30
        v_mov_b32 v{SEL+5}, s38
        s_andn2_b64 exec, 0x55555555, s[54:55]
        s_cbranch_execz L_b_noz
        global_store_dwordx2 v27, v[{SEL+4}:{SEL+5}], s[36:37] sc1
        """)
        a.vm.pop()
        a.label("L_b_noz")
        a.e("s_mov_b64 exec, -1")
        stamp(a, cfg, 6)

    a.wait_vm(["slot0", "slot1"])
    a.e("s_barrier")
    stamp(a, cfg, 2)
    for k in range(4):
        for t, tag in frag_reads(0, k): a.e(t, lg=tag)
    nxt = cfg.ninit
    pend = []
    while nxt < NSLOT:
        pend += b_issue_jobs(nxt); nxt += 1
    for g in range(16):
        a.c(f"--- group {g}")
        if g == 13: poll_nonce(a, "v21", "v31", first_tag="nonce")
        if g == cfg.pqflag_g: a.wait_vm("pqst")
        if g < 15:
            a.wait_vm([f"slot{2*g+2}", f"slot{2*g+3}"])
        a.e("s_barrier")
        if g == cfg.pqflag_g:
            a.e("""
            s_cmp_lg_u32 s39, 3
            s_cbranch_scc1 L_b_noflag
            s_lshl_b32 s68, s56, 7
            s_lshl_b32 s69, s57, 2
            s_add_u32 s68, s68, s69
            s_add_u32 s68, s68, %d
            v_mov_b32 v20, s68
            v_mov_b32 v21, s38
            s_mov_b64 exec, 1
            global_store_dword v20, v21, s[36:37] sc1
            s_mov_b64 exec, -1
            """ % PQF)
            a.vm.pop()
            a.label("L_b_noflag")
        if g in (1, 8, 12): stamp(a, cfg, {1: 3, 8: 4, 12: 5}[g])
        jobs = list(pend); pend = []
        if g >= 1:
            for _ in range(2):
                if nxt < (32 if cfg.late_o else 40): jobs += b_issue_jobs(nxt); nxt += 1
        if g == 9:
            jobs.append([("global_load_dword v21, v31, s[34:35] sc1", "nonce")])
        ns = nsteps(g)
        jsp = spread(jobs, ns)
        for k in range(ns):
            if k % 2 == 0: a.wait_lg([f"f{g}_{k}", f"f{g}_{k+1}"])
            if g < 8:
                d = WF + 16*(g % 2) + 4*k
                a.e(f"v_mfma_f32_32x32x16_bf16 v[{ACCQ}:{ACCQ+15}], v[{d}:{d+3}], v[{XR+16*g+4*k}:{XR+16*g+4*k+3}], v[{ACCQ}:{ACCQ+15}]")
            elif g < 12:
                kk = (g - 8)*8 + k
                a.e(f"v_mfma_f32_32x32x16_bf16 v[{ACCK}:{ACCK+15}], v[{XR+4*kk}:{XR+4*kk+3}], v[{WF+4*k}:{WF+4*k+3}], v[{ACCK}:{ACCK+15}]")
            else:
                kk = (g - 12)*8 + k
                cc = "0" if (g == 12 and k == 0) else f"v[{ACCV}:{ACCV+15}]"
                a.e(f"v_mfma_f32_32x32x16_bf16 v[{ACCV}:{ACCV+15}], v[{XR+4*kk}:{XR+4*kk+3}], v[{WF+4*k}:{WF+4*k+3}], {cc}")
            jl = [list(jb) for jb in jsp[k]]
            if jl:
                while jl[0] and not jl[0][0][0].startswith(("buffer_load", "global_load")):
                    a.e(jl[0].pop(0)[0])
            if g < 15:
                nx = [k, 4 + k] if g == 7 else [k]
                for k2 in nx:
                    for t, tag in frag_reads(g + 1, k2): a.e(t, lg=tag)
            for jb in jl: emit_job(a, jb)
            emit_side(side.get((g, k), []))
    kv_publish()
    if cfg.prioBw is not None: a.e(f"s_setprio {cfg.prioBw}")
    a.e("s_mov_b64 s[54:55], s[66:67]")
    def pq_first(sfx):
        for t in rb: a.e(t)
        a.e(f"""
        s_cmp_eq_u64 s[54:55], 0
        s_cbranch_scc1 L_b_pqf_go{sfx}
        s_mov_b32 s61, 0
        """)
        a.label(f"L_b_pqf_poll{sfx}")
        a.e(f"""
        global_load_dword v21, v2, s[36:37] sc1
        s_add_u32 s61, s61, 1
        s_waitcnt vmcnt(0)
        v_cmp_ne_u32 vcc, s38, v21
        s_cmp_gt_u32 s61, {SPIN_LIMIT}
        s_cbranch_scc1 L_b_pqf_go{sfx}
        s_cbranch_vccz L_b_pqf_go{sfx}
        s_branch L_b_pqf_poll{sfx}
        """)
        a.label(f"L_b_pqf_go{sfx}")
        for i in range(8):
            a.e(f"buffer_load_dwordx4 v[{32+4*i}:{35+4*i}], v3, s[40:43], s{8+i} offen sc1")
    a.e("""
    s_cmp_eq_u32 s39, 0
    s_cbranch_scc1 L_b_w0tail
    """)
    for n in range(32, 40):
        for jb in b_issue_jobs(n): emit_job(a, jb)
    a.e("""
    s_cmp_eq_u32 s39, 1
    s_cbranch_scc0 L_b_noshare
    v_subrev_u32 v22, 16384, v6
    v_subrev_u32 v23, 16384, v7
    """)
    for n in range(32, 40):
        c = SEQ[n][1]; pos = n % NSLOT
        a.e(f"s_mov_b32 m0, {pos*8192}")
        a.e(f"s_mov_b32 s61, {c*65536}")
        a.e(f"buffer_load_dwordx4 v22, s[48:51], s61 offen lds")
        a.e(f"buffer_load_dwordx4 v23, s[48:51], s61 offen offset:1024 lds")
    a.label("L_b_noshare")
    pq_first("a")
    a.e("s_waitcnt vmcnt(8)")
    a.e("s_branch L_b_tailjoin")
    a.label("L_b_w0tail")
    reducer(a, cfg)
    pq_first("b")
    a.label("L_b_tailjoin")
    a.vm = []; a.lg = []
    stamp(a, cfg, 7)
    if not cfg.do_B2:
        stamp(a, cfg, 8)
        stamps_out(a, cfg, 9)
        a.e("s_branch L_end")
        return
    role_B2(a, cfg)

def tag_check(a, regs_tags, acc="v20"):
    tt = 0
    for idx in range(8):
        s0, s1, s2 = (idx >> 2) & 1, (idx >> 1) & 1, idx & 1
        if s0 | (s1 ^ s2): tt |= 1 << idx
    first = True
    for r in regs_tags:
        if first:
            a.e(f"v_xor_b32 {acc}, s38, v{r}"); first = False
        else:
            a.e(f"v_bitop3_b32 {acc}, {acc}, v{r}, s38 bitop3:{hex(tt)}")
    a.e(f"v_cmp_ne_u32 vcc, 0, {acc}")

def reducer(a, cfg):
    def reduce_line(base, dst_addr, tagsok_label):
        S = 64; T = 68
        for k in range(4):
            r = base + 4*k
            for pidx in range(2):
                src = r + 2*pidx
                if k == 0:
                    a.e(f"v_lshlrev_b32 v{S+2*pidx}, 16, v{src}")
                    a.e(f"v_and_b32 v{S+1+2*pidx}, 0xffff0000, v{src}")
                else:
                    a.e(f"v_lshlrev_b32 v{T+2*pidx}, 16, v{src}")
                    a.e(f"v_and_b32 v{T+1+2*pidx}, 0xffff0000, v{src}")
                    a.e(f"v_add_f32 v{S+2*pidx}, v{S+2*pidx}, v{T+2*pidx}")
                    a.e(f"v_add_f32 v{S+1+2*pidx}, v{S+1+2*pidx}, v{T+1+2*pidx}")
        for j in range(4): a.e(f"v_add_f32_dpp v{S+j}, v{S+j}, v{S+j} row_ror:8 row_mask:0xf bank_mask:0xf")
        for j in range(4): a.e(f"v_mov_b32 v{T+j}, v{S+j}")
        for j in range(4): a.e(f"v_permlane16_swap_b32 v{S+j}, v{T+j}")
        for j in range(4): a.e(f"v_add_f32 v{S+j}, v{S+j}, v{T+j}")
        for j in range(4): a.e(f"v_mov_b32 v{T+j}, v{S+j}")
        for j in range(4): a.e(f"v_permlane32_swap_b32 v{S+j}, v{T+j}")
        for j in range(4): a.e(f"v_add_f32 v{S+j}, v{S+j}, v{T+j}")
        a.e(f"""
        v_cvt_pk_bf16_f32 v72, v{S}, v{S+1}
        v_mov_b32 v73, s38
        v_cvt_pk_bf16_f32 v74, v{S+2}, v{S+3}
        v_mov_b32 v75, s38
        s_mov_b64 exec, 0xff
        global_store_dwordx4 {dst_addr}, v[72:75], s[36:37] sc1
        s_mov_b64 exec, -1
        """)
    a.e(f"""
    s_lshr_b32 s66, s3, 4
    s_and_b32 s67, s3, 15
    s_mul_i32 s69, s66, {32*KVBLK}
    s_add_u32 s69, s69, {KVP}
    s_lshl_b32 s52, s67, 7
    s_add_u32 s68, s69, s52
    v_and_b32 v22, 7, v1
    v_lshlrev_b32 v22, 4, v22
    v_lshrrev_b32 v23, 3, v1
    v_mul_u32_u24 v23, {KVBLK}, v23
    v_add_u32 v23, v22, v23
    v_add_u32 v24, s68, v23
    v_add_u32 v25, {8*KVBLK}, v24
    v_add_u32 v26, {16*KVBLK}, v24
    v_add_u32 v27, {24*KVBLK}, v24
    s_add_u32 s68, s69, 2048
    v_add_u32 v8, s68, v23
    v_add_u32 v9, {8*KVBLK}, v8
    v_add_u32 v10, {16*KVBLK}, v8
    v_add_u32 v11, {24*KVBLK}, v8
    s_mul_i32 s69, s66, {KVBLK}
    s_add_u32 s69, s69, {KVF}
    s_add_u32 s68, s69, s52
    v_add_u32 v23, s68, v22
    s_add_u32 s68, s69, 2048
    v_add_u32 v29, s68, v22
    """)
    a.e("""
    s_mov_b32 s61, 0
    """)
    a.label("L_b_red_poll")
    a.e("""
    global_load_dwordx4 v[96:99], v24, s[36:37] sc1
    global_load_dwordx4 v[100:103], v25, s[36:37] sc1
    global_load_dwordx4 v[104:107], v26, s[36:37] sc1
    global_load_dwordx4 v[108:111], v27, s[36:37] sc1
    s_add_u32 s61, s61, 1
    s_cmp_lg_u32 s67, 0
    s_cbranch_scc1 L_b_red_one
    global_load_dwordx4 v[112:115], v8, s[36:37] sc1
    global_load_dwordx4 v[116:119], v9, s[36:37] sc1
    global_load_dwordx4 v[120:123], v10, s[36:37] sc1
    global_load_dwordx4 v[124:127], v11, s[36:37] sc1
    s_waitcnt vmcnt(0)
    """)
    tag_check(a, [97+2*q for q in range(16)])
    a.e("s_branch L_b_red_chk")
    a.label("L_b_red_one")
    a.e("s_waitcnt vmcnt(0)")
    tag_check(a, [97+2*q for q in range(8)])
    a.label("L_b_red_chk")
    a.e(f"""
    s_cmp_gt_u32 s61, {SPIN_LIMIT}
    s_cbranch_scc1 L_b_red_go
    s_cbranch_vccz L_b_red_go
    s_sleep {cfg.sl_red}
    s_branch L_b_red_poll
    """)
    a.label("L_b_red_go")
    a.e("""
    s_cmp_lg_u32 s67, 0
    s_cbranch_scc1 L_b_red_a
    """)
    reduce_line(112, "v29", None)
    a.label("L_b_red_a")
    reduce_line(96, "v23", None)
    stamp(a, cfg, 10)

def role_B2(a, cfg):
    WO = 128
    ACC = 96
    PQR = 32
    CN = [64, 80]
    KAF = [8, 12]
    OF = [4, 16]
    KA = 0
    PQL = 17408
    a.c("================= B2 =================")
    a.e("s_barrier")
    for i in range(16):
        for nt in range(2):
            d = WO + 8*i + 4*nt
            off = (i//4)*8192 + (i % 4)*2048
            a.e(f"ds_read_b64_tr_b16 v[{d}:{d+1}], v{18+nt} offset:{off}", lg="wo")
            a.e(f"ds_read_b64_tr_b16 v[{d+2}:{d+3}], v{18+nt} offset:{off+1024}", lg="wo")
    a.e("s_waitcnt lgkmcnt(0)")
    a.e("s_barrier")
    a.vm = []; a.lg = []
    stamp(a, cfg, 9)
    if cfg.zpoll:
        a.e("""
        s_mov_b32 s61, 0
        s_cmp_eq_u32 s39, 0
        s_cbranch_scc0 L_b_kz_go
        """)
        a.label("L_b_kz_poll")
        a.e(f"""
        buffer_load_dwordx4 v[96:99], v30, s[40:43], 0 offen sc1
        s_add_u32 s61, s61, 1
        s_waitcnt vmcnt(0)
        v_xor_b32 v20, s38, v97
        v_cmp_ne_u32 vcc, 0, v20
        s_cmp_gt_u32 s61, {SPIN_LIMIT}
        s_cbranch_scc1 L_b_kz_go
        s_cbranch_vccz L_b_kz_go
        s_sleep {cfg.sl_kz}
        s_branch L_b_kz_poll
        """)
        a.label("L_b_kz_go")
        stamp(a, cfg, 11)
        a.e("s_barrier")
    PB = 17408
    a.e(f"""
    v_and_b32 v24, 31, v1
    s_lshl_b32 s68, s58, 5
    v_add_u32 v24, s68, v24            ; token
    v_mul_u32_u24 v24, 272, v24
    v_lshrrev_b32 v25, 5, v1
    v_lshl_add_u32 v24, v25, 4, v24    ; + hh*16
    s_mul_i32 s68, s59, {64*272}
    s_add_u32 s68, s68, {PB}
    v_add_u32 v24, s68, v24
    v_lshrrev_b32 v26, 3, v0
    v_mul_u32_u24 v25, 272, v26
    v_and_b32 v27, 7, v0
    v_lshl_add_u32 v25, v27, 5, v25
    v_add_u32 v25, {PB}, v25
    s_lshl_b32 s68, s56, 6
    v_add_u32 v26, s68, v26
    v_lshlrev_b32 v26, 11, v26
    s_lshl_b32 s68, s57, 7
    s_add_u32 s68, s68, 1024
    v_lshl_add_u32 v26, v27, 4, v26
    v_add_u32 v26, s68, v26
    v_add_u32 v27, {32*2048}, v26
    v_and_b32 v22, 31, v1
    v_min_u32 v22, 16, v22
    v_lshlrev_b32 v22, 4, v22
    v_lshrrev_b32 v23, 5, v1
    v_mul_u32_u24 v23, 272, v23
    s_mul_i32 s68, s59, {16*544}
    v_add3_u32 v22, v22, v23, s68
    """)
    def ka_loads():
        for k in range(8):
            a.e(f"buffer_load_dwordx4 v[{64+4*k}:{67+4*k}], v13, s[40:43], s{16+k} offen sc1")
        a.e("buffer_load_dwordx4 v[96:99], v14, s[40:43], 0 offen sc1")
    a.e("s_mov_b32 s61, 0")
    a.e("s_branch L_b_kvf_first")
    a.label("L_b_kvf_poll")
    a.e(f"s_sleep {cfg.sl_ka}")
    a.label("L_b_kvf_first")
    ka_loads()
    a.e("s_waitcnt vmcnt(0)")
    a.label("L_b_ka_chk")
    a.e("s_add_u32 s61, s61, 1")
    tag_check(a, [65+2*q for q in range(18)])
    a.e(f"""
    s_cmp_gt_u32 s61, {SPIN_LIMIT}
    s_cbranch_scc1 L_b_kvf_go
    s_cbranch_vccnz L_b_kvf_poll
    """)
    a.label("L_b_kvf_go")
    stamp(a, cfg, 12)
    stampval(a, cfg, 8, "s61")
    a.vm = []
    for k in range(8):
        a.e(f"v_mov_b32 v{65+4*k}, v{66+4*k}")
        a.e(f"ds_write_b64 v15, v[{64+4*k}:{65+4*k}] offset:{KA + 2176*k}")
    a.e("v_mov_b32 v97, v98")
    a.e(f"ds_write_b64 v12, v[96:97] offset:{KA}")
    a.e(f"""
    s_waitcnt vmcnt(0) lgkmcnt(0)
    s_barrier
    """)
    a.vm = []; a.lg = []
    stamp(a, cfg, 13)
    if cfg.prioBw is not None: a.e(f"s_setprio {cfg.prioBm}")
    def kaf_read(i):
        a.e(f"ds_read_b128 v[{KAF[i%2]}:{KAF[i%2]+3}], v22 offset:{KA + 544*i}", lg=f"ka{i}")
    def out_mfma(i):
        o = OF[i % 2]
        for nt in range(2):
            w = WO + 8*i + 4*nt
            cc = "0" if i == 0 else f"v[{ACC+16*nt}:{ACC+16*nt+15}]"
            a.e(f"v_mfma_f32_32x32x16_bf16 v[{ACC+16*nt}:{ACC+16*nt+15}], v[{w}:{w+3}], v[{o}:{o+3}], {cc}")
    def num_mfma(i):
        a.wait_lg(f"ka{i}")
        p = PQR + 4*(i % 8)
        if i >= 8: a.wait_vm(f"pq{i}")
        a.e(f"v_mfma_f32_32x32x16_bf16 v[{CN[i%2]}:{CN[i%2]+15}], v[{KAF[i%2]}:{KAF[i%2]+3}], v[{p}:{p+3}], 0")
        if i < 8:
            a.e(f"buffer_load_dwordx4 v[{p}:{p+3}], v31, s[40:43], s{8+i} offen sc1", vm=f"pq{i+8}")
    def out1(i, nt):
        o = OF[i % 2]
        w = WO + 8*i + 4*nt
        cc = "0" if i == 0 else f"v[{ACC+16*nt}:{ACC+16*nt+15}]"
        a.e(f"v_mfma_f32_32x32x16_bf16 v[{ACC+16*nt}:{ACC+16*nt+15}], v[{w}:{w+3}], v[{o}:{o+3}], {cc}")
    kaf_read(0); kaf_read(1)
    num_mfma(0)
    for i in range(16):
        if i >= cfg.x_main: break
        if i + 1 < 16:
            num_mfma(i + 1)
        c = CN[i % 2]
        a.e(f"v_add_f32 v20, s64, v{c+8}")
        a.e(f"v_rcp_f32 v20, v20")
        if i + 2 < 16:
            kaf_read(i + 2)
        for jj in range(2): a.e(f"v_mul_f32 v{c+jj}, v{c+jj}, v20")
        if i >= 1: out1(i - 1, 0)
        for jj in range(2, 7): a.e(f"v_mul_f32 v{c+jj}, v{c+jj}, v20")
        if i >= 1: out1(i - 1, 1)
        a.e(f"v_mul_f32 v{c+7}, v{c+7}, v20")
        o = OF[i % 2]
        for m in range(4):
            a.e(f"v_cvt_pk_bf16_f32 v{o+m}, v{c+2*m}, v{c+2*m+1}")
    out1(15, 0); out1(15, 1)
    stamp(a, cfg, 14)
    a.e("""
    s_cmp_lg_u32 s3, 0
    s_cbranch_scc1 L_b_norst
    s_cmp_lg_u32 s39, 0
    s_cbranch_scc1 L_b_norst
    v_mov_b32 v20, 0
    s_mov_b64 exec, 1
    global_store_dword v20, v20, s[34:35] sc1
    s_mov_b64 exec, -1
    """)
    a.label("L_b_norst")
    a.vm = []
    for nt in range(2):
        for q in range(4):
            r = ACC + 16*nt + 4*q
            a.e(f"ds_write_b128 v24, v[{r}:{r+3}] offset:{nt*128 + q*32}")
    a.e("s_waitcnt lgkmcnt(0)")
    a.e("s_barrier")
    for r in range(2):
        o = r*32*272
        a.e(f"ds_read_b128 v[{32+16*r}:{35+16*r}], v25 offset:{o}")
        a.e(f"ds_read_b128 v[{40+16*r}:{43+16*r}], v25 offset:{o+64*272}")
        a.e(f"ds_read_b128 v[{36+16*r}:{39+16*r}], v25 offset:{o+16}")
        a.e(f"ds_read_b128 v[{44+16*r}:{47+16*r}], v25 offset:{o+64*272+16}")
    for r in range(2):
        a.e(f"s_waitcnt lgkmcnt({4 if r == 0 else 0})")
        b = 32 + 16*r
        for jj in range(8):
            a.e(f"v_add_f32 v{b+jj}, v{b+jj}, v{b+8+jj}")
        for m in range(4):
            a.e(f"v_cvt_pk_bf16_f32 v{64+4*r+m}, v{b+2*m}, v{b+2*m+1}")
        a.e(f"global_store_dwordx4 v{26+r}, v[{64+4*r}:{67+4*r}], s[32:33] {cfg.outfl}")
    stamps_out(a, cfg, 15)

TV = 240
def a_touch_setup(a, cfg):
    a.e(f"""
    s_lshr_b32 s62, s40, 1          ; tg
    s_and_b32 s63, s40, 1           ; hg
    s_lshl_b32 s64, s62, 9
    s_lshl_b32 s65, s41, 4          ; 16*jj
    s_add_u32 s64, s64, s65
    v_and_b32 v246, 15, v1
    v_lshrrev_b32 v247, 4, v1       ; 0..3
    v_add_u32 v241, s64, v246
    v_lshlrev_b32 v241, 10, v241
    v_lshl_add_u32 v241, v247, 7, v241
    v_add_u32 v241, 512, v241
    v_and_b32 v248, 3, v1
    v_lshlrev_b32 v248, 7, v248     ; line*128
    s_lshl_b32 s66, s63, 9          ; hg*512
    v_lshrrev_b32 v249, 2, v1
    v_add_u32 v240, s65, v249       ; 16jj + (l>>2)
    v_mul_u32_u24 v242, 3072, v240
    v_add3_u32 v242, v242, v248, s66
    v_add_u32 v244, 2048, v242      ; V
    v_lshlrev_b32 v245, 10, v240
    v_add3_u32 v245, v245, v248, s66
    v_and_b32 v249, 7, v249
    s_lshl_b32 s67, s41, 3
    s_add_u32 s67, s67, 256
    v_add_u32 v249, s67, v249
    v_mul_u32_u24 v243, 3072, v249
    v_add3_u32 v243, v243, v248, s66
    v_add_u32 v240, 1024, v242
    """)

def a_touch(a, cfg, plan):
    fl = cfg.touch_flags
    info = {"x1": (241, "s[26:27]"), "q47": (243, "s[28:29]"), "k": (240, "s[28:29]"), "v": (244, "s[28:29]"), "o": (245, "s[30:31]")}
    for w, names in plan.items():
        L = a.newlabel("tch")
        a.e(f"s_cmp_eq_u32 s39, {w}")
        a.e(f"s_cbranch_scc0 {L}")
        for i, nm in enumerate(names):
            v, base = info[nm]
            a.e(f"global_load_dword v{250+i}, v{v}, {base} {fl}")
            a.vm.pop()
        a.label(L)

def role_A(a, cfg):
    a.label("L_roleA")
    a.e("""
    s_and_b32 s40, s3, 7
    s_lshr_b32 s41, s3, 3           ; j
    s_waitcnt lgkmcnt(0)
    """)
    if not cfg.do_A:
        if cfg.touch:
            a_touch_setup(a, cfg)
            a_touch(a, cfg, {2: ["x1"], 3: ["q47"]})
            a.e("s_waitcnt vmcnt(0)")
            a_touch(a, cfg, {1: ["k"], 2: ["v"], 3: ["o"]})
            a.e("s_waitcnt vmcnt(0)")
        a.e("s_branch L_end")
        return
    import role_a
    role_a.role_A(a, cfg)

def build(cfg):
    global DMAFL
    DMAFL = cfg.dmafl
    a = Asm()
    prologue(a, cfg)
    if cfg.do_B:
        role_B(a, cfg)
    a.e("s_branch L_end")
    a.vm = []
    role_A(a, cfg)
    a.label("L_end")
    a.e("s_endpgm")
    body = a.render()
    return body, a

HEADER = open("concat_heads__ssm_conv_s4__linear_attn_block__prompt.s.ref").read().split("; Override launch")[0]

def generate(path, cfg):
    body, a = build(cfg)
    txt = wrap(body, HEADER, 512, 256, 81920)
    open(path, "w").write(txt)
    return a

if __name__ == "__main__":
    sys.modules["kern"] = sys.modules["__main__"]
    cfg = Cfg()
    cfg.stamps = True
    if len(sys.argv) > 2:
        for kv in sys.argv[2:]:
            k, v = kv.split("=")
            setattr(cfg, k, int(v) if v.isdigit() else v)
    a = generate(sys.argv[1] if len(sys.argv) > 1 else "k_b1.s", cfg)
    print("nops inserted:", a.nnops)
```

```python
import sys
from asmlib import Asm, wrap

UT   = 0
YT   = 4 << 20
PQ   = 8 << 20
PQF  = 10 << 20
KVP  = (10 << 20) + (64 << 10)
KVF  = 12 << 20
UTF  = (12 << 20) + (64 << 10)
YTF  = (12 << 20) + (96 << 10)
BDN  = (12 << 20) + (112 << 10)
KVBLK = 2176
LOG2E = 0x3fb8aa3b
EPS   = 0x358637bd
SPIN_LIMIT = 200000

class Cfg:
    do_A = True
    do_B = True
    do_B2 = True
    touch = True
    dual = False
    x_nowrite = False
    prioA = 2
    prioA2 = 0
    dbgT = 0
    order = "QKV"
    late_prio = 1
    bfirst = 0
    prioBw = 1
    prioBm = 3
    gate = 0
    gate_max = 40
    x_exit = ""
    x_conv = 32
    x_tab = 0
    x_main = 16
    x_epi = 0
    locfl = ""
    mid_u = 1
    qe_end = 26
    pqflag_g = 14
    dmafl = ""
    aldfl = ""
    zpoll = 0
    sl_ka = 1
    sl_kz = 1
    sl_pq = 1
    sl_red = 1
    sl_yt = 1
    sl_ut = 1
    late_o = 1
    yglobal = 0
    utclean = 0
    outfl = "sc1"
    uttouch = 0
    ninit = 8
    dbgN = 0
    ut_patience = 200
    flagpos = 0
    ytouch = 1
    dbgY = 0
    prioA3 = 0
    prioB = 1
    pk = 1
    b_exit = False
    touch_flags = ""
    early_release = True
    dma_early = False
    last_dma = 40
    late_pre = 0
    touch_mode = "late"
    stamps = False

STAMP_BASE = 14 << 20
def stamp(a, cfg, i):
    if cfg.stamps == 1:
        a.e(f"s_memtime s[{70+2*i}:{71+2*i}]")
def stampval(a, cfg, i, sreg):
    if cfg.stamps == 1:
        a.e("s_waitcnt lgkmcnt(0)")
        a.e(f"s_add_u32 s{70+2*i}, {sreg}, s70")
def stamps_out(a, cfg, n, vt=22):
    if not cfg.stamps: return
    a.e("s_memrealtime s[68:69]")
    a.e("s_waitcnt lgkmcnt(0) vmcnt(0)")
    a.vm = []
    if cfg.stamps == 2: n = 1
    for i in range(1, n):
        a.e(f"s_sub_u32 s{70+2*i}, s{70+2*i}, s70")
    a.e(f"""
    s_lshl_b32 s61, s2, 2
    s_add_u32 s61, s61, s39
    s_lshl_b32 s61, s61, 6
    s_add_u32 s61, s61, {STAMP_BASE}
    v_mov_b32 v{vt}, s61
    s_mov_b64 exec, 1
    """)
    for i in range(16):
        src = f"s{70+2*i}" if (0 < i < n) else ("s68" if i == 15 else ("s100" if i == 0 else "0"))
        a.e(f"v_mov_b32 v{vt+1}, {src}")
        a.e(f"global_store_dword v{vt}, v{vt+1}, s[36:37] offset:{4*i}")
        a.e("s_nop 1")
    a.e("s_waitcnt vmcnt(0)")
    a.e("s_mov_b64 exec, -1")
    a.vm = []

def prologue(a, cfg):
    if cfg.stamps:
        a.e("s_memrealtime s[100:101]")
        a.e("s_memtime s[70:71]")
    a.e("""
    s_cmp_ge_u32 s2, 512
    s_cbranch_scc1 L_end
    s_load_dwordx16 s[8:23], s[0:1], 0
    s_load_dwordx8 s[24:31], s[0:1], 64
    s_load_dwordx4 s[32:35], s[0:1], 96
    s_load_dwordx2 s[36:37], s[0:1], 112
    v_lshrrev_b32 v1, 6, v0
    v_readfirstlane_b32 s39, v1
    v_and_b32 v1, 63, v0
    s_and_b32 s3, s2, 255
    s_cmp_lt_u32 s2, 256
    """)
    a.e("s_cbranch_scc1 L_roleA" if not cfg.bfirst else "s_cbranch_scc0 L_roleA")

def poll_nonce(a, vtmp, vaddr0, first_tag=None):
    L = a.newlabel("nonce"); Lx = a.newlabel("nonce_ok")
    if first_tag:
        a.wait_vm(first_tag)
    else:
        a.e(f"global_load_dword {vtmp}, {vaddr0}, s[34:35] sc1")
        a.wait_vm_all()
    a.e(f"v_readfirstlane_b32 s38, {vtmp}")
    a.e(f"""
    s_cmp_lg_u32 s38, 0
    s_cbranch_scc1 {Lx}
    s_mov_b32 s61, 0
    """)
    a.label(L)
    a.e(f"""
    global_load_dword {vtmp}, {vaddr0}, s[34:35] sc1
    s_waitcnt vmcnt(0)
    v_readfirstlane_b32 s38, {vtmp}
    s_add_u32 s61, s61, 1
    s_cmp_gt_u32 s61, {SPIN_LIMIT}
    s_cbranch_scc1 {Lx}
    s_cmp_eq_u32 s38, 0
    s_cbranch_scc1 {L}
    """)
    a.vm.pop()
    a.label(Lx)

def phi_instrs(acc, tmp, out, zsum=None):
    L = []
    for i in range(16):
        L.append(f"v_mul_f32 v{tmp+i}, s62, v{acc+i}")
    for i in range(16):
        L.append(f"v_exp_f32 v{tmp+i}, v{tmp+i} clamp")
        L.append(f"v_max_f32 v{acc+i}, s64, v{acc+i}")
    for i in range(16):
        L.append(f"v_add_f32 v{acc+i}, v{acc+i}, v{tmp+i}")
    if zsum is not None:
        for m in range(8):
            L.append(f"v_add_f32 v{tmp+m}, v{acc+2*m}, v{acc+2*m+1}")
        for m in range(4):
            L.append(f"v_add_f32 v{tmp+m}, v{tmp+m}, v{tmp+4+m}")
        L.append(f"v_add_f32 v{tmp}, v{tmp}, v{tmp+2}")
        L.append(f"v_add_f32 v{tmp+1}, v{tmp+1}, v{tmp+3}")
        L.append(f"v_add_f32 v{zsum}, v{tmp}, v{tmp+1}")
    for m in range(8):
        L.append(f"v_cvt_pk_bf16_f32 v{out+m}, v{acc+2*m}, v{acc+2*m+1}")
    return L

def spread(side, nslots):
    out = []; n = len(side); k = 0
    for i in range(nslots):
        e = (n*(i+1))//nslots
        out.append(side[k:e]); k = e
    return out

SEQ = []
ORDER = "QKV"
def set_order(o):
    global SEQ, ORDER
    ORDER = o
    SEQ = []
    for c in range(8): SEQ += [("X", c), (o[0], c)]
    SEQ += [(o[1], c) for c in range(8)] + [(o[2], c) for c in range(8)] + [("O", c) for c in range(8)]
set_order("QKV")
NSLOT = 10
NINIT = 6
XR = 128
WF, T16, ACCQ, ACCK, ACCV = 32, 64, 80, 96, 112

DMAFL = ""
def b_issue_jobs(n):
    kind, c = SEQ[n]
    pos = n % NSLOT
    pre = []
    if kind == "X":
        so, v0, srd = f"s{16+c}", 2, "s[40:43]"
    elif kind in "QKV":
        so, v0, srd = f"s{8+c}", 4, "s[44:47]"
        if c == 0 and kind != ORDER[0]:
            prev = ORDER[ORDER.index(kind) - 1]
            dl = ("QKV".index(kind) - "QKV".index(prev))*1024
            op = "v_add_u32" if dl > 0 else "v_subrev_u32"
            pre = [(f"{op} v4, {abs(dl)}, v4", None), (f"{op} v5, {abs(dl)}, v5", None)]
    else:
        so, v0, srd = "s61", 6, "s[48:51]"
        pre = [(f"s_mov_b32 s61, {c*65536}", None)]
    return [pre + [(f"s_add_u32 m0, s60, {pos*8192}", None),
             (f"buffer_load_dwordx4 v{v0}, {srd}, {so} offen {DMAFL} lds", f"slot{n}")],
            [(f"buffer_load_dwordx4 v{v0+1}, {srd}, {so} offen offset:1024 {DMAFL} lds", f"slot{n}")]]

def emit_job(a, job):
    for t in job:
        if isinstance(t, str): a.e(t)
        else: a.e(t[0], vm=t[1])

def lds_base(n):
    pos = n % NSLOT
    return (0, pos*8192) if pos < 5 else (1, (pos-5)*8192)

def wfrag_reads(a, n, s, dst, tag=None):
    hi, off = lds_base(n)
    va = "v17" if hi else "v16"
    a.e(f"ds_read_b64_tr_b16 v[{dst}:{dst+1}], {va} offset:{off + s*2048}", lg=tag)
    a.e(f"ds_read_b64_tr_b16 v[{dst+2}:{dst+3}], {va} offset:{off + s*2048 + 512}", lg=tag)

def role_B(a, cfg):
    e0 = a.e
    def e_sub(text, **kw): return e0(text.replace("FIRSTPART", str("QKV".index(ORDER[0])*1024)).replace("SCR0", str(16384 if ORDER == "KVQ" else 0)).replace("SCR1", str(20480 if ORDER == "KVQ" else 4096)), **kw)
    a.e = e_sub
    a.c("================= role B =================")
    if cfg.prioB: a.e(f"s_setprio {3 if cfg.late_prio else cfg.prioB}")
    a.e("""
    s_and_b32 s66, s3, 7            ; xcd
    s_lshr_b32 s67, s3, 3           ; jj
    s_lshr_b32 s56, s66, 1
    s_lshl_b32 s56, s56, 3
    s_and_b32 s68, s67, 7
    s_add_u32 s56, s56, s68         ; tb
    s_and_b32 s57, s66, 1
    s_lshl_b32 s57, s57, 2
    s_lshr_b32 s68, s67, 3
    s_add_u32 s57, s57, s68         ; hq
    s_and_b32 s58, s39, 1           ; tt
    s_lshr_b32 s59, s39, 1
    s_lshl_b32 s60, s39, 11
    s_mov_b32 s62, 0x3fb8aa3b
    s_mov_b32 s63, 0x3fb8aa3b
    s_mov_b32 s64, 0x358637bd
    s_mov_b32 s65, 0x358637bd
    """)
    a.e("""
    v_lshrrev_b32 v32, 3, v1        ; l>>3
    v_and_b32 v33, 7, v1            ; l&7
    v_lshrrev_b32 v34, 4, v1        ; l>>4
    s_lshl_b32 s68, s56, 6          ; tb*64
    s_lshl_b32 s69, s39, 4          ; 16w
    s_add_u32 s68, s68, s69
    v_add_u32 v35, s68, v32         ; row
    v_lshlrev_b32 v35, 10, v35
    v_xor_b32 v36, v33, v34
    v_lshl_add_u32 v2, v36, 4, v35
    v_add_u32 v37, 4, v34
    v_xor_b32 v36, v33, v37
    v_lshl_add_u32 v3, v36, 4, v35
    v_add_u32 v3, 7168, v3          ; +8 rows - 1024
    v_and_b32 v36, 1, v34
    v_lshlrev_b32 v36, 2, v36
    v_xor_b32 v36, v33, v36         ; q
    v_lshlrev_b32 v36, 4, v36       ; q*16
    v_add_u32 v37, s69, v32         ; 16w + (l>>3)
    v_mul_u32_u24 v38, 3072, v37
    s_lshl_b32 s68, s57, 7          ; hq*128
    v_add3_u32 v4, v38, v36, s68
    v_add_u32 v4, FIRSTPART, v4
    v_add_u32 v5, 23552, v4         ; +8*3072 - 1024
    v_lshlrev_b32 v38, 10, v37
    v_add3_u32 v6, v38, v36, s68
    v_add_u32 v7, 7168, v6
    """)
    a.e("""
    s_waitcnt lgkmcnt(0)
    s_mov_b32 s40, s26
    s_and_b32 s41, s27, 0xffff
    s_mov_b32 s42, 0x200000
    s_mov_b32 s43, 0x20000
    s_mov_b32 s44, s28
    s_and_b32 s45, s29, 0xffff
    s_mov_b32 s46, 0x180000
    s_mov_b32 s47, 0x20000
    s_mov_b32 s48, s30
    s_and_b32 s49, s31, 0xffff
    s_mov_b32 s50, 0x80000
    s_mov_b32 s51, 0x20000
    """)
    a.e("""
    v_mov_b32 v31, 0
    s_cmp_lg_u32 s3, 0
    s_cbranch_scc1 L_b_nononce
    s_cmp_lg_u32 s39, 0
    s_cbranch_scc1 L_b_nononce
    s_memrealtime s[68:69]
    s_waitcnt lgkmcnt(0)
    s_or_b32 s68, s68, 1
    v_mov_b32 v30, s68
    s_mov_b64 exec, 1
    global_store_dword v31, v30, s[34:35] sc1
    s_mov_b64 exec, -1
    """)
    a.vm.pop()
    a.label("L_b_nononce")
    if cfg.b_exit:
        a.e("s_branch L_end")
    for c in range(8):
        a.e(f"s_mov_b32 s{8+c}, {c*64*3072}")
        a.e(f"s_mov_b32 s{16+c}, {c*128}")
    stamp(a, cfg, 1)
    for n in range(cfg.ninit):
        for job in b_issue_jobs(n): emit_job(a, job)
    if cfg.late_prio: a.e(f"s_setprio {cfg.prioB}")
    a.e("""
    v_and_b32 v32, 31, v1           ; i
    v_lshrrev_b32 v33, 5, v1        ; hh
    s_lshl_b32 s68, s58, 5
    v_add_u32 v34, s68, v32         ; 32tt + i
    v_lshlrev_b32 v34, 7, v34       ; *128
    v_lshrrev_b32 v35, 1, v32
    v_and_b32 v35, 7, v35           ; f
    """)
    for s in range(4):
        a.e(f"""
        v_add_u32 v36, {2*s}, v33
        v_xor_b32 v36, v36, v35
        v_lshl_add_u32 v{8+s}, v36, 4, v34
        v_add_u32 v{12+s}, 40960, v{8+s}
        """)
    a.e(f"""
    v_lshrrev_b32 v34, 2, v1
    v_and_b32 v34, 3, v34           ; rr
    v_and_b32 v35, 3, v1            ; cc
    v_lshrrev_b32 v36, 4, v1
    v_and_b32 v36, 1, v36           ; G&1
    v_lshlrev_b32 v36, 1, v36       ; 2(G&1)
    v_lshrrev_b32 v37, 1, v35       ; cc>>1
    v_add_u32 v36, v36, v37         ; 2(G&1) + (cc>>1)
    v_lshrrev_b32 v37, 1, v34
    v_lshlrev_b32 v37, 2, v37       ; 4(rr>>1)
    v_and_b32 v38, 1, v35
    v_lshlrev_b32 v38, 3, v38       ; 8(cc&1)
    s_lshl_b32 s68, s59, 2
    v_add_u32 v39, s68, v36
    v_xor_b32 v39, v39, v37
    v_lshl_add_u32 v39, v39, 4, v38
    v_lshl_add_u32 v40, v33, 3, v34
    v_lshl_add_u32 v16, v40, 7, v39
    v_add_u32 v17, 40960, v16
    v_xor_b32 v39, v36, v37
    v_lshl_add_u32 v39, v39, 4, v38
    v_lshl_add_u32 v40, v33, 2, v34
    v_lshl_add_u32 v18, v40, 7, v39
    s_lshl_b32 s68, s59, 15
    s_add_u32 s68, s68, 16384
    v_add_u32 v18, s68, v18
    v_xor_b32 v19, 64, v18
    s_lshl_b32 s68, s59, 1
    s_add_u32 s68, s68, s58
    s_xor_b32 s69, s68, 1
    s_lshl_b32 s66, s68, 10
    s_add_u32 s66, s66, SCR0
    v_lshl_add_u32 v22, v1, 4, s66
    s_lshl_b32 s66, s69, 10
    s_add_u32 s66, s66, SCR0
    v_lshl_add_u32 v23, v1, 4, s66
    s_lshl_b32 s66, s68, 8
    s_add_u32 s66, s66, SCR1
    v_lshl_add_u32 v24, v1, 2, s66
    s_lshl_b32 s66, s69, 8
    s_add_u32 s66, s66, SCR1
    v_lshl_add_u32 v25, v1, 2, s66
    s_lshl_b32 s68, s57, 1
    s_add_u32 s68, s68, s59
    s_lshl_b32 s68, s68, 5
    s_add_u32 s68, s68, s56
    s_mul_i32 s68, s68, 2176
    s_add_u32 s68, s68, {KVP}
    s_lshl_b32 s69, s58, 10
    s_add_u32 s69, s69, s68
    v_lshl_add_u32 v26, v1, 4, s69
    v_lshrrev_b32 v40, 4, v1
    v_and_b32 v40, 1, v40
    v_lshlrev_b32 v40, 3, v40       ; 8c
    v_and_b32 v41, 4, v1            ; 4*hh'
    v_add_u32 v40, v40, v41
    v_lshrrev_b32 v41, 2, v1
    v_and_b32 v41, 2, v41
    v_add_u32 v40, v40, v41
    v_lshrrev_b32 v41, 1, v1
    v_and_b32 v41, 1, v41
    v_add_u32 v40, v40, v41         ; zg
    s_add_u32 s68, s68, 2048
    v_lshl_add_u32 v27, v40, 3, s68
    ; PQ address
    s_lshl_b32 s68, s56, 1
    s_add_u32 s68, s68, s58
    s_lshl_b32 s68, s68, 5
    s_lshl_b32 s69, s57, 2
    s_add_u32 s68, s68, s69
    s_lshl_b32 s69, s59, 1
    s_add_u32 s68, s68, s69
    s_lshl_b32 s68, s68, 10
    s_add_u32 s68, s68, {PQ}
    v_lshl_add_u32 v28, v1, 4, s68
    v_and_b32 v40, 16, v1
    v_cmp_ne_u32 s[52:53], 0, v40
    s_sub_u32 s54, 0, s58
    s_mov_b32 s55, s54
    """)
    a.e(f"""
    s_cmp_lg_u32 s39, 3
    s_cbranch_scc1 L_b_nopt
    s_lshl_b32 s68, s56, 7
    s_add_u32 s68, s68, {PQF}
    v_mov_b32 v40, s68
    global_load_dword v21, v40, s[36:37] sc1
    """)
    a.vm.pop()
    a.label("L_b_nopt")
    for r in range(16):
        a.e(f"v_mov_b32 v{ACCQ+r}, s64")
    for r in range(16):
        a.e(f"v_mov_b32 v{ACCK+r}, s64")
    def frag_reads(g, k):
        L = []
        tag = f"f{g}_{k}"
        if g < 8:
            nx, nw = 2*g, 2*g+1
            hi, off = lds_base(nx)
            L.append((f"ds_read_b128 v[{XR+16*g+4*k}:{XR+16*g+4*k+3}], v{(12 if hi else 8)+k} offset:{off}", tag))
            d = WF + 16*(g % 2) + 4*k; n = nw; sstep = k
        else:
            n = 2*g + k//4; sstep = k % 4; d = WF + 4*k
        h2, o2 = lds_base(n)
        va = "v17" if h2 else "v16"
        L.append((f"ds_read_b64_tr_b16 v[{d}:{d+1}], {va} offset:{o2 + sstep*2048}", tag))
        L.append((f"ds_read_b64_tr_b16 v[{d+2}:{d+3}], {va} offset:{o2 + sstep*2048 + 512}", tag))
        return L
    def nsteps(g): return 4 if g < 8 else 8
    def emit_side(lst):
        for t in lst:
            if isinstance(t, str): a.e(t)
            elif t[0] == "WVM": a.wait_vm(t[1])
            else: a.e(t[0], vm=t[1])
    side = {}
    KVQ = (cfg.order == "KVQ")
    ke = phi_instrs(ACCK, T16, ACCK, zsum=29)
    ke += ["v_mov_b32 v30, v29", "v_permlane32_swap_b32 v29, v30", "v_add_f32 v29, v29, v30"]
    if not KVQ:
        qe = phi_instrs(ACCQ, T16, ACCQ)
        qe += [(f"global_store_dwordx4 v28, v[{ACCQ}:{ACCQ+3}], s[36:37] sc1", "pqst"),
               (f"global_store_dwordx4 v28, v[{ACCQ+4}:{ACCQ+7}], s[36:37] offset:1024 sc1", "pqst")]
        gaps = [(g, k) for g in range(8, 12) for k in range(8)][1:cfg.qe_end]
        for gp, grp in zip(gaps, spread(qe, len(gaps))): side[gp] = grp
        gaps = [(g, k) for g in range(12, 16) for k in range(8)][1:31]
    else:
        gaps = [(g, k) for g in range(8, 12) for k in range(8)][1:31]
    for gp, grp in zip(gaps, spread(ke, len(gaps))): side[gp] = grp if not cfg.x_epi else []
    side[(9, 7)] = side.get((9, 7), []) + ["s_lshl_b32 s68, s56, 7", f"s_add_u32 s68, s68, {PQF}", "v_and_b32 v2, 7, v1", "v_lshl_add_u32 v2, v2, 2, s68"]
    rb = f"""
    s_mov_b32 s40, s36
    s_and_b32 s41, s37, 0xffff
    s_mov_b32 s42, {KVF + 65536}
    s_mov_b32 s43, 0x20000
    s_lshl_b32 s68, s56, 1
    s_add_u32 s68, s68, s58
    s_lshl_b32 s68, s68, 5
    s_lshl_b32 s69, s59, 4
    s_add_u32 s68, s68, s69
    s_lshl_b32 s68, s68, 10
    s_add_u32 s68, s68, {PQ}
    v_lshl_add_u32 v3, v1, 4, s68
    v_add_u32 v31, 8192, v3
    v_lshrrev_b32 v13, 7, v0
    v_mul_u32_u24 v13, {KVBLK}, v13
    v_and_b32 v20, 127, v0
    v_lshl_add_u32 v13, v20, 4, v13
    v_add_u32 v13, {KVF}, v13
    v_lshrrev_b32 v14, 3, v20
    v_mul_u32_u24 v14, {KVBLK}, v14
    v_and_b32 v21, 7, v0
    v_lshl_add_u32 v14, v21, 4, v14
    v_add_u32 v14, {KVF+2048}, v14
    v_lshrrev_b32 v15, 7, v0
    v_lshlrev_b32 v15, 1, v15
    v_bfe_u32 v21, v0, 4, 1
    v_add_u32 v15, v15, v21
    v_mul_u32_u24 v15, 544, v15
    v_bfe_u32 v21, v0, 5, 1
    v_mul_u32_u24 v21, 272, v21
    v_add_u32 v15, v15, v21
    v_and_b32 v21, 15, v0
    v_lshl_add_u32 v15, v21, 4, v15
    v_bfe_u32 v21, v0, 6, 1
    v_lshl_add_u32 v15, v21, 3, v15
    v_lshrrev_b32 v12, 3, v20
    v_lshlrev_b32 v12, 1, v12
    v_bfe_u32 v21, v0, 2, 1
    v_add_u32 v12, v12, v21
    v_mul_u32_u24 v12, 544, v12
    v_bfe_u32 v21, v0, 1, 1
    v_mul_u32_u24 v21, 272, v21
    v_add_u32 v12, v12, v21
    v_and_b32 v21, 1, v0
    v_lshl_add_u32 v12, v21, 3, v12
    v_add_u32 v12, 256, v12
    v_and_b32 v30, 15, v1
    v_mul_u32_u24 v30, {KVBLK}, v30
    v_add_u32 v30, {KVF+2048}, v30
    """.strip().split("\n")
    rb = [x.strip() for x in rb]
    rb += [f"s_mov_b32 s{8+i}, {1024*i}" for i in range(8)] + [f"s_mov_b32 s{16+k}, {2*KVBLK*k}" for k in range(8)]
    if not cfg.late_o:
        gaps = [(14, k) for k in range(5, 8)] + [(15, k) for k in range(8)]
        for gp, grp in zip(gaps, spread(rb, len(gaps))): side[gp] = side.get(gp, []) + grp

    def kv_publish():
        a.c("--- kv partial: V cvt, MFMA, select, pair exchange, publish")
        a.e("s_barrier")
        if not KVQ: a.e("global_load_dword v21, v2, s[36:37] sc1", vm="pqf")
        if cfg.gate:
            a.e(f"""
            s_cmp_lg_u32 s39, 2
            s_cbranch_scc1 L_b_nogate
            s_and_b32 s68, s3, 7
            s_lshl_b32 s68, s68, 8
            s_lshr_b32 s69, s3, 3
            s_lshl_b32 s69, s69, 2
            s_add_u32 s68, s68, s69
            s_add_u32 s68, s68, {BDN}
            v_mov_b32 v20, s68
            v_mov_b32 v30, s38
            s_mov_b64 exec, 1
            global_store_dword v20, v30, s[36:37]
            s_mov_b64 exec, -1
            """)
            a.vm.pop()
            a.label("L_b_nogate")
        for m in range(8):
            a.e(f"v_cvt_pk_bf16_f32 v{ACCV+m}, v{ACCV+2*m}, v{ACCV+2*m+1}")
        a.e(f"v_mfma_f32_32x32x16_bf16 v[{T16}:{T16+15}], v[{ACCK}:{ACCK+3}], v[{ACCV}:{ACCV+3}], 0")
        a.e(f"v_mfma_f32_32x32x16_bf16 v[{T16}:{T16+15}], v[{ACCK+4}:{ACCK+7}], v[{ACCV+4}:{ACCV+7}], v[{T16}:{T16+15}]")
        a.e("ds_write_b32 v24, v29", lg="xw")
        SEL = ACCK + 8; SND = ACCV + 8; KEEP = ACCV + 12
        for j in range(8): a.e(f"v_cndmask_b32 v{SEL+j}, v{T16+j}, v{T16+8+j}, s[52:53]")
        for j in range(4): a.e(f"v_cndmask_b32 v{SND+j}, v{SEL+4+j}, v{SEL+j}, s[54:55]")
        a.e(f"ds_write_b128 v22, v[{SND}:{SND+3}]", lg="xw")
        for j in range(4): a.e(f"v_cndmask_b32 v{KEEP+j}, v{SEL+j}, v{SEL+4+j}, s[54:55]")
        a.wait_lg("xw")
        a.e("s_barrier")
        a.e(f"ds_read_b128 v[{SEL}:{SEL+3}], v23", lg="xr")
        a.e(f"ds_read_b32 v30, v25", lg="xr")
        a.wait_lg("xr")
        if not KVQ:
            a.wait_vm("pqf")
            a.e("v_cmp_ne_u32 s[66:67], s38, v21")
        for j in range(4): a.e(f"v_add_f32 v{KEEP+j}, v{KEEP+j}, v{SEL+j}")
        a.e(f"""
        v_add_f32 v29, v29, v30
        v_cvt_pk_bf16_f32 v{SEL}, v{KEEP}, v{KEEP+1}
        v_mov_b32 v{SEL+1}, s38
        v_cvt_pk_bf16_f32 v{SEL+2}, v{KEEP+2}, v{KEEP+3}
        v_mov_b32 v{SEL+3}, s38
        v_mov_b32_dpp v30, v29 quad_perm:[1,0,3,2] row_mask:0xf bank_mask:0xf
        global_store_dwordx4 v26, v[{SEL}:{SEL+3}], s[36:37] sc1
        v_cvt_pk_bf16_f32 v{SEL+4}, v29, v30
        v_mov_b32 v{SEL+5}, s38
        s_andn2_b64 exec, 0x55555555, s[54:55]
        s_cbranch_execz L_b_noz
        global_store_dwordx2 v27, v[{SEL+4}:{SEL+5}], s[36:37] sc1
        """)
        a.vm.pop()
        a.label("L_b_noz")
        a.e("s_mov_b64 exec, -1")
        stamp(a, cfg, 6)

    a.wait_vm(["slot0", "slot1"])
    a.e("s_barrier")
    stamp(a, cfg, 2)
    for k in range(4):
        for t, tag in frag_reads(0, k): a.e(t, lg=tag)
    nxt = cfg.ninit
    pend = []
    while nxt < NSLOT:
        pend += b_issue_jobs(nxt); nxt += 1
    for g in range(16):
        a.c(f"--- group {g}")
        if g == (11 if KVQ else 13): poll_nonce(a, "v21", "v31", first_tag="nonce")
        if KVQ and g == 12: kv_publish()
        if g == cfg.pqflag_g and not KVQ: a.wait_vm("pqst")
        if g < 15:
            a.wait_vm([f"slot{2*g+2}", f"slot{2*g+3}"])
        a.e("s_barrier")
        if g == cfg.pqflag_g and not KVQ:
            a.e("""
            s_cmp_lg_u32 s39, 3
            s_cbranch_scc1 L_b_noflag
            s_lshl_b32 s68, s56, 7
            s_lshl_b32 s69, s57, 2
            s_add_u32 s68, s68, s69
            s_add_u32 s68, s68, %d
            v_mov_b32 v20, s68
            v_mov_b32 v21, s38
            s_mov_b64 exec, 1
            global_store_dword v20, v21, s[36:37] sc1
            s_mov_b64 exec, -1
            """ % PQF)
            a.vm.pop()
            a.label("L_b_noflag")
        if g in (1, 8, 12): stamp(a, cfg, {1: 3, 8: 4, 12: 5}[g])
        jobs = list(pend); pend = []
        if g >= 1:
            for _ in range(2):
                if nxt < (32 if cfg.late_o else 40): jobs += b_issue_jobs(nxt); nxt += 1
        if g == (7 if KVQ else 9):
            jobs.append([("global_load_dword v21, v31, s[34:35] sc1", "nonce")])
        ns = nsteps(g)
        jsp = spread(jobs, ns)
        for k in range(ns):
            if k % 2 == 0: a.wait_lg([f"f{g}_{k}", f"f{g}_{k+1}"])
            part = cfg.order[0] if g < 8 else (cfg.order[1] if g < 12 else cfg.order[2])
            if g < 8:
                wreg = WF + 16*(g % 2) + 4*k; kk = 4*g + k
            else:
                wreg = WF + 4*k; kk = ((g - 8) % 4)*8 + k
            W_ = f"v[{wreg}:{wreg+3}]"; X_ = f"v[{XR+4*kk}:{XR+4*kk+3}]"
            if part == "Q":
                a.e(f"v_mfma_f32_32x32x16_bf16 v[{ACCQ}:{ACCQ+15}], {W_}, {X_}, v[{ACCQ}:{ACCQ+15}]")
            elif part == "K":
                a.e(f"v_mfma_f32_32x32x16_bf16 v[{ACCK}:{ACCK+15}], {X_}, {W_}, v[{ACCK}:{ACCK+15}]")
            else:
                cc = "0" if kk == 0 else f"v[{ACCV}:{ACCV+15}]"
                a.e(f"v_mfma_f32_32x32x16_bf16 v[{ACCV}:{ACCV+15}], {X_}, {W_}, {cc}")
            jl = [list(jb) for jb in jsp[k]]
            if jl:
                while jl[0] and not jl[0][0][0].startswith(("buffer_load", "global_load")):
                    a.e(jl[0].pop(0)[0])
            if g < 15:
                nx = [k, 4 + k] if g == 7 else [k]
                for k2 in nx:
                    for t, tag in frag_reads(g + 1, k2): a.e(t, lg=tag)
            for jb in jl: emit_job(a, jb)
            emit_side(side.get((g, k), []))
    if KVQ:
        tail_kvq(a, cfg, rb)
        return
    kv_publish()
    if cfg.prioBw is not None: a.e(f"s_setprio {cfg.prioBw}")
    a.e("s_mov_b64 s[54:55], s[66:67]")
    def pq_first(sfx):
        for t in rb: a.e(t)
        a.e(f"""
        s_cmp_eq_u64 s[54:55], 0
        s_cbranch_scc1 L_b_pqf_go{sfx}
        s_mov_b32 s61, 0
        """)
        a.label(f"L_b_pqf_poll{sfx}")
        a.e(f"""
        global_load_dword v21, v2, s[36:37] sc1
        s_add_u32 s61, s61, 1
        s_waitcnt vmcnt(0)
        v_cmp_ne_u32 vcc, s38, v21
        s_cmp_gt_u32 s61, {SPIN_LIMIT}
        s_cbranch_scc1 L_b_pqf_go{sfx}
        s_cbranch_vccz L_b_pqf_go{sfx}
        s_branch L_b_pqf_poll{sfx}
        """)
        a.label(f"L_b_pqf_go{sfx}")
        for i in range(8):
            a.e(f"buffer_load_dwordx4 v[{32+4*i}:{35+4*i}], v3, s[40:43], s{8+i} offen sc1")
    a.e("""
    s_cmp_eq_u32 s39, 0
    s_cbranch_scc1 L_b_w0tail
    """)
    for n in range(32, 40):
        for jb in b_issue_jobs(n): emit_job(a, jb)
    a.e("""
    s_cmp_eq_u32 s39, 1
    s_cbranch_scc0 L_b_noshare
    v_subrev_u32 v22, 16384, v6
    v_subrev_u32 v23, 16384, v7
    """)
    for n in range(32, 40):
        c = SEQ[n][1]; pos = n % NSLOT
        a.e(f"s_mov_b32 m0, {pos*8192}")
        a.e(f"s_mov_b32 s61, {c*65536}")
        a.e(f"buffer_load_dwordx4 v22, s[48:51], s61 offen lds")
        a.e(f"buffer_load_dwordx4 v23, s[48:51], s61 offen offset:1024 lds")
    a.label("L_b_noshare")
    pq_first("a")
    a.e("s_waitcnt vmcnt(8)")
    a.e("s_branch L_b_tailjoin")
    a.label("L_b_w0tail")
    reducer(a, cfg)
    pq_first("b")
    a.label("L_b_tailjoin")
    a.vm = []; a.lg = []
    stamp(a, cfg, 7)
    if not cfg.do_B2:
        stamp(a, cfg, 8)
        stamps_out(a, cfg, 9)
        a.e("s_branch L_end")
        return
    role_B2(a, cfg)

def tag_check(a, regs_tags, acc="v20"):
    tt = 0
    for idx in range(8):
        s0, s1, s2 = (idx >> 2) & 1, (idx >> 1) & 1, idx & 1
        if s0 | (s1 ^ s2): tt |= 1 << idx
    first = True
    for r in regs_tags:
        if first:
            a.e(f"v_xor_b32 {acc}, s38, v{r}"); first = False
        else:
            a.e(f"v_bitop3_b32 {acc}, {acc}, v{r}, s38 bitop3:{hex(tt)}")
    a.e(f"v_cmp_ne_u32 vcc, 0, {acc}")

def tail_kvq(a, cfg, rb):
    a.e("s_barrier")
    a.e("""
    s_cmp_eq_u32 s39, 0
    s_cbranch_scc1 L_b_w0a
    """)
    for n in range(32, 40):
        for jb in b_issue_jobs(n): emit_job(a, jb)
    a.e("""
    s_cmp_eq_u32 s39, 1
    s_cbranch_scc0 L_b_noshare
    v_subrev_u32 v22, 16384, v6
    v_subrev_u32 v23, 16384, v7
    """)
    for n in range(32, 40):
        c = SEQ[n][1]; pos = n % NSLOT
        a.e(f"s_mov_b32 m0, {pos*8192}")
        a.e(f"s_mov_b32 s61, {c*65536}")
        a.e(f"buffer_load_dwordx4 v22, s[48:51], s61 offen lds")
        a.e(f"buffer_load_dwordx4 v23, s[48:51], s61 offen offset:1024 lds")
    a.label("L_b_noshare")
    a.e("s_branch L_b_phi")
    a.label("L_b_w0a")
    reducer(a, cfg, "addr")
    reducer(a, cfg, "loads")
    a.label("L_b_phi")
    for t in phi_instrs(ACCQ, T16, ACCQ): a.e(t)
    a.e(f"""
    v_lshlrev_b32 v20, 4, v1
    s_cmp_lg_u32 s39, 0
    s_cbranch_scc1 L_b_noho
    ds_write_b128 v20, v[{ACCQ}:{ACCQ+3}]
    ds_write_b128 v20, v[{ACCQ+4}:{ACCQ+7}] offset:1024
    v_mov_b32 v21, 0
    ds_write_b32 v21, v21 offset:2048
    s_waitcnt lgkmcnt(0)
    """)
    a.label("L_b_noho")
    a.e("s_barrier")
    stamp(a, cfg, 7)
    if cfg.prioBw is not None: a.e(f"s_setprio {cfg.prioBw}")
    a.e(f"""
    s_cmp_eq_u32 s39, 0
    s_cbranch_scc1 L_b_w0b
    global_store_dwordx4 v28, v[{ACCQ}:{ACCQ+3}], s[36:37] sc1
    global_store_dwordx4 v28, v[{ACCQ+4}:{ACCQ+7}], s[36:37] offset:1024 sc1
    s_cmp_eq_u32 s39, 1
    s_cbranch_scc0 L_b_nopq
    ds_read_b128 v[32:35], v20
    ds_read_b128 v[36:39], v20 offset:1024
    v_subrev_u32 v21, 32768, v28
    s_waitcnt lgkmcnt(0)
    global_store_dwordx4 v21, v[32:35], s[36:37] sc1
    global_store_dwordx4 v21, v[36:39], s[36:37] offset:1024 sc1
    """)
    a.label("L_b_nopq")
    for t in rb: a.e(t)
    a.e("""
    s_waitcnt vmcnt(0)
    v_mov_b32 v32, 0
    v_mov_b32 v33, 1
    s_mov_b64 exec, 1
    ds_add_rtn_u32 v34, v32, v33 offset:2048
    s_waitcnt lgkmcnt(0)
    v_readfirstlane_b32 s68, v34
    s_cmp_lg_u32 s68, 2
    s_cbranch_scc1 L_b_noflag2
    s_lshl_b32 s68, s56, 7
    s_lshl_b32 s69, s57, 2
    s_add_u32 s68, s68, s69
    s_add_u32 s68, s68, %d
    v_mov_b32 v32, s68
    v_mov_b32 v33, s38
    global_store_dword v32, v33, s[36:37] sc1
    """ % PQF)
    a.label("L_b_noflag2")
    a.e("s_mov_b64 exec, -1")
    a.e("s_branch L_b_tailjoin")
    a.label("L_b_w0b")
    reducer(a, cfg, "finish")
    for t in rb: a.e(t)
    a.label("L_b_tailjoin")
    a.vm = []; a.lg = []
    def pq_late():
        a.e("s_mov_b32 s61, 0")
        a.label("L_b_pqf_poll")
        a.e(f"""
        global_load_dword v21, v2, s[36:37] sc1
        s_add_u32 s61, s61, 1
        s_waitcnt vmcnt(0)
        v_cmp_ne_u32 vcc, s38, v21
        s_cmp_gt_u32 s61, {SPIN_LIMIT}
        s_cbranch_scc1 L_b_pqf_go
        s_cbranch_vccz L_b_pqf_go
        s_branch L_b_pqf_poll
        """)
        a.label("L_b_pqf_go")
        for i in range(8):
            a.e(f"buffer_load_dwordx4 v[{32+4*i}:{35+4*i}], v3, s[40:43], s{8+i} offen sc1")
    role_B2(a, cfg, pq_late)

def reducer(a, cfg, part=None):
    def reduce_line(base, dst_addr, tagsok_label):
        S = 64; T = 68
        for k in range(4):
            r = base + 4*k
            for pidx in range(2):
                src = r + 2*pidx
                if k == 0:
                    a.e(f"v_lshlrev_b32 v{S+2*pidx}, 16, v{src}")
                    a.e(f"v_and_b32 v{S+1+2*pidx}, 0xffff0000, v{src}")
                else:
                    a.e(f"v_lshlrev_b32 v{T+2*pidx}, 16, v{src}")
                    a.e(f"v_and_b32 v{T+1+2*pidx}, 0xffff0000, v{src}")
                    a.e(f"v_add_f32 v{S+2*pidx}, v{S+2*pidx}, v{T+2*pidx}")
                    a.e(f"v_add_f32 v{S+1+2*pidx}, v{S+1+2*pidx}, v{T+1+2*pidx}")
        for j in range(4): a.e(f"v_add_f32_dpp v{S+j}, v{S+j}, v{S+j} row_ror:8 row_mask:0xf bank_mask:0xf")
        for j in range(4): a.e(f"v_mov_b32 v{T+j}, v{S+j}")
        for j in range(4): a.e(f"v_permlane16_swap_b32 v{S+j}, v{T+j}")
        for j in range(4): a.e(f"v_add_f32 v{S+j}, v{S+j}, v{T+j}")
        for j in range(4): a.e(f"v_mov_b32 v{T+j}, v{S+j}")
        for j in range(4): a.e(f"v_permlane32_swap_b32 v{S+j}, v{T+j}")
        for j in range(4): a.e(f"v_add_f32 v{S+j}, v{S+j}, v{T+j}")
        a.e(f"""
        v_cvt_pk_bf16_f32 v72, v{S}, v{S+1}
        v_mov_b32 v73, s38
        v_cvt_pk_bf16_f32 v74, v{S+2}, v{S+3}
        v_mov_b32 v75, s38
        s_mov_b64 exec, 0xff
        global_store_dwordx4 {dst_addr}, v[72:75], s[36:37] sc1
        s_mov_b64 exec, -1
        """)
    if part in (None, "addr"):
        a.e(f"""
        s_lshr_b32 s66, s3, 4
        s_and_b32 s67, s3, 15
        s_mul_i32 s69, s66, {32*KVBLK}
        s_add_u32 s69, s69, {KVP}
        s_lshl_b32 s52, s67, 7
        s_add_u32 s68, s69, s52
        v_and_b32 v22, 7, v1
        v_lshlrev_b32 v22, 4, v22
        v_lshrrev_b32 v23, 3, v1
        v_mul_u32_u24 v23, {KVBLK}, v23
        v_add_u32 v23, v22, v23
        v_add_u32 v24, s68, v23
        v_add_u32 v25, {8*KVBLK}, v24
        v_add_u32 v26, {16*KVBLK}, v24
        v_add_u32 v27, {24*KVBLK}, v24
        s_add_u32 s68, s69, 2048
        v_add_u32 v8, s68, v23
        v_add_u32 v9, {8*KVBLK}, v8
        v_add_u32 v10, {16*KVBLK}, v8
        v_add_u32 v11, {24*KVBLK}, v8
        s_mul_i32 s69, s66, {KVBLK}
        s_add_u32 s69, s69, {KVF}
        s_add_u32 s68, s69, s52
        v_add_u32 v23, s68, v22
        s_add_u32 s68, s69, 2048
        v_add_u32 v29, s68, v22
        """)
    if part == "addr": return
    def red_round(sfx):
        a.e(f"""
        global_load_dwordx4 v[96:99], v24, s[36:37] sc1
        global_load_dwordx4 v[100:103], v25, s[36:37] sc1
        global_load_dwordx4 v[104:107], v26, s[36:37] sc1
        global_load_dwordx4 v[108:111], v27, s[36:37] sc1
        s_cmp_lg_u32 s67, 0
        s_cbranch_scc1 L_b_red_nb{sfx}
        global_load_dwordx4 v[112:115], v8, s[36:37] sc1
        global_load_dwordx4 v[116:119], v9, s[36:37] sc1
        global_load_dwordx4 v[120:123], v10, s[36:37] sc1
        global_load_dwordx4 v[124:127], v11, s[36:37] sc1
        """)
        a.label(f"L_b_red_nb{sfx}")
    if part == "loads":
        red_round("0"); return
    a.e("s_mov_b32 s61, 0")
    if part == "finish": a.e("s_branch L_b_red_w")
    a.label("L_b_red_poll")
    red_round("1")
    a.label("L_b_red_w")
    a.e("""
    s_add_u32 s61, s61, 1
    s_waitcnt vmcnt(0)
    s_cmp_lg_u32 s67, 0
    s_cbranch_scc1 L_b_red_one
    """)
    tag_check(a, [97+2*q for q in range(16)])
    a.e("s_branch L_b_red_chk")
    a.label("L_b_red_one")
    tag_check(a, [97+2*q for q in range(8)])
    a.label("L_b_red_chk")
    a.e(f"""
    s_cmp_gt_u32 s61, {SPIN_LIMIT}
    s_cbranch_scc1 L_b_red_go
    s_cbranch_vccz L_b_red_go
    s_sleep {cfg.sl_red}
    s_branch L_b_red_poll
    """)
    a.label("L_b_red_go")
    a.e("""
    s_cmp_lg_u32 s67, 0
    s_cbranch_scc1 L_b_red_a
    """)
    reduce_line(112, "v29", None)
    a.label("L_b_red_a")
    reduce_line(96, "v23", None)
    stamp(a, cfg, 10)

def role_B2(a, cfg, after_k1=None):
    WO = 128
    ACC = 96
    PQR = 32
    CN = [64, 80]
    KAF = [8, 12]
    OF = [4, 16]
    KA = 0
    PQL = 17408
    a.c("================= B2 =================")
    a.e("s_barrier")
    for i in range(16):
        for nt in range(2):
            d = WO + 8*i + 4*nt
            off = (i//4)*8192 + (i % 4)*2048
            a.e(f"ds_read_b64_tr_b16 v[{d}:{d+1}], v{18+nt} offset:{off}", lg="wo")
            a.e(f"ds_read_b64_tr_b16 v[{d+2}:{d+3}], v{18+nt} offset:{off+1024}", lg="wo")
    a.e("s_waitcnt lgkmcnt(0)")
    a.e("s_barrier")
    a.vm = []; a.lg = []
    stamp(a, cfg, 9)
    if after_k1: after_k1()
    if cfg.zpoll:
        a.e("""
        s_mov_b32 s61, 0
        s_cmp_eq_u32 s39, 0
        s_cbranch_scc0 L_b_kz_go
        """)
        a.label("L_b_kz_poll")
        a.e(f"""
        buffer_load_dwordx4 v[96:99], v30, s[40:43], 0 offen sc1
        s_add_u32 s61, s61, 1
        s_waitcnt vmcnt(0)
        v_xor_b32 v20, s38, v97
        v_cmp_ne_u32 vcc, 0, v20
        s_cmp_gt_u32 s61, {SPIN_LIMIT}
        s_cbranch_scc1 L_b_kz_go
        s_cbranch_vccz L_b_kz_go
        s_sleep {cfg.sl_kz}
        s_branch L_b_kz_poll
        """)
        a.label("L_b_kz_go")
        stamp(a, cfg, 11)
        a.e("s_barrier")
    PB = 17408
    a.e(f"""
    v_and_b32 v24, 31, v1
    s_lshl_b32 s68, s58, 5
    v_add_u32 v24, s68, v24            ; token
    v_mul_u32_u24 v24, 272, v24
    v_lshrrev_b32 v25, 5, v1
    v_lshl_add_u32 v24, v25, 4, v24    ; + hh*16
    s_mul_i32 s68, s59, {64*272}
    s_add_u32 s68, s68, {PB}
    v_add_u32 v24, s68, v24            ; P write address
    v_lshrrev_b32 v26, 3, v0
    v_mul_u32_u24 v25, 272, v26
    v_and_b32 v27, 7, v0
    v_lshl_add_u32 v25, v27, 5, v25
    v_add_u32 v25, {PB}, v25           ; P read address
    s_lshl_b32 s68, s56, 6
    v_add_u32 v26, s68, v26
    v_lshlrev_b32 v26, 11, v26
    s_lshl_b32 s68, s57, 7
    s_add_u32 s68, s68, 1024
    v_lshl_add_u32 v26, v27, 4, v26
    v_add_u32 v26, s68, v26
    v_add_u32 v27, {32*2048}, v26
    v_and_b32 v22, 31, v1
    v_min_u32 v22, 16, v22
    v_lshlrev_b32 v22, 4, v22
    v_lshrrev_b32 v23, 5, v1
    v_mul_u32_u24 v23, 272, v23
    s_mul_i32 s68, s59, {16*544}
    v_add3_u32 v22, v22, v23, s68       ; kv fragment address
    """)
    def ka_loads():
        for k in range(8):
            a.e(f"buffer_load_dwordx4 v[{64+4*k}:{67+4*k}], v13, s[40:43], s{16+k} offen sc1")
        a.e("buffer_load_dwordx4 v[96:99], v14, s[40:43], 0 offen sc1")
    a.e("s_mov_b32 s61, 0")
    a.e("s_branch L_b_kvf_first")
    a.label("L_b_kvf_poll")
    a.e(f"s_sleep {cfg.sl_ka}")
    a.label("L_b_kvf_first")
    ka_loads()
    a.e("s_waitcnt vmcnt(0)")
    a.label("L_b_ka_chk")
    a.e("s_add_u32 s61, s61, 1")
    tag_check(a, [65+2*q for q in range(18)])
    a.e(f"""
    s_cmp_gt_u32 s61, {SPIN_LIMIT}
    s_cbranch_scc1 L_b_kvf_go
    s_cbranch_vccnz L_b_kvf_poll
    """)
    a.label("L_b_kvf_go")
    stamp(a, cfg, 12)
    stampval(a, cfg, 8, "s61")
    a.vm = []
    for k in range(8):
        a.e(f"v_mov_b32 v{65+4*k}, v{66+4*k}")
        a.e(f"ds_write_b64 v15, v[{64+4*k}:{65+4*k}] offset:{KA + 2176*k}")
    a.e("v_mov_b32 v97, v98")
    a.e(f"ds_write_b64 v12, v[96:97] offset:{KA}")
    a.e(f"""
    s_waitcnt vmcnt(0) lgkmcnt(0)
    s_barrier
    """)
    a.vm = []; a.lg = []
    stamp(a, cfg, 13)
    if cfg.prioBw is not None: a.e(f"s_setprio {cfg.prioBm}")
    def kaf_read(i):
        a.e(f"ds_read_b128 v[{KAF[i%2]}:{KAF[i%2]+3}], v22 offset:{KA + 544*i}", lg=f"ka{i}")
    def out_mfma(i):
        o = OF[i % 2]
        for nt in range(2):
            w = WO + 8*i + 4*nt
            cc = "0" if i == 0 else f"v[{ACC+16*nt}:{ACC+16*nt+15}]"
            a.e(f"v_mfma_f32_32x32x16_bf16 v[{ACC+16*nt}:{ACC+16*nt+15}], v[{w}:{w+3}], v[{o}:{o+3}], {cc}")
    def num_mfma(i):
        a.wait_lg(f"ka{i}")
        p = PQR + 4*(i % 8)
        if i >= 8: a.wait_vm(f"pq{i}")
        a.e(f"v_mfma_f32_32x32x16_bf16 v[{CN[i%2]}:{CN[i%2]+15}], v[{KAF[i%2]}:{KAF[i%2]+3}], v[{p}:{p+3}], 0")
        if i < 8:
            a.e(f"buffer_load_dwordx4 v[{p}:{p+3}], v31, s[40:43], s{8+i} offen sc1", vm=f"pq{i+8}")
    def out1(i, nt):
        o = OF[i % 2]
        w = WO + 8*i + 4*nt
        cc = "0" if i == 0 else f"v[{ACC+16*nt}:{ACC+16*nt+15}]"
        a.e(f"v_mfma_f32_32x32x16_bf16 v[{ACC+16*nt}:{ACC+16*nt+15}], v[{w}:{w+3}], v[{o}:{o+3}], {cc}")
    kaf_read(0); kaf_read(1)
    num_mfma(0)
    for i in range(16):
        if i >= cfg.x_main: break
        if i + 1 < 16:
            num_mfma(i + 1)
        c = CN[i % 2]
        a.e(f"v_add_f32 v20, s64, v{c+8}")
        a.e(f"v_rcp_f32 v20, v20")
        if i + 2 < 16:
            kaf_read(i + 2)
        for jj in range(2): a.e(f"v_mul_f32 v{c+jj}, v{c+jj}, v20")
        if i >= 1: out1(i - 1, 0)
        for jj in range(2, 7): a.e(f"v_mul_f32 v{c+jj}, v{c+jj}, v20")
        if i >= 1: out1(i - 1, 1)
        a.e(f"v_mul_f32 v{c+7}, v{c+7}, v20")
        o = OF[i % 2]
        for m in range(4):
            a.e(f"v_cvt_pk_bf16_f32 v{o+m}, v{c+2*m}, v{c+2*m+1}")
    out1(15, 0); out1(15, 1)
    stamp(a, cfg, 14)
    a.e("""
    s_cmp_lg_u32 s3, 0
    s_cbranch_scc1 L_b_norst
    s_cmp_lg_u32 s39, 0
    s_cbranch_scc1 L_b_norst
    v_mov_b32 v20, 0
    s_mov_b64 exec, 1
    global_store_dword v20, v20, s[34:35] sc1
    s_mov_b64 exec, -1
    """)
    a.label("L_b_norst")
    a.vm = []
    for nt in range(2):
        for q in range(4):
            r = ACC + 16*nt + 4*q
            a.e(f"ds_write_b128 v24, v[{r}:{r+3}] offset:{nt*128 + q*32}")
    a.e("s_waitcnt lgkmcnt(0)")
    a.e("s_barrier")
    for r in range(2):
        o = r*32*272
        a.e(f"ds_read_b128 v[{32+16*r}:{35+16*r}], v25 offset:{o}")
        a.e(f"ds_read_b128 v[{40+16*r}:{43+16*r}], v25 offset:{o+64*272}")
        a.e(f"ds_read_b128 v[{36+16*r}:{39+16*r}], v25 offset:{o+16}")
        a.e(f"ds_read_b128 v[{44+16*r}:{47+16*r}], v25 offset:{o+64*272+16}")
    for r in range(2):
        a.e(f"s_waitcnt lgkmcnt({4 if r == 0 else 0})")
        b = 32 + 16*r
        for jj in range(8):
            a.e(f"v_add_f32 v{b+jj}, v{b+jj}, v{b+8+jj}")
        for m in range(4):
            a.e(f"v_cvt_pk_bf16_f32 v{64+4*r+m}, v{b+2*m}, v{b+2*m+1}")
        a.e(f"global_store_dwordx4 v{26+r}, v[{64+4*r}:{67+4*r}], s[32:33] {cfg.outfl}")
    stamps_out(a, cfg, 15)

TV = 240
def a_touch_setup(a, cfg):
    a.e(f"""
    s_lshr_b32 s62, s40, 1          ; tg
    s_and_b32 s63, s40, 1           ; hg
    s_lshl_b32 s64, s62, 9
    s_lshl_b32 s65, s41, 4          ; 16*jj
    s_add_u32 s64, s64, s65
    v_and_b32 v246, 15, v1
    v_lshrrev_b32 v247, 4, v1       ; 0..3
    v_add_u32 v241, s64, v246
    v_lshlrev_b32 v241, 10, v241
    v_lshl_add_u32 v241, v247, 7, v241
    v_add_u32 v241, 512, v241
    v_and_b32 v248, 3, v1
    v_lshlrev_b32 v248, 7, v248     ; line*128
    s_lshl_b32 s66, s63, 9          ; hg*512
    v_lshrrev_b32 v249, 2, v1
    v_add_u32 v240, s65, v249       ; 16jj + (l>>2)
    v_mul_u32_u24 v242, 3072, v240
    v_add3_u32 v242, v242, v248, s66
    v_add_u32 v244, {'QKV'.index(ORDER[2])*1024}, v242
    v_lshlrev_b32 v245, 10, v240
    v_add3_u32 v245, v245, v248, s66
    v_and_b32 v249, 7, v249
    s_lshl_b32 s67, s41, 3
    s_add_u32 s67, s67, 256
    v_add_u32 v249, s67, v249
    v_mul_u32_u24 v243, 3072, v249
    v_add3_u32 v243, v243, v248, s66
    v_add_u32 v240, {'QKV'.index(ORDER[1])*1024}, v242
    v_add_u32 v243, {'QKV'.index(ORDER[0])*1024}, v243
    """)

def a_touch(a, cfg, plan):
    fl = cfg.touch_flags
    info = {"x1": (241, "s[26:27]"), "q47": (243, "s[28:29]"), "k": (240, "s[28:29]"), "v": (244, "s[28:29]"), "o": (245, "s[30:31]")}
    for w, names in plan.items():
        L = a.newlabel("tch")
        a.e(f"s_cmp_eq_u32 s39, {w}")
        a.e(f"s_cbranch_scc0 {L}")
        for i, nm in enumerate(names):
            v, base = info[nm]
            a.e(f"global_load_dword v{250+i}, v{v}, {base} {fl}")
            a.vm.pop()
        a.label(L)

def role_A(a, cfg):
    a.label("L_roleA")
    a.e("""
    s_and_b32 s40, s3, 7
    s_lshr_b32 s41, s3, 3           ; j
    s_waitcnt lgkmcnt(0)
    """)
    if not cfg.do_A:
        if cfg.touch:
            a_touch_setup(a, cfg)
            a_touch(a, cfg, {2: ["x1"], 3: ["q47"]})
            a.e("s_waitcnt vmcnt(0)")
            a_touch(a, cfg, {1: ["k"], 2: ["v"], 3: ["o"]})
            a.e("s_waitcnt vmcnt(0)")
        a.e("s_branch L_end")
        return
    import role_a
    role_a.role_A(a, cfg)

def build(cfg):
    set_order(cfg.order)
    global DMAFL
    DMAFL = cfg.dmafl
    a = Asm()
    prologue(a, cfg)
    if cfg.do_B:
        role_B(a, cfg)
    a.e("s_branch L_end")
    a.vm = []
    role_A(a, cfg)
    a.label("L_end")
    a.e("s_endpgm")
    body = a.render()
    return body, a

HEADER = open("concat_heads__ssm_conv_s4__linear_attn_block__prompt.s.ref").read().split("; Override launch")[0]

def generate(path, cfg):
    body, a = build(cfg)
    txt = wrap(body, HEADER, 512, 256, 81920)
    open(path, "w").write(txt)
    return a

if __name__ == "__main__":
    sys.modules["kern"] = sys.modules["__main__"]
    cfg = Cfg()
    cfg.stamps = True
    if len(sys.argv) > 2:
        for kv in sys.argv[2:]:
            k, v = kv.split("=")
            setattr(cfg, k, int(v) if v.isdigit() else v)
    a = generate(sys.argv[1] if len(sys.argv) > 1 else "k_b1.s", cfg)
    print("nops inserted:", a.nnops)
```

```python
import sys
from asmlib import Asm, wrap

UT   = 0
YT   = 4 << 20
PQ   = 8 << 20
PQF  = 10 << 20
KVP  = (10 << 20) + (64 << 10)
KVF  = 12 << 20
UTF  = (12 << 20) + (64 << 10)
YTF  = (12 << 20) + (96 << 10)
BDN  = (12 << 20) + (112 << 10)
KVBLK = 2176
LOG2E = 0x3fb8aa3b
EPS   = 0x358637bd
SPIN_LIMIT = 200000

class Cfg:
    do_A = True
    do_B = True
    do_B2 = True
    touch = True
    dual = False
    x_nowrite = False
    prioA = 1
    prioA2 = 0
    dbgT = 0
    ka_first = 0
    order = "KVQ"
    late_prio = 1
    bfirst = 0
    prioBw = 1
    prioBm = 3
    gate = 0
    gate_max = 40
    x_exit = ""
    x_conv = 32
    x_tab = 0
    x_main = 16
    x_epi = 0
    locfl = ""
    mid_u = 1
    qe_end = 26
    pqflag_g = 14
    dmafl = ""
    aldfl = ""
    zpoll = 0
    sl_ka = 1
    sl_kz = 1
    sl_pq = 1
    sl_red = 1
    sl_yt = 1
    sl_ut = 1
    late_o = 1
    yglobal = 0
    utclean = 0
    outfl = "sc1"
    uttouch = 0
    ninit = 6
    dbgN = 0
    ut_patience = 200
    flagpos = 0
    ytouch = 1
    dbgY = 0
    prioA3 = 0
    prioB = 1
    pk = 1
    b_exit = False
    touch_flags = ""
    early_release = True
    dma_early = False
    last_dma = 40
    late_pre = 0
    touch_mode = "late"
    stamps = False

STAMP_BASE = 14 << 20
def stamp(a, cfg, i):
    if cfg.stamps == 1:
        a.e(f"s_memtime s[{70+2*i}:{71+2*i}]")
def stampval(a, cfg, i, sreg):
    if cfg.stamps == 1:
        a.e("s_waitcnt lgkmcnt(0)")
        a.e(f"s_add_u32 s{70+2*i}, {sreg}, s70")
def stamps_out(a, cfg, n, vt=22):
    if not cfg.stamps: return
    a.e("s_memrealtime s[68:69]")
    a.e("s_waitcnt lgkmcnt(0) vmcnt(0)")
    a.vm = []
    if cfg.stamps == 2: n = 1
    for i in range(1, n):
        a.e(f"s_sub_u32 s{70+2*i}, s{70+2*i}, s70")
    a.e(f"""
    s_lshl_b32 s61, s2, 2
    s_add_u32 s61, s61, s39
    s_lshl_b32 s61, s61, 6
    s_add_u32 s61, s61, {STAMP_BASE}
    v_mov_b32 v{vt}, s61
    s_mov_b64 exec, 1
    """)
    for i in range(16):
        src = f"s{70+2*i}" if (0 < i < n) else ("s68" if i == 15 else ("s100" if i == 0 else "0"))
        a.e(f"v_mov_b32 v{vt+1}, {src}")
        a.e(f"global_store_dword v{vt}, v{vt+1}, s[36:37] offset:{4*i}")
        a.e("s_nop 1")
    a.e("s_waitcnt vmcnt(0)")
    a.e("s_mov_b64 exec, -1")
    a.vm = []

def prologue(a, cfg):
    if cfg.stamps:
        a.e("s_memrealtime s[100:101]")
        a.e("s_memtime s[70:71]")
    a.e("""
    s_cmp_ge_u32 s2, 512
    s_cbranch_scc1 L_end
    s_load_dwordx16 s[8:23], s[0:1], 0
    s_load_dwordx8 s[24:31], s[0:1], 64
    s_load_dwordx4 s[32:35], s[0:1], 96
    s_load_dwordx2 s[36:37], s[0:1], 112
    v_lshrrev_b32 v1, 6, v0
    v_readfirstlane_b32 s39, v1
    v_and_b32 v1, 63, v0
    s_and_b32 s3, s2, 255
    s_cmp_lt_u32 s2, 256
    """)
    a.e("s_cbranch_scc1 L_roleA" if not cfg.bfirst else "s_cbranch_scc0 L_roleA")

def poll_nonce(a, vtmp, vaddr0, first_tag=None):
    L = a.newlabel("nonce"); Lx = a.newlabel("nonce_ok")
    if first_tag:
        a.wait_vm(first_tag)
    else:
        a.e(f"global_load_dword {vtmp}, {vaddr0}, s[34:35] sc1")
        a.wait_vm_all()
    a.e(f"v_readfirstlane_b32 s38, {vtmp}")
    a.e(f"""
    s_cmp_lg_u32 s38, 0
    s_cbranch_scc1 {Lx}
    s_mov_b32 s61, 0
    """)
    a.label(L)
    a.e(f"""
    global_load_dword {vtmp}, {vaddr0}, s[34:35] sc1
    s_waitcnt vmcnt(0)
    v_readfirstlane_b32 s38, {vtmp}
    s_add_u32 s61, s61, 1
    s_cmp_gt_u32 s61, {SPIN_LIMIT}
    s_cbranch_scc1 {Lx}
    s_cmp_eq_u32 s38, 0
    s_cbranch_scc1 {L}
    """)
    a.vm.pop()
    a.label(Lx)

def phi_instrs(acc, tmp, out, zsum=None):
    L = []
    for i in range(16):
        L.append(f"v_mul_f32 v{tmp+i}, s62, v{acc+i}")
    for i in range(16):
        L.append(f"v_exp_f32 v{tmp+i}, v{tmp+i} clamp")
        L.append(f"v_max_f32 v{acc+i}, s64, v{acc+i}")
    for i in range(16):
        L.append(f"v_add_f32 v{acc+i}, v{acc+i}, v{tmp+i}")
    if zsum is not None:
        for m in range(8):
            L.append(f"v_add_f32 v{tmp+m}, v{acc+2*m}, v{acc+2*m+1}")
        for m in range(4):
            L.append(f"v_add_f32 v{tmp+m}, v{tmp+m}, v{tmp+4+m}")
        L.append(f"v_add_f32 v{tmp}, v{tmp}, v{tmp+2}")
        L.append(f"v_add_f32 v{tmp+1}, v{tmp+1}, v{tmp+3}")
        L.append(f"v_add_f32 v{zsum}, v{tmp}, v{tmp+1}")
    for m in range(8):
        L.append(f"v_cvt_pk_bf16_f32 v{out+m}, v{acc+2*m}, v{acc+2*m+1}")
    return L

def spread(side, nslots):
    out = []; n = len(side); k = 0
    for i in range(nslots):
        e = (n*(i+1))//nslots
        out.append(side[k:e]); k = e
    return out

SEQ = []
ORDER = "QKV"
def set_order(o):
    global SEQ, ORDER
    ORDER = o
    SEQ = []
    for c in range(8): SEQ += [("X", c), (o[0], c)]
    SEQ += [(o[1], c) for c in range(8)] + [(o[2], c) for c in range(8)] + [("O", c) for c in range(8)]
set_order("QKV")
NSLOT = 10
NINIT = 6
XR = 128
WF, T16, ACCQ, ACCK, ACCV = 32, 64, 80, 96, 112

DMAFL = ""
def b_issue_jobs(n):
    kind, c = SEQ[n]
    pos = n % NSLOT
    pre = []
    if kind == "X":
        so, v0, srd = f"s{16+c}", 2, "s[40:43]"
    elif kind in "QKV":
        so, v0, srd = f"s{8+c}", 4, "s[44:47]"
        if c == 0 and kind != ORDER[0]:
            prev = ORDER[ORDER.index(kind) - 1]
            dl = ("QKV".index(kind) - "QKV".index(prev))*1024
            op = "v_add_u32" if dl > 0 else "v_subrev_u32"
            pre = [(f"{op} v4, {abs(dl)}, v4", None), (f"{op} v5, {abs(dl)}, v5", None)]
    else:
        so, v0, srd = "s61", 6, "s[48:51]"
        pre = [(f"s_mov_b32 s61, {c*65536}", None)]
    return [pre + [(f"s_add_u32 m0, s60, {pos*8192}", None),
             (f"buffer_load_dwordx4 v{v0}, {srd}, {so} offen {DMAFL} lds", f"slot{n}")],
            [(f"buffer_load_dwordx4 v{v0+1}, {srd}, {so} offen offset:1024 {DMAFL} lds", f"slot{n}")]]

def emit_job(a, job):
    for t in job:
        if isinstance(t, str): a.e(t)
        else: a.e(t[0], vm=t[1])

def lds_base(n):
    pos = n % NSLOT
    return (0, pos*8192) if pos < 5 else (1, (pos-5)*8192)

def wfrag_reads(a, n, s, dst, tag=None):
    hi, off = lds_base(n)
    va = "v17" if hi else "v16"
    a.e(f"ds_read_b64_tr_b16 v[{dst}:{dst+1}], {va} offset:{off + s*2048}", lg=tag)
    a.e(f"ds_read_b64_tr_b16 v[{dst+2}:{dst+3}], {va} offset:{off + s*2048 + 512}", lg=tag)

def role_B(a, cfg):
    e0 = a.e
    def e_sub(text, **kw): return e0(text.replace("FIRSTPART", str("QKV".index(ORDER[0])*1024)).replace("SCR0", str(16384 if ORDER == "KVQ" else 0)).replace("SCR1", str(20480 if ORDER == "KVQ" else 4096)), **kw)
    a.e = e_sub
    a.c("================= role B =================")
    if cfg.prioB: a.e(f"s_setprio {3 if cfg.late_prio else cfg.prioB}")
    a.e("""
    s_and_b32 s66, s3, 7            ; xcd
    s_lshr_b32 s67, s3, 3           ; jj
    s_lshr_b32 s56, s66, 1
    s_lshl_b32 s56, s56, 3
    s_and_b32 s68, s67, 7
    s_add_u32 s56, s56, s68         ; tb
    s_and_b32 s57, s66, 1
    s_lshl_b32 s57, s57, 2
    s_lshr_b32 s68, s67, 3
    s_add_u32 s57, s57, s68         ; hq
    s_and_b32 s58, s39, 1           ; tt
    s_lshr_b32 s59, s39, 1
    s_lshl_b32 s60, s39, 11
    s_mov_b32 s62, 0x3fb8aa3b
    s_mov_b32 s63, 0x3fb8aa3b
    s_mov_b32 s64, 0x358637bd
    s_mov_b32 s65, 0x358637bd
    """)
    a.e("""
    v_lshrrev_b32 v32, 3, v1        ; l>>3
    v_and_b32 v33, 7, v1            ; l&7
    v_lshrrev_b32 v34, 4, v1        ; l>>4
    s_lshl_b32 s68, s56, 6          ; tb*64
    s_lshl_b32 s69, s39, 4          ; 16w
    s_add_u32 s68, s68, s69
    v_add_u32 v35, s68, v32         ; row
    v_lshlrev_b32 v35, 10, v35
    v_xor_b32 v36, v33, v34
    v_lshl_add_u32 v2, v36, 4, v35
    v_add_u32 v37, 4, v34
    v_xor_b32 v36, v33, v37
    v_lshl_add_u32 v3, v36, 4, v35
    v_add_u32 v3, 7168, v3          ; +8 rows - 1024
    v_and_b32 v36, 1, v34
    v_lshlrev_b32 v36, 2, v36
    v_xor_b32 v36, v33, v36         ; q
    v_lshlrev_b32 v36, 4, v36       ; q*16
    v_add_u32 v37, s69, v32         ; 16w + (l>>3)
    v_mul_u32_u24 v38, 3072, v37
    s_lshl_b32 s68, s57, 7          ; hq*128
    v_add3_u32 v4, v38, v36, s68
    v_add_u32 v4, FIRSTPART, v4
    v_add_u32 v5, 23552, v4         ; +8*3072 - 1024
    v_lshlrev_b32 v38, 10, v37
    v_add3_u32 v6, v38, v36, s68
    v_add_u32 v7, 7168, v6
    """)
    a.e("""
    s_waitcnt lgkmcnt(0)
    s_mov_b32 s40, s26
    s_and_b32 s41, s27, 0xffff
    s_mov_b32 s42, 0x200000
    s_mov_b32 s43, 0x20000
    s_mov_b32 s44, s28
    s_and_b32 s45, s29, 0xffff
    s_mov_b32 s46, 0x180000
    s_mov_b32 s47, 0x20000
    s_mov_b32 s48, s30
    s_and_b32 s49, s31, 0xffff
    s_mov_b32 s50, 0x80000
    s_mov_b32 s51, 0x20000
    """)
    a.e("""
    v_mov_b32 v31, 0
    s_cmp_lg_u32 s3, 0
    s_cbranch_scc1 L_b_nononce
    s_cmp_lg_u32 s39, 0
    s_cbranch_scc1 L_b_nononce
    s_memrealtime s[68:69]
    s_waitcnt lgkmcnt(0)
    s_or_b32 s68, s68, 1
    v_mov_b32 v30, s68
    s_mov_b64 exec, 1
    global_store_dword v31, v30, s[34:35] sc1
    s_mov_b64 exec, -1
    """)
    a.vm.pop()
    a.label("L_b_nononce")
    if cfg.b_exit:
        a.e("s_branch L_end")
    for c in range(8):
        a.e(f"s_mov_b32 s{8+c}, {c*64*3072}")
        a.e(f"s_mov_b32 s{16+c}, {c*128}")
    stamp(a, cfg, 1)
    for n in range(cfg.ninit):
        for job in b_issue_jobs(n): emit_job(a, job)
    if cfg.late_prio: a.e(f"s_setprio {cfg.prioB}")
    a.e("""
    v_and_b32 v32, 31, v1           ; i
    v_lshrrev_b32 v33, 5, v1        ; hh
    s_lshl_b32 s68, s58, 5
    v_add_u32 v34, s68, v32         ; 32tt + i
    v_lshlrev_b32 v34, 7, v34       ; *128
    v_lshrrev_b32 v35, 1, v32
    v_and_b32 v35, 7, v35           ; f
    """)
    for s in range(4):
        a.e(f"""
        v_add_u32 v36, {2*s}, v33
        v_xor_b32 v36, v36, v35
        v_lshl_add_u32 v{8+s}, v36, 4, v34
        v_add_u32 v{12+s}, 40960, v{8+s}
        """)
    a.e(f"""
    v_lshrrev_b32 v34, 2, v1
    v_and_b32 v34, 3, v34           ; rr
    v_and_b32 v35, 3, v1            ; cc
    v_lshrrev_b32 v36, 4, v1
    v_and_b32 v36, 1, v36           ; G&1
    v_lshlrev_b32 v36, 1, v36       ; 2(G&1)
    v_lshrrev_b32 v37, 1, v35       ; cc>>1
    v_add_u32 v36, v36, v37         ; 2(G&1) + (cc>>1)
    v_lshrrev_b32 v37, 1, v34
    v_lshlrev_b32 v37, 2, v37       ; 4(rr>>1)
    v_and_b32 v38, 1, v35
    v_lshlrev_b32 v38, 3, v38       ; 8(cc&1)
    s_lshl_b32 s68, s59, 2
    v_add_u32 v39, s68, v36
    v_xor_b32 v39, v39, v37
    v_lshl_add_u32 v39, v39, 4, v38
    v_lshl_add_u32 v40, v33, 3, v34
    v_lshl_add_u32 v16, v40, 7, v39
    v_add_u32 v17, 40960, v16
    v_xor_b32 v39, v36, v37
    v_lshl_add_u32 v39, v39, 4, v38
    v_lshl_add_u32 v40, v33, 2, v34
    v_lshl_add_u32 v18, v40, 7, v39
    s_lshl_b32 s68, s59, 15
    s_add_u32 s68, s68, 16384
    v_add_u32 v18, s68, v18
    v_xor_b32 v19, 64, v18
    s_lshl_b32 s68, s59, 1
    s_add_u32 s68, s68, s58
    s_xor_b32 s69, s68, 1
    s_lshl_b32 s66, s68, 10
    s_add_u32 s66, s66, SCR0
    v_lshl_add_u32 v22, v1, 4, s66
    s_lshl_b32 s66, s69, 10
    s_add_u32 s66, s66, SCR0
    v_lshl_add_u32 v23, v1, 4, s66
    s_lshl_b32 s66, s68, 8
    s_add_u32 s66, s66, SCR1
    v_lshl_add_u32 v24, v1, 2, s66
    s_lshl_b32 s66, s69, 8
    s_add_u32 s66, s66, SCR1
    v_lshl_add_u32 v25, v1, 2, s66
    s_lshl_b32 s68, s57, 1
    s_add_u32 s68, s68, s59
    s_lshl_b32 s68, s68, 5
    s_add_u32 s68, s68, s56
    s_mul_i32 s68, s68, 2176
    s_add_u32 s68, s68, {KVP}
    s_lshl_b32 s69, s58, 10
    s_add_u32 s69, s69, s68
    v_lshl_add_u32 v26, v1, 4, s69
    v_lshrrev_b32 v40, 4, v1
    v_and_b32 v40, 1, v40
    v_lshlrev_b32 v40, 3, v40       ; 8c
    v_and_b32 v41, 4, v1            ; 4*hh'
    v_add_u32 v40, v40, v41
    v_lshrrev_b32 v41, 2, v1
    v_and_b32 v41, 2, v41
    v_add_u32 v40, v40, v41
    v_lshrrev_b32 v41, 1, v1
    v_and_b32 v41, 1, v41
    v_add_u32 v40, v40, v41         ; zg
    s_add_u32 s68, s68, 2048
    v_lshl_add_u32 v27, v40, 3, s68
    ; PQ address
    s_lshl_b32 s68, s56, 1
    s_add_u32 s68, s68, s58
    s_lshl_b32 s68, s68, 5
    s_lshl_b32 s69, s57, 2
    s_add_u32 s68, s68, s69
    s_lshl_b32 s69, s59, 1
    s_add_u32 s68, s68, s69
    s_lshl_b32 s68, s68, 10
    s_add_u32 s68, s68, {PQ}
    v_lshl_add_u32 v28, v1, 4, s68
    v_and_b32 v40, 16, v1
    v_cmp_ne_u32 s[52:53], 0, v40
    s_sub_u32 s54, 0, s58
    s_mov_b32 s55, s54
    """)
    a.e(f"""
    s_cmp_lg_u32 s39, 3
    s_cbranch_scc1 L_b_nopt
    s_lshl_b32 s68, s56, 7
    s_add_u32 s68, s68, {PQF}
    v_mov_b32 v40, s68
    global_load_dword v21, v40, s[36:37] sc1
    """)
    a.vm.pop()
    a.label("L_b_nopt")
    for r in range(16):
        a.e(f"v_mov_b32 v{ACCQ+r}, s64")
    for r in range(16):
        a.e(f"v_mov_b32 v{ACCK+r}, s64")
    def frag_reads(g, k):
        L = []
        tag = f"f{g}_{k}"
        if g < 8:
            nx, nw = 2*g, 2*g+1
            hi, off = lds_base(nx)
            L.append((f"ds_read_b128 v[{XR+16*g+4*k}:{XR+16*g+4*k+3}], v{(12 if hi else 8)+k} offset:{off}", tag))
            d = WF + 16*(g % 2) + 4*k; n = nw; sstep = k
        else:
            n = 2*g + k//4; sstep = k % 4; d = WF + 4*k
        h2, o2 = lds_base(n)
        va = "v17" if h2 else "v16"
        L.append((f"ds_read_b64_tr_b16 v[{d}:{d+1}], {va} offset:{o2 + sstep*2048}", tag))
        L.append((f"ds_read_b64_tr_b16 v[{d+2}:{d+3}], {va} offset:{o2 + sstep*2048 + 512}", tag))
        return L
    def nsteps(g): return 4 if g < 8 else 8
    def emit_side(lst):
        for t in lst:
            if isinstance(t, str): a.e(t)
            elif t[0] == "WVM": a.wait_vm(t[1])
            else: a.e(t[0], vm=t[1])
    side = {}
    KVQ = (cfg.order == "KVQ")
    ke = phi_instrs(ACCK, T16, ACCK, zsum=29)
    ke += ["v_mov_b32 v30, v29", "v_permlane32_swap_b32 v29, v30", "v_add_f32 v29, v29, v30"]
    if not KVQ:
        qe = phi_instrs(ACCQ, T16, ACCQ)
        qe += [(f"global_store_dwordx4 v28, v[{ACCQ}:{ACCQ+3}], s[36:37] sc1", "pqst"),
               (f"global_store_dwordx4 v28, v[{ACCQ+4}:{ACCQ+7}], s[36:37] offset:1024 sc1", "pqst")]
        gaps = [(g, k) for g in range(8, 12) for k in range(8)][1:cfg.qe_end]
        for gp, grp in zip(gaps, spread(qe, len(gaps))): side[gp] = grp
        gaps = [(g, k) for g in range(12, 16) for k in range(8)][1:31]
    else:
        gaps = [(g, k) for g in range(8, 12) for k in range(8)][1:31]
    for gp, grp in zip(gaps, spread(ke, len(gaps))): side[gp] = grp if not cfg.x_epi else []
    side[(9, 7)] = side.get((9, 7), []) + ["s_lshl_b32 s68, s56, 7", f"s_add_u32 s68, s68, {PQF}", "v_and_b32 v2, 7, v1", "v_lshl_add_u32 v2, v2, 2, s68"]
    rb = f"""
    s_mov_b32 s40, s36
    s_and_b32 s41, s37, 0xffff
    s_mov_b32 s42, {KVF + 65536}
    s_mov_b32 s43, 0x20000
    s_lshl_b32 s68, s56, 1
    s_add_u32 s68, s68, s58
    s_lshl_b32 s68, s68, 5
    s_lshl_b32 s69, s59, 4
    s_add_u32 s68, s68, s69
    s_lshl_b32 s68, s68, 10
    s_add_u32 s68, s68, {PQ}
    v_lshl_add_u32 v3, v1, 4, s68
    v_add_u32 v31, 8192, v3
    v_lshrrev_b32 v13, 7, v0
    v_mul_u32_u24 v13, {KVBLK}, v13
    v_and_b32 v20, 127, v0
    v_lshl_add_u32 v13, v20, 4, v13
    v_add_u32 v13, {KVF}, v13
    v_lshrrev_b32 v14, 3, v20
    v_mul_u32_u24 v14, {KVBLK}, v14
    v_and_b32 v21, 7, v0
    v_lshl_add_u32 v14, v21, 4, v14
    v_add_u32 v14, {KVF+2048}, v14
    v_lshrrev_b32 v15, 7, v0
    v_lshlrev_b32 v15, 1, v15
    v_bfe_u32 v21, v0, 4, 1
    v_add_u32 v15, v15, v21
    v_mul_u32_u24 v15, 544, v15
    v_bfe_u32 v21, v0, 5, 1
    v_mul_u32_u24 v21, 272, v21
    v_add_u32 v15, v15, v21
    v_and_b32 v21, 15, v0
    v_lshl_add_u32 v15, v21, 4, v15
    v_bfe_u32 v21, v0, 6, 1
    v_lshl_add_u32 v15, v21, 3, v15
    v_lshrrev_b32 v12, 3, v20
    v_lshlrev_b32 v12, 1, v12
    v_bfe_u32 v21, v0, 2, 1
    v_add_u32 v12, v12, v21
    v_mul_u32_u24 v12, 544, v12
    v_bfe_u32 v21, v0, 1, 1
    v_mul_u32_u24 v21, 272, v21
    v_add_u32 v12, v12, v21
    v_and_b32 v21, 1, v0
    v_lshl_add_u32 v12, v21, 3, v12
    v_add_u32 v12, 256, v12
    v_and_b32 v30, 15, v1
    v_mul_u32_u24 v30, {KVBLK}, v30
    v_add_u32 v30, {KVF+2048}, v30
    """.strip().split("\n")
    rb = [x.strip() for x in rb]
    rb += [f"s_mov_b32 s{8+i}, {1024*i}" for i in range(8)] + [f"s_mov_b32 s{16+k}, {2*KVBLK*k}" for k in range(8)]
    if not cfg.late_o:
        gaps = [(14, k) for k in range(5, 8)] + [(15, k) for k in range(8)]
        for gp, grp in zip(gaps, spread(rb, len(gaps))): side[gp] = side.get(gp, []) + grp

    def kv_publish():
        a.c("--- kv partial: V cvt, MFMA, select, pair exchange, publish")
        a.e("s_barrier")
        if not KVQ: a.e("global_load_dword v21, v2, s[36:37] sc1", vm="pqf")
        if cfg.gate:
            a.e(f"""
            s_cmp_lg_u32 s39, 2
            s_cbranch_scc1 L_b_nogate
            s_and_b32 s68, s3, 7
            s_lshl_b32 s68, s68, 8
            s_lshr_b32 s69, s3, 3
            s_lshl_b32 s69, s69, 2
            s_add_u32 s68, s68, s69
            s_add_u32 s68, s68, {BDN}
            v_mov_b32 v20, s68
            v_mov_b32 v30, s38
            s_mov_b64 exec, 1
            global_store_dword v20, v30, s[36:37]
            s_mov_b64 exec, -1
            """)
            a.vm.pop()
            a.label("L_b_nogate")
        for m in range(8):
            a.e(f"v_cvt_pk_bf16_f32 v{ACCV+m}, v{ACCV+2*m}, v{ACCV+2*m+1}")
        a.e(f"v_mfma_f32_32x32x16_bf16 v[{T16}:{T16+15}], v[{ACCK}:{ACCK+3}], v[{ACCV}:{ACCV+3}], 0")
        a.e(f"v_mfma_f32_32x32x16_bf16 v[{T16}:{T16+15}], v[{ACCK+4}:{ACCK+7}], v[{ACCV+4}:{ACCV+7}], v[{T16}:{T16+15}]")
        a.e("ds_write_b32 v24, v29", lg="xw")
        SEL = ACCK + 8; SND = ACCV + 8; KEEP = ACCV + 12
        for j in range(8): a.e(f"v_cndmask_b32 v{SEL+j}, v{T16+j}, v{T16+8+j}, s[52:53]")
        for j in range(4): a.e(f"v_cndmask_b32 v{SND+j}, v{SEL+4+j}, v{SEL+j}, s[54:55]")
        a.e(f"ds_write_b128 v22, v[{SND}:{SND+3}]", lg="xw")
        for j in range(4): a.e(f"v_cndmask_b32 v{KEEP+j}, v{SEL+j}, v{SEL+4+j}, s[54:55]")
        a.wait_lg("xw")
        a.e("s_barrier")
        a.e(f"ds_read_b128 v[{SEL}:{SEL+3}], v23", lg="xr")
        a.e(f"ds_read_b32 v30, v25", lg="xr")
        a.wait_lg("xr")
        if not KVQ:
            a.wait_vm("pqf")
            a.e("v_cmp_ne_u32 s[66:67], s38, v21")
        for j in range(4): a.e(f"v_add_f32 v{KEEP+j}, v{KEEP+j}, v{SEL+j}")
        a.e(f"""
        v_add_f32 v29, v29, v30
        v_cvt_pk_bf16_f32 v{SEL}, v{KEEP}, v{KEEP+1}
        v_mov_b32 v{SEL+1}, s38
        v_cvt_pk_bf16_f32 v{SEL+2}, v{KEEP+2}, v{KEEP+3}
        v_mov_b32 v{SEL+3}, s38
        v_mov_b32_dpp v30, v29 quad_perm:[1,0,3,2] row_mask:0xf bank_mask:0xf
        global_store_dwordx4 v26, v[{SEL}:{SEL+3}], s[36:37] sc1
        v_cvt_pk_bf16_f32 v{SEL+4}, v29, v30
        v_mov_b32 v{SEL+5}, s38
        s_andn2_b64 exec, 0x55555555, s[54:55]
        s_cbranch_execz L_b_noz
        global_store_dwordx2 v27, v[{SEL+4}:{SEL+5}], s[36:37] sc1
        """)
        a.vm.pop()
        a.label("L_b_noz")
        a.e("s_mov_b64 exec, -1")
        stamp(a, cfg, 6)

    a.wait_vm(["slot0", "slot1"])
    a.e("s_barrier")
    stamp(a, cfg, 2)
    for k in range(4):
        for t, tag in frag_reads(0, k): a.e(t, lg=tag)
    nxt = cfg.ninit
    pend = []
    while nxt < NSLOT:
        pend += b_issue_jobs(nxt); nxt += 1
    for g in range(16):
        a.c(f"--- group {g}")
        if g == (11 if KVQ else 13): poll_nonce(a, "v21", "v31", first_tag="nonce")
        if KVQ and g == 12: kv_publish()
        if g == cfg.pqflag_g and not KVQ: a.wait_vm("pqst")
        if g < 15:
            a.wait_vm([f"slot{2*g+2}", f"slot{2*g+3}"])
        a.e("s_barrier")
        if g == cfg.pqflag_g and not KVQ:
            a.e("""
            s_cmp_lg_u32 s39, 3
            s_cbranch_scc1 L_b_noflag
            s_lshl_b32 s68, s56, 7
            s_lshl_b32 s69, s57, 2
            s_add_u32 s68, s68, s69
            s_add_u32 s68, s68, %d
            v_mov_b32 v20, s68
            v_mov_b32 v21, s38
            s_mov_b64 exec, 1
            global_store_dword v20, v21, s[36:37] sc1
            s_mov_b64 exec, -1
            """ % PQF)
            a.vm.pop()
            a.label("L_b_noflag")
        if g in (1, 8, 12): stamp(a, cfg, {1: 3, 8: 4, 12: 5}[g])
        jobs = list(pend); pend = []
        if g >= 1:
            for _ in range(2):
                if nxt < (32 if cfg.late_o else 40): jobs += b_issue_jobs(nxt); nxt += 1
        if g == (7 if KVQ else 9):
            jobs.append([("global_load_dword v21, v31, s[34:35] sc1", "nonce")])
        ns = nsteps(g)
        jsp = spread(jobs, ns)
        for k in range(ns):
            if k % 2 == 0: a.wait_lg([f"f{g}_{k}", f"f{g}_{k+1}"])
            part = cfg.order[0] if g < 8 else (cfg.order[1] if g < 12 else cfg.order[2])
            if g < 8:
                wreg = WF + 16*(g % 2) + 4*k; kk = 4*g + k
            else:
                wreg = WF + 4*k; kk = ((g - 8) % 4)*8 + k
            W_ = f"v[{wreg}:{wreg+3}]"; X_ = f"v[{XR+4*kk}:{XR+4*kk+3}]"
            if part == "Q":
                a.e(f"v_mfma_f32_32x32x16_bf16 v[{ACCQ}:{ACCQ+15}], {W_}, {X_}, v[{ACCQ}:{ACCQ+15}]")
            elif part == "K":
                a.e(f"v_mfma_f32_32x32x16_bf16 v[{ACCK}:{ACCK+15}], {X_}, {W_}, v[{ACCK}:{ACCK+15}]")
            else:
                cc = "0" if kk == 0 else f"v[{ACCV}:{ACCV+15}]"
                a.e(f"v_mfma_f32_32x32x16_bf16 v[{ACCV}:{ACCV+15}], {X_}, {W_}, {cc}")
            jl = [list(jb) for jb in jsp[k]]
            if jl:
                while jl[0] and not jl[0][0][0].startswith(("buffer_load", "global_load")):
                    a.e(jl[0].pop(0)[0])
            if g < 15:
                nx = [k, 4 + k] if g == 7 else [k]
                for k2 in nx:
                    for t, tag in frag_reads(g + 1, k2): a.e(t, lg=tag)
            for jb in jl: emit_job(a, jb)
            emit_side(side.get((g, k), []))
    if KVQ:
        tail_kvq(a, cfg, rb)
        return
    kv_publish()
    if cfg.prioBw is not None: a.e(f"s_setprio {cfg.prioBw}")
    a.e("s_mov_b64 s[54:55], s[66:67]")
    def pq_first(sfx):
        for t in rb: a.e(t)
        a.e(f"""
        s_cmp_eq_u64 s[54:55], 0
        s_cbranch_scc1 L_b_pqf_go{sfx}
        s_mov_b32 s61, 0
        """)
        a.label(f"L_b_pqf_poll{sfx}")
        a.e(f"""
        global_load_dword v21, v2, s[36:37] sc1
        s_add_u32 s61, s61, 1
        s_waitcnt vmcnt(0)
        v_cmp_ne_u32 vcc, s38, v21
        s_cmp_gt_u32 s61, {SPIN_LIMIT}
        s_cbranch_scc1 L_b_pqf_go{sfx}
        s_cbranch_vccz L_b_pqf_go{sfx}
        s_branch L_b_pqf_poll{sfx}
        """)
        a.label(f"L_b_pqf_go{sfx}")
        for i in range(8):
            a.e(f"buffer_load_dwordx4 v[{32+4*i}:{35+4*i}], v3, s[40:43], s{8+i} offen sc1")
    a.e("""
    s_cmp_eq_u32 s39, 0
    s_cbranch_scc1 L_b_w0tail
    """)
    for n in range(32, 40):
        for jb in b_issue_jobs(n): emit_job(a, jb)
    a.e("""
    s_cmp_eq_u32 s39, 1
    s_cbranch_scc0 L_b_noshare
    v_subrev_u32 v22, 16384, v6
    v_subrev_u32 v23, 16384, v7
    """)
    for n in range(32, 40):
        c = SEQ[n][1]; pos = n % NSLOT
        a.e(f"s_mov_b32 m0, {pos*8192}")
        a.e(f"s_mov_b32 s61, {c*65536}")
        a.e(f"buffer_load_dwordx4 v22, s[48:51], s61 offen lds")
        a.e(f"buffer_load_dwordx4 v23, s[48:51], s61 offen offset:1024 lds")
    a.label("L_b_noshare")
    pq_first("a")
    a.e("s_waitcnt vmcnt(8)")
    a.e("s_branch L_b_tailjoin")
    a.label("L_b_w0tail")
    reducer(a, cfg)
    pq_first("b")
    a.label("L_b_tailjoin")
    a.vm = []; a.lg = []
    stamp(a, cfg, 7)
    if not cfg.do_B2:
        stamp(a, cfg, 8)
        stamps_out(a, cfg, 9)
        a.e("s_branch L_end")
        return
    role_B2(a, cfg)

def tag_check(a, regs_tags, acc="v20"):
    tt = 0
    for idx in range(8):
        s0, s1, s2 = (idx >> 2) & 1, (idx >> 1) & 1, idx & 1
        if s0 | (s1 ^ s2): tt |= 1 << idx
    first = True
    for r in regs_tags:
        if first:
            a.e(f"v_xor_b32 {acc}, s38, v{r}"); first = False
        else:
            a.e(f"v_bitop3_b32 {acc}, {acc}, v{r}, s38 bitop3:{hex(tt)}")
    a.e(f"v_cmp_ne_u32 vcc, 0, {acc}")

def tail_kvq(a, cfg, rb):
    a.e("s_barrier")
    a.e("""
    s_cmp_eq_u32 s39, 0
    s_cbranch_scc1 L_b_w0a
    """)
    for n in range(32, 40):
        for jb in b_issue_jobs(n): emit_job(a, jb)
    a.e("""
    s_cmp_eq_u32 s39, 1
    s_cbranch_scc0 L_b_noshare
    v_subrev_u32 v22, 16384, v6
    v_subrev_u32 v23, 16384, v7
    """)
    for n in range(32, 40):
        c = SEQ[n][1]; pos = n % NSLOT
        a.e(f"s_mov_b32 m0, {pos*8192}")
        a.e(f"s_mov_b32 s61, {c*65536}")
        a.e(f"buffer_load_dwordx4 v22, s[48:51], s61 offen lds")
        a.e(f"buffer_load_dwordx4 v23, s[48:51], s61 offen offset:1024 lds")
    a.label("L_b_noshare")
    a.e("s_branch L_b_phi")
    a.label("L_b_w0a")
    reducer(a, cfg, "addr")
    reducer(a, cfg, "loads")
    a.label("L_b_phi")
    for t in phi_instrs(ACCQ, T16, ACCQ): a.e(t)
    a.e(f"""
    v_lshlrev_b32 v20, 4, v1
    s_cmp_lg_u32 s39, 0
    s_cbranch_scc1 L_b_noho
    ds_write_b128 v20, v[{ACCQ}:{ACCQ+3}]
    ds_write_b128 v20, v[{ACCQ+4}:{ACCQ+7}] offset:1024
    v_mov_b32 v21, 0
    ds_write_b32 v21, v21 offset:2048
    s_waitcnt lgkmcnt(0)
    """)
    a.label("L_b_noho")
    a.e("s_barrier")
    stamp(a, cfg, 7)
    if cfg.prioBw is not None: a.e(f"s_setprio {cfg.prioBw}")
    a.e(f"""
    s_cmp_eq_u32 s39, 0
    s_cbranch_scc1 L_b_w0b
    global_store_dwordx4 v28, v[{ACCQ}:{ACCQ+3}], s[36:37] sc1
    global_store_dwordx4 v28, v[{ACCQ+4}:{ACCQ+7}], s[36:37] offset:1024 sc1
    s_cmp_eq_u32 s39, 1
    s_cbranch_scc0 L_b_nopq
    ds_read_b128 v[32:35], v20
    ds_read_b128 v[36:39], v20 offset:1024
    v_subrev_u32 v21, 32768, v28
    s_waitcnt lgkmcnt(0)
    global_store_dwordx4 v21, v[32:35], s[36:37] sc1
    global_store_dwordx4 v21, v[36:39], s[36:37] offset:1024 sc1
    """)
    a.label("L_b_nopq")
    for t in rb: a.e(t)
    a.e("""
    s_waitcnt vmcnt(0)
    v_mov_b32 v32, 0
    v_mov_b32 v33, 1
    s_mov_b64 exec, 1
    ds_add_rtn_u32 v34, v32, v33 offset:2048
    s_waitcnt lgkmcnt(0)
    v_readfirstlane_b32 s68, v34
    s_cmp_lg_u32 s68, 2
    s_cbranch_scc1 L_b_noflag2
    s_lshl_b32 s68, s56, 7
    s_lshl_b32 s69, s57, 2
    s_add_u32 s68, s68, s69
    s_add_u32 s68, s68, %d
    v_mov_b32 v32, s68
    v_mov_b32 v33, s38
    global_store_dword v32, v33, s[36:37] sc1
    """ % PQF)
    a.label("L_b_noflag2")
    a.e("s_mov_b64 exec, -1")
    a.e("s_branch L_b_tailjoin")
    a.label("L_b_w0b")
    reducer(a, cfg, "finish")
    for t in rb: a.e(t)
    a.label("L_b_tailjoin")
    a.vm = []; a.lg = []
    def pq_late():
        a.e("s_mov_b32 s61, 0")
        a.label("L_b_pqf_poll")
        a.e(f"""
        global_load_dword v21, v2, s[36:37] sc1
        s_add_u32 s61, s61, 1
        s_waitcnt vmcnt(0)
        v_cmp_ne_u32 vcc, s38, v21
        s_cmp_gt_u32 s61, {SPIN_LIMIT}
        s_cbranch_scc1 L_b_pqf_go
        s_cbranch_vccz L_b_pqf_go
        s_branch L_b_pqf_poll
        """)
        a.label("L_b_pqf_go")
        for i in range(8):
            a.e(f"buffer_load_dwordx4 v[{32+4*i}:{35+4*i}], v3, s[40:43], s{8+i} offen sc1")
    role_B2(a, cfg, pq_late)

def reducer(a, cfg, part=None):
    def reduce_line(base, dst_addr, tagsok_label):
        S = 64; T = 68
        for k in range(4):
            r = base + 4*k
            for pidx in range(2):
                src = r + 2*pidx
                if k == 0:
                    a.e(f"v_lshlrev_b32 v{S+2*pidx}, 16, v{src}")
                    a.e(f"v_and_b32 v{S+1+2*pidx}, 0xffff0000, v{src}")
                else:
                    a.e(f"v_lshlrev_b32 v{T+2*pidx}, 16, v{src}")
                    a.e(f"v_and_b32 v{T+1+2*pidx}, 0xffff0000, v{src}")
                    a.e(f"v_add_f32 v{S+2*pidx}, v{S+2*pidx}, v{T+2*pidx}")
                    a.e(f"v_add_f32 v{S+1+2*pidx}, v{S+1+2*pidx}, v{T+1+2*pidx}")
        for j in range(4): a.e(f"v_add_f32_dpp v{S+j}, v{S+j}, v{S+j} row_ror:8 row_mask:0xf bank_mask:0xf")
        for j in range(4): a.e(f"v_mov_b32 v{T+j}, v{S+j}")
        for j in range(4): a.e(f"v_permlane16_swap_b32 v{S+j}, v{T+j}")
        for j in range(4): a.e(f"v_add_f32 v{S+j}, v{S+j}, v{T+j}")
        for j in range(4): a.e(f"v_mov_b32 v{T+j}, v{S+j}")
        for j in range(4): a.e(f"v_permlane32_swap_b32 v{S+j}, v{T+j}")
        for j in range(4): a.e(f"v_add_f32 v{S+j}, v{S+j}, v{T+j}")
        a.e(f"""
        v_cvt_pk_bf16_f32 v72, v{S}, v{S+1}
        v_mov_b32 v73, s38
        v_cvt_pk_bf16_f32 v74, v{S+2}, v{S+3}
        v_mov_b32 v75, s38
        s_mov_b64 exec, 0xff
        global_store_dwordx4 {dst_addr}, v[72:75], s[36:37] sc1
        s_mov_b64 exec, -1
        """)
    if part in (None, "addr"):
        a.e(f"""
        s_lshr_b32 s66, s3, 4
        s_and_b32 s67, s3, 15
        s_mul_i32 s69, s66, {32*KVBLK}
        s_add_u32 s69, s69, {KVP}
        s_lshl_b32 s52, s67, 7
        s_add_u32 s68, s69, s52
        v_and_b32 v22, 7, v1
        v_lshlrev_b32 v22, 4, v22
        v_lshrrev_b32 v23, 3, v1
        v_mul_u32_u24 v23, {KVBLK}, v23
        v_add_u32 v23, v22, v23
        v_add_u32 v24, s68, v23
        v_add_u32 v25, {8*KVBLK}, v24
        v_add_u32 v26, {16*KVBLK}, v24
        v_add_u32 v27, {24*KVBLK}, v24
        s_add_u32 s68, s69, 2048
        v_add_u32 v8, s68, v23
        v_add_u32 v9, {8*KVBLK}, v8
        v_add_u32 v10, {16*KVBLK}, v8
        v_add_u32 v11, {24*KVBLK}, v8
        s_mul_i32 s69, s66, {KVBLK}
        s_add_u32 s69, s69, {KVF}
        s_add_u32 s68, s69, s52
        v_add_u32 v23, s68, v22
        s_add_u32 s68, s69, 2048
        v_add_u32 v29, s68, v22
        """)
    if part == "addr": return
    def red_round(sfx):
        a.e(f"""
        global_load_dwordx4 v[96:99], v24, s[36:37] sc1
        global_load_dwordx4 v[100:103], v25, s[36:37] sc1
        global_load_dwordx4 v[104:107], v26, s[36:37] sc1
        global_load_dwordx4 v[108:111], v27, s[36:37] sc1
        s_cmp_lg_u32 s67, 0
        s_cbranch_scc1 L_b_red_nb{sfx}
        global_load_dwordx4 v[112:115], v8, s[36:37] sc1
        global_load_dwordx4 v[116:119], v9, s[36:37] sc1
        global_load_dwordx4 v[120:123], v10, s[36:37] sc1
        global_load_dwordx4 v[124:127], v11, s[36:37] sc1
        """)
        a.label(f"L_b_red_nb{sfx}")
    if part == "loads":
        red_round("0"); return
    a.e("s_mov_b32 s61, 0")
    if part == "finish": a.e("s_branch L_b_red_w")
    a.label("L_b_red_poll")
    red_round("1")
    a.label("L_b_red_w")
    a.e("""
    s_add_u32 s61, s61, 1
    s_waitcnt vmcnt(0)
    s_cmp_lg_u32 s67, 0
    s_cbranch_scc1 L_b_red_one
    """)
    tag_check(a, [97+2*q for q in range(16)])
    a.e("s_branch L_b_red_chk")
    a.label("L_b_red_one")
    tag_check(a, [97+2*q for q in range(8)])
    a.label("L_b_red_chk")
    a.e(f"""
    s_cmp_gt_u32 s61, {SPIN_LIMIT}
    s_cbranch_scc1 L_b_red_go
    s_cbranch_vccz L_b_red_go
    s_sleep {cfg.sl_red}
    s_branch L_b_red_poll
    """)
    a.label("L_b_red_go")
    a.e("""
    s_cmp_lg_u32 s67, 0
    s_cbranch_scc1 L_b_red_a
    """)
    reduce_line(112, "v29", None)
    a.label("L_b_red_a")
    reduce_line(96, "v23", None)
    stamp(a, cfg, 10)

def role_B2(a, cfg, after_k1=None):
    WO = 128
    ACC = 96
    PQR = 32
    CN = [64, 80]
    KAF = [8, 12]
    OF = [4, 16]
    KA = 0
    PQL = 17408
    a.c("================= B2 =================")
    a.e("s_barrier")
    for i in range(16):
        for nt in range(2):
            d = WO + 8*i + 4*nt
            off = (i//4)*8192 + (i % 4)*2048
            a.e(f"ds_read_b64_tr_b16 v[{d}:{d+1}], v{18+nt} offset:{off}", lg="wo")
            a.e(f"ds_read_b64_tr_b16 v[{d+2}:{d+3}], v{18+nt} offset:{off+1024}", lg="wo")
    a.e("s_waitcnt lgkmcnt(0)")
    a.e("s_barrier")
    a.vm = []; a.lg = []
    stamp(a, cfg, 9)
    if after_k1 and not cfg.ka_first: after_k1()
    if cfg.zpoll:
        a.e("""
        s_mov_b32 s61, 0
        s_cmp_eq_u32 s39, 0
        s_cbranch_scc0 L_b_kz_go
        """)
        a.label("L_b_kz_poll")
        a.e(f"""
        buffer_load_dwordx4 v[96:99], v30, s[40:43], 0 offen sc1
        s_add_u32 s61, s61, 1
        s_waitcnt vmcnt(0)
        v_xor_b32 v20, s38, v97
        v_cmp_ne_u32 vcc, 0, v20
        s_cmp_gt_u32 s61, {SPIN_LIMIT}
        s_cbranch_scc1 L_b_kz_go
        s_cbranch_vccz L_b_kz_go
        s_sleep {cfg.sl_kz}
        s_branch L_b_kz_poll
        """)
        a.label("L_b_kz_go")
        stamp(a, cfg, 11)
        a.e("s_barrier")
    PB = 17408
    a.e(f"""
    v_and_b32 v24, 31, v1
    s_lshl_b32 s68, s58, 5
    v_add_u32 v24, s68, v24            ; token
    v_mul_u32_u24 v24, 272, v24
    v_lshrrev_b32 v25, 5, v1
    v_lshl_add_u32 v24, v25, 4, v24    ; + hh*16
    s_mul_i32 s68, s59, {64*272}
    s_add_u32 s68, s68, {PB}
    v_add_u32 v24, s68, v24            ; P write address
    v_lshrrev_b32 v26, 3, v0
    v_mul_u32_u24 v25, 272, v26
    v_and_b32 v27, 7, v0
    v_lshl_add_u32 v25, v27, 5, v25
    v_add_u32 v25, {PB}, v25           ; P read address
    s_lshl_b32 s68, s56, 6
    v_add_u32 v26, s68, v26
    v_lshlrev_b32 v26, 11, v26
    s_lshl_b32 s68, s57, 7
    s_add_u32 s68, s68, 1024
    v_lshl_add_u32 v26, v27, 4, v26
    v_add_u32 v26, s68, v26
    v_add_u32 v27, {32*2048}, v26
    v_and_b32 v22, 31, v1
    v_min_u32 v22, 16, v22
    v_lshlrev_b32 v22, 4, v22
    v_lshrrev_b32 v23, 5, v1
    v_mul_u32_u24 v23, 272, v23
    s_mul_i32 s68, s59, {16*544}
    v_add3_u32 v22, v22, v23, s68       ; kv fragment address
    """)
    def ka_loads():
        for k in range(8):
            a.e(f"buffer_load_dwordx4 v[{64+4*k}:{67+4*k}], v13, s[40:43], s{16+k} offen sc1")
        a.e("buffer_load_dwordx4 v[96:99], v14, s[40:43], 0 offen sc1")
    a.e("s_mov_b32 s61, 0")
    a.e("s_branch L_b_kvf_first")
    a.label("L_b_kvf_poll")
    a.e(f"s_sleep {cfg.sl_ka}")
    a.label("L_b_kvf_first")
    ka_loads()
    a.e("s_waitcnt vmcnt(0)")
    a.label("L_b_ka_chk")
    a.e("s_add_u32 s61, s61, 1")
    tag_check(a, [65+2*q for q in range(18)])
    a.e(f"""
    s_cmp_gt_u32 s61, {SPIN_LIMIT}
    s_cbranch_scc1 L_b_kvf_go
    s_cbranch_vccnz L_b_kvf_poll
    """)
    a.label("L_b_kvf_go")
    if after_k1 and cfg.ka_first: after_k1()
    stamp(a, cfg, 12)
    stampval(a, cfg, 8, "s61")
    a.vm = []
    for k in range(8):
        a.e(f"v_mov_b32 v{65+4*k}, v{66+4*k}")
        a.e(f"ds_write_b64 v15, v[{64+4*k}:{65+4*k}] offset:{KA + 2176*k}")
    a.e("v_mov_b32 v97, v98")
    a.e(f"ds_write_b64 v12, v[96:97] offset:{KA}")
    a.e(f"""
    s_waitcnt vmcnt(0) lgkmcnt(0)
    s_barrier
    """)
    a.vm = []; a.lg = []
    stamp(a, cfg, 13)
    if cfg.prioBw is not None: a.e(f"s_setprio {cfg.prioBm}")
    def kaf_read(i):
        a.e(f"ds_read_b128 v[{KAF[i%2]}:{KAF[i%2]+3}], v22 offset:{KA + 544*i}", lg=f"ka{i}")
    def out_mfma(i):
        o = OF[i % 2]
        for nt in range(2):
            w = WO + 8*i + 4*nt
            cc = "0" if i == 0 else f"v[{ACC+16*nt}:{ACC+16*nt+15}]"
            a.e(f"v_mfma_f32_32x32x16_bf16 v[{ACC+16*nt}:{ACC+16*nt+15}], v[{w}:{w+3}], v[{o}:{o+3}], {cc}")
    def num_mfma(i):
        a.wait_lg(f"ka{i}")
        p = PQR + 4*(i % 8)
        if i >= 8: a.wait_vm(f"pq{i}")
        a.e(f"v_mfma_f32_32x32x16_bf16 v[{CN[i%2]}:{CN[i%2]+15}], v[{KAF[i%2]}:{KAF[i%2]+3}], v[{p}:{p+3}], 0")
        if i < 8:
            a.e(f"buffer_load_dwordx4 v[{p}:{p+3}], v31, s[40:43], s{8+i} offen sc1", vm=f"pq{i+8}")
    def out1(i, nt):
        o = OF[i % 2]
        w = WO + 8*i + 4*nt
        cc = "0" if i == 0 else f"v[{ACC+16*nt}:{ACC+16*nt+15}]"
        a.e(f"v_mfma_f32_32x32x16_bf16 v[{ACC+16*nt}:{ACC+16*nt+15}], v[{w}:{w+3}], v[{o}:{o+3}], {cc}")
    kaf_read(0); kaf_read(1)
    num_mfma(0)
    for i in range(16):
        if i >= cfg.x_main: break
        if i + 1 < 16:
            num_mfma(i + 1)
        c = CN[i % 2]
        a.e(f"v_add_f32 v20, s64, v{c+8}")
        a.e(f"v_rcp_f32 v20, v20")
        if i + 2 < 16:
            kaf_read(i + 2)
        for jj in range(2): a.e(f"v_mul_f32 v{c+jj}, v{c+jj}, v20")
        if i >= 1: out1(i - 1, 0)
        for jj in range(2, 7): a.e(f"v_mul_f32 v{c+jj}, v{c+jj}, v20")
        if i >= 1: out1(i - 1, 1)
        a.e(f"v_mul_f32 v{c+7}, v{c+7}, v20")
        o = OF[i % 2]
        for m in range(4):
            a.e(f"v_cvt_pk_bf16_f32 v{o+m}, v{c+2*m}, v{c+2*m+1}")
    out1(15, 0); out1(15, 1)
    stamp(a, cfg, 14)
    a.e("""
    s_cmp_lg_u32 s3, 0
    s_cbranch_scc1 L_b_norst
    s_cmp_lg_u32 s39, 0
    s_cbranch_scc1 L_b_norst
    v_mov_b32 v20, 0
    s_mov_b64 exec, 1
    global_store_dword v20, v20, s[34:35] sc1
    s_mov_b64 exec, -1
    """)
    a.label("L_b_norst")
    a.vm = []
    for nt in range(2):
        for q in range(4):
            r = ACC + 16*nt + 4*q
            a.e(f"ds_write_b128 v24, v[{r}:{r+3}] offset:{nt*128 + q*32}")
    a.e("s_waitcnt lgkmcnt(0)")
    a.e("s_barrier")
    for r in range(2):
        o = r*32*272
        a.e(f"ds_read_b128 v[{32+16*r}:{35+16*r}], v25 offset:{o}")
        a.e(f"ds_read_b128 v[{40+16*r}:{43+16*r}], v25 offset:{o+64*272}")
        a.e(f"ds_read_b128 v[{36+16*r}:{39+16*r}], v25 offset:{o+16}")
        a.e(f"ds_read_b128 v[{44+16*r}:{47+16*r}], v25 offset:{o+64*272+16}")
    for r in range(2):
        a.e(f"s_waitcnt lgkmcnt({4 if r == 0 else 0})")
        b = 32 + 16*r
        for jj in range(8):
            a.e(f"v_add_f32 v{b+jj}, v{b+jj}, v{b+8+jj}")
        for m in range(4):
            a.e(f"v_cvt_pk_bf16_f32 v{64+4*r+m}, v{b+2*m}, v{b+2*m+1}")
        a.e(f"global_store_dwordx4 v{26+r}, v[{64+4*r}:{67+4*r}], s[32:33] {cfg.outfl}")
    stamps_out(a, cfg, 15)

TV = 240
def a_touch_setup(a, cfg):
    a.e(f"""
    s_lshr_b32 s62, s40, 1          ; tg
    s_and_b32 s63, s40, 1           ; hg
    s_lshl_b32 s64, s62, 9
    s_lshl_b32 s65, s41, 4          ; 16*jj
    s_add_u32 s64, s64, s65
    v_and_b32 v246, 15, v1
    v_lshrrev_b32 v247, 4, v1       ; 0..3
    v_add_u32 v241, s64, v246
    v_lshlrev_b32 v241, 10, v241
    v_lshl_add_u32 v241, v247, 7, v241
    v_add_u32 v241, 512, v241
    v_and_b32 v248, 3, v1
    v_lshlrev_b32 v248, 7, v248     ; line*128
    s_lshl_b32 s66, s63, 9          ; hg*512
    v_lshrrev_b32 v249, 2, v1
    v_add_u32 v240, s65, v249       ; 16jj + (l>>2)
    v_mul_u32_u24 v242, 3072, v240
    v_add3_u32 v242, v242, v248, s66
    v_add_u32 v244, {'QKV'.index(ORDER[2])*1024}, v242
    v_lshlrev_b32 v245, 10, v240
    v_add3_u32 v245, v245, v248, s66
    v_and_b32 v249, 7, v249
    s_lshl_b32 s67, s41, 3
    s_add_u32 s67, s67, 256
    v_add_u32 v249, s67, v249
    v_mul_u32_u24 v243, 3072, v249
    v_add3_u32 v243, v243, v248, s66
    v_add_u32 v240, {'QKV'.index(ORDER[1])*1024}, v242
    v_add_u32 v243, {'QKV'.index(ORDER[0])*1024}, v243
    """)

def a_touch(a, cfg, plan):
    fl = cfg.touch_flags
    info = {"x1": (241, "s[26:27]"), "q47": (243, "s[28:29]"), "k": (240, "s[28:29]"), "v": (244, "s[28:29]"), "o": (245, "s[30:31]")}
    for w, names in plan.items():
        L = a.newlabel("tch")
        a.e(f"s_cmp_eq_u32 s39, {w}")
        a.e(f"s_cbranch_scc0 {L}")
        for i, nm in enumerate(names):
            v, base = info[nm]
            a.e(f"global_load_dword v{250+i}, v{v}, {base} {fl}")
            a.vm.pop()
        a.label(L)

def role_A(a, cfg):
    a.label("L_roleA")
    a.e("""
    s_and_b32 s40, s3, 7
    s_lshr_b32 s41, s3, 3           ; j
    s_waitcnt lgkmcnt(0)
    """)
    if not cfg.do_A:
        if cfg.touch:
            a_touch_setup(a, cfg)
            a_touch(a, cfg, {2: ["x1"], 3: ["q47"]})
            a.e("s_waitcnt vmcnt(0)")
            a_touch(a, cfg, {1: ["k"], 2: ["v"], 3: ["o"]})
            a.e("s_waitcnt vmcnt(0)")
        a.e("s_branch L_end")
        return
    import role_a
    role_a.role_A(a, cfg)

def build(cfg):
    set_order(cfg.order)
    global DMAFL
    DMAFL = cfg.dmafl
    a = Asm()
    prologue(a, cfg)
    if cfg.do_B:
        role_B(a, cfg)
    a.e("s_branch L_end")
    a.vm = []
    role_A(a, cfg)
    a.label("L_end")
    a.e("s_endpgm")
    body = a.render()
    return body, a

HEADER = open("concat_heads__ssm_conv_s4__linear_attn_block__prompt.s.ref").read().split("; Override launch")[0]

def generate(path, cfg):
    body, a = build(cfg)
    txt = wrap(body, HEADER, 512, 256, 81920)
    open(path, "w").write(txt)
    return a

if __name__ == "__main__":
    sys.modules["kern"] = sys.modules["__main__"]
    cfg = Cfg()
    cfg.stamps = True
    if len(sys.argv) > 2:
        for kv in sys.argv[2:]:
            k, v = kv.split("=")
            setattr(cfg, k, int(v) if v.isdigit() else v)
    a = generate(sys.argv[1] if len(sys.argv) > 1 else "k_b1.s", cfg)
    print("nops inserted:", a.nnops)
```

```python
import sys
from asmlib import Asm, wrap

UT   = 0
YT   = 4 << 20
PQ   = 8 << 20
PQF  = 10 << 20
KVP  = (10 << 20) + (64 << 10)
KVF  = 12 << 20
UTF  = (12 << 20) + (64 << 10)
YTF  = (12 << 20) + (96 << 10)
BDN  = (12 << 20) + (112 << 10)
KVBLK = 2176
LOG2E = 0x3fb8aa3b
EPS   = 0x358637bd
SPIN_LIMIT = 200000

class Cfg:
    do_A = True
    do_B = True
    do_B2 = True
    touch = True
    dual = False
    x_nowrite = False
    prioA = 1
    prioA2 = 0
    dbgT = 0
    o_after = 1
    ka_first = 0
    order = "KVQ"
    late_prio = 1
    bfirst = 0
    prioBw = 1
    prioBm = 3
    gate = 0
    gate_max = 40
    x_exit = ""
    x_conv = 32
    x_tab = 0
    x_main = 16
    x_epi = 0
    locfl = ""
    mid_u = 1
    qe_end = 26
    pqflag_g = 14
    dmafl = ""
    aldfl = ""
    zpoll = 0
    sl_ka = 1
    sl_kz = 1
    sl_pq = 1
    sl_red = 1
    sl_yt = 1
    sl_ut = 1
    late_o = 1
    yglobal = 0
    utclean = 0
    outfl = "sc1"
    uttouch = 0
    ninit = 6
    dbgN = 0
    ut_patience = 200
    flagpos = 0
    ytouch = 1
    dbgY = 0
    prioA3 = 0
    prioB = 1
    pk = 1
    b_exit = False
    touch_flags = ""
    early_release = True
    dma_early = False
    last_dma = 40
    late_pre = 0
    touch_mode = "late"
    stamps = False

STAMP_BASE = 14 << 20
def stamp(a, cfg, i):
    if cfg.stamps == 1:
        a.e(f"s_memtime s[{70+2*i}:{71+2*i}]")
def stampval(a, cfg, i, sreg):
    if cfg.stamps == 1:
        a.e("s_waitcnt lgkmcnt(0)")
        a.e(f"s_add_u32 s{70+2*i}, {sreg}, s70")
def stamps_out(a, cfg, n, vt=22):
    if not cfg.stamps: return
    a.e("s_memrealtime s[68:69]")
    a.e("s_waitcnt lgkmcnt(0) vmcnt(0)")
    a.vm = []
    if cfg.stamps == 2: n = 1
    for i in range(1, n):
        a.e(f"s_sub_u32 s{70+2*i}, s{70+2*i}, s70")
    a.e(f"""
    s_lshl_b32 s61, s2, 2
    s_add_u32 s61, s61, s39
    s_lshl_b32 s61, s61, 6
    s_add_u32 s61, s61, {STAMP_BASE}
    v_mov_b32 v{vt}, s61
    s_mov_b64 exec, 1
    """)
    for i in range(16):
        src = f"s{70+2*i}" if (0 < i < n) else ("s68" if i == 15 else ("s100" if i == 0 else "0"))
        a.e(f"v_mov_b32 v{vt+1}, {src}")
        a.e(f"global_store_dword v{vt}, v{vt+1}, s[36:37] offset:{4*i}")
        a.e("s_nop 1")
    a.e("s_waitcnt vmcnt(0)")
    a.e("s_mov_b64 exec, -1")
    a.vm = []

def prologue(a, cfg):
    if cfg.stamps:
        a.e("s_memrealtime s[100:101]")
        a.e("s_memtime s[70:71]")
    a.e("""
    s_cmp_ge_u32 s2, 512
    s_cbranch_scc1 L_end
    s_load_dwordx16 s[8:23], s[0:1], 0
    s_load_dwordx8 s[24:31], s[0:1], 64
    s_load_dwordx4 s[32:35], s[0:1], 96
    s_load_dwordx2 s[36:37], s[0:1], 112
    v_lshrrev_b32 v1, 6, v0
    v_readfirstlane_b32 s39, v1
    v_and_b32 v1, 63, v0
    s_and_b32 s3, s2, 255
    s_cmp_lt_u32 s2, 256
    """)
    a.e("s_cbranch_scc1 L_roleA" if not cfg.bfirst else "s_cbranch_scc0 L_roleA")

def poll_nonce(a, vtmp, vaddr0, first_tag=None):
    L = a.newlabel("nonce"); Lx = a.newlabel("nonce_ok")
    if first_tag:
        a.wait_vm(first_tag)
    else:
        a.e(f"global_load_dword {vtmp}, {vaddr0}, s[34:35] sc1")
        a.wait_vm_all()
    a.e(f"v_readfirstlane_b32 s38, {vtmp}")
    a.e(f"""
    s_cmp_lg_u32 s38, 0
    s_cbranch_scc1 {Lx}
    s_mov_b32 s61, 0
    """)
    a.label(L)
    a.e(f"""
    global_load_dword {vtmp}, {vaddr0}, s[34:35] sc1
    s_waitcnt vmcnt(0)
    v_readfirstlane_b32 s38, {vtmp}
    s_add_u32 s61, s61, 1
    s_cmp_gt_u32 s61, {SPIN_LIMIT}
    s_cbranch_scc1 {Lx}
    s_cmp_eq_u32 s38, 0
    s_cbranch_scc1 {L}
    """)
    a.vm.pop()
    a.label(Lx)

def phi_instrs(acc, tmp, out, zsum=None):
    L = []
    for i in range(16):
        L.append(f"v_mul_f32 v{tmp+i}, s62, v{acc+i}")
    for i in range(16):
        L.append(f"v_exp_f32 v{tmp+i}, v{tmp+i} clamp")
        L.append(f"v_max_f32 v{acc+i}, s64, v{acc+i}")
    for i in range(16):
        L.append(f"v_add_f32 v{acc+i}, v{acc+i}, v{tmp+i}")
    if zsum is not None:
        for m in range(8):
            L.append(f"v_add_f32 v{tmp+m}, v{acc+2*m}, v{acc+2*m+1}")
        for m in range(4):
            L.append(f"v_add_f32 v{tmp+m}, v{tmp+m}, v{tmp+4+m}")
        L.append(f"v_add_f32 v{tmp}, v{tmp}, v{tmp+2}")
        L.append(f"v_add_f32 v{tmp+1}, v{tmp+1}, v{tmp+3}")
        L.append(f"v_add_f32 v{zsum}, v{tmp}, v{tmp+1}")
    for m in range(8):
        L.append(f"v_cvt_pk_bf16_f32 v{out+m}, v{acc+2*m}, v{acc+2*m+1}")
    return L

def spread(side, nslots):
    out = []; n = len(side); k = 0
    for i in range(nslots):
        e = (n*(i+1))//nslots
        out.append(side[k:e]); k = e
    return out

SEQ = []
ORDER = "QKV"
def set_order(o):
    global SEQ, ORDER
    ORDER = o
    SEQ = []
    for c in range(8): SEQ += [("X", c), (o[0], c)]
    SEQ += [(o[1], c) for c in range(8)] + [(o[2], c) for c in range(8)] + [("O", c) for c in range(8)]
set_order("QKV")
NSLOT = 10
NINIT = 6
XR = 128
WF, T16, ACCQ, ACCK, ACCV = 32, 64, 80, 96, 112

DMAFL = ""
def b_issue_jobs(n):
    kind, c = SEQ[n]
    pos = n % NSLOT
    pre = []
    if kind == "X":
        so, v0, srd = f"s{16+c}", 2, "s[40:43]"
    elif kind in "QKV":
        so, v0, srd = f"s{8+c}", 4, "s[44:47]"
        if c == 0 and kind != ORDER[0]:
            prev = ORDER[ORDER.index(kind) - 1]
            dl = ("QKV".index(kind) - "QKV".index(prev))*1024
            op = "v_add_u32" if dl > 0 else "v_subrev_u32"
            pre = [(f"{op} v4, {abs(dl)}, v4", None), (f"{op} v5, {abs(dl)}, v5", None)]
    else:
        so, v0, srd = "s61", 6, "s[48:51]"
        pre = [(f"s_mov_b32 s61, {c*65536}", None)]
    return [pre + [(f"s_add_u32 m0, s60, {pos*8192}", None),
             (f"buffer_load_dwordx4 v{v0}, {srd}, {so} offen {DMAFL} lds", f"slot{n}")],
            [(f"buffer_load_dwordx4 v{v0+1}, {srd}, {so} offen offset:1024 {DMAFL} lds", f"slot{n}")]]

def emit_job(a, job):
    for t in job:
        if isinstance(t, str): a.e(t)
        else: a.e(t[0], vm=t[1])

def lds_base(n):
    pos = n % NSLOT
    return (0, pos*8192) if pos < 5 else (1, (pos-5)*8192)

def wfrag_reads(a, n, s, dst, tag=None):
    hi, off = lds_base(n)
    va = "v17" if hi else "v16"
    a.e(f"ds_read_b64_tr_b16 v[{dst}:{dst+1}], {va} offset:{off + s*2048}", lg=tag)
    a.e(f"ds_read_b64_tr_b16 v[{dst+2}:{dst+3}], {va} offset:{off + s*2048 + 512}", lg=tag)

def role_B(a, cfg):
    e0 = a.e
    def e_sub(text, **kw): return e0(text.replace("FIRSTPART", str("QKV".index(ORDER[0])*1024)).replace("SCR0", str(16384 if ORDER == "KVQ" else 0)).replace("SCR1", str(20480 if ORDER == "KVQ" else 4096)), **kw)
    a.e = e_sub
    a.c("================= role B =================")
    if cfg.prioB: a.e(f"s_setprio {3 if cfg.late_prio else cfg.prioB}")
    a.e("""
    s_and_b32 s66, s3, 7            ; xcd
    s_lshr_b32 s67, s3, 3           ; jj
    s_lshr_b32 s56, s66, 1
    s_lshl_b32 s56, s56, 3
    s_and_b32 s68, s67, 7
    s_add_u32 s56, s56, s68         ; tb
    s_and_b32 s57, s66, 1
    s_lshl_b32 s57, s57, 2
    s_lshr_b32 s68, s67, 3
    s_add_u32 s57, s57, s68         ; hq
    s_and_b32 s58, s39, 1           ; tt
    s_lshr_b32 s59, s39, 1
    s_lshl_b32 s60, s39, 11
    s_mov_b32 s62, 0x3fb8aa3b
    s_mov_b32 s63, 0x3fb8aa3b
    s_mov_b32 s64, 0x358637bd
    s_mov_b32 s65, 0x358637bd
    """)
    a.e("""
    v_lshrrev_b32 v32, 3, v1        ; l>>3
    v_and_b32 v33, 7, v1            ; l&7
    v_lshrrev_b32 v34, 4, v1        ; l>>4
    s_lshl_b32 s68, s56, 6          ; tb*64
    s_lshl_b32 s69, s39, 4          ; 16w
    s_add_u32 s68, s68, s69
    v_add_u32 v35, s68, v32         ; row
    v_lshlrev_b32 v35, 10, v35
    v_xor_b32 v36, v33, v34
    v_lshl_add_u32 v2, v36, 4, v35
    v_add_u32 v37, 4, v34
    v_xor_b32 v36, v33, v37
    v_lshl_add_u32 v3, v36, 4, v35
    v_add_u32 v3, 7168, v3          ; +8 rows - 1024
    v_and_b32 v36, 1, v34
    v_lshlrev_b32 v36, 2, v36
    v_xor_b32 v36, v33, v36         ; q
    v_lshlrev_b32 v36, 4, v36       ; q*16
    v_add_u32 v37, s69, v32         ; 16w + (l>>3)
    v_mul_u32_u24 v38, 3072, v37
    s_lshl_b32 s68, s57, 7          ; hq*128
    v_add3_u32 v4, v38, v36, s68
    v_add_u32 v4, FIRSTPART, v4
    v_add_u32 v5, 23552, v4         ; +8*3072 - 1024
    v_lshlrev_b32 v38, 10, v37
    v_add3_u32 v6, v38, v36, s68
    v_add_u32 v7, 7168, v6
    """)
    a.e("""
    s_waitcnt lgkmcnt(0)
    s_mov_b32 s40, s26
    s_and_b32 s41, s27, 0xffff
    s_mov_b32 s42, 0x200000
    s_mov_b32 s43, 0x20000
    s_mov_b32 s44, s28
    s_and_b32 s45, s29, 0xffff
    s_mov_b32 s46, 0x180000
    s_mov_b32 s47, 0x20000
    s_mov_b32 s48, s30
    s_and_b32 s49, s31, 0xffff
    s_mov_b32 s50, 0x80000
    s_mov_b32 s51, 0x20000
    """)
    a.e("""
    v_mov_b32 v31, 0
    s_cmp_lg_u32 s3, 0
    s_cbranch_scc1 L_b_nononce
    s_cmp_lg_u32 s39, 0
    s_cbranch_scc1 L_b_nononce
    s_memrealtime s[68:69]
    s_waitcnt lgkmcnt(0)
    s_or_b32 s68, s68, 1
    v_mov_b32 v30, s68
    s_mov_b64 exec, 1
    global_store_dword v31, v30, s[34:35] sc1
    s_mov_b64 exec, -1
    """)
    a.vm.pop()
    a.label("L_b_nononce")
    if cfg.b_exit:
        a.e("s_branch L_end")
    for c in range(8):
        a.e(f"s_mov_b32 s{8+c}, {c*64*3072}")
        a.e(f"s_mov_b32 s{16+c}, {c*128}")
    stamp(a, cfg, 1)
    for n in range(cfg.ninit):
        for job in b_issue_jobs(n): emit_job(a, job)
    if cfg.late_prio: a.e(f"s_setprio {cfg.prioB}")
    a.e("""
    v_and_b32 v32, 31, v1           ; i
    v_lshrrev_b32 v33, 5, v1        ; hh
    s_lshl_b32 s68, s58, 5
    v_add_u32 v34, s68, v32         ; 32tt + i
    v_lshlrev_b32 v34, 7, v34       ; *128
    v_lshrrev_b32 v35, 1, v32
    v_and_b32 v35, 7, v35           ; f
    """)
    for s in range(4):
        a.e(f"""
        v_add_u32 v36, {2*s}, v33
        v_xor_b32 v36, v36, v35
        v_lshl_add_u32 v{8+s}, v36, 4, v34
        v_add_u32 v{12+s}, 40960, v{8+s}
        """)
    a.e(f"""
    v_lshrrev_b32 v34, 2, v1
    v_and_b32 v34, 3, v34           ; rr
    v_and_b32 v35, 3, v1            ; cc
    v_lshrrev_b32 v36, 4, v1
    v_and_b32 v36, 1, v36           ; G&1
    v_lshlrev_b32 v36, 1, v36       ; 2(G&1)
    v_lshrrev_b32 v37, 1, v35       ; cc>>1
    v_add_u32 v36, v36, v37         ; 2(G&1) + (cc>>1)
    v_lshrrev_b32 v37, 1, v34
    v_lshlrev_b32 v37, 2, v37       ; 4(rr>>1)
    v_and_b32 v38, 1, v35
    v_lshlrev_b32 v38, 3, v38       ; 8(cc&1)
    s_lshl_b32 s68, s59, 2
    v_add_u32 v39, s68, v36
    v_xor_b32 v39, v39, v37
    v_lshl_add_u32 v39, v39, 4, v38
    v_lshl_add_u32 v40, v33, 3, v34
    v_lshl_add_u32 v16, v40, 7, v39
    v_add_u32 v17, 40960, v16
    v_xor_b32 v39, v36, v37
    v_lshl_add_u32 v39, v39, 4, v38
    v_lshl_add_u32 v40, v33, 2, v34
    v_lshl_add_u32 v18, v40, 7, v39
    s_lshl_b32 s68, s59, 15
    s_add_u32 s68, s68, 16384
    v_add_u32 v18, s68, v18
    v_xor_b32 v19, 64, v18
    s_lshl_b32 s68, s59, 1
    s_add_u32 s68, s68, s58
    s_xor_b32 s69, s68, 1
    s_lshl_b32 s66, s68, 10
    s_add_u32 s66, s66, SCR0
    v_lshl_add_u32 v22, v1, 4, s66
    s_lshl_b32 s66, s69, 10
    s_add_u32 s66, s66, SCR0
    v_lshl_add_u32 v23, v1, 4, s66
    s_lshl_b32 s66, s68, 8
    s_add_u32 s66, s66, SCR1
    v_lshl_add_u32 v24, v1, 2, s66
    s_lshl_b32 s66, s69, 8
    s_add_u32 s66, s66, SCR1
    v_lshl_add_u32 v25, v1, 2, s66
    s_lshl_b32 s68, s57, 1
    s_add_u32 s68, s68, s59
    s_lshl_b32 s68, s68, 5
    s_add_u32 s68, s68, s56
    s_mul_i32 s68, s68, 2176
    s_add_u32 s68, s68, {KVP}
    s_lshl_b32 s69, s58, 10
    s_add_u32 s69, s69, s68
    v_lshl_add_u32 v26, v1, 4, s69
    v_lshrrev_b32 v40, 4, v1
    v_and_b32 v40, 1, v40
    v_lshlrev_b32 v40, 3, v40       ; 8c
    v_and_b32 v41, 4, v1            ; 4*hh'
    v_add_u32 v40, v40, v41
    v_lshrrev_b32 v41, 2, v1
    v_and_b32 v41, 2, v41
    v_add_u32 v40, v40, v41
    v_lshrrev_b32 v41, 1, v1
    v_and_b32 v41, 1, v41
    v_add_u32 v40, v40, v41         ; zg
    s_add_u32 s68, s68, 2048
    v_lshl_add_u32 v27, v40, 3, s68
    ; PQ address
    s_lshl_b32 s68, s56, 1
    s_add_u32 s68, s68, s58
    s_lshl_b32 s68, s68, 5
    s_lshl_b32 s69, s57, 2
    s_add_u32 s68, s68, s69
    s_lshl_b32 s69, s59, 1
    s_add_u32 s68, s68, s69
    s_lshl_b32 s68, s68, 10
    s_add_u32 s68, s68, {PQ}
    v_lshl_add_u32 v28, v1, 4, s68
    v_and_b32 v40, 16, v1
    v_cmp_ne_u32 s[52:53], 0, v40
    s_sub_u32 s54, 0, s58
    s_mov_b32 s55, s54
    """)
    a.e(f"""
    s_cmp_lg_u32 s39, 3
    s_cbranch_scc1 L_b_nopt
    s_lshl_b32 s68, s56, 7
    s_add_u32 s68, s68, {PQF}
    v_mov_b32 v40, s68
    global_load_dword v21, v40, s[36:37] sc1
    """)
    a.vm.pop()
    a.label("L_b_nopt")
    for r in range(16):
        a.e(f"v_mov_b32 v{ACCQ+r}, s64")
    for r in range(16):
        a.e(f"v_mov_b32 v{ACCK+r}, s64")
    def frag_reads(g, k):
        L = []
        tag = f"f{g}_{k}"
        if g < 8:
            nx, nw = 2*g, 2*g+1
            hi, off = lds_base(nx)
            L.append((f"ds_read_b128 v[{XR+16*g+4*k}:{XR+16*g+4*k+3}], v{(12 if hi else 8)+k} offset:{off}", tag))
            d = WF + 16*(g % 2) + 4*k; n = nw; sstep = k
        else:
            n = 2*g + k//4; sstep = k % 4; d = WF + 4*k
        h2, o2 = lds_base(n)
        va = "v17" if h2 else "v16"
        L.append((f"ds_read_b64_tr_b16 v[{d}:{d+1}], {va} offset:{o2 + sstep*2048}", tag))
        L.append((f"ds_read_b64_tr_b16 v[{d+2}:{d+3}], {va} offset:{o2 + sstep*2048 + 512}", tag))
        return L
    def nsteps(g): return 4 if g < 8 else 8
    def emit_side(lst):
        for t in lst:
            if isinstance(t, str): a.e(t)
            elif t[0] == "WVM": a.wait_vm(t[1])
            else: a.e(t[0], vm=t[1])
    side = {}
    KVQ = (cfg.order == "KVQ")
    ke = phi_instrs(ACCK, T16, ACCK, zsum=29)
    ke += ["v_mov_b32 v30, v29", "v_permlane32_swap_b32 v29, v30", "v_add_f32 v29, v29, v30"]
    if not KVQ:
        qe = phi_instrs(ACCQ, T16, ACCQ)
        qe += [(f"global_store_dwordx4 v28, v[{ACCQ}:{ACCQ+3}], s[36:37] sc1", "pqst"),
               (f"global_store_dwordx4 v28, v[{ACCQ+4}:{ACCQ+7}], s[36:37] offset:1024 sc1", "pqst")]
        gaps = [(g, k) for g in range(8, 12) for k in range(8)][1:cfg.qe_end]
        for gp, grp in zip(gaps, spread(qe, len(gaps))): side[gp] = grp
        gaps = [(g, k) for g in range(12, 16) for k in range(8)][1:31]
    else:
        gaps = [(g, k) for g in range(8, 12) for k in range(8)][1:31]
    for gp, grp in zip(gaps, spread(ke, len(gaps))): side[gp] = grp if not cfg.x_epi else []
    side[(9, 7)] = side.get((9, 7), []) + ["s_lshl_b32 s68, s56, 7", f"s_add_u32 s68, s68, {PQF}", "v_and_b32 v2, 7, v1", "v_lshl_add_u32 v2, v2, 2, s68"]
    rb = f"""
    s_mov_b32 s40, s36
    s_and_b32 s41, s37, 0xffff
    s_mov_b32 s42, {KVF + 65536}
    s_mov_b32 s43, 0x20000
    s_lshl_b32 s68, s56, 1
    s_add_u32 s68, s68, s58
    s_lshl_b32 s68, s68, 5
    s_lshl_b32 s69, s59, 4
    s_add_u32 s68, s68, s69
    s_lshl_b32 s68, s68, 10
    s_add_u32 s68, s68, {PQ}
    v_lshl_add_u32 v3, v1, 4, s68
    v_add_u32 v31, 8192, v3
    v_lshrrev_b32 v13, 7, v0
    v_mul_u32_u24 v13, {KVBLK}, v13
    v_and_b32 v20, 127, v0
    v_lshl_add_u32 v13, v20, 4, v13
    v_add_u32 v13, {KVF}, v13
    v_lshrrev_b32 v14, 3, v20
    v_mul_u32_u24 v14, {KVBLK}, v14
    v_and_b32 v21, 7, v0
    v_lshl_add_u32 v14, v21, 4, v14
    v_add_u32 v14, {KVF+2048}, v14
    v_lshrrev_b32 v15, 7, v0
    v_lshlrev_b32 v15, 1, v15
    v_bfe_u32 v21, v0, 4, 1
    v_add_u32 v15, v15, v21
    v_mul_u32_u24 v15, 544, v15
    v_bfe_u32 v21, v0, 5, 1
    v_mul_u32_u24 v21, 272, v21
    v_add_u32 v15, v15, v21
    v_and_b32 v21, 15, v0
    v_lshl_add_u32 v15, v21, 4, v15
    v_bfe_u32 v21, v0, 6, 1
    v_lshl_add_u32 v15, v21, 3, v15
    v_lshrrev_b32 v12, 3, v20
    v_lshlrev_b32 v12, 1, v12
    v_bfe_u32 v21, v0, 2, 1
    v_add_u32 v12, v12, v21
    v_mul_u32_u24 v12, 544, v12
    v_bfe_u32 v21, v0, 1, 1
    v_mul_u32_u24 v21, 272, v21
    v_add_u32 v12, v12, v21
    v_and_b32 v21, 1, v0
    v_lshl_add_u32 v12, v21, 3, v12
    v_add_u32 v12, 256, v12
    v_and_b32 v30, 15, v1
    v_mul_u32_u24 v30, {KVBLK}, v30
    v_add_u32 v30, {KVF+2048}, v30
    """.strip().split("\n")
    rb = [x.strip() for x in rb]
    rb += [f"s_mov_b32 s{8+i}, {1024*i}" for i in range(8)] + [f"s_mov_b32 s{16+k}, {2*KVBLK*k}" for k in range(8)]
    if not cfg.late_o:
        gaps = [(14, k) for k in range(5, 8)] + [(15, k) for k in range(8)]
        for gp, grp in zip(gaps, spread(rb, len(gaps))): side[gp] = side.get(gp, []) + grp

    def kv_publish():
        a.c("--- kv partial: V cvt, MFMA, select, pair exchange, publish")
        a.e("s_barrier")
        if not KVQ: a.e("global_load_dword v21, v2, s[36:37] sc1", vm="pqf")
        if cfg.gate:
            a.e(f"""
            s_cmp_lg_u32 s39, 2
            s_cbranch_scc1 L_b_nogate
            s_and_b32 s68, s3, 7
            s_lshl_b32 s68, s68, 8
            s_lshr_b32 s69, s3, 3
            s_lshl_b32 s69, s69, 2
            s_add_u32 s68, s68, s69
            s_add_u32 s68, s68, {BDN}
            v_mov_b32 v20, s68
            v_mov_b32 v30, s38
            s_mov_b64 exec, 1
            global_store_dword v20, v30, s[36:37]
            s_mov_b64 exec, -1
            """)
            a.vm.pop()
            a.label("L_b_nogate")
        for m in range(8):
            a.e(f"v_cvt_pk_bf16_f32 v{ACCV+m}, v{ACCV+2*m}, v{ACCV+2*m+1}")
        a.e(f"v_mfma_f32_32x32x16_bf16 v[{T16}:{T16+15}], v[{ACCK}:{ACCK+3}], v[{ACCV}:{ACCV+3}], 0")
        a.e(f"v_mfma_f32_32x32x16_bf16 v[{T16}:{T16+15}], v[{ACCK+4}:{ACCK+7}], v[{ACCV+4}:{ACCV+7}], v[{T16}:{T16+15}]")
        a.e("ds_write_b32 v24, v29", lg="xw")
        SEL = ACCK + 8; SND = ACCV + 8; KEEP = ACCV + 12
        for j in range(8): a.e(f"v_cndmask_b32 v{SEL+j}, v{T16+j}, v{T16+8+j}, s[52:53]")
        for j in range(4): a.e(f"v_cndmask_b32 v{SND+j}, v{SEL+4+j}, v{SEL+j}, s[54:55]")
        a.e(f"ds_write_b128 v22, v[{SND}:{SND+3}]", lg="xw")
        for j in range(4): a.e(f"v_cndmask_b32 v{KEEP+j}, v{SEL+j}, v{SEL+4+j}, s[54:55]")
        a.wait_lg("xw")
        a.e("s_barrier")
        a.e(f"ds_read_b128 v[{SEL}:{SEL+3}], v23", lg="xr")
        a.e(f"ds_read_b32 v30, v25", lg="xr")
        a.wait_lg("xr")
        if not KVQ:
            a.wait_vm("pqf")
            a.e("v_cmp_ne_u32 s[66:67], s38, v21")
        for j in range(4): a.e(f"v_add_f32 v{KEEP+j}, v{KEEP+j}, v{SEL+j}")
        a.e(f"""
        v_add_f32 v29, v29, v30
        v_cvt_pk_bf16_f32 v{SEL}, v{KEEP}, v{KEEP+1}
        v_mov_b32 v{SEL+1}, s38
        v_cvt_pk_bf16_f32 v{SEL+2}, v{KEEP+2}, v{KEEP+3}
        v_mov_b32 v{SEL+3}, s38
        v_mov_b32_dpp v30, v29 quad_perm:[1,0,3,2] row_mask:0xf bank_mask:0xf
        global_store_dwordx4 v26, v[{SEL}:{SEL+3}], s[36:37] sc1
        v_cvt_pk_bf16_f32 v{SEL+4}, v29, v30
        v_mov_b32 v{SEL+5}, s38
        s_andn2_b64 exec, 0x55555555, s[54:55]
        s_cbranch_execz L_b_noz
        global_store_dwordx2 v27, v[{SEL+4}:{SEL+5}], s[36:37] sc1
        """)
        a.vm.pop()
        a.label("L_b_noz")
        a.e("s_mov_b64 exec, -1")
        stamp(a, cfg, 6)

    a.wait_vm(["slot0", "slot1"])
    a.e("s_barrier")
    stamp(a, cfg, 2)
    for k in range(4):
        for t, tag in frag_reads(0, k): a.e(t, lg=tag)
    nxt = cfg.ninit
    pend = []
    while nxt < NSLOT:
        pend += b_issue_jobs(nxt); nxt += 1
    for g in range(16):
        a.c(f"--- group {g}")
        if g == (11 if KVQ else 13): poll_nonce(a, "v21", "v31", first_tag="nonce")
        if KVQ and g == 12: kv_publish()
        if g == cfg.pqflag_g and not KVQ: a.wait_vm("pqst")
        if g < 15:
            a.wait_vm([f"slot{2*g+2}", f"slot{2*g+3}"])
        a.e("s_barrier")
        if g == cfg.pqflag_g and not KVQ:
            a.e("""
            s_cmp_lg_u32 s39, 3
            s_cbranch_scc1 L_b_noflag
            s_lshl_b32 s68, s56, 7
            s_lshl_b32 s69, s57, 2
            s_add_u32 s68, s68, s69
            s_add_u32 s68, s68, %d
            v_mov_b32 v20, s68
            v_mov_b32 v21, s38
            s_mov_b64 exec, 1
            global_store_dword v20, v21, s[36:37] sc1
            s_mov_b64 exec, -1
            """ % PQF)
            a.vm.pop()
            a.label("L_b_noflag")
        if g in (1, 8, 12): stamp(a, cfg, {1: 3, 8: 4, 12: 5}[g])
        jobs = list(pend); pend = []
        if g >= 1:
            for _ in range(2):
                if nxt < (32 if cfg.late_o else 40): jobs += b_issue_jobs(nxt); nxt += 1
        if g == (7 if KVQ else 9):
            jobs.append([("global_load_dword v21, v31, s[34:35] sc1", "nonce")])
        ns = nsteps(g)
        jsp = spread(jobs, ns)
        for k in range(ns):
            if k % 2 == 0: a.wait_lg([f"f{g}_{k}", f"f{g}_{k+1}"])
            part = cfg.order[0] if g < 8 else (cfg.order[1] if g < 12 else cfg.order[2])
            if g < 8:
                wreg = WF + 16*(g % 2) + 4*k; kk = 4*g + k
            else:
                wreg = WF + 4*k; kk = ((g - 8) % 4)*8 + k
            W_ = f"v[{wreg}:{wreg+3}]"; X_ = f"v[{XR+4*kk}:{XR+4*kk+3}]"
            if part == "Q":
                a.e(f"v_mfma_f32_32x32x16_bf16 v[{ACCQ}:{ACCQ+15}], {W_}, {X_}, v[{ACCQ}:{ACCQ+15}]")
            elif part == "K":
                a.e(f"v_mfma_f32_32x32x16_bf16 v[{ACCK}:{ACCK+15}], {X_}, {W_}, v[{ACCK}:{ACCK+15}]")
            else:
                cc = "0" if kk == 0 else f"v[{ACCV}:{ACCV+15}]"
                a.e(f"v_mfma_f32_32x32x16_bf16 v[{ACCV}:{ACCV+15}], {X_}, {W_}, {cc}")
            jl = [list(jb) for jb in jsp[k]]
            if jl:
                while jl[0] and not jl[0][0][0].startswith(("buffer_load", "global_load")):
                    a.e(jl[0].pop(0)[0])
            if g < 15:
                nx = [k, 4 + k] if g == 7 else [k]
                for k2 in nx:
                    for t, tag in frag_reads(g + 1, k2): a.e(t, lg=tag)
            for jb in jl: emit_job(a, jb)
            emit_side(side.get((g, k), []))
    if KVQ:
        tail_kvq(a, cfg, rb)
        return
    kv_publish()
    if cfg.prioBw is not None: a.e(f"s_setprio {cfg.prioBw}")
    a.e("s_mov_b64 s[54:55], s[66:67]")
    def pq_first(sfx):
        for t in rb: a.e(t)
        a.e(f"""
        s_cmp_eq_u64 s[54:55], 0
        s_cbranch_scc1 L_b_pqf_go{sfx}
        s_mov_b32 s61, 0
        """)
        a.label(f"L_b_pqf_poll{sfx}")
        a.e(f"""
        global_load_dword v21, v2, s[36:37] sc1
        s_add_u32 s61, s61, 1
        s_waitcnt vmcnt(0)
        v_cmp_ne_u32 vcc, s38, v21
        s_cmp_gt_u32 s61, {SPIN_LIMIT}
        s_cbranch_scc1 L_b_pqf_go{sfx}
        s_cbranch_vccz L_b_pqf_go{sfx}
        s_branch L_b_pqf_poll{sfx}
        """)
        a.label(f"L_b_pqf_go{sfx}")
        for i in range(8):
            a.e(f"buffer_load_dwordx4 v[{32+4*i}:{35+4*i}], v3, s[40:43], s{8+i} offen sc1")
    a.e("""
    s_cmp_eq_u32 s39, 0
    s_cbranch_scc1 L_b_w0tail
    """)
    for n in range(32, 40):
        for jb in b_issue_jobs(n): emit_job(a, jb)
    a.e("""
    s_cmp_eq_u32 s39, 1
    s_cbranch_scc0 L_b_noshare
    v_subrev_u32 v22, 16384, v6
    v_subrev_u32 v23, 16384, v7
    """)
    for n in range(32, 40):
        c = SEQ[n][1]; pos = n % NSLOT
        a.e(f"s_mov_b32 m0, {pos*8192}")
        a.e(f"s_mov_b32 s61, {c*65536}")
        a.e(f"buffer_load_dwordx4 v22, s[48:51], s61 offen lds")
        a.e(f"buffer_load_dwordx4 v23, s[48:51], s61 offen offset:1024 lds")
    a.label("L_b_noshare")
    pq_first("a")
    a.e("s_waitcnt vmcnt(8)")
    a.e("s_branch L_b_tailjoin")
    a.label("L_b_w0tail")
    reducer(a, cfg)
    pq_first("b")
    a.label("L_b_tailjoin")
    a.vm = []; a.lg = []
    stamp(a, cfg, 7)
    if not cfg.do_B2:
        stamp(a, cfg, 8)
        stamps_out(a, cfg, 9)
        a.e("s_branch L_end")
        return
    role_B2(a, cfg)

def tag_check(a, regs_tags, acc="v20"):
    tt = 0
    for idx in range(8):
        s0, s1, s2 = (idx >> 2) & 1, (idx >> 1) & 1, idx & 1
        if s0 | (s1 ^ s2): tt |= 1 << idx
    first = True
    for r in regs_tags:
        if first:
            a.e(f"v_xor_b32 {acc}, s38, v{r}"); first = False
        else:
            a.e(f"v_bitop3_b32 {acc}, {acc}, v{r}, s38 bitop3:{hex(tt)}")
    a.e(f"v_cmp_ne_u32 vcc, 0, {acc}")

def tail_kvq(a, cfg, rb):
    a.e("s_barrier")
    a.e("""
    s_cmp_eq_u32 s39, 0
    s_cbranch_scc1 L_b_w0a
    """)
    if not cfg.o_after:
        for n in range(32, 40):
            for jb in b_issue_jobs(n): emit_job(a, jb)
        a.e("""
        s_cmp_eq_u32 s39, 1
        s_cbranch_scc0 L_b_noshare
        v_subrev_u32 v22, 16384, v6
        v_subrev_u32 v23, 16384, v7
        """)
        for n in range(32, 40):
            c = SEQ[n][1]; pos = n % NSLOT
            a.e(f"s_mov_b32 m0, {pos*8192}")
            a.e(f"s_mov_b32 s61, {c*65536}")
            a.e(f"buffer_load_dwordx4 v22, s[48:51], s61 offen lds")
            a.e(f"buffer_load_dwordx4 v23, s[48:51], s61 offen offset:1024 lds")
        a.label("L_b_noshare")
    a.e("s_branch L_b_phi")
    a.label("L_b_w0a")
    reducer(a, cfg, "addr")
    reducer(a, cfg, "loads")
    a.label("L_b_phi")
    for t in phi_instrs(ACCQ, T16, ACCQ): a.e(t)
    a.e(f"""
    v_lshlrev_b32 v20, 4, v1
    s_cmp_lg_u32 s39, 0
    s_cbranch_scc1 L_b_noho
    ds_write_b128 v20, v[{ACCQ}:{ACCQ+3}]
    ds_write_b128 v20, v[{ACCQ+4}:{ACCQ+7}] offset:1024
    v_mov_b32 v21, 0
    ds_write_b32 v21, v21 offset:2048
    s_waitcnt lgkmcnt(0)
    """)
    a.label("L_b_noho")
    a.e("s_barrier")
    stamp(a, cfg, 7)
    if cfg.prioBw is not None: a.e(f"s_setprio {cfg.prioBw}")
    a.e(f"""
    s_cmp_eq_u32 s39, 0
    s_cbranch_scc1 L_b_w0b
    global_store_dwordx4 v28, v[{ACCQ}:{ACCQ+3}], s[36:37] sc1
    global_store_dwordx4 v28, v[{ACCQ+4}:{ACCQ+7}], s[36:37] offset:1024 sc1
    s_cmp_eq_u32 s39, 1
    s_cbranch_scc0 L_b_nopq
    ds_read_b128 v[32:35], v20
    ds_read_b128 v[36:39], v20 offset:1024
    v_subrev_u32 v21, 32768, v28
    s_waitcnt lgkmcnt(0)
    global_store_dwordx4 v21, v[32:35], s[36:37] sc1
    global_store_dwordx4 v21, v[36:39], s[36:37] offset:1024 sc1
    """)
    a.label("L_b_nopq")
    if cfg.o_after:
        for n in range(32, 40):
            for jb in b_issue_jobs(n): emit_job(a, jb)
        a.e("""
        s_cmp_eq_u32 s39, 1
        s_cbranch_scc0 L_b_noshare
        v_subrev_u32 v22, 16384, v6
        v_subrev_u32 v23, 16384, v7
        """)
        for n in range(32, 40):
            c = SEQ[n][1]; pos = n % NSLOT
            a.e(f"s_mov_b32 m0, {pos*8192}")
            a.e(f"s_mov_b32 s61, {c*65536}")
            a.e(f"buffer_load_dwordx4 v22, s[48:51], s61 offen lds")
            a.e(f"buffer_load_dwordx4 v23, s[48:51], s61 offen offset:1024 lds")
        a.label("L_b_noshare")
    for t in rb: a.e(t)
    if cfg.o_after:
        a.e("""
        s_cmp_eq_u32 s39, 1
        s_cbranch_scc1 L_b_ack1
        s_waitcnt vmcnt(16)
        s_branch L_b_ack2
        """)
        a.label("L_b_ack1")
        a.e("s_waitcnt vmcnt(32)")
        a.label("L_b_ack2")
    else:
        a.e("s_waitcnt vmcnt(0)")
    a.e("""
    v_mov_b32 v32, 0
    v_mov_b32 v33, 1
    s_mov_b64 exec, 1
    ds_add_rtn_u32 v34, v32, v33 offset:2048
    s_waitcnt lgkmcnt(0)
    v_readfirstlane_b32 s68, v34
    s_cmp_lg_u32 s68, 2
    s_cbranch_scc1 L_b_noflag2
    s_lshl_b32 s68, s56, 7
    s_lshl_b32 s69, s57, 2
    s_add_u32 s68, s68, s69
    s_add_u32 s68, s68, %d
    v_mov_b32 v32, s68
    v_mov_b32 v33, s38
    global_store_dword v32, v33, s[36:37] sc1
    """ % PQF)
    if cfg.o_after:
        a.e("s_mov_b64 exec, -1")
        a.e("s_waitcnt vmcnt(1)")
        a.e("s_branch L_b_tailjoin")
    a.label("L_b_noflag2")
    a.e("s_mov_b64 exec, -1")
    if cfg.o_after:
        a.e("s_waitcnt vmcnt(0)")
    a.e("s_branch L_b_tailjoin")
    a.label("L_b_w0b")
    reducer(a, cfg, "finish")
    for t in rb: a.e(t)
    a.label("L_b_tailjoin")
    a.vm = []; a.lg = []
    def pq_late():
        a.e("s_mov_b32 s61, 0")
        a.label("L_b_pqf_poll")
        a.e(f"""
        global_load_dword v21, v2, s[36:37] sc1
        s_add_u32 s61, s61, 1
        s_waitcnt vmcnt(0)
        v_cmp_ne_u32 vcc, s38, v21
        s_cmp_gt_u32 s61, {SPIN_LIMIT}
        s_cbranch_scc1 L_b_pqf_go
        s_cbranch_vccz L_b_pqf_go
        s_branch L_b_pqf_poll
        """)
        a.label("L_b_pqf_go")
        for i in range(8):
            a.e(f"buffer_load_dwordx4 v[{32+4*i}:{35+4*i}], v3, s[40:43], s{8+i} offen sc1")
    role_B2(a, cfg, pq_late)

def reducer(a, cfg, part=None):
    def reduce_line(base, dst_addr, tagsok_label):
        S = 64; T = 68
        for k in range(4):
            r = base + 4*k
            for pidx in range(2):
                src = r + 2*pidx
                if k == 0:
                    a.e(f"v_lshlrev_b32 v{S+2*pidx}, 16, v{src}")
                    a.e(f"v_and_b32 v{S+1+2*pidx}, 0xffff0000, v{src}")
                else:
                    a.e(f"v_lshlrev_b32 v{T+2*pidx}, 16, v{src}")
                    a.e(f"v_and_b32 v{T+1+2*pidx}, 0xffff0000, v{src}")
                    a.e(f"v_add_f32 v{S+2*pidx}, v{S+2*pidx}, v{T+2*pidx}")
                    a.e(f"v_add_f32 v{S+1+2*pidx}, v{S+1+2*pidx}, v{T+1+2*pidx}")
        for j in range(4): a.e(f"v_add_f32_dpp v{S+j}, v{S+j}, v{S+j} row_ror:8 row_mask:0xf bank_mask:0xf")
        for j in range(4): a.e(f"v_mov_b32 v{T+j}, v{S+j}")
        for j in range(4): a.e(f"v_permlane16_swap_b32 v{S+j}, v{T+j}")
        for j in range(4): a.e(f"v_add_f32 v{S+j}, v{S+j}, v{T+j}")
        for j in range(4): a.e(f"v_mov_b32 v{T+j}, v{S+j}")
        for j in range(4): a.e(f"v_permlane32_swap_b32 v{S+j}, v{T+j}")
        for j in range(4): a.e(f"v_add_f32 v{S+j}, v{S+j}, v{T+j}")
        a.e(f"""
        v_cvt_pk_bf16_f32 v72, v{S}, v{S+1}
        v_mov_b32 v73, s38
        v_cvt_pk_bf16_f32 v74, v{S+2}, v{S+3}
        v_mov_b32 v75, s38
        s_mov_b64 exec, 0xff
        global_store_dwordx4 {dst_addr}, v[72:75], s[36:37] sc1
        s_mov_b64 exec, -1
        """)
    if part in (None, "addr"):
        a.e(f"""
        s_lshr_b32 s66, s3, 4
        s_and_b32 s67, s3, 15
        s_mul_i32 s69, s66, {32*KVBLK}
        s_add_u32 s69, s69, {KVP}
        s_lshl_b32 s52, s67, 7
        s_add_u32 s68, s69, s52
        v_and_b32 v22, 7, v1
        v_lshlrev_b32 v22, 4, v22
        v_lshrrev_b32 v23, 3, v1
        v_mul_u32_u24 v23, {KVBLK}, v23
        v_add_u32 v23, v22, v23
        v_add_u32 v24, s68, v23
        v_add_u32 v25, {8*KVBLK}, v24
        v_add_u32 v26, {16*KVBLK}, v24
        v_add_u32 v27, {24*KVBLK}, v24
        s_add_u32 s68, s69, 2048
        v_add_u32 v8, s68, v23
        v_add_u32 v9, {8*KVBLK}, v8
        v_add_u32 v10, {16*KVBLK}, v8
        v_add_u32 v11, {24*KVBLK}, v8
        s_mul_i32 s69, s66, {KVBLK}
        s_add_u32 s69, s69, {KVF}
        s_add_u32 s68, s69, s52
        v_add_u32 v23, s68, v22
        s_add_u32 s68, s69, 2048
        v_add_u32 v29, s68, v22
        """)
    if part == "addr": return
    def red_round(sfx):
        a.e(f"""
        global_load_dwordx4 v[96:99], v24, s[36:37] sc1
        global_load_dwordx4 v[100:103], v25, s[36:37] sc1
        global_load_dwordx4 v[104:107], v26, s[36:37] sc1
        global_load_dwordx4 v[108:111], v27, s[36:37] sc1
        s_cmp_lg_u32 s67, 0
        s_cbranch_scc1 L_b_red_nb{sfx}
        global_load_dwordx4 v[112:115], v8, s[36:37] sc1
        global_load_dwordx4 v[116:119], v9, s[36:37] sc1
        global_load_dwordx4 v[120:123], v10, s[36:37] sc1
        global_load_dwordx4 v[124:127], v11, s[36:37] sc1
        """)
        a.label(f"L_b_red_nb{sfx}")
    if part == "loads":
        red_round("0"); return
    a.e("s_mov_b32 s61, 0")
    if part == "finish": a.e("s_branch L_b_red_w")
    a.label("L_b_red_poll")
    red_round("1")
    a.label("L_b_red_w")
    a.e("""
    s_add_u32 s61, s61, 1
    s_waitcnt vmcnt(0)
    s_cmp_lg_u32 s67, 0
    s_cbranch_scc1 L_b_red_one
    """)
    tag_check(a, [97+2*q for q in range(16)])
    a.e("s_branch L_b_red_chk")
    a.label("L_b_red_one")
    tag_check(a, [97+2*q for q in range(8)])
    a.label("L_b_red_chk")
    a.e(f"""
    s_cmp_gt_u32 s61, {SPIN_LIMIT}
    s_cbranch_scc1 L_b_red_go
    s_cbranch_vccz L_b_red_go
    s_sleep {cfg.sl_red}
    s_branch L_b_red_poll
    """)
    a.label("L_b_red_go")
    a.e("""
    s_cmp_lg_u32 s67, 0
    s_cbranch_scc1 L_b_red_a
    """)
    reduce_line(112, "v29", None)
    a.label("L_b_red_a")
    reduce_line(96, "v23", None)
    stamp(a, cfg, 10)

def role_B2(a, cfg, after_k1=None):
    WO = 128
    ACC = 96
    PQR = 32
    CN = [64, 80]
    KAF = [8, 12]
    OF = [4, 16]
    KA = 0
    PQL = 17408
    a.c("================= B2 =================")
    a.e("s_barrier")
    for i in range(16):
        for nt in range(2):
            d = WO + 8*i + 4*nt
            off = (i//4)*8192 + (i % 4)*2048
            a.e(f"ds_read_b64_tr_b16 v[{d}:{d+1}], v{18+nt} offset:{off}", lg="wo")
            a.e(f"ds_read_b64_tr_b16 v[{d+2}:{d+3}], v{18+nt} offset:{off+1024}", lg="wo")
    a.e("s_waitcnt lgkmcnt(0)")
    a.e("s_barrier")
    a.vm = []; a.lg = []
    stamp(a, cfg, 9)
    if after_k1 and not cfg.ka_first: after_k1()
    if cfg.zpoll:
        a.e("""
        s_mov_b32 s61, 0
        s_cmp_eq_u32 s39, 0
        s_cbranch_scc0 L_b_kz_go
        """)
        a.label("L_b_kz_poll")
        a.e(f"""
        buffer_load_dwordx4 v[96:99], v30, s[40:43], 0 offen sc1
        s_add_u32 s61, s61, 1
        s_waitcnt vmcnt(0)
        v_xor_b32 v20, s38, v97
        v_cmp_ne_u32 vcc, 0, v20
        s_cmp_gt_u32 s61, {SPIN_LIMIT}
        s_cbranch_scc1 L_b_kz_go
        s_cbranch_vccz L_b_kz_go
        s_sleep {cfg.sl_kz}
        s_branch L_b_kz_poll
        """)
        a.label("L_b_kz_go")
        stamp(a, cfg, 11)
        a.e("s_barrier")
    PB = 17408
    a.e(f"""
    v_and_b32 v24, 31, v1
    s_lshl_b32 s68, s58, 5
    v_add_u32 v24, s68, v24            ; token
    v_mul_u32_u24 v24, 272, v24
    v_lshrrev_b32 v25, 5, v1
    v_lshl_add_u32 v24, v25, 4, v24    ; + hh*16
    s_mul_i32 s68, s59, {64*272}
    s_add_u32 s68, s68, {PB}
    v_add_u32 v24, s68, v24            ; P write address
    v_lshrrev_b32 v26, 3, v0
    v_mul_u32_u24 v25, 272, v26
    v_and_b32 v27, 7, v0
    v_lshl_add_u32 v25, v27, 5, v25
    v_add_u32 v25, {PB}, v25           ; P read address
    s_lshl_b32 s68, s56, 6
    v_add_u32 v26, s68, v26
    v_lshlrev_b32 v26, 11, v26
    s_lshl_b32 s68, s57, 7
    s_add_u32 s68, s68, 1024
    v_lshl_add_u32 v26, v27, 4, v26
    v_add_u32 v26, s68, v26
    v_add_u32 v27, {32*2048}, v26
    v_and_b32 v22, 31, v1
    v_min_u32 v22, 16, v22
    v_lshlrev_b32 v22, 4, v22
    v_lshrrev_b32 v23, 5, v1
    v_mul_u32_u24 v23, 272, v23
    s_mul_i32 s68, s59, {16*544}
    v_add3_u32 v22, v22, v23, s68       ; kv fragment address
    """)
    def ka_loads():
        for k in range(8):
            a.e(f"buffer_load_dwordx4 v[{64+4*k}:{67+4*k}], v13, s[40:43], s{16+k} offen sc1")
        a.e("buffer_load_dwordx4 v[96:99], v14, s[40:43], 0 offen sc1")
    a.e("s_mov_b32 s61, 0")
    a.e("s_branch L_b_kvf_first")
    a.label("L_b_kvf_poll")
    a.e(f"s_sleep {cfg.sl_ka}")
    a.label("L_b_kvf_first")
    ka_loads()
    a.e("s_waitcnt vmcnt(0)")
    a.label("L_b_ka_chk")
    a.e("s_add_u32 s61, s61, 1")
    tag_check(a, [65+2*q for q in range(18)])
    a.e(f"""
    s_cmp_gt_u32 s61, {SPIN_LIMIT}
    s_cbranch_scc1 L_b_kvf_go
    s_cbranch_vccnz L_b_kvf_poll
    """)
    a.label("L_b_kvf_go")
    if after_k1 and cfg.ka_first: after_k1()
    stamp(a, cfg, 12)
    stampval(a, cfg, 8, "s61")
    a.vm = []
    for k in range(8):
        a.e(f"v_mov_b32 v{65+4*k}, v{66+4*k}")
        a.e(f"ds_write_b64 v15, v[{64+4*k}:{65+4*k}] offset:{KA + 2176*k}")
    a.e("v_mov_b32 v97, v98")
    a.e(f"ds_write_b64 v12, v[96:97] offset:{KA}")
    a.e(f"""
    s_waitcnt vmcnt(0) lgkmcnt(0)
    s_barrier
    """)
    a.vm = []; a.lg = []
    stamp(a, cfg, 13)
    if cfg.prioBw is not None: a.e(f"s_setprio {cfg.prioBm}")
    def kaf_read(i):
        a.e(f"ds_read_b128 v[{KAF[i%2]}:{KAF[i%2]+3}], v22 offset:{KA + 544*i}", lg=f"ka{i}")
    def out_mfma(i):
        o = OF[i % 2]
        for nt in range(2):
            w = WO + 8*i + 4*nt
            cc = "0" if i == 0 else f"v[{ACC+16*nt}:{ACC+16*nt+15}]"
            a.e(f"v_mfma_f32_32x32x16_bf16 v[{ACC+16*nt}:{ACC+16*nt+15}], v[{w}:{w+3}], v[{o}:{o+3}], {cc}")
    def num_mfma(i):
        a.wait_lg(f"ka{i}")
        p = PQR + 4*(i % 8)
        if i >= 8: a.wait_vm(f"pq{i}")
        a.e(f"v_mfma_f32_32x32x16_bf16 v[{CN[i%2]}:{CN[i%2]+15}], v[{KAF[i%2]}:{KAF[i%2]+3}], v[{p}:{p+3}], 0")
        if i < 8:
            a.e(f"buffer_load_dwordx4 v[{p}:{p+3}], v31, s[40:43], s{8+i} offen sc1", vm=f"pq{i+8}")
    def out1(i, nt):
        o = OF[i % 2]
        w = WO + 8*i + 4*nt
        cc = "0" if i == 0 else f"v[{ACC+16*nt}:{ACC+16*nt+15}]"
        a.e(f"v_mfma_f32_32x32x16_bf16 v[{ACC+16*nt}:{ACC+16*nt+15}], v[{w}:{w+3}], v[{o}:{o+3}], {cc}")
    kaf_read(0); kaf_read(1)
    num_mfma(0)
    for i in range(16):
        if i >= cfg.x_main: break
        if i + 1 < 16:
            num_mfma(i + 1)
        c = CN[i % 2]
        a.e(f"v_add_f32 v20, s64, v{c+8}")
        a.e(f"v_rcp_f32 v20, v20")
        if i + 2 < 16:
            kaf_read(i + 2)
        for jj in range(2): a.e(f"v_mul_f32 v{c+jj}, v{c+jj}, v20")
        if i >= 1: out1(i - 1, 0)
        for jj in range(2, 7): a.e(f"v_mul_f32 v{c+jj}, v{c+jj}, v20")
        if i >= 1: out1(i - 1, 1)
        a.e(f"v_mul_f32 v{c+7}, v{c+7}, v20")
        o = OF[i % 2]
        for m in range(4):
            a.e(f"v_cvt_pk_bf16_f32 v{o+m}, v{c+2*m}, v{c+2*m+1}")
    out1(15, 0); out1(15, 1)
    stamp(a, cfg, 14)
    a.e("""
    s_cmp_lg_u32 s3, 0
    s_cbranch_scc1 L_b_norst
    s_cmp_lg_u32 s39, 0
    s_cbranch_scc1 L_b_norst
    v_mov_b32 v20, 0
    s_mov_b64 exec, 1
    global_store_dword v20, v20, s[34:35] sc1
    s_mov_b64 exec, -1
    """)
    a.label("L_b_norst")
    a.vm = []
    for nt in range(2):
        for q in range(4):
            r = ACC + 16*nt + 4*q
            a.e(f"ds_write_b128 v24, v[{r}:{r+3}] offset:{nt*128 + q*32}")
    a.e("s_waitcnt lgkmcnt(0)")
    a.e("s_barrier")
    for r in range(2):
        o = r*32*272
        a.e(f"ds_read_b128 v[{32+16*r}:{35+16*r}], v25 offset:{o}")
        a.e(f"ds_read_b128 v[{40+16*r}:{43+16*r}], v25 offset:{o+64*272}")
        a.e(f"ds_read_b128 v[{36+16*r}:{39+16*r}], v25 offset:{o+16}")
        a.e(f"ds_read_b128 v[{44+16*r}:{47+16*r}], v25 offset:{o+64*272+16}")
    for r in range(2):
        a.e(f"s_waitcnt lgkmcnt({4 if r == 0 else 0})")
        b = 32 + 16*r
        for jj in range(8):
            a.e(f"v_add_f32 v{b+jj}, v{b+jj}, v{b+8+jj}")
        for m in range(4):
            a.e(f"v_cvt_pk_bf16_f32 v{64+4*r+m}, v{b+2*m}, v{b+2*m+1}")
        a.e(f"global_store_dwordx4 v{26+r}, v[{64+4*r}:{67+4*r}], s[32:33] {cfg.outfl}")
    stamps_out(a, cfg, 15)

TV = 240
def a_touch_setup(a, cfg):
    a.e(f"""
    s_lshr_b32 s62, s40, 1          ; tg
    s_and_b32 s63, s40, 1           ; hg
    s_lshl_b32 s64, s62, 9
    s_lshl_b32 s65, s41, 4          ; 16*jj
    s_add_u32 s64, s64, s65
    v_and_b32 v246, 15, v1
    v_lshrrev_b32 v247, 4, v1       ; 0..3
    v_add_u32 v241, s64, v246
    v_lshlrev_b32 v241, 10, v241
    v_lshl_add_u32 v241, v247, 7, v241
    v_add_u32 v241, 512, v241
    v_and_b32 v248, 3, v1
    v_lshlrev_b32 v248, 7, v248     ; line*128
    s_lshl_b32 s66, s63, 9          ; hg*512
    v_lshrrev_b32 v249, 2, v1
    v_add_u32 v240, s65, v249       ; 16jj + (l>>2)
    v_mul_u32_u24 v242, 3072, v240
    v_add3_u32 v242, v242, v248, s66
    v_add_u32 v244, {'QKV'.index(ORDER[2])*1024}, v242
    v_lshlrev_b32 v245, 10, v240
    v_add3_u32 v245, v245, v248, s66
    v_and_b32 v249, 7, v249
    s_lshl_b32 s67, s41, 3
    s_add_u32 s67, s67, 256
    v_add_u32 v249, s67, v249
    v_mul_u32_u24 v243, 3072, v249
    v_add3_u32 v243, v243, v248, s66
    v_add_u32 v240, {'QKV'.index(ORDER[1])*1024}, v242
    v_add_u32 v243, {'QKV'.index(ORDER[0])*1024}, v243
    """)

def a_touch(a, cfg, plan):
    fl = cfg.touch_flags
    info = {"x1": (241, "s[26:27]"), "q47": (243, "s[28:29]"), "k": (240, "s[28:29]"), "v": (244, "s[28:29]"), "o": (245, "s[30:31]")}
    for w, names in plan.items():
        L = a.newlabel("tch")
        a.e(f"s_cmp_eq_u32 s39, {w}")
        a.e(f"s_cbranch_scc0 {L}")
        for i, nm in enumerate(names):
            v, base = info[nm]
            a.e(f"global_load_dword v{250+i}, v{v}, {base} {fl}")
            a.vm.pop()
        a.label(L)

def role_A(a, cfg):
    a.label("L_roleA")
    a.e("""
    s_and_b32 s40, s3, 7
    s_lshr_b32 s41, s3, 3           ; j
    s_waitcnt lgkmcnt(0)
    """)
    if not cfg.do_A:
        if cfg.touch:
            a_touch_setup(a, cfg)
            a_touch(a, cfg, {2: ["x1"], 3: ["q47"]})
            a.e("s_waitcnt vmcnt(0)")
            a_touch(a, cfg, {1: ["k"], 2: ["v"], 3: ["o"]})
            a.e("s_waitcnt vmcnt(0)")
        a.e("s_branch L_end")
        return
    import role_a
    role_a.role_A(a, cfg)

def build(cfg):
    set_order(cfg.order)
    global DMAFL
    DMAFL = cfg.dmafl
    a = Asm()
    prologue(a, cfg)
    if cfg.do_B:
        role_B(a, cfg)
    a.e("s_branch L_end")
    a.vm = []
    role_A(a, cfg)
    a.label("L_end")
    a.e("s_endpgm")
    body = a.render()
    return body, a

HEADER = open("concat_heads__ssm_conv_s4__linear_attn_block__prompt.s.ref").read().split("; Override launch")[0]

def generate(path, cfg):
    body, a = build(cfg)
    txt = wrap(body, HEADER, 512, 256, 81920)
    open(path, "w").write(txt)
    return a

if __name__ == "__main__":
    sys.modules["kern"] = sys.modules["__main__"]
    cfg = Cfg()
    cfg.stamps = True
    if len(sys.argv) > 2:
        for kv in sys.argv[2:]:
            k, v = kv.split("=")
            setattr(cfg, k, int(v) if v.isdigit() else v)
    a = generate(sys.argv[1] if len(sys.argv) > 1 else "k_b1.s", cfg)
    print("nops inserted:", a.nnops)
```

```python
from asmlib import Asm
import kern as K

UT, YT = K.UT, K.YT
UTF, YTF = K.UTF, K.YTF
TILE = 3088
SPIN = K.SPIN_LIMIT
ROWB = 528
TB = [12288, 45056]
KC = [0, 1536]
NONCE_LDS = 3072
KD = [3088, 7200]
CP = [12288, 12288 + 16640]
UR = [45568, 45568 + 7600]
YP = 0
ROWS = list(range(8)) + [128+k for k in range(8)] + [256+2*k for k in range(4)] + [384+2*k for k in range(4)] + \
       [512, 516, 640, 644, 768, 772, 896, 900] + [1024+128*k for k in range(8)] + [2048]
assert len(ROWS) == 41

def fhex(x):
    import struct
    return hex(struct.unpack("<I", struct.pack("<f", x))[0])

USE_PK = False
def cmul(a, d, x, y, t):
    if USE_PK:
        a.e(f"v_pk_mul_f32 v[{t}:{t+1}], v[{x}:{x+1}], v[{y}:{y+1}] op_sel_hi:[1,0]")
        a.e(f"v_pk_fma_f32 v[{d}:{d+1}], v[{x}:{x+1}], v[{y}:{y+1}], v[{t}:{t+1}] op_sel:[1,1,0] op_sel_hi:[0,1,1] neg_lo:[1,0,0]")
    else:
        assert d not in (x, y)
        a.e(f"v_mul_f32 v{t}, v{x}, v{y}")
        a.e(f"v_mul_f32 v{t+1}, v{x+1}, v{y}")
        a.e(f"v_fma_f32 v{d}, -v{x+1}, v{y+1}, v{t}")
        a.e(f"v_fma_f32 v{d+1}, v{x}, v{y+1}, v{t+1}")

def poll_tags_loop(a, name, loads, tagregs):
    a.e("s_mov_b32 s61, 0")
    a.label(f"L_{name}_poll")
    for l in loads: a.e(l)
    a.e("s_add_u32 s61, s61, 1")
    a.e("s_waitcnt vmcnt(0)")
    K.tag_check(a, tagregs, acc="v9")
    a.e(f"""
    s_cmp_gt_u32 s61, {SPIN}
    s_cbranch_scc1 L_{name}_go
    s_cbranch_vccz L_{name}_go
    s_sleep 1
    s_branch L_{name}_poll
    """)
    a.label(f"L_{name}_go")
    a.vm = []


(A_TW, A_TR, A_UT0, A_UT1, A_TB, A_KM, A_C0, A_C1A, A_C1B, A_C2, A_DW, A_ER0, A_ER1, A_ZU, A_ZC, A_ZG,
 A_CR, A_CW, A_UG, A_UL, A_FU, A_FY, A_FUS, A_FYS, A_VA, A_VB, A_PW, A_OR, A_YG, A_YL, A_OUT) = (
 160, 161, 162, 163, 164, 168, 172, 173, 174, 175, 176, 177, 178, 179, 180, 181,
 182, 183, 184, 185, 186, 187, 188, 189, 190, 191, 192, 193, 194, 195, 199)

def role_A(a, cfg):
    global USE_PK
    USE_PK = cfg.pk
    st = lambda i: K.stamp(a, cfg, i)
    a.c("================= role A =================")
    if cfg.prioA and not cfg.late_prio: a.e(f"s_setprio {cfg.prioA}")
    a.e("""
    s_lshr_b32 s47, s39, 1
    s_and_b32 s48, s39, 1           ; w2
    s_lshl_b32 s49, s40, 6          ; 64 g
    s_lshl_b32 s50, s41, 1
    s_add_u32 s50, s50, s49         ; d0 = 64g + 2j
    s_add_u32 s51, s50, s47
    s_lshl_b32 s51, s51, 8
    v_and_b32 v2, 127, v0           ; n
    v_lshl_add_u32 v5, v2, 1, s51
    v_lshrrev_b32 v3, 4, v0         ; r''
    v_and_b32 v4, 15, v0            ; c8
    s_lshl_b32 s52, s41, 6
    v_lshl_add_u32 v6, v3, 2, s52   ; t0 = 64j + 4r''
    v_lshlrev_b32 v6, 10, v6
    s_lshl_b32 s53, s49, 1
    v_lshl_add_u32 v7, v4, 3, s53
    v_add_u32 v6, v6, v7            ; u offset
    s_lshl_b32 s45, s40, 2
    s_add_u32 s45, s45, 4
    v_mov_b32 v8, s45
    s_waitcnt lgkmcnt(0)
    """)
    st(1)
    a.e("""
    v_mov_b32 v202, v6
    v_mov_b32 v203, v7
    global_load_ushort v10, v5, s[10:11]
    global_load_ushort v11, v5, s[12:13]
    global_load_ushort v12, v5, s[14:15]
    global_load_ushort v13, v5, s[16:17]
    global_load_ushort v14, v5, s[18:19]
    global_load_ushort v15, v5, s[20:21]
    s_lshl_b32 s54, s50, 1
    s_add_u32 s54, s22, s54
    s_addc_u32 s55, s23, 0
    s_load_dword s56, s[54:55], 0
    s_cmp_lg_u32 s41, 0
    s_cbranch_scc1 L_a_nopub
    s_cmp_lg_u32 s39, 0
    s_cbranch_scc1 L_a_nopub
    s_memrealtime s[58:59]
    s_waitcnt lgkmcnt(0)
    s_or_b32 s58, s58, 8
    v_mov_b32 v9, s58
    s_mov_b64 exec, 1
    global_store_dword v8, v9, s[34:35] sc1
    s_mov_b64 exec, -1
    """)
    a.label("L_a_nopub")
    a.vm = []
    a.e(f"""
    v_and_b32 v26, 15, v1
    v_lshrrev_b32 v27, 4, v1
    v_bfe_u32 v28, v1, 2, 2
    v_and_b32 v29, 3, v1
    v_and_b32 v30, 31, v1
    v_lshrrev_b32 v31, 5, v1
    v_lshlrev_b32 v32, 2, v4
    v_mul_u32_u24 v32, 144, v32
    v_lshlrev_b32 v33, 3, v3
    v_sub_u32 v33, 120, v33
    v_add_u32 v32, v32, v33
    v_add_u32 v{A_TW}, {TILE}, v32
    v_lshrrev_b32 v32, 3, v1
    s_lshl_b32 s57, s39, 5
    v_add_u32 v32, s57, v32
    v_mul_u32_u24 v33, 144, v32
    v_and_b32 v34, 7, v1
    v_lshl_add_u32 v33, v34, 4, v33
    v_add_u32 v{A_TR}, {TILE}, v33
    v_add_u32 v32, s49, v32
    v_lshlrev_b32 v32, 12, v32
    v_lshl_add_u32 v32, v34, 4, v32
    s_sub_u32 s57, 31, s41
    s_lshl_b32 s57, s57, 7
    s_add_u32 s57, s57, {UT}
    v_add_u32 v{A_UT0}, s57, v32
    v_add_u32 v{A_UT1}, 32768, v{A_UT0}
    v_add_u32 v200, 65536, v{A_UT0}
    v_add_u32 v201, 98304, v{A_UT0}
    v_lshl_add_u32 v32, v27, 3, v28
    s_lshl_b32 s59, s47, 15
    s_add_u32 s59, s59, {TB[0]}
    v_and_b32 v33, 1, v2
    v_bfe_u32 v34, v2, 2, 1
    v_lshl_add_u32 v33, v34, 1, v33
    v_lshl_add_u32 v34, v2, 8, s59
    """)
    for cp in range(4):
        a.e(f"v_xor_b32 v35, {cp}, v33")
        a.e(f"v_lshl_add_u32 v{A_TB+cp}, v35, 5, v34")
    a.e(f"""
    v_lshlrev_b32 v34, 7, v32
    v_lshl_add_u32 v34, v29, 3, v34
    v_add_u32 v34, s59, v34
    v_lshrrev_b32 v33, 1, v28
    v_and_b32 v35, 1, v27
    v_lshl_add_u32 v33, v35, 1, v33
    """)
    for t in range(4):
        a.e(f"v_xor_b32 v35, {t}, v33")
        a.e(f"v_lshl_add_u32 v{A_KM+t}, v35, 5, v34")
    a.e(f"""
    s_mul_i32 s59, s47, {KC[1]-KC[0]}
    s_add_u32 s59, s59, {KC[0]}
    v_lshrrev_b32 v33, 1, v27
    v_lshlrev_b32 v33, 7, v33
    v_lshl_add_u32 v33, v26, 3, v33
    v_and_b32 v34, 1, v27
    v_lshl_add_u32 v33, v34, 2, v33
    v_lshl_add_u32 v{A_C0}, v33, 1, s59          ; tile 0
    v_lshlrev_b32 v33, 6, v27
    v_cmp_gt_u32 vcc, 2, v27
    v_lshlrev_b32 v34, 2, v26
    v_lshlrev_b32 v35, 1, v26
    v_cndmask_b32 v34, v35, v34, vcc
    v_add_u32 v33, v33, v34
    v_add_u32 v33, 256, v33
    v_mov_b32 v34, 32
    v_mov_b32 v35, 2
    v_cndmask_b32 v34, v34, v35, vcc
    v_add_u32 v34, v33, v34
    v_lshl_add_u32 v{A_C1A}, v33, 1, s59
    v_lshl_add_u32 v{A_C1B}, v34, 1, s59
    v_lshl_add_u32 v33, v27, 6, v26
    v_add_u32 v33, 512, v33
    v_lshl_add_u32 v{A_C2}, v33, 1, s59          ; tile 2
    v_lshlrev_b32 v33, 4, v0
    v_add_u32 v{A_DW}, 16, v33
    v_mov_b32 v{A_ER0}, v33
    v_lshlrev_b32 v34, 3, v0
    v_add_u32 v{A_ER1}, 256, v34
    s_cmp_eq_u32 s39, 1
    s_cbranch_scc0 L_a_ad1
    v_lshlrev_b32 v34, 2, v0
    v_add_u32 v{A_ER0}, 512, v34
    """)
    a.label("L_a_ad1")
    a.e(f"""
    s_cmp_ge_u32 s39, 2
    s_cbranch_scc0 L_a_ad2
    v_add_u32 v34, 384, v0
    v_lshlrev_b32 v{A_ER0}, 1, v34
    """)
    a.label("L_a_ad2")
    a.e(f"""
    v_mov_b32 v{A_ZU}, v33
    v_lshrrev_b32 v34, 2, v0
    v_mul_u32_u24 v34, 4160, v34
    v_and_b32 v35, 3, v0
    v_lshl_add_u32 v{A_ZC}, v35, 4, v34
    v_mul_u32_u24 v34, {KD[1]-KD[0]}, v0
    v_add_u32 v{A_ZG}, {KD[0]}, v34
    ; copies
    v_mov_b32 v{A_CR}, v33
    v_add_u32 v{A_CW}, 64, v33
    v_lshrrev_b32 v34, 7, v0                     ; cch
    v_add_u32 v35, s50, v34
    v_lshlrev_b32 v35, 12, v35
    v_lshl_add_u32 v35, v2, 4, v35
    v_add_u32 v{A_UG}, {UT}, v35
    v_lshrrev_b32 v35, 2, v2
    v_mul_u32_u24 v35, 80, v35
    v_and_b32 v36, 3, v2
    v_lshl_add_u32 v35, v36, 4, v35
    v_mul_u32_u24 v34, {UR[1]-UR[0]}, v34
    v_add_u32 v{A_UL}, v35, v34
    v_lshrrev_b32 v34, 3, v1
    v_lshlrev_b32 v34, 7, v34
    v_and_b32 v35, 7, v1
    v_lshl_add_u32 v34, v35, 2, v34
    s_lshl_b32 s58, s40, 10
    s_add_u32 s58, s58, {UTF}
    v_add_u32 v{A_FU}, s58, v34
    v_lshrrev_b32 v34, 3, v30
    v_lshlrev_b32 v34, 7, v34
    v_lshl_add_u32 v34, v35, 2, v34
    s_lshl_b32 s58, s40, 9
    s_add_u32 s58, s58, {YTF}
    v_add_u32 v{A_FY}, s58, v34
    s_lshl_b32 s57, s41, 1
    s_add_u32 s57, s57, s48
    s_lshr_b32 s59, s57, 3
    s_lshl_b32 s59, s59, 7
    s_and_b32 s57, s57, 7
    s_lshl_b32 s57, s57, 2
    s_add_u32 s57, s57, s59
    s_lshl_b32 s59, s40, 10
    s_add_u32 s57, s57, s59
    s_add_u32 s57, s57, {UTF}
    v_mov_b32 v{A_FUS}, s57
    s_lshr_b32 s59, s41, 3
    s_lshl_b32 s59, s59, 7
    s_and_b32 s57, s41, 7
    s_lshl_b32 s57, s57, 2
    s_add_u32 s57, s57, s59
    s_add_u32 s57, s57, s58
    v_mov_b32 v{A_FYS}, s57
    ; conv A: copy cc = (3 - i) & 3 ; CP[c] + cc*4160 + 2*(i + cc + 9 - 8hh) + w2*1024
    v_sub_u32 v34, 3, v30
    v_and_b32 v34, 3, v34
    v_mul_u32_u24 v35, 4160, v34
    v_add_u32 v36, v30, v34
    v_add_u32 v36, 9, v36
    v_lshlrev_b32 v37, 3, v31
    v_sub_u32 v36, v36, v37
    v_lshl_add_u32 v35, v36, 1, v35
    s_mul_i32 s57, s47, {CP[1]-CP[0]}
    s_lshl_b32 s58, s48, 10
    s_add_u32 s57, s57, s58
    s_add_u32 s57, s57, {CP[0]}
    v_add_u32 v{A_VA}, s57, v35
    ; conv B: UR[c] + (31 - a)*80 + 16 - 16hh + w2*1280
    v_sub_u32 v35, 31, v30
    v_mul_u32_u24 v35, 80, v35
    v_lshlrev_b32 v36, 4, v31
    v_sub_u32 v35, v35, v36
    v_add_u32 v35, 16, v35
    s_mul_i32 s57, s47, {UR[1]-UR[0]}
    s_mul_i32 s58, s48, {16*80}
    s_add_u32 s57, s57, s58
    s_add_u32 s57, s57, {UR[0]}
    v_add_u32 v{A_VB}, s57, v35
    v_mul_u32_u24 v35, 144, v30
    v_lshl_add_u32 v35, v31, 4, v35
    s_mul_i32 s57, s39, {64*144}
    v_add_u32 v{A_PW}, s57, v35
    v_lshrrev_b32 v35, 2, v0
    v_mul_u32_u24 v35, 144, v35
    v_and_b32 v36, 3, v0
    v_lshl_add_u32 v{A_OR}, v36, 5, v35
    s_lshl_b32 s57, s50, 12
    s_add_u32 s57, s57, {YT}
    v_lshl_add_u32 v{A_YG}, v0, 4, s57
    v_lshlrev_b32 v35, 2, v4
    v_add_u32 v35, s49, v35
    v_lshlrev_b32 v35, 12, v35
    v_lshl_add_u32 v35, v3, 3, v35
    s_lshl_b32 s59, s41, 7
    s_add_u32 s59, s59, {YT}
    v_add_u32 v{A_YL}, s59, v35
    v_add_u32 v{A_YL+1}, 4096, v{A_YL}
    v_add_u32 v{A_YL+2}, 8192, v{A_YL}
    v_add_u32 v{A_YL+3}, 12288, v{A_YL}
    v_lshlrev_b32 v35, 1, v6
    v_sub_u32 v{A_OUT}, v35, v7
    """)
    if cfg.touch:
        K.a_touch_setup(a, cfg)
    a.e("s_waitcnt vmcnt(0) lgkmcnt(0)")
    st(2)
    if cfg.prioA and cfg.late_prio: a.e(f"s_setprio {cfg.prioA}")
    if cfg.x_exit == "params":
        K.stamps_out(a, cfg, 14)
        a.e("s_branch L_end")
    a.e(f"""
    global_load_dwordx2 v[16:17], v202, s[8:9] {cfg.aldfl}
    global_load_dwordx2 v[18:19], v202, s[8:9] offset:1024 {cfg.aldfl}
    global_load_dwordx2 v[20:21], v202, s[8:9] offset:2048 {cfg.aldfl}
    global_load_dwordx2 v[22:23], v202, s[8:9] offset:3072 {cfg.aldfl}
    global_load_dwordx2 v[24:25], v203, s[24:25]
    """)
    nt2 = 0; nt3 = 0
    if cfg.uttouch:
        a.e(f"""
        s_cmp_lg_u32 s39, 2
        s_cbranch_scc1 L_a_nout0
        v_add_u32 v26, s49, v1
        v_lshlrev_b32 v26, 12, v26
        s_sub_u32 s57, 31, s41
        s_lshl_b32 s57, s57, 7
        s_add_u32 s57, s57, {UT}
        v_add_u32 v26, s57, v26
        global_load_dword v255, v26, s[36:37]
        """)
        a.label("L_a_nout0")
    a.e(f"""
    s_cmp_eq_u32 s39, 3
    s_cbranch_scc0 L_a_nopt
    global_load_dword v253, v{A_FU}, s[36:37] sc1
    global_load_dword v254, v{A_FY}, s[36:37] sc1
    """)
    a.label("L_a_nopt")
    nt3 += 2
    if cfg.touch:
        if not cfg.x_notouch1:
            K.a_touch(a, cfg, {2: ["x1"], 3: ["q47"]})
            nt2 += 1; nt3 += 1
    a.vm = []
    def a1_write():
        a.e(f"""
        s_cmp_eq_u32 s39, 2
        s_cbranch_scc1 L_a_uw2
        s_cmp_eq_u32 s39, 3
        s_cbranch_scc1 L_a_uw3
        s_waitcnt vmcnt(0)
        s_branch L_a_uwd
        """)
        a.label("L_a_uw2")
        a.e(f"s_waitcnt vmcnt({nt2})")
        a.e("s_branch L_a_uwd")
        a.label("L_a_uw3")
        a.e(f"s_waitcnt vmcnt({nt3})")
        a.label("L_a_uwd")
        a.e("""
        s_mov_b32 s57, 0x05040100
        s_mov_b32 s58, 0x07060302
        """)
        for e in range(4):
            sel = "s57" if e % 2 == 0 else "s58"
            h = e // 2
            a.e(f"v_perm_b32 v{32+2*e}, v{20+h}, v{22+h}, {sel}")
            a.e(f"v_perm_b32 v{33+2*e}, v{16+h}, v{18+h}, {sel}")
            a.e(f"ds_write_b64 v{A_TW}, v[{32+2*e}:{33+2*e}] offset:{e*144}")
    def a1_store():
        a.e("""
        s_cmp_ge_u32 s39, 2
        s_cbranch_scc1 L_a_nout
        """)
        for i in range(4):
            a.e(f"ds_read_b128 v[{224+4*i}:{227+4*i}], v{A_TR} offset:{i*8*144}")
        UTA = [A_UT0, A_UT1, 200, 201]
        for i in range(4):
            a.e(f"s_waitcnt lgkmcnt({3-i})")
            a.e(f"global_store_dwordx4 v{UTA[i]}, v[{224+4*i}:{227+4*i}], s[36:37] {cfg.locfl}")
        a.e("global_load_dword v9, v8, s[34:35] sc1")
        a.label("L_a_nout")
        a.vm = []
    def ut_flag():
        a.e(f"""
        s_cmp_ge_u32 s39, 2
        s_cbranch_scc1 L_a_nofl
        s_mov_b32 s61, 0
        """)
        if cfg.dbgN: st(4)
        a.e(f"""
        s_waitcnt vmcnt(0)
        """)
        if cfg.dbgN: st(7)
        a.e(f"""
        v_readfirstlane_b32 s38, v9
        s_cmp_lg_u32 s38, 0
        s_cbranch_scc1 L_a_nok
        """)
        a.label("L_a_npoll")
        a.e(f"""
        global_load_dword v9, v8, s[34:35] sc1
        s_waitcnt vmcnt(0)
        v_readfirstlane_b32 s38, v9
        s_add_u32 s61, s61, 1
        s_cmp_gt_u32 s61, {SPIN}
        s_cbranch_scc1 L_a_nok
        s_cmp_eq_u32 s38, 0
        s_cbranch_scc1 L_a_npoll
        """)
        a.label("L_a_nok")
        if cfg.dbgN:
            st(5); K.stampval(a, cfg, 6, "s61")
        a.e(f"""
        s_getreg_b32 s57, hwreg(HW_REG_XCC_ID)
        s_and_b32 s57, s57, 7
        s_and_b32 s58, s38, 0xfffffff8
        s_or_b32 s57, s57, s58
        v_mov_b32 v9, s57
        s_mov_b64 exec, 1
        global_store_dword v{A_FUS}, v9, s[36:37]
        s_mov_b64 exec, -1
        """)
        a.label("L_a_nofl")
        a.vm = []

    def gate():
        a.e(f"""
        s_cmp_lg_u32 s39, 3
        s_cbranch_scc1 L_a_gate_go
        s_lshl_b32 s57, s40, 8
        s_lshl_b32 s58, s41, 2
        s_add_u32 s57, s57, s58
        s_add_u32 s57, s57, {K.BDN}
        v_mov_b32 v28, s57
        v_mov_b32 v29, 0
        s_mov_b32 s61, 0
        """)
        a.label("L_a_gate_poll")
        a.e(f"""
        global_load_dword v30, v28, s[36:37] sc1
        global_load_dword v31, v29, s[34:35] sc1
        s_add_u32 s61, s61, 1
        s_waitcnt vmcnt(0)
        v_cmp_ne_u32 vcc, v30, v31
        v_cmp_eq_u32 s[64:65], 0, v31
        s_or_b64 vcc, vcc, s[64:65]
        s_cmp_gt_u32 s61, {cfg.gate_max}
        s_cbranch_scc1 L_a_gate_go
        s_cbranch_vccz L_a_gate_go
        s_sleep 2
        s_branch L_a_gate_poll
        """)
        a.label("L_a_gate_go")
        a.e("s_barrier")
    LOG2E = fhex(1.4426950408889634); INV2PI = fhex(0.15915494309189535)
    a.e(f"""
    s_lshr_b32 s59, s56, 16
    s_and_b32 s60, s56, 0xffff
    s_cmp_eq_u32 s47, 0
    s_cselect_b32 s59, s60, s59
    s_lshl_b32 s59, s59, 16
    v_mov_b32 v28, s59
    v_mul_f32 v29, {LOG2E}, v28
    v_mov_b32 v30, {LOG2E}
    v_fma_f32 v30, v28, v30, -v29
    v_fmac_f32 v30, 0x32a57060, v28
    v_exp_f32 v29, v29
    v_mul_f32 v30, {fhex(0.6931471805599453)}, v30
    v_fma_f32 v29, v29, v30, v29
    v_cvt_pk_bf16_f32 v29, v29, v29
    v_lshlrev_b32 v29, 16, v29
    """)
    for i in range(6): a.e(f"v_lshlrev_b32 v{10+i}, 16, v{10+i}")
    a.e(f"""
    v_mul_f32 v10, v29, v10          ; a_re
    v_mul_f32 v11, v29, v11          ; a_im
    v_mul_f32 v12, v29, v12          ; dB_re
    v_mul_f32 v13, v29, v13          ; dB_im
    v_mul_f32 v10, {LOG2E}, v10      ; ar2
    v_mul_f32 v11, {INV2PI}, v11     ; ai2
    """)
    P = {}
    nxtp = [50]
    def pair(name):
        P[name] = nxtp[0]; nxtp[0] += 2
        return P[name]
    TMP = [28, 30]
    ti = [0]
    def mul(dn, xn, yn):
        d = P.get(dn) or pair(dn)
        t = TMP[ti[0] % 2]; ti[0] += 1
        if cfg.x_tab and ti[0] % 2 == 0: return
        cmul(a, d, P[xn], P[yn], t)
    pair("X0"); cmul(a, P["X0"], 14, 12, 28)
    for x in (1, 8, 128, 256, 512, 1024):
        d = pair(f"E{x}")
        if x == 1:
            a.e(f"v_exp_f32 v6, v10")
            a.e(f"v_fract_f32 v7, v11")
        else:
            a.e(f"v_mul_f32 v6, {fhex(float(x))}, v10")
            a.e(f"v_mul_f32 v7, {fhex(float(x))}, v11")
            a.e(f"v_exp_f32 v6, v6")
            a.e(f"v_fract_f32 v7, v7")
        a.e(f"v_cos_f32 v26, v7")
        a.e(f"v_sin_f32 v27, v7")
        a.e(f"v_mul_f32 v{d}, v6, v26")
        a.e(f"v_mul_f32 v{d+1}, v6, v27")
    if cfg.dbgT: st(4)
    OUT = [120, 128]
    oc = [0]
    def put_chunk(q, names, neg):
        o = OUT[oc[0] % 2]; oc[0] += 1
        sg = "-" if neg else ""
        for m in range(4):
            x, y = P[names[2*m]], P[names[2*m+1]]
            a.e(f"v_cvt_pk_bf16_f32 v{o+m}, v{x}, v{y}")
            a.e(f"v_cvt_pk_bf16_f32 v{o+4+m}, {sg}v{x+1}, {sg}v{y+1}")
        ad = A_TB + (q >> 1)
        if not cfg.x_nowrite:
            a.e(f"ds_write_b128 v{ad}, v[{o}:{o+3}] offset:{(q & 1)*16}")
            a.e(f"ds_write_b128 v{ad}, v[{o+4}:{o+7}] offset:{128 + (q & 1)*16}")
    pair("ONE")
    a.e(f"v_mov_b32 v{P['ONE']}, 1.0")
    a.e(f"v_mov_b32 v{P['ONE']+1}, 0")
    for k in range(8): pair(f"S{k}")
    for k in range(1, 8):
        mul(f"X{k}", f"X{k-1}", "E1")
    put_chunk(0, [f"X{k}" for k in range(8)], True)
    P["Y8"] = P["E8"]
    mul("Y16", "Y8", "Y8"); mul("Y24", "Y16", "Y8"); mul("Y32", "Y16", "Y16")
    mul("Y40", "Y32", "Y8"); mul("Y48", "Y32", "Y16"); mul("Y56", "Y32", "Y24")
    put_chunk(6, ["ONE", "Y8", "Y16", "Y24", "Y32", "Y40", "Y48", "Y56"], False)
    if cfg.dbgT: st(6)
    mul("S0", "Y32", "Y32")
    for jj in range(1, 8): mul(f"S{jj}", "S0", f"Y{8*jj}")
    put_chunk(7, [f"S{k}" for k in range(8)], False)
    for k in range(8): mul(f"S{k}", f"X{k}", "E128")
    put_chunk(1, [f"S{k}" for k in range(8)], True)
    if cfg.mid_u:
        a1_write()
        a.e("s_waitcnt lgkmcnt(0)")
        a.e("s_barrier")
        a1_store()
    for i_, k in enumerate((0, 2, 4, 6)):
        mul(f"S{i_}", f"X{k}", "E256")
    for i_ in range(4):
        mul(f"S{4+i_}", f"S{i_}", "E128")
    put_chunk(2, [f"S{k}" for k in range(8)], True)
    mul("S0", "X0", "E512"); mul("S1", "X4", "E512")
    for i_ in range(2, 8): mul(f"S{i_}", f"S{i_-2}", "E128")
    put_chunk(3, [f"S{k}" for k in range(8)], True)
    mul("S0", "X0", "E1024")
    for i_ in range(1, 8): mul(f"S{i_}", f"S{i_-1}", "E128")
    pair("XL"); mul("XL", "S0", "E1024")
    put_chunk(4, [f"S{k}" for k in range(8)], True)
    a.e(f"v_cvt_pk_bf16_f32 v120, v{P['XL']}, -v{P['XL']+1}")
    a.e(f"ds_write_b16 v{A_TB+2}, v120 offset:16")
    a.e(f"ds_write_b16_d16_hi v{A_TB+2}, v120 offset:{128+16}")
    assert nxtp[0] <= 120, nxtp
    if cfg.mid_u: ut_flag()
    else: a1_write()
    if cfg.dbgT: st(7)
    a.e("s_waitcnt lgkmcnt(0)")
    if cfg.dbgT: st(8)
    a.e("s_barrier")
    st(3)
    if cfg.x_exit == "tables":
        K.stamps_out(a, cfg, 14)
        a.e("s_branch L_end")
    if not cfg.mid_u: a1_store()
    def look_issue():
        a.e(f"""
        s_cmp_lg_u32 s39, 0
        s_cbranch_scc1 L_a_uf0
        global_load_dword v30, v{A_FU}, s[36:37] sc1
        """)
        a.label("L_a_uf0")
    if cfg.mid_u: look_issue()
    if cfg.touch:
        K.a_touch(a, cfg, {2: ["k"]})
    if cfg.gate == 1: gate()
    YF, XF, D0 = 32, 64, 128
    def trfrag(dst, addr, s):
        a.e(f"ds_read_b64_tr_b16 v[{dst}:{dst+1}], v{addr} offset:{s*4096}")
        a.e(f"ds_read_b64_tr_b16 v[{dst+2}:{dst+3}], v{addr} offset:{s*4096 + 512}")
    a.e("""
    s_cmp_eq_u32 s48, 0
    s_cbranch_scc0 L_a_k2
    """)
    a.lg = []
    for s in range(8):
        trfrag(YF+4*s, A_KM+3, s)
        for t in range(2): trfrag(XF+32*t+4*s, A_KM+t, s)
    for s in range(8):
        a.e(f"s_waitcnt lgkmcnt({min(15, 6*(7-s))})")
        for t in range(2):
            c = "0" if s == 0 else f"v[{D0+4*t}:{D0+4*t+3}]"
            a.e(f"v_mfma_f32_16x16x32_bf16 v[{D0+4*t}:{D0+4*t+3}], v[{XF+32*t+4*s}:{XF+32*t+4*s+3}], v[{YF+4*s}:{YF+4*s+3}], {c}")
    a.e(f"""
    v_cvt_pk_bf16_f32 v136, v{D0}, v{D0+1}
    v_cvt_pk_bf16_f32 v137, v{D0+2}, v{D0+3}
    v_cvt_pk_bf16_f32 v138, v{D0+4}, v{D0+5}
    v_cvt_pk_bf16_f32 v139, v{D0+6}, v{D0+7}
    ds_write_b64 v{A_C0}, v[136:137]
    ds_write_b32 v{A_C1A}, v138
    ds_write_b32 v{A_C1B}, v139
    s_branch L_a_kdone
    """)
    a.label("L_a_k2")
    for s in range(8):
        trfrag(YF+4*s, A_KM+3, s)
        trfrag(XF+4*s, A_KM+2, s)
    for s in range(8):
        a.e(f"s_waitcnt lgkmcnt({min(15, 4*(7-s))})")
        c = "0" if s == 0 else f"v[{D0}:{D0+3}]"
        a.e(f"v_mfma_f32_16x16x32_bf16 v[{D0}:{D0+3}], v[{XF+4*s}:{XF+4*s+3}], v[{YF+4*s}:{YF+4*s+3}], {c}")
    a.e(f"""
    v_cvt_pk_bf16_f32 v136, v{D0}, v{D0+1}
    v_cvt_pk_bf16_f32 v137, v{D0+2}, v{D0+3}
    ds_write_b16 v{A_C2}, v136
    ds_write_b16_d16_hi v{A_C2}, v136 offset:32
    ds_write_b16 v{A_C2}, v137 offset:64
    ds_write_b16_d16_hi v{A_C2}, v137 offset:96
    """)
    a.label("L_a_kdone")
    def look_check(issue):
        a.e(f"""
        s_cmp_lg_u32 s39, 0
        s_cbranch_scc1 L_a_uf1
        """)
        if issue: a.e(f"global_load_dword v30, v{A_FU}, s[36:37] sc1")
        a.e(f"""
        s_and_b32 s58, s38, 0xfffffff8
        s_getreg_b32 s57, hwreg(HW_REG_XCC_ID)
        s_and_b32 s57, s57, 7
        s_or_b32 s59, s57, s58
        s_waitcnt vmcnt(0)
        v_cmp_ne_u32 vcc, s59, v30
        s_cmp_eq_u64 vcc, 0
        s_cselect_b32 s57, 1, 0
        v_mov_b32 v31, s57
        v_mov_b32 v30, 0
        ds_write_b32 v30, v31 offset:{NONCE_LDS+8}
        ds_write_b32 v30, v31 offset:{NONCE_LDS+4}
        """)
        a.label("L_a_uf1")
    def ready_loads():
        a.e(f"""
        v_mov_b32 v30, 0
        ds_read_b32 v31, v30 offset:{NONCE_LDS+8}
        s_waitcnt lgkmcnt(0)
        v_readfirstlane_b32 s44, v31
        s_cmp_eq_u32 s44, 0
        s_cbranch_scc1 L_a_ul0
        global_load_dwordx4 v[208:211], v{A_UG}, s[36:37] sc1
        global_load_dwordx4 v[212:215], v{A_UG}, s[36:37] offset:2048 sc1
        """)
        a.label("L_a_ul0")
    if cfg.mid_u: look_check(False)
    else: ut_flag()
    if cfg.touch:
        K.a_touch(a, cfg, {3: ["v"]})
    a.e(f"""
    s_mov_b32 s57, 0x01000100
    s_mov_b32 s58, 0x03020302
    s_mov_b32 s59, 0x05040302
    s_mov_b32 s63, 0x05040100
    v_mov_b32 v48, 0
    v_mov_b32 v49, 0
    v_mov_b32 v50, 0
    v_mov_b32 v51, 0
    s_waitcnt lgkmcnt(0)
    s_barrier
    """)
    a.lg = []
    if cfg.mid_u: ready_loads()
    if not (cfg.dbgT or cfg.dbgY or cfg.dbgN): st(4)
    a.e("""
    s_cmp_eq_u32 s39, 0
    s_cbranch_scc1 L_a_e0
    s_cmp_eq_u32 s39, 1
    s_cbranch_scc1 L_a_e2
    """)
    for c in range(2):
        a.e(f"ds_read_u16 v{32+2*c}, v{A_ER0} offset:{KC[c]}")
        a.e(f"ds_read_u16 v{33+2*c}, v{A_ER0} offset:{KC[c]+2}")
    a.e(f"""
    v_and_b32 v28, 1, v0
    v_cmp_eq_u32 vcc, 0, v28
    s_waitcnt lgkmcnt(0)
    """)
    for c in range(2):
        c0, c1 = 32+2*c, 33+2*c
        o = 40 + 4*c
        a.e(f"v_perm_b32 v{o}, v{c1}, v{c0}, s57")
        a.e(f"v_perm_b32 v{o+3}, v{c0}, v{c1}, s57")
        a.e(f"v_perm_b32 v{o+2}, v{c1}, v{c0}, s63")
        a.e(f"v_mov_b32 v{o+1}, v{o}")
        a.e(f"v_cndmask_b32 v{o+2}, v{o+3}, v{o+2}, vcc")
    a.e("s_branch L_a_ew")
    a.label("L_a_e2")
    for c in range(2):
        a.e(f"ds_read_b32 v{32+2*c}, v{A_ER0} offset:{KC[c]}")
        a.e(f"ds_read_b32 v{33+2*c}, v{A_ER0} offset:{KC[c]+4}")
    a.e("s_waitcnt lgkmcnt(0)")
    for c in range(2):
        A_, B_ = 32+2*c, 33+2*c
        o = 40 + 4*c
        a.e(f"v_perm_b32 v{o}, v{A_}, v{A_}, s57")
        a.e(f"v_mov_b32 v{o+1}, v{A_}")
        a.e(f"v_perm_b32 v{o+2}, v{A_}, v{A_}, s58")
        a.e(f"v_perm_b32 v{o+3}, v{B_}, v{B_}, s57")
    a.e("s_branch L_a_ew")
    a.label("L_a_e0")
    for c in range(2):
        a.e(f"ds_read_b128 v[{40+4*c}:{43+4*c}], v{A_ER0} offset:{KC[c]}")
        a.e(f"ds_read_b64 v[{32+4*c}:{33+4*c}], v{A_ER1} offset:{KC[c]}")
        a.e(f"ds_read_b32 v{34+4*c}, v{A_ER1} offset:{KC[c]+8}")
    a.e("""
    v_cmp_le_u32 vcc, 32, v0
    s_waitcnt lgkmcnt(0)
    """)
    for c in range(2):
        A_, B_, C_ = 32+4*c, 33+4*c, 34+4*c
        o = 40 + 4*c
        a.e(f"v_perm_b32 v52, v{A_}, v{A_}, s57")
        a.e(f"v_perm_b32 v53, v{B_}, v{A_}, s59")
        a.e(f"v_perm_b32 v54, v{B_}, v{B_}, s57")
        a.e(f"v_perm_b32 v55, v{C_}, v{B_}, s59")
        for q in range(4):
            a.e(f"v_cndmask_b32 v{o+q}, v{o+q}, v{52+q}, vcc")
    a.label("L_a_ew")
    for c in range(2):
        a.e(f"ds_write_b128 v{A_DW}, v[{40+4*c}:{43+4*c}] offset:{KD[c]}")
    a.e(f"""
    v_cmp_gt_u32 vcc, 160, v0
    s_and_b64 exec, exec, vcc
    ds_write_b128 v{A_ZU}, v[48:51] offset:{UR[0] + 64*80}
    ds_write_b128 v{A_ZU}, v[48:51] offset:{UR[1] + 64*80}
    v_cmp_gt_u32 vcc, 32, v0
    s_and_b64 exec, exec, vcc
    ds_write_b128 v{A_ZC}, v[48:51] offset:{CP[0]}
    v_cmp_gt_u32 vcc, 2, v0
    s_and_b64 exec, exec, vcc
    ds_write_b128 v{A_ZG}, v[48:51]
    s_mov_b64 exec, -1
    """)
    if not cfg.mid_u: look_check(True)
    a.e("""
    s_waitcnt lgkmcnt(0)
    s_barrier
    """)
    if not cfg.mid_u: ready_loads()
    a.vm = []
    if not (cfg.dbgT or cfg.dbgY or cfg.dbgN): st(5)
    for c in range(2):
        b = 32 + 16*c
        a.e(f"ds_read_b64 v[{b}:{b+1}], v{A_CR} offset:{KD[c] + 8}")
        a.e(f"ds_read_b128 v[{b+4}:{b+7}], v{A_CR} offset:{KD[c] + 16}")
    for c in range(2):
        a.e(f"s_waitcnt lgkmcnt({2 - 2*c})" if c == 0 else "s_waitcnt lgkmcnt(4)")
        b = 32 + 16*c
        n0, n1, n2, n3, n4, n5 = b, b+1, b+4, b+5, b+6, b+7
        m = b + 8
        t1 = 96 + 8*c
        base = CP[c]
        a.e(f"ds_write_b128 v{A_CW}, v[{n2}:{n5}] offset:{base}")
        a.e(f"v_alignbit_b32 v{m}, v{n1}, v{n0}, 16")
        for q, (hi, lo) in enumerate(((n2, n1), (n3, n2), (n4, n3))):
            a.e(f"v_alignbit_b32 v{m+1+q}, v{hi}, v{lo}, 16")
        a.e(f"ds_write_b128 v{A_CW}, v[{m}:{m+3}] offset:{base + 3*4160}")
        for q, (hi, lo) in enumerate(((n2, n1), (n3, n2), (n4, n3), (n5, n4))):
            a.e(f"v_alignbit_b32 v{t1+q}, v{hi}, v{lo}, 16")
        a.e(f"ds_write_b128 v{A_CW}, v[{t1}:{t1+3}] offset:{base + 4160}")
        for q, r in enumerate((n1, n2, n3, n4)): a.e(f"v_mov_b32 v{t1+4+q}, v{r}")
        a.e(f"ds_write_b128 v{A_CW}, v[{t1+4}:{t1+7}] offset:{base + 2*4160}")
    if not (cfg.dbgT or cfg.dbgY or cfg.dbgN): st(6)
    a.e(f"""
    s_cmp_lg_u32 s44, 0
    s_cbranch_scc1 L_a_fast
    s_cmp_ge_u32 s39, 2
    s_cbranch_scc1 L_a_utf_go
    s_and_b32 s58, s38, 0xfffffff8
    s_getreg_b32 s57, hwreg(HW_REG_XCC_ID)
    s_and_b32 s57, s57, 7
    s_or_b32 s59, s57, s58
    s_mov_b32 s61, 0
    v_add_u32 v28, 8192, v{A_FU}
    """)
    a.label("L_a_utf_poll")
    a.e(f"""
    global_load_dword v30, v{A_FU}, s[36:37] sc1
    global_load_dword v31, v28, s[36:37] sc1
    s_add_u32 s61, s61, 1
    s_waitcnt vmcnt(0)
    v_cmp_ne_u32 vcc, s59, v30
    s_cmp_eq_u64 vcc, 0
    s_cbranch_scc1 L_a_utf_local
    v_cmp_ne_u32 s[64:65], s58, v31
    s_and_b64 vcc, vcc, s[64:65]
    s_cbranch_vccz L_a_utf_glob
    s_cmp_eq_u32 s61, {cfg.ut_patience}
    s_cbranch_scc0 L_a_utf_again
    s_mov_b32 s60, 0
    """)
    a.label("L_a_utf_pub")
    a.e(f"""
    global_store_dwordx4 v{A_UT0}, v[224:227], s[36:37] sc1
    global_store_dwordx4 v{A_UT1}, v[228:231], s[36:37] sc1
    global_store_dwordx4 v200, v[232:235], s[36:37] sc1
    global_store_dwordx4 v201, v[236:239], s[36:37] sc1
    s_waitcnt vmcnt(0)
    v_add_u32 v29, 8192, v{A_FUS}
    v_mov_b32 v30, s58
    s_mov_b64 exec, 1
    global_store_dword v29, v30, s[36:37] sc1
    s_mov_b64 exec, -1
    s_cmp_lg_u32 s60, 0
    s_cbranch_scc1 L_a_utf_glob2
    """)
    a.label("L_a_utf_again")
    a.e(f"""
    s_cmp_gt_u32 s61, {SPIN}
    s_cbranch_scc1 L_a_utf_glob2
    s_sleep {cfg.sl_ut}
    s_branch L_a_utf_poll
    """)
    a.label("L_a_utf_local")
    a.e("s_mov_b32 s57, 1")
    a.e("s_branch L_a_utf_ok")
    a.label("L_a_utf_glob")
    a.e(f"""
    s_mov_b32 s60, 1
    s_cmp_lt_u32 s61, {cfg.ut_patience}
    s_cbranch_scc1 L_a_utf_pub
    s_cmp_eq_u32 s61, {cfg.ut_patience}
    s_cbranch_scc1 L_a_utf_pub
    """)
    a.label("L_a_utf_glob2")
    a.e("s_mov_b32 s57, 0")
    a.label("L_a_utf_ok")
    a.e(f"""
    v_mov_b32 v31, s57
    v_mov_b32 v30, 0
    ds_write_b32 v30, v31 offset:{NONCE_LDS+4}
    """)
    a.label("L_a_utf_go")
    a.e(f"""
    s_waitcnt lgkmcnt(0)
    s_barrier
    global_load_dwordx4 v[208:211], v{A_UG}, s[36:37] sc1
    global_load_dwordx4 v[212:215], v{A_UG}, s[36:37] offset:2048 sc1
    """)
    a.label("L_a_fast")
    a.e(f"""
    v_mov_b32 v30, 0
    ds_read_b32 v31, v30 offset:{NONCE_LDS+4}
    """)
    for e in range(4):
        h, hi = e // 2, e % 2
        a.e(f"v_{'and_b32' if hi else 'lshlrev_b32'} v{80+e}, {'0xffff0000' if hi else '16'}, v{24+h}")
    for rho in range(4):
        for e in range(4):
            h, hi = e // 2, e % 2
            a.e(f"v_{'and_b32' if hi else 'lshlrev_b32'} v{96+4*rho+e}, {'0xffff0000' if hi else '16'}, v{16+2*rho+h}")
            a.e(f"v_mul_f32 v{96+4*rho+e}, v{96+4*rho+e}, v{80+e}")
        for h in range(2):
            a.e(f"v_cvt_pk_bf16_f32 v{84+h}, v{96+4*rho+2*h}, v{96+4*rho+2*h+1}")
        for h in range(2):
            a.e(f"v_lshlrev_b32 v{96+4*rho+2*h}, 16, v{84+h}")
            a.e(f"v_and_b32 v{96+4*rho+2*h+1}, 0xffff0000, v{84+h}")
    a.e("s_waitcnt vmcnt(0) lgkmcnt(0)")
    a.e("v_readfirstlane_b32 s46, v31")
    if cfg.yglobal: a.e("s_mov_b32 s46, 0")
    a.vm = []
    if not (cfg.dbgT or cfg.dbgY or cfg.dbgN): st(7)
    a.e(f"""
    ds_write_b128 v{A_UL}, v[208:211] offset:{UR[0]}
    ds_write_b128 v{A_UL}, v[212:215] offset:{UR[0] + 32*80}
    s_waitcnt lgkmcnt(0)
    s_barrier
    """)
    if not (cfg.dbgT or cfg.dbgY or cfg.dbgN): st(8)
    a.e(f"s_setprio {cfg.prioA2}")
    if cfg.touch:
        K.a_touch(a, cfg, {3: ["o"]})
    if cfg.ytouch:
        a.e(f"""
        s_cmp_lg_u32 s39, 2
        s_cbranch_scc1 L_a_noyt
        s_lshl_b32 s57, s50, 12
        s_add_u32 s57, s57, {YT}
        v_lshl_add_u32 v28, v1, 7, s57
        global_load_dword v252, v28, s[36:37]
        """)
        a.label("L_a_noyt")
    if cfg.x_exit == "prep":
        K.stamps_out(a, cfg, 14)
        a.e("s_branch L_end")
    if cfg.gate == 2: gate()
    ACC0, ACC1 = 128, 144
    NB = 3
    FR = [32 + 16*i for i in range(NB)]
    steps = [(dl, hf) for dl in range(16) for hf in range(2)]
    def rd(i):
        dl, hf = steps[i]
        f = FR[i % NB]
        ao = 64*dl + 32*(1-hf)
        bo = 80*dl + 32*(1-hf)
        t = f"cv{i}"
        return [(f"ds_read_b64 v[{f}:{f+1}], v{A_VA} offset:{ao}", t),
                (f"ds_read_b64 v[{f+2}:{f+3}], v{A_VA} offset:{ao+8}", t),
                (f"ds_read_b128 v[{f+8}:{f+11}], v{A_VB} offset:{bo+2560}", t),
                (f"ds_read_b128 v[{f+12}:{f+15}], v{A_VB} offset:{bo}", t),
                (f"ds_read_b64 v[{f+4}:{f+5}], v{A_VA} offset:{ao+2048}", t),
                (f"ds_read_b64 v[{f+6}:{f+7}], v{A_VA} offset:{ao+2056}", t)]
    a.lg = []
    for i in (0, 1):
        for t, tg in rd(i): a.e(t, lg=tg)
    for i in range(cfg.x_conv):
        f = FR[i % NB]
        a.wait_lg(f"cv{i}")
        c0 = "0" if i == 0 else f"v[{ACC0}:{ACC0+15}]"
        c1 = "0" if i == 0 else f"v[{ACC1}:{ACC1+15}]"
        R = rd(i + 2) if i + 2 < cfg.x_conv else []
        a.e(f"v_mfma_f32_32x32x16_bf16 v[{ACC0}:{ACC0+15}], v[{f}:{f+3}], v[{f+8}:{f+11}], {c0}")
        for t, tg in R[0:2]: a.e(t, lg=tg)
        a.e(f"v_mfma_f32_32x32x16_bf16 v[{ACC1}:{ACC1+15}], v[{f}:{f+3}], v[{f+12}:{f+15}], {c1}")
        for t, tg in R[2:4]: a.e(t, lg=tg)
        a.e(f"v_mfma_f32_32x32x16_bf16 v[{ACC1}:{ACC1+15}], v[{f+4}:{f+7}], v[{f+8}:{f+11}], v[{ACC1}:{ACC1+15}]")
        for t, tg in R[4:6]: a.e(t, lg=tg)
    st(9)
    if cfg.x_exit == "conv":
        K.stamps_out(a, cfg, 14)
        a.e("s_branch L_end")
    if cfg.utclean == 2:
        a.e(f"""
        s_cmp_ge_u32 s39, 2
        s_cbranch_scc1 L_a_nocl2
        global_store_dwordx4 v{A_UT0}, v[224:227], s[36:37] sc1
        global_store_dwordx4 v{A_UT1}, v[228:231], s[36:37] sc1
        global_store_dwordx4 v200, v[232:235], s[36:37] sc1
        global_store_dwordx4 v201, v[236:239], s[36:37] sc1
        s_nop 1
        """)
        a.label("L_a_nocl2")
    a.e(f"s_setprio {cfg.prioA3}")
    a.e("""
    s_waitcnt vmcnt(0) lgkmcnt(0)
    s_barrier
    """)
    for tau, acc in ((0, ACC0), (1, ACC1)):
        for q in range(4):
            a.e(f"ds_write_b128 v{A_PW}, v[{acc+4*q}:{acc+4*q+3}] offset:{YP + tau*32*144 + q*32}")
    a.e("""
    s_waitcnt lgkmcnt(0)
    s_barrier
    """)
    for c in range(2):
        o = YP + (c*2)*64*144
        b = 32 + 16*c
        a.e(f"ds_read_b128 v[{b}:{b+3}], v{A_OR} offset:{o}")
        a.e(f"ds_read_b128 v[{b+8}:{b+11}], v{A_OR} offset:{o + 64*144}")
        a.e(f"ds_read_b128 v[{b+4}:{b+7}], v{A_OR} offset:{o + 16}")
        a.e(f"ds_read_b128 v[{b+12}:{b+15}], v{A_OR} offset:{o + 64*144 + 16}")
    for c in range(2):
        a.e(f"s_waitcnt lgkmcnt({4-4*c})")
        b = 32 + 16*c
        for q in range(8): a.e(f"v_add_f32 v{b+q}, v{b+q}, v{b+8+q}")
        for m in range(4): a.e(f"v_cvt_pk_bf16_f32 v{64+4*c+m}, v{b+2*m}, v{b+2*m+1}")
    a.e(f"""
    v_add_u32 v29, 4096, v{A_YG}
    s_cmp_eq_u32 s46, 0
    s_cbranch_scc1 L_a_yg
    global_store_dwordx4 v{A_YG}, v[64:67], s[36:37] {cfg.locfl}
    global_store_dwordx4 v29, v[68:71], s[36:37] {cfg.locfl}
    s_branch L_a_yd
    """)
    a.label("L_a_yg")
    a.e(f"""
    global_store_dwordx4 v{A_YG}, v[64:67], s[36:37] sc1
    global_store_dwordx4 v29, v[68:71], s[36:37] sc1
    """)
    a.label("L_a_yd")
    a.e(f"""
    s_waitcnt vmcnt(0)
    s_barrier
    """)
    st(10)
    a.e(f"""
    s_cmp_lg_u32 s39, 1
    s_cbranch_scc1 L_a_ytf_go
    v_mov_b32 v28, s38
    s_mov_b64 exec, 1
    s_cmp_eq_u32 s46, 0
    s_cbranch_scc1 L_a_yfg
    global_store_dword v{A_FYS}, v28, s[36:37]
    s_branch L_a_yfd
    """)
    a.label("L_a_yfg")
    a.e(f"global_store_dword v{A_FYS}, v28, s[36:37] sc1")
    a.label("L_a_yfd")
    a.e("s_mov_b64 exec, -1")
    if cfg.dbgY: st(4)
    a.e("s_mov_b32 s61, 0")
    a.label("L_a_ytf_poll")
    a.e(f"""
    global_load_dword v29, v{A_FY}, s[36:37] sc1
    s_add_u32 s61, s61, 1
    s_waitcnt vmcnt(0)
    v_cmp_ne_u32 vcc, s38, v29
    s_cmp_gt_u32 s61, {SPIN}
    s_cbranch_scc1 L_a_ytf_go
    s_cbranch_vccz L_a_ytf_go
    s_sleep {cfg.sl_yt}
    s_branch L_a_ytf_poll
    """)
    a.label("L_a_ytf_go")
    if cfg.dbgY:
        st(5); K.stampval(a, cfg, 7, "s61")
    a.e("s_barrier")
    if cfg.dbgY: st(6)
    a.e(f"""
    global_load_dwordx2 v[64:65], v{A_YL}, s[36:37] sc1
    global_load_dwordx2 v[66:67], v{A_YL+1}, s[36:37] sc1
    global_load_dwordx2 v[68:69], v{A_YL+2}, s[36:37] sc1
    global_load_dwordx2 v[70:71], v{A_YL+3}, s[36:37] sc1
    s_waitcnt vmcnt(0)
    """)
    st(11)
    for rho in range(4):
        m, hi = rho // 2, rho % 2
        for e in range(4):
            src = 64 + 2*e + m
            a.e(f"v_{'and_b32' if hi else 'lshlrev_b32'} v{84+e}, {'0xffff0000' if hi else '16'}, v{src}")
        for e in range(4):
            a.e(f"v_add_f32 v{84+e}, v{84+e}, v{96+4*rho+e}")
        a.e(f"v_cvt_pk_bf16_f32 v{88+2*rho}, v84, v85")
        a.e(f"v_cvt_pk_bf16_f32 v{89+2*rho}, v86, v87")
        if rho == 2: a.e(f"v_add_u32 v{A_OUT}, 4096, v{A_OUT}")
        a.e(f"global_store_dwordx2 v{A_OUT}, v[{88+2*rho}:{89+2*rho}], s[32:33] offset:{2048*(rho % 2)} {cfg.outfl}")
    if cfg.utclean == 1:
        a.e(f"""
        s_cmp_ge_u32 s39, 2
        s_cbranch_scc1 L_a_nocl
        global_store_dwordx4 v{A_UT0}, v[224:227], s[36:37] sc1
        global_store_dwordx4 v{A_UT1}, v[228:231], s[36:37] sc1
        global_store_dwordx4 v200, v[232:235], s[36:37] sc1
        global_store_dwordx4 v201, v[236:239], s[36:37] sc1
        s_nop 1
        """)
        a.label("L_a_nocl")
    a.e("""
    s_cmp_lg_u32 s41, 0
    s_cbranch_scc1 L_a_norst
    s_cmp_lg_u32 s39, 1
    s_cbranch_scc1 L_a_norst
    v_mov_b32 v8, s45
    v_mov_b32 v9, 0
    s_mov_b64 exec, 1
    global_store_dword v8, v9, s[34:35] sc1
    s_mov_b64 exec, -1
    """)
    a.label("L_a_norst")
    st(12)
    K.stampval(a, cfg, 13, "s46")
    K.stamps_out(a, cfg, 14)
```

```python
import sys
from asmlib import Asm, wrap

UT   = 0
YT   = 4 << 20
PQ   = 8 << 20
PQF  = 10 << 20
KVP  = (10 << 20) + (64 << 10)
KVF  = 12 << 20
UTF  = (12 << 20) + (64 << 10)
YTF  = (12 << 20) + (96 << 10)
BDN  = (12 << 20) + (112 << 10)
KVBLK = 2176
LOG2E = 0x3fb8aa3b
EPS   = 0x358637bd
SPIN_LIMIT = 200000

class Cfg:
    do_A = True
    do_B = True
    do_B2 = True
    touch = True
    dual = False
    x_nowrite = False
    prioA = 1
    prioA2 = 0
    dbgT = 0
    wide_out = 1
    codepf = 0
    layout = "BA"
    x_notouch1 = 0
    o_after = 0
    ka_first = 0
    order = "KVQ"
    late_prio = 1
    bfirst = 0
    prioBw = 1
    prioBm = 3
    gate = 0
    gate_max = 40
    x_exit = ""
    x_conv = 32
    x_tab = 0
    x_main = 16
    x_epi = 0
    locfl = ""
    mid_u = 1
    qe_end = 26
    pqflag_g = 14
    dmafl = ""
    aldfl = ""
    zpoll = 0
    sl_ka = 1
    sl_kz = 1
    sl_pq = 1
    sl_red = 1
    sl_yt = 1
    sl_ut = 1
    late_o = 1
    yglobal = 0
    utclean = 0
    outfl = "sc1"
    uttouch = 0
    ninit = 6
    dbgN = 0
    ut_patience = 200
    flagpos = 0
    ytouch = 1
    dbgY = 0
    prioA3 = 0
    prioB = 1
    pk = 1
    b_exit = False
    touch_flags = ""
    early_release = True
    dma_early = False
    last_dma = 40
    late_pre = 0
    touch_mode = "late"
    stamps = False

STAMP_BASE = 14 << 20
def stamp(a, cfg, i):
    if cfg.stamps == 1:
        a.e(f"s_memtime s[{70+2*i}:{71+2*i}]")
def stampval(a, cfg, i, sreg):
    if cfg.stamps == 1:
        a.e("s_waitcnt lgkmcnt(0)")
        a.e(f"s_add_u32 s{70+2*i}, {sreg}, s70")
def stamps_out(a, cfg, n, vt=22):
    if not cfg.stamps: return
    a.e("s_memrealtime s[68:69]")
    a.e("s_waitcnt lgkmcnt(0) vmcnt(0)")
    a.vm = []
    if cfg.stamps == 2: n = 1
    for i in range(1, n):
        a.e(f"s_sub_u32 s{70+2*i}, s{70+2*i}, s70")
    a.e(f"""
    s_lshl_b32 s61, s2, 2
    s_add_u32 s61, s61, s39
    s_lshl_b32 s61, s61, 6
    s_add_u32 s61, s61, {STAMP_BASE}
    v_mov_b32 v{vt}, s61
    s_mov_b64 exec, 1
    """)
    for i in range(16):
        src = f"s{70+2*i}" if (0 < i < n) else ("s68" if i == 15 else ("s100" if i == 0 else "0"))
        a.e(f"v_mov_b32 v{vt+1}, {src}")
        a.e(f"global_store_dword v{vt}, v{vt+1}, s[36:37] offset:{4*i}")
        a.e("s_nop 1")
    a.e("s_waitcnt vmcnt(0)")
    a.e("s_mov_b64 exec, -1")
    a.vm = []

def prologue(a, cfg):
    if cfg.stamps:
        a.e("s_memrealtime s[100:101]")
        a.e("s_memtime s[70:71]")
    a.e("""
    s_cmp_ge_u32 s2, 512
    s_cbranch_scc1 L_end
    s_load_dwordx16 s[8:23], s[0:1], 0
    s_load_dwordx8 s[24:31], s[0:1], 64
    s_load_dwordx4 s[32:35], s[0:1], 96
    s_load_dwordx2 s[36:37], s[0:1], 112
    v_lshrrev_b32 v1, 6, v0
    v_readfirstlane_b32 s39, v1
    v_and_b32 v1, 63, v0
    s_and_b32 s3, s2, 255
    s_cmp_lt_u32 s2, 256
    """)
    if cfg.layout == "BA":
        a.e("s_cbranch_scc1 L_roleA" if not cfg.bfirst else "s_cbranch_scc0 L_roleA")
    else:
        a.e("s_cbranch_scc0 L_roleB" if not cfg.bfirst else "s_cbranch_scc1 L_roleB")

def poll_nonce(a, vtmp, vaddr0, first_tag=None):
    L = a.newlabel("nonce"); Lx = a.newlabel("nonce_ok")
    if first_tag:
        a.wait_vm(first_tag)
    else:
        a.e(f"global_load_dword {vtmp}, {vaddr0}, s[34:35] sc1")
        a.wait_vm_all()
    a.e(f"v_readfirstlane_b32 s38, {vtmp}")
    a.e(f"""
    s_cmp_lg_u32 s38, 0
    s_cbranch_scc1 {Lx}
    s_mov_b32 s61, 0
    """)
    a.label(L)
    a.e(f"""
    global_load_dword {vtmp}, {vaddr0}, s[34:35] sc1
    s_waitcnt vmcnt(0)
    v_readfirstlane_b32 s38, {vtmp}
    s_add_u32 s61, s61, 1
    s_cmp_gt_u32 s61, {SPIN_LIMIT}
    s_cbranch_scc1 {Lx}
    s_cmp_eq_u32 s38, 0
    s_cbranch_scc1 {L}
    """)
    a.vm.pop()
    a.label(Lx)

def phi_instrs(acc, tmp, out, zsum=None):
    L = []
    for i in range(16):
        L.append(f"v_mul_f32 v{tmp+i}, s62, v{acc+i}")
    for i in range(16):
        L.append(f"v_exp_f32 v{tmp+i}, v{tmp+i} clamp")
        L.append(f"v_max_f32 v{acc+i}, s64, v{acc+i}")
    for i in range(16):
        L.append(f"v_add_f32 v{acc+i}, v{acc+i}, v{tmp+i}")
    if zsum is not None:
        for m in range(8):
            L.append(f"v_add_f32 v{tmp+m}, v{acc+2*m}, v{acc+2*m+1}")
        for m in range(4):
            L.append(f"v_add_f32 v{tmp+m}, v{tmp+m}, v{tmp+4+m}")
        L.append(f"v_add_f32 v{tmp}, v{tmp}, v{tmp+2}")
        L.append(f"v_add_f32 v{tmp+1}, v{tmp+1}, v{tmp+3}")
        L.append(f"v_add_f32 v{zsum}, v{tmp}, v{tmp+1}")
    for m in range(8):
        L.append(f"v_cvt_pk_bf16_f32 v{out+m}, v{acc+2*m}, v{acc+2*m+1}")
    return L

def spread(side, nslots):
    out = []; n = len(side); k = 0
    for i in range(nslots):
        e = (n*(i+1))//nslots
        out.append(side[k:e]); k = e
    return out

SEQ = []
ORDER = "QKV"
def set_order(o):
    global SEQ, ORDER
    ORDER = o
    SEQ = []
    for c in range(8): SEQ += [("X", c), (o[0], c)]
    SEQ += [(o[1], c) for c in range(8)] + [(o[2], c) for c in range(8)] + [("O", c) for c in range(8)]
set_order("QKV")
NSLOT = 10
NINIT = 6
XR = 128
WF, T16, ACCQ, ACCK, ACCV = 32, 64, 80, 96, 112

DMAFL = ""
def b_issue_jobs(n):
    kind, c = SEQ[n]
    pos = n % NSLOT
    pre = []
    if kind == "X":
        so, v0, srd = f"s{16+c}", 2, "s[40:43]"
    elif kind in "QKV":
        so, v0, srd = f"s{8+c}", 4, "s[44:47]"
        if c == 0 and kind != ORDER[0]:
            prev = ORDER[ORDER.index(kind) - 1]
            dl = ("QKV".index(kind) - "QKV".index(prev))*1024
            op = "v_add_u32" if dl > 0 else "v_subrev_u32"
            pre = [(f"{op} v4, {abs(dl)}, v4", None), (f"{op} v5, {abs(dl)}, v5", None)]
    else:
        so, v0, srd = "s61", 6, "s[48:51]"
        pre = [(f"s_mov_b32 s61, {c*65536}", None)]
    return [pre + [(f"s_add_u32 m0, s60, {pos*8192}", None),
             (f"buffer_load_dwordx4 v{v0}, {srd}, {so} offen {DMAFL} lds", f"slot{n}")],
            [(f"buffer_load_dwordx4 v{v0+1}, {srd}, {so} offen offset:1024 {DMAFL} lds", f"slot{n}")]]

def emit_job(a, job):
    for t in job:
        if isinstance(t, str): a.e(t)
        else: a.e(t[0], vm=t[1])

def lds_base(n):
    pos = n % NSLOT
    return (0, pos*8192) if pos < 5 else (1, (pos-5)*8192)

def wfrag_reads(a, n, s, dst, tag=None):
    hi, off = lds_base(n)
    va = "v17" if hi else "v16"
    a.e(f"ds_read_b64_tr_b16 v[{dst}:{dst+1}], {va} offset:{off + s*2048}", lg=tag)
    a.e(f"ds_read_b64_tr_b16 v[{dst+2}:{dst+3}], {va} offset:{off + s*2048 + 512}", lg=tag)

def role_B(a, cfg):
    e0 = a.e
    def e_sub(text, **kw): return e0(text.replace("FIRSTPART", str("QKV".index(ORDER[0])*1024)).replace("SCR0", str(16384 if ORDER == "KVQ" else 0)).replace("SCR1", str(20480 if ORDER == "KVQ" else 4096)), **kw)
    a.e = e_sub
    a.c("================= role B =================")
    if cfg.prioB: a.e(f"s_setprio {3 if cfg.late_prio else cfg.prioB}")
    a.e("""
    s_and_b32 s66, s3, 7            ; xcd
    s_lshr_b32 s67, s3, 3           ; jj
    s_lshr_b32 s56, s66, 1
    s_lshl_b32 s56, s56, 3
    s_and_b32 s68, s67, 7
    s_add_u32 s56, s56, s68         ; tb
    s_and_b32 s57, s66, 1
    s_lshl_b32 s57, s57, 2
    s_lshr_b32 s68, s67, 3
    s_add_u32 s57, s57, s68         ; hq
    s_and_b32 s58, s39, 1           ; tt
    s_lshr_b32 s59, s39, 1
    s_lshl_b32 s60, s39, 11
    s_mov_b32 s62, 0x3fb8aa3b
    s_mov_b32 s63, 0x3fb8aa3b
    s_mov_b32 s64, 0x358637bd
    s_mov_b32 s65, 0x358637bd
    """)
    a.e("""
    v_lshrrev_b32 v32, 3, v1        ; l>>3
    v_and_b32 v33, 7, v1            ; l&7
    v_lshrrev_b32 v34, 4, v1        ; l>>4
    s_lshl_b32 s68, s56, 6          ; tb*64
    s_lshl_b32 s69, s39, 4          ; 16w
    s_add_u32 s68, s68, s69
    v_add_u32 v35, s68, v32         ; row
    v_lshlrev_b32 v35, 10, v35
    v_xor_b32 v36, v33, v34
    v_lshl_add_u32 v2, v36, 4, v35
    v_add_u32 v37, 4, v34
    v_xor_b32 v36, v33, v37
    v_lshl_add_u32 v3, v36, 4, v35
    v_add_u32 v3, 7168, v3          ; +8 rows - 1024
    v_and_b32 v36, 1, v34
    v_lshlrev_b32 v36, 2, v36
    v_xor_b32 v36, v33, v36         ; q
    v_lshlrev_b32 v36, 4, v36       ; q*16
    v_add_u32 v37, s69, v32         ; 16w + (l>>3)
    v_mul_u32_u24 v38, 3072, v37
    s_lshl_b32 s68, s57, 7          ; hq*128
    v_add3_u32 v4, v38, v36, s68
    v_add_u32 v4, FIRSTPART, v4
    v_add_u32 v5, 23552, v4         ; +8*3072 - 1024
    v_lshlrev_b32 v38, 10, v37
    v_add3_u32 v6, v38, v36, s68
    v_add_u32 v7, 7168, v6
    """)
    a.e("""
    s_waitcnt lgkmcnt(0)
    s_mov_b32 s40, s26
    s_and_b32 s41, s27, 0xffff
    s_mov_b32 s42, 0x200000
    s_mov_b32 s43, 0x20000
    s_mov_b32 s44, s28
    s_and_b32 s45, s29, 0xffff
    s_mov_b32 s46, 0x180000
    s_mov_b32 s47, 0x20000
    s_mov_b32 s48, s30
    s_and_b32 s49, s31, 0xffff
    s_mov_b32 s50, 0x80000
    s_mov_b32 s51, 0x20000
    """)
    a.e("""
    v_mov_b32 v31, 0
    s_cmp_lg_u32 s3, 0
    s_cbranch_scc1 L_b_nononce
    s_cmp_lg_u32 s39, 0
    s_cbranch_scc1 L_b_nononce
    s_memrealtime s[68:69]
    s_waitcnt lgkmcnt(0)
    s_or_b32 s68, s68, 1
    v_mov_b32 v30, s68
    s_mov_b64 exec, 1
    global_store_dword v31, v30, s[34:35] sc1
    s_mov_b64 exec, -1
    """)
    a.vm.pop()
    a.label("L_b_nononce")
    if cfg.b_exit:
        a.e("s_branch L_end")
    for c in range(8):
        a.e(f"s_mov_b32 s{8+c}, {c*64*3072}")
        a.e(f"s_mov_b32 s{16+c}, {c*128}")
    stamp(a, cfg, 1)
    for n in range(cfg.ninit):
        for job in b_issue_jobs(n): emit_job(a, job)
    if cfg.late_prio: a.e(f"s_setprio {cfg.prioB}")
    a.e("""
    v_and_b32 v32, 31, v1           ; i
    v_lshrrev_b32 v33, 5, v1        ; hh
    s_lshl_b32 s68, s58, 5
    v_add_u32 v34, s68, v32         ; 32tt + i
    v_lshlrev_b32 v34, 7, v34       ; *128
    v_lshrrev_b32 v35, 1, v32
    v_and_b32 v35, 7, v35           ; f
    """)
    for s in range(4):
        a.e(f"""
        v_add_u32 v36, {2*s}, v33
        v_xor_b32 v36, v36, v35
        v_lshl_add_u32 v{8+s}, v36, 4, v34
        v_add_u32 v{12+s}, 40960, v{8+s}
        """)
    a.e(f"""
    v_lshrrev_b32 v34, 2, v1
    v_and_b32 v34, 3, v34           ; rr
    v_and_b32 v35, 3, v1            ; cc
    v_lshrrev_b32 v36, 4, v1
    v_and_b32 v36, 1, v36           ; G&1
    v_lshlrev_b32 v36, 1, v36       ; 2(G&1)
    v_lshrrev_b32 v37, 1, v35       ; cc>>1
    v_add_u32 v36, v36, v37         ; 2(G&1) + (cc>>1)
    v_lshrrev_b32 v37, 1, v34
    v_lshlrev_b32 v37, 2, v37       ; 4(rr>>1)
    v_and_b32 v38, 1, v35
    v_lshlrev_b32 v38, 3, v38       ; 8(cc&1)
    s_lshl_b32 s68, s59, 2
    v_add_u32 v39, s68, v36
    v_xor_b32 v39, v39, v37
    v_lshl_add_u32 v39, v39, 4, v38
    v_lshl_add_u32 v40, v33, 3, v34
    v_lshl_add_u32 v16, v40, 7, v39
    v_add_u32 v17, 40960, v16
    v_xor_b32 v39, v36, v37
    v_lshl_add_u32 v39, v39, 4, v38
    v_lshl_add_u32 v40, v33, 2, v34
    v_lshl_add_u32 v18, v40, 7, v39
    s_lshl_b32 s68, s59, 15
    s_add_u32 s68, s68, 16384
    v_add_u32 v18, s68, v18
    v_xor_b32 v19, 64, v18
    s_lshl_b32 s68, s59, 1
    s_add_u32 s68, s68, s58
    s_xor_b32 s69, s68, 1
    s_lshl_b32 s66, s68, 10
    s_add_u32 s66, s66, SCR0
    v_lshl_add_u32 v22, v1, 4, s66
    s_lshl_b32 s66, s69, 10
    s_add_u32 s66, s66, SCR0
    v_lshl_add_u32 v23, v1, 4, s66
    s_lshl_b32 s66, s68, 8
    s_add_u32 s66, s66, SCR1
    v_lshl_add_u32 v24, v1, 2, s66
    s_lshl_b32 s66, s69, 8
    s_add_u32 s66, s66, SCR1
    v_lshl_add_u32 v25, v1, 2, s66
    s_lshl_b32 s68, s57, 1
    s_add_u32 s68, s68, s59
    s_lshl_b32 s68, s68, 5
    s_add_u32 s68, s68, s56
    s_mul_i32 s68, s68, 2176
    s_add_u32 s68, s68, {KVP}
    s_lshl_b32 s69, s58, 10
    s_add_u32 s69, s69, s68
    v_lshl_add_u32 v26, v1, 4, s69
    v_lshrrev_b32 v40, 4, v1
    v_and_b32 v40, 1, v40
    v_lshlrev_b32 v40, 3, v40       ; 8c
    v_and_b32 v41, 4, v1            ; 4*hh'
    v_add_u32 v40, v40, v41
    v_lshrrev_b32 v41, 2, v1
    v_and_b32 v41, 2, v41
    v_add_u32 v40, v40, v41
    v_lshrrev_b32 v41, 1, v1
    v_and_b32 v41, 1, v41
    v_add_u32 v40, v40, v41         ; zg
    s_add_u32 s68, s68, 2048
    v_lshl_add_u32 v27, v40, 3, s68
    ; PQ address
    s_lshl_b32 s68, s56, 1
    s_add_u32 s68, s68, s58
    s_lshl_b32 s68, s68, 5
    s_lshl_b32 s69, s57, 2
    s_add_u32 s68, s68, s69
    s_lshl_b32 s69, s59, 1
    s_add_u32 s68, s68, s69
    s_lshl_b32 s68, s68, 10
    s_add_u32 s68, s68, {PQ}
    v_lshl_add_u32 v28, v1, 4, s68
    v_and_b32 v40, 16, v1
    v_cmp_ne_u32 s[52:53], 0, v40
    s_sub_u32 s54, 0, s58
    s_mov_b32 s55, s54
    """)
    a.e(f"""
    s_cmp_lg_u32 s39, 3
    s_cbranch_scc1 L_b_nopt
    s_lshl_b32 s68, s56, 7
    s_add_u32 s68, s68, {PQF}
    v_mov_b32 v40, s68
    global_load_dword v21, v40, s[36:37] sc1
    """)
    a.vm.pop()
    a.label("L_b_nopt")
    for r in range(16):
        a.e(f"v_mov_b32 v{ACCQ+r}, s64")
    for r in range(16):
        a.e(f"v_mov_b32 v{ACCK+r}, s64")
    def frag_reads(g, k):
        L = []
        tag = f"f{g}_{k}"
        if g < 8:
            nx, nw = 2*g, 2*g+1
            hi, off = lds_base(nx)
            L.append((f"ds_read_b128 v[{XR+16*g+4*k}:{XR+16*g+4*k+3}], v{(12 if hi else 8)+k} offset:{off}", tag))
            d = WF + 16*(g % 2) + 4*k; n = nw; sstep = k
        else:
            n = 2*g + k//4; sstep = k % 4; d = WF + 4*k
        h2, o2 = lds_base(n)
        va = "v17" if h2 else "v16"
        L.append((f"ds_read_b64_tr_b16 v[{d}:{d+1}], {va} offset:{o2 + sstep*2048}", tag))
        L.append((f"ds_read_b64_tr_b16 v[{d+2}:{d+3}], {va} offset:{o2 + sstep*2048 + 512}", tag))
        return L
    def nsteps(g): return 4 if g < 8 else 8
    def emit_side(lst):
        for t in lst:
            if isinstance(t, str): a.e(t)
            elif t[0] == "WVM": a.wait_vm(t[1])
            else: a.e(t[0], vm=t[1])
    side = {}
    KVQ = (cfg.order == "KVQ")
    ke = phi_instrs(ACCK, T16, ACCK, zsum=29)
    ke += ["v_mov_b32 v30, v29", "v_permlane32_swap_b32 v29, v30", "v_add_f32 v29, v29, v30"]
    if not KVQ:
        qe = phi_instrs(ACCQ, T16, ACCQ)
        qe += [(f"global_store_dwordx4 v28, v[{ACCQ}:{ACCQ+3}], s[36:37] sc1", "pqst"),
               (f"global_store_dwordx4 v28, v[{ACCQ+4}:{ACCQ+7}], s[36:37] offset:1024 sc1", "pqst")]
        gaps = [(g, k) for g in range(8, 12) for k in range(8)][1:cfg.qe_end]
        for gp, grp in zip(gaps, spread(qe, len(gaps))): side[gp] = grp
        gaps = [(g, k) for g in range(12, 16) for k in range(8)][1:31]
    else:
        gaps = [(g, k) for g in range(8, 12) for k in range(8)][1:31]
    for gp, grp in zip(gaps, spread(ke, len(gaps))): side[gp] = grp if not cfg.x_epi else []
    side[(9, 7)] = side.get((9, 7), []) + ["s_lshl_b32 s68, s56, 7", f"s_add_u32 s68, s68, {PQF}", "v_and_b32 v2, 7, v1", "v_lshl_add_u32 v2, v2, 2, s68"]
    rb = f"""
    s_mov_b32 s40, s36
    s_and_b32 s41, s37, 0xffff
    s_mov_b32 s42, {KVF + 65536}
    s_mov_b32 s43, 0x20000
    s_lshl_b32 s68, s56, 1
    s_add_u32 s68, s68, s58
    s_lshl_b32 s68, s68, 5
    s_lshl_b32 s69, s59, 4
    s_add_u32 s68, s68, s69
    s_lshl_b32 s68, s68, 10
    s_add_u32 s68, s68, {PQ}
    v_lshl_add_u32 v3, v1, 4, s68
    v_add_u32 v31, 8192, v3
    v_lshrrev_b32 v13, 7, v0
    v_mul_u32_u24 v13, {KVBLK}, v13
    v_and_b32 v20, 127, v0
    v_lshl_add_u32 v13, v20, 4, v13
    v_add_u32 v13, {KVF}, v13
    v_lshrrev_b32 v14, 3, v20
    v_mul_u32_u24 v14, {KVBLK}, v14
    v_and_b32 v21, 7, v0
    v_lshl_add_u32 v14, v21, 4, v14
    v_add_u32 v14, {KVF+2048}, v14
    v_lshrrev_b32 v15, 7, v0
    v_lshlrev_b32 v15, 1, v15
    v_bfe_u32 v21, v0, 4, 1
    v_add_u32 v15, v15, v21
    v_mul_u32_u24 v15, 544, v15
    v_bfe_u32 v21, v0, 5, 1
    v_mul_u32_u24 v21, 272, v21
    v_add_u32 v15, v15, v21
    v_and_b32 v21, 15, v0
    v_lshl_add_u32 v15, v21, 4, v15
    v_bfe_u32 v21, v0, 6, 1
    v_lshl_add_u32 v15, v21, 3, v15
    v_lshrrev_b32 v12, 3, v20
    v_lshlrev_b32 v12, 1, v12
    v_bfe_u32 v21, v0, 2, 1
    v_add_u32 v12, v12, v21
    v_mul_u32_u24 v12, 544, v12
    v_bfe_u32 v21, v0, 1, 1
    v_mul_u32_u24 v21, 272, v21
    v_add_u32 v12, v12, v21
    v_and_b32 v21, 1, v0
    v_lshl_add_u32 v12, v21, 3, v12
    v_add_u32 v12, 256, v12
    v_and_b32 v30, 15, v1
    v_mul_u32_u24 v30, {KVBLK}, v30
    v_add_u32 v30, {KVF+2048}, v30
    """.strip().split("\n")
    rb = [x.strip() for x in rb]
    rb += [f"s_mov_b32 s{8+i}, {1024*i}" for i in range(8)] + [f"s_mov_b32 s{16+k}, {2*KVBLK*k}" for k in range(8)]
    if not cfg.late_o:
        gaps = [(14, k) for k in range(5, 8)] + [(15, k) for k in range(8)]
        for gp, grp in zip(gaps, spread(rb, len(gaps))): side[gp] = side.get(gp, []) + grp

    def kv_publish():
        a.c("--- kv partial: V cvt, MFMA, select, pair exchange, publish")
        a.e("s_barrier")
        if not KVQ: a.e("global_load_dword v21, v2, s[36:37] sc1", vm="pqf")
        if cfg.gate:
            a.e(f"""
            s_cmp_lg_u32 s39, 2
            s_cbranch_scc1 L_b_nogate
            s_and_b32 s68, s3, 7
            s_lshl_b32 s68, s68, 8
            s_lshr_b32 s69, s3, 3
            s_lshl_b32 s69, s69, 2
            s_add_u32 s68, s68, s69
            s_add_u32 s68, s68, {BDN}
            v_mov_b32 v20, s68
            v_mov_b32 v30, s38
            s_mov_b64 exec, 1
            global_store_dword v20, v30, s[36:37]
            s_mov_b64 exec, -1
            """)
            a.vm.pop()
            a.label("L_b_nogate")
        for m in range(8):
            a.e(f"v_cvt_pk_bf16_f32 v{ACCV+m}, v{ACCV+2*m}, v{ACCV+2*m+1}")
        a.e(f"v_mfma_f32_32x32x16_bf16 v[{T16}:{T16+15}], v[{ACCK}:{ACCK+3}], v[{ACCV}:{ACCV+3}], 0")
        a.e(f"v_mfma_f32_32x32x16_bf16 v[{T16}:{T16+15}], v[{ACCK+4}:{ACCK+7}], v[{ACCV+4}:{ACCV+7}], v[{T16}:{T16+15}]")
        a.e("ds_write_b32 v24, v29", lg="xw")
        SEL = ACCK + 8; SND = ACCV + 8; KEEP = ACCV + 12
        for j in range(8): a.e(f"v_cndmask_b32 v{SEL+j}, v{T16+j}, v{T16+8+j}, s[52:53]")
        for j in range(4): a.e(f"v_cndmask_b32 v{SND+j}, v{SEL+4+j}, v{SEL+j}, s[54:55]")
        a.e(f"ds_write_b128 v22, v[{SND}:{SND+3}]", lg="xw")
        for j in range(4): a.e(f"v_cndmask_b32 v{KEEP+j}, v{SEL+j}, v{SEL+4+j}, s[54:55]")
        a.wait_lg("xw")
        a.e("s_barrier")
        a.e(f"ds_read_b128 v[{SEL}:{SEL+3}], v23", lg="xr")
        a.e(f"ds_read_b32 v30, v25", lg="xr")
        a.wait_lg("xr")
        if not KVQ:
            a.wait_vm("pqf")
            a.e("v_cmp_ne_u32 s[66:67], s38, v21")
        for j in range(4): a.e(f"v_add_f32 v{KEEP+j}, v{KEEP+j}, v{SEL+j}")
        a.e(f"""
        v_add_f32 v29, v29, v30
        v_cvt_pk_bf16_f32 v{SEL}, v{KEEP}, v{KEEP+1}
        v_mov_b32 v{SEL+1}, s38
        v_cvt_pk_bf16_f32 v{SEL+2}, v{KEEP+2}, v{KEEP+3}
        v_mov_b32 v{SEL+3}, s38
        v_mov_b32_dpp v30, v29 quad_perm:[1,0,3,2] row_mask:0xf bank_mask:0xf
        global_store_dwordx4 v26, v[{SEL}:{SEL+3}], s[36:37] sc1
        v_cvt_pk_bf16_f32 v{SEL+4}, v29, v30
        v_mov_b32 v{SEL+5}, s38
        s_andn2_b64 exec, 0x55555555, s[54:55]
        s_cbranch_execz L_b_noz
        global_store_dwordx2 v27, v[{SEL+4}:{SEL+5}], s[36:37] sc1
        """)
        a.vm.pop()
        a.label("L_b_noz")
        a.e("s_mov_b64 exec, -1")
        stamp(a, cfg, 6)

    a.wait_vm(["slot0", "slot1"])
    a.e("s_barrier")
    stamp(a, cfg, 2)
    for k in range(4):
        for t, tag in frag_reads(0, k): a.e(t, lg=tag)
    nxt = cfg.ninit
    pend = []
    while nxt < NSLOT:
        pend += b_issue_jobs(nxt); nxt += 1
    for g in range(16):
        a.c(f"--- group {g}")
        if g == (11 if KVQ else 13): poll_nonce(a, "v21", "v31", first_tag="nonce")
        if KVQ and g == 12: kv_publish()
        if g == cfg.pqflag_g and not KVQ: a.wait_vm("pqst")
        if g < 15:
            a.wait_vm([f"slot{2*g+2}", f"slot{2*g+3}"])
        a.e("s_barrier")
        if g == cfg.pqflag_g and not KVQ:
            a.e("""
            s_cmp_lg_u32 s39, 3
            s_cbranch_scc1 L_b_noflag
            s_lshl_b32 s68, s56, 7
            s_lshl_b32 s69, s57, 2
            s_add_u32 s68, s68, s69
            s_add_u32 s68, s68, %d
            v_mov_b32 v20, s68
            v_mov_b32 v21, s38
            s_mov_b64 exec, 1
            global_store_dword v20, v21, s[36:37] sc1
            s_mov_b64 exec, -1
            """ % PQF)
            a.vm.pop()
            a.label("L_b_noflag")
        if g in (1, 8, 12): stamp(a, cfg, {1: 3, 8: 4, 12: 5}[g])
        jobs = list(pend); pend = []
        if g >= 1:
            for _ in range(2):
                if nxt < (32 if cfg.late_o else 40): jobs += b_issue_jobs(nxt); nxt += 1
        if g == (7 if KVQ else 9):
            jobs.append([("global_load_dword v21, v31, s[34:35] sc1", "nonce")])
        ns = nsteps(g)
        jsp = spread(jobs, ns)
        for k in range(ns):
            if k % 2 == 0: a.wait_lg([f"f{g}_{k}", f"f{g}_{k+1}"])
            part = cfg.order[0] if g < 8 else (cfg.order[1] if g < 12 else cfg.order[2])
            if g < 8:
                wreg = WF + 16*(g % 2) + 4*k; kk = 4*g + k
            else:
                wreg = WF + 4*k; kk = ((g - 8) % 4)*8 + k
            W_ = f"v[{wreg}:{wreg+3}]"; X_ = f"v[{XR+4*kk}:{XR+4*kk+3}]"
            if part == "Q":
                a.e(f"v_mfma_f32_32x32x16_bf16 v[{ACCQ}:{ACCQ+15}], {W_}, {X_}, v[{ACCQ}:{ACCQ+15}]")
            elif part == "K":
                a.e(f"v_mfma_f32_32x32x16_bf16 v[{ACCK}:{ACCK+15}], {X_}, {W_}, v[{ACCK}:{ACCK+15}]")
            else:
                cc = "0" if kk == 0 else f"v[{ACCV}:{ACCV+15}]"
                a.e(f"v_mfma_f32_32x32x16_bf16 v[{ACCV}:{ACCV+15}], {X_}, {W_}, {cc}")
            jl = [list(jb) for jb in jsp[k]]
            if jl:
                while jl[0] and not jl[0][0][0].startswith(("buffer_load", "global_load")):
                    a.e(jl[0].pop(0)[0])
            if g < 15:
                nx = [k, 4 + k] if g == 7 else [k]
                for k2 in nx:
                    for t, tag in frag_reads(g + 1, k2): a.e(t, lg=tag)
            for jb in jl: emit_job(a, jb)
            emit_side(side.get((g, k), []))
    if KVQ:
        tail_kvq(a, cfg, rb)
        return
    kv_publish()
    if cfg.prioBw is not None: a.e(f"s_setprio {cfg.prioBw}")
    a.e("s_mov_b64 s[54:55], s[66:67]")
    def pq_first(sfx):
        for t in rb: a.e(t)
        a.e(f"""
        s_cmp_eq_u64 s[54:55], 0
        s_cbranch_scc1 L_b_pqf_go{sfx}
        s_mov_b32 s61, 0
        """)
        a.label(f"L_b_pqf_poll{sfx}")
        a.e(f"""
        global_load_dword v21, v2, s[36:37] sc1
        s_add_u32 s61, s61, 1
        s_waitcnt vmcnt(0)
        v_cmp_ne_u32 vcc, s38, v21
        s_cmp_gt_u32 s61, {SPIN_LIMIT}
        s_cbranch_scc1 L_b_pqf_go{sfx}
        s_cbranch_vccz L_b_pqf_go{sfx}
        s_branch L_b_pqf_poll{sfx}
        """)
        a.label(f"L_b_pqf_go{sfx}")
        for i in range(8):
            a.e(f"buffer_load_dwordx4 v[{32+4*i}:{35+4*i}], v3, s[40:43], s{8+i} offen sc1")
    a.e("""
    s_cmp_eq_u32 s39, 0
    s_cbranch_scc1 L_b_w0tail
    """)
    for n in range(32, 40):
        for jb in b_issue_jobs(n): emit_job(a, jb)
    a.e("""
    s_cmp_eq_u32 s39, 1
    s_cbranch_scc0 L_b_noshare
    v_subrev_u32 v22, 16384, v6
    v_subrev_u32 v23, 16384, v7
    """)
    for n in range(32, 40):
        c = SEQ[n][1]; pos = n % NSLOT
        a.e(f"s_mov_b32 m0, {pos*8192}")
        a.e(f"s_mov_b32 s61, {c*65536}")
        a.e(f"buffer_load_dwordx4 v22, s[48:51], s61 offen lds")
        a.e(f"buffer_load_dwordx4 v23, s[48:51], s61 offen offset:1024 lds")
    a.label("L_b_noshare")
    pq_first("a")
    a.e("s_waitcnt vmcnt(8)")
    a.e("s_branch L_b_tailjoin")
    a.label("L_b_w0tail")
    reducer(a, cfg)
    pq_first("b")
    a.label("L_b_tailjoin")
    a.vm = []; a.lg = []
    stamp(a, cfg, 7)
    if not cfg.do_B2:
        stamp(a, cfg, 8)
        stamps_out(a, cfg, 9)
        a.e("s_branch L_end")
        return
    role_B2(a, cfg)

def tag_check(a, regs_tags, acc="v20"):
    tt = 0
    for idx in range(8):
        s0, s1, s2 = (idx >> 2) & 1, (idx >> 1) & 1, idx & 1
        if s0 | (s1 ^ s2): tt |= 1 << idx
    first = True
    for r in regs_tags:
        if first:
            a.e(f"v_xor_b32 {acc}, s38, v{r}"); first = False
        else:
            a.e(f"v_bitop3_b32 {acc}, {acc}, v{r}, s38 bitop3:{hex(tt)}")
    a.e(f"v_cmp_ne_u32 vcc, 0, {acc}")

def tail_kvq(a, cfg, rb):
    a.e("s_barrier")
    a.e("""
    s_cmp_eq_u32 s39, 0
    s_cbranch_scc1 L_b_w0a
    """)
    if not cfg.o_after:
        for n in range(32, 40):
            for jb in b_issue_jobs(n): emit_job(a, jb)
        a.e("""
        s_cmp_eq_u32 s39, 1
        s_cbranch_scc0 L_b_noshare
        v_subrev_u32 v22, 16384, v6
        v_subrev_u32 v23, 16384, v7
        """)
        for n in range(32, 40):
            c = SEQ[n][1]; pos = n % NSLOT
            a.e(f"s_mov_b32 m0, {pos*8192}")
            a.e(f"s_mov_b32 s61, {c*65536}")
            a.e(f"buffer_load_dwordx4 v22, s[48:51], s61 offen lds")
            a.e(f"buffer_load_dwordx4 v23, s[48:51], s61 offen offset:1024 lds")
        a.label("L_b_noshare")
    a.e("s_branch L_b_phi")
    a.label("L_b_w0a")
    reducer(a, cfg, "addr")
    reducer(a, cfg, "loads")
    a.label("L_b_phi")
    for t in phi_instrs(ACCQ, T16, ACCQ): a.e(t)
    a.e(f"""
    v_lshlrev_b32 v20, 4, v1
    s_cmp_lg_u32 s39, 0
    s_cbranch_scc1 L_b_noho
    ds_write_b128 v20, v[{ACCQ}:{ACCQ+3}]
    ds_write_b128 v20, v[{ACCQ+4}:{ACCQ+7}] offset:1024
    v_mov_b32 v21, 0
    ds_write_b32 v21, v21 offset:2048
    s_waitcnt lgkmcnt(0)
    """)
    a.label("L_b_noho")
    a.e("s_barrier")
    stamp(a, cfg, 7)
    if cfg.prioBw is not None: a.e(f"s_setprio {cfg.prioBw}")
    a.e(f"""
    s_cmp_eq_u32 s39, 0
    s_cbranch_scc1 L_b_w0b
    global_store_dwordx4 v28, v[{ACCQ}:{ACCQ+3}], s[36:37] sc1
    global_store_dwordx4 v28, v[{ACCQ+4}:{ACCQ+7}], s[36:37] offset:1024 sc1
    s_cmp_eq_u32 s39, 1
    s_cbranch_scc0 L_b_nopq
    ds_read_b128 v[32:35], v20
    ds_read_b128 v[36:39], v20 offset:1024
    v_subrev_u32 v21, 32768, v28
    s_waitcnt lgkmcnt(0)
    global_store_dwordx4 v21, v[32:35], s[36:37] sc1
    global_store_dwordx4 v21, v[36:39], s[36:37] offset:1024 sc1
    """)
    a.label("L_b_nopq")
    if cfg.o_after:
        for n in range(32, 40):
            for jb in b_issue_jobs(n): emit_job(a, jb)
        a.e("""
        s_cmp_eq_u32 s39, 1
        s_cbranch_scc0 L_b_noshare
        v_subrev_u32 v22, 16384, v6
        v_subrev_u32 v23, 16384, v7
        """)
        for n in range(32, 40):
            c = SEQ[n][1]; pos = n % NSLOT
            a.e(f"s_mov_b32 m0, {pos*8192}")
            a.e(f"s_mov_b32 s61, {c*65536}")
            a.e(f"buffer_load_dwordx4 v22, s[48:51], s61 offen lds")
            a.e(f"buffer_load_dwordx4 v23, s[48:51], s61 offen offset:1024 lds")
        a.label("L_b_noshare")
    for t in rb: a.e(t)
    if cfg.o_after:
        a.e("""
        s_cmp_eq_u32 s39, 1
        s_cbranch_scc1 L_b_ack1
        s_waitcnt vmcnt(16)
        s_branch L_b_ack2
        """)
        a.label("L_b_ack1")
        a.e("s_waitcnt vmcnt(32)")
        a.label("L_b_ack2")
    else:
        a.e("s_waitcnt vmcnt(0)")
    a.e("""
    v_mov_b32 v32, 0
    v_mov_b32 v33, 1
    s_mov_b64 exec, 1
    ds_add_rtn_u32 v34, v32, v33 offset:2048
    s_waitcnt lgkmcnt(0)
    v_readfirstlane_b32 s68, v34
    s_cmp_lg_u32 s68, 2
    s_cbranch_scc1 L_b_noflag2
    s_lshl_b32 s68, s56, 7
    s_lshl_b32 s69, s57, 2
    s_add_u32 s68, s68, s69
    s_add_u32 s68, s68, %d
    v_mov_b32 v32, s68
    v_mov_b32 v33, s38
    global_store_dword v32, v33, s[36:37] sc1
    """ % PQF)
    if cfg.o_after:
        a.e("s_mov_b64 exec, -1")
        a.e("s_waitcnt vmcnt(1)")
        a.e("s_branch L_b_tailjoin")
    a.label("L_b_noflag2")
    a.e("s_mov_b64 exec, -1")
    if cfg.o_after:
        a.e("s_waitcnt vmcnt(0)")
    a.e("s_branch L_b_tailjoin")
    a.label("L_b_w0b")
    reducer(a, cfg, "finish")
    for t in rb: a.e(t)
    a.label("L_b_tailjoin")
    a.vm = []; a.lg = []
    def pq_late():
        a.e("s_mov_b32 s61, 0")
        a.label("L_b_pqf_poll")
        a.e(f"""
        global_load_dword v21, v2, s[36:37] sc1
        s_add_u32 s61, s61, 1
        s_waitcnt vmcnt(0)
        v_cmp_ne_u32 vcc, s38, v21
        s_cmp_gt_u32 s61, {SPIN_LIMIT}
        s_cbranch_scc1 L_b_pqf_go
        s_cbranch_vccz L_b_pqf_go
        s_branch L_b_pqf_poll
        """)
        a.label("L_b_pqf_go")
        for i in range(8):
            a.e(f"buffer_load_dwordx4 v[{32+4*i}:{35+4*i}], v3, s[40:43], s{8+i} offen sc1")
    role_B2(a, cfg, pq_late)

def reducer(a, cfg, part=None):
    def reduce_line(base, dst_addr, tagsok_label):
        S = 64; T = 68
        for k in range(4):
            r = base + 4*k
            for pidx in range(2):
                src = r + 2*pidx
                if k == 0:
                    a.e(f"v_lshlrev_b32 v{S+2*pidx}, 16, v{src}")
                    a.e(f"v_and_b32 v{S+1+2*pidx}, 0xffff0000, v{src}")
                else:
                    a.e(f"v_lshlrev_b32 v{T+2*pidx}, 16, v{src}")
                    a.e(f"v_and_b32 v{T+1+2*pidx}, 0xffff0000, v{src}")
                    a.e(f"v_add_f32 v{S+2*pidx}, v{S+2*pidx}, v{T+2*pidx}")
                    a.e(f"v_add_f32 v{S+1+2*pidx}, v{S+1+2*pidx}, v{T+1+2*pidx}")
        for j in range(4): a.e(f"v_add_f32_dpp v{S+j}, v{S+j}, v{S+j} row_ror:8 row_mask:0xf bank_mask:0xf")
        for j in range(4): a.e(f"v_mov_b32 v{T+j}, v{S+j}")
        for j in range(4): a.e(f"v_permlane16_swap_b32 v{S+j}, v{T+j}")
        for j in range(4): a.e(f"v_add_f32 v{S+j}, v{S+j}, v{T+j}")
        for j in range(4): a.e(f"v_mov_b32 v{T+j}, v{S+j}")
        for j in range(4): a.e(f"v_permlane32_swap_b32 v{S+j}, v{T+j}")
        for j in range(4): a.e(f"v_add_f32 v{S+j}, v{S+j}, v{T+j}")
        a.e(f"""
        v_cvt_pk_bf16_f32 v72, v{S}, v{S+1}
        v_mov_b32 v73, s38
        v_cvt_pk_bf16_f32 v74, v{S+2}, v{S+3}
        v_mov_b32 v75, s38
        s_mov_b64 exec, 0xff
        global_store_dwordx4 {dst_addr}, v[72:75], s[36:37] sc1
        s_mov_b64 exec, -1
        """)
    if part in (None, "addr"):
        a.e(f"""
        s_lshr_b32 s66, s3, 4
        s_and_b32 s67, s3, 15
        s_mul_i32 s69, s66, {32*KVBLK}
        s_add_u32 s69, s69, {KVP}
        s_lshl_b32 s52, s67, 7
        s_add_u32 s68, s69, s52
        v_and_b32 v22, 7, v1
        v_lshlrev_b32 v22, 4, v22
        v_lshrrev_b32 v23, 3, v1
        v_mul_u32_u24 v23, {KVBLK}, v23
        v_add_u32 v23, v22, v23
        v_add_u32 v24, s68, v23
        v_add_u32 v25, {8*KVBLK}, v24
        v_add_u32 v26, {16*KVBLK}, v24
        v_add_u32 v27, {24*KVBLK}, v24
        s_add_u32 s68, s69, 2048
        v_add_u32 v8, s68, v23
        v_add_u32 v9, {8*KVBLK}, v8
        v_add_u32 v10, {16*KVBLK}, v8
        v_add_u32 v11, {24*KVBLK}, v8
        s_mul_i32 s69, s66, {KVBLK}
        s_add_u32 s69, s69, {KVF}
        s_add_u32 s68, s69, s52
        v_add_u32 v23, s68, v22
        s_add_u32 s68, s69, 2048
        v_add_u32 v29, s68, v22
        """)
    if part == "addr": return
    def red_round(sfx):
        a.e(f"""
        global_load_dwordx4 v[96:99], v24, s[36:37] sc1
        global_load_dwordx4 v[100:103], v25, s[36:37] sc1
        global_load_dwordx4 v[104:107], v26, s[36:37] sc1
        global_load_dwordx4 v[108:111], v27, s[36:37] sc1
        s_cmp_lg_u32 s67, 0
        s_cbranch_scc1 L_b_red_nb{sfx}
        global_load_dwordx4 v[112:115], v8, s[36:37] sc1
        global_load_dwordx4 v[116:119], v9, s[36:37] sc1
        global_load_dwordx4 v[120:123], v10, s[36:37] sc1
        global_load_dwordx4 v[124:127], v11, s[36:37] sc1
        """)
        a.label(f"L_b_red_nb{sfx}")
    if part == "loads":
        red_round("0"); return
    a.e("s_mov_b32 s61, 0")
    if part == "finish": a.e("s_branch L_b_red_w")
    a.label("L_b_red_poll")
    red_round("1")
    a.label("L_b_red_w")
    a.e("""
    s_add_u32 s61, s61, 1
    s_waitcnt vmcnt(0)
    s_cmp_lg_u32 s67, 0
    s_cbranch_scc1 L_b_red_one
    """)
    tag_check(a, [97+2*q for q in range(16)])
    a.e("s_branch L_b_red_chk")
    a.label("L_b_red_one")
    tag_check(a, [97+2*q for q in range(8)])
    a.label("L_b_red_chk")
    a.e(f"""
    s_cmp_gt_u32 s61, {SPIN_LIMIT}
    s_cbranch_scc1 L_b_red_go
    s_cbranch_vccz L_b_red_go
    s_sleep {cfg.sl_red}
    s_branch L_b_red_poll
    """)
    a.label("L_b_red_go")
    a.e("""
    s_cmp_lg_u32 s67, 0
    s_cbranch_scc1 L_b_red_a
    """)
    reduce_line(112, "v29", None)
    a.label("L_b_red_a")
    reduce_line(96, "v23", None)
    stamp(a, cfg, 10)

def role_B2(a, cfg, after_k1=None):
    WO = 128
    ACC = 96
    PQR = 32
    CN = [64, 80]
    KAF = [8, 12]
    OF = [4, 16]
    KA = 0
    PQL = 17408
    a.c("================= B2 =================")
    a.e("s_barrier")
    for i in range(16):
        for nt in range(2):
            d = WO + 8*i + 4*nt
            off = (i//4)*8192 + (i % 4)*2048
            a.e(f"ds_read_b64_tr_b16 v[{d}:{d+1}], v{18+nt} offset:{off}", lg="wo")
            a.e(f"ds_read_b64_tr_b16 v[{d+2}:{d+3}], v{18+nt} offset:{off+1024}", lg="wo")
    a.e("s_waitcnt lgkmcnt(0)")
    a.e("s_barrier")
    a.vm = []; a.lg = []
    stamp(a, cfg, 9)
    if after_k1 and not cfg.ka_first: after_k1()
    if cfg.zpoll:
        a.e("""
        s_mov_b32 s61, 0
        s_cmp_eq_u32 s39, 0
        s_cbranch_scc0 L_b_kz_go
        """)
        a.label("L_b_kz_poll")
        a.e(f"""
        buffer_load_dwordx4 v[96:99], v30, s[40:43], 0 offen sc1
        s_add_u32 s61, s61, 1
        s_waitcnt vmcnt(0)
        v_xor_b32 v20, s38, v97
        v_cmp_ne_u32 vcc, 0, v20
        s_cmp_gt_u32 s61, {SPIN_LIMIT}
        s_cbranch_scc1 L_b_kz_go
        s_cbranch_vccz L_b_kz_go
        s_sleep {cfg.sl_kz}
        s_branch L_b_kz_poll
        """)
        a.label("L_b_kz_go")
        stamp(a, cfg, 11)
        a.e("s_barrier")
    PB = 17408
    a.e(f"""
    v_and_b32 v24, 31, v1
    s_lshl_b32 s68, s58, 5
    v_add_u32 v24, s68, v24            ; token
    v_mul_u32_u24 v24, 272, v24
    v_lshrrev_b32 v25, 5, v1
    v_lshl_add_u32 v24, v25, 4, v24    ; + hh*16
    s_mul_i32 s68, s59, {64*272}
    s_add_u32 s68, s68, {PB}
    v_add_u32 v24, s68, v24            ; P write address
    v_lshrrev_b32 v26, 3, v0
    v_mul_u32_u24 v25, 272, v26
    v_and_b32 v27, 7, v0
    v_lshl_add_u32 v25, v27, 5, v25
    v_add_u32 v25, {PB}, v25           ; P read address
    s_lshl_b32 s68, s56, 6
    v_add_u32 v26, s68, v26
    v_lshlrev_b32 v26, 11, v26
    s_lshl_b32 s68, s57, 7
    s_add_u32 s68, s68, 1024
    v_lshl_add_u32 v26, v27, 4, v26
    v_add_u32 v26, s68, v26
    v_add_u32 v27, {32*2048}, v26
    v_and_b32 v22, 31, v1
    v_min_u32 v22, 16, v22
    v_lshlrev_b32 v22, 4, v22
    v_lshrrev_b32 v23, 5, v1
    v_mul_u32_u24 v23, 272, v23
    s_mul_i32 s68, s59, {16*544}
    v_add3_u32 v22, v22, v23, s68       ; kv fragment address
    """)
    def ka_loads():
        for k in range(8):
            a.e(f"buffer_load_dwordx4 v[{64+4*k}:{67+4*k}], v13, s[40:43], s{16+k} offen sc1")
        a.e("buffer_load_dwordx4 v[96:99], v14, s[40:43], 0 offen sc1")
    a.e("s_mov_b32 s61, 0")
    a.e("s_branch L_b_kvf_first")
    a.label("L_b_kvf_poll")
    a.e(f"s_sleep {cfg.sl_ka}")
    a.label("L_b_kvf_first")
    ka_loads()
    a.e("s_waitcnt vmcnt(0)")
    a.label("L_b_ka_chk")
    a.e("s_add_u32 s61, s61, 1")
    tag_check(a, [65+2*q for q in range(18)])
    a.e(f"""
    s_cmp_gt_u32 s61, {SPIN_LIMIT}
    s_cbranch_scc1 L_b_kvf_go
    s_cbranch_vccnz L_b_kvf_poll
    """)
    a.label("L_b_kvf_go")
    if after_k1 and cfg.ka_first: after_k1()
    stamp(a, cfg, 12)
    stampval(a, cfg, 8, "s61")
    a.vm = []
    for k in range(8):
        a.e(f"v_mov_b32 v{65+4*k}, v{66+4*k}")
        a.e(f"ds_write_b64 v15, v[{64+4*k}:{65+4*k}] offset:{KA + 2176*k}")
    a.e("v_mov_b32 v97, v98")
    a.e(f"ds_write_b64 v12, v[96:97] offset:{KA}")
    a.e(f"""
    s_waitcnt vmcnt(0) lgkmcnt(0)
    s_barrier
    """)
    a.vm = []; a.lg = []
    stamp(a, cfg, 13)
    if cfg.prioBw is not None: a.e(f"s_setprio {cfg.prioBm}")
    def kaf_read(i):
        a.e(f"ds_read_b128 v[{KAF[i%2]}:{KAF[i%2]+3}], v22 offset:{KA + 544*i}", lg=f"ka{i}")
    def out_mfma(i):
        o = OF[i % 2]
        for nt in range(2):
            w = WO + 8*i + 4*nt
            cc = "0" if i == 0 else f"v[{ACC+16*nt}:{ACC+16*nt+15}]"
            a.e(f"v_mfma_f32_32x32x16_bf16 v[{ACC+16*nt}:{ACC+16*nt+15}], v[{w}:{w+3}], v[{o}:{o+3}], {cc}")
    def num_mfma(i):
        a.wait_lg(f"ka{i}")
        p = PQR + 4*(i % 8)
        if i >= 8: a.wait_vm(f"pq{i}")
        a.e(f"v_mfma_f32_32x32x16_bf16 v[{CN[i%2]}:{CN[i%2]+15}], v[{KAF[i%2]}:{KAF[i%2]+3}], v[{p}:{p+3}], 0")
        if i < 8:
            a.e(f"buffer_load_dwordx4 v[{p}:{p+3}], v31, s[40:43], s{8+i} offen sc1", vm=f"pq{i+8}")
    def out1(i, nt):
        o = OF[i % 2]
        w = WO + 8*i + 4*nt
        cc = "0" if i == 0 else f"v[{ACC+16*nt}:{ACC+16*nt+15}]"
        a.e(f"v_mfma_f32_32x32x16_bf16 v[{ACC+16*nt}:{ACC+16*nt+15}], v[{w}:{w+3}], v[{o}:{o+3}], {cc}")
    kaf_read(0); kaf_read(1)
    num_mfma(0)
    for i in range(16):
        if i >= cfg.x_main: break
        if i + 1 < 16:
            num_mfma(i + 1)
        c = CN[i % 2]
        a.e(f"v_add_f32 v20, s64, v{c+8}")
        a.e(f"v_rcp_f32 v20, v20")
        if i + 2 < 16:
            kaf_read(i + 2)
        for jj in range(2): a.e(f"v_mul_f32 v{c+jj}, v{c+jj}, v20")
        if i >= 1: out1(i - 1, 0)
        for jj in range(2, 7): a.e(f"v_mul_f32 v{c+jj}, v{c+jj}, v20")
        if i >= 1: out1(i - 1, 1)
        a.e(f"v_mul_f32 v{c+7}, v{c+7}, v20")
        o = OF[i % 2]
        for m in range(4):
            a.e(f"v_cvt_pk_bf16_f32 v{o+m}, v{c+2*m}, v{c+2*m+1}")
    out1(15, 0); out1(15, 1)
    stamp(a, cfg, 14)
    a.e("""
    s_cmp_lg_u32 s3, 0
    s_cbranch_scc1 L_b_norst
    s_cmp_lg_u32 s39, 0
    s_cbranch_scc1 L_b_norst
    v_mov_b32 v20, 0
    s_mov_b64 exec, 1
    global_store_dword v20, v20, s[34:35] sc1
    s_mov_b64 exec, -1
    """)
    a.label("L_b_norst")
    a.vm = []
    for nt in range(2):
        for q in range(4):
            r = ACC + 16*nt + 4*q
            a.e(f"ds_write_b128 v24, v[{r}:{r+3}] offset:{nt*128 + q*32}")
    a.e("s_waitcnt lgkmcnt(0)")
    a.e("s_barrier")
    for r in range(2):
        o = r*32*272
        a.e(f"ds_read_b128 v[{32+16*r}:{35+16*r}], v25 offset:{o}")
        a.e(f"ds_read_b128 v[{40+16*r}:{43+16*r}], v25 offset:{o+64*272}")
        a.e(f"ds_read_b128 v[{36+16*r}:{39+16*r}], v25 offset:{o+16}")
        a.e(f"ds_read_b128 v[{44+16*r}:{47+16*r}], v25 offset:{o+64*272+16}")
    for r in range(2):
        a.e(f"s_waitcnt lgkmcnt({4 if r == 0 else 0})")
        b = 32 + 16*r
        for jj in range(8):
            a.e(f"v_add_f32 v{b+jj}, v{b+jj}, v{b+8+jj}")
        for m in range(4):
            a.e(f"v_cvt_pk_bf16_f32 v{64+4*r+m}, v{b+2*m}, v{b+2*m+1}")
        a.e(f"global_store_dwordx4 v{26+r}, v[{64+4*r}:{67+4*r}], s[32:33] {cfg.outfl}")
    stamps_out(a, cfg, 15)

TV = 240
def a_touch_setup(a, cfg):
    a.e(f"""
    s_lshr_b32 s62, s40, 1          ; tg
    s_and_b32 s63, s40, 1           ; hg
    s_lshl_b32 s64, s62, 9
    s_lshl_b32 s65, s41, 4          ; 16*jj
    s_add_u32 s64, s64, s65
    v_and_b32 v246, 15, v1
    v_lshrrev_b32 v247, 4, v1       ; 0..3
    v_add_u32 v241, s64, v246
    v_lshlrev_b32 v241, 10, v241
    v_lshl_add_u32 v241, v247, 7, v241
    v_add_u32 v241, 512, v241
    v_and_b32 v248, 3, v1
    v_lshlrev_b32 v248, 7, v248     ; line*128
    s_lshl_b32 s66, s63, 9          ; hg*512
    v_lshrrev_b32 v249, 2, v1
    v_add_u32 v240, s65, v249       ; 16jj + (l>>2)
    v_mul_u32_u24 v242, 3072, v240
    v_add3_u32 v242, v242, v248, s66
    v_add_u32 v244, {'QKV'.index(ORDER[2])*1024}, v242
    v_lshlrev_b32 v245, 10, v240
    v_add3_u32 v245, v245, v248, s66
    v_and_b32 v249, 7, v249
    s_lshl_b32 s67, s41, 3
    s_add_u32 s67, s67, 256
    v_add_u32 v249, s67, v249
    v_mul_u32_u24 v243, 3072, v249
    v_add3_u32 v243, v243, v248, s66
    v_add_u32 v240, {'QKV'.index(ORDER[1])*1024}, v242
    v_add_u32 v243, {'QKV'.index(ORDER[0])*1024}, v243
    """)

def a_touch(a, cfg, plan):
    fl = cfg.touch_flags
    info = {"x1": (241, "s[26:27]"), "q47": (243, "s[28:29]"), "k": (240, "s[28:29]"), "v": (244, "s[28:29]"), "o": (245, "s[30:31]")}
    for w, names in plan.items():
        L = a.newlabel("tch")
        a.e(f"s_cmp_eq_u32 s39, {w}")
        a.e(f"s_cbranch_scc0 {L}")
        for i, nm in enumerate(names):
            v, base = info[nm]
            a.e(f"global_load_dword v{250+i}, v{v}, {base} {fl}")
            a.vm.pop()
        a.label(L)

def role_A(a, cfg):
    a.label("L_roleA")
    a.e("""
    s_and_b32 s40, s3, 7
    s_lshr_b32 s41, s3, 3           ; j
    s_waitcnt lgkmcnt(0)
    """)
    if not cfg.do_A:
        if cfg.touch:
            a_touch_setup(a, cfg)
            a_touch(a, cfg, {2: ["x1"], 3: ["q47"]})
            a.e("s_waitcnt vmcnt(0)")
            a_touch(a, cfg, {1: ["k"], 2: ["v"], 3: ["o"]})
            a.e("s_waitcnt vmcnt(0)")
        a.e("s_branch L_end")
        return
    import role_a
    role_a.role_A(a, cfg)

def build(cfg):
    set_order(cfg.order)
    global DMAFL
    DMAFL = cfg.dmafl
    a = Asm()
    prologue(a, cfg)
    if cfg.layout == "BA":
        if cfg.do_B:
            role_B(a, cfg)
        a.e("s_branch L_end")
        a.vm = []; a.lg = []
        role_A(a, cfg)
    else:
        role_A(a, cfg)
        a.e("s_branch L_end")
        a.vm = []; a.lg = []
        a.label("L_roleB")
        role_B(a, cfg)
    a.label("L_end")
    a.e("s_endpgm")
    body = a.render()
    return body, a

HEADER = open("concat_heads__ssm_conv_s4__linear_attn_block__prompt.s.ref").read().split("; Override launch")[0]

def generate(path, cfg):
    body, a = build(cfg)
    txt = wrap(body, HEADER, 512, 256, 81920)
    open(path, "w").write(txt)
    return a

if __name__ == "__main__":
    sys.modules["kern"] = sys.modules["__main__"]
    cfg = Cfg()
    cfg.stamps = True
    if len(sys.argv) > 2:
        for kv in sys.argv[2:]:
            k, v = kv.split("=")
            setattr(cfg, k, int(v) if v.isdigit() else v)
    a = generate(sys.argv[1] if len(sys.argv) > 1 else "k_b1.s", cfg)
    print("nops inserted:", a.nnops)
```

```python
from asmlib import Asm
import kern as K

UT, YT = K.UT, K.YT
UTF, YTF = K.UTF, K.YTF
TILE = 3088
SPIN = K.SPIN_LIMIT
ROWB = 528
TB = [12288, 45056]
KC = [0, 1536]
NONCE_LDS = 3072
KD = [3088, 7200]
CP = [12288, 12288 + 16640]
UR = [45568, 45568 + 7600]
YP = 0
ROWS = list(range(8)) + [128+k for k in range(8)] + [256+2*k for k in range(4)] + [384+2*k for k in range(4)] + \
       [512, 516, 640, 644, 768, 772, 896, 900] + [1024+128*k for k in range(8)] + [2048]
assert len(ROWS) == 41

def fhex(x):
    import struct
    return hex(struct.unpack("<I", struct.pack("<f", x))[0])

USE_PK = False
def cmul(a, d, x, y, t):
    if USE_PK:
        a.e(f"v_pk_mul_f32 v[{t}:{t+1}], v[{x}:{x+1}], v[{y}:{y+1}] op_sel_hi:[1,0]")
        a.e(f"v_pk_fma_f32 v[{d}:{d+1}], v[{x}:{x+1}], v[{y}:{y+1}], v[{t}:{t+1}] op_sel:[1,1,0] op_sel_hi:[0,1,1] neg_lo:[1,0,0]")
    else:
        assert d not in (x, y)
        a.e(f"v_mul_f32 v{t}, v{x}, v{y}")
        a.e(f"v_mul_f32 v{t+1}, v{x+1}, v{y}")
        a.e(f"v_fma_f32 v{d}, -v{x+1}, v{y+1}, v{t}")
        a.e(f"v_fma_f32 v{d+1}, v{x}, v{y+1}, v{t+1}")

def poll_tags_loop(a, name, loads, tagregs):
    a.e("s_mov_b32 s61, 0")
    a.label(f"L_{name}_poll")
    for l in loads: a.e(l)
    a.e("s_add_u32 s61, s61, 1")
    a.e("s_waitcnt vmcnt(0)")
    K.tag_check(a, tagregs, acc="v9")
    a.e(f"""
    s_cmp_gt_u32 s61, {SPIN}
    s_cbranch_scc1 L_{name}_go
    s_cbranch_vccz L_{name}_go
    s_sleep 1
    s_branch L_{name}_poll
    """)
    a.label(f"L_{name}_go")
    a.vm = []


(A_TW, A_TR, A_UT0, A_UT1, A_TB, A_KM, A_C0, A_C1A, A_C1B, A_C2, A_DW, A_ER0, A_ER1, A_ZU, A_ZC, A_ZG,
 A_CR, A_CW, A_UG, A_UL, A_FU, A_FY, A_FUS, A_FYS, A_VA, A_VB, A_PW, A_OR, A_YG, A_YL, A_OUT) = (
 160, 161, 162, 163, 164, 168, 172, 173, 174, 175, 176, 177, 178, 179, 180, 181,
 182, 183, 184, 185, 186, 187, 188, 189, 190, 191, 192, 193, 194, 195, 199)

def role_A(a, cfg):
    global USE_PK
    USE_PK = cfg.pk
    st = lambda i: K.stamp(a, cfg, i)
    a.c("================= role A =================")
    if cfg.prioA and not cfg.late_prio: a.e(f"s_setprio {cfg.prioA}")
    a.e("""
    s_lshr_b32 s47, s39, 1
    s_and_b32 s48, s39, 1           ; w2
    s_lshl_b32 s49, s40, 6          ; 64 g
    s_lshl_b32 s50, s41, 1
    s_add_u32 s50, s50, s49         ; d0 = 64g + 2j
    s_add_u32 s51, s50, s47
    s_lshl_b32 s51, s51, 8
    v_and_b32 v2, 127, v0           ; n
    v_lshl_add_u32 v5, v2, 1, s51
    v_lshrrev_b32 v3, 4, v0         ; r''
    v_and_b32 v4, 15, v0            ; c8
    s_lshl_b32 s52, s41, 6
    v_lshl_add_u32 v6, v3, 2, s52   ; t0 = 64j + 4r''
    v_lshlrev_b32 v6, 10, v6
    s_lshl_b32 s53, s49, 1
    v_lshl_add_u32 v7, v4, 3, s53
    v_add_u32 v6, v6, v7            ; u offset
    s_lshl_b32 s45, s40, 2
    s_add_u32 s45, s45, 4
    v_mov_b32 v8, s45
    s_waitcnt lgkmcnt(0)
    """)
    st(1)
    a.e("""
    v_mov_b32 v202, v6
    v_mov_b32 v203, v7
    global_load_ushort v10, v5, s[10:11]
    global_load_ushort v11, v5, s[12:13]
    global_load_ushort v12, v5, s[14:15]
    global_load_ushort v13, v5, s[16:17]
    global_load_ushort v14, v5, s[18:19]
    global_load_ushort v15, v5, s[20:21]
    s_lshl_b32 s54, s50, 1
    s_add_u32 s54, s22, s54
    s_addc_u32 s55, s23, 0
    s_load_dword s56, s[54:55], 0
    s_cmp_lg_u32 s41, 0
    s_cbranch_scc1 L_a_nopub
    s_cmp_lg_u32 s39, 0
    s_cbranch_scc1 L_a_nopub
    s_memrealtime s[58:59]
    s_waitcnt lgkmcnt(0)
    s_or_b32 s58, s58, 8
    v_mov_b32 v9, s58
    s_mov_b64 exec, 1
    global_store_dword v8, v9, s[34:35] sc1
    s_mov_b64 exec, -1
    """)
    a.label("L_a_nopub")
    if cfg.codepf:
        a.e("""
        s_cmp_lg_u32 s39, 3
        s_cbranch_scc1 L_a_nocpf
        v_lshlrev_b32 v26, 7, v1
        global_load_dword v246, v26, s[4:5]
        v_add_u32 v26, 8192, v26
        global_load_dword v247, v26, s[4:5]
        v_add_u32 v26, 8192, v26
        v_min_u32 v26, L_end-L_pc0, v26
        global_load_dword v248, v26, s[4:5]
        """)
        a.label("L_a_nocpf")
    a.vm = []
    a.e(f"""
    v_and_b32 v26, 15, v1
    v_lshrrev_b32 v27, 4, v1
    v_bfe_u32 v28, v1, 2, 2
    v_and_b32 v29, 3, v1
    v_and_b32 v30, 31, v1
    v_lshrrev_b32 v31, 5, v1
    v_lshlrev_b32 v32, 2, v4
    v_mul_u32_u24 v32, 144, v32
    v_lshlrev_b32 v33, 3, v3
    v_sub_u32 v33, 120, v33
    v_add_u32 v32, v32, v33
    v_add_u32 v{A_TW}, {TILE}, v32
    v_lshrrev_b32 v32, 3, v1
    s_lshl_b32 s57, s39, 5
    v_add_u32 v32, s57, v32
    v_mul_u32_u24 v33, 144, v32
    v_and_b32 v34, 7, v1
    v_lshl_add_u32 v33, v34, 4, v33
    v_add_u32 v{A_TR}, {TILE}, v33
    v_add_u32 v32, s49, v32
    v_lshlrev_b32 v32, 12, v32
    v_lshl_add_u32 v32, v34, 4, v32
    s_sub_u32 s57, 31, s41
    s_lshl_b32 s57, s57, 7
    s_add_u32 s57, s57, {UT}
    v_add_u32 v{A_UT0}, s57, v32
    v_add_u32 v{A_UT1}, 32768, v{A_UT0}
    v_add_u32 v200, 65536, v{A_UT0}
    v_add_u32 v201, 98304, v{A_UT0}
    v_lshl_add_u32 v32, v27, 3, v28
    s_lshl_b32 s59, s47, 15
    s_add_u32 s59, s59, {TB[0]}
    v_and_b32 v33, 1, v2
    v_bfe_u32 v34, v2, 2, 1
    v_lshl_add_u32 v33, v34, 1, v33
    v_lshl_add_u32 v34, v2, 8, s59
    """)
    for cp in range(4):
        a.e(f"v_xor_b32 v35, {cp}, v33")
        a.e(f"v_lshl_add_u32 v{A_TB+cp}, v35, 5, v34")
    a.e(f"""
    v_lshlrev_b32 v34, 7, v32
    v_lshl_add_u32 v34, v29, 3, v34
    v_add_u32 v34, s59, v34
    v_lshrrev_b32 v33, 1, v28
    v_and_b32 v35, 1, v27
    v_lshl_add_u32 v33, v35, 1, v33
    """)
    for t in range(4):
        a.e(f"v_xor_b32 v35, {t}, v33")
        a.e(f"v_lshl_add_u32 v{A_KM+t}, v35, 5, v34")
    a.e(f"""
    s_mul_i32 s59, s47, {KC[1]-KC[0]}
    s_add_u32 s59, s59, {KC[0]}
    v_lshrrev_b32 v33, 1, v27
    v_lshlrev_b32 v33, 7, v33
    v_lshl_add_u32 v33, v26, 3, v33
    v_and_b32 v34, 1, v27
    v_lshl_add_u32 v33, v34, 2, v33
    v_lshl_add_u32 v{A_C0}, v33, 1, s59          ; tile 0
    v_lshlrev_b32 v33, 6, v27
    v_cmp_gt_u32 vcc, 2, v27
    v_lshlrev_b32 v34, 2, v26
    v_lshlrev_b32 v35, 1, v26
    v_cndmask_b32 v34, v35, v34, vcc
    v_add_u32 v33, v33, v34
    v_add_u32 v33, 256, v33
    v_mov_b32 v34, 32
    v_mov_b32 v35, 2
    v_cndmask_b32 v34, v34, v35, vcc
    v_add_u32 v34, v33, v34
    v_lshl_add_u32 v{A_C1A}, v33, 1, s59
    v_lshl_add_u32 v{A_C1B}, v34, 1, s59
    v_lshl_add_u32 v33, v27, 6, v26
    v_add_u32 v33, 512, v33
    v_lshl_add_u32 v{A_C2}, v33, 1, s59          ; tile 2
    v_lshlrev_b32 v33, 4, v0
    v_add_u32 v{A_DW}, 16, v33
    v_mov_b32 v{A_ER0}, v33
    v_lshlrev_b32 v34, 3, v0
    v_add_u32 v{A_ER1}, 256, v34
    s_cmp_eq_u32 s39, 1
    s_cbranch_scc0 L_a_ad1
    v_lshlrev_b32 v34, 2, v0
    v_add_u32 v{A_ER0}, 512, v34
    """)
    a.label("L_a_ad1")
    a.e(f"""
    s_cmp_ge_u32 s39, 2
    s_cbranch_scc0 L_a_ad2
    v_add_u32 v34, 384, v0
    v_lshlrev_b32 v{A_ER0}, 1, v34
    """)
    a.label("L_a_ad2")
    a.e(f"""
    v_mov_b32 v{A_ZU}, v33
    v_lshrrev_b32 v34, 2, v0
    v_mul_u32_u24 v34, 4160, v34
    v_and_b32 v35, 3, v0
    v_lshl_add_u32 v{A_ZC}, v35, 4, v34
    v_mul_u32_u24 v34, {KD[1]-KD[0]}, v0
    v_add_u32 v{A_ZG}, {KD[0]}, v34
    ; copies
    v_mov_b32 v{A_CR}, v33
    v_add_u32 v{A_CW}, 64, v33
    v_lshrrev_b32 v34, 7, v0                     ; cch
    v_add_u32 v35, s50, v34
    v_lshlrev_b32 v35, 12, v35
    v_lshl_add_u32 v35, v2, 4, v35
    v_add_u32 v{A_UG}, {UT}, v35
    v_lshrrev_b32 v35, 2, v2
    v_mul_u32_u24 v35, 80, v35
    v_and_b32 v36, 3, v2
    v_lshl_add_u32 v35, v36, 4, v35
    v_mul_u32_u24 v34, {UR[1]-UR[0]}, v34
    v_add_u32 v{A_UL}, v35, v34
    v_lshrrev_b32 v34, 3, v1
    v_lshlrev_b32 v34, 7, v34
    v_and_b32 v35, 7, v1
    v_lshl_add_u32 v34, v35, 2, v34
    s_lshl_b32 s58, s40, 10
    s_add_u32 s58, s58, {UTF}
    v_add_u32 v{A_FU}, s58, v34
    v_lshrrev_b32 v34, 3, v30
    v_lshlrev_b32 v34, 7, v34
    v_lshl_add_u32 v34, v35, 2, v34
    s_lshl_b32 s58, s40, 9
    s_add_u32 s58, s58, {YTF}
    v_add_u32 v{A_FY}, s58, v34
    s_lshl_b32 s57, s41, 1
    s_add_u32 s57, s57, s48
    s_lshr_b32 s59, s57, 3
    s_lshl_b32 s59, s59, 7
    s_and_b32 s57, s57, 7
    s_lshl_b32 s57, s57, 2
    s_add_u32 s57, s57, s59
    s_lshl_b32 s59, s40, 10
    s_add_u32 s57, s57, s59
    s_add_u32 s57, s57, {UTF}
    v_mov_b32 v{A_FUS}, s57
    s_lshr_b32 s59, s41, 3
    s_lshl_b32 s59, s59, 7
    s_and_b32 s57, s41, 7
    s_lshl_b32 s57, s57, 2
    s_add_u32 s57, s57, s59
    s_add_u32 s57, s57, s58
    v_mov_b32 v{A_FYS}, s57
    ; conv A: copy cc = (3 - i) & 3 ; CP[c] + cc*4160 + 2*(i + cc + 9 - 8hh) + w2*1024
    v_sub_u32 v34, 3, v30
    v_and_b32 v34, 3, v34
    v_mul_u32_u24 v35, 4160, v34
    v_add_u32 v36, v30, v34
    v_add_u32 v36, 9, v36
    v_lshlrev_b32 v37, 3, v31
    v_sub_u32 v36, v36, v37
    v_lshl_add_u32 v35, v36, 1, v35
    s_mul_i32 s57, s47, {CP[1]-CP[0]}
    s_lshl_b32 s58, s48, 10
    s_add_u32 s57, s57, s58
    s_add_u32 s57, s57, {CP[0]}
    v_add_u32 v{A_VA}, s57, v35
    ; conv B: UR[c] + (31 - a)*80 + 16 - 16hh + w2*1280
    v_sub_u32 v35, 31, v30
    v_mul_u32_u24 v35, 80, v35
    v_lshlrev_b32 v36, 4, v31
    v_sub_u32 v35, v35, v36
    v_add_u32 v35, 16, v35
    s_mul_i32 s57, s47, {UR[1]-UR[0]}
    s_mul_i32 s58, s48, {16*80}
    s_add_u32 s57, s57, s58
    s_add_u32 s57, s57, {UR[0]}
    v_add_u32 v{A_VB}, s57, v35
    v_mul_u32_u24 v35, 144, v30
    v_lshl_add_u32 v35, v31, 4, v35
    s_mul_i32 s57, s39, {64*144}
    v_add_u32 v{A_PW}, s57, v35
    v_lshrrev_b32 v35, 2, v0
    v_mul_u32_u24 v35, 144, v35
    v_and_b32 v36, 3, v0
    v_lshl_add_u32 v{A_OR}, v36, 5, v35
    s_lshl_b32 s57, s50, 12
    s_add_u32 s57, s57, {YT}
    v_lshl_add_u32 v{A_YG}, v0, 4, s57
    v_lshlrev_b32 v35, 2, v4
    v_add_u32 v35, s49, v35
    v_lshlrev_b32 v35, 12, v35
    v_lshl_add_u32 v35, v3, 3, v35
    s_lshl_b32 s59, s41, 7
    s_add_u32 s59, s59, {YT}
    v_add_u32 v{A_YL}, s59, v35
    v_add_u32 v{A_YL+1}, 4096, v{A_YL}
    v_add_u32 v{A_YL+2}, 8192, v{A_YL}
    v_add_u32 v{A_YL+3}, 12288, v{A_YL}
    v_lshlrev_b32 v35, 1, v6
    v_sub_u32 v{A_OUT}, v35, v7
    """)
    if cfg.touch:
        K.a_touch_setup(a, cfg)
    a.e("s_waitcnt vmcnt(0) lgkmcnt(0)")
    st(2)
    if cfg.prioA and cfg.late_prio: a.e(f"s_setprio {cfg.prioA}")
    if cfg.x_exit == "params":
        K.stamps_out(a, cfg, 14)
        a.e("s_branch L_end")
    a.e(f"""
    global_load_dwordx2 v[16:17], v202, s[8:9] {cfg.aldfl}
    global_load_dwordx2 v[18:19], v202, s[8:9] offset:1024 {cfg.aldfl}
    global_load_dwordx2 v[20:21], v202, s[8:9] offset:2048 {cfg.aldfl}
    global_load_dwordx2 v[22:23], v202, s[8:9] offset:3072 {cfg.aldfl}
    global_load_dwordx2 v[24:25], v203, s[24:25]
    """)
    nt2 = 0; nt3 = 0
    if cfg.uttouch:
        a.e(f"""
        s_cmp_lg_u32 s39, 2
        s_cbranch_scc1 L_a_nout0
        v_add_u32 v26, s49, v1
        v_lshlrev_b32 v26, 12, v26
        s_sub_u32 s57, 31, s41
        s_lshl_b32 s57, s57, 7
        s_add_u32 s57, s57, {UT}
        v_add_u32 v26, s57, v26
        global_load_dword v255, v26, s[36:37]
        """)
        a.label("L_a_nout0")
    a.e(f"""
    s_cmp_eq_u32 s39, 3
    s_cbranch_scc0 L_a_nopt
    global_load_dword v253, v{A_FU}, s[36:37] sc1
    global_load_dword v254, v{A_FY}, s[36:37] sc1
    """)
    a.label("L_a_nopt")
    nt3 += 2
    if cfg.touch:
        if not cfg.x_notouch1:
            K.a_touch(a, cfg, {2: ["x1"], 3: ["q47"]})
            nt2 += 1; nt3 += 1
    a.vm = []
    def a1_write():
        a.e(f"""
        s_cmp_eq_u32 s39, 2
        s_cbranch_scc1 L_a_uw2
        s_cmp_eq_u32 s39, 3
        s_cbranch_scc1 L_a_uw3
        s_waitcnt vmcnt(0)
        s_branch L_a_uwd
        """)
        a.label("L_a_uw2")
        a.e(f"s_waitcnt vmcnt({nt2})")
        a.e("s_branch L_a_uwd")
        a.label("L_a_uw3")
        a.e(f"s_waitcnt vmcnt({nt3})")
        a.label("L_a_uwd")
        a.e("""
        s_mov_b32 s57, 0x05040100
        s_mov_b32 s58, 0x07060302
        """)
        for e in range(4):
            sel = "s57" if e % 2 == 0 else "s58"
            h = e // 2
            a.e(f"v_perm_b32 v{32+2*e}, v{20+h}, v{22+h}, {sel}")
            a.e(f"v_perm_b32 v{33+2*e}, v{16+h}, v{18+h}, {sel}")
            a.e(f"ds_write_b64 v{A_TW}, v[{32+2*e}:{33+2*e}] offset:{e*144}")
    def a1_store():
        a.e("""
        s_cmp_ge_u32 s39, 2
        s_cbranch_scc1 L_a_nout
        """)
        for i in range(4):
            a.e(f"ds_read_b128 v[{224+4*i}:{227+4*i}], v{A_TR} offset:{i*8*144}")
        UTA = [A_UT0, A_UT1, 200, 201]
        for i in range(4):
            a.e(f"s_waitcnt lgkmcnt({3-i})")
            a.e(f"global_store_dwordx4 v{UTA[i]}, v[{224+4*i}:{227+4*i}], s[36:37] {cfg.locfl}")
        a.e("global_load_dword v9, v8, s[34:35] sc1")
        a.label("L_a_nout")
        a.vm = []
    def ut_flag():
        a.e(f"""
        s_cmp_ge_u32 s39, 2
        s_cbranch_scc1 L_a_nofl
        s_mov_b32 s61, 0
        """)
        if cfg.dbgN: st(4)
        a.e(f"""
        s_waitcnt vmcnt(0)
        """)
        if cfg.dbgN: st(7)
        a.e(f"""
        v_readfirstlane_b32 s38, v9
        s_cmp_lg_u32 s38, 0
        s_cbranch_scc1 L_a_nok
        """)
        a.label("L_a_npoll")
        a.e(f"""
        global_load_dword v9, v8, s[34:35] sc1
        s_waitcnt vmcnt(0)
        v_readfirstlane_b32 s38, v9
        s_add_u32 s61, s61, 1
        s_cmp_gt_u32 s61, {SPIN}
        s_cbranch_scc1 L_a_nok
        s_cmp_eq_u32 s38, 0
        s_cbranch_scc1 L_a_npoll
        """)
        a.label("L_a_nok")
        if cfg.dbgN:
            st(5); K.stampval(a, cfg, 6, "s61")
        a.e(f"""
        s_getreg_b32 s57, hwreg(HW_REG_XCC_ID)
        s_and_b32 s57, s57, 7
        s_and_b32 s58, s38, 0xfffffff8
        s_or_b32 s57, s57, s58
        v_mov_b32 v9, s57
        s_mov_b64 exec, 1
        global_store_dword v{A_FUS}, v9, s[36:37]
        s_mov_b64 exec, -1
        """)
        a.label("L_a_nofl")
        a.vm = []

    def gate():
        a.e(f"""
        s_cmp_lg_u32 s39, 3
        s_cbranch_scc1 L_a_gate_go
        s_lshl_b32 s57, s40, 8
        s_lshl_b32 s58, s41, 2
        s_add_u32 s57, s57, s58
        s_add_u32 s57, s57, {K.BDN}
        v_mov_b32 v28, s57
        v_mov_b32 v29, 0
        s_mov_b32 s61, 0
        """)
        a.label("L_a_gate_poll")
        a.e(f"""
        global_load_dword v30, v28, s[36:37] sc1
        global_load_dword v31, v29, s[34:35] sc1
        s_add_u32 s61, s61, 1
        s_waitcnt vmcnt(0)
        v_cmp_ne_u32 vcc, v30, v31
        v_cmp_eq_u32 s[64:65], 0, v31
        s_or_b64 vcc, vcc, s[64:65]
        s_cmp_gt_u32 s61, {cfg.gate_max}
        s_cbranch_scc1 L_a_gate_go
        s_cbranch_vccz L_a_gate_go
        s_sleep 2
        s_branch L_a_gate_poll
        """)
        a.label("L_a_gate_go")
        a.e("s_barrier")
    LOG2E = fhex(1.4426950408889634); INV2PI = fhex(0.15915494309189535)
    a.e(f"""
    s_lshr_b32 s59, s56, 16
    s_and_b32 s60, s56, 0xffff
    s_cmp_eq_u32 s47, 0
    s_cselect_b32 s59, s60, s59
    s_lshl_b32 s59, s59, 16
    v_mov_b32 v28, s59
    v_mul_f32 v29, {LOG2E}, v28
    v_mov_b32 v30, {LOG2E}
    v_fma_f32 v30, v28, v30, -v29
    v_fmac_f32 v30, 0x32a57060, v28
    v_exp_f32 v29, v29
    v_mul_f32 v30, {fhex(0.6931471805599453)}, v30
    v_fma_f32 v29, v29, v30, v29
    v_cvt_pk_bf16_f32 v29, v29, v29
    v_lshlrev_b32 v29, 16, v29
    """)
    for i in range(6): a.e(f"v_lshlrev_b32 v{10+i}, 16, v{10+i}")
    a.e(f"""
    v_mul_f32 v10, v29, v10          ; a_re
    v_mul_f32 v11, v29, v11          ; a_im
    v_mul_f32 v12, v29, v12          ; dB_re
    v_mul_f32 v13, v29, v13          ; dB_im
    v_mul_f32 v10, {LOG2E}, v10      ; ar2
    v_mul_f32 v11, {INV2PI}, v11     ; ai2
    """)
    P = {}
    nxtp = [50]
    def pair(name):
        P[name] = nxtp[0]; nxtp[0] += 2
        return P[name]
    TMP = [28, 30]
    ti = [0]
    def mul(dn, xn, yn):
        d = P.get(dn) or pair(dn)
        t = TMP[ti[0] % 2]; ti[0] += 1
        if cfg.x_tab and ti[0] % 2 == 0: return
        cmul(a, d, P[xn], P[yn], t)
    pair("X0"); cmul(a, P["X0"], 14, 12, 28)
    for x in (1, 8, 128, 256, 512, 1024):
        d = pair(f"E{x}")
        if x == 1:
            a.e(f"v_exp_f32 v6, v10")
            a.e(f"v_fract_f32 v7, v11")
        else:
            a.e(f"v_mul_f32 v6, {fhex(float(x))}, v10")
            a.e(f"v_mul_f32 v7, {fhex(float(x))}, v11")
            a.e(f"v_exp_f32 v6, v6")
            a.e(f"v_fract_f32 v7, v7")
        a.e(f"v_cos_f32 v26, v7")
        a.e(f"v_sin_f32 v27, v7")
        a.e(f"v_mul_f32 v{d}, v6, v26")
        a.e(f"v_mul_f32 v{d+1}, v6, v27")
    if cfg.dbgT: st(4)
    OUT = [120, 128]
    oc = [0]
    def put_chunk(q, names, neg):
        o = OUT[oc[0] % 2]; oc[0] += 1
        sg = "-" if neg else ""
        for m in range(4):
            x, y = P[names[2*m]], P[names[2*m+1]]
            a.e(f"v_cvt_pk_bf16_f32 v{o+m}, v{x}, v{y}")
            a.e(f"v_cvt_pk_bf16_f32 v{o+4+m}, {sg}v{x+1}, {sg}v{y+1}")
        ad = A_TB + (q >> 1)
        if not cfg.x_nowrite:
            a.e(f"ds_write_b128 v{ad}, v[{o}:{o+3}] offset:{(q & 1)*16}")
            a.e(f"ds_write_b128 v{ad}, v[{o+4}:{o+7}] offset:{128 + (q & 1)*16}")
    pair("ONE")
    a.e(f"v_mov_b32 v{P['ONE']}, 1.0")
    a.e(f"v_mov_b32 v{P['ONE']+1}, 0")
    for k in range(8): pair(f"S{k}")
    for k in range(1, 8):
        mul(f"X{k}", f"X{k-1}", "E1")
    put_chunk(0, [f"X{k}" for k in range(8)], True)
    P["Y8"] = P["E8"]
    mul("Y16", "Y8", "Y8"); mul("Y24", "Y16", "Y8"); mul("Y32", "Y16", "Y16")
    mul("Y40", "Y32", "Y8"); mul("Y48", "Y32", "Y16"); mul("Y56", "Y32", "Y24")
    put_chunk(6, ["ONE", "Y8", "Y16", "Y24", "Y32", "Y40", "Y48", "Y56"], False)
    if cfg.dbgT: st(6)
    mul("S0", "Y32", "Y32")
    for jj in range(1, 8): mul(f"S{jj}", "S0", f"Y{8*jj}")
    put_chunk(7, [f"S{k}" for k in range(8)], False)
    for k in range(8): mul(f"S{k}", f"X{k}", "E128")
    put_chunk(1, [f"S{k}" for k in range(8)], True)
    if cfg.mid_u:
        a1_write()
        a.e("s_waitcnt lgkmcnt(0)")
        a.e("s_barrier")
        a1_store()
    for i_, k in enumerate((0, 2, 4, 6)):
        mul(f"S{i_}", f"X{k}", "E256")
    for i_ in range(4):
        mul(f"S{4+i_}", f"S{i_}", "E128")
    put_chunk(2, [f"S{k}" for k in range(8)], True)
    mul("S0", "X0", "E512"); mul("S1", "X4", "E512")
    for i_ in range(2, 8): mul(f"S{i_}", f"S{i_-2}", "E128")
    put_chunk(3, [f"S{k}" for k in range(8)], True)
    mul("S0", "X0", "E1024")
    for i_ in range(1, 8): mul(f"S{i_}", f"S{i_-1}", "E128")
    pair("XL"); mul("XL", "S0", "E1024")
    put_chunk(4, [f"S{k}" for k in range(8)], True)
    a.e(f"v_cvt_pk_bf16_f32 v120, v{P['XL']}, -v{P['XL']+1}")
    a.e(f"ds_write_b16 v{A_TB+2}, v120 offset:16")
    a.e(f"ds_write_b16_d16_hi v{A_TB+2}, v120 offset:{128+16}")
    assert nxtp[0] <= 120, nxtp
    if cfg.mid_u: ut_flag()
    else: a1_write()
    if cfg.dbgT: st(7)
    a.e("s_waitcnt lgkmcnt(0)")
    if cfg.dbgT: st(8)
    a.e("s_barrier")
    st(3)
    if cfg.x_exit == "tables":
        K.stamps_out(a, cfg, 14)
        a.e("s_branch L_end")
    if not cfg.mid_u: a1_store()
    def look_issue():
        a.e(f"""
        s_cmp_lg_u32 s39, 0
        s_cbranch_scc1 L_a_uf0
        global_load_dword v30, v{A_FU}, s[36:37] sc1
        """)
        a.label("L_a_uf0")
    if cfg.mid_u: look_issue()
    if cfg.touch:
        K.a_touch(a, cfg, {2: ["k"]})
    if cfg.gate == 1: gate()
    YF, XF, D0 = 32, 64, 128
    def trfrag(dst, addr, s):
        a.e(f"ds_read_b64_tr_b16 v[{dst}:{dst+1}], v{addr} offset:{s*4096}")
        a.e(f"ds_read_b64_tr_b16 v[{dst+2}:{dst+3}], v{addr} offset:{s*4096 + 512}")
    a.e("""
    s_cmp_eq_u32 s48, 0
    s_cbranch_scc0 L_a_k2
    """)
    a.lg = []
    for s in range(8):
        trfrag(YF+4*s, A_KM+3, s)
        for t in range(2): trfrag(XF+32*t+4*s, A_KM+t, s)
    for s in range(8):
        a.e(f"s_waitcnt lgkmcnt({min(15, 6*(7-s))})")
        for t in range(2):
            c = "0" if s == 0 else f"v[{D0+4*t}:{D0+4*t+3}]"
            a.e(f"v_mfma_f32_16x16x32_bf16 v[{D0+4*t}:{D0+4*t+3}], v[{XF+32*t+4*s}:{XF+32*t+4*s+3}], v[{YF+4*s}:{YF+4*s+3}], {c}")
    a.e(f"""
    v_cvt_pk_bf16_f32 v136, v{D0}, v{D0+1}
    v_cvt_pk_bf16_f32 v137, v{D0+2}, v{D0+3}
    v_cvt_pk_bf16_f32 v138, v{D0+4}, v{D0+5}
    v_cvt_pk_bf16_f32 v139, v{D0+6}, v{D0+7}
    ds_write_b64 v{A_C0}, v[136:137]
    ds_write_b32 v{A_C1A}, v138
    ds_write_b32 v{A_C1B}, v139
    s_branch L_a_kdone
    """)
    a.label("L_a_k2")
    for s in range(8):
        trfrag(YF+4*s, A_KM+3, s)
        trfrag(XF+4*s, A_KM+2, s)
    for s in range(8):
        a.e(f"s_waitcnt lgkmcnt({min(15, 4*(7-s))})")
        c = "0" if s == 0 else f"v[{D0}:{D0+3}]"
        a.e(f"v_mfma_f32_16x16x32_bf16 v[{D0}:{D0+3}], v[{XF+4*s}:{XF+4*s+3}], v[{YF+4*s}:{YF+4*s+3}], {c}")
    a.e(f"""
    v_cvt_pk_bf16_f32 v136, v{D0}, v{D0+1}
    v_cvt_pk_bf16_f32 v137, v{D0+2}, v{D0+3}
    ds_write_b16 v{A_C2}, v136
    ds_write_b16_d16_hi v{A_C2}, v136 offset:32
    ds_write_b16 v{A_C2}, v137 offset:64
    ds_write_b16_d16_hi v{A_C2}, v137 offset:96
    """)
    a.label("L_a_kdone")
    def look_check(issue):
        a.e(f"""
        s_cmp_lg_u32 s39, 0
        s_cbranch_scc1 L_a_uf1
        """)
        if issue: a.e(f"global_load_dword v30, v{A_FU}, s[36:37] sc1")
        a.e(f"""
        s_and_b32 s58, s38, 0xfffffff8
        s_getreg_b32 s57, hwreg(HW_REG_XCC_ID)
        s_and_b32 s57, s57, 7
        s_or_b32 s59, s57, s58
        s_waitcnt vmcnt(0)
        v_cmp_ne_u32 vcc, s59, v30
        s_cmp_eq_u64 vcc, 0
        s_cselect_b32 s57, 1, 0
        v_mov_b32 v31, s57
        v_mov_b32 v30, 0
        ds_write_b32 v30, v31 offset:{NONCE_LDS+8}
        ds_write_b32 v30, v31 offset:{NONCE_LDS+4}
        """)
        a.label("L_a_uf1")
    def ready_loads():
        a.e(f"""
        v_mov_b32 v30, 0
        ds_read_b32 v31, v30 offset:{NONCE_LDS+8}
        s_waitcnt lgkmcnt(0)
        v_readfirstlane_b32 s44, v31
        s_cmp_eq_u32 s44, 0
        s_cbranch_scc1 L_a_ul0
        global_load_dwordx4 v[208:211], v{A_UG}, s[36:37] sc1
        global_load_dwordx4 v[212:215], v{A_UG}, s[36:37] offset:2048 sc1
        """)
        a.label("L_a_ul0")
    if cfg.mid_u: look_check(False)
    else: ut_flag()
    if cfg.touch:
        K.a_touch(a, cfg, {3: ["v"]})
    a.e(f"""
    s_mov_b32 s57, 0x01000100
    s_mov_b32 s58, 0x03020302
    s_mov_b32 s59, 0x05040302
    s_mov_b32 s63, 0x05040100
    v_mov_b32 v48, 0
    v_mov_b32 v49, 0
    v_mov_b32 v50, 0
    v_mov_b32 v51, 0
    s_waitcnt lgkmcnt(0)
    s_barrier
    """)
    a.lg = []
    if cfg.mid_u: ready_loads()
    if not (cfg.dbgT or cfg.dbgY or cfg.dbgN): st(4)
    a.e("""
    s_cmp_eq_u32 s39, 0
    s_cbranch_scc1 L_a_e0
    s_cmp_eq_u32 s39, 1
    s_cbranch_scc1 L_a_e2
    """)
    for c in range(2):
        a.e(f"ds_read_u16 v{32+2*c}, v{A_ER0} offset:{KC[c]}")
        a.e(f"ds_read_u16 v{33+2*c}, v{A_ER0} offset:{KC[c]+2}")
    a.e(f"""
    v_and_b32 v28, 1, v0
    v_cmp_eq_u32 vcc, 0, v28
    s_waitcnt lgkmcnt(0)
    """)
    for c in range(2):
        c0, c1 = 32+2*c, 33+2*c
        o = 40 + 4*c
        a.e(f"v_perm_b32 v{o}, v{c1}, v{c0}, s57")
        a.e(f"v_perm_b32 v{o+3}, v{c0}, v{c1}, s57")
        a.e(f"v_perm_b32 v{o+2}, v{c1}, v{c0}, s63")
        a.e(f"v_mov_b32 v{o+1}, v{o}")
        a.e(f"v_cndmask_b32 v{o+2}, v{o+3}, v{o+2}, vcc")
    a.e("s_branch L_a_ew")
    a.label("L_a_e2")
    for c in range(2):
        a.e(f"ds_read_b32 v{32+2*c}, v{A_ER0} offset:{KC[c]}")
        a.e(f"ds_read_b32 v{33+2*c}, v{A_ER0} offset:{KC[c]+4}")
    a.e("s_waitcnt lgkmcnt(0)")
    for c in range(2):
        A_, B_ = 32+2*c, 33+2*c
        o = 40 + 4*c
        a.e(f"v_perm_b32 v{o}, v{A_}, v{A_}, s57")
        a.e(f"v_mov_b32 v{o+1}, v{A_}")
        a.e(f"v_perm_b32 v{o+2}, v{A_}, v{A_}, s58")
        a.e(f"v_perm_b32 v{o+3}, v{B_}, v{B_}, s57")
    a.e("s_branch L_a_ew")
    a.label("L_a_e0")
    for c in range(2):
        a.e(f"ds_read_b128 v[{40+4*c}:{43+4*c}], v{A_ER0} offset:{KC[c]}")
        a.e(f"ds_read_b64 v[{32+4*c}:{33+4*c}], v{A_ER1} offset:{KC[c]}")
        a.e(f"ds_read_b32 v{34+4*c}, v{A_ER1} offset:{KC[c]+8}")
    a.e("""
    v_cmp_le_u32 vcc, 32, v0
    s_waitcnt lgkmcnt(0)
    """)
    for c in range(2):
        A_, B_, C_ = 32+4*c, 33+4*c, 34+4*c
        o = 40 + 4*c
        a.e(f"v_perm_b32 v52, v{A_}, v{A_}, s57")
        a.e(f"v_perm_b32 v53, v{B_}, v{A_}, s59")
        a.e(f"v_perm_b32 v54, v{B_}, v{B_}, s57")
        a.e(f"v_perm_b32 v55, v{C_}, v{B_}, s59")
        for q in range(4):
            a.e(f"v_cndmask_b32 v{o+q}, v{o+q}, v{52+q}, vcc")
    a.label("L_a_ew")
    for c in range(2):
        a.e(f"ds_write_b128 v{A_DW}, v[{40+4*c}:{43+4*c}] offset:{KD[c]}")
    a.e(f"""
    v_cmp_gt_u32 vcc, 160, v0
    s_and_b64 exec, exec, vcc
    ds_write_b128 v{A_ZU}, v[48:51] offset:{UR[0] + 64*80}
    ds_write_b128 v{A_ZU}, v[48:51] offset:{UR[1] + 64*80}
    v_cmp_gt_u32 vcc, 32, v0
    s_and_b64 exec, exec, vcc
    ds_write_b128 v{A_ZC}, v[48:51] offset:{CP[0]}
    v_cmp_gt_u32 vcc, 2, v0
    s_and_b64 exec, exec, vcc
    ds_write_b128 v{A_ZG}, v[48:51]
    s_mov_b64 exec, -1
    """)
    if not cfg.mid_u: look_check(True)
    a.e("""
    s_waitcnt lgkmcnt(0)
    s_barrier
    """)
    if not cfg.mid_u: ready_loads()
    a.vm = []
    if not (cfg.dbgT or cfg.dbgY or cfg.dbgN): st(5)
    for c in range(2):
        b = 32 + 16*c
        a.e(f"ds_read_b64 v[{b}:{b+1}], v{A_CR} offset:{KD[c] + 8}")
        a.e(f"ds_read_b128 v[{b+4}:{b+7}], v{A_CR} offset:{KD[c] + 16}")
    for c in range(2):
        a.e(f"s_waitcnt lgkmcnt({2 - 2*c})" if c == 0 else "s_waitcnt lgkmcnt(4)")
        b = 32 + 16*c
        n0, n1, n2, n3, n4, n5 = b, b+1, b+4, b+5, b+6, b+7
        m = b + 8
        t1 = 96 + 8*c
        base = CP[c]
        a.e(f"ds_write_b128 v{A_CW}, v[{n2}:{n5}] offset:{base}")
        a.e(f"v_alignbit_b32 v{m}, v{n1}, v{n0}, 16")
        for q, (hi, lo) in enumerate(((n2, n1), (n3, n2), (n4, n3))):
            a.e(f"v_alignbit_b32 v{m+1+q}, v{hi}, v{lo}, 16")
        a.e(f"ds_write_b128 v{A_CW}, v[{m}:{m+3}] offset:{base + 3*4160}")
        for q, (hi, lo) in enumerate(((n2, n1), (n3, n2), (n4, n3), (n5, n4))):
            a.e(f"v_alignbit_b32 v{t1+q}, v{hi}, v{lo}, 16")
        a.e(f"ds_write_b128 v{A_CW}, v[{t1}:{t1+3}] offset:{base + 4160}")
        for q, r in enumerate((n1, n2, n3, n4)): a.e(f"v_mov_b32 v{t1+4+q}, v{r}")
        a.e(f"ds_write_b128 v{A_CW}, v[{t1+4}:{t1+7}] offset:{base + 2*4160}")
    if not (cfg.dbgT or cfg.dbgY or cfg.dbgN): st(6)
    a.e(f"""
    s_cmp_lg_u32 s44, 0
    s_cbranch_scc1 L_a_fast
    s_cmp_ge_u32 s39, 2
    s_cbranch_scc1 L_a_utf_go
    s_and_b32 s58, s38, 0xfffffff8
    s_getreg_b32 s57, hwreg(HW_REG_XCC_ID)
    s_and_b32 s57, s57, 7
    s_or_b32 s59, s57, s58
    s_mov_b32 s61, 0
    v_add_u32 v28, 8192, v{A_FU}
    """)
    a.label("L_a_utf_poll")
    a.e(f"""
    global_load_dword v30, v{A_FU}, s[36:37] sc1
    global_load_dword v31, v28, s[36:37] sc1
    s_add_u32 s61, s61, 1
    s_waitcnt vmcnt(0)
    v_cmp_ne_u32 vcc, s59, v30
    s_cmp_eq_u64 vcc, 0
    s_cbranch_scc1 L_a_utf_local
    v_cmp_ne_u32 s[64:65], s58, v31
    s_and_b64 vcc, vcc, s[64:65]
    s_cbranch_vccz L_a_utf_glob
    s_cmp_eq_u32 s61, {cfg.ut_patience}
    s_cbranch_scc0 L_a_utf_again
    s_mov_b32 s60, 0
    """)
    a.label("L_a_utf_pub")
    a.e(f"""
    global_store_dwordx4 v{A_UT0}, v[224:227], s[36:37] sc1
    global_store_dwordx4 v{A_UT1}, v[228:231], s[36:37] sc1
    global_store_dwordx4 v200, v[232:235], s[36:37] sc1
    global_store_dwordx4 v201, v[236:239], s[36:37] sc1
    s_waitcnt vmcnt(0)
    v_add_u32 v29, 8192, v{A_FUS}
    v_mov_b32 v30, s58
    s_mov_b64 exec, 1
    global_store_dword v29, v30, s[36:37] sc1
    s_mov_b64 exec, -1
    s_cmp_lg_u32 s60, 0
    s_cbranch_scc1 L_a_utf_glob2
    """)
    a.label("L_a_utf_again")
    a.e(f"""
    s_cmp_gt_u32 s61, {SPIN}
    s_cbranch_scc1 L_a_utf_glob2
    s_sleep {cfg.sl_ut}
    s_branch L_a_utf_poll
    """)
    a.label("L_a_utf_local")
    a.e("s_mov_b32 s57, 1")
    a.e("s_branch L_a_utf_ok")
    a.label("L_a_utf_glob")
    a.e(f"""
    s_mov_b32 s60, 1
    s_cmp_lt_u32 s61, {cfg.ut_patience}
    s_cbranch_scc1 L_a_utf_pub
    s_cmp_eq_u32 s61, {cfg.ut_patience}
    s_cbranch_scc1 L_a_utf_pub
    """)
    a.label("L_a_utf_glob2")
    a.e("s_mov_b32 s57, 0")
    a.label("L_a_utf_ok")
    a.e(f"""
    v_mov_b32 v31, s57
    v_mov_b32 v30, 0
    ds_write_b32 v30, v31 offset:{NONCE_LDS+4}
    """)
    a.label("L_a_utf_go")
    a.e(f"""
    s_waitcnt lgkmcnt(0)
    s_barrier
    global_load_dwordx4 v[208:211], v{A_UG}, s[36:37] sc1
    global_load_dwordx4 v[212:215], v{A_UG}, s[36:37] offset:2048 sc1
    """)
    a.label("L_a_fast")
    a.e(f"""
    v_mov_b32 v30, 0
    ds_read_b32 v31, v30 offset:{NONCE_LDS+4}
    """)
    for e in range(4):
        h, hi = e // 2, e % 2
        a.e(f"v_{'and_b32' if hi else 'lshlrev_b32'} v{80+e}, {'0xffff0000' if hi else '16'}, v{24+h}")
    for rho in range(4):
        for e in range(4):
            h, hi = e // 2, e % 2
            a.e(f"v_{'and_b32' if hi else 'lshlrev_b32'} v{96+4*rho+e}, {'0xffff0000' if hi else '16'}, v{16+2*rho+h}")
            a.e(f"v_mul_f32 v{96+4*rho+e}, v{96+4*rho+e}, v{80+e}")
        for h in range(2):
            a.e(f"v_cvt_pk_bf16_f32 v{84+h}, v{96+4*rho+2*h}, v{96+4*rho+2*h+1}")
        for h in range(2):
            a.e(f"v_lshlrev_b32 v{96+4*rho+2*h}, 16, v{84+h}")
            a.e(f"v_and_b32 v{96+4*rho+2*h+1}, 0xffff0000, v{84+h}")
    a.e("s_waitcnt vmcnt(0) lgkmcnt(0)")
    a.e("v_readfirstlane_b32 s46, v31")
    if cfg.yglobal: a.e("s_mov_b32 s46, 0")
    a.vm = []
    if not (cfg.dbgT or cfg.dbgY or cfg.dbgN): st(7)
    a.e(f"""
    ds_write_b128 v{A_UL}, v[208:211] offset:{UR[0]}
    ds_write_b128 v{A_UL}, v[212:215] offset:{UR[0] + 32*80}
    s_waitcnt lgkmcnt(0)
    s_barrier
    """)
    if not (cfg.dbgT or cfg.dbgY or cfg.dbgN): st(8)
    a.e(f"s_setprio {cfg.prioA2}")
    if cfg.touch:
        K.a_touch(a, cfg, {3: ["o"]})
    if cfg.ytouch:
        a.e(f"""
        s_cmp_lg_u32 s39, 2
        s_cbranch_scc1 L_a_noyt
        s_lshl_b32 s57, s50, 12
        s_add_u32 s57, s57, {YT}
        v_lshl_add_u32 v28, v1, 7, s57
        global_load_dword v252, v28, s[36:37]
        """)
        a.label("L_a_noyt")
    if cfg.x_exit == "prep":
        K.stamps_out(a, cfg, 14)
        a.e("s_branch L_end")
    if cfg.gate == 2: gate()
    ACC0, ACC1 = 128, 144
    NB = 3
    FR = [32 + 16*i for i in range(NB)]
    steps = [(dl, hf) for dl in range(16) for hf in range(2)]
    def rd(i):
        dl, hf = steps[i]
        f = FR[i % NB]
        ao = 64*dl + 32*(1-hf)
        bo = 80*dl + 32*(1-hf)
        t = f"cv{i}"
        return [(f"ds_read_b64 v[{f}:{f+1}], v{A_VA} offset:{ao}", t),
                (f"ds_read_b64 v[{f+2}:{f+3}], v{A_VA} offset:{ao+8}", t),
                (f"ds_read_b128 v[{f+8}:{f+11}], v{A_VB} offset:{bo+2560}", t),
                (f"ds_read_b128 v[{f+12}:{f+15}], v{A_VB} offset:{bo}", t),
                (f"ds_read_b64 v[{f+4}:{f+5}], v{A_VA} offset:{ao+2048}", t),
                (f"ds_read_b64 v[{f+6}:{f+7}], v{A_VA} offset:{ao+2056}", t)]
    a.lg = []
    for i in (0, 1):
        for t, tg in rd(i): a.e(t, lg=tg)
    for i in range(cfg.x_conv):
        f = FR[i % NB]
        a.wait_lg(f"cv{i}")
        c0 = "0" if i == 0 else f"v[{ACC0}:{ACC0+15}]"
        c1 = "0" if i == 0 else f"v[{ACC1}:{ACC1+15}]"
        R = rd(i + 2) if i + 2 < cfg.x_conv else []
        a.e(f"v_mfma_f32_32x32x16_bf16 v[{ACC0}:{ACC0+15}], v[{f}:{f+3}], v[{f+8}:{f+11}], {c0}")
        for t, tg in R[0:2]: a.e(t, lg=tg)
        a.e(f"v_mfma_f32_32x32x16_bf16 v[{ACC1}:{ACC1+15}], v[{f}:{f+3}], v[{f+12}:{f+15}], {c1}")
        for t, tg in R[2:4]: a.e(t, lg=tg)
        a.e(f"v_mfma_f32_32x32x16_bf16 v[{ACC1}:{ACC1+15}], v[{f+4}:{f+7}], v[{f+8}:{f+11}], v[{ACC1}:{ACC1+15}]")
        for t, tg in R[4:6]: a.e(t, lg=tg)
    st(9)
    if cfg.x_exit == "conv":
        K.stamps_out(a, cfg, 14)
        a.e("s_branch L_end")
    if cfg.utclean == 2:
        a.e(f"""
        s_cmp_ge_u32 s39, 2
        s_cbranch_scc1 L_a_nocl2
        global_store_dwordx4 v{A_UT0}, v[224:227], s[36:37] sc1
        global_store_dwordx4 v{A_UT1}, v[228:231], s[36:37] sc1
        global_store_dwordx4 v200, v[232:235], s[36:37] sc1
        global_store_dwordx4 v201, v[236:239], s[36:37] sc1
        s_nop 1
        """)
        a.label("L_a_nocl2")
    a.e(f"s_setprio {cfg.prioA3}")
    a.e("""
    s_waitcnt vmcnt(0) lgkmcnt(0)
    s_barrier
    """)
    for tau, acc in ((0, ACC0), (1, ACC1)):
        for q in range(4):
            a.e(f"ds_write_b128 v{A_PW}, v[{acc+4*q}:{acc+4*q+3}] offset:{YP + tau*32*144 + q*32}")
    a.e("""
    s_waitcnt lgkmcnt(0)
    s_barrier
    """)
    for c in range(2):
        o = YP + (c*2)*64*144
        b = 32 + 16*c
        a.e(f"ds_read_b128 v[{b}:{b+3}], v{A_OR} offset:{o}")
        a.e(f"ds_read_b128 v[{b+8}:{b+11}], v{A_OR} offset:{o + 64*144}")
        a.e(f"ds_read_b128 v[{b+4}:{b+7}], v{A_OR} offset:{o + 16}")
        a.e(f"ds_read_b128 v[{b+12}:{b+15}], v{A_OR} offset:{o + 64*144 + 16}")
    for c in range(2):
        a.e(f"s_waitcnt lgkmcnt({4-4*c})")
        b = 32 + 16*c
        for q in range(8): a.e(f"v_add_f32 v{b+q}, v{b+q}, v{b+8+q}")
        for m in range(4): a.e(f"v_cvt_pk_bf16_f32 v{64+4*c+m}, v{b+2*m}, v{b+2*m+1}")
    a.e(f"""
    v_add_u32 v29, 4096, v{A_YG}
    s_cmp_eq_u32 s46, 0
    s_cbranch_scc1 L_a_yg
    global_store_dwordx4 v{A_YG}, v[64:67], s[36:37] {cfg.locfl}
    global_store_dwordx4 v29, v[68:71], s[36:37] {cfg.locfl}
    s_branch L_a_yd
    """)
    a.label("L_a_yg")
    a.e(f"""
    global_store_dwordx4 v{A_YG}, v[64:67], s[36:37] sc1
    global_store_dwordx4 v29, v[68:71], s[36:37] sc1
    """)
    a.label("L_a_yd")
    a.e(f"""
    s_waitcnt vmcnt(0)
    s_barrier
    """)
    st(10)
    a.e(f"""
    s_cmp_lg_u32 s39, 1
    s_cbranch_scc1 L_a_ytf_go
    v_mov_b32 v28, s38
    s_mov_b64 exec, 1
    s_cmp_eq_u32 s46, 0
    s_cbranch_scc1 L_a_yfg
    global_store_dword v{A_FYS}, v28, s[36:37]
    s_branch L_a_yfd
    """)
    a.label("L_a_yfg")
    a.e(f"global_store_dword v{A_FYS}, v28, s[36:37] sc1")
    a.label("L_a_yfd")
    a.e("s_mov_b64 exec, -1")
    if cfg.dbgY: st(4)
    a.e("s_mov_b32 s61, 0")
    a.label("L_a_ytf_poll")
    a.e(f"""
    global_load_dword v29, v{A_FY}, s[36:37] sc1
    s_add_u32 s61, s61, 1
    s_waitcnt vmcnt(0)
    v_cmp_ne_u32 vcc, s38, v29
    s_cmp_gt_u32 s61, {SPIN}
    s_cbranch_scc1 L_a_ytf_go
    s_cbranch_vccz L_a_ytf_go
    s_sleep {cfg.sl_yt}
    s_branch L_a_ytf_poll
    """)
    a.label("L_a_ytf_go")
    if cfg.dbgY:
        st(5); K.stampval(a, cfg, 7, "s61")
    a.e("s_barrier")
    if cfg.dbgY: st(6)
    a.e(f"""
    global_load_dwordx2 v[64:65], v{A_YL}, s[36:37] sc1
    global_load_dwordx2 v[66:67], v{A_YL+1}, s[36:37] sc1
    global_load_dwordx2 v[68:69], v{A_YL+2}, s[36:37] sc1
    global_load_dwordx2 v[70:71], v{A_YL+3}, s[36:37] sc1
    s_waitcnt vmcnt(0)
    """)
    st(11)
    for rho in range(4):
        m, hi = rho // 2, rho % 2
        for e in range(4):
            src = 64 + 2*e + m
            a.e(f"v_{'and_b32' if hi else 'lshlrev_b32'} v{84+e}, {'0xffff0000' if hi else '16'}, v{src}")
        for e in range(4):
            a.e(f"v_add_f32 v{84+e}, v{84+e}, v{96+4*rho+e}")
        a.e(f"v_cvt_pk_bf16_f32 v{88+2*rho}, v84, v85")
        a.e(f"v_cvt_pk_bf16_f32 v{89+2*rho}, v86, v87")
        if rho == 2: a.e(f"v_add_u32 v{A_OUT}, 4096, v{A_OUT}")
        a.e(f"global_store_dwordx2 v{A_OUT}, v[{88+2*rho}:{89+2*rho}], s[32:33] offset:{2048*(rho % 2)} {cfg.outfl}")
    if cfg.utclean == 1:
        a.e(f"""
        s_cmp_ge_u32 s39, 2
        s_cbranch_scc1 L_a_nocl
        global_store_dwordx4 v{A_UT0}, v[224:227], s[36:37] sc1
        global_store_dwordx4 v{A_UT1}, v[228:231], s[36:37] sc1
        global_store_dwordx4 v200, v[232:235], s[36:37] sc1
        global_store_dwordx4 v201, v[236:239], s[36:37] sc1
        s_nop 1
        """)
        a.label("L_a_nocl")
    a.e("""
    s_cmp_lg_u32 s41, 0
    s_cbranch_scc1 L_a_norst
    s_cmp_lg_u32 s39, 1
    s_cbranch_scc1 L_a_norst
    v_mov_b32 v8, s45
    v_mov_b32 v9, 0
    s_mov_b64 exec, 1
    global_store_dword v8, v9, s[34:35] sc1
    s_mov_b64 exec, -1
    """)
    a.label("L_a_norst")
    st(12)
    K.stampval(a, cfg, 13, "s46")
    K.stamps_out(a, cfg, 14)
```

```python
import sys
from asmlib import Asm, wrap

UT   = 0
YT   = 4 << 20
PQ   = 8 << 20
PQF  = 10 << 20
KVP  = (10 << 20) + (64 << 10)
KVF  = 12 << 20
UTF  = (12 << 20) + (64 << 10)
YTF  = (12 << 20) + (96 << 10)
BDN  = (12 << 20) + (112 << 10)
KVBLK = 2176
LOG2E = 0x3fb8aa3b
EPS   = 0x358637bd
SPIN_LIMIT = 200000

class Cfg:
    do_A = True
    do_B = True
    do_B2 = True
    touch = True
    dual = False
    x_nowrite = False
    prioA = 1
    prioA2 = 0
    dbgT = 0
    codepf = 0
    layout = "BA"
    x_notouch1 = 0
    o_after = 0
    ka_first = 0
    order = "KVQ"
    late_prio = 1
    bfirst = 0
    prioBw = 1
    prioBm = 3
    gate = 0
    gate_max = 40
    x_exit = ""
    x_conv = 32
    x_tab = 0
    x_main = 16
    x_epi = 0
    locfl = ""
    mid_u = 1
    qe_end = 26
    pqflag_g = 14
    dmafl = ""
    aldfl = ""
    zpoll = 0
    sl_ka = 1
    sl_kz = 1
    sl_pq = 1
    sl_red = 1
    sl_yt = 1
    sl_ut = 1
    late_o = 1
    yglobal = 0
    utclean = 0
    outfl = "sc1"
    uttouch = 0
    ninit = 6
    dbgN = 0
    ut_patience = 200
    flagpos = 0
    ytouch = 1
    dbgY = 0
    prioA3 = 0
    prioB = 1
    pk = 1
    b_exit = False
    touch_flags = ""
    early_release = True
    dma_early = False
    last_dma = 40
    late_pre = 0
    touch_mode = "late"
    stamps = False

STAMP_BASE = 14 << 20
def stamp(a, cfg, i):
    if cfg.stamps == 1:
        a.e(f"s_memtime s[{70+2*i}:{71+2*i}]")
def stampval(a, cfg, i, sreg):
    if cfg.stamps == 1:
        a.e("s_waitcnt lgkmcnt(0)")
        a.e(f"s_add_u32 s{70+2*i}, {sreg}, s70")
def stamps_out(a, cfg, n, vt=22):
    if not cfg.stamps: return
    a.e("s_memrealtime s[68:69]")
    a.e("s_waitcnt lgkmcnt(0) vmcnt(0)")
    a.vm = []
    if cfg.stamps == 2: n = 1
    for i in range(1, n):
        a.e(f"s_sub_u32 s{70+2*i}, s{70+2*i}, s70")
    a.e(f"""
    s_lshl_b32 s61, s2, 2
    s_add_u32 s61, s61, s39
    s_lshl_b32 s61, s61, 6
    s_add_u32 s61, s61, {STAMP_BASE}
    v_mov_b32 v{vt}, s61
    s_mov_b64 exec, 1
    """)
    for i in range(16):
        src = f"s{70+2*i}" if (0 < i < n) else ("s68" if i == 15 else ("s100" if i == 0 else "0"))
        a.e(f"v_mov_b32 v{vt+1}, {src}")
        a.e(f"global_store_dword v{vt}, v{vt+1}, s[36:37] offset:{4*i}")
        a.e("s_nop 1")
    a.e("s_waitcnt vmcnt(0)")
    a.e("s_mov_b64 exec, -1")
    a.vm = []

def prologue(a, cfg):
    if cfg.stamps:
        a.e("s_memrealtime s[100:101]")
        a.e("s_memtime s[70:71]")
    a.e("""
    s_cmp_ge_u32 s2, 512
    s_cbranch_scc1 L_end
    s_load_dwordx16 s[8:23], s[0:1], 0
    s_load_dwordx8 s[24:31], s[0:1], 64
    s_load_dwordx4 s[32:35], s[0:1], 96
    s_load_dwordx2 s[36:37], s[0:1], 112
    v_lshrrev_b32 v1, 6, v0
    v_readfirstlane_b32 s39, v1
    v_and_b32 v1, 63, v0
    s_and_b32 s3, s2, 255
    s_cmp_lt_u32 s2, 256
    """)
    if cfg.layout == "BA":
        a.e("s_cbranch_scc1 L_roleA" if not cfg.bfirst else "s_cbranch_scc0 L_roleA")
    else:
        a.e("s_cbranch_scc0 L_roleB" if not cfg.bfirst else "s_cbranch_scc1 L_roleB")

def poll_nonce(a, vtmp, vaddr0, first_tag=None):
    L = a.newlabel("nonce"); Lx = a.newlabel("nonce_ok")
    if first_tag:
        a.wait_vm(first_tag)
    else:
        a.e(f"global_load_dword {vtmp}, {vaddr0}, s[34:35] sc1")
        a.wait_vm_all()
    a.e(f"v_readfirstlane_b32 s38, {vtmp}")
    a.e(f"""
    s_cmp_lg_u32 s38, 0
    s_cbranch_scc1 {Lx}
    s_mov_b32 s61, 0
    """)
    a.label(L)
    a.e(f"""
    global_load_dword {vtmp}, {vaddr0}, s[34:35] sc1
    s_waitcnt vmcnt(0)
    v_readfirstlane_b32 s38, {vtmp}
    s_add_u32 s61, s61, 1
    s_cmp_gt_u32 s61, {SPIN_LIMIT}
    s_cbranch_scc1 {Lx}
    s_cmp_eq_u32 s38, 0
    s_cbranch_scc1 {L}
    """)
    a.vm.pop()
    a.label(Lx)

def phi_instrs(acc, tmp, out, zsum=None):
    L = []
    for i in range(16):
        L.append(f"v_mul_f32 v{tmp+i}, s62, v{acc+i}")
    for i in range(16):
        L.append(f"v_exp_f32 v{tmp+i}, v{tmp+i} clamp")
        L.append(f"v_max_f32 v{acc+i}, s64, v{acc+i}")
    for i in range(16):
        L.append(f"v_add_f32 v{acc+i}, v{acc+i}, v{tmp+i}")
    if zsum is not None:
        for m in range(8):
            L.append(f"v_add_f32 v{tmp+m}, v{acc+2*m}, v{acc+2*m+1}")
        for m in range(4):
            L.append(f"v_add_f32 v{tmp+m}, v{tmp+m}, v{tmp+4+m}")
        L.append(f"v_add_f32 v{tmp}, v{tmp}, v{tmp+2}")
        L.append(f"v_add_f32 v{tmp+1}, v{tmp+1}, v{tmp+3}")
        L.append(f"v_add_f32 v{zsum}, v{tmp}, v{tmp+1}")
    for m in range(8):
        L.append(f"v_cvt_pk_bf16_f32 v{out+m}, v{acc+2*m}, v{acc+2*m+1}")
    return L

def spread(side, nslots):
    out = []; n = len(side); k = 0
    for i in range(nslots):
        e = (n*(i+1))//nslots
        out.append(side[k:e]); k = e
    return out

SEQ = []
ORDER = "QKV"
def set_order(o):
    global SEQ, ORDER
    ORDER = o
    SEQ = []
    for c in range(8): SEQ += [("X", c), (o[0], c)]
    SEQ += [(o[1], c) for c in range(8)] + [(o[2], c) for c in range(8)] + [("O", c) for c in range(8)]
set_order("QKV")
NSLOT = 10
NINIT = 6
XR = 128
WF, T16, ACCQ, ACCK, ACCV = 32, 64, 80, 96, 112

DMAFL = ""
def b_issue_jobs(n):
    kind, c = SEQ[n]
    pos = n % NSLOT
    pre = []
    if kind == "X":
        so, v0, srd = f"s{16+c}", 2, "s[40:43]"
    elif kind in "QKV":
        so, v0, srd = f"s{8+c}", 4, "s[44:47]"
        if c == 0 and kind != ORDER[0]:
            prev = ORDER[ORDER.index(kind) - 1]
            dl = ("QKV".index(kind) - "QKV".index(prev))*1024
            op = "v_add_u32" if dl > 0 else "v_subrev_u32"
            pre = [(f"{op} v4, {abs(dl)}, v4", None), (f"{op} v5, {abs(dl)}, v5", None)]
    else:
        so, v0, srd = "s61", 6, "s[48:51]"
        pre = [(f"s_mov_b32 s61, {c*65536}", None)]
    return [pre + [(f"s_add_u32 m0, s60, {pos*8192}", None),
             (f"buffer_load_dwordx4 v{v0}, {srd}, {so} offen {DMAFL} lds", f"slot{n}")],
            [(f"buffer_load_dwordx4 v{v0+1}, {srd}, {so} offen offset:1024 {DMAFL} lds", f"slot{n}")]]

def emit_job(a, job):
    for t in job:
        if isinstance(t, str): a.e(t)
        else: a.e(t[0], vm=t[1])

def lds_base(n):
    pos = n % NSLOT
    return (0, pos*8192) if pos < 5 else (1, (pos-5)*8192)

def wfrag_reads(a, n, s, dst, tag=None):
    hi, off = lds_base(n)
    va = "v17" if hi else "v16"
    a.e(f"ds_read_b64_tr_b16 v[{dst}:{dst+1}], {va} offset:{off + s*2048}", lg=tag)
    a.e(f"ds_read_b64_tr_b16 v[{dst+2}:{dst+3}], {va} offset:{off + s*2048 + 512}", lg=tag)

def role_B(a, cfg):
    e0 = a.e
    def e_sub(text, **kw): return e0(text.replace("FIRSTPART", str("QKV".index(ORDER[0])*1024)).replace("SCR0", str(16384 if ORDER == "KVQ" else 0)).replace("SCR1", str(20480 if ORDER == "KVQ" else 4096)), **kw)
    a.e = e_sub
    a.c("================= role B =================")
    if cfg.prioB: a.e(f"s_setprio {3 if cfg.late_prio else cfg.prioB}")
    a.e("""
    s_and_b32 s66, s3, 7            ; xcd
    s_lshr_b32 s67, s3, 3           ; jj
    s_lshr_b32 s56, s66, 1
    s_lshl_b32 s56, s56, 3
    s_and_b32 s68, s67, 7
    s_add_u32 s56, s56, s68         ; tb
    s_and_b32 s57, s66, 1
    s_lshl_b32 s57, s57, 2
    s_lshr_b32 s68, s67, 3
    s_add_u32 s57, s57, s68         ; hq
    s_and_b32 s58, s39, 1           ; tt
    s_lshr_b32 s59, s39, 1
    s_lshl_b32 s60, s39, 11
    s_mov_b32 s62, 0x3fb8aa3b
    s_mov_b32 s63, 0x3fb8aa3b
    s_mov_b32 s64, 0x358637bd
    s_mov_b32 s65, 0x358637bd
    """)
    a.e("""
    v_lshrrev_b32 v32, 3, v1        ; l>>3
    v_and_b32 v33, 7, v1            ; l&7
    v_lshrrev_b32 v34, 4, v1        ; l>>4
    s_lshl_b32 s68, s56, 6          ; tb*64
    s_lshl_b32 s69, s39, 4          ; 16w
    s_add_u32 s68, s68, s69
    v_add_u32 v35, s68, v32         ; row
    v_lshlrev_b32 v35, 10, v35
    v_xor_b32 v36, v33, v34
    v_lshl_add_u32 v2, v36, 4, v35
    v_add_u32 v37, 4, v34
    v_xor_b32 v36, v33, v37
    v_lshl_add_u32 v3, v36, 4, v35
    v_add_u32 v3, 7168, v3          ; +8 rows - 1024
    v_and_b32 v36, 1, v34
    v_lshlrev_b32 v36, 2, v36
    v_xor_b32 v36, v33, v36         ; q
    v_lshlrev_b32 v36, 4, v36       ; q*16
    v_add_u32 v37, s69, v32         ; 16w + (l>>3)
    v_mul_u32_u24 v38, 3072, v37
    s_lshl_b32 s68, s57, 7          ; hq*128
    v_add3_u32 v4, v38, v36, s68
    v_add_u32 v4, FIRSTPART, v4
    v_add_u32 v5, 23552, v4         ; +8*3072 - 1024
    v_lshlrev_b32 v38, 10, v37
    v_add3_u32 v6, v38, v36, s68
    v_add_u32 v7, 7168, v6
    """)
    a.e("""
    s_waitcnt lgkmcnt(0)
    s_mov_b32 s40, s26
    s_and_b32 s41, s27, 0xffff
    s_mov_b32 s42, 0x200000
    s_mov_b32 s43, 0x20000
    s_mov_b32 s44, s28
    s_and_b32 s45, s29, 0xffff
    s_mov_b32 s46, 0x180000
    s_mov_b32 s47, 0x20000
    s_mov_b32 s48, s30
    s_and_b32 s49, s31, 0xffff
    s_mov_b32 s50, 0x80000
    s_mov_b32 s51, 0x20000
    """)
    a.e("""
    v_mov_b32 v31, 0
    s_cmp_lg_u32 s3, 0
    s_cbranch_scc1 L_b_nononce
    s_cmp_lg_u32 s39, 0
    s_cbranch_scc1 L_b_nononce
    s_memrealtime s[68:69]
    s_waitcnt lgkmcnt(0)
    s_or_b32 s68, s68, 1
    v_mov_b32 v30, s68
    s_mov_b64 exec, 1
    global_store_dword v31, v30, s[34:35] sc1
    s_mov_b64 exec, -1
    """)
    a.vm.pop()
    a.label("L_b_nononce")
    if cfg.b_exit:
        a.e("s_branch L_end")
    for c in range(8):
        a.e(f"s_mov_b32 s{8+c}, {c*64*3072}")
        a.e(f"s_mov_b32 s{16+c}, {c*128}")
    stamp(a, cfg, 1)
    for n in range(cfg.ninit):
        for job in b_issue_jobs(n): emit_job(a, job)
    if cfg.late_prio: a.e(f"s_setprio {cfg.prioB}")
    a.e("""
    v_and_b32 v32, 31, v1           ; i
    v_lshrrev_b32 v33, 5, v1        ; hh
    s_lshl_b32 s68, s58, 5
    v_add_u32 v34, s68, v32         ; 32tt + i
    v_lshlrev_b32 v34, 7, v34       ; *128
    v_lshrrev_b32 v35, 1, v32
    v_and_b32 v35, 7, v35           ; f
    """)
    for s in range(4):
        a.e(f"""
        v_add_u32 v36, {2*s}, v33
        v_xor_b32 v36, v36, v35
        v_lshl_add_u32 v{8+s}, v36, 4, v34
        v_add_u32 v{12+s}, 40960, v{8+s}
        """)
    a.e(f"""
    v_lshrrev_b32 v34, 2, v1
    v_and_b32 v34, 3, v34           ; rr
    v_and_b32 v35, 3, v1            ; cc
    v_lshrrev_b32 v36, 4, v1
    v_and_b32 v36, 1, v36           ; G&1
    v_lshlrev_b32 v36, 1, v36       ; 2(G&1)
    v_lshrrev_b32 v37, 1, v35       ; cc>>1
    v_add_u32 v36, v36, v37         ; 2(G&1) + (cc>>1)
    v_lshrrev_b32 v37, 1, v34
    v_lshlrev_b32 v37, 2, v37       ; 4(rr>>1)
    v_and_b32 v38, 1, v35
    v_lshlrev_b32 v38, 3, v38       ; 8(cc&1)
    s_lshl_b32 s68, s59, 2
    v_add_u32 v39, s68, v36
    v_xor_b32 v39, v39, v37
    v_lshl_add_u32 v39, v39, 4, v38
    v_lshl_add_u32 v40, v33, 3, v34
    v_lshl_add_u32 v16, v40, 7, v39
    v_add_u32 v17, 40960, v16
    v_xor_b32 v39, v36, v37
    v_lshl_add_u32 v39, v39, 4, v38
    v_lshl_add_u32 v40, v33, 2, v34
    v_lshl_add_u32 v18, v40, 7, v39
    s_lshl_b32 s68, s59, 15
    s_add_u32 s68, s68, 16384
    v_add_u32 v18, s68, v18
    v_xor_b32 v19, 64, v18
    s_lshl_b32 s68, s59, 1
    s_add_u32 s68, s68, s58
    s_xor_b32 s69, s68, 1
    s_lshl_b32 s66, s68, 10
    s_add_u32 s66, s66, SCR0
    v_lshl_add_u32 v22, v1, 4, s66
    s_lshl_b32 s66, s69, 10
    s_add_u32 s66, s66, SCR0
    v_lshl_add_u32 v23, v1, 4, s66
    s_lshl_b32 s66, s68, 8
    s_add_u32 s66, s66, SCR1
    v_lshl_add_u32 v24, v1, 2, s66
    s_lshl_b32 s66, s69, 8
    s_add_u32 s66, s66, SCR1
    v_lshl_add_u32 v25, v1, 2, s66
    s_lshl_b32 s68, s57, 1
    s_add_u32 s68, s68, s59
    s_lshl_b32 s68, s68, 5
    s_add_u32 s68, s68, s56
    s_mul_i32 s68, s68, 2176
    s_add_u32 s68, s68, {KVP}
    s_lshl_b32 s69, s58, 10
    s_add_u32 s69, s69, s68
    v_lshl_add_u32 v26, v1, 4, s69
    v_lshrrev_b32 v40, 4, v1
    v_and_b32 v40, 1, v40
    v_lshlrev_b32 v40, 3, v40       ; 8c
    v_and_b32 v41, 4, v1            ; 4*hh'
    v_add_u32 v40, v40, v41
    v_lshrrev_b32 v41, 2, v1
    v_and_b32 v41, 2, v41
    v_add_u32 v40, v40, v41
    v_lshrrev_b32 v41, 1, v1
    v_and_b32 v41, 1, v41
    v_add_u32 v40, v40, v41         ; zg
    s_add_u32 s68, s68, 2048
    v_lshl_add_u32 v27, v40, 3, s68
    ; PQ address
    s_lshl_b32 s68, s56, 1
    s_add_u32 s68, s68, s58
    s_lshl_b32 s68, s68, 5
    s_lshl_b32 s69, s57, 2
    s_add_u32 s68, s68, s69
    s_lshl_b32 s69, s59, 1
    s_add_u32 s68, s68, s69
    s_lshl_b32 s68, s68, 10
    s_add_u32 s68, s68, {PQ}
    v_lshl_add_u32 v28, v1, 4, s68
    v_and_b32 v40, 16, v1
    v_cmp_ne_u32 s[52:53], 0, v40
    s_sub_u32 s54, 0, s58
    s_mov_b32 s55, s54
    """)
    a.e(f"""
    s_cmp_lg_u32 s39, 3
    s_cbranch_scc1 L_b_nopt
    s_lshl_b32 s68, s56, 7
    s_add_u32 s68, s68, {PQF}
    v_mov_b32 v40, s68
    global_load_dword v21, v40, s[36:37] sc1
    """)
    a.vm.pop()
    a.label("L_b_nopt")
    for r in range(16):
        a.e(f"v_mov_b32 v{ACCQ+r}, s64")
    for r in range(16):
        a.e(f"v_mov_b32 v{ACCK+r}, s64")
    def frag_reads(g, k):
        L = []
        tag = f"f{g}_{k}"
        if g < 8:
            nx, nw = 2*g, 2*g+1
            hi, off = lds_base(nx)
            L.append((f"ds_read_b128 v[{XR+16*g+4*k}:{XR+16*g+4*k+3}], v{(12 if hi else 8)+k} offset:{off}", tag))
            d = WF + 16*(g % 2) + 4*k; n = nw; sstep = k
        else:
            n = 2*g + k//4; sstep = k % 4; d = WF + 4*k
        h2, o2 = lds_base(n)
        va = "v17" if h2 else "v16"
        L.append((f"ds_read_b64_tr_b16 v[{d}:{d+1}], {va} offset:{o2 + sstep*2048}", tag))
        L.append((f"ds_read_b64_tr_b16 v[{d+2}:{d+3}], {va} offset:{o2 + sstep*2048 + 512}", tag))
        return L
    def nsteps(g): return 4 if g < 8 else 8
    def emit_side(lst):
        for t in lst:
            if isinstance(t, str): a.e(t)
            elif t[0] == "WVM": a.wait_vm(t[1])
            else: a.e(t[0], vm=t[1])
    side = {}
    KVQ = (cfg.order == "KVQ")
    ke = phi_instrs(ACCK, T16, ACCK, zsum=29)
    ke += ["v_mov_b32 v30, v29", "v_permlane32_swap_b32 v29, v30", "v_add_f32 v29, v29, v30"]
    if not KVQ:
        qe = phi_instrs(ACCQ, T16, ACCQ)
        qe += [(f"global_store_dwordx4 v28, v[{ACCQ}:{ACCQ+3}], s[36:37] sc1", "pqst"),
               (f"global_store_dwordx4 v28, v[{ACCQ+4}:{ACCQ+7}], s[36:37] offset:1024 sc1", "pqst")]
        gaps = [(g, k) for g in range(8, 12) for k in range(8)][1:cfg.qe_end]
        for gp, grp in zip(gaps, spread(qe, len(gaps))): side[gp] = grp
        gaps = [(g, k) for g in range(12, 16) for k in range(8)][1:31]
    else:
        gaps = [(g, k) for g in range(8, 12) for k in range(8)][1:31]
    for gp, grp in zip(gaps, spread(ke, len(gaps))): side[gp] = grp if not cfg.x_epi else []
    side[(9, 7)] = side.get((9, 7), []) + ["s_lshl_b32 s68, s56, 7", f"s_add_u32 s68, s68, {PQF}", "v_and_b32 v2, 7, v1", "v_lshl_add_u32 v2, v2, 2, s68"]
    rb = f"""
    s_mov_b32 s40, s36
    s_and_b32 s41, s37, 0xffff
    s_mov_b32 s42, {KVF + 65536}
    s_mov_b32 s43, 0x20000
    s_lshl_b32 s68, s56, 1
    s_add_u32 s68, s68, s58
    s_lshl_b32 s68, s68, 5
    s_lshl_b32 s69, s59, 4
    s_add_u32 s68, s68, s69
    s_lshl_b32 s68, s68, 10
    s_add_u32 s68, s68, {PQ}
    v_lshl_add_u32 v3, v1, 4, s68
    v_add_u32 v31, 8192, v3
    v_lshrrev_b32 v13, 7, v0
    v_mul_u32_u24 v13, {KVBLK}, v13
    v_and_b32 v20, 127, v0
    v_lshl_add_u32 v13, v20, 4, v13
    v_add_u32 v13, {KVF}, v13
    v_lshrrev_b32 v14, 3, v20
    v_mul_u32_u24 v14, {KVBLK}, v14
    v_and_b32 v21, 7, v0
    v_lshl_add_u32 v14, v21, 4, v14
    v_add_u32 v14, {KVF+2048}, v14
    v_lshrrev_b32 v15, 7, v0
    v_lshlrev_b32 v15, 1, v15
    v_bfe_u32 v21, v0, 4, 1
    v_add_u32 v15, v15, v21
    v_mul_u32_u24 v15, 544, v15
    v_bfe_u32 v21, v0, 5, 1
    v_mul_u32_u24 v21, 272, v21
    v_add_u32 v15, v15, v21
    v_and_b32 v21, 15, v0
    v_lshl_add_u32 v15, v21, 4, v15
    v_bfe_u32 v21, v0, 6, 1
    v_lshl_add_u32 v15, v21, 3, v15
    v_lshrrev_b32 v12, 3, v20
    v_lshlrev_b32 v12, 1, v12
    v_bfe_u32 v21, v0, 2, 1
    v_add_u32 v12, v12, v21
    v_mul_u32_u24 v12, 544, v12
    v_bfe_u32 v21, v0, 1, 1
    v_mul_u32_u24 v21, 272, v21
    v_add_u32 v12, v12, v21
    v_and_b32 v21, 1, v0
    v_lshl_add_u32 v12, v21, 3, v12
    v_add_u32 v12, 256, v12
    v_and_b32 v30, 15, v1
    v_mul_u32_u24 v30, {KVBLK}, v30
    v_add_u32 v30, {KVF+2048}, v30
    """.strip().split("\n")
    rb = [x.strip() for x in rb]
    rb += [f"s_mov_b32 s{8+i}, {1024*i}" for i in range(8)] + [f"s_mov_b32 s{16+k}, {2*KVBLK*k}" for k in range(8)]
    if not cfg.late_o:
        gaps = [(14, k) for k in range(5, 8)] + [(15, k) for k in range(8)]
        for gp, grp in zip(gaps, spread(rb, len(gaps))): side[gp] = side.get(gp, []) + grp

    def kv_publish():
        a.c("--- kv partial: V cvt, MFMA, select, pair exchange, publish")
        a.e("s_barrier")
        if not KVQ: a.e("global_load_dword v21, v2, s[36:37] sc1", vm="pqf")
        if cfg.gate:
            a.e(f"""
            s_cmp_lg_u32 s39, 2
            s_cbranch_scc1 L_b_nogate
            s_and_b32 s68, s3, 7
            s_lshl_b32 s68, s68, 8
            s_lshr_b32 s69, s3, 3
            s_lshl_b32 s69, s69, 2
            s_add_u32 s68, s68, s69
            s_add_u32 s68, s68, {BDN}
            v_mov_b32 v20, s68
            v_mov_b32 v30, s38
            s_mov_b64 exec, 1
            global_store_dword v20, v30, s[36:37]
            s_mov_b64 exec, -1
            """)
            a.vm.pop()
            a.label("L_b_nogate")
        for m in range(8):
            a.e(f"v_cvt_pk_bf16_f32 v{ACCV+m}, v{ACCV+2*m}, v{ACCV+2*m+1}")
        a.e(f"v_mfma_f32_32x32x16_bf16 v[{T16}:{T16+15}], v[{ACCK}:{ACCK+3}], v[{ACCV}:{ACCV+3}], 0")
        a.e(f"v_mfma_f32_32x32x16_bf16 v[{T16}:{T16+15}], v[{ACCK+4}:{ACCK+7}], v[{ACCV+4}:{ACCV+7}], v[{T16}:{T16+15}]")
        a.e("ds_write_b32 v24, v29", lg="xw")
        SEL = ACCK + 8; SND = ACCV + 8; KEEP = ACCV + 12
        for j in range(8): a.e(f"v_cndmask_b32 v{SEL+j}, v{T16+j}, v{T16+8+j}, s[52:53]")
        for j in range(4): a.e(f"v_cndmask_b32 v{SND+j}, v{SEL+4+j}, v{SEL+j}, s[54:55]")
        a.e(f"ds_write_b128 v22, v[{SND}:{SND+3}]", lg="xw")
        for j in range(4): a.e(f"v_cndmask_b32 v{KEEP+j}, v{SEL+j}, v{SEL+4+j}, s[54:55]")
        a.wait_lg("xw")
        a.e("s_barrier")
        a.e(f"ds_read_b128 v[{SEL}:{SEL+3}], v23", lg="xr")
        a.e(f"ds_read_b32 v30, v25", lg="xr")
        a.wait_lg("xr")
        if not KVQ:
            a.wait_vm("pqf")
            a.e("v_cmp_ne_u32 s[66:67], s38, v21")
        for j in range(4): a.e(f"v_add_f32 v{KEEP+j}, v{KEEP+j}, v{SEL+j}")
        a.e(f"""
        v_add_f32 v29, v29, v30
        v_cvt_pk_bf16_f32 v{SEL}, v{KEEP}, v{KEEP+1}
        v_mov_b32 v{SEL+1}, s38
        v_cvt_pk_bf16_f32 v{SEL+2}, v{KEEP+2}, v{KEEP+3}
        v_mov_b32 v{SEL+3}, s38
        v_mov_b32_dpp v30, v29 quad_perm:[1,0,3,2] row_mask:0xf bank_mask:0xf
        global_store_dwordx4 v26, v[{SEL}:{SEL+3}], s[36:37] sc1
        v_cvt_pk_bf16_f32 v{SEL+4}, v29, v30
        v_mov_b32 v{SEL+5}, s38
        s_andn2_b64 exec, 0x55555555, s[54:55]
        s_cbranch_execz L_b_noz
        global_store_dwordx2 v27, v[{SEL+4}:{SEL+5}], s[36:37] sc1
        """)
        a.vm.pop()
        a.label("L_b_noz")
        a.e("s_mov_b64 exec, -1")
        stamp(a, cfg, 6)

    a.wait_vm(["slot0", "slot1"])
    a.e("s_barrier")
    stamp(a, cfg, 2)
    for k in range(4):
        for t, tag in frag_reads(0, k): a.e(t, lg=tag)
    nxt = cfg.ninit
    pend = []
    while nxt < NSLOT:
        pend += b_issue_jobs(nxt); nxt += 1
    for g in range(16):
        a.c(f"--- group {g}")
        if g == (11 if KVQ else 13): poll_nonce(a, "v21", "v31", first_tag="nonce")
        if KVQ and g == 12: kv_publish()
        if g == cfg.pqflag_g and not KVQ: a.wait_vm("pqst")
        if g < 15:
            a.wait_vm([f"slot{2*g+2}", f"slot{2*g+3}"])
        a.e("s_barrier")
        if g == cfg.pqflag_g and not KVQ:
            a.e("""
            s_cmp_lg_u32 s39, 3
            s_cbranch_scc1 L_b_noflag
            s_lshl_b32 s68, s56, 7
            s_lshl_b32 s69, s57, 2
            s_add_u32 s68, s68, s69
            s_add_u32 s68, s68, %d
            v_mov_b32 v20, s68
            v_mov_b32 v21, s38
            s_mov_b64 exec, 1
            global_store_dword v20, v21, s[36:37] sc1
            s_mov_b64 exec, -1
            """ % PQF)
            a.vm.pop()
            a.label("L_b_noflag")
        if g in (1, 8, 12): stamp(a, cfg, {1: 3, 8: 4, 12: 5}[g])
        jobs = list(pend); pend = []
        if g >= 1:
            for _ in range(2):
                if nxt < (32 if cfg.late_o else 40): jobs += b_issue_jobs(nxt); nxt += 1
        if g == (7 if KVQ else 9):
            jobs.append([("global_load_dword v21, v31, s[34:35] sc1", "nonce")])
        ns = nsteps(g)
        jsp = spread(jobs, ns)
        for k in range(ns):
            if k % 2 == 0: a.wait_lg([f"f{g}_{k}", f"f{g}_{k+1}"])
            part = cfg.order[0] if g < 8 else (cfg.order[1] if g < 12 else cfg.order[2])
            if g < 8:
                wreg = WF + 16*(g % 2) + 4*k; kk = 4*g + k
            else:
                wreg = WF + 4*k; kk = ((g - 8) % 4)*8 + k
            W_ = f"v[{wreg}:{wreg+3}]"; X_ = f"v[{XR+4*kk}:{XR+4*kk+3}]"
            if part == "Q":
                a.e(f"v_mfma_f32_32x32x16_bf16 v[{ACCQ}:{ACCQ+15}], {W_}, {X_}, v[{ACCQ}:{ACCQ+15}]")
            elif part == "K":
                a.e(f"v_mfma_f32_32x32x16_bf16 v[{ACCK}:{ACCK+15}], {X_}, {W_}, v[{ACCK}:{ACCK+15}]")
            else:
                cc = "0" if kk == 0 else f"v[{ACCV}:{ACCV+15}]"
                a.e(f"v_mfma_f32_32x32x16_bf16 v[{ACCV}:{ACCV+15}], {X_}, {W_}, {cc}")
            jl = [list(jb) for jb in jsp[k]]
            if jl:
                while jl[0] and not jl[0][0][0].startswith(("buffer_load", "global_load")):
                    a.e(jl[0].pop(0)[0])
            if g < 15:
                nx = [k, 4 + k] if g == 7 else [k]
                for k2 in nx:
                    for t, tag in frag_reads(g + 1, k2): a.e(t, lg=tag)
            for jb in jl: emit_job(a, jb)
            emit_side(side.get((g, k), []))
    if KVQ:
        tail_kvq(a, cfg, rb)
        return
    kv_publish()
    if cfg.prioBw is not None: a.e(f"s_setprio {cfg.prioBw}")
    a.e("s_mov_b64 s[54:55], s[66:67]")
    def pq_first(sfx):
        for t in rb: a.e(t)
        a.e(f"""
        s_cmp_eq_u64 s[54:55], 0
        s_cbranch_scc1 L_b_pqf_go{sfx}
        s_mov_b32 s61, 0
        """)
        a.label(f"L_b_pqf_poll{sfx}")
        a.e(f"""
        global_load_dword v21, v2, s[36:37] sc1
        s_add_u32 s61, s61, 1
        s_waitcnt vmcnt(0)
        v_cmp_ne_u32 vcc, s38, v21
        s_cmp_gt_u32 s61, {SPIN_LIMIT}
        s_cbranch_scc1 L_b_pqf_go{sfx}
        s_cbranch_vccz L_b_pqf_go{sfx}
        s_branch L_b_pqf_poll{sfx}
        """)
        a.label(f"L_b_pqf_go{sfx}")
        for i in range(8):
            a.e(f"buffer_load_dwordx4 v[{32+4*i}:{35+4*i}], v3, s[40:43], s{8+i} offen sc1")
    a.e("""
    s_cmp_eq_u32 s39, 0
    s_cbranch_scc1 L_b_w0tail
    """)
    for n in range(32, 40):
        for jb in b_issue_jobs(n): emit_job(a, jb)
    a.e("""
    s_cmp_eq_u32 s39, 1
    s_cbranch_scc0 L_b_noshare
    v_subrev_u32 v22, 16384, v6
    v_subrev_u32 v23, 16384, v7
    """)
    for n in range(32, 40):
        c = SEQ[n][1]; pos = n % NSLOT
        a.e(f"s_mov_b32 m0, {pos*8192}")
        a.e(f"s_mov_b32 s61, {c*65536}")
        a.e(f"buffer_load_dwordx4 v22, s[48:51], s61 offen lds")
        a.e(f"buffer_load_dwordx4 v23, s[48:51], s61 offen offset:1024 lds")
    a.label("L_b_noshare")
    pq_first("a")
    a.e("s_waitcnt vmcnt(8)")
    a.e("s_branch L_b_tailjoin")
    a.label("L_b_w0tail")
    reducer(a, cfg)
    pq_first("b")
    a.label("L_b_tailjoin")
    a.vm = []; a.lg = []
    stamp(a, cfg, 7)
    if not cfg.do_B2:
        stamp(a, cfg, 8)
        stamps_out(a, cfg, 9)
        a.e("s_branch L_end")
        return
    role_B2(a, cfg)

def tag_check(a, regs_tags, acc="v20"):
    tt = 0
    for idx in range(8):
        s0, s1, s2 = (idx >> 2) & 1, (idx >> 1) & 1, idx & 1
        if s0 | (s1 ^ s2): tt |= 1 << idx
    first = True
    for r in regs_tags:
        if first:
            a.e(f"v_xor_b32 {acc}, s38, v{r}"); first = False
        else:
            a.e(f"v_bitop3_b32 {acc}, {acc}, v{r}, s38 bitop3:{hex(tt)}")
    a.e(f"v_cmp_ne_u32 vcc, 0, {acc}")

def tail_kvq(a, cfg, rb):
    a.e("s_barrier")
    a.e("""
    s_cmp_eq_u32 s39, 0
    s_cbranch_scc1 L_b_w0a
    """)
    if not cfg.o_after:
        for n in range(32, 40):
            for jb in b_issue_jobs(n): emit_job(a, jb)
        a.e("""
        s_cmp_eq_u32 s39, 1
        s_cbranch_scc0 L_b_noshare
        v_subrev_u32 v22, 16384, v6
        v_subrev_u32 v23, 16384, v7
        """)
        for n in range(32, 40):
            c = SEQ[n][1]; pos = n % NSLOT
            a.e(f"s_mov_b32 m0, {pos*8192}")
            a.e(f"s_mov_b32 s61, {c*65536}")
            a.e(f"buffer_load_dwordx4 v22, s[48:51], s61 offen lds")
            a.e(f"buffer_load_dwordx4 v23, s[48:51], s61 offen offset:1024 lds")
        a.label("L_b_noshare")
    a.e("s_branch L_b_phi")
    a.label("L_b_w0a")
    reducer(a, cfg, "addr")
    reducer(a, cfg, "loads")
    a.label("L_b_phi")
    for t in phi_instrs(ACCQ, T16, ACCQ): a.e(t)
    a.e(f"""
    v_lshlrev_b32 v20, 4, v1
    s_cmp_lg_u32 s39, 0
    s_cbranch_scc1 L_b_noho
    ds_write_b128 v20, v[{ACCQ}:{ACCQ+3}]
    ds_write_b128 v20, v[{ACCQ+4}:{ACCQ+7}] offset:1024
    v_mov_b32 v21, 0
    ds_write_b32 v21, v21 offset:2048
    s_waitcnt lgkmcnt(0)
    """)
    a.label("L_b_noho")
    a.e("s_barrier")
    stamp(a, cfg, 7)
    if cfg.prioBw is not None: a.e(f"s_setprio {cfg.prioBw}")
    a.e(f"""
    s_cmp_eq_u32 s39, 0
    s_cbranch_scc1 L_b_w0b
    global_store_dwordx4 v28, v[{ACCQ}:{ACCQ+3}], s[36:37] sc1
    global_store_dwordx4 v28, v[{ACCQ+4}:{ACCQ+7}], s[36:37] offset:1024 sc1
    s_cmp_eq_u32 s39, 1
    s_cbranch_scc0 L_b_nopq
    ds_read_b128 v[32:35], v20
    ds_read_b128 v[36:39], v20 offset:1024
    v_subrev_u32 v21, 32768, v28
    s_waitcnt lgkmcnt(0)
    global_store_dwordx4 v21, v[32:35], s[36:37] sc1
    global_store_dwordx4 v21, v[36:39], s[36:37] offset:1024 sc1
    """)
    a.label("L_b_nopq")
    if cfg.o_after:
        for n in range(32, 40):
            for jb in b_issue_jobs(n): emit_job(a, jb)
        a.e("""
        s_cmp_eq_u32 s39, 1
        s_cbranch_scc0 L_b_noshare
        v_subrev_u32 v22, 16384, v6
        v_subrev_u32 v23, 16384, v7
        """)
        for n in range(32, 40):
            c = SEQ[n][1]; pos = n % NSLOT
            a.e(f"s_mov_b32 m0, {pos*8192}")
            a.e(f"s_mov_b32 s61, {c*65536}")
            a.e(f"buffer_load_dwordx4 v22, s[48:51], s61 offen lds")
            a.e(f"buffer_load_dwordx4 v23, s[48:51], s61 offen offset:1024 lds")
        a.label("L_b_noshare")
    for t in rb: a.e(t)
    if cfg.o_after:
        a.e("""
        s_cmp_eq_u32 s39, 1
        s_cbranch_scc1 L_b_ack1
        s_waitcnt vmcnt(16)
        s_branch L_b_ack2
        """)
        a.label("L_b_ack1")
        a.e("s_waitcnt vmcnt(32)")
        a.label("L_b_ack2")
    else:
        a.e("s_waitcnt vmcnt(0)")
    a.e("""
    v_mov_b32 v32, 0
    v_mov_b32 v33, 1
    s_mov_b64 exec, 1
    ds_add_rtn_u32 v34, v32, v33 offset:2048
    s_waitcnt lgkmcnt(0)
    v_readfirstlane_b32 s68, v34
    s_cmp_lg_u32 s68, 2
    s_cbranch_scc1 L_b_noflag2
    s_lshl_b32 s68, s56, 7
    s_lshl_b32 s69, s57, 2
    s_add_u32 s68, s68, s69
    s_add_u32 s68, s68, %d
    v_mov_b32 v32, s68
    v_mov_b32 v33, s38
    global_store_dword v32, v33, s[36:37] sc1
    """ % PQF)
    if cfg.o_after:
        a.e("s_mov_b64 exec, -1")
        a.e("s_waitcnt vmcnt(1)")
        a.e("s_branch L_b_tailjoin")
    a.label("L_b_noflag2")
    a.e("s_mov_b64 exec, -1")
    if cfg.o_after:
        a.e("s_waitcnt vmcnt(0)")
    a.e("s_branch L_b_tailjoin")
    a.label("L_b_w0b")
    reducer(a, cfg, "finish")
    for t in rb: a.e(t)
    a.label("L_b_tailjoin")
    a.vm = []; a.lg = []
    def pq_late():
        a.e("s_mov_b32 s61, 0")
        a.label("L_b_pqf_poll")
        a.e(f"""
        global_load_dword v21, v2, s[36:37] sc1
        s_add_u32 s61, s61, 1
        s_waitcnt vmcnt(0)
        v_cmp_ne_u32 vcc, s38, v21
        s_cmp_gt_u32 s61, {SPIN_LIMIT}
        s_cbranch_scc1 L_b_pqf_go
        s_cbranch_vccz L_b_pqf_go
        s_branch L_b_pqf_poll
        """)
        a.label("L_b_pqf_go")
        for i in range(8):
            a.e(f"buffer_load_dwordx4 v[{32+4*i}:{35+4*i}], v3, s[40:43], s{8+i} offen sc1")
    role_B2(a, cfg, pq_late)

def reducer(a, cfg, part=None):
    def reduce_line(base, dst_addr, tagsok_label):
        S = 64; T = 68
        for k in range(4):
            r = base + 4*k
            for pidx in range(2):
                src = r + 2*pidx
                if k == 0:
                    a.e(f"v_lshlrev_b32 v{S+2*pidx}, 16, v{src}")
                    a.e(f"v_and_b32 v{S+1+2*pidx}, 0xffff0000, v{src}")
                else:
                    a.e(f"v_lshlrev_b32 v{T+2*pidx}, 16, v{src}")
                    a.e(f"v_and_b32 v{T+1+2*pidx}, 0xffff0000, v{src}")
                    a.e(f"v_add_f32 v{S+2*pidx}, v{S+2*pidx}, v{T+2*pidx}")
                    a.e(f"v_add_f32 v{S+1+2*pidx}, v{S+1+2*pidx}, v{T+1+2*pidx}")
        for j in range(4): a.e(f"v_add_f32_dpp v{S+j}, v{S+j}, v{S+j} row_ror:8 row_mask:0xf bank_mask:0xf")
        for j in range(4): a.e(f"v_mov_b32 v{T+j}, v{S+j}")
        for j in range(4): a.e(f"v_permlane16_swap_b32 v{S+j}, v{T+j}")
        for j in range(4): a.e(f"v_add_f32 v{S+j}, v{S+j}, v{T+j}")
        for j in range(4): a.e(f"v_mov_b32 v{T+j}, v{S+j}")
        for j in range(4): a.e(f"v_permlane32_swap_b32 v{S+j}, v{T+j}")
        for j in range(4): a.e(f"v_add_f32 v{S+j}, v{S+j}, v{T+j}")
        a.e(f"""
        v_cvt_pk_bf16_f32 v72, v{S}, v{S+1}
        v_mov_b32 v73, s38
        v_cvt_pk_bf16_f32 v74, v{S+2}, v{S+3}
        v_mov_b32 v75, s38
        s_mov_b64 exec, 0xff
        global_store_dwordx4 {dst_addr}, v[72:75], s[36:37] sc1
        s_mov_b64 exec, -1
        """)
    if part in (None, "addr"):
        a.e(f"""
        s_lshr_b32 s66, s3, 4
        s_and_b32 s67, s3, 15
        s_mul_i32 s69, s66, {32*KVBLK}
        s_add_u32 s69, s69, {KVP}
        s_lshl_b32 s52, s67, 7
        s_add_u32 s68, s69, s52
        v_and_b32 v22, 7, v1
        v_lshlrev_b32 v22, 4, v22
        v_lshrrev_b32 v23, 3, v1
        v_mul_u32_u24 v23, {KVBLK}, v23
        v_add_u32 v23, v22, v23
        v_add_u32 v24, s68, v23
        v_add_u32 v25, {8*KVBLK}, v24
        v_add_u32 v26, {16*KVBLK}, v24
        v_add_u32 v27, {24*KVBLK}, v24
        s_add_u32 s68, s69, 2048
        v_add_u32 v8, s68, v23
        v_add_u32 v9, {8*KVBLK}, v8
        v_add_u32 v10, {16*KVBLK}, v8
        v_add_u32 v11, {24*KVBLK}, v8
        s_mul_i32 s69, s66, {KVBLK}
        s_add_u32 s69, s69, {KVF}
        s_add_u32 s68, s69, s52
        v_add_u32 v23, s68, v22
        s_add_u32 s68, s69, 2048
        v_add_u32 v29, s68, v22
        """)
    if part == "addr": return
    def red_round(sfx):
        a.e(f"""
        global_load_dwordx4 v[96:99], v24, s[36:37] sc1
        global_load_dwordx4 v[100:103], v25, s[36:37] sc1
        global_load_dwordx4 v[104:107], v26, s[36:37] sc1
        global_load_dwordx4 v[108:111], v27, s[36:37] sc1
        s_cmp_lg_u32 s67, 0
        s_cbranch_scc1 L_b_red_nb{sfx}
        global_load_dwordx4 v[112:115], v8, s[36:37] sc1
        global_load_dwordx4 v[116:119], v9, s[36:37] sc1
        global_load_dwordx4 v[120:123], v10, s[36:37] sc1
        global_load_dwordx4 v[124:127], v11, s[36:37] sc1
        """)
        a.label(f"L_b_red_nb{sfx}")
    if part == "loads":
        red_round("0"); return
    a.e("s_mov_b32 s61, 0")
    if part == "finish": a.e("s_branch L_b_red_w")
    a.label("L_b_red_poll")
    red_round("1")
    a.label("L_b_red_w")
    a.e("""
    s_add_u32 s61, s61, 1
    s_waitcnt vmcnt(0)
    s_cmp_lg_u32 s67, 0
    s_cbranch_scc1 L_b_red_one
    """)
    tag_check(a, [97+2*q for q in range(16)])
    a.e("s_branch L_b_red_chk")
    a.label("L_b_red_one")
    tag_check(a, [97+2*q for q in range(8)])
    a.label("L_b_red_chk")
    a.e(f"""
    s_cmp_gt_u32 s61, {SPIN_LIMIT}
    s_cbranch_scc1 L_b_red_go
    s_cbranch_vccz L_b_red_go
    s_sleep {cfg.sl_red}
    s_branch L_b_red_poll
    """)
    a.label("L_b_red_go")
    a.e("""
    s_cmp_lg_u32 s67, 0
    s_cbranch_scc1 L_b_red_a
    """)
    reduce_line(112, "v29", None)
    a.label("L_b_red_a")
    reduce_line(96, "v23", None)
    stamp(a, cfg, 10)

def role_B2(a, cfg, after_k1=None):
    WO = 128
    ACC = 96
    PQR = 32
    CN = [64, 80]
    KAF = [8, 12]
    OF = [4, 16]
    KA = 0
    PQL = 17408
    a.c("================= B2 =================")
    a.e("s_barrier")
    for i in range(16):
        for nt in range(2):
            d = WO + 8*i + 4*nt
            off = (i//4)*8192 + (i % 4)*2048
            a.e(f"ds_read_b64_tr_b16 v[{d}:{d+1}], v{18+nt} offset:{off}", lg="wo")
            a.e(f"ds_read_b64_tr_b16 v[{d+2}:{d+3}], v{18+nt} offset:{off+1024}", lg="wo")
    a.e("s_waitcnt lgkmcnt(0)")
    a.e("s_barrier")
    a.vm = []; a.lg = []
    stamp(a, cfg, 9)
    if after_k1 and not cfg.ka_first: after_k1()
    if cfg.zpoll:
        a.e("""
        s_mov_b32 s61, 0
        s_cmp_eq_u32 s39, 0
        s_cbranch_scc0 L_b_kz_go
        """)
        a.label("L_b_kz_poll")
        a.e(f"""
        buffer_load_dwordx4 v[96:99], v30, s[40:43], 0 offen sc1
        s_add_u32 s61, s61, 1
        s_waitcnt vmcnt(0)
        v_xor_b32 v20, s38, v97
        v_cmp_ne_u32 vcc, 0, v20
        s_cmp_gt_u32 s61, {SPIN_LIMIT}
        s_cbranch_scc1 L_b_kz_go
        s_cbranch_vccz L_b_kz_go
        s_sleep {cfg.sl_kz}
        s_branch L_b_kz_poll
        """)
        a.label("L_b_kz_go")
        stamp(a, cfg, 11)
        a.e("s_barrier")
    PB = 17408
    a.e(f"""
    v_and_b32 v24, 31, v1
    s_lshl_b32 s68, s58, 5
    v_add_u32 v24, s68, v24            ; token
    v_mul_u32_u24 v24, 272, v24
    v_lshrrev_b32 v25, 5, v1
    v_lshl_add_u32 v24, v25, 4, v24    ; + hh*16
    s_mul_i32 s68, s59, {64*272}
    s_add_u32 s68, s68, {PB}
    v_add_u32 v24, s68, v24            ; P write address
    v_lshrrev_b32 v26, 3, v0
    v_mul_u32_u24 v25, 272, v26
    v_and_b32 v27, 7, v0
    v_lshl_add_u32 v25, v27, 5, v25
    v_add_u32 v25, {PB}, v25           ; P read address
    s_lshl_b32 s68, s56, 6
    v_add_u32 v26, s68, v26
    v_lshlrev_b32 v26, 11, v26
    s_lshl_b32 s68, s57, 7
    s_add_u32 s68, s68, 1024
    v_lshl_add_u32 v26, v27, 4, v26
    v_add_u32 v26, s68, v26
    v_add_u32 v27, {32*2048}, v26
    v_and_b32 v22, 31, v1
    v_min_u32 v22, 16, v22
    v_lshlrev_b32 v22, 4, v22
    v_lshrrev_b32 v23, 5, v1
    v_mul_u32_u24 v23, 272, v23
    s_mul_i32 s68, s59, {16*544}
    v_add3_u32 v22, v22, v23, s68       ; kv fragment address
    """)
    def ka_loads():
        for k in range(8):
            a.e(f"buffer_load_dwordx4 v[{64+4*k}:{67+4*k}], v13, s[40:43], s{16+k} offen sc1")
        a.e("buffer_load_dwordx4 v[96:99], v14, s[40:43], 0 offen sc1")
    a.e("s_mov_b32 s61, 0")
    a.e("s_branch L_b_kvf_first")
    a.label("L_b_kvf_poll")
    a.e(f"s_sleep {cfg.sl_ka}")
    a.label("L_b_kvf_first")
    ka_loads()
    a.e("s_waitcnt vmcnt(0)")
    a.label("L_b_ka_chk")
    a.e("s_add_u32 s61, s61, 1")
    tag_check(a, [65+2*q for q in range(18)])
    a.e(f"""
    s_cmp_gt_u32 s61, {SPIN_LIMIT}
    s_cbranch_scc1 L_b_kvf_go
    s_cbranch_vccnz L_b_kvf_poll
    """)
    a.label("L_b_kvf_go")
    if after_k1 and cfg.ka_first: after_k1()
    stamp(a, cfg, 12)
    stampval(a, cfg, 8, "s61")
    a.vm = []
    for k in range(8):
        a.e(f"v_mov_b32 v{65+4*k}, v{66+4*k}")
        a.e(f"ds_write_b64 v15, v[{64+4*k}:{65+4*k}] offset:{KA + 2176*k}")
    a.e("v_mov_b32 v97, v98")
    a.e(f"ds_write_b64 v12, v[96:97] offset:{KA}")
    a.e(f"""
    s_waitcnt vmcnt(0) lgkmcnt(0)
    s_barrier
    """)
    a.vm = []; a.lg = []
    stamp(a, cfg, 13)
    if cfg.prioBw is not None: a.e(f"s_setprio {cfg.prioBm}")
    def kaf_read(i):
        a.e(f"ds_read_b128 v[{KAF[i%2]}:{KAF[i%2]+3}], v22 offset:{KA + 544*i}", lg=f"ka{i}")
    def out_mfma(i):
        o = OF[i % 2]
        for nt in range(2):
            w = WO + 8*i + 4*nt
            cc = "0" if i == 0 else f"v[{ACC+16*nt}:{ACC+16*nt+15}]"
            a.e(f"v_mfma_f32_32x32x16_bf16 v[{ACC+16*nt}:{ACC+16*nt+15}], v[{w}:{w+3}], v[{o}:{o+3}], {cc}")
    def num_mfma(i):
        a.wait_lg(f"ka{i}")
        p = PQR + 4*(i % 8)
        if i >= 8: a.wait_vm(f"pq{i}")
        a.e(f"v_mfma_f32_32x32x16_bf16 v[{CN[i%2]}:{CN[i%2]+15}], v[{KAF[i%2]}:{KAF[i%2]+3}], v[{p}:{p+3}], 0")
        if i < 8:
            a.e(f"buffer_load_dwordx4 v[{p}:{p+3}], v31, s[40:43], s{8+i} offen sc1", vm=f"pq{i+8}")
    def out1(i, nt):
        o = OF[i % 2]
        w = WO + 8*i + 4*nt
        cc = "0" if i == 0 else f"v[{ACC+16*nt}:{ACC+16*nt+15}]"
        a.e(f"v_mfma_f32_32x32x16_bf16 v[{ACC+16*nt}:{ACC+16*nt+15}], v[{w}:{w+3}], v[{o}:{o+3}], {cc}")
    kaf_read(0); kaf_read(1)
    num_mfma(0)
    for i in range(16):
        if i >= cfg.x_main: break
        if i + 1 < 16:
            num_mfma(i + 1)
        c = CN[i % 2]
        a.e(f"v_add_f32 v20, s64, v{c+8}")
        a.e(f"v_rcp_f32 v20, v20")
        if i + 2 < 16:
            kaf_read(i + 2)
        for jj in range(2): a.e(f"v_mul_f32 v{c+jj}, v{c+jj}, v20")
        if i >= 1: out1(i - 1, 0)
        for jj in range(2, 7): a.e(f"v_mul_f32 v{c+jj}, v{c+jj}, v20")
        if i >= 1: out1(i - 1, 1)
        a.e(f"v_mul_f32 v{c+7}, v{c+7}, v20")
        o = OF[i % 2]
        for m in range(4):
            a.e(f"v_cvt_pk_bf16_f32 v{o+m}, v{c+2*m}, v{c+2*m+1}")
    out1(15, 0); out1(15, 1)
    stamp(a, cfg, 14)
    a.e("""
    s_cmp_lg_u32 s3, 0
    s_cbranch_scc1 L_b_norst
    s_cmp_lg_u32 s39, 0
    s_cbranch_scc1 L_b_norst
    v_mov_b32 v20, 0
    s_mov_b64 exec, 1
    global_store_dword v20, v20, s[34:35] sc1
    s_mov_b64 exec, -1
    """)
    a.label("L_b_norst")
    a.vm = []
    for nt in range(2):
        for q in range(4):
            r = ACC + 16*nt + 4*q
            a.e(f"ds_write_b128 v24, v[{r}:{r+3}] offset:{nt*128 + q*32}")
    a.e("s_waitcnt lgkmcnt(0)")
    a.e("s_barrier")
    for r in range(2):
        o = r*32*272
        a.e(f"ds_read_b128 v[{32+16*r}:{35+16*r}], v25 offset:{o}")
        a.e(f"ds_read_b128 v[{40+16*r}:{43+16*r}], v25 offset:{o+64*272}")
        a.e(f"ds_read_b128 v[{36+16*r}:{39+16*r}], v25 offset:{o+16}")
        a.e(f"ds_read_b128 v[{44+16*r}:{47+16*r}], v25 offset:{o+64*272+16}")
    for r in range(2):
        a.e(f"s_waitcnt lgkmcnt({4 if r == 0 else 0})")
        b = 32 + 16*r
        for jj in range(8):
            a.e(f"v_add_f32 v{b+jj}, v{b+jj}, v{b+8+jj}")
        for m in range(4):
            a.e(f"v_cvt_pk_bf16_f32 v{64+4*r+m}, v{b+2*m}, v{b+2*m+1}")
        a.e(f"global_store_dwordx4 v{26+r}, v[{64+4*r}:{67+4*r}], s[32:33] {cfg.outfl}")
    stamps_out(a, cfg, 15)

TV = 240
def a_touch_setup(a, cfg):
    a.e(f"""
    s_lshr_b32 s62, s40, 1          ; tg
    s_and_b32 s63, s40, 1           ; hg
    s_lshl_b32 s64, s62, 9
    s_lshl_b32 s65, s41, 4          ; 16*jj
    s_add_u32 s64, s64, s65
    v_and_b32 v246, 15, v1
    v_lshrrev_b32 v247, 4, v1       ; 0..3
    v_add_u32 v241, s64, v246
    v_lshlrev_b32 v241, 10, v241
    v_lshl_add_u32 v241, v247, 7, v241
    v_add_u32 v241, 512, v241
    v_and_b32 v248, 3, v1
    v_lshlrev_b32 v248, 7, v248     ; line*128
    s_lshl_b32 s66, s63, 9          ; hg*512
    v_lshrrev_b32 v249, 2, v1
    v_add_u32 v240, s65, v249       ; 16jj + (l>>2)
    v_mul_u32_u24 v242, 3072, v240
    v_add3_u32 v242, v242, v248, s66
    v_add_u32 v244, {'QKV'.index(ORDER[2])*1024}, v242
    v_lshlrev_b32 v245, 10, v240
    v_add3_u32 v245, v245, v248, s66
    v_and_b32 v249, 7, v249
    s_lshl_b32 s67, s41, 3
    s_add_u32 s67, s67, 256
    v_add_u32 v249, s67, v249
    v_mul_u32_u24 v243, 3072, v249
    v_add3_u32 v243, v243, v248, s66
    v_add_u32 v240, {'QKV'.index(ORDER[1])*1024}, v242
    v_add_u32 v243, {'QKV'.index(ORDER[0])*1024}, v243
    """)

def a_touch(a, cfg, plan):
    fl = cfg.touch_flags
    info = {"x1": (241, "s[26:27]"), "q47": (243, "s[28:29]"), "k": (240, "s[28:29]"), "v": (244, "s[28:29]"), "o": (245, "s[30:31]")}
    for w, names in plan.items():
        L = a.newlabel("tch")
        a.e(f"s_cmp_eq_u32 s39, {w}")
        a.e(f"s_cbranch_scc0 {L}")
        for i, nm in enumerate(names):
            v, base = info[nm]
            a.e(f"global_load_dword v{250+i}, v{v}, {base} {fl}")
            a.vm.pop()
        a.label(L)

def role_A(a, cfg):
    a.label("L_roleA")
    a.e("""
    s_and_b32 s40, s3, 7
    s_lshr_b32 s41, s3, 3           ; j
    s_waitcnt lgkmcnt(0)
    """)
    if not cfg.do_A:
        if cfg.touch:
            a_touch_setup(a, cfg)
            a_touch(a, cfg, {2: ["x1"], 3: ["q47"]})
            a.e("s_waitcnt vmcnt(0)")
            a_touch(a, cfg, {1: ["k"], 2: ["v"], 3: ["o"]})
            a.e("s_waitcnt vmcnt(0)")
        a.e("s_branch L_end")
        return
    import role_a
    role_a.role_A(a, cfg)

def build(cfg):
    set_order(cfg.order)
    global DMAFL
    DMAFL = cfg.dmafl
    a = Asm()
    prologue(a, cfg)
    if cfg.layout == "BA":
        if cfg.do_B:
            role_B(a, cfg)
        a.e("s_branch L_end")
        a.vm = []; a.lg = []
        role_A(a, cfg)
    else:
        role_A(a, cfg)
        a.e("s_branch L_end")
        a.vm = []; a.lg = []
        a.label("L_roleB")
        role_B(a, cfg)
    a.label("L_end")
    a.e("s_endpgm")
    body = a.render()
    return body, a

HEADER = open("concat_heads__ssm_conv_s4__linear_attn_block__prompt.s.ref").read().split("; Override launch")[0]

def generate(path, cfg):
    body, a = build(cfg)
    txt = wrap(body, HEADER, 512, 256, 81920)
    open(path, "w").write(txt)
    return a

if __name__ == "__main__":
    sys.modules["kern"] = sys.modules["__main__"]
    cfg = Cfg()
    cfg.stamps = True
    if len(sys.argv) > 2:
        for kv in sys.argv[2:]:
            k, v = kv.split("=")
            setattr(cfg, k, int(v) if v.isdigit() else v)
    a = generate(sys.argv[1] if len(sys.argv) > 1 else "k_b1.s", cfg)
    print("nops inserted:", a.nnops)
```

```python
from asmlib import Asm
import kern as K

UT, YT = K.UT, K.YT
UTF, YTF = K.UTF, K.YTF
TILE = 3088
SPIN = K.SPIN_LIMIT
ROWB = 528
TB = [12288, 45056]
KC = [0, 1536]
NONCE_LDS = 3072
KD = [3088, 7200]
CP = [12288, 12288 + 16640]
UR = [45568, 45568 + 7600]
YP = 0
ROWS = list(range(8)) + [128+k for k in range(8)] + [256+2*k for k in range(4)] + [384+2*k for k in range(4)] + \
       [512, 516, 640, 644, 768, 772, 896, 900] + [1024+128*k for k in range(8)] + [2048]
assert len(ROWS) == 41

def fhex(x):
    import struct
    return hex(struct.unpack("<I", struct.pack("<f", x))[0])

USE_PK = False
def cmul(a, d, x, y, t):
    if USE_PK:
        a.e(f"v_pk_mul_f32 v[{t}:{t+1}], v[{x}:{x+1}], v[{y}:{y+1}] op_sel_hi:[1,0]")
        a.e(f"v_pk_fma_f32 v[{d}:{d+1}], v[{x}:{x+1}], v[{y}:{y+1}], v[{t}:{t+1}] op_sel:[1,1,0] op_sel_hi:[0,1,1] neg_lo:[1,0,0]")
    else:
        assert d not in (x, y)
        a.e(f"v_mul_f32 v{t}, v{x}, v{y}")
        a.e(f"v_mul_f32 v{t+1}, v{x+1}, v{y}")
        a.e(f"v_fma_f32 v{d}, -v{x+1}, v{y+1}, v{t}")
        a.e(f"v_fma_f32 v{d+1}, v{x}, v{y+1}, v{t+1}")

def poll_tags_loop(a, name, loads, tagregs):
    a.e("s_mov_b32 s61, 0")
    a.label(f"L_{name}_poll")
    for l in loads: a.e(l)
    a.e("s_add_u32 s61, s61, 1")
    a.e("s_waitcnt vmcnt(0)")
    K.tag_check(a, tagregs, acc="v9")
    a.e(f"""
    s_cmp_gt_u32 s61, {SPIN}
    s_cbranch_scc1 L_{name}_go
    s_cbranch_vccz L_{name}_go
    s_sleep 1
    s_branch L_{name}_poll
    """)
    a.label(f"L_{name}_go")
    a.vm = []


(A_TW, A_TR, A_UT0, A_UT1, A_TB, A_KM, A_C0, A_C1A, A_C1B, A_C2, A_DW, A_ER0, A_ER1, A_ZU, A_ZC, A_ZG,
 A_CR, A_CW, A_UG, A_UL, A_FU, A_FY, A_FUS, A_FYS, A_VA, A_VB, A_PW, A_OR, A_YG, A_YL, A_OUT) = (
 160, 161, 162, 163, 164, 168, 172, 173, 174, 175, 176, 177, 178, 179, 180, 181,
 182, 183, 184, 185, 186, 187, 188, 189, 190, 191, 192, 193, 194, 195, 199)

def role_A(a, cfg):
    global USE_PK
    USE_PK = cfg.pk
    st = lambda i: K.stamp(a, cfg, i)
    a.c("================= role A =================")
    if cfg.prioA and not cfg.late_prio: a.e(f"s_setprio {cfg.prioA}")
    a.e("""
    s_lshr_b32 s47, s39, 1
    s_and_b32 s48, s39, 1           ; w2
    s_lshl_b32 s49, s40, 6          ; 64 g
    s_lshl_b32 s50, s41, 1
    s_add_u32 s50, s50, s49         ; d0 = 64g + 2j
    s_add_u32 s51, s50, s47
    s_lshl_b32 s51, s51, 8
    v_and_b32 v2, 127, v0           ; n
    v_lshl_add_u32 v5, v2, 1, s51
    v_lshrrev_b32 v3, 4, v0         ; r''
    v_and_b32 v4, 15, v0            ; c8
    s_lshl_b32 s52, s41, 6
    v_lshl_add_u32 v6, v3, 2, s52   ; t0 = 64j + 4r''
    v_lshlrev_b32 v6, 10, v6
    s_lshl_b32 s53, s49, 1
    v_lshl_add_u32 v7, v4, 3, s53
    v_add_u32 v6, v6, v7            ; u offset
    s_lshl_b32 s45, s40, 2
    s_add_u32 s45, s45, 4
    v_mov_b32 v8, s45
    s_waitcnt lgkmcnt(0)
    """)
    st(1)
    a.e("""
    v_mov_b32 v202, v6
    v_mov_b32 v203, v7
    global_load_ushort v10, v5, s[10:11]
    global_load_ushort v11, v5, s[12:13]
    global_load_ushort v12, v5, s[14:15]
    global_load_ushort v13, v5, s[16:17]
    global_load_ushort v14, v5, s[18:19]
    global_load_ushort v15, v5, s[20:21]
    s_lshl_b32 s54, s50, 1
    s_add_u32 s54, s22, s54
    s_addc_u32 s55, s23, 0
    s_load_dword s56, s[54:55], 0
    s_cmp_lg_u32 s41, 0
    s_cbranch_scc1 L_a_nopub
    s_cmp_lg_u32 s39, 0
    s_cbranch_scc1 L_a_nopub
    s_memrealtime s[58:59]
    s_waitcnt lgkmcnt(0)
    s_or_b32 s58, s58, 8
    v_mov_b32 v9, s58
    s_mov_b64 exec, 1
    global_store_dword v8, v9, s[34:35] sc1
    s_mov_b64 exec, -1
    """)
    a.label("L_a_nopub")
    if cfg.codepf:
        a.e("""
        s_cmp_lg_u32 s39, 3
        s_cbranch_scc1 L_a_nocpf
        v_lshlrev_b32 v26, 7, v1
        global_load_dword v216, v26, s[4:5]
        v_add_u32 v26, 8192, v26
        global_load_dword v217, v26, s[4:5]
        v_add_u32 v26, 8192, v26
        v_min_u32 v26, L_end-L_pc0, v26
        global_load_dword v218, v26, s[4:5]
        """)
        a.label("L_a_nocpf")
    a.vm = []
    a.e(f"""
    v_and_b32 v26, 15, v1
    v_lshrrev_b32 v27, 4, v1
    v_bfe_u32 v28, v1, 2, 2
    v_and_b32 v29, 3, v1
    v_and_b32 v30, 31, v1
    v_lshrrev_b32 v31, 5, v1
    v_lshlrev_b32 v32, 2, v4
    v_mul_u32_u24 v32, 144, v32
    v_lshlrev_b32 v33, 3, v3
    v_sub_u32 v33, 120, v33
    v_add_u32 v32, v32, v33
    v_add_u32 v{A_TW}, {TILE}, v32
    v_lshrrev_b32 v32, 3, v1
    s_lshl_b32 s57, s39, 5
    v_add_u32 v32, s57, v32
    v_mul_u32_u24 v33, 144, v32
    v_and_b32 v34, 7, v1
    v_lshl_add_u32 v33, v34, 4, v33
    v_add_u32 v{A_TR}, {TILE}, v33
    v_add_u32 v32, s49, v32
    v_lshlrev_b32 v32, 12, v32
    v_lshl_add_u32 v32, v34, 4, v32
    s_sub_u32 s57, 31, s41
    s_lshl_b32 s57, s57, 7
    s_add_u32 s57, s57, {UT}
    v_add_u32 v{A_UT0}, s57, v32
    v_add_u32 v{A_UT1}, 32768, v{A_UT0}
    v_add_u32 v200, 65536, v{A_UT0}
    v_add_u32 v201, 98304, v{A_UT0}
    v_lshl_add_u32 v32, v27, 3, v28
    s_lshl_b32 s59, s47, 15
    s_add_u32 s59, s59, {TB[0]}
    v_and_b32 v33, 1, v2
    v_bfe_u32 v34, v2, 2, 1
    v_lshl_add_u32 v33, v34, 1, v33
    v_lshl_add_u32 v34, v2, 8, s59
    """)
    for cp in range(4):
        a.e(f"v_xor_b32 v35, {cp}, v33")
        a.e(f"v_lshl_add_u32 v{A_TB+cp}, v35, 5, v34")
    a.e(f"""
    v_lshlrev_b32 v34, 7, v32
    v_lshl_add_u32 v34, v29, 3, v34
    v_add_u32 v34, s59, v34
    v_lshrrev_b32 v33, 1, v28
    v_and_b32 v35, 1, v27
    v_lshl_add_u32 v33, v35, 1, v33
    """)
    for t in range(4):
        a.e(f"v_xor_b32 v35, {t}, v33")
        a.e(f"v_lshl_add_u32 v{A_KM+t}, v35, 5, v34")
    a.e(f"""
    s_mul_i32 s59, s47, {KC[1]-KC[0]}
    s_add_u32 s59, s59, {KC[0]}
    v_lshrrev_b32 v33, 1, v27
    v_lshlrev_b32 v33, 7, v33
    v_lshl_add_u32 v33, v26, 3, v33
    v_and_b32 v34, 1, v27
    v_lshl_add_u32 v33, v34, 2, v33
    v_lshl_add_u32 v{A_C0}, v33, 1, s59          ; tile 0
    v_lshlrev_b32 v33, 6, v27
    v_cmp_gt_u32 vcc, 2, v27
    v_lshlrev_b32 v34, 2, v26
    v_lshlrev_b32 v35, 1, v26
    v_cndmask_b32 v34, v35, v34, vcc
    v_add_u32 v33, v33, v34
    v_add_u32 v33, 256, v33
    v_mov_b32 v34, 32
    v_mov_b32 v35, 2
    v_cndmask_b32 v34, v34, v35, vcc
    v_add_u32 v34, v33, v34
    v_lshl_add_u32 v{A_C1A}, v33, 1, s59
    v_lshl_add_u32 v{A_C1B}, v34, 1, s59
    v_lshl_add_u32 v33, v27, 6, v26
    v_add_u32 v33, 512, v33
    v_lshl_add_u32 v{A_C2}, v33, 1, s59          ; tile 2
    v_lshlrev_b32 v33, 4, v0
    v_add_u32 v{A_DW}, 16, v33
    v_mov_b32 v{A_ER0}, v33
    v_lshlrev_b32 v34, 3, v0
    v_add_u32 v{A_ER1}, 256, v34
    s_cmp_eq_u32 s39, 1
    s_cbranch_scc0 L_a_ad1
    v_lshlrev_b32 v34, 2, v0
    v_add_u32 v{A_ER0}, 512, v34
    """)
    a.label("L_a_ad1")
    a.e(f"""
    s_cmp_ge_u32 s39, 2
    s_cbranch_scc0 L_a_ad2
    v_add_u32 v34, 384, v0
    v_lshlrev_b32 v{A_ER0}, 1, v34
    """)
    a.label("L_a_ad2")
    a.e(f"""
    v_mov_b32 v{A_ZU}, v33
    v_lshrrev_b32 v34, 2, v0
    v_mul_u32_u24 v34, 4160, v34
    v_and_b32 v35, 3, v0
    v_lshl_add_u32 v{A_ZC}, v35, 4, v34
    v_mul_u32_u24 v34, {KD[1]-KD[0]}, v0
    v_add_u32 v{A_ZG}, {KD[0]}, v34
    ; copies
    v_mov_b32 v{A_CR}, v33
    v_add_u32 v{A_CW}, 64, v33
    v_lshrrev_b32 v34, 7, v0                     ; cch
    v_add_u32 v35, s50, v34
    v_lshlrev_b32 v35, 12, v35
    v_lshl_add_u32 v35, v2, 4, v35
    v_add_u32 v{A_UG}, {UT}, v35
    v_lshrrev_b32 v35, 2, v2
    v_mul_u32_u24 v35, 80, v35
    v_and_b32 v36, 3, v2
    v_lshl_add_u32 v35, v36, 4, v35
    v_mul_u32_u24 v34, {UR[1]-UR[0]}, v34
    v_add_u32 v{A_UL}, v35, v34
    v_lshrrev_b32 v34, 3, v1
    v_lshlrev_b32 v34, 7, v34
    v_and_b32 v35, 7, v1
    v_lshl_add_u32 v34, v35, 2, v34
    s_lshl_b32 s58, s40, 10
    s_add_u32 s58, s58, {UTF}
    v_add_u32 v{A_FU}, s58, v34
    v_lshrrev_b32 v34, 3, v30
    v_lshlrev_b32 v34, 7, v34
    v_lshl_add_u32 v34, v35, 2, v34
    s_lshl_b32 s58, s40, 9
    s_add_u32 s58, s58, {YTF}
    v_add_u32 v{A_FY}, s58, v34
    s_lshl_b32 s57, s41, 1
    s_add_u32 s57, s57, s48
    s_lshr_b32 s59, s57, 3
    s_lshl_b32 s59, s59, 7
    s_and_b32 s57, s57, 7
    s_lshl_b32 s57, s57, 2
    s_add_u32 s57, s57, s59
    s_lshl_b32 s59, s40, 10
    s_add_u32 s57, s57, s59
    s_add_u32 s57, s57, {UTF}
    v_mov_b32 v{A_FUS}, s57
    s_lshr_b32 s59, s41, 3
    s_lshl_b32 s59, s59, 7
    s_and_b32 s57, s41, 7
    s_lshl_b32 s57, s57, 2
    s_add_u32 s57, s57, s59
    s_add_u32 s57, s57, s58
    v_mov_b32 v{A_FYS}, s57
    ; conv A: copy cc = (3 - i) & 3 ; CP[c] + cc*4160 + 2*(i + cc + 9 - 8hh) + w2*1024
    v_sub_u32 v34, 3, v30
    v_and_b32 v34, 3, v34
    v_mul_u32_u24 v35, 4160, v34
    v_add_u32 v36, v30, v34
    v_add_u32 v36, 9, v36
    v_lshlrev_b32 v37, 3, v31
    v_sub_u32 v36, v36, v37
    v_lshl_add_u32 v35, v36, 1, v35
    s_mul_i32 s57, s47, {CP[1]-CP[0]}
    s_lshl_b32 s58, s48, 10
    s_add_u32 s57, s57, s58
    s_add_u32 s57, s57, {CP[0]}
    v_add_u32 v{A_VA}, s57, v35
    ; conv B: UR[c] + (31 - a)*80 + 16 - 16hh + w2*1280
    v_sub_u32 v35, 31, v30
    v_mul_u32_u24 v35, 80, v35
    v_lshlrev_b32 v36, 4, v31
    v_sub_u32 v35, v35, v36
    v_add_u32 v35, 16, v35
    s_mul_i32 s57, s47, {UR[1]-UR[0]}
    s_mul_i32 s58, s48, {16*80}
    s_add_u32 s57, s57, s58
    s_add_u32 s57, s57, {UR[0]}
    v_add_u32 v{A_VB}, s57, v35
    v_mul_u32_u24 v35, 144, v30
    v_lshl_add_u32 v35, v31, 4, v35
    s_mul_i32 s57, s39, {64*144}
    v_add_u32 v{A_PW}, s57, v35
    v_lshrrev_b32 v35, 2, v0
    v_mul_u32_u24 v35, 144, v35
    v_and_b32 v36, 3, v0
    v_lshl_add_u32 v{A_OR}, v36, 5, v35
    s_lshl_b32 s57, s50, 12
    s_add_u32 s57, s57, {YT}
    v_lshl_add_u32 v{A_YG}, v0, 4, s57
    v_lshlrev_b32 v35, 2, v4
    v_add_u32 v35, s49, v35
    v_lshlrev_b32 v35, 12, v35
    v_lshl_add_u32 v35, v3, 3, v35
    s_lshl_b32 s59, s41, 7
    s_add_u32 s59, s59, {YT}
    v_add_u32 v{A_YL}, s59, v35
    v_add_u32 v{A_YL+1}, 4096, v{A_YL}
    v_add_u32 v{A_YL+2}, 8192, v{A_YL}
    v_add_u32 v{A_YL+3}, 12288, v{A_YL}
    v_lshlrev_b32 v35, 1, v6
    v_sub_u32 v{A_OUT}, v35, v7
    """)
    if cfg.touch:
        K.a_touch_setup(a, cfg)
    a.e("s_waitcnt vmcnt(0) lgkmcnt(0)")
    st(2)
    if cfg.prioA and cfg.late_prio: a.e(f"s_setprio {cfg.prioA}")
    if cfg.x_exit == "params":
        K.stamps_out(a, cfg, 14)
        a.e("s_branch L_end")
    a.e(f"""
    global_load_dwordx2 v[16:17], v202, s[8:9] {cfg.aldfl}
    global_load_dwordx2 v[18:19], v202, s[8:9] offset:1024 {cfg.aldfl}
    global_load_dwordx2 v[20:21], v202, s[8:9] offset:2048 {cfg.aldfl}
    global_load_dwordx2 v[22:23], v202, s[8:9] offset:3072 {cfg.aldfl}
    global_load_dwordx2 v[24:25], v203, s[24:25]
    """)
    nt2 = 0; nt3 = 0
    if cfg.uttouch:
        a.e(f"""
        s_cmp_lg_u32 s39, 2
        s_cbranch_scc1 L_a_nout0
        v_add_u32 v26, s49, v1
        v_lshlrev_b32 v26, 12, v26
        s_sub_u32 s57, 31, s41
        s_lshl_b32 s57, s57, 7
        s_add_u32 s57, s57, {UT}
        v_add_u32 v26, s57, v26
        global_load_dword v255, v26, s[36:37]
        """)
        a.label("L_a_nout0")
    a.e(f"""
    s_cmp_eq_u32 s39, 3
    s_cbranch_scc0 L_a_nopt
    global_load_dword v253, v{A_FU}, s[36:37] sc1
    global_load_dword v254, v{A_FY}, s[36:37] sc1
    """)
    a.label("L_a_nopt")
    nt3 += 2
    if cfg.touch:
        if not cfg.x_notouch1:
            K.a_touch(a, cfg, {2: ["x1"], 3: ["q47"]})
            nt2 += 1; nt3 += 1
    a.vm = []
    def a1_write():
        a.e(f"""
        s_cmp_eq_u32 s39, 2
        s_cbranch_scc1 L_a_uw2
        s_cmp_eq_u32 s39, 3
        s_cbranch_scc1 L_a_uw3
        s_waitcnt vmcnt(0)
        s_branch L_a_uwd
        """)
        a.label("L_a_uw2")
        a.e(f"s_waitcnt vmcnt({nt2})")
        a.e("s_branch L_a_uwd")
        a.label("L_a_uw3")
        a.e(f"s_waitcnt vmcnt({nt3})")
        a.label("L_a_uwd")
        a.e("""
        s_mov_b32 s57, 0x05040100
        s_mov_b32 s58, 0x07060302
        """)
        for e in range(4):
            sel = "s57" if e % 2 == 0 else "s58"
            h = e // 2
            a.e(f"v_perm_b32 v{32+2*e}, v{20+h}, v{22+h}, {sel}")
            a.e(f"v_perm_b32 v{33+2*e}, v{16+h}, v{18+h}, {sel}")
            a.e(f"ds_write_b64 v{A_TW}, v[{32+2*e}:{33+2*e}] offset:{e*144}")
    def a1_store():
        a.e("""
        s_cmp_ge_u32 s39, 2
        s_cbranch_scc1 L_a_nout
        """)
        for i in range(4):
            a.e(f"ds_read_b128 v[{224+4*i}:{227+4*i}], v{A_TR} offset:{i*8*144}")
        UTA = [A_UT0, A_UT1, 200, 201]
        for i in range(4):
            a.e(f"s_waitcnt lgkmcnt({3-i})")
            a.e(f"global_store_dwordx4 v{UTA[i]}, v[{224+4*i}:{227+4*i}], s[36:37] {cfg.locfl}")
        a.e("global_load_dword v9, v8, s[34:35] sc1")
        a.label("L_a_nout")
        a.vm = []
    def ut_flag():
        a.e(f"""
        s_cmp_ge_u32 s39, 2
        s_cbranch_scc1 L_a_nofl
        s_mov_b32 s61, 0
        """)
        if cfg.dbgN: st(4)
        a.e(f"""
        s_waitcnt vmcnt(0)
        """)
        if cfg.dbgN: st(7)
        a.e(f"""
        v_readfirstlane_b32 s38, v9
        s_cmp_lg_u32 s38, 0
        s_cbranch_scc1 L_a_nok
        """)
        a.label("L_a_npoll")
        a.e(f"""
        global_load_dword v9, v8, s[34:35] sc1
        s_waitcnt vmcnt(0)
        v_readfirstlane_b32 s38, v9
        s_add_u32 s61, s61, 1
        s_cmp_gt_u32 s61, {SPIN}
        s_cbranch_scc1 L_a_nok
        s_cmp_eq_u32 s38, 0
        s_cbranch_scc1 L_a_npoll
        """)
        a.label("L_a_nok")
        if cfg.dbgN:
            st(5); K.stampval(a, cfg, 6, "s61")
        a.e(f"""
        s_getreg_b32 s57, hwreg(HW_REG_XCC_ID)
        s_and_b32 s57, s57, 7
        s_and_b32 s58, s38, 0xfffffff8
        s_or_b32 s57, s57, s58
        v_mov_b32 v9, s57
        s_mov_b64 exec, 1
        global_store_dword v{A_FUS}, v9, s[36:37]
        s_mov_b64 exec, -1
        """)
        a.label("L_a_nofl")
        a.vm = []

    def gate():
        a.e(f"""
        s_cmp_lg_u32 s39, 3
        s_cbranch_scc1 L_a_gate_go
        s_lshl_b32 s57, s40, 8
        s_lshl_b32 s58, s41, 2
        s_add_u32 s57, s57, s58
        s_add_u32 s57, s57, {K.BDN}
        v_mov_b32 v28, s57
        v_mov_b32 v29, 0
        s_mov_b32 s61, 0
        """)
        a.label("L_a_gate_poll")
        a.e(f"""
        global_load_dword v30, v28, s[36:37] sc1
        global_load_dword v31, v29, s[34:35] sc1
        s_add_u32 s61, s61, 1
        s_waitcnt vmcnt(0)
        v_cmp_ne_u32 vcc, v30, v31
        v_cmp_eq_u32 s[64:65], 0, v31
        s_or_b64 vcc, vcc, s[64:65]
        s_cmp_gt_u32 s61, {cfg.gate_max}
        s_cbranch_scc1 L_a_gate_go
        s_cbranch_vccz L_a_gate_go
        s_sleep 2
        s_branch L_a_gate_poll
        """)
        a.label("L_a_gate_go")
        a.e("s_barrier")
    LOG2E = fhex(1.4426950408889634); INV2PI = fhex(0.15915494309189535)
    a.e(f"""
    s_lshr_b32 s59, s56, 16
    s_and_b32 s60, s56, 0xffff
    s_cmp_eq_u32 s47, 0
    s_cselect_b32 s59, s60, s59
    s_lshl_b32 s59, s59, 16
    v_mov_b32 v28, s59
    v_mul_f32 v29, {LOG2E}, v28
    v_mov_b32 v30, {LOG2E}
    v_fma_f32 v30, v28, v30, -v29
    v_fmac_f32 v30, 0x32a57060, v28
    v_exp_f32 v29, v29
    v_mul_f32 v30, {fhex(0.6931471805599453)}, v30
    v_fma_f32 v29, v29, v30, v29
    v_cvt_pk_bf16_f32 v29, v29, v29
    v_lshlrev_b32 v29, 16, v29
    """)
    for i in range(6): a.e(f"v_lshlrev_b32 v{10+i}, 16, v{10+i}")
    a.e(f"""
    v_mul_f32 v10, v29, v10          ; a_re
    v_mul_f32 v11, v29, v11          ; a_im
    v_mul_f32 v12, v29, v12          ; dB_re
    v_mul_f32 v13, v29, v13          ; dB_im
    v_mul_f32 v10, {LOG2E}, v10      ; ar2
    v_mul_f32 v11, {INV2PI}, v11     ; ai2
    """)
    P = {}
    nxtp = [50]
    def pair(name):
        P[name] = nxtp[0]; nxtp[0] += 2
        return P[name]
    TMP = [28, 30]
    ti = [0]
    def mul(dn, xn, yn):
        d = P.get(dn) or pair(dn)
        t = TMP[ti[0] % 2]; ti[0] += 1
        if cfg.x_tab and ti[0] % 2 == 0: return
        cmul(a, d, P[xn], P[yn], t)
    pair("X0"); cmul(a, P["X0"], 14, 12, 28)
    for x in (1, 8, 128, 256, 512, 1024):
        d = pair(f"E{x}")
        if x == 1:
            a.e(f"v_exp_f32 v6, v10")
            a.e(f"v_fract_f32 v7, v11")
        else:
            a.e(f"v_mul_f32 v6, {fhex(float(x))}, v10")
            a.e(f"v_mul_f32 v7, {fhex(float(x))}, v11")
            a.e(f"v_exp_f32 v6, v6")
            a.e(f"v_fract_f32 v7, v7")
        a.e(f"v_cos_f32 v26, v7")
        a.e(f"v_sin_f32 v27, v7")
        a.e(f"v_mul_f32 v{d}, v6, v26")
        a.e(f"v_mul_f32 v{d+1}, v6, v27")
    if cfg.dbgT: st(4)
    OUT = [120, 128]
    oc = [0]
    def put_chunk(q, names, neg):
        o = OUT[oc[0] % 2]; oc[0] += 1
        sg = "-" if neg else ""
        for m in range(4):
            x, y = P[names[2*m]], P[names[2*m+1]]
            a.e(f"v_cvt_pk_bf16_f32 v{o+m}, v{x}, v{y}")
            a.e(f"v_cvt_pk_bf16_f32 v{o+4+m}, {sg}v{x+1}, {sg}v{y+1}")
        ad = A_TB + (q >> 1)
        if not cfg.x_nowrite:
            a.e(f"ds_write_b128 v{ad}, v[{o}:{o+3}] offset:{(q & 1)*16}")
            a.e(f"ds_write_b128 v{ad}, v[{o+4}:{o+7}] offset:{128 + (q & 1)*16}")
    pair("ONE")
    a.e(f"v_mov_b32 v{P['ONE']}, 1.0")
    a.e(f"v_mov_b32 v{P['ONE']+1}, 0")
    for k in range(8): pair(f"S{k}")
    for k in range(1, 8):
        mul(f"X{k}", f"X{k-1}", "E1")
    put_chunk(0, [f"X{k}" for k in range(8)], True)
    P["Y8"] = P["E8"]
    mul("Y16", "Y8", "Y8"); mul("Y24", "Y16", "Y8"); mul("Y32", "Y16", "Y16")
    mul("Y40", "Y32", "Y8"); mul("Y48", "Y32", "Y16"); mul("Y56", "Y32", "Y24")
    put_chunk(6, ["ONE", "Y8", "Y16", "Y24", "Y32", "Y40", "Y48", "Y56"], False)
    if cfg.dbgT: st(6)
    mul("S0", "Y32", "Y32")
    for jj in range(1, 8): mul(f"S{jj}", "S0", f"Y{8*jj}")
    put_chunk(7, [f"S{k}" for k in range(8)], False)
    for k in range(8): mul(f"S{k}", f"X{k}", "E128")
    put_chunk(1, [f"S{k}" for k in range(8)], True)
    if cfg.mid_u:
        a1_write()
        a.e("s_waitcnt lgkmcnt(0)")
        a.e("s_barrier")
        a1_store()
    for i_, k in enumerate((0, 2, 4, 6)):
        mul(f"S{i_}", f"X{k}", "E256")
    for i_ in range(4):
        mul(f"S{4+i_}", f"S{i_}", "E128")
    put_chunk(2, [f"S{k}" for k in range(8)], True)
    mul("S0", "X0", "E512"); mul("S1", "X4", "E512")
    for i_ in range(2, 8): mul(f"S{i_}", f"S{i_-2}", "E128")
    put_chunk(3, [f"S{k}" for k in range(8)], True)
    mul("S0", "X0", "E1024")
    for i_ in range(1, 8): mul(f"S{i_}", f"S{i_-1}", "E128")
    pair("XL"); mul("XL", "S0", "E1024")
    put_chunk(4, [f"S{k}" for k in range(8)], True)
    a.e(f"v_cvt_pk_bf16_f32 v120, v{P['XL']}, -v{P['XL']+1}")
    a.e(f"ds_write_b16 v{A_TB+2}, v120 offset:16")
    a.e(f"ds_write_b16_d16_hi v{A_TB+2}, v120 offset:{128+16}")
    assert nxtp[0] <= 120, nxtp
    if cfg.mid_u: ut_flag()
    else: a1_write()
    if cfg.dbgT: st(7)
    a.e("s_waitcnt lgkmcnt(0)")
    if cfg.dbgT: st(8)
    a.e("s_barrier")
    st(3)
    if cfg.x_exit == "tables":
        K.stamps_out(a, cfg, 14)
        a.e("s_branch L_end")
    if not cfg.mid_u: a1_store()
    def look_issue():
        a.e(f"""
        s_cmp_lg_u32 s39, 0
        s_cbranch_scc1 L_a_uf0
        global_load_dword v30, v{A_FU}, s[36:37] sc1
        """)
        a.label("L_a_uf0")
    if cfg.mid_u: look_issue()
    if cfg.touch:
        K.a_touch(a, cfg, {2: ["k"]})
    if cfg.gate == 1: gate()
    YF, XF, D0 = 32, 64, 128
    def trfrag(dst, addr, s):
        a.e(f"ds_read_b64_tr_b16 v[{dst}:{dst+1}], v{addr} offset:{s*4096}")
        a.e(f"ds_read_b64_tr_b16 v[{dst+2}:{dst+3}], v{addr} offset:{s*4096 + 512}")
    a.e("""
    s_cmp_eq_u32 s48, 0
    s_cbranch_scc0 L_a_k2
    """)
    a.lg = []
    for s in range(8):
        trfrag(YF+4*s, A_KM+3, s)
        for t in range(2): trfrag(XF+32*t+4*s, A_KM+t, s)
    for s in range(8):
        a.e(f"s_waitcnt lgkmcnt({min(15, 6*(7-s))})")
        for t in range(2):
            c = "0" if s == 0 else f"v[{D0+4*t}:{D0+4*t+3}]"
            a.e(f"v_mfma_f32_16x16x32_bf16 v[{D0+4*t}:{D0+4*t+3}], v[{XF+32*t+4*s}:{XF+32*t+4*s+3}], v[{YF+4*s}:{YF+4*s+3}], {c}")
    a.e(f"""
    v_cvt_pk_bf16_f32 v136, v{D0}, v{D0+1}
    v_cvt_pk_bf16_f32 v137, v{D0+2}, v{D0+3}
    v_cvt_pk_bf16_f32 v138, v{D0+4}, v{D0+5}
    v_cvt_pk_bf16_f32 v139, v{D0+6}, v{D0+7}
    ds_write_b64 v{A_C0}, v[136:137]
    ds_write_b32 v{A_C1A}, v138
    ds_write_b32 v{A_C1B}, v139
    s_branch L_a_kdone
    """)
    a.label("L_a_k2")
    for s in range(8):
        trfrag(YF+4*s, A_KM+3, s)
        trfrag(XF+4*s, A_KM+2, s)
    for s in range(8):
        a.e(f"s_waitcnt lgkmcnt({min(15, 4*(7-s))})")
        c = "0" if s == 0 else f"v[{D0}:{D0+3}]"
        a.e(f"v_mfma_f32_16x16x32_bf16 v[{D0}:{D0+3}], v[{XF+4*s}:{XF+4*s+3}], v[{YF+4*s}:{YF+4*s+3}], {c}")
    a.e(f"""
    v_cvt_pk_bf16_f32 v136, v{D0}, v{D0+1}
    v_cvt_pk_bf16_f32 v137, v{D0+2}, v{D0+3}
    ds_write_b16 v{A_C2}, v136
    ds_write_b16_d16_hi v{A_C2}, v136 offset:32
    ds_write_b16 v{A_C2}, v137 offset:64
    ds_write_b16_d16_hi v{A_C2}, v137 offset:96
    """)
    a.label("L_a_kdone")
    def look_check(issue):
        a.e(f"""
        s_cmp_lg_u32 s39, 0
        s_cbranch_scc1 L_a_uf1
        """)
        if issue: a.e(f"global_load_dword v30, v{A_FU}, s[36:37] sc1")
        a.e(f"""
        s_and_b32 s58, s38, 0xfffffff8
        s_getreg_b32 s57, hwreg(HW_REG_XCC_ID)
        s_and_b32 s57, s57, 7
        s_or_b32 s59, s57, s58
        s_waitcnt vmcnt(0)
        v_cmp_ne_u32 vcc, s59, v30
        s_cmp_eq_u64 vcc, 0
        s_cselect_b32 s57, 1, 0
        v_mov_b32 v31, s57
        v_mov_b32 v30, 0
        ds_write_b32 v30, v31 offset:{NONCE_LDS+8}
        ds_write_b32 v30, v31 offset:{NONCE_LDS+4}
        """)
        a.label("L_a_uf1")
    def ready_loads():
        a.e(f"""
        v_mov_b32 v30, 0
        ds_read_b32 v31, v30 offset:{NONCE_LDS+8}
        s_waitcnt lgkmcnt(0)
        v_readfirstlane_b32 s44, v31
        s_cmp_eq_u32 s44, 0
        s_cbranch_scc1 L_a_ul0
        global_load_dwordx4 v[208:211], v{A_UG}, s[36:37] sc1
        global_load_dwordx4 v[212:215], v{A_UG}, s[36:37] offset:2048 sc1
        """)
        a.label("L_a_ul0")
    if cfg.mid_u: look_check(False)
    else: ut_flag()
    if cfg.touch:
        K.a_touch(a, cfg, {3: ["v"]})
    a.e(f"""
    s_mov_b32 s57, 0x01000100
    s_mov_b32 s58, 0x03020302
    s_mov_b32 s59, 0x05040302
    s_mov_b32 s63, 0x05040100
    v_mov_b32 v48, 0
    v_mov_b32 v49, 0
    v_mov_b32 v50, 0
    v_mov_b32 v51, 0
    s_waitcnt lgkmcnt(0)
    s_barrier
    """)
    a.lg = []
    if cfg.mid_u: ready_loads()
    if not (cfg.dbgT or cfg.dbgY or cfg.dbgN): st(4)
    a.e("""
    s_cmp_eq_u32 s39, 0
    s_cbranch_scc1 L_a_e0
    s_cmp_eq_u32 s39, 1
    s_cbranch_scc1 L_a_e2
    """)
    for c in range(2):
        a.e(f"ds_read_u16 v{32+2*c}, v{A_ER0} offset:{KC[c]}")
        a.e(f"ds_read_u16 v{33+2*c}, v{A_ER0} offset:{KC[c]+2}")
    a.e(f"""
    v_and_b32 v28, 1, v0
    v_cmp_eq_u32 vcc, 0, v28
    s_waitcnt lgkmcnt(0)
    """)
    for c in range(2):
        c0, c1 = 32+2*c, 33+2*c
        o = 40 + 4*c
        a.e(f"v_perm_b32 v{o}, v{c1}, v{c0}, s57")
        a.e(f"v_perm_b32 v{o+3}, v{c0}, v{c1}, s57")
        a.e(f"v_perm_b32 v{o+2}, v{c1}, v{c0}, s63")
        a.e(f"v_mov_b32 v{o+1}, v{o}")
        a.e(f"v_cndmask_b32 v{o+2}, v{o+3}, v{o+2}, vcc")
    a.e("s_branch L_a_ew")
    a.label("L_a_e2")
    for c in range(2):
        a.e(f"ds_read_b32 v{32+2*c}, v{A_ER0} offset:{KC[c]}")
        a.e(f"ds_read_b32 v{33+2*c}, v{A_ER0} offset:{KC[c]+4}")
    a.e("s_waitcnt lgkmcnt(0)")
    for c in range(2):
        A_, B_ = 32+2*c, 33+2*c
        o = 40 + 4*c
        a.e(f"v_perm_b32 v{o}, v{A_}, v{A_}, s57")
        a.e(f"v_mov_b32 v{o+1}, v{A_}")
        a.e(f"v_perm_b32 v{o+2}, v{A_}, v{A_}, s58")
        a.e(f"v_perm_b32 v{o+3}, v{B_}, v{B_}, s57")
    a.e("s_branch L_a_ew")
    a.label("L_a_e0")
    for c in range(2):
        a.e(f"ds_read_b128 v[{40+4*c}:{43+4*c}], v{A_ER0} offset:{KC[c]}")
        a.e(f"ds_read_b64 v[{32+4*c}:{33+4*c}], v{A_ER1} offset:{KC[c]}")
        a.e(f"ds_read_b32 v{34+4*c}, v{A_ER1} offset:{KC[c]+8}")
    a.e("""
    v_cmp_le_u32 vcc, 32, v0
    s_waitcnt lgkmcnt(0)
    """)
    for c in range(2):
        A_, B_, C_ = 32+4*c, 33+4*c, 34+4*c
        o = 40 + 4*c
        a.e(f"v_perm_b32 v52, v{A_}, v{A_}, s57")
        a.e(f"v_perm_b32 v53, v{B_}, v{A_}, s59")
        a.e(f"v_perm_b32 v54, v{B_}, v{B_}, s57")
        a.e(f"v_perm_b32 v55, v{C_}, v{B_}, s59")
        for q in range(4):
            a.e(f"v_cndmask_b32 v{o+q}, v{o+q}, v{52+q}, vcc")
    a.label("L_a_ew")
    for c in range(2):
        a.e(f"ds_write_b128 v{A_DW}, v[{40+4*c}:{43+4*c}] offset:{KD[c]}")
    a.e(f"""
    v_cmp_gt_u32 vcc, 160, v0
    s_and_b64 exec, exec, vcc
    ds_write_b128 v{A_ZU}, v[48:51] offset:{UR[0] + 64*80}
    ds_write_b128 v{A_ZU}, v[48:51] offset:{UR[1] + 64*80}
    v_cmp_gt_u32 vcc, 32, v0
    s_and_b64 exec, exec, vcc
    ds_write_b128 v{A_ZC}, v[48:51] offset:{CP[0]}
    v_cmp_gt_u32 vcc, 2, v0
    s_and_b64 exec, exec, vcc
    ds_write_b128 v{A_ZG}, v[48:51]
    s_mov_b64 exec, -1
    """)
    if not cfg.mid_u: look_check(True)
    a.e("""
    s_waitcnt lgkmcnt(0)
    s_barrier
    """)
    if not cfg.mid_u: ready_loads()
    a.vm = []
    if not (cfg.dbgT or cfg.dbgY or cfg.dbgN): st(5)
    for c in range(2):
        b = 32 + 16*c
        a.e(f"ds_read_b64 v[{b}:{b+1}], v{A_CR} offset:{KD[c] + 8}")
        a.e(f"ds_read_b128 v[{b+4}:{b+7}], v{A_CR} offset:{KD[c] + 16}")
    for c in range(2):
        a.e(f"s_waitcnt lgkmcnt({2 - 2*c})" if c == 0 else "s_waitcnt lgkmcnt(4)")
        b = 32 + 16*c
        n0, n1, n2, n3, n4, n5 = b, b+1, b+4, b+5, b+6, b+7
        m = b + 8
        t1 = 96 + 8*c
        base = CP[c]
        a.e(f"ds_write_b128 v{A_CW}, v[{n2}:{n5}] offset:{base}")
        a.e(f"v_alignbit_b32 v{m}, v{n1}, v{n0}, 16")
        for q, (hi, lo) in enumerate(((n2, n1), (n3, n2), (n4, n3))):
            a.e(f"v_alignbit_b32 v{m+1+q}, v{hi}, v{lo}, 16")
        a.e(f"ds_write_b128 v{A_CW}, v[{m}:{m+3}] offset:{base + 3*4160}")
        for q, (hi, lo) in enumerate(((n2, n1), (n3, n2), (n4, n3), (n5, n4))):
            a.e(f"v_alignbit_b32 v{t1+q}, v{hi}, v{lo}, 16")
        a.e(f"ds_write_b128 v{A_CW}, v[{t1}:{t1+3}] offset:{base + 4160}")
        for q, r in enumerate((n1, n2, n3, n4)): a.e(f"v_mov_b32 v{t1+4+q}, v{r}")
        a.e(f"ds_write_b128 v{A_CW}, v[{t1+4}:{t1+7}] offset:{base + 2*4160}")
    if not (cfg.dbgT or cfg.dbgY or cfg.dbgN): st(6)
    a.e(f"""
    s_cmp_lg_u32 s44, 0
    s_cbranch_scc1 L_a_fast
    s_cmp_ge_u32 s39, 2
    s_cbranch_scc1 L_a_utf_go
    s_and_b32 s58, s38, 0xfffffff8
    s_getreg_b32 s57, hwreg(HW_REG_XCC_ID)
    s_and_b32 s57, s57, 7
    s_or_b32 s59, s57, s58
    s_mov_b32 s61, 0
    v_add_u32 v28, 8192, v{A_FU}
    """)
    a.label("L_a_utf_poll")
    a.e(f"""
    global_load_dword v30, v{A_FU}, s[36:37] sc1
    global_load_dword v31, v28, s[36:37] sc1
    s_add_u32 s61, s61, 1
    s_waitcnt vmcnt(0)
    v_cmp_ne_u32 vcc, s59, v30
    s_cmp_eq_u64 vcc, 0
    s_cbranch_scc1 L_a_utf_local
    v_cmp_ne_u32 s[64:65], s58, v31
    s_and_b64 vcc, vcc, s[64:65]
    s_cbranch_vccz L_a_utf_glob
    s_cmp_eq_u32 s61, {cfg.ut_patience}
    s_cbranch_scc0 L_a_utf_again
    s_mov_b32 s60, 0
    """)
    a.label("L_a_utf_pub")
    a.e(f"""
    global_store_dwordx4 v{A_UT0}, v[224:227], s[36:37] sc1
    global_store_dwordx4 v{A_UT1}, v[228:231], s[36:37] sc1
    global_store_dwordx4 v200, v[232:235], s[36:37] sc1
    global_store_dwordx4 v201, v[236:239], s[36:37] sc1
    s_waitcnt vmcnt(0)
    v_add_u32 v29, 8192, v{A_FUS}
    v_mov_b32 v30, s58
    s_mov_b64 exec, 1
    global_store_dword v29, v30, s[36:37] sc1
    s_mov_b64 exec, -1
    s_cmp_lg_u32 s60, 0
    s_cbranch_scc1 L_a_utf_glob2
    """)
    a.label("L_a_utf_again")
    a.e(f"""
    s_cmp_gt_u32 s61, {SPIN}
    s_cbranch_scc1 L_a_utf_glob2
    s_sleep {cfg.sl_ut}
    s_branch L_a_utf_poll
    """)
    a.label("L_a_utf_local")
    a.e("s_mov_b32 s57, 1")
    a.e("s_branch L_a_utf_ok")
    a.label("L_a_utf_glob")
    a.e(f"""
    s_mov_b32 s60, 1
    s_cmp_lt_u32 s61, {cfg.ut_patience}
    s_cbranch_scc1 L_a_utf_pub
    s_cmp_eq_u32 s61, {cfg.ut_patience}
    s_cbranch_scc1 L_a_utf_pub
    """)
    a.label("L_a_utf_glob2")
    a.e("s_mov_b32 s57, 0")
    a.label("L_a_utf_ok")
    a.e(f"""
    v_mov_b32 v31, s57
    v_mov_b32 v30, 0
    ds_write_b32 v30, v31 offset:{NONCE_LDS+4}
    """)
    a.label("L_a_utf_go")
    a.e(f"""
    s_waitcnt lgkmcnt(0)
    s_barrier
    global_load_dwordx4 v[208:211], v{A_UG}, s[36:37] sc1
    global_load_dwordx4 v[212:215], v{A_UG}, s[36:37] offset:2048 sc1
    """)
    a.label("L_a_fast")
    a.e(f"""
    v_mov_b32 v30, 0
    ds_read_b32 v31, v30 offset:{NONCE_LDS+4}
    """)
    for e in range(4):
        h, hi = e // 2, e % 2
        a.e(f"v_{'and_b32' if hi else 'lshlrev_b32'} v{80+e}, {'0xffff0000' if hi else '16'}, v{24+h}")
    for rho in range(4):
        for e in range(4):
            h, hi = e // 2, e % 2
            a.e(f"v_{'and_b32' if hi else 'lshlrev_b32'} v{96+4*rho+e}, {'0xffff0000' if hi else '16'}, v{16+2*rho+h}")
            a.e(f"v_mul_f32 v{96+4*rho+e}, v{96+4*rho+e}, v{80+e}")
        for h in range(2):
            a.e(f"v_cvt_pk_bf16_f32 v{84+h}, v{96+4*rho+2*h}, v{96+4*rho+2*h+1}")
        for h in range(2):
            a.e(f"v_lshlrev_b32 v{96+4*rho+2*h}, 16, v{84+h}")
            a.e(f"v_and_b32 v{96+4*rho+2*h+1}, 0xffff0000, v{84+h}")
    a.e("s_waitcnt vmcnt(0) lgkmcnt(0)")
    a.e("v_readfirstlane_b32 s46, v31")
    if cfg.yglobal: a.e("s_mov_b32 s46, 0")
    a.vm = []
    if not (cfg.dbgT or cfg.dbgY or cfg.dbgN): st(7)
    a.e(f"""
    ds_write_b128 v{A_UL}, v[208:211] offset:{UR[0]}
    ds_write_b128 v{A_UL}, v[212:215] offset:{UR[0] + 32*80}
    s_waitcnt lgkmcnt(0)
    s_barrier
    """)
    if not (cfg.dbgT or cfg.dbgY or cfg.dbgN): st(8)
    a.e(f"s_setprio {cfg.prioA2}")
    if cfg.touch:
        K.a_touch(a, cfg, {3: ["o"]})
    if cfg.ytouch:
        a.e(f"""
        s_cmp_lg_u32 s39, 2
        s_cbranch_scc1 L_a_noyt
        s_lshl_b32 s57, s50, 12
        s_add_u32 s57, s57, {YT}
        v_lshl_add_u32 v28, v1, 7, s57
        global_load_dword v252, v28, s[36:37]
        """)
        a.label("L_a_noyt")
    if cfg.x_exit == "prep":
        K.stamps_out(a, cfg, 14)
        a.e("s_branch L_end")
    if cfg.gate == 2: gate()
    ACC0, ACC1 = 128, 144
    NB = 3
    FR = [32 + 16*i for i in range(NB)]
    steps = [(dl, hf) for dl in range(16) for hf in range(2)]
    def rd(i):
        dl, hf = steps[i]
        f = FR[i % NB]
        ao = 64*dl + 32*(1-hf)
        bo = 80*dl + 32*(1-hf)
        t = f"cv{i}"
        return [(f"ds_read_b64 v[{f}:{f+1}], v{A_VA} offset:{ao}", t),
                (f"ds_read_b64 v[{f+2}:{f+3}], v{A_VA} offset:{ao+8}", t),
                (f"ds_read_b128 v[{f+8}:{f+11}], v{A_VB} offset:{bo+2560}", t),
                (f"ds_read_b128 v[{f+12}:{f+15}], v{A_VB} offset:{bo}", t),
                (f"ds_read_b64 v[{f+4}:{f+5}], v{A_VA} offset:{ao+2048}", t),
                (f"ds_read_b64 v[{f+6}:{f+7}], v{A_VA} offset:{ao+2056}", t)]
    a.lg = []
    for i in (0, 1):
        for t, tg in rd(i): a.e(t, lg=tg)
    for i in range(cfg.x_conv):
        f = FR[i % NB]
        a.wait_lg(f"cv{i}")
        c0 = "0" if i == 0 else f"v[{ACC0}:{ACC0+15}]"
        c1 = "0" if i == 0 else f"v[{ACC1}:{ACC1+15}]"
        R = rd(i + 2) if i + 2 < cfg.x_conv else []
        a.e(f"v_mfma_f32_32x32x16_bf16 v[{ACC0}:{ACC0+15}], v[{f}:{f+3}], v[{f+8}:{f+11}], {c0}")
        for t, tg in R[0:2]: a.e(t, lg=tg)
        a.e(f"v_mfma_f32_32x32x16_bf16 v[{ACC1}:{ACC1+15}], v[{f}:{f+3}], v[{f+12}:{f+15}], {c1}")
        for t, tg in R[2:4]: a.e(t, lg=tg)
        a.e(f"v_mfma_f32_32x32x16_bf16 v[{ACC1}:{ACC1+15}], v[{f+4}:{f+7}], v[{f+8}:{f+11}], v[{ACC1}:{ACC1+15}]")
        for t, tg in R[4:6]: a.e(t, lg=tg)
    st(9)
    if cfg.x_exit == "conv":
        K.stamps_out(a, cfg, 14)
        a.e("s_branch L_end")
    if cfg.utclean == 2:
        a.e(f"""
        s_cmp_ge_u32 s39, 2
        s_cbranch_scc1 L_a_nocl2
        global_store_dwordx4 v{A_UT0}, v[224:227], s[36:37] sc1
        global_store_dwordx4 v{A_UT1}, v[228:231], s[36:37] sc1
        global_store_dwordx4 v200, v[232:235], s[36:37] sc1
        global_store_dwordx4 v201, v[236:239], s[36:37] sc1
        s_nop 1
        """)
        a.label("L_a_nocl2")
    a.e(f"s_setprio {cfg.prioA3}")
    a.e("""
    s_waitcnt vmcnt(0) lgkmcnt(0)
    s_barrier
    """)
    for tau, acc in ((0, ACC0), (1, ACC1)):
        for q in range(4):
            a.e(f"ds_write_b128 v{A_PW}, v[{acc+4*q}:{acc+4*q+3}] offset:{YP + tau*32*144 + q*32}")
    a.e("""
    s_waitcnt lgkmcnt(0)
    s_barrier
    """)
    for c in range(2):
        o = YP + (c*2)*64*144
        b = 32 + 16*c
        a.e(f"ds_read_b128 v[{b}:{b+3}], v{A_OR} offset:{o}")
        a.e(f"ds_read_b128 v[{b+8}:{b+11}], v{A_OR} offset:{o + 64*144}")
        a.e(f"ds_read_b128 v[{b+4}:{b+7}], v{A_OR} offset:{o + 16}")
        a.e(f"ds_read_b128 v[{b+12}:{b+15}], v{A_OR} offset:{o + 64*144 + 16}")
    for c in range(2):
        a.e(f"s_waitcnt lgkmcnt({4-4*c})")
        b = 32 + 16*c
        for q in range(8): a.e(f"v_add_f32 v{b+q}, v{b+q}, v{b+8+q}")
        for m in range(4): a.e(f"v_cvt_pk_bf16_f32 v{64+4*c+m}, v{b+2*m}, v{b+2*m+1}")
    a.e(f"""
    v_add_u32 v29, 4096, v{A_YG}
    s_cmp_eq_u32 s46, 0
    s_cbranch_scc1 L_a_yg
    global_store_dwordx4 v{A_YG}, v[64:67], s[36:37] {cfg.locfl}
    global_store_dwordx4 v29, v[68:71], s[36:37] {cfg.locfl}
    s_branch L_a_yd
    """)
    a.label("L_a_yg")
    a.e(f"""
    global_store_dwordx4 v{A_YG}, v[64:67], s[36:37] sc1
    global_store_dwordx4 v29, v[68:71], s[36:37] sc1
    """)
    a.label("L_a_yd")
    a.e(f"""
    s_waitcnt vmcnt(0)
    s_barrier
    """)
    st(10)
    a.e(f"""
    s_cmp_lg_u32 s39, 1
    s_cbranch_scc1 L_a_ytf_go
    v_mov_b32 v28, s38
    s_mov_b64 exec, 1
    s_cmp_eq_u32 s46, 0
    s_cbranch_scc1 L_a_yfg
    global_store_dword v{A_FYS}, v28, s[36:37]
    s_branch L_a_yfd
    """)
    a.label("L_a_yfg")
    a.e(f"global_store_dword v{A_FYS}, v28, s[36:37] sc1")
    a.label("L_a_yfd")
    a.e("s_mov_b64 exec, -1")
    if cfg.dbgY: st(4)
    a.e("s_mov_b32 s61, 0")
    a.label("L_a_ytf_poll")
    a.e(f"""
    global_load_dword v29, v{A_FY}, s[36:37] sc1
    s_add_u32 s61, s61, 1
    s_waitcnt vmcnt(0)
    v_cmp_ne_u32 vcc, s38, v29
    s_cmp_gt_u32 s61, {SPIN}
    s_cbranch_scc1 L_a_ytf_go
    s_cbranch_vccz L_a_ytf_go
    s_sleep {cfg.sl_yt}
    s_branch L_a_ytf_poll
    """)
    a.label("L_a_ytf_go")
    if cfg.dbgY:
        st(5); K.stampval(a, cfg, 7, "s61")
    a.e("s_barrier")
    if cfg.dbgY: st(6)
    a.e(f"""
    global_load_dwordx2 v[64:65], v{A_YL}, s[36:37] sc1
    global_load_dwordx2 v[66:67], v{A_YL+1}, s[36:37] sc1
    global_load_dwordx2 v[68:69], v{A_YL+2}, s[36:37] sc1
    global_load_dwordx2 v[70:71], v{A_YL+3}, s[36:37] sc1
    s_waitcnt vmcnt(0)
    """)
    st(11)
    for rho in range(4):
        m, hi = rho // 2, rho % 2
        for e in range(4):
            src = 64 + 2*e + m
            a.e(f"v_{'and_b32' if hi else 'lshlrev_b32'} v{84+e}, {'0xffff0000' if hi else '16'}, v{src}")
        for e in range(4):
            a.e(f"v_add_f32 v{84+e}, v{84+e}, v{96+4*rho+e}")
        a.e(f"v_cvt_pk_bf16_f32 v{88+2*rho}, v84, v85")
        a.e(f"v_cvt_pk_bf16_f32 v{89+2*rho}, v86, v87")
        if rho == 2: a.e(f"v_add_u32 v{A_OUT}, 4096, v{A_OUT}")
        a.e(f"global_store_dwordx2 v{A_OUT}, v[{88+2*rho}:{89+2*rho}], s[32:33] offset:{2048*(rho % 2)} {cfg.outfl}")
    if cfg.utclean == 1:
        a.e(f"""
        s_cmp_ge_u32 s39, 2
        s_cbranch_scc1 L_a_nocl
        global_store_dwordx4 v{A_UT0}, v[224:227], s[36:37] sc1
        global_store_dwordx4 v{A_UT1}, v[228:231], s[36:37] sc1
        global_store_dwordx4 v200, v[232:235], s[36:37] sc1
        global_store_dwordx4 v201, v[236:239], s[36:37] sc1
        s_nop 1
        """)
        a.label("L_a_nocl")
    a.e("""
    s_cmp_lg_u32 s41, 0
    s_cbranch_scc1 L_a_norst
    s_cmp_lg_u32 s39, 1
    s_cbranch_scc1 L_a_norst
    v_mov_b32 v8, s45
    v_mov_b32 v9, 0
    s_mov_b64 exec, 1
    global_store_dword v8, v9, s[34:35] sc1
    s_mov_b64 exec, -1
    """)
    a.label("L_a_norst")
    st(12)
    K.stampval(a, cfg, 13, "s46")
    K.stamps_out(a, cfg, 14)
```

```python
from asmlib import Asm
import kern as K

UT, YT = K.UT, K.YT
UTF, YTF = K.UTF, K.YTF
TILE = 3088
SPIN = K.SPIN_LIMIT
ROWB = 528
TB = [12288, 45056]
KC = [0, 1536]
NONCE_LDS = 3072
KD = [3088, 7200]
CP = [12288, 12288 + 16640]
UR = [45568, 45568 + 7600]
YP = 0
ROWS = list(range(8)) + [128+k for k in range(8)] + [256+2*k for k in range(4)] + [384+2*k for k in range(4)] + \
       [512, 516, 640, 644, 768, 772, 896, 900] + [1024+128*k for k in range(8)] + [2048]
assert len(ROWS) == 41

def fhex(x):
    import struct
    return hex(struct.unpack("<I", struct.pack("<f", x))[0])

USE_PK = False
def cmul(a, d, x, y, t):
    if USE_PK:
        a.e(f"v_pk_mul_f32 v[{t}:{t+1}], v[{x}:{x+1}], v[{y}:{y+1}] op_sel_hi:[1,0]")
        a.e(f"v_pk_fma_f32 v[{d}:{d+1}], v[{x}:{x+1}], v[{y}:{y+1}], v[{t}:{t+1}] op_sel:[1,1,0] op_sel_hi:[0,1,1] neg_lo:[1,0,0]")
    else:
        assert d not in (x, y)
        a.e(f"v_mul_f32 v{t}, v{x}, v{y}")
        a.e(f"v_mul_f32 v{t+1}, v{x+1}, v{y}")
        a.e(f"v_fma_f32 v{d}, -v{x+1}, v{y+1}, v{t}")
        a.e(f"v_fma_f32 v{d+1}, v{x}, v{y+1}, v{t+1}")

def poll_tags_loop(a, name, loads, tagregs):
    a.e("s_mov_b32 s61, 0")
    a.label(f"L_{name}_poll")
    for l in loads: a.e(l)
    a.e("s_add_u32 s61, s61, 1")
    a.e("s_waitcnt vmcnt(0)")
    K.tag_check(a, tagregs, acc="v9")
    a.e(f"""
    s_cmp_gt_u32 s61, {SPIN}
    s_cbranch_scc1 L_{name}_go
    s_cbranch_vccz L_{name}_go
    s_sleep 1
    s_branch L_{name}_poll
    """)
    a.label(f"L_{name}_go")
    a.vm = []


(A_TW, A_TR, A_UT0, A_UT1, A_TB, A_KM, A_C0, A_C1A, A_C1B, A_C2, A_DW, A_ER0, A_ER1, A_ZU, A_ZC, A_ZG,
 A_CR, A_CW, A_UG, A_UL, A_FU, A_FY, A_FUS, A_FYS, A_VA, A_VB, A_PW, A_OR, A_YG, A_YL, A_OUT) = (
 160, 161, 162, 163, 164, 168, 172, 173, 174, 175, 176, 177, 178, 179, 180, 181,
 182, 183, 184, 185, 186, 187, 188, 189, 190, 191, 192, 193, 194, 195, 199)

def role_A(a, cfg):
    global USE_PK
    USE_PK = cfg.pk
    st = lambda i: K.stamp(a, cfg, i)
    a.c("================= role A =================")
    if cfg.prioA and not cfg.late_prio: a.e(f"s_setprio {cfg.prioA}")
    a.e("""
    s_lshr_b32 s47, s39, 1
    s_and_b32 s48, s39, 1           ; w2
    s_lshl_b32 s49, s40, 6          ; 64 g
    s_lshl_b32 s50, s41, 1
    s_add_u32 s50, s50, s49         ; d0 = 64g + 2j
    s_add_u32 s51, s50, s47
    s_lshl_b32 s51, s51, 8
    v_and_b32 v2, 127, v0           ; n
    v_lshl_add_u32 v5, v2, 1, s51
    v_lshrrev_b32 v3, 4, v0         ; r''
    v_and_b32 v4, 15, v0            ; c8
    s_lshl_b32 s52, s41, 6
    v_lshl_add_u32 v6, v3, 2, s52   ; t0 = 64j + 4r''
    v_lshlrev_b32 v6, 10, v6
    s_lshl_b32 s53, s49, 1
    v_lshl_add_u32 v7, v4, 3, s53
    v_add_u32 v6, v6, v7            ; u offset
    s_lshl_b32 s45, s40, 2
    s_add_u32 s45, s45, 4
    v_mov_b32 v8, s45
    s_waitcnt lgkmcnt(0)
    """)
    st(1)
    a.e("""
    v_mov_b32 v202, v6
    v_mov_b32 v203, v7
    global_load_ushort v10, v5, s[10:11]
    global_load_ushort v11, v5, s[12:13]
    global_load_ushort v12, v5, s[14:15]
    global_load_ushort v13, v5, s[16:17]
    global_load_ushort v14, v5, s[18:19]
    global_load_ushort v15, v5, s[20:21]
    s_lshl_b32 s54, s50, 1
    s_add_u32 s54, s22, s54
    s_addc_u32 s55, s23, 0
    s_load_dword s56, s[54:55], 0
    s_cmp_lg_u32 s41, 0
    s_cbranch_scc1 L_a_nopub
    s_cmp_lg_u32 s39, 0
    s_cbranch_scc1 L_a_nopub
    s_memrealtime s[58:59]
    s_waitcnt lgkmcnt(0)
    s_or_b32 s58, s58, 8
    v_mov_b32 v9, s58
    s_mov_b64 exec, 1
    global_store_dword v8, v9, s[34:35] sc1
    s_mov_b64 exec, -1
    """)
    a.label("L_a_nopub")
    if cfg.codepf:
        a.e("""
        s_cmp_lg_u32 s39, 3
        s_cbranch_scc1 L_a_nocpf
        v_lshlrev_b32 v26, 7, v1
        global_load_dword v216, v26, s[4:5]
        v_add_u32 v26, 8192, v26
        global_load_dword v217, v26, s[4:5]
        v_add_u32 v26, 8192, v26
        v_min_u32 v26, L_end-L_pc0, v26
        global_load_dword v218, v26, s[4:5]
        """)
        a.label("L_a_nocpf")
    a.vm = []
    a.e(f"""
    v_and_b32 v26, 15, v1
    v_lshrrev_b32 v27, 4, v1
    v_bfe_u32 v28, v1, 2, 2
    v_and_b32 v29, 3, v1
    v_and_b32 v30, 31, v1
    v_lshrrev_b32 v31, 5, v1
    v_lshlrev_b32 v32, 2, v4
    v_mul_u32_u24 v32, 144, v32
    v_lshlrev_b32 v33, 3, v3
    v_sub_u32 v33, 120, v33
    v_add_u32 v32, v32, v33
    v_add_u32 v{A_TW}, {TILE}, v32
    v_lshrrev_b32 v32, 3, v1
    s_lshl_b32 s57, s39, 5
    v_add_u32 v32, s57, v32
    v_mul_u32_u24 v33, 144, v32
    v_and_b32 v34, 7, v1
    v_lshl_add_u32 v33, v34, 4, v33
    v_add_u32 v{A_TR}, {TILE}, v33
    v_add_u32 v32, s49, v32
    v_lshlrev_b32 v32, 12, v32
    v_lshl_add_u32 v32, v34, 4, v32
    s_sub_u32 s57, 31, s41
    s_lshl_b32 s57, s57, 7
    s_add_u32 s57, s57, {UT}
    v_add_u32 v{A_UT0}, s57, v32
    v_add_u32 v{A_UT1}, 32768, v{A_UT0}
    v_add_u32 v200, 65536, v{A_UT0}
    v_add_u32 v201, 98304, v{A_UT0}
    v_lshl_add_u32 v32, v27, 3, v28
    s_lshl_b32 s59, s47, 15
    s_add_u32 s59, s59, {TB[0]}
    v_and_b32 v33, 1, v2
    v_bfe_u32 v34, v2, 2, 1
    v_lshl_add_u32 v33, v34, 1, v33
    v_lshl_add_u32 v34, v2, 8, s59
    """)
    for cp in range(4):
        a.e(f"v_xor_b32 v35, {cp}, v33")
        a.e(f"v_lshl_add_u32 v{A_TB+cp}, v35, 5, v34")
    a.e(f"""
    v_lshlrev_b32 v34, 7, v32
    v_lshl_add_u32 v34, v29, 3, v34
    v_add_u32 v34, s59, v34
    v_lshrrev_b32 v33, 1, v28
    v_and_b32 v35, 1, v27
    v_lshl_add_u32 v33, v35, 1, v33
    """)
    for t in range(4):
        a.e(f"v_xor_b32 v35, {t}, v33")
        a.e(f"v_lshl_add_u32 v{A_KM+t}, v35, 5, v34")
    a.e(f"""
    s_mul_i32 s59, s47, {KC[1]-KC[0]}
    s_add_u32 s59, s59, {KC[0]}
    v_lshrrev_b32 v33, 1, v27
    v_lshlrev_b32 v33, 7, v33
    v_lshl_add_u32 v33, v26, 3, v33
    v_and_b32 v34, 1, v27
    v_lshl_add_u32 v33, v34, 2, v33
    v_lshl_add_u32 v{A_C0}, v33, 1, s59          ; tile 0
    v_lshlrev_b32 v33, 6, v27
    v_cmp_gt_u32 vcc, 2, v27
    v_lshlrev_b32 v34, 2, v26
    v_lshlrev_b32 v35, 1, v26
    v_cndmask_b32 v34, v35, v34, vcc
    v_add_u32 v33, v33, v34
    v_add_u32 v33, 256, v33
    v_mov_b32 v34, 32
    v_mov_b32 v35, 2
    v_cndmask_b32 v34, v34, v35, vcc
    v_add_u32 v34, v33, v34
    v_lshl_add_u32 v{A_C1A}, v33, 1, s59
    v_lshl_add_u32 v{A_C1B}, v34, 1, s59
    v_lshl_add_u32 v33, v27, 6, v26
    v_add_u32 v33, 512, v33
    v_lshl_add_u32 v{A_C2}, v33, 1, s59          ; tile 2
    v_lshlrev_b32 v33, 4, v0
    v_add_u32 v{A_DW}, 16, v33
    v_mov_b32 v{A_ER0}, v33
    v_lshlrev_b32 v34, 3, v0
    v_add_u32 v{A_ER1}, 256, v34
    s_cmp_eq_u32 s39, 1
    s_cbranch_scc0 L_a_ad1
    v_lshlrev_b32 v34, 2, v0
    v_add_u32 v{A_ER0}, 512, v34
    """)
    a.label("L_a_ad1")
    a.e(f"""
    s_cmp_ge_u32 s39, 2
    s_cbranch_scc0 L_a_ad2
    v_add_u32 v34, 384, v0
    v_lshlrev_b32 v{A_ER0}, 1, v34
    """)
    a.label("L_a_ad2")
    a.e(f"""
    v_mov_b32 v{A_ZU}, v33
    v_lshrrev_b32 v34, 2, v0
    v_mul_u32_u24 v34, 4160, v34
    v_and_b32 v35, 3, v0
    v_lshl_add_u32 v{A_ZC}, v35, 4, v34
    v_mul_u32_u24 v34, {KD[1]-KD[0]}, v0
    v_add_u32 v{A_ZG}, {KD[0]}, v34
    ; copies
    v_mov_b32 v{A_CR}, v33
    v_add_u32 v{A_CW}, 64, v33
    v_lshrrev_b32 v34, 7, v0                     ; cch
    v_add_u32 v35, s50, v34
    v_lshlrev_b32 v35, 12, v35
    v_lshl_add_u32 v35, v2, 4, v35
    v_add_u32 v{A_UG}, {UT}, v35
    v_lshrrev_b32 v35, 2, v2
    v_mul_u32_u24 v35, 80, v35
    v_and_b32 v36, 3, v2
    v_lshl_add_u32 v35, v36, 4, v35
    v_mul_u32_u24 v34, {UR[1]-UR[0]}, v34
    v_add_u32 v{A_UL}, v35, v34
    v_lshrrev_b32 v34, 3, v1
    v_lshlrev_b32 v34, 7, v34
    v_and_b32 v35, 7, v1
    v_lshl_add_u32 v34, v35, 2, v34
    s_lshl_b32 s58, s40, 10
    s_add_u32 s58, s58, {UTF}
    v_add_u32 v{A_FU}, s58, v34
    v_lshrrev_b32 v34, 3, v30
    v_lshlrev_b32 v34, 7, v34
    v_lshl_add_u32 v34, v35, 2, v34
    s_lshl_b32 s58, s40, 9
    s_add_u32 s58, s58, {YTF}
    v_add_u32 v{A_FY}, s58, v34
    s_lshl_b32 s57, s41, 1
    s_add_u32 s57, s57, s48
    s_lshr_b32 s59, s57, 3
    s_lshl_b32 s59, s59, 7
    s_and_b32 s57, s57, 7
    s_lshl_b32 s57, s57, 2
    s_add_u32 s57, s57, s59
    s_lshl_b32 s59, s40, 10
    s_add_u32 s57, s57, s59
    s_add_u32 s57, s57, {UTF}
    v_mov_b32 v{A_FUS}, s57
    s_lshr_b32 s59, s41, 3
    s_lshl_b32 s59, s59, 7
    s_and_b32 s57, s41, 7
    s_lshl_b32 s57, s57, 2
    s_add_u32 s57, s57, s59
    s_add_u32 s57, s57, s58
    v_mov_b32 v{A_FYS}, s57
    ; conv A: copy cc = (3 - i) & 3 ; CP[c] + cc*4160 + 2*(i + cc + 9 - 8hh) + w2*1024
    v_sub_u32 v34, 3, v30
    v_and_b32 v34, 3, v34
    v_mul_u32_u24 v35, 4160, v34
    v_add_u32 v36, v30, v34
    v_add_u32 v36, 9, v36
    v_lshlrev_b32 v37, 3, v31
    v_sub_u32 v36, v36, v37
    v_lshl_add_u32 v35, v36, 1, v35
    s_mul_i32 s57, s47, {CP[1]-CP[0]}
    s_lshl_b32 s58, s48, 10
    s_add_u32 s57, s57, s58
    s_add_u32 s57, s57, {CP[0]}
    v_add_u32 v{A_VA}, s57, v35
    ; conv B: UR[c] + (31 - a)*80 + 16 - 16hh + w2*1280
    v_sub_u32 v35, 31, v30
    v_mul_u32_u24 v35, 80, v35
    v_lshlrev_b32 v36, 4, v31
    v_sub_u32 v35, v35, v36
    v_add_u32 v35, 16, v35
    s_mul_i32 s57, s47, {UR[1]-UR[0]}
    s_mul_i32 s58, s48, {16*80}
    s_add_u32 s57, s57, s58
    s_add_u32 s57, s57, {UR[0]}
    v_add_u32 v{A_VB}, s57, v35
    v_mul_u32_u24 v35, 144, v30
    v_lshl_add_u32 v35, v31, 4, v35
    s_mul_i32 s57, s39, {64*144}
    v_add_u32 v{A_PW}, s57, v35
    v_lshrrev_b32 v35, 2, v0
    v_mul_u32_u24 v35, 144, v35
    v_and_b32 v36, 3, v0
    v_lshl_add_u32 v{A_OR}, v36, 5, v35
    s_lshl_b32 s57, s50, 12
    s_add_u32 s57, s57, {YT}
    v_lshl_add_u32 v{A_YG}, v0, 4, s57
    v_lshlrev_b32 v35, 2, v4
    v_add_u32 v35, s49, v35
    v_lshlrev_b32 v35, 12, v35
    v_lshl_add_u32 v35, v3, 3, v35
    s_lshl_b32 s59, s41, 7
    s_add_u32 s59, s59, {YT}
    v_add_u32 v{A_YL}, s59, v35
    v_add_u32 v{A_YL+1}, 4096, v{A_YL}
    v_add_u32 v{A_YL+2}, 8192, v{A_YL}
    v_add_u32 v{A_YL+3}, 12288, v{A_YL}
    v_lshlrev_b32 v35, 1, v6
    v_sub_u32 v{A_OUT}, v35, v7
    """)
    if cfg.touch:
        K.a_touch_setup(a, cfg)
    a.e("s_waitcnt vmcnt(0) lgkmcnt(0)")
    st(2)
    if cfg.prioA and cfg.late_prio: a.e(f"s_setprio {cfg.prioA}")
    if cfg.x_exit == "params":
        K.stamps_out(a, cfg, 14)
        a.e("s_branch L_end")
    a.e(f"""
    global_load_dwordx2 v[16:17], v202, s[8:9] {cfg.aldfl}
    global_load_dwordx2 v[18:19], v202, s[8:9] offset:1024 {cfg.aldfl}
    global_load_dwordx2 v[20:21], v202, s[8:9] offset:2048 {cfg.aldfl}
    global_load_dwordx2 v[22:23], v202, s[8:9] offset:3072 {cfg.aldfl}
    global_load_dwordx2 v[24:25], v203, s[24:25]
    """)
    nt2 = 0; nt3 = 0
    if cfg.uttouch:
        a.e(f"""
        s_cmp_lg_u32 s39, 2
        s_cbranch_scc1 L_a_nout0
        v_add_u32 v26, s49, v1
        v_lshlrev_b32 v26, 12, v26
        s_sub_u32 s57, 31, s41
        s_lshl_b32 s57, s57, 7
        s_add_u32 s57, s57, {UT}
        v_add_u32 v26, s57, v26
        global_load_dword v255, v26, s[36:37]
        """)
        a.label("L_a_nout0")
    a.e(f"""
    s_cmp_eq_u32 s39, 3
    s_cbranch_scc0 L_a_nopt
    global_load_dword v253, v{A_FU}, s[36:37] sc1
    global_load_dword v254, v{A_FY}, s[36:37] sc1
    """)
    a.label("L_a_nopt")
    nt3 += 2
    if cfg.touch:
        if not cfg.x_notouch1:
            K.a_touch(a, cfg, {2: ["x1"], 3: ["q47"]})
            nt2 += 1; nt3 += 1
    a.vm = []
    def a1_write():
        a.e(f"""
        s_cmp_eq_u32 s39, 2
        s_cbranch_scc1 L_a_uw2
        s_cmp_eq_u32 s39, 3
        s_cbranch_scc1 L_a_uw3
        s_waitcnt vmcnt(0)
        s_branch L_a_uwd
        """)
        a.label("L_a_uw2")
        a.e(f"s_waitcnt vmcnt({nt2})")
        a.e("s_branch L_a_uwd")
        a.label("L_a_uw3")
        a.e(f"s_waitcnt vmcnt({nt3})")
        a.label("L_a_uwd")
        a.e("""
        s_mov_b32 s57, 0x05040100
        s_mov_b32 s58, 0x07060302
        """)
        for e in range(4):
            sel = "s57" if e % 2 == 0 else "s58"
            h = e // 2
            a.e(f"v_perm_b32 v{32+2*e}, v{20+h}, v{22+h}, {sel}")
            a.e(f"v_perm_b32 v{33+2*e}, v{16+h}, v{18+h}, {sel}")
            a.e(f"ds_write_b64 v{A_TW}, v[{32+2*e}:{33+2*e}] offset:{e*144}")
    def a1_store():
        a.e("""
        s_cmp_ge_u32 s39, 2
        s_cbranch_scc1 L_a_nout
        """)
        for i in range(4):
            a.e(f"ds_read_b128 v[{224+4*i}:{227+4*i}], v{A_TR} offset:{i*8*144}")
        UTA = [A_UT0, A_UT1, 200, 201]
        for i in range(4):
            a.e(f"s_waitcnt lgkmcnt({3-i})")
            a.e(f"global_store_dwordx4 v{UTA[i]}, v[{224+4*i}:{227+4*i}], s[36:37] {cfg.locfl}")
        a.e("global_load_dword v9, v8, s[34:35] sc1")
        a.label("L_a_nout")
        a.vm = []
    def ut_flag():
        a.e(f"""
        s_cmp_ge_u32 s39, 2
        s_cbranch_scc1 L_a_nofl
        s_mov_b32 s61, 0
        """)
        if cfg.dbgN: st(4)
        a.e(f"""
        s_waitcnt vmcnt(0)
        """)
        if cfg.dbgN: st(7)
        a.e(f"""
        v_readfirstlane_b32 s38, v9
        s_cmp_lg_u32 s38, 0
        s_cbranch_scc1 L_a_nok
        """)
        a.label("L_a_npoll")
        a.e(f"""
        global_load_dword v9, v8, s[34:35] sc1
        s_waitcnt vmcnt(0)
        v_readfirstlane_b32 s38, v9
        s_add_u32 s61, s61, 1
        s_cmp_gt_u32 s61, {SPIN}
        s_cbranch_scc1 L_a_nok
        s_cmp_eq_u32 s38, 0
        s_cbranch_scc1 L_a_npoll
        """)
        a.label("L_a_nok")
        if cfg.dbgN:
            st(5); K.stampval(a, cfg, 6, "s61")
        a.e(f"""
        s_getreg_b32 s57, hwreg(HW_REG_XCC_ID)
        s_and_b32 s57, s57, 7
        s_and_b32 s58, s38, 0xfffffff8
        s_or_b32 s57, s57, s58
        v_mov_b32 v9, s57
        s_mov_b64 exec, 1
        global_store_dword v{A_FUS}, v9, s[36:37]
        s_mov_b64 exec, -1
        """)
        a.label("L_a_nofl")
        a.vm = []

    def gate():
        a.e(f"""
        s_cmp_lg_u32 s39, 3
        s_cbranch_scc1 L_a_gate_go
        s_lshl_b32 s57, s40, 8
        s_lshl_b32 s58, s41, 2
        s_add_u32 s57, s57, s58
        s_add_u32 s57, s57, {K.BDN}
        v_mov_b32 v28, s57
        v_mov_b32 v29, 0
        s_mov_b32 s61, 0
        """)
        a.label("L_a_gate_poll")
        a.e(f"""
        global_load_dword v30, v28, s[36:37] sc1
        global_load_dword v31, v29, s[34:35] sc1
        s_add_u32 s61, s61, 1
        s_waitcnt vmcnt(0)
        v_cmp_ne_u32 vcc, v30, v31
        v_cmp_eq_u32 s[64:65], 0, v31
        s_or_b64 vcc, vcc, s[64:65]
        s_cmp_gt_u32 s61, {cfg.gate_max}
        s_cbranch_scc1 L_a_gate_go
        s_cbranch_vccz L_a_gate_go
        s_sleep 2
        s_branch L_a_gate_poll
        """)
        a.label("L_a_gate_go")
        a.e("s_barrier")
    LOG2E = fhex(1.4426950408889634); INV2PI = fhex(0.15915494309189535)
    a.e(f"""
    s_lshr_b32 s59, s56, 16
    s_and_b32 s60, s56, 0xffff
    s_cmp_eq_u32 s47, 0
    s_cselect_b32 s59, s60, s59
    s_lshl_b32 s59, s59, 16
    v_mov_b32 v28, s59
    v_mul_f32 v29, {LOG2E}, v28
    v_mov_b32 v30, {LOG2E}
    v_fma_f32 v30, v28, v30, -v29
    v_fmac_f32 v30, 0x32a57060, v28
    v_exp_f32 v29, v29
    v_mul_f32 v30, {fhex(0.6931471805599453)}, v30
    v_fma_f32 v29, v29, v30, v29
    v_cvt_pk_bf16_f32 v29, v29, v29
    v_lshlrev_b32 v29, 16, v29
    """)
    for i in range(6): a.e(f"v_lshlrev_b32 v{10+i}, 16, v{10+i}")
    a.e(f"""
    v_mul_f32 v10, v29, v10          ; a_re
    v_mul_f32 v11, v29, v11          ; a_im
    v_mul_f32 v12, v29, v12          ; dB_re
    v_mul_f32 v13, v29, v13          ; dB_im
    v_mul_f32 v10, {LOG2E}, v10      ; ar2
    v_mul_f32 v11, {INV2PI}, v11     ; ai2
    """)
    P = {}
    nxtp = [50]
    def pair(name):
        P[name] = nxtp[0]; nxtp[0] += 2
        return P[name]
    TMP = [28, 30]
    ti = [0]
    def mul(dn, xn, yn):
        d = P.get(dn) or pair(dn)
        t = TMP[ti[0] % 2]; ti[0] += 1
        if cfg.x_tab and ti[0] % 2 == 0: return
        cmul(a, d, P[xn], P[yn], t)
    pair("X0"); cmul(a, P["X0"], 14, 12, 28)
    for x in (1, 8, 128, 256, 512, 1024):
        d = pair(f"E{x}")
        if x == 1:
            a.e(f"v_exp_f32 v6, v10")
            a.e(f"v_fract_f32 v7, v11")
        else:
            a.e(f"v_mul_f32 v6, {fhex(float(x))}, v10")
            a.e(f"v_mul_f32 v7, {fhex(float(x))}, v11")
            a.e(f"v_exp_f32 v6, v6")
            a.e(f"v_fract_f32 v7, v7")
        a.e(f"v_cos_f32 v26, v7")
        a.e(f"v_sin_f32 v27, v7")
        a.e(f"v_mul_f32 v{d}, v6, v26")
        a.e(f"v_mul_f32 v{d+1}, v6, v27")
    if cfg.dbgT: st(4)
    OUT = [120, 128]
    oc = [0]
    def put_chunk(q, names, neg):
        o = OUT[oc[0] % 2]; oc[0] += 1
        sg = "-" if neg else ""
        for m in range(4):
            x, y = P[names[2*m]], P[names[2*m+1]]
            a.e(f"v_cvt_pk_bf16_f32 v{o+m}, v{x}, v{y}")
            a.e(f"v_cvt_pk_bf16_f32 v{o+4+m}, {sg}v{x+1}, {sg}v{y+1}")
        ad = A_TB + (q >> 1)
        if not cfg.x_nowrite:
            a.e(f"ds_write_b128 v{ad}, v[{o}:{o+3}] offset:{(q & 1)*16}")
            a.e(f"ds_write_b128 v{ad}, v[{o+4}:{o+7}] offset:{128 + (q & 1)*16}")
    pair("ONE")
    a.e(f"v_mov_b32 v{P['ONE']}, 1.0")
    a.e(f"v_mov_b32 v{P['ONE']+1}, 0")
    for k in range(8): pair(f"S{k}")
    for k in range(1, 8):
        mul(f"X{k}", f"X{k-1}", "E1")
    put_chunk(0, [f"X{k}" for k in range(8)], True)
    P["Y8"] = P["E8"]
    mul("Y16", "Y8", "Y8"); mul("Y24", "Y16", "Y8"); mul("Y32", "Y16", "Y16")
    mul("Y40", "Y32", "Y8"); mul("Y48", "Y32", "Y16"); mul("Y56", "Y32", "Y24")
    put_chunk(6, ["ONE", "Y8", "Y16", "Y24", "Y32", "Y40", "Y48", "Y56"], False)
    if cfg.dbgT: st(6)
    mul("S0", "Y32", "Y32")
    for jj in range(1, 8): mul(f"S{jj}", "S0", f"Y{8*jj}")
    put_chunk(7, [f"S{k}" for k in range(8)], False)
    for k in range(8): mul(f"S{k}", f"X{k}", "E128")
    put_chunk(1, [f"S{k}" for k in range(8)], True)
    if cfg.mid_u:
        a1_write()
        a.e("s_waitcnt lgkmcnt(0)")
        a.e("s_barrier")
        a1_store()
    for i_, k in enumerate((0, 2, 4, 6)):
        mul(f"S{i_}", f"X{k}", "E256")
    for i_ in range(4):
        mul(f"S{4+i_}", f"S{i_}", "E128")
    put_chunk(2, [f"S{k}" for k in range(8)], True)
    mul("S0", "X0", "E512"); mul("S1", "X4", "E512")
    for i_ in range(2, 8): mul(f"S{i_}", f"S{i_-2}", "E128")
    put_chunk(3, [f"S{k}" for k in range(8)], True)
    mul("S0", "X0", "E1024")
    for i_ in range(1, 8): mul(f"S{i_}", f"S{i_-1}", "E128")
    pair("XL"); mul("XL", "S0", "E1024")
    put_chunk(4, [f"S{k}" for k in range(8)], True)
    a.e(f"v_cvt_pk_bf16_f32 v120, v{P['XL']}, -v{P['XL']+1}")
    a.e(f"ds_write_b16 v{A_TB+2}, v120 offset:16")
    a.e(f"ds_write_b16_d16_hi v{A_TB+2}, v120 offset:{128+16}")
    assert nxtp[0] <= 120, nxtp
    if cfg.mid_u: ut_flag()
    else: a1_write()
    if cfg.dbgT: st(7)
    a.e("s_waitcnt lgkmcnt(0)")
    if cfg.dbgT: st(8)
    a.e("s_barrier")
    st(3)
    if cfg.x_exit == "tables":
        K.stamps_out(a, cfg, 14)
        a.e("s_branch L_end")
    if not cfg.mid_u: a1_store()
    def look_issue():
        a.e(f"""
        s_cmp_lg_u32 s39, 0
        s_cbranch_scc1 L_a_uf0
        global_load_dword v30, v{A_FU}, s[36:37] sc1
        """)
        a.label("L_a_uf0")
    if cfg.mid_u: look_issue()
    if cfg.touch:
        K.a_touch(a, cfg, {2: ["k"]})
    if cfg.gate == 1: gate()
    YF, XF, D0 = 32, 64, 128
    def trfrag(dst, addr, s):
        a.e(f"ds_read_b64_tr_b16 v[{dst}:{dst+1}], v{addr} offset:{s*4096}")
        a.e(f"ds_read_b64_tr_b16 v[{dst+2}:{dst+3}], v{addr} offset:{s*4096 + 512}")
    a.e("""
    s_cmp_eq_u32 s48, 0
    s_cbranch_scc0 L_a_k2
    """)
    a.lg = []
    for s in range(8):
        trfrag(YF+4*s, A_KM+3, s)
        for t in range(2): trfrag(XF+32*t+4*s, A_KM+t, s)
    for s in range(8):
        a.e(f"s_waitcnt lgkmcnt({min(15, 6*(7-s))})")
        for t in range(2):
            c = "0" if s == 0 else f"v[{D0+4*t}:{D0+4*t+3}]"
            a.e(f"v_mfma_f32_16x16x32_bf16 v[{D0+4*t}:{D0+4*t+3}], v[{XF+32*t+4*s}:{XF+32*t+4*s+3}], v[{YF+4*s}:{YF+4*s+3}], {c}")
    a.e(f"""
    v_cvt_pk_bf16_f32 v136, v{D0}, v{D0+1}
    v_cvt_pk_bf16_f32 v137, v{D0+2}, v{D0+3}
    v_cvt_pk_bf16_f32 v138, v{D0+4}, v{D0+5}
    v_cvt_pk_bf16_f32 v139, v{D0+6}, v{D0+7}
    ds_write_b64 v{A_C0}, v[136:137]
    ds_write_b32 v{A_C1A}, v138
    ds_write_b32 v{A_C1B}, v139
    s_branch L_a_kdone
    """)
    a.label("L_a_k2")
    for s in range(8):
        trfrag(YF+4*s, A_KM+3, s)
        trfrag(XF+4*s, A_KM+2, s)
    for s in range(8):
        a.e(f"s_waitcnt lgkmcnt({min(15, 4*(7-s))})")
        c = "0" if s == 0 else f"v[{D0}:{D0+3}]"
        a.e(f"v_mfma_f32_16x16x32_bf16 v[{D0}:{D0+3}], v[{XF+4*s}:{XF+4*s+3}], v[{YF+4*s}:{YF+4*s+3}], {c}")
    a.e(f"""
    v_cvt_pk_bf16_f32 v136, v{D0}, v{D0+1}
    v_cvt_pk_bf16_f32 v137, v{D0+2}, v{D0+3}
    ds_write_b16 v{A_C2}, v136
    ds_write_b16_d16_hi v{A_C2}, v136 offset:32
    ds_write_b16 v{A_C2}, v137 offset:64
    ds_write_b16_d16_hi v{A_C2}, v137 offset:96
    """)
    a.label("L_a_kdone")
    def look_check(issue):
        a.e(f"""
        s_cmp_lg_u32 s39, 0
        s_cbranch_scc1 L_a_uf1
        """)
        if issue: a.e(f"global_load_dword v30, v{A_FU}, s[36:37] sc1")
        a.e(f"""
        s_and_b32 s58, s38, 0xfffffff8
        s_getreg_b32 s57, hwreg(HW_REG_XCC_ID)
        s_and_b32 s57, s57, 7
        s_or_b32 s59, s57, s58
        s_waitcnt vmcnt(0)
        v_cmp_ne_u32 vcc, s59, v30
        s_cmp_eq_u64 vcc, 0
        s_cselect_b32 s57, 1, 0
        v_mov_b32 v31, s57
        v_mov_b32 v30, 0
        ds_write_b32 v30, v31 offset:{NONCE_LDS+8}
        ds_write_b32 v30, v31 offset:{NONCE_LDS+4}
        """)
        a.label("L_a_uf1")
    def ready_loads():
        a.e(f"""
        v_mov_b32 v30, 0
        ds_read_b32 v31, v30 offset:{NONCE_LDS+8}
        s_waitcnt lgkmcnt(0)
        v_readfirstlane_b32 s44, v31
        s_cmp_eq_u32 s44, 0
        s_cbranch_scc1 L_a_ul0
        global_load_dwordx4 v[208:211], v{A_UG}, s[36:37] sc1
        global_load_dwordx4 v[212:215], v{A_UG}, s[36:37] offset:2048 sc1
        """)
        a.label("L_a_ul0")
    if cfg.mid_u: look_check(False)
    else: ut_flag()
    if cfg.touch:
        K.a_touch(a, cfg, {3: ["v"]})
    a.e(f"""
    s_mov_b32 s57, 0x01000100
    s_mov_b32 s58, 0x03020302
    s_mov_b32 s59, 0x05040302
    s_mov_b32 s63, 0x05040100
    v_mov_b32 v48, 0
    v_mov_b32 v49, 0
    v_mov_b32 v50, 0
    v_mov_b32 v51, 0
    s_waitcnt lgkmcnt(0)
    s_barrier
    """)
    a.lg = []
    if cfg.mid_u: ready_loads()
    if not (cfg.dbgT or cfg.dbgY or cfg.dbgN): st(4)
    a.e("""
    s_cmp_eq_u32 s39, 0
    s_cbranch_scc1 L_a_e0
    s_cmp_eq_u32 s39, 1
    s_cbranch_scc1 L_a_e2
    """)
    for c in range(2):
        a.e(f"ds_read_u16 v{32+2*c}, v{A_ER0} offset:{KC[c]}")
        a.e(f"ds_read_u16 v{33+2*c}, v{A_ER0} offset:{KC[c]+2}")
    a.e(f"""
    v_and_b32 v28, 1, v0
    v_cmp_eq_u32 vcc, 0, v28
    s_waitcnt lgkmcnt(0)
    """)
    for c in range(2):
        c0, c1 = 32+2*c, 33+2*c
        o = 40 + 4*c
        a.e(f"v_perm_b32 v{o}, v{c1}, v{c0}, s57")
        a.e(f"v_perm_b32 v{o+3}, v{c0}, v{c1}, s57")
        a.e(f"v_perm_b32 v{o+2}, v{c1}, v{c0}, s63")
        a.e(f"v_mov_b32 v{o+1}, v{o}")
        a.e(f"v_cndmask_b32 v{o+2}, v{o+3}, v{o+2}, vcc")
    a.e("s_branch L_a_ew")
    a.label("L_a_e2")
    for c in range(2):
        a.e(f"ds_read_b32 v{32+2*c}, v{A_ER0} offset:{KC[c]}")
        a.e(f"ds_read_b32 v{33+2*c}, v{A_ER0} offset:{KC[c]+4}")
    a.e("s_waitcnt lgkmcnt(0)")
    for c in range(2):
        A_, B_ = 32+2*c, 33+2*c
        o = 40 + 4*c
        a.e(f"v_perm_b32 v{o}, v{A_}, v{A_}, s57")
        a.e(f"v_mov_b32 v{o+1}, v{A_}")
        a.e(f"v_perm_b32 v{o+2}, v{A_}, v{A_}, s58")
        a.e(f"v_perm_b32 v{o+3}, v{B_}, v{B_}, s57")
    a.e("s_branch L_a_ew")
    a.label("L_a_e0")
    for c in range(2):
        a.e(f"ds_read_b128 v[{40+4*c}:{43+4*c}], v{A_ER0} offset:{KC[c]}")
        a.e(f"ds_read_b64 v[{32+4*c}:{33+4*c}], v{A_ER1} offset:{KC[c]}")
        a.e(f"ds_read_b32 v{34+4*c}, v{A_ER1} offset:{KC[c]+8}")
    a.e("""
    v_cmp_le_u32 vcc, 32, v0
    s_waitcnt lgkmcnt(0)
    """)
    for c in range(2):
        A_, B_, C_ = 32+4*c, 33+4*c, 34+4*c
        o = 40 + 4*c
        a.e(f"v_perm_b32 v52, v{A_}, v{A_}, s57")
        a.e(f"v_perm_b32 v53, v{B_}, v{A_}, s59")
        a.e(f"v_perm_b32 v54, v{B_}, v{B_}, s57")
        a.e(f"v_perm_b32 v55, v{C_}, v{B_}, s59")
        for q in range(4):
            a.e(f"v_cndmask_b32 v{o+q}, v{o+q}, v{52+q}, vcc")
    a.label("L_a_ew")
    for c in range(2):
        a.e(f"ds_write_b128 v{A_DW}, v[{40+4*c}:{43+4*c}] offset:{KD[c]}")
    a.e(f"""
    v_cmp_gt_u32 vcc, 160, v0
    s_and_b64 exec, exec, vcc
    ds_write_b128 v{A_ZU}, v[48:51] offset:{UR[0] + 64*80}
    ds_write_b128 v{A_ZU}, v[48:51] offset:{UR[1] + 64*80}
    v_cmp_gt_u32 vcc, 32, v0
    s_and_b64 exec, exec, vcc
    ds_write_b128 v{A_ZC}, v[48:51] offset:{CP[0]}
    v_cmp_gt_u32 vcc, 2, v0
    s_and_b64 exec, exec, vcc
    ds_write_b128 v{A_ZG}, v[48:51]
    s_mov_b64 exec, -1
    """)
    if not cfg.mid_u: look_check(True)
    a.e("""
    s_waitcnt lgkmcnt(0)
    s_barrier
    """)
    if not cfg.mid_u: ready_loads()
    a.vm = []
    if not (cfg.dbgT or cfg.dbgY or cfg.dbgN): st(5)
    for c in range(2):
        b = 32 + 16*c
        a.e(f"ds_read_b64 v[{b}:{b+1}], v{A_CR} offset:{KD[c] + 8}")
        a.e(f"ds_read_b128 v[{b+4}:{b+7}], v{A_CR} offset:{KD[c] + 16}")
    for c in range(2):
        a.e(f"s_waitcnt lgkmcnt({2 - 2*c})" if c == 0 else "s_waitcnt lgkmcnt(4)")
        b = 32 + 16*c
        n0, n1, n2, n3, n4, n5 = b, b+1, b+4, b+5, b+6, b+7
        m = b + 8
        t1 = 96 + 8*c
        base = CP[c]
        a.e(f"ds_write_b128 v{A_CW}, v[{n2}:{n5}] offset:{base}")
        a.e(f"v_alignbit_b32 v{m}, v{n1}, v{n0}, 16")
        for q, (hi, lo) in enumerate(((n2, n1), (n3, n2), (n4, n3))):
            a.e(f"v_alignbit_b32 v{m+1+q}, v{hi}, v{lo}, 16")
        a.e(f"ds_write_b128 v{A_CW}, v[{m}:{m+3}] offset:{base + 3*4160}")
        for q, (hi, lo) in enumerate(((n2, n1), (n3, n2), (n4, n3), (n5, n4))):
            a.e(f"v_alignbit_b32 v{t1+q}, v{hi}, v{lo}, 16")
        a.e(f"ds_write_b128 v{A_CW}, v[{t1}:{t1+3}] offset:{base + 4160}")
        for q, r in enumerate((n1, n2, n3, n4)): a.e(f"v_mov_b32 v{t1+4+q}, v{r}")
        a.e(f"ds_write_b128 v{A_CW}, v[{t1+4}:{t1+7}] offset:{base + 2*4160}")
    if not (cfg.dbgT or cfg.dbgY or cfg.dbgN): st(6)
    a.e(f"""
    s_cmp_lg_u32 s44, 0
    s_cbranch_scc1 L_a_fast
    s_cmp_ge_u32 s39, 2
    s_cbranch_scc1 L_a_utf_go
    s_and_b32 s58, s38, 0xfffffff8
    s_getreg_b32 s57, hwreg(HW_REG_XCC_ID)
    s_and_b32 s57, s57, 7
    s_or_b32 s59, s57, s58
    s_mov_b32 s61, 0
    v_add_u32 v28, 8192, v{A_FU}
    """)
    a.label("L_a_utf_poll")
    a.e(f"""
    global_load_dword v30, v{A_FU}, s[36:37] sc1
    global_load_dword v31, v28, s[36:37] sc1
    s_add_u32 s61, s61, 1
    s_waitcnt vmcnt(0)
    v_cmp_ne_u32 vcc, s59, v30
    s_cmp_eq_u64 vcc, 0
    s_cbranch_scc1 L_a_utf_local
    v_cmp_ne_u32 s[64:65], s58, v31
    s_and_b64 vcc, vcc, s[64:65]
    s_cbranch_vccz L_a_utf_glob
    s_cmp_eq_u32 s61, {cfg.ut_patience}
    s_cbranch_scc0 L_a_utf_again
    s_mov_b32 s60, 0
    """)
    a.label("L_a_utf_pub")
    a.e(f"""
    global_store_dwordx4 v{A_UT0}, v[224:227], s[36:37] sc1
    global_store_dwordx4 v{A_UT1}, v[228:231], s[36:37] sc1
    global_store_dwordx4 v200, v[232:235], s[36:37] sc1
    global_store_dwordx4 v201, v[236:239], s[36:37] sc1
    s_waitcnt vmcnt(0)
    v_add_u32 v29, 8192, v{A_FUS}
    v_mov_b32 v30, s58
    s_mov_b64 exec, 1
    global_store_dword v29, v30, s[36:37] sc1
    s_mov_b64 exec, -1
    s_cmp_lg_u32 s60, 0
    s_cbranch_scc1 L_a_utf_glob2
    """)
    a.label("L_a_utf_again")
    a.e(f"""
    s_cmp_gt_u32 s61, {SPIN}
    s_cbranch_scc1 L_a_utf_glob2
    s_sleep {cfg.sl_ut}
    s_branch L_a_utf_poll
    """)
    a.label("L_a_utf_local")
    a.e("s_mov_b32 s57, 1")
    a.e("s_branch L_a_utf_ok")
    a.label("L_a_utf_glob")
    a.e(f"""
    s_mov_b32 s60, 1
    s_cmp_lt_u32 s61, {cfg.ut_patience}
    s_cbranch_scc1 L_a_utf_pub
    s_cmp_eq_u32 s61, {cfg.ut_patience}
    s_cbranch_scc1 L_a_utf_pub
    """)
    a.label("L_a_utf_glob2")
    a.e("s_mov_b32 s57, 0")
    a.label("L_a_utf_ok")
    a.e(f"""
    v_mov_b32 v31, s57
    v_mov_b32 v30, 0
    ds_write_b32 v30, v31 offset:{NONCE_LDS+4}
    """)
    a.label("L_a_utf_go")
    a.e(f"""
    s_waitcnt lgkmcnt(0)
    s_barrier
    global_load_dwordx4 v[208:211], v{A_UG}, s[36:37] sc1
    global_load_dwordx4 v[212:215], v{A_UG}, s[36:37] offset:2048 sc1
    """)
    a.label("L_a_fast")
    a.e(f"""
    v_mov_b32 v30, 0
    ds_read_b32 v31, v30 offset:{NONCE_LDS+4}
    """)
    for e in range(4):
        h, hi = e // 2, e % 2
        a.e(f"v_{'and_b32' if hi else 'lshlrev_b32'} v{80+e}, {'0xffff0000' if hi else '16'}, v{24+h}")
    for rho in range(4):
        for e in range(4):
            h, hi = e // 2, e % 2
            a.e(f"v_{'and_b32' if hi else 'lshlrev_b32'} v{96+4*rho+e}, {'0xffff0000' if hi else '16'}, v{16+2*rho+h}")
            a.e(f"v_mul_f32 v{96+4*rho+e}, v{96+4*rho+e}, v{80+e}")
        for h in range(2):
            a.e(f"v_cvt_pk_bf16_f32 v{84+h}, v{96+4*rho+2*h}, v{96+4*rho+2*h+1}")
        for h in range(2):
            a.e(f"v_lshlrev_b32 v{96+4*rho+2*h}, 16, v{84+h}")
            a.e(f"v_and_b32 v{96+4*rho+2*h+1}, 0xffff0000, v{84+h}")
    a.e("s_waitcnt vmcnt(0) lgkmcnt(0)")
    a.e("v_readfirstlane_b32 s46, v31")
    if cfg.yglobal: a.e("s_mov_b32 s46, 0")
    a.vm = []
    if not (cfg.dbgT or cfg.dbgY or cfg.dbgN): st(7)
    a.e(f"""
    ds_write_b128 v{A_UL}, v[208:211] offset:{UR[0]}
    ds_write_b128 v{A_UL}, v[212:215] offset:{UR[0] + 32*80}
    s_waitcnt lgkmcnt(0)
    s_barrier
    """)
    if not (cfg.dbgT or cfg.dbgY or cfg.dbgN): st(8)
    a.e(f"s_setprio {cfg.prioA2}")
    if cfg.touch:
        K.a_touch(a, cfg, {3: ["o"]})
    if cfg.ytouch:
        a.e(f"""
        s_cmp_lg_u32 s39, 2
        s_cbranch_scc1 L_a_noyt
        s_lshl_b32 s57, s50, 12
        s_add_u32 s57, s57, {YT}
        v_lshl_add_u32 v28, v1, 7, s57
        global_load_dword v252, v28, s[36:37]
        """)
        a.label("L_a_noyt")
    if cfg.x_exit == "prep":
        K.stamps_out(a, cfg, 14)
        a.e("s_branch L_end")
    if cfg.gate == 2: gate()
    ACC0, ACC1 = 128, 144
    NB = 3
    FR = [32 + 16*i for i in range(NB)]
    steps = [(dl, hf) for dl in range(16) for hf in range(2)]
    def rd(i):
        dl, hf = steps[i]
        f = FR[i % NB]
        ao = 64*dl + 32*(1-hf)
        bo = 80*dl + 32*(1-hf)
        t = f"cv{i}"
        return [(f"ds_read_b64 v[{f}:{f+1}], v{A_VA} offset:{ao}", t),
                (f"ds_read_b64 v[{f+2}:{f+3}], v{A_VA} offset:{ao+8}", t),
                (f"ds_read_b128 v[{f+8}:{f+11}], v{A_VB} offset:{bo+2560}", t),
                (f"ds_read_b128 v[{f+12}:{f+15}], v{A_VB} offset:{bo}", t),
                (f"ds_read_b64 v[{f+4}:{f+5}], v{A_VA} offset:{ao+2048}", t),
                (f"ds_read_b64 v[{f+6}:{f+7}], v{A_VA} offset:{ao+2056}", t)]
    a.lg = []
    for i in (0, 1):
        for t, tg in rd(i): a.e(t, lg=tg)
    for i in range(cfg.x_conv):
        f = FR[i % NB]
        a.wait_lg(f"cv{i}")
        c0 = "0" if i == 0 else f"v[{ACC0}:{ACC0+15}]"
        c1 = "0" if i == 0 else f"v[{ACC1}:{ACC1+15}]"
        R = rd(i + 2) if i + 2 < cfg.x_conv else []
        a.e(f"v_mfma_f32_32x32x16_bf16 v[{ACC0}:{ACC0+15}], v[{f}:{f+3}], v[{f+8}:{f+11}], {c0}")
        for t, tg in R[0:2]: a.e(t, lg=tg)
        a.e(f"v_mfma_f32_32x32x16_bf16 v[{ACC1}:{ACC1+15}], v[{f}:{f+3}], v[{f+12}:{f+15}], {c1}")
        for t, tg in R[2:4]: a.e(t, lg=tg)
        a.e(f"v_mfma_f32_32x32x16_bf16 v[{ACC1}:{ACC1+15}], v[{f+4}:{f+7}], v[{f+8}:{f+11}], v[{ACC1}:{ACC1+15}]")
        for t, tg in R[4:6]: a.e(t, lg=tg)
    st(9)
    if cfg.x_exit == "conv":
        K.stamps_out(a, cfg, 14)
        a.e("s_branch L_end")
    if cfg.utclean == 2:
        a.e(f"""
        s_cmp_ge_u32 s39, 2
        s_cbranch_scc1 L_a_nocl2
        global_store_dwordx4 v{A_UT0}, v[224:227], s[36:37] sc1
        global_store_dwordx4 v{A_UT1}, v[228:231], s[36:37] sc1
        global_store_dwordx4 v200, v[232:235], s[36:37] sc1
        global_store_dwordx4 v201, v[236:239], s[36:37] sc1
        s_nop 1
        """)
        a.label("L_a_nocl2")
    a.e(f"s_setprio {cfg.prioA3}")
    a.e("""
    s_waitcnt vmcnt(0) lgkmcnt(0)
    s_barrier
    """)
    for tau, acc in ((0, ACC0), (1, ACC1)):
        for q in range(4):
            a.e(f"ds_write_b128 v{A_PW}, v[{acc+4*q}:{acc+4*q+3}] offset:{YP + tau*32*144 + q*32}")
    a.e("""
    s_waitcnt lgkmcnt(0)
    s_barrier
    """)
    for c in range(2):
        o = YP + (c*2)*64*144
        b = 32 + 16*c
        a.e(f"ds_read_b128 v[{b}:{b+3}], v{A_OR} offset:{o}")
        a.e(f"ds_read_b128 v[{b+8}:{b+11}], v{A_OR} offset:{o + 64*144}")
        a.e(f"ds_read_b128 v[{b+4}:{b+7}], v{A_OR} offset:{o + 16}")
        a.e(f"ds_read_b128 v[{b+12}:{b+15}], v{A_OR} offset:{o + 64*144 + 16}")
    for c in range(2):
        a.e(f"s_waitcnt lgkmcnt({4-4*c})")
        b = 32 + 16*c
        for q in range(8): a.e(f"v_add_f32 v{b+q}, v{b+q}, v{b+8+q}")
        for m in range(4): a.e(f"v_cvt_pk_bf16_f32 v{64+4*c+m}, v{b+2*m}, v{b+2*m+1}")
    a.e(f"""
    v_add_u32 v29, 4096, v{A_YG}
    s_cmp_eq_u32 s46, 0
    s_cbranch_scc1 L_a_yg
    global_store_dwordx4 v{A_YG}, v[64:67], s[36:37] {cfg.locfl}
    global_store_dwordx4 v29, v[68:71], s[36:37] {cfg.locfl}
    s_branch L_a_yd
    """)
    a.label("L_a_yg")
    a.e(f"""
    global_store_dwordx4 v{A_YG}, v[64:67], s[36:37] sc1
    global_store_dwordx4 v29, v[68:71], s[36:37] sc1
    """)
    a.label("L_a_yd")
    a.e(f"""
    s_waitcnt vmcnt(0)
    s_barrier
    """)
    st(10)
    a.e(f"""
    s_cmp_lg_u32 s39, 1
    s_cbranch_scc1 L_a_ytf_go
    v_mov_b32 v28, s38
    s_mov_b64 exec, 1
    s_cmp_eq_u32 s46, 0
    s_cbranch_scc1 L_a_yfg
    global_store_dword v{A_FYS}, v28, s[36:37]
    s_branch L_a_yfd
    """)
    a.label("L_a_yfg")
    a.e(f"global_store_dword v{A_FYS}, v28, s[36:37] sc1")
    a.label("L_a_yfd")
    a.e("s_mov_b64 exec, -1")
    if cfg.dbgY: st(4)
    a.e("s_mov_b32 s61, 0")
    a.label("L_a_ytf_poll")
    a.e(f"""
    global_load_dword v29, v{A_FY}, s[36:37] sc1
    s_add_u32 s61, s61, 1
    s_waitcnt vmcnt(0)
    v_cmp_ne_u32 vcc, s38, v29
    s_cmp_gt_u32 s61, {SPIN}
    s_cbranch_scc1 L_a_ytf_go
    s_cbranch_vccz L_a_ytf_go
    s_sleep {cfg.sl_yt}
    s_branch L_a_ytf_poll
    """)
    a.label("L_a_ytf_go")
    if cfg.dbgY:
        st(5); K.stampval(a, cfg, 7, "s61")
    a.e("s_barrier")
    if cfg.dbgY: st(6)
    a.e(f"""
    global_load_dwordx2 v[64:65], v{A_YL}, s[36:37] sc1
    global_load_dwordx2 v[66:67], v{A_YL+1}, s[36:37] sc1
    global_load_dwordx2 v[68:69], v{A_YL+2}, s[36:37] sc1
    global_load_dwordx2 v[70:71], v{A_YL+3}, s[36:37] sc1
    s_waitcnt vmcnt(0)
    """)
    st(11)
    for rho in range(4):
        m, hi = rho // 2, rho % 2
        for e in range(4):
            src = 64 + 2*e + m
            a.e(f"v_{'and_b32' if hi else 'lshlrev_b32'} v{84+e}, {'0xffff0000' if hi else '16'}, v{src}")
        for e in range(4):
            a.e(f"v_add_f32 v{84+e}, v{84+e}, v{96+4*rho+e}")
        a.e(f"v_cvt_pk_bf16_f32 v{88+2*rho}, v84, v85")
        a.e(f"v_cvt_pk_bf16_f32 v{89+2*rho}, v86, v87")
        if not cfg.wide_out:
            if rho == 2: a.e(f"v_add_u32 v{A_OUT}, 4096, v{A_OUT}")
            a.e(f"global_store_dwordx2 v{A_OUT}, v[{88+2*rho}:{89+2*rho}], s[32:33] offset:{2048*(rho % 2)} {cfg.outfl}")
    if cfg.wide_out:
        a.e(f"""
        v_and_b32 v72, 1, v1
        v_cmp_eq_u32 vcc, 0, v72
        v_mov_b32 v73, 4088
        v_cndmask_b32 v73, v73, 0, vcc
        v_add_u32 v{A_OUT}, v{A_OUT}, v73
        """)
        for q in range(4):
            a.e(f"v_cndmask_b32 v{72+q}, v{88+q}, v{92+q}, vcc")
        for q in range(4):
            a.e(f"v_mov_b32_dpp v{76+q}, v{72+q} quad_perm:[1,0,3,2] row_mask:0xf bank_mask:0xf")
        for h in range(2):
            o = 32 + 4*h
            a.e(f"v_cndmask_b32 v{o}, v{76+2*h}, v{88+2*h}, vcc")
            a.e(f"v_cndmask_b32 v{o+1}, v{77+2*h}, v{89+2*h}, vcc")
            a.e(f"v_cndmask_b32 v{o+2}, v{92+2*h}, v{76+2*h}, vcc")
            a.e(f"v_cndmask_b32 v{o+3}, v{93+2*h}, v{77+2*h}, vcc")
            a.e(f"global_store_dwordx4 v{A_OUT}, v[{o}:{o+3}], s[32:33] offset:{2048*h} {cfg.outfl}")
    a.e("""
    s_cmp_lg_u32 s41, 0
    s_cbranch_scc1 L_a_norst
    s_cmp_lg_u32 s39, 1
    s_cbranch_scc1 L_a_norst
    v_mov_b32 v8, s45
    v_mov_b32 v9, 0
    s_mov_b64 exec, 1
    global_store_dword v8, v9, s[34:35] sc1
    s_mov_b64 exec, -1
    """)
    a.label("L_a_norst")
    st(12)
    K.stampval(a, cfg, 13, "s46")
    K.stamps_out(a, cfg, 14)
```

```python
import re

TRANS = ("v_exp_f32", "v_log_f32", "v_rcp_f32", "v_rsq_f32", "v_sqrt_f32", "v_sin_f32", "v_cos_f32")

def regs_of(tok):
    tok = tok.strip()
    tok = tok.lstrip("-").replace("abs(", "").replace("|", "").rstrip(")")
    m = re.fullmatch(r"([vsa])\[(\d+):(\d+)\]", tok)
    if m:
        return {(m.group(1), i) for i in range(int(m.group(2)), int(m.group(3)) + 1)}
    m = re.fullmatch(r"([vsa])(\d+)", tok)
    if m:
        return {(m.group(1), int(m.group(2)))}
    if tok in ("vcc", "vcc_lo", "vcc_hi"):
        return {("vcc", 0)}
    if tok in ("exec", "exec_lo", "exec_hi"):
        return {("exec", 0)}
    if tok == "m0":
        return {("m0", 0)}
    return set()

class Ins:
    __slots__ = ("text", "op", "dst", "src", "kind", "passes", "dpp", "srcC", "lds_dma", "wide_store")
    def __init__(self, text):
        self.text = text
        t = text.split(";")[0].strip()
        parts = t.split(None, 1)
        self.op = parts[0]
        ops = []
        if len(parts) > 1:
            cur = ""; depth = 0
            for ch in parts[1]:
                if ch == "[": depth += 1
                if ch == "]": depth -= 1
                if ch == "," and depth == 0:
                    ops.append(cur); cur = ""
                else:
                    cur += ch
            ops.append(cur)
        first = [o.strip().split()[0] if o.strip() else "" for o in ops]
        op = self.op
        self.dpp = ("quad_perm" in t or "row_" in t or "wave_" in t)
        self.lds_dma = (" lds" in t and op.startswith("buffer_load")) or op.startswith("global_load_lds")
        self.wide_store = bool(re.match(r"(global|buffer)_store_dwordx[34]", op))
        self.srcC = set()
        self.passes = 0
        R = [regs_of(o) for o in first]
        allr = lambda lst: set().union(*lst) if lst else set()
        if op.startswith("v_mfma"):
            self.kind = "mfma"
            self.passes = 8 if "32x32" in op else 4
            self.dst = R[0]; self.src = allr(R[1:4]); self.srcC = R[3] if len(R) > 3 else set()
        elif op.startswith("v_cmp"):
            self.kind = "valu"; self.dst = R[0]; self.src = allr(R[1:])
        elif op.startswith("v_readfirstlane") or op.startswith("v_readlane"):
            self.kind = "valu"; self.dst = R[0]; self.src = allr(R[1:])
        elif op.startswith("v_permlane"):
            self.kind = "valu"; self.dst = allr(R[:2]); self.src = allr(R[:2])
        elif op.startswith("v_"):
            self.kind = "valu"; self.dst = R[0]; self.src = allr(R[1:])
            if op.startswith(("v_fmac", "v_dot2c", "v_pk_fmac")): self.src |= R[0]
            if op.startswith("v_cndmask") and len(R) == 3: self.src |= {("vcc", 0)}
            if op.startswith(("v_add_co", "v_sub_co", "v_addc_co")):
                self.dst = allr(R[:2]); self.src = allr(R[2:])
            if self.dpp: self.src |= R[0]
        elif op.startswith("ds_"):
            self.kind = "ds"
            if op.startswith(("ds_read", "ds_bpermute", "ds_permute", "ds_swizzle")) or "_rtn" in op:
                self.dst = R[0]; self.src = allr(R[1:])
            else:
                self.dst = set(); self.src = allr(R)
        elif op.startswith(("global_", "buffer_")):
            self.kind = "vmem"
            if self.lds_dma:
                self.dst = set(); self.src = allr(R) | {("m0", 0)}
            elif "_load" in op:
                self.dst = R[0]; self.src = allr(R[1:])
            else:
                self.dst = set(); self.src = allr(R)
        elif op.startswith("s_"):
            self.kind = "salu"
            if op.startswith(("s_cmp", "s_cbranch", "s_branch", "s_waitcnt", "s_barrier", "s_nop", "s_endpgm", "s_setprio", "s_sleep")):
                self.dst = set(); self.src = allr(R)
            else:
                self.dst = R[0] if R else set(); self.src = allr(R[1:])
                if "saveexec" in op: self.dst |= {("exec", 0)}
        else:
            raise ValueError("unknown op: " + text)

    def states(self):
        if self.op == "s_nop":
            return int(self.text.split()[1].split(";")[0], 0) + 1
        return 1

def vonly(s): return {r for r in s if r[0] in ("v", "a")}
def sonly(s): return {r for r in s if r[0] in ("s", "vcc")}

def need(prev, cur):
    n = 0
    pv = vonly(prev.dst)
    if prev.kind == "valu":
        if cur.kind == "mfma" and pv & cur.src: n = max(n, 2)
        if cur.kind == "valu":
            if prev.op.replace("_e32", "").replace("_e64", "") in TRANS and pv & cur.src and cur.op not in TRANS: n = max(n, 1)
            if prev.op in TRANS and pv & cur.src: n = max(n, 1)
            if cur.op.startswith(("v_readfirstlane", "v_readlane")) and pv & cur.src: n = max(n, 1)
            if cur.dpp and pv & cur.src: n = max(n, 2)
            if cur.op.startswith("v_permlane") and pv & cur.src: n = max(n, 2)
            if sonly(prev.dst) & cur.src: n = max(n, 2)
        if cur.kind == "vmem" and sonly(prev.dst) & cur.src: n = max(n, 5)
        if cur.kind == "salu" and sonly(prev.dst) & cur.src: n = max(n, 1)
    if prev.kind == "mfma":
        big = 12 if prev.passes == 8 else 8
        if cur.kind == "valu" and (prev.dst & (cur.src | cur.dst)): n = max(n, big)
        if cur.kind in ("ds", "vmem") and (prev.dst & (cur.src | cur.dst)): n = max(n, big)
        if cur.kind == "mfma":
            ab = cur.src - cur.srcC if not (cur.srcC and cur.srcC <= cur.src and False) else cur.src
            t = cur.text.split(";")[0]
            opsAB = set()
            toks = [x.strip().split()[0] for x in re.split(r",(?![^\[]*\])", t.split(None, 1)[1])]
            opsAB = regs_of(toks[1]) | regs_of(toks[2])
            if prev.dst & opsAB: n = max(n, big)
            if prev.dst & cur.srcC:
                if not (prev.dst == cur.srcC and prev.passes == cur.passes):
                    n = max(n, 10 if prev.passes == 8 else 6)
        if cur.kind == "valu" and (prev.srcC & cur.dst): n = max(n, 7 if prev.passes == 8 else 3)
    if prev.wide_store and cur.kind == "valu" and (vonly(prev.src) & cur.dst): n = max(n, 2)
    if prev.kind == "salu" and ("m0", 0) in prev.dst and cur.lds_dma: n = max(n, 1)
    return n

class Asm:
    def __init__(self):
        self.lines = []
        self.vm = []
        self.lg = []
        self.nlabel = 0
    def e(self, text, vm=None, lg=None):
        for ln in text.strip("\n").split("\n"):
            s = ln.strip()
            if not s or s.startswith(";"):
                if s: self.lines.append("    " + s)
                continue
            if s == "s_sleep 0":
                continue
            if s.endswith(":") or s.startswith("."):
                self.lines.append(s); continue
            ins = Ins(s)
            self.lines.append(ins)
            if ins.kind == "vmem" and not ins.op.startswith(("buffer_inv", "buffer_wbl2")):
                self.vm.append(vm)
            if ins.kind == "ds":
                self.lg.append(lg)
            if ins.op == "s_waitcnt" and "lgkmcnt(0)" in ins.text:
                self.lg = []
    def c(self, text): self.lines.append("    ; " + text)
    def label(self, name): self.lines.append(name + ":")
    def newlabel(self, base):
        self.nlabel += 1
        return f"L_{base}_{self.nlabel}"
    def wait_vm(self, tags, extra=""):
        if isinstance(tags, str): tags = [tags]
        last = -1
        for i, t in enumerate(self.vm):
            if t in tags: last = i
        if last < 0:
            return
        n = len(self.vm) - 1 - last
        assert n <= 63
        self.e(f"s_waitcnt vmcnt({n}){extra}")
        self.vm = self.vm[last + 1:]
    def wait_lg(self, tags):
        if isinstance(tags, str): tags = [tags]
        last = -1
        for i, t in enumerate(self.lg):
            if t in tags: last = i
        if last < 0: return
        n = len(self.lg) - 1 - last
        if n > 15:
            n = 15
            last = len(self.lg) - 1 - 15
        self.e(f"s_waitcnt lgkmcnt({n})")
        self.lg = self.lg[last + 1:]
    def wait_vm_all(self, extra=""):
        self.e(f"s_waitcnt vmcnt(0){extra}")
        self.vm = []
    def render(self, pad=True):
        out = []; hist = []
        nn = 0
        snaps = {}
        active = []
        for ln in self.lines:
            if isinstance(ln, str):
                out.append(ln)
                t = ln.strip()
                if t.endswith(":"):
                    for h in snaps.pop(t[:-1], []): active.append(list(h))
                continue
            if pad:
                req = 0
                for H in [hist] + active:
                    dist = 0
                    for p in reversed(H[-24:]):
                        r = need(p, ln)
                        if r - dist > req: req = r - dist
                        dist += p.states()
                        if dist >= 12: break
                while req > 0:
                    k = min(req, 16)
                    nop = Ins(f"s_nop {k-1}")
                    out.append("    " + nop.text + "  ; hz"); hist.append(nop); req -= k; nn += 1
                    for H in active: H.append(nop)
            out.append("    " + ln.text); hist.append(ln)
            for H in active: H.append(ln)
            active = [H for H in active if sum(p.states() for p in H[-14:]) < 400 and len(H) < 10**9]
            active = [H for H in active if getattr(H, "n", 0) < 0 or True]
            if ln.op.startswith(("s_cbranch", "s_branch")):
                tgt = ln.text.split()[1]
                snaps.setdefault(tgt, []).append(hist[-24:])
                if ln.op == "s_branch":
                    hist = []
            if len(active) > 64: active = active[-64:]
        self.nnops = nn
        return "\n".join(out) + "\n"

KNAME = "concat_heads__ssm_conv_s4__linear_attn_block__prompt_kernel"
def wrap(body, header, grid, block, lds, vgpr=256, sgpr=102, accum=256):
    return f"""{header}; @launch grid=({grid},1,1) block=({block},1,1) lds={lds}
.amdgcn_target "amdgcn-amd-amdhsa--gfx950"
.text
.globl {KNAME}
.p2align 8
.type {KNAME},@function
{KNAME}:
{body}
.section .rodata,"a"
.p2align 6
.amdhsa_kernel {KNAME}
  .amdhsa_next_free_vgpr {vgpr}
  .amdhsa_next_free_sgpr {sgpr}
  .amdhsa_accum_offset {accum}
  .amdhsa_group_segment_fixed_size 0
  .amdhsa_kernarg_size 120
  .amdhsa_user_sgpr_count 2
  .amdhsa_user_sgpr_kernarg_segment_ptr 1
  .amdhsa_system_sgpr_workgroup_id_x 1
.end_amdhsa_kernel
"""
```
